```python
import torch

def _softmax(x, axis=-1):
    return torch.softmax(x, dim=axis)
def _gelu(x):
    return torch.nn.functional.gelu(x, approximate="tanh")
def _silu(x):
    return torch.nn.functional.silu(x)
def _sigmoid(x):
    return torch.sigmoid(x)
def _layernorm(x, axis=-1, eps=1e-5):
    m = x.mean(dim=axis, keepdim=True)
    v = x.var(dim=axis, keepdim=True, unbiased=False)
    return (x - m) / torch.sqrt(v + eps)
def _scatter_add(tgt, idx, src, axis=0):
    return tgt.clone().index_add_(axis, idx, src)
def _segment_sum(src, seg, n):
    out = torch.zeros((n,) + src.shape[1:], dtype=src.dtype)
    return out.index_add_(0, seg, src)
def _pad(x, pw):
    flat = tuple(v for pair in reversed(pw) for v in pair)
    return torch.nn.functional.pad(x, flat)

kernel_name = 'gated_mix__spectral_gfnet__ssm_conv_s5__prompt'

def setup_inputs():

    _w = (lambda a: (lambda t: t.to(torch.bfloat16) if t.is_floating_point() else t)(torch.as_tensor(a)))
    def _A_setup():
        B, S, D = 1, 2048, 1024
        Df = D // 2 + 1
        return {
            "x": _w((lambda *s: torch.randn(*s, dtype=torch.bfloat16) * 0.05)(B, S, D)),
            "w_r": _w((lambda *s: torch.randn(*s, dtype=torch.bfloat16) * 0.8)(S, Df) * 0.02),
            "w_i": _w((lambda *s: torch.randn(*s, dtype=torch.bfloat16) * 0.8)(S, Df) * 0.02),
        }
    _A_in = _A_setup()

    def _B_setup():
        B, S, D = 1, 2048, 1024
        P = D
        Lambda_re = -0.5 * (lambda _x: torch.exp(torch.as_tensor(_x)))((lambda *s: torch.randn(*s, dtype=torch.bfloat16) * 0.2)(P))
        Lambda_im = (lambda *s: torch.randn(*s, dtype=torch.bfloat16) * 0.4)(P) * 1.0
        B_re = (lambda *s: torch.randn(*s, dtype=torch.bfloat16) * 0.2)(P, D) * (D ** -0.5)
        B_im = (lambda *s: torch.randn(*s, dtype=torch.bfloat16) * 0.2)(P, D) * (D ** -0.5)
        C_re = (lambda *s: torch.randn(*s, dtype=torch.bfloat16) * 0.2)(D, P) * (P ** -0.5)
        C_im = (lambda *s: torch.randn(*s, dtype=torch.bfloat16) * 0.2)(D, P) * (P ** -0.5)
        log_dt = (lambda *s: torch.randn(*s, dtype=torch.bfloat16) * 0.2)(P) * 0.3 - 2.0
        Dskip = (lambda *s: torch.randn(*s, dtype=torch.bfloat16) * 0.05)(D)
        return {
            "x": _w((lambda *s: torch.randn(*s, dtype=torch.bfloat16) * 0.05)(B, S, D)),
            "Lambda_re": _w(Lambda_re),
            "Lambda_im": _w(Lambda_im),
            "B_re": _w(B_re),
            "B_im": _w(B_im),
            "C_re": _w(C_re),
            "C_im": _w(C_im),
            "log_dt": _w(log_dt),
            "Dskip": _w(Dskip),
        }
    _B_in = _B_setup()

    return {
        "A_x": _A_in["x"],
        "A_w_r": _A_in["w_r"],
        "A_w_i": _A_in["w_i"],
        "B_x": _B_in["x"],
        "B_Lambda_re": _B_in["Lambda_re"],
        "B_Lambda_im": _B_in["Lambda_im"],
        "B_B_re": _B_in["B_re"],
        "B_B_im": _B_in["B_im"],
        "B_C_re": _B_in["C_re"],
        "B_C_im": _B_in["C_im"],
        "B_log_dt": _B_in["log_dt"],
        "B_Dskip": _B_in["Dskip"],
        "gate_w": _w((lambda *s: torch.randn(*s, dtype=torch.bfloat16) * 0.05)(1024) * 16.0),
    }

def reference(A_x, A_w_r, A_w_i, B_x, B_Lambda_re, B_Lambda_im, B_B_re, B_B_im, B_C_re, B_C_im, B_log_dt, B_Dskip, gate_w):
    def _A_ref(x, w_r, w_i):
        B, S, D = x.shape
        X = (lambda x, axes=(-2,-1): torch.fft.rfft2(x.float(), dim=axes))(x, axes=(-2, -1))
        W = w_r + 1j * w_i
        X = X * W
        y = (lambda x, s, axes=(-2,-1): torch.fft.irfft2(x, s=s, dim=axes).to(torch.bfloat16))(X, (S, D), axes=(-2, -1))
        return y

    def _B_ref(x, Lambda_re, Lambda_im, B_re, B_im, C_re, C_im, log_dt, Dskip):
        Bsz, L, H = x.shape
        Lam = Lambda_re + 1j * Lambda_im
        Bmat = B_re + 1j * B_im
        Cmat = C_re + 1j * C_im
        dt = torch.exp(log_dt)
        Lam_bar = torch.exp(dt * Lam)
        B_bar = ((Lam_bar - 1.0) / Lam)[:, None] * Bmat
        Bu = torch.einsum("bld,pd->blp", x + 0j, B_bar)
        h = torch.zeros_like(Bu[:, 0, :])
        hs = []
        for t in range(L):
            h = Lam_bar[None, :] * h + Bu[:, t, :]
            hs.append(h)
        hseq = torch.stack(hs, 1)
        y = 2.0 * torch.einsum("blp,dp->bld", hseq, Cmat).real + x * Dskip[None, None, :]
        return y

    x = A_x
    g = _sigmoid((x * gate_w).sum(-1, keepdims=True))
    a = _A_ref(x, A_w_r, A_w_i)
    b = _B_ref(x, B_Lambda_re, B_Lambda_im, B_B_re, B_B_im, B_C_re, B_C_im, B_log_dt, B_Dskip)
    return g * a + (1 - g) * b
```

```python
import re

class R:
    def __init__(self, kind, idx, n=1):
        self.kind, self.idx, self.n = kind, idx, n
    def __str__(self):
        if self.n == 1: return f"{self.kind}{self.idx}"
        return f"{self.kind}[{self.idx}:{self.idx+self.n-1}]"
    __repr__ = __str__
    def __format__(self, spec): return str(self)
    def __getitem__(self, i):
        if isinstance(i, slice):
            a = i.start or 0; b = self.n if i.stop is None else i.stop
            assert 0 <= a < b <= self.n, (self, i)
            return R(self.kind, self.idx + a, b - a)
        assert 0 <= i < self.n, (self, i)
        return R(self.kind, self.idx + i, 1)
    def q(self, i, w=4):
        return self[i * w:(i + 1) * w]
    def __len__(self): return self.n

class Pool:
    def __init__(self, kind, lo, hi):
        self.kind, self.lo, self.hi = kind, lo, hi
        self.used = [False] * hi
        self.high = lo
    def alloc(self, n=1, align=None):
        if align is None: align = 1 if n == 1 else (2 if n < 4 else 4)
        if self.kind != 's' and n >= 2: align = max(align, 2)
        i = (self.lo + align - 1) // align * align
        while i + n <= self.hi:
            if not any(self.used[i:i + n]):
                for j in range(i, i + n): self.used[j] = True
                self.high = max(self.high, i + n)
                return R(self.kind, i, n)
            i += align
        raise RuntimeError(f"out of {self.kind} registers (n={n}); used={sum(self.used)}")
    def free(self, *rs):
        for r in rs:
            for j in range(r.idx, r.idx + r.n):
                assert self.used[j], f"double free {r}"
                self.used[j] = False
    def nused(self): return sum(self.used)

_REG = re.compile(r'\b([vas])(\d+)\b|\b([vas])\[(\d+):(\d+)\]|\b(vcc|exec|m0|scc)(_lo|_hi)?\b')
def regs_of(tok):
    out = set()
    for m in _REG.finditer(tok):
        if m.group(1): out.add((m.group(1), int(m.group(2))))
        elif m.group(3):
            for j in range(int(m.group(4)), int(m.group(5)) + 1): out.add((m.group(3), j))
        else: out.add((m.group(6), 0))
    return out

TRANS = ('v_exp_', 'v_log_', 'v_rcp_', 'v_rsq_', 'v_sqrt_', 'v_sin_', 'v_cos_')
def split_ops(s):
    out, depth, cur = [], 0, ''
    for ch in s:
        if ch in '[(': depth += 1
        if ch in '])': depth -= 1
        if ch == ',' and depth == 0: out.append(cur.strip()); cur = ''
        else: cur += ch
    if cur.strip(): out.append(cur.strip())
    return out

class Ins:
    __slots__ = ('text', 'mn', 'defs', 'uses', 'cls', 'label', 'target', 'passes', 'A', 'B', 'C', 'data', 'opt', 'tok', 'ws', 'uncond')
    def __init__(self, text):
        self.text = text; self.label = None; self.target = None; self.passes = 0
        self.defs = set(); self.uses = set(); self.cls = 'other'; self.A = self.B = self.C = set(); self.data = set()
        self.opt = 0; self.tok = None; self.ws = 1; self.uncond = False
        t = text.split(';')[0].strip()
        if t.endswith(':'):
            self.label = t[:-1]; self.cls = 'label'; self.mn = ''; self.ws = 0; return
        if t.startswith('.') or not t:
            self.cls = 'dir'; self.mn = ''; self.ws = 0; return
        p = t.split(None, 1)
        mn = self.mn = p[0]
        ops = split_ops(p[1]) if len(p) > 1 else []
        rs = [regs_of(o) for o in ops]
        allr = set().union(*rs) if rs else set()
        rest = set().union(*rs[1:]) if len(rs) > 1 else set()
        if mn.startswith('v_mfma'):
            self.cls = 'mfma'; self.defs = rs[0]; self.A, self.B, self.C = rs[1], rs[2], rs[3]; self.uses = rest
            self.passes = 8 if '32x32' in mn else 4
            assert 'bf16' in mn
        elif mn.startswith('v_'):
            self.cls = 'valu'
            if mn.startswith('v_cmpx'): raise RuntimeError('v_cmpx unsupported')
            if mn.startswith(('v_permlane', 'v_swap')):
                self.defs = allr; self.uses = allr
            elif mn.startswith(('v_add_co', 'v_sub_co', 'v_addc_co', 'v_subb_co', 'v_subrev_co')):
                self.defs = rs[0] | rs[1]; self.uses = set().union(*rs[2:])
            elif mn == 'v_nop': pass
            else:
                self.defs = rs[0]; self.uses = rest
                if mn.startswith(('v_fmac', 'v_pk_fmac', 'v_dot2c', 'v_writelane')) or 'dpp' in mn or ' row_' in t or 'quad_perm' in t or 'UNUSED_PRESERVE' in t:
                    self.uses = allr
        elif mn.startswith('ds_'):
            self.cls = 'ds'
            if mn.startswith(('ds_read', 'ds_bpermute', 'ds_permute', 'ds_swizzle')) or '_rtn' in mn:
                self.defs = rs[0]; self.uses = rest
            else: self.uses = allr
        elif mn.startswith(('buffer_', 'global_')):
            self.cls = 'vm'
            toks = t.split()
            if mn in ('buffer_wbl2', 'buffer_inv'): pass
            elif 'lds' in toks or '_lds_' in mn:
                self.uses = allr | {('m0', 0)}; self.cls = 'vm'; self.C = 'lds'
            elif '_load_' in mn:
                self.defs = rs[0]; self.uses = rest
                if 'd16' in mn: self.uses = allr
            elif '_store_' in mn:
                self.uses = allr
                if mn.endswith(('x3', 'x4')): self.data = rs[0] if mn.startswith('buffer') else rs[1]
            elif '_atomic_' in mn:
                self.uses = allr
                if 'sc0' in toks: self.defs = rs[0]
            else: raise RuntimeError(mn)
        elif mn.startswith(('s_load', 's_buffer_load', 's_memtime', 's_memrealtime')):
            self.cls = 'smem'; self.defs = rs[0]; self.uses = rest
        elif mn.startswith('s_'):
            self.cls = 'salu'
            if mn in ('s_branch',) or mn.startswith('s_cbranch'):
                self.cls = 'branch'; self.target = ops[0]; self.uncond = mn == 's_branch'
                if 'vcc' in mn: self.uses = {('vcc', 0)}
            elif mn == 's_endpgm': self.cls = 'branch'; self.uncond = True
            elif mn == 's_nop': self.ws = int(ops[0], 0) + 1
            elif mn in ('s_waitcnt', 's_barrier', 's_setprio', 's_sleep'): pass
            elif mn.startswith(('s_cmp', 's_bitcmp')): self.uses = allr
            elif 'saveexec' in mn: self.defs = rs[0] | {('exec', 0)}; self.uses = rest | {('exec', 0)}
            else:
                self.defs = rs[0]; self.uses = rest
                if mn.startswith(('s_addk', 's_mulk', 's_cmov', 's_bitset')): self.uses = allr
        else:
            raise RuntimeError('unknown instr ' + text)

def isv(rs): return {r for r in rs if r[0] in 'va' and len(r[0]) == 1}
def iss(rs): return {r for r in rs if r[0] in ('s', 'vcc')}

def need_ws(p, c):
    n = 0
    if p.cls == 'valu':
        dv = isv(p.defs); dsg = iss(p.defs)
        if dv:
            if c.cls == 'mfma' and dv & c.uses: n = max(n, 2)
            if c.cls == 'valu' and dv & c.uses:
                if c.mn.startswith(('v_readfirstlane', 'v_readlane')): n = max(n, 1)
                if c.mn.startswith('v_permlane') or 'dpp' in c.mn or ' row_' in c.text or 'quad_perm' in c.text: n = max(n, 2)
                if p.mn.startswith(TRANS): n = max(n, 1)
                if 'dst_sel:' in p.text and 'dst_sel:DWORD' not in p.text: n = max(n, 1)
                if p.mn.startswith('v_dot'): n = max(n, 0 if (c.mn == p.mn and not (dv & (c.uses - c.defs))) else 3)
            if p.mn.startswith('v_dot') and c.cls in ('valu', 'vm', 'ds', 'mfma') and c.mn != p.mn and dv & (c.defs | c.uses): n = max(n, 3)
            if p.mn.startswith(TRANS) and c.cls in ('vm', 'ds') and dv & c.uses: n = max(n, 1)
        if dsg:
            if c.cls == 'vm' and dsg & c.uses: n = max(n, 5)
            if c.cls == 'valu' and dsg & c.uses:
                n = max(n, 4 if c.mn.startswith(('v_readlane', 'v_writelane', 'v_div_fmas')) else 2)
            if c.cls in ('salu', 'smem', 'branch') and dsg & c.uses: n = max(n, 1)
    elif p.cls == 'mfma':
        i = 0 if p.passes == 4 else 1
        if c.cls == 'mfma':
            if p.defs & (c.A | c.B): n = max(n, (8, 12)[i])
            if p.defs & c.C and not (p.defs == c.C and p.passes == c.passes): n = max(n, (6, 10)[i])
            if p.defs & c.defs and not (p.defs == c.C and p.passes == c.passes): n = max(n, (8, 12)[i])
        elif c.cls in ('valu', 'vm', 'ds'):
            if p.defs & (c.uses | c.defs): n = max(n, (8, 12)[i])
            if c.defs & p.C: n = max(n, (3, 7)[i])
    elif p.cls == 'salu':
        if ('m0', 0) in p.defs and c.cls in ('vm', 'ds') and ('m0', 0) in c.uses: n = max(n, 1)
    elif p.cls == 'vm':
        if p.data and p.data & c.defs: n = max(n, 2)
    return n

class Kernel:
    def __init__(self, name, nv=256, na=0, sfirst=3):
        self.name = name
        self.ins = []
        self.v = Pool('v', 1, nv); self.a = Pool('a', 0, max(na, 1)); self.s = Pool('s', sfirst, 100)
        self.na = na
        self.optdepth = 0
        self.nlab = 0
    def __call__(self, text, tok=None):
        last = None
        for line in text.split('\n'):
            line = line.strip()
            if not line: continue
            i = Ins(line); i.opt = self.optdepth; i.tok = tok
            self.ins.append(i); last = i
        return last
    def lab(self, base='L'):
        self.nlab += 1
        return f"{self.name}_{base}{self.nlab}"
    def wait(self, *insts):
        i = Ins('.wait'); i.cls = 'wait'; i.tok = [x for x in insts if x is not None]; i.opt = self.optdepth
        self.ins.append(i)
    def waitall(self, vm=True, lgkm=True):
        self(('s_waitcnt' + (' vmcnt(0)' if vm else '') + (' lgkmcnt(0)' if lgkm else '')))
    class _Opt:
        def __init__(s, k, br): s.k, s.br = k, br
        def __enter__(s):
            s.l = s.k.lab('skip'); s.k(f"{s.br} {s.l}"); s.k.optdepth += 1
        def __exit__(s, *a):
            s.k.optdepth -= 1; s.k(f"{s.l}:")
    def skip_if(self, br):
        return Kernel._Opt(self, br)

    def _waits(self):
        out = []
        vm, lg = [], []
        def emit(nv, nl):
            s = 's_waitcnt'
            if nv is not None: s += f' vmcnt({min(nv,63)})'
            if nl is not None: s += f' lgkmcnt({min(nl,15)})'
            out.append(Ins(s))
        def count_after(lst, k, cur):
            return sum(1 for x in lst[k + 1:] if x.opt == 0 or (x.opt <= cur.opt and x.regid == cur.regid))
        regid = 0; prevopt = 0
        class W:
            pass
        for ins in self.ins:
            if ins.opt != prevopt: regid += 1; prevopt = ins.opt
            cur = W(); cur.opt = ins.opt; cur.regid = regid; cur.ins = ins
            kv = kl = -1
            if ins.cls == 'wait':
                for t in ins.tok:
                    for k, x in enumerate(vm):
                        if x.ins is t: kv = max(kv, k)
                    for k, x in enumerate(lg):
                        if x.ins is t: kl = max(kl, k)
            else:
                touch = ins.uses | ins.defs
                for k, x in enumerate(vm):
                    if x.ins.defs & touch: kv = k
                for k, x in enumerate(lg):
                    if x.ins.defs & touch: kl = k
            nv = nl = None
            if kv >= 0:
                nv = count_after(vm, kv, cur)
            if kl >= 0:
                nl = 0 if any(x.ins.cls == 'smem' for x in lg) else count_after(lg, kl, cur)
            if nv is not None or nl is not None:
                emit(nv, nl)
                if ins.opt == 0:
                    if nv is not None: vm = vm[kv + 1:]
                    if nl is not None: lg = [] if nl == 0 and all(x.opt == 0 for x in lg) else lg[kl + 1:]
                else:
                    if nv is not None: vm = [x for k, x in enumerate(vm) if k > kv or x.regid != regid]
                    if nl is not None: lg = [x for k, x in enumerate(lg) if k > kl or x.regid != regid]
            if ins.cls == 'wait': continue
            out.append(ins)
            if ins.mn == 's_waitcnt':
                m = re.search(r'vmcnt\((\d+)\)', ins.text)
                if m and int(m.group(1)) == 0: vm = [] if ins.opt == 0 else [x for x in vm if x.regid != regid]
                m = re.search(r'lgkmcnt\((\d+)\)', ins.text)
                if m and int(m.group(1)) == 0: lg = [] if ins.opt == 0 else [x for x in lg if x.regid != regid]
            if ins.cls == 'vm': vm.append(cur)
            if ins.cls in ('ds', 'smem'): lg.append(cur)
        self.ins = out

    def _hazards(self):
        out = []
        src = self.ins
        brs = {}
        for i in src:
            if i.target: brs.setdefault(i.target, []).append(i)
        work = list(src)
        pos = {id(x): k for k, x in enumerate(work)}
        pad = [0] * len(work)
        MAXD = 13
        for k, c in enumerate(work):
            if c.cls in ('label', 'dir'): continue
            need = 0
            stack = [(k - 1, 0)]; seen = set()
            while stack:
                j, d = stack.pop()
                while j >= 0 and d < MAXD:
                    if (j, d) in seen: break
                    seen.add((j, d))
                    p = work[j]
                    if p.cls == 'label':
                        for b in brs.get(p.label, []):
                            stack.append((pos[id(b)], d))
                        if j > 0:
                            jj = j - 1
                            while jj >= 0 and work[jj].cls == 'dir': jj -= 1
                            if jj >= 0 and work[jj].uncond: break
                        j -= 1; continue
                    n = need_ws(p, c)
                    if n > d: need = max(need, n - d)
                    d += p.ws + pad[j]
                    j -= 1
            pad[k] = need
        for k, c in enumerate(work):
            if pad[k]: out.append(Ins(f's_nop {pad[k]-1}'))
            out.append(c)
        self.ins = out

    def finish(self):
        self._waits(); self._hazards()
        nv = self.v.high
        acc = max(4, (nv + 3) // 4 * 4)
        tot = acc + (self.a.high if self.na else 0)
        body = [f".p2align 8\n.globl {self.name}\n.type {self.name},@function\n{self.name}:"]
        for i in self.ins:
            body.append(i.text if i.cls == 'label' else '  ' + i.text)
        desc = f""".p2align 6
.amdhsa_kernel {self.name}
  .amdhsa_next_free_vgpr {tot}
  .amdhsa_next_free_sgpr 102
  .amdhsa_accum_offset {acc}
  .amdhsa_group_segment_fixed_size 0
  .amdhsa_kernarg_size 128
  .amdhsa_user_sgpr_count 2
  .amdhsa_user_sgpr_kernarg_segment_ptr 1
  .amdhsa_system_sgpr_workgroup_id_x 1
  .amdhsa_float_denorm_mode_32 3
.end_amdhsa_kernel"""
        self.stats = dict(n=len(self.ins), vgpr=nv, agpr=self.a.high if self.na else 0, sgpr=self.s.high,
                          nops=sum(1 for i in self.ins if i.mn == 's_nop'))
        return '\n'.join(body), desc

def module(header, launches, kernels):
    L = [header.rstrip('\n')]
    if len(launches) == 1:
        n, g, b, lds = launches[0]
        L.append(f"; @launch grid=({g},1,1) block=({b},1,1) lds={lds}")
    else:
        for n, g, b, lds in launches:
            L.append(f"; @launch kernel={n} grid=({g},1,1) block=({b},1,1) lds={lds}")
    L.append('.amdgcn_target "amdgcn-amd-amdhsa--gfx950"\n.text')
    descs = []
    for k in kernels:
        b, d = k.finish(); L.append(b); descs.append(d)
    L.append('.section .rodata,"a"')
    L += descs
    return '\n'.join(L) + '\n'

import struct
def f2u(x): return struct.unpack('<I', struct.pack('<f', x))[0]
def fl(x): return hex(f2u(x))
```

```python
import sys
from fft import *
from ssm import *
from g2 import *
HEADER = "".join(l for l in open('/code/' + NAME + '.s.ref') if l.startswith(';') and '@launch' not in l and 'Override' not in l and 'grid=ceil' not in l)

def kA():
    k = Kernel("ka_kernel")
    P = prologue(k, ['x', 'gw', 'ws'])
    I = ids(k)
    sx = srd(k, P['x'], SZ['x']); sgw = srd(k, P['gw'], SZ['gw'])
    sv1 = srd(k, P['ws'], 256 * V1_STR, WS_V1); sg = srd(k, P['ws'], 8192, WS_G); se = srd(k, P['ws'], 262144, WS_E)
    ld = xtile_issue(k, I, sx, 0)
    G = gate_issue(k, I, sx, sgw)
    t = k.v.alloc(2); so = k.s.alloc()
    k(f"v_lshlrev_b32 {t[0]}, 2, v0\nv_mov_b32 {t[1]}, -1\ns_lshl_b32 {so}, s2, 10\nbuffer_store_dword {t[1]}, {t[0]}, {se}, {so} offen")
    k.v.free(t); k.s.free(so)
    F = gen_F(k, I)
    k.wait(ld); k("s_barrier")
    ph1_compute(k, I, F, 0, sv1)
    gate_compute(k, I, G, sg)
    end(k)
    return k

def kB():
    k = Kernel("kb_kernel")
    P = prologue(k, ['wr', 'wi', 'ws'])
    I = ids(k)
    swr = srd(k, P['wr'], SZ['wr']); swi = srd(k, P['wi'], SZ['wi'])
    sv1 = srd(k, P['ws'], 256 * V1_STR, WS_V1); sv2 = srd(k, P['ws'], 256 * V2_STR, WS_V2)
    T = ph2_params(k, I)
    L = v1_issue(k, I, T, sv1)
    W = w_issue(k, I, T, swr, swi)
    C = ph2_consts(k, I, T)
    ph2_compute(k, I, T, C, W, L, 0, 17408, sv2)
    end(k)
    return k

def srd_sel(k, I, p0, p1, size):
    r = k.s.alloc(4)
    k(f"""s_bitcmp1_b32 {I['w']}, 0
    s_cselect_b32 {r[0]}, {p1[0]}, {p0[0]}
    s_cselect_b32 {r[1]}, {p1[1]}, {p0[1]}
    s_mov_b32 {r[2]}, {size}
    s_mov_b32 {r[3]}, 0x20000""")
    return r

def kC():
    k = Kernel("kc_kernel")
    P = prologue(k, ['x', 'bre', 'bim', 'lre', 'lim', 'ldt', 'ws'])
    I = ids(k)
    sx = srd(k, P['x'], SZ['x']); sb = srd_sel(k, I, P['bre'], P['bim'], SZ['bre'])
    g = B1(k, I, sx, sb, 0, 65536)
    g.prefill(range(4))
    slre = srd(k, P['lre'], 2048); slim = srd(k, P['lim'], 2048); sldt = srd(k, P['ldt'], 2048)
    st = k.s.alloc()
    k(f"s_lshl_b32 {st}, {I['tb']}, 14")
    se = srd(k, P['ws'], 16384, WS_E, st); sh = srd(k, P['ws'], 8 << 20, WS_H)
    Q = ssm_param_issue(k, I, slre, slim, sldt)
    acc = g.main()
    Pm = ssm_param_compute(k, Q)
    E1 = scan_pass1(k, I, acc, Pm, se)
    scan_coef(k, acc, Pm)
    E = lookback(k, I, E1, se)
    scan_pass2(k, I, acc, Pm, E1, E, sh)
    end(k)
    return k

def kD():
    k = Kernel("kd_kernel")
    P = prologue(k, ['x', 'cre', 'cim', 'dsk', 'out', 'ws'])
    I = ids(k)
    LH, LC, LX, LY = 0, 81920, 122880, 139264
    sh = srd(k, P['ws'], 8 << 20, WS_H); scr = srd(k, P['cre'], SZ['cre']); sci = srd(k, P['cim'], SZ['cim'])
    sv2 = srd(k, P['ws'], 256 * V2_STR, WS_V2); sx = srd(k, P['x'], SZ['x'])
    sg = srd(k, P['ws'], 8192, WS_G); sd = srd(k, P['dsk'], 2048); so = srd(k, P['out'], SZ['out'])
    L = v2_issue(k, I, sv2)
    E = epi_issue(k, I, sg, sd)
    ldx = xtile_issue(k, I, sx, LX)
    g = B3(k, I, sh, scr, sci, LH, LC)
    g.prefill(range(2))
    G = gen_G(k, I)
    yw = y_stage(k, I, L, LY)
    g.prefill(range(2, 5))
    k.wait(yw, ldx); k("s_barrier")
    acca = ph3_mfma(k, I, G, LY)
    epi_pre(k, I, E, acca, LX)
    accb = g.main()
    epi_final(k, I, E, acca, accb, so)
    end(k)
    return k

if __name__ == "__main__":
    ks = [kA(), kB(), kC(), kD()]
    src = module(HEADER, [("ka_kernel", 256, 256, 16384), ("kb_kernel", 256, 256, 33792), ("kc_kernel", 256, 256, 131072), ("kd_kernel", 256, 256, 155648)], ks)
    open(sys.argv[1] if len(sys.argv) > 1 else "out1.s", "w").write(src)
    for k in ks: print(k.name, k.stats)
```

```python
from asmlib import *
NAME = "gated_mix__spectral_gfnet__ssm_conv_s5__prompt"
KA = dict(x=0, wr=8, wi=16, bx=24, lre=32, lim=40, bre=48, bim=56, cre=64, cim=72, ldt=80, dsk=88, gw=96, out=104, dbg=112, ws=120)
SZ = dict(x=4194304, wr=2048*513*2, wi=2048*513*2, lre=2048, lim=2048, bre=2097152, bim=2097152, cre=2097152, cim=2097152,
          ldt=2048, dsk=2048, gw=2048, out=8388608, dbg=256)
V1_STR = 16384
V2_STR = 16384
WS_V1 = 0
WS_V2 = 0x0500000
WS_H  = 0x0A00000
WS_G  = 0x1300000
WS_E  = 0x1310000
WS_END = 0x1400000

def prologue(k, names):
    k("s_cmp_ge_u32 s2, 256")
    k(f"s_cbranch_scc1 {k.name}_end")
    P = {}
    for n in names:
        P[n] = k.s.alloc(2)
        k(f"s_load_dwordx2 {P[n]}, s[0:1], {KA[n]}")
    return P

def srd(k, ptr, size, off=0, soff=None):
    r = k.s.alloc(4)
    if off or soff is not None:
        if off and soff is not None:
            k(f"s_add_u32 {r[2]}, {soff}, {off}")
            k(f"s_add_u32 {r[0]}, {ptr[0]}, {r[2]}")
        else:
            k(f"s_add_u32 {r[0]}, {ptr[0]}, {off if off else soff}")
        k(f"s_addc_u32 {r[1]}, {ptr[1]}, 0")
    else:
        k(f"s_mov_b32 {r[0]}, {ptr[0]}\ns_mov_b32 {r[1]}, {ptr[1]}")
    k(f"s_mov_b32 {r[2]}, {size}\ns_mov_b32 {r[3]}, 0x20000")
    return r

def ids(k):
    I = {}
    t = k.v.alloc()
    I['w'] = k.s.alloc()
    k(f"v_lshrrev_b32 {t}, 6, v0\nv_readfirstlane_b32 {I['w']}, {t}")
    k.v.free(t)
    I['l'] = k.v.alloc(); I['n'] = k.v.alloc(); I['g'] = k.v.alloc()
    k(f"v_and_b32 {I['l']}, 63, v0\nv_and_b32 {I['n']}, 15, v0\nv_bfe_u32 {I['g']}, v0, 4, 2")
    xcd, idx = k.s.alloc(), k.s.alloc()
    I['ta'], I['tb'] = k.s.alloc(), k.s.alloc()
    I['slot'], I['k1p'] = k.s.alloc(), k.s.alloc()
    k(f"""s_and_b32 {xcd}, s2, 7
    s_lshr_b32 {idx}, s2, 3
    s_and_b32 {I['k1p']}, {idx}, 3
    s_lshr_b32 {idx}, {idx}, 2
    s_lshl_b32 {I['slot']}, {xcd}, 3
    s_add_u32 {I['slot']}, {I['slot']}, {idx}
    s_and_b32 {I['ta']}, {xcd}, 3
    s_lshl_b32 {I['ta']}, {I['ta']}, 2
    s_add_u32 {I['ta']}, {I['ta']}, {I['k1p']}
    s_lshr_b32 {I['tb']}, {xcd}, 2
    s_lshl_b32 {I['tb']}, {I['tb']}, 3
    s_add_u32 {I['tb']}, {I['tb']}, {idx}""")
    k.s.free(xcd, idx)
    return I

def end(k):
    k(f"{k.name}_end:\ns_endpgm")

def H_POS(iq, kc):
    return (((kc >> 2) ^ H_SW(iq)) << 2) | (kc & 3)
def H_SW(iq): return (iq & 1) | ((iq & 2) << 1)
```

```python
from common import *

def xtile_issue(k, I, sx, lds_off):
    va = k.v.alloc(); t = k.v.alloc(); so = k.s.alloc()
    k(f"""v_bfe_u32 {t}, {I['l']}, 1, 2
    v_xor_b32 {t}, {t}, {I['g']}
    v_lshlrev_b32 {va}, 9, {t}
    v_and_b32 {t}, 1, {I['l']}
    v_lshl_or_b32 {va}, {t}, 4, {va}
    v_lshrrev_b32 {t}, 3, {I['l']}
    v_lshl_or_b32 {va}, {t}, 15, {va}
    s_lshl_b32 {so}, {I['ta']}, 11
    s_lshl_b32 m0, {I['tb']}, 5
    s_add_u32 {so}, {so}, m0
    s_lshl_b32 m0, {I['w']}, 20
    s_add_u32 {so}, {so}, m0
    s_lshl_b32 m0, {I['w']}, 12
    s_add_u32 m0, m0, {lds_off}""")
    last = None
    for j in range(4):
        last = k(f"buffer_load_dwordx4 {va}, {sx}, {so} offen offset:{1024*j} lds")
        if j < 3: k(f"s_add_u32 {so}, {so}, {8*32768 - 1024}")
    k.v.free(va, t); k.s.free(so)
    return last

def gen_F(k, I):
    F = k.v.alloc(32)
    fr, fi, oi, ib, a0, a1 = [k.v.alloc() for _ in range(6)]
    st = k.s.alloc()
    k(f"""s_lshl_b32 {st}, {I['w']}, 4
    v_add_u32 {a0}, {st}, {I['n']}
    v_cvt_f32_u32 {fr}, {a0}
    v_mul_f32 {fr}, {fl(1/128)}, {fr}
    v_cmp_eq_u32 vcc, 0, {a0}
    v_cndmask_b32 {fi}, {fr}, 0.5, vcc
    v_mov_b32 {oi}, {fl(0.25)}
    v_cndmask_b32 {oi}, {oi}, 0, vcc
    v_lshrrev_b32 {a0}, 1, {I['g']}
    v_lshlrev_b32 {a0}, 4, {a0}
    v_and_b32 {a1}, 1, {I['g']}
    v_lshl_add_u32 {a0}, {a1}, 2, {a0}
    v_cvt_f32_u32 {ib}, {a0}
    v_fma_f32 {oi}, {ib}, {fi}, {oi}
    v_mul_f32 {ib}, {ib}, {fr}""")
    for c in range(2):
        f, o = (fr, ib) if c == 0 else (fi, oi)
        for kap in range(4):
            for d in range(4):
                i0 = 32 * kap + 8 * (d >> 1) + 2 * (d & 1)
                k(f"""v_fmamk_f32 {a0}, {f}, {fl(float(i0))}, {o}
                v_fmamk_f32 {a1}, {f}, {fl(float(i0+1))}, {o}
                v_cos_f32 {a0}, {a0}
                v_cos_f32 {a1}, {a1}
                v_cvt_pk_bf16_f32 {F[16*c+4*kap+d]}, {a0}, {a1}""")
    k.v.free(fr, fi, oi, ib, a0, a1); k.s.free(st)
    return F

def pk(k, op, d, a, b, neg=False):
    k(f"v_pk_add_f32 {d}, {a}, {b}" + (" neg_lo:[0,1] neg_hi:[0,1]" if op == '-' else ""))

def ph1_compute(k, I, F, lds_off, sv1, flags=""):
    ad = k.v.alloc(4); t = k.v.alloc(); t2 = k.v.alloc()
    k(f"""v_bfe_u32 {t}, {I['l']}, 2, 3
    v_lshrrev_b32 {t2}, 5, {I['l']}
    v_lshl_or_b32 {t}, {t2}, 4, {t}
    v_lshlrev_b32 {t}, 7, {t}
    v_and_b32 {t2}, 3, {I['l']}
    v_lshl_or_b32 {t}, {t2}, 3, {t}
    v_add_u32 {t}, {lds_off}, {t}
    v_bfe_u32 {t2}, {I['l']}, 3, 2""")
    for m in range(4):
        k(f"v_xor_b32 {ad[m]}, {m}, {t2}\nv_lshl_add_u32 {ad[m]}, {ad[m]}, 5, {t}")
    acc = k.v.alloc(32)
    fr = k.v.alloc(64)
    for m in range(4):
        for kap in range(4):
            for h in range(2):
                k(f"ds_read_b64_tr_b16 {fr[16*m+4*kap+2*h:16*m+4*kap+2*h+2]}, {ad[m]} offset:{kap*4096+h*1024}")
    for m in range(4):
        for kap in range(4):
            for c in range(2):
                d = acc.q(2 * m + c)
                k(f"v_mfma_f32_16x16x32_bf16 {d}, {fr.q(4*m+kap)}, {F.q(4*c+kap)}, {d if kap else 0}")
    A = lambda c: fr.q(0 + c); B = lambda c: fr.q(2 + c); C = lambda c: fr.q(4 + c); Dd = lambda c: fr.q(6 + c)
    z = lambda m, c: acc.q(2 * m + c)
    for c in range(2):
        for h in (0, 2):
            s = slice(h, h + 2)
            pk(k, '+', A(c)[s], z(0, c)[s], z(2, c)[s]); pk(k, '-', C(c)[s], z(0, c)[s], z(2, c)[s])
            pk(k, '+', B(c)[s], z(1, c)[s], z(3, c)[s]); pk(k, '-', Dd(c)[s], z(1, c)[s], z(3, c)[s])
    for h in (0, 2):
        s = slice(h, h + 2)
        for c in range(2):
            pk(k, '+', z(0, c)[s], A(c)[s], B(c)[s]); pk(k, '-', z(2, c)[s], A(c)[s], B(c)[s])
        pk(k, '+', z(1, 0)[s], C(0)[s], Dd(1)[s]); pk(k, '-', z(1, 1)[s], C(1)[s], Dd(0)[s])
        pk(k, '-', z(3, 0)[s], C(0)[s], Dd(1)[s]); pk(k, '+', z(3, 1)[s], C(1)[s], Dd(0)[s])
    k(f"s_cmp_lg_u32 {I['w']}, 0")
    with k.skip_if("s_cbranch_scc1"):
        k("s_mov_b32 exec_lo, 0x00010001\ns_mov_b32 exec_hi, 0x00010001")
        for r in range(4):
            k(f"""v_mov_b32 {z(1,0)[r]}, {C(0)[r]}
            v_sub_f32 {z(1,1)[r]}, 0, {Dd(0)[r]}
            v_mov_b32 {z(3,0)[r]}, {C(1)[r]}
            v_sub_f32 {z(3,1)[r]}, 0, {Dd(1)[r]}""")
        k("s_mov_b64 exec, -1")
    so = k.s.alloc(); s2_ = k.s.alloc()
    k(f"""s_mov_b32 {so}, {4*V1_STR}
    v_mul_lo_u32 {t}, {I['n']}, {so}
    v_lshl_add_u32 {t}, {I['g']}, 4, {t}
    s_mul_i32 {so}, {I['w']}, {64*V1_STR}
    s_lshl_b32 {s2_}, {I['ta']}, 10
    s_add_u32 {so}, {so}, {s2_}
    s_lshl_b32 {s2_}, {I['tb']}, 6
    s_add_u32 {so}, {so}, {s2_}""")
    last = None
    for kp in range(4):
        o = fr.q(8 + kp)
        for r in range(4):
            k(f"v_cvt_pk_bf16_f32 {o[r]}, {z(kp,0)[r]}, {z(kp,1)[r]}")
        last = k(f"buffer_store_dwordx4 {o}, {t}, {sv1}, {so} offen {flags}")
        if kp < 3: k(f"s_add_u32 {so}, {so}, {V1_STR}")
    k.v.free(ad, t, t2, acc, fr); k.s.free(so, s2_)
    return last

def gate_issue(k, I, sx, sgw):
    G = dict(x=k.v.alloc(16), w=k.v.alloc(8))
    va = k.v.alloc(); so = k.s.alloc(); s2_ = k.s.alloc()
    k(f"""v_lshlrev_b32 {va}, 4, {I['l']}
    s_lshl_b32 {so}, s2, 14
    s_lshl_b32 {s2_}, {I['w']}, 12
    s_add_u32 {so}, {so}, {s2_}""")
    for j in range(4):
        k(f"buffer_load_dwordx4 {G['x'].q(j)}, {va}, {sx}, {so} offen offset:{1024*j}")
    for j in range(2):
        k(f"buffer_load_dwordx4 {G['w'].q(j)}, {va}, {sgw}, 0 offen offset:{1024*j}")
    k.v.free(va); k.s.free(so, s2_)
    return G

def gate_compute(k, I, G, sg, flags=""):
    a = k.v.alloc(2); t = k.v.alloc(2)
    k(f"v_mov_b32 {a[0]}, 0\nv_mov_b32 {a[1]}, 0")
    for j in range(8):
        for r in range(2):
            k(f"v_dot2c_f32_bf16 {a[r]}, {G['x'][8*r+j]}, {G['w'][j]}")
    k(f"""v_permlane32_swap_b32 {a[0]}, {a[1]}
    v_add_f32 {a[0]}, {a[0]}, {a[1]}
    v_mov_b32 {a[1]}, {a[0]}
    v_permlane16_swap_b32 {a[0]}, {a[1]}
    v_add_f32 {a[0]}, {a[0]}, {a[1]}""")
    for sh in (8, 4, 2, 1):
        k(f"v_add_f32 {a[0]}, {a[0]}, {a[0]} row_ror:{sh} row_mask:0xf bank_mask:0xf")
    k(f"""v_cvt_pk_bf16_f32 {a[0]}, {a[0]}, {a[0]}
    v_and_b32 {a[0]}, 0xffff0000, {a[0]}
    v_mul_f32 {a[0]}, {fl(-1.4426950408889634)}, {a[0]}
    v_exp_f32 {a[0]}, {a[0]}
    v_add_f32 {a[0]}, 1.0, {a[0]}
    v_rcp_f32 {a[0]}, {a[0]}
    v_cvt_pk_bf16_f32 {a[0]}, {a[0]}, {a[0]}
    v_and_b32 {a[0]}, 0xffff0000, {a[0]}""")
    so = k.s.alloc(); s2_ = k.s.alloc()
    k(f"""s_and_b32 {so}, s2, 1
    s_lshl_b32 {so}, {so}, 2
    s_add_u32 {so}, {so}, {I['w']}
    s_lshl_b32 {so}, {so}, 10
    s_lshr_b32 {s2_}, s2, 1
    s_lshl_b32 {s2_}, {s2_}, 2
    s_add_u32 {so}, {so}, {s2_}
    v_lshrrev_b32 {t[0]}, 5, {I['l']}
    v_lshlrev_b32 {t[0]}, 9, {t[0]}
    s_mov_b32 exec_lo, 1
    s_mov_b32 exec_hi, 1""")
    last = k(f"buffer_store_dword {a[0]}, {t[0]}, {sg}, {so} offen {flags}")
    k("s_mov_b64 exec, -1")
    k.v.free(a, t, G['x'], G['w']); k.s.free(so, s2_)
    return last

def frag_pair(k, f, base, ks, inv, tmp):
    Fr = k.v.alloc(8)
    a, c, s = tmp
    for j in range(4):
        if base is None: k(f"v_mul_f32 {a}, {fl(float(ks[j]))}, {f}")
        else: k(f"v_fmamk_f32 {a}, {f}, {fl(float(ks[j]))}, {base}")
        k(f"v_cos_f32 {c}, {a}\nv_sin_f32 {s}, {a}")
        if not inv: k(f"v_cvt_pk_bf16_f32 {Fr[j]}, {c}, {s}\nv_cvt_pk_bf16_f32 {Fr[4+j]}, -{s}, {c}")
        else: k(f"v_cvt_pk_bf16_f32 {Fr[j]}, {c}, -{s}\nv_cvt_pk_bf16_f32 {Fr[4+j]}, {s}, {c}")
    return Fr

def ph2_params(k, I):
    T = dict(k1=k.s.alloc(), ks=k.s.alloc(), sp=k.s.alloc(), tau=k.s.alloc())
    k(f"""s_lshl_b32 {T['tau']}, {I['slot']}, 2
    s_add_u32 {T['tau']}, {T['tau']}, {I['k1p']}
    s_cmp_eq_u32 {T['tau']}, 3
    s_cselect_b32 {T['k1']}, 1, {I['k1p']}
    s_cselect_b32 {T['ks']}, 64, {I['slot']}
    s_and_b32 {T['sp']}, {T['tau']}, 0xfd
    s_cmp_eq_u32 {T['sp']}, 0
    s_cselect_b32 {T['sp']}, 1, 0""")
    return T

def ph2_consts(k, I, T):
    C = {}
    tmp = [k.v.alloc() for _ in range(3)]
    nf, g4, f, b, t = [k.v.alloc() for _ in range(5)]
    k1f, ksf = k.v.alloc(), k.v.alloc()
    k(f"""v_cvt_f32_u32 {nf}, {I['n']}
    v_cvt_f32_u32 {g4}, {I['g']}
    v_mul_f32 {g4}, 4.0, {g4}
    v_cvt_f32_u32 {k1f}, {T['k1']}
    v_cvt_f32_u32 {ksf}, {T['ks']}""")
    J = [0, 1, 2, 3]
    spm = k.v.alloc()
    k(f"""v_cvt_f32_u32 {spm}, {T['sp']}
    v_mul_f32 {spm}, {fl(-960.0)}, {spm}
    v_cmp_lt_u32 vcc, 7, {I['n']}
    v_cndmask_b32 {t}, 0, {spm}, vcc
    v_add_f32 {t}, {t}, {ksf}
    v_fmamk_f32 {f}, {nf}, {fl(128.0)}, {t}
    v_mul_f32 {f}, {fl(1/2048)}, {f}
    v_mul_f32 {b}, {f}, {g4}""")
    C['sf'] = frag_pair(k, f, b, J, False, tmp)
    k(f"""v_cmp_lt_u32 vcc, 1, {I['g']}
    v_cndmask_b32 {t}, 0, {spm}, vcc
    v_add_f32 {t}, {t}, {ksf}
    v_fmamk_f32 {t}, {g4}, {fl(128.0)}, {t}
    v_mul_f32 {b}, {t}, {nf}
    v_mul_f32 {b}, {fl(1/2048)}, {b}
    v_mul_f32 {f}, {fl(1/16)}, {nf}""")
    C['si'] = frag_pair(k, f, b, J, True, tmp)
    k(f"s_cmp_eq_u32 {T['sp']}, 0")
    with k.skip_if("s_cbranch_scc1"):
        a, c, s = tmp
        k(f"v_cmp_lt_u32 vcc, 7, {I['n']}\nv_cndmask_b32 {a}, 0, 16, vcc")
        for j in range(8):
            k(f"v_and_b32 {C['sf'][j]}, 0xffff, {C['sf'][j]}\nv_lshlrev_b32 {C['sf'][j]}, {a}, {C['sf'][j]}")
        k(f"v_cmp_eq_u32 vcc, 0, {I['n']}")
        for j in range(4):
            k(f"v_mov_b32 {c}, {hex(0x3f80 if j % 2 == 0 else 0xbf80)}\nv_cndmask_b32 {C['sf'][4+j]}, {C['sf'][4+j]}, {c}, vcc")
        k(f"v_cmp_lt_u32 vcc, 1, {I['g']}")
        for j in range(4):
            k(f"""v_lshlrev_b32 {c}, 16, {C['si'][j]}
            v_and_b32 {s}, 0xffff0000, {C['si'][j]}
            v_add_f32 {c}, {c}, {c}
            v_add_f32 {s}, {s}, {s}
            v_cvt_pk_bf16_f32 {c}, {c}, {s}
            v_cndmask_b32 {C['si'][j]}, {c}, 0, vcc
            v_cndmask_b32 {C['si'][4+j]}, 0, {c}, vcc""")
        k(f"""v_lshlrev_b32 {c}, 31, {I['n']}
        v_or_b32 {c}, 0x3f803f80, {c}
        v_cmp_eq_u32 vcc, 0, {I['g']}
        v_cndmask_b32 {C['si'][0]}, {C['si'][0]}, {c}, vcc""")
    k.v.free(spm, ksf)
    k(f"""v_fma_f32 {t}, {nf}, 4.0, {k1f}
    v_mul_f32 {f}, {fl(1/64)}, {t}
    v_mul_f32 {b}, {f}, {g4}""")
    C['m1f'] = frag_pair(k, f, b, J, False, tmp)
    def tw(f, b):
        W = k.v.alloc(8)
        for r in range(4):
            k(f"v_fmamk_f32 {tmp[0]}, {f}, {fl(float(r))}, {b}\nv_cos_f32 {W[r]}, {tmp[0]}\nv_sin_f32 {W[4+r]}, {tmp[0]}")
        return W
    k(f"v_mul_f32 {f}, {fl(1/16)}, {f}\nv_mul_f32 {b}, {fl(1/16)}, {b}")
    C['twf'] = tw(f, b)
    k(f"""v_fma_f32 {t}, {g4}, 4.0, {k1f}
    v_mul_f32 {b}, {t}, {nf}
    v_mul_f32 {b}, {fl(1/64)}, {b}
    v_mul_f32 {f}, {fl(1/16)}, {nf}""")
    C['m1i'] = frag_pair(k, f, b, J, True, tmp)
    k(f"v_mul_f32 {f}, {fl(1/16)}, {f}\nv_mul_f32 {b}, {fl(1/16)}, {b}")
    C['twi'] = tw(f, b)
    k(f"""v_xor_b32 {t}, 3, {I['n']}
    v_cmp_lt_u32 vcc, 7, {I['n']}
    v_cndmask_b32 {t}, {I['n']}, {t}, vcc
    v_cvt_f32_u32 {f}, {t}
    v_mul_f32 {f}, {fl(1/16)}, {f}
    v_mul_f32 {b}, {f}, {g4}""")
    C['m2f'] = frag_pair(k, f, b, J, False, tmp)
    k(f"""v_mul_f32 {f}, {fl(1/16)}, {nf}
    v_add_f32 {t}, {fl(3.0)}, {g4}
    v_cmp_lt_u32 vcc, 1, {I['g']}
    v_cndmask_b32 {t}, {g4}, {t}, vcc
    v_mul_f32 {b}, {f}, {t}
    v_cndmask_b32 {f}, {f}, -{f}, vcc""")
    C['m2i'] = frag_pair(k, f, b, J, True, tmp)
    k.v.free(nf, g4, f, b, t, k1f, *tmp)
    return C

def w_issue(k, I, T, swr, swi):
    W = dict(r=k.v.alloc(20), i=k.v.alloc(20), ar=k.v.alloc(5), ai=k.v.alloc(5))
    col = k.v.alloc(); t = k.v.alloc(); ad = k.v.alloc(); r0, r1, st = k.s.alloc(), k.s.alloc(), k.s.alloc()
    up = k.s.alloc(2)
    k(f"""v_lshlrev_b32 {col}, 8, {I['g']}
    v_lshl_add_u32 {col}, {I['n']}, 2, {col}
    v_add_u32 {col}, {T['k1']}, {col}
    v_sub_u32 {t}, 832, {col}
    v_cmp_lt_u32 {up}, 1, {I['g']}
    v_cndmask_b32 {col}, {col}, {t}, {up}
    v_lshlrev_b32 {col}, 1, {col}""")
    for j in range(20): k(f"v_mov_b32 {W['r'][j]}, 0\nv_mov_b32 {W['i'][j]}, 0")
    for j in range(5): k(f"v_mov_b32 {W['ar'][j]}, 0\nv_mov_b32 {W['ai'][j]}, 0")
    def rows(b):
        if b < 4:
            k(f"""s_lshl_b32 {r0}, {I['w']}, 9
            s_add_u32 {r0}, {r0}, {T['ks']}
            s_add_u32 {r0}, {r0}, {128*b}
            s_lshr_b32 {st}, {I['w']}, 1
            s_and_b32 {st}, {st}, {T['sp']}
            s_mul_i32 {st}, {st}, 960
            s_sub_u32 {r0}, {r0}, {st}""")
        else: k(f"s_mov_b32 {r0}, 1024")
        k(f"""s_sub_u32 {r1}, 2048, {r0}
        s_and_b32 {r1}, {r1}, 2047
        s_mul_i32 {r0}, {r0}, 1026
        s_mul_i32 {r1}, {r1}, 1026""")
    def loads(b):
        rows(b)
        k(f"v_mov_b32 {t}, {r0}\nv_mov_b32 {ad}, {r1}\nv_cndmask_b32 {ad}, {t}, {ad}, {up}\nv_add_u32 {ad}, {ad}, {col}")
        for r in range(4):
            k(f"buffer_load_short_d16_hi {W['r'][4*b+r]}, {ad}, {swr}, 0 offen offset:{128*r}")
            k(f"buffer_load_short_d16_hi {W['i'][4*b+r]}, {ad}, {swi}, 0 offen offset:{128*r}")
    def alt(b):
        rows(b)
        k(f"""v_mov_b32 {t}, {r1}
        v_mov_b32 {ad}, {r0}
        v_add_u32 {ad}, 1024, {ad}
        v_cndmask_b32 {ad}, {t}, {ad}, {up}
        buffer_load_short_d16_hi {W['ar'][b]}, {ad}, {swr}, 0 offen
        buffer_load_short_d16_hi {W['ai'][b]}, {ad}, {swi}, 0 offen""")
    for b in range(4): loads(b)
    k(f"s_cmp_lg_u32 {T['k1']}, 0")
    with k.skip_if("s_cbranch_scc1"):
        for b in range(5): alt(b)
    k(f"s_cmp_eq_u32 {T['sp']}, 0")
    with k.skip_if("s_cbranch_scc1"):
        loads(4)
    W['up'] = up
    k.v.free(col, t, ad); k.s.free(r0, r1, st)
    return W

def w_fix(k, I, T, W):
    k(f"s_cmp_lg_u32 {T['k1']}, 0")
    with k.skip_if("s_cbranch_scc1"):
        for lo, r in ((True, 0), (False, 3)):
            k(f"s_mov_b32 exec_lo, {1 if lo else 0}\ns_mov_b32 exec_hi, {0 if lo else 1}")
            for b in range(5):
                x, y = W['r'][4*b+r], W['i'][4*b+r]
                k(f"""v_add_f32 {x}, {x}, {W['ar'][b]}
                v_mul_f32 {x}, 0.5, {x}
                v_sub_f32 {y}, {y}, {W['ai'][b]}
                v_mul_f32 {y}, 0.5, {y}""")
        k("s_mov_b64 exec, -1")
    k("s_mov_b32 exec_lo, 0")
    for j in range(20): k(f"v_xor_b32 {W['i'][j]}, 0x80000000, {W['i'][j]}")
    k("s_mov_b64 exec, -1")
    k.v.free(W['ar'], W['ai']); k.s.free(W['up'])

def cmul_pack(k, zr, zi, wr, wi, conj, out, tmp):
    for h in (0, 2):
        s = slice(h, h + 2)
        tr, ti = tmp[0:2], tmp[2:4]
        n_ = " neg_lo:[0,1,0] neg_hi:[0,1,0]"
        k(f"v_pk_mul_f32 {tr}, {zr[s]}, {wr[s]}\nv_pk_mul_f32 {ti}, {zi[s]}, {wr[s]}")
        k(f"v_pk_fma_f32 {tr}, {zi[s]}, {wi[s]}, {tr}" + ("" if conj else n_))
        k(f"v_pk_fma_f32 {ti}, {zr[s]}, {wi[s]}, {ti}" + (n_ if conj else ""))
        k(f"v_cvt_pk_bf16_f32 {out[h]}, {tr[0]}, {ti[0]}\nv_cvt_pk_bf16_f32 {out[h+1]}, {tr[1]}, {ti[1]}")

def v1_issue(k, I, T, sv1, flags=""):
    L = k.v.alloc(16); va = k.v.alloc(); t = k.v.alloc(); so = k.s.alloc(); s2_ = k.s.alloc()
    k(f"""v_and_b32 {t}, 3, {I['n']}
    v_lshlrev_b32 {va}, 6, {t}
    v_lshrrev_b32 {t}, 2, {I['n']}
    v_lshl_or_b32 {va}, {t}, 4, {va}
    v_lshl_or_b32 {va}, {I['g']}, 12, {va}
    s_mul_i32 {so}, {T['tau']}, {V1_STR}
    s_lshl_b32 {s2_}, {I['w']}, 8
    s_add_u32 {so}, {so}, {s2_}""")
    for j in range(4):
        k(f"buffer_load_dwordx4 {L.q(j)}, {va}, {sv1}, {so} offen offset:{1024*j} {flags}")
    k.v.free(va, t); k.s.free(so, s2_)
    return L

T1_STR = 1040
def ph2_compute(k, I, T, C, W, L, lds1, lds2, sv2, flags=""):
    D = k.v.alloc(16)
    acc = k.v.alloc(32)
    tmp = k.v.alloc(4); ad = k.v.alloc(); st = k.s.alloc()
    z = lambda b, c: acc.q(2 * b + c)
    def stage(M, data_is_A, blocks=range(4), src=None, dst=None):
        for b in blocks:
            for c in range(2):
                d = (src or D).q(b); o = (dst or acc).q(2 * b + c)
                A, B = (d, M.q(c)) if data_is_A else (M.q(c), d)
                k(f"v_mfma_f32_16x16x32_bf16 {o}, {A}, {B}, 0")
    for b in range(4):
        for j in range(4): k(f"v_mov_b32 {D[4*b+j]}, {L[4*j+b]}")
    k.v.free(L)
    stage(C['sf'], True)
    k(f"""s_mov_b32 {st}, {T1_STR}
    v_mul_lo_u32 {ad}, {I['n']}, {st}
    v_lshl_add_u32 {ad}, {I['g']}, 6, {ad}
    s_lshl_b32 {st}, {I['w']}, 8
    s_add_u32 {st}, {st}, {lds1}
    v_add_u32 {ad}, {st}, {ad}""")
    for b in range(4):
        for r in range(4): k(f"v_cvt_pk_bf16_f32 {D[4*b+r]}, {z(b,0)[r]}, {z(b,1)[r]}")
        k(f"ds_write_b128 {ad}, {D.q(b)} offset:{16*b}")
    k(f"""s_mul_i32 {st}, {I['w']}, {4*T1_STR}
    s_add_u32 {st}, {st}, {lds1}
    v_lshl_add_u32 {ad}, {I['l']}, 4, {st}
    s_waitcnt lgkmcnt(0)
    s_barrier""")
    for b in range(4): k(f"ds_read_b128 {D.q(b)}, {ad} offset:{T1_STR*b}")
    stage(C['m1f'], True)
    for b in range(4): cmul_pack(k, z(b, 0), z(b, 1), C['twf'].q(0), C['twf'].q(1), True, D.q(b), tmp)
    stage(C['m2f'], False)
    w_fix(k, I, T, W)
    for b in range(4): cmul_pack(k, z(b, 0), z(b, 1), W['r'].q(b), W['i'].q(b), False, D.q(b), tmp)
    X = W['r'][0:8]; Xd = W['i'][0:4]
    k(f"s_cmp_eq_u32 {T['sp']}, 0")
    with k.skip_if("s_cbranch_scc1"):
        cmul_pack(k, z(0, 0), z(0, 1), W['r'].q(4), W['i'].q(4), False, Xd, tmp)
        stage(C['m2i'], True, [0], Xd, X)
        cmul_pack(k, X.q(0), X.q(1), C['twi'].q(0), C['twi'].q(1), False, Xd, tmp)
        stage(C['m1i'], False, [0], Xd, X)
    stage(C['m2i'], True)
    for b in range(4): cmul_pack(k, z(b, 0), z(b, 1), C['twi'].q(0), C['twi'].q(1), False, D.q(b), tmp)
    stage(C['m1i'], False)
    k(f"s_sub_u32 {st}, {T['sp']}, 1\ns_or_b32 {st}, {st}, {I['w']}\ns_cmp_lg_u32 {st}, 0")
    with k.skip_if("s_cbranch_scc1"):
        for r in range(4): k(f"v_mov_b32 {z(0,1)[r]}, {X[4+r]}")
    k(f"""v_lshlrev_b32 {ad}, 12, {I['g']}
    v_lshl_add_u32 {ad}, {I['n']}, 4, {ad}
    s_lshl_b32 {st}, {I['w']}, 8
    s_add_u32 {st}, {st}, {lds2}
    v_add_u32 {ad}, {st}, {ad}""")
    for r in range(4):
        for b in range(4): k(f"v_cvt_pk_bf16_f32 {D[4*r+b]}, {z(b,0)[r]}, {z(b,1)[r]}")
        k(f"ds_write_b128 {ad}, {D.q(r)} offset:{1024*r}")
    k(f"""s_lshl_b32 {st}, {I['w']}, 12
    s_add_u32 {st}, {st}, {lds2}
    v_lshl_add_u32 {ad}, {I['l']}, 4, {st}
    s_waitcnt lgkmcnt(0)
    s_barrier""")
    for b in range(4): k(f"ds_read_b128 {D.q(b)}, {ad} offset:{1024*b}")
    stage(C['si'], True)
    so = k.s.alloc()
    k(f"""s_mov_b32 {st}, {16*V2_STR}
    v_mul_lo_u32 {ad}, {I['n']}, {st}
    v_lshl_add_u32 {ad}, {I['g']}, 4, {ad}
    s_mul_i32 {so}, {I['w']}, {4*V2_STR}
    s_lshl_b32 {st}, {T['tau']}, 6
    s_add_u32 {so}, {so}, {st}""")
    last = None
    for b in range(4):
        for r in range(4): k(f"v_cvt_pk_bf16_f32 {D[4*b+r]}, {z(b,0)[r]}, {z(b,1)[r]}")
        last = k(f"buffer_store_dwordx4 {D.q(b)}, {ad}, {sv2}, {so} offen {flags}")
        if b < 3: k(f"s_add_u32 {so}, {so}, {V2_STR}")
    k.v.free(D, acc, tmp, ad, W['r'], W['i'], *C.values()); k.s.free(st, so)
    return last
```

```python
from common import *
from fft import pk

def gen_G(k, I):
    G = k.v.alloc(32)
    f, b, sb, a, c, s = [k.v.alloc() for _ in range(6)]
    st = k.s.alloc()
    k(f"""v_lshrrev_b32 {a}, 1, {I['g']}
    v_lshlrev_b32 {a}, 3, {a}
    v_and_b32 {c}, 1, {I['g']}
    v_lshl_add_u32 {a}, {c}, 1, {a}
    v_cvt_f32_u32 {sb}, {a}""")
    for ib in range(2):
        k(f"""s_lshl_b32 {st}, {I['w']}, 5
        s_add_u32 {st}, {st}, {16*ib}
        v_add_u32 {a}, {st}, {I['n']}
        v_cvt_f32_u32 {f}, {a}
        v_mul_f32 {f}, {fl(1/128)}, {f}
        v_mul_f32 {b}, {f}, {sb}""")
        for kap in range(4):
            for d in range(4):
                sl = 16 * kap + 4 * (d >> 1) + (d & 1)
                k(f"""v_fmamk_f32 {a}, {f}, {fl(float(sl))}, {b}
                v_cos_f32 {c}, {a}
                v_sin_f32 {s}, {a}
                v_cvt_pk_bf16_f32 {G[16*ib+4*kap+d]}, {c}, -{s}""")
        k(f"""v_lshlrev_b32 {c}, 31, {I['n']}
        v_or_b32 {c}, 0x3f003f00, {c}
        v_cmp_eq_u32 vcc, 0, {I['g']}
        v_cndmask_b32 {G[16*ib]}, {G[16*ib]}, {c}, vcc""")
    k.v.free(f, b, sb, a, c, s); k.s.free(st)
    return G

def v2_issue(k, I, sv2, flags=""):
    L = k.v.alloc(16); va = k.v.alloc(); t = k.v.alloc(); so = k.s.alloc(); st = k.s.alloc()
    k(f"""v_lshrrev_b32 {va}, 2, {I['l']}
    v_lshlrev_b32 {va}, 8, {va}
    v_and_b32 {t}, 3, {I['l']}
    v_lshl_or_b32 {va}, {t}, 4, {va}
    s_lshl_b32 {so}, {I['ta']}, 4
    s_add_u32 {so}, {so}, {I['tb']}
    s_mul_i32 {so}, {so}, {V2_STR}
    s_lshl_b32 {st}, {I['w']}, 12
    s_add_u32 {so}, {so}, {st}""")
    for j in range(4):
        k(f"buffer_load_dwordx4 {L.q(j)}, {va}, {sv2}, {so} offen offset:{64*j} {flags}")
    k.v.free(va, t); k.s.free(so, st)
    return L

def y_stage(k, I, L, ldsY):
    Z = k.v.alloc(32); T = k.v.alloc(32); ad = k.v.alloc(); st = k.s.alloc()
    z = lambda j, c: Z.q(2 * j + c); t = lambda j, c: T.q(2 * j + c)
    for j in range(4):
        for u in range(4):
            k(f"v_lshlrev_b32 {z(j,0)[u]}, 16, {L[4*j+u]}\nv_and_b32 {z(j,1)[u]}, 0xffff0000, {L[4*j+u]}")
    for h in (0, 2):
        s = slice(h, h + 2)
        for c in range(2):
            pk(k, '+', t(0, c)[s], z(0, c)[s], z(2, c)[s]); pk(k, '-', t(1, c)[s], z(0, c)[s], z(2, c)[s])
            pk(k, '+', t(2, c)[s], z(1, c)[s], z(3, c)[s])
        pk(k, '-', t(3, 0)[s], z(3, 1)[s], z(1, 1)[s]); pk(k, '-', t(3, 1)[s], z(1, 0)[s], z(3, 0)[s])
    k(f"s_cmp_lg_u32 {I['w']}, 0")
    with k.skip_if("s_cbranch_scc1"):
        k("s_mov_b64 exec, 15")
        for u in range(4):
            k(f"""v_mul_f32 {t(2,0)[u]}, 2.0, {z(1,0)[u]}
            v_mul_f32 {t(2,1)[u]}, 2.0, {z(3,0)[u]}
            v_mul_f32 {t(3,0)[u]}, -2.0, {z(1,1)[u]}
            v_mul_f32 {t(3,1)[u]}, -2.0, {z(3,1)[u]}""")
        k("s_mov_b64 exec, -1")
    k(f"s_lshl_b32 {st}, {I['w']}, 10\ns_add_u32 {st}, {st}, {ldsY}\nv_lshl_add_u32 {ad}, {I['l']}, 4, {st}")
    last = None
    for m in range(4):
        for c in range(2):
            for h in (0, 2):
                s = slice(h, h + 2)
                pk(k, '+' if m < 2 else '-', z(m, c)[s], t(m & 1, c)[s], t(2 + (m & 1), c)[s])
                k(f"v_cvt_pk_bf16_f32 {L[4*m+2*c+h//2]}, {z(m,c)[h]}, {z(m,c)[h+1]}")
        last = k(f"ds_write_b128 {ad}, {L.q(m)} offset:{4096*m}")
    k.v.free(Z, T, ad, L); k.s.free(st)
    return last

def ph3_mfma(k, I, G, ldsY):
    acc = k.v.alloc(32)
    fr = k.v.alloc(32); ad = k.v.alloc(); t = k.v.alloc()
    k(f"""v_lshrrev_b32 {ad}, 5, {I['l']}
    v_lshlrev_b32 {ad}, 9, {ad}
    v_bfe_u32 {t}, {I['l']}, 3, 2
    v_lshl_or_b32 {ad}, {t}, 6, {ad}
    v_and_b32 {t}, 3, {I['l']}
    v_lshl_or_b32 {ad}, {t}, 4, {ad}
    v_bfe_u32 {t}, {I['l']}, 2, 1
    v_lshl_or_b32 {ad}, {t}, 3, {ad}
    v_add_u32 {ad}, {ldsY}, {ad}""")
    def rd(m):
        f = fr.q(m & 1, 16)
        for kap in range(4):
            for h in range(2):
                k(f"ds_read_b64_tr_b16 {f[4*kap+2*h:4*kap+2*h+2]}, {ad} offset:{4096*m + 1024*kap + 256*h}")
    rd(0)
    for m in range(4):
        if m < 3: rd(m + 1)
        f = fr.q(m & 1, 16)
        for kap in range(4):
            for ib in range(2):
                d = acc.q(2 * m + ib)
                k(f"v_mfma_f32_16x16x32_bf16 {d}, {f.q(kap)}, {G.q(4*ib+kap)}, {d if kap else 0}")
    k.v.free(fr, ad, t, G)
    return acc

class B3:
    NST = 5
    def __init__(self, k, I, sh, scr, sci, ldsH, ldsC, hflags=""):
        self.k, self.I, self.sh, self.sc = k, I, sh, (scr, sci)
        self.hflags = hflags
        self.vh = k.v.alloc(); self.vc = k.v.alloc(2); self.rh = k.v.alloc(2); self.rc = k.v.alloc(2)
        self.soH, self.soC, self.mH, self.mC = [k.s.alloc() for _ in range(4)]
        t = k.v.alloc(3); st = k.s.alloc(); l = I['l']
        k(f"""v_lshlrev_b32 {self.vh}, 4, {l}
        v_lshrrev_b32 {t[0]}, 3, {l}
        v_lshlrev_b32 {t[0]}, 11, {t[0]}
        v_and_b32 {t[1]}, 7, {l}
        v_xor_b32 {t[1]}, {t[1]}, {I['g']}
        v_lshl_or_b32 {self.vc[0]}, {t[1]}, 4, {t[0]}
        v_xor_b32 {self.vc[1]}, 64, {self.vc[0]}
        v_add_u32 {self.vc[1]}, {16384 - 1024}, {self.vc[1]}
        s_lshl_b32 {self.soH}, {I['ta']}, 19
        s_lshl_b32 {st}, {I['w']}, 12
        s_add_u32 {self.soH}, {self.soH}, {st}
        s_mul_i32 {self.mH}, {I['w']}, {4096*self.NST}
        s_add_u32 {self.mH}, {self.mH}, {ldsH}
        s_lshl_b32 {self.soC}, {I['w']}, 19
        s_lshl_b32 {st}, {I['tb']}, 15
        s_add_u32 {self.soC}, {self.soC}, {st}
        s_lshl_b32 {self.mC}, {I['w']}, 11
        s_add_u32 {self.mC}, {self.mC}, {ldsC}""")
        k(f"""v_and_b32 {t[0]}, 3, {l}
        v_lshlrev_b32 {t[1]}, 9, {t[0]}
        v_bfe_u32 {t[2]}, {l}, 2, 2
        v_lshl_or_b32 {t[1]}, {t[2]}, 3, {t[1]}
        v_and_b32 {t[2]}, 2, {l}
        v_xor_b32 {t[2]}, {t[2]}, {I['g']}
        v_lshl_or_b32 {t[1]}, {t[2]}, 6, {t[1]}
        v_and_b32 {t[2]}, 1, {l}
        v_lshl_or_b32 {t[1]}, {t[2]}, 5, {t[1]}
        v_add_u32 {self.rh[0]}, {self.mH}, {t[1]}
        v_xor_b32 {self.rh[1]}, 32, {self.rh[0]}
        v_lshrrev_b32 {t[0]}, 1, {I['n']}
        v_xor_b32 {t[0]}, {t[0]}, {I['g']}
        v_lshlrev_b32 {t[0]}, 4, {t[0]}
        v_lshl_or_b32 {t[0]}, {I['n']}, 7, {t[0]}
        v_add_u32 {self.rc[0]}, {ldsC}, {t[0]}
        v_xor_b32 {self.rc[1]}, 64, {self.rc[0]}""")
        k.v.free(t); k.s.free(st)
        self.last = {}
    def dma(self, s, i):
        k = self.k; b = s % self.NST
        if i < 2:
            if i == 0: k(f"s_add_u32 m0, {self.mC}, {b*8192}")
            ins = k(f"buffer_load_dwordx4 {self.vc[i]}, {self.sc[s&1]}, {self.soC} offen offset:{1024*i} lds")
            if i == 1 and s & 1: k(f"s_add_u32 {self.soC}, {self.soC}, 128")
        else:
            j = i - 2
            if j == 0: k(f"s_add_u32 m0, {self.mH}, {b*4096}")
            ins = k(f"buffer_load_dwordx4 {self.vh}, {self.sh}, {self.soH} offen offset:{1024*j} {self.hflags} lds")
            if j == 3: k(f"s_add_u32 {self.soH}, {self.soH}, 16384")
        self.last[s] = ins
    def prefill(self, steps):
        for s in steps:
            for i in range(6): self.dma(s, i)
    def main(self, fill=None):
        k = self.k; NS = 32
        acc = k.v.alloc(32)
        fr = k.v.alloc(48)
        def reads(s, kk):
            f = fr.q((s * 2 + kk) & 1, 24); b = s % self.NST
            H = lambda ib, h: f"ds_read_b64_tr_b16 {f[4*ib+2*h:4*ib+2*h+2]}, {self.rh[h]} offset:{b*4096 + ib*2048 + kk*256}"
            C = lambda m: f"ds_read_b128 {f.q(2+m)}, {self.rc[kk]} offset:{b*8192 + m*2048}"
            return [H(0, 0), H(0, 1), C(0), H(1, 0), H(1, 1), C(1), C(2), C(3)]
        k.wait(self.last[0]); k("s_barrier")
        lastrd = None
        for r in reads(0, 0): lastrd = k(r)
        for s in range(NS):
            for kk in range(2):
                f = fr.q((s * 2 + kk) & 1, 24)
                rd = []
                if kk == 0: rd = reads(s, 1)
                elif s + 1 < NS:
                    k.wait(lastrd, self.last[s + 1]); k("s_barrier")
                    rd = reads(s + 1, 0)
                ds, di = (s + self.NST, 0) if kk == 1 else (s + self.NST - 1, 3)
                dm = [(ds, di + x) for x in range(3)] if (self.NST <= ds < NS) else []
                for q in range(8):
                    m, ib = q >> 1, q & 1
                    d = acc.q(2 * m + ib)
                    first = s == 0 and kk == 0
                    k(f"v_mfma_f32_16x16x32_bf16 {d}, {f.q(2+m)}, {f.q(ib)}, {0 if first else d}")
                    if rd and q < 4:
                        k(rd[2 * q]); lastrd = k(rd[2 * q + 1])
                    if dm and q in (4, 5, 6): self.dma(*dm[q - 4])
                    if fill: fill(s, kk, q)
        k.v.free(fr, self.vh, self.vc, self.rh, self.rc); k.s.free(self.soH, self.soC, self.mH, self.mC)
        return acc

def epi_issue(k, I, sg, sd, flags=""):
    E = dict(g=k.v.alloc(2), d=k.v.alloc(8))
    va = k.v.alloc(); so = k.s.alloc(); st = k.s.alloc()
    k(f"""v_lshlrev_b32 {va}, 2, {I['n']}
    s_lshl_b32 {so}, {I['ta']}, 9
    s_lshl_b32 {st}, {I['w']}, 7
    s_add_u32 {so}, {so}, {st}
    buffer_load_dword {E['g'][0]}, {va}, {sg}, {so} offen {flags}
    buffer_load_dword {E['g'][1]}, {va}, {sg}, {so} offen offset:64 {flags}
    v_lshlrev_b32 {va}, 3, {I['g']}
    s_lshl_b32 {so}, {I['tb']}, 5""")
    for m in range(4):
        k(f"buffer_load_dwordx2 {E['d'].q(m,2)}, {va}, {sd}, {so} offen offset:{512*m}")
    k.v.free(va); k.s.free(so, st)
    return E

def epi_pre(k, I, E, acca, ldsX):
    X = k.v.alloc(16); ad = k.v.alloc(4); t = k.v.alloc(2); Dk = k.v.alloc(4); xt = k.v.alloc(4); st = k.s.alloc()
    gs = k.v.alloc(2); om = k.v.alloc(2)
    k(f"""s_lshl_b32 {st}, {I['w']}, 12
    s_add_u32 {st}, {st}, {ldsX}
    v_lshlrev_b32 {t[0]}, 7, {I['n']}
    v_lshl_or_b32 {t[0]}, {I['g']}, 3, {t[0]}
    v_add_u32 {t[0]}, {st}, {t[0]}
    v_bfe_u32 {t[1]}, {I['n']}, 1, 2""")
    for m in range(4):
        k(f"v_xor_b32 {ad[m]}, {m}, {t[1]}\nv_lshl_add_u32 {ad[m]}, {ad[m]}, 5, {t[0]}")
        for ib in range(2):
            k(f"ds_read_b64 {X.q(2*m+ib,2)}, {ad[m]} offset:{2048*ib}")
    for ib in range(2):
        k(f"""v_mul_f32 {gs[ib]}, {fl(2.0**-20)}, {E['g'][ib]}
        v_sub_f32 {om[ib]}, 1.0, {E['g'][ib]}
        v_cvt_pk_bf16_f32 {om[ib]}, {om[ib]}, {om[ib]}
        v_and_b32 {om[ib]}, 0xffff0000, {om[ib]}""")
    for m in range(4):
        for h in range(2):
            k(f"v_lshlrev_b32 {Dk[2*h]}, 16, {E['d'][2*m+h]}\nv_and_b32 {Dk[2*h+1]}, 0xffff0000, {E['d'][2*m+h]}")
        for ib in range(2):
            sel = f" op_sel:[{ib},0] op_sel_hi:[{ib},1]"; sel3 = f" op_sel:[{ib},0,0] op_sel_hi:[{ib},1,1]"
            for h in range(2):
                x = X[2 * (2 * m + ib) + h]; a = acca.q(2 * m + ib)[2 * h:2 * h + 2]; u = xt[2 * h:2 * h + 2]
                k(f"""v_lshlrev_b32 {u[0]}, 16, {x}
                v_and_b32 {u[1]}, 0xffff0000, {x}
                v_pk_mul_f32 {a}, {gs}, {a}{sel}
                v_pk_mul_f32 {u}, {u}, {Dk[2*h:2*h+2]}
                v_pk_fma_f32 {a}, {om}, {u}, {a}{sel3}""")
    k.v.free(X, ad, t, Dk, xt, gs, E['g'], E['d']); k.s.free(st)
    E['om'] = om

def epi_final(k, I, E, acca, accb, so_):
    va = k.v.alloc(); so = k.s.alloc(); st = k.s.alloc(); om = E['om']
    k(f"""v_lshlrev_b32 {va}, 16, {I['n']}
    v_lshl_or_b32 {va}, {I['g']}, 4, {va}
    s_lshl_b32 {so}, {I['w']}, 21
    s_lshl_b32 {st}, {I['ta']}, 12
    s_add_u32 {so}, {so}, {st}
    s_lshl_b32 {st}, {I['tb']}, 6
    s_add_u32 {so}, {so}, {st}
    s_add_u32 {st}, {so}, {1<<20}""")
    for m in range(4):
        for ib in range(2):
            sel3 = f" op_sel:[{ib},0,0] op_sel_hi:[{ib},1,1]"
            a = acca.q(2 * m + ib); b = accb.q(2 * m + ib)
            for h in (0, 2):
                k(f"v_pk_fma_f32 {a[h:h+2]}, {om}, {b[h:h+2]}, {a[h:h+2]}{sel3}")
            k(f"buffer_store_dwordx4 {a}, {va}, {so_}, {st if ib else so} offen offset:{1024*m}")
    k.v.free(va, om, acca, accb); k.s.free(so, st)
```

```python
from common import *

LOG2E = 1.4426950408889634
def ssm_param_issue(k, I, slre, slim, sldt):
    Q = k.v.alloc(3); va = k.v.alloc(); so = k.s.alloc(); st = k.s.alloc()
    k(f"""v_and_b32 {va}, 31, {I['l']}
    v_lshlrev_b32 {va}, 1, {va}
    s_lshl_b32 {so}, {I['tb']}, 7
    s_and_b32 {st}, {I['w']}, 1
    s_lshl_b32 {st}, {st}, 6
    s_add_u32 {so}, {so}, {st}
    buffer_load_ushort {Q[0]}, {va}, {slre}, {so} offen
    buffer_load_ushort {Q[1]}, {va}, {slim}, {so} offen
    buffer_load_ushort {Q[2]}, {va}, {sldt}, {so} offen""")
    k.v.free(va); k.s.free(so, st)
    return Q

def csq(k, d, s, t):
    k(f"""v_mul_f32 {t}, {s[1]}, {s[1]}
    v_mul_f32 {d[1]}, {s[0]}, {s[1]}
    v_fma_f32 {d[0]}, {s[0]}, {s[0]}, -{t}
    v_add_f32 {d[1]}, {d[1]}, {d[1]}""")

def ssm_param_compute(k, Q):
    Pm = {n: k.v.alloc(2) for n in ('L1', 'L16', 'L32', 'L64', 'L1024', 'coef')}
    t = k.v.alloc(4)
    L = Pm['L1']; cf = Pm['coef']
    k(f"""v_lshlrev_b32 {Q[0]}, 16, {Q[0]}
    v_lshlrev_b32 {Q[1]}, 16, {Q[1]}
    v_lshlrev_b32 {Q[2]}, 16, {Q[2]}
    v_mul_f32 {Q[2]}, {fl(LOG2E)}, {Q[2]}
    v_exp_f32 {Q[2]}, {Q[2]}
    v_cvt_pk_bf16_f32 {Q[2]}, {Q[2]}, {Q[2]}
    v_and_b32 {Q[2]}, 0xffff0000, {Q[2]}
    v_mul_f32 {t[0]}, {Q[2]}, {Q[0]}
    v_mul_f32 {t[1]}, {Q[2]}, {Q[1]}
    v_mul_f32 {t[0]}, {fl(LOG2E)}, {t[0]}
    v_mul_f32 {t[1]}, 0.15915494, {t[1]}
    v_exp_f32 {t[0]}, {t[0]}
    v_rndne_f32 {t[2]}, {t[1]}
    v_sub_f32 {t[1]}, {t[1]}, {t[2]}
    v_cos_f32 {t[2]}, {t[1]}
    v_sin_f32 {t[3]}, {t[1]}
    v_mul_f32 {L[0]}, {t[0]}, {t[2]}
    v_mul_f32 {L[1]}, {t[0]}, {t[3]}
    v_mul_f32 {t[0]}, {Q[0]}, {Q[0]}
    v_fma_f32 {t[0]}, {Q[1]}, {Q[1]}, {t[0]}
    v_rcp_f32 {t[0]}, {t[0]}
    v_add_f32 {t[1]}, -1.0, {L[0]}
    v_add_f32 {t[0]}, {t[0]}, {t[0]}
    v_mul_f32 {t[2]}, {t[1]}, {Q[0]}
    v_fma_f32 {t[2]}, {L[1]}, {Q[1]}, {t[2]}
    v_mul_f32 {t[3]}, {L[1]}, {Q[0]}
    v_fma_f32 {t[3]}, -{t[1]}, {Q[1]}, {t[3]}
    v_mul_f32 {cf[0]}, {t[2]}, {t[0]}
    v_mul_f32 {cf[1]}, {t[3]}, {t[0]}""")
    a = Pm['L16']
    csq(k, a, L, t[0])
    for _ in range(3): csq(k, a, a, t[0])
    csq(k, Pm['L32'], a, t[0]); csq(k, Pm['L64'], Pm['L32'], t[0])
    b = Pm['L1024']
    csq(k, b, Pm['L64'], t[0])
    for _ in range(3): csq(k, b, b, t[0])
    k.v.free(t, Q)
    return Pm

def cfma(k, d, a, b, c):
    k(f"""v_fma_f32 {d[0]}, {a[0]}, {b[0]}, {c[0]}
    v_fma_f32 {d[1]}, {a[0]}, {b[1]}, {c[1]}
    v_fma_f32 {d[0]}, -{a[1]}, {b[1]}, {d[0]}
    v_fma_f32 {d[1]}, {a[1]}, {b[0]}, {d[1]}""")

BC0 = " op_sel:[0,0,0] op_sel_hi:[0,1,1]"
BC1 = " op_sel:[1,0,0] op_sel_hi:[1,1,1]"
NEG0 = " neg_lo:[1,0,0] neg_hi:[1,0,0]"

class B1:
    NST = 4
    def __init__(self, k, I, sx, sb, ldsA, ldsB):
        self.k, self.I, self.sx, self.sb, self.ldsA, self.ldsB = k, I, sx, sb, ldsA, ldsB
        self.va = k.v.alloc(4); self.vb = k.v.alloc(4); self.ra = k.v.alloc(4); self.rb = k.v.alloc(4)
        self.soA, self.soB, self.mA, self.mB = [k.s.alloc() for _ in range(4)]
        t = k.v.alloc(3); st = k.s.alloc()
        l = I['l']
        k(f"""v_lshrrev_b32 {t[0]}, 5, {l}
        v_lshlrev_b32 {t[0]}, 5, {t[0]}
        v_bfe_u32 {t[1]}, {l}, 3, 1
        v_lshl_or_b32 {t[0]}, {t[1]}, 4, {t[0]}
        v_bfe_u32 {t[1]}, {l}, 4, 1
        v_or_b32 {t[0]}, {t[0]}, {t[1]}
        v_lshlrev_b32 {t[0]}, 11, {t[0]}
        v_lshrrev_b32 {t[1]}, 3, {l}
        v_lshlrev_b32 {t[1]}, 11, {t[1]}
        v_and_b32 {t[2]}, 7, {l}
        v_xor_b32 {t[2]}, {t[2]}, {I['g']}
        v_lshlrev_b32 {t[2]}, 4, {t[2]}
        v_or_b32 {t[0]}, {t[0]}, {t[2]}
        v_or_b32 {t[1]}, {t[1]}, {t[2]}""")
        for j in range(4):
            x = 64 * (j & 1)
            k(f"v_xor_b32 {self.va[j]}, {x}, {t[0]}\nv_add_u32 {self.va[j]}, {j*4096 - j*1024}, {self.va[j]}")
            k(f"v_xor_b32 {self.vb[j]}, {x}, {t[1]}\nv_add_u32 {self.vb[j]}, {j*16384 - j*1024}, {self.vb[j]}")
        k(f"""s_lshl_b32 {self.soA}, {I['ta']}, 18
        s_lshr_b32 {st}, {I['w']}, 1
        s_lshl_b32 {self.mA}, {st}, 17
        s_add_u32 {self.soA}, {self.soA}, {self.mA}
        s_lshl_b32 {self.soB}, {I['tb']}, 17
        s_lshl_b32 {self.mA}, {st}, 16
        s_add_u32 {self.soB}, {self.soB}, {self.mA}
        s_and_b32 {st}, {I['w']}, 1
        s_lshl_b32 {st}, {st}, 14
        s_add_u32 {self.soA}, {self.soA}, {st}
        s_lshl_b32 {st}, {I['w']}, 12
        s_add_u32 {self.mA}, {st}, {ldsA}
        s_add_u32 {self.mB}, {st}, {ldsB}""")
        k(f"""v_and_b32 {t[0]}, 31, {l}
        v_lshlrev_b32 {t[0]}, 7, {t[0]}
        v_bfe_u32 {t[1]}, {l}, 1, 3
        v_lshrrev_b32 {t[2]}, 5, {l}
        v_xor_b32 {t[1]}, {t[1]}, {t[2]}
        v_lshl_or_b32 {t[0]}, {t[1]}, 4, {t[0]}
        s_lshr_b32 {st}, {I['w']}, 1
        s_lshl_b32 {st}, {st}, 13
        s_add_u32 {st}, {st}, {ldsA}
        v_add_u32 {t[1]}, {st}, {t[0]}
        s_and_b32 {st}, {I['w']}, 1
        s_lshl_b32 {st}, {st}, 13
        s_add_u32 {st}, {st}, {ldsB}
        v_add_u32 {t[2]}, {st}, {t[0]}""")
        for kk in range(4):
            k(f"v_xor_b32 {self.ra[kk]}, {32*kk}, {t[1]}\nv_xor_b32 {self.rb[kk]}, {32*kk}, {t[2]}")
        k.v.free(t); k.s.free(st)
        self.last = {}
    def dma(self, s, i):
        k = self.k; j = i & 3; buf = (s % self.NST) * 16384
        if i < 4:
            if j == 0: k(f"s_add_u32 m0, {self.mA}, {buf}")
            ins = k(f"buffer_load_dwordx4 {self.va[j]}, {self.sx}, {self.soA} offen offset:{1024*j} lds")
            if j == 3: k(f"s_add_u32 {self.soA}, {self.soA}, 128")
        else:
            if j == 0: k(f"s_add_u32 m0, {self.mB}, {buf}")
            ins = k(f"buffer_load_dwordx4 {self.vb[j]}, {self.sb}, {self.soB} offen offset:{1024*j} lds")
            if j == 3: k(f"s_add_u32 {self.soB}, {self.soB}, 128")
        self.last[s] = ins
    def prefill(self, steps):
        for s in steps:
            for i in range(8): self.dma(s, i)
    def main(self, fill=None):
        k = self.k; NS = 16
        self.acc = acc = k.v.alloc(64)
        fr = k.v.allocq(32)
        def reads(s, kk):
            f = fr.q((s * 4 + kk) & 1, 16); buf = (s % self.NST) * 16384
            out = []
            for b in range(2):
                out.append(f"ds_read_b128 {f.q(b)}, {self.ra[kk]} offset:{buf + 4096*b}")
                out.append(f"ds_read_b128 {f.q(2+b)}, {self.rb[kk]} offset:{buf + 4096*b}")
            return out
        k.wait(self.last[0]); k("s_barrier")
        lastrd = None
        for r in reads(0, 0): lastrd = k(r)
        for s in range(NS):
            for kk in range(4):
                f = fr.q((s * 4 + kk) & 1, 16)
                rd = []
                if kk < 3: rd = reads(s, kk + 1)
                elif s + 1 < NS:
                    k.wait(lastrd, self.last[s + 1]); k("s_barrier")
                    rd = reads(s + 1, 0)
                ds, di = (s + self.NST, 0) if kk == 3 else (s + self.NST - 1, 2 * (kk + 1))
                dm = [(ds, di), (ds, di + 1)] if (self.NST <= ds < NS) else []
                for m, (rb, c) in enumerate(((0, 0), (0, 1), (1, 1), (1, 0))):
                    d = acc.q(2 * rb + c, 16)
                    first = s == 0 and kk == 0
                    k(f"v_mfma_f32_32x32x16_bf16 {d}, {f.q(rb)}, {f.q(2+c)}, {0 if first else d}")
                    if m < 2 and rd:
                        k(rd[2 * m]); lastrd = k(rd[2 * m + 1])
                    if m >= 2 and dm: self.dma(*dm[m - 2])
                    if fill: fill(s, kk, m)
        k.v.free(fr, self.va, self.vb, self.ra, self.rb); k.s.free(self.soA, self.soB, self.mA, self.mB)
        return acc

def upair(acc, j, c):
    rb, q = j >> 3, j & 7
    return acc.q(2 * rb + c, 16)[2 * q:2 * q + 2]

def scan_pass1(k, I, acc, Pm, se, flags="sc1"):
    er, ei, ta, tb = [k.v.alloc(2) for _ in range(4)]
    L = Pm['L1']
    cr, ci = upair(acc, 0, 0), upair(acc, 0, 1)
    outs = [(er, ei), (ta, tb)]
    for j in range(1, 16):
        nr, ni = outs[(15 - j) & 1]
        k(f"""v_pk_fma_f32 {nr}, {L}, {cr}, {upair(acc,j,0)}{BC0}
        v_pk_fma_f32 {ni}, {L}, {ci}, {upair(acc,j,1)}{BC0}
        v_pk_fma_f32 {nr}, {L}, {ci}, {nr}{BC1}{NEG0}
        v_pk_fma_f32 {ni}, {L}, {cr}, {ni}{BC1}""")
        cr, ci = nr, ni
    cfma(k, ta, Pm['L16'], (er[0], ei[0]), (er[1], ei[1]))
    k(f"""v_mov_b32 {tb[0]}, {ta[0]}
    v_mov_b32 {tb[1]}, {ta[1]}
    v_permlane32_swap_b32 {ta[0]}, {tb[0]}
    v_permlane32_swap_b32 {ta[1]}, {tb[1]}""")
    cfma(k, tb, Pm['L32'], ta, tb)
    va = k.v.alloc(); st = k.s.alloc(); s2_ = k.s.alloc()
    k(f"""v_min_u32 {tb[0]}, -2, {tb[0]}
    v_min_u32 {tb[1]}, -2, {tb[1]}
    s_lshl_b32 {st}, {I['ta']}, 1
    s_lshr_b32 {s2_}, {I['w']}, 1
    s_add_u32 {st}, {st}, {s2_}
    s_sub_u32 {st}, 31, {st}
    s_lshl_b32 {st}, {st}, 9
    s_and_b32 {s2_}, {I['w']}, 1
    s_lshl_b32 {s2_}, {s2_}, 8
    s_add_u32 {st}, {st}, {s2_}
    v_and_b32 {va}, 31, {I['l']}
    v_lshl_add_u32 {va}, {va}, 3, {st}
    s_mov_b32 exec_hi, 0
    buffer_store_dwordx2 {tb}, {va}, {se}, 0 offen {flags}
    s_mov_b64 exec, -1""")
    t = k.v.alloc()
    k(f"v_lshrrev_b32 {t}, 5, {I['l']}\nv_lshl_add_u32 {va}, {t}, 13, {va}\nv_add_u32 {va}, 512, {va}")
    k.v.free(tb, t); k.s.free(st, s2_)
    return dict(er=er, ei=ei, lo=ta, va=va)

def scan_coef(k, acc, Pm):
    cf = Pm['coef']; t = k.v.alloc(4)
    for j in range(16):
        ur, ui = upair(acc, j, 0), upair(acc, j, 1)
        tr = t[0:2] if j & 1 else t[2:4]
        k(f"""v_pk_mul_f32 {tr}, {cf}, {ur} op_sel:[1,0] op_sel_hi:[1,1]
        v_pk_mul_f32 {ur}, {cf}, {ur} op_sel:[0,0] op_sel_hi:[0,1]
        v_pk_fma_f32 {ur}, {cf}, {ui}, {ur}{BC1}{NEG0}
        v_pk_fma_f32 {ui}, {cf}, {ui}, {tr}{BC0}""")
    k.v.free(t)

def lookback(k, I, E1, se, maxspin=1 << 20):
    E = k.v.allocq(32); m = k.v.alloc(); va2 = k.v.alloc(); cnt = k.s.alloc()
    va = E1['va']
    lp, out = k.lab('lb'), k.lab('lbdone')
    k(f"v_add_u32 {va2}, 4096, {va}\ns_mov_b32 {cnt}, 0")
    k(f"{lp}:")
    for j in range(16):
        k(f"buffer_load_dwordx2 {E.q(j,2)}, {va if j < 8 else va2}, {se}, 0 offen offset:{512*(j&7)} sc1")
    k(f"v_max_u32 {m}, {E[0]}, {E[1]}")
    for j in range(1, 16): k(f"v_max3_u32 {m}, {m}, {E[2*j]}, {E[2*j+1]}")
    k(f"""v_cmp_eq_u32 vcc, -1, {m}
    s_cbranch_vccz {out}
    s_add_u32 {cnt}, {cnt}, 1
    s_cmp_lt_u32 {cnt}, {maxspin}
    s_cbranch_scc1 {lp}
    {out}:""")
    k.v.free(m, va2, va); k.s.free(cnt)
    return E

def scan_pass2(k, I, acc, Pm, E1, E, sh, flags=""):
    for j in range(14, -1, -1):
        cfma(k, E.q(j, 2), Pm['L64'], E.q(j + 1, 2), E.q(j, 2))
    S, T = E.q(0, 2), E.q(1, 2); U, V = E.q(2, 2), E.q(3, 2)
    k(f"""v_mov_b32 {T[0]}, {S[0]}
    v_mov_b32 {T[1]}, {S[1]}
    v_permlane32_swap_b32 {S[0]}, {T[0]}
    v_permlane32_swap_b32 {S[1]}, {T[1]}""")
    cfma(k, S, Pm['L1024'], T, S)
    cfma(k, E1['lo'], Pm['L32'], S, E1['lo'])
    k(f"s_mov_b32 exec_lo, 0\nv_mov_b32 {S[0]}, {E1['lo'][0]}\nv_mov_b32 {S[1]}, {E1['lo'][1]}\ns_mov_b64 exec, -1")
    e0 = (E1['er'][0], E1['ei'][0])
    cfma(k, e0, Pm['L16'], S, e0)
    cf = Pm['coef']
    for h, x in ((0, S), (1, e0)):
        k(f"""v_mul_f32 {U[h]}, {cf[0]}, {x[0]}
        v_mul_f32 {V[h]}, {cf[0]}, {x[1]}
        v_fma_f32 {U[h]}, -{cf[1]}, {x[1]}, {U[h]}
        v_fma_f32 {V[h]}, {cf[1]}, {x[0]}, {V[h]}""")
    va = k.v.alloc(); t = k.v.alloc(); so = k.s.alloc(); st = k.s.alloc(); s2_ = k.s.alloc()
    k(f"""s_lshl_b32 {st}, {I['ta']}, 1
    s_lshr_b32 {s2_}, {I['w']}, 1
    s_add_u32 {st}, {st}, {s2_}
    s_lshl_b32 {so}, {st}, 9
    s_and_b32 {st}, {st}, 2
    s_lshl_b32 {st}, {st}, 1
    s_or_b32 {st}, {st}, {s2_}
    s_lshl_b32 {st}, {st}, 2
    v_and_b32 {va}, 31, {I['l']}
    v_xor_b32 {va}, {st}, {va}
    v_lshlrev_b32 {va}, 3, {va}
    v_lshrrev_b32 {t}, 5, {I['l']}
    v_lshl_or_b32 {va}, {t}, 14, {va}
    s_and_b32 {s2_}, {I['w']}, 1
    s_lshl_b32 {s2_}, {s2_}, 8
    s_add_u32 {so}, {so}, {s2_}
    s_lshl_b32 {s2_}, {I['tb']}, 15
    s_add_u32 {so}, {so}, {s2_}""")
    L = Pm['L1']; cr, ci = U, V
    O = E[8:32]
    pend = []
    last = None
    def flush():
        nonlocal last
        j, o = pend.pop(0)
        k(f"v_permlane32_swap_b32 {o[0]}, {o[1]}")
        last = k(f"buffer_store_dwordx2 {o}, {va}, {sh}, {so} offen {flags}")
        if j < 15: k(f"s_add_u32 {so}, {so}, {32*16384}")
    for j in range(16):
        nr, ni = upair(acc, j, 0), upair(acc, j, 1)
        k(f"""v_pk_fma_f32 {nr}, {L}, {cr}, {nr}{BC0}
        v_pk_fma_f32 {ni}, {L}, {ci}, {ni}{BC0}
        v_pk_fma_f32 {nr}, {L}, {ci}, {nr}{BC1}{NEG0}
        v_pk_fma_f32 {ni}, {L}, {cr}, {ni}{BC1}""")
        cr, ci = nr, ni
        if pend: flush()
        o = O.q(j % 12, 2)
        k(f"v_cvt_pk_bf16_f32 {o[0]}, {nr[0]}, {nr[1]}\nv_cvt_pk_bf16_f32 {o[1]}, -{ni[0]}, -{ni[1]}")
        pend.append((j, o))
    flush()
    k.v.free(va, t, E, acc, E1['er'], E1['ei'], E1['lo'], *Pm.values()); k.s.free(so, st, s2_)
    return last
```

```python
from build1 import *
def kEmpty():
    k = Kernel("ke_kernel"); k("s_nop 0"); end(k); return k
def kPf():
    k = Kernel("kp_kernel")
    names = ['x', 'wr', 'wi', 'bre', 'bim', 'cre', 'cim']
    P = prologue(k, names)
    va = k.v.alloc(); so = k.s.alloc(); d = k.v.alloc(64)
    k(f"v_lshlrev_b32 {va}, 4, v0")
    j = 0
    for n in names:
        s = srd(k, P[n], SZ[n])
        per = 16384 if n == 'x' else 8192 + (64 if n[0] == 'w' else 0)
        k(f"s_mul_i32 {so}, s2, {per}")
        for c in range(per // 4096):
            k(f"buffer_load_dwordx4 {d.q(j)}, {va}, {s}, {so} offen"); j += 1
            k(f"s_add_u32 {so}, {so}, 4096")
    k("s_waitcnt vmcnt(0)")
    end(k); return k
base = [("ka_kernel", 256, 256, 16384), ("kb_kernel", 256, 256, 33792), ("kc_kernel", 256, 256, 131072), ("kd_kernel", 256, 256, 155648)]
E = ("ke_kernel", 256, 256, 0); Pf = ("kp_kernel", 256, 256, 0)
var = dict(e_base=base, e_empty1=base + [E], e_empty4=base + [E] * 4, e_dupd=base + [base[3]], e_pf=[Pf] + base, e_pre=[E] + base)
for n, l in var.items():
    ks = [kA(), kB(), kC(), kD()]
    if E in l: ks.append(kEmpty())
    if Pf in l: ks.append(kPf())
    open(f"probe/{n}.s", "w").write(module(HEADER, l, ks))
```

```python
import re

class R:
    def __init__(self, kind, idx, n=1):
        self.kind, self.idx, self.n = kind, idx, n
    def __str__(self):
        if self.n == 1: return f"{self.kind}{self.idx}"
        return f"{self.kind}[{self.idx}:{self.idx+self.n-1}]"
    __repr__ = __str__
    def __format__(self, spec): return str(self)
    def __getitem__(self, i):
        if isinstance(i, slice):
            a = i.start or 0; b = self.n if i.stop is None else i.stop
            assert 0 <= a < b <= self.n, (self, i)
            return R(self.kind, self.idx + a, b - a)
        assert 0 <= i < self.n, (self, i)
        return R(self.kind, self.idx + i, 1)
    def q(self, i, w=4):
        return self[i * w:(i + 1) * w]
    def __len__(self): return self.n

class RL:
    def __init__(self, parts): self.parts = parts; self.w = parts[0].n; self.n = self.w * len(parts)
    def __getitem__(self, i):
        if isinstance(i, slice):
            a = i.start or 0; b = self.n if i.stop is None else i.stop
            if a // self.w == (b - 1) // self.w: return self.parts[a // self.w][a % self.w:(b - 1) % self.w + 1]
            assert a % self.w == 0 and b % self.w == 0
            return RL(self.parts[a // self.w:b // self.w])
        return self.parts[i // self.w][i % self.w]
    def q(self, i, w=4): return self[i * w:(i + 1) * w]
    def __len__(self): return self.n

class Pool:
    def __init__(self, kind, lo, hi):
        self.kind, self.lo, self.hi = kind, lo, hi
        self.used = [False] * hi
        self.high = lo
        self.touched = None
    def alloc(self, n=1, align=None):
        if align is None: align = 1 if n == 1 else (2 if n < 4 else 4)
        if self.kind != 's' and n >= 2: align = max(align, 2)
        i = (self.lo + align - 1) // align * align
        while i + n <= self.hi:
            if not any(self.used[i:i + n]):
                for j in range(i, i + n): self.used[j] = True
                if self.touched is not None: self.touched.update(range(i, i + n))
                self.high = max(self.high, i + n)
                return R(self.kind, i, n)
            i += align
        raise RuntimeError(f"out of {self.kind} registers (n={n}); used={sum(self.used)}")
    def allocq(self, n, w=4):
        assert n % w == 0
        return RL([self.alloc(w) for _ in range(n // w)])
    def free(self, *rs):
        for r in rs:
            if isinstance(r, RL):
                self.free(*r.parts); continue
            for j in range(r.idx, r.idx + r.n):
                if self.touched is not None: self.touched.add(j)
                assert self.used[j], f"double free {r}"
                self.used[j] = False
    def nused(self): return sum(self.used)

_REG = re.compile(r'\b([vas])(\d+)\b|\b([vas])\[(\d+):(\d+)\]|\b(vcc|exec|m0|scc)(_lo|_hi)?\b')
def regs_of(tok):
    out = set()
    for m in _REG.finditer(tok):
        if m.group(1): out.add((m.group(1), int(m.group(2))))
        elif m.group(3):
            for j in range(int(m.group(4)), int(m.group(5)) + 1): out.add((m.group(3), j))
        else: out.add((m.group(6), 0))
    return out

TRANS = ('v_exp_', 'v_log_', 'v_rcp_', 'v_rsq_', 'v_sqrt_', 'v_sin_', 'v_cos_')
def split_ops(s):
    out, depth, cur = [], 0, ''
    for ch in s:
        if ch in '[(': depth += 1
        if ch in '])': depth -= 1
        if ch == ',' and depth == 0: out.append(cur.strip()); cur = ''
        else: cur += ch
    if cur.strip(): out.append(cur.strip())
    return out

class Ins:
    __slots__ = ('text', 'mn', 'defs', 'uses', 'cls', 'label', 'target', 'passes', 'A', 'B', 'C', 'data', 'opt', 'tok', 'ws', 'uncond')
    def __init__(self, text):
        self.text = text; self.label = None; self.target = None; self.passes = 0
        self.defs = set(); self.uses = set(); self.cls = 'other'; self.A = self.B = self.C = set(); self.data = set()
        self.opt = 0; self.tok = None; self.ws = 1; self.uncond = False
        t = text.split(';')[0].strip()
        if t.endswith(':'):
            self.label = t[:-1]; self.cls = 'label'; self.mn = ''; self.ws = 0; return
        if t.startswith('.') or not t:
            self.cls = 'dir'; self.mn = ''; self.ws = 0; return
        p = t.split(None, 1)
        mn = self.mn = p[0]
        ops = split_ops(p[1]) if len(p) > 1 else []
        rs = [regs_of(o) for o in ops]
        allr = set().union(*rs) if rs else set()
        rest = set().union(*rs[1:]) if len(rs) > 1 else set()
        if mn.startswith('v_mfma'):
            self.cls = 'mfma'; self.defs = rs[0]; self.A, self.B, self.C = rs[1], rs[2], rs[3]; self.uses = rest
            self.passes = 8 if '32x32' in mn else 4
            assert 'bf16' in mn
        elif mn.startswith('v_'):
            self.cls = 'valu'
            if mn.startswith('v_cmpx'): raise RuntimeError('v_cmpx unsupported')
            if mn.startswith(('v_permlane', 'v_swap')):
                self.defs = allr; self.uses = allr
            elif mn.startswith(('v_add_co', 'v_sub_co', 'v_addc_co', 'v_subb_co', 'v_subrev_co')):
                self.defs = rs[0] | rs[1]; self.uses = set().union(*rs[2:])
            elif mn == 'v_nop': pass
            else:
                self.defs = rs[0]; self.uses = rest
                if mn.startswith(('v_fmac', 'v_pk_fmac', 'v_dot2c', 'v_writelane')) or 'dpp' in mn or ' row_' in t or 'quad_perm' in t or 'UNUSED_PRESERVE' in t:
                    self.uses = allr
        elif mn.startswith('ds_'):
            self.cls = 'ds'
            if mn.startswith(('ds_read', 'ds_bpermute', 'ds_permute', 'ds_swizzle')) or '_rtn' in mn:
                self.defs = rs[0]; self.uses = rest
            else: self.uses = allr
        elif mn.startswith(('buffer_', 'global_')):
            self.cls = 'vm'
            toks = t.split()
            if mn in ('buffer_wbl2', 'buffer_inv'): pass
            elif 'lds' in toks or '_lds_' in mn:
                self.uses = allr | {('m0', 0)}; self.cls = 'vm'; self.C = 'lds'
            elif '_load_' in mn:
                self.defs = rs[0]; self.uses = rest
                if 'd16' in mn: self.uses = allr
            elif '_store_' in mn:
                self.uses = allr
                if mn.endswith(('x3', 'x4')): self.data = rs[0] if mn.startswith('buffer') else rs[1]
            elif '_atomic_' in mn:
                self.uses = allr
                if 'sc0' in toks: self.defs = rs[0]
            else: raise RuntimeError(mn)
        elif mn.startswith(('s_load', 's_buffer_load', 's_memtime', 's_memrealtime')):
            self.cls = 'smem'; self.defs = rs[0]; self.uses = rest
        elif mn.startswith('s_'):
            self.cls = 'salu'
            if mn in ('s_branch',) or mn.startswith('s_cbranch'):
                self.cls = 'branch'; self.target = ops[0]; self.uncond = mn == 's_branch'
                if 'vcc' in mn: self.uses = {('vcc', 0)}
            elif mn == 's_endpgm': self.cls = 'branch'; self.uncond = True
            elif mn == 's_nop': self.ws = int(ops[0], 0) + 1
            elif mn in ('s_waitcnt', 's_barrier', 's_setprio', 's_sleep'): pass
            elif mn.startswith(('s_cmp', 's_bitcmp')): self.uses = allr
            elif 'saveexec' in mn: self.defs = rs[0] | {('exec', 0)}; self.uses = rest | {('exec', 0)}
            else:
                self.defs = rs[0]; self.uses = rest
                if mn.startswith(('s_addk', 's_mulk', 's_cmov', 's_bitset')): self.uses = allr
        else:
            raise RuntimeError('unknown instr ' + text)

def isv(rs): return {r for r in rs if r[0] in 'va' and len(r[0]) == 1}
def iss(rs): return {r for r in rs if r[0] in ('s', 'vcc')}

def need_ws(p, c):
    n = 0
    if p.cls == 'valu':
        dv = isv(p.defs); dsg = iss(p.defs)
        if dv:
            if c.cls == 'mfma' and dv & c.uses: n = max(n, 2)
            if c.cls == 'valu' and dv & c.uses:
                if c.mn.startswith(('v_readfirstlane', 'v_readlane')): n = max(n, 1)
                if c.mn.startswith('v_permlane') or 'dpp' in c.mn or ' row_' in c.text or 'quad_perm' in c.text: n = max(n, 2)
                if p.mn.startswith(TRANS): n = max(n, 1)
                if 'dst_sel:' in p.text and 'dst_sel:DWORD' not in p.text: n = max(n, 1)
                if p.mn.startswith('v_dot'): n = max(n, 0 if (c.mn == p.mn and not (dv & (c.uses - c.defs))) else 3)
            if p.mn.startswith('v_dot') and c.cls in ('valu', 'vm', 'ds', 'mfma') and c.mn != p.mn and dv & (c.defs | c.uses): n = max(n, 3)
            if p.mn.startswith(TRANS) and c.cls in ('vm', 'ds') and dv & c.uses: n = max(n, 1)
        if dsg:
            if c.cls == 'vm' and dsg & c.uses: n = max(n, 5)
            if c.cls == 'valu' and dsg & c.uses:
                n = max(n, 4 if c.mn.startswith(('v_readlane', 'v_writelane', 'v_div_fmas')) else 2)
            if c.cls in ('salu', 'smem', 'branch') and dsg & c.uses: n = max(n, 1)
    elif p.cls == 'mfma':
        i = 0 if p.passes == 4 else 1
        if c.cls == 'mfma':
            if p.defs & (c.A | c.B): n = max(n, (8, 12)[i])
            if p.defs & c.C and not (p.defs == c.C and p.passes == c.passes): n = max(n, (6, 10)[i])
            if p.defs & c.defs and not (p.defs == c.C and p.passes == c.passes): n = max(n, (8, 12)[i])
        elif c.cls in ('valu', 'vm', 'ds'):
            if p.defs & (c.uses | c.defs): n = max(n, (8, 12)[i])
            if c.defs & p.C: n = max(n, (3, 7)[i])
    elif p.cls == 'salu':
        if ('m0', 0) in p.defs and c.cls in ('vm', 'ds') and ('m0', 0) in c.uses: n = max(n, 1)
    elif p.cls == 'vm':
        if p.data and p.data & c.defs: n = max(n, 2)
    return n

class Kernel:
    def __init__(self, name, nv=256, na=0, sfirst=3):
        self.name = name
        self.ins = []
        self.v = Pool('v', 1, nv); self.a = Pool('a', 0, max(na, 1)); self.s = Pool('s', sfirst, 100)
        self.na = na
        self.optdepth = 0
        self.nlab = 0
    def __call__(self, text, tok=None):
        last = None
        for line in text.split('\n'):
            line = line.strip()
            if not line: continue
            i = Ins(line); i.opt = self.optdepth; i.tok = tok
            self.ins.append(i); last = i
        return last
    class _Cap:
        def __init__(s, k): s.k = k; s.groups = []
        def __enter__(s):
            s.save = s.k.ins; s.k.ins = []
            for p in (s.k.v, s.k.s, s.k.a): p.touched = set()
            return s
        def __exit__(s, *a):
            ins, s.k.ins = s.k.ins, s.save
            s.held = []
            for p in (s.k.v, s.k.s, s.k.a):
                for j in p.touched:
                    if not p.used[j]: p.used[j] = True; s.held.append((p, j))
                p.touched = None
            cur = []; execmod = False
            for j, i in enumerate(ins):
                cur.append(i)
                if ('exec', 0) in i.defs: execmod = not (i.text.replace(' ', '').startswith('s_mov_b64exec,-1'))
                nxt = ins[j + 1] if j + 1 < len(ins) else None
                hold = execmod or i.opt > s.k.optdepth or i.cls == 'wait' or (nxt is not None and (nxt.opt > s.k.optdepth or nxt.cls == 'label'))
                if nxt is not None and (nxt.mn.startswith(('s_cselect', 's_cbranch', 's_addc', 's_cmov'))): hold = True
                if ('m0', 0) in i.defs: raise RuntimeError('m0 write in captured stream')
                if not hold: s.groups.append(cur); cur = []
            if cur: s.groups.append(cur)
        def emit(s, n=1):
            c = 0
            while s.groups and c < n:
                g = s.groups.pop(0); s.k.ins += g; c += len(g)
        def flush(s):
            s.emit(1 << 30)
            for p, j in s.held: p.used[j] = False
            s.held = []
        def vcc_live(s):
            for g in s.groups:
                for i in g:
                    if ('vcc', 0) in i.uses: return True
                    if ('vcc', 0) in i.defs: return False
            return False
        def emit_until_safe(s):
            while s.vcc_live(): s.emit(1)
        def left(s): return sum(len(g) for g in s.groups)
    def capture(self): return Kernel._Cap(self)
    def lab(self, base='L'):
        self.nlab += 1
        return f"{self.name}_{base}{self.nlab}"
    def wait(self, *insts):
        i = Ins('.wait'); i.cls = 'wait'; i.tok = [x for x in insts if x is not None]; i.opt = self.optdepth
        self.ins.append(i)
    def waitall(self, vm=True, lgkm=True):
        self(('s_waitcnt' + (' vmcnt(0)' if vm else '') + (' lgkmcnt(0)' if lgkm else '')))
    class _Opt:
        def __init__(s, k, br): s.k, s.br = k, br
        def __enter__(s):
            s.l = s.k.lab('skip'); s.k(f"{s.br} {s.l}"); s.k.optdepth += 1
        def __exit__(s, *a):
            s.k.optdepth -= 1; s.k(f"{s.l}:")
    def skip_if(self, br):
        return Kernel._Opt(self, br)

    def _waits(self):
        out = []
        vm, lg = [], []
        def emit(nv, nl):
            s = 's_waitcnt'
            if nv is not None: s += f' vmcnt({min(nv,63)})'
            if nl is not None: s += f' lgkmcnt({min(nl,15)})'
            out.append(Ins(s))
        def count_after(lst, k, cur):
            return sum(1 for x in lst[k + 1:] if x.opt == 0 or (x.opt <= cur.opt and x.regid == cur.regid))
        regid = 0; prevopt = 0
        class W:
            pass
        for ins in self.ins:
            if ins.opt != prevopt: regid += 1; prevopt = ins.opt
            cur = W(); cur.opt = ins.opt; cur.regid = regid; cur.ins = ins
            kv = kl = -1
            if ins.cls == 'wait':
                for t in ins.tok:
                    for k, x in enumerate(vm):
                        if x.ins is t: kv = max(kv, k)
                    for k, x in enumerate(lg):
                        if x.ins is t: kl = max(kl, k)
            else:
                touch = ins.uses | ins.defs
                for k, x in enumerate(vm):
                    if x.ins.defs & touch: kv = k
                for k, x in enumerate(lg):
                    if x.ins.defs & touch: kl = k
            nv = nl = None
            if kv >= 0:
                nv = count_after(vm, kv, cur)
            if kl >= 0:
                nl = 0 if any(x.ins.cls == 'smem' for x in lg) else count_after(lg, kl, cur)
            if nv is not None or nl is not None:
                emit(nv, nl)
                if ins.opt == 0:
                    if nv is not None: vm = vm[kv + 1:]
                    if nl is not None: lg = [] if nl == 0 and all(x.opt == 0 for x in lg) else lg[kl + 1:]
                else:
                    if nv is not None: vm = [x for k, x in enumerate(vm) if k > kv or x.regid != regid]
                    if nl is not None: lg = [x for k, x in enumerate(lg) if k > kl or x.regid != regid]
            if ins.cls == 'wait': continue
            out.append(ins)
            if ins.mn == 's_waitcnt':
                m = re.search(r'vmcnt\((\d+)\)', ins.text)
                if m and int(m.group(1)) == 0: vm = [] if ins.opt == 0 else [x for x in vm if x.regid != regid]
                m = re.search(r'lgkmcnt\((\d+)\)', ins.text)
                if m and int(m.group(1)) == 0: lg = [] if ins.opt == 0 else [x for x in lg if x.regid != regid]
            if ins.cls == 'vm': vm.append(cur)
            if ins.cls in ('ds', 'smem'): lg.append(cur)
        self.ins = out

    def _hazards(self):
        out = []
        src = self.ins
        brs = {}
        for i in src:
            if i.target: brs.setdefault(i.target, []).append(i)
        work = list(src)
        pos = {id(x): k for k, x in enumerate(work)}
        pad = [0] * len(work)
        MAXD = 13
        for k, c in enumerate(work):
            if c.cls in ('label', 'dir'): continue
            need = 0
            stack = [(k - 1, 0)]; seen = set()
            while stack:
                j, d = stack.pop()
                while j >= 0 and d < MAXD:
                    if (j, d) in seen: break
                    seen.add((j, d))
                    p = work[j]
                    if p.cls == 'label':
                        for b in brs.get(p.label, []):
                            stack.append((pos[id(b)], d))
                        if j > 0:
                            jj = j - 1
                            while jj >= 0 and work[jj].cls == 'dir': jj -= 1
                            if jj >= 0 and work[jj].uncond: break
                        j -= 1; continue
                    n = need_ws(p, c)
                    if n > d: need = max(need, n - d)
                    d += p.ws + pad[j]
                    j -= 1
            pad[k] = need
        for k, c in enumerate(work):
            if pad[k]: out.append(Ins(f's_nop {pad[k]-1}'))
            out.append(c)
        self.ins = out

    def finish(self):
        self._waits(); self._hazards()
        nv = self.v.high
        acc = max(4, (nv + 3) // 4 * 4)
        tot = acc + (self.a.high if self.na else 0)
        body = [f".p2align 8\n.globl {self.name}\n.type {self.name},@function\n{self.name}:"]
        for i in self.ins:
            body.append(i.text if i.cls == 'label' else '  ' + i.text)
        desc = f""".p2align 6
.amdhsa_kernel {self.name}
  .amdhsa_next_free_vgpr {tot}
  .amdhsa_next_free_sgpr 102
  .amdhsa_accum_offset {acc}
  .amdhsa_group_segment_fixed_size 0
  .amdhsa_kernarg_size 128
  .amdhsa_user_sgpr_count 2
  .amdhsa_user_sgpr_kernarg_segment_ptr 1
  .amdhsa_system_sgpr_workgroup_id_x 1
  .amdhsa_float_denorm_mode_32 3
.end_amdhsa_kernel"""
        self.stats = dict(n=len(self.ins), vgpr=nv, agpr=self.a.high if self.na else 0, sgpr=self.s.high,
                          nops=sum(1 for i in self.ins if i.mn == 's_nop'))
        return '\n'.join(body), desc

def module(header, launches, kernels, aslist=False):
    L = [header.rstrip('\n')]
    if len(launches) == 1 and not aslist:
        n, g, b, lds = launches[0]
        L.append(f"; @launch grid=({g},1,1) block=({b},1,1) lds={lds}")
    else:
        for n, g, b, lds in launches:
            L.append(f"; @launch kernel={n} grid=({g},1,1) block=({b},1,1) lds={lds}")
    L.append('.amdgcn_target "amdgcn-amd-amdhsa--gfx950"\n.text')
    descs = []
    for k in kernels:
        b, d = k.finish(); L.append(b); descs.append(d)
    L.append('.section .rodata,"a"')
    L += descs
    return '\n'.join(L) + '\n'

import struct
def f2u(x): return struct.unpack('<I', struct.pack('<f', x))[0]
def fl(x): return hex(f2u(x))
```

```python
from asmlib import *
NAME = "gated_mix__spectral_gfnet__ssm_conv_s5__prompt"
KA = dict(x=0, wr=8, wi=16, bx=24, lre=32, lim=40, bre=48, bim=56, cre=64, cim=72, ldt=80, dsk=88, gw=96, out=104, dbg=112, ws=120)
SZ = dict(x=4194304, wr=2048*513*2, wi=2048*513*2, lre=2048, lim=2048, bre=2097152, bim=2097152, cre=2097152, cim=2097152,
          ldt=2048, dsk=2048, gw=2048, out=8388608, dbg=256)
V1_STR = 16384
V2_STR = 16384
WS_V1 = 0
WS_V2 = 0x0500000
WS_H  = 0x0A00000
WS_G  = 0x1300000
WS_E  = 0x1310000
WS_F  = 0x1360000
WS_W  = 0x1400000
WS_END = 0x1900000
WS_PROF = 0x2000000
import os
PROF = int(os.environ.get("PROF", "0"))

class Prof:
    def __init__(self, k, kid):
        self.k, self.kid, self.n, self.names = k, kid, 0, []
        if not PROF: return
        self.r = k.s.alloc(2); self.slots = k.v.alloc()
        self.ws = k.s.alloc(2)
        self.r2 = k.s.alloc(2)
        k(f"s_load_dwordx2 {self.ws}, s[0:1], {KA['ws']}\nv_mov_b32 {self.slots}, 0")
        self("start")
    def __call__(self, name):
        if not PROF: return
        k = self.k
        k(f"s_memtime {self.r}\ns_memrealtime {self.r2}\nv_writelane_b32 {self.slots}, {self.r[0]}, {self.n}\nv_writelane_b32 {self.slots}, {self.r2[0]}, {self.n+32}")
        self.names.append(name); self.n += 1
        assert self.n <= 32
    def done(self):
        if not PROF: return
        k = self.k
        k("s_waitcnt vmcnt(0)")
        self("end")
        s = srd(k, self.ws, 262144, WS_PROF + self.kid * 262144)
        va = k.v.alloc(); t = k.v.alloc(); so = k.s.alloc()
        k(f"""v_lshlrev_b32 {va}, 2, v0
        s_lshl_b32 {so}, s2, 10
        buffer_store_dword {self.slots}, {va}, {s}, {so} offen""")
        k.profnames = self.names

def prologue(k, names):
    k("s_cmp_ge_u32 s2, 256")
    k(f"s_cbranch_scc1 {k.name}_end")
    P = {}
    for n in names:
        P[n] = k.s.alloc(2)
        k(f"s_load_dwordx2 {P[n]}, s[0:1], {KA[n]}")
    return P

def srd(k, ptr, size, off=0, soff=None):
    r = k.s.alloc(4)
    if off or soff is not None:
        if off and soff is not None:
            k(f"s_add_u32 {r[2]}, {soff}, {off}")
            k(f"s_add_u32 {r[0]}, {ptr[0]}, {r[2]}")
        else:
            k(f"s_add_u32 {r[0]}, {ptr[0]}, {off if off else soff}")
        k(f"s_addc_u32 {r[1]}, {ptr[1]}, 0")
    else:
        k(f"s_mov_b32 {r[0]}, {ptr[0]}\ns_mov_b32 {r[1]}, {ptr[1]}")
    k(f"s_mov_b32 {r[2]}, {size}\ns_mov_b32 {r[3]}, 0x20000")
    return r

def ids(k):
    I = {}
    t = k.v.alloc()
    I['w'] = k.s.alloc()
    k(f"v_lshrrev_b32 {t}, 6, v0\nv_readfirstlane_b32 {I['w']}, {t}")
    k.v.free(t)
    I['l'] = k.v.alloc(); I['n'] = k.v.alloc(); I['g'] = k.v.alloc()
    k(f"v_and_b32 {I['l']}, 63, v0\nv_and_b32 {I['n']}, 15, v0\nv_bfe_u32 {I['g']}, v0, 4, 2")
    xcd, idx = k.s.alloc(), k.s.alloc()
    I['ta'], I['tb'] = k.s.alloc(), k.s.alloc()
    I['slot'], I['k1p'] = k.s.alloc(), k.s.alloc()
    k(f"""s_and_b32 {xcd}, s2, 7
    s_lshr_b32 {idx}, s2, 3
    s_and_b32 {I['k1p']}, {idx}, 3
    s_lshr_b32 {idx}, {idx}, 2
    s_lshl_b32 {I['slot']}, {xcd}, 3
    s_add_u32 {I['slot']}, {I['slot']}, {idx}
    s_and_b32 {I['ta']}, {xcd}, 3
    s_lshl_b32 {I['ta']}, {I['ta']}, 2
    s_add_u32 {I['ta']}, {I['ta']}, {I['k1p']}
    s_lshr_b32 {I['tb']}, {xcd}, 2
    s_lshl_b32 {I['tb']}, {I['tb']}, 3
    s_add_u32 {I['tb']}, {I['tb']}, {idx}""")
    k.s.free(xcd, idx)
    return I

def end(k):
    k(f"{k.name}_end:\ns_endpgm")

def H_POS(iq, kc):
    if os.environ.get("HOLD"): return (((kc >> 2) ^ ((iq & 1) | ((iq & 2) << 1))) << 2) | (kc & 3)
    return (kc >> 5) * 32 + (((kc & 15) ^ ((iq & 3) << 2)) << 1) + ((kc >> 4) & 1)

def srd_sel(k, I, p0, p1, size):
    r = k.s.alloc(4)
    k(f"""s_bitcmp1_b32 {I['w']}, 0
    s_cselect_b32 {r[0]}, {p1[0]}, {p0[0]}
    s_cselect_b32 {r[1]}, {p1[1]}, {p0[1]}
    s_mov_b32 {r[2]}, {size}
    s_mov_b32 {r[3]}, 0x20000""")
    return r
def header():
    return "".join(l for l in open('/code/' + NAME + '.s.ref') if l.startswith(';') and '@launch' not in l and 'Override' not in l and 'grid=ceil' not in l)
```

```python
from common import *

def xtile_issue(k, I, sx, lds_off):
    va = k.v.alloc(); t = k.v.alloc(); so = k.s.alloc()
    k(f"""v_bfe_u32 {t}, {I['l']}, 1, 2
    v_xor_b32 {t}, {t}, {I['g']}
    v_lshlrev_b32 {va}, 9, {t}
    v_and_b32 {t}, 1, {I['l']}
    v_lshl_or_b32 {va}, {t}, 4, {va}
    v_lshrrev_b32 {t}, 3, {I['l']}
    v_lshl_or_b32 {va}, {t}, 15, {va}
    s_lshl_b32 {so}, {I['ta']}, 11
    s_lshl_b32 m0, {I['tb']}, 5
    s_add_u32 {so}, {so}, m0
    s_lshl_b32 m0, {I['w']}, 20
    s_add_u32 {so}, {so}, m0
    s_lshl_b32 m0, {I['w']}, 12
    s_add_u32 m0, m0, {lds_off}""")
    last = None
    for j in range(4):
        last = k(f"buffer_load_dwordx4 {va}, {sx}, {so} offen offset:{1024*j} lds")
        if j < 3: k(f"s_add_u32 {so}, {so}, {8*32768 - 1024}")
    k.v.free(va, t); k.s.free(so)
    return last

def gen_F(k, I):
    F = k.v.allocq(32)
    fr, fi, oi, ib, a0, a1 = [k.v.alloc() for _ in range(6)]
    st = k.s.alloc()
    k(f"""s_lshl_b32 {st}, {I['w']}, 4
    v_add_u32 {a0}, {st}, {I['n']}
    v_cvt_f32_u32 {fr}, {a0}
    v_mul_f32 {fr}, {fl(1/128)}, {fr}
    v_cmp_eq_u32 vcc, 0, {a0}
    v_cndmask_b32 {fi}, {fr}, 0.5, vcc
    v_mov_b32 {oi}, {fl(0.25)}
    v_cndmask_b32 {oi}, {oi}, 0, vcc
    v_lshrrev_b32 {a0}, 1, {I['g']}
    v_lshlrev_b32 {a0}, 4, {a0}
    v_and_b32 {a1}, 1, {I['g']}
    v_lshl_add_u32 {a0}, {a1}, 2, {a0}
    v_cvt_f32_u32 {ib}, {a0}
    v_fma_f32 {oi}, {ib}, {fi}, {oi}
    v_mul_f32 {ib}, {ib}, {fr}""")
    for c in range(2):
        f, o = (fr, ib) if c == 0 else (fi, oi)
        for kap in range(4):
            for d in range(4):
                i0 = 32 * kap + 8 * (d >> 1) + 2 * (d & 1)
                k(f"""v_fmamk_f32 {a0}, {f}, {fl(float(i0))}, {o}
                v_fmamk_f32 {a1}, {f}, {fl(float(i0+1))}, {o}
                v_cos_f32 {a0}, {a0}
                v_cos_f32 {a1}, {a1}
                v_cvt_pk_bf16_f32 {F[16*c+4*kap+d]}, {a0}, {a1}""")
    k.v.free(fr, fi, oi, ib, a0, a1); k.s.free(st)
    return F

def pk(k, op, d, a, b, neg=False):
    k(f"v_pk_add_f32 {d}, {a}, {b}" + (" neg_lo:[0,1] neg_hi:[0,1]" if op == '-' else ""))

def ph1_compute(k, I, F, lds_off, sv1, flags=""):
    ad = k.v.alloc(4); t = k.v.alloc(); t2 = k.v.alloc()
    k(f"""v_bfe_u32 {t}, {I['l']}, 2, 3
    v_lshrrev_b32 {t2}, 5, {I['l']}
    v_lshl_or_b32 {t}, {t2}, 4, {t}
    v_lshlrev_b32 {t}, 7, {t}
    v_and_b32 {t2}, 3, {I['l']}
    v_lshl_or_b32 {t}, {t2}, 3, {t}
    v_add_u32 {t}, {lds_off}, {t}
    v_bfe_u32 {t2}, {I['l']}, 3, 2""")
    for m in range(4):
        k(f"v_xor_b32 {ad[m]}, {m}, {t2}\nv_lshl_add_u32 {ad[m]}, {ad[m]}, 5, {t}")
    acc = k.v.allocq(32)
    fr = k.v.allocq(64)
    for m in range(4):
        for kap in range(4):
            for h in range(2):
                k(f"ds_read_b64_tr_b16 {fr[16*m+4*kap+2*h:16*m+4*kap+2*h+2]}, {ad[m]} offset:{kap*4096+h*1024}")
    for m in range(4):
        for kap in range(4):
            for c in range(2):
                d = acc.q(2 * m + c)
                k(f"v_mfma_f32_16x16x32_bf16 {d}, {fr.q(4*m+kap)}, {F.q(4*c+kap)}, {d if kap else 0}")
    A = lambda c: fr.q(0 + c); B = lambda c: fr.q(2 + c); C = lambda c: fr.q(4 + c); Dd = lambda c: fr.q(6 + c)
    z = lambda m, c: acc.q(2 * m + c)
    for c in range(2):
        for h in (0, 2):
            s = slice(h, h + 2)
            pk(k, '+', A(c)[s], z(0, c)[s], z(2, c)[s]); pk(k, '-', C(c)[s], z(0, c)[s], z(2, c)[s])
            pk(k, '+', B(c)[s], z(1, c)[s], z(3, c)[s]); pk(k, '-', Dd(c)[s], z(1, c)[s], z(3, c)[s])
    for h in (0, 2):
        s = slice(h, h + 2)
        for c in range(2):
            pk(k, '+', z(0, c)[s], A(c)[s], B(c)[s]); pk(k, '-', z(2, c)[s], A(c)[s], B(c)[s])
        pk(k, '+', z(1, 0)[s], C(0)[s], Dd(1)[s]); pk(k, '-', z(1, 1)[s], C(1)[s], Dd(0)[s])
        pk(k, '-', z(3, 0)[s], C(0)[s], Dd(1)[s]); pk(k, '+', z(3, 1)[s], C(1)[s], Dd(0)[s])
    k(f"s_cmp_lg_u32 {I['w']}, 0")
    with k.skip_if("s_cbranch_scc1"):
        k("s_mov_b32 exec_lo, 0x00010001\ns_mov_b32 exec_hi, 0x00010001")
        for r in range(4):
            k(f"""v_mov_b32 {z(1,0)[r]}, {C(0)[r]}
            v_sub_f32 {z(1,1)[r]}, 0, {Dd(0)[r]}
            v_mov_b32 {z(3,0)[r]}, {C(1)[r]}
            v_sub_f32 {z(3,1)[r]}, 0, {Dd(1)[r]}""")
        k("s_mov_b64 exec, -1")
    so = k.s.alloc(); s2_ = k.s.alloc()
    k(f"""s_mov_b32 {so}, {4*V1_STR}
    v_mul_lo_u32 {t}, {I['n']}, {so}
    v_lshl_add_u32 {t}, {I['g']}, 4, {t}
    s_mul_i32 {so}, {I['w']}, {64*V1_STR}
    s_lshl_b32 {s2_}, {I['ta']}, 10
    s_add_u32 {so}, {so}, {s2_}
    s_lshl_b32 {s2_}, {I['tb']}, 6
    s_add_u32 {so}, {so}, {s2_}""")
    last = None
    for kp in range(4):
        o = fr.q(8 + kp)
        for r in range(4):
            k(f"v_cvt_pk_bf16_f32 {o[r]}, {z(kp,0)[r]}, {z(kp,1)[r]}")
        last = k(f"buffer_store_dwordx4 {o}, {t}, {sv1}, {so} offen {flags}")
        if kp < 3: k(f"s_add_u32 {so}, {so}, {V1_STR}")
    k.v.free(ad, t, t2, acc, fr); k.s.free(so, s2_)
    return last

def gate_issue(k, I, sx, sgw):
    G = dict(x=k.v.allocq(16), w=k.v.allocq(8))
    va = k.v.alloc(); so = k.s.alloc(); s2_ = k.s.alloc()
    k(f"""v_lshlrev_b32 {va}, 4, {I['l']}
    s_lshl_b32 {so}, s2, 14
    s_lshl_b32 {s2_}, {I['w']}, 12
    s_add_u32 {so}, {so}, {s2_}""")
    for j in range(4):
        k(f"buffer_load_dwordx4 {G['x'].q(j)}, {va}, {sx}, {so} offen offset:{1024*j}")
    for j in range(2):
        k(f"buffer_load_dwordx4 {G['w'].q(j)}, {va}, {sgw}, 0 offen offset:{1024*j}")
    k.v.free(va); k.s.free(so, s2_)
    return G

def gate_compute(k, I, G, sg, flags=""):
    a = k.v.alloc(2); t = k.v.alloc(2)
    k(f"v_mov_b32 {a[0]}, 0\nv_mov_b32 {a[1]}, 0")
    for j in range(8):
        for r in range(2):
            k(f"v_dot2c_f32_bf16 {a[r]}, {G['x'][8*r+j]}, {G['w'][j]}")
    k(f"""v_permlane32_swap_b32 {a[0]}, {a[1]}
    v_add_f32 {a[0]}, {a[0]}, {a[1]}
    v_mov_b32 {a[1]}, {a[0]}
    v_permlane16_swap_b32 {a[0]}, {a[1]}
    v_add_f32 {a[0]}, {a[0]}, {a[1]}""")
    for sh in (8, 4, 2, 1):
        k(f"v_add_f32 {a[0]}, {a[0]}, {a[0]} row_ror:{sh} row_mask:0xf bank_mask:0xf")
    k(f"""v_cvt_pk_bf16_f32 {a[0]}, {a[0]}, {a[0]}
    v_and_b32 {a[0]}, 0xffff0000, {a[0]}
    v_mul_f32 {a[0]}, {fl(-1.4426950408889634)}, {a[0]}
    v_exp_f32 {a[0]}, {a[0]}
    v_add_f32 {a[0]}, 1.0, {a[0]}
    v_rcp_f32 {a[0]}, {a[0]}
    v_cvt_pk_bf16_f32 {a[0]}, {a[0]}, {a[0]}
    v_and_b32 {a[0]}, 0xffff0000, {a[0]}""")
    so = k.s.alloc(); s2_ = k.s.alloc()
    k(f"""s_and_b32 {so}, s2, 1
    s_lshl_b32 {so}, {so}, 2
    s_add_u32 {so}, {so}, {I['w']}
    s_lshl_b32 {so}, {so}, 10
    s_lshr_b32 {s2_}, s2, 1
    s_lshl_b32 {s2_}, {s2_}, 2
    s_add_u32 {so}, {so}, {s2_}
    v_lshrrev_b32 {t[0]}, 5, {I['l']}
    v_lshlrev_b32 {t[0]}, 9, {t[0]}
    s_mov_b32 exec_lo, 1
    s_mov_b32 exec_hi, 1""")
    last = k(f"buffer_store_dword {a[0]}, {t[0]}, {sg}, {so} offen {flags}")
    k("s_mov_b64 exec, -1")
    k.v.free(a, t, G['x'], G['w']); k.s.free(so, s2_)
    return last

def frag_pair(k, f, base, ks, inv, tmp):
    Fr = k.v.allocq(8)
    a, c, s = tmp
    for j in range(4):
        if base is None: k(f"v_mul_f32 {a}, {fl(float(ks[j]))}, {f}")
        else: k(f"v_fmamk_f32 {a}, {f}, {fl(float(ks[j]))}, {base}")
        k(f"v_cos_f32 {c}, {a}\nv_sin_f32 {s}, {a}")
        if not inv: k(f"v_cvt_pk_bf16_f32 {Fr[j]}, {c}, {s}\nv_cvt_pk_bf16_f32 {Fr[4+j]}, -{s}, {c}")
        else: k(f"v_cvt_pk_bf16_f32 {Fr[j]}, {c}, -{s}\nv_cvt_pk_bf16_f32 {Fr[4+j]}, {s}, {c}")
    return Fr

def ph2_params(k, I):
    T = dict(k1=k.s.alloc(), ks=k.s.alloc(), sp=k.s.alloc(), tau=k.s.alloc())
    k(f"""s_lshl_b32 {T['tau']}, {I['slot']}, 2
    s_add_u32 {T['tau']}, {T['tau']}, {I['k1p']}
    s_cmp_eq_u32 {T['tau']}, 3
    s_cselect_b32 {T['k1']}, 1, {I['k1p']}
    s_cselect_b32 {T['ks']}, 64, {I['slot']}
    s_and_b32 {T['sp']}, {T['tau']}, 0xfd
    s_cmp_eq_u32 {T['sp']}, 0
    s_cselect_b32 {T['sp']}, 1, 0""")
    return T

def ph2_consts(k, I, T, scale=None):
    C = {}
    tmp = [k.v.alloc() for _ in range(3)]
    nf, g4, f, b, t = [k.v.alloc() for _ in range(5)]
    k1f, ksf = k.v.alloc(), k.v.alloc()
    k(f"""v_cvt_f32_u32 {nf}, {I['n']}
    v_cvt_f32_u32 {g4}, {I['g']}
    v_mul_f32 {g4}, 4.0, {g4}
    v_cvt_f32_u32 {k1f}, {T['k1']}
    v_cvt_f32_u32 {ksf}, {T['ks']}""")
    J = [0, 1, 2, 3]
    spm = k.v.alloc()
    k(f"""v_cvt_f32_u32 {spm}, {T['sp']}
    v_mul_f32 {spm}, {fl(-960.0)}, {spm}
    v_cmp_lt_u32 vcc, 7, {I['n']}
    v_cndmask_b32 {t}, 0, {spm}, vcc
    v_add_f32 {t}, {t}, {ksf}
    v_fmamk_f32 {f}, {nf}, {fl(128.0)}, {t}
    v_mul_f32 {f}, {fl(1/2048)}, {f}
    v_mul_f32 {b}, {f}, {g4}""")
    C['sf'] = frag_pair(k, f, b, J, False, tmp)
    k(f"""v_cmp_lt_u32 vcc, 1, {I['g']}
    v_cndmask_b32 {t}, 0, {spm}, vcc
    v_add_f32 {t}, {t}, {ksf}
    v_fmamk_f32 {t}, {g4}, {fl(128.0)}, {t}
    v_mul_f32 {b}, {t}, {nf}
    v_mul_f32 {b}, {fl(1/2048)}, {b}
    v_mul_f32 {f}, {fl(1/16)}, {nf}""")
    C['si'] = frag_pair(k, f, b, J, True, tmp)
    k(f"s_cmp_eq_u32 {T['sp']}, 0")
    with k.skip_if("s_cbranch_scc1"):
        a, c, s = tmp
        k(f"v_cmp_lt_u32 vcc, 7, {I['n']}\nv_cndmask_b32 {a}, 0, 16, vcc")
        for j in range(8):
            k(f"v_and_b32 {C['sf'][j]}, 0xffff, {C['sf'][j]}\nv_lshlrev_b32 {C['sf'][j]}, {a}, {C['sf'][j]}")
        k(f"v_cmp_eq_u32 vcc, 0, {I['n']}")
        for j in range(4):
            k(f"v_mov_b32 {c}, {hex(0x3f80 if j % 2 == 0 else 0xbf80)}\nv_cndmask_b32 {C['sf'][4+j]}, {C['sf'][4+j]}, {c}, vcc")
        k(f"v_cmp_lt_u32 vcc, 1, {I['g']}")
        for j in range(4):
            k(f"""v_lshlrev_b32 {c}, 16, {C['si'][j]}
            v_and_b32 {s}, 0xffff0000, {C['si'][j]}
            v_add_f32 {c}, {c}, {c}
            v_add_f32 {s}, {s}, {s}
            v_cvt_pk_bf16_f32 {c}, {c}, {s}
            v_cndmask_b32 {C['si'][j]}, {c}, 0, vcc
            v_cndmask_b32 {C['si'][4+j]}, 0, {c}, vcc""")
        k(f"""v_lshlrev_b32 {c}, 31, {I['n']}
        v_or_b32 {c}, 0x3f803f80, {c}
        v_cmp_eq_u32 vcc, 0, {I['g']}
        v_cndmask_b32 {C['si'][0]}, {C['si'][0]}, {c}, vcc""")
    k.v.free(spm, ksf)
    k(f"""v_fma_f32 {t}, {nf}, 4.0, {k1f}
    v_mul_f32 {f}, {fl(1/64)}, {t}
    v_mul_f32 {b}, {f}, {g4}""")
    C['m1f'] = frag_pair(k, f, b, J, False, tmp)
    def tw(f, b):
        W = k.v.allocq(8)
        for r in range(4):
            k(f"v_fmamk_f32 {tmp[0]}, {f}, {fl(float(r))}, {b}\nv_cos_f32 {W[r]}, {tmp[0]}\nv_sin_f32 {W[4+r]}, {tmp[0]}")
        return W
    k(f"v_mul_f32 {f}, {fl(1/16)}, {f}\nv_mul_f32 {b}, {fl(1/16)}, {b}")
    C['twf'] = tw(f, b)
    k(f"""v_fma_f32 {t}, {g4}, 4.0, {k1f}
    v_mul_f32 {b}, {t}, {nf}
    v_mul_f32 {b}, {fl(1/64)}, {b}
    v_mul_f32 {f}, {fl(1/16)}, {nf}""")
    C['m1i'] = frag_pair(k, f, b, J, True, tmp)
    k(f"v_mul_f32 {f}, {fl(1/16)}, {f}\nv_mul_f32 {b}, {fl(1/16)}, {b}")
    C['twi'] = tw(f, b)
    if scale:
        for j in range(8): k(f"v_mul_f32 {C['twi'][j]}, {fl(scale)}, {C['twi'][j]}")
    k(f"""v_xor_b32 {t}, 3, {I['n']}
    v_cmp_lt_u32 vcc, 7, {I['n']}
    v_cndmask_b32 {t}, {I['n']}, {t}, vcc
    v_cvt_f32_u32 {f}, {t}
    v_mul_f32 {f}, {fl(1/16)}, {f}
    v_mul_f32 {b}, {f}, {g4}""")
    C['m2f'] = frag_pair(k, f, b, J, False, tmp)
    k(f"""v_mul_f32 {f}, {fl(1/16)}, {nf}
    v_add_f32 {t}, {fl(3.0)}, {g4}
    v_cmp_lt_u32 vcc, 1, {I['g']}
    v_cndmask_b32 {t}, {g4}, {t}, vcc
    v_mul_f32 {b}, {f}, {t}
    v_cndmask_b32 {f}, {f}, -{f}, vcc""")
    C['m2i'] = frag_pair(k, f, b, J, True, tmp)
    k.v.free(nf, g4, f, b, t, k1f, *tmp)
    return C

def w_issue(k, I, T, swr, swi):
    W = dict(r=k.v.allocq(20), i=k.v.allocq(20), ar=k.v.alloc(5), ai=k.v.alloc(5))
    col = k.v.alloc(); t = k.v.alloc(); ad = k.v.alloc(); r0, r1, st = k.s.alloc(), k.s.alloc(), k.s.alloc()
    up = k.s.alloc(2)
    k(f"""v_lshlrev_b32 {col}, 8, {I['g']}
    v_lshl_add_u32 {col}, {I['n']}, 2, {col}
    v_add_u32 {col}, {T['k1']}, {col}
    v_sub_u32 {t}, 832, {col}
    v_cmp_lt_u32 {up}, 1, {I['g']}
    v_cndmask_b32 {col}, {col}, {t}, {up}
    v_lshlrev_b32 {col}, 1, {col}""")
    for j in range(20): k(f"v_mov_b32 {W['r'][j]}, 0\nv_mov_b32 {W['i'][j]}, 0")
    for j in range(5): k(f"v_mov_b32 {W['ar'][j]}, 0\nv_mov_b32 {W['ai'][j]}, 0")
    def rows(b):
        if b < 4:
            k(f"""s_lshl_b32 {r0}, {I['w']}, 9
            s_add_u32 {r0}, {r0}, {T['ks']}
            s_add_u32 {r0}, {r0}, {128*b}
            s_lshr_b32 {st}, {I['w']}, 1
            s_and_b32 {st}, {st}, {T['sp']}
            s_mul_i32 {st}, {st}, 960
            s_sub_u32 {r0}, {r0}, {st}""")
        else: k(f"s_mov_b32 {r0}, 1024")
        k(f"""s_sub_u32 {r1}, 2048, {r0}
        s_and_b32 {r1}, {r1}, 2047
        s_mul_i32 {r0}, {r0}, 1026
        s_mul_i32 {r1}, {r1}, 1026""")
    def loads(b):
        rows(b)
        k(f"v_mov_b32 {t}, {r0}\nv_mov_b32 {ad}, {r1}\nv_cndmask_b32 {ad}, {t}, {ad}, {up}\nv_add_u32 {ad}, {ad}, {col}")
        for r in range(4):
            k(f"buffer_load_short_d16_hi {W['r'][4*b+r]}, {ad}, {swr}, 0 offen offset:{128*r}")
            k(f"buffer_load_short_d16_hi {W['i'][4*b+r]}, {ad}, {swi}, 0 offen offset:{128*r}")
    def alt(b):
        rows(b)
        k(f"""v_mov_b32 {t}, {r1}
        v_mov_b32 {ad}, {r0}
        v_add_u32 {ad}, 1024, {ad}
        v_cndmask_b32 {ad}, {t}, {ad}, {up}
        buffer_load_short_d16_hi {W['ar'][b]}, {ad}, {swr}, 0 offen
        buffer_load_short_d16_hi {W['ai'][b]}, {ad}, {swi}, 0 offen""")
    for b in range(4): loads(b)
    k(f"s_cmp_lg_u32 {T['k1']}, 0")
    with k.skip_if("s_cbranch_scc1"):
        for b in range(5): alt(b)
    k(f"s_cmp_eq_u32 {T['sp']}, 0")
    with k.skip_if("s_cbranch_scc1"):
        loads(4)
    W['up'] = up
    k.v.free(col, t, ad); k.s.free(r0, r1, st)
    return W

def w_fix(k, I, T, W):
    k(f"s_cmp_lg_u32 {T['k1']}, 0")
    with k.skip_if("s_cbranch_scc1"):
        for lo, r in ((True, 0), (False, 3)):
            k(f"s_mov_b32 exec_lo, {1 if lo else 0}\ns_mov_b32 exec_hi, {0 if lo else 1}")
            for b in range(5):
                x, y = W['r'][4*b+r], W['i'][4*b+r]
                k(f"""v_add_f32 {x}, {x}, {W['ar'][b]}
                v_mul_f32 {x}, 0.5, {x}
                v_sub_f32 {y}, {y}, {W['ai'][b]}
                v_mul_f32 {y}, 0.5, {y}""")
        k("s_mov_b64 exec, -1")
    k("s_mov_b32 exec_lo, 0")
    for j in range(20): k(f"v_xor_b32 {W['i'][j]}, 0x80000000, {W['i'][j]}")
    k("s_mov_b64 exec, -1")
    k.v.free(W['ar'], W['ai']); k.s.free(W['up'])

def cmul_pack(k, zr, zi, wr, wi, conj, out, tmp):
    for h in (0, 2):
        s = slice(h, h + 2)
        tr, ti = tmp[0:2], tmp[2:4]
        n_ = " neg_lo:[0,1,0] neg_hi:[0,1,0]"
        k(f"v_pk_mul_f32 {tr}, {zr[s]}, {wr[s]}\nv_pk_mul_f32 {ti}, {zi[s]}, {wr[s]}")
        k(f"v_pk_fma_f32 {tr}, {zi[s]}, {wi[s]}, {tr}" + ("" if conj else n_))
        k(f"v_pk_fma_f32 {ti}, {zr[s]}, {wi[s]}, {ti}" + (n_ if conj else ""))
        k(f"v_cvt_pk_bf16_f32 {out[h]}, {tr[0]}, {ti[0]}\nv_cvt_pk_bf16_f32 {out[h+1]}, {tr[1]}, {ti[1]}")

def v1_issue(k, I, T, sv1, flags=""):
    L = k.v.allocq(16); va = k.v.alloc(); t = k.v.alloc(); so = k.s.alloc(); s2_ = k.s.alloc()
    k(f"""v_and_b32 {t}, 3, {I['n']}
    v_lshlrev_b32 {va}, 6, {t}
    v_lshrrev_b32 {t}, 2, {I['n']}
    v_lshl_or_b32 {va}, {t}, 4, {va}
    v_lshl_or_b32 {va}, {I['g']}, 12, {va}
    s_mul_i32 {so}, {T['tau']}, {V1_STR}
    s_lshl_b32 {s2_}, {I['w']}, 8
    s_add_u32 {so}, {so}, {s2_}""")
    for j in range(4):
        k(f"buffer_load_dwordx4 {L.q(j)}, {va}, {sv1}, {so} offen offset:{1024*j} {flags}")
    k.v.free(va, t); k.s.free(so, s2_)
    return L

T1_STR = 1040
def ph2_compute(k, I, T, C, W, L, lds1, lds2, sv2, flags=""):
    D = k.v.allocq(16)
    acc = k.v.allocq(32)
    tmp = k.v.alloc(4); ad = k.v.alloc(); st = k.s.alloc()
    z = lambda b, c: acc.q(2 * b + c)
    def stage(M, data_is_A, blocks=range(4), src=None, dst=None):
        for b in blocks:
            for c in range(2):
                d = (src or D).q(b); o = (dst or acc).q(2 * b + c)
                A, B = (d, M.q(c)) if data_is_A else (M.q(c), d)
                k(f"v_mfma_f32_16x16x32_bf16 {o}, {A}, {B}, 0")
    for b in range(4):
        for j in range(4): k(f"v_mov_b32 {D[4*b+j]}, {L[4*j+b]}")
    k.v.free(L)
    stage(C['sf'], True)
    k(f"""s_mov_b32 {st}, {T1_STR}
    v_mul_lo_u32 {ad}, {I['n']}, {st}
    v_lshl_add_u32 {ad}, {I['g']}, 6, {ad}
    s_lshl_b32 {st}, {I['w']}, 8
    s_add_u32 {st}, {st}, {lds1}
    v_add_u32 {ad}, {st}, {ad}""")
    for b in range(4):
        for r in range(4): k(f"v_cvt_pk_bf16_f32 {D[4*b+r]}, {z(b,0)[r]}, {z(b,1)[r]}")
        k(f"ds_write_b128 {ad}, {D.q(b)} offset:{16*b}")
    k(f"""s_mul_i32 {st}, {I['w']}, {4*T1_STR}
    s_add_u32 {st}, {st}, {lds1}
    v_lshl_add_u32 {ad}, {I['l']}, 4, {st}
    s_waitcnt lgkmcnt(0)
    s_barrier""")
    for b in range(4): k(f"ds_read_b128 {D.q(b)}, {ad} offset:{T1_STR*b}")
    stage(C['m1f'], True)
    for b in range(4): cmul_pack(k, z(b, 0), z(b, 1), C['twf'].q(0), C['twf'].q(1), True, D.q(b), tmp)
    stage(C['m2f'], False)
    w_fix(k, I, T, W)
    for b in range(4): cmul_pack(k, z(b, 0), z(b, 1), W['r'].q(b), W['i'].q(b), False, D.q(b), tmp)
    X = W['r'][0:8]; Xd = W['i'][0:4]
    k(f"s_cmp_eq_u32 {T['sp']}, 0")
    with k.skip_if("s_cbranch_scc1"):
        cmul_pack(k, z(0, 0), z(0, 1), W['r'].q(4), W['i'].q(4), False, Xd, tmp)
        stage(C['m2i'], True, [0], Xd, X)
        cmul_pack(k, X.q(0), X.q(1), C['twi'].q(0), C['twi'].q(1), False, Xd, tmp)
        stage(C['m1i'], False, [0], Xd, X)
    stage(C['m2i'], True)
    for b in range(4): cmul_pack(k, z(b, 0), z(b, 1), C['twi'].q(0), C['twi'].q(1), False, D.q(b), tmp)
    stage(C['m1i'], False)
    k(f"s_sub_u32 {st}, {T['sp']}, 1\ns_or_b32 {st}, {st}, {I['w']}\ns_cmp_lg_u32 {st}, 0")
    with k.skip_if("s_cbranch_scc1"):
        for r in range(4): k(f"v_mov_b32 {z(0,1)[r]}, {X[4+r]}")
    k(f"""v_lshlrev_b32 {ad}, 12, {I['g']}
    v_lshl_add_u32 {ad}, {I['n']}, 4, {ad}
    s_lshl_b32 {st}, {I['w']}, 8
    s_add_u32 {st}, {st}, {lds2}
    v_add_u32 {ad}, {st}, {ad}""")
    for r in range(4):
        for b in range(4): k(f"v_cvt_pk_bf16_f32 {D[4*r+b]}, {z(b,0)[r]}, {z(b,1)[r]}")
        k(f"ds_write_b128 {ad}, {D.q(r)} offset:{1024*r}")
    k(f"""s_lshl_b32 {st}, {I['w']}, 12
    s_add_u32 {st}, {st}, {lds2}
    v_lshl_add_u32 {ad}, {I['l']}, 4, {st}
    s_waitcnt lgkmcnt(0)
    s_barrier""")
    for b in range(4): k(f"ds_read_b128 {D.q(b)}, {ad} offset:{1024*b}")
    stage(C['si'], True)
    so = k.s.alloc()
    k(f"""s_mov_b32 {st}, {16*V2_STR}
    v_mul_lo_u32 {ad}, {I['n']}, {st}
    v_lshl_add_u32 {ad}, {I['g']}, 4, {ad}
    s_mul_i32 {so}, {I['w']}, {4*V2_STR}
    s_lshl_b32 {st}, {T['tau']}, 6
    s_add_u32 {so}, {so}, {st}""")
    last = None
    for b in range(4):
        for r in range(4): k(f"v_cvt_pk_bf16_f32 {D[4*b+r]}, {z(b,0)[r]}, {z(b,1)[r]}")
        last = k(f"buffer_store_dwordx4 {D.q(b)}, {ad}, {sv2}, {so} offen {flags}")
        if b < 3: k(f"s_add_u32 {so}, {so}, {V2_STR}")
    k.v.free(D, acc, tmp, ad, W['r'], W['i'], *C.values()); k.s.free(st, so)
    return last
```

```python
from common import *
from fft import pk

def gen_G(k, I):
    G = k.v.allocq(32)
    f, b, sb, a, c, s = [k.v.alloc() for _ in range(6)]
    st = k.s.alloc()
    k(f"""v_lshrrev_b32 {a}, 1, {I['g']}
    v_lshlrev_b32 {a}, 3, {a}
    v_and_b32 {c}, 1, {I['g']}
    v_lshl_add_u32 {a}, {c}, 1, {a}
    v_cvt_f32_u32 {sb}, {a}""")
    for ib in range(2):
        k(f"""s_lshl_b32 {st}, {I['w']}, 5
        s_add_u32 {st}, {st}, {16*ib}
        v_add_u32 {a}, {st}, {I['n']}
        v_cvt_f32_u32 {f}, {a}
        v_mul_f32 {f}, {fl(1/128)}, {f}
        v_mul_f32 {b}, {f}, {sb}""")
        for kap in range(4):
            for d in range(4):
                sl = 16 * kap + 4 * (d >> 1) + (d & 1)
                k(f"""v_fmamk_f32 {a}, {f}, {fl(float(sl))}, {b}
                v_cos_f32 {c}, {a}
                v_sin_f32 {s}, {a}
                v_cvt_pk_bf16_f32 {G[16*ib+4*kap+d]}, {c}, -{s}""")
        k(f"""v_lshlrev_b32 {c}, 31, {I['n']}
        v_or_b32 {c}, 0x3f003f00, {c}
        v_cmp_eq_u32 vcc, 0, {I['g']}
        v_cndmask_b32 {G[16*ib]}, {G[16*ib]}, {c}, vcc""")
    k.v.free(f, b, sb, a, c, s); k.s.free(st)
    return G

def v2_issue(k, I, sv2, flags=""):
    L = k.v.allocq(16); va = k.v.alloc(); t = k.v.alloc(); so = k.s.alloc(); st = k.s.alloc()
    k(f"""v_lshrrev_b32 {va}, 2, {I['l']}
    v_lshlrev_b32 {va}, 8, {va}
    v_and_b32 {t}, 3, {I['l']}
    v_lshl_or_b32 {va}, {t}, 4, {va}
    s_lshl_b32 {so}, {I['ta']}, 4
    s_add_u32 {so}, {so}, {I['tb']}
    s_mul_i32 {so}, {so}, {V2_STR}
    s_lshl_b32 {st}, {I['w']}, 12
    s_add_u32 {so}, {so}, {st}""")
    for j in range(4):
        k(f"buffer_load_dwordx4 {L.q(j)}, {va}, {sv2}, {so} offen offset:{64*j} {flags}")
    k.v.free(va, t); k.s.free(so, st)
    return L

def y_stage(k, I, L, ldsY):
    Z = k.v.allocq(32); T = k.v.allocq(32); ad = k.v.alloc(); st = k.s.alloc()
    z = lambda j, c: Z.q(2 * j + c); t = lambda j, c: T.q(2 * j + c)
    for j in range(4):
        for u in range(4):
            k(f"v_lshlrev_b32 {z(j,0)[u]}, 16, {L[4*j+u]}\nv_and_b32 {z(j,1)[u]}, 0xffff0000, {L[4*j+u]}")
    for h in (0, 2):
        s = slice(h, h + 2)
        for c in range(2):
            pk(k, '+', t(0, c)[s], z(0, c)[s], z(2, c)[s]); pk(k, '-', t(1, c)[s], z(0, c)[s], z(2, c)[s])
            pk(k, '+', t(2, c)[s], z(1, c)[s], z(3, c)[s])
        pk(k, '-', t(3, 0)[s], z(3, 1)[s], z(1, 1)[s]); pk(k, '-', t(3, 1)[s], z(1, 0)[s], z(3, 0)[s])
    k(f"s_cmp_lg_u32 {I['w']}, 0")
    with k.skip_if("s_cbranch_scc1"):
        k("s_mov_b64 exec, 15")
        for u in range(4):
            k(f"""v_mul_f32 {t(2,0)[u]}, 2.0, {z(1,0)[u]}
            v_mul_f32 {t(2,1)[u]}, 2.0, {z(3,0)[u]}
            v_mul_f32 {t(3,0)[u]}, -2.0, {z(1,1)[u]}
            v_mul_f32 {t(3,1)[u]}, -2.0, {z(3,1)[u]}""")
        k("s_mov_b64 exec, -1")
    k(f"s_lshl_b32 {st}, {I['w']}, 10\ns_add_u32 {st}, {st}, {ldsY}\nv_lshl_add_u32 {ad}, {I['l']}, 4, {st}")
    last = None
    for m in range(4):
        for c in range(2):
            for h in (0, 2):
                s = slice(h, h + 2)
                pk(k, '+' if m < 2 else '-', z(m, c)[s], t(m & 1, c)[s], t(2 + (m & 1), c)[s])
                k(f"v_cvt_pk_bf16_f32 {L[4*m+2*c+h//2]}, {z(m,c)[h]}, {z(m,c)[h+1]}")
        last = k(f"ds_write_b128 {ad}, {L.q(m)} offset:{4096*m}")
    k.v.free(Z, T, ad, L); k.s.free(st)
    return last

def ph3_mfma(k, I, G, ldsY):
    acc = k.v.allocq(32)
    fr = k.v.allocq(32); ad = k.v.alloc(); t = k.v.alloc()
    k(f"""v_lshrrev_b32 {ad}, 5, {I['l']}
    v_lshlrev_b32 {ad}, 9, {ad}
    v_bfe_u32 {t}, {I['l']}, 3, 2
    v_lshl_or_b32 {ad}, {t}, 6, {ad}
    v_and_b32 {t}, 3, {I['l']}
    v_lshl_or_b32 {ad}, {t}, 4, {ad}
    v_bfe_u32 {t}, {I['l']}, 2, 1
    v_lshl_or_b32 {ad}, {t}, 3, {ad}
    v_add_u32 {ad}, {ldsY}, {ad}""")
    def rd(m):
        f = fr.q(m & 1, 16)
        for kap in range(4):
            for h in range(2):
                k(f"ds_read_b64_tr_b16 {f[4*kap+2*h:4*kap+2*h+2]}, {ad} offset:{4096*m + 1024*kap + 256*h}")
    rd(0)
    for m in range(4):
        if m < 3: rd(m + 1)
        f = fr.q(m & 1, 16)
        for kap in range(4):
            for ib in range(2):
                d = acc.q(2 * m + ib)
                k(f"v_mfma_f32_16x16x32_bf16 {d}, {f.q(kap)}, {G.q(4*ib+kap)}, {d if kap else 0}")
    k.v.free(fr, ad, t, G)
    return acc

class B3:
    NST = 5
    def __init__(self, k, I, sh, scr, sci, ldsH, ldsC, hflags=""):
        self.k, self.I, self.sh, self.sc = k, I, sh, (scr, sci)
        self.hflags = hflags
        self.vh = k.v.alloc(); self.vc = k.v.alloc(2); self.rh = k.v.alloc(2); self.rc = k.v.alloc(2)
        self.soH, self.soC, self.mH, self.mC = [k.s.alloc() for _ in range(4)]
        t = k.v.alloc(3); st = k.s.alloc(); l = I['l']
        k(f"""v_lshlrev_b32 {self.vh}, 4, {l}
        v_lshrrev_b32 {t[0]}, 3, {l}
        v_lshlrev_b32 {t[0]}, 11, {t[0]}
        v_and_b32 {t[1]}, 7, {l}
        v_xor_b32 {t[1]}, {t[1]}, {I['g']}
        v_lshl_or_b32 {self.vc[0]}, {t[1]}, 4, {t[0]}
        v_xor_b32 {self.vc[1]}, 64, {self.vc[0]}
        v_add_u32 {self.vc[1]}, {16384 - 1024}, {self.vc[1]}
        s_lshl_b32 {self.soH}, {I['ta']}, 19
        s_lshl_b32 {st}, {I['w']}, 12
        s_add_u32 {self.soH}, {self.soH}, {st}
        s_mul_i32 {self.mH}, {I['w']}, {4096*self.NST}
        s_add_u32 {self.mH}, {self.mH}, {ldsH}
        s_lshl_b32 {self.soC}, {I['w']}, 19
        s_lshl_b32 {st}, {I['tb']}, 15
        s_add_u32 {self.soC}, {self.soC}, {st}
        s_lshl_b32 {self.mC}, {I['w']}, 11
        s_add_u32 {self.mC}, {self.mC}, {ldsC}""")
        k(f"""v_and_b32 {t[0]}, 3, {l}
        v_lshlrev_b32 {t[1]}, 9, {t[0]}
        v_bfe_u32 {t[2]}, {l}, 2, 2
        v_lshl_or_b32 {t[1]}, {t[2]}, 3, {t[1]}
        v_and_b32 {t[2]}, 2, {l}
        v_xor_b32 {t[2]}, {t[2]}, {I['g']}
        v_lshl_or_b32 {t[1]}, {t[2]}, 6, {t[1]}
        v_and_b32 {t[2]}, 1, {l}
        v_lshl_or_b32 {t[1]}, {t[2]}, 5, {t[1]}
        v_add_u32 {self.rh[0]}, {self.mH}, {t[1]}
        v_xor_b32 {self.rh[1]}, 32, {self.rh[0]}
        v_lshrrev_b32 {t[0]}, 1, {I['n']}
        v_xor_b32 {t[0]}, {t[0]}, {I['g']}
        v_lshlrev_b32 {t[0]}, 4, {t[0]}
        v_lshl_or_b32 {t[0]}, {I['n']}, 7, {t[0]}
        v_add_u32 {self.rc[0]}, {ldsC}, {t[0]}
        v_xor_b32 {self.rc[1]}, 64, {self.rc[0]}""")
        k.v.free(t); k.s.free(st)
        self.last = {}
    def dma(self, s, i):
        k = self.k; b = s % self.NST
        if i < 2:
            if i == 0: k(f"s_add_u32 m0, {self.mC}, {b*8192}")
            ins = k(f"buffer_load_dwordx4 {self.vc[i]}, {self.sc[s&1]}, {self.soC} offen offset:{1024*i} lds")
            if i == 1 and s & 1: k(f"s_add_u32 {self.soC}, {self.soC}, 128")
        else:
            j = i - 2
            if j == 0: k(f"s_add_u32 m0, {self.mH}, {b*4096}")
            ins = k(f"buffer_load_dwordx4 {self.vh}, {self.sh}, {self.soH} offen offset:{1024*j} {self.hflags} lds")
            if j == 3: k(f"s_add_u32 {self.soH}, {self.soH}, 16384")
        self.last[s] = ins
    def prefill(self, steps):
        for s in steps:
            for i in range(6): self.dma(s, i)
    def main(self, fill=None):
        k = self.k; NS = 32
        acc = k.v.allocq(32)
        fr = k.v.alloc(48)
        def reads(s, kk):
            f = fr.q((s * 2 + kk) & 1, 24); b = s % self.NST
            H = lambda ib, h: f"ds_read_b64_tr_b16 {f[4*ib+2*h:4*ib+2*h+2]}, {self.rh[h]} offset:{b*4096 + ib*2048 + kk*256}"
            C = lambda m: f"ds_read_b128 {f.q(2+m)}, {self.rc[kk]} offset:{b*8192 + m*2048}"
            return [H(0, 0), H(0, 1), C(0), H(1, 0), H(1, 1), C(1), C(2), C(3)]
        k.wait(self.last[0]); k("s_barrier")
        lastrd = None
        for r in reads(0, 0): lastrd = k(r)
        for s in range(NS):
            for kk in range(2):
                f = fr.q((s * 2 + kk) & 1, 24)
                rd = []
                if kk == 0: rd = reads(s, 1)
                elif s + 1 < NS:
                    k.wait(lastrd, self.last[s + 1]); k("s_barrier")
                    rd = reads(s + 1, 0)
                ds, di = (s + self.NST, 0) if kk == 1 else (s + self.NST - 1, 3)
                dm = [(ds, di + x) for x in range(3)] if (self.NST <= ds < NS) else []
                for q in range(8):
                    m, ib = q >> 1, q & 1
                    d = acc.q(2 * m + ib)
                    first = s == 0 and kk == 0
                    k(f"v_mfma_f32_16x16x32_bf16 {d}, {f.q(2+m)}, {f.q(ib)}, {0 if first else d}")
                    if rd and q < 4:
                        k(rd[2 * q]); lastrd = k(rd[2 * q + 1])
                    if dm and q in (4, 5, 6): self.dma(*dm[q - 4])
                    if fill: fill(s, kk, q)
        k.v.free(fr, self.vh, self.vc, self.rh, self.rc); k.s.free(self.soH, self.soC, self.mH, self.mC)
        return acc

def epi_issue(k, I, sg, sd, flags=""):
    E = dict(g=k.v.alloc(2), d=k.v.allocq(8))
    va = k.v.alloc(); so = k.s.alloc(); st = k.s.alloc()
    k(f"""v_lshlrev_b32 {va}, 2, {I['n']}
    s_lshl_b32 {so}, {I['ta']}, 9
    s_lshl_b32 {st}, {I['w']}, 7
    s_add_u32 {so}, {so}, {st}
    buffer_load_dword {E['g'][0]}, {va}, {sg}, {so} offen {flags}
    buffer_load_dword {E['g'][1]}, {va}, {sg}, {so} offen offset:64 {flags}
    v_lshlrev_b32 {va}, 3, {I['g']}
    s_lshl_b32 {so}, {I['tb']}, 5""")
    for m in range(4):
        k(f"buffer_load_dwordx2 {E['d'].q(m,2)}, {va}, {sd}, {so} offen offset:{512*m}")
    k.v.free(va); k.s.free(so, st)
    return E

def epi_pre(k, I, E, acca, ldsX):
    X = k.v.allocq(16); ad = k.v.alloc(4); t = k.v.alloc(2); Dk = k.v.alloc(4); xt = k.v.alloc(4); st = k.s.alloc()
    gs = k.v.alloc(2); om = k.v.alloc(2)
    k(f"""s_lshl_b32 {st}, {I['w']}, 12
    s_add_u32 {st}, {st}, {ldsX}
    v_lshlrev_b32 {t[0]}, 7, {I['n']}
    v_lshl_or_b32 {t[0]}, {I['g']}, 3, {t[0]}
    v_add_u32 {t[0]}, {st}, {t[0]}
    v_bfe_u32 {t[1]}, {I['n']}, 1, 2""")
    for m in range(4):
        k(f"v_xor_b32 {ad[m]}, {m}, {t[1]}\nv_lshl_add_u32 {ad[m]}, {ad[m]}, 5, {t[0]}")
        for ib in range(2):
            k(f"ds_read_b64 {X.q(2*m+ib,2)}, {ad[m]} offset:{2048*ib}")
    for ib in range(2):
        k(f"""v_mul_f32 {gs[ib]}, {fl(2.0**-20)}, {E['g'][ib]}
        v_sub_f32 {om[ib]}, 1.0, {E['g'][ib]}
        v_cvt_pk_bf16_f32 {om[ib]}, {om[ib]}, {om[ib]}
        v_and_b32 {om[ib]}, 0xffff0000, {om[ib]}""")
    for m in range(4):
        for h in range(2):
            k(f"v_lshlrev_b32 {Dk[2*h]}, 16, {E['d'][2*m+h]}\nv_and_b32 {Dk[2*h+1]}, 0xffff0000, {E['d'][2*m+h]}")
        for ib in range(2):
            sel = f" op_sel:[{ib},0] op_sel_hi:[{ib},1]"; sel3 = f" op_sel:[{ib},0,0] op_sel_hi:[{ib},1,1]"
            for h in range(2):
                x = X[2 * (2 * m + ib) + h]; a = acca.q(2 * m + ib)[2 * h:2 * h + 2]; u = xt[2 * h:2 * h + 2]
                k(f"""v_lshlrev_b32 {u[0]}, 16, {x}
                v_and_b32 {u[1]}, 0xffff0000, {x}
                v_pk_mul_f32 {a}, {gs}, {a}{sel}
                v_pk_mul_f32 {u}, {u}, {Dk[2*h:2*h+2]}
                v_pk_fma_f32 {a}, {om}, {u}, {a}{sel3}""")
    k.v.free(X, ad, t, Dk, xt, gs, E['g'], E['d']); k.s.free(st)
    E['om'] = om

def epi_final(k, I, E, acca, accb, so_):
    va = k.v.alloc(); so = k.s.alloc(); st = k.s.alloc(); om = E['om']
    k(f"""v_lshlrev_b32 {va}, 16, {I['n']}
    v_lshl_or_b32 {va}, {I['g']}, 4, {va}
    s_lshl_b32 {so}, {I['w']}, 21
    s_lshl_b32 {st}, {I['ta']}, 12
    s_add_u32 {so}, {so}, {st}
    s_lshl_b32 {st}, {I['tb']}, 6
    s_add_u32 {so}, {so}, {st}
    s_add_u32 {st}, {so}, {1<<20}""")
    for m in range(4):
        for ib in range(2):
            sel3 = f" op_sel:[{ib},0,0] op_sel_hi:[{ib},1,1]"
            a = acca.q(2 * m + ib); b = accb.q(2 * m + ib)
            for h in (0, 2):
                k(f"v_pk_fma_f32 {a[h:h+2]}, {om}, {b[h:h+2]}, {a[h:h+2]}{sel3}")
            k(f"buffer_store_dwordx4 {a}, {va}, {so_}, {st if ib else so} offen offset:{1024*m}")
    k.v.free(va, om, acca, accb); k.s.free(so, st)
```

```python
import sys, json
from fft import *
from ssm import *
from g2 import y_stage, v2_issue
SC = "sc1"

def code_prefetch(k, lo, hi):
    r = k.s.alloc(2); so = k.s.alloc(); va = k.v.alloc(2)
    per = -(-(hi - lo) // (32 * 128))
    lab = k.lab('pc')
    k(f"""s_getpc_b64 {r}
    {lab}:
    s_lshr_b32 {so}, s2, 3
    s_mul_i32 {so}, {so}, {per*128}
    s_add_u32 {so}, {so}, {lo}
    v_min_u32 {va[0]}, {per-1}, v0
    v_lshl_add_u32 {va[0]}, {va[0]}, 7, {so}
    v_min_u32 {va[0]}, {k.name}_end-{lab}, {va[0]}
    v_mov_b32 {va[1]}, {r[1]}
    v_add_co_u32 {va[0]}, vcc, {r[0]}, {va[0]}
    v_addc_co_u32 {va[1]}, vcc, 0, {va[1]}, vcc""")
    k.s.free(r, so)
    return va

class Poll:
    def __init__(self, k, srd_, va, n, want, off=0, oobok=False):
        self.oobok = oobok
        self.k, self.srd, self.va, self.n, self.want, self.off = k, srd_, va, n, want, off
        self.d = k.v.alloc(n)
    def issue(self):
        x = {1: '', 4: 'x4'}[self.n]
        return self.k(f"buffer_load_dword{x} {self.d}, {self.va}, {self.srd}, {self.off} offen sc1")
    def _check(self):
        k, d = self.k, self.d
        if self.n == 4: k(f"v_min_u32 {d[0]}, {d[0]}, {d[1]}\nv_min3_u32 {d[0]}, {d[0]}, {d[2]}, {d[3]}")
        k(f"v_cmp_ne_u32 vcc, {self.want}, {d[0]}")
        if self.oobok: k("s_and_b64 vcc, vcc, 0xffff")
    def finish(self, maxspin=1 << 20):
        k = self.k
        self._check()
        with k.skip_if("s_cbranch_vccz"):
            cnt = k.s.alloc(); lp = k.lab('poll'); out = k.lab('pollout')
            k(f"s_mov_b32 {cnt}, 0\n{lp}:\ns_sleep 2")
            self.issue(); k("s_waitcnt vmcnt(0)")
            self._check()
            k(f"s_cbranch_vccz {out}\ns_add_u32 {cnt}, {cnt}, 1\ns_cmp_lt_u32 {cnt}, {maxspin}\ns_cbranch_scc1 {lp}\n{out}:")
            k.s.free(cnt)
        k.v.free(self.d)

def wave0_store(k, I, text):
    k(f"s_cmp_lg_u32 {I['w']}, 0")
    with k.skip_if("s_cbranch_scc1"):
        k("s_mov_b64 exec, 1"); k(text); k("s_mov_b64 exec, -1")

def ph1f(k, I, F, lds_off, sv1, hook):
    ad = k.v.alloc(4); t = k.v.alloc(); t2 = k.v.alloc()
    k(f"""v_bfe_u32 {t}, {I['l']}, 2, 3
    v_lshrrev_b32 {t2}, 5, {I['l']}
    v_lshl_or_b32 {t}, {t2}, 4, {t}
    v_lshlrev_b32 {t}, 7, {t}
    v_and_b32 {t2}, 3, {I['l']}
    v_lshl_or_b32 {t}, {t2}, 3, {t}
    v_add_u32 {t}, {lds_off}, {t}
    v_bfe_u32 {t2}, {I['l']}, 3, 2""")
    for m in range(4):
        k(f"v_xor_b32 {ad[m]}, {m}, {t2}\nv_lshl_add_u32 {ad[m]}, {ad[m]}, 5, {t}")
    acc = k.v.allocq(32); fr = k.v.allocq(64)
    hook('bar')
    def rd(m):
        for kap in range(4):
            for h in range(2):
                k(f"ds_read_b64_tr_b16 {fr[16*m+4*kap+2*h:16*m+4*kap+2*h+2]}, {ad[m]} offset:{kap*4096+h*1024}")
    rd(0); rd(2)
    for mi, m in enumerate((0, 2, 1, 3)):
        if mi < 2: rd((1, 3)[mi])
        for kap in range(4):
            for c in range(2):
                d = acc.q(2 * m + c)
                k(f"v_mfma_f32_16x16x32_bf16 {d}, {F.q(4*c+kap)}, {fr.q(4*m+kap)}, {d if kap else 0}")
            if kap & 1: hook('t')
    A = lambda c: fr.q(0 + c); B = lambda c: fr.q(2 + c); C = lambda c: fr.q(8 + c); Dd = lambda c: fr.q(10 + c)
    z = lambda m, c: acc.q(2 * m + c)
    for c in range(2):
        for h in (0, 2):
            s = slice(h, h + 2)
            pk(k, '+', A(c)[s], z(0, c)[s], z(2, c)[s]); pk(k, '-', C(c)[s], z(0, c)[s], z(2, c)[s])
        hook('t')
    for c in range(2):
        for h in (0, 2):
            s = slice(h, h + 2)
            pk(k, '+', B(c)[s], z(1, c)[s], z(3, c)[s]); pk(k, '-', Dd(c)[s], z(1, c)[s], z(3, c)[s])
        hook('t')
    for h in (0, 2):
        s = slice(h, h + 2)
        for c in range(2):
            pk(k, '+', z(0, c)[s], A(c)[s], B(c)[s]); pk(k, '-', z(2, c)[s], A(c)[s], B(c)[s])
        hook('t')
        pk(k, '+', z(1, 0)[s], C(0)[s], Dd(1)[s]); pk(k, '-', z(1, 1)[s], C(1)[s], Dd(0)[s])
        pk(k, '-', z(3, 0)[s], C(0)[s], Dd(1)[s]); pk(k, '+', z(3, 1)[s], C(1)[s], Dd(0)[s])
        hook('t')
    k(f"""v_cmp_gt_u32 vcc, 16, v0
    v_cndmask_b32 {z(1,0)[0]}, {z(1,0)[0]}, {C(0)[0]}, vcc
    v_cndmask_b32 {z(1,1)[0]}, {z(1,1)[0]}, -{Dd(0)[0]}, vcc
    v_cndmask_b32 {z(3,0)[0]}, {z(3,0)[0]}, {C(1)[0]}, vcc
    v_cndmask_b32 {z(3,1)[0]}, {z(3,1)[0]}, -{Dd(1)[0]}, vcc""")
    O = k.v.allocq(16)
    for r in range(4):
        for kp in range(4): k(f"v_cvt_pk_bf16_f32 {O[4*r+kp]}, {z(kp,0)[r]}, {z(kp,1)[r]}")
    so = k.s.alloc(); s2_ = k.s.alloc()
    k(f"""s_mov_b32 {so}, {16*V1_STR}
    v_mul_lo_u32 {t}, {I['g']}, {so}
    v_lshl_add_u32 {t}, {I['n']}, 2, {t}
    s_mul_i32 {so}, {I['w']}, {64*V1_STR}
    s_lshl_b32 {s2_}, {I['ta']}, 10
    s_add_u32 {so}, {so}, {s2_}
    s_lshl_b32 {s2_}, {I['tb']}, 6
    s_add_u32 {so}, {so}, {s2_}""")
    k.v.free(ad, t2, acc, fr); k.s.free(s2_)
    return O, t, so

def ph1_store(k, O, va, so, sv1):
    last = None
    for j in range(16):
        last = k(f"buffer_store_dword {O[j]}, {va}, {sv1}, {so} offen {SC}")
        if j < 15: k(f"s_add_u32 {so}, {so}, {V1_STR}")
    k.v.free(O, va); k.s.free(so)
    return last

BIG = 0x7f000000
def wpre_issue(k, I, swr, swi, second, fl_=''):
    Wp = dict(r=k.v.allocq(8), i=k.v.allocq(8), a=k.v.alloc(2), dst=k.s.alloc(4))
    col, t, ad = k.v.alloc(), k.v.alloc(), k.v.alloc(); r0, r1, a = k.s.alloc(), k.s.alloc(), k.s.alloc()
    dst = Wp['dst']
    k(f"""s_lshl_b32 {a}, {I['k1p']}, 2
    s_add_u32 {a}, {a}, {I['w']}
    s_lshl_b32 {r0}, {a}, 7
    s_add_u32 {r0}, {r0}, {64 if second else I['slot']}
    s_sub_u32 {r1}, 2048, {r0}
    s_and_b32 {r1}, {r1}, 2047
    s_mul_i32 {r0}, {r0}, 1026
    s_mul_i32 {r1}, {r1}, 1026
    v_lshlrev_b32 {col}, 9, {I['g']}
    v_lshl_add_u32 {col}, {I['n']}, 3, {col}
    v_add_u32 {ad}, {r0}, {col}
    v_sub_u32 {t}, {r1}, {col}
    v_add_u32 {t}, {2*829}, {t}
    v_cmp_lt_u32 vcc, 1, {I['g']}
    v_cndmask_b32 {ad}, {ad}, {t}, vcc""")
    for r in range(4):
        k(f"buffer_load_dwordx2 {Wp['r'].q(r,2)}, {ad}, {swr}, 0 offen offset:{128*r} {fl_}")
        k(f"buffer_load_dwordx2 {Wp['i'].q(r,2)}, {ad}, {swi}, 0 offen offset:{128*r} {fl_}")
    k(f"""s_add_u32 {r0}, {r0}, 1024
    v_mov_b32 {t}, {r1}
    v_mov_b32 {col}, {r0}
    v_cndmask_b32 {t}, {t}, {col}, vcc
    buffer_load_ushort {Wp['a'][0]}, {t}, {swr}, 0 offen
    buffer_load_ushort {Wp['a'][1]}, {t}, {swi}, 0 offen""")
    if not second:
        k(f"""s_lshl_b32 {dst[0]}, {I['slot']}, 16
        s_lshl_b32 {r0}, {a}, 10
        s_add_u32 {dst[0]}, {dst[0]}, {r0}
        s_add_u32 {dst[1]}, {dst[0]}, 16384
        s_add_u32 {dst[2]}, {dst[0]}, 32768
        s_add_u32 {dst[3]}, {dst[0]}, 49152
        s_cmp_lg_u32 {I['slot']}, 0""")
        with k.skip_if("s_cbranch_scc1"):
            k(f"""s_mov_b32 {dst[3]}, {BIG}
            s_cmp_gt_u32 {a}, 8
            s_cselect_b32 {dst[0]}, {BIG}, {dst[0]}
            s_cselect_b32 {dst[2]}, {BIG}, {dst[2]}
            s_cmp_eq_u32 {a}, 8
            s_cselect_b32 {dst[0]}, {256*16384}, {dst[0]}
            s_cselect_b32 {dst[2]}, {256*16384+1024}, {dst[2]}""")
    else:
        k(f"""s_lshl_b32 {r0}, {a}, 10
        s_add_u32 {dst[0]}, {r0}, 8192
        s_add_u32 {dst[1]}, {r0}, 49152
        s_add_u32 {dst[2]}, {r0}, {32768+8192}
        s_mov_b32 {dst[3]}, {BIG}
        s_cmp_gt_u32 {a}, 7
        s_cselect_b32 {dst[0]}, {BIG}, {dst[0]}
        s_cselect_b32 {dst[2]}, {BIG}, {dst[2]}""")
    k.v.free(col, t, ad); k.s.free(r0, r1, a)
    return Wp

def wpre_compute(k, I, Wp, sw):
    O = k.v.allocq(16); sel = k.v.alloc(2); t = k.v.alloc(3); va = k.v.alloc()
    R_, I_, A = Wp['r'], Wp['i'], Wp['a']
    k(f"v_mov_b32 {sel[0]}, 0x05040100\nv_mov_b32 {sel[1]}, 0x07060302")
    k(f"v_lshlrev_b32 {A[0]}, 16, {A[0]}\nv_lshlrev_b32 {A[1]}, 16, {A[1]}\nv_xor_b32 {A[1]}, 0x80000000, {A[1]}")
    k("s_mov_b32 exec_lo, 0")
    k(f"v_swap_b32 {sel[0]}, {sel[1]}\nv_xor_b32 {A[1]}, 0x80000000, {A[1]}")
    for r in range(4):
        k(f"""v_swap_b32 {R_[2*r]}, {R_[2*r+1]}
        v_swap_b32 {I_[2*r]}, {I_[2*r+1]}
        v_xor_b32 {I_[2*r]}, 0x80008000, {I_[2*r]}
        v_xor_b32 {I_[2*r+1]}, 0x80008000, {I_[2*r+1]}""")
    k("s_mov_b64 exec, -1")
    for kk in range(4):
        for r in range(4):
            k(f"v_perm_b32 {O[4*kk+r]}, {I_[2*r+(kk>>1)]}, {R_[2*r+(kk>>1)]}, {sel[kk&1]}")
    k(f"""v_cmp_lt_u32 vcc, 1, {I['g']}
    v_cndmask_b32 {t[0]}, {O[0]}, {O[3]}, vcc
    v_lshlrev_b32 {t[1]}, 16, {t[0]}
    v_and_b32 {t[2]}, 0xffff0000, {t[0]}
    v_add_f32 {t[1]}, {t[1]}, {A[0]}
    v_add_f32 {t[2]}, {t[2]}, {A[1]}
    v_mul_f32 {t[1]}, 0.5, {t[1]}
    v_mul_f32 {t[2]}, 0.5, {t[2]}
    v_cvt_pk_bf16_f32 {t[0]}, {t[1]}, {t[2]}
    v_cmp_eq_u32 vcc, 0, {I['l']}
    v_cndmask_b32 {O[0]}, {O[0]}, {t[0]}, vcc
    v_cmp_eq_u32 vcc, 32, {I['l']}
    v_cndmask_b32 {O[3]}, {O[3]}, {t[0]}, vcc""")
    last = None
    for kk in range(4):
        k(f"v_lshl_add_u32 {va}, {I['l']}, 4, {Wp['dst'][kk]}")
        last = k(f"buffer_store_dwordx4 {O.q(kk)}, {va}, {sw}, 0 offen {SC}")
    k.v.free(O, sel, t, va, R_, I_, A); k.s.free(Wp['dst'])
    return last

def w2_issue(k, I, T, sw):
    W = k.v.allocq(20); va = k.v.alloc(); so = k.s.alloc(); st = k.s.alloc()
    k(f"""v_lshlrev_b32 {va}, 4, {I['l']}
    s_lshl_b32 {so}, {T['tau']}, 14
    s_lshl_b32 {st}, {I['w']}, 12
    s_add_u32 {so}, {so}, {st}""")
    for b in range(4): k(f"buffer_load_dwordx4 {W.q(b)}, {va}, {sw}, {so} offen offset:{1024*b} {SC}")
    k(f"s_cmp_eq_u32 {T['sp']}, 0")
    with k.skip_if("s_cbranch_scc1"):
        k(f"""s_lshl_b32 {so}, {T['tau']}, 9
        s_add_u32 {so}, {so}, {256*16384}
        buffer_load_dwordx4 {W.q(4)}, {va}, {sw}, {so} offen {SC}""")
    k.v.free(va); k.s.free(so, st)
    return W

def ph2f(k, I, T, C, W, L, lds1, lds2, sv2, hook):
    D = k.v.allocq(16); acc = k.v.allocq(32); tmp = k.v.alloc(4); wu = k.v.allocq(8); ad = k.v.alloc(); st = k.s.alloc()
    z = lambda b, c: acc.q(2 * b + c)
    def stage(M, data_is_A, blocks=range(4), src=None, dst=None):
        for b in blocks:
            for c in range(2):
                d = (src or D).q(b); o = (dst or acc).q(2 * b + c)
                A, B = (d, M.q(c)) if data_is_A else (M.q(c), d)
                k(f"v_mfma_f32_16x16x32_bf16 {o}, {A}, {B}, 0")
            if src is None: hook('t')
    def unpack(b):
        for r in range(4): k(f"v_lshlrev_b32 {wu[r]}, 16, {W[4*b+r]}\nv_and_b32 {wu[4+r]}, 0xffff0000, {W[4*b+r]}")
    for b in range(4):
        for j in range(4): k(f"v_mov_b32 {D[4*b+j]}, {L[4*j+b]}")
    stage(C['sf'], True)
    a4 = k.v.alloc(4)
    k(f"""v_and_b32 {a4[0]}, 7, {I['n']}
    v_lshlrev_b32 {ad}, 2, {I['g']}
    v_xor_b32 {a4[0]}, {a4[0]}, {ad}
    v_lshlrev_b32 {a4[0]}, 4, {a4[0]}
    v_lshl_or_b32 {a4[0]}, {I['n']}, 10, {a4[0]}
    s_lshl_b32 {st}, {I['w']}, 8
    s_add_u32 {st}, {st}, {lds1}
    v_add_u32 {a4[0]}, {st}, {a4[0]}""")
    for b in range(1, 4): k(f"v_xor_b32 {a4[b]}, {16*b}, {a4[0]}")
    for b in range(4):
        for r in range(4): k(f"v_cvt_pk_bf16_f32 {D[4*b+r]}, {z(b,0)[r]}, {z(b,1)[r]}")
        k(f"ds_write_b128 {a4[b]}, {D.q(b)}")
    k(f"""s_and_b32 {st}, {I['w']}, 1
    s_lshl_b32 {st}, {st}, 2
    v_xor_b32 {ad}, {st}, {I['l']}
    s_lshl_b32 {st}, {I['w']}, 12
    s_add_u32 {st}, {st}, {lds1}
    v_lshl_add_u32 {a4[0]}, {ad}, 4, {st}""")
    for b in range(1, 4): k(f"v_xor_b32 {a4[b]}, {16*b}, {a4[0]}")
    hook('pre_bar1')
    k("s_waitcnt lgkmcnt(0)\ns_barrier")
    for b in range(4): k(f"ds_read_b128 {D.q(b)}, {a4[b]} offset:{1024*b}")
    k.v.free(a4)
    hook('post_bar1')
    stage(C['m1f'], True)
    for b in range(4):
        cmul_pack(k, z(b, 0), z(b, 1), C['twf'].q(0), C['twf'].q(1), True, D.q(b), tmp); hook('t')
    stage(C['m2f'], False)
    X = L[0:8]; Xd = L[8:12]
    k(f"s_cmp_eq_u32 {T['sp']}, 0")
    with k.skip_if("s_cbranch_scc1"):
        unpack(4)
        cmul_pack(k, z(0, 0), z(0, 1), wu.q(0), wu.q(1), False, Xd, tmp)
        stage(C['m2i'], True, [0], Xd, X)
        cmul_pack(k, X.q(0), X.q(1), C['twi'].q(0), C['twi'].q(1), False, Xd, tmp)
        stage(C['m1i'], False, [0], Xd, X)
    for b in range(4):
        unpack(b)
        cmul_pack(k, z(b, 0), z(b, 1), wu.q(0), wu.q(1), False, D.q(b), tmp); hook('t')
    stage(C['m2i'], True)
    for b in range(4):
        cmul_pack(k, z(b, 0), z(b, 1), C['twi'].q(0), C['twi'].q(1), False, D.q(b), tmp); hook('t')
    stage(C['m1i'], False)
    k(f"s_sub_u32 {st}, {T['sp']}, 1\ns_or_b32 {st}, {st}, {I['w']}\ns_cmp_lg_u32 {st}, 0")
    with k.skip_if("s_cbranch_scc1"):
        for r in range(4): k(f"v_mov_b32 {z(0,1)[r]}, {X[4+r]}")
    k(f"""v_lshlrev_b32 {ad}, 12, {I['g']}
    v_lshl_add_u32 {ad}, {I['n']}, 4, {ad}
    s_lshl_b32 {st}, {I['w']}, 8
    s_add_u32 {st}, {st}, {lds2}
    v_add_u32 {ad}, {st}, {ad}""")
    for r in range(4):
        for b in range(4): k(f"v_cvt_pk_bf16_f32 {D[4*r+b]}, {z(b,0)[r]}, {z(b,1)[r]}")
        k(f"ds_write_b128 {ad}, {D.q(r)} offset:{1024*r}")
    k(f"""s_lshl_b32 {st}, {I['w']}, 12
    s_add_u32 {st}, {st}, {lds2}
    v_lshl_add_u32 {ad}, {I['l']}, 4, {st}""")
    hook('pre_bar2')
    k("s_waitcnt lgkmcnt(0)\ns_barrier")
    for b in range(4): k(f"ds_read_b128 {D.q(b)}, {ad} offset:{1024*b}")
    hook('post_bar2')
    stage(C['si'], False)
    so = k.s.alloc()
    k(f"""s_mov_b32 {st}, {64*V2_STR}
    v_mul_lo_u32 {ad}, {I['g']}, {st}
    v_lshl_add_u32 {ad}, {I['n']}, 2, {ad}
    s_mul_i32 {so}, {I['w']}, {4*V2_STR}
    s_lshl_b32 {st}, {T['tau']}, 6
    s_add_u32 {so}, {so}, {st}""")
    for b in range(4):
        for r in range(4): k(f"v_cvt_pk_bf16_f32 {D[4*b+r]}, {z(b,0)[r]}, {z(b,1)[r]}")
    k.v.free(acc, tmp, wu, W, L, *C.values()); k.s.free(st)
    return D, ad, so

def v2_store(k, D, ad, so, sv2):
    last = None
    for b in range(4):
        for r in range(4):
            last = k(f"buffer_store_dword {D[4*b+r]}, {ad}, {sv2}, {so} offen {SC}")
            if r < 3: k(f"s_add_u32 {so}, {so}, {16*V2_STR}")
            elif b < 3: k(f"s_sub_u32 {so}, {so}, {47*V2_STR}")
    k.v.free(D, ad); k.s.free(so)
    return last

class B1f(B1):
    def __init__(self, k, I, sx, sb, ldsA, ldsB):
        super().__init__(k, I, sx, sb, ldsA, ldsB)
        for j in range(4):
            k(f"v_add_u32 {self.va[j]}, {self.soA}, {self.va[j]}\nv_add_u32 {self.vb[j]}, {self.soB}, {self.vb[j]}")
        k(f"""s_add_u32 {self.soA}, {I['ta']}, {I['tb']}
        s_and_b32 {self.soA}, {self.soA}, 15
        s_lshl_b32 {self.soA}, {self.soA}, 7""")
        self.tail = None
    def dma(self, s, i):
        k = self.k; j = i & 3; buf = (s % self.NST) * 16384
        if s >= 16:
            if self.tail: self.tail(s - 16, i)
            return
        if i < 4:
            if j == 0: k(f"s_add_u32 m0, {self.mB}, {buf}")
            ins = k(f"buffer_load_dwordx4 {self.vb[j]}, {self.sb}, {self.soA} offen offset:{1024*j} lds")
        else:
            if j == 0: k(f"s_add_u32 m0, {self.mA}, {buf}")
            ins = k(f"buffer_load_dwordx4 {self.va[j]}, {self.sx}, {self.soA} offen offset:{1024*j} lds")
            if j == 3: k(f"s_add_u32 {self.soA}, {self.soA}, 128\ns_and_b32 {self.soA}, {self.soA}, 0x7ff")
        self.last[s] = ins
    def alloc(self):
        self.acc = self.k.v.allocq(64, 16); self.fr = self.k.v.allocq(32)
    def main(self, fill=None, pre_bar=None, post_bar=None):
        k = self.k; NS = 16; acc, fr = self.acc, self.fr
        def reads(s, kk):
            f = fr.q((s * 4 + kk) & 1, 16); buf = (s % self.NST) * 16384
            out = []
            for b in range(2):
                out.append(f"ds_read_b128 {f.q(b)}, {self.ra[kk]} offset:{buf + 4096*b}")
                out.append(f"ds_read_b128 {f.q(2+b)}, {self.rb[kk]} offset:{buf + 4096*b}")
            return out
        k.wait(self.last[0]); k("s_barrier")
        lastrd = None
        for r in reads(0, 0): lastrd = k(r)
        for s in range(NS):
            for kk in range(4):
                f = fr.q((s * 4 + kk) & 1, 16)
                rd = []
                if kk < 3: rd = reads(s, kk + 1)
                elif s + 1 < NS:
                    if pre_bar: pre_bar(s)
                    k.wait(lastrd, self.last[s + 1]); k("s_barrier")
                    rd = reads(s + 1, 0)
                ds, di = (s + self.NST, 0) if kk == 3 else (s + self.NST - 1, 2 * (kk + 1))
                dm = [(ds, di), (ds, di + 1)] if ds >= self.NST else []
                for m, (rb, c) in enumerate(((0, 0), (0, 1), (1, 1), (1, 0))):
                    d = acc.q(2 * rb + c, 16)
                    first = s == 0 and kk == 0
                    k(f"v_mfma_f32_32x32x16_bf16 {d}, {f.q(rb)}, {f.q(2+c)}, {0 if first else d}")
                    if m < 2 and rd:
                        k(rd[2 * m]); lastrd = k(rd[2 * m + 1])
                    if m == 1 and kk == 3 and post_bar: post_bar(s)
                    if m >= 2 and dm: self.dma(*dm[m - 2])
                    if fill: fill(s, kk, m)
        k.v.free(fr, self.va, self.vb, self.ra, self.rb); k.s.free(self.soA, self.soB, self.mA, self.mB)
        return acc

def pass2f(k, I, acc, Pm, E1, E, sh):
    for j in range(14, -1, -1):
        cfma(k, E.q(j, 2), Pm['L64'], E.q(j + 1, 2), E.q(j, 2))
    S, T = E.q(0, 2), E.q(1, 2); U, V = E.q(2, 2), E.q(3, 2)
    k(f"""v_mov_b32 {T[0]}, {S[0]}
    v_mov_b32 {T[1]}, {S[1]}
    v_permlane32_swap_b32 {S[0]}, {T[0]}
    v_permlane32_swap_b32 {S[1]}, {T[1]}""")
    cfma(k, S, Pm['L1024'], T, S)
    cfma(k, E1['lo'], Pm['L32'], S, E1['lo'])
    k(f"s_mov_b32 exec_lo, 0\nv_mov_b32 {S[0]}, {E1['lo'][0]}\nv_mov_b32 {S[1]}, {E1['lo'][1]}\ns_mov_b64 exec, -1")
    e0 = (E1['er'][0], E1['ei'][0])
    cfma(k, e0, Pm['L16'], S, e0)
    cf = Pm['coef']
    for h, x in ((0, S), (1, e0)):
        k(f"""v_mul_f32 {U[h]}, {cf[0]}, {x[0]}
        v_mul_f32 {V[h]}, {cf[0]}, {x[1]}
        v_fma_f32 {U[h]}, -{cf[1]}, {x[1]}, {U[h]}
        v_fma_f32 {V[h]}, {cf[1]}, {x[0]}, {V[h]}""")
    va, so = E1['hva'], E1['hso']
    L = Pm['L1']; cr, ci = U, V
    O = E[8:32]
    pend = []; last = None
    def flush():
        nonlocal last
        q, o = pend.pop(0)
        k(f"""v_permlane32_swap_b32 {o[0]}, {o[1]}
        v_permlane32_swap_b32 {o[2]}, {o[3]}
        v_permlane16_swap_b32 {o[0]}, {o[2]}
        v_permlane16_swap_b32 {o[1]}, {o[3]}""")
        last = k(f"buffer_store_dwordx4 {o}, {va}, {sh}, {so} offen {SC}")
        if q < 7: k(f"s_add_u32 {so}, {so}, {2*32*16384}")
    for j in range(16):
        nr, ni = upair(acc, j, 0), upair(acc, j, 1)
        k(f"""v_pk_fma_f32 {nr}, {L}, {cr}, {nr}{BC0}
        v_pk_fma_f32 {ni}, {L}, {ci}, {ni}{BC0}
        v_pk_fma_f32 {nr}, {L}, {ci}, {nr}{BC1}{NEG0}
        v_pk_fma_f32 {ni}, {L}, {cr}, {ni}{BC1}""")
        cr, ci = nr, ni
        if pend: flush()
        o = O.q((j // 2) % 6)
        h = 2 * (j & 1)
        k(f"v_cvt_pk_bf16_f32 {o[h]}, {nr[0]}, {nr[1]}\nv_cvt_pk_bf16_f32 {o[h+1]}, -{ni[0]}, -{ni[1]}")
        if j & 1: pend.append((j // 2, o))
    flush()
    k.v.free(va, E, acc, E1['er'], E1['ei'], E1['lo'], *Pm.values()); k.s.free(so)
    return last

def hstore_addr(k, I, E1):
    va = k.v.alloc(); t = k.v.alloc(); so = k.s.alloc(); st = k.s.alloc(); s2_ = k.s.alloc()
    k(f"""s_lshl_b32 {st}, {I['ta']}, 1
    s_lshr_b32 {s2_}, {I['w']}, 1
    s_add_u32 {st}, {st}, {s2_}
    s_lshl_b32 {so}, {st}, 9
    s_and_b32 {st}, {st}, 3
    s_lshl_b32 {st}, {st}, 2
    v_xor_b32 {va}, {st}, {I['n']}
    v_lshlrev_b32 {va}, 4, {va}
    v_lshrrev_b32 {t}, 1, {I['g']}
    v_lshl_or_b32 {va}, {t}, 14, {va}
    v_and_b32 {t}, 1, {I['g']}
    v_lshl_or_b32 {va}, {t}, 19, {va}
    s_and_b32 {s2_}, {I['w']}, 1
    s_lshl_b32 {s2_}, {s2_}, 8
    s_add_u32 {so}, {so}, {s2_}
    s_lshl_b32 {s2_}, {I['tb']}, 15
    s_add_u32 {so}, {so}, {s2_}""")
    k.v.free(t); k.s.free(st, s2_)
    E1['hva'], E1['hso'] = va, so

class CLoad:
    def __init__(self, k, I, sc):
        self.k, self.sc = k, sc
        self.C = k.a.alloc(256); self.va = k.v.alloc(4); self.ra = k.v.alloc(4); self.so = k.s.alloc(); self.mw = k.s.alloc()
        t = k.v.alloc(2); st = k.s.alloc(); l = I['l']
        k(f"""v_and_b32 {t[0]}, 7, {l}
        v_xor_b32 {t[0]}, {t[0]}, {I['g']}
        v_and_b32 {t[1]}, 4, {t[0]}
        v_lshlrev_b32 {self.va[0]}, 4, {t[1]}
        v_and_b32 {t[1]}, 1, {t[0]}
        v_lshl_or_b32 {self.va[0]}, {t[1]}, 5, {self.va[0]}
        v_bfe_u32 {t[1]}, {t[0]}, 1, 1
        v_lshl_or_b32 {self.va[0]}, {t[1]}, 4, {self.va[0]}
        v_lshrrev_b32 {t[1]}, 3, {l}
        v_lshl_or_b32 {self.va[0]}, {t[1]}, 11, {self.va[0]}
        s_lshr_b32 {st}, {I['w']}, 1
        s_lshl_b32 {st}, {st}, 20
        s_lshl_b32 {self.so}, {I['tb']}, 15
        s_add_u32 {st}, {st}, {self.so}
        v_add_u32 {self.va[0]}, {st}, {self.va[0]}
        v_xor_b32 {self.va[1]}, 64, {self.va[0]}
        v_add_u32 {self.va[1]}, {16384-1024}, {self.va[1]}
        v_add_u32 {self.va[2]}, {(1<<19)-2048}, {self.va[0]}
        v_add_u32 {self.va[3]}, {(1<<19)-2048}, {self.va[1]}
        s_lshl_b32 {self.so}, {I['ta']}, 7
        s_lshl_b32 {self.mw}, {I['w']}, 12
        v_lshrrev_b32 {t[0]}, 1, {I['n']}
        v_xor_b32 {t[0]}, {t[0]}, {I['g']}
        v_lshlrev_b32 {t[0]}, 4, {t[0]}
        v_lshl_or_b32 {t[0]}, {I['n']}, 7, {t[0]}
        v_add_u32 {self.ra[0]}, {self.mw}, {t[0]}
        v_xor_b32 {self.ra[1]}, 64, {self.ra[0]}
        v_add_u32 {self.ra[2]}, 0x10000, {self.ra[0]}
        v_add_u32 {self.ra[3]}, 0x10000, {self.ra[1]}""")
        k.v.free(t); k.s.free(st)
        self.n = 0; self.slot = {}; self.ld = {}; self.rd = {}; self.nd = 0
    def frag(self, j, kk, mm): return self.C.q(4 * j + 2 * mm + kk)
    def issue1(self, slot):
        k = self.k; j, q = self.n >> 2, self.n & 3
        if q == 0:
            if slot in self.rd: k.wait(self.rd.pop(slot))
            self.slot[j] = slot
            k(f"s_add_u32 m0, {self.mw}, {slot}")
        self.ld[j] = k(f"buffer_load_dwordx4 {self.va[q]}, {self.sc}, {self.so} offen offset:{1024*q} lds")
        if q == 3: k(f"s_add_u32 {self.so}, {self.so}, 128\ns_and_b32 {self.so}, {self.so}, 0x7ff")
        self.n += 1
        if self.n == 64: k.v.free(self.va); k.s.free(self.so, self.mw)
    def issue(self, slot):
        for _ in range(4): self.issue1(slot)
    def drain(self):
        k = self.k; j = self.nd; slot = self.slot[j]; hi = 2 if slot >= 65536 else 0
        assert self.n >= 4 * (j + 1)
        k.wait(self.ld[j])
        for mm in range(2):
            for kk in range(2):
                self.rd[slot] = k(f"ds_read_b128 {self.frag(j,kk,mm)}, {self.ra[hi+kk]} offset:{(slot & 65535) + 2048*mm}")
        self.nd += 1
        if self.nd == 16: k.v.free(self.ra)
        return slot

def gen_Gf(k, I):
    G = k.v.allocq(64)
    f, b, sb, a, c, s, mk = [k.v.alloc() for _ in range(7)]
    st = k.s.alloc()
    k(f"""v_lshrrev_b32 {a}, 1, {I['g']}
    v_lshlrev_b32 {a}, 3, {a}
    v_and_b32 {c}, 1, {I['g']}
    v_lshl_add_u32 {a}, {c}, 1, {a}
    v_cvt_f32_u32 {sb}, {a}
    v_mul_u32_u24 {mk}, 0x8000, {c}
    v_lshl_or_b32 {mk}, {mk}, 16, {mk}""")
    for ib in range(2):
        k(f"""s_and_b32 {st}, {I['w']}, 1
        s_lshl_b32 {st}, {st}, 6
        s_add_u32 {st}, {st}, {16*ib}
        v_add_u32 {a}, {st}, {I['n']}
        v_cvt_f32_u32 {f}, {a}
        v_mul_f32 {f}, {fl(1/128)}, {f}
        v_mul_f32 {b}, {f}, {sb}""")
        for kap in range(4):
            for d in range(4):
                sl = 16 * kap + 4 * (d >> 1) + (d & 1)
                g0, g2 = G[16 * ib + 4 * kap + d], G[16 * (ib + 2) + 4 * kap + d]
                k(f"""v_fmamk_f32 {a}, {f}, {fl(float(sl))}, {b}
                v_cos_f32 {c}, {a}
                v_sin_f32 {s}, {a}
                v_cvt_pk_bf16_f32 {g0}, {c}, -{s}""")
                if d & 1: k(f"v_cvt_pk_bf16_f32 {g2}, -{s}, -{c}\nv_xor_b32 {g2}, {mk}, {g2}")
                else: k(f"v_xor_b32 {g2}, {mk}, {g0}")
    k(f"""v_lshlrev_b32 {c}, 31, {I['n']}
    v_or_b32 {c}, 0x3f003f00, {c}
    v_cmp_eq_u32 vcc, 0, {I['g']}""")
    for ib in range(4): k(f"v_cndmask_b32 {G[16*ib]}, {G[16*ib]}, {c}, vcc")
    k.v.free(f, b, sb, a, c, s, mk); k.s.free(st)
    return G

class B3f:
    NST = 4
    D = 3
    def __init__(self, k, I, sh, CL):
        self.k, self.I, self.sh, self.CL = k, I, sh, CL
        self.vh = k.v.alloc(2); self.rh = k.v.alloc(4)
        self.so, self.mH = k.s.alloc(), k.s.alloc()
        t = k.v.alloc(2); st = k.s.alloc(); l = I['l']
        k(f"""s_lshr_b32 {st}, {I['w']}, 1
        s_xor_b32 {st}, {st}, {I['w']}
        s_lshl_b32 {st}, {st}, 13
        s_lshl_b32 {self.so}, {I['ta']}, 19
        s_add_u32 {st}, {st}, {self.so}
        v_lshl_add_u32 {self.vh[0]}, {l}, 4, {st}
        v_add_u32 {self.vh[1]}, 4096, {self.vh[0]}
        s_lshl_b32 {self.so}, {I['ta']}, 15
        s_lshl_b32 {self.mH}, {I['w']}, 13""")
        k(f"""v_and_b32 {t[0]}, 3, {l}
        v_and_b32 {t[1]}, 2, {I['g']}
        v_xor_b32 {t[1]}, {t[1]}, {t[0]}
        v_lshlrev_b32 {t[0]}, 9, {t[0]}
        v_lshl_or_b32 {t[0]}, {t[1]}, 6, {t[0]}
        v_bfe_u32 {t[1]}, {l}, 2, 2
        v_lshl_or_b32 {t[0]}, {t[1]}, 4, {t[0]}
        v_and_b32 {t[1]}, 1, {I['g']}
        v_lshl_or_b32 {t[0]}, {t[1]}, 3, {t[0]}
        s_and_b32 {st}, {I['w']}, 1
        s_lshl_b32 {st}, {st}, 14
        v_add_u32 {self.rh[0]}, {st}, {t[0]}
        v_xor_b32 {self.rh[1]}, 64, {self.rh[0]}
        v_add_u32 {self.rh[2]}, 0x10000, {self.rh[0]}
        v_add_u32 {self.rh[3]}, 0x10000, {self.rh[1]}""")
        k.v.free(t); k.s.free(st)
        self.last = {}; self.tail = None
    def dma(self, s, i):
        k = self.k
        if s >= 16:
            if self.tail: self.tail(s - 16, i)
            return
        if i & 3 == 0: k(f"s_add_u32 m0, {self.mH}, {(s % self.NST)*32768 + (i>>2)*4096}")
        self.last[s] = k(f"buffer_load_dwordx4 {self.vh[i>>2]}, {self.sh}, {self.so} offen offset:{1024*(i&3)} {SC} lds")
        if i == 7: k(f"s_add_u32 {self.so}, {self.so}, 32768\ns_and_b32 {self.so}, {self.so}, 0x7ffff")
    def prefill(self, steps):
        for s in steps:
            for i in range(8): self.dma(s, i)
    def alloc(self):
        self.acc = self.k.v.allocq(64); self.fr = self.k.v.allocq(64)
    def main(self, fill=None, pre_bar=None, post_bar=None):
        k = self.k; NS = 16; acc, fr = self.acc, self.fr
        def reads(s, kk):
            f = fr.q(kk, 32); out = []
            for ib in range(8):
                off = (s % self.NST) * 32768 + ib * 2048 + kk * 256; hi = 2 if off >= 65536 else 0
                for h in range(2):
                    out.append(f"ds_read_b64_tr_b16 {f[4*ib+2*h:4*ib+2*h+2]}, {self.rh[hi+h]} offset:{off & 65535}")
            return out
        if pre_bar: pre_bar(-1)
        k.wait(self.last[0]); k("s_barrier")
        lastrd = None
        for r in reads(0, 0): lastrd = k(r)
        if post_bar: post_bar(-1)
        for s in range(NS):
            for kk in range(2):
                f = fr.q(kk, 32); rd = []
                if kk == 0: rd = reads(s, 1)
                elif s + 1 < NS:
                    if pre_bar: pre_bar(s)
                    k.wait(lastrd, self.last[s + 1]); k("s_barrier")
                    rd = reads(s + 1, 0)
                dm = [(s + self.D, 4 * kk + x) for x in range(4)]
                for q in range(16):
                    ib, mm = q >> 1, q & 1
                    d = acc.q(8 * mm + ib)
                    zero = s == 0 and kk == 0 and ib >= 4
                    k(f"v_mfma_f32_16x16x32_bf16 {d}, {f.q(ib)}, {self.CL.frag(s,kk,mm)}, {0 if zero else d}")
                    if rd and q < 8:
                        k(rd[2 * q]); lastrd = k(rd[2 * q + 1])
                    if dm and q >= 8 and q % 2 == 0: self.dma(*dm[(q - 8) // 2])
                    if q == 9 and kk == 1 and post_bar: post_bar(s)
                    if fill: fill(s, kk, q)
        k.v.free(fr, self.vh, self.rh); k.s.free(self.so, self.mH)
        return acc

def epi_issue_f(k, I, sg, sd):
    E = dict(g=k.v.allocq(16), d=k.v.alloc(2))
    va = k.v.alloc(); so = k.s.alloc(); st = k.s.alloc()
    k(f"""v_lshlrev_b32 {va}, 4, {I['g']}
    s_lshl_b32 {so}, {I['ta']}, 9
    s_and_b32 {st}, {I['w']}, 1
    s_lshl_b32 {st}, {st}, 8
    s_add_u32 {so}, {so}, {st}""")
    for ib in range(4): k(f"buffer_load_dwordx4 {E['g'].q(ib)}, {va}, {sg}, {so} offen offset:{64*ib} {SC}")
    k(f"""v_lshlrev_b32 {va}, 1, {I['n']}
    s_lshl_b32 {so}, {I['tb']}, 5
    s_lshr_b32 {st}, {I['w']}, 1
    s_lshl_b32 {st}, {st}, 10
    s_add_u32 {so}, {so}, {st}""")
    for mm in range(2): k(f"buffer_load_ushort {E['d'][mm]}, {va}, {sd}, {so} offen offset:{512*mm}")
    k.v.free(va); k.s.free(so, st)
    return E

def xd_init(k, I, E, acc, ldsX):
    ad = k.v.alloc(2); t = k.v.alloc(2); st = k.s.alloc()
    k(f"""s_and_b32 {st}, {I['w']}, 1
    s_lshl_b32 {st}, {st}, 13
    s_add_u32 {st}, {st}, {ldsX}
    v_lshrrev_b32 {t[0]}, 2, {I['l']}
    v_lshlrev_b32 {t[0]}, 7, {t[0]}
    v_and_b32 {t[1]}, 3, {I['l']}
    v_lshl_or_b32 {t[0]}, {t[1]}, 3, {t[0]}
    v_add_u32 {t[0]}, {st}, {t[0]}
    v_bfe_u32 {t[1]}, {I['l']}, 3, 2
    s_and_b32 {st}, {I['w']}, 2
    v_xor_b32 {t[1]}, {st}, {t[1]}
    v_lshl_add_u32 {ad[0]}, {t[1]}, 5, {t[0]}
    v_xor_b32 {ad[1]}, 32, {ad[0]}""")
    for mm in range(2):
        for ib in range(4): k(f"ds_read_b64_tr_b16 {acc.q(8*mm+ib)[2:4]}, {ad[mm]} offset:{2048*ib}")
    Dk = E['d']
    k(f"v_lshlrev_b32 {Dk[0]}, 16, {Dk[0]}\nv_lshlrev_b32 {Dk[1]}, 16, {Dk[1]}")
    for mm in range(2):
        sel = f" op_sel:[{mm},0] op_sel_hi:[{mm},1]"
        for ib in range(4):
            a = acc.q(8 * mm + ib)
            k(f"""v_lshlrev_b32 {a[0]}, 16, {a[2]}
            v_and_b32 {a[1]}, 0xffff0000, {a[2]}
            v_lshlrev_b32 {a[2]}, 16, {a[3]}
            v_and_b32 {a[3]}, 0xffff0000, {a[3]}
            v_pk_mul_f32 {a[0:2]}, {Dk}, {a[0:2]}{sel}
            v_pk_mul_f32 {a[2:4]}, {Dk}, {a[2:4]}{sel}""")
    k.v.free(ad, t, Dk); k.s.free(st)

def final(k, I, E, acc, G, L, ldsX, ldsY, so_, pf):
    ad = k.v.alloc(); t = k.v.alloc(); st = k.s.alloc()
    k(f"s_lshl_b32 {st}, {I['w']}, 13\ns_add_u32 {st}, {st}, {ldsX}\nv_lshl_add_u32 {ad}, {I['l']}, 4, {st}")
    for mm in range(2):
        for ib in range(4): k(f"ds_write_b128 {ad}, {acc.q(8*mm+4+ib)} offset:{1024*(4*mm+ib)}")
    y_stage(k, I, L, ldsY)
    R_ = k.v.allocq(32); Y = k.v.allocq(32); ay = k.v.alloc()
    k(f"""v_xor_b32 {ad}, 0x2000, {ad}
    v_lshrrev_b32 {ay}, 5, {I['l']}
    v_lshlrev_b32 {ay}, 9, {ay}
    v_bfe_u32 {t}, {I['l']}, 3, 2
    v_lshl_or_b32 {ay}, {t}, 6, {ay}
    v_and_b32 {t}, 3, {I['l']}
    v_lshl_or_b32 {ay}, {t}, 4, {ay}
    v_bfe_u32 {t}, {I['l']}, 2, 1
    v_lshl_or_b32 {ay}, {t}, 3, {ay}
    s_lshr_b32 {st}, {I['w']}, 1
    s_lshl_b32 {st}, {st}, 13
    s_add_u32 {st}, {st}, {ldsY}
    v_add_u32 {ay}, {st}, {ay}
    s_waitcnt lgkmcnt(0)
    s_barrier""")
    pf("xbar")
    for mm in range(2):
        for kap in range(4):
            for h in range(2):
                o = 16 * mm + 4 * kap + 2 * h
                k(f"ds_read_b64_tr_b16 {Y[o:o+2]}, {ay} offset:{4096*mm + 1024*kap + 256*h}")
    for ib in range(4):
        for mm in range(2): k(f"ds_read_b128 {R_.q(4*mm+ib)}, {ad} offset:{1024*(4*mm+ib)}")
    va = k.v.alloc(); so = k.s.alloc(); om = k.v.alloc(4)
    k(f"""v_lshlrev_b32 {va}, 18, {I['g']}
    v_lshl_or_b32 {va}, {I['n']}, 2, {va}
    s_and_b32 {so}, {I['w']}, 1
    s_lshl_b32 {so}, {so}, 22
    s_lshl_b32 {st}, {I['ta']}, 12
    s_add_u32 {so}, {so}, {st}
    s_lshl_b32 {st}, {I['tb']}, 6
    s_add_u32 {so}, {so}, {st}
    s_lshr_b32 {st}, {I['w']}, 1
    s_lshl_b32 {st}, {st}, 11
    s_add_u32 {so}, {so}, {st}""")
    def mf(ib):
        for kap in range(4):
            for mm in range(2):
                d = acc.q(8 * mm + 4 + ib)
                k(f"v_mfma_f32_16x16x32_bf16 {d}, {G.q(4*ib+kap)}, {Y.q(4*mm+kap)}, {d if kap else 0}")
    def fin(ib):
        g = E['g'].q(ib)
        for h in (0, 2):
            k(f"""v_sub_f32 {om[h]}, 1.0, {g[h]}
            v_sub_f32 {om[h+1]}, 1.0, {g[h+1]}
            v_cvt_pk_bf16_f32 {om[h+1]}, {om[h]}, {om[h+1]}
            v_lshlrev_b32 {om[h]}, 16, {om[h+1]}
            v_and_b32 {om[h+1]}, 0xffff0000, {om[h+1]}""")
        for mm in range(2):
            b = acc.q(8 * mm + ib); r = R_.q(4 * mm + ib)
            for h in (0, 2):
                k(f"v_pk_add_f32 {b[h:h+2]}, {b[h:h+2]}, {r[h:h+2]}\nv_pk_mul_f32 {b[h:h+2]}, {om[h:h+2]}, {b[h:h+2]}")
        for mm in range(2):
            b = acc.q(8 * mm + ib); a = acc.q(8 * mm + 4 + ib)
            for h in (0, 2):
                k(f"v_pk_fma_f32 {b[h:h+2]}, {g[h:h+2]}, {a[h:h+2]}, {b[h:h+2]}")
        for r in range(4):
            for mm in range(2):
                k(f"buffer_store_dword {acc.q(8*mm+ib)[r]}, {va}, {so_}, {so} offen offset:{1024*mm}")
            if (ib, r) != (3, 3): k(f"s_add_u32 {so}, {so}, {(1<<16) if r < 3 else (1<<20) - 3*(1<<16)}")
    mf(0)
    for ib in range(4):
        if ib < 3: mf(ib + 1)
        fin(ib)

def build(opt={}):
    O = dict(order="XWS", npre=2, sig=6, wnt=0, v2late=1, cpf=1)
    O.update(opt)
    k = Kernel(NAME + "_kernel", nv=256, na=256)
    LX = 131072; LT2 = LX + 16384; LDS = LT2 + 16384; LT1 = 114688
    k("s_cmp_ge_u32 s2, 256")
    k(f"s_cbranch_scc1 {k.name}_end")
    KP = k.s.alloc(32, 4)
    k(f"s_load_dwordx16 {KP[0:16]}, s[0:1], 0\ns_load_dwordx16 {KP[16:32]}, s[0:1], 64")
    P = {n: KP[o // 4:o // 4 + 2] for n, o in KA.items()}
    cva = code_prefetch(k, 0, 40960); cd = k.v.alloc()
    I = ids(k)
    if O['cpf']:
        k(f"s_cmp_lg_u32 {I['w']}, 0")
        with k.skip_if("s_cbranch_scc1"):
            k(f"global_load_dword {cd}, {cva}, off")
    k.v.free(cva)
    pf = Prof(k, 0)
    sx = srd(k, P['x'], SZ['x'])
    sf = srd(k, P['ws'], 3 * 32768, WS_F)
    sdbg = srd(k, P['dbg'], 256)
    FB, FH, FV = k.s.alloc(), k.s.alloc(), k.s.alloc()
    one = k.v.alloc(); zero = k.v.alloc(); vp = k.v.alloc(); vflag = k.v.alloc()
    k(f"""s_mov_b32 {FB}, 0
    s_mov_b32 {FH}, 32768
    s_lshl_b32 {FV}, s2, 7
    v_mov_b32 {vflag}, {FV}
    s_mov_b32 {FV}, 65536
    v_mov_b32 {one}, 1
    v_mov_b32 {zero}, 0
    v_lshlrev_b32 {vp}, 7, v0
    s_cmp_lg_u32 s2, 0""")
    with k.skip_if("s_cbranch_scc1"):
        clrB = k(f"buffer_store_dword {zero}, {vp}, {sf}, 0 offen {SC}")
    ldx = xtile_issue(k, I, sx, LX)
    sb = srd_sel(k, I, P['bre'], P['bim'], SZ['bre'])
    g1 = B1f(k, I, sx, sb, 0, 65536)
    F = gen_F(k, I)
    pf("F")
    H = {}
    def issueW():
        swr = srd(k, P['wr'], SZ['wr']); swi = srd(k, P['wi'], SZ['wi'])
        H['Wp'] = wpre_issue(k, I, swr, swi, False, "nt" if O['wnt'] else "")
        k(f"s_cmp_lg_u32 {I['slot']}, 0")
        with k.skip_if("s_cbranch_scc1"):
            H['Wp2'] = wpre_issue(k, I, swr, swi, True, "")
        k.s.free(swr, swi)
    def issueG():
        sgw = srd(k, P['gw'], SZ['gw'])
        H['Gt'] = gate_issue(k, I, sx, sgw)
        k.s.free(sgw)
    issueG()
    if O['order'] == "XWS": issueW()
    t4 = [srd(k, P[n], 2048) for n in ('lre', 'lim', 'ldt')]
    Q = ssm_param_issue(k, I, *t4); k.s.free(*t4)
    g1.prefill([0])
    if O['order'] == "XSW": issueW()
    pf("iss0")
    sv1 = srd(k, P['ws'], 256 * V1_STR, WS_V1)
    dq = [(s, i) for s in range(1, O['npre']) for i in range(8)]
    def hook1(name):
        if name == 'bar':
            k.wait(ldx); k("s_barrier"); pf("xt")
            k(f"s_or_b32 m0, {I['w']}, s2\ns_cmp_lg_u32 m0, 0")
            with k.skip_if("s_cbranch_scc1"):
                k(f"s_mov_b64 exec, 1\nbuffer_store_dword {one}, {zero}, {sdbg}, 0 offen {SC}\ns_mov_b64 exec, -1")
        elif dq: g1.dma(*dq.pop(0))
    O1 = ph1f(k, I, F, LX, sv1, hook1)
    k.v.free(F)
    while dq: g1.dma(*dq.pop(0))
    pf("ph1")
    sw = srd(k, P['ws'], 256 * 16384 + 2048, WS_W)
    sg = srd(k, P['ws'], 8192, WS_G)
    st = k.s.alloc()
    k(f"s_lshl_b32 {st}, {I['tb']}, 14")
    se = srd(k, P['ws'], 16384, WS_E, st)
    ph1_store(k, *O1, sv1)
    t = k.v.alloc(2)
    k(f"""s_lshl_b32 {st}, {I['ta']}, 10
    s_sub_u32 {st}, {30*512}, {st}
    v_lshl_add_u32 {t[0]}, v0, 2, {st}
    v_mov_b32 {t[1]}, -1
    buffer_store_dword {t[1]}, {t[0]}, {se}, 0 offen {SC}""")
    wave0_store(k, I, f"buffer_store_dword {zero}, {vflag}, {sf}, {FH} offen {SC}\nbuffer_store_dword {zero}, {vflag}, {sf}, {FV} offen {SC}")
    k.v.free(t); k.s.free(st)
    gate_compute(k, I, H['Gt'], sg, SC)
    k(f"s_cmp_lg_u32 {I['slot']}, 0")
    with k.skip_if("s_cbranch_scc1"):
        wpre_compute(k, I, H['Wp2'], sw)
    lastw = wpre_compute(k, I, H['Wp'], sw)
    pf("st")
    g1.prefill(range(O['npre'], 4))
    g1.alloc()
    sc = srd_sel(k, I, P['cre'], P['cim'], SZ['cre'])
    with k.capture() as fl1:
        Pm = ssm_param_compute(k, Q)
        CL = CLoad(k, I, sc)
        T = ph2_params(k, I)
        C2 = ph2_consts(k, I, T, 2.0 ** -20)
    p0 = Poll(k, sdbg, zero, 1, 1)
    p1 = Poll(k, sf, vp, 1, 1, FB)
    pf("pre")
    def pre_bar(s):
        if s == O['sig']: k.wait(lastw)
    def post_bar(s):
        if s == O['sig'] - 3: p0.issue()
        if s == O['sig']:
            fl1.emit_until_safe()
            p0.finish()
            wave0_store(k, I, f"buffer_store_dword {one}, {vflag}, {sf}, {FB} offen {SC}")
    def tail(s, i):
        if s == 0 and i == 0: p1.issue()
        if s < 3: CL.issue1((65536 if i >= 4 else 0) + s * 16384)
    g1.tail = tail
    def fill1(s, kk, m):
        fl1.emit(3)
        if s == 11 and kk == 3 and m == 3: fl1.flush()
        if kk == 3 and m == 0 and s % 4 == 3: pf(f"a{s}")
    acc = g1.main(fill1, pre_bar, post_bar)
    pf("main1")
    k.s.free(sx, sb, sdbg)
    E1 = scan_pass1(k, I, acc, Pm, se)
    p1.finish()
    k("s_barrier")
    pf("pass1")
    L1 = v1_issue(k, I, T, sv1, SC)
    W2 = w2_issue(k, I, T, sw)
    k.s.free(sv1, sw)
    CL.issue(49152)
    free = [CL.drain() for _ in range(6)]
    CL.issue(free.pop(0)); CL.issue(free.pop(0))
    scan_coef(k, acc, Pm)
    hstore_addr(k, I, E1)
    pf("coef")
    E = lookback(k, I, E1, se)
    pf("lb")
    sh = srd(k, P['ws'], 8 << 20, WS_H)
    lasth = pass2f(k, I, acc, Pm, E1, E, sh)
    for _ in range(3): free.append(CL.drain())
    pf("pass2")
    sv2 = srd(k, P['ws'], 256 * V2_STR, WS_V2)
    state = dict(go=False, cur=None)
    p3 = Poll(k, sf, vp, 1, 1, FH)
    def hook(name):
        if name == 'pre_bar1': k.wait(lasth)
        if name == 'post_bar1':
            wave0_store(k, I, f"buffer_store_dword {one}, {vflag}, {sf}, {FH} offen {SC}")
            pf("hflag"); state['go'] = True
        if name == 't' and state['go'] and CL.n < 64:
            for _ in range(2):
                if CL.n & 3 == 0: state['cur'] = free.pop(0)
                CL.issue1(state['cur'])
        if name == 'pre_bar2': p3.issue()
        if name == 'post_bar2':
            while CL.nd < 16: CL.drain()
    V2 = ph2f(k, I, T, C2, W2, L1, LT1, LT2, sv2, hook)
    hold = {}
    if not O['v2late']: hold['v2'] = v2_store(k, *V2, sv2)
    pf("ph2")
    g3 = B3f(k, I, sh, CL)
    p3.finish()
    k("s_waitcnt lgkmcnt(0)\ns_barrier")
    pf("sync3")
    g3.prefill(range(2))
    sd = srd(k, P['dsk'], 2048)
    Ep = epi_issue_f(k, I, sg, sd); k.s.free(sd)
    G = gen_Gf(k, I)
    g3.prefill([2])
    if O['v2late']: hold['v2'] = v2_store(k, *V2, sv2)
    g3.alloc()
    xd_init(k, I, Ep, g3.acc, LX)
    pf("pref")
    p4 = Poll(k, sf, vp, 1, 1, FV)
    def pre_bar3(s):
        if s == 3: k.wait(hold['v2'])
        if s == 12: p4.finish()
    def post_bar3(s):
        if s == 3: wave0_store(k, I, f"buffer_store_dword {one}, {vflag}, {sf}, {FV} offen {SC}")
        if s == 10: p4.issue()
    def tail3(s, i):
        if s == 0 and i == 0: hold['L'] = v2_issue(k, I, sv2, SC)
    g3.tail = tail3
    acc = g3.main(lambda s, kk, q: pf(f"b{s}") if (kk == 1 and q == 0 and s % 4 == 3) else None, pre_bar3, post_bar3)
    pf("main3")
    so = srd(k, P['out'], SZ['out'])
    final(k, I, Ep, acc, G, hold['L'], 0, 32768, so, pf)
    pf("epi")
    pf.done()
    end(k)
    return k, LDS

def write(path, opt={}):
    k, lds = build(opt)
    open(path, "w").write(module(header(), [(k.name, 256, 256, lds)], [k]))
    print(path, k.stats)
    if PROF: json.dump([k.profnames], open(path[:-2] + ".json", "w"))

if __name__ == "__main__":
    opt = {}
    for a in sys.argv[2:]:
        n, v = a.split("="); opt[n] = int(v) if v.lstrip('-').isdigit() else v
    write(sys.argv[1] if len(sys.argv) > 1 else "outf.s", opt)
```

```python
from asmlib import *
NAME = "gated_mix__spectral_gfnet__ssm_conv_s5__prompt"
KA = dict(x=0, wr=8, wi=16, bx=24, lre=32, lim=40, bre=48, bim=56, cre=64, cim=72, ldt=80, dsk=88, gw=96, out=104, dbg=112, ws=120)
SZ = dict(x=4194304, wr=2048*513*2, wi=2048*513*2, lre=2048, lim=2048, bre=2097152, bim=2097152, cre=2097152, cim=2097152,
          ldt=2048, dsk=2048, gw=2048, out=8388608, dbg=256)
V1_STR = 16384
V2_STR = 16384
WS_V1 = 0
WS_V2 = 0x0500000
WS_H  = 0x0A00000
WS_G  = 0x1300000
WS_E  = 0x1310000
WS_F  = 0x1360000
WS_W  = 0x1400000
WS_END = 0x1900000
WS_PROF = 0x2000000
import os
PROF = int(os.environ.get("PROF", "0"))

DIAG = os.environ.get("DIAG", "")
DBGP = os.environ.get("DBGP", "")
class Prof:
    def __init__(self, k, kid):
        self.k, self.kid, self.n, self.names = k, kid, 0, []
        if DIAG or DBGP:
            self.r = k.s.alloc(2); self.t0 = k.s.alloc(); self.ta = k.s.alloc(); self.tb = k.s.alloc(); self.slots = k.v.alloc()
            k(f"s_memrealtime {self.r}\ns_mov_b32 {self.t0}, {self.r[0]}\ns_mov_b32 {self.ta}, {self.r[0]}\ns_mov_b32 {self.tb}, {self.r[0]}\nv_mov_b32 {self.slots}, 0")
            return
        if not PROF: return
        self.r = k.s.alloc(2); self.slots = k.v.alloc()
        self.ws = k.s.alloc(2)
        self.r2 = k.s.alloc(2)
        k(f"s_load_dwordx2 {self.ws}, s[0:1], {KA['ws']}\nv_mov_b32 {self.slots}, 0")
        self("start")
    def __call__(self, name):
        k = self.k
        if DIAG:
            a, b = DIAG.split(":")[:2]
            if name == a: k(f"s_memrealtime {self.r}\ns_mov_b32 {self.ta}, {self.r[0]}")
            if name == b: k(f"s_memrealtime {self.r}\ns_mov_b32 {self.tb}, {self.r[0]}")
            return
        if DBGP:
            l = DBGP.split(",")
            if name in l: k(f"s_memrealtime {self.r}\ns_sub_u32 {self.ta}, {self.r[0]}, {self.t0}\nv_writelane_b32 {self.slots}, {self.ta}, {l.index(name)+1}")
            return
        if not PROF: return
        k(f"s_memtime {self.r}\ns_memrealtime {self.r2}\nv_writelane_b32 {self.slots}, {self.r[0]}, {self.n}\nv_writelane_b32 {self.slots}, {self.r2[0]}, {self.n+32}")
        self.names.append(name); self.n += 1
        assert self.n <= 32
    def done(self):
        k = self.k
        if DIAG:
            k("s_waitcnt vmcnt(0)"); self("end")
            sc, base = DIAG.split(":")[2:4]
            lp = k.lab('dg')
            if os.environ.get("DIAGWG"): k(f"s_cmp_lg_u32 s2, {os.environ['DIAGWG']}\ns_cbranch_scc1 {k.name}_end")
            k(f"""s_sub_u32 {self.tb}, {self.tb}, {self.ta}
            s_mul_i32 {self.tb}, {self.tb}, {sc}
            s_add_u32 {self.tb}, {self.tb}, {int(base)*100}
            s_min_u32 {self.tb}, {self.tb}, 100000
            {lp}:
            s_memrealtime {self.r}
            s_sub_u32 {self.ta}, {self.r[0]}, {self.t0}
            s_cmp_lt_u32 {self.ta}, {self.tb}
            s_cbranch_scc1 {lp}""")
            return
        if DBGP:
            k("s_waitcnt vmcnt(0)"); self("end")
            p = k.s.alloc(2); k(f"s_load_dwordx2 {p}, s[0:1], {KA['dbg']}")
            s = srd(k, p, 64); va = k.v.alloc()
            k(f"v_lshlrev_b32 {va}, 2, v0\ns_cmp_lg_u32 s2, {os.environ.get('DBGWG', '37')}")
            with k.skip_if("s_cbranch_scc1"):
                k(f"s_mov_b64 exec, -2\nbuffer_store_dword {self.slots}, {va}, {s}, 0 offen")
            return
        if not PROF: return
        k("s_waitcnt vmcnt(0)")
        self("end")
        s = srd(k, self.ws, 262144, WS_PROF + self.kid * 262144)
        va = k.v.alloc(); t = k.v.alloc(); so = k.s.alloc()
        k(f"""v_lshlrev_b32 {va}, 2, v0
        s_lshl_b32 {so}, s2, 10
        buffer_store_dword {self.slots}, {va}, {s}, {so} offen""")
        k.profnames = self.names

def prologue(k, names):
    k("s_cmp_ge_u32 s2, 256")
    k(f"s_cbranch_scc1 {k.name}_end")
    P = {}
    for n in names:
        P[n] = k.s.alloc(2)
        k(f"s_load_dwordx2 {P[n]}, s[0:1], {KA[n]}")
    return P

def srd(k, ptr, size, off=0, soff=None):
    r = k.s.alloc(4)
    if off or soff is not None:
        if off and soff is not None:
            k(f"s_add_u32 {r[2]}, {soff}, {off}")
            k(f"s_add_u32 {r[0]}, {ptr[0]}, {r[2]}")
        else:
            k(f"s_add_u32 {r[0]}, {ptr[0]}, {off if off else soff}")
        k(f"s_addc_u32 {r[1]}, {ptr[1]}, 0")
    else:
        k(f"s_mov_b32 {r[0]}, {ptr[0]}\ns_mov_b32 {r[1]}, {ptr[1]}")
    k(f"s_mov_b32 {r[2]}, {size}\ns_mov_b32 {r[3]}, 0x20000")
    return r

def ids(k):
    I = {}
    t = k.v.alloc()
    I['w'] = k.s.alloc()
    k(f"v_lshrrev_b32 {t}, 6, v0\nv_readfirstlane_b32 {I['w']}, {t}")
    k.v.free(t)
    I['l'] = k.v.alloc(); I['n'] = k.v.alloc(); I['g'] = k.v.alloc()
    k(f"v_and_b32 {I['l']}, 63, v0\nv_and_b32 {I['n']}, 15, v0\nv_bfe_u32 {I['g']}, v0, 4, 2")
    xcd, idx = k.s.alloc(), k.s.alloc()
    I['ta'], I['tb'] = k.s.alloc(), k.s.alloc()
    I['slot'], I['k1p'] = k.s.alloc(), k.s.alloc()
    k(f"""s_and_b32 {xcd}, s2, 7
    s_lshr_b32 {idx}, s2, 3
    s_and_b32 {I['k1p']}, {idx}, 3
    s_lshr_b32 {idx}, {idx}, 2
    s_lshl_b32 {I['slot']}, {xcd}, 3
    s_add_u32 {I['slot']}, {I['slot']}, {idx}
    s_and_b32 {I['ta']}, {xcd}, 3
    s_lshl_b32 {I['ta']}, {I['ta']}, 2
    s_add_u32 {I['ta']}, {I['ta']}, {I['k1p']}
    s_lshr_b32 {I['tb']}, {xcd}, 2
    s_lshl_b32 {I['tb']}, {I['tb']}, 3
    s_add_u32 {I['tb']}, {I['tb']}, {idx}""")
    k.s.free(xcd, idx)
    return I

def end(k):
    k(f"{k.name}_end:\ns_endpgm")

def H_POS(iq, kc):
    if os.environ.get("HOLD"): return (((kc >> 2) ^ ((iq & 1) | ((iq & 2) << 1))) << 2) | (kc & 3)
    return (kc >> 5) * 32 + (((kc & 15) ^ ((iq & 3) << 2)) << 1) + ((kc >> 4) & 1)

def srd_sel(k, I, p0, p1, size):
    r = k.s.alloc(4)
    k(f"""s_bitcmp1_b32 {I['w']}, 0
    s_cselect_b32 {r[0]}, {p1[0]}, {p0[0]}
    s_cselect_b32 {r[1]}, {p1[1]}, {p0[1]}
    s_mov_b32 {r[2]}, {size}
    s_mov_b32 {r[3]}, 0x20000""")
    return r
def header():
    return "".join(l for l in open('/code/' + NAME + '.s.ref') if l.startswith(';') and '@launch' not in l and 'Override' not in l and 'grid=ceil' not in l)
```

```python
from fused import *
def kEmpty(name="ke_kernel"):
    k = Kernel(name); k("s_nop 0"); end(k); return k
k, lds = build()
F = (k.name, 256, 256, lds)
mode = sys.argv[2]
if mode == "list1": src = module(header(), [F], [k], True)
if mode == "pre": src = module(header(), [("ke_kernel", 256, 256, 0), F], [k, kEmpty()])
if mode == "pre1": src = module(header(), [("ke_kernel", 1, 64, 0), F], [k, kEmpty()])
if mode == "post": src = module(header(), [F, ("ke_kernel", 1, 64, 0)], [k, kEmpty()])
open(sys.argv[1], "w").write(src)
```

```python
import sys, json
from fft import *
from ssm import *
from g2 import y_stage, v2_issue
SC = "sc1"
OUTF = os.environ.get("OUTF", "")

def code_prefetch(k, lo, hi):
    r = k.s.alloc(2); so = k.s.alloc(); va = k.v.alloc(2)
    per = -(-(hi - lo) // (32 * 128))
    lab = k.lab('pc')
    k(f"""s_getpc_b64 {r}
    {lab}:
    s_lshr_b32 {so}, s2, 3
    s_mul_i32 {so}, {so}, {per*128}
    s_add_u32 {so}, {so}, {lo}
    v_min_u32 {va[0]}, {per-1}, v0
    v_lshl_add_u32 {va[0]}, {va[0]}, 7, {so}
    v_min_u32 {va[0]}, {k.name}_end-{lab}, {va[0]}
    v_mov_b32 {va[1]}, {r[1]}
    v_add_co_u32 {va[0]}, vcc, {r[0]}, {va[0]}
    v_addc_co_u32 {va[1]}, vcc, 0, {va[1]}, vcc""")
    k.s.free(r, so)
    return va

class Poll:
    def __init__(self, k, srd_, va, n, want, off=0, oobok=False):
        self.oobok = oobok
        self.k, self.srd, self.va, self.n, self.want, self.off = k, srd_, va, n, want, off
        self.d = k.v.alloc(n)
    def issue(self):
        x = {1: '', 4: 'x4'}[self.n]
        return self.k(f"buffer_load_dword{x} {self.d}, {self.va}, {self.srd}, {self.off} offen sc1")
    def _check(self):
        k, d = self.k, self.d
        if self.n == 4: k(f"v_min_u32 {d[0]}, {d[0]}, {d[1]}\nv_min3_u32 {d[0]}, {d[0]}, {d[2]}, {d[3]}")
        k(f"v_cmp_ne_u32 vcc, {self.want}, {d[0]}")
        if self.oobok: k("s_and_b64 vcc, vcc, 0xffff")
    def finish(self, maxspin=1 << 20):
        k = self.k
        self._check()
        with k.skip_if("s_cbranch_vccz"):
            cnt = k.s.alloc(); lp = k.lab('poll'); out = k.lab('pollout')
            k(f"s_mov_b32 {cnt}, 0\n{lp}:\ns_sleep 2")
            self.issue(); k("s_waitcnt vmcnt(0)")
            self._check()
            k(f"s_cbranch_vccz {out}\ns_add_u32 {cnt}, {cnt}, 1\ns_cmp_lt_u32 {cnt}, {maxspin}\ns_cbranch_scc1 {lp}\n{out}:")
            k.s.free(cnt)
        k.v.free(self.d)

def wave0_store(k, I, text):
    k(f"s_cmp_lg_u32 {I['w']}, 0")
    with k.skip_if("s_cbranch_scc1"):
        k("s_mov_b64 exec, 1"); k(text); k("s_mov_b64 exec, -1")

def ph1f(k, I, F, lds_off, sv1, hook):
    ad = k.v.alloc(4); t = k.v.alloc(); t2 = k.v.alloc()
    k(f"""v_bfe_u32 {t}, {I['l']}, 2, 3
    v_lshrrev_b32 {t2}, 5, {I['l']}
    v_lshl_or_b32 {t}, {t2}, 4, {t}
    v_lshlrev_b32 {t}, 7, {t}
    v_and_b32 {t2}, 3, {I['l']}
    v_lshl_or_b32 {t}, {t2}, 3, {t}
    v_add_u32 {t}, {lds_off}, {t}
    v_bfe_u32 {t2}, {I['l']}, 3, 2""")
    for m in range(4):
        k(f"v_xor_b32 {ad[m]}, {m}, {t2}\nv_lshl_add_u32 {ad[m]}, {ad[m]}, 5, {t}")
    acc = k.v.allocq(32); fr = k.v.allocq(64)
    hook('bar')
    def rd(m):
        for kap in range(4):
            for h in range(2):
                k(f"ds_read_b64_tr_b16 {fr[16*m+4*kap+2*h:16*m+4*kap+2*h+2]}, {ad[m]} offset:{kap*4096+h*1024}")
    rd(0); rd(2)
    for mi, m in enumerate((0, 2, 1, 3)):
        if mi < 2: rd((1, 3)[mi])
        for kap in range(4):
            for c in range(2):
                d = acc.q(2 * m + c)
                k(f"v_mfma_f32_16x16x32_bf16 {d}, {F.q(4*c+kap)}, {fr.q(4*m+kap)}, {d if kap else 0}")
            if kap & 1: hook('t')
    A = lambda c: fr.q(0 + c); B = lambda c: fr.q(2 + c); C = lambda c: fr.q(8 + c); Dd = lambda c: fr.q(10 + c)
    z = lambda m, c: acc.q(2 * m + c)
    for c in range(2):
        for h in (0, 2):
            s = slice(h, h + 2)
            pk(k, '+', A(c)[s], z(0, c)[s], z(2, c)[s]); pk(k, '-', C(c)[s], z(0, c)[s], z(2, c)[s])
        hook('t')
    for c in range(2):
        for h in (0, 2):
            s = slice(h, h + 2)
            pk(k, '+', B(c)[s], z(1, c)[s], z(3, c)[s]); pk(k, '-', Dd(c)[s], z(1, c)[s], z(3, c)[s])
        hook('t')
    for h in (0, 2):
        s = slice(h, h + 2)
        for c in range(2):
            pk(k, '+', z(0, c)[s], A(c)[s], B(c)[s]); pk(k, '-', z(2, c)[s], A(c)[s], B(c)[s])
        hook('t')
        pk(k, '+', z(1, 0)[s], C(0)[s], Dd(1)[s]); pk(k, '-', z(1, 1)[s], C(1)[s], Dd(0)[s])
        pk(k, '-', z(3, 0)[s], C(0)[s], Dd(1)[s]); pk(k, '+', z(3, 1)[s], C(1)[s], Dd(0)[s])
        hook('t')
    k(f"""v_cmp_gt_u32 vcc, 16, v0
    v_cndmask_b32 {z(1,0)[0]}, {z(1,0)[0]}, {C(0)[0]}, vcc
    v_cndmask_b32 {z(1,1)[0]}, {z(1,1)[0]}, -{Dd(0)[0]}, vcc
    v_cndmask_b32 {z(3,0)[0]}, {z(3,0)[0]}, {C(1)[0]}, vcc
    v_cndmask_b32 {z(3,1)[0]}, {z(3,1)[0]}, -{Dd(1)[0]}, vcc""")
    O = k.v.allocq(16)
    for r in range(4):
        for kp in range(4): k(f"v_cvt_pk_bf16_f32 {O[4*r+kp]}, {z(kp,0)[r]}, {z(kp,1)[r]}")
    so = k.s.alloc(); s2_ = k.s.alloc()
    k(f"""s_mov_b32 {so}, {16*V1_STR}
    v_mul_lo_u32 {t}, {I['g']}, {so}
    v_lshl_add_u32 {t}, {I['n']}, 2, {t}
    s_mul_i32 {so}, {I['w']}, {64*V1_STR}
    s_lshl_b32 {s2_}, {I['ta']}, 10
    s_add_u32 {so}, {so}, {s2_}
    s_lshl_b32 {s2_}, {I['tb']}, 6
    s_add_u32 {so}, {so}, {s2_}""")
    k.v.free(ad, t2, acc, fr); k.s.free(s2_)
    return O, t, so

def ph1_store(k, O, va, so, sv1):
    last = None
    for j in range(16):
        last = k(f"buffer_store_dword {O[j]}, {va}, {sv1}, {so} offen {SC}")
        if j < 15: k(f"s_add_u32 {so}, {so}, {V1_STR}")
    k.v.free(O, va); k.s.free(so)
    return last

BIG = 0x7f000000
def wpre_issue(k, I, swr, swi, second, fl_=''):
    Wp = dict(r=k.v.allocq(8), i=k.v.allocq(8), a=k.v.alloc(2), dst=k.s.alloc(4))
    col, t, ad = k.v.alloc(), k.v.alloc(), k.v.alloc(); r0, r1, a = k.s.alloc(), k.s.alloc(), k.s.alloc()
    dst = Wp['dst']
    k(f"""s_lshl_b32 {a}, {I['k1p']}, 2
    s_add_u32 {a}, {a}, {I['w']}
    s_lshl_b32 {r0}, {a}, 7
    s_add_u32 {r0}, {r0}, {64 if second else I['slot']}
    s_sub_u32 {r1}, 2048, {r0}
    s_and_b32 {r1}, {r1}, 2047
    s_mul_i32 {r0}, {r0}, 1026
    s_mul_i32 {r1}, {r1}, 1026
    v_lshlrev_b32 {col}, 9, {I['g']}
    v_lshl_add_u32 {col}, {I['n']}, 3, {col}
    v_add_u32 {ad}, {r0}, {col}
    v_sub_u32 {t}, {r1}, {col}
    v_add_u32 {t}, {2*829}, {t}
    v_cmp_lt_u32 vcc, 1, {I['g']}
    v_cndmask_b32 {ad}, {ad}, {t}, vcc""")
    for r in range(4):
        k(f"buffer_load_dwordx2 {Wp['r'].q(r,2)}, {ad}, {swr}, 0 offen offset:{128*r} {fl_}")
        k(f"buffer_load_dwordx2 {Wp['i'].q(r,2)}, {ad}, {swi}, 0 offen offset:{128*r} {fl_}")
    k(f"""s_add_u32 {r0}, {r0}, 1024
    v_mov_b32 {t}, {r1}
    v_mov_b32 {col}, {r0}
    v_cndmask_b32 {t}, {t}, {col}, vcc
    buffer_load_ushort {Wp['a'][0]}, {t}, {swr}, 0 offen
    buffer_load_ushort {Wp['a'][1]}, {t}, {swi}, 0 offen""")
    if not second:
        k(f"""s_lshl_b32 {dst[0]}, {I['slot']}, 16
        s_lshl_b32 {r0}, {a}, 10
        s_add_u32 {dst[0]}, {dst[0]}, {r0}
        s_add_u32 {dst[1]}, {dst[0]}, 16384
        s_add_u32 {dst[2]}, {dst[0]}, 32768
        s_add_u32 {dst[3]}, {dst[0]}, 49152
        s_cmp_lg_u32 {I['slot']}, 0""")
        with k.skip_if("s_cbranch_scc1"):
            k(f"""s_mov_b32 {dst[3]}, {BIG}
            s_cmp_gt_u32 {a}, 8
            s_cselect_b32 {dst[0]}, {BIG}, {dst[0]}
            s_cselect_b32 {dst[2]}, {BIG}, {dst[2]}
            s_cmp_eq_u32 {a}, 8
            s_cselect_b32 {dst[0]}, {256*16384}, {dst[0]}
            s_cselect_b32 {dst[2]}, {256*16384+1024}, {dst[2]}""")
    else:
        k(f"""s_lshl_b32 {r0}, {a}, 10
        s_add_u32 {dst[0]}, {r0}, 8192
        s_add_u32 {dst[1]}, {r0}, 49152
        s_add_u32 {dst[2]}, {r0}, {32768+8192}
        s_mov_b32 {dst[3]}, {BIG}
        s_cmp_gt_u32 {a}, 7
        s_cselect_b32 {dst[0]}, {BIG}, {dst[0]}
        s_cselect_b32 {dst[2]}, {BIG}, {dst[2]}""")
    k.v.free(col, t, ad); k.s.free(r0, r1, a)
    return Wp

def wpre_compute(k, I, Wp, sw):
    O = k.v.allocq(16); sel = k.v.alloc(2); t = k.v.alloc(3); va = k.v.alloc()
    R_, I_, A = Wp['r'], Wp['i'], Wp['a']
    k(f"v_mov_b32 {sel[0]}, 0x05040100\nv_mov_b32 {sel[1]}, 0x07060302")
    k(f"v_lshlrev_b32 {A[0]}, 16, {A[0]}\nv_lshlrev_b32 {A[1]}, 16, {A[1]}\nv_xor_b32 {A[1]}, 0x80000000, {A[1]}")
    k("s_mov_b32 exec_lo, 0")
    k(f"v_swap_b32 {sel[0]}, {sel[1]}\nv_xor_b32 {A[1]}, 0x80000000, {A[1]}")
    for r in range(4):
        k(f"""v_swap_b32 {R_[2*r]}, {R_[2*r+1]}
        v_swap_b32 {I_[2*r]}, {I_[2*r+1]}
        v_xor_b32 {I_[2*r]}, 0x80008000, {I_[2*r]}
        v_xor_b32 {I_[2*r+1]}, 0x80008000, {I_[2*r+1]}""")
    k("s_mov_b64 exec, -1")
    for kk in range(4):
        for r in range(4):
            k(f"v_perm_b32 {O[4*kk+r]}, {I_[2*r+(kk>>1)]}, {R_[2*r+(kk>>1)]}, {sel[kk&1]}")
    k(f"""v_cmp_lt_u32 vcc, 1, {I['g']}
    v_cndmask_b32 {t[0]}, {O[0]}, {O[3]}, vcc
    v_lshlrev_b32 {t[1]}, 16, {t[0]}
    v_and_b32 {t[2]}, 0xffff0000, {t[0]}
    v_add_f32 {t[1]}, {t[1]}, {A[0]}
    v_add_f32 {t[2]}, {t[2]}, {A[1]}
    v_mul_f32 {t[1]}, 0.5, {t[1]}
    v_mul_f32 {t[2]}, 0.5, {t[2]}
    v_cvt_pk_bf16_f32 {t[0]}, {t[1]}, {t[2]}
    v_cmp_eq_u32 vcc, 0, {I['l']}
    v_cndmask_b32 {O[0]}, {O[0]}, {t[0]}, vcc
    v_cmp_eq_u32 vcc, 32, {I['l']}
    v_cndmask_b32 {O[3]}, {O[3]}, {t[0]}, vcc""")
    last = None
    for kk in range(4):
        k(f"v_lshl_add_u32 {va}, {I['l']}, 4, {Wp['dst'][kk]}")
        last = k(f"buffer_store_dwordx4 {O.q(kk)}, {va}, {sw}, 0 offen {SC}")
    k.v.free(O, sel, t, va, R_, I_, A); k.s.free(Wp['dst'])
    return last

def w2_issue(k, I, T, sw):
    W = k.v.allocq(20); va = k.v.alloc(); so = k.s.alloc(); st = k.s.alloc()
    k(f"""v_lshlrev_b32 {va}, 4, {I['l']}
    s_lshl_b32 {so}, {T['tau']}, 14
    s_lshl_b32 {st}, {I['w']}, 12
    s_add_u32 {so}, {so}, {st}""")
    for b in range(4): k(f"buffer_load_dwordx4 {W.q(b)}, {va}, {sw}, {so} offen offset:{1024*b} {SC}")
    k(f"s_cmp_eq_u32 {T['sp']}, 0")
    with k.skip_if("s_cbranch_scc1"):
        k(f"""s_lshl_b32 {so}, {T['tau']}, 9
        s_add_u32 {so}, {so}, {256*16384}
        buffer_load_dwordx4 {W.q(4)}, {va}, {sw}, {so} offen {SC}""")
    k.v.free(va); k.s.free(so, st)
    return W

def ph2f(k, I, T, C, W, L, lds1, lds2, sv2, hook):
    D = k.v.allocq(16); acc = k.v.allocq(32); tmp = k.v.alloc(4); wu = k.v.allocq(8); ad = k.v.alloc(); st = k.s.alloc()
    z = lambda b, c: acc.q(2 * b + c)
    def stage(M, data_is_A, blocks=range(4), src=None, dst=None):
        for b in blocks:
            for c in range(2):
                d = (src or D).q(b); o = (dst or acc).q(2 * b + c)
                A, B = (d, M.q(c)) if data_is_A else (M.q(c), d)
                k(f"v_mfma_f32_16x16x32_bf16 {o}, {A}, {B}, 0")
            if src is None: hook('t')
    def unpack(b):
        for r in range(4): k(f"v_lshlrev_b32 {wu[r]}, 16, {W[4*b+r]}\nv_and_b32 {wu[4+r]}, 0xffff0000, {W[4*b+r]}")
    for b in range(4):
        for j in range(4): k(f"v_mov_b32 {D[4*b+j]}, {L[4*j+b]}")
    stage(C['sf'], True)
    a4 = k.v.alloc(4)
    k(f"""v_and_b32 {a4[0]}, 7, {I['n']}
    v_lshlrev_b32 {ad}, 2, {I['g']}
    v_xor_b32 {a4[0]}, {a4[0]}, {ad}
    v_lshlrev_b32 {a4[0]}, 4, {a4[0]}
    v_lshl_or_b32 {a4[0]}, {I['n']}, 10, {a4[0]}
    s_lshl_b32 {st}, {I['w']}, 8
    s_add_u32 {st}, {st}, {lds1}
    v_add_u32 {a4[0]}, {st}, {a4[0]}""")
    for b in range(1, 4): k(f"v_xor_b32 {a4[b]}, {16*b}, {a4[0]}")
    for b in range(4):
        for r in range(4): k(f"v_cvt_pk_bf16_f32 {D[4*b+r]}, {z(b,0)[r]}, {z(b,1)[r]}")
        k(f"ds_write_b128 {a4[b]}, {D.q(b)}")
    k(f"""s_and_b32 {st}, {I['w']}, 1
    s_lshl_b32 {st}, {st}, 2
    v_xor_b32 {ad}, {st}, {I['l']}
    s_lshl_b32 {st}, {I['w']}, 12
    s_add_u32 {st}, {st}, {lds1}
    v_lshl_add_u32 {a4[0]}, {ad}, 4, {st}""")
    for b in range(1, 4): k(f"v_xor_b32 {a4[b]}, {16*b}, {a4[0]}")
    hook('pre_bar1')
    k("s_waitcnt lgkmcnt(0)\ns_barrier")
    for b in range(4): k(f"ds_read_b128 {D.q(b)}, {a4[b]} offset:{1024*b}")
    k.v.free(a4)
    hook('post_bar1')
    stage(C['m1f'], True)
    for b in range(4):
        cmul_pack(k, z(b, 0), z(b, 1), C['twf'].q(0), C['twf'].q(1), True, D.q(b), tmp); hook('t')
    stage(C['m2f'], False)
    X = L[0:8]; Xd = L[8:12]
    k(f"s_cmp_eq_u32 {T['sp']}, 0")
    with k.skip_if("s_cbranch_scc1"):
        unpack(4)
        cmul_pack(k, z(0, 0), z(0, 1), wu.q(0), wu.q(1), False, Xd, tmp)
        stage(C['m2i'], True, [0], Xd, X)
        cmul_pack(k, X.q(0), X.q(1), C['twi'].q(0), C['twi'].q(1), False, Xd, tmp)
        stage(C['m1i'], False, [0], Xd, X)
    for b in range(4):
        unpack(b)
        cmul_pack(k, z(b, 0), z(b, 1), wu.q(0), wu.q(1), False, D.q(b), tmp); hook('t')
    stage(C['m2i'], True)
    for b in range(4):
        cmul_pack(k, z(b, 0), z(b, 1), C['twi'].q(0), C['twi'].q(1), False, D.q(b), tmp); hook('t')
    stage(C['m1i'], False)
    k(f"s_sub_u32 {st}, {T['sp']}, 1\ns_or_b32 {st}, {st}, {I['w']}\ns_cmp_lg_u32 {st}, 0")
    with k.skip_if("s_cbranch_scc1"):
        for r in range(4): k(f"v_mov_b32 {z(0,1)[r]}, {X[4+r]}")
    k(f"""v_lshlrev_b32 {ad}, 12, {I['g']}
    v_lshl_add_u32 {ad}, {I['n']}, 4, {ad}
    s_lshl_b32 {st}, {I['w']}, 8
    s_add_u32 {st}, {st}, {lds2}
    v_add_u32 {ad}, {st}, {ad}""")
    for r in range(4):
        for b in range(4): k(f"v_cvt_pk_bf16_f32 {D[4*r+b]}, {z(b,0)[r]}, {z(b,1)[r]}")
        k(f"ds_write_b128 {ad}, {D.q(r)} offset:{1024*r}")
    k(f"""s_lshl_b32 {st}, {I['w']}, 12
    s_add_u32 {st}, {st}, {lds2}
    v_lshl_add_u32 {ad}, {I['l']}, 4, {st}""")
    hook('pre_bar2')
    k("s_waitcnt lgkmcnt(0)\ns_barrier")
    for b in range(4): k(f"ds_read_b128 {D.q(b)}, {ad} offset:{1024*b}")
    hook('post_bar2')
    stage(C['si'], False)
    so = k.s.alloc()
    k(f"""s_mov_b32 {st}, {64*V2_STR}
    v_mul_lo_u32 {ad}, {I['g']}, {st}
    v_lshl_add_u32 {ad}, {I['n']}, 2, {ad}
    s_mul_i32 {so}, {I['w']}, {4*V2_STR}
    s_lshl_b32 {st}, {T['tau']}, 6
    s_add_u32 {so}, {so}, {st}""")
    for b in range(4):
        for r in range(4): k(f"v_cvt_pk_bf16_f32 {D[4*b+r]}, {z(b,0)[r]}, {z(b,1)[r]}")
    k.v.free(acc, tmp, wu, W, L, *C.values()); k.s.free(st)
    return D, ad, so

def v2_store(k, D, ad, so, sv2):
    last = None
    for b in range(4):
        for r in range(4):
            last = k(f"buffer_store_dword {D[4*b+r]}, {ad}, {sv2}, {so} offen {SC}")
            if r < 3: k(f"s_add_u32 {so}, {so}, {16*V2_STR}")
            elif b < 3: k(f"s_sub_u32 {so}, {so}, {47*V2_STR}")
    k.v.free(D, ad); k.s.free(so)
    return last

class B1f(B1):
    def __init__(self, k, I, sx, sb, ldsA, ldsB):
        super().__init__(k, I, sx, sb, ldsA, ldsB)
        for j in range(4):
            k(f"v_add_u32 {self.va[j]}, {self.soA}, {self.va[j]}\nv_add_u32 {self.vb[j]}, {self.soB}, {self.vb[j]}")
        k(f"""s_add_u32 {self.soA}, {I['ta']}, {I['tb']}
        s_and_b32 {self.soA}, {self.soA}, 15
        s_lshl_b32 {self.soA}, {self.soA}, 7""")
        self.tail = None
    def dma(self, s, i):
        k = self.k; j = i & 3; buf = (s % self.NST) * 16384
        if s >= 16:
            if self.tail: self.tail(s - 16, i)
            return
        if i < 4:
            if j == 0: k(f"s_add_u32 m0, {self.mB}, {buf}")
            ins = k(f"buffer_load_dwordx4 {self.vb[j]}, {self.sb}, {self.soA} offen offset:{1024*j} lds")
        else:
            if j == 0: k(f"s_add_u32 m0, {self.mA}, {buf}")
            ins = k(f"buffer_load_dwordx4 {self.va[j]}, {self.sx}, {self.soA} offen offset:{1024*j} lds")
            if j == 3: k(f"s_add_u32 {self.soA}, {self.soA}, 128\ns_and_b32 {self.soA}, {self.soA}, 0x7ff")
        self.last[s] = ins
    def alloc(self):
        self.acc = self.k.v.allocq(64, 16); self.fr = self.k.v.allocq(32)
    def main(self, fill=None, pre_bar=None, post_bar=None):
        k = self.k; NS = 16; acc, fr = self.acc, self.fr
        def reads(s, kk):
            f = fr.q((s * 4 + kk) & 1, 16); buf = (s % self.NST) * 16384
            out = []
            for b in range(2):
                out.append(f"ds_read_b128 {f.q(b)}, {self.ra[kk]} offset:{buf + 4096*b}")
                out.append(f"ds_read_b128 {f.q(2+b)}, {self.rb[kk]} offset:{buf + 4096*b}")
            return out
        k.wait(self.last[0]); k("s_barrier")
        lastrd = None
        for r in reads(0, 0): lastrd = k(r)
        for s in range(NS):
            for kk in range(4):
                f = fr.q((s * 4 + kk) & 1, 16)
                rd = []
                if kk < 3: rd = reads(s, kk + 1)
                elif s + 1 < NS:
                    if pre_bar: pre_bar(s)
                    k.wait(lastrd, self.last[s + 1]); k("s_barrier")
                    rd = reads(s + 1, 0)
                ds, di = (s + self.NST, 0) if kk == 3 else (s + self.NST - 1, 2 * (kk + 1))
                dm = [(ds, di), (ds, di + 1)] if ds >= self.NST else []
                for m, (rb, c) in enumerate(((0, 0), (0, 1), (1, 1), (1, 0))):
                    d = acc.q(2 * rb + c, 16)
                    first = s == 0 and kk == 0
                    k(f"v_mfma_f32_32x32x16_bf16 {d}, {f.q(rb)}, {f.q(2+c)}, {0 if first else d}")
                    if m < 2 and rd:
                        k(rd[2 * m]); lastrd = k(rd[2 * m + 1])
                    if m == 1 and kk == 3 and post_bar: post_bar(s)
                    if m >= 2 and dm: self.dma(*dm[m - 2])
                    if fill: fill(s, kk, m)
        k.v.free(fr, self.va, self.vb, self.ra, self.rb); k.s.free(self.soA, self.soB, self.mA, self.mB)
        return acc

def pass2f(k, I, acc, Pm, E1, E, sh):
    for j in range(14, -1, -1):
        cfma(k, E.q(j, 2), Pm['L64'], E.q(j + 1, 2), E.q(j, 2))
    S, T = E.q(0, 2), E.q(1, 2); U, V = E.q(2, 2), E.q(3, 2)
    k(f"""v_mov_b32 {T[0]}, {S[0]}
    v_mov_b32 {T[1]}, {S[1]}
    v_permlane32_swap_b32 {S[0]}, {T[0]}
    v_permlane32_swap_b32 {S[1]}, {T[1]}""")
    cfma(k, S, Pm['L1024'], T, S)
    cfma(k, E1['lo'], Pm['L32'], S, E1['lo'])
    k(f"s_mov_b32 exec_lo, 0\nv_mov_b32 {S[0]}, {E1['lo'][0]}\nv_mov_b32 {S[1]}, {E1['lo'][1]}\ns_mov_b64 exec, -1")
    e0 = (E1['er'][0], E1['ei'][0])
    cfma(k, e0, Pm['L16'], S, e0)
    cf = Pm['coef']
    for h, x in ((0, S), (1, e0)):
        k(f"""v_mul_f32 {U[h]}, {cf[0]}, {x[0]}
        v_mul_f32 {V[h]}, {cf[0]}, {x[1]}
        v_fma_f32 {U[h]}, -{cf[1]}, {x[1]}, {U[h]}
        v_fma_f32 {V[h]}, {cf[1]}, {x[0]}, {V[h]}""")
    va, so = E1['hva'], E1['hso']
    L = Pm['L1']; cr, ci = U, V
    O = E[8:32]
    pend = []; last = None
    def flush():
        nonlocal last
        q, o = pend.pop(0)
        k(f"""v_permlane32_swap_b32 {o[0]}, {o[1]}
        v_permlane32_swap_b32 {o[2]}, {o[3]}
        v_permlane16_swap_b32 {o[0]}, {o[2]}
        v_permlane16_swap_b32 {o[1]}, {o[3]}""")
        last = k(f"buffer_store_dwordx4 {o}, {va}, {sh}, {so} offen {SC}")
        if q < 7: k(f"s_add_u32 {so}, {so}, {2*32*16384}")
    for j in range(16):
        nr, ni = upair(acc, j, 0), upair(acc, j, 1)
        k(f"""v_pk_fma_f32 {nr}, {L}, {cr}, {nr}{BC0}
        v_pk_fma_f32 {ni}, {L}, {ci}, {ni}{BC0}
        v_pk_fma_f32 {nr}, {L}, {ci}, {nr}{BC1}{NEG0}
        v_pk_fma_f32 {ni}, {L}, {cr}, {ni}{BC1}""")
        cr, ci = nr, ni
        if pend: flush()
        o = O.q((j // 2) % 6)
        h = 2 * (j & 1)
        k(f"v_cvt_pk_bf16_f32 {o[h]}, {nr[0]}, {nr[1]}\nv_cvt_pk_bf16_f32 {o[h+1]}, -{ni[0]}, -{ni[1]}")
        if j & 1: pend.append((j // 2, o))
    flush()
    k.v.free(va, E, acc, E1['er'], E1['ei'], E1['lo'], *Pm.values()); k.s.free(so)
    return last

def hstore_addr(k, I, E1):
    va = k.v.alloc(); t = k.v.alloc(); so = k.s.alloc(); st = k.s.alloc(); s2_ = k.s.alloc()
    k(f"""s_lshl_b32 {st}, {I['ta']}, 1
    s_lshr_b32 {s2_}, {I['w']}, 1
    s_add_u32 {st}, {st}, {s2_}
    s_lshl_b32 {so}, {st}, 9
    s_and_b32 {st}, {st}, 3
    s_lshl_b32 {st}, {st}, 2
    v_xor_b32 {va}, {st}, {I['n']}
    v_lshlrev_b32 {va}, 4, {va}
    v_lshrrev_b32 {t}, 1, {I['g']}
    v_lshl_or_b32 {va}, {t}, 14, {va}
    v_and_b32 {t}, 1, {I['g']}
    v_lshl_or_b32 {va}, {t}, 19, {va}
    s_and_b32 {s2_}, {I['w']}, 1
    s_lshl_b32 {s2_}, {s2_}, 8
    s_add_u32 {so}, {so}, {s2_}
    s_lshl_b32 {s2_}, {I['tb']}, 15
    s_add_u32 {so}, {so}, {s2_}""")
    k.v.free(t); k.s.free(st, s2_)
    E1['hva'], E1['hso'] = va, so

class CLoad:
    def __init__(self, k, I, sc):
        self.k, self.sc = k, sc
        self.C = k.a.alloc(256); self.va = k.v.alloc(4); self.ra = k.v.alloc(4); self.so = k.s.alloc(); self.mw = k.s.alloc()
        t = k.v.alloc(2); st = k.s.alloc(); l = I['l']
        k(f"""v_and_b32 {t[0]}, 7, {l}
        v_xor_b32 {t[0]}, {t[0]}, {I['g']}
        v_and_b32 {t[1]}, 4, {t[0]}
        v_lshlrev_b32 {self.va[0]}, 4, {t[1]}
        v_and_b32 {t[1]}, 1, {t[0]}
        v_lshl_or_b32 {self.va[0]}, {t[1]}, 5, {self.va[0]}
        v_bfe_u32 {t[1]}, {t[0]}, 1, 1
        v_lshl_or_b32 {self.va[0]}, {t[1]}, 4, {self.va[0]}
        v_lshrrev_b32 {t[1]}, 3, {l}
        v_lshl_or_b32 {self.va[0]}, {t[1]}, 11, {self.va[0]}
        s_lshr_b32 {st}, {I['w']}, 1
        s_lshl_b32 {st}, {st}, 20
        s_lshl_b32 {self.so}, {I['tb']}, 15
        s_add_u32 {st}, {st}, {self.so}
        v_add_u32 {self.va[0]}, {st}, {self.va[0]}
        v_xor_b32 {self.va[1]}, 64, {self.va[0]}
        v_add_u32 {self.va[1]}, {16384-1024}, {self.va[1]}
        v_add_u32 {self.va[2]}, {(1<<19)-2048}, {self.va[0]}
        v_add_u32 {self.va[3]}, {(1<<19)-2048}, {self.va[1]}
        s_lshl_b32 {self.so}, {I['ta']}, 7
        s_lshl_b32 {self.mw}, {I['w']}, 12
        v_lshrrev_b32 {t[0]}, 1, {I['n']}
        v_xor_b32 {t[0]}, {t[0]}, {I['g']}
        v_lshlrev_b32 {t[0]}, 4, {t[0]}
        v_lshl_or_b32 {t[0]}, {I['n']}, 7, {t[0]}
        v_add_u32 {self.ra[0]}, {self.mw}, {t[0]}
        v_xor_b32 {self.ra[1]}, 64, {self.ra[0]}
        v_add_u32 {self.ra[2]}, 0x10000, {self.ra[0]}
        v_add_u32 {self.ra[3]}, 0x10000, {self.ra[1]}""")
        k.v.free(t); k.s.free(st)
        self.n = 0; self.slot = {}; self.ld = {}; self.rd = {}; self.nd = 0
    def frag(self, j, kk, mm): return self.C.q(4 * j + 2 * mm + kk)
    def issue1(self, slot):
        k = self.k; j, q = self.n >> 2, self.n & 3
        if q == 0:
            if slot in self.rd: k.wait(self.rd.pop(slot))
            self.slot[j] = slot
            k(f"s_add_u32 m0, {self.mw}, {slot}")
        self.ld[j] = k(f"buffer_load_dwordx4 {self.va[q]}, {self.sc}, {self.so} offen offset:{1024*q} lds")
        if q == 3: k(f"s_add_u32 {self.so}, {self.so}, 128\ns_and_b32 {self.so}, {self.so}, 0x7ff")
        self.n += 1
        if self.n == 64: k.v.free(self.va); k.s.free(self.so, self.mw)
    def issue(self, slot):
        for _ in range(4): self.issue1(slot)
    def drain(self):
        k = self.k; j = self.nd; slot = self.slot[j]; hi = 2 if slot >= 65536 else 0
        assert self.n >= 4 * (j + 1)
        k.wait(self.ld[j])
        for mm in range(2):
            for kk in range(2):
                self.rd[slot] = k(f"ds_read_b128 {self.frag(j,kk,mm)}, {self.ra[hi+kk]} offset:{(slot & 65535) + 2048*mm}")
        self.nd += 1
        if self.nd == 16: k.v.free(self.ra)
        return slot

def gen_Gf(k, I):
    G = k.v.allocq(64)
    f, b, sb, a, c, s, mk = [k.v.alloc() for _ in range(7)]
    st = k.s.alloc()
    k(f"""v_lshrrev_b32 {a}, 1, {I['g']}
    v_lshlrev_b32 {a}, 3, {a}
    v_and_b32 {c}, 1, {I['g']}
    v_lshl_add_u32 {a}, {c}, 1, {a}
    v_cvt_f32_u32 {sb}, {a}
    v_mul_u32_u24 {mk}, 0x8000, {c}
    v_lshl_or_b32 {mk}, {mk}, 16, {mk}""")
    for ib in range(2):
        k(f"""s_and_b32 {st}, {I['w']}, 1
        s_lshl_b32 {st}, {st}, 6
        s_add_u32 {st}, {st}, {16*ib}
        v_add_u32 {a}, {st}, {I['n']}
        v_cvt_f32_u32 {f}, {a}
        v_mul_f32 {f}, {fl(1/128)}, {f}
        v_mul_f32 {b}, {f}, {sb}""")
        for kap in range(4):
            for d in range(4):
                sl = 16 * kap + 4 * (d >> 1) + (d & 1)
                g0, g2 = G[16 * ib + 4 * kap + d], G[16 * (ib + 2) + 4 * kap + d]
                k(f"""v_fmamk_f32 {a}, {f}, {fl(float(sl))}, {b}
                v_cos_f32 {c}, {a}
                v_sin_f32 {s}, {a}
                v_cvt_pk_bf16_f32 {g0}, {c}, -{s}""")
                if d & 1: k(f"v_cvt_pk_bf16_f32 {g2}, -{s}, -{c}\nv_xor_b32 {g2}, {mk}, {g2}")
                else: k(f"v_xor_b32 {g2}, {mk}, {g0}")
    k(f"""v_lshlrev_b32 {c}, 31, {I['n']}
    v_or_b32 {c}, 0x3f003f00, {c}
    v_cmp_eq_u32 vcc, 0, {I['g']}""")
    for ib in range(4): k(f"v_cndmask_b32 {G[16*ib]}, {G[16*ib]}, {c}, vcc")
    k.v.free(f, b, sb, a, c, s, mk); k.s.free(st)
    return G

class B3f:
    NST = 4
    D = 3
    def __init__(self, k, I, sh, CL):
        self.k, self.I, self.sh, self.CL = k, I, sh, CL
        self.vh = k.v.alloc(2); self.rh = k.v.alloc(4)
        self.so, self.mH = k.s.alloc(), k.s.alloc()
        t = k.v.alloc(2); st = k.s.alloc(); l = I['l']
        k(f"""s_lshr_b32 {st}, {I['w']}, 1
        s_xor_b32 {st}, {st}, {I['w']}
        s_lshl_b32 {st}, {st}, 13
        s_lshl_b32 {self.so}, {I['ta']}, 19
        s_add_u32 {st}, {st}, {self.so}
        v_lshl_add_u32 {self.vh[0]}, {l}, 4, {st}
        v_add_u32 {self.vh[1]}, 4096, {self.vh[0]}
        s_lshl_b32 {self.so}, {I['ta']}, 15
        s_lshl_b32 {self.mH}, {I['w']}, 13""")
        k(f"""v_and_b32 {t[0]}, 3, {l}
        v_and_b32 {t[1]}, 2, {I['g']}
        v_xor_b32 {t[1]}, {t[1]}, {t[0]}
        v_lshlrev_b32 {t[0]}, 9, {t[0]}
        v_lshl_or_b32 {t[0]}, {t[1]}, 6, {t[0]}
        v_bfe_u32 {t[1]}, {l}, 2, 2
        v_lshl_or_b32 {t[0]}, {t[1]}, 4, {t[0]}
        v_and_b32 {t[1]}, 1, {I['g']}
        v_lshl_or_b32 {t[0]}, {t[1]}, 3, {t[0]}
        s_and_b32 {st}, {I['w']}, 1
        s_lshl_b32 {st}, {st}, 14
        v_add_u32 {self.rh[0]}, {st}, {t[0]}
        v_xor_b32 {self.rh[1]}, 64, {self.rh[0]}
        v_add_u32 {self.rh[2]}, 0x10000, {self.rh[0]}
        v_add_u32 {self.rh[3]}, 0x10000, {self.rh[1]}""")
        k.v.free(t); k.s.free(st)
        self.last = {}; self.tail = None
    def dma(self, s, i):
        k = self.k
        if s >= 16:
            if self.tail: self.tail(s - 16, i)
            return
        if i & 3 == 0: k(f"s_add_u32 m0, {self.mH}, {(s % self.NST)*32768 + (i>>2)*4096}")
        self.last[s] = k(f"buffer_load_dwordx4 {self.vh[i>>2]}, {self.sh}, {self.so} offen offset:{1024*(i&3)} {SC} lds")
        if i == 7: k(f"s_add_u32 {self.so}, {self.so}, 32768\ns_and_b32 {self.so}, {self.so}, 0x7ffff")
    def prefill(self, steps):
        for s in steps:
            for i in range(8): self.dma(s, i)
    def alloc(self):
        self.acc = self.k.v.allocq(64); self.fr = self.k.v.allocq(64)
    def main(self, fill=None, pre_bar=None, post_bar=None):
        k = self.k; NS = 16; acc, fr = self.acc, self.fr
        def reads(s, kk):
            f = fr.q(kk, 32); out = []
            for ib in range(8):
                off = (s % self.NST) * 32768 + ib * 2048 + kk * 256; hi = 2 if off >= 65536 else 0
                for h in range(2):
                    out.append(f"ds_read_b64_tr_b16 {f[4*ib+2*h:4*ib+2*h+2]}, {self.rh[hi+h]} offset:{off & 65535}")
            return out
        if pre_bar: pre_bar(-1)
        k.wait(self.last[0]); k("s_barrier")
        lastrd = None
        for r in reads(0, 0): lastrd = k(r)
        if post_bar: post_bar(-1)
        for s in range(NS):
            for kk in range(2):
                f = fr.q(kk, 32); rd = []
                if kk == 0: rd = reads(s, 1)
                elif s + 1 < NS:
                    if pre_bar: pre_bar(s)
                    k.wait(lastrd, self.last[s + 1]); k("s_barrier")
                    rd = reads(s + 1, 0)
                dm = [(s + self.D, 4 * kk + x) for x in range(4)]
                for q in range(16):
                    ib, mm = q >> 1, q & 1
                    d = acc.q(8 * mm + ib)
                    zero = s == 0 and kk == 0 and ib >= 4
                    k(f"v_mfma_f32_16x16x32_bf16 {d}, {f.q(ib)}, {self.CL.frag(s,kk,mm)}, {0 if zero else d}")
                    if rd and q < 8:
                        k(rd[2 * q]); lastrd = k(rd[2 * q + 1])
                    if dm and q >= 8 and q % 2 == 0: self.dma(*dm[(q - 8) // 2])
                    if q == 9 and kk == 1 and post_bar: post_bar(s)
                    if fill: fill(s, kk, q)
        k.v.free(fr, self.vh, self.rh); k.s.free(self.so, self.mH)
        return acc

def epi_issue_f(k, I, sg, sd):
    E = dict(g=k.v.allocq(16), d=k.v.alloc(2))
    va = k.v.alloc(); so = k.s.alloc(); st = k.s.alloc()
    k(f"""v_lshlrev_b32 {va}, 4, {I['g']}
    s_lshl_b32 {so}, {I['ta']}, 9
    s_and_b32 {st}, {I['w']}, 1
    s_lshl_b32 {st}, {st}, 8
    s_add_u32 {so}, {so}, {st}""")
    for ib in range(4): k(f"buffer_load_dwordx4 {E['g'].q(ib)}, {va}, {sg}, {so} offen offset:{64*ib} {SC}")
    k(f"""v_lshlrev_b32 {va}, 1, {I['n']}
    s_lshl_b32 {so}, {I['tb']}, 5
    s_lshr_b32 {st}, {I['w']}, 1
    s_lshl_b32 {st}, {st}, 10
    s_add_u32 {so}, {so}, {st}""")
    for mm in range(2): k(f"buffer_load_ushort {E['d'][mm]}, {va}, {sd}, {so} offen offset:{512*mm}")
    k.v.free(va); k.s.free(so, st)
    return E

def xd_init(k, I, E, acc, ldsX):
    ad = k.v.alloc(2); t = k.v.alloc(2); st = k.s.alloc()
    k(f"""s_and_b32 {st}, {I['w']}, 1
    s_lshl_b32 {st}, {st}, 13
    s_add_u32 {st}, {st}, {ldsX}
    v_lshrrev_b32 {t[0]}, 2, {I['l']}
    v_lshlrev_b32 {t[0]}, 7, {t[0]}
    v_and_b32 {t[1]}, 3, {I['l']}
    v_lshl_or_b32 {t[0]}, {t[1]}, 3, {t[0]}
    v_add_u32 {t[0]}, {st}, {t[0]}
    v_bfe_u32 {t[1]}, {I['l']}, 3, 2
    s_and_b32 {st}, {I['w']}, 2
    v_xor_b32 {t[1]}, {st}, {t[1]}
    v_lshl_add_u32 {ad[0]}, {t[1]}, 5, {t[0]}
    v_xor_b32 {ad[1]}, 32, {ad[0]}""")
    for mm in range(2):
        for ib in range(4): k(f"ds_read_b64_tr_b16 {acc.q(8*mm+ib)[2:4]}, {ad[mm]} offset:{2048*ib}")
    Dk = E['d']
    k(f"v_lshlrev_b32 {Dk[0]}, 16, {Dk[0]}\nv_lshlrev_b32 {Dk[1]}, 16, {Dk[1]}")
    for mm in range(2):
        sel = f" op_sel:[{mm},0] op_sel_hi:[{mm},1]"
        for ib in range(4):
            a = acc.q(8 * mm + ib)
            k(f"""v_lshlrev_b32 {a[0]}, 16, {a[2]}
            v_and_b32 {a[1]}, 0xffff0000, {a[2]}
            v_lshlrev_b32 {a[2]}, 16, {a[3]}
            v_and_b32 {a[3]}, 0xffff0000, {a[3]}
            v_pk_mul_f32 {a[0:2]}, {Dk}, {a[0:2]}{sel}
            v_pk_mul_f32 {a[2:4]}, {Dk}, {a[2:4]}{sel}""")
    k.v.free(ad, t, Dk); k.s.free(st)

def final(k, I, E, acc, G, L, ldsX, ldsY, so_, pf):
    ad = k.v.alloc(); t = k.v.alloc(); st = k.s.alloc()
    k(f"s_lshl_b32 {st}, {I['w']}, 13\ns_add_u32 {st}, {st}, {ldsX}\nv_lshl_add_u32 {ad}, {I['l']}, 4, {st}")
    for mm in range(2):
        for ib in range(4): k(f"ds_write_b128 {ad}, {acc.q(8*mm+4+ib)} offset:{1024*(4*mm+ib)}")
    y_stage(k, I, L, ldsY)
    R_ = k.v.allocq(32); Y = k.v.allocq(32); ay = k.v.alloc()
    k(f"""v_xor_b32 {ad}, 0x2000, {ad}
    v_lshrrev_b32 {ay}, 5, {I['l']}
    v_lshlrev_b32 {ay}, 9, {ay}
    v_bfe_u32 {t}, {I['l']}, 3, 2
    v_lshl_or_b32 {ay}, {t}, 6, {ay}
    v_and_b32 {t}, 3, {I['l']}
    v_lshl_or_b32 {ay}, {t}, 4, {ay}
    v_bfe_u32 {t}, {I['l']}, 2, 1
    v_lshl_or_b32 {ay}, {t}, 3, {ay}
    s_lshr_b32 {st}, {I['w']}, 1
    s_lshl_b32 {st}, {st}, 13
    s_add_u32 {st}, {st}, {ldsY}
    v_add_u32 {ay}, {st}, {ay}
    s_waitcnt lgkmcnt(0)
    s_barrier""")
    pf("xbar")
    for mm in range(2):
        for kap in range(4):
            for h in range(2):
                o = 16 * mm + 4 * kap + 2 * h
                k(f"ds_read_b64_tr_b16 {Y[o:o+2]}, {ay} offset:{4096*mm + 1024*kap + 256*h}")
    for ib in range(4):
        for mm in range(2): k(f"ds_read_b128 {R_.q(4*mm+ib)}, {ad} offset:{1024*(4*mm+ib)}")
    va = k.v.alloc(); so = k.s.alloc(); om = k.v.alloc(4)
    k(f"""v_lshlrev_b32 {va}, 18, {I['g']}
    v_lshl_or_b32 {va}, {I['n']}, 2, {va}
    s_and_b32 {so}, {I['w']}, 1
    s_lshl_b32 {so}, {so}, 22
    s_lshl_b32 {st}, {I['ta']}, 12
    s_add_u32 {so}, {so}, {st}
    s_lshl_b32 {st}, {I['tb']}, 6
    s_add_u32 {so}, {so}, {st}
    s_lshr_b32 {st}, {I['w']}, 1
    s_lshl_b32 {st}, {st}, 11
    s_add_u32 {so}, {so}, {st}""")
    def mf(ib):
        for kap in range(4):
            for mm in range(2):
                d = acc.q(8 * mm + 4 + ib)
                k(f"v_mfma_f32_16x16x32_bf16 {d}, {G.q(4*ib+kap)}, {Y.q(4*mm+kap)}, {d if kap else 0}")
    def fin(ib):
        g = E['g'].q(ib)
        for h in (0, 2):
            k(f"""v_sub_f32 {om[h]}, 1.0, {g[h]}
            v_sub_f32 {om[h+1]}, 1.0, {g[h+1]}
            v_cvt_pk_bf16_f32 {om[h+1]}, {om[h]}, {om[h+1]}
            v_lshlrev_b32 {om[h]}, 16, {om[h+1]}
            v_and_b32 {om[h+1]}, 0xffff0000, {om[h+1]}""")
        for mm in range(2):
            b = acc.q(8 * mm + ib); r = R_.q(4 * mm + ib)
            for h in (0, 2):
                k(f"v_pk_add_f32 {b[h:h+2]}, {b[h:h+2]}, {r[h:h+2]}\nv_pk_mul_f32 {b[h:h+2]}, {om[h:h+2]}, {b[h:h+2]}")
        for mm in range(2):
            b = acc.q(8 * mm + ib); a = acc.q(8 * mm + 4 + ib)
            for h in (0, 2):
                k(f"v_pk_fma_f32 {b[h:h+2]}, {g[h:h+2]}, {a[h:h+2]}, {b[h:h+2]}")
        for r in range(4):
            for mm in range(2):
                k(f"buffer_store_dword {acc.q(8*mm+ib)[r]}, {va}, {so_}, {so} offen offset:{1024*mm} {OUTF}")
            if (ib, r) != (3, 3): k(f"s_add_u32 {so}, {so}, {(1<<16) if r < 3 else (1<<20) - 3*(1<<16)}")
    mf(0)
    for ib in range(4):
        if ib < 3: mf(ib + 1)
        fin(ib)

def build(opt={}):
    O = dict(order="XWS", npre=2, sig=6, wnt=0, v2late=1, cpf=1)
    O.update(opt)
    k = Kernel(NAME + "_kernel", nv=256, na=256)
    LX = 131072; LT2 = LX + 16384; LDS = LT2 + 16384; LT1 = 114688
    k("s_cmp_ge_u32 s2, 256")
    k(f"s_cbranch_scc1 {k.name}_end")
    KP = k.s.alloc(32, 4)
    k(f"s_load_dwordx16 {KP[0:16]}, s[0:1], 0\ns_load_dwordx16 {KP[16:32]}, s[0:1], 64")
    P = {n: KP[o // 4:o // 4 + 2] for n, o in KA.items()}
    cva = code_prefetch(k, 0, 40960); cd = k.v.alloc()
    I = ids(k)
    if O['cpf']:
        k(f"s_cmp_lg_u32 {I['w']}, 0")
        with k.skip_if("s_cbranch_scc1"):
            k(f"global_load_dword {cd}, {cva}, off")
    k.v.free(cva)
    pf = Prof(k, 0)
    sx = srd(k, P['x'], SZ['x'])
    if O.get('lat'):
        nm = O['lat']; sl = srd(k, P[nm], 1 << 21); tv = k.v.alloc(2)
        k(f"v_mov_b32 {tv[0]}, s2\nv_lshlrev_b32 {tv[0]}, 13, {tv[0]}\ns_waitcnt vmcnt(0)")
        pf("l0")
        k(f"buffer_load_dword {tv[1]}, {tv[0]}, {sl}, 0 offen\ns_waitcnt vmcnt(0)")
        pf("l1")
        for q in range(1, 9): k(f"buffer_load_dword {tv[1]}, {tv[0]}, {sl}, 0 offen offset:{256*q}\ns_waitcnt vmcnt(0)")
        pf("l2")
        k.s.free(sl); k.v.free(tv)
    sf = srd(k, P['ws'], 3 * 32768, WS_F)
    sdbg = srd(k, P['dbg'], 256)
    FB, FH, FV = k.s.alloc(), k.s.alloc(), k.s.alloc()
    one = k.v.alloc(); zero = k.v.alloc(); vp = k.v.alloc(); vflag = k.v.alloc()
    k(f"""s_mov_b32 {FB}, 0
    s_mov_b32 {FH}, 32768
    s_lshl_b32 {FV}, s2, 7
    v_mov_b32 {vflag}, {FV}
    s_mov_b32 {FV}, 65536
    v_mov_b32 {one}, 1
    v_mov_b32 {zero}, 0
    v_lshlrev_b32 {vp}, 7, v0
    s_cmp_lg_u32 s2, 0""")
    with k.skip_if("s_cbranch_scc1"):
        clrB = k(f"buffer_store_dword {zero}, {vp}, {sf}, 0 offen {SC}")
    ldx = xtile_issue(k, I, sx, LX)
    sb = srd_sel(k, I, P['bre'], P['bim'], SZ['bre'])
    g1 = B1f(k, I, sx, sb, 0, 65536)
    F = gen_F(k, I)
    pf("F")
    H = {}
    def issueW():
        swr = srd(k, P['wr'], SZ['wr']); swi = srd(k, P['wi'], SZ['wi'])
        H['Wp'] = wpre_issue(k, I, swr, swi, False, "nt" if O['wnt'] else "")
        k(f"s_cmp_lg_u32 {I['slot']}, 0")
        with k.skip_if("s_cbranch_scc1"):
            H['Wp2'] = wpre_issue(k, I, swr, swi, True, "")
        k.s.free(swr, swi)
    def issueG():
        sgw = srd(k, P['gw'], SZ['gw'])
        H['Gt'] = gate_issue(k, I, sx, sgw)
        k.s.free(sgw)
    issueG()
    if O['order'] == "XWS": issueW()
    t4 = [srd(k, P[n], 2048) for n in ('lre', 'lim', 'ldt')]
    Q = ssm_param_issue(k, I, *t4); k.s.free(*t4)
    g1.prefill([0])
    if O['order'] == "XSW": issueW()
    pf("iss0")
    sv1 = srd(k, P['ws'], 256 * V1_STR, WS_V1)
    dq = [(s, i) for s in range(1, O['npre']) for i in range(8)]
    def hook1(name):
        if name == 'bar':
            k.wait(ldx); k("s_barrier"); pf("xt")
            k(f"s_or_b32 m0, {I['w']}, s2\ns_cmp_lg_u32 m0, 0")
            with k.skip_if("s_cbranch_scc1"):
                k(f"s_mov_b64 exec, 1\nbuffer_store_dword {one}, {zero}, {sdbg}, 0 offen {SC}\ns_mov_b64 exec, -1")
        elif dq: g1.dma(*dq.pop(0))
    O1 = ph1f(k, I, F, LX, sv1, hook1)
    k.v.free(F)
    while dq: g1.dma(*dq.pop(0))
    pf("ph1")
    sw = srd(k, P['ws'], 256 * 16384 + 2048, WS_W)
    sg = srd(k, P['ws'], 8192, WS_G)
    st = k.s.alloc()
    k(f"s_lshl_b32 {st}, {I['tb']}, 14")
    se = srd(k, P['ws'], 16384, WS_E, st)
    ph1_store(k, *O1, sv1)
    t = k.v.alloc(2)
    k(f"""s_lshl_b32 {st}, {I['ta']}, 10
    s_sub_u32 {st}, {30*512}, {st}
    v_lshl_add_u32 {t[0]}, v0, 2, {st}
    v_mov_b32 {t[1]}, -1
    buffer_store_dword {t[1]}, {t[0]}, {se}, 0 offen {SC}""")
    wave0_store(k, I, f"buffer_store_dword {zero}, {vflag}, {sf}, {FH} offen {SC}\nbuffer_store_dword {zero}, {vflag}, {sf}, {FV} offen {SC}")
    k.v.free(t); k.s.free(st)
    gate_compute(k, I, H['Gt'], sg, SC)
    k(f"s_cmp_lg_u32 {I['slot']}, 0")
    with k.skip_if("s_cbranch_scc1"):
        wpre_compute(k, I, H['Wp2'], sw)
    lastw = wpre_compute(k, I, H['Wp'], sw)
    pf("st")
    g1.prefill(range(O['npre'], 4))
    g1.alloc()
    sc = srd_sel(k, I, P['cre'], P['cim'], SZ['cre'])
    with k.capture() as fl1:
        Pm = ssm_param_compute(k, Q)
        CL = CLoad(k, I, sc)
        T = ph2_params(k, I)
        C2 = ph2_consts(k, I, T, 2.0 ** -20)
    p0 = Poll(k, sdbg, zero, 1, 1)
    p1 = Poll(k, sf, vp, 1, 1, FB)
    pf("pre")
    def pre_bar(s):
        if s == O['sig']: k.wait(lastw)
    def post_bar(s):
        if s == O['sig'] - 3: p0.issue()
        if s == O['sig']:
            fl1.emit_until_safe()
            p0.finish()
            wave0_store(k, I, f"buffer_store_dword {one}, {vflag}, {sf}, {FB} offen {SC}")
    def tail(s, i):
        if s == 0 and i == 0: p1.issue()
        if s < 3: CL.issue1((65536 if i >= 4 else 0) + s * 16384)
    g1.tail = tail
    def fill1(s, kk, m):
        fl1.emit(3)
        if s == 11 and kk == 3 and m == 3: fl1.flush()
        if kk == 3 and m == 0 and s % 4 == 3: pf(f"a{s}")
    acc = g1.main(fill1, pre_bar, post_bar)
    pf("main1")
    k.s.free(sx, sb, sdbg)
    E1 = scan_pass1(k, I, acc, Pm, se)
    p1.finish()
    k("s_barrier")
    pf("pass1")
    L1 = v1_issue(k, I, T, sv1, SC)
    W2 = w2_issue(k, I, T, sw)
    k.s.free(sv1, sw)
    CL.issue(49152)
    free = [CL.drain() for _ in range(6)]
    CL.issue(free.pop(0)); CL.issue(free.pop(0))
    scan_coef(k, acc, Pm)
    hstore_addr(k, I, E1)
    pf("coef")
    E = lookback(k, I, E1, se)
    pf("lb")
    sh = srd(k, P['ws'], 8 << 20, WS_H)
    lasth = pass2f(k, I, acc, Pm, E1, E, sh)
    for _ in range(3): free.append(CL.drain())
    pf("pass2")
    sv2 = srd(k, P['ws'], 256 * V2_STR, WS_V2)
    state = dict(go=False, cur=None)
    p3 = Poll(k, sf, vp, 1, 1, FH)
    def hook(name):
        if name == 'pre_bar1': k.wait(lasth)
        if name == 'post_bar1':
            wave0_store(k, I, f"buffer_store_dword {one}, {vflag}, {sf}, {FH} offen {SC}")
            pf("hflag"); state['go'] = True
        if name == 't' and state['go'] and CL.n < 64:
            for _ in range(2):
                if CL.n & 3 == 0: state['cur'] = free.pop(0)
                CL.issue1(state['cur'])
        if name == 'pre_bar2': p3.issue()
        if name == 'post_bar2':
            while CL.nd < 16: CL.drain()
    V2 = ph2f(k, I, T, C2, W2, L1, LT1, LT2, sv2, hook)
    hold = {}
    if not O['v2late']: hold['v2'] = v2_store(k, *V2, sv2)
    pf("ph2")
    g3 = B3f(k, I, sh, CL)
    p3.finish()
    k("s_waitcnt lgkmcnt(0)\ns_barrier")
    pf("sync3")
    g3.prefill(range(2))
    sd = srd(k, P['dsk'], 2048)
    Ep = epi_issue_f(k, I, sg, sd); k.s.free(sd)
    G = gen_Gf(k, I)
    g3.prefill([2])
    if O['v2late']: hold['v2'] = v2_store(k, *V2, sv2)
    g3.alloc()
    xd_init(k, I, Ep, g3.acc, LX)
    pf("pref")
    p4 = Poll(k, sf, vp, 1, 1, FV)
    def pre_bar3(s):
        if s == 3: k.wait(hold['v2'])
        if s == 12: p4.finish()
    def post_bar3(s):
        if s == 3: wave0_store(k, I, f"buffer_store_dword {one}, {vflag}, {sf}, {FV} offen {SC}")
        if s == 10: p4.issue()
    def tail3(s, i):
        if s == 0 and i == 0: hold['L'] = v2_issue(k, I, sv2, SC)
    g3.tail = tail3
    acc = g3.main(lambda s, kk, q: pf(f"b{s}") if (kk == 1 and q == 0 and s % 4 == 3) else None, pre_bar3, post_bar3)
    pf("main3")
    so = srd(k, P['out'], SZ['out'])
    final(k, I, Ep, acc, G, hold['L'], 0, 32768, so, pf)
    pf("epi")
    pf.done()
    end(k)
    return k, LDS

def write(path, opt={}):
    k, lds = build(opt)
    open(path, "w").write(module(header(), [(k.name, 256, 256, lds)], [k]))
    print(path, k.stats)
    if PROF: json.dump([k.profnames], open(path[:-2] + ".json", "w"))

if __name__ == "__main__":
    opt = {}
    for a in sys.argv[2:]:
        n, v = a.split("="); opt[n] = int(v) if v.lstrip('-').isdigit() else v
    write(sys.argv[1] if len(sys.argv) > 1 else "outf.s", opt)
```

```python
import re

class R:
    def __init__(self, kind, idx, n=1):
        self.kind, self.idx, self.n = kind, idx, n
    def __str__(self):
        if self.n == 1: return f"{self.kind}{self.idx}"
        return f"{self.kind}[{self.idx}:{self.idx+self.n-1}]"
    __repr__ = __str__
    def __format__(self, spec): return str(self)
    def __getitem__(self, i):
        if isinstance(i, slice):
            a = i.start or 0; b = self.n if i.stop is None else i.stop
            assert 0 <= a < b <= self.n, (self, i)
            return R(self.kind, self.idx + a, b - a)
        assert 0 <= i < self.n, (self, i)
        return R(self.kind, self.idx + i, 1)
    def q(self, i, w=4):
        return self[i * w:(i + 1) * w]
    def __len__(self): return self.n

class RL:
    def __init__(self, parts): self.parts = parts; self.w = parts[0].n; self.n = self.w * len(parts)
    def __getitem__(self, i):
        if isinstance(i, slice):
            a = i.start or 0; b = self.n if i.stop is None else i.stop
            if a // self.w == (b - 1) // self.w: return self.parts[a // self.w][a % self.w:(b - 1) % self.w + 1]
            assert a % self.w == 0 and b % self.w == 0
            return RL(self.parts[a // self.w:b // self.w])
        return self.parts[i // self.w][i % self.w]
    def q(self, i, w=4): return self[i * w:(i + 1) * w]
    def __len__(self): return self.n

class Pool:
    def __init__(self, kind, lo, hi):
        self.kind, self.lo, self.hi = kind, lo, hi
        self.used = [False] * hi
        self.high = lo
        self.touched = None
    def alloc(self, n=1, align=None):
        if align is None: align = 1 if n == 1 else (2 if n < 4 else 4)
        if self.kind != 's' and n >= 2: align = max(align, 2)
        i = (self.lo + align - 1) // align * align
        while i + n <= self.hi:
            if not any(self.used[i:i + n]):
                for j in range(i, i + n): self.used[j] = True
                if self.touched is not None: self.touched.update(range(i, i + n))
                self.high = max(self.high, i + n)
                return R(self.kind, i, n)
            i += align
        raise RuntimeError(f"out of {self.kind} registers (n={n}); used={sum(self.used)}")
    def allocq(self, n, w=4):
        assert n % w == 0
        return RL([self.alloc(w) for _ in range(n // w)])
    def free(self, *rs):
        for r in rs:
            if isinstance(r, RL):
                self.free(*r.parts); continue
            for j in range(r.idx, r.idx + r.n):
                if self.touched is not None: self.touched.add(j)
                assert self.used[j], f"double free {r}"
                self.used[j] = False
    def nused(self): return sum(self.used)

_REG = re.compile(r'\b([vas])(\d+)\b|\b([vas])\[(\d+):(\d+)\]|\b(vcc|exec|m0|scc)(_lo|_hi)?\b')
def regs_of(tok):
    out = set()
    for m in _REG.finditer(tok):
        if m.group(1): out.add((m.group(1), int(m.group(2))))
        elif m.group(3):
            for j in range(int(m.group(4)), int(m.group(5)) + 1): out.add((m.group(3), j))
        else: out.add((m.group(6), 0))
    return out

TRANS = ('v_exp_', 'v_log_', 'v_rcp_', 'v_rsq_', 'v_sqrt_', 'v_sin_', 'v_cos_')
def split_ops(s):
    out, depth, cur = [], 0, ''
    for ch in s:
        if ch in '[(': depth += 1
        if ch in '])': depth -= 1
        if ch == ',' and depth == 0: out.append(cur.strip()); cur = ''
        else: cur += ch
    if cur.strip(): out.append(cur.strip())
    return out

class Ins:
    __slots__ = ('text', 'mn', 'defs', 'uses', 'cls', 'label', 'target', 'passes', 'A', 'B', 'C', 'data', 'opt', 'tok', 'ws', 'uncond')
    def __init__(self, text):
        self.text = text; self.label = None; self.target = None; self.passes = 0
        self.defs = set(); self.uses = set(); self.cls = 'other'; self.A = self.B = self.C = set(); self.data = set()
        self.opt = 0; self.tok = None; self.ws = 1; self.uncond = False
        t = text.split(';')[0].strip()
        if t.endswith(':'):
            self.label = t[:-1]; self.cls = 'label'; self.mn = ''; self.ws = 0; return
        if t.startswith('.') or not t:
            self.cls = 'dir'; self.mn = ''; self.ws = 0; return
        p = t.split(None, 1)
        mn = self.mn = p[0]
        ops = split_ops(p[1]) if len(p) > 1 else []
        rs = [regs_of(o) for o in ops]
        allr = set().union(*rs) if rs else set()
        rest = set().union(*rs[1:]) if len(rs) > 1 else set()
        if mn.startswith('v_mfma'):
            self.cls = 'mfma'; self.defs = rs[0]; self.A, self.B, self.C = rs[1], rs[2], rs[3]; self.uses = rest
            self.passes = 8 if '32x32' in mn else 4
            assert 'bf16' in mn
        elif mn.startswith('v_'):
            self.cls = 'valu'
            if mn.startswith('v_cmpx'): raise RuntimeError('v_cmpx unsupported')
            if mn.startswith(('v_permlane', 'v_swap')):
                self.defs = allr; self.uses = allr
            elif mn.startswith(('v_add_co', 'v_sub_co', 'v_addc_co', 'v_subb_co', 'v_subrev_co')):
                self.defs = rs[0] | rs[1]; self.uses = set().union(*rs[2:])
            elif mn == 'v_nop': pass
            else:
                self.defs = rs[0]; self.uses = rest
                if mn.startswith(('v_fmac', 'v_pk_fmac', 'v_dot2c', 'v_writelane')) or 'dpp' in mn or ' row_' in t or 'quad_perm' in t or 'UNUSED_PRESERVE' in t:
                    self.uses = allr
        elif mn.startswith('ds_'):
            self.cls = 'ds'
            if mn.startswith(('ds_read', 'ds_bpermute', 'ds_permute', 'ds_swizzle')) or '_rtn' in mn:
                self.defs = rs[0]; self.uses = rest
            else: self.uses = allr
        elif mn.startswith(('buffer_', 'global_')):
            self.cls = 'vm'
            toks = t.split()
            if mn in ('buffer_wbl2', 'buffer_inv'): pass
            elif 'lds' in toks or '_lds_' in mn:
                self.uses = allr | {('m0', 0)}; self.cls = 'vm'; self.C = 'lds'
            elif '_load_' in mn:
                self.defs = rs[0]; self.uses = rest
                if 'd16' in mn: self.uses = allr
            elif '_store_' in mn:
                self.uses = allr
                if mn.endswith(('x3', 'x4')): self.data = rs[0] if mn.startswith('buffer') else rs[1]
            elif '_atomic_' in mn:
                self.uses = allr
                if 'sc0' in toks: self.defs = rs[0]
            else: raise RuntimeError(mn)
        elif mn.startswith(('s_load', 's_buffer_load', 's_memtime', 's_memrealtime')):
            self.cls = 'smem'; self.defs = rs[0]; self.uses = rest
        elif mn.startswith('s_'):
            self.cls = 'salu'
            if mn in ('s_branch',) or mn.startswith('s_cbranch'):
                self.cls = 'branch'; self.target = ops[0]; self.uncond = mn == 's_branch'
                if 'vcc' in mn: self.uses = {('vcc', 0)}
            elif mn == 's_endpgm': self.cls = 'branch'; self.uncond = True
            elif mn == 's_nop': self.ws = int(ops[0], 0) + 1
            elif mn in ('s_waitcnt', 's_barrier', 's_setprio', 's_sleep'): pass
            elif mn.startswith(('s_cmp', 's_bitcmp')): self.uses = allr
            elif 'saveexec' in mn: self.defs = rs[0] | {('exec', 0)}; self.uses = rest | {('exec', 0)}
            else:
                self.defs = rs[0]; self.uses = rest
                if mn.startswith(('s_addk', 's_mulk', 's_cmov', 's_bitset')): self.uses = allr
        else:
            raise RuntimeError('unknown instr ' + text)

def isv(rs): return {r for r in rs if r[0] in 'va' and len(r[0]) == 1}
def iss(rs): return {r for r in rs if r[0] in ('s', 'vcc')}

def need_ws(p, c):
    n = 0
    if p.cls == 'valu':
        dv = isv(p.defs); dsg = iss(p.defs)
        if dv:
            if c.cls == 'mfma' and dv & c.uses: n = max(n, 2)
            if c.cls == 'valu' and dv & c.uses:
                if c.mn.startswith(('v_readfirstlane', 'v_readlane')): n = max(n, 1)
                if c.mn.startswith('v_permlane') or 'dpp' in c.mn or ' row_' in c.text or 'quad_perm' in c.text: n = max(n, 2)
                if p.mn.startswith(TRANS): n = max(n, 1)
                if 'dst_sel:' in p.text and 'dst_sel:DWORD' not in p.text: n = max(n, 1)
                if p.mn.startswith('v_dot'): n = max(n, 0 if (c.mn == p.mn and not (dv & (c.uses - c.defs))) else 3)
            if p.mn.startswith('v_dot') and c.cls in ('valu', 'vm', 'ds', 'mfma') and c.mn != p.mn and dv & (c.defs | c.uses): n = max(n, 3)
            if p.mn.startswith(TRANS) and c.cls in ('vm', 'ds') and dv & c.uses: n = max(n, 1)
        if dsg:
            if c.cls == 'vm' and dsg & c.uses: n = max(n, 5)
            if c.cls == 'valu' and dsg & c.uses:
                n = max(n, 4 if c.mn.startswith(('v_readlane', 'v_writelane', 'v_div_fmas')) else 2)
            if c.cls in ('salu', 'smem', 'branch') and dsg & c.uses: n = max(n, 1)
    elif p.cls == 'mfma':
        i = 0 if p.passes == 4 else 1
        if c.cls == 'mfma':
            if p.defs & (c.A | c.B): n = max(n, (8, 12)[i])
            if p.defs & c.C and not (p.defs == c.C and p.passes == c.passes): n = max(n, (6, 10)[i])
            if p.defs & c.defs and not (p.defs == c.C and p.passes == c.passes): n = max(n, (8, 12)[i])
        elif c.cls in ('valu', 'vm', 'ds'):
            if p.defs & (c.uses | c.defs): n = max(n, (8, 12)[i])
            if c.defs & p.C: n = max(n, (3, 7)[i])
    elif p.cls == 'salu':
        if ('m0', 0) in p.defs and c.cls in ('vm', 'ds') and ('m0', 0) in c.uses: n = max(n, 1)
    elif p.cls == 'vm':
        if p.data and p.data & c.defs: n = max(n, 2)
    return n

class Kernel:
    def __init__(self, name, nv=256, na=0, sfirst=3):
        self.name = name
        self.ins = []
        self.v = Pool('v', 1, nv); self.a = Pool('a', 0, max(na, 1)); self.s = Pool('s', sfirst, 100)
        self.na = na
        self.optdepth = 0
        self.nlab = 0
    def __call__(self, text, tok=None):
        last = None
        for line in text.split('\n'):
            line = line.strip()
            if not line: continue
            i = Ins(line); i.opt = self.optdepth; i.tok = tok
            self.ins.append(i); last = i
        return last
    class _Cap:
        def __init__(s, k): s.k = k; s.groups = []
        def __enter__(s):
            s.save = s.k.ins; s.k.ins = []
            for p in (s.k.v, s.k.s, s.k.a): p.touched = set()
            return s
        def __exit__(s, *a):
            ins, s.k.ins = s.k.ins, s.save
            s.held = []
            for p in (s.k.v, s.k.s, s.k.a):
                for j in p.touched:
                    if not p.used[j]: p.used[j] = True; s.held.append((p, j))
                p.touched = None
            cur = []; execmod = False
            for j, i in enumerate(ins):
                cur.append(i)
                if ('exec', 0) in i.defs: execmod = not (i.text.replace(' ', '').startswith('s_mov_b64exec,-1'))
                nxt = ins[j + 1] if j + 1 < len(ins) else None
                hold = execmod or i.opt > s.k.optdepth or i.cls == 'wait' or (nxt is not None and (nxt.opt > s.k.optdepth or nxt.cls == 'label'))
                if nxt is not None and (nxt.mn.startswith(('s_cselect', 's_cbranch', 's_addc', 's_cmov'))): hold = True
                if ('m0', 0) in i.defs: raise RuntimeError('m0 write in captured stream: ' + i.text)
                if not hold: s.groups.append(cur); cur = []
            if cur: s.groups.append(cur)
        def emit(s, n=1):
            c = 0
            while s.groups and c < n:
                g = s.groups.pop(0); s.k.ins += g; c += len(g)
        def flush(s):
            s.emit(1 << 30)
            for p, j in s.held: p.used[j] = False
            s.held = []
        @staticmethod
        def cost(g):
            c = 0
            for i in g:
                if i.cls in ('label', 'dir', 'wait') or i.opt > 0: continue
                c += 8 if i.mn.startswith(TRANS) else (4 * i.passes if i.cls == 'mfma' else 4)
            return c
        def weave(s, acts, period, lead=0, stop=None):
            t = -lead + period
            while s.groups:
                if t >= period and acts:
                    acts.pop(0)(); t = 0
                g = s.groups.pop(0); s.k.ins += g; t += s.cost(g)
            s.flush()
        def vcc_live(s):
            for g in s.groups:
                for i in g:
                    if ('vcc', 0) in i.uses: return True
                    if ('vcc', 0) in i.defs: return False
            return False
        def emit_until_safe(s):
            while s.vcc_live(): s.emit(1)
        def left(s): return sum(len(g) for g in s.groups)
    def capture(self): return Kernel._Cap(self)
    def lab(self, base='L'):
        self.nlab += 1
        return f"{self.name}_{base}{self.nlab}"
    def wait(self, *insts):
        i = Ins('.wait'); i.cls = 'wait'; i.tok = [x for x in insts if x is not None]; i.opt = self.optdepth
        self.ins.append(i)
    def waitall(self, vm=True, lgkm=True):
        self(('s_waitcnt' + (' vmcnt(0)' if vm else '') + (' lgkmcnt(0)' if lgkm else '')))
    class _Opt:
        def __init__(s, k, br): s.k, s.br = k, br
        def __enter__(s):
            s.l = s.k.lab('skip'); s.k(f"{s.br} {s.l}"); s.k.optdepth += 1
        def __exit__(s, *a):
            s.k.optdepth -= 1; s.k(f"{s.l}:")
    def skip_if(self, br):
        return Kernel._Opt(self, br)

    def _waits(self):
        out = []
        vm, lg = [], []
        def emit(nv, nl):
            s = 's_waitcnt'
            if nv is not None: s += f' vmcnt({min(nv,63)})'
            if nl is not None: s += f' lgkmcnt({min(nl,15)})'
            out.append(Ins(s))
        def count_after(lst, k, cur):
            return sum(1 for x in lst[k + 1:] if x.opt == 0 or (x.opt <= cur.opt and x.regid == cur.regid))
        regid = 0; prevopt = 0
        class W:
            pass
        for ins in self.ins:
            if ins.opt != prevopt: regid += 1; prevopt = ins.opt
            cur = W(); cur.opt = ins.opt; cur.regid = regid; cur.ins = ins
            kv = kl = -1
            if ins.cls == 'wait':
                for t in ins.tok:
                    for k, x in enumerate(vm):
                        if x.ins is t: kv = max(kv, k)
                    for k, x in enumerate(lg):
                        if x.ins is t: kl = max(kl, k)
            else:
                touch = ins.uses | ins.defs
                for k, x in enumerate(vm):
                    if x.ins.defs & touch: kv = k
                for k, x in enumerate(lg):
                    if x.ins.defs & touch: kl = k
            nv = nl = None
            if kv >= 0:
                nv = count_after(vm, kv, cur)
            if kl >= 0:
                nl = 0 if any(x.ins.cls == 'smem' for x in lg) else count_after(lg, kl, cur)
            if nv is not None or nl is not None:
                emit(nv, nl)
                if ins.opt == 0:
                    if nv is not None: vm = vm[kv + 1:]
                    if nl is not None: lg = [] if nl == 0 and all(x.opt == 0 for x in lg) else lg[kl + 1:]
                else:
                    if nv is not None: vm = [x for k, x in enumerate(vm) if k > kv or x.regid != regid]
                    if nl is not None: lg = [x for k, x in enumerate(lg) if k > kl or x.regid != regid]
            if ins.cls == 'wait': continue
            out.append(ins)
            if ins.mn == 's_waitcnt':
                m = re.search(r'vmcnt\((\d+)\)', ins.text)
                if m and int(m.group(1)) == 0: vm = [] if ins.opt == 0 else [x for x in vm if x.regid != regid]
                m = re.search(r'lgkmcnt\((\d+)\)', ins.text)
                if m and int(m.group(1)) == 0: lg = [] if ins.opt == 0 else [x for x in lg if x.regid != regid]
            if ins.cls == 'vm': vm.append(cur)
            if ins.cls in ('ds', 'smem'): lg.append(cur)
        self.ins = out

    def _hazards(self):
        out = []
        src = self.ins
        brs = {}
        for i in src:
            if i.target: brs.setdefault(i.target, []).append(i)
        work = list(src)
        pos = {id(x): k for k, x in enumerate(work)}
        pad = [0] * len(work)
        MAXD = 13
        for k, c in enumerate(work):
            if c.cls in ('label', 'dir'): continue
            need = 0
            stack = [(k - 1, 0)]; seen = set()
            while stack:
                j, d = stack.pop()
                while j >= 0 and d < MAXD:
                    if (j, d) in seen: break
                    seen.add((j, d))
                    p = work[j]
                    if p.cls == 'label':
                        for b in brs.get(p.label, []):
                            stack.append((pos[id(b)], d))
                        if j > 0:
                            jj = j - 1
                            while jj >= 0 and work[jj].cls == 'dir': jj -= 1
                            if jj >= 0 and work[jj].uncond: break
                        j -= 1; continue
                    n = need_ws(p, c)
                    if n > d: need = max(need, n - d)
                    d += p.ws + pad[j]
                    j -= 1
            pad[k] = need
        for k, c in enumerate(work):
            if pad[k]: out.append(Ins(f's_nop {pad[k]-1}'))
            out.append(c)
        self.ins = out

    def segstats(self):
        out = []; cur = {}; skip = None
        for i in self.ins:
            if i.text.startswith('; @@'):
                out.append((i.text[5:], cur)); cur = {}; continue
            if i.cls in ('label', 'dir'):
                if skip and i.label == skip: skip = None
                continue
            if skip: continue
            if i.cls == 'branch' and i.target and '_skip' in i.target: skip = i.target
            c = 4; n = i.cls
            if i.cls == 'vm': c = 16.5
            elif i.cls == 'ds': c = 31 if 'write_b128' in i.mn else (12 if 'b128' in i.mn else 8)
            elif i.cls == 'mfma': c = 8; cur['mx'] = cur.get('mx', 0) + 4 * i.passes
            elif i.mn == 's_barrier': c = 76; n = 'bar'
            elif i.mn == 's_nop': c = 4 * i.ws; n = 'nop'
            elif i.mn == 's_waitcnt': n = 'wait'
            elif i.mn.startswith(TRANS): c = 8
            cur[n] = cur.get(n, 0) + 1; cur['clk'] = cur.get('clk', 0) + c
        for n, c in out:
            print(f"  {n:7s} clk {int(c.get('clk',0)):5d} mfma-exec {c.get('mx',0):5d} | " + " ".join(f"{x}:{c[x]}" for x in ('valu','salu','vm','ds','mfma','bar','nop','wait') if x in c))
    def finish(self):
        self._waits(); self._hazards()
        nv = self.v.high
        acc = max(4, (nv + 3) // 4 * 4)
        tot = acc + (self.a.high if self.na else 0)
        body = [f".p2align 8\n.globl {self.name}\n.type {self.name},@function\n{self.name}:"]
        for i in self.ins:
            body.append(i.text if i.cls == 'label' else '  ' + i.text)
        desc = f""".p2align 6
.amdhsa_kernel {self.name}
  .amdhsa_next_free_vgpr {tot}
  .amdhsa_next_free_sgpr 102
  .amdhsa_accum_offset {acc}
  .amdhsa_group_segment_fixed_size 0
  .amdhsa_kernarg_size 128
  .amdhsa_user_sgpr_count 2
  .amdhsa_user_sgpr_kernarg_segment_ptr 1
  .amdhsa_system_sgpr_workgroup_id_x 1
  .amdhsa_float_denorm_mode_32 3
.end_amdhsa_kernel"""
        self.stats = dict(n=len(self.ins), vgpr=nv, agpr=self.a.high if self.na else 0, sgpr=self.s.high,
                          nops=sum(1 for i in self.ins if i.mn == 's_nop'))
        return '\n'.join(body), desc

def module(header, launches, kernels, aslist=False):
    L = [header.rstrip('\n')]
    if len(launches) == 1 and not aslist:
        n, g, b, lds = launches[0]
        L.append(f"; @launch grid=({g},1,1) block=({b},1,1) lds={lds}")
    else:
        for n, g, b, lds in launches:
            L.append(f"; @launch kernel={n} grid=({g},1,1) block=({b},1,1) lds={lds}")
    L.append('.amdgcn_target "amdgcn-amd-amdhsa--gfx950"\n.text')
    descs = []
    for k in kernels:
        b, d = k.finish(); L.append(b); descs.append(d)
    L.append('.section .rodata,"a"')
    L += descs
    return '\n'.join(L) + '\n'

import struct
def f2u(x): return struct.unpack('<I', struct.pack('<f', x))[0]
def fl(x): return hex(f2u(x))
```

```python
from asmlib import *
NAME = "gated_mix__spectral_gfnet__ssm_conv_s5__prompt"
KA = dict(x=0, wr=8, wi=16, bx=24, lre=32, lim=40, bre=48, bim=56, cre=64, cim=72, ldt=80, dsk=88, gw=96, out=104, dbg=112, ws=120)
SZ = dict(x=4194304, wr=2048*513*2, wi=2048*513*2, lre=2048, lim=2048, bre=2097152, bim=2097152, cre=2097152, cim=2097152,
          ldt=2048, dsk=2048, gw=2048, out=8388608, dbg=256)
V1_STR = 16384
V2_STR = 16384
WS_V1 = 0
WS_V2 = 0x0500000
WS_H  = 0x0A00000
WS_G  = 0x1300000
WS_E  = 0x1310000
WS_F  = 0x1360000
WS_W  = 0x1400000
WS_END = 0x1900000
WS_PROF = 0x2000000
import os
PROF = int(os.environ.get("PROF", "0"))

DIAG = os.environ.get("DIAG", "")
DBGP = os.environ.get("DBGP", "")
PROFSEL = [x for x in os.environ.get("PROFSEL", "").split(",") if x]
class Prof:
    def __init__(self, k, kid):
        self.k, self.kid, self.n, self.names = k, kid, 0, []
        if DIAG or DBGP:
            self.r = k.s.alloc(2); self.t0 = k.s.alloc(); self.ta = k.s.alloc(); self.tb = k.s.alloc(); self.slots = k.v.alloc()
            k(f"s_memrealtime {self.r}\ns_mov_b32 {self.t0}, {self.r[0]}\ns_mov_b32 {self.ta}, {self.r[0]}\ns_mov_b32 {self.tb}, {self.r[0]}\nv_mov_b32 {self.slots}, 0")
            return
        if not PROF: return
        self.r = k.s.alloc(2); self.slots = k.v.alloc()
        self.ws = k.s.alloc(2)
        self.r2 = k.s.alloc(2)
        k(f"s_load_dwordx2 {self.ws}, s[0:1], {KA['ws']}\nv_mov_b32 {self.slots}, 0")
        self("start")
    def __call__(self, name):
        k = self.k
        k(f"; @@ {name}")
        if DIAG:
            a, b = DIAG.split(":")[:2]
            if name == a: k(f"s_memrealtime {self.r}\ns_mov_b32 {self.ta}, {self.r[0]}")
            if name == b: k(f"s_memrealtime {self.r}\ns_mov_b32 {self.tb}, {self.r[0]}")
            return
        if DBGP:
            l = DBGP.split(",")
            if name in l: k(f"s_memrealtime {self.r}\ns_sub_u32 {self.ta}, {self.r[0]}, {self.t0}\nv_writelane_b32 {self.slots}, {self.ta}, {l.index(name)+1}")
            return
        if not PROF: return
        if PROFSEL and name not in PROFSEL and name not in ("start", "end"): return
        k(f"s_memtime {self.r}\ns_memrealtime {self.r2}\nv_writelane_b32 {self.slots}, {self.r[0]}, {self.n}\nv_writelane_b32 {self.slots}, {self.r2[0]}, {self.n+32}")
        self.names.append(name); self.n += 1
        assert self.n <= 32
    def done(self):
        k = self.k
        if DIAG:
            k("s_waitcnt vmcnt(0)"); self("end")
            sc, base = DIAG.split(":")[2:4]
            lp = k.lab('dg')
            if os.environ.get("DIAGWG"): k(f"s_cmp_lg_u32 s2, {os.environ['DIAGWG']}\ns_cbranch_scc1 {k.name}_end")
            k(f"""s_sub_u32 {self.tb}, {self.tb}, {self.ta}
            s_mul_i32 {self.tb}, {self.tb}, {sc}
            s_add_u32 {self.tb}, {self.tb}, {int(base)*100}
            s_min_u32 {self.tb}, {self.tb}, 100000
            {lp}:
            s_memrealtime {self.r}
            s_sub_u32 {self.ta}, {self.r[0]}, {self.t0}
            s_cmp_lt_u32 {self.ta}, {self.tb}
            s_cbranch_scc1 {lp}""")
            return
        if DBGP:
            k("s_waitcnt vmcnt(0)"); self("end")
            p = k.s.alloc(2); k(f"s_load_dwordx2 {p}, s[0:1], {KA['dbg']}")
            s = srd(k, p, 64); va = k.v.alloc()
            k(f"v_lshlrev_b32 {va}, 2, v0\ns_cmp_lg_u32 s2, {os.environ.get('DBGWG', '37')}")
            with k.skip_if("s_cbranch_scc1"):
                k(f"s_mov_b64 exec, -2\nbuffer_store_dword {self.slots}, {va}, {s}, 0 offen")
            return
        if not PROF: return
        k("s_waitcnt vmcnt(0)")
        self("end")
        s = srd(k, self.ws, 262144, WS_PROF + self.kid * 262144)
        va = k.v.alloc(); t = k.v.alloc(); so = k.s.alloc()
        k(f"""v_lshlrev_b32 {va}, 2, v0
        s_lshl_b32 {so}, s2, 10
        buffer_store_dword {self.slots}, {va}, {s}, {so} offen""")
        k.profnames = self.names

def prologue(k, names):
    k("s_cmp_ge_u32 s2, 256")
    k(f"s_cbranch_scc1 {k.name}_end")
    P = {}
    for n in names:
        P[n] = k.s.alloc(2)
        k(f"s_load_dwordx2 {P[n]}, s[0:1], {KA[n]}")
    return P

def srd(k, ptr, size, off=0, soff=None):
    r = k.s.alloc(4)
    if off or soff is not None:
        if off and soff is not None:
            k(f"s_add_u32 {r[2]}, {soff}, {off}")
            k(f"s_add_u32 {r[0]}, {ptr[0]}, {r[2]}")
        else:
            k(f"s_add_u32 {r[0]}, {ptr[0]}, {off if off else soff}")
        k(f"s_addc_u32 {r[1]}, {ptr[1]}, 0")
    else:
        k(f"s_mov_b32 {r[0]}, {ptr[0]}\ns_mov_b32 {r[1]}, {ptr[1]}")
    k(f"s_mov_b32 {r[2]}, {size}\ns_mov_b32 {r[3]}, 0x20000")
    return r

def ids(k, map8=0):
    I = {}
    t = k.v.alloc()
    I['w'] = k.s.alloc()
    k(f"v_lshrrev_b32 {t}, 6, v0\nv_readfirstlane_b32 {I['w']}, {t}")
    k.v.free(t)
    I['l'] = k.v.alloc(); I['n'] = k.v.alloc(); I['g'] = k.v.alloc()
    k(f"v_and_b32 {I['l']}, 63, v0\nv_and_b32 {I['n']}, 15, v0\nv_bfe_u32 {I['g']}, v0, 4, 2")
    xcd, idx = k.s.alloc(), k.s.alloc()
    I['ta'], I['tb'] = k.s.alloc(), k.s.alloc()
    I['slot'], I['k1p'] = k.s.alloc(), k.s.alloc()
    k(f"""s_and_b32 {xcd}, s2, 7
    s_lshr_b32 {idx}, s2, 3
    s_and_b32 {I['k1p']}, {idx}, 3
    s_lshr_b32 {idx}, {idx}, 2
    s_lshl_b32 {I['slot']}, {xcd}, 3
    s_add_u32 {I['slot']}, {I['slot']}, {idx}
    s_and_b32 {I['ta']}, {xcd}, 3
    s_lshl_b32 {I['ta']}, {I['ta']}, 2
    s_add_u32 {I['ta']}, {I['ta']}, {I['k1p']}
    s_lshr_b32 {I['tb']}, {xcd}, 2
    s_lshl_b32 {I['tb']}, {I['tb']}, 3
    s_add_u32 {I['tb']}, {I['tb']}, {idx}""")
    I['ca'], I['cb'] = I['ta'], I['tb']
    if map8:
        I['ta'], I['tb'] = k.s.alloc(), k.s.alloc()
        k(f"""s_and_b32 {I['ta']}, {xcd}, 1
        s_lshl_b32 {I['ta']}, {I['ta']}, 3
        s_add_u32 {I['ta']}, {I['ta']}, {idx}
        s_lshr_b32 {I['tb']}, {xcd}, 1
        s_lshl_b32 {I['tb']}, {I['tb']}, 2
        s_add_u32 {I['tb']}, {I['tb']}, {I['k1p']}""")
    k.s.free(xcd, idx)
    return I

def end(k):
    k(f"{k.name}_end:\ns_endpgm")

def H_POS(iq, kc):
    if os.environ.get("HOLD"): return (((kc >> 2) ^ ((iq & 1) | ((iq & 2) << 1))) << 2) | (kc & 3)
    return (kc >> 5) * 32 + (((kc & 15) ^ ((iq & 3) << 2)) << 1) + ((kc >> 4) & 1)

def srd_sel(k, I, p0, p1, size):
    r = k.s.alloc(4)
    k(f"""s_bitcmp1_b32 {I['w']}, 0
    s_cselect_b32 {r[0]}, {p1[0]}, {p0[0]}
    s_cselect_b32 {r[1]}, {p1[1]}, {p0[1]}
    s_mov_b32 {r[2]}, {size}
    s_mov_b32 {r[3]}, 0x20000""")
    return r
def header():
    return "".join(l for l in open(os.path.join(os.path.dirname(os.path.abspath(__file__)), '..', NAME + '.s.ref')) if l.startswith(';') and '@launch' not in l and 'Override' not in l and 'grid=ceil' not in l)
```

```python
from common import *

def xtile_issue(k, I, sx, lds_off):
    va = k.v.alloc(); t = k.v.alloc(); so = k.s.alloc()
    k(f"""v_bfe_u32 {t}, {I['l']}, 1, 2
    v_xor_b32 {t}, {t}, {I['g']}
    v_lshlrev_b32 {va}, 9, {t}
    v_and_b32 {t}, 1, {I['l']}
    v_lshl_or_b32 {va}, {t}, 4, {va}
    v_lshrrev_b32 {t}, 3, {I['l']}
    v_lshl_or_b32 {va}, {t}, 15, {va}
    s_lshl_b32 {so}, {I['ta']}, 11
    s_lshl_b32 m0, {I['tb']}, 5
    s_add_u32 {so}, {so}, m0
    s_lshl_b32 m0, {I['w']}, 20
    s_add_u32 {so}, {so}, m0
    s_lshl_b32 m0, {I['w']}, 12
    s_add_u32 m0, m0, {lds_off}""")
    last = None
    for j in range(4):
        last = k(f"buffer_load_dwordx4 {va}, {sx}, {so} offen offset:{1024*j} lds")
        if j < 3: k(f"s_add_u32 {so}, {so}, {8*32768 - 1024}")
    k.v.free(va, t); k.s.free(so)
    return last

def gen_F(k, I):
    F = k.v.allocq(32)
    fr, fi, oi, ib, a0, a1 = [k.v.alloc() for _ in range(6)]
    st = k.s.alloc()
    k(f"""s_lshl_b32 {st}, {I['w']}, 4
    v_add_u32 {a0}, {st}, {I['n']}
    v_cvt_f32_u32 {fr}, {a0}
    v_mul_f32 {fr}, {fl(1/128)}, {fr}
    v_cmp_eq_u32 vcc, 0, {a0}
    v_cndmask_b32 {fi}, {fr}, 0.5, vcc
    v_mov_b32 {oi}, {fl(0.25)}
    v_cndmask_b32 {oi}, {oi}, 0, vcc
    v_lshrrev_b32 {a0}, 1, {I['g']}
    v_lshlrev_b32 {a0}, 4, {a0}
    v_and_b32 {a1}, 1, {I['g']}
    v_lshl_add_u32 {a0}, {a1}, 2, {a0}
    v_cvt_f32_u32 {ib}, {a0}
    v_fma_f32 {oi}, {ib}, {fi}, {oi}
    v_mul_f32 {ib}, {ib}, {fr}""")
    for c in range(2):
        f, o = (fr, ib) if c == 0 else (fi, oi)
        for kap in range(4):
            for d in range(4):
                i0 = 32 * kap + 8 * (d >> 1) + 2 * (d & 1)
                k(f"""v_fmamk_f32 {a0}, {f}, {fl(float(i0))}, {o}
                v_fmamk_f32 {a1}, {f}, {fl(float(i0+1))}, {o}
                v_cos_f32 {a0}, {a0}
                v_cos_f32 {a1}, {a1}
                v_cvt_pk_bf16_f32 {F[16*c+4*kap+d]}, {a0}, {a1}""")
    k.v.free(fr, fi, oi, ib, a0, a1); k.s.free(st)
    return F

def pk(k, op, d, a, b, neg=False):
    k(f"v_pk_add_f32 {d}, {a}, {b}" + (" neg_lo:[0,1] neg_hi:[0,1]" if op == '-' else ""))

def ph1_compute(k, I, F, lds_off, sv1, flags=""):
    ad = k.v.alloc(4); t = k.v.alloc(); t2 = k.v.alloc()
    k(f"""v_bfe_u32 {t}, {I['l']}, 2, 3
    v_lshrrev_b32 {t2}, 5, {I['l']}
    v_lshl_or_b32 {t}, {t2}, 4, {t}
    v_lshlrev_b32 {t}, 7, {t}
    v_and_b32 {t2}, 3, {I['l']}
    v_lshl_or_b32 {t}, {t2}, 3, {t}
    v_add_u32 {t}, {lds_off}, {t}
    v_bfe_u32 {t2}, {I['l']}, 3, 2""")
    for m in range(4):
        k(f"v_xor_b32 {ad[m]}, {m}, {t2}\nv_lshl_add_u32 {ad[m]}, {ad[m]}, 5, {t}")
    acc = k.v.allocq(32)
    fr = k.v.allocq(64)
    for m in range(4):
        for kap in range(4):
            for h in range(2):
                k(f"ds_read_b64_tr_b16 {fr[16*m+4*kap+2*h:16*m+4*kap+2*h+2]}, {ad[m]} offset:{kap*4096+h*1024}")
    for m in range(4):
        for kap in range(4):
            for c in range(2):
                d = acc.q(2 * m + c)
                k(f"v_mfma_f32_16x16x32_bf16 {d}, {fr.q(4*m+kap)}, {F.q(4*c+kap)}, {d if kap else 0}")
    A = lambda c: fr.q(0 + c); B = lambda c: fr.q(2 + c); C = lambda c: fr.q(4 + c); Dd = lambda c: fr.q(6 + c)
    z = lambda m, c: acc.q(2 * m + c)
    for c in range(2):
        for h in (0, 2):
            s = slice(h, h + 2)
            pk(k, '+', A(c)[s], z(0, c)[s], z(2, c)[s]); pk(k, '-', C(c)[s], z(0, c)[s], z(2, c)[s])
            pk(k, '+', B(c)[s], z(1, c)[s], z(3, c)[s]); pk(k, '-', Dd(c)[s], z(1, c)[s], z(3, c)[s])
    for h in (0, 2):
        s = slice(h, h + 2)
        for c in range(2):
            pk(k, '+', z(0, c)[s], A(c)[s], B(c)[s]); pk(k, '-', z(2, c)[s], A(c)[s], B(c)[s])
        pk(k, '+', z(1, 0)[s], C(0)[s], Dd(1)[s]); pk(k, '-', z(1, 1)[s], C(1)[s], Dd(0)[s])
        pk(k, '-', z(3, 0)[s], C(0)[s], Dd(1)[s]); pk(k, '+', z(3, 1)[s], C(1)[s], Dd(0)[s])
    k(f"s_cmp_lg_u32 {I['w']}, 0")
    with k.skip_if("s_cbranch_scc1"):
        k("s_mov_b32 exec_lo, 0x00010001\ns_mov_b32 exec_hi, 0x00010001")
        for r in range(4):
            k(f"""v_mov_b32 {z(1,0)[r]}, {C(0)[r]}
            v_sub_f32 {z(1,1)[r]}, 0, {Dd(0)[r]}
            v_mov_b32 {z(3,0)[r]}, {C(1)[r]}
            v_sub_f32 {z(3,1)[r]}, 0, {Dd(1)[r]}""")
        k("s_mov_b64 exec, -1")
    so = k.s.alloc(); s2_ = k.s.alloc()
    k(f"""s_mov_b32 {so}, {4*V1_STR}
    v_mul_lo_u32 {t}, {I['n']}, {so}
    v_lshl_add_u32 {t}, {I['g']}, 4, {t}
    s_mul_i32 {so}, {I['w']}, {64*V1_STR}
    s_lshl_b32 {s2_}, {I['ta']}, 10
    s_add_u32 {so}, {so}, {s2_}
    s_lshl_b32 {s2_}, {I['tb']}, 6
    s_add_u32 {so}, {so}, {s2_}""")
    last = None
    for kp in range(4):
        o = fr.q(8 + kp)
        for r in range(4):
            k(f"v_cvt_pk_bf16_f32 {o[r]}, {z(kp,0)[r]}, {z(kp,1)[r]}")
        last = k(f"buffer_store_dwordx4 {o}, {t}, {sv1}, {so} offen {flags}")
        if kp < 3: k(f"s_add_u32 {so}, {so}, {V1_STR}")
    k.v.free(ad, t, t2, acc, fr); k.s.free(so, s2_)
    return last

def gate_issue(k, I, sx, sgw):
    G = dict(x=k.v.allocq(16), w=k.v.allocq(8))
    va = k.v.alloc(); so = k.s.alloc(); s2_ = k.s.alloc()
    k(f"""v_lshlrev_b32 {va}, 4, {I['l']}
    s_lshl_b32 {so}, {I.get('gid', 's2')}, 14
    s_lshl_b32 {s2_}, {I['w']}, 12
    s_add_u32 {so}, {so}, {s2_}""")
    for j in range(4):
        k(f"buffer_load_dwordx4 {G['x'].q(j)}, {va}, {sx}, {so} offen offset:{1024*j}")
    for j in range(2):
        k(f"buffer_load_dwordx4 {G['w'].q(j)}, {va}, {sgw}, 0 offen offset:{1024*j}")
    k.v.free(va); k.s.free(so, s2_)
    return G

def gate_compute(k, I, G, sg, flags=""):
    a = k.v.alloc(2); t = k.v.alloc(2)
    k(f"v_mov_b32 {a[0]}, 0\nv_mov_b32 {a[1]}, 0")
    for j in range(8):
        for r in range(2):
            k(f"v_dot2c_f32_bf16 {a[r]}, {G['x'][8*r+j]}, {G['w'][j]}")
    k(f"""v_permlane32_swap_b32 {a[0]}, {a[1]}
    v_add_f32 {a[0]}, {a[0]}, {a[1]}
    v_mov_b32 {a[1]}, {a[0]}
    v_permlane16_swap_b32 {a[0]}, {a[1]}
    v_add_f32 {a[0]}, {a[0]}, {a[1]}""")
    for sh in (8, 4, 2, 1):
        k(f"v_add_f32 {a[0]}, {a[0]}, {a[0]} row_ror:{sh} row_mask:0xf bank_mask:0xf")
    k(f"""v_cvt_pk_bf16_f32 {a[0]}, {a[0]}, {a[0]}
    v_and_b32 {a[0]}, 0xffff0000, {a[0]}
    v_mul_f32 {a[0]}, {fl(-1.4426950408889634)}, {a[0]}
    v_exp_f32 {a[0]}, {a[0]}
    v_add_f32 {a[0]}, 1.0, {a[0]}
    v_rcp_f32 {a[0]}, {a[0]}
    v_cvt_pk_bf16_f32 {a[0]}, {a[0]}, {a[0]}
    v_and_b32 {a[0]}, 0xffff0000, {a[0]}""")
    so = k.s.alloc(); s2_ = k.s.alloc()
    k(f"""s_and_b32 {so}, {I.get('gid', 's2')}, 1
    s_lshl_b32 {so}, {so}, 2
    s_add_u32 {so}, {so}, {I['w']}
    s_lshl_b32 {so}, {so}, 10
    s_lshr_b32 {s2_}, {I.get('gid', 's2')}, 1
    s_lshl_b32 {s2_}, {s2_}, 2
    s_add_u32 {so}, {so}, {s2_}
    v_lshrrev_b32 {t[0]}, 5, {I['l']}
    v_lshlrev_b32 {t[0]}, 9, {t[0]}
    s_mov_b32 exec_lo, 1
    s_mov_b32 exec_hi, 1""")
    last = k(f"buffer_store_dword {a[0]}, {t[0]}, {sg}, {so} offen {flags}")
    k("s_mov_b64 exec, -1")
    k.v.free(a, t, G['x'], G['w']); k.s.free(so, s2_)
    return last

def frag_pair(k, f, base, ks, inv, tmp):
    Fr = k.v.allocq(8); a = k.v.alloc(4); c = k.v.alloc(4)
    for j in range(4): k(f"v_fmamk_f32 {a[j]}, {f}, {fl(float(ks[j]))}, {base}")
    for j in range(4): k(f"v_cos_f32 {c[j]}, {a[j]}")
    for j in range(4): k(f"v_sin_f32 {a[j]}, {a[j]}")
    for j in range(4):
        if not inv: k(f"v_cvt_pk_bf16_f32 {Fr[j]}, {c[j]}, {a[j]}\nv_cvt_pk_bf16_f32 {Fr[4+j]}, -{a[j]}, {c[j]}")
        else: k(f"v_cvt_pk_bf16_f32 {Fr[j]}, {c[j]}, -{a[j]}\nv_cvt_pk_bf16_f32 {Fr[4+j]}, {a[j]}, {c[j]}")
    k.v.free(a, c)
    return Fr

def ph2_params(k, I):
    T = dict(k1=k.s.alloc(), ks=k.s.alloc(), sp=k.s.alloc(), tau=k.s.alloc())
    k(f"""s_lshl_b32 {T['tau']}, {I['slot']}, 2
    s_add_u32 {T['tau']}, {T['tau']}, {I['k1p']}
    s_cmp_eq_u32 {T['tau']}, 3
    s_cselect_b32 {T['k1']}, 1, {I['k1p']}
    s_cselect_b32 {T['ks']}, 64, {I['slot']}
    s_and_b32 {T['sp']}, {T['tau']}, 0xfd
    s_cmp_eq_u32 {T['sp']}, 0
    s_cselect_b32 {T['sp']}, 1, 0""")
    return T

def ph2_consts(k, I, T, scale=None):
    C = {}
    tmp = [k.v.alloc() for _ in range(3)]
    nf, g4, f, b, t = [k.v.alloc() for _ in range(5)]
    k1f, ksf = k.v.alloc(), k.v.alloc()
    k(f"""v_cvt_f32_u32 {nf}, {I['n']}
    v_cvt_f32_u32 {g4}, {I['g']}
    v_mul_f32 {g4}, 4.0, {g4}
    v_cvt_f32_u32 {k1f}, {T['k1']}
    v_cvt_f32_u32 {ksf}, {T['ks']}""")
    J = [0, 1, 2, 3]
    spm = k.v.alloc()
    k(f"""v_cvt_f32_u32 {spm}, {T['sp']}
    v_mul_f32 {spm}, {fl(-960.0)}, {spm}
    v_cmp_lt_u32 vcc, 7, {I['n']}
    v_cndmask_b32 {t}, 0, {spm}, vcc
    v_add_f32 {t}, {t}, {ksf}
    v_fmamk_f32 {f}, {nf}, {fl(128.0)}, {t}
    v_mul_f32 {f}, {fl(1/2048)}, {f}
    v_mul_f32 {b}, {f}, {g4}""")
    C['sf'] = frag_pair(k, f, b, J, False, tmp)
    k(f"""v_cmp_lt_u32 vcc, 1, {I['g']}
    v_cndmask_b32 {t}, 0, {spm}, vcc
    v_add_f32 {t}, {t}, {ksf}
    v_fmamk_f32 {t}, {g4}, {fl(128.0)}, {t}
    v_mul_f32 {b}, {t}, {nf}
    v_mul_f32 {b}, {fl(1/2048)}, {b}
    v_mul_f32 {f}, {fl(1/16)}, {nf}""")
    C['si'] = frag_pair(k, f, b, J, True, tmp)
    k(f"s_cmp_eq_u32 {T['sp']}, 0")
    with k.skip_if("s_cbranch_scc1"):
        a, c, s = tmp
        k(f"v_cmp_lt_u32 vcc, 7, {I['n']}\nv_cndmask_b32 {a}, 0, 16, vcc")
        for j in range(8):
            k(f"v_and_b32 {C['sf'][j]}, 0xffff, {C['sf'][j]}\nv_lshlrev_b32 {C['sf'][j]}, {a}, {C['sf'][j]}")
        k(f"v_cmp_eq_u32 vcc, 0, {I['n']}")
        for j in range(4):
            k(f"v_mov_b32 {c}, {hex(0x3f80 if j % 2 == 0 else 0xbf80)}\nv_cndmask_b32 {C['sf'][4+j]}, {C['sf'][4+j]}, {c}, vcc")
        k(f"v_cmp_lt_u32 vcc, 1, {I['g']}")
        for j in range(4):
            k(f"""v_lshlrev_b32 {c}, 16, {C['si'][j]}
            v_and_b32 {s}, 0xffff0000, {C['si'][j]}
            v_add_f32 {c}, {c}, {c}
            v_add_f32 {s}, {s}, {s}
            v_cvt_pk_bf16_f32 {c}, {c}, {s}
            v_cndmask_b32 {C['si'][j]}, {c}, 0, vcc
            v_cndmask_b32 {C['si'][4+j]}, 0, {c}, vcc""")
        k(f"""v_lshlrev_b32 {c}, 31, {I['n']}
        v_or_b32 {c}, 0x3f803f80, {c}
        v_cmp_eq_u32 vcc, 0, {I['g']}
        v_cndmask_b32 {C['si'][0]}, {C['si'][0]}, {c}, vcc""")
    k.v.free(spm, ksf)
    k(f"""v_fma_f32 {t}, {nf}, 4.0, {k1f}
    v_mul_f32 {f}, {fl(1/64)}, {t}
    v_mul_f32 {b}, {f}, {g4}""")
    C['m1f'] = frag_pair(k, f, b, J, False, tmp)
    def tw(f, b):
        W = k.v.allocq(8)
        for r in range(4):
            k(f"v_fmamk_f32 {tmp[0]}, {f}, {fl(float(r))}, {b}\nv_cos_f32 {W[r]}, {tmp[0]}\nv_sin_f32 {W[4+r]}, {tmp[0]}")
        return W
    k(f"v_mul_f32 {f}, {fl(1/16)}, {f}\nv_mul_f32 {b}, {fl(1/16)}, {b}")
    C['twf'] = tw(f, b)
    k(f"""v_fma_f32 {t}, {g4}, 4.0, {k1f}
    v_mul_f32 {b}, {t}, {nf}
    v_mul_f32 {b}, {fl(1/64)}, {b}
    v_mul_f32 {f}, {fl(1/16)}, {nf}""")
    C['m1i'] = frag_pair(k, f, b, J, True, tmp)
    k(f"v_mul_f32 {f}, {fl(1/16)}, {f}\nv_mul_f32 {b}, {fl(1/16)}, {b}")
    C['twi'] = tw(f, b)
    if scale:
        for j in range(8): k(f"v_mul_f32 {C['twi'][j]}, {fl(scale)}, {C['twi'][j]}")
    k(f"""v_xor_b32 {t}, 3, {I['n']}
    v_cmp_lt_u32 vcc, 7, {I['n']}
    v_cndmask_b32 {t}, {I['n']}, {t}, vcc
    v_cvt_f32_u32 {f}, {t}
    v_mul_f32 {f}, {fl(1/16)}, {f}
    v_mul_f32 {b}, {f}, {g4}""")
    C['m2f'] = frag_pair(k, f, b, J, False, tmp)
    k(f"""v_mul_f32 {f}, {fl(1/16)}, {nf}
    v_add_f32 {t}, {fl(3.0)}, {g4}
    v_cmp_lt_u32 vcc, 1, {I['g']}
    v_cndmask_b32 {t}, {g4}, {t}, vcc
    v_mul_f32 {b}, {f}, {t}
    v_cndmask_b32 {f}, {f}, -{f}, vcc""")
    C['m2i'] = frag_pair(k, f, b, J, True, tmp)
    k.v.free(nf, g4, f, b, t, k1f, *tmp)
    return C

def w_issue(k, I, T, swr, swi):
    W = dict(r=k.v.allocq(20), i=k.v.allocq(20), ar=k.v.alloc(5), ai=k.v.alloc(5))
    col = k.v.alloc(); t = k.v.alloc(); ad = k.v.alloc(); r0, r1, st = k.s.alloc(), k.s.alloc(), k.s.alloc()
    up = k.s.alloc(2)
    k(f"""v_lshlrev_b32 {col}, 8, {I['g']}
    v_lshl_add_u32 {col}, {I['n']}, 2, {col}
    v_add_u32 {col}, {T['k1']}, {col}
    v_sub_u32 {t}, 832, {col}
    v_cmp_lt_u32 {up}, 1, {I['g']}
    v_cndmask_b32 {col}, {col}, {t}, {up}
    v_lshlrev_b32 {col}, 1, {col}""")
    for j in range(20): k(f"v_mov_b32 {W['r'][j]}, 0\nv_mov_b32 {W['i'][j]}, 0")
    for j in range(5): k(f"v_mov_b32 {W['ar'][j]}, 0\nv_mov_b32 {W['ai'][j]}, 0")
    def rows(b):
        if b < 4:
            k(f"""s_lshl_b32 {r0}, {I['w']}, 9
            s_add_u32 {r0}, {r0}, {T['ks']}
            s_add_u32 {r0}, {r0}, {128*b}
            s_lshr_b32 {st}, {I['w']}, 1
            s_and_b32 {st}, {st}, {T['sp']}
            s_mul_i32 {st}, {st}, 960
            s_sub_u32 {r0}, {r0}, {st}""")
        else: k(f"s_mov_b32 {r0}, 1024")
        k(f"""s_sub_u32 {r1}, 2048, {r0}
        s_and_b32 {r1}, {r1}, 2047
        s_mul_i32 {r0}, {r0}, 1026
        s_mul_i32 {r1}, {r1}, 1026""")
    def loads(b):
        rows(b)
        k(f"v_mov_b32 {t}, {r0}\nv_mov_b32 {ad}, {r1}\nv_cndmask_b32 {ad}, {t}, {ad}, {up}\nv_add_u32 {ad}, {ad}, {col}")
        for r in range(4):
            k(f"buffer_load_short_d16_hi {W['r'][4*b+r]}, {ad}, {swr}, 0 offen offset:{128*r}")
            k(f"buffer_load_short_d16_hi {W['i'][4*b+r]}, {ad}, {swi}, 0 offen offset:{128*r}")
    def alt(b):
        rows(b)
        k(f"""v_mov_b32 {t}, {r1}
        v_mov_b32 {ad}, {r0}
        v_add_u32 {ad}, 1024, {ad}
        v_cndmask_b32 {ad}, {t}, {ad}, {up}
        buffer_load_short_d16_hi {W['ar'][b]}, {ad}, {swr}, 0 offen
        buffer_load_short_d16_hi {W['ai'][b]}, {ad}, {swi}, 0 offen""")
    for b in range(4): loads(b)
    k(f"s_cmp_lg_u32 {T['k1']}, 0")
    with k.skip_if("s_cbranch_scc1"):
        for b in range(5): alt(b)
    k(f"s_cmp_eq_u32 {T['sp']}, 0")
    with k.skip_if("s_cbranch_scc1"):
        loads(4)
    W['up'] = up
    k.v.free(col, t, ad); k.s.free(r0, r1, st)
    return W

def w_fix(k, I, T, W):
    k(f"s_cmp_lg_u32 {T['k1']}, 0")
    with k.skip_if("s_cbranch_scc1"):
        for lo, r in ((True, 0), (False, 3)):
            k(f"s_mov_b32 exec_lo, {1 if lo else 0}\ns_mov_b32 exec_hi, {0 if lo else 1}")
            for b in range(5):
                x, y = W['r'][4*b+r], W['i'][4*b+r]
                k(f"""v_add_f32 {x}, {x}, {W['ar'][b]}
                v_mul_f32 {x}, 0.5, {x}
                v_sub_f32 {y}, {y}, {W['ai'][b]}
                v_mul_f32 {y}, 0.5, {y}""")
        k("s_mov_b64 exec, -1")
    k("s_mov_b32 exec_lo, 0")
    for j in range(20): k(f"v_xor_b32 {W['i'][j]}, 0x80000000, {W['i'][j]}")
    k("s_mov_b64 exec, -1")
    k.v.free(W['ar'], W['ai']); k.s.free(W['up'])

def cmul_pack(k, zr, zi, wr, wi, conj, out, tmp):
    for h in (0, 2):
        s = slice(h, h + 2)
        tr, ti = tmp[0:2], tmp[2:4]
        n_ = " neg_lo:[0,1,0] neg_hi:[0,1,0]"
        k(f"v_pk_mul_f32 {tr}, {zr[s]}, {wr[s]}\nv_pk_mul_f32 {ti}, {zi[s]}, {wr[s]}")
        k(f"v_pk_fma_f32 {tr}, {zi[s]}, {wi[s]}, {tr}" + ("" if conj else n_))
        k(f"v_pk_fma_f32 {ti}, {zr[s]}, {wi[s]}, {ti}" + (n_ if conj else ""))
        k(f"v_cvt_pk_bf16_f32 {out[h]}, {tr[0]}, {ti[0]}\nv_cvt_pk_bf16_f32 {out[h+1]}, {tr[1]}, {ti[1]}")

def v1_issue(k, I, T, sv1, flags=""):
    L = k.v.allocq(16); va = k.v.alloc(); t = k.v.alloc(); so = k.s.alloc(); s2_ = k.s.alloc()
    k(f"""v_and_b32 {t}, 3, {I['n']}
    v_lshlrev_b32 {va}, 6, {t}
    v_lshrrev_b32 {t}, 2, {I['n']}
    v_lshl_or_b32 {va}, {t}, 4, {va}
    v_lshl_or_b32 {va}, {I['g']}, 12, {va}
    s_mul_i32 {so}, {T['tau']}, {V1_STR}
    s_lshl_b32 {s2_}, {I['w']}, 8
    s_add_u32 {so}, {so}, {s2_}""")
    for j in range(4):
        k(f"buffer_load_dwordx4 {L.q(j)}, {va}, {sv1}, {so} offen offset:{1024*j} {flags}")
    k.v.free(va, t); k.s.free(so, s2_)
    return L

T1_STR = 1040
def ph2_compute(k, I, T, C, W, L, lds1, lds2, sv2, flags=""):
    D = k.v.allocq(16)
    acc = k.v.allocq(32)
    tmp = k.v.alloc(4); ad = k.v.alloc(); st = k.s.alloc()
    z = lambda b, c: acc.q(2 * b + c)
    def stage(M, data_is_A, blocks=range(4), src=None, dst=None):
        for b in blocks:
            for c in range(2):
                d = (src or D).q(b); o = (dst or acc).q(2 * b + c)
                A, B = (d, M.q(c)) if data_is_A else (M.q(c), d)
                k(f"v_mfma_f32_16x16x32_bf16 {o}, {A}, {B}, 0")
    for b in range(4):
        for j in range(4): k(f"v_mov_b32 {D[4*b+j]}, {L[4*j+b]}")
    k.v.free(L)
    stage(C['sf'], True)
    k(f"""s_mov_b32 {st}, {T1_STR}
    v_mul_lo_u32 {ad}, {I['n']}, {st}
    v_lshl_add_u32 {ad}, {I['g']}, 6, {ad}
    s_lshl_b32 {st}, {I['w']}, 8
    s_add_u32 {st}, {st}, {lds1}
    v_add_u32 {ad}, {st}, {ad}""")
    for b in range(4):
        for r in range(4): k(f"v_cvt_pk_bf16_f32 {D[4*b+r]}, {z(b,0)[r]}, {z(b,1)[r]}")
        k(f"ds_write_b128 {ad}, {D.q(b)} offset:{16*b}")
    k(f"""s_mul_i32 {st}, {I['w']}, {4*T1_STR}
    s_add_u32 {st}, {st}, {lds1}
    v_lshl_add_u32 {ad}, {I['l']}, 4, {st}
    s_waitcnt lgkmcnt(0)
    s_barrier""")
    for b in range(4): k(f"ds_read_b128 {D.q(b)}, {ad} offset:{T1_STR*b}")
    stage(C['m1f'], True)
    for b in range(4): cmul_pack(k, z(b, 0), z(b, 1), C['twf'].q(0), C['twf'].q(1), True, D.q(b), tmp)
    stage(C['m2f'], False)
    w_fix(k, I, T, W)
    for b in range(4): cmul_pack(k, z(b, 0), z(b, 1), W['r'].q(b), W['i'].q(b), False, D.q(b), tmp)
    X = W['r'][0:8]; Xd = W['i'][0:4]
    k(f"s_cmp_eq_u32 {T['sp']}, 0")
    with k.skip_if("s_cbranch_scc1"):
        cmul_pack(k, z(0, 0), z(0, 1), W['r'].q(4), W['i'].q(4), False, Xd, tmp)
        stage(C['m2i'], True, [0], Xd, X)
        cmul_pack(k, X.q(0), X.q(1), C['twi'].q(0), C['twi'].q(1), False, Xd, tmp)
        stage(C['m1i'], False, [0], Xd, X)
    stage(C['m2i'], True)
    for b in range(4): cmul_pack(k, z(b, 0), z(b, 1), C['twi'].q(0), C['twi'].q(1), False, D.q(b), tmp)
    stage(C['m1i'], False)
    k(f"s_sub_u32 {st}, {T['sp']}, 1\ns_or_b32 {st}, {st}, {I['w']}\ns_cmp_lg_u32 {st}, 0")
    with k.skip_if("s_cbranch_scc1"):
        for r in range(4): k(f"v_mov_b32 {z(0,1)[r]}, {X[4+r]}")
    k(f"""v_lshlrev_b32 {ad}, 12, {I['g']}
    v_lshl_add_u32 {ad}, {I['n']}, 4, {ad}
    s_lshl_b32 {st}, {I['w']}, 8
    s_add_u32 {st}, {st}, {lds2}
    v_add_u32 {ad}, {st}, {ad}""")
    for r in range(4):
        for b in range(4): k(f"v_cvt_pk_bf16_f32 {D[4*r+b]}, {z(b,0)[r]}, {z(b,1)[r]}")
        k(f"ds_write_b128 {ad}, {D.q(r)} offset:{1024*r}")
    k(f"""s_lshl_b32 {st}, {I['w']}, 12
    s_add_u32 {st}, {st}, {lds2}
    v_lshl_add_u32 {ad}, {I['l']}, 4, {st}
    s_waitcnt lgkmcnt(0)
    s_barrier""")
    for b in range(4): k(f"ds_read_b128 {D.q(b)}, {ad} offset:{1024*b}")
    stage(C['si'], True)
    so = k.s.alloc()
    k(f"""s_mov_b32 {st}, {16*V2_STR}
    v_mul_lo_u32 {ad}, {I['n']}, {st}
    v_lshl_add_u32 {ad}, {I['g']}, 4, {ad}
    s_mul_i32 {so}, {I['w']}, {4*V2_STR}
    s_lshl_b32 {st}, {T['tau']}, 6
    s_add_u32 {so}, {so}, {st}""")
    last = None
    for b in range(4):
        for r in range(4): k(f"v_cvt_pk_bf16_f32 {D[4*b+r]}, {z(b,0)[r]}, {z(b,1)[r]}")
        last = k(f"buffer_store_dwordx4 {D.q(b)}, {ad}, {sv2}, {so} offen {flags}")
        if b < 3: k(f"s_add_u32 {so}, {so}, {V2_STR}")
    k.v.free(D, acc, tmp, ad, W['r'], W['i'], *C.values()); k.s.free(st, so)
    return last
```

```python
import sys, json
from fft import *
from ssm import *
from g2 import y_stage, v2_issue
SC = "sc1"
OUTF = os.environ.get("OUTF", "")

def code_prefetch(k, lo, hi):
    r = k.s.alloc(2); so = k.s.alloc(); va = k.v.alloc(2)
    per = -(-(hi - lo) // (32 * 128))
    lab = k.lab('pc')
    k(f"""s_getpc_b64 {r}
    {lab}:
    s_lshr_b32 {so}, s2, 3
    s_mul_i32 {so}, {so}, {per*128}
    s_add_u32 {so}, {so}, {lo}
    v_min_u32 {va[0]}, {per-1}, v0
    v_lshl_add_u32 {va[0]}, {va[0]}, 7, {so}
    v_min_u32 {va[0]}, {k.name}_end-{lab}, {va[0]}
    v_mov_b32 {va[1]}, {r[1]}
    v_add_co_u32 {va[0]}, vcc, {r[0]}, {va[0]}
    v_addc_co_u32 {va[1]}, vcc, 0, {va[1]}, vcc""")
    k.s.free(r, so)
    return va

class Poll:
    def __init__(self, k, srd_, va, n, want, off=0, oobok=False):
        self.oobok = oobok
        self.k, self.srd, self.va, self.n, self.want, self.off = k, srd_, va, n, want, off
        self.d = k.v.alloc(n)
    def issue(self):
        x = {1: '', 4: 'x4'}[self.n]
        return self.k(f"buffer_load_dword{x} {self.d}, {self.va}, {self.srd}, {self.off} offen sc1")
    def _check(self):
        k, d = self.k, self.d
        if self.n == 4: k(f"v_min_u32 {d[0]}, {d[0]}, {d[1]}\nv_min3_u32 {d[0]}, {d[0]}, {d[2]}, {d[3]}")
        k(f"v_cmp_ne_u32 vcc, {self.want}, {d[0]}")
        if self.oobok: k("s_and_b64 vcc, vcc, 0xffff")
    def finish(self, maxspin=1 << 20):
        k = self.k
        self._check()
        with k.skip_if("s_cbranch_vccz"):
            cnt = k.s.alloc(); lp = k.lab('poll'); out = k.lab('pollout')
            k(f"s_mov_b32 {cnt}, 0\n{lp}:\ns_sleep 2")
            self.issue(); k("s_waitcnt vmcnt(0)")
            self._check()
            k(f"s_cbranch_vccz {out}\ns_add_u32 {cnt}, {cnt}, 1\ns_cmp_lt_u32 {cnt}, {maxspin}\ns_cbranch_scc1 {lp}\n{out}:")
            k.s.free(cnt)
        k.v.free(self.d)

def wave0_store(k, I, text):
    k(f"s_cmp_lg_u32 {I['w']}, 0")
    with k.skip_if("s_cbranch_scc1"):
        k("s_mov_b64 exec, 1"); k(text); k("s_mov_b64 exec, -1")

def ph1f(k, I, F, lds_off, sv1, hook):
    ad = k.v.alloc(4); t = k.v.alloc(); t2 = k.v.alloc()
    k(f"""v_bfe_u32 {t}, {I['l']}, 2, 3
    v_lshrrev_b32 {t2}, 5, {I['l']}
    v_lshl_or_b32 {t}, {t2}, 4, {t}
    v_lshlrev_b32 {t}, 7, {t}
    v_and_b32 {t2}, 3, {I['l']}
    v_lshl_or_b32 {t}, {t2}, 3, {t}
    v_add_u32 {t}, {lds_off}, {t}
    v_bfe_u32 {t2}, {I['l']}, 3, 2""")
    for m in range(4):
        k(f"v_xor_b32 {ad[m]}, {m}, {t2}\nv_lshl_add_u32 {ad[m]}, {ad[m]}, 5, {t}")
    acc = k.v.allocq(32); fr = k.v.allocq(48)
    hook('bar')
    def rd(m):
        for kap in range(4):
            for h in range(2):
                o = 16 * fs[m] + 4 * kap + 2 * h
                k(f"ds_read_b64_tr_b16 {fr[o:o+2]}, {ad[m]} offset:{kap*4096+h*1024}")
    fs = {0: 0, 2: 1, 1: 2, 3: 0}
    rd(0); rd(2)
    for mi, m in enumerate((0, 2, 1, 3)):
        if mi < 2: rd((1, 3)[mi])
        for kap in range(4):
            for c in range(2):
                d = acc.q(2 * m + c)
                k(f"v_mfma_f32_16x16x32_bf16 {d}, {F.q(4*c+kap)}, {fr.q(4*fs[m]+kap)}, {d if kap else 0}")
            if kap & 1: hook('t')
    A = lambda c: fr.q(4 + c); B = lambda c: fr.q(8 + c); C = lambda c: fr.q(6 + c); Dd = lambda c: fr.q(10 + c)
    z = lambda m, c: acc.q(2 * m + c)
    for c in range(2):
        for h in (0, 2):
            s = slice(h, h + 2)
            pk(k, '+', A(c)[s], z(0, c)[s], z(2, c)[s]); pk(k, '-', C(c)[s], z(0, c)[s], z(2, c)[s])
        hook('t')
    for c in range(2):
        for h in (0, 2):
            s = slice(h, h + 2)
            pk(k, '+', B(c)[s], z(1, c)[s], z(3, c)[s]); pk(k, '-', Dd(c)[s], z(1, c)[s], z(3, c)[s])
        hook('t')
    for h in (0, 2):
        s = slice(h, h + 2)
        for c in range(2):
            pk(k, '+', z(0, c)[s], A(c)[s], B(c)[s]); pk(k, '-', z(2, c)[s], A(c)[s], B(c)[s])
        hook('t')
        pk(k, '+', z(1, 0)[s], C(0)[s], Dd(1)[s]); pk(k, '-', z(1, 1)[s], C(1)[s], Dd(0)[s])
        pk(k, '-', z(3, 0)[s], C(0)[s], Dd(1)[s]); pk(k, '+', z(3, 1)[s], C(1)[s], Dd(0)[s])
        hook('t')
    k(f"""v_cmp_gt_u32 vcc, 16, v0
    v_cndmask_b32 {z(1,0)[0]}, {z(1,0)[0]}, {C(0)[0]}, vcc
    v_cndmask_b32 {z(1,1)[0]}, {z(1,1)[0]}, -{Dd(0)[0]}, vcc
    v_cndmask_b32 {z(3,0)[0]}, {z(3,0)[0]}, {C(1)[0]}, vcc
    v_cndmask_b32 {z(3,1)[0]}, {z(3,1)[0]}, -{Dd(1)[0]}, vcc""")
    O = fr[0:16]; fr = fr[16:48]
    for r in range(4):
        for kp in range(4): k(f"v_cvt_pk_bf16_f32 {O[4*r+kp]}, {z(kp,0)[r]}, {z(kp,1)[r]}")
    so = k.s.alloc(); s2_ = k.s.alloc()
    k(f"""s_mov_b32 {so}, {16*V1_STR}
    v_mul_lo_u32 {t}, {I['g']}, {so}
    v_lshl_add_u32 {t}, {I['n']}, 2, {t}
    s_mul_i32 {so}, {I['w']}, {64*V1_STR}
    s_lshl_b32 {s2_}, {I['ta']}, 10
    s_add_u32 {so}, {so}, {s2_}
    s_lshl_b32 {s2_}, {I['tb']}, 6
    s_add_u32 {so}, {so}, {s2_}""")
    k.v.free(ad, t2, acc, fr); k.s.free(s2_)
    return O, t, so

def ph1_store(k, O, va, so, sv1):
    last = None
    for j in range(16):
        last = k(f"buffer_store_dword {O[j]}, {va}, {sv1}, {so} offen {SC}")
        if j < 15: k(f"s_add_u32 {so}, {so}, {V1_STR}")
    k.v.free(O, va); k.s.free(so)
    return last

BIG = 0x7f000000
def wpre_issue(k, I, swr, swi, second, fl_=''):
    Wp = dict(r=k.v.allocq(8), i=k.v.allocq(8), a=k.v.alloc(2), dst=k.s.alloc(4))
    col, t, ad = k.v.alloc(), k.v.alloc(), k.v.alloc(); r0, r1, a = k.s.alloc(), k.s.alloc(), k.s.alloc()
    dst = Wp['dst']
    k(f"""s_lshl_b32 {a}, {I['k1p']}, 2
    s_add_u32 {a}, {a}, {I['w']}
    s_lshl_b32 {r0}, {a}, 7
    s_add_u32 {r0}, {r0}, {64 if second else I['slot']}
    s_sub_u32 {r1}, 2048, {r0}
    s_and_b32 {r1}, {r1}, 2047
    s_mul_i32 {r0}, {r0}, 1026
    s_mul_i32 {r1}, {r1}, 1026
    v_lshlrev_b32 {col}, 9, {I['g']}
    v_lshl_add_u32 {col}, {I['n']}, 3, {col}
    v_add_u32 {ad}, {r0}, {col}
    v_sub_u32 {t}, {r1}, {col}
    v_add_u32 {t}, {2*829}, {t}
    v_cmp_lt_u32 vcc, 1, {I['g']}
    v_cndmask_b32 {ad}, {ad}, {t}, vcc""")
    for r in range(4):
        k(f"buffer_load_dwordx2 {Wp['r'].q(r,2)}, {ad}, {swr}, 0 offen offset:{128*r} {fl_}")
        k(f"buffer_load_dwordx2 {Wp['i'].q(r,2)}, {ad}, {swi}, 0 offen offset:{128*r} {fl_}")
    k(f"""s_add_u32 {r0}, {r0}, 1024
    v_mov_b32 {t}, {r1}
    v_mov_b32 {col}, {r0}
    v_cndmask_b32 {t}, {t}, {col}, vcc
    buffer_load_ushort {Wp['a'][0]}, {t}, {swr}, 0 offen
    buffer_load_ushort {Wp['a'][1]}, {t}, {swi}, 0 offen""")
    if not second:
        k(f"""s_lshl_b32 {dst[0]}, {I['slot']}, 16
        s_lshl_b32 {r0}, {a}, 10
        s_add_u32 {dst[0]}, {dst[0]}, {r0}
        s_add_u32 {dst[1]}, {dst[0]}, 16384
        s_add_u32 {dst[2]}, {dst[0]}, 32768
        s_add_u32 {dst[3]}, {dst[0]}, 49152
        s_cmp_lg_u32 {I['slot']}, 0""")
        with k.skip_if("s_cbranch_scc1"):
            k(f"""s_mov_b32 {dst[3]}, {BIG}
            s_cmp_gt_u32 {a}, 8
            s_cselect_b32 {dst[0]}, {BIG}, {dst[0]}
            s_cselect_b32 {dst[2]}, {BIG}, {dst[2]}
            s_cmp_eq_u32 {a}, 8
            s_cselect_b32 {dst[0]}, {256*16384}, {dst[0]}
            s_cselect_b32 {dst[2]}, {256*16384+1024}, {dst[2]}""")
    else:
        k(f"""s_lshl_b32 {r0}, {a}, 10
        s_add_u32 {dst[0]}, {r0}, 8192
        s_add_u32 {dst[1]}, {r0}, 49152
        s_add_u32 {dst[2]}, {r0}, {32768+8192}
        s_mov_b32 {dst[3]}, {BIG}
        s_cmp_gt_u32 {a}, 7
        s_cselect_b32 {dst[0]}, {BIG}, {dst[0]}
        s_cselect_b32 {dst[2]}, {BIG}, {dst[2]}""")
    k.v.free(col, t, ad); k.s.free(r0, r1, a)
    return Wp

def wpre_compute(k, I, Wp, sw):
    O = k.v.allocq(16); sel = k.v.alloc(2); t = k.v.alloc(3); va = k.v.alloc()
    R_, I_, A = Wp['r'], Wp['i'], Wp['a']
    k(f"v_mov_b32 {sel[0]}, 0x05040100\nv_mov_b32 {sel[1]}, 0x07060302")
    k(f"v_lshlrev_b32 {A[0]}, 16, {A[0]}\nv_lshlrev_b32 {A[1]}, 16, {A[1]}\nv_xor_b32 {A[1]}, 0x80000000, {A[1]}")
    k("s_mov_b32 exec_lo, 0")
    k(f"v_swap_b32 {sel[0]}, {sel[1]}\nv_xor_b32 {A[1]}, 0x80000000, {A[1]}")
    for r in range(4):
        k(f"""v_swap_b32 {R_[2*r]}, {R_[2*r+1]}
        v_swap_b32 {I_[2*r]}, {I_[2*r+1]}
        v_xor_b32 {I_[2*r]}, 0x80008000, {I_[2*r]}
        v_xor_b32 {I_[2*r+1]}, 0x80008000, {I_[2*r+1]}""")
    k("s_mov_b64 exec, -1")
    for kk in range(4):
        for r in range(4):
            k(f"v_perm_b32 {O[4*kk+r]}, {I_[2*r+(kk>>1)]}, {R_[2*r+(kk>>1)]}, {sel[kk&1]}")
    k(f"""v_cmp_lt_u32 vcc, 1, {I['g']}
    v_cndmask_b32 {t[0]}, {O[0]}, {O[3]}, vcc
    v_lshlrev_b32 {t[1]}, 16, {t[0]}
    v_and_b32 {t[2]}, 0xffff0000, {t[0]}
    v_add_f32 {t[1]}, {t[1]}, {A[0]}
    v_add_f32 {t[2]}, {t[2]}, {A[1]}
    v_mul_f32 {t[1]}, 0.5, {t[1]}
    v_mul_f32 {t[2]}, 0.5, {t[2]}
    v_cvt_pk_bf16_f32 {t[0]}, {t[1]}, {t[2]}
    v_cmp_eq_u32 vcc, 0, {I['l']}
    v_cndmask_b32 {O[0]}, {O[0]}, {t[0]}, vcc
    v_cmp_eq_u32 vcc, 32, {I['l']}
    v_cndmask_b32 {O[3]}, {O[3]}, {t[0]}, vcc""")
    last = None
    for kk in range(4):
        k(f"v_lshl_add_u32 {va}, {I['l']}, 4, {Wp['dst'][kk]}")
        last = k(f"buffer_store_dwordx4 {O.q(kk)}, {va}, {sw}, 0 offen {SC}")
    k.v.free(O, sel, t, va, R_, I_, A); k.s.free(Wp['dst'])
    return last

def w2_issue(k, I, T, sw):
    W = k.v.allocq(20); va = k.v.alloc(); so = k.s.alloc(); st = k.s.alloc()
    k(f"""v_lshlrev_b32 {va}, 4, {I['l']}
    s_lshl_b32 {so}, {T['tau']}, 14
    s_lshl_b32 {st}, {I['w']}, 12
    s_add_u32 {so}, {so}, {st}""")
    for b in range(4): k(f"buffer_load_dwordx4 {W.q(b)}, {va}, {sw}, {so} offen offset:{1024*b} {SC}")
    k(f"s_cmp_eq_u32 {T['sp']}, 0")
    with k.skip_if("s_cbranch_scc1"):
        k(f"""s_lshl_b32 {so}, {T['tau']}, 9
        s_add_u32 {so}, {so}, {256*16384}
        buffer_load_dwordx4 {W.q(4)}, {va}, {sw}, {so} offen {SC}""")
    k.v.free(va); k.s.free(so, st)
    return W

def ph2f(k, I, T, C, W, L, lds1, lds2, sv2, hook):
    D = k.v.allocq(16); acc = k.v.allocq(32); tmp = k.v.alloc(4); wu = k.v.allocq(8); ad = k.v.alloc(); st = k.s.alloc()
    z = lambda b, c: acc.q(2 * b + c)
    def stage(M, data_is_A, blocks=range(4), src=None, dst=None):
        for b in blocks:
            for c in range(2):
                d = (src or D).q(b); o = (dst or acc).q(2 * b + c)
                A, B = (d, M.q(c)) if data_is_A else (M.q(c), d)
                k(f"v_mfma_f32_16x16x32_bf16 {o}, {A}, {B}, 0")
            if src is None: hook('t')
    def unpack(b):
        for r in range(4): k(f"v_lshlrev_b32 {wu[r]}, 16, {W[4*b+r]}\nv_and_b32 {wu[4+r]}, 0xffff0000, {W[4*b+r]}")
    for b in range(4):
        for j in range(4): k(f"v_mov_b32 {D[4*b+j]}, {L[4*j+b]}")
    stage(C['sf'], True)
    a4 = k.v.alloc(4)
    k(f"""v_and_b32 {a4[0]}, 7, {I['n']}
    v_lshlrev_b32 {ad}, 2, {I['g']}
    v_xor_b32 {a4[0]}, {a4[0]}, {ad}
    v_lshlrev_b32 {a4[0]}, 4, {a4[0]}
    v_lshl_or_b32 {a4[0]}, {I['n']}, 10, {a4[0]}
    s_lshl_b32 {st}, {I['w']}, 8
    s_add_u32 {st}, {st}, {lds1}
    v_add_u32 {a4[0]}, {st}, {a4[0]}""")
    for b in range(1, 4): k(f"v_xor_b32 {a4[b]}, {16*b}, {a4[0]}")
    for b in range(4):
        for r in range(4): k(f"v_cvt_pk_bf16_f32 {D[4*b+r]}, {z(b,0)[r]}, {z(b,1)[r]}")
        k(f"ds_write_b128 {a4[b]}, {D.q(b)}")
    k(f"""s_and_b32 {st}, {I['w']}, 1
    s_lshl_b32 {st}, {st}, 2
    v_xor_b32 {ad}, {st}, {I['l']}
    s_lshl_b32 {st}, {I['w']}, 12
    s_add_u32 {st}, {st}, {lds1}
    v_lshl_add_u32 {a4[0]}, {ad}, 4, {st}""")
    for b in range(1, 4): k(f"v_xor_b32 {a4[b]}, {16*b}, {a4[0]}")
    hook('pre_bar1')
    k("s_waitcnt lgkmcnt(0)\ns_barrier")
    for b in range(4): k(f"ds_read_b128 {D.q(b)}, {a4[b]} offset:{1024*b}")
    k.v.free(a4)
    hook('post_bar1')
    stage(C['m1f'], True)
    for b in range(4):
        cmul_pack(k, z(b, 0), z(b, 1), C['twf'].q(0), C['twf'].q(1), True, D.q(b), tmp); hook('t')
    stage(C['m2f'], False)
    X = L[0:8]; Xd = L[8:12]
    k(f"s_cmp_eq_u32 {T['sp']}, 0")
    with k.skip_if("s_cbranch_scc1"):
        unpack(4)
        cmul_pack(k, z(0, 0), z(0, 1), wu.q(0), wu.q(1), False, Xd, tmp)
        stage(C['m2i'], True, [0], Xd, X)
        cmul_pack(k, X.q(0), X.q(1), C['twi'].q(0), C['twi'].q(1), False, Xd, tmp)
        stage(C['m1i'], False, [0], Xd, X)
    for b in range(4):
        unpack(b)
        cmul_pack(k, z(b, 0), z(b, 1), wu.q(0), wu.q(1), False, D.q(b), tmp); hook('t')
    stage(C['m2i'], True)
    for b in range(4):
        cmul_pack(k, z(b, 0), z(b, 1), C['twi'].q(0), C['twi'].q(1), False, D.q(b), tmp); hook('t')
    stage(C['m1i'], False)
    k(f"s_sub_u32 {st}, {T['sp']}, 1\ns_or_b32 {st}, {st}, {I['w']}\ns_cmp_lg_u32 {st}, 0")
    with k.skip_if("s_cbranch_scc1"):
        for r in range(4): k(f"v_mov_b32 {z(0,1)[r]}, {X[4+r]}")
    k(f"""v_lshlrev_b32 {ad}, 12, {I['g']}
    v_lshl_add_u32 {ad}, {I['n']}, 4, {ad}
    s_lshl_b32 {st}, {I['w']}, 8
    s_add_u32 {st}, {st}, {lds2}
    v_add_u32 {ad}, {st}, {ad}""")
    for r in range(4):
        for b in range(4): k(f"v_cvt_pk_bf16_f32 {D[4*r+b]}, {z(b,0)[r]}, {z(b,1)[r]}")
        k(f"ds_write_b128 {ad}, {D.q(r)} offset:{1024*r}")
    k(f"""s_lshl_b32 {st}, {I['w']}, 12
    s_add_u32 {st}, {st}, {lds2}
    v_lshl_add_u32 {ad}, {I['l']}, 4, {st}""")
    hook('pre_bar2')
    k("s_waitcnt lgkmcnt(0)\ns_barrier")
    for b in range(4): k(f"ds_read_b128 {D.q(b)}, {ad} offset:{1024*b}")
    hook('post_bar2')
    stage(C['si'], False)
    so = k.s.alloc()
    k(f"""s_mov_b32 {st}, {64*V2_STR}
    v_mul_lo_u32 {ad}, {I['g']}, {st}
    v_lshl_add_u32 {ad}, {I['n']}, 2, {ad}
    s_mul_i32 {so}, {I['w']}, {4*V2_STR}
    s_lshl_b32 {st}, {T['tau']}, 6
    s_add_u32 {so}, {so}, {st}""")
    for b in range(4):
        for r in range(4): k(f"v_cvt_pk_bf16_f32 {D[4*b+r]}, {z(b,0)[r]}, {z(b,1)[r]}")
    k.v.free(acc, tmp, wu, W, L, *C.values()); k.s.free(st)
    return D, ad, so

def v2_store(k, D, ad, so, sv2):
    last = None
    for b in range(4):
        for r in range(4):
            last = k(f"buffer_store_dword {D[4*b+r]}, {ad}, {sv2}, {so} offen {SC}")
            if r < 3: k(f"s_add_u32 {so}, {so}, {16*V2_STR}")
            elif b < 3: k(f"s_sub_u32 {so}, {so}, {47*V2_STR}")
    k.v.free(D, ad); k.s.free(so)
    return last

class B1f(B1):
    def __init__(self, k, I, sx, sb, ldsA, ldsB):
        super().__init__(k, I, sx, sb, ldsA, ldsB)
        for j in range(4):
            k(f"v_add_u32 {self.va[j]}, {self.soA}, {self.va[j]}\nv_add_u32 {self.vb[j]}, {self.soB}, {self.vb[j]}")
        k(f"""s_add_u32 {self.soA}, {I['ca']}, {I['cb'] if I.get('rot1', 1) == 1 else 0}
        s_mul_i32 {self.soA}, {self.soA}, {0 if I.get('rot1', 1) == 0 else 1}
        s_and_b32 {self.soA}, {self.soA}, 15
        s_lshl_b32 {self.soA}, {self.soA}, 7""")
        self.tail = None
    def dma(self, s, i):
        k = self.k; j = i & 3; buf = (s % self.NST) * 16384
        if s >= 16:
            if self.tail: self.tail(s - 16, i)
            return
        if i < 4:
            if j == 0: k(f"s_add_u32 m0, {self.mB}, {buf}")
            ins = k(f"buffer_load_dwordx4 {self.vb[j]}, {self.sb}, {self.soA} offen offset:{1024*j} lds")
        else:
            if j == 0: k(f"s_add_u32 m0, {self.mA}, {buf}")
            ins = k(f"buffer_load_dwordx4 {self.va[j]}, {self.sx}, {self.soA} offen offset:{1024*j} lds")
            if j == 3: k(f"s_add_u32 {self.soA}, {self.soA}, 128\ns_and_b32 {self.soA}, {self.soA}, 0x7ff")
        self.last[s] = ins
    def alloc(self):
        self.acc = self.k.v.allocq(64, 16); self.fr = self.k.v.allocq(32)
    def main(self, fill=None, pre_bar=None, post_bar=None):
        k = self.k; NS = 16; acc, fr = self.acc, self.fr
        def reads(s, kk):
            f = fr.q((s * 4 + kk) & 1, 16); buf = (s % self.NST) * 16384
            out = []
            for b in range(2):
                out.append(f"ds_read_b128 {f.q(b)}, {self.ra[kk]} offset:{buf + 4096*b}")
                out.append(f"ds_read_b128 {f.q(2+b)}, {self.rb[kk]} offset:{buf + 4096*b}")
            return out
        k.wait(self.last[0]); k("s_barrier")
        lastrd = None
        for r in reads(0, 0): lastrd = k(r)
        for s in range(NS):
            for kk in range(4):
                f = fr.q((s * 4 + kk) & 1, 16)
                rd = []
                if kk < 3: rd = reads(s, kk + 1)
                elif s + 1 < NS:
                    if pre_bar: pre_bar(s)
                    k.wait(lastrd, self.last[s + 1]); k("s_barrier")
                    rd = reads(s + 1, 0)
                ds, di = (s + self.NST, 0) if kk == 3 else (s + self.NST - 1, 2 * (kk + 1))
                dm = [(ds, di), (ds, di + 1)] if ds >= self.NST else []
                for m, (rb, c) in enumerate(((0, 0), (0, 1), (1, 1), (1, 0))):
                    d = acc.q(2 * rb + c, 16)
                    first = s == 0 and kk == 0
                    k(f"v_mfma_f32_32x32x16_bf16 {d}, {f.q(rb)}, {f.q(2+c)}, {0 if first else d}")
                    if m < 2 and rd:
                        k(rd[2 * m]); lastrd = k(rd[2 * m + 1])
                    if m == 1 and kk == 3 and post_bar: post_bar(s)
                    if m >= 2 and dm: self.dma(*dm[m - 2])
                    if fill: fill(s, kk, m)
        k.v.free(fr, self.va, self.vb, self.ra, self.rb); k.s.free(self.soA, self.soB, self.mA, self.mB)
        return acc

def pass2f(k, I, acc, Pm, E1, E, sh):
    for j in range(14, -1, -1):
        cfma(k, E.q(j, 2), Pm['L64'], E.q(j + 1, 2), E.q(j, 2))
    S, T = E.q(0, 2), E.q(1, 2); U, V = E.q(2, 2), E.q(3, 2)
    k(f"""v_mov_b32 {T[0]}, {S[0]}
    v_mov_b32 {T[1]}, {S[1]}
    v_permlane32_swap_b32 {S[0]}, {T[0]}
    v_permlane32_swap_b32 {S[1]}, {T[1]}""")
    cfma(k, S, Pm['L1024'], T, S)
    cfma(k, E1['lo'], Pm['L32'], S, E1['lo'])
    k(f"s_mov_b32 exec_lo, 0\nv_mov_b32 {S[0]}, {E1['lo'][0]}\nv_mov_b32 {S[1]}, {E1['lo'][1]}\ns_mov_b64 exec, -1")
    e0 = (E1['er'][0], E1['ei'][0])
    cfma(k, e0, Pm['L16'], S, e0)
    cf = Pm['coef']
    for h, x in ((0, S), (1, e0)):
        k(f"""v_mul_f32 {U[h]}, {cf[0]}, {x[0]}
        v_mul_f32 {V[h]}, {cf[0]}, {x[1]}
        v_fma_f32 {U[h]}, -{cf[1]}, {x[1]}, {U[h]}
        v_fma_f32 {V[h]}, {cf[1]}, {x[0]}, {V[h]}""")
    va, so = E1['hva'], E1['hso']
    L = Pm['L1']; cr, ci = U, V
    O = E[8:32]
    pend = []; last = None
    def flush():
        nonlocal last
        q, o = pend.pop(0)
        k(f"""v_permlane32_swap_b32 {o[0]}, {o[1]}
        v_permlane32_swap_b32 {o[2]}, {o[3]}
        v_permlane16_swap_b32 {o[0]}, {o[2]}
        v_permlane16_swap_b32 {o[1]}, {o[3]}""")
        last = k(f"buffer_store_dwordx4 {o}, {va}, {sh}, {so} offen {SC}")
        if q < 7: k(f"s_add_u32 {so}, {so}, {2*32*16384}")
    for j in range(16):
        nr, ni = upair(acc, j, 0), upair(acc, j, 1)
        k(f"""v_pk_fma_f32 {nr}, {L}, {cr}, {nr}{BC0}
        v_pk_fma_f32 {ni}, {L}, {ci}, {ni}{BC0}
        v_pk_fma_f32 {nr}, {L}, {ci}, {nr}{BC1}{NEG0}
        v_pk_fma_f32 {ni}, {L}, {cr}, {ni}{BC1}""")
        cr, ci = nr, ni
        if pend: flush()
        o = O.q((j // 2) % 6)
        h = 2 * (j & 1)
        k(f"v_cvt_pk_bf16_f32 {o[h]}, {nr[0]}, {nr[1]}\nv_cvt_pk_bf16_f32 {o[h+1]}, -{ni[0]}, -{ni[1]}")
        if j & 1: pend.append((j // 2, o))
    flush()
    k.v.free(va, E, acc, E1['er'], E1['ei'], E1['lo'], *Pm.values()); k.s.free(so)
    return last

def hstore_addr(k, I, E1):
    va = k.v.alloc(); t = k.v.alloc(); so = k.s.alloc(); st = k.s.alloc(); s2_ = k.s.alloc()
    k(f"""s_lshl_b32 {st}, {I['ca']}, 1
    s_lshr_b32 {s2_}, {I['w']}, 1
    s_add_u32 {st}, {st}, {s2_}
    s_lshl_b32 {so}, {st}, 9
    s_and_b32 {st}, {st}, 3
    s_lshl_b32 {st}, {st}, 2
    v_xor_b32 {va}, {st}, {I['n']}
    v_lshlrev_b32 {va}, 4, {va}
    v_lshrrev_b32 {t}, 1, {I['g']}
    v_lshl_or_b32 {va}, {t}, 14, {va}
    v_and_b32 {t}, 1, {I['g']}
    v_lshl_or_b32 {va}, {t}, 19, {va}
    s_and_b32 {s2_}, {I['w']}, 1
    s_lshl_b32 {s2_}, {s2_}, 8
    s_add_u32 {so}, {so}, {s2_}
    s_lshl_b32 {s2_}, {I['cb']}, 15
    s_add_u32 {so}, {so}, {s2_}""")
    k.v.free(t); k.s.free(st, s2_)
    E1['hva'], E1['hso'] = va, so

class CLoad:
    def __init__(self, k, I, sc, CA=None):
        self.k, self.sc = k, sc
        self.C = CA or k.a.alloc(256); self.va = k.v.alloc(4); self.ra = k.v.alloc(4); self.so = k.s.alloc(); self.mw = k.s.alloc()
        t = k.v.alloc(2); st = k.s.alloc(); l = I['l']
        k(f"""v_and_b32 {t[0]}, 7, {l}
        v_xor_b32 {t[0]}, {t[0]}, {I['g']}
        v_and_b32 {t[1]}, 4, {t[0]}
        v_lshlrev_b32 {self.va[0]}, 4, {t[1]}
        v_and_b32 {t[1]}, 1, {t[0]}
        v_lshl_or_b32 {self.va[0]}, {t[1]}, 5, {self.va[0]}
        v_bfe_u32 {t[1]}, {t[0]}, 1, 1
        v_lshl_or_b32 {self.va[0]}, {t[1]}, 4, {self.va[0]}
        v_lshrrev_b32 {t[1]}, 3, {l}
        v_lshl_or_b32 {self.va[0]}, {t[1]}, 11, {self.va[0]}
        s_lshr_b32 {st}, {I['w']}, 1
        s_lshl_b32 {st}, {st}, 20
        s_lshl_b32 {self.so}, {I['tb']}, 15
        s_add_u32 {st}, {st}, {self.so}
        v_add_u32 {self.va[0]}, {st}, {self.va[0]}
        v_xor_b32 {self.va[1]}, 64, {self.va[0]}
        v_add_u32 {self.va[1]}, {16384-1024}, {self.va[1]}
        v_add_u32 {self.va[2]}, {(1<<19)-2048}, {self.va[0]}
        v_add_u32 {self.va[3]}, {(1<<19)-2048}, {self.va[1]}
        s_lshl_b32 {self.so}, {I.get('rc', I['ta'])}, 7
        s_lshl_b32 {self.mw}, {I['w']}, 12
        v_lshrrev_b32 {t[0]}, 1, {I['n']}
        v_xor_b32 {t[0]}, {t[0]}, {I['g']}
        v_lshlrev_b32 {t[0]}, 4, {t[0]}
        v_lshl_or_b32 {t[0]}, {I['n']}, 7, {t[0]}
        v_add_u32 {self.ra[0]}, {self.mw}, {t[0]}
        v_xor_b32 {self.ra[1]}, 64, {self.ra[0]}
        v_add_u32 {self.ra[2]}, 0x10000, {self.ra[0]}
        v_add_u32 {self.ra[3]}, 0x10000, {self.ra[1]}""")
        k.v.free(t); k.s.free(st)
        self.n = 0; self.slot = {}; self.ld = {}; self.rd = {}; self.nd = 0
    def frag(self, j, kk, mm): return self.C.q(4 * j + 2 * mm + kk)
    def issue1(self, slot):
        k = self.k; j, q = self.n >> 2, self.n & 3
        if q == 0:
            if slot in self.rd: k.wait(self.rd.pop(slot))
            self.slot[j] = slot
            k(f"s_add_u32 m0, {self.mw}, {slot}")
        self.ld[j] = k(f"buffer_load_dwordx4 {self.va[q]}, {self.sc}, {self.so} offen offset:{1024*q} lds")
        if q == 3: k(f"s_add_u32 {self.so}, {self.so}, 128\ns_and_b32 {self.so}, {self.so}, 0x7ff")
        self.n += 1
        if self.n == 64: k.v.free(self.va); k.s.free(self.so, self.mw)
    def issue(self, slot):
        for _ in range(4): self.issue1(slot)
    def drain(self):
        k = self.k; j = self.nd; slot = self.slot[j]; hi = 2 if slot >= 65536 else 0
        assert self.n >= 4 * (j + 1)
        if slot >= 131072 and not getattr(self, 'bumped', False):
            k(f"v_add_u32 {self.ra[2]}, 0x10000, {self.ra[2]}\nv_add_u32 {self.ra[3]}, 0x10000, {self.ra[3]}"); self.bumped = True
        assert slot < 65536 or (slot >= 131072) == bool(getattr(self, 'bumped', False))
        k.wait(self.ld[j])
        for mm in range(2):
            for kk in range(2):
                self.rd[slot] = k(f"ds_read_b128 {self.frag(j,kk,mm)}, {self.ra[hi+kk]} offset:{(slot & 65535) + 2048*mm}")
        self.nd += 1
        if self.nd == 16: k.v.free(self.ra)
        return slot

def gen_Gf(k, I):
    G = k.v.allocq(64)
    f, b, sb, a, c, s, mk = [k.v.alloc() for _ in range(7)]
    st = k.s.alloc()
    k(f"""v_lshrrev_b32 {a}, 1, {I['g']}
    v_lshlrev_b32 {a}, 3, {a}
    v_and_b32 {c}, 1, {I['g']}
    v_lshl_add_u32 {a}, {c}, 1, {a}
    v_cvt_f32_u32 {sb}, {a}
    v_mul_u32_u24 {mk}, 0x8000, {c}
    v_lshl_or_b32 {mk}, {mk}, 16, {mk}""")
    for ib in range(2):
        k(f"""s_and_b32 {st}, {I['w']}, 1
        s_lshl_b32 {st}, {st}, 6
        s_add_u32 {st}, {st}, {16*ib}
        v_add_u32 {a}, {st}, {I['n']}
        v_cvt_f32_u32 {f}, {a}
        v_mul_f32 {f}, {fl(1/128)}, {f}
        v_mul_f32 {b}, {f}, {sb}""")
        for kap in range(4):
            for d in range(4):
                sl = 16 * kap + 4 * (d >> 1) + (d & 1)
                g0, g2 = G[16 * ib + 4 * kap + d], G[16 * (ib + 2) + 4 * kap + d]
                k(f"""v_fmamk_f32 {a}, {f}, {fl(float(sl))}, {b}
                v_cos_f32 {c}, {a}
                v_sin_f32 {s}, {a}
                v_cvt_pk_bf16_f32 {g0}, {c}, -{s}""")
                if d & 1: k(f"v_cvt_pk_bf16_f32 {g2}, -{s}, -{c}\nv_xor_b32 {g2}, {mk}, {g2}")
                else: k(f"v_xor_b32 {g2}, {mk}, {g0}")
    k(f"""v_lshlrev_b32 {c}, 31, {I['n']}
    v_or_b32 {c}, 0x3f003f00, {c}
    v_cmp_eq_u32 vcc, 0, {I['g']}""")
    for ib in range(4): k(f"v_cndmask_b32 {G[16*ib]}, {G[16*ib]}, {c}, vcc")
    k.v.free(f, b, sb, a, c, s, mk); k.s.free(st)
    return G

class B3f:
    NST = 4
    D = 3
    def __init__(self, k, I, sh, CL):
        self.k, self.I, self.sh, self.CL = k, I, sh, CL
        self.vh = k.v.alloc(2); self.rh = k.v.alloc(4)
        self.so, self.mH = k.s.alloc(), k.s.alloc()
        t = k.v.alloc(2); st = k.s.alloc(); l = I['l']
        k(f"""s_lshr_b32 {st}, {I['w']}, 1
        s_xor_b32 {st}, {st}, {I['w']}
        s_lshl_b32 {st}, {st}, 13
        s_lshl_b32 {self.so}, {I['ta']}, 19
        s_add_u32 {st}, {st}, {self.so}
        v_lshl_add_u32 {self.vh[0]}, {l}, 4, {st}
        v_add_u32 {self.vh[1]}, 4096, {self.vh[0]}
        s_lshl_b32 {self.so}, {I.get('rc', I['ta'])}, 15
        s_lshl_b32 {self.mH}, {I['w']}, 13""")
        k(f"""v_and_b32 {t[0]}, 3, {l}
        v_and_b32 {t[1]}, 2, {I['g']}
        v_xor_b32 {t[1]}, {t[1]}, {t[0]}
        v_lshlrev_b32 {t[0]}, 9, {t[0]}
        v_lshl_or_b32 {t[0]}, {t[1]}, 6, {t[0]}
        v_bfe_u32 {t[1]}, {l}, 2, 2
        v_lshl_or_b32 {t[0]}, {t[1]}, 4, {t[0]}
        v_and_b32 {t[1]}, 1, {I['g']}
        v_lshl_or_b32 {t[0]}, {t[1]}, 3, {t[0]}
        s_and_b32 {st}, {I['w']}, 1
        s_lshl_b32 {st}, {st}, 14
        v_add_u32 {self.rh[0]}, {st}, {t[0]}
        v_xor_b32 {self.rh[1]}, 64, {self.rh[0]}
        v_add_u32 {self.rh[2]}, 0x10000, {self.rh[0]}
        v_add_u32 {self.rh[3]}, 0x10000, {self.rh[1]}""")
        k.v.free(t); k.s.free(st)
        self.last = {}; self.tail = None
    def dma(self, s, i):
        k = self.k
        if s >= 16:
            if self.tail: self.tail(s - 16, i)
            return
        if i & 3 == 0: k(f"s_add_u32 m0, {self.mH}, {(s % self.NST)*32768 + (i>>2)*4096}")
        self.last[s] = k(f"buffer_load_dwordx4 {self.vh[i>>2]}, {self.sh}, {self.so} offen offset:{1024*(i&3)} {SC} lds")
        if i == 7: k(f"s_add_u32 {self.so}, {self.so}, 32768\ns_and_b32 {self.so}, {self.so}, 0x7ffff")
    def prefill(self, steps):
        for s in steps:
            for i in range(8): self.dma(s, i)
    def alloc(self):
        self.acc = self.k.v.allocq(64); self.fr = self.k.v.allocq(64)
    def main(self, fill=None, pre_bar=None, post_bar=None):
        k = self.k; NS = 16; acc, fr = self.acc, self.fr
        def reads(s, kk):
            f = fr.q(kk, 32); out = []
            for ib in range(8):
                off = (s % self.NST) * 32768 + ib * 2048 + kk * 256; hi = 2 if off >= 65536 else 0
                for h in range(2):
                    out.append(f"ds_read_b64_tr_b16 {f[4*ib+2*h:4*ib+2*h+2]}, {self.rh[hi+h]} offset:{off & 65535}")
            return out
        if pre_bar: pre_bar(-1)
        k.wait(self.last[0]); k("s_barrier")
        lastrd = None
        for r in reads(0, 0): lastrd = k(r)
        if post_bar: post_bar(-1)
        for s in range(NS):
            for kk in range(2):
                f = fr.q(kk, 32); rd = []
                if kk == 0: rd = reads(s, 1)
                elif s + 1 < NS:
                    if pre_bar: pre_bar(s)
                    k.wait(lastrd, self.last[s + 1]); k("s_barrier")
                    rd = reads(s + 1, 0)
                dm = [(s + self.D, 4 * kk + x) for x in range(4)]
                for q in range(16):
                    ib, mm = q >> 1, q & 1
                    d = acc.q(8 * mm + ib)
                    zero = s == 0 and kk == 0 and ib >= 4
                    k(f"v_mfma_f32_16x16x32_bf16 {d}, {f.q(ib)}, {self.CL.frag(s,kk,mm)}, {0 if zero else d}")
                    if rd and q < 8:
                        k(rd[2 * q]); lastrd = k(rd[2 * q + 1])
                    if dm and q >= 8 and q % 2 == 0: self.dma(*dm[(q - 8) // 2])
                    if q == 9 and kk == 1 and post_bar: post_bar(s)
                    if fill: fill(s, kk, q)
        k.v.free(fr, self.vh, self.rh); k.s.free(self.so, self.mH)
        return acc

def epi_issue_f(k, I, sg, sd):
    E = dict(g=k.v.allocq(16), d=k.v.alloc(2))
    va = k.v.alloc(); so = k.s.alloc(); st = k.s.alloc()
    k(f"""v_lshlrev_b32 {va}, 4, {I['g']}
    s_lshl_b32 {so}, {I['ta']}, 9
    s_and_b32 {st}, {I['w']}, 1
    s_lshl_b32 {st}, {st}, 8
    s_add_u32 {so}, {so}, {st}""")
    for ib in range(4): k(f"buffer_load_dwordx4 {E['g'].q(ib)}, {va}, {sg}, {so} offen offset:{64*ib} {SC}")
    k(f"""v_lshlrev_b32 {va}, 1, {I['n']}
    s_lshl_b32 {so}, {I['tb']}, 5
    s_lshr_b32 {st}, {I['w']}, 1
    s_lshl_b32 {st}, {st}, 10
    s_add_u32 {so}, {so}, {st}""")
    for mm in range(2): k(f"buffer_load_ushort {E['d'][mm]}, {va}, {sd}, {so} offen offset:{512*mm}")
    k.v.free(va); k.s.free(so, st)
    return E

def xd_init(k, I, E, acc, ldsX):
    ad = k.v.alloc(2); t = k.v.alloc(2); st = k.s.alloc()
    k(f"""s_and_b32 {st}, {I['w']}, 1
    s_lshl_b32 {st}, {st}, 13
    s_add_u32 {st}, {st}, {ldsX}
    v_lshrrev_b32 {t[0]}, 2, {I['l']}
    v_lshlrev_b32 {t[0]}, 7, {t[0]}
    v_and_b32 {t[1]}, 3, {I['l']}
    v_lshl_or_b32 {t[0]}, {t[1]}, 3, {t[0]}
    v_add_u32 {t[0]}, {st}, {t[0]}
    v_bfe_u32 {t[1]}, {I['l']}, 3, 2
    s_and_b32 {st}, {I['w']}, 2
    v_xor_b32 {t[1]}, {st}, {t[1]}
    v_lshl_add_u32 {ad[0]}, {t[1]}, 5, {t[0]}
    v_xor_b32 {ad[1]}, 32, {ad[0]}""")
    for mm in range(2):
        for ib in range(4): k(f"ds_read_b64_tr_b16 {acc.q(8*mm+ib)[2:4]}, {ad[mm]} offset:{2048*ib}")
    Dk = E['d']
    k(f"v_lshlrev_b32 {Dk[0]}, 16, {Dk[0]}\nv_lshlrev_b32 {Dk[1]}, 16, {Dk[1]}")
    for mm in range(2):
        sel = f" op_sel:[{mm},0] op_sel_hi:[{mm},1]"
        for ib in range(4):
            a = acc.q(8 * mm + ib)
            k(f"""v_lshlrev_b32 {a[0]}, 16, {a[2]}
            v_and_b32 {a[1]}, 0xffff0000, {a[2]}
            v_lshlrev_b32 {a[2]}, 16, {a[3]}
            v_and_b32 {a[3]}, 0xffff0000, {a[3]}
            v_pk_mul_f32 {a[0:2]}, {Dk}, {a[0:2]}{sel}
            v_pk_mul_f32 {a[2:4]}, {Dk}, {a[2:4]}{sel}""")
    k.v.free(ad, t, Dk); k.s.free(st)

def final(k, I, E, acc, G, L, ldsX, ldsY, so_, pf):
    ad = k.v.alloc(); t = k.v.alloc(); st = k.s.alloc()
    k(f"s_lshl_b32 {st}, {I['w']}, 13\ns_add_u32 {st}, {st}, {ldsX}\nv_lshl_add_u32 {ad}, {I['l']}, 4, {st}")
    for mm in range(2):
        for ib in range(4): k(f"ds_write_b128 {ad}, {acc.q(8*mm+4+ib)} offset:{1024*(4*mm+ib)}")
    y_stage(k, I, L, ldsY)
    R_ = k.v.allocq(32); Y = k.v.allocq(32); ay = k.v.alloc()
    k(f"""v_xor_b32 {ad}, 0x2000, {ad}
    v_lshrrev_b32 {ay}, 5, {I['l']}
    v_lshlrev_b32 {ay}, 9, {ay}
    v_bfe_u32 {t}, {I['l']}, 3, 2
    v_lshl_or_b32 {ay}, {t}, 6, {ay}
    v_and_b32 {t}, 3, {I['l']}
    v_lshl_or_b32 {ay}, {t}, 4, {ay}
    v_bfe_u32 {t}, {I['l']}, 2, 1
    v_lshl_or_b32 {ay}, {t}, 3, {ay}
    s_lshr_b32 {st}, {I['w']}, 1
    s_lshl_b32 {st}, {st}, 13
    s_add_u32 {st}, {st}, {ldsY}
    v_add_u32 {ay}, {st}, {ay}
    s_waitcnt lgkmcnt(0)
    s_barrier""")
    pf("xbar")
    for mm in range(2):
        for kap in range(4):
            for h in range(2):
                o = 16 * mm + 4 * kap + 2 * h
                k(f"ds_read_b64_tr_b16 {Y[o:o+2]}, {ay} offset:{4096*mm + 1024*kap + 256*h}")
    for ib in range(4):
        for mm in range(2): k(f"ds_read_b128 {R_.q(4*mm+ib)}, {ad} offset:{1024*(4*mm+ib)}")
    va = k.v.alloc(); so = k.s.alloc(); om = k.v.alloc(4)
    k(f"""v_lshlrev_b32 {va}, 18, {I['g']}
    v_lshl_or_b32 {va}, {I['n']}, 2, {va}
    s_and_b32 {so}, {I['w']}, 1
    s_lshl_b32 {so}, {so}, 22
    s_lshl_b32 {st}, {I['ta']}, 12
    s_add_u32 {so}, {so}, {st}
    s_lshl_b32 {st}, {I['tb']}, 6
    s_add_u32 {so}, {so}, {st}
    s_lshr_b32 {st}, {I['w']}, 1
    s_lshl_b32 {st}, {st}, 11
    s_add_u32 {so}, {so}, {st}""")
    def mf(ib):
        for kap in range(4):
            for mm in range(2):
                d = acc.q(8 * mm + 4 + ib)
                k(f"v_mfma_f32_16x16x32_bf16 {d}, {G.q(4*ib+kap)}, {Y.q(4*mm+kap)}, {d if kap else 0}")
    def fin(ib):
        g = E['g'].q(ib)
        for h in (0, 2):
            k(f"""v_sub_f32 {om[h]}, 1.0, {g[h]}
            v_sub_f32 {om[h+1]}, 1.0, {g[h+1]}
            v_cvt_pk_bf16_f32 {om[h+1]}, {om[h]}, {om[h+1]}
            v_lshlrev_b32 {om[h]}, 16, {om[h+1]}
            v_and_b32 {om[h+1]}, 0xffff0000, {om[h+1]}""")
        for mm in range(2):
            b = acc.q(8 * mm + ib); r = R_.q(4 * mm + ib)
            for h in (0, 2):
                k(f"v_pk_add_f32 {b[h:h+2]}, {b[h:h+2]}, {r[h:h+2]}\nv_pk_mul_f32 {b[h:h+2]}, {om[h:h+2]}, {b[h:h+2]}")
        for mm in range(2):
            b = acc.q(8 * mm + ib); a = acc.q(8 * mm + 4 + ib)
            for h in (0, 2):
                k(f"v_pk_fma_f32 {b[h:h+2]}, {g[h:h+2]}, {a[h:h+2]}, {b[h:h+2]}")
        for r in range(4):
            for mm in range(2):
                k(f"buffer_store_dword {acc.q(8*mm+ib)[r]}, {va}, {so_}, {so} offen offset:{1024*mm} {OUTF}")
            if (ib, r) != (3, 3): k(f"s_add_u32 {so}, {so}, {(1<<16) if r < 3 else (1<<20) - 3*(1<<16)}")
    mf(0)
    for ib in range(4):
        if ib < 3: mf(ib + 1)
        fin(ib)

def build(opt={}):
    O = dict(order="XWS", npre=2, sig=6, wnt=0, v2late=1, cpf=1)
    O.update(opt)
    k = Kernel(NAME + "_kernel", nv=256, na=256)
    LX = 131072; LT2 = LX + 16384; LDS = LT2 + 16384; LT1 = 114688
    k("s_cmp_ge_u32 s2, 256")
    k(f"s_cbranch_scc1 {k.name}_end")
    KP = k.s.alloc(32, 4)
    k(f"s_load_dwordx16 {KP[0:16]}, s[0:1], 0\ns_load_dwordx16 {KP[16:32]}, s[0:1], 64")
    P = {n: KP[o // 4:o // 4 + 2] for n, o in KA.items()}
    cva = code_prefetch(k, 0, 40960); cd = k.v.alloc()
    I = ids(k)
    if O['cpf']:
        k(f"s_cmp_lg_u32 {I['w']}, 0")
        with k.skip_if("s_cbranch_scc1"):
            k(f"global_load_dword {cd}, {cva}, off")
    k.v.free(cva)
    pf = Prof(k, 0)
    sx = srd(k, P['x'], SZ['x'])
    if O.get('lat'):
        nm = O['lat']; sl = srd(k, P[nm], 1 << 21); tv = k.v.alloc(2)
        k(f"v_mov_b32 {tv[0]}, s2\nv_lshlrev_b32 {tv[0]}, 13, {tv[0]}\ns_waitcnt vmcnt(0)")
        pf("l0")
        k(f"buffer_load_dword {tv[1]}, {tv[0]}, {sl}, 0 offen\ns_waitcnt vmcnt(0)")
        pf("l1")
        for q in range(1, 9): k(f"buffer_load_dword {tv[1]}, {tv[0]}, {sl}, 0 offen offset:{256*q}\ns_waitcnt vmcnt(0)")
        pf("l2")
        k.s.free(sl); k.v.free(tv)
    sf = srd(k, P['ws'], 3 * 32768, WS_F)
    sdbg = srd(k, P['dbg'], 256)
    FB, FH, FV = k.s.alloc(), k.s.alloc(), k.s.alloc()
    one = k.v.alloc(); zero = k.v.alloc(); vp = k.v.alloc(); vflag = k.v.alloc()
    k(f"""s_mov_b32 {FB}, 0
    s_mov_b32 {FH}, 32768
    s_lshl_b32 {FV}, s2, 7
    v_mov_b32 {vflag}, {FV}
    s_mov_b32 {FV}, 65536
    v_mov_b32 {one}, 1
    v_mov_b32 {zero}, 0
    v_lshlrev_b32 {vp}, 7, v0
    s_cmp_lg_u32 s2, 0""")
    with k.skip_if("s_cbranch_scc1"):
        clrB = k(f"buffer_store_dword {zero}, {vp}, {sf}, 0 offen {SC}")
    ldx = xtile_issue(k, I, sx, LX)
    sb = srd_sel(k, I, P['bre'], P['bim'], SZ['bre'])
    g1 = B1f(k, I, sx, sb, 0, 65536)
    F = gen_F(k, I)
    pf("F")
    H = {}
    def issueW():
        swr = srd(k, P['wr'], SZ['wr']); swi = srd(k, P['wi'], SZ['wi'])
        H['Wp'] = wpre_issue(k, I, swr, swi, False, "nt" if O['wnt'] else "")
        k(f"s_cmp_lg_u32 {I['slot']}, 0")
        with k.skip_if("s_cbranch_scc1"):
            H['Wp2'] = wpre_issue(k, I, swr, swi, True, "")
        k.s.free(swr, swi)
    def issueG():
        sgw = srd(k, P['gw'], SZ['gw'])
        H['Gt'] = gate_issue(k, I, sx, sgw)
        k.s.free(sgw)
    issueG()
    if O['order'] == "XWS": issueW()
    t4 = [srd(k, P[n], 2048) for n in ('lre', 'lim', 'ldt')]
    Q = ssm_param_issue(k, I, *t4); k.s.free(*t4)
    g1.prefill([0])
    if O['order'] == "XSW": issueW()
    pf("iss0")
    sv1 = srd(k, P['ws'], 256 * V1_STR, WS_V1)
    dq = [(s, i) for s in range(1, O['npre']) for i in range(8)]
    def hook1(name):
        if name == 'bar':
            k.wait(ldx); k("s_barrier"); pf("xt")
            k(f"s_or_b32 m0, {I['w']}, s2\ns_cmp_lg_u32 m0, 0")
            with k.skip_if("s_cbranch_scc1"):
                k(f"s_mov_b64 exec, 1\nbuffer_store_dword {one}, {zero}, {sdbg}, 0 offen {SC}\ns_mov_b64 exec, -1")
        elif dq: g1.dma(*dq.pop(0))
    O1 = ph1f(k, I, F, LX, sv1, hook1)
    k.v.free(F)
    while dq: g1.dma(*dq.pop(0))
    pf("ph1")
    sw = srd(k, P['ws'], 256 * 16384 + 2048, WS_W)
    sg = srd(k, P['ws'], 8192, WS_G)
    st = k.s.alloc()
    k(f"s_lshl_b32 {st}, {I['tb']}, 14")
    se = srd(k, P['ws'], 16384, WS_E, st)
    ph1_store(k, *O1, sv1)
    t = k.v.alloc(2)
    k(f"""s_lshl_b32 {st}, {I['ta']}, 10
    s_sub_u32 {st}, {30*512}, {st}
    v_lshl_add_u32 {t[0]}, v0, 2, {st}
    v_mov_b32 {t[1]}, -1
    buffer_store_dword {t[1]}, {t[0]}, {se}, 0 offen {SC}""")
    wave0_store(k, I, f"buffer_store_dword {zero}, {vflag}, {sf}, {FH} offen {SC}\nbuffer_store_dword {zero}, {vflag}, {sf}, {FV} offen {SC}")
    k.v.free(t); k.s.free(st)
    gate_compute(k, I, H['Gt'], sg, SC)
    k(f"s_cmp_lg_u32 {I['slot']}, 0")
    with k.skip_if("s_cbranch_scc1"):
        wpre_compute(k, I, H['Wp2'], sw)
    lastw = wpre_compute(k, I, H['Wp'], sw)
    pf("st")
    g1.prefill(range(O['npre'], 4))
    g1.alloc()
    sc = srd_sel(k, I, P['cre'], P['cim'], SZ['cre'])
    with k.capture() as fl1:
        Pm = ssm_param_compute(k, Q)
        CL = CLoad(k, I, sc)
        T = ph2_params(k, I)
        C2 = ph2_consts(k, I, T, 2.0 ** -20)
    p0 = Poll(k, sdbg, zero, 1, 1)
    p1 = Poll(k, sf, vp, 1, 1, FB)
    pf("pre")
    def pre_bar(s):
        if s == O['sig']: k.wait(lastw)
    def post_bar(s):
        if s == O['sig'] - 3: p0.issue()
        if s == O['sig']:
            fl1.emit_until_safe()
            p0.finish()
            wave0_store(k, I, f"buffer_store_dword {one}, {vflag}, {sf}, {FB} offen {SC}")
    def tail(s, i):
        if s == 0 and i == 0: p1.issue()
        if s < 3: CL.issue1((65536 if i >= 4 else 0) + s * 16384)
    g1.tail = tail
    def fill1(s, kk, m):
        fl1.emit(3)
        if s == 11 and kk == 3 and m == 3: fl1.flush()
        if kk == 3 and m == 0 and s % 4 == 3: pf(f"a{s}")
    acc = g1.main(fill1, pre_bar, post_bar)
    pf("main1")
    k.s.free(sx, sb, sdbg)
    E1 = scan_pass1(k, I, acc, Pm, se)
    p1.finish()
    k("s_barrier")
    pf("pass1")
    L1 = v1_issue(k, I, T, sv1, SC)
    W2 = w2_issue(k, I, T, sw)
    k.s.free(sv1, sw)
    CL.issue(49152)
    free = [CL.drain() for _ in range(6)]
    CL.issue(free.pop(0)); CL.issue(free.pop(0))
    scan_coef(k, acc, Pm)
    hstore_addr(k, I, E1)
    pf("coef")
    E = lookback(k, I, E1, se)
    pf("lb")
    sh = srd(k, P['ws'], 8 << 20, WS_H)
    lasth = pass2f(k, I, acc, Pm, E1, E, sh)
    for _ in range(3): free.append(CL.drain())
    pf("pass2")
    sv2 = srd(k, P['ws'], 256 * V2_STR, WS_V2)
    state = dict(go=False, cur=None)
    p3 = Poll(k, sf, vp, 1, 1, FH)
    def hook(name):
        if name == 'pre_bar1': k.wait(lasth)
        if name == 'post_bar1':
            wave0_store(k, I, f"buffer_store_dword {one}, {vflag}, {sf}, {FH} offen {SC}")
            pf("hflag"); state['go'] = True
        if name == 't' and state['go'] and CL.n < 64:
            for _ in range(2):
                if CL.n & 3 == 0: state['cur'] = free.pop(0)
                CL.issue1(state['cur'])
        if name == 'pre_bar2': p3.issue()
        if name == 'post_bar2':
            while CL.nd < 16: CL.drain()
    V2 = ph2f(k, I, T, C2, W2, L1, LT1, LT2, sv2, hook)
    hold = {}
    if not O['v2late']: hold['v2'] = v2_store(k, *V2, sv2)
    pf("ph2")
    g3 = B3f(k, I, sh, CL)
    p3.finish()
    k("s_waitcnt lgkmcnt(0)\ns_barrier")
    pf("sync3")
    g3.prefill(range(2))
    sd = srd(k, P['dsk'], 2048)
    Ep = epi_issue_f(k, I, sg, sd); k.s.free(sd)
    G = gen_Gf(k, I)
    g3.prefill([2])
    if O['v2late']: hold['v2'] = v2_store(k, *V2, sv2)
    g3.alloc()
    xd_init(k, I, Ep, g3.acc, LX)
    pf("pref")
    p4 = Poll(k, sf, vp, 1, 1, FV)
    def pre_bar3(s):
        if s == 3: k.wait(hold['v2'])
        if s == 12: p4.finish()
    def post_bar3(s):
        if s == 3: wave0_store(k, I, f"buffer_store_dword {one}, {vflag}, {sf}, {FV} offen {SC}")
        if s == 10: p4.issue()
    def tail3(s, i):
        if s == 0 and i == 0: hold['L'] = v2_issue(k, I, sv2, SC)
    g3.tail = tail3
    acc = g3.main(lambda s, kk, q: pf(f"b{s}") if (kk == 1 and q == 0 and s % 4 == 3) else None, pre_bar3, post_bar3)
    pf("main3")
    so = srd(k, P['out'], SZ['out'])
    final(k, I, Ep, acc, G, hold['L'], 0, 32768, so, pf)
    pf("epi")
    pf.done()
    end(k)
    return k, LDS

def write(path, opt={}):
    k, lds = build(opt)
    open(path, "w").write(module(header(), [(k.name, 256, 256, lds)], [k]))
    print(path, k.stats)
    if PROF: json.dump([k.profnames], open(path[:-2] + ".json", "w"))

if __name__ == "__main__":
    opt = {}
    for a in sys.argv[2:]:
        n, v = a.split("="); opt[n] = int(v) if v.lstrip('-').isdigit() else v
    write(sys.argv[1] if len(sys.argv) > 1 else "outf.s", opt)
```

```python
from fused import *

def gen_F2(k, I):
    F = k.v.allocq(32); a = k.v.allocq(8); c = k.v.allocq(8); fr, ib, m1, m2, m3 = [k.v.alloc() for _ in range(5)]
    st = k.s.alloc(); odd = k.s.alloc(2)
    R_ = lambda kap, d: F[4 * kap + d]; M_ = lambda kap, d: F[16 + 4 * kap + d]
    k(f"""s_lshl_b32 {st}, {I['w']}, 4
    v_add_u32 {m3}, {st}, {I['n']}
    v_cvt_f32_u32 {fr}, {m3}
    v_mul_f32 {fr}, {fl(1/128)}, {fr}
    v_lshrrev_b32 {m1}, 1, {I['g']}
    v_lshlrev_b32 {m1}, 4, {m1}
    v_and_b32 {m2}, 1, {I['g']}
    v_lshl_add_u32 {m1}, {m2}, 2, {m1}
    v_cvt_f32_u32 {ib}, {m1}
    v_mul_f32 {ib}, {ib}, {fr}
    v_cmp_eq_u32 vcc, 0, {m3}""")
    for j in range(8): k(f"v_fmamk_f32 {a[j]}, {fr}, {fl(float(8*(j>>2) + (j&3)))}, {ib}")
    for j in range(8): k(f"v_cos_f32 {c[j]}, {a[j]}")
    for j in range(8): k(f"v_sin_f32 {a[j]}, {a[j]}")
    k(f"""v_mov_b32 {ib}, 0x80008000
    v_bfe_i32 {m2}, {I['n']}, 0, 1
    v_bfe_i32 {m1}, {I['n']}, 1, 1
    v_cmp_ne_u32 {odd}, 0, {m2}
    v_and_b32 {m2}, {ib}, {m2}
    v_and_b32 {m1}, {ib}, {m1}
    v_xor_b32 {m3}, {m1}, {m2}
    v_mov_b32 {fr}, 0xbf803f80""")
    for d in range(4):
        k(f"v_cvt_pk_bf16_f32 {R_(0,d)}, {c[2*d]}, {c[2*d+1]}\nv_cvt_pk_bf16_f32 {M_(0,d)}, -{a[2*d]}, -{a[2*d+1]}")
        k(f"v_cndmask_b32 {M_(0,d)}, {M_(0,d)}, {fr}, vcc")
    for d in range(4):
        k(f"""v_cndmask_b32 {R_(1,d)}, {R_(0,d)}, {M_(0,d)}, {odd}
        v_cndmask_b32 {M_(1,d)}, {M_(0,d)}, {R_(0,d)}, {odd}
        v_xor_b32 {R_(2,d)}, {m2}, {R_(0,d)}
        v_xor_b32 {M_(2,d)}, {m2}, {M_(0,d)}
        v_xor_b32 {R_(3,d)}, {m3}, {R_(1,d)}
        v_xor_b32 {M_(3,d)}, {m1}, {M_(1,d)}
        v_xor_b32 {R_(1,d)}, {m1}, {R_(1,d)}
        v_xor_b32 {M_(1,d)}, {m3}, {M_(1,d)}""")
    k.v.free(a, c, fr, ib, m1, m2, m3); k.s.free(st, odd)
    return F

def gen_G1b(k, I):
    G = k.v.allocq(32); a = k.v.allocq(8); c = k.v.allocq(8)
    f, b, sb, sel, mk = [k.v.alloc() for _ in range(5)]
    st = k.s.alloc()
    k(f"""v_lshrrev_b32 {f}, 1, {I['g']}
    v_lshlrev_b32 {f}, 3, {f}
    v_and_b32 {b}, 1, {I['g']}
    v_lshl_add_u32 {f}, {b}, 1, {f}
    v_cvt_f32_u32 {sb}, {f}
    v_bfe_i32 {f}, {I['n']}, 0, 1
    v_and_b32 {sel}, 0x02020202, {f}
    v_xor_b32 {sel}, 0x03020100, {sel}
    v_and_b32 {f}, 0x80000000, {f}
    v_bfe_i32 {mk}, {I['n']}, 1, 1
    v_and_b32 {mk}, 0x80008000, {mk}
    v_xor_b32 {mk}, {mk}, {f}
    s_and_b32 {st}, {I['w']}, 1
    s_lshl_b32 {st}, {st}, 6
    v_add_u32 {f}, {st}, {I['n']}
    v_cvt_f32_u32 {f}, {f}
    v_mul_f32 {f}, {fl(1/128)}, {f}""")
    for ib in range(2):
        if ib: k(f"v_add_f32 {f}, {fl(16/128)}, {f}")
        k(f"v_mul_f32 {b}, {f}, {sb}")
        for j in range(8): k(f"v_fmamk_f32 {a[j]}, {f}, {fl(float(16*(j>>2) + 4*((j>>1)&1) + (j&1)))}, {b}")
        for j in range(8): k(f"v_cos_f32 {c[j]}, {a[j]}")
        for j in range(8): k(f"v_sin_f32 {a[j]}, {a[j]}")
        for j in range(8): k(f"v_cvt_pk_bf16_f32 {G[16*ib+j]}, {c[j]}, -{a[j]}")
        for j in range(8): k(f"v_perm_b32 {G[16*ib+8+j]}, {G[16*ib+j]}, {G[16*ib+j]}, {sel}\nv_xor_b32 {G[16*ib+8+j]}, {mk}, {G[16*ib+8+j]}")
    k(f"""v_lshlrev_b32 {b}, 31, {I['n']}
    v_or_b32 {b}, 0x3f003f00, {b}
    v_cmp_eq_u32 vcc, 0, {I['g']}""")
    for ib in range(2): k(f"v_cndmask_b32 {G[16*ib]}, {G[16*ib]}, {b}, vcc")
    k.v.free(a, c, f, b, sb, sel, mk); k.s.free(st)
    return G
```

```python
from common import *

LOG2E = 1.4426950408889634
def ssm_param_issue(k, I, slre, slim, sldt):
    Q = k.v.alloc(3); va = k.v.alloc(); so = k.s.alloc(); st = k.s.alloc()
    k(f"""v_and_b32 {va}, 31, {I.get('lp', I['l'])}
    v_lshlrev_b32 {va}, 1, {va}
    s_lshl_b32 {so}, {I['cb']}, 7
    s_and_b32 {st}, {I['w']}, 1
    s_lshl_b32 {st}, {st}, 6
    s_add_u32 {so}, {so}, {st}
    buffer_load_ushort {Q[0]}, {va}, {slre}, {so} offen
    buffer_load_ushort {Q[1]}, {va}, {slim}, {so} offen
    buffer_load_ushort {Q[2]}, {va}, {sldt}, {so} offen""")
    k.v.free(va); k.s.free(so, st)
    return Q

def csq(k, d, s, t):
    k(f"""v_mul_f32 {t}, {s[1]}, {s[1]}
    v_mul_f32 {d[1]}, {s[0]}, {s[1]}
    v_fma_f32 {d[0]}, {s[0]}, {s[0]}, -{t}
    v_add_f32 {d[1]}, {d[1]}, {d[1]}""")

def ssm_param_compute(k, Q):
    Pm = {n: k.v.alloc(2) for n in ('L1', 'L16', 'L32', 'L64', 'L1024', 'coef')}
    t = k.v.alloc(4)
    L = Pm['L1']; cf = Pm['coef']
    k(f"""v_lshlrev_b32 {Q[0]}, 16, {Q[0]}
    v_lshlrev_b32 {Q[1]}, 16, {Q[1]}
    v_lshlrev_b32 {Q[2]}, 16, {Q[2]}
    v_mul_f32 {Q[2]}, {fl(LOG2E)}, {Q[2]}
    v_exp_f32 {Q[2]}, {Q[2]}
    v_cvt_pk_bf16_f32 {Q[2]}, {Q[2]}, {Q[2]}
    v_and_b32 {Q[2]}, 0xffff0000, {Q[2]}
    v_mul_f32 {t[0]}, {Q[2]}, {Q[0]}
    v_mul_f32 {t[1]}, {Q[2]}, {Q[1]}
    v_mul_f32 {t[0]}, {fl(LOG2E)}, {t[0]}
    v_mul_f32 {t[1]}, 0.15915494, {t[1]}
    v_exp_f32 {t[0]}, {t[0]}
    v_rndne_f32 {t[2]}, {t[1]}
    v_sub_f32 {t[1]}, {t[1]}, {t[2]}
    v_cos_f32 {t[2]}, {t[1]}
    v_sin_f32 {t[3]}, {t[1]}
    v_mul_f32 {L[0]}, {t[0]}, {t[2]}
    v_mul_f32 {L[1]}, {t[0]}, {t[3]}
    v_mul_f32 {t[0]}, {Q[0]}, {Q[0]}
    v_fma_f32 {t[0]}, {Q[1]}, {Q[1]}, {t[0]}
    v_rcp_f32 {t[0]}, {t[0]}
    v_add_f32 {t[1]}, -1.0, {L[0]}
    v_add_f32 {t[0]}, {t[0]}, {t[0]}
    v_mul_f32 {t[2]}, {t[1]}, {Q[0]}
    v_fma_f32 {t[2]}, {L[1]}, {Q[1]}, {t[2]}
    v_mul_f32 {t[3]}, {L[1]}, {Q[0]}
    v_fma_f32 {t[3]}, -{t[1]}, {Q[1]}, {t[3]}
    v_mul_f32 {cf[0]}, {t[2]}, {t[0]}
    v_mul_f32 {cf[1]}, {t[3]}, {t[0]}""")
    a = Pm['L16']
    csq(k, a, L, t[0])
    for _ in range(3): csq(k, a, a, t[0])
    csq(k, Pm['L32'], a, t[0]); csq(k, Pm['L64'], Pm['L32'], t[0])
    b = Pm['L1024']
    Pm['L128'] = k.v.alloc(2)
    csq(k, Pm['L128'], Pm['L64'], t[0])
    csq(k, b, Pm['L128'], t[0])
    for _ in range(2): csq(k, b, b, t[0])
    k.v.free(t, Q)
    return Pm

def cfma(k, d, a, b, c):
    k(f"""v_fma_f32 {d[0]}, {a[0]}, {b[0]}, {c[0]}
    v_fma_f32 {d[1]}, {a[0]}, {b[1]}, {c[1]}
    v_fma_f32 {d[0]}, -{a[1]}, {b[1]}, {d[0]}
    v_fma_f32 {d[1]}, {a[1]}, {b[0]}, {d[1]}""")

BC0 = " op_sel:[0,0,0] op_sel_hi:[0,1,1]"
BC1 = " op_sel:[1,0,0] op_sel_hi:[1,1,1]"
NEG0 = " neg_lo:[1,0,0] neg_hi:[1,0,0]"

class B1:
    NST = 4
    def __init__(self, k, I, sx, sb, ldsA, ldsB):
        self.k, self.I, self.sx, self.sb, self.ldsA, self.ldsB = k, I, sx, sb, ldsA, ldsB
        self.va = k.v.alloc(4); self.vb = k.v.alloc(4); self.ra = k.v.alloc(4); self.rb = k.v.alloc(4)
        self.soA, self.soB, self.mA, self.mB = [k.s.alloc() for _ in range(4)]
        t = k.v.alloc(3); st = k.s.alloc()
        l = I['l']
        k(f"""v_lshrrev_b32 {t[0]}, 5, {l}
        v_lshlrev_b32 {t[0]}, 5, {t[0]}
        v_bfe_u32 {t[1]}, {l}, 3, 1
        v_lshl_or_b32 {t[0]}, {t[1]}, 4, {t[0]}
        v_bfe_u32 {t[1]}, {l}, 4, 1
        v_or_b32 {t[0]}, {t[0]}, {t[1]}
        v_lshlrev_b32 {t[0]}, 11, {t[0]}
        v_lshrrev_b32 {t[1]}, 3, {l}
        v_lshlrev_b32 {t[1]}, 11, {t[1]}
        v_and_b32 {t[2]}, 7, {l}
        v_xor_b32 {t[2]}, {t[2]}, {I['g']}
        v_lshlrev_b32 {t[2]}, 4, {t[2]}
        v_or_b32 {t[0]}, {t[0]}, {t[2]}
        v_or_b32 {t[1]}, {t[1]}, {t[2]}""")
        for j in range(4):
            x = 64 * (j & 1)
            k(f"v_xor_b32 {self.va[j]}, {x}, {t[0]}\nv_add_u32 {self.va[j]}, {j*4096 - j*1024}, {self.va[j]}")
            k(f"v_xor_b32 {self.vb[j]}, {x}, {t[1]}\nv_add_u32 {self.vb[j]}, {j*16384 - j*1024}, {self.vb[j]}")
        k(f"""s_lshl_b32 {self.soA}, {I['ca']}, 18
        s_lshr_b32 {st}, {I['w']}, 1
        s_lshl_b32 {self.mA}, {st}, 17
        s_add_u32 {self.soA}, {self.soA}, {self.mA}
        s_lshl_b32 {self.soB}, {I['cb']}, 17
        s_lshl_b32 {self.mA}, {st}, 16
        s_add_u32 {self.soB}, {self.soB}, {self.mA}
        s_and_b32 {st}, {I['w']}, 1
        s_lshl_b32 {st}, {st}, 14
        s_add_u32 {self.soA}, {self.soA}, {st}
        s_lshl_b32 {st}, {I['w']}, 12
        s_add_u32 {self.mA}, {st}, {ldsA}
        s_add_u32 {self.mB}, {st}, {ldsB}""")
        k(f"""v_and_b32 {t[0]}, 31, {l}
        v_lshlrev_b32 {t[0]}, 7, {t[0]}
        v_bfe_u32 {t[1]}, {l}, 1, 3
        v_lshrrev_b32 {t[2]}, 5, {l}
        v_xor_b32 {t[1]}, {t[1]}, {t[2]}
        v_lshl_or_b32 {t[0]}, {t[1]}, 4, {t[0]}
        s_lshr_b32 {st}, {I['w']}, 1
        s_lshl_b32 {st}, {st}, 13
        s_add_u32 {st}, {st}, {ldsA}
        v_add_u32 {t[1]}, {st}, {t[0]}
        s_and_b32 {st}, {I['w']}, 1
        s_lshl_b32 {st}, {st}, 13
        s_add_u32 {st}, {st}, {ldsB}
        v_add_u32 {t[2]}, {st}, {t[0]}""")
        for kk in range(4):
            k(f"v_xor_b32 {self.ra[kk]}, {32*kk}, {t[1]}\nv_xor_b32 {self.rb[kk]}, {32*kk}, {t[2]}")
        k.v.free(t); k.s.free(st)
        self.last = {}
    def dma(self, s, i):
        k = self.k; j = i & 3; buf = (s % self.NST) * 16384
        if i < 4:
            if j == 0: k(f"s_add_u32 m0, {self.mA}, {buf}")
            ins = k(f"buffer_load_dwordx4 {self.va[j]}, {self.sx}, {self.soA} offen offset:{1024*j} lds")
            if j == 3: k(f"s_add_u32 {self.soA}, {self.soA}, 128")
        else:
            if j == 0: k(f"s_add_u32 m0, {self.mB}, {buf}")
            ins = k(f"buffer_load_dwordx4 {self.vb[j]}, {self.sb}, {self.soB} offen offset:{1024*j} lds")
            if j == 3: k(f"s_add_u32 {self.soB}, {self.soB}, 128")
        self.last[s] = ins
    def prefill(self, steps):
        for s in steps:
            for i in range(8): self.dma(s, i)
    def main(self, fill=None):
        k = self.k; NS = 16
        self.acc = acc = k.v.alloc(64)
        fr = k.v.allocq(32)
        def reads(s, kk):
            f = fr.q((s * 4 + kk) & 1, 16); buf = (s % self.NST) * 16384
            out = []
            for b in range(2):
                out.append(f"ds_read_b128 {f.q(b)}, {self.ra[kk]} offset:{buf + 4096*b}")
                out.append(f"ds_read_b128 {f.q(2+b)}, {self.rb[kk]} offset:{buf + 4096*b}")
            return out
        k.wait(self.last[0]); k("s_barrier")
        lastrd = None
        for r in reads(0, 0): lastrd = k(r)
        for s in range(NS):
            for kk in range(4):
                f = fr.q((s * 4 + kk) & 1, 16)
                rd = []
                if kk < 3: rd = reads(s, kk + 1)
                elif s + 1 < NS:
                    k.wait(lastrd, self.last[s + 1]); k("s_barrier")
                    rd = reads(s + 1, 0)
                ds, di = (s + self.NST, 0) if kk == 3 else (s + self.NST - 1, 2 * (kk + 1))
                dm = [(ds, di), (ds, di + 1)] if (self.NST <= ds < NS) else []
                for m, (rb, c) in enumerate(((0, 0), (0, 1), (1, 1), (1, 0))):
                    d = acc.q(2 * rb + c, 16)
                    first = s == 0 and kk == 0
                    k(f"v_mfma_f32_32x32x16_bf16 {d}, {f.q(rb)}, {f.q(2+c)}, {0 if first else d}")
                    if m < 2 and rd:
                        k(rd[2 * m]); lastrd = k(rd[2 * m + 1])
                    if m >= 2 and dm: self.dma(*dm[m - 2])
                    if fill: fill(s, kk, m)
        k.v.free(fr, self.va, self.vb, self.ra, self.rb); k.s.free(self.soA, self.soB, self.mA, self.mB)
        return acc

def upair(acc, j, c):
    rb, q = j >> 3, j & 7
    return acc.q(2 * rb + c, 16)[2 * q:2 * q + 2]

def scan_pass1(k, I, acc, Pm, se, flags="sc1"):
    er, ei, ta, tb = [k.v.alloc(2) for _ in range(4)]
    L = Pm['L1']
    cr, ci = upair(acc, 0, 0), upair(acc, 0, 1)
    outs = [(er, ei), (ta, tb)]
    for j in range(1, 16):
        nr, ni = outs[(15 - j) & 1]
        k(f"""v_pk_fma_f32 {nr}, {L}, {cr}, {upair(acc,j,0)}{BC0}
        v_pk_fma_f32 {ni}, {L}, {ci}, {upair(acc,j,1)}{BC0}
        v_pk_fma_f32 {nr}, {L}, {ci}, {nr}{BC1}{NEG0}
        v_pk_fma_f32 {ni}, {L}, {cr}, {ni}{BC1}""")
        cr, ci = nr, ni
    cfma(k, ta, Pm['L16'], (er[0], ei[0]), (er[1], ei[1]))
    k(f"""v_mov_b32 {tb[0]}, {ta[0]}
    v_mov_b32 {tb[1]}, {ta[1]}
    v_permlane32_swap_b32 {ta[0]}, {tb[0]}
    v_permlane32_swap_b32 {ta[1]}, {tb[1]}""")
    cfma(k, tb, Pm['L32'], ta, tb)
    va = k.v.alloc(); st = k.s.alloc(); s2_ = k.s.alloc()
    k(f"""v_min_u32 {tb[0]}, -2, {tb[0]}
    v_min_u32 {tb[1]}, -2, {tb[1]}
    s_lshl_b32 {st}, {I['ca']}, 1
    s_lshr_b32 {s2_}, {I['w']}, 1
    s_add_u32 {st}, {st}, {s2_}
    s_sub_u32 {st}, 31, {st}
    s_lshl_b32 {st}, {st}, 9
    s_and_b32 {s2_}, {I['w']}, 1
    s_lshl_b32 {s2_}, {s2_}, 8
    s_add_u32 {st}, {st}, {s2_}
    v_and_b32 {va}, 31, {I['l']}
    v_lshl_add_u32 {va}, {va}, 3, {st}
    s_mov_b32 exec_hi, 0
    buffer_store_dwordx2 {tb}, {va}, {se}, 0 offen {flags}
    s_mov_b64 exec, -1""")
    t = k.v.alloc()
    k(f"v_lshrrev_b32 {t}, 5, {I['l']}\nv_lshl_add_u32 {va}, {t}, 13, {va}\nv_add_u32 {va}, 512, {va}")
    k.v.free(tb, t); k.s.free(st, s2_)
    return dict(er=er, ei=ei, lo=ta, va=va)

def scan_coef(k, acc, Pm):
    cf = Pm['coef']; t = k.v.alloc(4)
    for j in range(16):
        ur, ui = upair(acc, j, 0), upair(acc, j, 1)
        tr = t[0:2] if j & 1 else t[2:4]
        k(f"""v_pk_mul_f32 {tr}, {cf}, {ur} op_sel:[1,0] op_sel_hi:[1,1]
        v_pk_mul_f32 {ur}, {cf}, {ur} op_sel:[0,0] op_sel_hi:[0,1]
        v_pk_fma_f32 {ur}, {cf}, {ui}, {ur}{BC1}{NEG0}
        v_pk_fma_f32 {ui}, {cf}, {ui}, {tr}{BC0}""")
    k.v.free(t)

def lookback(k, I, E1, se, maxspin=1 << 20):
    E = k.v.allocq(32); m = k.v.alloc(); va2 = k.v.alloc(); cnt = k.s.alloc()
    va = E1['va']
    lp, out = k.lab('lb'), k.lab('lbdone')
    k(f"v_add_u32 {va2}, 4096, {va}\ns_mov_b32 {cnt}, 0")
    k(f"{lp}:")
    for j in range(16):
        k(f"buffer_load_dwordx2 {E.q(j,2)}, {va if j < 8 else va2}, {se}, 0 offen offset:{512*(j&7)} sc1")
    k(f"v_max_u32 {m}, {E[0]}, {E[1]}")
    for j in range(1, 16): k(f"v_max3_u32 {m}, {m}, {E[2*j]}, {E[2*j+1]}")
    k(f"""v_cmp_eq_u32 vcc, -1, {m}
    s_cbranch_vccz {out}
    s_add_u32 {cnt}, {cnt}, 1
    s_cmp_lt_u32 {cnt}, {maxspin}
    s_cbranch_scc1 {lp}
    {out}:""")
    k.v.free(m, va2, va); k.s.free(cnt)
    return E

def scan_pass2(k, I, acc, Pm, E1, E, sh, flags=""):
    for j in range(14, -1, -1):
        cfma(k, E.q(j, 2), Pm['L64'], E.q(j + 1, 2), E.q(j, 2))
    S, T = E.q(0, 2), E.q(1, 2); U, V = E.q(2, 2), E.q(3, 2)
    k(f"""v_mov_b32 {T[0]}, {S[0]}
    v_mov_b32 {T[1]}, {S[1]}
    v_permlane32_swap_b32 {S[0]}, {T[0]}
    v_permlane32_swap_b32 {S[1]}, {T[1]}""")
    cfma(k, S, Pm['L1024'], T, S)
    cfma(k, E1['lo'], Pm['L32'], S, E1['lo'])
    k(f"s_mov_b32 exec_lo, 0\nv_mov_b32 {S[0]}, {E1['lo'][0]}\nv_mov_b32 {S[1]}, {E1['lo'][1]}\ns_mov_b64 exec, -1")
    e0 = (E1['er'][0], E1['ei'][0])
    cfma(k, e0, Pm['L16'], S, e0)
    cf = Pm['coef']
    for h, x in ((0, S), (1, e0)):
        k(f"""v_mul_f32 {U[h]}, {cf[0]}, {x[0]}
        v_mul_f32 {V[h]}, {cf[0]}, {x[1]}
        v_fma_f32 {U[h]}, -{cf[1]}, {x[1]}, {U[h]}
        v_fma_f32 {V[h]}, {cf[1]}, {x[0]}, {V[h]}""")
    va = k.v.alloc(); t = k.v.alloc(); so = k.s.alloc(); st = k.s.alloc(); s2_ = k.s.alloc()
    k(f"""s_lshl_b32 {st}, {I['ca']}, 1
    s_lshr_b32 {s2_}, {I['w']}, 1
    s_add_u32 {st}, {st}, {s2_}
    s_lshl_b32 {so}, {st}, 9
    s_and_b32 {st}, {st}, 2
    s_lshl_b32 {st}, {st}, 1
    s_or_b32 {st}, {st}, {s2_}
    s_lshl_b32 {st}, {st}, 2
    v_and_b32 {va}, 31, {I['l']}
    v_xor_b32 {va}, {st}, {va}
    v_lshlrev_b32 {va}, 3, {va}
    v_lshrrev_b32 {t}, 5, {I['l']}
    v_lshl_or_b32 {va}, {t}, 14, {va}
    s_and_b32 {s2_}, {I['w']}, 1
    s_lshl_b32 {s2_}, {s2_}, 8
    s_add_u32 {so}, {so}, {s2_}
    s_lshl_b32 {s2_}, {I['cb']}, 15
    s_add_u32 {so}, {so}, {s2_}""")
    L = Pm['L1']; cr, ci = U, V
    O = E[8:32]
    pend = []
    last = None
    def flush():
        nonlocal last
        j, o = pend.pop(0)
        k(f"v_permlane32_swap_b32 {o[0]}, {o[1]}")
        last = k(f"buffer_store_dwordx2 {o}, {va}, {sh}, {so} offen {flags}")
        if j < 15: k(f"s_add_u32 {so}, {so}, {32*16384}")
    for j in range(16):
        nr, ni = upair(acc, j, 0), upair(acc, j, 1)
        k(f"""v_pk_fma_f32 {nr}, {L}, {cr}, {nr}{BC0}
        v_pk_fma_f32 {ni}, {L}, {ci}, {ni}{BC0}
        v_pk_fma_f32 {nr}, {L}, {ci}, {nr}{BC1}{NEG0}
        v_pk_fma_f32 {ni}, {L}, {cr}, {ni}{BC1}""")
        cr, ci = nr, ni
        if pend: flush()
        o = O.q(j % 12, 2)
        k(f"v_cvt_pk_bf16_f32 {o[0]}, {nr[0]}, {nr[1]}\nv_cvt_pk_bf16_f32 {o[1]}, -{ni[0]}, -{ni[1]}")
        pend.append((j, o))
    flush()
    k.v.free(va, t, E, acc, E1['er'], E1['ei'], E1['lo'], *Pm.values()); k.s.free(so, st, s2_)
    return last
```

```python
import sys, json
from fused import *
from opt1 import *

class WDir:
    def __init__(self, k, I, T, swr, swi, lt2):
        self.k, self.I, self.T, self.sw, self.lt2 = k, I, T, (swr, swi), lt2
        self.rows = k.s.alloc(8, 4)
        self.va = k.v.alloc(); self.mw = k.s.alloc(); self.so = k.s.alloc()
        st = k.s.alloc(); R_ = self.rows
        k(f"""s_lshl_b32 {R_[0]}, {I['w']}, 9
        s_add_u32 {R_[0]}, {R_[0]}, {T['ks']}
        s_lshr_b32 {st}, {I['w']}, 1
        s_and_b32 {st}, {st}, {T['sp']}
        s_mul_i32 {st}, {st}, 960
        s_sub_u32 {R_[0]}, {R_[0]}, {st}""")
        for b in range(1, 4): k(f"s_add_u32 {R_[2*b]}, {R_[0]}, {128*b}")
        for b in range(4): k(f"s_sub_u32 {R_[2*b+1]}, 2048, {R_[2*b]}\ns_and_b32 {R_[2*b+1]}, {R_[2*b+1]}, 2047")
        self.spw = k.s.alloc()
        k(f"""s_cmp_eq_u32 {I['w']}, 0
        s_cselect_b32 {self.spw}, {T['sp']}, 0
        s_cmp_eq_u32 {self.spw}, 1
        s_cselect_b32 {R_[1]}, 1024, {R_[1]}""")
        for j in range(8): k(f"s_mul_i32 {R_[j]}, {R_[j]}, 1026")
        k(f"v_lshlrev_b32 {self.va}, 4, {I['l']}\ns_lshl_b32 {self.mw}, {I['w']}, 12")
        k.s.free(st)
        self.n = 0; self.slot = {}; self.ld = None
    def issue1(self, slot):
        k = self.k; b, q = self.n >> 2, self.n & 3
        if q == 0: self.slot[b] = slot
        if q & 1 == 0: k(f"s_and_b32 {self.so}, {self.rows[2*b+(q>>1)]}, -16")
        k(f"s_add_u32 m0, {self.mw}, {self.slot[b] + 1024*q}")
        self.ld = k(f"buffer_load_dwordx4 {self.va}, {self.sw[q&1]}, {self.so} offen lds")
        self.n += 1
    def tail_issue(self):
        k = self.k; self.tc = k.v.allocq(8); ta = k.v.alloc()
        k(f"v_mov_b32 {ta}, {BIG}")
        for j in range(8): k(f"v_writelane_b32 {ta}, {self.rows[j]}, {j}")
        k(f"v_and_b32 {ta}, -16, {ta}")
        k("s_mov_b64 exec, 255")
        for a in range(2): k(f"buffer_load_dwordx4 {self.tc.q(a)}, {ta}, {self.sw[a]}, 0 offen offset:1024")
        k("s_mov_b64 exec, -1")
        k.v.free(ta)
    def tail_write(self):
        k = self.k; ad = k.v.alloc(); st = k.s.alloc()
        k(f"""s_lshl_b32 {st}, {self.I['w']}, 8
        s_add_u32 {st}, {st}, {self.lt2}
        v_lshl_add_u32 {ad}, {self.I['l']}, 11, {st}
        s_mov_b64 exec, 255
        ds_write_b128 {ad}, {self.tc.q(0)}
        ds_write_b128 {ad}, {self.tc.q(1)} offset:1024
        s_mov_b64 exec, -1""")
        k.v.free(ad, self.tc); k.s.free(st, self.so, *self.sw); k.v.free(self.va)
    def prep(self):
        k, I, T = self.k, self.I, self.T
        self.a0, self.a3, self.sg = k.v.alloc(), k.v.alloc(), k.v.alloc(2); self.up = k.s.alloc(2); self.ov = k.s.alloc(2)
        self.d, self.m = k.s.alloc(), k.s.alloc(); t = k.v.alloc(); tb = k.s.alloc(); a0, a3 = self.a0, self.a3
        k(f"""s_and_b32 {self.d}, {self.rows[0]}, 15
        s_and_b32 {self.m}, {self.rows[1]}, 15
        s_add_u32 {self.m}, {self.m}, 2048
        v_lshlrev_b32 {a0}, 9, {I['g']}
        v_lshl_add_u32 {a0}, {I['n']}, 3, {a0}
        s_lshl_b32 {tb}, {T['k1']}, 1
        v_add_u32 {a0}, {tb}, {a0}
        s_add_u32 {tb}, {self.m}, 1664
        v_sub_u32 {t}, {tb}, {a0}
        v_add_u32 {a0}, {self.d}, {a0}
        v_cmp_lt_u32 {self.up}, 1, {I['g']}
        v_cndmask_b32 {a0}, {a0}, {t}, {self.up}
        v_cndmask_b32 {self.sg[0]}, 1.0, -1.0, {self.up}
        v_add_u32 {a3}, 384, {a0}
        v_and_b32 {t}, 1024, {a3}
        v_cmp_ne_u32 {self.ov}, 0, {t}
        s_lshl_b32 {tb}, {I['w']}, 8
        s_add_u32 {tb}, {tb}, {self.lt2 - 1024}
        v_add_u32 {t}, {tb}, {a3}
        v_add_u32 {a0}, {self.mw}, {a0}
        v_add_u32 {a3}, {self.mw}, {a3}
        v_cndmask_b32 {a3}, {a3}, {t}, {self.ov}
        v_sub_u32 {a3}, {a3}, {a0}
        v_cndmask_b32 {self.sg[1]}, 0, -1, {self.ov}""")
        k.v.free(t); k.s.free(tb)
    def gather(self, b, out, second=False):
        k, I, T = self.k, self.I, self.T
        a0, a3 = k.v.alloc(), k.v.alloc()
        k(f"""v_add_u32 {a0}, {self.slot[b]}, {self.a0}
        v_and_b32 {a3}, {hex((4096*b - self.slot[b]) & 0xffffffff)}, {self.sg[1]}
        v_add3_u32 {a3}, {a3}, {self.a3}, {a0}""")
        if b == 0:
            k(f"s_cmp_eq_u32 {self.spw}, 0")
            with k.skip_if("s_cbranch_scc1"):
                if second: k(f"s_mov_b32 exec_hi, 0\nv_add_u32 {a0}, 2048, {a0}\nv_add_u32 {a3}, 2048, {a3}\ns_mov_b64 exec, -1")
                else: k(f"s_mov_b32 exec_lo, 0\nv_subrev_u32 {a0}, 2048, {a0}\nv_subrev_u32 {a3}, 2048, {a3}\ns_mov_b64 exec, -1")
        last = None
        for r in range(4):
            for a in range(2):
                last = k(f"ds_read_u16_d16_hi {out[4*a+r]}, {a0 if r < 3 else a3} offset:{(128*r if r < 3 else 0) + 1024*a}")
        k.v.free(a0, a3)
        return last
    def symm(self, outs):
        k, I = self.k, self.I
        al = k.v.allocq(2 * len(outs), 2); t = k.v.alloc(2); d, m = k.s.alloc(), k.s.alloc()
        for j, (b, out, second) in enumerate(outs):
            k(f"""s_add_u32 {m}, {self.m}, {self.mw}
            s_add_u32 {m}, {m}, {self.slot[b]}
            s_lshl_b32 {d}, {I['w']}, 8
            s_add_u32 {d}, {d}, {self.d}
            s_add_u32 {d}, {d}, {self.lt2 + 4096*b}""")
            if b == 0:
                k(f"s_lshl_b32 vcc_lo, {self.spw}, 11")
                k(f"s_add_u32 {d}, {d}, vcc_lo" if second else f"s_sub_u32 {m}, {m}, vcc_lo")
            k(f"""v_mov_b32 {t[0]}, {m}
            v_mov_b32 {t[1]}, {d}
            v_cndmask_b32 {t[0]}, {t[0]}, {t[1]}, {self.up}
            ds_read_u16_d16_hi {al[2*j]}, {t[0]}
            ds_read_u16_d16_hi {al[2*j+1]}, {t[0]} offset:1024""")
        k("s_waitcnt lgkmcnt(0)")
        for lo, r in ((True, 0), (False, 3)):
            k(f"s_mov_b32 exec_lo, {1 if lo else 0}\ns_mov_b32 exec_hi, {0 if lo else 1}")
            for j, (b, out, second) in enumerate(outs):
                k(f"""v_add_f32 {out[r]}, {out[r]}, {al[2*j]}
                v_sub_f32 {out[4+r]}, {out[4+r]}, {al[2*j+1]}
                v_mul_f32 {out[r]}, 0.5, {out[r]}
                v_mul_f32 {out[4+r]}, 0.5, {out[4+r]}""")
        k("s_mov_b64 exec, -1")
        k.v.free(al, t); k.s.free(d, m)
    def sign(self, out):
        for h in (4, 6): self.k(f"v_pk_mul_f32 {out[h:h+2]}, {self.sg}, {out[h:h+2]} op_sel_hi:[0,1]")
    def done(self):
        self.k.v.free(self.a0, self.a3, self.sg); self.k.s.free(self.rows, self.mw, self.spw, self.up, self.ov, self.d, self.m)

def mf2(k, M, data_is_A, d, o):
    for c in range(2):
        A, B = (d, M.q(c)) if data_is_A else (M.q(c), d)
        k(f"v_mfma_f32_16x16x32_bf16 {o.q(c)}, {A}, {B}, 0")

def ph2_w(k, T, WD):
    Wf = k.v.allocq(32); X = k.v.allocq(8)
    k.wait(WD.ld)
    k(f"s_cmp_eq_u32 {T['sp']}, 0")
    with k.skip_if("s_cbranch_scc1"):
        WD.gather(0, X, True)
    for b in range(4): WD.lastrd = WD.gather(b, Wf.q(b, 8))
    return Wf, X

def ph2_wfix(k, T, WD, Wf, X):
    k.wait(WD.lastrd)
    k(f"s_cmp_lg_u32 {T['k1']}, 0")
    with k.skip_if("s_cbranch_scc1"):
        WD.symm([(b, Wf.q(b, 8), False) for b in range(4)] + [(0, X, True)])
    for b in range(4): WD.sign(Wf.q(b, 8))
    WD.sign(X)
    WD.done()

def ph2_s1(k, I, C, L, lds1):
    D = k.v.allocq(8); acc = k.v.allocq(16); a0, ad = k.v.alloc(), k.v.alloc(); st = k.s.alloc()
    k(f"""v_and_b32 {a0}, 7, {I['n']}
    v_lshlrev_b32 {ad}, 2, {I['g']}
    v_xor_b32 {a0}, {a0}, {ad}
    v_lshlrev_b32 {a0}, 4, {a0}
    v_lshl_or_b32 {a0}, {I['n']}, 10, {a0}
    s_lshl_b32 {st}, {I['w']}, 8
    s_add_u32 {st}, {st}, {lds1}
    v_add_u32 {a0}, {st}, {a0}""")
    def mov(b):
        for j in range(4): k(f"v_mov_b32 {D[4*(b&1)+j]}, {L[4*j+b]}")
    def out(b, o):
        z = acc.q(b & 1, 8)
        k(f"v_xor_b32 {ad}, {16*b}, {a0}")
        for r in range(4): k(f"v_cvt_pk_bf16_f32 {o[r]}, {z[r]}, {z[4+r]}")
        return k(f"ds_write_b128 {ad}, {o}")
    mov(0); mov(1)
    mf2(k, C['sf'], True, D.q(0), acc.q(0, 8)); mf2(k, C['sf'], True, D.q(1), acc.q(1, 8))
    mov(2); mov(3)
    out(0, L.q(3)); mf2(k, C['sf'], True, D.q(0), acc.q(0, 8))
    out(1, L.q(0)); mf2(k, C['sf'], True, D.q(1), acc.q(1, 8))
    out(2, L.q(1)); last = out(3, L.q(2))
    k.v.free(D, acc, a0, ad, L, C.pop('sf')); k.s.free(st)
    return last

def ph2_mid(k, I, T, C, Wf, X, lds1, lds2, mark):
    D = k.v.allocq(16); acc = k.v.allocq(32); tmp = k.v.alloc(4); ad = k.v.alloc(); a0 = k.v.alloc(); st = k.s.alloc(); Xd = k.v.allocq(4)
    z = lambda b, c: acc.q(2 * b + c)
    def stage(M, data_is_A):
        for b in range(4): mf2(k, M, data_is_A, D.q(b), acc.q(b, 8))
    k(f"""s_and_b32 {st}, {I['w']}, 1
    s_lshl_b32 {st}, {st}, 2
    v_xor_b32 {ad}, {st}, {I['l']}
    s_lshl_b32 {st}, {I['w']}, 12
    s_add_u32 {st}, {st}, {lds1}
    v_lshl_add_u32 {a0}, {ad}, 4, {st}""")
    for b in range(4): k(f"v_xor_b32 {ad}, {16*b}, {a0}\nds_read_b128 {D.q(b)}, {ad} offset:{1024*b}")
    mark(0)
    stage(C['m1f'], True)
    def mulstage(w, conj, M, data_is_A):
        for b in range(4):
            wr, wi = w(b)
            cmul_pack(k, z(b, 0), z(b, 1), wr, wi, conj, D.q(b), tmp)
            if b: mf2(k, M, data_is_A, D.q(b - 1), acc.q(b - 1, 8))
        mf2(k, M, data_is_A, D.q(3), acc.q(3, 8))
    mulstage(lambda b: (C['twf'].q(0), C['twf'].q(1)), True, C['m2f'], False)
    mark(1)
    k(f"s_cmp_eq_u32 {T['sp']}, 0")
    with k.skip_if("s_cbranch_scc1"):
        cmul_pack(k, z(0, 0), z(0, 1), X.q(0), X.q(1), False, Xd, tmp)
        mf2(k, C['m2i'], True, Xd.q(0), X)
        cmul_pack(k, X.q(0), X.q(1), C['twi'].q(0), C['twi'].q(1), False, Xd, tmp)
        mf2(k, C['m1i'], False, Xd.q(0), X)
    mulstage(lambda b: (Wf.q(2 * b), Wf.q(2 * b + 1)), False, C['m2i'], True)
    mark(2)
    mulstage(lambda b: (C['twi'].q(0), C['twi'].q(1)), False, C['m1i'], False)
    mark(3)
    k(f"""v_lshlrev_b32 {ad}, 12, {I['g']}
    v_lshl_add_u32 {ad}, {I['n']}, 4, {ad}
    s_lshl_b32 {st}, {I['w']}, 8
    s_add_u32 {st}, {st}, {lds2}
    v_add_u32 {ad}, {st}, {ad}""")
    k(f"s_sub_u32 {st}, {T['sp']}, 1\ns_or_b32 {st}, {st}, {I['w']}\ns_cmp_lg_u32 {st}, 0")
    with k.skip_if("s_cbranch_scc1"):
        for r in range(4): k(f"v_mov_b32 {z(0,1)[r]}, {X[4+r]}")
    for r in range(4):
        for b in range(4): k(f"v_cvt_pk_bf16_f32 {D[4*r+b]}, {z(b,0)[r]}, {z(b,1)[r]}")
        k(f"ds_write_b128 {ad}, {D.q(r)} offset:{1024*r}")
    k.v.free(D, acc, tmp, ad, a0, Xd, X, Wf); k.s.free(st)
    for n in ('m1f', 'twf', 'm2f', 'm2i', 'twi', 'm1i'):
        r = C.pop(n)
        if r[0].kind == 'v': k.v.free(r)

def ph2_s6(k, I, C, lds2):
    D = k.v.allocq(16); acc = k.v.allocq(32); ad = k.v.alloc(); st = k.s.alloc(); so = k.s.alloc()
    k(f"s_lshl_b32 {st}, {I['w']}, 12\ns_add_u32 {st}, {st}, {lds2}\nv_lshl_add_u32 {ad}, {I['l']}, 4, {st}")
    for b in range(4): k(f"ds_read_b128 {D.q(b)}, {ad} offset:{1024*b}")
    k(f"""s_mov_b32 {st}, {64*V2_STR}
    v_mul_lo_u32 {ad}, {I['g']}, {st}
    v_lshl_add_u32 {ad}, {I['n']}, 2, {ad}
    s_mul_i32 {so}, {I['w']}, {4*V2_STR}
    s_lshr_b32 {st}, {I['slot']}, 4
    s_lshl_b32 {st}, {st}, 12
    s_add_u32 {so}, {so}, {st}
    s_lshl_b32 {st}, {I['k1p']}, 10
    s_add_u32 {so}, {so}, {st}
    s_and_b32 {st}, {I['slot']}, 15
    s_lshl_b32 {st}, {st}, 6
    s_add_u32 {so}, {so}, {st}""")
    for b in range(4): mf2(k, C['si'], False, D.q(b), acc.q(b, 8))
    for b in range(4):
        for r in range(4): k(f"v_cvt_pk_bf16_f32 {D[4*b+r]}, {acc[8*b+r]}, {acc[8*b+4+r]}")
    r = C.pop('si')
    if r[0].kind == 'v': k.v.free(r)
    k.v.free(acc); k.s.free(st)
    return D, ad, so

def park(k, C, names, A):
    for j, n in enumerate(names):
        dst = A[8 * j:8 * j + 8]
        for i in range(8): k(f"v_accvgpr_write_b32 {dst[i]}, {C[n][i]}")
        k.v.free(C[n]); C[n] = dst

def v2_issue2(k, I, sv2):
    L = k.v.allocq(16); va = k.v.alloc(); so = k.s.alloc(); st = k.s.alloc()
    k(f"""v_lshlrev_b32 {va}, 4, {I['l']}
    s_lshl_b32 {so}, {I['ta']}, 4
    s_add_u32 {so}, {so}, {I['tb']}
    s_mul_i32 {so}, {so}, {V2_STR}
    s_lshl_b32 {st}, {I['w']}, 12
    s_add_u32 {so}, {so}, {st}""")
    for j in range(4): k(f"buffer_load_dwordx4 {L.q(j)}, {va}, {sv2}, {so} offen offset:{1024*j} {SC}")
    k.v.free(va); k.s.free(so, st)
    return L

def y_stage2(k, I, L, ldsY):
    Z = k.v.allocq(16, 2); T = k.v.allocq(16, 2); O = k.v.allocq(8); ad = k.v.alloc(); st = k.s.alloc()
    z = lambda j, c: Z.q(2 * j + c, 2); t = lambda j, c: T.q(2 * j + c, 2)
    k(f"s_lshl_b32 {st}, {I['w']}, 10\ns_add_u32 {st}, {st}, {ldsY}\nv_lshl_add_u32 {ad}, {I['l']}, 4, {st}")
    last = None
    for h in range(2):
        for j in range(4):
            for u in range(2):
                k(f"v_lshlrev_b32 {z(j,0)[u]}, 16, {L[4*j+2*h+u]}\nv_and_b32 {z(j,1)[u]}, 0xffff0000, {L[4*j+2*h+u]}")
        for c in range(2):
            pk(k, '+', t(0, c), z(0, c), z(2, c)); pk(k, '-', t(1, c), z(0, c), z(2, c)); pk(k, '+', t(2, c), z(1, c), z(3, c))
        pk(k, '-', t(3, 0), z(3, 1), z(1, 1)); pk(k, '-', t(3, 1), z(1, 0), z(3, 0))
        k(f"s_cmp_lg_u32 {I['w']}, 0")
        with k.skip_if("s_cbranch_scc1"):
            k("s_mov_b64 exec, 15")
            k(f"""v_pk_add_f32 {t(2,0)}, {z(1,0)}, {z(1,0)}
            v_pk_add_f32 {t(2,1)}, {z(3,0)}, {z(3,0)}
            v_pk_add_f32 {t(3,0)}, {z(1,1)}, {z(1,1)} neg_lo:[1,1] neg_hi:[1,1]
            v_pk_add_f32 {t(3,1)}, {z(3,1)}, {z(3,1)} neg_lo:[1,1] neg_hi:[1,1]""")
            k("s_mov_b64 exec, -1")
        for m in range(4):
            for c in range(2):
                pk(k, '+' if m < 2 else '-', z(m, c), t(m & 1, c), t(2 + (m & 1), c))
                dst = O[2 * m + c] if h == 0 else L[4 * m + 2 * c + 1]
                k(f"v_cvt_pk_bf16_f32 {dst}, {z(m,c)[0]}, {z(m,c)[1]}")
    for m in range(4):
        k(f"v_mov_b32 {L[4*m]}, {O[2*m]}\nv_mov_b32 {L[4*m+2]}, {O[2*m+1]}")
        last = k(f"ds_write_b128 {ad}, {L.q(m)} offset:{4096*m}")
    k.v.free(Z, T, O, ad, L); k.s.free(st)
    return last

def gen_G1(k, I):
    G = k.v.allocq(32)
    f, b, sb, a, c, s = [k.v.alloc() for _ in range(6)]
    st = k.s.alloc()
    k(f"""v_lshrrev_b32 {a}, 1, {I['g']}
    v_lshlrev_b32 {a}, 3, {a}
    v_and_b32 {c}, 1, {I['g']}
    v_lshl_add_u32 {a}, {c}, 1, {a}
    v_cvt_f32_u32 {sb}, {a}""")
    for ib in range(2):
        k(f"""s_and_b32 {st}, {I['w']}, 1
        s_lshl_b32 {st}, {st}, 6
        s_add_u32 {st}, {st}, {16*ib}
        v_add_u32 {a}, {st}, {I['n']}
        v_cvt_f32_u32 {f}, {a}
        v_mul_f32 {f}, {fl(1/128)}, {f}
        v_mul_f32 {b}, {f}, {sb}""")
        for kap in range(4):
            for d in range(4):
                sl = 16 * kap + 4 * (d >> 1) + (d & 1)
                k(f"""v_fmamk_f32 {a}, {f}, {fl(float(sl))}, {b}
                v_cos_f32 {c}, {a}
                v_sin_f32 {s}, {a}
                v_cvt_pk_bf16_f32 {G[16*ib+4*kap+d]}, {c}, -{s}""")
    k(f"""v_lshlrev_b32 {c}, 31, {I['n']}
    v_or_b32 {c}, 0x3f003f00, {c}
    v_cmp_eq_u32 vcc, 0, {I['g']}""")
    for ib in range(2): k(f"v_cndmask_b32 {G[16*ib]}, {G[16*ib]}, {c}, vcc")
    k.v.free(f, b, sb, a, c, s); k.s.free(st)
    return G

def gen_G2(k, I, G):
    G2 = k.v.allocq(32); mk = k.v.alloc(2)
    k(f"""v_and_b32 {mk[0]}, 1, {I['g']}
    v_mul_u32_u24 {mk[0]}, 0x8000, {mk[0]}
    v_lshl_or_b32 {mk[0]}, {mk[0]}, 16, {mk[0]}
    v_xor_b32 {mk[1]}, 0x80000000, {mk[0]}""")
    for j in range(32):
        if j & 1: k(f"v_alignbit_b32 {G2[j]}, {G[j]}, {G[j]}, 16\nv_xor_b32 {G2[j]}, {mk[1]}, {G2[j]}")
        else: k(f"v_xor_b32 {G2[j]}, {mk[0]}, {G[j]}")
    k.v.free(mk)
    return G2

def xkeep(k, I, ldsX):
    XK = k.v.allocq(16, 2); ad = k.v.alloc(2); t = k.v.alloc(2); st = k.s.alloc()
    k(f"""s_and_b32 {st}, {I['w']}, 1
    s_lshl_b32 {st}, {st}, 13
    s_add_u32 {st}, {st}, {ldsX}
    v_lshrrev_b32 {t[0]}, 2, {I['l']}
    v_lshlrev_b32 {t[0]}, 7, {t[0]}
    v_and_b32 {t[1]}, 3, {I['l']}
    v_lshl_or_b32 {t[0]}, {t[1]}, 3, {t[0]}
    v_add_u32 {t[0]}, {st}, {t[0]}
    v_bfe_u32 {t[1]}, {I['l']}, 3, 2
    s_and_b32 {st}, {I['w']}, 2
    v_xor_b32 {t[1]}, {st}, {t[1]}
    v_lshl_add_u32 {ad[0]}, {t[1]}, 5, {t[0]}
    v_xor_b32 {ad[1]}, 32, {ad[0]}""")
    for mm in range(2):
        for ib in range(4): k(f"ds_read_b64_tr_b16 {XK.q(4*mm+ib,2)}, {ad[mm]} offset:{2048*ib}")
    k.v.free(ad, t); k.s.free(st)
    return XK

def dsk_issue(k, I, sd):
    Dk = k.v.alloc(2); va = k.v.alloc(); so = k.s.alloc(); st = k.s.alloc()
    k(f"""v_lshlrev_b32 {va}, 1, {I['n']}
    s_lshl_b32 {so}, {I['tb']}, 5
    s_lshr_b32 {st}, {I['w']}, 1
    s_lshl_b32 {st}, {st}, 10
    s_add_u32 {so}, {so}, {st}""")
    for mm in range(2): k(f"buffer_load_short_d16_hi {Dk[mm]}, {va}, {sd}, {so} offen offset:{512*mm}")
    k.v.free(va); k.s.free(so, st)
    return Dk

def xd_init2(k, XK, Dk, acc):
    for mm in range(2):
        sel = f" op_sel:[{mm},0] op_sel_hi:[{mm},1]"
        for ib in range(4):
            a = acc.q(8 * mm + ib); x = XK.q(4 * mm + ib, 2)
            k(f"""v_lshlrev_b32 {a[0]}, 16, {x[0]}
            v_and_b32 {a[1]}, 0xffff0000, {x[0]}
            v_lshlrev_b32 {a[2]}, 16, {x[1]}
            v_and_b32 {a[3]}, 0xffff0000, {x[1]}
            v_pk_mul_f32 {a[0:2]}, {Dk}, {a[0:2]}{sel}
            v_pk_mul_f32 {a[2:4]}, {Dk}, {a[2:4]}{sel}""")
    k.v.free(XK, Dk)

def g_issue(k, I, sg):
    g = k.v.allocq(16); va = k.v.alloc(); so = k.s.alloc(); st = k.s.alloc()
    k(f"""v_lshlrev_b32 {va}, 4, {I['g']}
    s_lshl_b32 {so}, {I['ta']}, 9
    s_and_b32 {st}, {I['w']}, 1
    s_lshl_b32 {st}, {st}, 8
    s_add_u32 {so}, {so}, {st}""")
    for ib in range(4): k(f"buffer_load_dwordx4 {g.q(ib)}, {va}, {sg}, {so} offen offset:{64*ib} {SC}")
    k.v.free(va); k.s.free(so, st)
    return g

def pass1c(k, I, acc, Pm, ldsE):
    er, ei, ta, tb = [k.v.alloc(2) for _ in range(4)]
    L = Pm['L1']
    cr, ci = upair(acc, 0, 0), upair(acc, 0, 1)
    outs = [(er, ei), (ta, tb)]
    for j in range(1, 16):
        nr, ni = outs[(15 - j) & 1]
        k(f"""v_pk_fma_f32 {nr}, {L}, {cr}, {upair(acc,j,0)}{BC0}
        v_pk_fma_f32 {ni}, {L}, {ci}, {upair(acc,j,1)}{BC0}
        v_pk_fma_f32 {nr}, {L}, {ci}, {nr}{BC1}{NEG0}
        v_pk_fma_f32 {ni}, {L}, {cr}, {ni}{BC1}""")
        cr, ci = nr, ni
    cfma(k, ta, Pm['L16'], (er[0], ei[0]), (er[1], ei[1]))
    k(f"""v_mov_b32 {tb[0]}, {ta[0]}
    v_mov_b32 {tb[1]}, {ta[1]}
    v_permlane32_swap_b32 {ta[0]}, {tb[0]}
    v_permlane32_swap_b32 {ta[1]}, {tb[1]}""")
    cfma(k, tb, Pm['L32'], ta, tb)
    w = k(f"ds_write_b64 {Pm['lde']}, {tb}")
    return dict(er=er, ei=ei, lo=ta, ew=tb, w=w)

def scan_addr(k, I, Pm, ldsE):
    lde, va = k.v.alloc(), k.v.alloc(); t = k.v.alloc(); st = k.s.alloc(); s2_ = k.s.alloc()
    k(f"""s_lshl_b32 {st}, {I['w']}, 8
    s_add_u32 {st}, {st}, {ldsE + 128}
    v_lshl_add_u32 {lde}, {I['n']}, 3, {st}
    v_lshl_add_u32 {lde}, {I['g']}, 10, {lde}
    s_sub_u32 {st}, 15, {I['ca']}
    s_lshl_b32 {st}, {st}, 9
    s_and_b32 {s2_}, {I['w']}, 1
    s_lshl_b32 {s2_}, {s2_}, 8
    s_add_u32 {st}, {st}, {s2_}
    v_and_b32 {va}, 31, {I['l']}
    v_lshl_add_u32 {va}, {va}, 3, {st}""")
    Pm['lde'], Pm['eva'] = lde, va
    k.v.free(t); k.s.free(st, s2_)

def publish(k, I, E1, Pm, se):
    e0 = k.v.alloc(2); t = k.v.alloc()
    k(f"v_and_b32 {Pm['lde']}, {hex(0xfffffdff)}, {Pm['lde']}\nds_read_b64 {e0}, {Pm['lde']}")
    k(f"s_cmp_lt_u32 {I['w']}, 2")
    with k.skip_if("s_cbranch_scc1"):
        cfma(k, E1['ew'], Pm['L64'], e0, E1['ew'])
        k(f"""v_min_u32 {E1['ew'][0]}, -2, {E1['ew'][0]}
        v_min_u32 {E1['ew'][1]}, -2, {E1['ew'][1]}
        s_mov_b32 exec_hi, 0
        buffer_store_dwordx2 {E1['ew']}, {Pm['eva']}, {se}, 0 offen sc1
        s_mov_b64 exec, -1""")
    k(f"v_lshrrev_b32 {t}, 5, {I['l']}\nv_lshl_add_u32 {Pm['eva']}, {t}, 12, {Pm['eva']}\nv_add_u32 {Pm['eva']}, 512, {Pm['eva']}")
    k.v.free(t, E1['ew'], Pm.pop('lde'))
    E1['e0'] = e0

class LookBack:
    def __init__(self, k, Pm, se):
        self.k, self.va, self.se = k, Pm.pop('eva'), se
        self.E = k.v.allocq(16, 2)
    def issue(self):
        for j in range(8): self.last = self.k(f"buffer_load_dwordx2 {self.E.q(j,2)}, {self.va}, {self.se}, 0 offen offset:{512*j} sc1")
    def _check(self, m):
        k, E = self.k, self.E
        k(f"v_max_u32 {m}, {E[0]}, {E[1]}")
        for j in range(1, 8): k(f"v_max3_u32 {m}, {m}, {E[2*j]}, {E[2*j+1]}")
        k(f"v_cmp_eq_u32 vcc, -1, {m}")
    def finish(self, maxspin=1 << 20):
        k = self.k; m = k.v.alloc()
        k.wait(self.last)
        self._check(m)
        with k.skip_if("s_cbranch_vccz"):
            cnt = k.s.alloc(); lp, out = k.lab('lb'), k.lab('lbout')
            k(f"s_mov_b32 {cnt}, 0\n{lp}:")
            self.issue(); k("s_waitcnt vmcnt(0)")
            self._check(m)
            k(f"s_cbranch_vccz {out}\ns_add_u32 {cnt}, {cnt}, 1\ns_cmp_lt_u32 {cnt}, {maxspin}\ns_cbranch_scc1 {lp}\n{out}:")
            k.s.free(cnt)
        k.v.free(m, self.va)
        return self.E

def pass2c(k, I, acc, Pm, E1, E, sh, hook):
    for j in range(6, -1, -1):
        cfma(k, E.q(j, 2), Pm['L128'], E.q(j + 1, 2), E.q(j, 2))
    S, T = E.q(0, 2), E.q(1, 2); U, V = E.q(2, 2), E.q(3, 2)
    k(f"""v_mov_b32 {T[0]}, {S[0]}
    v_mov_b32 {T[1]}, {S[1]}
    v_permlane32_swap_b32 {S[0]}, {T[0]}
    v_permlane32_swap_b32 {S[1]}, {T[1]}""")
    cfma(k, S, Pm['L1024'], T, S)
    k(f"s_cmp_lt_u32 {I['w']}, 2")
    with k.skip_if("s_cbranch_scc1"):
        cfma(k, E1['e0'], Pm['L64'], S, E1['e0'])
        k(f"v_mov_b32 {S[0]}, {E1['e0'][0]}\nv_mov_b32 {S[1]}, {E1['e0'][1]}")
    cfma(k, E1['lo'], Pm['L32'], S, E1['lo'])
    k(f"s_mov_b32 exec_lo, 0\nv_mov_b32 {S[0]}, {E1['lo'][0]}\nv_mov_b32 {S[1]}, {E1['lo'][1]}\ns_mov_b64 exec, -1")
    e0 = (E1['er'][0], E1['ei'][0])
    cfma(k, e0, Pm['L16'], S, e0)
    cf = Pm['coef']
    for h, x in ((0, S), (1, e0)):
        k(f"""v_mul_f32 {U[h]}, {cf[0]}, {x[0]}
        v_mul_f32 {V[h]}, {cf[0]}, {x[1]}
        v_fma_f32 {U[h]}, -{cf[1]}, {x[1]}, {U[h]}
        v_fma_f32 {V[h]}, {cf[1]}, {x[0]}, {V[h]}""")
    va, so = E1['hva'], E1['hso']
    L = Pm['L1']; cr, ci = U, V
    O = k.v.allocq(12)
    pend = []; last = None
    def flush():
        nonlocal last
        q, o = pend.pop(0)
        k(f"""v_permlane32_swap_b32 {o[0]}, {o[1]}
        v_permlane32_swap_b32 {o[2]}, {o[3]}
        v_permlane16_swap_b32 {o[0]}, {o[2]}
        v_permlane16_swap_b32 {o[1]}, {o[3]}""")
        last = k(f"buffer_store_dwordx4 {o}, {va}, {sh}, {so} offen {SC}")
        if q < 7: k(f"s_add_u32 {so}, {so}, {2*32*16384}")
        hook(q)
    for j in range(16):
        nr, ni = upair(acc, j, 0), upair(acc, j, 1)
        k(f"""v_pk_fma_f32 {nr}, {L}, {cr}, {nr}{BC0}
        v_pk_fma_f32 {ni}, {L}, {ci}, {ni}{BC0}
        v_pk_fma_f32 {nr}, {L}, {ci}, {nr}{BC1}{NEG0}
        v_pk_fma_f32 {ni}, {L}, {cr}, {ni}{BC1}""")
        cr, ci = nr, ni
        if pend: flush()
        o = O.q((j // 2) % 3)
        h = 2 * (j & 1)
        k(f"v_cvt_pk_bf16_f32 {o[h]}, {nr[0]}, {nr[1]}\nv_cvt_pk_bf16_f32 {o[h+1]}, -{ni[0]}, -{ni[1]}")
        if j & 1: pend.append((j // 2, o))
    flush()
    k.v.free(va, E, O, acc, E1['er'], E1['ei'], E1['lo'], E1['e0'], *Pm.values()); k.s.free(so)
    return last

class B3g(B3f):
    def main(self, fill, pre_bar, post_bar, lastsub):
        k = self.k; NS = 16; acc, fr = self.acc, self.fr
        def reads(s, kk):
            f = fr.q(kk, 32); out = []
            for ib in range(8):
                off = (s % self.NST) * 32768 + ib * 2048 + kk * 256; hi = 2 if off >= 65536 else 0
                for h in range(2):
                    out.append(f"ds_read_b64_tr_b16 {f[4*ib+2*h:4*ib+2*h+2]}, {self.rh[hi+h]} offset:{off & 65535}")
            return out
        pre_bar(-1)
        k.wait(self.last[0]); k("s_barrier")
        lastrd = None
        for r in reads(0, 0): lastrd = k(r)
        for s in range(NS):
            for kk in range(2):
                f = fr.q(kk, 32); rd = []
                if kk == 0: rd = reads(s, 1)
                elif s + 1 < NS:
                    pre_bar(s)
                    k.wait(lastrd, self.last[s + 1]); k("s_barrier")
                    rd = reads(s + 1, 0)
                else: rd = lastsub(fr.q(0, 32))
                k.wait(lastrd)
                dm = [(s + self.D, 4 * kk + x) for x in range(4)]
                order = list(range(16))
                if s == NS - 1 and kk == 1: order = order[8:] + order[:8]
                for q, qq in enumerate(order):
                    ib, mm = qq >> 1, qq & 1
                    d = acc.q(8 * mm + ib)
                    zero = s == 0 and kk == 0 and ib >= 4
                    k(f"v_mfma_f32_16x16x32_bf16 {d}, {f.q(ib)}, {self.CL.frag(s,kk,mm)}, {0 if zero else d}")
                    if rd and q < 8:
                        k(rd[2 * q]); lastrd = k(rd[2 * q + 1])
                    if q >= 8 and q % 2 == 0: self.dma(*dm[(q - 8) // 2])
                    if q == 9 and kk == 1: post_bar(s)
                    fill(s, kk, q)
        k.v.free(self.vh, self.rh); k.s.free(self.so, self.mH)

def final_addr(k, I, ldsX, ldsY):
    A = dict(ad=k.v.alloc(), ay=k.v.alloc(), va=k.v.alloc(), so=k.s.alloc())
    t = k.v.alloc(); st = k.s.alloc(); ad, ay, va, so = A['ad'], A['ay'], A['va'], A['so']
    k(f"""s_lshl_b32 {st}, {I['w']}, 13
    s_add_u32 {st}, {st}, {ldsX}
    v_lshl_add_u32 {ad}, {I['l']}, 4, {st}
    v_lshrrev_b32 {ay}, 5, {I['l']}
    v_lshlrev_b32 {ay}, 9, {ay}
    v_bfe_u32 {t}, {I['l']}, 3, 2
    v_lshl_or_b32 {ay}, {t}, 6, {ay}
    v_and_b32 {t}, 3, {I['l']}
    v_lshl_or_b32 {ay}, {t}, 4, {ay}
    v_bfe_u32 {t}, {I['l']}, 2, 1
    v_lshl_or_b32 {ay}, {t}, 3, {ay}
    s_lshr_b32 {st}, {I['w']}, 1
    s_lshl_b32 {st}, {st}, 13
    s_add_u32 {st}, {st}, {ldsY}
    v_add_u32 {ay}, {st}, {ay}
    v_lshlrev_b32 {va}, 18, {I['g']}
    v_lshl_or_b32 {va}, {I['n']}, 2, {va}
    s_and_b32 {so}, {I['w']}, 1
    s_lshl_b32 {so}, {so}, 22
    s_lshl_b32 {st}, {I['ta']}, 12
    s_add_u32 {so}, {so}, {st}
    s_lshl_b32 {st}, {I['tb']}, 6
    s_add_u32 {so}, {so}, {st}
    s_lshr_b32 {st}, {I['w']}, 1
    s_lshl_b32 {st}, {st}, 11
    s_add_u32 {so}, {so}, {st}""")
    k.v.free(t); k.s.free(st)
    return A

def y_reads(A, Y):
    return [f"ds_read_b64_tr_b16 {Y[16*mm+4*kap+2*h:16*mm+4*kap+2*h+2]}, {A['ay']} offset:{4096*mm + 1024*kap + 256*h}"
            for kap in range(4) for mm in range(2) for h in range(2)]

def final2(k, A, g, acc, fr, G, so_, pf):
    Y, aa = fr.q(0, 32), fr.q(1, 32); ad, va, so = A['ad'], A['va'], A['so']; om = k.v.alloc(4)
    def mf(ib, side):
        for kap in range(4):
            for mm in range(2):
                d = aa.q(4 * mm + ib)
                k(f"v_mfma_f32_16x16x32_bf16 {d}, {G[ib>>1].q(4*(ib&1)+kap)}, {Y.q(4*mm+kap)}, {d if kap else 0}")
                if side: k(side.pop(0))
    wr = [f"ds_write_b128 {ad}, {acc.q(8*mm+4+ib)} offset:{1024*(4*mm+ib)}" for ib in range(4) for mm in range(2)]
    mf(0, wr)
    mf(1, [])
    k(f"v_xor_b32 {ad}, 0x2000, {ad}\ns_waitcnt lgkmcnt(0)\ns_barrier")
    pf("xbar")
    rd = [f"ds_read_b128 {acc.q(8*mm+4+ib)}, {ad} offset:{1024*(4*mm+ib)}" for ib in range(4) for mm in range(2)]
    mf(2, rd)
    def fin(ib):
        gg = g.q(ib)
        for h in (0, 2):
            k(f"""v_sub_f32 {om[h]}, 1.0, {gg[h]}
            v_sub_f32 {om[h+1]}, 1.0, {gg[h+1]}
            v_cvt_pk_bf16_f32 {om[h+1]}, {om[h]}, {om[h+1]}
            v_lshlrev_b32 {om[h]}, 16, {om[h+1]}
            v_and_b32 {om[h+1]}, 0xffff0000, {om[h+1]}""")
        for h in (0, 2):
            for mm in range(2):
                b = acc.q(8 * mm + ib); r = acc.q(8 * mm + 4 + ib); a = aa.q(4 * mm + ib)
                k(f"""v_pk_add_f32 {b[h:h+2]}, {b[h:h+2]}, {r[h:h+2]}
                v_pk_mul_f32 {a[h:h+2]}, {gg[h:h+2]}, {a[h:h+2]}
                v_pk_fma_f32 {b[h:h+2]}, {om[h:h+2]}, {b[h:h+2]}, {a[h:h+2]}""")
            for r in (h, h + 1):
                for mm in range(2):
                    k(f"buffer_store_dword {acc.q(8*mm+ib)[r]}, {va}, {so_}, {so} offen offset:{1024*mm} {OUTF}")
                if (ib, r) != (3, 3): k(f"s_add_u32 {so}, {so}, {(1<<16) if r < 3 else (1<<20) - 3*(1<<16)}")
    fin(0)
    mf(3, [])
    for ib in range(1, 4): fin(ib)

class B1g(B1f):
    def main(self, q, fill, pre_bar, post_bar, rate):
        k = self.k; NS = 16; acc, fr = self.acc, self.fr
        def reads(s, kk):
            f = fr.q((s * 4 + kk) & 1, 16); buf = (s % self.NST) * 16384
            out = []
            for b in range(2):
                out.append(f"ds_read_b128 {f.q(b)}, {self.ra[kk]} offset:{buf + 4096*b}")
                out.append(f"ds_read_b128 {f.q(2+b)}, {self.rb[kk]} offset:{buf + 4096*b}")
            return out
        k.wait(self.last[0]); k("s_barrier")
        lastrd = None; passed = -1
        for r in reads(0, 0): lastrd = k(r)
        for s in range(NS):
            for kk in range(4):
                f = fr.q((s * 4 + kk) & 1, 16)
                rd = []
                if kk < 3: rd = reads(s, kk + 1)
                elif s + 1 < NS:
                    pre_bar(s)
                    assert self.cnt[s + 1] == 8, (s, self.cnt)
                    k.wait(lastrd, self.last[s + 1]); k("s_barrier"); passed = s
                    rd = reads(s + 1, 0)
                for m, (rb, c) in enumerate(((0, 0), (0, 1), (1, 1), (1, 0))):
                    d = acc.q(2 * rb + c, 16)
                    first = s == 0 and kk == 0
                    k(f"v_mfma_f32_32x32x16_bf16 {d}, {f.q(rb)}, {f.q(2+c)}, {0 if first else d}")
                    if m < 2 and rd:
                        k(rd[2 * m]); lastrd = k(rd[2 * m + 1])
                    if m == 1 and kk == 3: post_bar(s)
                    for _ in range(rate(s, kk, m)):
                        if q and q[0][0] <= passed: q.pop(0)[1]()
                    fill(s, kk, m)
        k.v.free(fr, self.va, self.vb, self.ra, self.rb); k.s.free(self.soA, self.soB, self.mA, self.mB)
        return acc
    cnt = None
    def dma(self, s, i):
        if self.cnt is None: self.cnt = {}
        self.cnt[s] = self.cnt.get(s, 0) + 1
        super().dma(s, i)

def code_touch(k, I, wave, nbytes, dst):
    r = k.s.alloc(2); so = k.s.alloc(); va = k.v.alloc(2)
    per = -(-nbytes // (32 * 128)); lab = k.lab('pc')
    k(f"s_cmp_lg_u32 {I['w']}, {wave}")
    with k.skip_if("s_cbranch_scc1"):
        k(f"""s_getpc_b64 {r}
        {lab}:
        s_lshr_b32 {so}, s2, 3
        s_mul_i32 {so}, {so}, {per*128}
        v_min_u32 {va[0]}, {per-1}, {I['l']}
        v_lshl_add_u32 {va[0]}, {va[0]}, 7, {so}
        v_min_u32 {va[0]}, {k.name}_end-{lab}, {va[0]}
        v_mov_b32 {va[1]}, 0
        v_lshl_add_u64 {va}, {va}, 0, {r}
        global_load_dword {dst}, {va}, off""")
    k.s.free(r, so); k.v.free(va)

def build(opt={}):
    O = dict(sig=6, v2s=-1, early=1, p0=80, p1=64, n0=8, n1=16, pb=70, nb=2, nlb=1, pc=64, leadc=0, late=2, gseam=1, fast=0, lag=2, hmark=2, pollat=1, touch=1, map8=1, rot1=2, gloc=1, rotc=1)
    O.update(opt)
    k = Kernel(NAME + "_kernel", nv=256, na=256)
    LX = 131072; LT2 = LX + 16384; LDS = LT2 + 16384
    A0, A1, A2, A3, B0, B1_, B2, B3_ = [16384 * i for i in range(8)]
    k("s_cmp_ge_u32 s2, 256")
    k(f"s_cbranch_scc1 {k.name}_end")
    KP = k.s.alloc(32, 4)
    k(f"s_load_dwordx16 {KP[0:16]}, s[0:1], 0\ns_load_dwordx16 {KP[16:32]}, s[0:1], 64")
    P = {n: KP[o // 4:o // 4 + 2] for n, o in KA.items()}
    def rel(*names):
        for n in names: k.s.free(P.pop(n))
    cva = code_prefetch(k, 0, 40960); cd = k.v.alloc()
    I = ids(k, O['map8'])
    I['rot1'] = O['rot1']
    k(f"s_cmp_lg_u32 {I['w']}, 0")
    with k.skip_if("s_cbranch_scc1"):
        k(f"global_load_dword {cd}, {cva}, off")
    k.v.free(cva)
    pf = Prof(k, 0)
    if O.get('lat'):
        nm = O['lat']; sl = srd(k, P[nm], 1 << 21); tv = k.v.alloc(2)
        k(f"v_mov_b32 {tv[0]}, s2\nv_lshlrev_b32 {tv[0]}, 13, {tv[0]}\ns_waitcnt vmcnt(0)")
        k(f"buffer_load_dword {tv[1]}, {tv[0]}, {sl}, 0 offen\ns_waitcnt vmcnt(0)")
        pf("l1")
        for q in range(1, 9): k(f"buffer_load_dword {tv[1]}, {tv[0]}, {sl}, 0 offen offset:{256*q}\ns_waitcnt vmcnt(0)")
        pf("l2")
        k.s.free(sl); k.v.free(tv)
    sx = srd(k, P['x'], SZ['x']); rel('x', 'bx')
    ldx = xtile_issue(k, I, sx, LX)
    sf = srd(k, P['ws'], 8192 + 32768, WS_F)
    sdbg = srd(k, P['dbg'], 256); rel('dbg')
    FV, FH = k.s.alloc(), k.s.alloc()
    zero = k.v.alloc(); vpc = k.v.alloc()
    k(f"""v_mov_b32 {zero}, 0
    v_lshlrev_b32 {vpc}, 4, v0
    s_cmp_lg_u32 s2, 0""")
    with k.skip_if("s_cbranch_scc1"):
        k(f"buffer_store_dword {zero}, {vpc}, {sf}, 0 offen {SC}")
    sb = srd_sel(k, I, P['bre'], P['bim'], SZ['bre']); rel('bre', 'bim')
    g1 = B1g(k, I, sx, sb, 0, 65536)
    one = k.v.alloc(); vfc = k.v.alloc(); vfh = k.v.alloc()
    k(f"""s_and_b32 {FV}, s2, 7
    s_lshl_b32 {FV}, {FV}, 9
    s_lshr_b32 {FH}, s2, 3
    s_lshl_b32 {FH}, {FH}, 4
    s_add_u32 {FV}, {FV}, {FH}
    v_mov_b32 {vfc}, {FV}
    s_lshl_b32 {FV}, s2, 7
    v_mov_b32 {vfh}, {FV}
    s_mov_b32 {FV}, 4096
    s_mov_b32 {FH}, 8192
    v_mov_b32 {one}, 1""")
    sgw = srd(k, P['gw'], SZ['gw']); rel('gw')
    t4 = [srd(k, P[n], 2048) for n in ('lre', 'lim', 'ldt', 'dsk')]; rel('lre', 'lim', 'ldt', 'dsk')
    T = ph2_params(k, I)
    if O['gloc']:
        I['gid'] = k.s.alloc()
        k(f"s_lshl_b32 {I['gid']}, {I['ca']}, 4\ns_add_u32 {I['gid']}, {I['gid']}, {I['cb']}")
    if O['rotc']:
        I['rc'] = k.s.alloc(); sh_ = 3 if O['map8'] else 2; tt = k.s.alloc()
        k(f"""s_and_b32 {I['rc']}, {I['ta']}, {(1<<sh_)-1}
        s_lshl_b32 {I['rc']}, {I['rc']}, {4-sh_}
        s_lshr_b32 {tt}, {I['ta']}, {sh_}
        s_add_u32 {I['rc']}, {I['rc']}, {tt}""")
        k.s.free(tt)
    with k.capture() as small:
        Gt = gate_issue(k, I, sx, sgw)
        Q = ssm_param_issue(k, I, *t4[:3]); Dk = dsk_issue(k, I, t4[3])
    def small1():
        while small.groups:
            v = any(i.cls == 'vm' for i in small.groups[0]); small.emit(1)
            if v: break
    H = {}
    CA = k.a.alloc(256)
    def consts():
        H['C2'] = ph2_consts(k, I, T, 2.0 ** -20)
        park(k, H['C2'], ('m2f', 'm2i', 'm1i', 'si'), CA[224:256])
    with k.capture() as c0:
        F = gen_F2(k, I)
        if O['early']: consts()
    dq = [(-1 if s < 4 else s - 4, lambda s=s, i=i: g1.dma(s, i)) for s in range(1, 16) for i in range(8)]
    acts = [lambda i=i: g1.dma(0, i) for i in range(8)] + [small1] * 11 + [dq.pop(0)[1] for _ in range(O['n0'])]
    c0.weave(acts, O['p0'], O.get('lead0', 700))
    pf("F")
    while acts: acts.pop(0)()
    small.flush(); k.s.free(sgw, *t4)
    sv1 = srd(k, P['ws'], 256 * V1_STR, WS_V1)
    k.wait(ldx); k("s_barrier"); pf("xt")
    with k.capture() as c1:
        O1 = ph1f(k, I, F, LX, sv1, lambda n: None)
        k.v.free(F)
        XK = xkeep(k, I, LX)
    acts = [dq.pop(0)[1] for _ in range(O['n1'])]
    c1.weave(acts, O['p1'], O.get('lead1', 300))
    while acts: acts.pop(0)()
    pf("ph1")
    sg = srd(k, P['ws'], 8192, WS_G)
    st = k.s.alloc()
    k(f"s_lshl_b32 {st}, {I['cb']}, 14")
    se = srd(k, P['ws'], 8192, WS_E, st)
    g1.alloc()
    sc = srd_sel(k, I, P['cre'], P['cim'], SZ['cre']); rel('cre', 'cim')
    swr = srd(k, P['wr'], SZ['wr']); swi = srd(k, P['wi'], SZ['wi']); rel('wr', 'wi')
    with k.capture() as fl1:
        ph1_store(k, *O1, sv1)
        t = k.v.alloc(2)
        k(f"""s_sub_u32 {st}, 15, {I['ca']}
        s_lshl_b32 {st}, {st}, 9
        v_lshl_add_u32 {t[0]}, v0, 2, {st}
        v_mov_b32 {t[1]}, -1
        s_cmp_ge_u32 {I['w']}, 2""")
        with k.skip_if("s_cbranch_scc1"):
            k(f"buffer_store_dword {t[1]}, {t[0]}, {se}, 0 offen {SC}")
        wave0_store(k, I, f"buffer_store_dword {zero}, {vfh}, {sf}, {FH} offen {SC}\nbuffer_store_dword {zero}, {vfc}, {sf}, {FV} offen {SC}")
        k(f"s_or_b32 {st}, {I['w']}, s2\ns_cmp_lg_u32 {st}, 0")
        with k.skip_if("s_cbranch_scc1"):
            k(f"s_mov_b64 exec, 1\nbuffer_store_dword {one}, {zero}, {sdbg}, 0 offen {SC}\ns_mov_b64 exec, -1")
        k.v.free(t); k.s.free(st)
        lastst = gate_compute(k, I, Gt, sg, SC)
        Pm = ssm_param_compute(k, Q)
        scan_addr(k, I, Pm, LT2)
        E1h = {}; hstore_addr(k, I, E1h)
        CL = CLoad(k, I, sc, CA)
        WD = WDir(k, I, T, swr, swi, LT2); WD.prep()
        if not O['early']: consts()
    p0 = Poll(k, sdbg, zero, 1, 1)
    p1 = Poll(k, sf, vpc, 1, 1)
    dq.append((-1, lambda: (p1.issue(), WD.tail_issue())))
    dq += [(-1, lambda: WD.issue1(LX))] * 4
    for s, slot in ((12, A0), (12, B0), (13, A1)): dq += [(s, lambda slot=slot: WD.issue1(slot))] * 4
    for s, slot in ((13, B1_), (14, A2), (14, B2)): dq += [(s, lambda slot=slot: CL.issue1(slot))] * 4
    def pre_bar(s):
        if s == O['sig']: k.wait(lastst)
    def post_bar(s):
        if O['touch'] and s in (4, 11): code_touch(k, I, 1 + (s & 1), 16384, cd)
        if s == O['sig'] - 3: p0.issue()
        if s == O['sig']:
            fl1.emit_until_safe()
            p0.finish()
            wave0_store(k, I, f"buffer_store_dword {one}, {vfc}, {sf}, 0 offen {SC}")
    def fill1(s, kk, m):
        fl1.emit(2 if s == 0 else 3)
        if s == 10 and kk == 3 and m == 3: fl1.flush()
        if kk == 3 and m == 0 and s % 4 == 3: pf(f"a{s}")
    def rate(s, kk, m):
        if s < O['fast']: return 1 if m >= 1 else 0
        return 1 if m >= 2 else 0
    acc = g1.main(dq, fill1, pre_bar, post_bar, rate)
    pf("main1")
    k.s.free(sx, sb, sdbg); k.v.free(zero)
    with k.capture() as c2:
        E1 = pass1c(k, I, acc, Pm, LT2); E1.update(E1h)
    acts = [x[1] for x in dq]; print("queue left after B1:", len(acts))
    c2.weave(acts, 64)
    while acts: acts.pop(0)()
    p1.finish()
    k.wait(E1['w']); k("s_barrier")
    publish(k, I, E1, Pm, se)
    pf("pass1")
    LT1 = A3
    C2 = H['C2']; nlate = O['late']; assert nlate >= 2
    free = [B3_]; state = dict(cur=None)
    def c1act():
        if CL.n >= 64 - 4 * nlate: return
        if CL.n & 3 == 0:
            if not free: free.append(CL.drain())
            state['cur'] = free.pop(0)
            if not free and CL.nd < CL.n // 4 - O['lag'] + 1: free.append(CL.drain())
        CL.issue1(state['cur'])
    def cfinish():
        while CL.n & 3: c1act()
    L1 = v1_issue(k, I, T, sv1, SC); k.s.free(sv1)
    with k.capture() as c3:
        WD.tail_write()
        Wf, WX = ph2_w(k, T, WD)
        scan_coef(k, acc, Pm)
        ph2_wfix(k, T, WD, Wf, WX)
    acts = [c1act] * (4 * O['nb'])
    c3.weave(acts, O['pb'], 100)
    cfinish()
    free.extend([LX, A0, B0, A1][1:])
    lb = LookBack(k, Pm, se); lb.issue()
    pf("coef")
    with k.capture() as c4: t1w = ph2_s1(k, I, C2, L1, LT1)
    acts = [c1act] * (4 * O['nlb'])
    c4.weave(acts, O['pb'])
    cfinish()
    pf("s1")
    E = lb.finish(); k.s.free(se)
    pf("lb")
    sh = srd(k, P['ws'], 8 << 20, WS_H)
    lasth = pass2c(k, I, acc, Pm, E1, E, sh, lambda q: None)
    pf("pass2")
    while CL.nd < CL.n // 4: free.append(CL.drain())
    if O['touch']: code_touch(k, I, 3, 16384, cd)
    k.wait(t1w); k("s_barrier")
    pf("bar1")
    vph = k.v.alloc()
    k(f"v_lshlrev_b32 {vph}, 7, v0")
    p3 = Poll(k, sf, vph, 1, 1, FH)
    def mark(i):
        if i == O['hmark']:
            k.wait(lasth); k("s_barrier")
            wave0_store(k, I, f"buffer_store_dword {one}, {vfh}, {sf}, {FH} offen {SC}")
            pf("hflag")
    with k.capture() as c5: ph2_mid(k, I, T, C2, Wf, WX, LT1, LT2, mark)
    acts = [c1act] * (64 - 4 * nlate - CL.n); print("C instr in mid:", len(acts))
    c5.weave(acts, O['pc'], O['leadc'])
    print("C instr left after mid:", len(acts))
    while acts: acts.pop(0)()
    pf("mid")
    if O['pollat'] == 0: p3.issue()
    k("s_waitcnt lgkmcnt(0)\ns_barrier")
    V2 = ph2_s6(k, I, C2, LT2)
    if O['pollat'] == 1: p3.issue()
    sv2 = srd(k, P['ws'], 256 * V2_STR, WS_V2)
    while CL.nd < CL.n // 4: CL.drain()
    if O['v2s'] < 0: H['v2'] = v2_store(k, *V2, sv2)
    g3 = B3g(k, I, sh, CL)
    g3.alloc()
    xd_init2(k, XK, Dk, g3.acc)
    pf("s6")
    p3.finish(); k.v.free(vph)
    k("s_waitcnt lgkmcnt(0)\ns_barrier")
    pf("sync3")
    acts = [lambda s=s, i=i: g3.dma(s, i) for s in range(3) for i in range(8)]
    G1 = None
    if O['gseam']:
        with k.capture() as cg: G1 = gen_G1b(k, I)
        for _ in range(2): acts.pop(0)()
        cg.weave(acts, 48)
    while acts: acts.pop(0)()
    so = srd(k, P['out'], SZ['out'])
    with k.capture() as f3a:
        if O['v2s'] >= 0: H['v2'] = v2_store(k, *V2, sv2)
    with k.capture() as f3b:
        if G1 is None: G1 = gen_G1b(k, I)
        FA = final_addr(k, I, 0, LX)
    pf("pref")
    p4 = Poll(k, sf, vpc, 1, 1, FV)
    VS = O['v2s']
    def pre_bar3(s):
        if s == VS + 3: k.wait(H['v2'])
        if s == 10:
            f3b.flush(); p4.finish()
        if s == 14: H['c'].flush(); k.wait(H['yw'])
    def post_bar3(s):
        if s == VS + 3: wave0_store(k, I, f"buffer_store_dword {one}, {vfc}, {sf}, {FV} offen {SC}")
        if O['touch'] and s == 5: code_touch(k, I, 1, 12288, cd)
        if s == 8: p4.issue()
        if s == 10:
            L2 = v2_issue2(k, I, sv2)
            with k.capture() as H['c']:
                H['yw'] = y_stage2(k, I, L2, LX)
        if s == 14:
            H['g'] = g_issue(k, I, sg)
            with k.capture() as H['d']:
                H['G2'] = gen_G2(k, I, G1)
    def fill3(s, kk, q):
        if s == VS and f3a.left(): f3a.emit(2)
        if s == max(VS, 0) and kk == 1 and q == 15: f3a.flush()
        if s > VS and q >= 8: f3b.emit(2)
        if q == 15 and kk == 0 and 3 <= s < 3 + nlate: CL.drain()
        if q == 15 and kk == 1 and 1 <= s < 1 + nlate: CL.issue((LX, LT2)[s & 1])
        if s >= 13 and 'c' in H and q >= 6: H['c'].emit(4)
        if 'd' in H and q >= 8: H['d'].emit(4)
        if kk == 1 and q == 0 and s % 4 == 3: pf(f"b{s}")
    g3.main(fill3, pre_bar3, post_bar3, lambda Y: y_reads(FA, Y))
    assert CL.nd == 16
    H['d'].flush()
    pf("main3")
    final2(k, FA, H['g'], g3.acc, g3.fr, (G1, H['G2']), so, pf)
    pf("epi")
    pf.done()
    end(k)
    return k, LDS

def write(path, opt={}):
    k, lds = build(opt)
    open(path, "w").write(module(header(), [(k.name, 256, 256, lds)], [k]))
    print(path, k.stats)
    if os.environ.get('SEG'): k.segstats()
    if PROF: json.dump([k.profnames], open(path[:-2] + ".json", "w"))

if __name__ == "__main__":
    opt = {}
    for a in sys.argv[2:]:
        n, v = a.split("="); opt[n] = int(v) if v.lstrip('-').isdigit() else v
    write(sys.argv[1] if len(sys.argv) > 1 else "outf.s", opt)
```

```python
import sys, json
from fft import *
from ssm import *
from g2 import y_stage, v2_issue
SC = "sc1"
OUTF = os.environ.get("OUTF", "")

def code_prefetch(k, lo, hi):
    r = k.s.alloc(2); so = k.s.alloc(); va = k.v.alloc(2)
    per = -(-(hi - lo) // (32 * 128))
    lab = k.lab('pc')
    k(f"""s_getpc_b64 {r}
    {lab}:
    s_lshr_b32 {so}, s2, 3
    s_mul_i32 {so}, {so}, {per*128}
    s_add_u32 {so}, {so}, {lo}
    v_min_u32 {va[0]}, {per-1}, v0
    v_lshl_add_u32 {va[0]}, {va[0]}, 7, {so}
    v_min_u32 {va[0]}, {k.name}_end-{lab}, {va[0]}
    v_mov_b32 {va[1]}, {r[1]}
    v_add_co_u32 {va[0]}, vcc, {r[0]}, {va[0]}
    v_addc_co_u32 {va[1]}, vcc, 0, {va[1]}, vcc""")
    k.s.free(r, so)
    return va

class Poll:
    def __init__(self, k, srd_, va, n, want, off=0, oobok=False, sleep=5):
        self.oobok = oobok; self.sleep = sleep
        self.k, self.srd, self.va, self.n, self.want, self.off = k, srd_, va, n, want, off
        self.d = k.v.alloc(n)
    def issue(self):
        x = {1: '', 4: 'x4'}[self.n]
        return self.k(f"buffer_load_dword{x} {self.d}, {self.va}, {self.srd}, {self.off} offen sc1")
    def _check(self):
        k, d = self.k, self.d
        if self.n == 4: k(f"v_min_u32 {d[0]}, {d[0]}, {d[1]}\nv_min3_u32 {d[0]}, {d[0]}, {d[2]}, {d[3]}")
        k(f"v_cmp_ne_u32 vcc, {self.want}, {d[0]}")
        if self.oobok: k("s_and_b64 vcc, vcc, 0xffff")
    def finish(self, maxspin=1 << 20):
        k = self.k
        self._check()
        with k.skip_if("s_cbranch_vccz"):
            cnt = k.s.alloc(); lp = k.lab('poll'); out = k.lab('pollout')
            k(f"s_mov_b32 {cnt}, 0\n{lp}:\ns_sleep {self.sleep}")
            self.issue(); k("s_waitcnt vmcnt(0)")
            self._check()
            k(f"s_cbranch_vccz {out}\ns_add_u32 {cnt}, {cnt}, 1\ns_cmp_lt_u32 {cnt}, {maxspin}\ns_cbranch_scc1 {lp}\n{out}:")
            k.s.free(cnt)
        k.v.free(self.d)

def wave0_store(k, I, text):
    k(f"s_cmp_lg_u32 {I['w']}, 0")
    with k.skip_if("s_cbranch_scc1"):
        k("s_mov_b64 exec, 1"); k(text); k("s_mov_b64 exec, -1")

def ph1f(k, I, F, lds_off, sv1, hook):
    ad = k.v.alloc(4); t = k.v.alloc(); t2 = k.v.alloc()
    k(f"""v_bfe_u32 {t}, {I['l']}, 2, 3
    v_lshrrev_b32 {t2}, 5, {I['l']}
    v_lshl_or_b32 {t}, {t2}, 4, {t}
    v_lshlrev_b32 {t}, 7, {t}
    v_and_b32 {t2}, 3, {I['l']}
    v_lshl_or_b32 {t}, {t2}, 3, {t}
    v_add_u32 {t}, {lds_off}, {t}
    v_bfe_u32 {t2}, {I['l']}, 3, 2""")
    for m in range(4):
        k(f"v_xor_b32 {ad[m]}, {m}, {t2}\nv_lshl_add_u32 {ad[m]}, {ad[m]}, 5, {t}")
    acc = k.v.allocq(32); fr = k.v.allocq(48)
    hook('bar')
    def rd(m):
        for kap in range(4):
            for h in range(2):
                o = 16 * fs[m] + 4 * kap + 2 * h
                k(f"ds_read_b64_tr_b16 {fr[o:o+2]}, {ad[m]} offset:{kap*4096+h*1024}")
    fs = {0: 0, 2: 1, 1: 2, 3: 0}
    rd(0); rd(2)
    for mi, m in enumerate((0, 2, 1, 3)):
        if mi < 2: rd((1, 3)[mi])
        for kap in range(4):
            for c in range(2):
                d = acc.q(2 * m + c)
                k(f"v_mfma_f32_16x16x32_bf16 {d}, {F.q(4*c+kap)}, {fr.q(4*fs[m]+kap)}, {d if kap else 0}")
            if kap & 1: hook('t')
    A = lambda c: fr.q(4 + c); B = lambda c: fr.q(8 + c); C = lambda c: fr.q(6 + c); Dd = lambda c: fr.q(10 + c)
    z = lambda m, c: acc.q(2 * m + c)
    for c in range(2):
        for h in (0, 2):
            s = slice(h, h + 2)
            pk(k, '+', A(c)[s], z(0, c)[s], z(2, c)[s]); pk(k, '-', C(c)[s], z(0, c)[s], z(2, c)[s])
        hook('t')
    for c in range(2):
        for h in (0, 2):
            s = slice(h, h + 2)
            pk(k, '+', B(c)[s], z(1, c)[s], z(3, c)[s]); pk(k, '-', Dd(c)[s], z(1, c)[s], z(3, c)[s])
        hook('t')
    for h in (0, 2):
        s = slice(h, h + 2)
        for c in range(2):
            pk(k, '+', z(0, c)[s], A(c)[s], B(c)[s]); pk(k, '-', z(2, c)[s], A(c)[s], B(c)[s])
        hook('t')
        pk(k, '+', z(1, 0)[s], C(0)[s], Dd(1)[s]); pk(k, '-', z(1, 1)[s], C(1)[s], Dd(0)[s])
        pk(k, '-', z(3, 0)[s], C(0)[s], Dd(1)[s]); pk(k, '+', z(3, 1)[s], C(1)[s], Dd(0)[s])
        hook('t')
    k(f"""v_cmp_gt_u32 vcc, 16, v0
    v_cndmask_b32 {z(1,0)[0]}, {z(1,0)[0]}, {C(0)[0]}, vcc
    v_cndmask_b32 {z(1,1)[0]}, {z(1,1)[0]}, -{Dd(0)[0]}, vcc
    v_cndmask_b32 {z(3,0)[0]}, {z(3,0)[0]}, {C(1)[0]}, vcc
    v_cndmask_b32 {z(3,1)[0]}, {z(3,1)[0]}, -{Dd(1)[0]}, vcc""")
    O = fr[0:16]; fr = fr[16:48]
    for r in range(4):
        for kp in range(4): k(f"v_cvt_pk_bf16_f32 {O[4*r+kp]}, {z(kp,0)[r]}, {z(kp,1)[r]}")
    so = k.s.alloc(); s2_ = k.s.alloc()
    k(f"""s_mov_b32 {so}, {16*V1_STR}
    v_mul_lo_u32 {t}, {I['g']}, {so}
    v_lshl_add_u32 {t}, {I['n']}, 2, {t}
    s_mul_i32 {so}, {I['w']}, {64*V1_STR}
    s_lshl_b32 {s2_}, {I['ta']}, 10
    s_add_u32 {so}, {so}, {s2_}
    s_lshl_b32 {s2_}, {I['tb']}, 6
    s_add_u32 {so}, {so}, {s2_}""")
    k.v.free(ad, t2, acc, fr); k.s.free(s2_)
    return O, t, so

def ph1_store(k, O, va, so, sv1):
    last = None
    for j in range(16):
        last = k(f"buffer_store_dword {O[j]}, {va}, {sv1}, {so} offen {SC}")
        if j < 15: k(f"s_add_u32 {so}, {so}, {V1_STR}")
    k.v.free(O, va); k.s.free(so)
    return last

BIG = 0x7f000000
def wpre_issue(k, I, swr, swi, second, fl_=''):
    Wp = dict(r=k.v.allocq(8), i=k.v.allocq(8), a=k.v.alloc(2), dst=k.s.alloc(4))
    col, t, ad = k.v.alloc(), k.v.alloc(), k.v.alloc(); r0, r1, a = k.s.alloc(), k.s.alloc(), k.s.alloc()
    dst = Wp['dst']
    k(f"""s_lshl_b32 {a}, {I['k1p']}, 2
    s_add_u32 {a}, {a}, {I['w']}
    s_lshl_b32 {r0}, {a}, 7
    s_add_u32 {r0}, {r0}, {64 if second else I['slot']}
    s_sub_u32 {r1}, 2048, {r0}
    s_and_b32 {r1}, {r1}, 2047
    s_mul_i32 {r0}, {r0}, 1026
    s_mul_i32 {r1}, {r1}, 1026
    v_lshlrev_b32 {col}, 9, {I['g']}
    v_lshl_add_u32 {col}, {I['n']}, 3, {col}
    v_add_u32 {ad}, {r0}, {col}
    v_sub_u32 {t}, {r1}, {col}
    v_add_u32 {t}, {2*829}, {t}
    v_cmp_lt_u32 vcc, 1, {I['g']}
    v_cndmask_b32 {ad}, {ad}, {t}, vcc""")
    for r in range(4):
        k(f"buffer_load_dwordx2 {Wp['r'].q(r,2)}, {ad}, {swr}, 0 offen offset:{128*r} {fl_}")
        k(f"buffer_load_dwordx2 {Wp['i'].q(r,2)}, {ad}, {swi}, 0 offen offset:{128*r} {fl_}")
    k(f"""s_add_u32 {r0}, {r0}, 1024
    v_mov_b32 {t}, {r1}
    v_mov_b32 {col}, {r0}
    v_cndmask_b32 {t}, {t}, {col}, vcc
    buffer_load_ushort {Wp['a'][0]}, {t}, {swr}, 0 offen
    buffer_load_ushort {Wp['a'][1]}, {t}, {swi}, 0 offen""")
    if not second:
        k(f"""s_lshl_b32 {dst[0]}, {I['slot']}, 16
        s_lshl_b32 {r0}, {a}, 10
        s_add_u32 {dst[0]}, {dst[0]}, {r0}
        s_add_u32 {dst[1]}, {dst[0]}, 16384
        s_add_u32 {dst[2]}, {dst[0]}, 32768
        s_add_u32 {dst[3]}, {dst[0]}, 49152
        s_cmp_lg_u32 {I['slot']}, 0""")
        with k.skip_if("s_cbranch_scc1"):
            k(f"""s_mov_b32 {dst[3]}, {BIG}
            s_cmp_gt_u32 {a}, 8
            s_cselect_b32 {dst[0]}, {BIG}, {dst[0]}
            s_cselect_b32 {dst[2]}, {BIG}, {dst[2]}
            s_cmp_eq_u32 {a}, 8
            s_cselect_b32 {dst[0]}, {256*16384}, {dst[0]}
            s_cselect_b32 {dst[2]}, {256*16384+1024}, {dst[2]}""")
    else:
        k(f"""s_lshl_b32 {r0}, {a}, 10
        s_add_u32 {dst[0]}, {r0}, 8192
        s_add_u32 {dst[1]}, {r0}, 49152
        s_add_u32 {dst[2]}, {r0}, {32768+8192}
        s_mov_b32 {dst[3]}, {BIG}
        s_cmp_gt_u32 {a}, 7
        s_cselect_b32 {dst[0]}, {BIG}, {dst[0]}
        s_cselect_b32 {dst[2]}, {BIG}, {dst[2]}""")
    k.v.free(col, t, ad); k.s.free(r0, r1, a)
    return Wp

def wpre_compute(k, I, Wp, sw):
    O = k.v.allocq(16); sel = k.v.alloc(2); t = k.v.alloc(3); va = k.v.alloc()
    R_, I_, A = Wp['r'], Wp['i'], Wp['a']
    k(f"v_mov_b32 {sel[0]}, 0x05040100\nv_mov_b32 {sel[1]}, 0x07060302")
    k(f"v_lshlrev_b32 {A[0]}, 16, {A[0]}\nv_lshlrev_b32 {A[1]}, 16, {A[1]}\nv_xor_b32 {A[1]}, 0x80000000, {A[1]}")
    k("s_mov_b32 exec_lo, 0")
    k(f"v_swap_b32 {sel[0]}, {sel[1]}\nv_xor_b32 {A[1]}, 0x80000000, {A[1]}")
    for r in range(4):
        k(f"""v_swap_b32 {R_[2*r]}, {R_[2*r+1]}
        v_swap_b32 {I_[2*r]}, {I_[2*r+1]}
        v_xor_b32 {I_[2*r]}, 0x80008000, {I_[2*r]}
        v_xor_b32 {I_[2*r+1]}, 0x80008000, {I_[2*r+1]}""")
    k("s_mov_b64 exec, -1")
    for kk in range(4):
        for r in range(4):
            k(f"v_perm_b32 {O[4*kk+r]}, {I_[2*r+(kk>>1)]}, {R_[2*r+(kk>>1)]}, {sel[kk&1]}")
    k(f"""v_cmp_lt_u32 vcc, 1, {I['g']}
    v_cndmask_b32 {t[0]}, {O[0]}, {O[3]}, vcc
    v_lshlrev_b32 {t[1]}, 16, {t[0]}
    v_and_b32 {t[2]}, 0xffff0000, {t[0]}
    v_add_f32 {t[1]}, {t[1]}, {A[0]}
    v_add_f32 {t[2]}, {t[2]}, {A[1]}
    v_mul_f32 {t[1]}, 0.5, {t[1]}
    v_mul_f32 {t[2]}, 0.5, {t[2]}
    v_cvt_pk_bf16_f32 {t[0]}, {t[1]}, {t[2]}
    v_cmp_eq_u32 vcc, 0, {I['l']}
    v_cndmask_b32 {O[0]}, {O[0]}, {t[0]}, vcc
    v_cmp_eq_u32 vcc, 32, {I['l']}
    v_cndmask_b32 {O[3]}, {O[3]}, {t[0]}, vcc""")
    last = None
    for kk in range(4):
        k(f"v_lshl_add_u32 {va}, {I['l']}, 4, {Wp['dst'][kk]}")
        last = k(f"buffer_store_dwordx4 {O.q(kk)}, {va}, {sw}, 0 offen {SC}")
    k.v.free(O, sel, t, va, R_, I_, A); k.s.free(Wp['dst'])
    return last

def w2_issue(k, I, T, sw):
    W = k.v.allocq(20); va = k.v.alloc(); so = k.s.alloc(); st = k.s.alloc()
    k(f"""v_lshlrev_b32 {va}, 4, {I['l']}
    s_lshl_b32 {so}, {T['tau']}, 14
    s_lshl_b32 {st}, {I['w']}, 12
    s_add_u32 {so}, {so}, {st}""")
    for b in range(4): k(f"buffer_load_dwordx4 {W.q(b)}, {va}, {sw}, {so} offen offset:{1024*b} {SC}")
    k(f"s_cmp_eq_u32 {T['sp']}, 0")
    with k.skip_if("s_cbranch_scc1"):
        k(f"""s_lshl_b32 {so}, {T['tau']}, 9
        s_add_u32 {so}, {so}, {256*16384}
        buffer_load_dwordx4 {W.q(4)}, {va}, {sw}, {so} offen {SC}""")
    k.v.free(va); k.s.free(so, st)
    return W

def ph2f(k, I, T, C, W, L, lds1, lds2, sv2, hook):
    D = k.v.allocq(16); acc = k.v.allocq(32); tmp = k.v.alloc(4); wu = k.v.allocq(8); ad = k.v.alloc(); st = k.s.alloc()
    z = lambda b, c: acc.q(2 * b + c)
    def stage(M, data_is_A, blocks=range(4), src=None, dst=None):
        for b in blocks:
            for c in range(2):
                d = (src or D).q(b); o = (dst or acc).q(2 * b + c)
                A, B = (d, M.q(c)) if data_is_A else (M.q(c), d)
                k(f"v_mfma_f32_16x16x32_bf16 {o}, {A}, {B}, 0")
            if src is None: hook('t')
    def unpack(b):
        for r in range(4): k(f"v_lshlrev_b32 {wu[r]}, 16, {W[4*b+r]}\nv_and_b32 {wu[4+r]}, 0xffff0000, {W[4*b+r]}")
    for b in range(4):
        for j in range(4): k(f"v_mov_b32 {D[4*b+j]}, {L[4*j+b]}")
    stage(C['sf'], True)
    a4 = k.v.alloc(4)
    k(f"""v_and_b32 {a4[0]}, 7, {I['n']}
    v_lshlrev_b32 {ad}, 2, {I['g']}
    v_xor_b32 {a4[0]}, {a4[0]}, {ad}
    v_lshlrev_b32 {a4[0]}, 4, {a4[0]}
    v_lshl_or_b32 {a4[0]}, {I['n']}, 10, {a4[0]}
    s_lshl_b32 {st}, {I['w']}, 8
    s_add_u32 {st}, {st}, {lds1}
    v_add_u32 {a4[0]}, {st}, {a4[0]}""")
    for b in range(1, 4): k(f"v_xor_b32 {a4[b]}, {16*b}, {a4[0]}")
    for b in range(4):
        for r in range(4): k(f"v_cvt_pk_bf16_f32 {D[4*b+r]}, {z(b,0)[r]}, {z(b,1)[r]}")
        k(f"ds_write_b128 {a4[b]}, {D.q(b)}")
    k(f"""s_and_b32 {st}, {I['w']}, 1
    s_lshl_b32 {st}, {st}, 2
    v_xor_b32 {ad}, {st}, {I['l']}
    s_lshl_b32 {st}, {I['w']}, 12
    s_add_u32 {st}, {st}, {lds1}
    v_lshl_add_u32 {a4[0]}, {ad}, 4, {st}""")
    for b in range(1, 4): k(f"v_xor_b32 {a4[b]}, {16*b}, {a4[0]}")
    hook('pre_bar1')
    k("s_waitcnt lgkmcnt(0)\ns_barrier")
    for b in range(4): k(f"ds_read_b128 {D.q(b)}, {a4[b]} offset:{1024*b}")
    k.v.free(a4)
    hook('post_bar1')
    stage(C['m1f'], True)
    for b in range(4):
        cmul_pack(k, z(b, 0), z(b, 1), C['twf'].q(0), C['twf'].q(1), True, D.q(b), tmp); hook('t')
    stage(C['m2f'], False)
    X = L[0:8]; Xd = L[8:12]
    k(f"s_cmp_eq_u32 {T['sp']}, 0")
    with k.skip_if("s_cbranch_scc1"):
        unpack(4)
        cmul_pack(k, z(0, 0), z(0, 1), wu.q(0), wu.q(1), False, Xd, tmp)
        stage(C['m2i'], True, [0], Xd, X)
        cmul_pack(k, X.q(0), X.q(1), C['twi'].q(0), C['twi'].q(1), False, Xd, tmp)
        stage(C['m1i'], False, [0], Xd, X)
    for b in range(4):
        unpack(b)
        cmul_pack(k, z(b, 0), z(b, 1), wu.q(0), wu.q(1), False, D.q(b), tmp); hook('t')
    stage(C['m2i'], True)
    for b in range(4):
        cmul_pack(k, z(b, 0), z(b, 1), C['twi'].q(0), C['twi'].q(1), False, D.q(b), tmp); hook('t')
    stage(C['m1i'], False)
    k(f"s_sub_u32 {st}, {T['sp']}, 1\ns_or_b32 {st}, {st}, {I['w']}\ns_cmp_lg_u32 {st}, 0")
    with k.skip_if("s_cbranch_scc1"):
        for r in range(4): k(f"v_mov_b32 {z(0,1)[r]}, {X[4+r]}")
    k(f"""v_lshlrev_b32 {ad}, 12, {I['g']}
    v_lshl_add_u32 {ad}, {I['n']}, 4, {ad}
    s_lshl_b32 {st}, {I['w']}, 8
    s_add_u32 {st}, {st}, {lds2}
    v_add_u32 {ad}, {st}, {ad}""")
    for r in range(4):
        for b in range(4): k(f"v_cvt_pk_bf16_f32 {D[4*r+b]}, {z(b,0)[r]}, {z(b,1)[r]}")
        k(f"ds_write_b128 {ad}, {D.q(r)} offset:{1024*r}")
    k(f"""s_lshl_b32 {st}, {I['w']}, 12
    s_add_u32 {st}, {st}, {lds2}
    v_lshl_add_u32 {ad}, {I['l']}, 4, {st}""")
    hook('pre_bar2')
    k("s_waitcnt lgkmcnt(0)\ns_barrier")
    for b in range(4): k(f"ds_read_b128 {D.q(b)}, {ad} offset:{1024*b}")
    hook('post_bar2')
    stage(C['si'], False)
    so = k.s.alloc()
    k(f"""s_mov_b32 {st}, {64*V2_STR}
    v_mul_lo_u32 {ad}, {I['g']}, {st}
    v_lshl_add_u32 {ad}, {I['n']}, 2, {ad}
    s_mul_i32 {so}, {I['w']}, {4*V2_STR}
    s_lshl_b32 {st}, {T['tau']}, 6
    s_add_u32 {so}, {so}, {st}""")
    for b in range(4):
        for r in range(4): k(f"v_cvt_pk_bf16_f32 {D[4*b+r]}, {z(b,0)[r]}, {z(b,1)[r]}")
    k.v.free(acc, tmp, wu, W, L, *C.values()); k.s.free(st)
    return D, ad, so

def v2_store(k, D, ad, so, sv2):
    last = None
    for b in range(4):
        for r in range(4):
            last = k(f"buffer_store_dword {D[4*b+r]}, {ad}, {sv2}, {so} offen {SC}")
            if r < 3: k(f"s_add_u32 {so}, {so}, {16*V2_STR}")
            elif b < 3: k(f"s_sub_u32 {so}, {so}, {47*V2_STR}")
    k.v.free(D, ad); k.s.free(so)
    return last

class B1f(B1):
    def __init__(self, k, I, sx, sb, ldsA, ldsB):
        super().__init__(k, I, sx, sb, ldsA, ldsB)
        for j in range(4):
            k(f"v_add_u32 {self.va[j]}, {self.soA}, {self.va[j]}\nv_add_u32 {self.vb[j]}, {self.soB}, {self.vb[j]}")
        k(f"""s_add_u32 {self.soA}, {I['ca']}, {I['cb'] if I.get('rot1', 1) == 1 else 0}
        s_and_b32 {self.soA}, {self.soA}, {(0, 15, 15, 12)[I.get('rot1', 1)]}
        s_lshl_b32 {self.soA}, {self.soA}, 7""")
        self.tail = None
    def dma(self, s, i):
        k = self.k; j = i & 3; buf = (s % self.NST) * 16384
        if s >= 16:
            if self.tail: self.tail(s - 16, i)
            return
        if i < 4:
            if j == 0: k(f"s_add_u32 m0, {self.mB}, {buf}")
            ins = k(f"buffer_load_dwordx4 {self.vb[j]}, {self.sb}, {self.soA} offen offset:{1024*j} lds")
        else:
            if j == 0: k(f"s_add_u32 m0, {self.mA}, {buf}")
            ins = k(f"buffer_load_dwordx4 {self.va[j]}, {self.sx}, {self.soA} offen offset:{1024*j} lds")
            if j == 3: k(f"s_add_u32 {self.soA}, {self.soA}, 128\ns_and_b32 {self.soA}, {self.soA}, 0x7ff")
        self.last[s] = ins
    def alloc(self):
        self.acc = self.k.v.allocq(64, 16); self.fr = self.k.v.allocq(32)
    def main(self, fill=None, pre_bar=None, post_bar=None):
        k = self.k; NS = 16; acc, fr = self.acc, self.fr
        def reads(s, kk):
            f = fr.q((s * 4 + kk) & 1, 16); buf = (s % self.NST) * 16384
            out = []
            for b in range(2):
                out.append(f"ds_read_b128 {f.q(b)}, {self.ra[kk]} offset:{buf + 4096*b}")
                out.append(f"ds_read_b128 {f.q(2+b)}, {self.rb[kk]} offset:{buf + 4096*b}")
            return out
        k.wait(self.last[0]); k("s_barrier")
        lastrd = None
        for r in reads(0, 0): lastrd = k(r)
        for s in range(NS):
            for kk in range(4):
                f = fr.q((s * 4 + kk) & 1, 16)
                rd = []
                if kk < 3: rd = reads(s, kk + 1)
                elif s + 1 < NS:
                    if pre_bar: pre_bar(s)
                    k.wait(lastrd, self.last[s + 1]); k("s_barrier")
                    rd = reads(s + 1, 0)
                ds, di = (s + self.NST, 0) if kk == 3 else (s + self.NST - 1, 2 * (kk + 1))
                dm = [(ds, di), (ds, di + 1)] if ds >= self.NST else []
                for m, (rb, c) in enumerate(((0, 0), (0, 1), (1, 1), (1, 0))):
                    d = acc.q(2 * rb + c, 16)
                    first = s == 0 and kk == 0
                    k(f"v_mfma_f32_32x32x16_bf16 {d}, {f.q(rb)}, {f.q(2+c)}, {0 if first else d}")
                    if m < 2 and rd:
                        k(rd[2 * m]); lastrd = k(rd[2 * m + 1])
                    if m == 1 and kk == 3 and post_bar: post_bar(s)
                    if m >= 2 and dm: self.dma(*dm[m - 2])
                    if fill: fill(s, kk, m)
        k.v.free(fr, self.va, self.vb, self.ra, self.rb); k.s.free(self.soA, self.soB, self.mA, self.mB)
        return acc

def pass2f(k, I, acc, Pm, E1, E, sh):
    for j in range(14, -1, -1):
        cfma(k, E.q(j, 2), Pm['L64'], E.q(j + 1, 2), E.q(j, 2))
    S, T = E.q(0, 2), E.q(1, 2); U, V = E.q(2, 2), E.q(3, 2)
    k(f"""v_mov_b32 {T[0]}, {S[0]}
    v_mov_b32 {T[1]}, {S[1]}
    v_permlane32_swap_b32 {S[0]}, {T[0]}
    v_permlane32_swap_b32 {S[1]}, {T[1]}""")
    cfma(k, S, Pm['L1024'], T, S)
    cfma(k, E1['lo'], Pm['L32'], S, E1['lo'])
    k(f"s_mov_b32 exec_lo, 0\nv_mov_b32 {S[0]}, {E1['lo'][0]}\nv_mov_b32 {S[1]}, {E1['lo'][1]}\ns_mov_b64 exec, -1")
    e0 = (E1['er'][0], E1['ei'][0])
    cfma(k, e0, Pm['L16'], S, e0)
    cf = Pm['coef']
    for h, x in ((0, S), (1, e0)):
        k(f"""v_mul_f32 {U[h]}, {cf[0]}, {x[0]}
        v_mul_f32 {V[h]}, {cf[0]}, {x[1]}
        v_fma_f32 {U[h]}, -{cf[1]}, {x[1]}, {U[h]}
        v_fma_f32 {V[h]}, {cf[1]}, {x[0]}, {V[h]}""")
    va, so = E1['hva'], E1['hso']
    L = Pm['L1']; cr, ci = U, V
    O = E[8:32]
    pend = []; last = None
    def flush():
        nonlocal last
        q, o = pend.pop(0)
        k(f"""v_permlane32_swap_b32 {o[0]}, {o[1]}
        v_permlane32_swap_b32 {o[2]}, {o[3]}
        v_permlane16_swap_b32 {o[0]}, {o[2]}
        v_permlane16_swap_b32 {o[1]}, {o[3]}""")
        last = k(f"buffer_store_dwordx4 {o}, {va}, {sh}, {so} offen {SC}")
        if q < 7: k(f"s_add_u32 {so}, {so}, {2*32*16384}")
    for j in range(16):
        nr, ni = upair(acc, j, 0), upair(acc, j, 1)
        k(f"""v_pk_fma_f32 {nr}, {L}, {cr}, {nr}{BC0}
        v_pk_fma_f32 {ni}, {L}, {ci}, {ni}{BC0}
        v_pk_fma_f32 {nr}, {L}, {ci}, {nr}{BC1}{NEG0}
        v_pk_fma_f32 {ni}, {L}, {cr}, {ni}{BC1}""")
        cr, ci = nr, ni
        if pend: flush()
        o = O.q((j // 2) % 6)
        h = 2 * (j & 1)
        k(f"v_cvt_pk_bf16_f32 {o[h]}, {nr[0]}, {nr[1]}\nv_cvt_pk_bf16_f32 {o[h+1]}, -{ni[0]}, -{ni[1]}")
        if j & 1: pend.append((j // 2, o))
    flush()
    k.v.free(va, E, acc, E1['er'], E1['ei'], E1['lo'], *Pm.values()); k.s.free(so)
    return last

def hstore_addr(k, I, E1):
    va = k.v.alloc(); t = k.v.alloc(); so = k.s.alloc(); st = k.s.alloc(); s2_ = k.s.alloc()
    k(f"""s_lshl_b32 {st}, {I['ca']}, 1
    s_lshr_b32 {s2_}, {I['w']}, 1
    s_add_u32 {st}, {st}, {s2_}
    s_lshl_b32 {so}, {st}, 9
    s_and_b32 {st}, {st}, 3
    s_lshl_b32 {st}, {st}, 2
    v_xor_b32 {va}, {st}, {I['n']}
    v_lshlrev_b32 {va}, 4, {va}
    v_lshrrev_b32 {t}, 1, {I['g']}
    v_lshl_or_b32 {va}, {t}, 14, {va}
    v_and_b32 {t}, 1, {I['g']}
    v_lshl_or_b32 {va}, {t}, 19, {va}
    s_and_b32 {s2_}, {I['w']}, 1
    s_lshl_b32 {s2_}, {s2_}, 8
    s_add_u32 {so}, {so}, {s2_}
    s_lshl_b32 {s2_}, {I['cb']}, 15
    s_add_u32 {so}, {so}, {s2_}""")
    k.v.free(t); k.s.free(st, s2_)
    E1['hva'], E1['hso'] = va, so

class CLoad:
    def __init__(self, k, I, sc, CA=None):
        self.k, self.sc = k, sc
        self.C = CA or k.a.alloc(256); self.va = k.v.alloc(4); self.ra = k.v.alloc(4); self.so = k.s.alloc(); self.mw = k.s.alloc()
        t = k.v.alloc(2); st = k.s.alloc(); l = I['l']
        k(f"""v_and_b32 {t[0]}, 7, {l}
        v_xor_b32 {t[0]}, {t[0]}, {I['g']}
        v_and_b32 {t[1]}, 4, {t[0]}
        v_lshlrev_b32 {self.va[0]}, 4, {t[1]}
        v_and_b32 {t[1]}, 1, {t[0]}
        v_lshl_or_b32 {self.va[0]}, {t[1]}, 5, {self.va[0]}
        v_bfe_u32 {t[1]}, {t[0]}, 1, 1
        v_lshl_or_b32 {self.va[0]}, {t[1]}, 4, {self.va[0]}
        v_lshrrev_b32 {t[1]}, 3, {l}
        v_lshl_or_b32 {self.va[0]}, {t[1]}, 11, {self.va[0]}
        s_lshr_b32 {st}, {I['w']}, 1
        s_lshl_b32 {st}, {st}, 20
        s_lshl_b32 {self.so}, {I['tb']}, 15
        s_add_u32 {st}, {st}, {self.so}
        v_add_u32 {self.va[0]}, {st}, {self.va[0]}
        v_xor_b32 {self.va[1]}, 64, {self.va[0]}
        v_add_u32 {self.va[1]}, {16384-1024}, {self.va[1]}
        v_add_u32 {self.va[2]}, {(1<<19)-2048}, {self.va[0]}
        v_add_u32 {self.va[3]}, {(1<<19)-2048}, {self.va[1]}
        s_lshl_b32 {self.so}, {I.get('rc', I['ta'])}, 7
        s_lshl_b32 {self.mw}, {I['w']}, 12
        v_lshrrev_b32 {t[0]}, 1, {I['n']}
        v_xor_b32 {t[0]}, {t[0]}, {I['g']}
        v_lshlrev_b32 {t[0]}, 4, {t[0]}
        v_lshl_or_b32 {t[0]}, {I['n']}, 7, {t[0]}
        v_add_u32 {self.ra[0]}, {self.mw}, {t[0]}
        v_xor_b32 {self.ra[1]}, 64, {self.ra[0]}
        v_add_u32 {self.ra[2]}, 0x10000, {self.ra[0]}
        v_add_u32 {self.ra[3]}, 0x10000, {self.ra[1]}""")
        k.v.free(t); k.s.free(st)
        self.n = 0; self.slot = {}; self.ld = {}; self.rd = {}; self.nd = 0
    def frag(self, j, kk, mm): return self.C.q(4 * j + 2 * mm + kk)
    def issue1(self, slot):
        k = self.k; j, q = self.n >> 2, self.n & 3
        if q == 0:
            if slot in self.rd: k.wait(self.rd.pop(slot))
            self.slot[j] = slot
            k(f"s_add_u32 m0, {self.mw}, {slot}")
        self.ld[j] = k(f"buffer_load_dwordx4 {self.va[q]}, {self.sc}, {self.so} offen offset:{1024*q} lds")
        if q == 3: k(f"s_add_u32 {self.so}, {self.so}, 128\ns_and_b32 {self.so}, {self.so}, 0x7ff")
        self.n += 1
        if self.n == 64: k.v.free(self.va); k.s.free(self.so, self.mw)
    def issue(self, slot):
        for _ in range(4): self.issue1(slot)
    def drain(self):
        k = self.k; j = self.nd; slot = self.slot[j]; hi = 2 if slot >= 65536 else 0
        assert self.n >= 4 * (j + 1)
        if slot >= 65536 and (slot >= 131072) != bool(getattr(self, 'bumped', False)):
            k(f"v_xor_b32 {self.ra[2]}, 0x30000, {self.ra[2]}\nv_xor_b32 {self.ra[3]}, 0x30000, {self.ra[3]}"); self.bumped = slot >= 131072
        k.wait(self.ld[j])
        for mm in range(2):
            for kk in range(2):
                self.rd[slot] = k(f"ds_read_b128 {self.frag(j,kk,mm)}, {self.ra[hi+kk]} offset:{(slot & 65535) + 2048*mm}")
        self.nd += 1
        if self.nd == 16: k.v.free(self.ra)
        return slot

def gen_Gf(k, I):
    G = k.v.allocq(64)
    f, b, sb, a, c, s, mk = [k.v.alloc() for _ in range(7)]
    st = k.s.alloc()
    k(f"""v_lshrrev_b32 {a}, 1, {I['g']}
    v_lshlrev_b32 {a}, 3, {a}
    v_and_b32 {c}, 1, {I['g']}
    v_lshl_add_u32 {a}, {c}, 1, {a}
    v_cvt_f32_u32 {sb}, {a}
    v_mul_u32_u24 {mk}, 0x8000, {c}
    v_lshl_or_b32 {mk}, {mk}, 16, {mk}""")
    for ib in range(2):
        k(f"""s_and_b32 {st}, {I['w']}, 1
        s_lshl_b32 {st}, {st}, 6
        s_add_u32 {st}, {st}, {16*ib}
        v_add_u32 {a}, {st}, {I['n']}
        v_cvt_f32_u32 {f}, {a}
        v_mul_f32 {f}, {fl(1/128)}, {f}
        v_mul_f32 {b}, {f}, {sb}""")
        for kap in range(4):
            for d in range(4):
                sl = 16 * kap + 4 * (d >> 1) + (d & 1)
                g0, g2 = G[16 * ib + 4 * kap + d], G[16 * (ib + 2) + 4 * kap + d]
                k(f"""v_fmamk_f32 {a}, {f}, {fl(float(sl))}, {b}
                v_cos_f32 {c}, {a}
                v_sin_f32 {s}, {a}
                v_cvt_pk_bf16_f32 {g0}, {c}, -{s}""")
                if d & 1: k(f"v_cvt_pk_bf16_f32 {g2}, -{s}, -{c}\nv_xor_b32 {g2}, {mk}, {g2}")
                else: k(f"v_xor_b32 {g2}, {mk}, {g0}")
    k(f"""v_lshlrev_b32 {c}, 31, {I['n']}
    v_or_b32 {c}, 0x3f003f00, {c}
    v_cmp_eq_u32 vcc, 0, {I['g']}""")
    for ib in range(4): k(f"v_cndmask_b32 {G[16*ib]}, {G[16*ib]}, {c}, vcc")
    k.v.free(f, b, sb, a, c, s, mk); k.s.free(st)
    return G

class B3f:
    NST = 4
    D = 3
    def __init__(self, k, I, sh, CL):
        self.k, self.I, self.sh, self.CL = k, I, sh, CL
        self.vh = k.v.alloc(2); self.rh = k.v.alloc(4)
        self.so, self.mH = k.s.alloc(), k.s.alloc()
        t = k.v.alloc(2); st = k.s.alloc(); l = I['l']
        k(f"""s_lshr_b32 {st}, {I['w']}, 1
        s_xor_b32 {st}, {st}, {I['w']}
        s_lshl_b32 {st}, {st}, 13
        s_lshl_b32 {self.so}, {I['ta']}, 19
        s_add_u32 {st}, {st}, {self.so}
        v_lshl_add_u32 {self.vh[0]}, {l}, 4, {st}
        v_add_u32 {self.vh[1]}, 4096, {self.vh[0]}
        s_lshl_b32 {self.so}, {I.get('rc', I['ta'])}, 15
        s_lshl_b32 {self.mH}, {I['w']}, 13""")
        k(f"""v_and_b32 {t[0]}, 3, {l}
        v_and_b32 {t[1]}, 2, {I['g']}
        v_xor_b32 {t[1]}, {t[1]}, {t[0]}
        v_lshlrev_b32 {t[0]}, 9, {t[0]}
        v_lshl_or_b32 {t[0]}, {t[1]}, 6, {t[0]}
        v_bfe_u32 {t[1]}, {l}, 2, 2
        v_lshl_or_b32 {t[0]}, {t[1]}, 4, {t[0]}
        v_and_b32 {t[1]}, 1, {I['g']}
        v_lshl_or_b32 {t[0]}, {t[1]}, 3, {t[0]}
        s_and_b32 {st}, {I['w']}, 1
        s_lshl_b32 {st}, {st}, 14
        v_add_u32 {self.rh[0]}, {st}, {t[0]}
        v_xor_b32 {self.rh[1]}, 64, {self.rh[0]}
        v_add_u32 {self.rh[2]}, 0x10000, {self.rh[0]}
        v_add_u32 {self.rh[3]}, 0x10000, {self.rh[1]}""")
        k.v.free(t); k.s.free(st)
        self.last = {}; self.tail = None
    def dma(self, s, i):
        k = self.k
        if s >= 16:
            if self.tail: self.tail(s - 16, i)
            return
        if i & 3 == 0: k(f"s_add_u32 m0, {self.mH}, {(s % self.NST)*32768 + (i>>2)*4096}")
        self.last[s] = k(f"buffer_load_dwordx4 {self.vh[i>>2]}, {self.sh}, {self.so} offen offset:{1024*(i&3)} {SC} lds")
        if i == 7: k(f"s_add_u32 {self.so}, {self.so}, 32768\ns_and_b32 {self.so}, {self.so}, 0x7ffff")
    def prefill(self, steps):
        for s in steps:
            for i in range(8): self.dma(s, i)
    def alloc(self):
        self.acc = self.k.v.allocq(64); self.fr = self.k.v.allocq(64)
    def main(self, fill=None, pre_bar=None, post_bar=None):
        k = self.k; NS = 16; acc, fr = self.acc, self.fr
        def reads(s, kk):
            f = fr.q(kk, 32); out = []
            for ib in range(8):
                off = (s % self.NST) * 32768 + ib * 2048 + kk * 256; hi = 2 if off >= 65536 else 0
                for h in range(2):
                    out.append(f"ds_read_b64_tr_b16 {f[4*ib+2*h:4*ib+2*h+2]}, {self.rh[hi+h]} offset:{off & 65535}")
            return out
        if pre_bar: pre_bar(-1)
        k.wait(self.last[0]); k("s_barrier")
        lastrd = None
        for r in reads(0, 0): lastrd = k(r)
        if post_bar: post_bar(-1)
        for s in range(NS):
            for kk in range(2):
                f = fr.q(kk, 32); rd = []
                if kk == 0: rd = reads(s, 1)
                elif s + 1 < NS:
                    if pre_bar: pre_bar(s)
                    k.wait(lastrd, self.last[s + 1]); k("s_barrier")
                    rd = reads(s + 1, 0)
                dm = [(s + self.D, 4 * kk + x) for x in range(4)]
                for q in range(16):
                    ib, mm = q >> 1, q & 1
                    d = acc.q(8 * mm + ib)
                    zero = s == 0 and kk == 0 and ib >= 4
                    k(f"v_mfma_f32_16x16x32_bf16 {d}, {f.q(ib)}, {self.CL.frag(s,kk,mm)}, {0 if zero else d}")
                    if rd and q < 8:
                        k(rd[2 * q]); lastrd = k(rd[2 * q + 1])
                    if dm and q >= 8 and q % 2 == 0: self.dma(*dm[(q - 8) // 2])
                    if q == 9 and kk == 1 and post_bar: post_bar(s)
                    if fill: fill(s, kk, q)
        k.v.free(fr, self.vh, self.rh); k.s.free(self.so, self.mH)
        return acc

def epi_issue_f(k, I, sg, sd):
    E = dict(g=k.v.allocq(16), d=k.v.alloc(2))
    va = k.v.alloc(); so = k.s.alloc(); st = k.s.alloc()
    k(f"""v_lshlrev_b32 {va}, 4, {I['g']}
    s_lshl_b32 {so}, {I['ta']}, 9
    s_and_b32 {st}, {I['w']}, 1
    s_lshl_b32 {st}, {st}, 8
    s_add_u32 {so}, {so}, {st}""")
    for ib in range(4): k(f"buffer_load_dwordx4 {E['g'].q(ib)}, {va}, {sg}, {so} offen offset:{64*ib} {SC}")
    k(f"""v_lshlrev_b32 {va}, 1, {I['n']}
    s_lshl_b32 {so}, {I['tb']}, 5
    s_lshr_b32 {st}, {I['w']}, 1
    s_lshl_b32 {st}, {st}, 10
    s_add_u32 {so}, {so}, {st}""")
    for mm in range(2): k(f"buffer_load_ushort {E['d'][mm]}, {va}, {sd}, {so} offen offset:{512*mm}")
    k.v.free(va); k.s.free(so, st)
    return E

def xd_init(k, I, E, acc, ldsX):
    ad = k.v.alloc(2); t = k.v.alloc(2); st = k.s.alloc()
    k(f"""s_and_b32 {st}, {I['w']}, 1
    s_lshl_b32 {st}, {st}, 13
    s_add_u32 {st}, {st}, {ldsX}
    v_lshrrev_b32 {t[0]}, 2, {I['l']}
    v_lshlrev_b32 {t[0]}, 7, {t[0]}
    v_and_b32 {t[1]}, 3, {I['l']}
    v_lshl_or_b32 {t[0]}, {t[1]}, 3, {t[0]}
    v_add_u32 {t[0]}, {st}, {t[0]}
    v_bfe_u32 {t[1]}, {I['l']}, 3, 2
    s_and_b32 {st}, {I['w']}, 2
    v_xor_b32 {t[1]}, {st}, {t[1]}
    v_lshl_add_u32 {ad[0]}, {t[1]}, 5, {t[0]}
    v_xor_b32 {ad[1]}, 32, {ad[0]}""")
    for mm in range(2):
        for ib in range(4): k(f"ds_read_b64_tr_b16 {acc.q(8*mm+ib)[2:4]}, {ad[mm]} offset:{2048*ib}")
    Dk = E['d']
    k(f"v_lshlrev_b32 {Dk[0]}, 16, {Dk[0]}\nv_lshlrev_b32 {Dk[1]}, 16, {Dk[1]}")
    for mm in range(2):
        sel = f" op_sel:[{mm},0] op_sel_hi:[{mm},1]"
        for ib in range(4):
            a = acc.q(8 * mm + ib)
            k(f"""v_lshlrev_b32 {a[0]}, 16, {a[2]}
            v_and_b32 {a[1]}, 0xffff0000, {a[2]}
            v_lshlrev_b32 {a[2]}, 16, {a[3]}
            v_and_b32 {a[3]}, 0xffff0000, {a[3]}
            v_pk_mul_f32 {a[0:2]}, {Dk}, {a[0:2]}{sel}
            v_pk_mul_f32 {a[2:4]}, {Dk}, {a[2:4]}{sel}""")
    k.v.free(ad, t, Dk); k.s.free(st)

def final(k, I, E, acc, G, L, ldsX, ldsY, so_, pf):
    ad = k.v.alloc(); t = k.v.alloc(); st = k.s.alloc()
    k(f"s_lshl_b32 {st}, {I['w']}, 13\ns_add_u32 {st}, {st}, {ldsX}\nv_lshl_add_u32 {ad}, {I['l']}, 4, {st}")
    for mm in range(2):
        for ib in range(4): k(f"ds_write_b128 {ad}, {acc.q(8*mm+4+ib)} offset:{1024*(4*mm+ib)}")
    y_stage(k, I, L, ldsY)
    R_ = k.v.allocq(32); Y = k.v.allocq(32); ay = k.v.alloc()
    k(f"""v_xor_b32 {ad}, 0x2000, {ad}
    v_lshrrev_b32 {ay}, 5, {I['l']}
    v_lshlrev_b32 {ay}, 9, {ay}
    v_bfe_u32 {t}, {I['l']}, 3, 2
    v_lshl_or_b32 {ay}, {t}, 6, {ay}
    v_and_b32 {t}, 3, {I['l']}
    v_lshl_or_b32 {ay}, {t}, 4, {ay}
    v_bfe_u32 {t}, {I['l']}, 2, 1
    v_lshl_or_b32 {ay}, {t}, 3, {ay}
    s_lshr_b32 {st}, {I['w']}, 1
    s_lshl_b32 {st}, {st}, 13
    s_add_u32 {st}, {st}, {ldsY}
    v_add_u32 {ay}, {st}, {ay}
    s_waitcnt lgkmcnt(0)
    s_barrier""")
    pf("xbar")
    for mm in range(2):
        for kap in range(4):
            for h in range(2):
                o = 16 * mm + 4 * kap + 2 * h
                k(f"ds_read_b64_tr_b16 {Y[o:o+2]}, {ay} offset:{4096*mm + 1024*kap + 256*h}")
    for ib in range(4):
        for mm in range(2): k(f"ds_read_b128 {R_.q(4*mm+ib)}, {ad} offset:{1024*(4*mm+ib)}")
    va = k.v.alloc(); so = k.s.alloc(); om = k.v.alloc(4)
    k(f"""v_lshlrev_b32 {va}, 18, {I['g']}
    v_lshl_or_b32 {va}, {I['n']}, 2, {va}
    s_and_b32 {so}, {I['w']}, 1
    s_lshl_b32 {so}, {so}, 22
    s_lshl_b32 {st}, {I['ta']}, 12
    s_add_u32 {so}, {so}, {st}
    s_lshl_b32 {st}, {I['tb']}, 6
    s_add_u32 {so}, {so}, {st}
    s_lshr_b32 {st}, {I['w']}, 1
    s_lshl_b32 {st}, {st}, 11
    s_add_u32 {so}, {so}, {st}""")
    def mf(ib):
        for kap in range(4):
            for mm in range(2):
                d = acc.q(8 * mm + 4 + ib)
                k(f"v_mfma_f32_16x16x32_bf16 {d}, {G.q(4*ib+kap)}, {Y.q(4*mm+kap)}, {d if kap else 0}")
    def fin(ib):
        g = E['g'].q(ib)
        for h in (0, 2):
            k(f"""v_sub_f32 {om[h]}, 1.0, {g[h]}
            v_sub_f32 {om[h+1]}, 1.0, {g[h+1]}
            v_cvt_pk_bf16_f32 {om[h+1]}, {om[h]}, {om[h+1]}
            v_lshlrev_b32 {om[h]}, 16, {om[h+1]}
            v_and_b32 {om[h+1]}, 0xffff0000, {om[h+1]}""")
        for mm in range(2):
            b = acc.q(8 * mm + ib); r = R_.q(4 * mm + ib)
            for h in (0, 2):
                k(f"v_pk_add_f32 {b[h:h+2]}, {b[h:h+2]}, {r[h:h+2]}\nv_pk_mul_f32 {b[h:h+2]}, {om[h:h+2]}, {b[h:h+2]}")
        for mm in range(2):
            b = acc.q(8 * mm + ib); a = acc.q(8 * mm + 4 + ib)
            for h in (0, 2):
                k(f"v_pk_fma_f32 {b[h:h+2]}, {g[h:h+2]}, {a[h:h+2]}, {b[h:h+2]}")
        for r in range(4):
            for mm in range(2):
                k(f"buffer_store_dword {acc.q(8*mm+ib)[r]}, {va}, {so_}, {so} offen offset:{1024*mm} {OUTF}")
            if (ib, r) != (3, 3): k(f"s_add_u32 {so}, {so}, {(1<<16) if r < 3 else (1<<20) - 3*(1<<16)}")
    mf(0)
    for ib in range(4):
        if ib < 3: mf(ib + 1)
        fin(ib)

def build(opt={}):
    O = dict(order="XWS", npre=2, sig=6, wnt=0, v2late=1, cpf=1)
    O.update(opt)
    k = Kernel(NAME + "_kernel", nv=256, na=256)
    LX = 131072; LT2 = LX + 16384; LDS = LT2 + 16384; LT1 = 114688
    k("s_cmp_ge_u32 s2, 256")
    k(f"s_cbranch_scc1 {k.name}_end")
    KP = k.s.alloc(32, 4)
    k(f"s_load_dwordx16 {KP[0:16]}, s[0:1], 0\ns_load_dwordx16 {KP[16:32]}, s[0:1], 64")
    P = {n: KP[o // 4:o // 4 + 2] for n, o in KA.items()}
    cva = code_prefetch(k, 0, 40960); cd = k.v.alloc()
    I = ids(k)
    if O['cpf']:
        k(f"s_cmp_lg_u32 {I['w']}, 0")
        with k.skip_if("s_cbranch_scc1"):
            k(f"global_load_dword {cd}, {cva}, off")
    k.v.free(cva)
    pf = Prof(k, 0)
    sx = srd(k, P['x'], SZ['x'])
    if O.get('lat'):
        nm = O['lat']; sl = srd(k, P[nm], 1 << 21); tv = k.v.alloc(2)
        k(f"v_mov_b32 {tv[0]}, s2\nv_lshlrev_b32 {tv[0]}, 13, {tv[0]}\ns_waitcnt vmcnt(0)")
        pf("l0")
        k(f"buffer_load_dword {tv[1]}, {tv[0]}, {sl}, 0 offen\ns_waitcnt vmcnt(0)")
        pf("l1")
        for q in range(1, 9): k(f"buffer_load_dword {tv[1]}, {tv[0]}, {sl}, 0 offen offset:{256*q}\ns_waitcnt vmcnt(0)")
        pf("l2")
        k.s.free(sl); k.v.free(tv)
    sf = srd(k, P['ws'], 3 * 32768, WS_F)
    sdbg = srd(k, P['dbg'], 256)
    FB, FH, FV = k.s.alloc(), k.s.alloc(), k.s.alloc()
    one = k.v.alloc(); zero = k.v.alloc(); vp = k.v.alloc(); vflag = k.v.alloc()
    k(f"""s_mov_b32 {FB}, 0
    s_mov_b32 {FH}, 32768
    s_lshl_b32 {FV}, s2, 7
    v_mov_b32 {vflag}, {FV}
    s_mov_b32 {FV}, 65536
    v_mov_b32 {one}, 1
    v_mov_b32 {zero}, 0
    v_lshlrev_b32 {vp}, 7, v0
    s_cmp_lg_u32 s2, 0""")
    with k.skip_if("s_cbranch_scc1"):
        clrB = k(f"buffer_store_dword {zero}, {vp}, {sf}, 0 offen {SC}")
    ldx = xtile_issue(k, I, sx, LX)
    sb = srd_sel(k, I, P['bre'], P['bim'], SZ['bre'])
    g1 = B1f(k, I, sx, sb, 0, 65536)
    F = gen_F(k, I)
    pf("F")
    H = {}
    def issueW():
        swr = srd(k, P['wr'], SZ['wr']); swi = srd(k, P['wi'], SZ['wi'])
        H['Wp'] = wpre_issue(k, I, swr, swi, False, "nt" if O['wnt'] else "")
        k(f"s_cmp_lg_u32 {I['slot']}, 0")
        with k.skip_if("s_cbranch_scc1"):
            H['Wp2'] = wpre_issue(k, I, swr, swi, True, "")
        k.s.free(swr, swi)
    def issueG():
        sgw = srd(k, P['gw'], SZ['gw'])
        H['Gt'] = gate_issue(k, I, sx, sgw)
        k.s.free(sgw)
    issueG()
    if O['order'] == "XWS": issueW()
    t4 = [srd(k, P[n], 2048) for n in ('lre', 'lim', 'ldt')]
    Q = ssm_param_issue(k, I, *t4); k.s.free(*t4)
    g1.prefill([0])
    if O['order'] == "XSW": issueW()
    pf("iss0")
    sv1 = srd(k, P['ws'], 256 * V1_STR, WS_V1)
    dq = [(s, i) for s in range(1, O['npre']) for i in range(8)]
    def hook1(name):
        if name == 'bar':
            k.wait(ldx); k("s_barrier"); pf("xt")
            k(f"s_or_b32 m0, {I['w']}, s2\ns_cmp_lg_u32 m0, 0")
            with k.skip_if("s_cbranch_scc1"):
                k(f"s_mov_b64 exec, 1\nbuffer_store_dword {one}, {zero}, {sdbg}, 0 offen {SC}\ns_mov_b64 exec, -1")
        elif dq: g1.dma(*dq.pop(0))
    O1 = ph1f(k, I, F, LX, sv1, hook1)
    k.v.free(F)
    while dq: g1.dma(*dq.pop(0))
    pf("ph1")
    sw = srd(k, P['ws'], 256 * 16384 + 2048, WS_W)
    sg = srd(k, P['ws'], 8192, WS_G)
    st = k.s.alloc()
    k(f"s_lshl_b32 {st}, {I['tb']}, 14")
    se = srd(k, P['ws'], 16384, WS_E, st)
    ph1_store(k, *O1, sv1)
    t = k.v.alloc(2)
    k(f"""s_lshl_b32 {st}, {I['ta']}, 10
    s_sub_u32 {st}, {30*512}, {st}
    v_lshl_add_u32 {t[0]}, v0, 2, {st}
    v_mov_b32 {t[1]}, -1
    buffer_store_dword {t[1]}, {t[0]}, {se}, 0 offen {SC}""")
    wave0_store(k, I, f"buffer_store_dword {zero}, {vflag}, {sf}, {FH} offen {SC}\nbuffer_store_dword {zero}, {vflag}, {sf}, {FV} offen {SC}")
    k.v.free(t); k.s.free(st)
    gate_compute(k, I, H['Gt'], sg, SC)
    k(f"s_cmp_lg_u32 {I['slot']}, 0")
    with k.skip_if("s_cbranch_scc1"):
        wpre_compute(k, I, H['Wp2'], sw)
    lastw = wpre_compute(k, I, H['Wp'], sw)
    pf("st")
    g1.prefill(range(O['npre'], 4))
    g1.alloc()
    sc = srd_sel(k, I, P['cre'], P['cim'], SZ['cre'])
    with k.capture() as fl1:
        Pm = ssm_param_compute(k, Q)
        CL = CLoad(k, I, sc)
        T = ph2_params(k, I)
        C2 = ph2_consts(k, I, T, 2.0 ** -20)
    p0 = Poll(k, sdbg, zero, 1, 1)
    p1 = Poll(k, sf, vp, 1, 1, FB)
    pf("pre")
    def pre_bar(s):
        if s == O['sig']: k.wait(lastw)
    def post_bar(s):
        if s == O['sig'] - 3: p0.issue()
        if s == O['sig']:
            fl1.emit_until_safe()
            p0.finish()
            wave0_store(k, I, f"buffer_store_dword {one}, {vflag}, {sf}, {FB} offen {SC}")
    def tail(s, i):
        if s == 0 and i == 0: p1.issue()
        if s < 3: CL.issue1((65536 if i >= 4 else 0) + s * 16384)
    g1.tail = tail
    def fill1(s, kk, m):
        fl1.emit(3)
        if s == 11 and kk == 3 and m == 3: fl1.flush()
        if kk == 3 and m == 0 and s % 4 == 3: pf(f"a{s}")
    acc = g1.main(fill1, pre_bar, post_bar)
    pf("main1")
    k.s.free(sx, sb, sdbg)
    E1 = scan_pass1(k, I, acc, Pm, se)
    p1.finish()
    k("s_barrier")
    pf("pass1")
    L1 = v1_issue(k, I, T, sv1, SC)
    W2 = w2_issue(k, I, T, sw)
    k.s.free(sv1, sw)
    CL.issue(49152)
    free = [CL.drain() for _ in range(6)]
    CL.issue(free.pop(0)); CL.issue(free.pop(0))
    scan_coef(k, acc, Pm)
    hstore_addr(k, I, E1)
    pf("coef")
    E = lookback(k, I, E1, se)
    pf("lb")
    sh = srd(k, P['ws'], 8 << 20, WS_H)
    lasth = pass2f(k, I, acc, Pm, E1, E, sh)
    for _ in range(3): free.append(CL.drain())
    pf("pass2")
    sv2 = srd(k, P['ws'], 256 * V2_STR, WS_V2)
    state = dict(go=False, cur=None)
    p3 = Poll(k, sf, vp, 1, 1, FH)
    def hook(name):
        if name == 'pre_bar1': k.wait(lasth)
        if name == 'post_bar1':
            wave0_store(k, I, f"buffer_store_dword {one}, {vflag}, {sf}, {FH} offen {SC}")
            pf("hflag"); state['go'] = True
        if name == 't' and state['go'] and CL.n < 64:
            for _ in range(2):
                if CL.n & 3 == 0: state['cur'] = free.pop(0)
                CL.issue1(state['cur'])
        if name == 'pre_bar2': p3.issue()
        if name == 'post_bar2':
            while CL.nd < 16: CL.drain()
    V2 = ph2f(k, I, T, C2, W2, L1, LT1, LT2, sv2, hook)
    hold = {}
    if not O['v2late']: hold['v2'] = v2_store(k, *V2, sv2)
    pf("ph2")
    g3 = B3f(k, I, sh, CL)
    p3.finish()
    k("s_waitcnt lgkmcnt(0)\ns_barrier")
    pf("sync3")
    g3.prefill(range(2))
    sd = srd(k, P['dsk'], 2048)
    Ep = epi_issue_f(k, I, sg, sd); k.s.free(sd)
    G = gen_Gf(k, I)
    g3.prefill([2])
    if O['v2late']: hold['v2'] = v2_store(k, *V2, sv2)
    g3.alloc()
    xd_init(k, I, Ep, g3.acc, LX)
    pf("pref")
    p4 = Poll(k, sf, vp, 1, 1, FV)
    def pre_bar3(s):
        if s == 3: k.wait(hold['v2'])
        if s == 12: p4.finish()
    def post_bar3(s):
        if s == 3: wave0_store(k, I, f"buffer_store_dword {one}, {vflag}, {sf}, {FV} offen {SC}")
        if s == 10: p4.issue()
    def tail3(s, i):
        if s == 0 and i == 0: hold['L'] = v2_issue(k, I, sv2, SC)
    g3.tail = tail3
    acc = g3.main(lambda s, kk, q: pf(f"b{s}") if (kk == 1 and q == 0 and s % 4 == 3) else None, pre_bar3, post_bar3)
    pf("main3")
    so = srd(k, P['out'], SZ['out'])
    final(k, I, Ep, acc, G, hold['L'], 0, 32768, so, pf)
    pf("epi")
    pf.done()
    end(k)
    return k, LDS

def write(path, opt={}):
    k, lds = build(opt)
    open(path, "w").write(module(header(), [(k.name, 256, 256, lds)], [k]))
    print(path, k.stats)
    if PROF: json.dump([k.profnames], open(path[:-2] + ".json", "w"))

if __name__ == "__main__":
    opt = {}
    for a in sys.argv[2:]:
        n, v = a.split("="); opt[n] = int(v) if v.lstrip('-').isdigit() else v
    write(sys.argv[1] if len(sys.argv) > 1 else "outf.s", opt)
```

```python
from fused import *

def gen_F2(k, I):
    F = k.v.allocq(32); a = k.v.allocq(8); c = k.v.allocq(8); fr, ib, m1, m2, m3 = [k.v.alloc() for _ in range(5)]
    st = k.s.alloc(); odd = k.s.alloc(2)
    R_ = lambda kap, d: F[4 * kap + d]; M_ = lambda kap, d: F[16 + 4 * kap + d]
    k(f"""s_lshl_b32 {st}, {I['w']}, 4
    v_add_u32 {m3}, {st}, {I['n']}
    v_cvt_f32_u32 {fr}, {m3}
    v_mul_f32 {fr}, {fl(1/128)}, {fr}
    v_lshrrev_b32 {m1}, 1, {I['g']}
    v_lshlrev_b32 {m1}, 4, {m1}
    v_and_b32 {m2}, 1, {I['g']}
    v_lshl_add_u32 {m1}, {m2}, 2, {m1}
    v_cvt_f32_u32 {ib}, {m1}
    v_mul_f32 {ib}, {ib}, {fr}
    v_cmp_eq_u32 vcc, 0, {m3}""")
    for j in range(8): k(f"v_fmamk_f32 {a[j]}, {fr}, {fl(float(8*(j>>2) + (j&3)))}, {ib}")
    for j in range(8): k(f"v_cos_f32 {c[j]}, {a[j]}")
    for j in range(8): k(f"v_sin_f32 {a[j]}, {a[j]}")
    k(f"""v_mov_b32 {ib}, 0x80008000
    v_bfe_i32 {m2}, {I['n']}, 0, 1
    v_bfe_i32 {m1}, {I['n']}, 1, 1
    v_cmp_ne_u32 {odd}, 0, {m2}
    v_and_b32 {m2}, {ib}, {m2}
    v_and_b32 {m1}, {ib}, {m1}
    v_xor_b32 {m3}, {m1}, {m2}
    v_mov_b32 {fr}, 0xbf803f80""")
    for d in range(4):
        k(f"v_cvt_pk_bf16_f32 {R_(0,d)}, {c[2*d]}, {c[2*d+1]}\nv_cvt_pk_bf16_f32 {M_(0,d)}, -{a[2*d]}, -{a[2*d+1]}")
        k(f"v_cndmask_b32 {M_(0,d)}, {M_(0,d)}, {fr}, vcc")
    for d in range(4):
        k(f"""v_cndmask_b32 {R_(1,d)}, {R_(0,d)}, {M_(0,d)}, {odd}
        v_cndmask_b32 {M_(1,d)}, {M_(0,d)}, {R_(0,d)}, {odd}
        v_xor_b32 {R_(2,d)}, {m2}, {R_(0,d)}
        v_xor_b32 {M_(2,d)}, {m2}, {M_(0,d)}
        v_xor_b32 {R_(3,d)}, {m3}, {R_(1,d)}
        v_xor_b32 {M_(3,d)}, {m1}, {M_(1,d)}
        v_xor_b32 {R_(1,d)}, {m1}, {R_(1,d)}
        v_xor_b32 {M_(1,d)}, {m3}, {M_(1,d)}""")
    k.v.free(a, c, fr, ib, m1, m2, m3); k.s.free(st, odd)
    return F

def gen_G1b(k, I):
    G = k.v.allocq(32); a = k.v.allocq(8); c = k.v.allocq(8)
    f, b, sb, sel, mk = [k.v.alloc() for _ in range(5)]
    st = k.s.alloc()
    k(f"""v_lshrrev_b32 {f}, 1, {I['g']}
    v_lshlrev_b32 {f}, 3, {f}
    v_and_b32 {b}, 1, {I['g']}
    v_lshl_add_u32 {f}, {b}, 1, {f}
    v_cvt_f32_u32 {sb}, {f}
    v_bfe_i32 {f}, {I['n']}, 0, 1
    v_and_b32 {sel}, 0x02020202, {f}
    v_xor_b32 {sel}, 0x03020100, {sel}
    v_and_b32 {f}, 0x80000000, {f}
    v_bfe_i32 {mk}, {I['n']}, 1, 1
    v_and_b32 {mk}, 0x80008000, {mk}
    v_xor_b32 {mk}, {mk}, {f}
    s_and_b32 {st}, {I['w']}, 1
    s_lshl_b32 {st}, {st}, 6
    v_add_u32 {f}, {st}, {I['n']}
    v_cvt_f32_u32 {f}, {f}
    v_mul_f32 {f}, {fl(1/128)}, {f}""")
    for ib in range(2):
        if ib: k(f"v_add_f32 {f}, {fl(16/128)}, {f}")
        k(f"v_mul_f32 {b}, {f}, {sb}")
        for j in range(8): k(f"v_fmamk_f32 {a[j]}, {f}, {fl(float(16*(j>>2) + 4*((j>>1)&1) + (j&1)))}, {b}")
        for j in range(8): k(f"v_cos_f32 {c[j]}, {a[j]}")
        for j in range(8): k(f"v_sin_f32 {a[j]}, {a[j]}")
        for j in range(8): k(f"v_cvt_pk_bf16_f32 {G[16*ib+j]}, {c[j]}, -{a[j]}")
        for j in range(8): k(f"v_perm_b32 {G[16*ib+8+j]}, {G[16*ib+j]}, {G[16*ib+j]}, {sel}\nv_xor_b32 {G[16*ib+8+j]}, {mk}, {G[16*ib+8+j]}")
    k(f"""v_lshlrev_b32 {b}, 31, {I['n']}
    v_or_b32 {b}, 0x3f003f00, {b}
    v_cmp_eq_u32 vcc, 0, {I['g']}""")
    for ib in range(2): k(f"v_cndmask_b32 {G[16*ib]}, {G[16*ib]}, {b}, vcc")
    k.v.free(a, c, f, b, sb, sel, mk); k.s.free(st)
    return G

CORD = ('sf', 'm2f', 'si', 'm2i', 'm1f', 'twf', 'm1i', 'twi')
def coop_consts(k, I, T, lds, scale):
    O = k.v.allocq(16); a = k.v.alloc(4); c = k.v.alloc(4)
    nf, g4, f, b, t, u = [k.v.alloc() for _ in range(6)]
    def pair(dst, inv):
        for j in range(4): k(f"v_fmamk_f32 {a[j]}, {f}, {fl(float(j))}, {b}")
        for j in range(4): k(f"v_cos_f32 {c[j]}, {a[j]}")
        for j in range(4): k(f"v_sin_f32 {a[j]}, {a[j]}")
        for j in range(4):
            if not inv: k(f"v_cvt_pk_bf16_f32 {dst[j]}, {c[j]}, {a[j]}\nv_cvt_pk_bf16_f32 {dst[4+j]}, -{a[j]}, {c[j]}")
            else: k(f"v_cvt_pk_bf16_f32 {dst[j]}, {c[j]}, -{a[j]}\nv_cvt_pk_bf16_f32 {dst[4+j]}, {a[j]}, {c[j]}")
    def tw(dst):
        k(f"v_mul_f32 {f}, {fl(1/16)}, {f}\nv_mul_f32 {b}, {fl(1/16)}, {b}")
        for j in range(4): k(f"v_fmamk_f32 {a[j]}, {f}, {fl(float(j))}, {b}")
        for j in range(4): k(f"v_cos_f32 {dst[j]}, {a[j]}")
        for j in range(4): k(f"v_sin_f32 {dst[4+j]}, {a[j]}")
    A, B = O.q(0, 8), O.q(1, 8)
    k(f"""v_cvt_f32_u32 {nf}, {I['n']}
    v_cvt_f32_u32 {g4}, {I['g']}
    v_mul_f32 {g4}, 4.0, {g4}""")
    def wave(w):
        k(f"s_cmp_lg_u32 {I['w']}, {w}")
        return k.skip_if("s_cbranch_scc1")
    def ksp(sel, lim):
        k(f"""v_cvt_f32_u32 {u}, {T['sp']}
        v_mul_f32 {u}, {fl(-960.0)}, {u}
        v_cmp_lt_u32 vcc, {lim}, {sel}
        v_cvt_f32_u32 {t}, {T['ks']}
        v_cndmask_b32 {u}, 0, {u}, vcc
        v_add_f32 {t}, {t}, {u}""")
    with wave(0):
        ksp(I['n'], 7)
        k(f"v_fmamk_f32 {f}, {nf}, {fl(128.0)}, {t}\nv_mul_f32 {f}, {fl(1/2048)}, {f}\nv_mul_f32 {b}, {f}, {g4}")
        pair(A, False)
        k(f"""v_xor_b32 {t}, 3, {I['n']}
        v_cndmask_b32 {t}, {I['n']}, {t}, vcc
        v_cvt_f32_u32 {f}, {t}
        v_mul_f32 {f}, {fl(1/16)}, {f}
        v_mul_f32 {b}, {f}, {g4}""")
        pair(B, False)
        k(f"s_cmp_eq_u32 {T['sp']}, 0")
        with k.skip_if("s_cbranch_scc1"):
            k(f"v_cndmask_b32 {t}, 0, 16, vcc")
            for j in range(8): k(f"v_and_b32 {A[j]}, 0xffff, {A[j]}\nv_lshlrev_b32 {A[j]}, {t}, {A[j]}")
            k(f"v_cmp_eq_u32 vcc, 0, {I['n']}")
            for j in range(4): k(f"v_mov_b32 {t}, {hex(0x3f80 if j % 2 == 0 else 0xbf80)}\nv_cndmask_b32 {A[4+j]}, {A[4+j]}, {t}, vcc")
    with wave(1):
        ksp(I['g'], 1)
        k(f"""v_fmamk_f32 {t}, {g4}, {fl(128.0)}, {t}
        v_mul_f32 {b}, {t}, {nf}
        v_mul_f32 {b}, {fl(1/2048)}, {b}
        v_mul_f32 {f}, {fl(1/16)}, {nf}""")
        pair(A, True)
        k(f"""v_add_f32 {t}, {fl(3.0)}, {g4}
        v_cndmask_b32 {t}, {g4}, {t}, vcc
        v_mul_f32 {b}, {f}, {t}
        v_cndmask_b32 {f}, {f}, -{f}, vcc""")
        pair(B, True)
        k(f"s_cmp_eq_u32 {T['sp']}, 0")
        with k.skip_if("s_cbranch_scc1"):
            for j in range(4):
                k(f"""v_lshlrev_b32 {t}, 16, {A[j]}
                v_and_b32 {u}, 0xffff0000, {A[j]}
                v_add_f32 {t}, {t}, {t}
                v_add_f32 {u}, {u}, {u}
                v_cvt_pk_bf16_f32 {t}, {t}, {u}
                v_cndmask_b32 {A[j]}, {t}, 0, vcc
                v_cndmask_b32 {A[4+j]}, 0, {t}, vcc""")
            k(f"""v_lshlrev_b32 {t}, 31, {I['n']}
            v_or_b32 {t}, 0x3f803f80, {t}
            v_cmp_eq_u32 vcc, 0, {I['g']}
            v_cndmask_b32 {A[0]}, {A[0]}, {t}, vcc""")
    with wave(2):
        k(f"v_cvt_f32_u32 {u}, {T['k1']}\nv_fma_f32 {t}, {nf}, 4.0, {u}\nv_mul_f32 {f}, {fl(1/64)}, {t}\nv_mul_f32 {b}, {f}, {g4}")
        pair(A, False); tw(B)
    with wave(3):
        k(f"""v_cvt_f32_u32 {u}, {T['k1']}
        v_fma_f32 {t}, {g4}, 4.0, {u}
        v_mul_f32 {b}, {t}, {nf}
        v_mul_f32 {b}, {fl(1/64)}, {b}
        v_mul_f32 {f}, {fl(1/16)}, {nf}""")
        pair(A, True); tw(B)
        for j in range(8): k(f"v_mul_f32 {B[j]}, {fl(scale)}, {B[j]}")
    st = k.s.alloc()
    k(f"s_lshl_b32 {st}, {I['w']}, 12\ns_add_u32 {st}, {st}, {lds}\nv_lshl_add_u32 {t}, {I['l']}, 4, {st}")
    last = None
    for j in range(4): last = k(f"ds_write_b128 {t}, {O.q(j)} offset:{1024*j}")
    k.v.free(O, a, c, nf, g4, f, b, t, u); k.s.free(st)
    return last

def coop_read(k, I, lds, parked):
    C = {}; ad = k.v.alloc()
    k(f"v_lshlrev_b32 {ad}, 4, {I['l']}\nv_add_u32 {ad}, {lds}, {ad}")
    for j, n in enumerate(CORD):
        C[n] = parked[n] if n in parked else k.v.allocq(8)
        for h in range(2): k(f"ds_read_b128 {C[n].q(h)}, {ad} offset:{2048*j + 1024*h}")
    k.v.free(ad)
    return C
```

```python
import sys, json
from fused import *
from opt1 import *

class WDir:
    def __init__(self, k, I, T, swr, swi, lt2):
        self.k, self.I, self.T, self.sw, self.lt2 = k, I, T, (swr, swi), lt2
        self.rows = k.s.alloc(8, 4)
        self.va = k.v.alloc(); self.mw = k.s.alloc(); self.so = k.s.alloc()
        st = k.s.alloc(); R_ = self.rows
        k(f"""s_lshl_b32 {R_[0]}, {I['w']}, 9
        s_add_u32 {R_[0]}, {R_[0]}, {T['ks']}
        s_lshr_b32 {st}, {I['w']}, 1
        s_and_b32 {st}, {st}, {T['sp']}
        s_mul_i32 {st}, {st}, 960
        s_sub_u32 {R_[0]}, {R_[0]}, {st}""")
        for b in range(1, 4): k(f"s_add_u32 {R_[2*b]}, {R_[0]}, {128*b}")
        for b in range(4): k(f"s_sub_u32 {R_[2*b+1]}, 2048, {R_[2*b]}\ns_and_b32 {R_[2*b+1]}, {R_[2*b+1]}, 2047")
        self.spw = k.s.alloc()
        k(f"""s_cmp_eq_u32 {I['w']}, 0
        s_cselect_b32 {self.spw}, {T['sp']}, 0
        s_cmp_eq_u32 {self.spw}, 1
        s_cselect_b32 {R_[1]}, 1024, {R_[1]}""")
        for j in range(8): k(f"s_mul_i32 {R_[j]}, {R_[j]}, 1026")
        k(f"v_lshlrev_b32 {self.va}, 4, {I['l']}\ns_lshl_b32 {self.mw}, {I['w']}, 12")
        k.s.free(st)
        self.n = 0; self.slot = {}; self.ld = None
    def issue1(self, slot):
        k = self.k; b, q = self.n >> 2, self.n & 3
        if q == 0: self.slot[b] = slot
        if q & 1 == 0: k(f"s_and_b32 {self.so}, {self.rows[2*b+(q>>1)]}, -16")
        k(f"s_add_u32 m0, {self.mw}, {self.slot[b] + 1024*q}")
        self.ld = k(f"buffer_load_dwordx4 {self.va}, {self.sw[q&1]}, {self.so} offen lds")
        self.n += 1
    def tail_issue(self):
        k = self.k; self.tc = k.v.allocq(8); ta = k.v.alloc()
        k(f"v_mov_b32 {ta}, {BIG}")
        for j in range(8): k(f"v_writelane_b32 {ta}, {self.rows[j]}, {j}")
        k(f"v_and_b32 {ta}, -16, {ta}")
        k("s_mov_b64 exec, 255")
        for a in range(2): k(f"buffer_load_dwordx4 {self.tc.q(a)}, {ta}, {self.sw[a]}, 0 offen offset:1024")
        k("s_mov_b64 exec, -1")
        k.v.free(ta)
    def tail_write(self):
        k = self.k; ad = k.v.alloc(); st = k.s.alloc()
        k(f"""s_lshl_b32 {st}, {self.I['w']}, 8
        s_add_u32 {st}, {st}, {self.lt2}
        v_lshl_add_u32 {ad}, {self.I['l']}, 11, {st}
        s_mov_b64 exec, 255
        ds_write_b128 {ad}, {self.tc.q(0)}
        ds_write_b128 {ad}, {self.tc.q(1)} offset:1024
        s_mov_b64 exec, -1""")
        k.v.free(ad, self.tc); k.s.free(st, self.so, *self.sw); k.v.free(self.va)
    def prep(self):
        k, I, T = self.k, self.I, self.T
        self.a0, self.a3, self.sg = k.v.alloc(), k.v.alloc(), k.v.alloc(2); self.up = k.s.alloc(2); self.ov = k.s.alloc(2)
        self.d, self.m = k.s.alloc(), k.s.alloc(); t = k.v.alloc(); tb = k.s.alloc(); a0, a3 = self.a0, self.a3
        k(f"""s_and_b32 {self.d}, {self.rows[0]}, 15
        s_and_b32 {self.m}, {self.rows[1]}, 15
        s_add_u32 {self.m}, {self.m}, 2048
        v_lshlrev_b32 {a0}, 9, {I['g']}
        v_lshl_add_u32 {a0}, {I['n']}, 3, {a0}
        s_lshl_b32 {tb}, {T['k1']}, 1
        v_add_u32 {a0}, {tb}, {a0}
        s_add_u32 {tb}, {self.m}, 1664
        v_sub_u32 {t}, {tb}, {a0}
        v_add_u32 {a0}, {self.d}, {a0}
        v_cmp_lt_u32 {self.up}, 1, {I['g']}
        v_cndmask_b32 {a0}, {a0}, {t}, {self.up}
        v_cndmask_b32 {self.sg[0]}, 1.0, -1.0, {self.up}
        v_add_u32 {a3}, 384, {a0}
        v_and_b32 {t}, 1024, {a3}
        v_cmp_ne_u32 {self.ov}, 0, {t}
        s_lshl_b32 {tb}, {I['w']}, 8
        s_add_u32 {tb}, {tb}, {self.lt2 - 1024}
        v_add_u32 {t}, {tb}, {a3}
        v_add_u32 {a0}, {self.mw}, {a0}
        v_add_u32 {a3}, {self.mw}, {a3}
        v_cndmask_b32 {a3}, {a3}, {t}, {self.ov}
        v_sub_u32 {a3}, {a3}, {a0}
        v_cndmask_b32 {self.sg[1]}, 0, -1, {self.ov}""")
        k.v.free(t); k.s.free(tb)
    def gather(self, b, out, second=False):
        k, I, T = self.k, self.I, self.T
        a0, a3 = k.v.alloc(), k.v.alloc()
        k(f"""v_add_u32 {a0}, {self.slot[b]}, {self.a0}
        v_and_b32 {a3}, {hex((4096*b - self.slot[b]) & 0xffffffff)}, {self.sg[1]}
        v_add3_u32 {a3}, {a3}, {self.a3}, {a0}""")
        if b == 0:
            k(f"s_cmp_eq_u32 {self.spw}, 0")
            with k.skip_if("s_cbranch_scc1"):
                if second: k(f"s_mov_b32 exec_hi, 0\nv_add_u32 {a0}, 2048, {a0}\nv_add_u32 {a3}, 2048, {a3}\ns_mov_b64 exec, -1")
                else: k(f"s_mov_b32 exec_lo, 0\nv_subrev_u32 {a0}, 2048, {a0}\nv_subrev_u32 {a3}, 2048, {a3}\ns_mov_b64 exec, -1")
        last = None
        for r in range(4):
            for a in range(2):
                last = k(f"ds_read_u16_d16_hi {out[4*a+r]}, {a0 if r < 3 else a3} offset:{(128*r if r < 3 else 0) + 1024*a}")
        k.v.free(a0, a3)
        return last
    def symm(self, outs):
        k, I = self.k, self.I
        al = k.v.allocq(2 * len(outs), 2); t = k.v.alloc(2); d, m = k.s.alloc(), k.s.alloc()
        for j, (b, out, second) in enumerate(outs):
            k(f"""s_add_u32 {m}, {self.m}, {self.mw}
            s_add_u32 {m}, {m}, {self.slot[b]}
            s_lshl_b32 {d}, {I['w']}, 8
            s_add_u32 {d}, {d}, {self.d}
            s_add_u32 {d}, {d}, {self.lt2 + 4096*b}""")
            if b == 0:
                k(f"s_lshl_b32 vcc_lo, {self.spw}, 11")
                k(f"s_add_u32 {d}, {d}, vcc_lo" if second else f"s_sub_u32 {m}, {m}, vcc_lo")
            k(f"""v_mov_b32 {t[0]}, {m}
            v_mov_b32 {t[1]}, {d}
            v_cndmask_b32 {t[0]}, {t[0]}, {t[1]}, {self.up}
            ds_read_u16_d16_hi {al[2*j]}, {t[0]}
            ds_read_u16_d16_hi {al[2*j+1]}, {t[0]} offset:1024""")
        k("s_waitcnt lgkmcnt(0)")
        for lo, r in ((True, 0), (False, 3)):
            k(f"s_mov_b32 exec_lo, {1 if lo else 0}\ns_mov_b32 exec_hi, {0 if lo else 1}")
            for j, (b, out, second) in enumerate(outs):
                k(f"""v_add_f32 {out[r]}, {out[r]}, {al[2*j]}
                v_sub_f32 {out[4+r]}, {out[4+r]}, {al[2*j+1]}
                v_mul_f32 {out[r]}, 0.5, {out[r]}
                v_mul_f32 {out[4+r]}, 0.5, {out[4+r]}""")
        k("s_mov_b64 exec, -1")
        k.v.free(al, t); k.s.free(d, m)
    def sign(self, out):
        for h in (4, 6): self.k(f"v_pk_mul_f32 {out[h:h+2]}, {self.sg}, {out[h:h+2]} op_sel_hi:[0,1]")
    def done(self):
        self.k.v.free(self.a0, self.a3, self.sg); self.k.s.free(self.rows, self.mw, self.spw, self.up, self.ov, self.d, self.m)

def mf2(k, M, data_is_A, d, o):
    for c in range(2):
        A, B = (d, M.q(c)) if data_is_A else (M.q(c), d)
        k(f"v_mfma_f32_16x16x32_bf16 {o.q(c)}, {A}, {B}, 0")

def ph2_w(k, T, WD):
    Wf = k.v.allocq(32); X = k.v.allocq(8)
    k.wait(WD.ld)
    k(f"s_cmp_eq_u32 {T['sp']}, 0")
    with k.skip_if("s_cbranch_scc1"):
        WD.gather(0, X, True)
    for b in range(4): WD.lastrd = WD.gather(b, Wf.q(b, 8))
    return Wf, X

def ph2_wfix(k, T, WD, Wf, X):
    k.wait(WD.lastrd)
    k(f"s_cmp_lg_u32 {T['k1']}, 0")
    with k.skip_if("s_cbranch_scc1"):
        WD.symm([(b, Wf.q(b, 8), False) for b in range(4)] + [(0, X, True)])
    for b in range(4): WD.sign(Wf.q(b, 8))
    WD.sign(X)
    WD.done()

def ph2_s1(k, I, C, L, lds1):
    D = k.v.allocq(8); acc = k.v.allocq(16); a0, ad = k.v.alloc(), k.v.alloc(); st = k.s.alloc()
    k(f"""v_and_b32 {a0}, 7, {I['n']}
    v_lshlrev_b32 {ad}, 2, {I['g']}
    v_xor_b32 {a0}, {a0}, {ad}
    v_lshlrev_b32 {a0}, 4, {a0}
    v_lshl_or_b32 {a0}, {I['n']}, 10, {a0}
    s_lshl_b32 {st}, {I['w']}, 8
    s_add_u32 {st}, {st}, {lds1}
    v_add_u32 {a0}, {st}, {a0}""")
    def mov(b):
        for j in range(4): k(f"v_mov_b32 {D[4*(b&1)+j]}, {L[4*j+b]}")
    def out(b, o):
        z = acc.q(b & 1, 8)
        k(f"v_xor_b32 {ad}, {16*b}, {a0}")
        for r in range(4): k(f"v_cvt_pk_bf16_f32 {o[r]}, {z[r]}, {z[4+r]}")
        return k(f"ds_write_b128 {ad}, {o}")
    mov(0); mov(1)
    mf2(k, C['sf'], True, D.q(0), acc.q(0, 8)); mf2(k, C['sf'], True, D.q(1), acc.q(1, 8))
    mov(2); mov(3)
    out(0, L.q(3)); mf2(k, C['sf'], True, D.q(0), acc.q(0, 8))
    out(1, L.q(0)); mf2(k, C['sf'], True, D.q(1), acc.q(1, 8))
    out(2, L.q(1)); last = out(3, L.q(2))
    k.v.free(D, acc, a0, ad, L, C.pop('sf')); k.s.free(st)
    return last

def ph2_mid(k, I, T, C, Wf, X, lds1, lds2, mark):
    D = k.v.allocq(16); acc = k.v.allocq(32); tmp = k.v.alloc(4); ad = k.v.alloc(); a0 = k.v.alloc(); st = k.s.alloc(); Xd = k.v.allocq(4)
    z = lambda b, c: acc.q(2 * b + c)
    def stage(M, data_is_A):
        for b in range(4): mf2(k, M, data_is_A, D.q(b), acc.q(b, 8))
    k(f"""s_and_b32 {st}, {I['w']}, 1
    s_lshl_b32 {st}, {st}, 2
    v_xor_b32 {ad}, {st}, {I['l']}
    s_lshl_b32 {st}, {I['w']}, 12
    s_add_u32 {st}, {st}, {lds1}
    v_lshl_add_u32 {a0}, {ad}, 4, {st}""")
    for b in range(4): k(f"v_xor_b32 {ad}, {16*b}, {a0}\nds_read_b128 {D.q(b)}, {ad} offset:{1024*b}")
    mark(0)
    stage(C['m1f'], True)
    def mulstage(w, conj, M, data_is_A):
        for b in range(4):
            wr, wi = w(b)
            cmul_pack(k, z(b, 0), z(b, 1), wr, wi, conj, D.q(b), tmp)
            if b: mf2(k, M, data_is_A, D.q(b - 1), acc.q(b - 1, 8))
        mf2(k, M, data_is_A, D.q(3), acc.q(3, 8))
    mulstage(lambda b: (C['twf'].q(0), C['twf'].q(1)), True, C['m2f'], False)
    mark(1)
    k(f"s_cmp_eq_u32 {T['sp']}, 0")
    with k.skip_if("s_cbranch_scc1"):
        cmul_pack(k, z(0, 0), z(0, 1), X.q(0), X.q(1), False, Xd, tmp)
        mf2(k, C['m2i'], True, Xd.q(0), X)
        cmul_pack(k, X.q(0), X.q(1), C['twi'].q(0), C['twi'].q(1), False, Xd, tmp)
        mf2(k, C['m1i'], False, Xd.q(0), X)
    mulstage(lambda b: (Wf.q(2 * b), Wf.q(2 * b + 1)), False, C['m2i'], True)
    mark(2)
    mulstage(lambda b: (C['twi'].q(0), C['twi'].q(1)), False, C['m1i'], False)
    mark(3)
    k(f"""v_lshlrev_b32 {ad}, 12, {I['g']}
    v_lshl_add_u32 {ad}, {I['n']}, 4, {ad}
    s_lshl_b32 {st}, {I['w']}, 8
    s_add_u32 {st}, {st}, {lds2}
    v_add_u32 {ad}, {st}, {ad}""")
    k(f"s_sub_u32 {st}, {T['sp']}, 1\ns_or_b32 {st}, {st}, {I['w']}\ns_cmp_lg_u32 {st}, 0")
    with k.skip_if("s_cbranch_scc1"):
        for r in range(4): k(f"v_mov_b32 {z(0,1)[r]}, {X[4+r]}")
    for r in range(4):
        for b in range(4): k(f"v_cvt_pk_bf16_f32 {D[4*r+b]}, {z(b,0)[r]}, {z(b,1)[r]}")
        k(f"ds_write_b128 {ad}, {D.q(r)} offset:{1024*r}")
    k.v.free(D, acc, tmp, ad, a0, Xd, X, Wf); k.s.free(st)
    for n in ('m1f', 'twf', 'm2f', 'm2i', 'twi', 'm1i'):
        r = C.pop(n)
        if r[0].kind == 'v': k.v.free(r)

def ph2_s6(k, I, C, lds2):
    D = k.v.allocq(16); acc = k.v.allocq(32); ad = k.v.alloc(); st = k.s.alloc(); so = k.s.alloc()
    k(f"s_lshl_b32 {st}, {I['w']}, 12\ns_add_u32 {st}, {st}, {lds2}\nv_lshl_add_u32 {ad}, {I['l']}, 4, {st}")
    for b in range(4): k(f"ds_read_b128 {D.q(b)}, {ad} offset:{1024*b}")
    k(f"""s_mov_b32 {st}, {64*V2_STR}
    v_mul_lo_u32 {ad}, {I['g']}, {st}
    v_lshl_add_u32 {ad}, {I['n']}, 2, {ad}
    s_mul_i32 {so}, {I['w']}, {4*V2_STR}
    s_lshr_b32 {st}, {I['slot']}, 4
    s_lshl_b32 {st}, {st}, 12
    s_add_u32 {so}, {so}, {st}
    s_lshl_b32 {st}, {I['k1p']}, 10
    s_add_u32 {so}, {so}, {st}
    s_and_b32 {st}, {I['slot']}, 15
    s_lshl_b32 {st}, {st}, 6
    s_add_u32 {so}, {so}, {st}""")
    for b in range(4): mf2(k, C['si'], False, D.q(b), acc.q(b, 8))
    for b in range(4):
        for r in range(4): k(f"v_cvt_pk_bf16_f32 {D[4*b+r]}, {acc[8*b+r]}, {acc[8*b+4+r]}")
    r = C.pop('si')
    if r[0].kind == 'v': k.v.free(r)
    k.v.free(acc); k.s.free(st)
    return D, ad, so

def park(k, C, names, A):
    for j, n in enumerate(names):
        dst = A[8 * j:8 * j + 8]
        for i in range(8): k(f"v_accvgpr_write_b32 {dst[i]}, {C[n][i]}")
        k.v.free(C[n]); C[n] = dst

def v2_issue2(k, I, sv2):
    L = k.v.allocq(16); va = k.v.alloc(); so = k.s.alloc(); st = k.s.alloc()
    k(f"""v_lshlrev_b32 {va}, 4, {I['l']}
    s_lshl_b32 {so}, {I['ta']}, 4
    s_add_u32 {so}, {so}, {I['tb']}
    s_mul_i32 {so}, {so}, {V2_STR}
    s_lshl_b32 {st}, {I['w']}, 12
    s_add_u32 {so}, {so}, {st}""")
    for j in range(4): k(f"buffer_load_dwordx4 {L.q(j)}, {va}, {sv2}, {so} offen offset:{1024*j} {SC}")
    k.v.free(va); k.s.free(so, st)
    return L

def y_stage2(k, I, L, ldsY):
    Z = k.v.allocq(16, 2); T = k.v.allocq(16, 2); O = k.v.allocq(8); ad = k.v.alloc(); st = k.s.alloc()
    z = lambda j, c: Z.q(2 * j + c, 2); t = lambda j, c: T.q(2 * j + c, 2)
    k(f"s_lshl_b32 {st}, {I['w']}, 10\ns_add_u32 {st}, {st}, {ldsY}\nv_lshl_add_u32 {ad}, {I['l']}, 4, {st}")
    last = None
    for h in range(2):
        for j in range(4):
            for u in range(2):
                k(f"v_lshlrev_b32 {z(j,0)[u]}, 16, {L[4*j+2*h+u]}\nv_and_b32 {z(j,1)[u]}, 0xffff0000, {L[4*j+2*h+u]}")
        for c in range(2):
            pk(k, '+', t(0, c), z(0, c), z(2, c)); pk(k, '-', t(1, c), z(0, c), z(2, c)); pk(k, '+', t(2, c), z(1, c), z(3, c))
        pk(k, '-', t(3, 0), z(3, 1), z(1, 1)); pk(k, '-', t(3, 1), z(1, 0), z(3, 0))
        k(f"s_cmp_lg_u32 {I['w']}, 0")
        with k.skip_if("s_cbranch_scc1"):
            k("s_mov_b64 exec, 15")
            k(f"""v_pk_add_f32 {t(2,0)}, {z(1,0)}, {z(1,0)}
            v_pk_add_f32 {t(2,1)}, {z(3,0)}, {z(3,0)}
            v_pk_add_f32 {t(3,0)}, {z(1,1)}, {z(1,1)} neg_lo:[1,1] neg_hi:[1,1]
            v_pk_add_f32 {t(3,1)}, {z(3,1)}, {z(3,1)} neg_lo:[1,1] neg_hi:[1,1]""")
            k("s_mov_b64 exec, -1")
        for m in range(4):
            for c in range(2):
                pk(k, '+' if m < 2 else '-', z(m, c), t(m & 1, c), t(2 + (m & 1), c))
                dst = O[2 * m + c] if h == 0 else L[4 * m + 2 * c + 1]
                k(f"v_cvt_pk_bf16_f32 {dst}, {z(m,c)[0]}, {z(m,c)[1]}")
    for m in range(4):
        k(f"v_mov_b32 {L[4*m]}, {O[2*m]}\nv_mov_b32 {L[4*m+2]}, {O[2*m+1]}")
        last = k(f"ds_write_b128 {ad}, {L.q(m)} offset:{4096*m}")
    k.v.free(Z, T, O, ad, L); k.s.free(st)
    return last

def gen_G1(k, I):
    G = k.v.allocq(32)
    f, b, sb, a, c, s = [k.v.alloc() for _ in range(6)]
    st = k.s.alloc()
    k(f"""v_lshrrev_b32 {a}, 1, {I['g']}
    v_lshlrev_b32 {a}, 3, {a}
    v_and_b32 {c}, 1, {I['g']}
    v_lshl_add_u32 {a}, {c}, 1, {a}
    v_cvt_f32_u32 {sb}, {a}""")
    for ib in range(2):
        k(f"""s_and_b32 {st}, {I['w']}, 1
        s_lshl_b32 {st}, {st}, 6
        s_add_u32 {st}, {st}, {16*ib}
        v_add_u32 {a}, {st}, {I['n']}
        v_cvt_f32_u32 {f}, {a}
        v_mul_f32 {f}, {fl(1/128)}, {f}
        v_mul_f32 {b}, {f}, {sb}""")
        for kap in range(4):
            for d in range(4):
                sl = 16 * kap + 4 * (d >> 1) + (d & 1)
                k(f"""v_fmamk_f32 {a}, {f}, {fl(float(sl))}, {b}
                v_cos_f32 {c}, {a}
                v_sin_f32 {s}, {a}
                v_cvt_pk_bf16_f32 {G[16*ib+4*kap+d]}, {c}, -{s}""")
    k(f"""v_lshlrev_b32 {c}, 31, {I['n']}
    v_or_b32 {c}, 0x3f003f00, {c}
    v_cmp_eq_u32 vcc, 0, {I['g']}""")
    for ib in range(2): k(f"v_cndmask_b32 {G[16*ib]}, {G[16*ib]}, {c}, vcc")
    k.v.free(f, b, sb, a, c, s); k.s.free(st)
    return G

def gen_G2(k, I, G):
    G2 = k.v.allocq(32); mk = k.v.alloc(2)
    k(f"""v_and_b32 {mk[0]}, 1, {I['g']}
    v_mul_u32_u24 {mk[0]}, 0x8000, {mk[0]}
    v_lshl_or_b32 {mk[0]}, {mk[0]}, 16, {mk[0]}
    v_xor_b32 {mk[1]}, 0x80000000, {mk[0]}""")
    for j in range(32):
        if j & 1: k(f"v_alignbit_b32 {G2[j]}, {G[j]}, {G[j]}, 16\nv_xor_b32 {G2[j]}, {mk[1]}, {G2[j]}")
        else: k(f"v_xor_b32 {G2[j]}, {mk[0]}, {G[j]}")
    k.v.free(mk)
    return G2

def xkeep(k, I, ldsX):
    XK = k.v.allocq(16, 2); ad = k.v.alloc(2); t = k.v.alloc(2); st = k.s.alloc()
    k(f"""s_and_b32 {st}, {I['w']}, 1
    s_lshl_b32 {st}, {st}, 13
    s_add_u32 {st}, {st}, {ldsX}
    v_lshrrev_b32 {t[0]}, 2, {I['l']}
    v_lshlrev_b32 {t[0]}, 7, {t[0]}
    v_and_b32 {t[1]}, 3, {I['l']}
    v_lshl_or_b32 {t[0]}, {t[1]}, 3, {t[0]}
    v_add_u32 {t[0]}, {st}, {t[0]}
    v_bfe_u32 {t[1]}, {I['l']}, 3, 2
    s_and_b32 {st}, {I['w']}, 2
    v_xor_b32 {t[1]}, {st}, {t[1]}
    v_lshl_add_u32 {ad[0]}, {t[1]}, 5, {t[0]}
    v_xor_b32 {ad[1]}, 32, {ad[0]}""")
    for mm in range(2):
        for ib in range(4): k(f"ds_read_b64_tr_b16 {XK.q(4*mm+ib,2)}, {ad[mm]} offset:{2048*ib}")
    k.v.free(ad, t); k.s.free(st)
    return XK

def dsk_issue(k, I, sd):
    Dk = k.v.alloc(2); va = k.v.alloc(); so = k.s.alloc(); st = k.s.alloc()
    k(f"""v_lshlrev_b32 {va}, 1, {I['n']}
    s_lshl_b32 {so}, {I['tb']}, 5
    s_lshr_b32 {st}, {I['w']}, 1
    s_lshl_b32 {st}, {st}, 10
    s_add_u32 {so}, {so}, {st}""")
    for mm in range(2): k(f"buffer_load_short_d16_hi {Dk[mm]}, {va}, {sd}, {so} offen offset:{512*mm}")
    k.v.free(va); k.s.free(so, st)
    return Dk

def xd_init2(k, XK, Dk, acc):
    for mm in range(2):
        sel = f" op_sel:[{mm},0] op_sel_hi:[{mm},1]"
        for ib in range(4):
            a = acc.q(8 * mm + ib); x = XK.q(4 * mm + ib, 2)
            k(f"""v_lshlrev_b32 {a[0]}, 16, {x[0]}
            v_and_b32 {a[1]}, 0xffff0000, {x[0]}
            v_lshlrev_b32 {a[2]}, 16, {x[1]}
            v_and_b32 {a[3]}, 0xffff0000, {x[1]}
            v_pk_mul_f32 {a[0:2]}, {Dk}, {a[0:2]}{sel}
            v_pk_mul_f32 {a[2:4]}, {Dk}, {a[2:4]}{sel}""")
    k.v.free(XK, Dk)

def g_issue(k, I, sg):
    g = k.v.allocq(16); va = k.v.alloc(); so = k.s.alloc(); st = k.s.alloc()
    k(f"""v_lshlrev_b32 {va}, 4, {I['g']}
    s_lshl_b32 {so}, {I['ta']}, 9
    s_and_b32 {st}, {I['w']}, 1
    s_lshl_b32 {st}, {st}, 8
    s_add_u32 {so}, {so}, {st}""")
    for ib in range(4): k(f"buffer_load_dwordx4 {g.q(ib)}, {va}, {sg}, {so} offen offset:{64*ib} {SC}")
    k.v.free(va); k.s.free(so, st)
    return g

def pass1c(k, I, acc, Pm, ldsE):
    er, ei, ta, tb = [k.v.alloc(2) for _ in range(4)]
    L = Pm['L1']
    cr, ci = upair(acc, 0, 0), upair(acc, 0, 1)
    outs = [(er, ei), (ta, tb)]
    for j in range(1, 16):
        nr, ni = outs[(15 - j) & 1]
        k(f"""v_pk_fma_f32 {nr}, {L}, {cr}, {upair(acc,j,0)}{BC0}
        v_pk_fma_f32 {ni}, {L}, {ci}, {upair(acc,j,1)}{BC0}
        v_pk_fma_f32 {nr}, {L}, {ci}, {nr}{BC1}{NEG0}
        v_pk_fma_f32 {ni}, {L}, {cr}, {ni}{BC1}""")
        cr, ci = nr, ni
    cfma(k, ta, Pm['L16'], (er[0], ei[0]), (er[1], ei[1]))
    k(f"""v_mov_b32 {tb[0]}, {ta[0]}
    v_mov_b32 {tb[1]}, {ta[1]}
    v_permlane32_swap_b32 {ta[0]}, {tb[0]}
    v_permlane32_swap_b32 {ta[1]}, {tb[1]}""")
    cfma(k, tb, Pm['L32'], ta, tb)
    w = k(f"ds_write_b64 {Pm['lde']}, {tb}")
    return dict(er=er, ei=ei, lo=ta, ew=tb, w=w)

def scan_addr(k, I, Pm, ldsE):
    lde, va = k.v.alloc(), k.v.alloc(); t = k.v.alloc(); st = k.s.alloc(); s2_ = k.s.alloc()
    k(f"""s_lshl_b32 {st}, {I['w']}, 8
    s_add_u32 {st}, {st}, {ldsE + 128}
    v_lshl_add_u32 {lde}, {I['n']}, 3, {st}
    v_lshl_add_u32 {lde}, {I['g']}, 10, {lde}
    s_sub_u32 {st}, 15, {I['ca']}
    s_lshl_b32 {st}, {st}, 9
    s_and_b32 {s2_}, {I['w']}, 1
    s_lshl_b32 {s2_}, {s2_}, 8
    s_add_u32 {st}, {st}, {s2_}
    v_and_b32 {va}, 31, {I['l']}
    v_lshl_add_u32 {va}, {va}, 3, {st}""")
    Pm['lde'], Pm['eva'] = lde, va
    k.v.free(t); k.s.free(st, s2_)

def publish(k, I, E1, Pm, se):
    e0 = k.v.alloc(2); t = k.v.alloc()
    k(f"v_and_b32 {Pm['lde']}, {hex(0xfffffdff)}, {Pm['lde']}\nds_read_b64 {e0}, {Pm['lde']}")
    k(f"s_cmp_lt_u32 {I['w']}, 2")
    with k.skip_if("s_cbranch_scc1"):
        cfma(k, E1['ew'], Pm['L64'], e0, E1['ew'])
        k(f"""v_min_u32 {E1['ew'][0]}, -2, {E1['ew'][0]}
        v_min_u32 {E1['ew'][1]}, -2, {E1['ew'][1]}
        s_mov_b32 exec_hi, 0
        buffer_store_dwordx2 {E1['ew']}, {Pm['eva']}, {se}, 0 offen sc1
        s_mov_b64 exec, -1""")
    k(f"v_lshrrev_b32 {t}, 5, {I['l']}\nv_lshl_add_u32 {Pm['eva']}, {t}, 12, {Pm['eva']}\nv_add_u32 {Pm['eva']}, 512, {Pm['eva']}")
    k.v.free(t, E1['ew'], Pm.pop('lde'))
    E1['e0'] = e0

def carry_prep(k, I, E1, Pm):
    ma, mb = k.v.alloc(2), k.v.alloc(2); ca, cb = E1.pop('e0'), k.v.alloc(2); lo = E1.pop('lo'); t = k.v.alloc(2)
    er, ei = E1.pop('er'), E1.pop('ei'); cf = Pm['coef']
    def cmul(d, a, b):
        k(f"""v_pk_mul_f32 {d}, {a}, {b} op_sel:[0,0] op_sel_hi:[0,1]
        v_pk_fma_f32 {d}, {a}, {b}, {d} op_sel:[1,1,0] op_sel_hi:[1,0,1] neg_lo:[1,0,0]""")
    cmul(ma, cf, Pm['L64'])
    k(f"s_cmp_ge_u32 {I['w']}, 2")
    with k.skip_if("s_cbranch_scc1"):
        k(f"v_mov_b32 {ma[0]}, {cf[0]}\nv_mov_b32 {ma[1]}, {cf[1]}\nv_mov_b32 {ca[0]}, 0\nv_mov_b32 {ca[1]}, 0")
    cmul(t, Pm['L32'], ma); cfma2(k, lo, Pm['L32'], ca, lo)
    k(f"""s_mov_b32 exec_lo, 0
    v_mov_b32 {ma[0]}, {t[0]}
    v_mov_b32 {ma[1]}, {t[1]}
    v_mov_b32 {ca[0]}, {lo[0]}
    v_mov_b32 {ca[1]}, {lo[1]}
    s_mov_b64 exec, -1
    v_mov_b32 {er[1]}, {ei[0]}""")
    cmul(mb, Pm['L16'], ma); cfma2(k, er, Pm['L16'], ca, er)
    cmul(cb, cf, er); cmul(t, cf, ca)
    k.v.free(ca, lo, er, ei, Pm.pop('L16'), Pm.pop('L32'), Pm.pop('L64'))
    E1.update(ma=ma, mb=mb, ca=t, cb=cb)

class LookBack:
    def __init__(self, k, Pm, se):
        self.k, self.va, self.se = k, Pm.pop('eva'), se
        self.E = k.v.allocq(16, 2)
    def issue(self):
        for j in range(8): self.last = self.k(f"buffer_load_dwordx2 {self.E.q(j,2)}, {self.va}, {self.se}, 0 offen offset:{512*j} sc1")
    def _check(self, m):
        k, E = self.k, self.E
        k(f"v_max_u32 {m}, {E[0]}, {E[1]}")
        for j in range(1, 8): k(f"v_max3_u32 {m}, {m}, {E[2*j]}, {E[2*j+1]}")
        k(f"v_cmp_eq_u32 vcc, -1, {m}")
    def finish(self, maxspin=1 << 20):
        k = self.k; m = k.v.alloc()
        k.wait(self.last)
        self._check(m)
        with k.skip_if("s_cbranch_vccz"):
            cnt = k.s.alloc(); lp, out = k.lab('lb'), k.lab('lbout')
            k(f"s_mov_b32 {cnt}, 0\n{lp}:")
            self.issue(); k("s_waitcnt vmcnt(0)")
            self._check(m)
            k(f"s_cbranch_vccz {out}\ns_add_u32 {cnt}, {cnt}, 1\ns_cmp_lt_u32 {cnt}, {maxspin}\ns_cbranch_scc1 {lp}\n{out}:")
            k.s.free(cnt)
        k.v.free(m, self.va)
        return self.E

def cfma2(k, d, a, b, c):
    k(f"""v_pk_fma_f32 {d}, {a}, {b}, {c} op_sel:[0,0,0] op_sel_hi:[0,1,1]
    v_pk_fma_f32 {d}, {a}, {b}, {d} op_sel:[1,1,0] op_sel_hi:[1,0,1] neg_lo:[1,0,0]""")

def pass2c(k, I, acc, Pm, E1, E, sh, hook):
    for j in range(6, -1, -1):
        cfma2(k, E.q(j, 2), Pm['L128'], E.q(j + 1, 2), E.q(j, 2))
    S, T = E.q(0, 2), E.q(1, 2); U, V = E.q(2, 2), E.q(3, 2)
    k(f"""v_mov_b32 {T[0]}, {S[0]}
    v_mov_b32 {T[1]}, {S[1]}
    v_permlane32_swap_b32 {S[0]}, {T[0]}
    v_permlane32_swap_b32 {S[1]}, {T[1]}""")
    cfma2(k, S, Pm['L1024'], T, S)
    cfma2(k, E1['ca'], E1['ma'], S, E1['ca']); cfma2(k, E1['cb'], E1['mb'], S, E1['cb'])
    k(f"v_swap_b32 {E1['ca'][1]}, {E1['cb'][0]}")
    U, V = E1['ca'], E1['cb']
    va, so = E1['hva'], E1['hso']
    L = Pm['L1']; cr, ci = U, V
    O = k.v.allocq(12)
    pend = []; last = None
    def flush():
        nonlocal last
        q, o = pend.pop(0)
        k(f"""v_permlane16_swap_b32 {o[0]}, {o[2]}
        v_permlane16_swap_b32 {o[1]}, {o[3]}""")
        last = k(f"buffer_store_dwordx4 {o}, {va}, {sh}, {so} offen {SC}")
        if q < 7: k(f"s_add_u32 {so}, {so}, {2*32*16384}")
        hook(q)
    def sw32():
        o = pend[0][1]
        k(f"v_permlane32_swap_b32 {o[0]}, {o[1]}\nv_permlane32_swap_b32 {o[2]}, {o[3]}")
    for j in range(16):
        nr, ni = upair(acc, j, 0), upair(acc, j, 1)
        k(f"""v_pk_fma_f32 {nr}, {L}, {cr}, {nr}{BC0}
        v_pk_fma_f32 {ni}, {L}, {ci}, {ni}{BC0}""")
        if pend: sw32()
        k(f"""v_pk_fma_f32 {nr}, {L}, {ci}, {nr}{BC1}{NEG0}
        v_pk_fma_f32 {ni}, {L}, {cr}, {ni}{BC1}""")
        cr, ci = nr, ni
        if pend: flush()
        o = O.q((j // 2) % 3)
        h = 2 * (j & 1)
        k(f"v_cvt_pk_bf16_f32 {o[h]}, {nr[0]}, {nr[1]}\nv_cvt_pk_bf16_f32 {o[h+1]}, -{ni[0]}, -{ni[1]}")
        if j & 1: pend.append((j // 2, o))
    sw32(); flush()
    k.v.free(va, E, O, acc, E1['ca'], E1['cb'], E1['ma'], E1['mb'], *Pm.values()); k.s.free(so)
    return last

class B3g(B3f):
    def main(self, fill, pre_bar, post_bar, lastsub):
        k = self.k; NS = 16; acc, fr = self.acc, self.fr
        def reads(s, kk):
            f = fr.q(kk, 32); out = []
            for ib in range(8):
                off = (s % self.NST) * 32768 + ib * 2048 + kk * 256; hi = 2 if off >= 65536 else 0
                for h in range(2):
                    out.append(f"ds_read_b64_tr_b16 {f[4*ib+2*h:4*ib+2*h+2]}, {self.rh[hi+h]} offset:{off & 65535}")
            return out
        pre_bar(-1)
        k.wait(self.last[0]); k("s_barrier")
        lastrd = None
        for r in reads(0, 0): lastrd = k(r)
        for s in range(NS):
            for kk in range(2):
                f = fr.q(kk, 32); rd = []
                if kk == 0: rd = reads(s, 1)
                elif s + 1 < NS:
                    pre_bar(s)
                    k.wait(lastrd, self.last[s + 1]); k("s_barrier")
                    rd = reads(s + 1, 0)
                else: rd = lastsub(fr.q(0, 32))
                k.wait(lastrd)
                dm = [(s + self.D, 4 * kk + x) for x in range(4)]
                order = list(range(16))
                if s == NS - 1 and kk == 1: order = order[8:] + order[:8]
                for q, qq in enumerate(order):
                    ib, mm = qq >> 1, qq & 1
                    d = acc.q(8 * mm + ib)
                    zero = s == 0 and kk == 0 and ib >= 4
                    k(f"v_mfma_f32_16x16x32_bf16 {d}, {f.q(ib)}, {self.CL.frag(s,kk,mm)}, {0 if zero else d}")
                    if rd and q < 8:
                        k(rd[2 * q]); lastrd = k(rd[2 * q + 1])
                    if q >= 8 and q % 2 == 0: self.dma(*dm[(q - 8) // 2])
                    if q == 9 and kk == 1: post_bar(s)
                    fill(s, kk, q)
        k.v.free(self.vh, self.rh); k.s.free(self.so, self.mH)

def final_addr(k, I, ldsX, ldsY):
    A = dict(ad=k.v.alloc(), ay=k.v.alloc(), va=k.v.alloc(), so=k.s.alloc())
    t = k.v.alloc(); st = k.s.alloc(); ad, ay, va, so = A['ad'], A['ay'], A['va'], A['so']
    k(f"""s_lshl_b32 {st}, {I['w']}, 13
    s_add_u32 {st}, {st}, {ldsX}
    v_lshl_add_u32 {ad}, {I['l']}, 4, {st}
    v_lshrrev_b32 {ay}, 5, {I['l']}
    v_lshlrev_b32 {ay}, 9, {ay}
    v_bfe_u32 {t}, {I['l']}, 3, 2
    v_lshl_or_b32 {ay}, {t}, 6, {ay}
    v_and_b32 {t}, 3, {I['l']}
    v_lshl_or_b32 {ay}, {t}, 4, {ay}
    v_bfe_u32 {t}, {I['l']}, 2, 1
    v_lshl_or_b32 {ay}, {t}, 3, {ay}
    s_lshr_b32 {st}, {I['w']}, 1
    s_lshl_b32 {st}, {st}, 13
    s_add_u32 {st}, {st}, {ldsY}
    v_add_u32 {ay}, {st}, {ay}
    v_lshlrev_b32 {va}, 18, {I['g']}
    v_lshl_or_b32 {va}, {I['n']}, 2, {va}
    s_and_b32 {so}, {I['w']}, 1
    s_lshl_b32 {so}, {so}, 22
    s_lshl_b32 {st}, {I['ta']}, 12
    s_add_u32 {so}, {so}, {st}
    s_lshl_b32 {st}, {I['tb']}, 6
    s_add_u32 {so}, {so}, {st}
    s_lshr_b32 {st}, {I['w']}, 1
    s_lshl_b32 {st}, {st}, 11
    s_add_u32 {so}, {so}, {st}""")
    k.v.free(t); k.s.free(st)
    return A

def y_reads(A, Y):
    return [f"ds_read_b64_tr_b16 {Y[16*mm+4*kap+2*h:16*mm+4*kap+2*h+2]}, {A['ay']} offset:{4096*mm + 1024*kap + 256*h}"
            for kap in range(4) for mm in range(2) for h in range(2)]

def final2(k, A, g, acc, fr, G, so_, pf):
    Y, aa = fr.q(0, 32), fr.q(1, 32); ad, va, so = A['ad'], A['va'], A['so']; om = k.v.alloc(4)
    def mf(ib, side):
        for kap in range(4):
            for mm in range(2):
                d = aa.q(4 * mm + ib)
                k(f"v_mfma_f32_16x16x32_bf16 {d}, {G[ib>>1].q(4*(ib&1)+kap)}, {Y.q(4*mm+kap)}, {d if kap else 0}")
                if side: k(side.pop(0))
    wr = [f"ds_write_b128 {ad}, {acc.q(8*mm+4+ib)} offset:{1024*(4*mm+ib)}" for ib in range(4) for mm in range(2)]
    mf(0, wr)
    mf(1, [])
    k(f"v_xor_b32 {ad}, 0x2000, {ad}\ns_waitcnt lgkmcnt(0)\ns_barrier")
    pf("xbar")
    rd = [f"ds_read_b128 {acc.q(8*mm+4+ib)}, {ad} offset:{1024*(4*mm+ib)}" for ib in range(4) for mm in range(2)]
    mf(2, rd)
    def fin(ib):
        gg = g.q(ib)
        for h in (0, 2):
            k(f"""v_sub_f32 {om[h]}, 1.0, {gg[h]}
            v_sub_f32 {om[h+1]}, 1.0, {gg[h+1]}
            v_cvt_pk_bf16_f32 {om[h+1]}, {om[h]}, {om[h+1]}
            v_lshlrev_b32 {om[h]}, 16, {om[h+1]}
            v_and_b32 {om[h+1]}, 0xffff0000, {om[h+1]}""")
        for h in (0, 2):
            for mm in range(2):
                b = acc.q(8 * mm + ib); r = acc.q(8 * mm + 4 + ib); a = aa.q(4 * mm + ib)
                k(f"""v_pk_add_f32 {b[h:h+2]}, {b[h:h+2]}, {r[h:h+2]}
                v_pk_mul_f32 {a[h:h+2]}, {gg[h:h+2]}, {a[h:h+2]}
                v_pk_fma_f32 {b[h:h+2]}, {om[h:h+2]}, {b[h:h+2]}, {a[h:h+2]}""")
            for r in (h, h + 1):
                for mm in range(2):
                    k(f"buffer_store_dword {acc.q(8*mm+ib)[r]}, {va}, {so_}, {so} offen offset:{1024*mm} {OUTF}")
                if (ib, r) != (3, 3): k(f"s_add_u32 {so}, {so}, {(1<<16) if r < 3 else (1<<20) - 3*(1<<16)}")
    fin(0)
    mf(3, [])
    for ib in range(1, 4): fin(ib)

class B1g(B1f):
    def main(self, q, fill, pre_bar, post_bar, rate):
        k = self.k; NS = 16; acc, fr = self.acc, self.fr
        def reads(s, kk):
            f = fr.q((s * 4 + kk) & 1, 16); buf = (s % self.NST) * 16384
            out = []
            for b in range(2):
                out.append(f"ds_read_b128 {f.q(b)}, {self.ra[kk]} offset:{buf + 4096*b}")
                out.append(f"ds_read_b128 {f.q(2+b)}, {self.rb[kk]} offset:{buf + 4096*b}")
            return out
        k.wait(self.last[0]); k("s_barrier")
        lastrd = None; passed = -1
        for r in reads(0, 0): lastrd = k(r)
        for s in range(NS):
            for kk in range(4):
                f = fr.q((s * 4 + kk) & 1, 16)
                rd = []
                if kk < 3: rd = reads(s, kk + 1)
                elif s + 1 < NS:
                    pre_bar(s)
                    assert self.cnt[s + 1] == 8, (s, self.cnt)
                    k.wait(lastrd, self.last[s + 1]); k("s_barrier"); passed = s
                    rd = reads(s + 1, 0)
                for m, (rb, c) in enumerate(((0, 0), (0, 1), (1, 1), (1, 0))):
                    d = acc.q(2 * rb + c, 16)
                    first = s == 0 and kk == 0
                    k(f"v_mfma_f32_32x32x16_bf16 {d}, {f.q(rb)}, {f.q(2+c)}, {0 if first else d}")
                    if m < 2 and rd:
                        k(rd[2 * m]); lastrd = k(rd[2 * m + 1])
                    if m == 1 and kk == 3: post_bar(s)
                    for _ in range(rate(s, kk, m)):
                        if q and q[0][0] <= passed: q.pop(0)[1]()
                    fill(s, kk, m)
        k.v.free(fr, self.va, self.vb, self.ra, self.rb); k.s.free(self.soA, self.soB, self.mA, self.mB)
        return acc
    cnt = None
    def dma(self, s, i):
        if self.cnt is None: self.cnt = {}
        self.cnt[s] = self.cnt.get(s, 0) + 1
        super().dma(s, i)

def code_touch(k, I, wave, nbytes, dst):
    r = k.s.alloc(2); so = k.s.alloc(); va = k.v.alloc(2)
    per = -(-nbytes // (32 * 128)); lab = k.lab('pc')
    k(f"s_cmp_lg_u32 {I['w']}, {wave}")
    with k.skip_if("s_cbranch_scc1"):
        k(f"""s_getpc_b64 {r}
        {lab}:
        s_lshr_b32 {so}, s2, 3
        s_mul_i32 {so}, {so}, {per*128}
        v_min_u32 {va[0]}, {per-1}, {I['l']}
        v_lshl_add_u32 {va[0]}, {va[0]}, 7, {so}
        v_min_u32 {va[0]}, {k.name}_end-{lab}, {va[0]}
        v_mov_b32 {va[1]}, 0
        v_lshl_add_u64 {va}, {va}, 0, {r}
        global_load_dword {dst}, {va}, off""")
    k.s.free(r, so); k.v.free(va)

def build(opt={}):
    O = dict(sig=7, v2s=-1, early=0, p0=30, lead0=0, p1=56, lead1=60, gpos=2, cearly=2, n0=8, n1=16, pb=70, nb=2, nlb=1, pc=64, leadc=0, late=2, gseam=1, fast=0, lag=2, hmark=2, pollat=1, touch=1, map8=1, rot1=2, gloc=1, rotc=1)
    O.update(opt)
    k = Kernel(NAME + "_kernel", nv=256, na=256)
    LX = 131072; LT2 = LX + 16384; LDS = LT2 + 16384
    A0, A1, A2, A3, B0, B1_, B2, B3_ = [16384 * i for i in range(8)]
    k("s_cmp_ge_u32 s2, 256")
    k(f"s_cbranch_scc1 {k.name}_end")
    KP = k.s.alloc(32, 4)
    k(f"s_load_dwordx16 {KP[0:16]}, s[0:1], 0\ns_load_dwordx16 {KP[16:32]}, s[0:1], 64")
    P = {n: KP[o // 4:o // 4 + 2] for n, o in KA.items()}
    def rel(*names):
        for n in names: k.s.free(P.pop(n))
    cva = code_prefetch(k, 0, 40960); cd = k.v.alloc()
    I = ids(k, O['map8'])
    I['rot1'] = O['rot1']
    k(f"s_cmp_lg_u32 {I['w']}, 0")
    with k.skip_if("s_cbranch_scc1"):
        k(f"global_load_dword {cd}, {cva}, off")
    k.v.free(cva)
    pf = Prof(k, 0)
    if O.get('lat'):
        nm = O['lat']; sl = srd(k, P[nm], 1 << 21); tv = k.v.alloc(2)
        k(f"v_mov_b32 {tv[0]}, s2\nv_lshlrev_b32 {tv[0]}, 13, {tv[0]}\ns_waitcnt vmcnt(0)")
        k(f"buffer_load_dword {tv[1]}, {tv[0]}, {sl}, 0 offen\ns_waitcnt vmcnt(0)")
        pf("l1")
        for q in range(1, 9): k(f"buffer_load_dword {tv[1]}, {tv[0]}, {sl}, 0 offen offset:{256*q}\ns_waitcnt vmcnt(0)")
        pf("l2")
        k.s.free(sl); k.v.free(tv)
    sx = srd(k, P['x'], SZ['x']); rel('x', 'bx')
    ldx = xtile_issue(k, I, sx, LX)
    sf = srd(k, P['ws'], 8192 + 32768, WS_F)
    sdbg = srd(k, P['dbg'], 256); rel('dbg')
    FV, FH = k.s.alloc(), k.s.alloc()
    zero = k.v.alloc(); vpc = k.v.alloc()
    k(f"""v_mov_b32 {zero}, 0
    v_lshlrev_b32 {vpc}, 4, v0
    s_cmp_lg_u32 s2, 0""")
    with k.skip_if("s_cbranch_scc1"):
        k(f"buffer_store_dword {zero}, {vpc}, {sf}, 0 offen {SC}")
    sb = srd_sel(k, I, P['bre'], P['bim'], SZ['bre']); rel('bre', 'bim')
    g1 = B1g(k, I, sx, sb, 0, 65536)
    one = k.v.alloc(); vfc = k.v.alloc(); vfh = k.v.alloc()
    k(f"""s_and_b32 {FV}, s2, 7
    s_lshl_b32 {FV}, {FV}, 9
    s_lshr_b32 {FH}, s2, 3
    s_lshl_b32 {FH}, {FH}, 4
    s_add_u32 {FV}, {FV}, {FH}
    v_mov_b32 {vfc}, {FV}
    s_lshl_b32 {FV}, s2, 7
    v_mov_b32 {vfh}, {FV}
    s_mov_b32 {FV}, 4096
    s_mov_b32 {FH}, 8192
    v_mov_b32 {one}, 1""")
    sgw = srd(k, P['gw'], SZ['gw']); rel('gw')
    t4 = [srd(k, P[n], 2048) for n in ('lre', 'lim', 'ldt', 'dsk')]; rel('lre', 'lim', 'ldt', 'dsk')
    T = ph2_params(k, I)
    if O['gloc']:
        I['gid'] = k.s.alloc()
        k(f"s_lshl_b32 {I['gid']}, {I['ca']}, 4\ns_add_u32 {I['gid']}, {I['gid']}, {I['cb']}")
    if O['rotc']:
        I['rc'] = k.s.alloc(); sh_ = 3 if O['map8'] else 2; tt = k.s.alloc()
        k(f"""s_and_b32 {I['rc']}, {I['ta']}, {(1<<sh_)-1}
        s_lshl_b32 {I['rc']}, {I['rc']}, {4-sh_}
        s_lshr_b32 {tt}, {I['ta']}, {sh_}
        s_add_u32 {I['rc']}, {I['rc']}, {tt}""")
        k.s.free(tt)
    def vm1(cap):
        def f():
            while cap.groups:
                v = any(i.cls == 'vm' for i in cap.groups[0]); cap.emit(1)
                if v: break
        return f
    H = {}
    CA = k.a.alloc(256)
    dq = [(-1 if s < 4 else s - 4, lambda s=s, i=i: g1.dma(s, i)) for s in range(0, 16) for i in range(8)]
    take = lambda n: [dq.pop(0)[1] for _ in range(n)]
    with k.capture() as small:
        Q = ssm_param_issue(k, I, *t4[:3]); Dk = dsk_issue(k, I, t4[3])
    with k.capture() as gl: Gt = gate_issue(k, I, sx, sgw)
    cw = coop_consts(k, I, T, LT2, 2.0 ** -20)
    with k.capture() as c0:
        F = gen_F2(k, I)
        sv1 = srd(k, P['ws'], 256 * V1_STR, WS_V1)
    acts = take(8) + [vm1(small)] * 5 + ([vm1(gl)] * 6 if O['gpos'] == 0 else []) + take(O['n0'])
    c0.weave(acts, O['p0'], O['lead0'])
    pf("F")
    while acts: acts.pop(0)()
    small.flush(); k.s.free(*t4)
    k.wait(ldx, cw); k("s_barrier"); pf("xt")
    with k.capture() as c1:
        O1 = ph1f(k, I, F, LX, sv1, lambda n: None)
        k.v.free(F)
        XK = xkeep(k, I, LX)
    acts = take(O['n1'])
    c1.weave(acts, O['p1'], O['lead1'])
    while acts: acts.pop(0)()
    if O['gpos'] == 1: gl.emit(1000)
    pf("ph1")
    g1.alloc()
    if O['gpos'] == 2:
        pos = 32 - 8 - O['n0'] - O['n1']
        dq[pos:pos] = [(-1, vm1(gl))] * 6
    with k.capture() as fl1:
        ph1_store(k, *O1, sv1)
        st = k.s.alloc()
        k(f"s_lshl_b32 {st}, {I['cb']}, 14")
        se = srd(k, P['ws'], 8192, WS_E, st)
        t = k.v.alloc(2)
        k(f"""s_sub_u32 {st}, 15, {I['ca']}
        s_lshl_b32 {st}, {st}, 9
        v_lshl_add_u32 {t[0]}, v0, 2, {st}
        v_mov_b32 {t[1]}, -1
        s_cmp_ge_u32 {I['w']}, 2""")
        with k.skip_if("s_cbranch_scc1"):
            k(f"buffer_store_dword {t[1]}, {t[0]}, {se}, 0 offen {SC}")
        wave0_store(k, I, f"buffer_store_dword {zero}, {vfh}, {sf}, {FH} offen {SC}\nbuffer_store_dword {zero}, {vfc}, {sf}, {FV} offen {SC}")
        k(f"s_or_b32 {st}, {I['w']}, s2\ns_cmp_lg_u32 {st}, 0")
        with k.skip_if("s_cbranch_scc1"):
            k(f"s_mov_b64 exec, 1\nbuffer_store_dword {one}, {zero}, {sdbg}, 0 offen {SC}\ns_mov_b64 exec, -1")
        k.v.free(t); k.s.free(st)
        sc = srd_sel(k, I, P['cre'], P['cim'], SZ['cre']); rel('cre', 'cim')
        CL = CLoad(k, I, sc, CA)
        nfirst = len(k.ins)
        sg = srd(k, P['ws'], 8192, WS_G)
        lastst = gate_compute(k, I, Gt, sg, SC)
        nsec = len(k.ins)
        H['C2'] = coop_read(k, I, LT2, {n: CA[224 + 8 * j:232 + 8 * j] for j, n in enumerate(('m2f', 'm2i', 'm1i', 'si'))})
        swr = srd(k, P['wr'], SZ['wr']); swi = srd(k, P['wi'], SZ['wi']); rel('wr', 'wi')
        WD = WDir(k, I, T, swr, swi, LT2); WD.prep()
        nthird = len(k.ins)
        Pm = ssm_param_compute(k, Q)
        scan_addr(k, I, Pm, LT2)
        E1h = {}; hstore_addr(k, I, E1h)
        ntot = len(k.ins)
    print("B1 fillers", nfirst, nsec, nthird, ntot)
    for u in range(O['cearly']):
        pos = [j for j, x in enumerate(dq) if x[0] == 2 + 3 * u][0]
        dq[pos:pos] = [(-1, lambda: CL.issue(LX))]
    p0 = Poll(k, sdbg, zero, 1, 1)
    p1 = Poll(k, sf, vpc, 1, 1)
    dq.append((-1, lambda: (p1.issue(), WD.tail_issue())))
    dq += [(-1, lambda: WD.issue1(LX))] * 4
    for s, slot in ((12, A0), (12, B0), (13, A1)): dq += [(s, lambda slot=slot: WD.issue1(slot))] * 4
    for s, slot in ((13, B1_), (14, A2), (14, B2)): dq += [(s, lambda slot=slot: CL.issue1(slot))] * 4
    pf("pre")
    def pre_bar(s):
        if s == O['sig']: k.wait(lastst)
    def post_bar(s):
        if O['touch'] and s in (4, 11): code_touch(k, I, 1 + (s & 1), 16384, cd)
        if s == O['sig'] - 3: p0.issue()
        if s == O['sig']:
            fl1.emit_until_safe()
            p0.finish()
            wave0_store(k, I, f"buffer_store_dword {one}, {vfc}, {sf}, 0 offen {SC}")
    def fill1(s, kk, m):
        tgt = [(0, 34), (1, nfirst), (2, nfirst), (4, nsec), (9, nthird), (14, ntot)]
        x = s + (4 * kk + m + 1) / 16.0 - 1; px, py = -1, 0
        for qx, qy in tgt:
            if x <= qx: want = py + (qy - py) * (x - px) / (qx - px); break
            px, py = qx, qy
        else: want = ntot
        while fl1.groups and ntot - fl1.left() < want: fl1.emit(1)
        if s == 3 and kk == 0 and m == 0: gl.flush(); k.s.free(sgw)
        if s == 14 and kk == 3 and m == 3: fl1.flush()
        if kk == 1 and m == 0 and s >= 5 and s % 3 == 2 and CL.nd < O['cearly']: CL.drain()
        if kk == 3 and m == 0 and s % 4 == 3: pf(f"a{s}")
    def rate(s, kk, m):
        if s < O['fast']: return 1 if m >= 1 else 0
        return 1 if m >= 2 else 0
    acc = g1.main(dq, fill1, pre_bar, post_bar, rate)
    pf("main1")
    k.s.free(sx, sb, sdbg); k.v.free(zero)
    with k.capture() as c2:
        E1 = pass1c(k, I, acc, Pm, LT2); E1.update(E1h)
    acts = [x[1] for x in dq]; print("queue left after B1:", len(acts))
    c2.weave(acts, 64)
    while acts: acts.pop(0)()
    p1.finish()
    k.wait(E1['w']); k("s_barrier")
    publish(k, I, E1, Pm, se)
    pf("pass1")
    LT1 = A3
    C2 = H['C2']; nlate = O['late']; assert nlate >= 2
    free = [B3_]; state = dict(cur=None)
    def c1act():
        if CL.n >= 64 - 4 * nlate: return
        if CL.n & 3 == 0:
            if not free: free.append(CL.drain())
            state['cur'] = free.pop(0)
            if not free and CL.nd < CL.n // 4 - O['lag'] + 1: free.append(CL.drain())
        CL.issue1(state['cur'])
    def cfinish():
        while CL.n & 3: c1act()
    L1 = v1_issue(k, I, T, sv1, SC); k.s.free(sv1)
    with k.capture() as c3:
        WD.tail_write()
        Wf, WX = ph2_w(k, T, WD)
        scan_coef(k, acc, Pm)
        carry_prep(k, I, E1, Pm)
        ph2_wfix(k, T, WD, Wf, WX)
    acts = [c1act] * (4 * O['nb'])
    c3.weave(acts, O['pb'], 100)
    cfinish()
    free.extend([LX, A0, B0, A1][1:])
    lb = LookBack(k, Pm, se); lb.issue()
    pf("coef")
    with k.capture() as c4: t1w = ph2_s1(k, I, C2, L1, LT1)
    acts = [c1act] * (4 * O['nlb'])
    c4.weave(acts, O['pb'])
    cfinish()
    pf("s1")
    E = lb.finish(); k.s.free(se)
    pf("lb")
    sh = srd(k, P['ws'], 8 << 20, WS_H)
    lasth = pass2c(k, I, acc, Pm, E1, E, sh, lambda q: None)
    pf("pass2")
    while CL.nd < CL.n // 4: free.append(CL.drain())
    if O['touch']: code_touch(k, I, 3, 16384, cd)
    k.wait(t1w); k("s_barrier")
    pf("bar1")
    vph = k.v.alloc()
    k(f"v_lshlrev_b32 {vph}, 7, v0")
    p3 = Poll(k, sf, vph, 1, 1, FH)
    def mark(i):
        if i == O['hmark']:
            k.wait(lasth); k("s_barrier")
            wave0_store(k, I, f"buffer_store_dword {one}, {vfh}, {sf}, {FH} offen {SC}")
            pf("hflag")
    with k.capture() as c5: ph2_mid(k, I, T, C2, Wf, WX, LT1, LT2, mark)
    acts = [c1act] * (64 - 4 * nlate - CL.n); print("C instr in mid:", len(acts))
    c5.weave(acts, O['pc'], O['leadc'])
    print("C instr left after mid:", len(acts))
    while acts: acts.pop(0)()
    pf("mid")
    if O['pollat'] == 0: p3.issue()
    k("s_waitcnt lgkmcnt(0)\ns_barrier")
    V2 = ph2_s6(k, I, C2, LT2)
    if O['pollat'] == 1: p3.issue()
    sv2 = srd(k, P['ws'], 256 * V2_STR, WS_V2)
    while CL.nd < CL.n // 4: CL.drain()
    if O['v2s'] < 0: H['v2'] = v2_store(k, *V2, sv2)
    g3 = B3g(k, I, sh, CL)
    g3.alloc()
    xd_init2(k, XK, Dk, g3.acc)
    pf("s6")
    p3.finish(); k.v.free(vph)
    k("s_waitcnt lgkmcnt(0)\ns_barrier")
    pf("sync3")
    acts = [lambda s=s, i=i: g3.dma(s, i) for s in range(3) for i in range(8)]
    G1 = None
    if O['gseam']:
        with k.capture() as cg: G1 = gen_G1b(k, I)
        for _ in range(2): acts.pop(0)()
        cg.weave(acts, 48)
    while acts: acts.pop(0)()
    so = srd(k, P['out'], SZ['out'])
    with k.capture() as f3a:
        if O['v2s'] >= 0: H['v2'] = v2_store(k, *V2, sv2)
    with k.capture() as f3b:
        if G1 is None: G1 = gen_G1b(k, I)
        FA = final_addr(k, I, 0, LX)
    pf("pref")
    p4 = Poll(k, sf, vpc, 1, 1, FV)
    VS = O['v2s']
    def pre_bar3(s):
        if s == VS + 3: k.wait(H['v2'])
        if s == 10:
            f3b.flush(); p4.finish()
        if s == 14: H['c'].flush(); k.wait(H['yw'])
    def post_bar3(s):
        if s == VS + 3: wave0_store(k, I, f"buffer_store_dword {one}, {vfc}, {sf}, {FV} offen {SC}")
        if O['touch'] and s == 5: code_touch(k, I, 1, 12288, cd)
        if s == 8: p4.issue()
        if s == 10:
            L2 = v2_issue2(k, I, sv2)
            with k.capture() as H['c']:
                H['yw'] = y_stage2(k, I, L2, LX)
        if s == 14:
            H['g'] = g_issue(k, I, sg)
            with k.capture() as H['d']:
                H['G2'] = gen_G2(k, I, G1)
    def fill3(s, kk, q):
        if s == VS and f3a.left(): f3a.emit(2)
        if s == max(VS, 0) and kk == 1 and q == 15: f3a.flush()
        if s > VS and q >= 8: f3b.emit(2)
        if q == 15 and kk == 0 and 3 <= s < 3 + nlate: CL.drain()
        if q == 15 and kk == 1 and 1 <= s < 1 + nlate: CL.issue((LX, LT2)[s & 1])
        if s >= 13 and 'c' in H and q >= 6: H['c'].emit(4)
        if 'd' in H and q >= 8: H['d'].emit(4)
        if kk == 1 and q == 0 and s % 4 == 3: pf(f"b{s}")
    g3.main(fill3, pre_bar3, post_bar3, lambda Y: y_reads(FA, Y))
    assert CL.nd == 16
    H['d'].flush()
    pf("main3")
    final2(k, FA, H['g'], g3.acc, g3.fr, (G1, H['G2']), so, pf)
    pf("epi")
    pf.done()
    end(k)
    return k, LDS

def write(path, opt={}):
    k, lds = build(opt)
    open(path, "w").write(module(header(), [(k.name, 256, 256, lds)], [k]))
    print(path, k.stats)
    if os.environ.get('SEG'): k.segstats()
    if PROF: json.dump([k.profnames], open(path[:-2] + ".json", "w"))

if __name__ == "__main__":
    opt = {}
    for a in sys.argv[2:]:
        n, v = a.split("="); opt[n] = int(v) if v.lstrip('-').isdigit() else v
    write(sys.argv[1] if len(sys.argv) > 1 else "outf.s", opt)
```

```python
import re

class R:
    def __init__(self, kind, idx, n=1):
        self.kind, self.idx, self.n = kind, idx, n
    def __str__(self):
        if self.n == 1: return f"{self.kind}{self.idx}"
        return f"{self.kind}[{self.idx}:{self.idx+self.n-1}]"
    __repr__ = __str__
    def __format__(self, spec): return str(self)
    def __getitem__(self, i):
        if isinstance(i, slice):
            a = i.start or 0; b = self.n if i.stop is None else i.stop
            assert 0 <= a < b <= self.n, (self, i)
            return R(self.kind, self.idx + a, b - a)
        assert 0 <= i < self.n, (self, i)
        return R(self.kind, self.idx + i, 1)
    def q(self, i, w=4):
        return self[i * w:(i + 1) * w]
    def __len__(self): return self.n

class RL:
    def __init__(self, parts): self.parts = parts; self.w = parts[0].n; self.n = self.w * len(parts)
    def __getitem__(self, i):
        if isinstance(i, slice):
            a = i.start or 0; b = self.n if i.stop is None else i.stop
            if a // self.w == (b - 1) // self.w: return self.parts[a // self.w][a % self.w:(b - 1) % self.w + 1]
            assert a % self.w == 0 and b % self.w == 0
            return RL(self.parts[a // self.w:b // self.w])
        return self.parts[i // self.w][i % self.w]
    def q(self, i, w=4): return self[i * w:(i + 1) * w]
    def __len__(self): return self.n

class Pool:
    def __init__(self, kind, lo, hi):
        self.kind, self.lo, self.hi = kind, lo, hi
        self.used = [False] * hi
        self.high = lo
        self.touched = None
    def alloc(self, n=1, align=None):
        if align is None: align = 1 if n == 1 else (2 if n < 4 else 4)
        if self.kind != 's' and n >= 2: align = max(align, 2)
        i = (self.lo + align - 1) // align * align
        while i + n <= self.hi:
            if not any(self.used[i:i + n]):
                for j in range(i, i + n): self.used[j] = True
                if self.touched is not None: self.touched.update(range(i, i + n))
                self.high = max(self.high, i + n)
                return R(self.kind, i, n)
            i += align
        raise RuntimeError(f"out of {self.kind} registers (n={n}); used={sum(self.used)}")
    def allocq(self, n, w=4):
        assert n % w == 0
        def one():
            try: return self.alloc(w)
            except RuntimeError: return self.alloc(w, 2)
        return RL([one() for _ in range(n // w)])
    def free(self, *rs):
        for r in rs:
            if isinstance(r, RL):
                self.free(*r.parts); continue
            for j in range(r.idx, r.idx + r.n):
                if self.touched is not None: self.touched.add(j)
                assert self.used[j], f"double free {r}"
                self.used[j] = False
    def nused(self): return sum(self.used)

_REG = re.compile(r'\b([vas])(\d+)\b|\b([vas])\[(\d+):(\d+)\]|\b(vcc|exec|m0|scc)(_lo|_hi)?\b')
def regs_of(tok):
    out = set()
    for m in _REG.finditer(tok):
        if m.group(1): out.add((m.group(1), int(m.group(2))))
        elif m.group(3):
            for j in range(int(m.group(4)), int(m.group(5)) + 1): out.add((m.group(3), j))
        else: out.add((m.group(6), 0))
    return out

TRANS = ('v_exp_', 'v_log_', 'v_rcp_', 'v_rsq_', 'v_sqrt_', 'v_sin_', 'v_cos_')
def split_ops(s):
    out, depth, cur = [], 0, ''
    for ch in s:
        if ch in '[(': depth += 1
        if ch in '])': depth -= 1
        if ch == ',' and depth == 0: out.append(cur.strip()); cur = ''
        else: cur += ch
    if cur.strip(): out.append(cur.strip())
    return out

class Ins:
    __slots__ = ('text', 'mn', 'defs', 'uses', 'cls', 'label', 'target', 'passes', 'A', 'B', 'C', 'data', 'opt', 'tok', 'ws', 'uncond')
    def __init__(self, text):
        self.text = text; self.label = None; self.target = None; self.passes = 0
        self.defs = set(); self.uses = set(); self.cls = 'other'; self.A = self.B = self.C = set(); self.data = set()
        self.opt = 0; self.tok = None; self.ws = 1; self.uncond = False
        t = text.split(';')[0].strip()
        if t.endswith(':'):
            self.label = t[:-1]; self.cls = 'label'; self.mn = ''; self.ws = 0; return
        if t.startswith('.') or not t:
            self.cls = 'dir'; self.mn = ''; self.ws = 0; return
        p = t.split(None, 1)
        mn = self.mn = p[0]
        ops = split_ops(p[1]) if len(p) > 1 else []
        rs = [regs_of(o) for o in ops]
        allr = set().union(*rs) if rs else set()
        rest = set().union(*rs[1:]) if len(rs) > 1 else set()
        if mn.startswith('v_mfma'):
            self.cls = 'mfma'; self.defs = rs[0]; self.A, self.B, self.C = rs[1], rs[2], rs[3]; self.uses = rest
            self.passes = 8 if '32x32' in mn else 4
            assert 'bf16' in mn
        elif mn.startswith('v_'):
            self.cls = 'valu'
            if mn.startswith('v_cmpx'): raise RuntimeError('v_cmpx unsupported')
            if mn.startswith(('v_permlane', 'v_swap')):
                self.defs = allr; self.uses = allr
            elif mn.startswith(('v_add_co', 'v_sub_co', 'v_addc_co', 'v_subb_co', 'v_subrev_co')):
                self.defs = rs[0] | rs[1]; self.uses = set().union(*rs[2:])
            elif mn == 'v_nop': pass
            else:
                self.defs = rs[0]; self.uses = rest
                if mn.startswith(('v_fmac', 'v_pk_fmac', 'v_dot2c', 'v_writelane')) or 'dpp' in mn or ' row_' in t or 'quad_perm' in t or 'UNUSED_PRESERVE' in t:
                    self.uses = allr
        elif mn.startswith('ds_'):
            self.cls = 'ds'
            if mn.startswith(('ds_read', 'ds_bpermute', 'ds_permute', 'ds_swizzle')) or '_rtn' in mn:
                self.defs = rs[0]; self.uses = rest
            else: self.uses = allr
        elif mn.startswith(('buffer_', 'global_')):
            self.cls = 'vm'
            toks = t.split()
            if mn in ('buffer_wbl2', 'buffer_inv'): pass
            elif 'lds' in toks or '_lds_' in mn:
                self.uses = allr | {('m0', 0)}; self.cls = 'vm'; self.C = 'lds'
            elif '_load_' in mn:
                self.defs = rs[0]; self.uses = rest
                if 'd16' in mn: self.uses = allr
            elif '_store_' in mn:
                self.uses = allr
                if mn.endswith(('x3', 'x4')): self.data = rs[0] if mn.startswith('buffer') else rs[1]
            elif '_atomic_' in mn:
                self.uses = allr
                if 'sc0' in toks: self.defs = rs[0]
            else: raise RuntimeError(mn)
        elif mn.startswith(('s_load', 's_buffer_load', 's_memtime', 's_memrealtime')):
            self.cls = 'smem'; self.defs = rs[0]; self.uses = rest
        elif mn.startswith('s_'):
            self.cls = 'salu'
            if mn in ('s_branch',) or mn.startswith('s_cbranch'):
                self.cls = 'branch'; self.target = ops[0]; self.uncond = mn == 's_branch'
                if 'vcc' in mn: self.uses = {('vcc', 0)}
            elif mn == 's_endpgm': self.cls = 'branch'; self.uncond = True
            elif mn == 's_nop': self.ws = int(ops[0], 0) + 1
            elif mn in ('s_waitcnt', 's_barrier', 's_setprio', 's_sleep'): pass
            elif mn.startswith(('s_cmp', 's_bitcmp')): self.uses = allr
            elif 'saveexec' in mn: self.defs = rs[0] | {('exec', 0)}; self.uses = rest | {('exec', 0)}
            else:
                self.defs = rs[0]; self.uses = rest
                if mn.startswith(('s_addk', 's_mulk', 's_cmov', 's_bitset')): self.uses = allr
        else:
            raise RuntimeError('unknown instr ' + text)

def isv(rs): return {r for r in rs if r[0] in 'va' and len(r[0]) == 1}
def iss(rs): return {r for r in rs if r[0] in ('s', 'vcc')}

def need_ws(p, c):
    n = 0
    if p.cls == 'valu':
        dv = isv(p.defs); dsg = iss(p.defs)
        if dv:
            if c.cls == 'mfma' and dv & c.uses: n = max(n, 2)
            if c.cls == 'valu' and dv & c.uses:
                if c.mn.startswith(('v_readfirstlane', 'v_readlane')): n = max(n, 1)
                if c.mn.startswith('v_permlane') or 'dpp' in c.mn or ' row_' in c.text or 'quad_perm' in c.text: n = max(n, 2)
                if p.mn.startswith(TRANS): n = max(n, 1)
                if 'dst_sel:' in p.text and 'dst_sel:DWORD' not in p.text: n = max(n, 1)
                if p.mn.startswith('v_dot'): n = max(n, 0 if (c.mn == p.mn and not (dv & (c.uses - c.defs))) else 3)
            if p.mn.startswith('v_dot') and c.cls in ('valu', 'vm', 'ds', 'mfma') and c.mn != p.mn and dv & (c.defs | c.uses): n = max(n, 3)
            if p.mn.startswith(TRANS) and c.cls in ('vm', 'ds') and dv & c.uses: n = max(n, 1)
        if dsg:
            if c.cls == 'vm' and dsg & c.uses: n = max(n, 5)
            if c.cls == 'valu' and dsg & c.uses:
                n = max(n, 4 if c.mn.startswith(('v_readlane', 'v_writelane', 'v_div_fmas')) else 2)
            if c.cls in ('salu', 'smem', 'branch') and dsg & c.uses: n = max(n, 1)
    elif p.cls == 'mfma':
        i = 0 if p.passes == 4 else 1
        if c.cls == 'mfma':
            if p.defs & (c.A | c.B): n = max(n, (8, 12)[i])
            if p.defs & c.C and not (p.defs == c.C and p.passes == c.passes): n = max(n, (6, 10)[i])
            if p.defs & c.defs and not (p.defs == c.C and p.passes == c.passes): n = max(n, (8, 12)[i])
        elif c.cls in ('valu', 'vm', 'ds'):
            if p.defs & (c.uses | c.defs): n = max(n, (8, 12)[i])
            if c.defs & p.C: n = max(n, (3, 7)[i])
    elif p.cls == 'salu':
        if ('m0', 0) in p.defs and c.cls in ('vm', 'ds') and ('m0', 0) in c.uses: n = max(n, 1)
    elif p.cls == 'vm':
        if p.data and p.data & c.defs: n = max(n, 2)
    return n

class Kernel:
    COST2 = False
    def __init__(self, name, nv=256, na=0, sfirst=3):
        self.name = name
        self.ins = []
        self.v = Pool('v', 1, nv); self.a = Pool('a', 0, max(na, 1)); self.s = Pool('s', sfirst, 100)
        self.na = na
        self.optdepth = 0
        self.nlab = 0
    def __call__(self, text, tok=None):
        last = None
        for line in text.split('\n'):
            line = line.strip()
            if not line: continue
            i = Ins(line); i.opt = self.optdepth; i.tok = tok
            self.ins.append(i); last = i
        return last
    class _Cap:
        def __init__(s, k): s.k = k; s.groups = []
        def __enter__(s):
            s.save = s.k.ins; s.k.ins = []
            for p in (s.k.v, s.k.s, s.k.a): p.touched = set()
            return s
        def __exit__(s, *a):
            ins, s.k.ins = s.k.ins, s.save
            s.held = []
            for p in (s.k.v, s.k.s, s.k.a):
                for j in p.touched:
                    if not p.used[j]: p.used[j] = True; s.held.append((p, j))
                p.touched = None
            cur = []; execmod = False
            for j, i in enumerate(ins):
                cur.append(i)
                if ('exec', 0) in i.defs: execmod = not (i.text.replace(' ', '').startswith('s_mov_b64exec,-1'))
                nxt = ins[j + 1] if j + 1 < len(ins) else None
                hold = execmod or i.opt > s.k.optdepth or i.cls == 'wait' or (nxt is not None and (nxt.opt > s.k.optdepth or nxt.cls == 'label'))
                if nxt is not None and (nxt.mn.startswith(('s_cselect', 's_cbranch', 's_addc', 's_cmov'))): hold = True
                if ('m0', 0) in i.defs: raise RuntimeError('m0 write in captured stream: ' + i.text)
                if not hold: s.groups.append(cur); cur = []
            if cur: s.groups.append(cur)
        def emit(s, n=1):
            c = 0
            while s.groups and c < n:
                g = s.groups.pop(0); s.k.ins += g; c += len(g)
        def flush(s):
            s.emit(1 << 30)
            for p, j in s.held: p.used[j] = False
            s.held = []
        @staticmethod
        def cost(g):
            c = 0
            for i in g:
                if i.cls in ('label', 'dir', 'wait') or i.opt > 0: continue
                if Kernel.COST2 and i.cls == 'vm': c += 17
                elif Kernel.COST2 and i.cls == 'ds': c += 31 if 'write_b128' in i.mn else (12 if 'b128' in i.mn else 5)
                else: c += 8 if i.mn.startswith(TRANS) else (4 * i.passes if i.cls == 'mfma' else 4)
            return c
        def weave(s, acts, period, lead=0, stop=None):
            t = -lead + period
            while s.groups:
                if t >= period and acts:
                    acts.pop(0)(); t = 0
                g = s.groups.pop(0); s.k.ins += g; t += s.cost(g)
            s.flush()
        def run(s, clk):
            t = 0
            while s.groups and t < clk:
                g = s.groups.pop(0); s.k.ins += g; t += s.cost(g)
            return t
        def vcc_live(s):
            for g in s.groups:
                for i in g:
                    if ('vcc', 0) in i.uses: return True
                    if ('vcc', 0) in i.defs: return False
            return False
        def emit_until_safe(s):
            while s.vcc_live(): s.emit(1)
        def left(s): return sum(len(g) for g in s.groups)
    def capture(self): return Kernel._Cap(self)
    def lab(self, base='L'):
        self.nlab += 1
        return f"{self.name}_{self.tag}{base}{self.nlab}"
    def wait(self, *insts):
        i = Ins('.wait'); i.cls = 'wait'; i.tok = [x for x in insts if x is not None]; i.opt = self.optdepth
        self.ins.append(i)
    def waitall(self, vm=True, lgkm=True):
        self(('s_waitcnt' + (' vmcnt(0)' if vm else '') + (' lgkmcnt(0)' if lgkm else '')))
    class _Opt:
        def __init__(s, k, br): s.k, s.br = k, br
        def __enter__(s):
            s.l = s.k.lab('skip'); s.k(f"{s.br} {s.l}"); s.k.optdepth += 1
        def __exit__(s, *a):
            s.k.optdepth -= 1; s.k(f"{s.l}:")
    def skip_if(self, br):
        return Kernel._Opt(self, br)

    def _waits(self):
        out = []
        vm, lg = [], []
        def emit(nv, nl):
            s = 's_waitcnt'
            if nv is not None: s += f' vmcnt({min(nv,63)})'
            if nl is not None: s += f' lgkmcnt({min(nl,15)})'
            out.append(Ins(s))
        def count_after(lst, k, cur):
            return sum(1 for x in lst[k + 1:] if x.opt == 0 or (x.opt <= cur.opt and x.regid == cur.regid))
        regid = 0; prevopt = 0
        class W:
            pass
        for ins in self.ins:
            if ins.opt != prevopt: regid += 1; prevopt = ins.opt
            cur = W(); cur.opt = ins.opt; cur.regid = regid; cur.ins = ins
            kv = kl = -1
            if ins.cls == 'wait':
                for t in ins.tok:
                    for k, x in enumerate(vm):
                        if x.ins is t: kv = max(kv, k)
                    for k, x in enumerate(lg):
                        if x.ins is t: kl = max(kl, k)
            else:
                touch = ins.uses | ins.defs
                for k, x in enumerate(vm):
                    if x.ins.defs & touch: kv = k
                for k, x in enumerate(lg):
                    if x.ins.defs & touch: kl = k
            nv = nl = None
            if kv >= 0:
                nv = count_after(vm, kv, cur)
            if kl >= 0:
                nl = 0 if any(x.ins.cls == 'smem' for x in lg) else count_after(lg, kl, cur)
            if nv is not None or nl is not None:
                emit(nv, nl)
                if ins.opt == 0:
                    if nv is not None: vm = vm[kv + 1:]
                    if nl is not None: lg = [] if nl == 0 and all(x.opt == 0 for x in lg) else lg[kl + 1:]
                else:
                    if nv is not None: vm = [x for k, x in enumerate(vm) if k > kv or x.regid != regid]
                    if nl is not None: lg = [x for k, x in enumerate(lg) if k > kl or x.regid != regid]
            if ins.cls == 'wait': continue
            out.append(ins)
            if ins.mn == 's_waitcnt':
                m = re.search(r'vmcnt\((\d+)\)', ins.text)
                if m and int(m.group(1)) == 0: vm = [] if ins.opt == 0 else [x for x in vm if x.regid != regid]
                m = re.search(r'lgkmcnt\((\d+)\)', ins.text)
                if m and int(m.group(1)) == 0: lg = [] if ins.opt == 0 else [x for x in lg if x.regid != regid]
            if ins.cls == 'vm': vm.append(cur)
            if ins.cls in ('ds', 'smem'): lg.append(cur)
        self.ins = out

    def _hazards(self):
        out = []
        src = self.ins
        brs = {}
        for i in src:
            if i.target: brs.setdefault(i.target, []).append(i)
        work = list(src)
        pos = {id(x): k for k, x in enumerate(work)}
        pad = [0] * len(work)
        MAXD = 13
        for k, c in enumerate(work):
            if c.cls in ('label', 'dir'): continue
            need = 0
            stack = [(k - 1, 0)]; seen = set()
            while stack:
                j, d = stack.pop()
                while j >= 0 and d < MAXD:
                    if (j, d) in seen: break
                    seen.add((j, d))
                    p = work[j]
                    if p.cls == 'label':
                        for b in brs.get(p.label, []):
                            stack.append((pos[id(b)], d))
                        if j > 0:
                            jj = j - 1
                            while jj >= 0 and work[jj].cls == 'dir': jj -= 1
                            if jj >= 0 and work[jj].uncond: break
                        j -= 1; continue
                    n = need_ws(p, c)
                    if n > d: need = max(need, n - d)
                    d += p.ws + pad[j]
                    j -= 1
            pad[k] = need
        for k, c in enumerate(work):
            if pad[k]: out.append(Ins(f's_nop {pad[k]-1}'))
            out.append(c)
        self.ins = out

    def fork(self, tag):
        import copy
        o = Kernel(self.name, self.v.hi, self.na)
        o.v, o.a, o.s = copy.deepcopy(self.v), copy.deepcopy(self.a), copy.deepcopy(self.s)
        o.tag = tag; self.other = o
        return o
    tag = ''
    other = None
    accum = None
    def segstats(self):
        out = []; cur = {}; skip = None
        for i in self.ins:
            if i.text.startswith('; @@'):
                out.append((i.text[5:], cur)); cur = {}; continue
            if i.cls in ('label', 'dir'):
                if skip and i.label == skip: skip = None
                continue
            if skip: continue
            if i.cls == 'branch' and i.target and 'skip' in i.target: skip = i.target
            c = 4; n = i.cls
            if i.cls == 'vm': c = 16.5
            elif i.cls == 'ds': c = 31 if 'write_b128' in i.mn else (12 if 'b128' in i.mn else 8)
            elif i.cls == 'mfma': c = 8; cur['mx'] = cur.get('mx', 0) + 4 * i.passes
            elif i.mn == 's_barrier': c = 76; n = 'bar'
            elif i.mn == 's_nop': c = 4 * i.ws; n = 'nop'
            elif i.mn == 's_waitcnt': n = 'wait'
            elif i.mn.startswith(TRANS): c = 8
            cur[n] = cur.get(n, 0) + 1; cur['clk'] = cur.get('clk', 0) + c
        for n, c in out:
            print(f"  {n:7s} clk {int(c.get('clk',0)):5d} mfma-exec {c.get('mx',0):5d} | " + " ".join(f"{x}:{c[x]}" for x in ('valu','salu','vm','ds','mfma','bar','nop','wait') if x in c))
    def finish(self):
        self._waits(); self._hazards()
        nv = self.v.high
        if self.other:
            o = self.other; o._waits(); o._hazards()
            b1 = [i.text for i in self.ins if i.mn == 's_barrier']; b2 = [i.text for i in o.ins if i.mn == 's_barrier']
            assert b1 == b2, "barrier mismatch\n" + "\n".join(f"{x} | {y}" for x, y in zip(b1 + ['-'] * 9, b2 + ['-'] * 9))
            self.first = list(self.ins); self.ins = self.ins + o.ins
            nv = max(nv, o.v.high); self.a.high = max(self.a.high, o.a.high)
        acc = self.accum or max(4, (nv + 3) // 4 * 4)
        assert nv <= acc
        tot = acc + (self.a.high if self.na else 0)
        body = [f".p2align 8\n.globl {self.name}\n.type {self.name},@function\n{self.name}:"]
        for i in self.ins:
            body.append(i.text if i.cls == 'label' else '  ' + i.text)
        desc = f""".p2align 6
.amdhsa_kernel {self.name}
  .amdhsa_next_free_vgpr {tot}
  .amdhsa_next_free_sgpr 102
  .amdhsa_accum_offset {acc}
  .amdhsa_group_segment_fixed_size 0
  .amdhsa_kernarg_size 128
  .amdhsa_user_sgpr_count 2
  .amdhsa_user_sgpr_kernarg_segment_ptr 1
  .amdhsa_system_sgpr_workgroup_id_x 1
  .amdhsa_float_denorm_mode_32 3
.end_amdhsa_kernel"""
        self.stats = dict(n=len(self.ins), vgpr=nv, agpr=self.a.high if self.na else 0, sgpr=self.s.high,
                          nops=sum(1 for i in self.ins if i.mn == 's_nop'))
        return '\n'.join(body), desc

def module(header, launches, kernels, aslist=False):
    L = [header.rstrip('\n')]
    if len(launches) == 1 and not aslist:
        n, g, b, lds = launches[0]
        L.append(f"; @launch grid=({g},1,1) block=({b},1,1) lds={lds}")
    else:
        for n, g, b, lds in launches:
            L.append(f"; @launch kernel={n} grid=({g},1,1) block=({b},1,1) lds={lds}")
    L.append('.amdgcn_target "amdgcn-amd-amdhsa--gfx950"\n.text')
    descs = []
    for k in kernels:
        b, d = k.finish(); L.append(b); descs.append(d)
    L.append('.section .rodata,"a"')
    L += descs
    return '\n'.join(L) + '\n'

import struct
def f2u(x): return struct.unpack('<I', struct.pack('<f', x))[0]
def fl(x): return hex(f2u(x))
```

```python
from fused import *

def gen_F2(k, I):
    F = k.v.allocq(32); a = k.v.allocq(8); c = k.v.allocq(8); fr, ib, m1, m2, m3 = [k.v.alloc() for _ in range(5)]
    st = k.s.alloc(); odd = k.s.alloc(2)
    R_ = lambda kap, d: F[4 * kap + d]; M_ = lambda kap, d: F[16 + 4 * kap + d]
    k(f"""s_lshl_b32 {st}, {I['w']}, 4
    v_add_u32 {m3}, {st}, {I['n']}
    v_cvt_f32_u32 {fr}, {m3}
    v_mul_f32 {fr}, {fl(1/128)}, {fr}
    v_lshrrev_b32 {m1}, 1, {I['g']}
    v_lshlrev_b32 {m1}, 4, {m1}
    v_and_b32 {m2}, 1, {I['g']}
    v_lshl_add_u32 {m1}, {m2}, 2, {m1}
    v_cvt_f32_u32 {ib}, {m1}
    v_mul_f32 {ib}, {ib}, {fr}
    v_cmp_eq_u32 vcc, 0, {m3}""")
    for j in range(8): k(f"v_fmamk_f32 {a[j]}, {fr}, {fl(float(8*(j>>2) + (j&3)))}, {ib}")
    for j in range(8): k(f"v_cos_f32 {c[j]}, {a[j]}")
    for j in range(8): k(f"v_sin_f32 {a[j]}, {a[j]}")
    k(f"""v_mov_b32 {ib}, 0x80008000
    v_bfe_i32 {m2}, {I['n']}, 0, 1
    v_bfe_i32 {m1}, {I['n']}, 1, 1
    v_cmp_ne_u32 {odd}, 0, {m2}
    v_and_b32 {m2}, {ib}, {m2}
    v_and_b32 {m1}, {ib}, {m1}
    v_xor_b32 {m3}, {m1}, {m2}
    v_mov_b32 {fr}, 0xbf803f80""")
    for d in range(4):
        k(f"v_cvt_pk_bf16_f32 {R_(0,d)}, {c[2*d]}, {c[2*d+1]}\nv_cvt_pk_bf16_f32 {M_(0,d)}, -{a[2*d]}, -{a[2*d+1]}")
        k(f"v_cndmask_b32 {M_(0,d)}, {M_(0,d)}, {fr}, vcc")
    for d in range(4):
        k(f"""v_cndmask_b32 {R_(1,d)}, {R_(0,d)}, {M_(0,d)}, {odd}
        v_cndmask_b32 {M_(1,d)}, {M_(0,d)}, {R_(0,d)}, {odd}
        v_xor_b32 {R_(2,d)}, {m2}, {R_(0,d)}
        v_xor_b32 {M_(2,d)}, {m2}, {M_(0,d)}
        v_xor_b32 {R_(3,d)}, {m3}, {R_(1,d)}
        v_xor_b32 {M_(3,d)}, {m1}, {M_(1,d)}
        v_xor_b32 {R_(1,d)}, {m1}, {R_(1,d)}
        v_xor_b32 {M_(1,d)}, {m3}, {M_(1,d)}""")
    k.v.free(a, c, fr, ib, m1, m2, m3); k.s.free(st, odd)
    return F

def gen_G1b(k, I):
    G = k.v.allocq(32); a = k.v.allocq(8); c = k.v.allocq(8)
    f, b, sb, sel, mk = [k.v.alloc() for _ in range(5)]
    st = k.s.alloc()
    k(f"""v_lshrrev_b32 {f}, 1, {I['g']}
    v_lshlrev_b32 {f}, 3, {f}
    v_and_b32 {b}, 1, {I['g']}
    v_lshl_add_u32 {f}, {b}, 1, {f}
    v_cvt_f32_u32 {sb}, {f}
    v_bfe_i32 {f}, {I['n']}, 0, 1
    v_and_b32 {sel}, 0x02020202, {f}
    v_xor_b32 {sel}, 0x03020100, {sel}
    v_and_b32 {f}, 0x80000000, {f}
    v_bfe_i32 {mk}, {I['n']}, 1, 1
    v_and_b32 {mk}, 0x80008000, {mk}
    v_xor_b32 {mk}, {mk}, {f}
    s_and_b32 {st}, {I['w']}, 1
    s_lshl_b32 {st}, {st}, {I.get('khs', 6)}
    v_add_u32 {f}, {st}, {I['n']}
    v_cvt_f32_u32 {f}, {f}
    v_mul_f32 {f}, {fl(1/128)}, {f}""")
    for ib in range(2):
        if ib: k(f"v_add_f32 {f}, {fl(16/128)}, {f}")
        k(f"v_mul_f32 {b}, {f}, {sb}")
        for j in range(8): k(f"v_fmamk_f32 {a[j]}, {f}, {fl(float(16*(j>>2) + 4*((j>>1)&1) + (j&1)))}, {b}")
        for j in range(8): k(f"v_cos_f32 {c[j]}, {a[j]}")
        for j in range(8): k(f"v_sin_f32 {a[j]}, {a[j]}")
        for j in range(8): k(f"v_cvt_pk_bf16_f32 {G[16*ib+j]}, {c[j]}, -{a[j]}")
        for j in range(8): k(f"v_perm_b32 {G[16*ib+8+j]}, {G[16*ib+j]}, {G[16*ib+j]}, {sel}\nv_xor_b32 {G[16*ib+8+j]}, {mk}, {G[16*ib+8+j]}")
    k(f"""v_lshlrev_b32 {b}, 31, {I['n']}
    v_or_b32 {b}, 0x3f003f00, {b}
    v_cmp_eq_u32 vcc, 0, {I['g']}""")
    for ib in range(2): k(f"v_cndmask_b32 {G[16*ib]}, {G[16*ib]}, {b}, vcc")
    k.v.free(a, c, f, b, sb, sel, mk); k.s.free(st)
    return G

CORD = ('sf', 'm2f', 'si', 'm2i', 'm1f', 'twf', 'm1i', 'twi')
def coop_consts(k, I, T, lds, scale):
    O = k.v.allocq(16); a = k.v.alloc(4); c = k.v.alloc(4)
    nf, g4, f, b, t, u = [k.v.alloc() for _ in range(6)]
    def pair(dst, inv):
        for j in range(4): k(f"v_fmamk_f32 {a[j]}, {f}, {fl(float(j))}, {b}")
        for j in range(4): k(f"v_cos_f32 {c[j]}, {a[j]}")
        for j in range(4): k(f"v_sin_f32 {a[j]}, {a[j]}")
        for j in range(4):
            if not inv: k(f"v_cvt_pk_bf16_f32 {dst[j]}, {c[j]}, {a[j]}\nv_cvt_pk_bf16_f32 {dst[4+j]}, -{a[j]}, {c[j]}")
            else: k(f"v_cvt_pk_bf16_f32 {dst[j]}, {c[j]}, -{a[j]}\nv_cvt_pk_bf16_f32 {dst[4+j]}, {a[j]}, {c[j]}")
    def tw(dst):
        k(f"v_mul_f32 {f}, {fl(1/16)}, {f}\nv_mul_f32 {b}, {fl(1/16)}, {b}")
        for j in range(4): k(f"v_fmamk_f32 {a[j]}, {f}, {fl(float(j))}, {b}")
        for j in range(4): k(f"v_cos_f32 {dst[j]}, {a[j]}")
        for j in range(4): k(f"v_sin_f32 {dst[4+j]}, {a[j]}")
    A, B = O.q(0, 8), O.q(1, 8)
    k(f"""v_cvt_f32_u32 {nf}, {I['n']}
    v_cvt_f32_u32 {g4}, {I['g']}
    v_mul_f32 {g4}, 4.0, {g4}""")
    def wave(w):
        k(f"s_cmp_lg_u32 {I['w']}, {w}")
        return k.skip_if("s_cbranch_scc1")
    def ksp(sel, lim):
        k(f"""v_cvt_f32_u32 {u}, {T['sp']}
        v_mul_f32 {u}, {fl(-960.0)}, {u}
        v_cmp_lt_u32 vcc, {lim}, {sel}
        v_cvt_f32_u32 {t}, {T['ks']}
        v_cndmask_b32 {u}, 0, {u}, vcc
        v_add_f32 {t}, {t}, {u}""")
    with wave(0):
        ksp(I['n'], 7)
        k(f"v_fmamk_f32 {f}, {nf}, {fl(128.0)}, {t}\nv_mul_f32 {f}, {fl(1/2048)}, {f}\nv_mul_f32 {b}, {f}, {g4}")
        pair(A, False)
        k(f"""v_xor_b32 {t}, 3, {I['n']}
        v_cndmask_b32 {t}, {I['n']}, {t}, vcc
        v_cvt_f32_u32 {f}, {t}
        v_mul_f32 {f}, {fl(1/16)}, {f}
        v_mul_f32 {b}, {f}, {g4}""")
        pair(B, False)
        k(f"s_cmp_eq_u32 {T['sp']}, 0")
        with k.skip_if("s_cbranch_scc1"):
            k(f"v_cndmask_b32 {t}, 0, 16, vcc")
            for j in range(8): k(f"v_and_b32 {A[j]}, 0xffff, {A[j]}\nv_lshlrev_b32 {A[j]}, {t}, {A[j]}")
            k(f"v_cmp_eq_u32 vcc, 0, {I['n']}")
            for j in range(4): k(f"v_mov_b32 {t}, {hex(0x3f80 if j % 2 == 0 else 0xbf80)}\nv_cndmask_b32 {A[4+j]}, {A[4+j]}, {t}, vcc")
    with wave(1):
        ksp(I['g'], 1)
        k(f"""v_fmamk_f32 {t}, {g4}, {fl(128.0)}, {t}
        v_mul_f32 {b}, {t}, {nf}
        v_mul_f32 {b}, {fl(1/2048)}, {b}
        v_mul_f32 {f}, {fl(1/16)}, {nf}""")
        pair(A, True)
        k(f"""v_add_f32 {t}, {fl(3.0)}, {g4}
        v_cndmask_b32 {t}, {g4}, {t}, vcc
        v_mul_f32 {b}, {f}, {t}
        v_cndmask_b32 {f}, {f}, -{f}, vcc""")
        pair(B, True)
        k(f"s_cmp_eq_u32 {T['sp']}, 0")
        with k.skip_if("s_cbranch_scc1"):
            for j in range(4):
                k(f"""v_lshlrev_b32 {t}, 16, {A[j]}
                v_and_b32 {u}, 0xffff0000, {A[j]}
                v_add_f32 {t}, {t}, {t}
                v_add_f32 {u}, {u}, {u}
                v_cvt_pk_bf16_f32 {t}, {t}, {u}
                v_cndmask_b32 {A[j]}, {t}, 0, vcc
                v_cndmask_b32 {A[4+j]}, 0, {t}, vcc""")
            k(f"""v_lshlrev_b32 {t}, 31, {I['n']}
            v_or_b32 {t}, 0x3f803f80, {t}
            v_cmp_eq_u32 vcc, 0, {I['g']}
            v_cndmask_b32 {A[0]}, {A[0]}, {t}, vcc""")
    with wave(2):
        k(f"v_cvt_f32_u32 {u}, {T['k1']}\nv_fma_f32 {t}, {nf}, 4.0, {u}\nv_mul_f32 {f}, {fl(1/64)}, {t}\nv_mul_f32 {b}, {f}, {g4}")
        pair(A, False); tw(B)
    with wave(3):
        k(f"""v_cvt_f32_u32 {u}, {T['k1']}
        v_fma_f32 {t}, {g4}, 4.0, {u}
        v_mul_f32 {b}, {t}, {nf}
        v_mul_f32 {b}, {fl(1/64)}, {b}
        v_mul_f32 {f}, {fl(1/16)}, {nf}""")
        pair(A, True); tw(B)
        for j in range(8): k(f"v_mul_f32 {B[j]}, {fl(scale)}, {B[j]}")
    st = k.s.alloc()
    k(f"s_lshl_b32 {st}, {I['w']}, 12\ns_add_u32 {st}, {st}, {lds}\nv_lshl_add_u32 {t}, {I['l']}, 4, {st}")
    last = None
    for j in range(4): last = k(f"ds_write_b128 {t}, {O.q(j)} offset:{1024*j}")
    k.v.free(O, a, c, nf, g4, f, b, t, u); k.s.free(st)
    return last

def coop_read(k, I, lds, parked):
    C = {}; ad = k.v.alloc()
    k(f"v_lshlrev_b32 {ad}, 4, {I['l']}\nv_add_u32 {ad}, {lds}, {ad}")
    for j, n in enumerate(CORD):
        C[n] = parked[n] if n in parked else k.v.allocq(8)
        for h in range(2): k(f"ds_read_b128 {C[n].q(h)}, {ad} offset:{2048*j + 1024*h}")
    k.v.free(ad)
    return C

G_BYTES = 32768
def gate_issue2(k, I, sx, sgw):
    G = dict(x=k.v.allocq(16), w=k.v.allocq(8))
    va = k.v.alloc(); so = k.s.alloc(); s2_ = k.s.alloc()
    k(f"""v_lshlrev_b32 {va}, 4, {I['l']}
    s_lshl_b32 {so}, {I['ca']}, 18
    s_lshl_b32 {s2_}, {I['cb']}, 11
    s_add_u32 {so}, {so}, {s2_}
    s_lshl_b32 {s2_}, {I['w']}, 16
    s_add_u32 {so}, {so}, {s2_}
    s_add_u32 {s2_}, {so}, 32768""")
    for j in range(4):
        k(f"buffer_load_dwordx4 {G['x'].q(j)}, {va}, {sx}, {s2_ if j >> 1 else so} offen offset:{1024*(j&1)}")
    for j in range(2):
        k(f"buffer_load_dwordx4 {G['w'].q(j)}, {va}, {sgw}, 0 offen offset:{1024*j}")
    k.v.free(va); k.s.free(so, s2_)
    return G

def gate_compute2(k, I, G, sg):
    a = k.v.alloc(2); t = k.v.alloc()
    so = k.s.alloc(); s2_ = k.s.alloc()
    k(f"v_mov_b32 {a[0]}, 0\nv_mov_b32 {a[1]}, 0")
    for j in range(8):
        for r in range(2):
            k(f"v_dot2c_f32_bf16 {a[r]}, {G['x'][8*r+j]}, {G['w'][j]}")
    k(f"""s_lshl_b32 {so}, {I['cb']}, 11
    s_lshl_b32 {s2_}, {I['ca']}, 7
    s_add_u32 {so}, {so}, {s2_}
    v_permlane32_swap_b32 {a[0]}, {a[1]}
    v_add_f32 {a[0]}, {a[0]}, {a[1]}
    v_mov_b32 {a[1]}, {a[0]}
    s_lshl_b32 {s2_}, {I['w']}, 3
    s_add_u32 {so}, {so}, {s2_}
    v_permlane16_swap_b32 {a[0]}, {a[1]}
    v_add_f32 {a[0]}, {a[0]}, {a[1]}""")
    for sh in (8, 4, 2, 1):
        k(f"v_add_f32 {a[0]}, {a[0]}, {a[0]} row_ror:{sh} row_mask:0xf bank_mask:0xf")
    k(f"""v_cvt_pk_bf16_f32 {a[0]}, {a[0]}, {a[0]}
    v_and_b32 {a[0]}, 0xffff0000, {a[0]}
    v_mul_f32 {a[0]}, {fl(-1.4426950408889634)}, {a[0]}
    v_exp_f32 {a[0]}, {a[0]}
    v_lshrrev_b32 {t}, 3, {I['l']}
    v_add_f32 {a[0]}, 1.0, {a[0]}
    v_rcp_f32 {a[0]}, {a[0]}
    s_mov_b32 exec_lo, 1
    s_mov_b32 exec_hi, 1
    v_cvt_pk_bf16_f32 {a[0]}, {a[0]}, {a[0]}
    v_and_b32 {a[0]}, 0xffff0000, {a[0]}""")
    last = k(f"buffer_store_dword {a[0]}, {t}, {sg}, {so} offen {SC}")
    k("s_mov_b64 exec, -1")
    k.v.free(a, t, G['x'], G['w']); k.s.free(so, s2_)
    return last

def g_issue2(k, I, sg):
    g = k.v.allocq(16); va = k.v.alloc(); t = k.v.alloc(); so = k.s.alloc(); st = k.s.alloc()
    k(f"""v_lshrrev_b32 {va}, 1, {I['g']}
    v_lshlrev_b32 {va}, 7, {va}
    v_and_b32 {t}, 1, {I['g']}
    v_lshl_or_b32 {va}, {t}, 4, {va}
    s_lshl_b32 {so}, {I['ta']}, 11
    s_and_b32 {st}, {I['w']}, 1
    s_lshl_b32 {st}, {st}, {4 + I.get('khs', 6)}
    s_add_u32 {so}, {so}, {st}""")
    for ib in range(4): k(f"buffer_load_dwordx4 {g.q(ib)}, {va}, {sg}, {so} offen offset:{256*ib if 'khs' not in I else 1024*(ib>>1) + 256*(ib&1)} {SC}")
    k.v.free(va, t); k.s.free(so, st)
    return g
```

```python
import sys, json
from fused import *
from opt1 import *

class WDir:
    def __init__(self, k, I, T, swr, swi, lt2):
        self.k, self.I, self.T, self.sw, self.lt2 = k, I, T, (swr, swi), lt2
        self.rows = k.s.alloc(8, 4)
        self.va = k.v.alloc(); self.mw = k.s.alloc(); self.so = k.s.alloc()
        st = k.s.alloc(); R_ = self.rows
        k(f"""s_lshl_b32 {R_[0]}, {I['w']}, 9
        s_add_u32 {R_[0]}, {R_[0]}, {T['ks']}
        s_lshr_b32 {st}, {I['w']}, 1
        s_and_b32 {st}, {st}, {T['sp']}
        s_mul_i32 {st}, {st}, 960
        s_sub_u32 {R_[0]}, {R_[0]}, {st}""")
        for b in range(1, 4): k(f"s_add_u32 {R_[2*b]}, {R_[0]}, {128*b}")
        for b in range(4): k(f"s_sub_u32 {R_[2*b+1]}, 2048, {R_[2*b]}\ns_and_b32 {R_[2*b+1]}, {R_[2*b+1]}, 2047")
        self.spw = k.s.alloc()
        k(f"""s_cmp_eq_u32 {I['w']}, 0
        s_cselect_b32 {self.spw}, {T['sp']}, 0
        s_cmp_eq_u32 {self.spw}, 1
        s_cselect_b32 {R_[1]}, 1024, {R_[1]}""")
        for j in range(8): k(f"s_mul_i32 {R_[j]}, {R_[j]}, 1026")
        k(f"v_lshlrev_b32 {self.va}, 4, {I['l']}\ns_lshl_b32 {self.mw}, {I['w']}, 12")
        k.s.free(st)
        self.n = 0; self.slot = {}; self.ld = None
    def issue1(self, slot):
        k = self.k; b, q = self.n >> 2, self.n & 3
        if q == 0: self.slot[b] = slot
        if q & 1 == 0: k(f"s_and_b32 {self.so}, {self.rows[2*b+(q>>1)]}, -16")
        k(f"s_add_u32 m0, {self.mw}, {self.slot[b] + 1024*q}")
        self.ld = k(f"buffer_load_dwordx4 {self.va}, {self.sw[q&1]}, {self.so} offen lds")
        self.n += 1
    def tail_issue(self):
        k = self.k; self.tc = k.v.allocq(8); ta = k.v.alloc()
        k(f"v_mov_b32 {ta}, {BIG}")
        for j in range(8): k(f"v_writelane_b32 {ta}, {self.rows[j]}, {j}")
        k(f"v_and_b32 {ta}, -16, {ta}")
        k("s_mov_b64 exec, 255")
        for a in range(2): k(f"buffer_load_dwordx4 {self.tc.q(a)}, {ta}, {self.sw[a]}, 0 offen offset:1024")
        k("s_mov_b64 exec, -1")
        k.v.free(ta)
    def tail_write(self):
        k = self.k; ad = k.v.alloc(); st = k.s.alloc()
        k(f"""s_lshl_b32 {st}, {self.I['w']}, 8
        s_add_u32 {st}, {st}, {self.lt2}
        v_lshl_add_u32 {ad}, {self.I['l']}, 11, {st}
        s_mov_b64 exec, 255
        ds_write_b128 {ad}, {self.tc.q(0)}
        ds_write_b128 {ad}, {self.tc.q(1)} offset:1024
        s_mov_b64 exec, -1""")
        k.v.free(ad, self.tc); k.s.free(st, self.so, *self.sw); k.v.free(self.va)
    def prep(self):
        k, I, T = self.k, self.I, self.T
        self.a0, self.a3, self.sg = k.v.alloc(), k.v.alloc(), k.v.alloc(2); self.up = k.s.alloc(2); self.ov = k.s.alloc(2)
        self.d, self.m = k.s.alloc(), k.s.alloc(); t = k.v.alloc(); tb = k.s.alloc(); a0, a3 = self.a0, self.a3
        k(f"""s_and_b32 {self.d}, {self.rows[0]}, 15
        s_and_b32 {self.m}, {self.rows[1]}, 15
        s_add_u32 {self.m}, {self.m}, 2048
        v_lshlrev_b32 {a0}, 9, {I['g']}
        v_lshl_add_u32 {a0}, {I['n']}, 3, {a0}
        s_lshl_b32 {tb}, {T['k1']}, 1
        v_add_u32 {a0}, {tb}, {a0}
        s_add_u32 {tb}, {self.m}, 1664
        v_sub_u32 {t}, {tb}, {a0}
        v_add_u32 {a0}, {self.d}, {a0}
        v_cmp_lt_u32 {self.up}, 1, {I['g']}
        v_cndmask_b32 {a0}, {a0}, {t}, {self.up}
        v_cndmask_b32 {self.sg[0]}, 1.0, -1.0, {self.up}
        v_add_u32 {a3}, 384, {a0}
        v_and_b32 {t}, 1024, {a3}
        v_cmp_ne_u32 {self.ov}, 0, {t}
        s_lshl_b32 {tb}, {I['w']}, 8
        s_add_u32 {tb}, {tb}, {self.lt2 - 1024}
        v_add_u32 {t}, {tb}, {a3}
        v_add_u32 {a0}, {self.mw}, {a0}
        v_add_u32 {a3}, {self.mw}, {a3}
        v_cndmask_b32 {a3}, {a3}, {t}, {self.ov}
        v_sub_u32 {a3}, {a3}, {a0}
        v_cndmask_b32 {self.sg[1]}, 0, -1, {self.ov}""")
        k.v.free(t); k.s.free(tb)
    def gather(self, b, out, second=False):
        k, I, T = self.k, self.I, self.T
        a0, a3 = k.v.alloc(), k.v.alloc()
        k(f"""v_add_u32 {a0}, {self.slot[b]}, {self.a0}
        v_and_b32 {a3}, {hex((4096*b - self.slot[b]) & 0xffffffff)}, {self.sg[1]}
        v_add3_u32 {a3}, {a3}, {self.a3}, {a0}""")
        if b == 0:
            k(f"s_cmp_eq_u32 {self.spw}, 0")
            with k.skip_if("s_cbranch_scc1"):
                if second: k(f"s_mov_b32 exec_hi, 0\nv_add_u32 {a0}, 2048, {a0}\nv_add_u32 {a3}, 2048, {a3}\ns_mov_b64 exec, -1")
                else: k(f"s_mov_b32 exec_lo, 0\nv_subrev_u32 {a0}, 2048, {a0}\nv_subrev_u32 {a3}, 2048, {a3}\ns_mov_b64 exec, -1")
        last = None
        for r in range(4):
            for a in range(2):
                last = k(f"ds_read_u16_d16_hi {out[4*a+r]}, {a0 if r < 3 else a3} offset:{(128*r if r < 3 else 0) + 1024*a}")
        k.v.free(a0, a3)
        return last
    def symm(self, outs):
        k, I = self.k, self.I
        al = k.v.allocq(2 * len(outs), 2); t = k.v.alloc(2); d, m = k.s.alloc(), k.s.alloc()
        for j, (b, out, second) in enumerate(outs):
            k(f"""s_add_u32 {m}, {self.m}, {self.mw}
            s_add_u32 {m}, {m}, {self.slot[b]}
            s_lshl_b32 {d}, {I['w']}, 8
            s_add_u32 {d}, {d}, {self.d}
            s_add_u32 {d}, {d}, {self.lt2 + 4096*b}""")
            if b == 0:
                k(f"s_lshl_b32 vcc_lo, {self.spw}, 11")
                k(f"s_add_u32 {d}, {d}, vcc_lo" if second else f"s_sub_u32 {m}, {m}, vcc_lo")
            k(f"""v_mov_b32 {t[0]}, {m}
            v_mov_b32 {t[1]}, {d}
            v_cndmask_b32 {t[0]}, {t[0]}, {t[1]}, {self.up}
            ds_read_u16_d16_hi {al[2*j]}, {t[0]}
            ds_read_u16_d16_hi {al[2*j+1]}, {t[0]} offset:1024""")
        k("s_waitcnt lgkmcnt(0)")
        for lo, r in ((True, 0), (False, 3)):
            k(f"s_mov_b32 exec_lo, {1 if lo else 0}\ns_mov_b32 exec_hi, {0 if lo else 1}")
            for j, (b, out, second) in enumerate(outs):
                k(f"""v_add_f32 {out[r]}, {out[r]}, {al[2*j]}
                v_sub_f32 {out[4+r]}, {out[4+r]}, {al[2*j+1]}
                v_mul_f32 {out[r]}, 0.5, {out[r]}
                v_mul_f32 {out[4+r]}, 0.5, {out[4+r]}""")
        k("s_mov_b64 exec, -1")
        k.v.free(al, t); k.s.free(d, m)
    def sign(self, out):
        for h in (4, 6): self.k(f"v_pk_mul_f32 {out[h:h+2]}, {self.sg}, {out[h:h+2]} op_sel_hi:[0,1]")
    def done(self):
        self.k.v.free(self.a0, self.a3, self.sg); self.k.s.free(self.rows, self.mw, self.spw, self.up, self.ov, self.d, self.m)

def mf2(k, M, data_is_A, d, o):
    for c in range(2):
        A, B = (d, M.q(c)) if data_is_A else (M.q(c), d)
        k(f"v_mfma_f32_16x16x32_bf16 {o.q(c)}, {A}, {B}, 0")

def ph2_w(k, T, WD):
    Wf = k.v.allocq(32); X = k.v.allocq(8)
    k.wait(WD.ld)
    k(f"s_cmp_eq_u32 {T['sp']}, 0")
    with k.skip_if("s_cbranch_scc1"):
        WD.gather(0, X, True)
    for b in range(4): WD.lastrd = WD.gather(b, Wf.q(b, 8))
    return Wf, X

def ph2_wfix(k, T, WD, Wf, X):
    k.wait(WD.lastrd)
    k(f"s_cmp_lg_u32 {T['k1']}, 0")
    with k.skip_if("s_cbranch_scc1"):
        WD.symm([(b, Wf.q(b, 8), False) for b in range(4)] + [(0, X, True)])
    for b in range(4): WD.sign(Wf.q(b, 8))
    WD.sign(X)
    WD.done()

def ph2_s1(k, I, C, L, lds1):
    D = k.v.allocq(8); acc = k.v.allocq(16); a0, ad = k.v.alloc(), k.v.alloc(); st = k.s.alloc()
    k(f"""v_and_b32 {a0}, 7, {I['n']}
    v_lshlrev_b32 {ad}, 2, {I['g']}
    v_xor_b32 {a0}, {a0}, {ad}
    v_lshlrev_b32 {a0}, 4, {a0}
    v_lshl_or_b32 {a0}, {I['n']}, 10, {a0}
    s_lshl_b32 {st}, {I['w']}, 8
    s_add_u32 {st}, {st}, {lds1}
    v_add_u32 {a0}, {st}, {a0}""")
    def mov(b):
        for j in range(4): k(f"v_mov_b32 {D[4*(b&1)+j]}, {L[4*j+b]}")
    def out(b, o):
        z = acc.q(b & 1, 8)
        k(f"v_xor_b32 {ad}, {16*b}, {a0}")
        for r in range(4): k(f"v_cvt_pk_bf16_f32 {o[r]}, {z[r]}, {z[4+r]}")
        return k(f"ds_write_b128 {ad}, {o}")
    mov(0); mov(1)
    mf2(k, C['sf'], True, D.q(0), acc.q(0, 8)); mf2(k, C['sf'], True, D.q(1), acc.q(1, 8))
    mov(2); mov(3)
    out(0, L.q(3)); mf2(k, C['sf'], True, D.q(0), acc.q(0, 8))
    out(1, L.q(0)); mf2(k, C['sf'], True, D.q(1), acc.q(1, 8))
    out(2, L.q(1)); last = out(3, L.q(2))
    k.v.free(D, acc, a0, ad, L, C.pop('sf')); k.s.free(st)
    return last

def ph2_mid(k, I, T, C, Wf, X, lds1, lds2, mark):
    D = k.v.allocq(16); acc = k.v.allocq(32); tmp = k.v.alloc(4); ad = k.v.alloc(); a0 = k.v.alloc(); st = k.s.alloc(); Xd = k.v.allocq(4)
    z = lambda b, c: acc.q(2 * b + c)
    def stage(M, data_is_A):
        for b in range(4): mf2(k, M, data_is_A, D.q(b), acc.q(b, 8))
    k(f"""s_and_b32 {st}, {I['w']}, 1
    s_lshl_b32 {st}, {st}, 2
    v_xor_b32 {ad}, {st}, {I['l']}
    s_lshl_b32 {st}, {I['w']}, 12
    s_add_u32 {st}, {st}, {lds1}
    v_lshl_add_u32 {a0}, {ad}, 4, {st}""")
    for b in range(4): k(f"v_xor_b32 {ad}, {16*b}, {a0}\nds_read_b128 {D.q(b)}, {ad} offset:{1024*b}")
    mark(0)
    stage(C['m1f'], True)
    def mulstage(w, conj, M, data_is_A):
        for b in range(4):
            wr, wi = w(b)
            cmul_pack(k, z(b, 0), z(b, 1), wr, wi, conj, D.q(b), tmp)
            if b: mf2(k, M, data_is_A, D.q(b - 1), acc.q(b - 1, 8))
        mf2(k, M, data_is_A, D.q(3), acc.q(3, 8))
    mulstage(lambda b: (C['twf'].q(0), C['twf'].q(1)), True, C['m2f'], False)
    mark(1)
    k(f"s_cmp_eq_u32 {T['sp']}, 0")
    with k.skip_if("s_cbranch_scc1"):
        cmul_pack(k, z(0, 0), z(0, 1), X.q(0), X.q(1), False, Xd, tmp)
        mf2(k, C['m2i'], True, Xd.q(0), X)
        cmul_pack(k, X.q(0), X.q(1), C['twi'].q(0), C['twi'].q(1), False, Xd, tmp)
        mf2(k, C['m1i'], False, Xd.q(0), X)
    mulstage(lambda b: (Wf.q(2 * b), Wf.q(2 * b + 1)), False, C['m2i'], True)
    mark(2)
    mulstage(lambda b: (C['twi'].q(0), C['twi'].q(1)), False, C['m1i'], False)
    mark(3)
    k(f"""v_lshlrev_b32 {ad}, 12, {I['g']}
    v_lshl_add_u32 {ad}, {I['n']}, 4, {ad}
    s_lshl_b32 {st}, {I['w']}, 8
    s_add_u32 {st}, {st}, {lds2}
    v_add_u32 {ad}, {st}, {ad}""")
    k(f"s_sub_u32 {st}, {T['sp']}, 1\ns_or_b32 {st}, {st}, {I['w']}\ns_cmp_lg_u32 {st}, 0")
    with k.skip_if("s_cbranch_scc1"):
        for r in range(4): k(f"v_mov_b32 {z(0,1)[r]}, {X[4+r]}")
    for r in range(4):
        for b in range(4): k(f"v_cvt_pk_bf16_f32 {D[4*r+b]}, {z(b,0)[r]}, {z(b,1)[r]}")
        k(f"ds_write_b128 {ad}, {D.q(r)} offset:{1024*r}")
    k.v.free(D, acc, tmp, ad, a0, Xd, X, Wf); k.s.free(st)
    for n in ('m1f', 'twf', 'm2f', 'm2i', 'twi', 'm1i'):
        r = C.pop(n)
        if r[0].kind == 'v': k.v.free(r)

def ph2_s6(k, I, C, lds2):
    D = k.v.allocq(16); acc = k.v.allocq(32); ad = k.v.alloc(); st = k.s.alloc(); so = k.s.alloc()
    k(f"s_lshl_b32 {st}, {I['w']}, 12\ns_add_u32 {st}, {st}, {lds2}\nv_lshl_add_u32 {ad}, {I['l']}, 4, {st}")
    for b in range(4): k(f"ds_read_b128 {D.q(b)}, {ad} offset:{1024*b}")
    k(f"""s_mov_b32 {st}, {64*V2_STR}
    v_mul_lo_u32 {ad}, {I['g']}, {st}
    v_lshl_add_u32 {ad}, {I['n']}, 2, {ad}
    s_mul_i32 {so}, {I['w']}, {4*V2_STR}
    s_lshr_b32 {st}, {I['slot']}, 4
    s_lshl_b32 {st}, {st}, 12
    s_add_u32 {so}, {so}, {st}
    s_lshl_b32 {st}, {I['k1p']}, 10
    s_add_u32 {so}, {so}, {st}
    s_and_b32 {st}, {I['slot']}, 15
    s_lshl_b32 {st}, {st}, 6
    s_add_u32 {so}, {so}, {st}""")
    for b in range(4): mf2(k, C['si'], False, D.q(b), acc.q(b, 8))
    for b in range(4):
        for r in range(4): k(f"v_cvt_pk_bf16_f32 {D[4*b+r]}, {acc[8*b+r]}, {acc[8*b+4+r]}")
    r = C.pop('si')
    if r[0].kind == 'v': k.v.free(r)
    k.v.free(acc); k.s.free(st)
    return D, ad, so

def park(k, C, names, A):
    for j, n in enumerate(names):
        dst = A[8 * j:8 * j + 8]
        for i in range(8): k(f"v_accvgpr_write_b32 {dst[i]}, {C[n][i]}")
        k.v.free(C[n]); C[n] = dst

def v2_issue2(k, I, sv2):
    L = k.v.allocq(16); va = k.v.alloc(); so = k.s.alloc(); st = k.s.alloc()
    k(f"""v_lshlrev_b32 {va}, 4, {I['l']}
    s_lshl_b32 {so}, {I['ta']}, 4
    s_add_u32 {so}, {so}, {I['tb']}
    s_mul_i32 {so}, {so}, {V2_STR}
    s_lshl_b32 {st}, {I['w']}, 12
    s_add_u32 {so}, {so}, {st}""")
    for j in range(4): k(f"buffer_load_dwordx4 {L.q(j)}, {va}, {sv2}, {so} offen offset:{1024*j} {SC}")
    k.v.free(va); k.s.free(so, st)
    return L

def y_stage2(k, I, L, ldsY):
    Z = k.v.allocq(16, 2); T = k.v.allocq(16, 2); O = k.v.allocq(8); ad = k.v.alloc(); st = k.s.alloc()
    z = lambda j, c: Z.q(2 * j + c, 2); t = lambda j, c: T.q(2 * j + c, 2)
    k(f"s_lshl_b32 {st}, {I['w']}, 10\ns_add_u32 {st}, {st}, {ldsY}\nv_lshl_add_u32 {ad}, {I['l']}, 4, {st}")
    last = None
    for h in range(2):
        for j in range(4):
            for u in range(2):
                k(f"v_lshlrev_b32 {z(j,0)[u]}, 16, {L[4*j+2*h+u]}\nv_and_b32 {z(j,1)[u]}, 0xffff0000, {L[4*j+2*h+u]}")
        for c in range(2):
            pk(k, '+', t(0, c), z(0, c), z(2, c)); pk(k, '-', t(1, c), z(0, c), z(2, c)); pk(k, '+', t(2, c), z(1, c), z(3, c))
        pk(k, '-', t(3, 0), z(3, 1), z(1, 1)); pk(k, '-', t(3, 1), z(1, 0), z(3, 0))
        k(f"s_cmp_lg_u32 {I['w']}, 0")
        with k.skip_if("s_cbranch_scc1"):
            k("s_mov_b64 exec, 15")
            k(f"""v_pk_add_f32 {t(2,0)}, {z(1,0)}, {z(1,0)}
            v_pk_add_f32 {t(2,1)}, {z(3,0)}, {z(3,0)}
            v_pk_add_f32 {t(3,0)}, {z(1,1)}, {z(1,1)} neg_lo:[1,1] neg_hi:[1,1]
            v_pk_add_f32 {t(3,1)}, {z(3,1)}, {z(3,1)} neg_lo:[1,1] neg_hi:[1,1]""")
            k("s_mov_b64 exec, -1")
        for m in range(4):
            for c in range(2):
                pk(k, '+' if m < 2 else '-', z(m, c), t(m & 1, c), t(2 + (m & 1), c))
                dst = O[2 * m + c] if h == 0 else L[4 * m + 2 * c + 1]
                k(f"v_cvt_pk_bf16_f32 {dst}, {z(m,c)[0]}, {z(m,c)[1]}")
    for m in range(4):
        k(f"v_mov_b32 {L[4*m]}, {O[2*m]}\nv_mov_b32 {L[4*m+2]}, {O[2*m+1]}")
        last = k(f"ds_write_b128 {ad}, {L.q(m)} offset:{4096*m}")
    k.v.free(Z, T, O, ad, L); k.s.free(st)
    return last

def gen_G1(k, I):
    G = k.v.allocq(32)
    f, b, sb, a, c, s = [k.v.alloc() for _ in range(6)]
    st = k.s.alloc()
    k(f"""v_lshrrev_b32 {a}, 1, {I['g']}
    v_lshlrev_b32 {a}, 3, {a}
    v_and_b32 {c}, 1, {I['g']}
    v_lshl_add_u32 {a}, {c}, 1, {a}
    v_cvt_f32_u32 {sb}, {a}""")
    for ib in range(2):
        k(f"""s_and_b32 {st}, {I['w']}, 1
        s_lshl_b32 {st}, {st}, 6
        s_add_u32 {st}, {st}, {16*ib}
        v_add_u32 {a}, {st}, {I['n']}
        v_cvt_f32_u32 {f}, {a}
        v_mul_f32 {f}, {fl(1/128)}, {f}
        v_mul_f32 {b}, {f}, {sb}""")
        for kap in range(4):
            for d in range(4):
                sl = 16 * kap + 4 * (d >> 1) + (d & 1)
                k(f"""v_fmamk_f32 {a}, {f}, {fl(float(sl))}, {b}
                v_cos_f32 {c}, {a}
                v_sin_f32 {s}, {a}
                v_cvt_pk_bf16_f32 {G[16*ib+4*kap+d]}, {c}, -{s}""")
    k(f"""v_lshlrev_b32 {c}, 31, {I['n']}
    v_or_b32 {c}, 0x3f003f00, {c}
    v_cmp_eq_u32 vcc, 0, {I['g']}""")
    for ib in range(2): k(f"v_cndmask_b32 {G[16*ib]}, {G[16*ib]}, {c}, vcc")
    k.v.free(f, b, sb, a, c, s); k.s.free(st)
    return G

def gen_G2(k, I, G):
    G2 = k.v.allocq(32); mk = k.v.alloc(2)
    k(f"""v_and_b32 {mk[0]}, 1, {I['g']}
    v_mul_u32_u24 {mk[0]}, 0x8000, {mk[0]}
    v_lshl_or_b32 {mk[0]}, {mk[0]}, 16, {mk[0]}
    v_xor_b32 {mk[1]}, 0x80000000, {mk[0]}""")
    for j in range(32):
        if j & 1: k(f"v_alignbit_b32 {G2[j]}, {G[j]}, {G[j]}, 16\nv_xor_b32 {G2[j]}, {mk[1]}, {G2[j]}")
        else: k(f"v_xor_b32 {G2[j]}, {mk[0]}, {G[j]}")
    k.v.free(mk)
    return G2

def xkeep(k, I, ldsX):
    XK = k.v.allocq(16, 2); ad = k.v.alloc(2); t = k.v.alloc(2); st = k.s.alloc()
    k(f"""s_and_b32 {st}, {I['w']}, 1
    s_lshl_b32 {st}, {st}, 13
    s_add_u32 {st}, {st}, {ldsX}
    v_lshrrev_b32 {t[0]}, 2, {I['l']}
    v_lshlrev_b32 {t[0]}, 7, {t[0]}
    v_and_b32 {t[1]}, 3, {I['l']}
    v_lshl_or_b32 {t[0]}, {t[1]}, 3, {t[0]}
    v_add_u32 {t[0]}, {st}, {t[0]}
    v_bfe_u32 {t[1]}, {I['l']}, 3, 2
    s_and_b32 {st}, {I['w']}, 2
    v_xor_b32 {t[1]}, {st}, {t[1]}
    v_lshl_add_u32 {ad[0]}, {t[1]}, 5, {t[0]}
    v_xor_b32 {ad[1]}, 32, {ad[0]}""")
    for mm in range(2):
        for ib in range(4): k(f"ds_read_b64_tr_b16 {XK.q(4*mm+ib,2)}, {ad[mm]} offset:{2048*ib}")
    k.v.free(ad, t); k.s.free(st)
    return XK

def dsk_issue(k, I, sd):
    Dk = k.v.alloc(2); va = k.v.alloc(); so = k.s.alloc(); st = k.s.alloc()
    k(f"""v_lshlrev_b32 {va}, 1, {I['n']}
    s_lshl_b32 {so}, {I['tb']}, 5
    s_lshr_b32 {st}, {I['w']}, 1
    s_lshl_b32 {st}, {st}, 10
    s_add_u32 {so}, {so}, {st}""")
    for mm in range(2): k(f"buffer_load_short_d16_hi {Dk[mm]}, {va}, {sd}, {so} offen offset:{512*mm}")
    k.v.free(va); k.s.free(so, st)
    return Dk

def xd_init2(k, XK, Dk, acc):
    for mm in range(2):
        sel = f" op_sel:[{mm},0] op_sel_hi:[{mm},1]"
        for ib in range(4):
            a = acc.q(8 * mm + ib); x = XK.q(4 * mm + ib, 2)
            k(f"""v_lshlrev_b32 {a[0]}, 16, {x[0]}
            v_and_b32 {a[1]}, 0xffff0000, {x[0]}
            v_lshlrev_b32 {a[2]}, 16, {x[1]}
            v_and_b32 {a[3]}, 0xffff0000, {x[1]}
            v_pk_mul_f32 {a[0:2]}, {Dk}, {a[0:2]}{sel}
            v_pk_mul_f32 {a[2:4]}, {Dk}, {a[2:4]}{sel}""")
    k.v.free(XK, Dk)

def g_issue(k, I, sg):
    g = k.v.allocq(16); va = k.v.alloc(); so = k.s.alloc(); st = k.s.alloc()
    k(f"""v_lshlrev_b32 {va}, 4, {I['g']}
    s_lshl_b32 {so}, {I['ta']}, 9
    s_and_b32 {st}, {I['w']}, 1
    s_lshl_b32 {st}, {st}, 8
    s_add_u32 {so}, {so}, {st}""")
    for ib in range(4): k(f"buffer_load_dwordx4 {g.q(ib)}, {va}, {sg}, {so} offen offset:{64*ib} {SC}")
    k.v.free(va); k.s.free(so, st)
    return g

def pass1c(k, I, acc, Pm, ldsE):
    er, ei, ta, tb = [k.v.alloc(2) for _ in range(4)]
    L = Pm['L1']
    cr, ci = upair(acc, 0, 0), upair(acc, 0, 1)
    outs = [(er, ei), (ta, tb)]
    for j in range(1, 16):
        nr, ni = outs[(15 - j) & 1]
        k(f"""v_pk_fma_f32 {nr}, {L}, {cr}, {upair(acc,j,0)}{BC0}
        v_pk_fma_f32 {ni}, {L}, {ci}, {upair(acc,j,1)}{BC0}
        v_pk_fma_f32 {nr}, {L}, {ci}, {nr}{BC1}{NEG0}
        v_pk_fma_f32 {ni}, {L}, {cr}, {ni}{BC1}""")
        cr, ci = nr, ni
    cfma(k, ta, Pm['L16'], (er[0], ei[0]), (er[1], ei[1]))
    k(f"""v_mov_b32 {tb[0]}, {ta[0]}
    v_mov_b32 {tb[1]}, {ta[1]}
    v_permlane32_swap_b32 {ta[0]}, {tb[0]}
    v_permlane32_swap_b32 {ta[1]}, {tb[1]}""")
    cfma(k, tb, Pm['L32'], ta, tb)
    w = k(f"ds_write_b64 {Pm['lde']}, {tb}")
    return dict(er=er, ei=ei, lo=ta, ew=tb, w=w)

def scan_addr(k, I, Pm, ldsE):
    lde, va = k.v.alloc(), k.v.alloc(); t = k.v.alloc(); st = k.s.alloc(); s2_ = k.s.alloc()
    k(f"""s_lshl_b32 {st}, {I['w']}, 8
    s_add_u32 {st}, {st}, {ldsE + 128}
    v_lshl_add_u32 {lde}, {I['n']}, 3, {st}
    v_lshl_add_u32 {lde}, {I['g']}, 10, {lde}
    s_sub_u32 {st}, 15, {I['ca']}
    s_lshl_b32 {st}, {st}, 9
    s_and_b32 {s2_}, {I['w']}, 1
    s_lshl_b32 {s2_}, {s2_}, 8
    s_add_u32 {st}, {st}, {s2_}
    v_and_b32 {va}, 31, {I['l']}
    v_lshl_add_u32 {va}, {va}, 3, {st}""")
    Pm['lde'], Pm['eva'] = lde, va
    k.v.free(t); k.s.free(st, s2_)

def publish(k, I, E1, Pm, se):
    e0 = k.v.alloc(2); t = k.v.alloc()
    k(f"v_and_b32 {Pm['lde']}, {hex(0xfffffdff)}, {Pm['lde']}\nds_read_b64 {e0}, {Pm['lde']}")
    k(f"s_cmp_lt_u32 {I['w']}, 2")
    with k.skip_if("s_cbranch_scc1"):
        cfma(k, E1['ew'], Pm['L64'], e0, E1['ew'])
        k(f"""v_min_u32 {E1['ew'][0]}, -2, {E1['ew'][0]}
        v_min_u32 {E1['ew'][1]}, -2, {E1['ew'][1]}
        s_mov_b32 exec_hi, 0
        buffer_store_dwordx2 {E1['ew']}, {Pm['eva']}, {se}, 0 offen sc1
        s_mov_b64 exec, -1""")
    k(f"v_lshrrev_b32 {t}, 5, {I['l']}\nv_lshl_add_u32 {Pm['eva']}, {t}, 12, {Pm['eva']}\nv_add_u32 {Pm['eva']}, 512, {Pm['eva']}")
    k.v.free(t, E1['ew'], Pm.pop('lde'))
    E1['e0'] = e0

def carry_prep(k, I, E1, Pm):
    ma, mb = k.v.alloc(2), k.v.alloc(2); ca, cb = E1.pop('e0'), k.v.alloc(2); lo = E1.pop('lo'); t = k.v.alloc(2)
    er, ei = E1.pop('er'), E1.pop('ei'); cf = Pm['coef']
    def cmul(d, a, b):
        k(f"""v_pk_mul_f32 {d}, {a}, {b} op_sel:[0,0] op_sel_hi:[0,1]
        v_pk_fma_f32 {d}, {a}, {b}, {d} op_sel:[1,1,0] op_sel_hi:[1,0,1] neg_lo:[1,0,0]""")
    cmul(ma, cf, Pm['L64'])
    k(f"s_cmp_ge_u32 {I['w']}, 2")
    with k.skip_if("s_cbranch_scc1"):
        k(f"v_mov_b32 {ma[0]}, {cf[0]}\nv_mov_b32 {ma[1]}, {cf[1]}\nv_mov_b32 {ca[0]}, 0\nv_mov_b32 {ca[1]}, 0")
    cmul(t, Pm['L32'], ma); cfma2(k, lo, Pm['L32'], ca, lo)
    k(f"""s_mov_b32 exec_lo, 0
    v_mov_b32 {ma[0]}, {t[0]}
    v_mov_b32 {ma[1]}, {t[1]}
    v_mov_b32 {ca[0]}, {lo[0]}
    v_mov_b32 {ca[1]}, {lo[1]}
    s_mov_b64 exec, -1
    v_mov_b32 {er[1]}, {ei[0]}""")
    cmul(mb, Pm['L16'], ma); cfma2(k, er, Pm['L16'], ca, er)
    cmul(cb, cf, er); cmul(t, cf, ca)
    k.v.free(ca, lo, er, ei, Pm.pop('L16'), Pm.pop('L32'), Pm.pop('L64'))
    E1.update(ma=ma, mb=mb, ca=t, cb=cb)

class LookBack:
    def __init__(self, k, Pm, se):
        self.k, self.va, self.se = k, Pm.pop('eva'), se
        self.E = k.v.allocq(16, 2)
    def issue(self):
        for j in range(8): self.last = self.k(f"buffer_load_dwordx2 {self.E.q(j,2)}, {self.va}, {self.se}, 0 offen offset:{512*j} sc1")
    def _check(self, m):
        k, E = self.k, self.E
        k(f"v_max_u32 {m}, {E[0]}, {E[1]}")
        for j in range(1, 8): k(f"v_max3_u32 {m}, {m}, {E[2*j]}, {E[2*j+1]}")
        k(f"v_cmp_eq_u32 vcc, -1, {m}")
    def finish(self, maxspin=1 << 20):
        k = self.k; m = k.v.alloc()
        k.wait(self.last)
        self._check(m)
        with k.skip_if("s_cbranch_vccz"):
            cnt = k.s.alloc(); lp, out = k.lab('lb'), k.lab('lbout')
            k(f"s_mov_b32 {cnt}, 0\n{lp}:")
            self.issue(); k("s_waitcnt vmcnt(0)")
            self._check(m)
            k(f"s_cbranch_vccz {out}\ns_add_u32 {cnt}, {cnt}, 1\ns_cmp_lt_u32 {cnt}, {maxspin}\ns_cbranch_scc1 {lp}\n{out}:")
            k.s.free(cnt)
        k.v.free(m, self.va)
        return self.E

def cfma2(k, d, a, b, c):
    k(f"""v_pk_fma_f32 {d}, {a}, {b}, {c} op_sel:[0,0,0] op_sel_hi:[0,1,1]
    v_pk_fma_f32 {d}, {a}, {b}, {d} op_sel:[1,1,0] op_sel_hi:[1,0,1] neg_lo:[1,0,0]""")

def pass2c(k, I, acc, Pm, E1, E, sh, hook):
    for j in range(6, -1, -1):
        cfma2(k, E.q(j, 2), Pm['L128'], E.q(j + 1, 2), E.q(j, 2))
    S, T = E.q(0, 2), E.q(1, 2); U, V = E.q(2, 2), E.q(3, 2)
    k(f"""v_mov_b32 {T[0]}, {S[0]}
    v_mov_b32 {T[1]}, {S[1]}
    v_permlane32_swap_b32 {S[0]}, {T[0]}
    v_permlane32_swap_b32 {S[1]}, {T[1]}""")
    cfma2(k, S, Pm['L1024'], T, S)
    cfma2(k, E1['ca'], E1['ma'], S, E1['ca']); cfma2(k, E1['cb'], E1['mb'], S, E1['cb'])
    k(f"v_swap_b32 {E1['ca'][1]}, {E1['cb'][0]}")
    U, V = E1['ca'], E1['cb']
    va, so = E1['hva'], E1['hso']
    L = Pm['L1']; cr, ci = U, V
    O = k.v.allocq(12)
    pend = []; last = None
    def flush():
        nonlocal last
        q, o = pend.pop(0)
        k(f"""v_permlane16_swap_b32 {o[0]}, {o[2]}
        v_permlane16_swap_b32 {o[1]}, {o[3]}""")
        last = k(f"buffer_store_dwordx4 {o}, {va}, {sh}, {so} offen {SC}")
        if q < 7: k(f"s_add_u32 {so}, {so}, {2*32*16384}")
        hook(q)
    def sw32():
        o = pend[0][1]
        k(f"v_permlane32_swap_b32 {o[0]}, {o[1]}\nv_permlane32_swap_b32 {o[2]}, {o[3]}")
    for j in range(16):
        nr, ni = upair(acc, j, 0), upair(acc, j, 1)
        k(f"""v_pk_fma_f32 {nr}, {L}, {cr}, {nr}{BC0}
        v_pk_fma_f32 {ni}, {L}, {ci}, {ni}{BC0}""")
        if pend: sw32()
        k(f"""v_pk_fma_f32 {nr}, {L}, {ci}, {nr}{BC1}{NEG0}
        v_pk_fma_f32 {ni}, {L}, {cr}, {ni}{BC1}""")
        cr, ci = nr, ni
        if pend: flush()
        o = O.q((j // 2) % 3)
        h = 2 * (j & 1)
        k(f"v_cvt_pk_bf16_f32 {o[h]}, {nr[0]}, {nr[1]}\nv_cvt_pk_bf16_f32 {o[h+1]}, -{ni[0]}, -{ni[1]}")
        if j & 1: pend.append((j // 2, o))
    sw32(); flush()
    k.v.free(va, E, O, acc, E1['ca'], E1['cb'], E1['ma'], E1['mb'], *Pm.values()); k.s.free(so)
    return last

class B3g(B3f):
    def main(self, fill, pre_bar, post_bar, lastsub):
        k = self.k; NS = 16; acc, fr = self.acc, self.fr
        def reads(s, kk):
            f = fr.q(kk, 32); out = []
            for ib in range(8):
                off = (s % self.NST) * 32768 + ib * 2048 + kk * 256; hi = 2 if off >= 65536 else 0
                for h in range(2):
                    out.append(f"ds_read_b64_tr_b16 {f[4*ib+2*h:4*ib+2*h+2]}, {self.rh[hi+h]} offset:{off & 65535}")
            return out
        pre_bar(-1)
        k.wait(self.last[0]); k("s_barrier")
        lastrd = None
        for r in reads(0, 0): lastrd = k(r)
        for s in range(NS):
            for kk in range(2):
                f = fr.q(kk, 32); rd = []
                if kk == 0: rd = reads(s, 1)
                elif s + 1 < NS:
                    pre_bar(s)
                    k.wait(lastrd, self.last[s + 1]); k("s_barrier")
                    rd = reads(s + 1, 0)
                else: rd = lastsub(fr.q(0, 32))
                k.wait(lastrd)
                dm = [(s + self.D, 4 * kk + x) for x in range(4)]
                order = list(range(16))
                if s == NS - 1 and kk == 1: order = order[8:] + order[:8]
                for q, qq in enumerate(order):
                    ib, mm = qq >> 1, qq & 1
                    d = acc.q(8 * mm + ib)
                    zero = s == 0 and kk == 0 and ib >= 4
                    k(f"v_mfma_f32_16x16x32_bf16 {d}, {f.q(ib)}, {self.CL.frag(s,kk,mm)}, {0 if zero else d}")
                    if rd and q < 8:
                        k(rd[2 * q]); lastrd = k(rd[2 * q + 1])
                    if q >= 8 and q % 2 == 0: self.dma(*dm[(q - 8) // 2])
                    if q == 9 and kk == 1: post_bar(s)
                    fill(s, kk, q)
        k.v.free(self.vh, self.rh); k.s.free(self.so, self.mH)

def final_addr(k, I, ldsX, ldsY):
    A = dict(ad=k.v.alloc(), ay=k.v.alloc(), va=k.v.alloc(), so=k.s.alloc())
    t = k.v.alloc(); st = k.s.alloc(); ad, ay, va, so = A['ad'], A['ay'], A['va'], A['so']
    k(f"""s_lshl_b32 {st}, {I['w']}, {7 + I.get('khs', 6)}
    s_add_u32 {st}, {st}, {ldsX}
    v_lshl_add_u32 {ad}, {I['l']}, 4, {st}
    v_lshrrev_b32 {ay}, 5, {I['l']}
    v_lshlrev_b32 {ay}, 9, {ay}
    v_bfe_u32 {t}, {I['l']}, 3, 2
    v_lshl_or_b32 {ay}, {t}, 6, {ay}
    v_and_b32 {t}, 3, {I['l']}
    v_lshl_or_b32 {ay}, {t}, 4, {ay}
    v_bfe_u32 {t}, {I['l']}, 2, 1
    v_lshl_or_b32 {ay}, {t}, 3, {ay}
    s_lshr_b32 {st}, {I['w']}, 1
    s_lshl_b32 {st}, {st}, 13
    s_add_u32 {st}, {st}, {ldsY}
    v_add_u32 {ay}, {st}, {ay}
    v_lshlrev_b32 {va}, 18, {I['g']}
    v_lshl_or_b32 {va}, {I['n']}, 2, {va}
    s_and_b32 {so}, {I['w']}, 1
    s_lshl_b32 {so}, {so}, {16 + I.get('khs', 6)}
    s_lshl_b32 {st}, {I['ta']}, 12
    s_add_u32 {so}, {so}, {st}
    s_lshl_b32 {st}, {I['tb']}, 6
    s_add_u32 {so}, {so}, {st}
    s_lshr_b32 {st}, {I['w']}, 1
    s_lshl_b32 {st}, {st}, 11
    s_add_u32 {so}, {so}, {st}""")
    k.v.free(t); k.s.free(st)
    return A

def y_reads(A, Y):
    return [f"ds_read_b64_tr_b16 {Y[16*mm+4*kap+2*h:16*mm+4*kap+2*h+2]}, {A['ay']} offset:{4096*mm + 1024*kap + 256*h}"
            for kap in range(4) for mm in range(2) for h in range(2)]

def final2(k, A, g, acc, fr, G, so_, pf):
    Y, aa = fr.q(0, 32), fr.q(1, 32); ad, va, so = A['ad'], A['va'], A['so']; om = k.v.alloc(4)
    def mf(ib, side):
        for kap in range(4):
            for mm in range(2):
                d = aa.q(4 * mm + ib)
                k(f"v_mfma_f32_16x16x32_bf16 {d}, {G[ib>>1].q(4*(ib&1)+kap)}, {Y.q(4*mm+kap)}, {d if kap else 0}")
                if side: k(side.pop(0))
    wr = [f"ds_write_b128 {ad}, {acc.q(8*mm+4+ib)} offset:{1024*(4*mm+ib)}" for ib in range(4) for mm in range(2)]
    mf(0, wr)
    mf(1, [])
    k(f"v_xor_b32 {ad}, 0x2000, {ad}\ns_waitcnt lgkmcnt(0)\ns_barrier")
    pf("xbar")
    rd = [f"ds_read_b128 {acc.q(8*mm+4+ib)}, {ad} offset:{1024*(4*mm+ib)}" for ib in range(4) for mm in range(2)]
    mf(2, rd)
    def fin(ib):
        gg = g.q(ib)
        for h in (0, 2):
            k(f"""v_sub_f32 {om[h]}, 1.0, {gg[h]}
            v_sub_f32 {om[h+1]}, 1.0, {gg[h+1]}
            v_cvt_pk_bf16_f32 {om[h+1]}, {om[h]}, {om[h+1]}
            v_lshlrev_b32 {om[h]}, 16, {om[h+1]}
            v_and_b32 {om[h+1]}, 0xffff0000, {om[h+1]}""")
        for h in (0, 2):
            for mm in range(2):
                b = acc.q(8 * mm + ib); r = acc.q(8 * mm + 4 + ib); a = aa.q(4 * mm + ib)
                k(f"""v_pk_add_f32 {b[h:h+2]}, {b[h:h+2]}, {r[h:h+2]}
                v_pk_mul_f32 {a[h:h+2]}, {gg[h:h+2]}, {a[h:h+2]}
                v_pk_fma_f32 {b[h:h+2]}, {om[h:h+2]}, {b[h:h+2]}, {a[h:h+2]}""")
            for r in (h, h + 1):
                for mm in range(2):
                    k(f"buffer_store_dword {acc.q(8*mm+ib)[r]}, {va}, {so_}, {so} offen offset:{1024*mm} {OUTF}")
                if (ib, r) != (3, 3): k(f"s_add_u32 {so}, {so}, {(1<<16) if r < 3 else (1<<20) - 3*(1<<16)}")
    fin(0)
    mf(3, [])
    for ib in range(1, 4): fin(ib)

class B1g(B1f):
    def main(self, q, fill, pre_bar, post_bar, rate):
        k = self.k; NS = 16; acc, fr = self.acc, self.fr
        def reads(s, kk):
            f = fr.q((s * 4 + kk) & 1, 16); buf = (s % self.NST) * 16384
            out = []
            for b in range(2):
                out.append(f"ds_read_b128 {f.q(b)}, {self.ra[kk]} offset:{buf + 4096*b}")
                out.append(f"ds_read_b128 {f.q(2+b)}, {self.rb[kk]} offset:{buf + 4096*b}")
            return out
        k.wait(self.last[0]); k("s_barrier")
        lastrd = None; passed = -1
        for r in reads(0, 0): lastrd = k(r)
        for s in range(NS):
            for kk in range(4):
                f = fr.q((s * 4 + kk) & 1, 16)
                rd = []
                if kk < 3: rd = reads(s, kk + 1)
                elif s + 1 < NS:
                    pre_bar(s)
                    assert self.cnt[s + 1] == 8, (s, self.cnt)
                    k.wait(lastrd, self.last[s + 1]); k("s_barrier"); passed = s
                    rd = reads(s + 1, 0)
                for m, (rb, c) in enumerate(((0, 0), (0, 1), (1, 1), (1, 0))):
                    d = acc.q(2 * rb + c, 16)
                    first = s == 0 and kk == 0
                    k(f"v_mfma_f32_32x32x16_bf16 {d}, {f.q(rb)}, {f.q(2+c)}, {0 if first else d}")
                    if m < 2 and rd:
                        k(rd[2 * m]); lastrd = k(rd[2 * m + 1])
                    if m == 1 and kk == 3: post_bar(s)
                    for _ in range(rate(s, kk, m)):
                        if q and q[0][0] <= passed: q.pop(0)[1]()
                    fill(s, kk, m)
        k.v.free(fr, self.va, self.vb, self.ra, self.rb); k.s.free(self.soA, self.soB, self.mA, self.mB)
        return acc
    cnt = None
    def dma(self, s, i):
        if self.cnt is None: self.cnt = {}
        self.cnt[s] = self.cnt.get(s, 0) + 1
        super().dma(s, i)

class B3h:
    D = 3
    catch = False
    def __init__(self, k, I, sh, CL):
        self.k, self.I, self.sh, self.CL = k, I, sh, CL
        self.vh = k.v.alloc(2); self.rh = k.v.alloc(4)
        self.so, self.mH = k.s.alloc(), k.s.alloc()
        t = k.v.alloc(2); st = k.s.alloc(); l = I['l']
        k(f"""s_and_b32 {st}, {I['w']}, 1
        s_mul_i32 {self.mH}, {st}, {16384 + 4096}
        s_lshl_b32 {self.so}, {I['ta']}, 19
        s_add_u32 {self.mH}, {self.mH}, {self.so}
        v_lshl_add_u32 {self.vh[0]}, {l}, 4, {self.mH}
        v_xor_b32 {self.vh[1]}, 4096, {self.vh[0]}
        s_lshr_b32 {self.so}, {I['w']}, 1
        s_add_u32 {self.so}, {self.so}, {I['rc']}
        s_and_b32 {self.so}, {self.so}, 15
        s_lshl_b32 {self.so}, {self.so}, 15
        s_lshl_b32 {self.mH}, {I['w']}, 13
        v_and_b32 {t[0]}, 3, {l}
        v_and_b32 {t[1]}, 2, {I['g']}
        v_xor_b32 {t[1]}, {t[1]}, {t[0]}
        v_lshlrev_b32 {t[0]}, 9, {t[0]}
        v_lshl_or_b32 {t[0]}, {t[1]}, 6, {t[0]}
        v_bfe_u32 {t[1]}, {l}, 2, 2
        v_lshl_or_b32 {t[0]}, {t[1]}, 4, {t[0]}
        v_and_b32 {t[1]}, 1, {I['g']}
        v_lshl_or_b32 {t[0]}, {t[1]}, 3, {t[0]}
        s_lshl_b32 {st}, {st}, 13
        v_add_u32 {self.rh[0]}, {st}, {t[0]}
        v_xor_b32 {self.rh[1]}, 64, {self.rh[0]}
        v_add_u32 {self.rh[2]}, 0x10000, {self.rh[0]}
        v_add_u32 {self.rh[3]}, 0x10000, {self.rh[1]}""")
        k.v.free(t); k.s.free(st)
        self.last = {}; self.cnt = {}
    def dma(self, s, i):
        k = self.k
        if i & 3 == 0: k(f"s_add_u32 m0, {self.mH}, {(s % 4)*32768 + (i>>2)*4096}")
        self.last[s] = k(f"buffer_load_dwordx4 {self.vh[i>>2]}, {self.sh}, {self.so} offen offset:{1024*(i&3)} {SC} lds")
        self.cnt[s] = self.cnt.get(s, 0) + 1
        if i == 7: k(f"s_add_u32 {self.so}, {self.so}, {65536 + (8192 if s == 7 else 0)}\ns_and_b32 {self.so}, {self.so}, 0x7ffff")
    def alloc(self):
        self.acc = [self.k.v.allocq(32), self.k.v.allocq(32)]; self.fr = self.k.v.allocq(64)
    def main(self, dq, fill, pre_bar, post_bar):
        k = self.k; NS = 16; fr = self.fr
        def reads(s, u):
            f = fr.q(u, 32); out = []
            for kk in range(2):
                for ib in range(4):
                    off = (s % 4) * 32768 + u * 16384 + ib * 2048 + kk * 256; hi = 2 if off >= 65536 else 0
                    for h in range(2):
                        o = 16 * kk + 4 * ib + 2 * h
                        out.append(f"ds_read_b64_tr_b16 {f[o:o+2]}, {self.rh[hi+h]} offset:{off & 65535}")
            return out
        k.wait(self.last[0]); k("s_barrier")
        lastrd = None
        for r in reads(0, 0): lastrd = k(r)
        for s in range(NS):
            acc = self.acc[s >> 3]
            for u in range(2):
                f = fr.q(u, 32); rd = []
                if u == 0: rd = reads(s, 1)
                elif s + 1 < NS:
                    pre_bar(s)
                    assert self.cnt[s + 1] == 8
                    k.wait(lastrd, self.last[s + 1]); k("s_barrier")
                    rd = reads(s + 1, 0)
                k.wait(lastrd)
                order = [(kk, ib, mm ^ (ib & 1)) for kk in range(2) for ib in range(4) for mm in range(2)]
                if s & 7 == 7 and u == 1: order = [x for x in order if x[1] >= 2] + [x for x in order if x[1] < 2]
                for q, (kk, ib, mm) in enumerate(order):
                    d = acc.q(4 * mm + ib)
                    zero = s & 7 == 0 and u == 0 and kk == 0 and ib >= 2
                    k(f"v_mfma_f32_16x16x32_bf16 {d}, {f.q(4*kk+ib)}, {self.CL.frag(2*(s&7)+u,kk,mm)}, {0 if zero else d}")
                    if rd and q < 8:
                        k(rd[2 * q]); lastrd = k(rd[2 * q + 1])
                    if q >= 8 and dq and dq[0][0] <= s + self.D and (q % 2 == 0 or (s == 0 and self.catch)): self.dma(*dq.pop(0))
                    if q == 9 and u == 1: post_bar(s)
                    fill(s, u, q)
        assert not dq
        k.v.free(self.vh, self.rh); k.s.free(self.so, self.mH)

def xkeep3(k, I, ldsX):
    XK = k.v.allocq(16, 2); ad = k.v.alloc(2); t = k.v.alloc(2); st = k.s.alloc()
    k(f"""s_and_b32 {st}, {I['w']}, 1
    s_lshl_b32 {st}, {st}, 12
    s_add_u32 {st}, {st}, {ldsX}
    v_lshrrev_b32 {t[0]}, 2, {I['l']}
    v_lshlrev_b32 {t[0]}, 7, {t[0]}
    v_and_b32 {t[1]}, 3, {I['l']}
    v_lshl_or_b32 {t[0]}, {t[1]}, 3, {t[0]}
    v_add_u32 {t[0]}, {st}, {t[0]}
    v_bfe_u32 {t[1]}, {I['l']}, 3, 2
    s_and_b32 {st}, {I['w']}, 2
    v_xor_b32 {t[1]}, {st}, {t[1]}
    v_lshl_add_u32 {ad[0]}, {t[1]}, 5, {t[0]}
    v_xor_b32 {ad[1]}, 32, {ad[0]}""")
    for h in range(2):
        for mm in range(2):
            for ib in range(2): k(f"ds_read_b64_tr_b16 {XK.q(4*h+2*mm+ib,2)}, {ad[mm]} offset:{8192*h + 2048*ib}")
    k.v.free(ad, t); k.s.free(st)
    return XK

def xd_init3(k, XK, Dk, acc):
    for h in range(2):
        for mm in range(2):
            sel = f" op_sel:[{mm},0] op_sel_hi:[{mm},1]"
            for ib in range(2):
                a = acc[h].q(4 * mm + ib); x = XK.q(4 * h + 2 * mm + ib, 2)
                k(f"""v_lshlrev_b32 {a[0]}, 16, {x[0]}
                v_and_b32 {a[1]}, 0xffff0000, {x[0]}
                v_lshlrev_b32 {a[2]}, 16, {x[1]}
                v_and_b32 {a[3]}, 0xffff0000, {x[1]}
                v_pk_mul_f32 {a[0:2]}, {Dk}, {a[0:2]}{sel}
                v_pk_mul_f32 {a[2:4]}, {Dk}, {a[2:4]}{sel}""")
    k.v.free(XK, Dk)

def fin3(k, A, g, acc, aa, so_, h, flags, added):
    om = k.v.alloc(4); va, so = A['va'], A['so']
    for ib in range(2):
        gg = g.q(2 * h + ib)
        for x in (0, 2):
            k(f"""v_sub_f32 {om[x]}, 1.0, {gg[x]}
            v_sub_f32 {om[x+1]}, 1.0, {gg[x+1]}
            v_cvt_pk_bf16_f32 {om[x+1]}, {om[x]}, {om[x+1]}
            v_lshlrev_b32 {om[x]}, 16, {om[x+1]}
            v_and_b32 {om[x+1]}, 0xffff0000, {om[x+1]}""")
        for x in (0, 2):
            for mm in range(2):
                b = acc.q(4 * mm + ib); a = aa(mm, ib)
                k(f"v_pk_mul_f32 {a[x:x+2]}, {gg[x:x+2]}, {a[x:x+2]}")
                if not added: k(f"v_pk_add_f32 {b[x:x+2]}, {b[x:x+2]}, {acc.q(4*mm+2+ib)[x:x+2]}")
                k(f"v_pk_fma_f32 {b[x:x+2]}, {om[x:x+2]}, {b[x:x+2]}, {a[x:x+2]}")
            for r in (x, x + 1):
                for mm in range(2):
                    k(f"buffer_store_dword {acc.q(4*mm+ib)[r]}, {va}, {so_}, {so} offen offset:{1024*mm} {flags}")
                step = (1 << 16) if r < 3 else ((1 << 20) if ib == 0 else (3 << 20)) - 3 * (1 << 16)
                if (h, ib, r) != (1, 1, 3): k(f"s_add_u32 {so}, {so}, {step}")
    k.v.free(om)

def ph3_list(G, Y, aa):
    return [f"v_mfma_f32_16x16x32_bf16 {aa(mm,ib)}, {G.q(4*ib+kap)}, {Y.q(4*mm+kap)}, {aa(mm,ib) if kap else 0}"
            for kap in range(4) for ib in range(2) for mm in range(2)]

def code_touch(k, I, wave, nbytes, dst):
    r = k.s.alloc(2); so = k.s.alloc(); va = k.v.alloc(2)
    per = -(-nbytes // (32 * 128)); lab = k.lab('pc')
    k(f"s_cmp_lg_u32 {I['w']}, {wave}")
    with k.skip_if("s_cbranch_scc1"):
        k(f"""s_getpc_b64 {r}
        {lab}:
        s_lshr_b32 {so}, s2, 3
        s_mul_i32 {so}, {so}, {per*128}
        v_min_u32 {va[0]}, {per-1}, {I['l']}
        v_lshl_add_u32 {va[0]}, {va[0]}, 7, {so}
        v_min_u32 {va[0]}, {k.name}_end-{lab}, {va[0]}
        v_mov_b32 {va[1]}, 0
        v_lshl_add_u64 {va}, {va}, 0, {r}
        global_load_dword {dst}, {va}, off""").defs = set()
    k.s.free(r, so); k.v.free(va)

def pretouch(k, I, swr, swi, sc, CLv, dst, what):
    va = k.v.alloc(); t = k.v.alloc(); r0, r1 = k.s.alloc(), k.s.alloc()
    if 'w' in what:
        k(f"""s_lshl_b32 {r0}, {I['k1p']}, 2
        s_add_u32 {r0}, {r0}, {I['w']}
        s_lshl_b32 {r0}, {r0}, 7
        s_add_u32 {r0}, {r0}, {I['slot']}
        s_sub_u32 {r1}, 2048, {r0}
        s_and_b32 {r1}, {r1}, 2047
        s_mul_i32 {r0}, {r0}, 1026
        s_mul_i32 {r1}, {r1}, 1026
        s_sub_u32 {r1}, {r1}, {r0}
        v_and_b32 {t}, 1, {I['g']}
        v_mul_lo_u32 {t}, {t}, {r1}
        v_lshl_add_u32 {va}, {I['n']}, 7, {r0}
        v_add_u32 {va}, {va}, {t}
        v_and_b32 {va}, -4, {va}
        s_mov_b64 exec, 0x01ff01ff
        buffer_load_dword {dst}, {va}, {swr}, 0 offen
        buffer_load_dword {dst}, {va}, {swi}, 0 offen
        s_mov_b64 exec, -1""")
    if 'c' in what:
        k(f"""s_lshr_b32 {r0}, {I['w']}, 1
        s_lshl_b32 {r0}, {r0}, 20
        s_lshl_b32 {r1}, {I['tb']}, 15
        s_add_u32 {r0}, {r0}, {r1}
        v_lshl_add_u32 {va}, {I['n']}, 11, {r0}
        v_and_b32 {t}, 1, {I['g']}
        v_lshl_add_u32 {va}, {t}, 19, {va}
        v_lshrrev_b32 {t}, 1, {I['g']}
        v_add_u32 {t}, {I['rc']}, {t}
        v_and_b32 {t}, 15, {t}
        v_lshl_add_u32 {va}, {t}, 7, {va}""")
        if '2' not in what: k("s_mov_b32 exec_hi, 0")
        k(f"buffer_load_dword {dst}, {va}, {sc}, 0 offen\ns_mov_b64 exec, -1")
    for i in k.ins[-40:]:
        if i.mn == 'buffer_load_dword' and i.defs == {('v', dst.idx)}: i.defs = set()
    k.v.free(va, t); k.s.free(r0, r1)

def build(opt={}):
    O = dict(sig=7, v2s=0, early=0, p0=30, lead0=0, p1=56, lead1=60, gpos=1, cearly=0, n0=8, n1=16, pb=70, nb=2, nlb=1, pc=64, leadc=0, late=2, gseam=1, fast=0, lag=2, hmark=1, pollat=1, touch=1, clr=1, pt='w', pts=11, two=1, pre3=3, pg=48, pv=6, pd=2, yd=2, yl=2, fs=12, oaf='sc1', fr=2, map8=1, rot1=2, gloc=1, rotc=1)
    O.update(opt)
    k = Kernel(NAME + "_kernel", nv=256, na=256)
    LX = 131072; LT2 = LX + 16384; LDS = LT2 + 16384
    A0, A1, A2, A3, B0, B1_, B2, B3_ = [16384 * i for i in range(8)]
    k("s_cmp_ge_u32 s2, 256")
    k(f"s_cbranch_scc1 {k.name}_end")
    KP = k.s.alloc(32, 4)
    k(f"s_load_dwordx16 {KP[0:16]}, s[0:1], 0\ns_load_dwordx16 {KP[16:32]}, s[0:1], 64")
    P = {n: KP[o // 4:o // 4 + 2] for n, o in KA.items()}
    def rel(*names):
        for n in names: k.s.free(P.pop(n))
    cva = code_prefetch(k, 0, 40960); cd = k.v.alloc()
    I = ids(k, O['map8'])
    I['rot1'] = O['rot1']
    k(f"s_cmp_lg_u32 {I['w']}, 0")
    with k.skip_if("s_cbranch_scc1"):
        k(f"global_load_dword {cd}, {cva}, off")
    k.v.free(cva)
    pf = Prof(k, 0)
    if O.get('lat'):
        nm = O['lat']; sl = srd(k, P[nm], 1 << 21); tv = k.v.alloc(2)
        k(f"v_mov_b32 {tv[0]}, s2\nv_lshlrev_b32 {tv[0]}, 13, {tv[0]}\ns_waitcnt vmcnt(0)")
        k(f"buffer_load_dword {tv[1]}, {tv[0]}, {sl}, 0 offen\ns_waitcnt vmcnt(0)")
        pf("l1")
        for q in range(1, 9): k(f"buffer_load_dword {tv[1]}, {tv[0]}, {sl}, 0 offen offset:{256*q}\ns_waitcnt vmcnt(0)")
        pf("l2")
        k.s.free(sl); k.v.free(tv)
    sx = srd(k, P['x'], SZ['x']); rel('x', 'bx')
    ldx = xtile_issue(k, I, sx, LX)
    sf = srd(k, P['ws'], 8192 + 32768, WS_F)
    sdbg = srd(k, P['dbg'], 256); rel('dbg')
    FV, FH = k.s.alloc(), k.s.alloc()
    zero = k.v.alloc(); vpc = k.v.alloc()
    k(f"""v_mov_b32 {zero}, 0
    v_lshlrev_b32 {vpc}, 4, v0
    s_cmp_lg_u32 s2, 0""")
    with k.skip_if("s_cbranch_scc1"):
        tz = k.v.alloc(4)
        for j in range(4): k(f"v_mov_b32 {tz[j]}, 0")
        k(f"buffer_store_dwordx4 {tz}, {vpc}, {sf}, 0 offen {SC}")
        if O['clr'] == 1: k(f"s_mov_b32 {FV}, 4096\nbuffer_store_dwordx4 {tz}, {vpc}, {sf}, {FV} offen {SC}")
        k.v.free(tz)
    sb = srd_sel(k, I, P['bre'], P['bim'], SZ['bre']); rel('bre', 'bim')
    g1 = B1g(k, I, sx, sb, 0, 65536)
    one = k.v.alloc(); vfc = k.v.alloc(); vfh = k.v.alloc()
    k(f"""s_and_b32 {FV}, s2, 7
    s_lshl_b32 {FV}, {FV}, 9
    s_lshr_b32 {FH}, s2, 3
    s_lshl_b32 {FH}, {FH}, 4
    s_add_u32 {FV}, {FV}, {FH}
    v_mov_b32 {vfc}, {FV}
    s_lshl_b32 {FV}, s2, 7
    v_mov_b32 {vfh}, {FV}
    s_mov_b32 {FV}, 4096
    s_mov_b32 {FH}, 8192
    v_mov_b32 {one}, 1""")
    sgw = srd(k, P['gw'], SZ['gw']); rel('gw')
    t4 = [srd(k, P[n], 2048) for n in ('lre', 'lim', 'ldt', 'dsk')]; rel('lre', 'lim', 'ldt', 'dsk')
    T = ph2_params(k, I)
    if O['rotc']:
        I['rc'] = k.s.alloc(); sh_ = 3 if O['map8'] else 2; tt = k.s.alloc()
        k(f"""s_and_b32 {I['rc']}, {I['ta']}, {(1<<sh_)-1}
        s_lshl_b32 {I['rc']}, {I['rc']}, {4-sh_}
        s_lshr_b32 {tt}, {I['ta']}, {sh_}
        s_add_u32 {I['rc']}, {I['rc']}, {tt}""")
        k.s.free(tt)
    def vm1(cap):
        def f():
            while cap.groups:
                v = any(i.cls == 'vm' for i in cap.groups[0]); cap.emit(1)
                if v: break
        return f
    H = {}
    CA = k.a.alloc(256)
    dq = [(-1 if s < 4 else s - 4, lambda s=s, i=i: g1.dma(s, i)) for s in range(0, 16) for i in range(8)]
    take = lambda n: [dq.pop(0)[1] for _ in range(n)]
    with k.capture() as small:
        Q = ssm_param_issue(k, I, *t4[:3]); Dk = dsk_issue(k, I, t4[3])
    with k.capture() as gl: Gt = gate_issue2(k, I, sx, sgw)
    cw = coop_consts(k, I, T, LT2, 2.0 ** -20)
    with k.capture() as c0:
        F = gen_F2(k, I)
        sv1 = srd(k, P['ws'], 256 * V1_STR, WS_V1)
    acts = take(8) + [vm1(small)] * 5 + ([vm1(gl)] * 6 if O['gpos'] == 0 else []) + take(O['n0'])
    c0.weave(acts, O['p0'], O['lead0'])
    pf("F")
    while acts: acts.pop(0)()
    small.flush(); k.s.free(*t4)
    k.wait(ldx, cw); k("s_barrier"); pf("xt")
    with k.capture() as c1:
        O1 = ph1f(k, I, F, LX, sv1, lambda n: None)
        k.v.free(F)
        XK = (xkeep3 if O['two'] else xkeep)(k, I, LX)
    acts = take(O['n1'])
    c1.weave(acts, O['p1'], O['lead1'])
    while acts: acts.pop(0)()
    if O['gpos'] == 1: gl.emit(1000)
    pf("ph1")
    g1.alloc()
    if O['gpos'] == 2:
        pos = 32 - 8 - O['n0'] - O['n1']
        dq[pos:pos] = [(-1, vm1(gl))] * 6
    with k.capture() as fl1:
        ph1_store(k, *O1, sv1)
        st = k.s.alloc()
        k(f"s_lshl_b32 {st}, {I['cb']}, 14")
        se = srd(k, P['ws'], 8192, WS_E, st)
        t = k.v.alloc(2)
        k(f"""s_sub_u32 {st}, 15, {I['ca']}
        s_lshl_b32 {st}, {st}, 9
        v_lshl_add_u32 {t[0]}, v0, 2, {st}
        v_mov_b32 {t[1]}, -1
        s_cmp_ge_u32 {I['w']}, 2""")
        with k.skip_if("s_cbranch_scc1"):
            k(f"buffer_store_dword {t[1]}, {t[0]}, {se}, 0 offen {SC}")
        wave0_store(k, I, f"buffer_store_dword {zero}, {vfh}, {sf}, {FH} offen {SC}" + (f"\nbuffer_store_dword {zero}, {vfc}, {sf}, {FV} offen {SC}" if O['clr'] == 0 else ""))
        k(f"s_or_b32 {st}, {I['w']}, s2\ns_cmp_lg_u32 {st}, 0")
        with k.skip_if("s_cbranch_scc1"):
            k(f"s_mov_b64 exec, 1\nbuffer_store_dword {one}, {zero}, {sdbg}, 0 offen {SC}\ns_mov_b64 exec, -1")
        k.v.free(t); k.s.free(st)
        sc = srd_sel(k, I, P['cre'], P['cim'], SZ['cre']); rel('cre', 'cim')
        CL = CLoad(k, I, sc, CA)
        swr = srd(k, P['wr'], SZ['wr']); swi = srd(k, P['wi'], SZ['wi']); rel('wr', 'wi')
        nfirst = len(k.ins)
        sg = srd(k, P['ws'], G_BYTES, WS_G)
        lastst = gate_compute2(k, I, Gt, sg)
        nsec = len(k.ins)
        H['C2'] = coop_read(k, I, LT2, {n: CA[224 + 8 * j:232 + 8 * j] for j, n in enumerate(('m2f', 'm2i', 'm1i', 'si'))})
        WD = WDir(k, I, T, swr, swi, LT2); WD.prep()
        nthird = len(k.ins)
        Pm = ssm_param_compute(k, Q)
        scan_addr(k, I, Pm, LT2)
        E1h = {}; hstore_addr(k, I, E1h)
        ntot = len(k.ins)
    print("B1 fillers", nfirst, nsec, nthird, ntot)
    for u in range(O['cearly']):
        pos = [j for j, x in enumerate(dq) if x[0] == 2 + 3 * u][0]
        dq[pos:pos] = [(-1, lambda: CL.issue(LX))]
    p0 = Poll(k, sdbg, zero, 1, 1, sleep=16)
    p1 = Poll(k, sf, vpc, 1, 1, sleep=16)
    dq.append((-1, lambda: (p1.issue(), WD.tail_issue())))
    dq += [(-1, lambda: WD.issue1(LX))] * 4
    for s, slot in ((12, A0), (12, B0), (13, A1)): dq += [(s, lambda slot=slot: WD.issue1(slot))] * 4
    for s, slot in ((13, B1_), (14, A2), (14, B2)): dq += [(s, lambda slot=slot: CL.issue1(slot))] * 4
    pf("pre")
    def pre_bar(s):
        if s == O['sig']: k.wait(lastst)
    def post_bar(s):
        if O['touch'] and s in (4, 11): code_touch(k, I, 1 + (s & 1), 16384, cd)
        if O['pt'] and s == O['pts']: pretouch(k, I, swr, swi, sc, CL, cd, O['pt'])
        if s == O['sig'] - 3: p0.issue()
        if s == O['sig']:
            fl1.emit_until_safe()
            p0.finish()
            wave0_store(k, I, f"buffer_store_dword {one}, {vfc}, {sf}, 0 offen {SC}")
    def fill1(s, kk, m):
        tgt = [(0, 34), (1, nfirst), (2, nfirst), (4, nsec), (9, nthird), (14, ntot)]
        x = s + (4 * kk + m + 1) / 16.0 - 1; px, py = -1, 0
        for qx, qy in tgt:
            if x <= qx: want = py + (qy - py) * (x - px) / (qx - px); break
            px, py = qx, qy
        else: want = ntot
        while fl1.groups and ntot - fl1.left() < want: fl1.emit(1)
        if s == 3 and kk == 0 and m == 0: gl.flush(); k.s.free(sgw)
        if s == 14 and kk == 3 and m == 3: fl1.flush()
        if kk == 1 and m == 0 and s >= 5 and s % 3 == 2 and CL.nd < O['cearly']: CL.drain()
        if kk == 3 and m == 0 and s % 4 == 3: pf(f"a{s}")
    def rate(s, kk, m):
        if s < O['fast']: return 1 if m >= 1 else 0
        return 1 if m >= 2 else 0
    acc = g1.main(dq, fill1, pre_bar, post_bar, rate)
    pf("main1")
    k.s.free(sx, sb, sdbg); k.v.free(zero)
    with k.capture() as c2:
        E1 = pass1c(k, I, acc, Pm, LT2); E1.update(E1h)
    acts = [x[1] for x in dq]; print("queue left after B1:", len(acts))
    c2.weave(acts, 64)
    while acts: acts.pop(0)()
    p1.finish()
    k.wait(E1['w']); k("s_barrier")
    publish(k, I, E1, Pm, se)
    pf("pass1")
    LT1 = A3
    C2 = H['C2']; nlate = O['late']; assert nlate >= 2
    free = [B3_]; state = dict(cur=None)
    def c1act():
        if CL.n >= 64 - 4 * nlate: return
        if CL.n & 3 == 0:
            if not free: free.append(CL.drain())
            state['cur'] = free.pop(0)
            if not free and CL.nd < CL.n // 4 - O['lag'] + 1: free.append(CL.drain())
        CL.issue1(state['cur'])
    def cfinish():
        while CL.n & 3: c1act()
    L1 = v1_issue(k, I, T, sv1, SC); k.s.free(sv1)
    with k.capture() as c3:
        WD.tail_write()
        Wf, WX = ph2_w(k, T, WD)
        scan_coef(k, acc, Pm)
        carry_prep(k, I, E1, Pm)
        ph2_wfix(k, T, WD, Wf, WX)
    acts = [c1act] * (4 * O['nb'])
    c3.weave(acts, O['pb'], 100)
    cfinish()
    free.extend([LX, A0, B0, A1][1:])
    lb = LookBack(k, Pm, se); lb.issue()
    pf("coef")
    with k.capture() as c4: t1w = ph2_s1(k, I, C2, L1, LT1)
    acts = [c1act] * (4 * O['nlb'])
    c4.weave(acts, O['pb'])
    cfinish()
    pf("s1")
    E = lb.finish(); k.s.free(se)
    pf("lb")
    sh = srd(k, P['ws'], 8 << 20, WS_H)
    lasth = pass2c(k, I, acc, Pm, E1, E, sh, lambda q: None)
    pf("pass2")
    while CL.nd < CL.n // 4: free.append(CL.drain())
    if O['touch']: code_touch(k, I, 3, 16384, cd)
    k.wait(t1w); k("s_barrier")
    pf("bar1")
    vph = k.v.alloc()
    k(f"v_lshlrev_b32 {vph}, 7, v0")
    p3 = Poll(k, sf, vph, 1, 1, FH)
    def mark(i):
        if i == O['hmark']:
            k.wait(lasth); k("s_barrier")
            wave0_store(k, I, f"buffer_store_dword {one}, {vfh}, {sf}, {FH} offen {SC}")
            pf("hflag")
    with k.capture() as c5: ph2_mid(k, I, T, C2, Wf, WX, LT1, LT2, mark)
    acts = [c1act] * (64 - 4 * nlate - CL.n); print("C instr in mid:", len(acts))
    c5.weave(acts, O['pc'], O['leadc'])
    print("C instr left after mid:", len(acts))
    while acts: acts.pop(0)()
    pf("mid")
    if O['pollat'] == 0: p3.issue()
    k("s_waitcnt lgkmcnt(0)\ns_barrier")
    V2 = ph2_s6(k, I, C2, LT2)
    if O['pollat'] == 1: p3.issue()
    sv2 = srd(k, P['ws'], 256 * V2_STR, WS_V2)
    while CL.nd < CL.n // 4: CL.drain()
    if O['v2s'] < 0: H['v2'] = v2_store(k, *V2, sv2)
    g3 = (B3h if O['two'] else B3g)(k, I, sh, CL)
    g3.alloc()
    (xd_init3 if O['two'] else xd_init2)(k, XK, Dk, g3.acc)
    pf("s6")
    p3.finish(); k.v.free(vph)
    k("s_waitcnt lgkmcnt(0)\ns_barrier")
    pf("sync3")
    if O['two']: return two_pass_tail(k, I, O, P, H, locals())
    acts = [lambda s=s, i=i: g3.dma(s, i) for s in range(3) for i in range(8)]
    G1 = None
    if O['gseam']:
        with k.capture() as cg: G1 = gen_G1b(k, I)
        for _ in range(2): acts.pop(0)()
        cg.weave(acts, 48)
    while acts: acts.pop(0)()
    so = srd(k, P['out'], SZ['out'])
    with k.capture() as f3a:
        if O['v2s'] >= 0: H['v2'] = v2_store(k, *V2, sv2)
    with k.capture() as f3b:
        if G1 is None: G1 = gen_G1b(k, I)
        FA = final_addr(k, I, 0, LX)
    pf("pref")
    p4 = Poll(k, sf, vpc, 1, 1, FV, sleep=16)
    VS = O['v2s']
    def pre_bar3(s):
        if s == VS + 3: k.wait(H['v2'])
        if s == 10:
            f3b.flush(); p4.finish()
        if s == 14: H['c'].flush(); k.wait(H['yw'])
    def post_bar3(s):
        if s == VS + 3: wave0_store(k, I, f"buffer_store_dword {one}, {vfc}, {sf}, {FV} offen {SC}")
        if O['touch'] and s == 5: code_touch(k, I, 1, 12288, cd)
        if s == 8: p4.issue()
        if s == 10:
            L2 = v2_issue2(k, I, sv2)
            with k.capture() as H['c']:
                H['yw'] = y_stage2(k, I, L2, LX)
        if s == 14:
            H['g'] = g_issue2(k, I, sg)
            with k.capture() as H['d']:
                H['G2'] = gen_G2(k, I, G1)
    def fill3(s, kk, q):
        if s == VS and f3a.left(): f3a.emit(2)
        if s == max(VS, 0) and kk == 1 and q == 15: f3a.flush()
        if s > VS and q >= 8: f3b.emit(2)
        if q == 15 and kk == 0 and 3 <= s < 3 + nlate: CL.drain()
        if q == 15 and kk == 1 and 1 <= s < 1 + nlate: CL.issue((LX, LT2)[s & 1])
        if s >= 13 and 'c' in H and q >= 6: H['c'].emit(O.get('yr') or 4)
        if 'd' in H and q >= 8: H['d'].emit(O.get('gr') or 4)
        if kk == 1 and q == 0 and s % 4 == 3: pf(f"b{s}")
    g3.main(fill3, pre_bar3, post_bar3, lambda Y: y_reads(FA, Y))
    assert CL.nd == 16
    H['d'].flush()
    pf("main3")
    final2(k, FA, H['g'], g3.acc, g3.fr, (G1, H['G2']), so, pf)
    pf("epi")
    pf.done()
    end(k)
    return k, LDS

def two_pass_tail(k, I, O, P, H, L):
    g3, CL, pf, sf, sg, sv2, V2, vpc, vfc, one, FV, cd, LX, LT2, nlate = [L[n] for n in 'g3 CL pf sf sg sv2 V2 vpc vfc one FV cd LX LT2 nlate'.split()]
    dq = [(s, i) for s in range(16) for i in range(8)]
    acts = [lambda: g3.dma(*dq.pop(0))] * (8 * O['pre3'])
    I2 = dict(I, khs=5); g3.catch = O['pre3'] == 2
    with k.capture() as cg: G1 = gen_G1b(k, I2)
    for _ in range(2): acts.pop(0)()
    cg.weave(acts, O['pg'])
    while acts: acts.pop(0)()
    so = srd(k, P['out'], SZ['out'])
    with k.capture() as f3a:
        if O['v2s'] >= 0: H['v2'] = v2_store(k, *V2, sv2)
    with k.capture() as f3b:
        FA = final_addr(k, I2, LT2, LX)
    pf("pref")
    p4 = Poll(k, sf, vpc, 1, 1, FV, sleep=16)
    VS = O['v2s']; PV = O['pv']; VF = O.get('vf', VS + 3); PF = PV + O['pd']; YS = PF + O['yd']; YB = YS + O['yl']; acc = g3.acc; ad = FA['ad']
    aa0 = lambda mm, ib: acc[0].q(4 * mm + 2 + ib)
    S = {}
    def cap(name, fn):
        with k.capture() as S[name]: fn()
    def pre_bar3(s):
        if s == VF: k.wait(H['v2'])
        if s == PF: f3b.flush(); p4.finish()
        if s == 8: S['xw'].flush(); k.wait(H['xw'])
        if s == YB: S['y'].flush(); k.wait(H['yw'])
    def post_bar3(s):
        if O['touch'] and s == 4: code_touch(k, I, 1, 16384, cd)
        if s == VF: wave0_store(k, I, f"buffer_store_dword {one}, {vfc}, {sf}, {FV} offen {SC}")
        if s == PV: p4.issue()
        if s == PF:
            L2 = v2_issue2(k, I, sv2)
            H['g'] = g_issue2(k, I2, sg)
            def f(): H['yw'] = y_stage2(k, I, L2, LX)
            cap('y', f)
        if s == 8:
            def f():
                k(f"v_xor_b32 {ad}, 0x1000, {ad}")
                for mm in range(2):
                    for ib in range(2): k(f"ds_read_b128 {aa0(mm,ib)}, {ad} offset:{1024*(2*mm+ib)}")
                k(f"v_xor_b32 {ad}, 0x1000, {ad}")
            f()
            def f2():
                for mm in range(2):
                    for ib in range(2):
                        for x in (0, 2): pk(k, '+', acc[0].q(4*mm+ib)[x:x+2], acc[0].q(4*mm+ib)[x:x+2], aa0(mm, ib)[x:x+2])
            cap('add', f2)
        if s == YB:
            H['Y'] = k.v.allocq(32)
            def f():
                for r in y_reads(FA, H['Y']): k(r)
            cap('yr', f)
            def f2():
                for m in ph3_list(G1, H['Y'], aa0): k(m)
            cap('m', f2)
            def f3():
                fin3(k, FA, H['g'], acc[0], aa0, so, 0, O['oaf'].replace('_', ''), True)
                for j in range(1, 32, 2): k(f"v_xor_b32 {G1[j]}, 0x80008000, {G1[j]}")
            cap('fin', f3)
    def fill3(s, u, q):
        if s == VS and f3a.left(): f3a.emit(2)
        if s == max(VS, 0) and u == 1 and q == 15: f3a.flush()
        if s > VS and q >= 8: f3b.emit(2)
        if q == 15 and u == 0 and 3 <= s < 3 + nlate: CL.drain()
        if q == 15 and u == 1 and 1 <= s < 1 + nlate: CL.issue((LX, LT2)[s & 1])
        if s == 8 and u == 0:
            if q == 0:
                def f():
                    for mm in range(2):
                        for ib in range(2): H['xw'] = k(f"ds_write_b128 {ad}, {aa0(mm,ib)} offset:{1024*(2*mm+ib)}")
                cap('xw', f)
            if q >= 8 and q & 1: S['xw'].emit(1)
        if s == 9 and u == 0 and q >= 8: S['add'].emit(O.get('yr') or 1)
        if s == 9 and u == 0 and q == 15: S['add'].flush()
        if 'y' in S and (s, u) >= (YS, 1) and q >= 8: S['y'].emit(O.get('yr') or -(-7 // O['yl']))
        if 'yr' in S:
            if S['yr'].left(): S['yr'].emit(3)
            elif S['m'].left():
                if (s, u) >= (YB + 1, 0) and q >= 8: S['m'].emit(2)
            elif (s, u) >= (max(YB + 1, O['fs']), 1) and (q >= 8 or s >= 13): S['fin'].emit(O['fr'])
        if u == 1 and q == 0 and s % 4 == 3: pf(f"b{s}")
    g3.main(dq, fill3, pre_bar3, post_bar3)
    assert CL.nd == 16
    print("fin(a) left after main:", S['fin'].left())
    for n in ('yr', 'm', 'fin'): S[n].flush()
    pf("main3")
    ml = ph3_list(G1, H['Y'], aa0)
    wr = [f"ds_write_b128 {ad}, {acc[1].q(4*mm+2+ib)} offset:{1024*(2*mm+ib)}" for ib in range(2) for mm in range(2)]
    for j in range(8):
        k(ml.pop(0))
        if j & 1 == 0: k(wr.pop(0))
    k(f"v_xor_b32 {ad}, 0x1000, {ad}\ns_waitcnt lgkmcnt(0)\ns_barrier")
    pf("xbar")
    rd = [f"ds_read_b128 {acc[1].q(4*mm+2+ib)}, {ad} offset:{1024*(2*mm+ib)}" for ib in range(2) for mm in range(2)]
    while ml:
        k(ml.pop(0))
        if rd: k(rd.pop(0))
    fin3(k, FA, H['g'], acc[1], aa0, so, 1, OUTF, False)
    pf("epi")
    k.v.free(g3.fr)
    pf.done()
    end(k)
    return k, L['LDS']

def write(path, opt={}):
    k, lds = build(opt)
    open(path, "w").write(module(header(), [(k.name, 256, 256, lds)], [k]))
    print(path, k.stats)
    if os.environ.get('SEG'): k.segstats()
    if PROF: json.dump([k.profnames], open(path[:-2] + ".json", "w"))

if __name__ == "__main__":
    opt = {}
    for a in sys.argv[2:]:
        n, v = a.split("="); opt[n] = int(v) if v.lstrip('-').isdigit() else v
    write(sys.argv[1] if len(sys.argv) > 1 else "outf.s", opt)
```

```python
import re

class R:
    def __init__(self, kind, idx, n=1):
        self.kind, self.idx, self.n = kind, idx, n
    def __str__(self):
        if self.n == 1: return f"{self.kind}{self.idx}"
        return f"{self.kind}[{self.idx}:{self.idx+self.n-1}]"
    __repr__ = __str__
    def __format__(self, spec): return str(self)
    def __getitem__(self, i):
        if isinstance(i, slice):
            a = i.start or 0; b = self.n if i.stop is None else i.stop
            assert 0 <= a < b <= self.n, (self, i)
            return R(self.kind, self.idx + a, b - a)
        assert 0 <= i < self.n, (self, i)
        return R(self.kind, self.idx + i, 1)
    def q(self, i, w=4):
        return self[i * w:(i + 1) * w]
    def __len__(self): return self.n

class RL:
    def __init__(self, parts): self.parts = parts; self.w = parts[0].n; self.n = self.w * len(parts)
    def __getitem__(self, i):
        if isinstance(i, slice):
            a = i.start or 0; b = self.n if i.stop is None else i.stop
            if a // self.w == (b - 1) // self.w: return self.parts[a // self.w][a % self.w:(b - 1) % self.w + 1]
            assert a % self.w == 0 and b % self.w == 0
            return RL(self.parts[a // self.w:b // self.w])
        return self.parts[i // self.w][i % self.w]
    def q(self, i, w=4): return self[i * w:(i + 1) * w]
    def __len__(self): return self.n

class Pool:
    def __init__(self, kind, lo, hi):
        self.kind, self.lo, self.hi = kind, lo, hi
        self.used = [False] * hi
        self.high = lo
        self.touched = None
    def alloc(self, n=1, align=None):
        if align is None: align = 1 if n == 1 else (2 if n < 4 else 4)
        if self.kind != 's' and n >= 2: align = max(align, 2)
        i = (self.lo + align - 1) // align * align
        if n < 4:
            best = None
            for j in range(i, self.hi - n + 1, align):
                if any(self.used[j:j + n]): continue
                q = j & ~3; u = sum(self.used[q:q + 4]) + max(0, self.lo - q)
                if u and (best is None or u > best[0]): best = (u, j)
            if best: i = best[1]
        while i + n <= self.hi:
            if not any(self.used[i:i + n]):
                for j in range(i, i + n): self.used[j] = True
                if self.touched is not None: self.touched.update(range(i, i + n))
                self.high = max(self.high, i + n)
                return R(self.kind, i, n)
            i += align
        raise RuntimeError(f"out of {self.kind} registers (n={n}); used={sum(self.used)}")
    def allocq(self, n, w=4):
        assert n % w == 0
        def one():
            try: return self.alloc(w)
            except RuntimeError: return self.alloc(w, 2)
        return RL([one() for _ in range(n // w)])
    def free(self, *rs):
        for r in rs:
            if isinstance(r, RL):
                self.free(*r.parts); continue
            for j in range(r.idx, r.idx + r.n):
                if self.touched is not None: self.touched.add(j)
                assert self.used[j], f"double free {r}"
                self.used[j] = False
    def nused(self): return sum(self.used)

_REG = re.compile(r'\b([vas])(\d+)\b|\b([vas])\[(\d+):(\d+)\]|\b(vcc|exec|m0|scc)(_lo|_hi)?\b')
def regs_of(tok):
    out = set()
    for m in _REG.finditer(tok):
        if m.group(1): out.add((m.group(1), int(m.group(2))))
        elif m.group(3):
            for j in range(int(m.group(4)), int(m.group(5)) + 1): out.add((m.group(3), j))
        else: out.add((m.group(6), 0))
    return out

TRANS = ('v_exp_', 'v_log_', 'v_rcp_', 'v_rsq_', 'v_sqrt_', 'v_sin_', 'v_cos_')
def split_ops(s):
    out, depth, cur = [], 0, ''
    for ch in s:
        if ch in '[(': depth += 1
        if ch in '])': depth -= 1
        if ch == ',' and depth == 0: out.append(cur.strip()); cur = ''
        else: cur += ch
    if cur.strip(): out.append(cur.strip())
    return out

class Ins:
    __slots__ = ('text', 'mn', 'defs', 'uses', 'cls', 'label', 'target', 'passes', 'A', 'B', 'C', 'data', 'opt', 'tok', 'ws', 'uncond')
    def __init__(self, text):
        self.text = text; self.label = None; self.target = None; self.passes = 0
        self.defs = set(); self.uses = set(); self.cls = 'other'; self.A = self.B = self.C = set(); self.data = set()
        self.opt = 0; self.tok = None; self.ws = 1; self.uncond = False
        t = text.split(';')[0].strip()
        if t.endswith(':'):
            self.label = t[:-1]; self.cls = 'label'; self.mn = ''; self.ws = 0; return
        if t.startswith('.') or not t:
            self.cls = 'dir'; self.mn = ''; self.ws = 0; return
        p = t.split(None, 1)
        mn = self.mn = p[0]
        ops = split_ops(p[1]) if len(p) > 1 else []
        rs = [regs_of(o) for o in ops]
        allr = set().union(*rs) if rs else set()
        rest = set().union(*rs[1:]) if len(rs) > 1 else set()
        if mn.startswith('v_mfma'):
            self.cls = 'mfma'; self.defs = rs[0]; self.A, self.B, self.C = rs[1], rs[2], rs[3]; self.uses = rest
            self.passes = 8 if '32x32' in mn else 4
            assert 'bf16' in mn
        elif mn.startswith('v_'):
            self.cls = 'valu'
            if mn.startswith('v_cmpx'): raise RuntimeError('v_cmpx unsupported')
            if mn.startswith(('v_permlane', 'v_swap')):
                self.defs = allr; self.uses = allr
            elif mn.startswith(('v_add_co', 'v_sub_co', 'v_addc_co', 'v_subb_co', 'v_subrev_co')):
                self.defs = rs[0] | rs[1]; self.uses = set().union(*rs[2:])
            elif mn == 'v_nop': pass
            else:
                self.defs = rs[0]; self.uses = rest
                if mn.startswith(('v_fmac', 'v_pk_fmac', 'v_dot2c', 'v_writelane')) or 'dpp' in mn or ' row_' in t or 'quad_perm' in t or 'UNUSED_PRESERVE' in t:
                    self.uses = allr
        elif mn.startswith('ds_'):
            self.cls = 'ds'
            if mn.startswith(('ds_read', 'ds_bpermute', 'ds_permute', 'ds_swizzle')) or '_rtn' in mn:
                self.defs = rs[0]; self.uses = rest
            else: self.uses = allr
        elif mn.startswith(('buffer_', 'global_')):
            self.cls = 'vm'
            toks = t.split()
            if mn in ('buffer_wbl2', 'buffer_inv'): pass
            elif 'lds' in toks or '_lds_' in mn:
                self.uses = allr | {('m0', 0)}; self.cls = 'vm'; self.C = 'lds'
            elif '_load_' in mn:
                self.defs = rs[0]; self.uses = rest
                if 'd16' in mn: self.uses = allr
            elif '_store_' in mn:
                self.uses = allr
                if mn.endswith(('x3', 'x4')): self.data = rs[0] if mn.startswith('buffer') else rs[1]
            elif '_atomic_' in mn:
                self.uses = allr
                if 'sc0' in toks: self.defs = rs[0]
            else: raise RuntimeError(mn)
        elif mn.startswith(('s_load', 's_buffer_load', 's_memtime', 's_memrealtime')):
            self.cls = 'smem'; self.defs = rs[0]; self.uses = rest
        elif mn.startswith('s_'):
            self.cls = 'salu'
            if mn in ('s_branch',) or mn.startswith('s_cbranch'):
                self.cls = 'branch'; self.target = ops[0]; self.uncond = mn == 's_branch'
                if 'vcc' in mn: self.uses = {('vcc', 0)}
            elif mn == 's_endpgm': self.cls = 'branch'; self.uncond = True
            elif mn == 's_nop': self.ws = int(ops[0], 0) + 1
            elif mn in ('s_waitcnt', 's_barrier', 's_setprio', 's_sleep'): pass
            elif mn.startswith(('s_cmp', 's_bitcmp')): self.uses = allr
            elif 'saveexec' in mn: self.defs = rs[0] | {('exec', 0)}; self.uses = rest | {('exec', 0)}
            else:
                self.defs = rs[0]; self.uses = rest
                if mn.startswith(('s_addk', 's_mulk', 's_cmov', 's_bitset')): self.uses = allr
        else:
            raise RuntimeError('unknown instr ' + text)

def isv(rs): return {r for r in rs if r[0] in 'va' and len(r[0]) == 1}
def iss(rs): return {r for r in rs if r[0] in ('s', 'vcc')}

def need_ws(p, c):
    n = 0
    if p.cls == 'valu':
        dv = isv(p.defs); dsg = iss(p.defs)
        if dv:
            if c.cls == 'mfma' and dv & c.uses: n = max(n, 2)
            if c.cls == 'valu' and dv & c.uses:
                if c.mn.startswith(('v_readfirstlane', 'v_readlane')): n = max(n, 1)
                if c.mn.startswith('v_permlane') or 'dpp' in c.mn or ' row_' in c.text or 'quad_perm' in c.text: n = max(n, 2)
                if p.mn.startswith(TRANS): n = max(n, 1)
                if 'dst_sel:' in p.text and 'dst_sel:DWORD' not in p.text: n = max(n, 1)
                if p.mn.startswith('v_dot'): n = max(n, 0 if (c.mn == p.mn and not (dv & (c.uses - c.defs))) else 3)
            if p.mn.startswith('v_dot') and c.cls in ('valu', 'vm', 'ds', 'mfma') and c.mn != p.mn and dv & (c.defs | c.uses): n = max(n, 3)
            if (p.mn.startswith(TRANS) or 'dst_sel:W' in p.text) and c.cls in ('vm', 'ds') and dv & c.uses: n = max(n, 1)
        if dsg:
            if c.cls == 'vm' and dsg & c.uses: n = max(n, 5)
            if c.cls == 'valu' and dsg & c.uses:
                n = max(n, 4 if c.mn.startswith(('v_readlane', 'v_writelane', 'v_div_fmas')) else 2)
            if c.cls in ('salu', 'smem', 'branch') and dsg & c.uses: n = max(n, 1)
    elif p.cls == 'mfma':
        i = 0 if p.passes == 4 else 1
        if c.cls == 'mfma':
            if p.defs & (c.A | c.B): n = max(n, (8, 12)[i])
            if p.defs & c.C and not (p.defs == c.C and p.passes == c.passes): n = max(n, (6, 10)[i])
            if p.defs & c.defs and not (p.defs == c.C and p.passes == c.passes): n = max(n, (8, 12)[i])
        elif c.cls in ('valu', 'vm', 'ds'):
            if p.defs & (c.uses | c.defs): n = max(n, (8, 12)[i])
            if c.defs & p.C: n = max(n, (3, 7)[i])
    elif p.cls == 'salu':
        if ('m0', 0) in p.defs and c.cls in ('vm', 'ds') and ('m0', 0) in c.uses: n = max(n, 1)
    elif p.cls == 'vm':
        if p.data and p.data & c.defs: n = max(n, 2)
    return n

class Kernel:
    COST2 = False
    def __init__(self, name, nv=256, na=0, sfirst=3):
        self.name = name
        self.ins = []
        self.v = Pool('v', 1, nv); self.a = Pool('a', 0, max(na, 1)); self.s = Pool('s', sfirst, 102)
        self.na = na
        self.optdepth = 0
        self.nlab = 0
    def __call__(self, text, tok=None):
        last = None
        for line in text.split('\n'):
            line = line.strip()
            if not line: continue
            i = Ins(line); i.opt = self.optdepth; i.tok = tok
            self.ins.append(i); last = i
        return last
    class _Cap:
        def __init__(s, k): s.k = k; s.groups = []
        def __enter__(s):
            s.save = s.k.ins; s.k.ins = []
            for p in (s.k.v, s.k.s, s.k.a): p.touched = set()
            return s
        def __exit__(s, *a):
            ins, s.k.ins = s.k.ins, s.save
            s.held = []
            for p in (s.k.v, s.k.s, s.k.a):
                for j in p.touched:
                    if not p.used[j]: p.used[j] = True; s.held.append((p, j))
                p.touched = None
            cur = []; execmod = False
            for j, i in enumerate(ins):
                cur.append(i)
                if ('exec', 0) in i.defs: execmod = not (i.text.replace(' ', '').startswith('s_mov_b64exec,-1'))
                nxt = ins[j + 1] if j + 1 < len(ins) else None
                hold = execmod or i.opt > s.k.optdepth or i.cls == 'wait' or (nxt is not None and (nxt.opt > s.k.optdepth or nxt.cls == 'label'))
                if nxt is not None and (nxt.mn.startswith(('s_cselect', 's_cbranch', 's_addc', 's_subb', 's_cmov'))): hold = True
                if ('m0', 0) in i.defs: raise RuntimeError('m0 write in captured stream: ' + i.text)
                if not hold: s.groups.append(cur); cur = []
            if cur: s.groups.append(cur)
        def emit(s, n=1):
            c = 0
            while s.groups and c < n:
                g = s.groups.pop(0); s.k.ins += g; c += len(g)
        def flush(s):
            s.emit(1 << 30)
            for p, j in s.held: p.used[j] = False
            s.held = []
        @staticmethod
        def cost(g):
            c = 0
            for i in g:
                if i.cls in ('label', 'dir', 'wait') or i.opt > 0: continue
                if Kernel.COST2 and i.cls == 'vm': c += 17
                elif Kernel.COST2 and i.cls == 'ds': c += 31 if 'write_b128' in i.mn else (12 if 'b128' in i.mn else 5)
                else: c += 8 if i.mn.startswith(TRANS) else (4 * i.passes if i.cls == 'mfma' else 4)
            return c
        def weave(s, acts, period, lead=0, stop=None):
            t = -lead + period
            while s.groups:
                if t >= period and acts:
                    acts.pop(0)(); t = 0
                g = s.groups.pop(0); s.k.ins += g; t += s.cost(g)
            s.flush()
        def run(s, clk):
            t = 0
            while s.groups and t < clk:
                g = s.groups.pop(0); s.k.ins += g; t += s.cost(g)
            return t
        def vcc_live(s):
            for g in s.groups:
                for i in g:
                    if ('vcc', 0) in i.uses: return True
                    if ('vcc', 0) in i.defs: return False
            return False
        def emit_until_safe(s):
            while s.vcc_live(): s.emit(1)
        def left(s): return sum(len(g) for g in s.groups)
    def capture(self): return Kernel._Cap(self)
    def lab(self, base='L'):
        self.nlab += 1
        return f"{self.name}_{self.tag}{base}{self.nlab}"
    def wait(self, *insts):
        i = Ins('.wait'); i.cls = 'wait'; i.tok = [x for x in insts if x is not None]; i.opt = self.optdepth
        self.ins.append(i)
    def waitall(self, vm=True, lgkm=True):
        self(('s_waitcnt' + (' vmcnt(0)' if vm else '') + (' lgkmcnt(0)' if lgkm else '')))
    class _Opt:
        def __init__(s, k, br): s.k, s.br = k, br
        def __enter__(s):
            s.l = s.k.lab('skip'); s.k(f"{s.br} {s.l}"); s.k.optdepth += 1
        def __exit__(s, *a):
            s.k.optdepth -= 1; s.k(f"{s.l}:")
    def skip_if(self, br):
        return Kernel._Opt(self, br)

    def _waits(self):
        out = []
        vm, lg = [], []
        def emit(nv, nl):
            s = 's_waitcnt'
            if nv is not None: s += f' vmcnt({min(nv,63)})'
            if nl is not None: s += f' lgkmcnt({min(nl,15)})'
            out.append(Ins(s))
        def count_after(lst, k, cur):
            return sum(1 for x in lst[k + 1:] if x.opt == 0 or (x.opt <= cur.opt and x.regid == cur.regid))
        regid = 0; prevopt = 0
        class W:
            pass
        for ins in self.ins:
            if ins.opt != prevopt: regid += 1; prevopt = ins.opt
            cur = W(); cur.opt = ins.opt; cur.regid = regid; cur.ins = ins
            kv = kl = -1
            if ins.cls == 'wait':
                for t in ins.tok:
                    for k, x in enumerate(vm):
                        if x.ins is t: kv = max(kv, k)
                    for k, x in enumerate(lg):
                        if x.ins is t: kl = max(kl, k)
            else:
                touch = ins.uses | ins.defs
                for k, x in enumerate(vm):
                    if x.ins.defs & touch: kv = k
                for k, x in enumerate(lg):
                    if x.ins.defs & touch: kl = k
            nv = nl = None
            if kv >= 0:
                nv = count_after(vm, kv, cur)
            if kl >= 0:
                nl = 0 if any(x.ins.cls == 'smem' for x in lg) else count_after(lg, kl, cur)
            if nv is not None or nl is not None:
                emit(nv, nl)
                if ins.opt == 0:
                    if nv is not None: vm = vm[kv + 1:]
                    if nl is not None: lg = [] if nl == 0 and all(x.opt == 0 for x in lg) else lg[kl + 1:]
                else:
                    if nv is not None: vm = [x for k, x in enumerate(vm) if k > kv or x.regid != regid]
                    if nl is not None: lg = [x for k, x in enumerate(lg) if k > kl or x.regid != regid]
            if ins.cls == 'wait': continue
            out.append(ins)
            if ins.mn == 's_waitcnt':
                m = re.search(r'vmcnt\((\d+)\)', ins.text)
                if m and int(m.group(1)) == 0: vm = [] if ins.opt == 0 else [x for x in vm if x.regid != regid]
                m = re.search(r'lgkmcnt\((\d+)\)', ins.text)
                if m and int(m.group(1)) == 0: lg = [] if ins.opt == 0 else [x for x in lg if x.regid != regid]
            if ins.cls == 'vm': vm.append(cur)
            if ins.cls in ('ds', 'smem'): lg.append(cur)
        self.ins = out

    def _hazards(self):
        out = []
        src = self.ins
        brs = {}
        for i in src:
            if i.target: brs.setdefault(i.target, []).append(i)
        work = list(src)
        pos = {id(x): k for k, x in enumerate(work)}
        pad = [0] * len(work)
        MAXD = 13
        for k, c in enumerate(work):
            if c.cls in ('label', 'dir'): continue
            need = 0
            stack = [(k - 1, 0)]; seen = set()
            while stack:
                j, d = stack.pop()
                while j >= 0 and d < MAXD:
                    if (j, d) in seen: break
                    seen.add((j, d))
                    p = work[j]
                    if p.cls == 'label':
                        for b in brs.get(p.label, []):
                            stack.append((pos[id(b)], d))
                        if j > 0:
                            jj = j - 1
                            while jj >= 0 and work[jj].cls == 'dir': jj -= 1
                            if jj >= 0 and work[jj].uncond: break
                        j -= 1; continue
                    n = need_ws(p, c)
                    if n > d: need = max(need, n - d)
                    d += p.ws + pad[j]
                    j -= 1
            pad[k] = need
        for k, c in enumerate(work):
            if pad[k]: out.append(Ins(f's_nop {pad[k]-1}'))
            out.append(c)
        self.ins = out

    def fork(self, tag):
        import copy
        o = Kernel(self.name, self.v.hi, self.na)
        o.v, o.a, o.s = copy.deepcopy(self.v), copy.deepcopy(self.a), copy.deepcopy(self.s)
        o.tag = tag; self.other = o
        return o
    tag = ''
    other = None
    accum = None
    def segstats(self):
        out = []; cur = {}; skip = None
        for i in self.ins:
            if i.text.startswith('; @@'):
                out.append((i.text[5:], cur)); cur = {}; continue
            if i.cls in ('label', 'dir'):
                if skip and i.label == skip: skip = None
                continue
            if skip: continue
            if i.cls == 'branch' and i.target and 'skip' in i.target: skip = i.target
            c = 4; n = i.cls
            if i.cls == 'vm': c = 16.5
            elif i.cls == 'ds': c = 31 if 'write_b128' in i.mn else (12 if 'b128' in i.mn else 8)
            elif i.cls == 'mfma': c = 8; cur['mx'] = cur.get('mx', 0) + 4 * i.passes
            elif i.mn == 's_barrier': c = 76; n = 'bar'
            elif i.mn == 's_nop': c = 4 * i.ws; n = 'nop'
            elif i.mn == 's_waitcnt': n = 'wait'
            elif i.mn.startswith(TRANS): c = 8
            cur[n] = cur.get(n, 0) + 1; cur['clk'] = cur.get('clk', 0) + c
        for n, c in out:
            print(f"  {n:7s} clk {int(c.get('clk',0)):5d} mfma-exec {c.get('mx',0):5d} | " + " ".join(f"{x}:{c[x]}" for x in ('valu','salu','vm','ds','mfma','bar','nop','wait') if x in c))
    def finish(self):
        self._waits(); self._hazards()
        nv = self.v.high
        if self.other:
            o = self.other; o._waits(); o._hazards()
            b1 = [i.text for i in self.ins if i.mn == 's_barrier']; b2 = [i.text for i in o.ins if i.mn == 's_barrier']
            assert b1 == b2, "barrier mismatch\n" + "\n".join(f"{x} | {y}" for x, y in zip(b1 + ['-'] * 9, b2 + ['-'] * 9))
            self.first = list(self.ins); self.ins = self.ins + o.ins
            nv = max(nv, o.v.high); self.a.high = max(self.a.high, o.a.high)
        acc = self.accum or max(4, (nv + 3) // 4 * 4)
        assert nv <= acc
        tot = acc + (self.a.high if self.na else 0)
        body = [f".p2align 8\n.globl {self.name}\n.type {self.name},@function\n{self.name}:"]
        for i in self.ins:
            body.append(i.text if i.cls == 'label' else '  ' + i.text)
        desc = f""".p2align 6
.amdhsa_kernel {self.name}
  .amdhsa_next_free_vgpr {tot}
  .amdhsa_next_free_sgpr 102
  .amdhsa_accum_offset {acc}
  .amdhsa_group_segment_fixed_size 0
  .amdhsa_kernarg_size 128
  .amdhsa_user_sgpr_count 2
  .amdhsa_user_sgpr_kernarg_segment_ptr 1
  .amdhsa_system_sgpr_workgroup_id_x 1
  .amdhsa_float_denorm_mode_32 3
.end_amdhsa_kernel"""
        self.stats = dict(n=len(self.ins), vgpr=nv, agpr=self.a.high if self.na else 0, sgpr=self.s.high,
                          nops=sum(1 for i in self.ins if i.mn == 's_nop'))
        return '\n'.join(body), desc

def module(header, launches, kernels, aslist=False):
    L = [header.rstrip('\n')]
    if len(launches) == 1 and not aslist:
        n, g, b, lds = launches[0]
        L.append(f"; @launch grid=({g},1,1) block=({b},1,1) lds={lds}")
    else:
        for n, g, b, lds in launches:
            L.append(f"; @launch kernel={n} grid=({g},1,1) block=({b},1,1) lds={lds}")
    L.append('.amdgcn_target "amdgcn-amd-amdhsa--gfx950"\n.text')
    descs = []
    for k in kernels:
        b, d = k.finish(); L.append(b); descs.append(d)
    L.append('.section .rodata,"a"')
    L += descs
    return '\n'.join(L) + '\n'

import struct
def f2u(x): return struct.unpack('<I', struct.pack('<f', x))[0]
def fl(x): return hex(f2u(x))
```

```python
from fused import *

class CLoad32(CLoad):
    def __init__(self, k, I, sc, CA):
        self.k, self.sc = k, sc
        self.C = CA; self.va = k.v.alloc(4); self.ra = k.v.alloc(4); self.so = k.s.alloc(); self.mw = k.s.alloc()
        t = k.v.alloc(2); st = k.s.alloc(); l = I['l']
        k(f"""v_and_b32 {t[0]}, 7, {l}
        v_xor_b32 {t[0]}, {t[0]}, {I['g']}
        v_lshlrev_b32 {t[0]}, 4, {t[0]}
        v_lshrrev_b32 {t[1]}, 3, {l}
        v_lshl_or_b32 {self.va[0]}, {t[1]}, 11, {t[0]}
        s_lshr_b32 {st}, {I['w']}, 1
        s_lshl_b32 {st}, {st}, 20
        s_lshl_b32 {self.so}, {I['tb']}, 15
        s_add_u32 {st}, {st}, {self.so}
        v_add_u32 {self.va[0]}, {st}, {self.va[0]}
        v_xor_b32 {self.va[1]}, 64, {self.va[0]}
        v_add_u32 {self.va[1]}, {16384-1024}, {self.va[1]}
        v_add_u32 {self.va[2]}, {(1<<19)-2048}, {self.va[0]}
        v_add_u32 {self.va[3]}, {(1<<19)-2048}, {self.va[1]}
        s_lshl_b32 {self.so}, {I['rc']}, 7
        s_lshl_b32 {self.mw}, {I['w']}, 12
        v_bfe_u32 {t[0]}, {l}, 1, 3
        v_lshrrev_b32 {t[1]}, 5, {l}
        v_xor_b32 {t[0]}, {t[0]}, {t[1]}
        v_lshlrev_b32 {t[0]}, 4, {t[0]}
        v_and_b32 {t[1]}, 31, {l}
        v_lshl_or_b32 {t[0]}, {t[1]}, 7, {t[0]}
        v_add_u32 {self.ra[0]}, {self.mw}, {t[0]}""")
        for q in range(1, 4): k(f"v_xor_b32 {self.ra[q]}, {32*q}, {self.ra[0]}")
        k.v.free(t); k.s.free(st)
        self.n = 0; self.slot = {}; self.ld = {}; self.rd = {}; self.nd = 0; self.base = 0
    def frag(self, j, kq): return self.C.q(4 * j + kq)
    def drain(self):
        k = self.k; j = self.nd; slot = self.slot[j]; base = slot & ~65535
        assert self.n >= 4 * (j + 1)
        if base != self.base:
            for q in range(4): k(f"v_xor_b32 {self.ra[q]}, {hex(base ^ self.base)}, {self.ra[q]}")
            self.base = base
        k.wait(self.ld[j])
        for q in range(4): self.rd[slot] = k(f"ds_read_b128 {self.frag(j,q)}, {self.ra[q]} offset:{slot & 65535}")
        self.nd += 1
        if self.nd == 16: k.v.free(self.ra)
        return slot

class B3m:
    D = 3
    catch = False
    def __init__(self, k, I, sh, CL):
        self.k, self.I, self.sh, self.CL = k, I, sh, CL
        self.vh = k.v.alloc(2); self.rh = k.v.alloc(4)
        self.so, self.mH = k.s.alloc(), k.s.alloc()
        t = k.v.alloc(2); st = k.s.alloc(); l = I['l']
        k(f"""s_and_b32 {st}, {I['w']}, 1
        s_mul_i32 {self.mH}, {st}, {16384 + 4096}
        s_lshl_b32 {self.so}, {I['ta']}, 19
        s_add_u32 {self.mH}, {self.mH}, {self.so}
        v_lshl_add_u32 {self.vh[0]}, {l}, 4, {self.mH}
        v_xor_b32 {self.vh[1]}, 4096, {self.vh[0]}
        s_lshr_b32 {self.so}, {I['w']}, 1
        s_add_u32 {self.so}, {self.so}, {I['rc']}
        s_and_b32 {self.so}, {self.so}, 15
        s_lshl_b32 {self.so}, {self.so}, 15
        s_lshl_b32 {self.mH}, {I['w']}, 13
        v_and_b32 {t[0]}, 3, {l}
        v_and_b32 {t[1]}, 2, {I['g']}
        v_xor_b32 {t[1]}, {t[1]}, {t[0]}
        v_lshlrev_b32 {t[0]}, 9, {t[0]}
        v_lshl_or_b32 {t[0]}, {t[1]}, 6, {t[0]}
        v_bfe_u32 {t[1]}, {l}, 2, 2
        v_lshl_or_b32 {t[0]}, {t[1]}, 4, {t[0]}
        v_and_b32 {t[1]}, 1, {I['g']}
        v_mul_u32_u24 {t[1]}, {2048 + 8}, {t[1]}
        s_lshl_b32 {st}, {st}, 13
        v_add3_u32 {self.rh[0]}, {st}, {t[0]}, {t[1]}
        v_xor_b32 {self.rh[1]}, 64, {self.rh[0]}
        v_xor_b32 {self.rh[2]}, 8, {self.rh[0]}
        v_xor_b32 {self.rh[3]}, 8, {self.rh[1]}""")
        k.v.free(t); k.s.free(st)
        self.last = {}; self.cnt = {}
    def dma(self, s, i):
        k = self.k
        if i & 3 == 0: k(f"s_add_u32 m0, {self.mH}, {(s % 4)*32768 + (i>>2)*4096}")
        self.last[s] = k(f"buffer_load_dwordx4 {self.vh[i>>2]}, {self.sh}, {self.so} offen offset:{1024*(i&3)} {SC} lds")
        self.cnt[s] = self.cnt.get(s, 0) + 1
        if i == 7: k(f"s_add_u32 {self.so}, {self.so}, {65536 + (8192 if s == 7 else 0)}\ns_and_b32 {self.so}, {self.so}, 0x7ffff")
    def alloc(self):
        self.acc = [self.k.v.allocq(32, 16), self.k.v.allocq(32, 16)]; self.fr = self.k.v.allocq(64)
    def main(self, dq, fill, pre_bar, post_bar, RD=(3, 3, 3, 3, 2, 2, 0, 0), DM=(0, 0, 0, 0, 1, 1, 1, 1)):
        k = self.k; NS = 16; fr = self.fr
        def reads(s, u):
            f = fr.q(u, 32); out = []
            for kq in range(4):
                for rb in range(2):
                    off = (s % 2) * 32768 + u * 16384 + rb * 4096 + (kq >> 1) * 256
                    for h in range(2):
                        o = 8 * kq + 4 * rb + 2 * h
                        out.append(f"ds_read_b64_tr_b16 {f[o:o+2]}, {self.rh[2*(kq&1)+h]} offset:{off}")
            return out
        pre_bar(-1)
        k.wait(self.last[0]); k("s_barrier")
        lastrd = None
        for r in reads(0, 0): lastrd = k(r)
        post_bar(-1)
        for s in range(NS):
            acc = self.acc[s >> 3]
            for u in range(2):
                f = fr.q(u, 32); rd = []
                if u == 0: rd = reads(s, 1)
                elif s + 1 < NS:
                    pre_bar(s)
                    assert self.cnt[s + 1] == 8
                    k.wait(lastrd, self.last[s + 1]); k("s_barrier")
                    rd = reads(s + 1, 0)
                k.wait(lastrd)
                order = [(kq, rb) for kq in range(4) for rb in range(2)]
                if s & 7 == 7 and u == 1: order = [x for x in order if x[1]] + [x for x in order if not x[1]]
                for q, (kq, rb) in enumerate(order):
                    d = acc.q(rb, 16)
                    zero = s & 7 == 0 and u == 0 and kq == 0 and rb == 1
                    k(f"v_mfma_f32_32x32x16_bf16 {d}, {f.q(2*kq+rb)}, {self.CL.frag(2*(s&7)+u,kq)}, {0 if zero else d}")
                    for _ in range(RD[q]):
                        if rd: lastrd = k(rd.pop(0))
                    for _ in range(DM[q] * (2 if s == 0 and self.catch else 1)):
                        if dq and dq[0][0] <= s + self.D: self.dma(*dq.pop(0))
                    if q == 6 and u == 0 and s & 1 and s < 15:
                        for x in range(4): k(f"v_xor_b32 {self.rh[x]}, 0x10000, {self.rh[x]}")
                    if q == 5 and u == 1: post_bar(s)
                    fill(s, u, q)
        assert not dq
        k.v.free(self.vh, self.rh); k.s.free(self.so, self.mH)

def xkeep32(k, I, ldsX):
    XK = k.v.allocq(16, 2); ad = k.v.alloc(); t = k.v.alloc(2); st = k.s.alloc()
    k(f"""s_and_b32 {st}, {I['w']}, 1
    s_lshl_b32 {st}, {st}, 12
    s_add_u32 {st}, {st}, {ldsX}
    v_lshrrev_b32 {t[0]}, 5, {I['l']}
    v_bfe_u32 {t[1]}, {I['l']}, 2, 2
    v_lshl_or_b32 {t[0]}, {t[0]}, 2, {t[1]}
    v_lshl_add_u32 {ad}, {t[0]}, 7, {st}
    v_and_b32 {t[1]}, 3, {I['l']}
    v_lshl_add_u32 {ad}, {t[1]}, 3, {ad}
    v_lshrrev_b32 {t[0]}, 1, {t[0]}
    v_and_b32 {t[1]}, 1, {I['g']}
    s_and_b32 {st}, {I['w']}, 2
    v_or_b32 {t[1]}, {st}, {t[1]}
    v_xor_b32 {t[0]}, {t[0]}, {t[1]}
    v_lshl_add_u32 {ad}, {t[0]}, 5, {ad}""")
    for h in range(2):
        for j in range(4): k(f"ds_read_b64_tr_b16 {XK.q(4*h+j,2)}, {ad} offset:{8192*h + 1024*j}")
    k.v.free(ad, t); k.s.free(st)
    return XK

def dsk_issue32(k, I, sd):
    Dk = k.v.alloc(2); va = k.v.alloc(); so = k.s.alloc(); st = k.s.alloc()
    k(f"""v_and_b32 {va}, 1, {I['g']}
    v_lshlrev_b32 {va}, 9, {va}
    v_lshl_or_b32 {va}, {I['n']}, 1, {va}
    s_lshl_b32 {so}, {I['tb']}, 5
    s_lshr_b32 {st}, {I['w']}, 1
    s_lshl_b32 {st}, {st}, 10
    s_add_u32 {so}, {so}, {st}
    buffer_load_short_d16_hi {Dk[0]}, {va}, {sd}, {so} offen""")
    k.v.free(va); k.s.free(so, st)
    return Dk

def xd_init32(k, XK, Dk, acc):
    for h in range(2):
        for j in range(4):
            a = acc[h].q(0, 16).q(j); x = XK.q(4 * h + j, 2)
            k(f"""v_lshlrev_b32 {a[0]}, 16, {x[0]}
            v_and_b32 {a[1]}, 0xffff0000, {x[0]}
            v_lshlrev_b32 {a[2]}, 16, {x[1]}
            v_and_b32 {a[3]}, 0xffff0000, {x[1]}
            v_pk_mul_f32 {a[0:2]}, {Dk}, {a[0:2]} op_sel_hi:[0,1]
            v_pk_mul_f32 {a[2:4]}, {Dk}, {a[2:4]} op_sel_hi:[0,1]""")
    k.v.free(XK, Dk)

def gen_G32(k, I):
    G = k.v.allocq(32); a = k.v.allocq(8); c = k.v.allocq(8)
    f, b, sel, mk = [k.v.alloc() for _ in range(4)]
    st = k.s.alloc()
    k(f"""v_bfe_i32 {f}, {I['n']}, 0, 1
    v_and_b32 {sel}, 0x02020202, {f}
    v_xor_b32 {sel}, 0x03020100, {sel}
    v_and_b32 {f}, 0x80000000, {f}
    v_bfe_i32 {mk}, {I['n']}, 1, 1
    v_and_b32 {mk}, 0x80008000, {mk}
    v_xor_b32 {mk}, {mk}, {f}
    s_and_b32 {st}, {I['w']}, 1
    s_lshl_b32 {st}, {st}, 5
    v_and_or_b32 {f}, {I['l']}, 31, {st}
    v_cvt_f32_u32 {f}, {f}
    v_mul_f32 {f}, {fl(1/128)}, {f}
    v_lshrrev_b32 {b}, 5, {I['l']}
    v_cvt_f32_u32 {b}, {b}
    v_mul_f32 {b}, 4.0, {b}
    v_mul_f32 {b}, {b}, {f}""")
    for x in range(2):
        for j in range(8): k(f"v_fmamk_f32 {a[j]}, {f}, {fl(float(16*x + 8*(j>>2) + (j&3)))}, {b}")
        for j in range(8): k(f"v_cos_f32 {c[j]}, {a[j]}")
        for j in range(8): k(f"v_sin_f32 {a[j]}, {a[j]}")
        for j in range(8): k(f"v_cvt_pk_bf16_f32 {G[8*x+j]}, {c[j]}, -{a[j]}")
        for j in range(8): k(f"v_perm_b32 {G[16+8*x+j]}, {G[8*x+j]}, {G[8*x+j]}, {sel}\nv_xor_b32 {G[16+8*x+j]}, {mk}, {G[16+8*x+j]}")
    k(f"""v_lshlrev_b32 {b}, 31, {I['n']}
    v_or_b32 {b}, 0x3f003f00, {b}
    v_cmp_gt_u32 vcc, 32, {I['l']}
    v_cndmask_b32 {G[0]}, {G[0]}, {b}, vcc""")
    k.v.free(a, c, f, b, sel, mk); k.s.free(st)
    return G

def final_addr32(k, I, ldsE, ldsY):
    A = dict(ad=k.v.alloc(), ay=k.v.alloc(), va=k.v.alloc(), so=k.s.alloc(), vg=k.v.alloc(), sg=k.s.alloc())
    t = k.v.alloc(); st = k.s.alloc(); ad, ay, va, so = A['ad'], A['ay'], A['va'], A['so']
    k(f"""s_lshl_b32 {st}, {I['w']}, 12
    s_add_u32 {st}, {st}, {ldsE}
    v_lshl_add_u32 {ad}, {I['l']}, 4, {st}
    v_lshrrev_b32 {t}, 5, {I['l']}
    v_lshlrev_b32 {ay}, 8, {t}
    v_lshlrev_b32 {va}, 18, {t}
    v_lshlrev_b32 {A['vg']}, 4, {t}
    v_bfe_u32 {t}, {I['l']}, 3, 1
    v_lshl_or_b32 {ay}, {t}, 6, {ay}
    v_and_b32 {t}, 3, {I['l']}
    v_lshl_or_b32 {ay}, {t}, 4, {ay}
    v_bfe_u32 {t}, {I['l']}, 2, 1
    v_lshl_or_b32 {ay}, {t}, 3, {ay}
    v_and_b32 {t}, 1, {I['g']}
    v_lshl_or_b32 {ay}, {t}, 12, {ay}
    v_lshl_or_b32 {va}, {t}, 10, {va}
    v_lshl_or_b32 {va}, {I['n']}, 2, {va}
    s_lshr_b32 {st}, {I['w']}, 1
    s_lshl_b32 {so}, {st}, 11
    s_lshl_b32 {st}, {st}, 13
    s_add_u32 {st}, {st}, {ldsY}
    v_add_u32 {ay}, {st}, {ay}
    s_and_b32 {st}, {I['w']}, 1
    s_lshl_b32 {A['sg']}, {st}, 9
    s_lshl_b32 {st}, {st}, 21
    s_add_u32 {so}, {so}, {st}
    s_lshl_b32 {st}, {I['ta']}, 12
    s_add_u32 {so}, {so}, {st}
    s_lshl_b32 {st}, {I['tb']}, 6
    s_add_u32 {so}, {so}, {st}
    s_lshl_b32 {st}, {I['ta']}, 11
    s_add_u32 {A['sg']}, {A['sg']}, {st}""")
    k.v.free(t); k.s.free(st)
    return A

def g_dma32(k, I, A, sg, lds):
    t = k.v.alloc(2)
    k(f"""v_lshrrev_b32 {t[0]}, 5, {I['l']}
    v_lshlrev_b32 {t[0]}, 10, {t[0]}
    v_bfe_u32 {t[1]}, {I['l']}, 3, 2
    v_lshl_or_b32 {t[0]}, {t[1]}, 7, {t[0]}
    v_and_b32 {t[1]}, 7, {I['l']}
    v_lshl_or_b32 {t[0]}, {t[1]}, 2, {t[0]}
    s_lshl_b32 m0, {I['w']}, 12
    s_add_u32 m0, m0, {lds}
    v_add_u32 {A['vg']}, m0, {A['vg']}""")
    r = k(f"buffer_load_dword {t[0]}, {sg}, {A['sg']} offen {SC} lds")
    k.v.free(t)
    return r
def g_read32(k, A, g, h):
    for j in range(4): k(f"ds_read_b128 {g.q(j)}, {A['vg']} offset:{128*h + 32*j}")

def g_issue32(k, A, sg, g, h):
    for j in range(4): k(f"buffer_load_dwordx4 {g.q(j)}, {A['vg']}, {sg}, {A['sg']} offen offset:{1024*h + 128*j} {SC}")

def y_reads32(A, Y):
    return [f"ds_read_b64_tr_b16 {Y[4*kap+2*h:4*kap+2*h+2]}, {A['ay']} offset:{512*kap + 128*h}" for kap in range(8) for h in range(2)]

def ph3_list32(G, Y, aa):
    return [f"v_mfma_f32_32x32x16_bf16 {aa}, {G.q(kap)}, {Y.q(kap)}, {aa if kap else 0}" for kap in range(8)]

def fin32(k, A, g, y, rcv, aa, so_, h, flags, scalar=False):
    va, so = A['va'], A['so']
    for x in range(0, 16, 2):
        if scalar:
            for r in (x, x + 1):
                if rcv: k(f"v_add_f32 {y[r]}, {y[r]}, {rcv[r]}")
                k(f"v_sub_f32 {aa[r]}, {aa[r]}, {y[r]}\nv_fmac_f32 {y[r]}, {g[r]}, {aa[r]}")
        else:
            if rcv: k(f"v_pk_add_f32 {y[x:x+2]}, {y[x:x+2]}, {rcv[x:x+2]}")
            k(f"""v_pk_add_f32 {aa[x:x+2]}, {aa[x:x+2]}, {y[x:x+2]} neg_lo:[0,1] neg_hi:[0,1]
            v_pk_fma_f32 {y[x:x+2]}, {g[x:x+2]}, {aa[x:x+2]}, {y[x:x+2]}""")
        for r in (x, x + 1):
            k(f"buffer_store_dword {y[r]}, {va}, {so_}, {so} offen {flags}")
            rows = 1 if r & 3 < 3 else (5 if r < 15 else 64 - 27)
            if (h, r) != (1, 15): k(f"s_add_u32 {so}, {so}, {rows << 16}")
```

```python
from fused import *
WS_FP = 0x1380000
WS_PX = 0x1400000

class CLoadS(CLoad):
    def __init__(self, k, I, scr, sci, CA):
        self.k, self.sc2 = k, (scr, sci)
        self.C = CA; self.va = k.v.alloc(4); self.ra = k.v.alloc(4); self.so = k.s.alloc(); self.mw = k.s.alloc()
        t = k.v.alloc(2); st = k.s.alloc(); l = I['l']
        k(f"""v_and_b32 {t[0]}, 7, {l}
        v_xor_b32 {t[0]}, {t[0]}, {I['g']}
        v_and_b32 {t[1]}, 4, {t[0]}
        v_lshlrev_b32 {self.va[0]}, 4, {t[1]}
        v_and_b32 {t[1]}, 1, {t[0]}
        v_lshl_or_b32 {self.va[0]}, {t[1]}, 5, {self.va[0]}
        v_and_b32 {t[1]}, 2, {t[0]}
        v_lshl_or_b32 {self.va[0]}, {t[1]}, 3, {self.va[0]}
        v_lshrrev_b32 {t[1]}, 3, {l}
        v_lshl_or_b32 {self.va[0]}, {t[1]}, 11, {self.va[0]}
        s_lshl4_add_u32 {st}, {I['w']}, {I['tb']}
        s_lshl_b32 {st}, {st}, 15
        s_lshr_b32 {self.so}, {I['tb']}, 3
        s_lshl_b32 {self.so}, {self.so}, 10
        s_add_u32 {st}, {st}, {self.so}
        v_add_u32 {self.va[0]}, {st}, {self.va[0]}
        v_xor_b32 {self.va[2]}, {1<<18}, {self.va[0]}
        v_xor_b32 {self.va[1]}, 64, {self.va[0]}
        v_xor_b32 {self.va[3]}, 64, {self.va[2]}
        v_add_u32 {self.va[1]}, {16384-1024}, {self.va[1]}
        v_add_u32 {self.va[3]}, {16384-1024}, {self.va[3]}
        s_and_b32 {self.so}, {I['ta']}, 7
        s_lshl_b32 {self.so}, {self.so}, 7
        s_lshl_b32 {self.mw}, {I['w']}, 12
        v_lshrrev_b32 {t[0]}, 1, {I['n']}
        v_xor_b32 {t[0]}, {t[0]}, {I['g']}
        v_lshlrev_b32 {t[0]}, 4, {t[0]}
        v_lshl_or_b32 {t[0]}, {I['n']}, 7, {t[0]}
        v_add_u32 {self.ra[0]}, {self.mw}, {t[0]}
        v_xor_b32 {self.ra[1]}, 64, {self.ra[0]}
        v_add_u32 {self.ra[2]}, 0x10000, {self.ra[0]}
        v_add_u32 {self.ra[3]}, 0x10000, {self.ra[1]}""")
        k.v.free(t); k.s.free(st)
        self.n = 0; self.slot = {}; self.ld = {}; self.rd = {}; self.nd = 0
    def issue1(self, slot):
        k = self.k; j, q = self.n >> 2, self.n & 3
        if q == 0:
            if slot in self.rd: k.wait(self.rd.pop(slot))
            self.slot[j] = slot
        if q & 1 == 0: k(f"s_add_u32 m0, {self.mw}, {self.slot[j] + 1024*q}")
        self.ld[j] = k(f"buffer_load_dwordx4 {self.va[q]}, {self.sc2[j&1]}, {self.so} offen offset:{1024*(q&1)} lds")
        if q == 3 and j & 1: k(f"s_add_u32 {self.so}, {self.so}, 128\ns_and_b32 {self.so}, {self.so}, 0x3ff")
        self.n += 1
        if self.n == 64: k.v.free(self.va); k.s.free(self.so, self.mw)

class B3s:
    NR = 6
    def __init__(self, k, I, sh, CL):
        self.k, self.I, self.sh, self.CL = k, I, sh, CL
        self.vh = k.v.alloc(); self.rh = k.v.alloc(4); self.so, self.mH = k.s.alloc(), k.s.alloc()
        t = k.v.alloc(2); st = k.s.alloc(); l = I['l']
        k(f"""s_lshr_b32 {st}, {I['tb']}, 3
        s_mul_i32 {self.mH}, {st}, {(1<<18) - 8192}
        s_lshl_b32 {self.so}, {I['ta']}, 19
        s_add_u32 {self.mH}, {self.mH}, {self.so}
        s_lshr_b32 {st}, {I['w']}, 1
        s_lshl1_add_u32 {st}, {st}, {I['w']}
        s_add_u32 {st}, {st}, 2
        s_lshl_b32 {st}, {st}, 12
        s_add_u32 {self.mH}, {self.mH}, {st}
        v_lshl_add_u32 {self.vh}, {l}, 4, {self.mH}
        s_and_b32 {self.so}, {I['ta']}, 7
        s_lshl_b32 {self.so}, {self.so}, 15
        s_lshl_b32 {self.mH}, {I['w']}, 12
        v_and_b32 {t[0]}, 3, {l}
        v_and_b32 {t[1]}, 2, {I['g']}
        v_xor_b32 {t[1]}, {t[1]}, {t[0]}
        v_lshlrev_b32 {t[0]}, 9, {t[0]}
        v_lshl_or_b32 {t[0]}, {t[1]}, 6, {t[0]}
        v_bfe_u32 {t[1]}, {l}, 2, 2
        v_lshl_or_b32 {t[0]}, {t[1]}, 4, {t[0]}
        v_and_b32 {t[1]}, 1, {I['g']}
        v_lshl_or_b32 {self.rh[0]}, {t[1]}, 3, {t[0]}
        v_xor_b32 {self.rh[1]}, 64, {self.rh[0]}
        v_add_u32 {self.rh[2]}, 0x10000, {self.rh[0]}
        v_add_u32 {self.rh[3]}, 0x10000, {self.rh[1]}""")
        k.v.free(t); k.s.free(st)
        self.last = {}; self.cnt = {}
    split = False
    def dma(self, s, i):
        k = self.k; I = self.I
        if self.split and s >= 8:
            if s == 8 and i == 0:
                k(f"""s_lshr_b32 m0, {I['w']}, 1
                s_lshl_b32 m0, m0, 15
                s_add_u32 {self.so}, {self.so}, m0
                s_and_b32 {self.so}, {self.so}, 0x3ffff
                s_and_b32 m0, {I['w']}, 1
                s_lshl_b32 m0, m0, 14
                v_and_b32 {self.vh}, {hex(0xffffafff)}, {self.vh}
                v_or_b32 {self.vh}, m0, {self.vh}""")
            if i == 0: k(f"s_add_u32 m0, {self.mH}, {(s % self.NR)*16384}")
            self.last[s] = k(f"buffer_load_dwordx4 {self.vh}, {self.sh}, {self.so} offen offset:{1024*i} {SC} lds")
            self.cnt[s] = self.cnt.get(s, 0) + 1
            if i == 3:
                k(f"s_add_u32 {self.so}, {self.so}, 65536\ns_and_b32 {self.so}, {self.so}, 0x3ffff")
                if s == 11: k(f"v_xor_b32 {self.vh}, 4096, {self.vh}")
            return
        if i == 0: k(f"s_add_u32 m0, {self.mH}, {(s % self.NR)*16384}")
        self.last[s] = k(f"buffer_load_dwordx4 {self.vh}, {self.sh}, {self.so} offen offset:{1024*i} {SC} lds")
        self.cnt[s] = self.cnt.get(s, 0) + 1
        if i == 3:
            k(f"s_add_u32 {self.so}, {self.so}, 32768\ns_and_b32 {self.so}, {self.so}, 0x3ffff")
            if s == 7: k(f"v_xor_b32 {self.vh}, 8192, {self.vh}")
    def alloc(self):
        self.acc = [self.k.v.allocq(32), self.k.v.allocq(32)]; self.fr = self.k.v.allocq(64)
    def main(self, vm, fill, pre_bar, post_bar):
        k = self.k; NS = 16; fr = self.fr
        def reads(s, u):
            f = fr.q(u, 32); out = []
            for kk in range(2):
                for ib in range(4):
                    off = (s % self.NR) * 16384 + u * 8192 + ib * 2048 + kk * 256; hi = 2 if off >= 65536 else 0
                    for h in range(2):
                        o = 16 * kk + 4 * ib + 2 * h
                        out.append(f"ds_read_b64_tr_b16 {f[o:o+2]}, {self.rh[hi+h]} offset:{off & 65535}")
            return out
        pre_bar(-1)
        k.wait(self.last[0]); k("s_barrier")
        lastrd = None
        for r in reads(0, 0): lastrd = k(r)
        post_bar(-1)
        for s in range(NS):
            acc = self.acc[s >> 3]
            for u in range(2):
                f = fr.q(u, 32); rd = []
                if u == 0: rd = reads(s, 1)
                elif s + 1 < NS:
                    pre_bar(s)
                    assert self.cnt[s + 1] == 4
                    k.wait(lastrd, self.last[s + 1]); k("s_barrier")
                    rd = reads(s + 1, 0)
                k.wait(lastrd)
                assert self.CL.nd > 2 * (s & 7) + u, (s, u, self.CL.nd)
                order = [(kk, ib, mm ^ (ib & 1)) for kk in range(2) for ib in range(4) for mm in range(2)]
                for q, (kk, ib, mm) in enumerate(order):
                    if self.split and s >= 8:
                        d = acc.q(4 * mm + 2 * ((s - 8) >> 2) + (ib & 1)); unit = 4 * (s & 3) + 2 * u + (ib >> 1)
                        zero = s & 3 == 0 and u == 0 and kk == 0 and mm == 1 and ib < 2
                    else:
                        d = acc.q(4 * mm + ib); unit = 2 * (s & 7) + u
                        zero = s & 7 == 0 and u == 0 and kk == 0 and mm == 1
                    k(f"v_mfma_f32_16x16x32_bf16 {d}, {f.q(4*kk+ib)}, {self.CL.frag(unit,kk,mm)}, {0 if zero else d}")
                    if rd and q < 8:
                        k(rd[2 * q]); lastrd = k(rd[2 * q + 1])
                    if q >= 8 and q % 2 == 0: vm(s, u, (q - 8) // 2)
                    if q == 15 and u == 1: post_bar(s)
                    fill(s, u, q)
        k.v.free(self.vh, self.rh); k.s.free(self.so, self.mH)

def xkeepS(k, I, ldsX):
    XK = k.v.allocq(16, 2); ad = k.v.alloc(2); t = k.v.alloc(2); st = k.s.alloc()
    k(f"""s_lshr_b32 {st}, {I['tb']}, 3
    s_lshl_b32 {st}, {st}, 13
    s_add_u32 {st}, {st}, {ldsX}
    v_lshrrev_b32 {t[0]}, 2, {I['l']}
    v_lshl_add_u32 {t[0]}, {t[0]}, 7, {st}
    v_and_b32 {t[1]}, 3, {I['l']}
    v_lshl_add_u32 {t[0]}, {t[1]}, 3, {t[0]}
    v_bfe_u32 {t[1]}, {I['l']}, 3, 2
    v_xor_b32 {t[1]}, {I['w']}, {t[1]}
    v_lshl_add_u32 {ad[1]}, {t[1]}, 5, {t[0]}
    v_xor_b32 {ad[0]}, 8192, {ad[1]}""")
    for p in range(2):
        for ib in range(4): k(f"ds_read_b64_tr_b16 {XK.q(4*p+ib,2)}, {ad[p]} offset:{2048*ib}")
    k.v.free(ad, t); k.s.free(st)
    return XK

def dsk_issueS(k, I, sd):
    Dk = k.v.alloc(2); va = k.v.alloc(); so = k.s.alloc()
    k(f"""v_lshlrev_b32 {va}, 1, {I['n']}
    s_lshl4_add_u32 {so}, {I['w']}, {I['tb']}
    s_lshl_b32 {so}, {so}, 5
    buffer_load_short_d16_hi {Dk[0]}, {va}, {sd}, {so} offen""")
    k.v.free(va); k.s.free(so)
    return Dk

def xd_initS(k, XK, Dk, acc):
    for p in range(2):
        for ib in range(4):
            a = acc[p].q(ib); x = XK.q(4 * p + ib, 2)
            k(f"""v_lshlrev_b32 {a[0]}, 16, {x[0]}
            v_and_b32 {a[1]}, 0xffff0000, {x[0]}
            v_lshlrev_b32 {a[2]}, 16, {x[1]}
            v_and_b32 {a[3]}, 0xffff0000, {x[1]}
            v_pk_mul_f32 {a[0:2]}, {Dk}, {a[0:2]} op_sel_hi:[0,1]
            v_pk_mul_f32 {a[2:4]}, {Dk}, {a[2:4]} op_sel_hi:[0,1]""")
    k.v.free(XK, Dk)

def gen_GS(k, I):
    G = k.v.allocq(32); a = k.v.allocq(8); c = k.v.allocq(8)
    f, b, sb = [k.v.alloc() for _ in range(3)]; mk = k.v.alloc(2); st = k.s.alloc()
    k(f"""s_and_b32 {st}, {I['tb']}, 8
    s_lshl_b32 {st}, {st}, 2
    v_lshrrev_b32 {f}, 1, {I['g']}
    v_lshl_add_u32 {f}, {f}, 3, {st}
    v_and_b32 {b}, 1, {I['g']}
    v_lshl_add_u32 {f}, {b}, 1, {f}
    v_cmp_eq_u32 vcc, 0, {f}
    v_cvt_f32_u32 {sb}, {f}
    v_bfe_i32 {mk[0]}, {I['g']}, 0, 1
    v_and_b32 {mk[0]}, 0x80008000, {mk[0]}
    v_xor_b32 {mk[1]}, 0x80000000, {mk[0]}
    s_lshl_b32 {st}, {st}, 1
    s_xor_b32 {st}, {st}, 64
    v_add_u32 {f}, {st}, {I['n']}
    v_cvt_f32_u32 {f}, {f}
    v_mul_f32 {f}, {fl(1/128)}, {f}""")
    for ib in range(2):
        if ib: k(f"v_add_f32 {f}, {fl(16/128)}, {f}")
        k(f"v_mul_f32 {b}, {f}, {sb}")
        for j in range(8): k(f"v_fmamk_f32 {a[j]}, {f}, {fl(float(16*(j>>2) + 4*((j>>1)&1) + (j&1)))}, {b}")
        for j in range(8): k(f"v_cos_f32 {c[j]}, {a[j]}")
        for j in range(8): k(f"v_sin_f32 {a[j]}, {a[j]}")
        k(f"v_lshlrev_b32 {b}, 31, {I['n']}\nv_or_b32 {b}, 0x3f003f00, {b}")
        for j in range(8): k(f"v_cvt_pk_bf16_f32 {G[8*ib+j]}, {c[j]}, -{a[j]}")
        k(f"v_cndmask_b32 {G[8*ib]}, {G[8*ib]}, {b}, vcc")
        for j in range(8):
            s_, d_ = G[8 * ib + j], G[16 + 8 * ib + j]
            if j & 1: k(f"v_alignbit_b32 {d_}, {s_}, {s_}, 16\nv_xor_b32 {d_}, {mk[1]}, {d_}")
            else: k(f"v_xor_b32 {d_}, {mk[0]}, {s_}")
    k.v.free(a, c, f, b, sb, mk); k.s.free(st)
    return G

def addrS(k, I, ldsY):
    A = dict(ay=k.v.alloc(), va=k.v.alloc(2), so=k.s.alloc(), l16=k.v.alloc(), vg=k.v.alloc(), sg=k.s.alloc(), px=k.s.alloc(), sv=k.s.alloc())
    t = k.v.alloc(); st = k.s.alloc(); ay, va, so = A['ay'], A['va'], A['so']
    k(f"""v_lshlrev_b32 {A['l16']}, 4, {I['l']}
    v_lshrrev_b32 {t}, 5, {I['l']}
    v_lshlrev_b32 {ay}, 9, {t}
    v_lshlrev_b32 {A['vg']}, 7, {t}
    v_bfe_u32 {t}, {I['l']}, 3, 2
    v_lshl_or_b32 {ay}, {t}, 6, {ay}
    v_and_b32 {t}, 3, {I['l']}
    v_lshl_or_b32 {ay}, {t}, 4, {ay}
    v_and_b32 {t}, 4, {I['l']}
    v_lshl_or_b32 {ay}, {t}, 1, {ay}
    s_lshl_b32 {st}, {I['w']}, 12
    s_add_u32 {st}, {st}, {ldsY}
    v_add_u32 {ay}, {st}, {ay}
    v_and_or_b32 {A['vg']}, {I['l']}, 16, {A['vg']}
    s_lshl_b32 {st}, {I['tb']}, 6
    v_lshl_add_u32 {va[0]}, {I['n']}, 2, {st}
    v_lshl_or_b32 {va[0]}, {I['g']}, 18, {va[0]}
    v_xor_b32 {va[1]}, 512, {va[0]}
    s_lshr_b32 {st}, {I['tb']}, 3
    s_lshl_b32 {so}, {st}, 10
    s_add_u32 {so}, {so}, {I['ta']}
    s_lshl2_add_u32 {so}, {so}, {I['w']}
    s_lshl_b32 {so}, {so}, 10
    s_xor_b32 {A['sg']}, {st}, 1
    s_lshl1_add_u32 {A['sg']}, {I['ta']}, {A['sg']}
    s_lshl_b32 {A['sg']}, {A['sg']}, 10
    s_lshl4_add_u32 {A['px']}, {I['ta']}, {I['tb']}
    s_and_b32 {A['sv']}, {I['w']}, 2
    s_lshl_b32 {A['sv']}, {A['sv']}, 2
    s_xor_b32 {A['sv']}, {A['sv']}, {A['px']}
    s_lshl1_add_u32 {A['sv']}, {A['sv']}, {st}
    s_and_b32 {st}, {I['w']}, 1
    s_lshl1_add_u32 {A['sv']}, {A['sv']}, {st}
    s_lshl_b32 {A['sv']}, {A['sv']}, 12
    s_lshl2_add_u32 {A['px']}, {A['px']}, {I['w']}
    s_lshl_b32 {A['px']}, {A['px']}, 13""")
    assert V2_STR == 16384
    k.v.free(t); k.s.free(st)
    return A

def y_readsS(A, Y):
    return [f"ds_read_b64_tr_b16 {Y[4*x+2*h:4*x+2*h+2]}, {A['ay']} offset:{1024*x + 256*h}" for x in range(4) for h in range(2)]

def ph3_listS(G, Y, aa):
    return [f"v_mfma_f32_16x16x32_bf16 {aa.q(4*mm+ib)}, {G.q(2*ib+kap)}, {Y.q(2*mm+kap)}, {aa.q(4*mm+ib) if kap else 0}"
            for kap in range(2) for ib in range(4) for mm in range(2)]
```

```python
from asmlib import *
NAME = "gated_mix__spectral_gfnet__ssm_conv_s5__prompt"
KA = dict(x=0, wr=8, wi=16, bx=24, lre=32, lim=40, bre=48, bim=56, cre=64, cim=72, ldt=80, dsk=88, gw=96, out=104, dbg=112, ws=120)
SZ = dict(x=4194304, wr=2048*513*2, wi=2048*513*2, lre=2048, lim=2048, bre=2097152, bim=2097152, cre=2097152, cim=2097152,
          ldt=2048, dsk=2048, gw=2048, out=8388608, dbg=256)
V1_STR = 16384
V2_STR = 16384
WS_V1 = 0
WS_V2 = 0x0500000
WS_H  = 0x0A00000
WS_G  = 0x1300000
WS_E  = 0x1310000
WS_F  = 0x1360000
WS_W  = 0x1400000
WS_END = 0x1d00000
WS_PROF = 0x2000000
import os
PROF = int(os.environ.get("PROF", "0"))

DIAG = os.environ.get("DIAG", "")
DBGP = os.environ.get("DBGP", "")
PROFSEL = [x for x in os.environ.get("PROFSEL", "").split(",") if x]
class Prof:
    def __init__(self, k, kid):
        self.k, self.kid, self.n, self.names = k, kid, 0, []
        if DIAG or DBGP:
            self.r = k.s.alloc(2); self.t0 = k.s.alloc(); self.ta = k.s.alloc(); self.tb = k.s.alloc(); self.slots = k.v.alloc()
            k(f"s_memrealtime {self.r}\ns_mov_b32 {self.t0}, {self.r[0]}\ns_mov_b32 {self.ta}, {self.r[0]}\ns_mov_b32 {self.tb}, {self.r[0]}\nv_mov_b32 {self.slots}, 0")
            return
        if not PROF: return
        self.r = k.s.alloc(2); self.slots = k.v.alloc()
        self.r2 = k.s.alloc(2)
        self.r0 = k.s.alloc(4)
        k(f"v_mov_b32 {self.slots}, 0\ns_memtime {self.r0[0:2]}\ns_memrealtime {self.r0[2:4]}")
        self.names.append("start"); self.n = 1
    def __call__(self, name):
        k = self.k
        k(f"; @@ {name}")
        if DIAG:
            a, b = DIAG.split(":")[:2]
            if name == a: k(f"s_memrealtime {self.r}\ns_mov_b32 {self.ta}, {self.r[0]}")
            if name == b: k(f"s_memrealtime {self.r}\ns_mov_b32 {self.tb}, {self.r[0]}")
            return
        if DBGP:
            l = DBGP.split(",")
            if name in l: k(f"s_memrealtime {self.r}\ns_sub_u32 {self.ta}, {self.r[0]}, {self.t0}\nv_writelane_b32 {self.slots}, {self.ta}, {l.index(name)+1}")
            return
        if not PROF: return
        if self.r0 and name == "xi":
            k(f"v_writelane_b32 {self.slots}, {self.r0[0]}, 0\nv_writelane_b32 {self.slots}, {self.r0[2]}, 32"); k.s.free(self.r0); self.r0 = None
        if PROFSEL and name not in PROFSEL and name not in ("start", "end"): return
        if self.r0:
            k(f"v_writelane_b32 {self.slots}, {self.r0[0]}, 0\nv_writelane_b32 {self.slots}, {self.r0[2]}, 32"); k.s.free(self.r0); self.r0 = None
        k(f"s_memtime {self.r}\ns_memrealtime {self.r2}\nv_writelane_b32 {self.slots}, {self.r[0]}, {self.n}\nv_writelane_b32 {self.slots}, {self.r2[0]}, {self.n+32}")
        self.names.append(name); self.n += 1
        assert self.n <= 32
    def done(self):
        k = self.k
        if DIAG:
            k("s_waitcnt vmcnt(0)"); self("end")
            sc, base = DIAG.split(":")[2:4]
            lp = k.lab('dg')
            if os.environ.get("DIAGWG"): k(f"s_cmp_lg_u32 s2, {os.environ['DIAGWG']}\ns_cbranch_scc1 {k.name}_end")
            k(f"""s_sub_u32 {self.tb}, {self.tb}, {self.ta}
            s_mul_i32 {self.tb}, {self.tb}, {sc}
            s_add_u32 {self.tb}, {self.tb}, {int(base)*100}
            s_min_u32 {self.tb}, {self.tb}, 100000
            {lp}:
            s_memrealtime {self.r}
            s_sub_u32 {self.ta}, {self.r[0]}, {self.t0}
            s_cmp_lt_u32 {self.ta}, {self.tb}
            s_cbranch_scc1 {lp}""")
            return
        if DBGP:
            k("s_waitcnt vmcnt(0)"); self("end")
            p = k.s.alloc(2); k(f"s_load_dwordx2 {p}, s[0:1], {KA['dbg']}")
            s = srd(k, p, 64); va = k.v.alloc()
            k(f"v_lshlrev_b32 {va}, 2, v0\ns_cmp_lg_u32 s2, {os.environ.get('DBGWG', '37')}")
            with k.skip_if("s_cbranch_scc1"):
                k(f"s_mov_b64 exec, -2\nbuffer_store_dword {self.slots}, {va}, {s}, 0 offen")
            return
        if not PROF: return
        k("s_waitcnt vmcnt(0)")
        self("end")
        self.ws = self.r; k(f"s_load_dwordx2 {self.ws}, s[0:1], {KA['ws']}")
        s = srd(k, self.ws, 262144, WS_PROF + self.kid * 262144)
        va = k.v.alloc(); t = k.v.alloc(); so = k.s.alloc()
        k(f"""v_lshlrev_b32 {va}, 2, v0
        s_lshl_b32 {so}, s2, 10
        buffer_store_dword {self.slots}, {va}, {s}, {so} offen""")
        k.profnames = self.names

def prologue(k, names):
    k("s_cmp_ge_u32 s2, 256")
    k(f"s_cbranch_scc1 {k.name}_end")
    P = {}
    for n in names:
        P[n] = k.s.alloc(2)
        k(f"s_load_dwordx2 {P[n]}, s[0:1], {KA[n]}")
    return P

def srd(k, ptr, size, off=0, soff=None):
    r = k.s.alloc(4)
    if off or soff is not None:
        if off and soff is not None:
            k(f"s_add_u32 {r[2]}, {soff}, {off}")
            k(f"s_add_u32 {r[0]}, {ptr[0]}, {r[2]}")
        else:
            k(f"s_add_u32 {r[0]}, {ptr[0]}, {off if off else soff}")
        k(f"s_addc_u32 {r[1]}, {ptr[1]}, 0")
    else:
        k(f"s_mov_b32 {r[0]}, {ptr[0]}\ns_mov_b32 {r[1]}, {ptr[1]}")
    k(f"s_mov_b32 {r[2]}, {size}\ns_mov_b32 {r[3]}, 0x20000")
    return r

def ids(k, map8=0):
    I = {}
    t = k.v.alloc()
    I['w'] = k.s.alloc()
    k(f"v_lshrrev_b32 {t}, 6, v0\nv_readfirstlane_b32 {I['w']}, {t}")
    k.v.free(t)
    I['l'] = k.v.alloc(); I['n'] = k.v.alloc(); I['g'] = k.v.alloc()
    k(f"v_and_b32 {I['l']}, 63, v0\nv_and_b32 {I['n']}, 15, v0\nv_bfe_u32 {I['g']}, v0, 4, 2")
    xcd, idx = k.s.alloc(), k.s.alloc()
    I['ta'], I['tb'] = k.s.alloc(), k.s.alloc()
    I['slot'], I['k1p'] = k.s.alloc(), k.s.alloc()
    k(f"""s_and_b32 {xcd}, s2, 7
    s_lshr_b32 {idx}, s2, 3
    s_and_b32 {I['k1p']}, {idx}, 3
    s_lshr_b32 {idx}, {idx}, 2
    s_lshl_b32 {I['slot']}, {xcd}, 3
    s_add_u32 {I['slot']}, {I['slot']}, {idx}
    s_and_b32 {I['ta']}, {xcd}, 3
    s_lshl_b32 {I['ta']}, {I['ta']}, 2
    s_add_u32 {I['ta']}, {I['ta']}, {I['k1p']}
    s_lshr_b32 {I['tb']}, {xcd}, 2
    s_lshl_b32 {I['tb']}, {I['tb']}, 3
    s_add_u32 {I['tb']}, {I['tb']}, {idx}""")
    I['ca'], I['cb'] = I['ta'], I['tb']
    if map8:
        I['ta'], I['tb'] = k.s.alloc(), k.s.alloc()
        k(f"""s_and_b32 {I['ta']}, {xcd}, 1
        s_lshl_b32 {I['ta']}, {I['ta']}, 3
        s_add_u32 {I['ta']}, {I['ta']}, {idx}
        s_lshr_b32 {I['tb']}, {xcd}, 1
        s_lshl_b32 {I['tb']}, {I['tb']}, 2
        s_add_u32 {I['tb']}, {I['tb']}, {I['k1p']}""")
    k.s.free(xcd, idx)
    return I

def end(k):
    k(f"{k.name}_end:\ns_endpgm")

def H_POS(iq, kc):
    if os.environ.get("HOLD"): return (((kc >> 2) ^ ((iq & 1) | ((iq & 2) << 1))) << 2) | (kc & 3)
    return (kc >> 5) * 32 + (((kc & 15) ^ ((iq & 3) << 2)) << 1) + ((kc >> 4) & 1)

def srd_sel(k, I, p0, p1, size):
    r = k.s.alloc(4)
    k(f"""s_bitcmp1_b32 {I['w']}, 0
    s_cselect_b32 {r[0]}, {p1[0]}, {p0[0]}
    s_cselect_b32 {r[1]}, {p1[1]}, {p0[1]}
    s_mov_b32 {r[2]}, {size}
    s_mov_b32 {r[3]}, 0x20000""")
    return r
def header():
    return "".join(l for l in open(os.path.join(os.path.dirname(os.path.abspath(__file__)), '..', NAME + '.s.ref')) if l.startswith(';') and '@launch' not in l and 'Override' not in l and 'grid=ceil' not in l)
```

```python
import sys, json
from fft import *
from ssm import *
from g2 import y_stage, v2_issue
SC = "sc1"
OUTF = os.environ.get("OUTF", "")

def code_prefetch(k, lo, hi):
    r = k.s.alloc(2); so = k.s.alloc(); va = k.v.alloc(2)
    per = -(-(hi - lo) // (32 * 128))
    lab = k.lab('pc')
    k(f"""s_getpc_b64 {r}
    {lab}:
    s_lshr_b32 {so}, s2, 3
    s_mul_i32 {so}, {so}, {per*128}
    s_add_u32 {so}, {so}, {lo}
    v_min_u32 {va[0]}, {per-1}, v0
    v_lshl_add_u32 {va[0]}, {va[0]}, 7, {so}
    v_min_u32 {va[0]}, {k.name}_end-{lab}, {va[0]}
    v_mov_b32 {va[1]}, {r[1]}
    v_add_co_u32 {va[0]}, vcc, {r[0]}, {va[0]}
    v_addc_co_u32 {va[1]}, vcc, 0, {va[1]}, vcc""")
    k.s.free(r, so)
    return va

class Poll:
    def __init__(self, k, srd_, va, n, want, off=0, oobok=False, sleep=5, mask=None):
        self.oobok = oobok; self.sleep = sleep; self.mask = mask
        self.k, self.srd, self.va, self.n, self.want, self.off = k, srd_, va, n, want, off
        self.d = k.v.alloc(n)
    def issue(self):
        x = {1: '', 4: 'x4'}[self.n]
        if self.mask: self.k(f"s_mov_b64 exec, {hex(self.mask)}")
        r = self.k(f"buffer_load_dword{x} {self.d}, {self.va}, {self.srd}, {self.off} offen sc1")
        if self.mask: self.k("s_mov_b64 exec, -1")
        return r
    def _check(self):
        k, d = self.k, self.d
        if self.n == 4: k(f"v_min_u32 {d[0]}, {d[0]}, {d[1]}\nv_min3_u32 {d[0]}, {d[0]}, {d[2]}, {d[3]}")
        k(f"v_cmp_ne_u32 vcc, {self.want}, {d[0]}")
        if self.mask: k(f"s_and_b64 vcc, vcc, {hex(self.mask)}")
    def finish(self, maxspin=1 << 20):
        k = self.k
        self._check()
        with k.skip_if("s_cbranch_vccz"):
            cnt = k.s.alloc(); lp = k.lab('poll'); out = k.lab('pollout')
            k(f"s_mov_b32 {cnt}, 0\n{lp}:\ns_sleep {self.sleep}")
            self.issue(); k("s_waitcnt vmcnt(0)")
            self._check()
            k(f"s_cbranch_vccz {out}\ns_add_u32 {cnt}, {cnt}, 1\ns_cmp_lt_u32 {cnt}, {maxspin}\ns_cbranch_scc1 {lp}\n{out}:")
            k.s.free(cnt)
        k.v.free(self.d)

def wave0_store(k, I, text, mask=1):
    k(f"s_cmp_lg_u32 {I['w']}, 0")
    with k.skip_if("s_cbranch_scc1"):
        k(f"s_mov_b64 exec, {mask}"); k(text); k("s_mov_b64 exec, -1")

def ph1f(k, I, F, lds_off, sv1, hook):
    ad = k.v.alloc(4); t = k.v.alloc(); t2 = k.v.alloc()
    k(f"""v_bfe_u32 {t}, {I['l']}, 2, 3
    v_lshrrev_b32 {t2}, 5, {I['l']}
    v_lshl_or_b32 {t}, {t2}, 4, {t}
    v_lshlrev_b32 {t}, 7, {t}
    v_and_b32 {t2}, 3, {I['l']}
    v_lshl_or_b32 {t}, {t2}, 3, {t}
    v_add_u32 {t}, {lds_off}, {t}
    v_bfe_u32 {t2}, {I['l']}, 3, 2""")
    for m in range(4):
        k(f"v_xor_b32 {ad[m]}, {m}, {t2}\nv_lshl_add_u32 {ad[m]}, {ad[m]}, 5, {t}")
    acc = k.v.allocq(32); fr = k.v.allocq(48)
    hook('bar')
    def rd(m):
        for kap in range(4):
            for h in range(2):
                o = 16 * fs[m] + 4 * kap + 2 * h
                k(f"ds_read_b64_tr_b16 {fr[o:o+2]}, {ad[m]} offset:{kap*4096+h*1024}")
    fs = {0: 0, 2: 1, 1: 2, 3: 0}
    rd(0); rd(2)
    for mi, m in enumerate((0, 2, 1, 3)):
        if mi < 2: rd((1, 3)[mi])
        for kap in range(4):
            for c in range(2):
                d = acc.q(2 * m + c)
                k(f"v_mfma_f32_16x16x32_bf16 {d}, {F.q(4*c+kap)}, {fr.q(4*fs[m]+kap)}, {d if kap else 0}")
            if kap & 1: hook('t')
    A = lambda c: fr.q(4 + c); B = lambda c: fr.q(8 + c); C = lambda c: fr.q(6 + c); Dd = lambda c: fr.q(10 + c)
    z = lambda m, c: acc.q(2 * m + c)
    for c in range(2):
        for h in (0, 2):
            s = slice(h, h + 2)
            pk(k, '+', A(c)[s], z(0, c)[s], z(2, c)[s]); pk(k, '-', C(c)[s], z(0, c)[s], z(2, c)[s])
        hook('t')
    for c in range(2):
        for h in (0, 2):
            s = slice(h, h + 2)
            pk(k, '+', B(c)[s], z(1, c)[s], z(3, c)[s]); pk(k, '-', Dd(c)[s], z(1, c)[s], z(3, c)[s])
        hook('t')
    for h in (0, 2):
        s = slice(h, h + 2)
        for c in range(2):
            pk(k, '+', z(0, c)[s], A(c)[s], B(c)[s]); pk(k, '-', z(2, c)[s], A(c)[s], B(c)[s])
        hook('t')
        pk(k, '+', z(1, 0)[s], C(0)[s], Dd(1)[s]); pk(k, '-', z(1, 1)[s], C(1)[s], Dd(0)[s])
        pk(k, '-', z(3, 0)[s], C(0)[s], Dd(1)[s]); pk(k, '+', z(3, 1)[s], C(1)[s], Dd(0)[s])
        hook('t')
    k(f"""v_cmp_gt_u32 vcc, 16, v0
    v_cndmask_b32 {z(1,0)[0]}, {z(1,0)[0]}, {C(0)[0]}, vcc
    v_cndmask_b32 {z(1,1)[0]}, {z(1,1)[0]}, -{Dd(0)[0]}, vcc
    v_cndmask_b32 {z(3,0)[0]}, {z(3,0)[0]}, {C(1)[0]}, vcc
    v_cndmask_b32 {z(3,1)[0]}, {z(3,1)[0]}, -{Dd(1)[0]}, vcc""")
    O = fr[0:16]; fr = fr[16:48]
    for r in range(4):
        for kp in range(4): k(f"v_cvt_pk_bf16_f32 {O[4*r+kp]}, {z(kp,0)[r]}, {z(kp,1)[r]}")
    if I.get('tag'):
        for j in range(16): k(f"v_and_b32 {O[j]}, -2, {O[j]}")
    so = k.s.alloc(); s2_ = k.s.alloc()
    k(f"""s_mov_b32 {so}, {16*V1_STR}
    v_mul_lo_u32 {t}, {I['g']}, {so}
    v_lshl_add_u32 {t}, {I['n']}, 2, {t}
    s_mul_i32 {so}, {I['w']}, {64*V1_STR}
    s_lshl_b32 {s2_}, {I['ta']}, 10
    s_add_u32 {so}, {so}, {s2_}
    s_lshl_b32 {s2_}, {I['tb']}, 6
    s_add_u32 {so}, {so}, {s2_}""")
    k.v.free(ad, t2, acc, fr); k.s.free(s2_)
    return O, t, so

def ph1_store(k, O, va, so, sv1):
    last = None
    for j in range(16):
        last = k(f"buffer_store_dword {O[j]}, {va}, {sv1}, {so} offen {SC}")
        if j < 15: k(f"s_add_u32 {so}, {so}, {V1_STR}")
    k.v.free(O, va); k.s.free(so)
    return last

BIG = 0x7f000000
def wpre_issue(k, I, swr, swi, second, fl_=''):
    Wp = dict(r=k.v.allocq(8), i=k.v.allocq(8), a=k.v.alloc(2), dst=k.s.alloc(4))
    col, t, ad = k.v.alloc(), k.v.alloc(), k.v.alloc(); r0, r1, a = k.s.alloc(), k.s.alloc(), k.s.alloc()
    dst = Wp['dst']
    k(f"""s_lshl_b32 {a}, {I['k1p']}, 2
    s_add_u32 {a}, {a}, {I['w']}
    s_lshl_b32 {r0}, {a}, 7
    s_add_u32 {r0}, {r0}, {64 if second else I['slot']}
    s_sub_u32 {r1}, 2048, {r0}
    s_and_b32 {r1}, {r1}, 2047
    s_mul_i32 {r0}, {r0}, 1026
    s_mul_i32 {r1}, {r1}, 1026
    v_lshlrev_b32 {col}, 9, {I['g']}
    v_lshl_add_u32 {col}, {I['n']}, 3, {col}
    v_add_u32 {ad}, {r0}, {col}
    v_sub_u32 {t}, {r1}, {col}
    v_add_u32 {t}, {2*829}, {t}
    v_cmp_lt_u32 vcc, 1, {I['g']}
    v_cndmask_b32 {ad}, {ad}, {t}, vcc""")
    for r in range(4):
        k(f"buffer_load_dwordx2 {Wp['r'].q(r,2)}, {ad}, {swr}, 0 offen offset:{128*r} {fl_}")
        k(f"buffer_load_dwordx2 {Wp['i'].q(r,2)}, {ad}, {swi}, 0 offen offset:{128*r} {fl_}")
    k(f"""s_add_u32 {r0}, {r0}, 1024
    v_mov_b32 {t}, {r1}
    v_mov_b32 {col}, {r0}
    v_cndmask_b32 {t}, {t}, {col}, vcc
    buffer_load_ushort {Wp['a'][0]}, {t}, {swr}, 0 offen
    buffer_load_ushort {Wp['a'][1]}, {t}, {swi}, 0 offen""")
    if not second:
        k(f"""s_lshl_b32 {dst[0]}, {I['slot']}, 16
        s_lshl_b32 {r0}, {a}, 10
        s_add_u32 {dst[0]}, {dst[0]}, {r0}
        s_add_u32 {dst[1]}, {dst[0]}, 16384
        s_add_u32 {dst[2]}, {dst[0]}, 32768
        s_add_u32 {dst[3]}, {dst[0]}, 49152
        s_cmp_lg_u32 {I['slot']}, 0""")
        with k.skip_if("s_cbranch_scc1"):
            k(f"""s_mov_b32 {dst[3]}, {BIG}
            s_cmp_gt_u32 {a}, 8
            s_cselect_b32 {dst[0]}, {BIG}, {dst[0]}
            s_cselect_b32 {dst[2]}, {BIG}, {dst[2]}
            s_cmp_eq_u32 {a}, 8
            s_cselect_b32 {dst[0]}, {256*16384}, {dst[0]}
            s_cselect_b32 {dst[2]}, {256*16384+1024}, {dst[2]}""")
    else:
        k(f"""s_lshl_b32 {r0}, {a}, 10
        s_add_u32 {dst[0]}, {r0}, 8192
        s_add_u32 {dst[1]}, {r0}, 49152
        s_add_u32 {dst[2]}, {r0}, {32768+8192}
        s_mov_b32 {dst[3]}, {BIG}
        s_cmp_gt_u32 {a}, 7
        s_cselect_b32 {dst[0]}, {BIG}, {dst[0]}
        s_cselect_b32 {dst[2]}, {BIG}, {dst[2]}""")
    k.v.free(col, t, ad); k.s.free(r0, r1, a)
    return Wp

def wpre_compute(k, I, Wp, sw):
    O = k.v.allocq(16); sel = k.v.alloc(2); t = k.v.alloc(3); va = k.v.alloc()
    R_, I_, A = Wp['r'], Wp['i'], Wp['a']
    k(f"v_mov_b32 {sel[0]}, 0x05040100\nv_mov_b32 {sel[1]}, 0x07060302")
    k(f"v_lshlrev_b32 {A[0]}, 16, {A[0]}\nv_lshlrev_b32 {A[1]}, 16, {A[1]}\nv_xor_b32 {A[1]}, 0x80000000, {A[1]}")
    k("s_mov_b32 exec_lo, 0")
    k(f"v_swap_b32 {sel[0]}, {sel[1]}\nv_xor_b32 {A[1]}, 0x80000000, {A[1]}")
    for r in range(4):
        k(f"""v_swap_b32 {R_[2*r]}, {R_[2*r+1]}
        v_swap_b32 {I_[2*r]}, {I_[2*r+1]}
        v_xor_b32 {I_[2*r]}, 0x80008000, {I_[2*r]}
        v_xor_b32 {I_[2*r+1]}, 0x80008000, {I_[2*r+1]}""")
    k("s_mov_b64 exec, -1")
    for kk in range(4):
        for r in range(4):
            k(f"v_perm_b32 {O[4*kk+r]}, {I_[2*r+(kk>>1)]}, {R_[2*r+(kk>>1)]}, {sel[kk&1]}")
    k(f"""v_cmp_lt_u32 vcc, 1, {I['g']}
    v_cndmask_b32 {t[0]}, {O[0]}, {O[3]}, vcc
    v_lshlrev_b32 {t[1]}, 16, {t[0]}
    v_and_b32 {t[2]}, 0xffff0000, {t[0]}
    v_add_f32 {t[1]}, {t[1]}, {A[0]}
    v_add_f32 {t[2]}, {t[2]}, {A[1]}
    v_mul_f32 {t[1]}, 0.5, {t[1]}
    v_mul_f32 {t[2]}, 0.5, {t[2]}
    v_cvt_pk_bf16_f32 {t[0]}, {t[1]}, {t[2]}
    v_cmp_eq_u32 vcc, 0, {I['l']}
    v_cndmask_b32 {O[0]}, {O[0]}, {t[0]}, vcc
    v_cmp_eq_u32 vcc, 32, {I['l']}
    v_cndmask_b32 {O[3]}, {O[3]}, {t[0]}, vcc""")
    last = None
    for kk in range(4):
        k(f"v_lshl_add_u32 {va}, {I['l']}, 4, {Wp['dst'][kk]}")
        last = k(f"buffer_store_dwordx4 {O.q(kk)}, {va}, {sw}, 0 offen {SC}")
    k.v.free(O, sel, t, va, R_, I_, A); k.s.free(Wp['dst'])
    return last

def w2_issue(k, I, T, sw):
    W = k.v.allocq(20); va = k.v.alloc(); so = k.s.alloc(); st = k.s.alloc()
    k(f"""v_lshlrev_b32 {va}, 4, {I['l']}
    s_lshl_b32 {so}, {T['tau']}, 14
    s_lshl_b32 {st}, {I['w']}, 12
    s_add_u32 {so}, {so}, {st}""")
    for b in range(4): k(f"buffer_load_dwordx4 {W.q(b)}, {va}, {sw}, {so} offen offset:{1024*b} {SC}")
    k(f"s_cmp_eq_u32 {T['sp']}, 0")
    with k.skip_if("s_cbranch_scc1"):
        k(f"""s_lshl_b32 {so}, {T['tau']}, 9
        s_add_u32 {so}, {so}, {256*16384}
        buffer_load_dwordx4 {W.q(4)}, {va}, {sw}, {so} offen {SC}""")
    k.v.free(va); k.s.free(so, st)
    return W

def ph2f(k, I, T, C, W, L, lds1, lds2, sv2, hook):
    D = k.v.allocq(16); acc = k.v.allocq(32); tmp = k.v.alloc(4); wu = k.v.allocq(8); ad = k.v.alloc(); st = k.s.alloc()
    z = lambda b, c: acc.q(2 * b + c)
    def stage(M, data_is_A, blocks=range(4), src=None, dst=None):
        for b in blocks:
            for c in range(2):
                d = (src or D).q(b); o = (dst or acc).q(2 * b + c)
                A, B = (d, M.q(c)) if data_is_A else (M.q(c), d)
                k(f"v_mfma_f32_16x16x32_bf16 {o}, {A}, {B}, 0")
            if src is None: hook('t')
    def unpack(b):
        for r in range(4): k(f"v_lshlrev_b32 {wu[r]}, 16, {W[4*b+r]}\nv_and_b32 {wu[4+r]}, 0xffff0000, {W[4*b+r]}")
    for b in range(4):
        for j in range(4): k(f"v_mov_b32 {D[4*b+j]}, {L[4*j+b]}")
    stage(C['sf'], True)
    a4 = k.v.alloc(4)
    k(f"""v_and_b32 {a4[0]}, 7, {I['n']}
    v_lshlrev_b32 {ad}, 2, {I['g']}
    v_xor_b32 {a4[0]}, {a4[0]}, {ad}
    v_lshlrev_b32 {a4[0]}, 4, {a4[0]}
    v_lshl_or_b32 {a4[0]}, {I['n']}, 10, {a4[0]}
    s_lshl_b32 {st}, {I['w']}, 8
    s_add_u32 {st}, {st}, {lds1}
    v_add_u32 {a4[0]}, {st}, {a4[0]}""")
    for b in range(1, 4): k(f"v_xor_b32 {a4[b]}, {16*b}, {a4[0]}")
    for b in range(4):
        for r in range(4): k(f"v_cvt_pk_bf16_f32 {D[4*b+r]}, {z(b,0)[r]}, {z(b,1)[r]}")
        k(f"ds_write_b128 {a4[b]}, {D.q(b)}")
    k(f"""s_and_b32 {st}, {I['w']}, 1
    s_lshl_b32 {st}, {st}, 2
    v_xor_b32 {ad}, {st}, {I['l']}
    s_lshl_b32 {st}, {I['w']}, 12
    s_add_u32 {st}, {st}, {lds1}
    v_lshl_add_u32 {a4[0]}, {ad}, 4, {st}""")
    for b in range(1, 4): k(f"v_xor_b32 {a4[b]}, {16*b}, {a4[0]}")
    hook('pre_bar1')
    k("s_waitcnt lgkmcnt(0)\ns_barrier")
    for b in range(4): k(f"ds_read_b128 {D.q(b)}, {a4[b]} offset:{1024*b}")
    k.v.free(a4)
    hook('post_bar1')
    stage(C['m1f'], True)
    for b in range(4):
        cmul_pack(k, z(b, 0), z(b, 1), C['twf'].q(0), C['twf'].q(1), True, D.q(b), tmp); hook('t')
    stage(C['m2f'], False)
    X = L[0:8]; Xd = L[8:12]
    k(f"s_cmp_eq_u32 {T['sp']}, 0")
    with k.skip_if("s_cbranch_scc1"):
        unpack(4)
        cmul_pack(k, z(0, 0), z(0, 1), wu.q(0), wu.q(1), False, Xd, tmp)
        stage(C['m2i'], True, [0], Xd, X)
        cmul_pack(k, X.q(0), X.q(1), C['twi'].q(0), C['twi'].q(1), False, Xd, tmp)
        stage(C['m1i'], False, [0], Xd, X)
    for b in range(4):
        unpack(b)
        cmul_pack(k, z(b, 0), z(b, 1), wu.q(0), wu.q(1), False, D.q(b), tmp); hook('t')
    stage(C['m2i'], True)
    for b in range(4):
        cmul_pack(k, z(b, 0), z(b, 1), C['twi'].q(0), C['twi'].q(1), False, D.q(b), tmp); hook('t')
    stage(C['m1i'], False)
    k(f"s_sub_u32 {st}, {T['sp']}, 1\ns_or_b32 {st}, {st}, {I['w']}\ns_cmp_lg_u32 {st}, 0")
    with k.skip_if("s_cbranch_scc1"):
        for r in range(4): k(f"v_mov_b32 {z(0,1)[r]}, {X[4+r]}")
    k(f"""v_lshlrev_b32 {ad}, 12, {I['g']}
    v_lshl_add_u32 {ad}, {I['n']}, 4, {ad}
    s_lshl_b32 {st}, {I['w']}, 8
    s_add_u32 {st}, {st}, {lds2}
    v_add_u32 {ad}, {st}, {ad}""")
    for r in range(4):
        for b in range(4): k(f"v_cvt_pk_bf16_f32 {D[4*r+b]}, {z(b,0)[r]}, {z(b,1)[r]}")
        k(f"ds_write_b128 {ad}, {D.q(r)} offset:{1024*r}")
    k(f"""s_lshl_b32 {st}, {I['w']}, 12
    s_add_u32 {st}, {st}, {lds2}
    v_lshl_add_u32 {ad}, {I['l']}, 4, {st}""")
    hook('pre_bar2')
    k("s_waitcnt lgkmcnt(0)\ns_barrier")
    for b in range(4): k(f"ds_read_b128 {D.q(b)}, {ad} offset:{1024*b}")
    hook('post_bar2')
    stage(C['si'], False)
    so = k.s.alloc()
    k(f"""s_mov_b32 {st}, {64*V2_STR}
    v_mul_lo_u32 {ad}, {I['g']}, {st}
    v_lshl_add_u32 {ad}, {I['n']}, 2, {ad}
    s_mul_i32 {so}, {I['w']}, {4*V2_STR}
    s_lshl_b32 {st}, {T['tau']}, 6
    s_add_u32 {so}, {so}, {st}""")
    for b in range(4):
        for r in range(4): k(f"v_cvt_pk_bf16_f32 {D[4*b+r]}, {z(b,0)[r]}, {z(b,1)[r]}")
    k.v.free(acc, tmp, wu, W, L, *C.values()); k.s.free(st)
    return D, ad, so

def v2_store(k, D, ad, so, sv2):
    last = None
    for b in range(4):
        for r in range(4):
            last = k(f"buffer_store_dword {D[4*b+r]}, {ad}, {sv2}, {so} offen {SC}")
            if r < 3: k(f"s_add_u32 {so}, {so}, {16*V2_STR}")
            elif b < 3: k(f"s_sub_u32 {so}, {so}, {47*V2_STR}")
    k.v.free(D, ad); k.s.free(so)
    return last

class B1f(B1):
    def __init__(self, k, I, sx, sb, ldsA, ldsB):
        super().__init__(k, I, sx, sb, ldsA, ldsB)
        for j in range(4):
            k(f"v_add_u32 {self.va[j]}, {self.soA}, {self.va[j]}\nv_add_u32 {self.vb[j]}, {self.soB}, {self.vb[j]}")
        k(f"""s_add_u32 {self.soA}, {I['ca']}, {I['cb'] if I.get('rot1', 1) == 1 else 0}
        s_and_b32 {self.soA}, {self.soA}, {(0, 15, 15, 12)[I.get('rot1', 1)]}
        s_lshl_b32 {self.soA}, {self.soA}, 7""")
        self.tail = None
    def dma(self, s, i):
        k = self.k; j = i & 3; buf = (s % self.NST) * 16384
        if s >= 16:
            if self.tail: self.tail(s - 16, i)
            return
        if i < 4:
            if j == 0: k(f"s_add_u32 m0, {self.mB}, {buf}")
            ins = k(f"buffer_load_dwordx4 {self.vb[j]}, {self.sb}, {self.soA} offen offset:{1024*j} lds")
        else:
            if j == 0: k(f"s_add_u32 m0, {self.mA}, {buf}")
            ins = k(f"buffer_load_dwordx4 {self.va[j]}, {self.sx}, {self.soA} offen offset:{1024*j} lds")
            if j == 3: k(f"s_add_u32 {self.soA}, {self.soA}, 128\ns_and_b32 {self.soA}, {self.soA}, 0x7ff")
        self.last[s] = ins
    def alloc(self):
        self.acc = self.k.v.allocq(64, 16); self.fr = self.k.v.allocq(32)
    def main(self, fill=None, pre_bar=None, post_bar=None):
        k = self.k; NS = 16; acc, fr = self.acc, self.fr
        def reads(s, kk):
            f = fr.q((s * 4 + kk) & 1, 16); buf = (s % self.NST) * 16384
            out = []
            for b in range(2):
                out.append(f"ds_read_b128 {f.q(b)}, {self.ra[kk]} offset:{buf + 4096*b}")
                out.append(f"ds_read_b128 {f.q(2+b)}, {self.rb[kk]} offset:{buf + 4096*b}")
            return out
        k.wait(self.last[0]); k("s_barrier")
        lastrd = None
        for r in reads(0, 0): lastrd = k(r)
        for s in range(NS):
            for kk in range(4):
                f = fr.q((s * 4 + kk) & 1, 16)
                rd = []
                if kk < 3: rd = reads(s, kk + 1)
                elif s + 1 < NS:
                    if pre_bar: pre_bar(s)
                    k.wait(lastrd, self.last[s + 1]); k("s_barrier")
                    rd = reads(s + 1, 0)
                ds, di = (s + self.NST, 0) if kk == 3 else (s + self.NST - 1, 2 * (kk + 1))
                dm = [(ds, di), (ds, di + 1)] if ds >= self.NST else []
                for m, (rb, c) in enumerate(((0, 0), (0, 1), (1, 1), (1, 0))):
                    d = acc.q(2 * rb + c, 16)
                    first = s == 0 and kk == 0
                    k(f"v_mfma_f32_32x32x16_bf16 {d}, {f.q(rb)}, {f.q(2+c)}, {0 if first else d}")
                    if m < 2 and rd:
                        k(rd[2 * m]); lastrd = k(rd[2 * m + 1])
                    if m == 1 and kk == 3 and post_bar: post_bar(s)
                    if m >= 2 and dm: self.dma(*dm[m - 2])
                    if fill: fill(s, kk, m)
        k.v.free(fr, self.va, self.vb, self.ra, self.rb); k.s.free(self.soA, self.soB, self.mA, self.mB)
        return acc

def pass2f(k, I, acc, Pm, E1, E, sh):
    for j in range(14, -1, -1):
        cfma(k, E.q(j, 2), Pm['L64'], E.q(j + 1, 2), E.q(j, 2))
    S, T = E.q(0, 2), E.q(1, 2); U, V = E.q(2, 2), E.q(3, 2)
    k(f"""v_mov_b32 {T[0]}, {S[0]}
    v_mov_b32 {T[1]}, {S[1]}
    v_permlane32_swap_b32 {S[0]}, {T[0]}
    v_permlane32_swap_b32 {S[1]}, {T[1]}""")
    cfma(k, S, Pm['L1024'], T, S)
    cfma(k, E1['lo'], Pm['L32'], S, E1['lo'])
    k(f"s_mov_b32 exec_lo, 0\nv_mov_b32 {S[0]}, {E1['lo'][0]}\nv_mov_b32 {S[1]}, {E1['lo'][1]}\ns_mov_b64 exec, -1")
    e0 = (E1['er'][0], E1['ei'][0])
    cfma(k, e0, Pm['L16'], S, e0)
    cf = Pm['coef']
    for h, x in ((0, S), (1, e0)):
        k(f"""v_mul_f32 {U[h]}, {cf[0]}, {x[0]}
        v_mul_f32 {V[h]}, {cf[0]}, {x[1]}
        v_fma_f32 {U[h]}, -{cf[1]}, {x[1]}, {U[h]}
        v_fma_f32 {V[h]}, {cf[1]}, {x[0]}, {V[h]}""")
    va, so = E1['hva'], E1['hso']
    L = Pm['L1']; cr, ci = U, V
    O = E[8:32]
    pend = []; last = None
    def flush():
        nonlocal last
        q, o = pend.pop(0)
        k(f"""v_permlane32_swap_b32 {o[0]}, {o[1]}
        v_permlane32_swap_b32 {o[2]}, {o[3]}
        v_permlane16_swap_b32 {o[0]}, {o[2]}
        v_permlane16_swap_b32 {o[1]}, {o[3]}""")
        last = k(f"buffer_store_dwordx4 {o}, {va}, {sh}, {so} offen {SC}")
        if q < 7: k(f"s_add_u32 {so}, {so}, {2*32*16384}")
    for j in range(16):
        nr, ni = upair(acc, j, 0), upair(acc, j, 1)
        k(f"""v_pk_fma_f32 {nr}, {L}, {cr}, {nr}{BC0}
        v_pk_fma_f32 {ni}, {L}, {ci}, {ni}{BC0}
        v_pk_fma_f32 {nr}, {L}, {ci}, {nr}{BC1}{NEG0}
        v_pk_fma_f32 {ni}, {L}, {cr}, {ni}{BC1}""")
        cr, ci = nr, ni
        if pend: flush()
        o = O.q((j // 2) % 6)
        h = 2 * (j & 1)
        k(f"v_cvt_pk_bf16_f32 {o[h]}, {nr[0]}, {nr[1]}\nv_cvt_pk_bf16_f32 {o[h+1]}, -{ni[0]}, -{ni[1]}")
        if j & 1: pend.append((j // 2, o))
    flush()
    k.v.free(va, E, acc, E1['er'], E1['ei'], E1['lo'], *Pm.values()); k.s.free(so)
    return last

def hstore_addr(k, I, E1):
    va = k.v.alloc(); t = k.v.alloc(); so = k.s.alloc(); st = k.s.alloc(); s2_ = k.s.alloc()
    k(f"""s_lshl_b32 {st}, {I['ca']}, 1
    s_lshr_b32 {s2_}, {I['w']}, 1
    s_add_u32 {st}, {st}, {s2_}
    s_lshl_b32 {so}, {st}, 9
    s_and_b32 {st}, {st}, 3
    s_lshl_b32 {st}, {st}, 2
    v_xor_b32 {va}, {st}, {I['n']}
    v_lshlrev_b32 {va}, 4, {va}
    v_lshrrev_b32 {t}, 1, {I['g']}
    v_lshl_or_b32 {va}, {t}, 14, {va}
    v_and_b32 {t}, 1, {I['g']}
    v_lshl_or_b32 {va}, {t}, 19, {va}
    s_and_b32 {s2_}, {I['w']}, 1
    s_lshl_b32 {s2_}, {s2_}, 8
    s_add_u32 {so}, {so}, {s2_}
    s_lshl_b32 {s2_}, {I['cb']}, 15
    s_add_u32 {so}, {so}, {s2_}""")
    k.v.free(t); k.s.free(st, s2_)
    E1['hva'], E1['hso'] = va, so

class CLoad:
    def __init__(self, k, I, sc, CA=None):
        self.k, self.sc = k, sc
        self.C = CA or k.a.alloc(256); self.va = k.v.alloc(4); self.ra = k.v.alloc(4); self.so = k.s.alloc(); self.mw = k.s.alloc()
        t = k.v.alloc(2); st = k.s.alloc(); l = I['l']
        k(f"""v_and_b32 {t[0]}, 7, {l}
        v_xor_b32 {t[0]}, {t[0]}, {I['g']}
        v_and_b32 {t[1]}, 4, {t[0]}
        v_lshlrev_b32 {self.va[0]}, 4, {t[1]}
        v_and_b32 {t[1]}, 1, {t[0]}
        v_lshl_or_b32 {self.va[0]}, {t[1]}, 5, {self.va[0]}
        v_bfe_u32 {t[1]}, {t[0]}, 1, 1
        v_lshl_or_b32 {self.va[0]}, {t[1]}, 4, {self.va[0]}
        v_lshrrev_b32 {t[1]}, 3, {l}
        v_lshl_or_b32 {self.va[0]}, {t[1]}, 11, {self.va[0]}
        s_lshr_b32 {st}, {I['w']}, 1
        s_lshl_b32 {st}, {st}, 20
        s_lshl_b32 {self.so}, {I['tb']}, 15
        s_add_u32 {st}, {st}, {self.so}
        v_add_u32 {self.va[0]}, {st}, {self.va[0]}
        v_xor_b32 {self.va[1]}, 64, {self.va[0]}
        v_add_u32 {self.va[1]}, {16384-1024}, {self.va[1]}
        v_add_u32 {self.va[2]}, {(1<<19)-2048}, {self.va[0]}
        v_add_u32 {self.va[3]}, {(1<<19)-2048}, {self.va[1]}
        s_lshl_b32 {self.so}, {I.get('rc', I['ta'])}, 7
        s_lshl_b32 {self.mw}, {I['w']}, 12
        v_lshrrev_b32 {t[0]}, 1, {I['n']}
        v_xor_b32 {t[0]}, {t[0]}, {I['g']}
        v_lshlrev_b32 {t[0]}, 4, {t[0]}
        v_lshl_or_b32 {t[0]}, {I['n']}, 7, {t[0]}
        v_add_u32 {self.ra[0]}, {self.mw}, {t[0]}
        v_xor_b32 {self.ra[1]}, 64, {self.ra[0]}
        v_add_u32 {self.ra[2]}, 0x10000, {self.ra[0]}
        v_add_u32 {self.ra[3]}, 0x10000, {self.ra[1]}""")
        k.v.free(t); k.s.free(st)
        self.n = 0; self.slot = {}; self.ld = {}; self.rd = {}; self.nd = 0
    def frag(self, j, kk, mm): return self.C.q(4 * j + 2 * mm + kk)
    def issue1(self, slot):
        k = self.k; j, q = self.n >> 2, self.n & 3
        if q == 0:
            if slot in self.rd: k.wait(self.rd.pop(slot))
            self.slot[j] = slot
            k(f"s_add_u32 m0, {self.mw}, {slot}")
        self.ld[j] = k(f"buffer_load_dwordx4 {self.va[q]}, {self.sc}, {self.so} offen offset:{1024*q} lds")
        if q == 3: k(f"s_add_u32 {self.so}, {self.so}, 128\ns_and_b32 {self.so}, {self.so}, 0x7ff")
        self.n += 1
        if self.n == 64: k.v.free(self.va); k.s.free(self.so, self.mw)
    def issue(self, slot):
        for _ in range(4): self.issue1(slot)
    def drain(self):
        k = self.k; j = self.nd; slot = self.slot[j]; hi = 2 if slot >= 65536 else 0
        assert self.n >= 4 * (j + 1)
        if slot >= 65536 and (slot >= 131072) != bool(getattr(self, 'bumped', False)):
            k(f"v_xor_b32 {self.ra[2]}, 0x30000, {self.ra[2]}\nv_xor_b32 {self.ra[3]}, 0x30000, {self.ra[3]}"); self.bumped = slot >= 131072
        k.wait(self.ld[j])
        for mm in range(2):
            for kk in range(2):
                self.rd[slot] = k(f"ds_read_b128 {self.frag(j,kk,mm)}, {self.ra[hi+kk]} offset:{(slot & 65535) + 2048*mm}")
        self.nd += 1
        if self.nd == 16: k.v.free(self.ra)
        return slot

def gen_Gf(k, I):
    G = k.v.allocq(64)
    f, b, sb, a, c, s, mk = [k.v.alloc() for _ in range(7)]
    st = k.s.alloc()
    k(f"""v_lshrrev_b32 {a}, 1, {I['g']}
    v_lshlrev_b32 {a}, 3, {a}
    v_and_b32 {c}, 1, {I['g']}
    v_lshl_add_u32 {a}, {c}, 1, {a}
    v_cvt_f32_u32 {sb}, {a}
    v_mul_u32_u24 {mk}, 0x8000, {c}
    v_lshl_or_b32 {mk}, {mk}, 16, {mk}""")
    for ib in range(2):
        k(f"""s_and_b32 {st}, {I['w']}, 1
        s_lshl_b32 {st}, {st}, 6
        s_add_u32 {st}, {st}, {16*ib}
        v_add_u32 {a}, {st}, {I['n']}
        v_cvt_f32_u32 {f}, {a}
        v_mul_f32 {f}, {fl(1/128)}, {f}
        v_mul_f32 {b}, {f}, {sb}""")
        for kap in range(4):
            for d in range(4):
                sl = 16 * kap + 4 * (d >> 1) + (d & 1)
                g0, g2 = G[16 * ib + 4 * kap + d], G[16 * (ib + 2) + 4 * kap + d]
                k(f"""v_fmamk_f32 {a}, {f}, {fl(float(sl))}, {b}
                v_cos_f32 {c}, {a}
                v_sin_f32 {s}, {a}
                v_cvt_pk_bf16_f32 {g0}, {c}, -{s}""")
                if d & 1: k(f"v_cvt_pk_bf16_f32 {g2}, -{s}, -{c}\nv_xor_b32 {g2}, {mk}, {g2}")
                else: k(f"v_xor_b32 {g2}, {mk}, {g0}")
    k(f"""v_lshlrev_b32 {c}, 31, {I['n']}
    v_or_b32 {c}, 0x3f003f00, {c}
    v_cmp_eq_u32 vcc, 0, {I['g']}""")
    for ib in range(4): k(f"v_cndmask_b32 {G[16*ib]}, {G[16*ib]}, {c}, vcc")
    k.v.free(f, b, sb, a, c, s, mk); k.s.free(st)
    return G

class B3f:
    NST = 4
    D = 3
    def __init__(self, k, I, sh, CL):
        self.k, self.I, self.sh, self.CL = k, I, sh, CL
        self.vh = k.v.alloc(2); self.rh = k.v.alloc(4)
        self.so, self.mH = k.s.alloc(), k.s.alloc()
        t = k.v.alloc(2); st = k.s.alloc(); l = I['l']
        k(f"""s_lshr_b32 {st}, {I['w']}, 1
        s_xor_b32 {st}, {st}, {I['w']}
        s_lshl_b32 {st}, {st}, 13
        s_lshl_b32 {self.so}, {I['ta']}, 19
        s_add_u32 {st}, {st}, {self.so}
        v_lshl_add_u32 {self.vh[0]}, {l}, 4, {st}
        v_add_u32 {self.vh[1]}, 4096, {self.vh[0]}
        s_lshl_b32 {self.so}, {I.get('rc', I['ta'])}, 15
        s_lshl_b32 {self.mH}, {I['w']}, 13""")
        k(f"""v_and_b32 {t[0]}, 3, {l}
        v_and_b32 {t[1]}, 2, {I['g']}
        v_xor_b32 {t[1]}, {t[1]}, {t[0]}
        v_lshlrev_b32 {t[0]}, 9, {t[0]}
        v_lshl_or_b32 {t[0]}, {t[1]}, 6, {t[0]}
        v_bfe_u32 {t[1]}, {l}, 2, 2
        v_lshl_or_b32 {t[0]}, {t[1]}, 4, {t[0]}
        v_and_b32 {t[1]}, 1, {I['g']}
        v_lshl_or_b32 {t[0]}, {t[1]}, 3, {t[0]}
        s_and_b32 {st}, {I['w']}, 1
        s_lshl_b32 {st}, {st}, 14
        v_add_u32 {self.rh[0]}, {st}, {t[0]}
        v_xor_b32 {self.rh[1]}, 64, {self.rh[0]}
        v_add_u32 {self.rh[2]}, 0x10000, {self.rh[0]}
        v_add_u32 {self.rh[3]}, 0x10000, {self.rh[1]}""")
        k.v.free(t); k.s.free(st)
        self.last = {}; self.tail = None
    def dma(self, s, i):
        k = self.k
        if s >= 16:
            if self.tail: self.tail(s - 16, i)
            return
        if i & 3 == 0: k(f"s_add_u32 m0, {self.mH}, {(s % self.NST)*32768 + (i>>2)*4096}")
        self.last[s] = k(f"buffer_load_dwordx4 {self.vh[i>>2]}, {self.sh}, {self.so} offen offset:{1024*(i&3)} {SC} lds")
        if i == 7: k(f"s_add_u32 {self.so}, {self.so}, 32768\ns_and_b32 {self.so}, {self.so}, 0x7ffff")
    def prefill(self, steps):
        for s in steps:
            for i in range(8): self.dma(s, i)
    def alloc(self):
        self.acc = self.k.v.allocq(64); self.fr = self.k.v.allocq(64)
    def main(self, fill=None, pre_bar=None, post_bar=None):
        k = self.k; NS = 16; acc, fr = self.acc, self.fr
        def reads(s, kk):
            f = fr.q(kk, 32); out = []
            for ib in range(8):
                off = (s % self.NST) * 32768 + ib * 2048 + kk * 256; hi = 2 if off >= 65536 else 0
                for h in range(2):
                    out.append(f"ds_read_b64_tr_b16 {f[4*ib+2*h:4*ib+2*h+2]}, {self.rh[hi+h]} offset:{off & 65535}")
            return out
        if pre_bar: pre_bar(-1)
        k.wait(self.last[0]); k("s_barrier")
        lastrd = None
        for r in reads(0, 0): lastrd = k(r)
        if post_bar: post_bar(-1)
        for s in range(NS):
            for kk in range(2):
                f = fr.q(kk, 32); rd = []
                if kk == 0: rd = reads(s, 1)
                elif s + 1 < NS:
                    if pre_bar: pre_bar(s)
                    k.wait(lastrd, self.last[s + 1]); k("s_barrier")
                    rd = reads(s + 1, 0)
                dm = [(s + self.D, 4 * kk + x) for x in range(4)]
                for q in range(16):
                    ib, mm = q >> 1, q & 1
                    d = acc.q(8 * mm + ib)
                    zero = s == 0 and kk == 0 and ib >= 4
                    k(f"v_mfma_f32_16x16x32_bf16 {d}, {f.q(ib)}, {self.CL.frag(s,kk,mm)}, {0 if zero else d}")
                    if rd and q < 8:
                        k(rd[2 * q]); lastrd = k(rd[2 * q + 1])
                    if dm and q >= 8 and q % 2 == 0: self.dma(*dm[(q - 8) // 2])
                    if q == 9 and kk == 1 and post_bar: post_bar(s)
                    if fill: fill(s, kk, q)
        k.v.free(fr, self.vh, self.rh); k.s.free(self.so, self.mH)
        return acc

def epi_issue_f(k, I, sg, sd):
    E = dict(g=k.v.allocq(16), d=k.v.alloc(2))
    va = k.v.alloc(); so = k.s.alloc(); st = k.s.alloc()
    k(f"""v_lshlrev_b32 {va}, 4, {I['g']}
    s_lshl_b32 {so}, {I['ta']}, 9
    s_and_b32 {st}, {I['w']}, 1
    s_lshl_b32 {st}, {st}, 8
    s_add_u32 {so}, {so}, {st}""")
    for ib in range(4): k(f"buffer_load_dwordx4 {E['g'].q(ib)}, {va}, {sg}, {so} offen offset:{64*ib} {SC}")
    k(f"""v_lshlrev_b32 {va}, 1, {I['n']}
    s_lshl_b32 {so}, {I['tb']}, 5
    s_lshr_b32 {st}, {I['w']}, 1
    s_lshl_b32 {st}, {st}, 10
    s_add_u32 {so}, {so}, {st}""")
    for mm in range(2): k(f"buffer_load_ushort {E['d'][mm]}, {va}, {sd}, {so} offen offset:{512*mm}")
    k.v.free(va); k.s.free(so, st)
    return E

def xd_init(k, I, E, acc, ldsX):
    ad = k.v.alloc(2); t = k.v.alloc(2); st = k.s.alloc()
    k(f"""s_and_b32 {st}, {I['w']}, 1
    s_lshl_b32 {st}, {st}, 13
    s_add_u32 {st}, {st}, {ldsX}
    v_lshrrev_b32 {t[0]}, 2, {I['l']}
    v_lshlrev_b32 {t[0]}, 7, {t[0]}
    v_and_b32 {t[1]}, 3, {I['l']}
    v_lshl_or_b32 {t[0]}, {t[1]}, 3, {t[0]}
    v_add_u32 {t[0]}, {st}, {t[0]}
    v_bfe_u32 {t[1]}, {I['l']}, 3, 2
    s_and_b32 {st}, {I['w']}, 2
    v_xor_b32 {t[1]}, {st}, {t[1]}
    v_lshl_add_u32 {ad[0]}, {t[1]}, 5, {t[0]}
    v_xor_b32 {ad[1]}, 32, {ad[0]}""")
    for mm in range(2):
        for ib in range(4): k(f"ds_read_b64_tr_b16 {acc.q(8*mm+ib)[2:4]}, {ad[mm]} offset:{2048*ib}")
    Dk = E['d']
    k(f"v_lshlrev_b32 {Dk[0]}, 16, {Dk[0]}\nv_lshlrev_b32 {Dk[1]}, 16, {Dk[1]}")
    for mm in range(2):
        sel = f" op_sel:[{mm},0] op_sel_hi:[{mm},1]"
        for ib in range(4):
            a = acc.q(8 * mm + ib)
            k(f"""v_lshlrev_b32 {a[0]}, 16, {a[2]}
            v_and_b32 {a[1]}, 0xffff0000, {a[2]}
            v_lshlrev_b32 {a[2]}, 16, {a[3]}
            v_and_b32 {a[3]}, 0xffff0000, {a[3]}
            v_pk_mul_f32 {a[0:2]}, {Dk}, {a[0:2]}{sel}
            v_pk_mul_f32 {a[2:4]}, {Dk}, {a[2:4]}{sel}""")
    k.v.free(ad, t, Dk); k.s.free(st)

def final(k, I, E, acc, G, L, ldsX, ldsY, so_, pf):
    ad = k.v.alloc(); t = k.v.alloc(); st = k.s.alloc()
    k(f"s_lshl_b32 {st}, {I['w']}, 13\ns_add_u32 {st}, {st}, {ldsX}\nv_lshl_add_u32 {ad}, {I['l']}, 4, {st}")
    for mm in range(2):
        for ib in range(4): k(f"ds_write_b128 {ad}, {acc.q(8*mm+4+ib)} offset:{1024*(4*mm+ib)}")
    y_stage(k, I, L, ldsY)
    R_ = k.v.allocq(32); Y = k.v.allocq(32); ay = k.v.alloc()
    k(f"""v_xor_b32 {ad}, 0x2000, {ad}
    v_lshrrev_b32 {ay}, 5, {I['l']}
    v_lshlrev_b32 {ay}, 9, {ay}
    v_bfe_u32 {t}, {I['l']}, 3, 2
    v_lshl_or_b32 {ay}, {t}, 6, {ay}
    v_and_b32 {t}, 3, {I['l']}
    v_lshl_or_b32 {ay}, {t}, 4, {ay}
    v_bfe_u32 {t}, {I['l']}, 2, 1
    v_lshl_or_b32 {ay}, {t}, 3, {ay}
    s_lshr_b32 {st}, {I['w']}, 1
    s_lshl_b32 {st}, {st}, 13
    s_add_u32 {st}, {st}, {ldsY}
    v_add_u32 {ay}, {st}, {ay}
    s_waitcnt lgkmcnt(0)
    s_barrier""")
    pf("xbar")
    for mm in range(2):
        for kap in range(4):
            for h in range(2):
                o = 16 * mm + 4 * kap + 2 * h
                k(f"ds_read_b64_tr_b16 {Y[o:o+2]}, {ay} offset:{4096*mm + 1024*kap + 256*h}")
    for ib in range(4):
        for mm in range(2): k(f"ds_read_b128 {R_.q(4*mm+ib)}, {ad} offset:{1024*(4*mm+ib)}")
    va = k.v.alloc(); so = k.s.alloc(); om = k.v.alloc(4)
    k(f"""v_lshlrev_b32 {va}, 18, {I['g']}
    v_lshl_or_b32 {va}, {I['n']}, 2, {va}
    s_and_b32 {so}, {I['w']}, 1
    s_lshl_b32 {so}, {so}, 22
    s_lshl_b32 {st}, {I['ta']}, 12
    s_add_u32 {so}, {so}, {st}
    s_lshl_b32 {st}, {I['tb']}, 6
    s_add_u32 {so}, {so}, {st}
    s_lshr_b32 {st}, {I['w']}, 1
    s_lshl_b32 {st}, {st}, 11
    s_add_u32 {so}, {so}, {st}""")
    def mf(ib):
        for kap in range(4):
            for mm in range(2):
                d = acc.q(8 * mm + 4 + ib)
                k(f"v_mfma_f32_16x16x32_bf16 {d}, {G.q(4*ib+kap)}, {Y.q(4*mm+kap)}, {d if kap else 0}")
    def fin(ib):
        g = E['g'].q(ib)
        for h in (0, 2):
            k(f"""v_sub_f32 {om[h]}, 1.0, {g[h]}
            v_sub_f32 {om[h+1]}, 1.0, {g[h+1]}
            v_cvt_pk_bf16_f32 {om[h+1]}, {om[h]}, {om[h+1]}
            v_lshlrev_b32 {om[h]}, 16, {om[h+1]}
            v_and_b32 {om[h+1]}, 0xffff0000, {om[h+1]}""")
        for mm in range(2):
            b = acc.q(8 * mm + ib); r = R_.q(4 * mm + ib)
            for h in (0, 2):
                k(f"v_pk_add_f32 {b[h:h+2]}, {b[h:h+2]}, {r[h:h+2]}\nv_pk_mul_f32 {b[h:h+2]}, {om[h:h+2]}, {b[h:h+2]}")
        for mm in range(2):
            b = acc.q(8 * mm + ib); a = acc.q(8 * mm + 4 + ib)
            for h in (0, 2):
                k(f"v_pk_fma_f32 {b[h:h+2]}, {g[h:h+2]}, {a[h:h+2]}, {b[h:h+2]}")
        for r in range(4):
            for mm in range(2):
                k(f"buffer_store_dword {acc.q(8*mm+ib)[r]}, {va}, {so_}, {so} offen offset:{1024*mm} {OUTF}")
            if (ib, r) != (3, 3): k(f"s_add_u32 {so}, {so}, {(1<<16) if r < 3 else (1<<20) - 3*(1<<16)}")
    mf(0)
    for ib in range(4):
        if ib < 3: mf(ib + 1)
        fin(ib)

def build(opt={}):
    O = dict(order="XWS", npre=2, sig=6, wnt=0, v2late=1, cpf=1)
    O.update(opt)
    k = Kernel(NAME + "_kernel", nv=256, na=256)
    LX = 131072; LT2 = LX + 16384; LDS = LT2 + 16384; LT1 = 114688
    k("s_cmp_ge_u32 s2, 256")
    k(f"s_cbranch_scc1 {k.name}_end")
    KP = k.s.alloc(32, 4)
    k(f"s_load_dwordx16 {KP[0:16]}, s[0:1], 0\ns_load_dwordx16 {KP[16:32]}, s[0:1], 64")
    P = {n: KP[o // 4:o // 4 + 2] for n, o in KA.items()}
    cva = code_prefetch(k, 0, 40960); cd = k.v.alloc()
    I = ids(k)
    if O['cpf']:
        k(f"s_cmp_lg_u32 {I['w']}, 0")
        with k.skip_if("s_cbranch_scc1"):
            k(f"global_load_dword {cd}, {cva}, off")
    k.v.free(cva)
    pf = Prof(k, 0)
    sx = srd(k, P['x'], SZ['x'])
    if O.get('lat'):
        nm = O['lat']; sl = srd(k, P[nm], 1 << 21); tv = k.v.alloc(2)
        k(f"v_mov_b32 {tv[0]}, s2\nv_lshlrev_b32 {tv[0]}, 13, {tv[0]}\ns_waitcnt vmcnt(0)")
        pf("l0")
        k(f"buffer_load_dword {tv[1]}, {tv[0]}, {sl}, 0 offen\ns_waitcnt vmcnt(0)")
        pf("l1")
        for q in range(1, 9): k(f"buffer_load_dword {tv[1]}, {tv[0]}, {sl}, 0 offen offset:{256*q}\ns_waitcnt vmcnt(0)")
        pf("l2")
        k.s.free(sl); k.v.free(tv)
    sf = srd(k, P['ws'], 3 * 32768, WS_F)
    sdbg = srd(k, P['dbg'], 256)
    FB, FH, FV = k.s.alloc(), k.s.alloc(), k.s.alloc()
    one = k.v.alloc(); zero = k.v.alloc(); vp = k.v.alloc(); vflag = k.v.alloc()
    k(f"""s_mov_b32 {FB}, 0
    s_mov_b32 {FH}, 32768
    s_lshl_b32 {FV}, s2, 7
    v_mov_b32 {vflag}, {FV}
    s_mov_b32 {FV}, 65536
    v_mov_b32 {one}, 1
    v_mov_b32 {zero}, 0
    v_lshlrev_b32 {vp}, 7, v0
    s_cmp_lg_u32 s2, 0""")
    with k.skip_if("s_cbranch_scc1"):
        clrB = k(f"buffer_store_dword {zero}, {vp}, {sf}, 0 offen {SC}")
    ldx = xtile_issue(k, I, sx, LX)
    sb = srd_sel(k, I, P['bre'], P['bim'], SZ['bre'])
    g1 = B1f(k, I, sx, sb, 0, 65536)
    F = gen_F(k, I)
    pf("F")
    H = {}
    def issueW():
        swr = srd(k, P['wr'], SZ['wr']); swi = srd(k, P['wi'], SZ['wi'])
        H['Wp'] = wpre_issue(k, I, swr, swi, False, "nt" if O['wnt'] else "")
        k(f"s_cmp_lg_u32 {I['slot']}, 0")
        with k.skip_if("s_cbranch_scc1"):
            H['Wp2'] = wpre_issue(k, I, swr, swi, True, "")
        k.s.free(swr, swi)
    def issueG():
        sgw = srd(k, P['gw'], SZ['gw'])
        H['Gt'] = gate_issue(k, I, sx, sgw)
        k.s.free(sgw)
    issueG()
    if O['order'] == "XWS": issueW()
    t4 = [srd(k, P[n], 2048) for n in ('lre', 'lim', 'ldt')]
    Q = ssm_param_issue(k, I, *t4); k.s.free(*t4)
    g1.prefill([0])
    if O['order'] == "XSW": issueW()
    pf("iss0")
    sv1 = srd(k, P['ws'], 256 * V1_STR, WS_V1)
    dq = [(s, i) for s in range(1, O['npre']) for i in range(8)]
    def hook1(name):
        if name == 'bar':
            k.wait(ldx); k("s_barrier"); pf("xt")
            k(f"s_or_b32 m0, {I['w']}, s2\ns_cmp_lg_u32 m0, 0")
            with k.skip_if("s_cbranch_scc1"):
                k(f"s_mov_b64 exec, 1\nbuffer_store_dword {one}, {zero}, {sdbg}, 0 offen {SC}\ns_mov_b64 exec, -1")
        elif dq: g1.dma(*dq.pop(0))
    O1 = ph1f(k, I, F, LX, sv1, hook1)
    k.v.free(F)
    while dq: g1.dma(*dq.pop(0))
    pf("ph1")
    sw = srd(k, P['ws'], 256 * 16384 + 2048, WS_W)
    sg = srd(k, P['ws'], 8192, WS_G)
    st = k.s.alloc()
    k(f"s_lshl_b32 {st}, {I['tb']}, 14")
    se = srd(k, P['ws'], 16384, WS_E, st)
    ph1_store(k, *O1, sv1)
    t = k.v.alloc(2)
    k(f"""s_lshl_b32 {st}, {I['ta']}, 10
    s_sub_u32 {st}, {30*512}, {st}
    v_lshl_add_u32 {t[0]}, v0, 2, {st}
    v_mov_b32 {t[1]}, -1
    buffer_store_dword {t[1]}, {t[0]}, {se}, 0 offen {SC}""")
    wave0_store(k, I, f"buffer_store_dword {zero}, {vflag}, {sf}, {FH} offen {SC}\nbuffer_store_dword {zero}, {vflag}, {sf}, {FV} offen {SC}")
    k.v.free(t); k.s.free(st)
    gate_compute(k, I, H['Gt'], sg, SC)
    k(f"s_cmp_lg_u32 {I['slot']}, 0")
    with k.skip_if("s_cbranch_scc1"):
        wpre_compute(k, I, H['Wp2'], sw)
    lastw = wpre_compute(k, I, H['Wp'], sw)
    pf("st")
    g1.prefill(range(O['npre'], 4))
    g1.alloc()
    sc = srd_sel(k, I, P['cre'], P['cim'], SZ['cre'])
    with k.capture() as fl1:
        Pm = ssm_param_compute(k, Q)
        CL = CLoad(k, I, sc)
        T = ph2_params(k, I)
        C2 = ph2_consts(k, I, T, 2.0 ** -20)
    p0 = Poll(k, sdbg, zero, 1, 1)
    p1 = Poll(k, sf, vp, 1, 1, FB)
    pf("pre")
    def pre_bar(s):
        if s == O['sig']: k.wait(lastw)
    def post_bar(s):
        if s == O['sig'] - 3: p0.issue()
        if s == O['sig']:
            fl1.emit_until_safe()
            p0.finish()
            wave0_store(k, I, f"buffer_store_dword {one}, {vflag}, {sf}, {FB} offen {SC}")
    def tail(s, i):
        if s == 0 and i == 0: p1.issue()
        if s < 3: CL.issue1((65536 if i >= 4 else 0) + s * 16384)
    g1.tail = tail
    def fill1(s, kk, m):
        fl1.emit(3)
        if s == 11 and kk == 3 and m == 3: fl1.flush()
        if kk == 3 and m == 0 and s % 4 == 3: pf(f"a{s}")
    acc = g1.main(fill1, pre_bar, post_bar)
    pf("main1")
    k.s.free(sx, sb, sdbg)
    E1 = scan_pass1(k, I, acc, Pm, se)
    p1.finish()
    k("s_barrier")
    pf("pass1")
    L1 = v1_issue(k, I, T, sv1, SC)
    W2 = w2_issue(k, I, T, sw)
    k.s.free(sv1, sw)
    CL.issue(49152)
    free = [CL.drain() for _ in range(6)]
    CL.issue(free.pop(0)); CL.issue(free.pop(0))
    scan_coef(k, acc, Pm)
    hstore_addr(k, I, E1)
    pf("coef")
    E = lookback(k, I, E1, se)
    pf("lb")
    sh = srd(k, P['ws'], 8 << 20, WS_H)
    lasth = pass2f(k, I, acc, Pm, E1, E, sh)
    for _ in range(3): free.append(CL.drain())
    pf("pass2")
    sv2 = srd(k, P['ws'], 256 * V2_STR, WS_V2)
    state = dict(go=False, cur=None)
    p3 = Poll(k, sf, vp, 1, 1, FH)
    def hook(name):
        if name == 'pre_bar1': k.wait(lasth)
        if name == 'post_bar1':
            wave0_store(k, I, f"buffer_store_dword {one}, {vflag}, {sf}, {FH} offen {SC}")
            pf("hflag"); state['go'] = True
        if name == 't' and state['go'] and CL.n < 64:
            for _ in range(2):
                if CL.n & 3 == 0: state['cur'] = free.pop(0)
                CL.issue1(state['cur'])
        if name == 'pre_bar2': p3.issue()
        if name == 'post_bar2':
            while CL.nd < 16: CL.drain()
    V2 = ph2f(k, I, T, C2, W2, L1, LT1, LT2, sv2, hook)
    hold = {}
    if not O['v2late']: hold['v2'] = v2_store(k, *V2, sv2)
    pf("ph2")
    g3 = B3f(k, I, sh, CL)
    p3.finish()
    k("s_waitcnt lgkmcnt(0)\ns_barrier")
    pf("sync3")
    g3.prefill(range(2))
    sd = srd(k, P['dsk'], 2048)
    Ep = epi_issue_f(k, I, sg, sd); k.s.free(sd)
    G = gen_Gf(k, I)
    g3.prefill([2])
    if O['v2late']: hold['v2'] = v2_store(k, *V2, sv2)
    g3.alloc()
    xd_init(k, I, Ep, g3.acc, LX)
    pf("pref")
    p4 = Poll(k, sf, vp, 1, 1, FV)
    def pre_bar3(s):
        if s == 3: k.wait(hold['v2'])
        if s == 12: p4.finish()
    def post_bar3(s):
        if s == 3: wave0_store(k, I, f"buffer_store_dword {one}, {vflag}, {sf}, {FV} offen {SC}")
        if s == 10: p4.issue()
    def tail3(s, i):
        if s == 0 and i == 0: hold['L'] = v2_issue(k, I, sv2, SC)
    g3.tail = tail3
    acc = g3.main(lambda s, kk, q: pf(f"b{s}") if (kk == 1 and q == 0 and s % 4 == 3) else None, pre_bar3, post_bar3)
    pf("main3")
    so = srd(k, P['out'], SZ['out'])
    final(k, I, Ep, acc, G, hold['L'], 0, 32768, so, pf)
    pf("epi")
    pf.done()
    end(k)
    return k, LDS

def write(path, opt={}):
    k, lds = build(opt)
    open(path, "w").write(module(header(), [(k.name, 256, 256, lds)], [k]))
    print(path, k.stats)
    if PROF: json.dump([k.profnames], open(path[:-2] + ".json", "w"))

if __name__ == "__main__":
    opt = {}
    for a in sys.argv[2:]:
        n, v = a.split("="); opt[n] = int(v) if v.lstrip('-').isdigit() else v
    write(sys.argv[1] if len(sys.argv) > 1 else "outf.s", opt)
```

```python
from fused import *

def gen_F2(k, I):
    F = k.v.allocq(32); a = k.v.allocq(8); c = k.v.allocq(8); fr, ib, m1, m2, m3 = [k.v.alloc() for _ in range(5)]
    st = k.s.alloc(); odd = k.s.alloc(2)
    R_ = lambda kap, d: F[4 * kap + d]; M_ = lambda kap, d: F[16 + 4 * kap + d]
    k(f"""s_lshl_b32 {st}, {I['w']}, 4
    v_add_u32 {m3}, {st}, {I['n']}
    v_cvt_f32_u32 {fr}, {m3}
    v_mul_f32 {fr}, {fl(1/128)}, {fr}
    v_lshrrev_b32 {m1}, 1, {I['g']}
    v_lshlrev_b32 {m1}, 4, {m1}
    v_and_b32 {m2}, 1, {I['g']}
    v_lshl_add_u32 {m1}, {m2}, 2, {m1}
    v_cvt_f32_u32 {ib}, {m1}
    v_mul_f32 {ib}, {ib}, {fr}
    v_cmp_eq_u32 vcc, 0, {m3}""")
    for j in range(8): k(f"v_fmamk_f32 {a[j]}, {fr}, {fl(float(8*(j>>2) + (j&3)))}, {ib}")
    for j in range(8): k(f"v_cos_f32 {c[j]}, {a[j]}")
    for j in range(8): k(f"v_sin_f32 {a[j]}, {a[j]}")
    k(f"""v_mov_b32 {ib}, 0x80008000
    v_bfe_i32 {m2}, {I['n']}, 0, 1
    v_bfe_i32 {m1}, {I['n']}, 1, 1
    v_cmp_ne_u32 {odd}, 0, {m2}
    v_and_b32 {m2}, {ib}, {m2}
    v_and_b32 {m1}, {ib}, {m1}
    v_xor_b32 {m3}, {m1}, {m2}
    v_mov_b32 {fr}, 0xbf803f80""")
    for d in range(4):
        k(f"v_cvt_pk_bf16_f32 {R_(0,d)}, {c[2*d]}, {c[2*d+1]}\nv_cvt_pk_bf16_f32 {M_(0,d)}, -{a[2*d]}, -{a[2*d+1]}")
        k(f"v_cndmask_b32 {M_(0,d)}, {M_(0,d)}, {fr}, vcc")
    for d in range(4):
        k(f"""v_cndmask_b32 {R_(1,d)}, {R_(0,d)}, {M_(0,d)}, {odd}
        v_cndmask_b32 {M_(1,d)}, {M_(0,d)}, {R_(0,d)}, {odd}
        v_xor_b32 {R_(2,d)}, {m2}, {R_(0,d)}
        v_xor_b32 {M_(2,d)}, {m2}, {M_(0,d)}
        v_xor_b32 {R_(3,d)}, {m3}, {R_(1,d)}
        v_xor_b32 {M_(3,d)}, {m1}, {M_(1,d)}
        v_xor_b32 {R_(1,d)}, {m1}, {R_(1,d)}
        v_xor_b32 {M_(1,d)}, {m3}, {M_(1,d)}""")
    k.v.free(a, c, fr, ib, m1, m2, m3); k.s.free(st, odd)
    return F

def gen_G1b(k, I):
    G = k.v.allocq(32); a = k.v.allocq(8); c = k.v.allocq(8)
    f, b, sb, sel, mk = [k.v.alloc() for _ in range(5)]
    st = k.s.alloc()
    k(f"""v_lshrrev_b32 {f}, 1, {I['g']}
    v_lshlrev_b32 {f}, 3, {f}
    v_and_b32 {b}, 1, {I['g']}
    v_lshl_add_u32 {f}, {b}, 1, {f}
    v_cvt_f32_u32 {sb}, {f}
    v_bfe_i32 {f}, {I['n']}, 0, 1
    v_and_b32 {sel}, 0x02020202, {f}
    v_xor_b32 {sel}, 0x03020100, {sel}
    v_and_b32 {f}, 0x80000000, {f}
    v_bfe_i32 {mk}, {I['n']}, 1, 1
    v_and_b32 {mk}, 0x80008000, {mk}
    v_xor_b32 {mk}, {mk}, {f}
    s_and_b32 {st}, {I['w']}, 1
    s_lshl_b32 {st}, {st}, {I.get('khs', 6)}
    v_add_u32 {f}, {st}, {I['n']}
    v_cvt_f32_u32 {f}, {f}
    v_mul_f32 {f}, {fl(1/128)}, {f}""")
    for ib in range(2):
        if ib: k(f"v_add_f32 {f}, {fl(16/128)}, {f}")
        k(f"v_mul_f32 {b}, {f}, {sb}")
        for j in range(8): k(f"v_fmamk_f32 {a[j]}, {f}, {fl(float(16*(j>>2) + 4*((j>>1)&1) + (j&1)))}, {b}")
        for j in range(8): k(f"v_cos_f32 {c[j]}, {a[j]}")
        for j in range(8): k(f"v_sin_f32 {a[j]}, {a[j]}")
        for j in range(8): k(f"v_cvt_pk_bf16_f32 {G[16*ib+j]}, {c[j]}, -{a[j]}")
        for j in range(8): k(f"v_perm_b32 {G[16*ib+8+j]}, {G[16*ib+j]}, {G[16*ib+j]}, {sel}\nv_xor_b32 {G[16*ib+8+j]}, {mk}, {G[16*ib+8+j]}")
    k(f"""v_lshlrev_b32 {b}, 31, {I['n']}
    v_or_b32 {b}, 0x3f003f00, {b}
    v_cmp_eq_u32 vcc, 0, {I['g']}""")
    for ib in range(2): k(f"v_cndmask_b32 {G[16*ib]}, {G[16*ib]}, {b}, vcc")
    k.v.free(a, c, f, b, sb, sel, mk); k.s.free(st)
    return G

CORD = ('sf', 'm2f', 'si', 'm2i', 'm1f', 'twf', 'm1i', 'twi')
def coop_consts(k, I, T, lds, scale):
    O = k.v.allocq(16); a = k.v.alloc(4); c = k.v.alloc(4)
    nf, g4, f, b, t, u = [k.v.alloc() for _ in range(6)]
    def pair(dst, inv):
        for j in range(4): k(f"v_fmamk_f32 {a[j]}, {f}, {fl(float(j))}, {b}")
        for j in range(4): k(f"v_cos_f32 {c[j]}, {a[j]}")
        for j in range(4): k(f"v_sin_f32 {a[j]}, {a[j]}")
        for j in range(4):
            if not inv: k(f"v_cvt_pk_bf16_f32 {dst[j]}, {c[j]}, {a[j]}\nv_cvt_pk_bf16_f32 {dst[4+j]}, -{a[j]}, {c[j]}")
            else: k(f"v_cvt_pk_bf16_f32 {dst[j]}, {c[j]}, -{a[j]}\nv_cvt_pk_bf16_f32 {dst[4+j]}, {a[j]}, {c[j]}")
    def tw(dst):
        k(f"v_mul_f32 {f}, {fl(1/16)}, {f}\nv_mul_f32 {b}, {fl(1/16)}, {b}")
        for j in range(4): k(f"v_fmamk_f32 {a[j]}, {f}, {fl(float(j))}, {b}")
        for j in range(4): k(f"v_cos_f32 {dst[j]}, {a[j]}")
        for j in range(4): k(f"v_sin_f32 {dst[4+j]}, {a[j]}")
    A, B = O.q(0, 8), O.q(1, 8)
    k(f"""v_cvt_f32_u32 {nf}, {I['n']}
    v_cvt_f32_u32 {g4}, {I['g']}
    v_mul_f32 {g4}, 4.0, {g4}""")
    def wave(w):
        k(f"s_cmp_lg_u32 {I['w']}, {w}")
        return k.skip_if("s_cbranch_scc1")
    def ksp(sel, lim):
        k(f"""v_cvt_f32_u32 {u}, {T['sp']}
        v_mul_f32 {u}, {fl(-960.0)}, {u}
        v_cmp_lt_u32 vcc, {lim}, {sel}
        v_cvt_f32_u32 {t}, {T['ks']}
        v_cndmask_b32 {u}, 0, {u}, vcc
        v_add_f32 {t}, {t}, {u}""")
    with wave(0):
        ksp(I['n'], 7)
        k(f"v_fmamk_f32 {f}, {nf}, {fl(128.0)}, {t}\nv_mul_f32 {f}, {fl(1/2048)}, {f}\nv_mul_f32 {b}, {f}, {g4}")
        pair(A, False)
        k(f"""v_xor_b32 {t}, 3, {I['n']}
        v_cndmask_b32 {t}, {I['n']}, {t}, vcc
        v_cvt_f32_u32 {f}, {t}
        v_mul_f32 {f}, {fl(1/16)}, {f}
        v_mul_f32 {b}, {f}, {g4}""")
        pair(B, False)
        k(f"s_cmp_eq_u32 {T['sp']}, 0")
        with k.skip_if("s_cbranch_scc1"):
            k(f"v_cndmask_b32 {t}, 0, 16, vcc")
            for j in range(8): k(f"v_and_b32 {A[j]}, 0xffff, {A[j]}\nv_lshlrev_b32 {A[j]}, {t}, {A[j]}")
            k(f"v_cmp_eq_u32 vcc, 0, {I['n']}")
            for j in range(4): k(f"v_mov_b32 {t}, {hex(0x3f80 if j % 2 == 0 else 0xbf80)}\nv_cndmask_b32 {A[4+j]}, {A[4+j]}, {t}, vcc")
    with wave(1):
        ksp(I['g'], 1)
        k(f"""v_fmamk_f32 {t}, {g4}, {fl(128.0)}, {t}
        v_mul_f32 {b}, {t}, {nf}
        v_mul_f32 {b}, {fl(1/2048)}, {b}
        v_mul_f32 {f}, {fl(1/16)}, {nf}""")
        pair(A, True)
        k(f"""v_add_f32 {t}, {fl(3.0)}, {g4}
        v_cndmask_b32 {t}, {g4}, {t}, vcc
        v_mul_f32 {b}, {f}, {t}
        v_cndmask_b32 {f}, {f}, -{f}, vcc""")
        pair(B, True)
        k(f"s_cmp_eq_u32 {T['sp']}, 0")
        with k.skip_if("s_cbranch_scc1"):
            for j in range(4):
                k(f"""v_lshlrev_b32 {t}, 16, {A[j]}
                v_and_b32 {u}, 0xffff0000, {A[j]}
                v_add_f32 {t}, {t}, {t}
                v_add_f32 {u}, {u}, {u}
                v_cvt_pk_bf16_f32 {t}, {t}, {u}
                v_cndmask_b32 {A[j]}, {t}, 0, vcc
                v_cndmask_b32 {A[4+j]}, 0, {t}, vcc""")
            k(f"""v_lshlrev_b32 {t}, 31, {I['n']}
            v_or_b32 {t}, 0x3f803f80, {t}
            v_cmp_eq_u32 vcc, 0, {I['g']}
            v_cndmask_b32 {A[0]}, {A[0]}, {t}, vcc""")
    with wave(2):
        k(f"v_cvt_f32_u32 {u}, {T['k1']}\nv_fma_f32 {t}, {nf}, 4.0, {u}\nv_mul_f32 {f}, {fl(1/64)}, {t}\nv_mul_f32 {b}, {f}, {g4}")
        pair(A, False); tw(B)
    with wave(3):
        k(f"""v_cvt_f32_u32 {u}, {T['k1']}
        v_fma_f32 {t}, {g4}, 4.0, {u}
        v_mul_f32 {b}, {t}, {nf}
        v_mul_f32 {b}, {fl(1/64)}, {b}
        v_mul_f32 {f}, {fl(1/16)}, {nf}""")
        pair(A, True); tw(B)
        for j in range(8): k(f"v_mul_f32 {B[j]}, {fl(scale)}, {B[j]}")
    st = k.s.alloc()
    k(f"s_lshl_b32 {st}, {I['w']}, 12\ns_add_u32 {st}, {st}, {lds}\nv_lshl_add_u32 {t}, {I['l']}, 4, {st}")
    last = None
    for j in range(4): last = k(f"ds_write_b128 {t}, {O.q(j)} offset:{1024*j}")
    k.v.free(O, a, c, nf, g4, f, b, t, u); k.s.free(st)
    return last

def coop_read(k, I, lds, parked):
    C = {}; ad = k.v.alloc()
    k(f"v_lshlrev_b32 {ad}, 4, {I['l']}\nv_add_u32 {ad}, {lds}, {ad}")
    for j, n in enumerate(CORD):
        C[n] = parked[n] if n in parked else k.v.allocq(8)
        for h in range(2): k(f"ds_read_b128 {C[n].q(h)}, {ad} offset:{2048*j + 1024*h}")
    k.v.free(ad)
    return C

G_BYTES = 32768
def gate_issue2(k, I, sx, sgw):
    G = dict(x=k.v.allocq(16), w=k.v.allocq(8))
    va = k.v.alloc(); so = k.s.alloc(); s2_ = k.s.alloc()
    k(f"""v_lshlrev_b32 {va}, 4, {I['l']}
    s_lshl_b32 {so}, {I['ca']}, 18
    s_lshl_b32 {s2_}, {I['cb']}, 11
    s_add_u32 {so}, {so}, {s2_}
    s_lshl_b32 {s2_}, {I['w']}, 16
    s_add_u32 {so}, {so}, {s2_}
    s_add_u32 {s2_}, {so}, 32768""")
    for j in range(4):
        k(f"buffer_load_dwordx4 {G['x'].q(j)}, {va}, {sx}, {s2_ if j >> 1 else so} offen offset:{1024*(j&1)}")
    for j in range(2):
        k(f"buffer_load_dwordx4 {G['w'].q(j)}, {va}, {sgw}, 0 offen offset:{1024*j}")
    k.v.free(va); k.s.free(so, s2_)
    return G

def gate_compute2(k, I, G, sg, lds=None):
    a = k.v.alloc(2); t = k.v.alloc()
    so = k.s.alloc(); s2_ = k.s.alloc()
    k(f"v_mov_b32 {a[0]}, 0\nv_mov_b32 {a[1]}, 0")
    for j in range(8):
        for r in range(2):
            k(f"v_dot2c_f32_bf16 {a[r]}, {G['x'][8*r+j]}, {G['w'][j]}")
    k(f"""s_lshl_b32 {so}, {I['cb']}, 11
    s_lshl_b32 {s2_}, {I['ca']}, 7
    s_add_u32 {so}, {so}, {s2_}
    v_permlane32_swap_b32 {a[0]}, {a[1]}
    v_add_f32 {a[0]}, {a[0]}, {a[1]}
    v_mov_b32 {a[1]}, {a[0]}
    s_lshl_b32 {s2_}, {I['w']}, 3
    s_add_u32 {so}, {so}, {s2_}
    v_permlane16_swap_b32 {a[0]}, {a[1]}
    v_add_f32 {a[0]}, {a[0]}, {a[1]}""")
    for sh in (8, 4, 2, 1):
        k(f"v_add_f32 {a[0]}, {a[0]}, {a[0]} row_ror:{sh} row_mask:0xf bank_mask:0xf")
    k(f"""v_cvt_pk_bf16_f32 {a[0]}, {a[0]}, {a[0]}
    v_and_b32 {a[0]}, 0xffff0000, {a[0]}
    v_mul_f32 {a[0]}, {fl(-1.4426950408889634)}, {a[0]}
    v_exp_f32 {a[0]}, {a[0]}
    v_lshrrev_b32 {t}, 3, {I['l']}
    v_add_f32 {a[0]}, 1.0, {a[0]}
    v_rcp_f32 {a[0]}, {a[0]}
    s_mov_b32 exec_lo, 1
    s_mov_b32 exec_hi, 1
    v_cvt_pk_bf16_f32 {a[0]}, {a[0]}, {a[0]}
    v_and_b32 {a[0]}, 0xffff0000, {a[0]}""")
    if lds is None: last = k(f"buffer_store_dword {a[0]}, {t}, {sg}, {so} offen {SC}")
    else:
        k(f"s_add_u32 {s2_}, {s2_}, {lds}\nv_add_u32 {t}, {s2_}, {t}")
        last = k(f"ds_write_b32 {t}, {a[0]}")
    k("s_mov_b64 exec, -1")
    k.v.free(a, t, G['x'], G['w']); k.s.free(so, s2_)
    return last

def gate_store(k, I, sg, lds):
    t = k.v.alloc(2); so = k.s.alloc(); s2_ = k.s.alloc()
    k(f"s_cmp_lg_u32 {I['w']}, 0")
    with k.skip_if("s_cbranch_scc1"):
        k(f"""v_lshlrev_b32 {t[0]}, 2, {I['n']}
        v_add_u32 {t[1]}, {lds}, {t[0]}
        ds_read_b32 {t[1]}, {t[1]}
        s_lshl_b32 {so}, {I['cb']}, 11
        s_lshl_b32 {s2_}, {I['ca']}, 7
        s_add_u32 {so}, {so}, {s2_}
        s_mov_b64 exec, 0xffff""")
        last = k(f"buffer_store_dword {t[1]}, {t[0]}, {sg}, {so} offen {SC}")
        k("s_mov_b64 exec, -1")
    k.v.free(t); k.s.free(so, s2_)
    return last

def g_issue2(k, I, sg):
    g = k.v.allocq(16); va = k.v.alloc(); t = k.v.alloc(); so = k.s.alloc(); st = k.s.alloc()
    k(f"""v_lshrrev_b32 {va}, 1, {I['g']}
    v_lshlrev_b32 {va}, 7, {va}
    v_and_b32 {t}, 1, {I['g']}
    v_lshl_or_b32 {va}, {t}, 4, {va}
    s_lshl_b32 {so}, {I['ta']}, 11
    s_and_b32 {st}, {I['w']}, 1
    s_lshl_b32 {st}, {st}, {4 + I.get('khs', 6)}
    s_add_u32 {so}, {so}, {st}""")
    for ib in range(4): k(f"buffer_load_dwordx4 {g.q(ib)}, {va}, {sg}, {so} offen offset:{256*ib if 'khs' not in I else 1024*(ib>>1) + 256*(ib&1)} {SC}")
    k.v.free(va, t); k.s.free(so, st)
    return g

class WD2:
    def __init__(self, k, I, T, swr, swi, slots, xslot):
        self.k, self.I, self.T, self.sw, self.slots, self.xslot = k, I, T, (swr, swi), slots, xslot
        self.rows = R_ = k.s.allocq(8, 1); self.mw = k.s.alloc(); self.spw = k.s.alloc()
        self.va, self.a0, self.sg = k.v.alloc(), k.v.alloc(), k.v.alloc(2)
        st, s2_ = k.s.alloc(), k.s.alloc(); t = self.sg[1]
        k(f"""s_lshl_b32 {R_[0]}, {I['w']}, 9
        s_add_u32 {R_[0]}, {R_[0]}, {T['ks']}
        s_lshr_b32 {st}, {I['w']}, 1
        s_and_b32 {st}, {st}, {T['sp']}
        s_mul_i32 {st}, {st}, 960
        s_sub_u32 {st}, {R_[0]}, {st}
        s_mul_i32 {R_[0]}, {st}, 1026
        s_lshl1_add_u32 {R_[0]}, {T['k1']}, {R_[0]}
        s_sub_u32 {R_[1]}, {2048*1026 + 8}, {R_[0]}
        s_and_b32 {s2_}, {R_[0]}, 2
        s_and_b32 {R_[0]}, {R_[0]}, -4
        s_and_b32 {R_[1]}, {R_[1]}, -4""")
        for b in range(1, 4): k(f"s_add_u32 {R_[2*b]}, {R_[0]}, {131328*b}\ns_sub_u32 {R_[2*b+1]}, {R_[1]}, {131328*b}")
        k(f"""s_cmp_eq_u32 {st}, 0
        s_cselect_b32 {st}, {2048*1026}, 0
        s_cselect_b32 {self.spw}, {T['sp']}, 0
        s_sub_u32 {R_[1]}, {R_[1]}, {st}
        s_lshl_b32 {self.mw}, {I['w']}, 12
        s_add_u32 {s2_}, {s2_}, {self.mw}
        v_lshlrev_b32 {self.va}, 4, {I['l']}
        v_lshlrev_b32 {self.a0}, 9, {I['g']}
        v_lshl_add_u32 {self.a0}, {I['n']}, 3, {self.a0}
        v_sub_u32 {t}, {2048 + 1656}, {self.a0}
        v_cmp_lt_u32 vcc, 1, {I['g']}
        v_cndmask_b32 {self.a0}, {self.a0}, {t}, vcc
        v_cndmask_b32 {self.sg[0]}, 1.0, -1.0, vcc
        v_add_u32 {self.a0}, {s2_}, {self.a0}""")
        self.oa, self.la = k.v.alloc(), k.v.alloc()
        k(f"v_mov_b32 {self.oa}, {1024*1026}\nv_mov_b32 {self.la}, {xslot}\ns_cmp_lg_u32 {T['k1']}, 0")
        with k.skip_if("s_cbranch_scc1"):
            for b in range(4):
                k(f"""s_sub_u32 {st}, {R_[2*b+1]}, 8
                v_writelane_b32 {self.oa}, {st}, {2*b}
                v_writelane_b32 {self.oa}, {R_[2*b]}, {2*b+1}
                s_mov_b32 {st}, {slots[b]}
                v_writelane_b32 {self.la}, {st}, {2*b}
                v_writelane_b32 {self.la}, {st}, {2*b+1}""")
            k(f"""v_and_b32 {t}, 1, {I['l']}
            v_lshl_add_u32 {self.oa}, {t}, 10, {self.oa}
            s_and_b32 {st}, {s2_}, 2
            v_add_u32 {self.oa}, {st}, {self.oa}
            v_mul_u32_u24 {t}, {2048 + 1016}, {t}
            v_add3_u32 {self.la}, {self.la}, {t}, {s2_}""")
        k.s.free(st, s2_)
        self.n = 0; self.ld = None
    def issue1(self):
        k = self.k; b, q = self.n >> 2, self.n & 3
        if q & 1 == 0: k(f"s_add_u32 m0, {self.mw}, {self.slots[b] + 1024*q}")
        self.ld = k(f"buffer_load_dwordx4 {self.va}, {self.sw[q&1]}, {self.rows[2*b+(q>>1)]} offen offset:{1024*(q&1)} lds")
        self.n += 1
    def extra_issue(self):
        k, T = self.k, self.T; st = k.s.alloc(); self.ot = k.v.alloc(2)
        k(f"s_cmp_eq_u32 {self.spw}, 0")
        with k.skip_if("s_cbranch_scc1"):
            for dm in range(2):
                k(f"""s_add_u32 {st}, {self.rows[dm]}, {1024*1026}
                s_mov_b32 m0, {self.xslot + 2048*dm}
                buffer_load_dwordx4 {self.va}, {self.sw[0]}, {st} offen lds
                buffer_load_dwordx4 {self.va}, {self.sw[1]}, {st} offen offset:1024 lds""")
        k(f"s_cmp_lg_u32 {T['k1']}, 0")
        with k.skip_if("s_cbranch_scc1"):
            k(f"""s_mov_b64 exec, 0x3ff
            buffer_load_short_d16_hi {self.ot[0]}, {self.oa}, {self.sw[0]}, 0 offen
            buffer_load_short_d16_hi {self.ot[1]}, {self.oa}, {self.sw[1]}, 0 offen offset:1024
            s_mov_b64 exec, -1""")
        k.s.free(st)
    def gather_all(self):
        k, T = self.k, self.T
        Wf = k.v.allocq(32); X = k.v.allocq(8); ad = self.va
        k.wait(self.ld)
        k(f"s_cmp_lg_u32 {T['k1']}, 0")
        with k.skip_if("s_cbranch_scc1"):
            k(f"""s_mul_i32 exec_lo, {self.spw}, 0x300
            s_or_b32 exec_lo, exec_lo, 0xff
            s_mov_b32 exec_hi, 0
            ds_read_u16_d16_hi {X[0]}, {self.la}
            ds_read_u16_d16_hi {X[1]}, {self.la} offset:1024
            v_add_f32 {X[0]}, {X[0]}, {self.ot[0]}
            v_sub_f32 {X[1]}, {X[1]}, {self.ot[1]}
            v_mul_f32 {X[0]}, 0.5, {X[0]}
            v_mul_f32 {X[1]}, 0.5, {X[1]}
            v_cvt_pk_bf16_f32 {X[0]}, {X[0]}, {X[1]}
            ds_write_b16 {self.la}, {X[0]}
            ds_write_b16_d16_hi {self.la}, {X[0]} offset:1024
            s_mov_b64 exec, -1""")
        def rd(out, slot):
            a = self.a0
            if slot >= 61440: k(f"v_add_u32 {ad}, {slot}, {self.a0}"); a = ad; slot = 0
            for r in range(4):
                for x in range(2): self.lastrd = k(f"ds_read_u16_d16_hi {out[4*x+r]}, {a} offset:{slot + 128*r + 1024*x}")
        k(f"s_cmp_eq_u32 {self.spw}, 0")
        with k.skip_if("s_cbranch_scc1"): rd(X, self.xslot)
        for b in range(4): rd(Wf.q(b, 8), self.slots[b])
        k.v.free(self.va, self.a0, self.oa, self.la, self.ot); k.s.free(self.rows, self.mw, self.spw, *self.sw)
        return Wf, X
    def fix(self, Wf, X):
        k = self.k
        k.wait(self.lastrd)
        for o in [Wf.q(b, 8) for b in range(4)] + [X]:
            for h in (4, 6): k(f"v_pk_mul_f32 {o[h:h+2]}, {self.sg}, {o[h:h+2]} op_sel_hi:[0,1]")
        k.v.free(self.sg)
```

```python
import sys, json, re
from fused import *
from opt1 import *
from b32 import *
from b3s import *

class WDir:
    def __init__(self, k, I, T, swr, swi, lt2):
        self.k, self.I, self.T, self.sw, self.lt2 = k, I, T, (swr, swi), lt2
        self.rows = k.s.alloc(8, 4)
        self.va = k.v.alloc(); self.mw = k.s.alloc(); self.so = k.s.alloc()
        st = k.s.alloc(); R_ = self.rows
        k(f"""s_lshl_b32 {R_[0]}, {I['w']}, 9
        s_add_u32 {R_[0]}, {R_[0]}, {T['ks']}
        s_lshr_b32 {st}, {I['w']}, 1
        s_and_b32 {st}, {st}, {T['sp']}
        s_mul_i32 {st}, {st}, 960
        s_sub_u32 {R_[0]}, {R_[0]}, {st}""")
        for b in range(1, 4): k(f"s_add_u32 {R_[2*b]}, {R_[0]}, {128*b}")
        for b in range(4): k(f"s_sub_u32 {R_[2*b+1]}, 2048, {R_[2*b]}\ns_and_b32 {R_[2*b+1]}, {R_[2*b+1]}, 2047")
        self.spw = k.s.alloc()
        k(f"""s_cmp_eq_u32 {I['w']}, 0
        s_cselect_b32 {self.spw}, {T['sp']}, 0
        s_cmp_eq_u32 {self.spw}, 1
        s_cselect_b32 {R_[1]}, 1024, {R_[1]}""")
        for j in range(8): k(f"s_mul_i32 {R_[j]}, {R_[j]}, 1026")
        k(f"v_lshlrev_b32 {self.va}, 4, {I['l']}\ns_lshl_b32 {self.mw}, {I['w']}, 12")
        k.s.free(st)
        self.n = 0; self.slot = {}; self.ld = None
    def issue1(self, slot):
        k = self.k; b, q = self.n >> 2, self.n & 3
        if q == 0: self.slot[b] = slot
        if q & 1 == 0: k(f"s_and_b32 {self.so}, {self.rows[2*b+(q>>1)]}, -16")
        k(f"s_add_u32 m0, {self.mw}, {self.slot[b] + 1024*q}")
        self.ld = k(f"buffer_load_dwordx4 {self.va}, {self.sw[q&1]}, {self.so} offen lds")
        self.n += 1
    def tail_issue(self):
        k = self.k; self.tc = k.v.allocq(8); ta = k.v.alloc()
        k(f"v_mov_b32 {ta}, {BIG}")
        for j in range(8): k(f"v_writelane_b32 {ta}, {self.rows[j]}, {j}")
        k(f"v_and_b32 {ta}, -16, {ta}")
        k("s_mov_b64 exec, 255")
        for a in range(2): k(f"buffer_load_dwordx4 {self.tc.q(a)}, {ta}, {self.sw[a]}, 0 offen offset:1024")
        k("s_mov_b64 exec, -1")
        k.v.free(ta)
    def tail_write(self):
        k = self.k; ad = k.v.alloc(); st = k.s.alloc()
        k(f"""s_lshl_b32 {st}, {self.I['w']}, 8
        s_add_u32 {st}, {st}, {self.lt2}
        v_lshl_add_u32 {ad}, {self.I['l']}, 11, {st}
        s_mov_b64 exec, 255
        ds_write_b128 {ad}, {self.tc.q(0)}
        ds_write_b128 {ad}, {self.tc.q(1)} offset:1024
        s_mov_b64 exec, -1""")
        k.v.free(ad, self.tc); k.s.free(st, self.so, *self.sw); k.v.free(self.va)
    def prep(self):
        k, I, T = self.k, self.I, self.T
        self.a0, self.a3, self.sg = k.v.alloc(), k.v.alloc(), k.v.alloc(2); self.up = k.s.alloc(2); self.ov = k.s.alloc(2)
        self.d, self.m = k.s.alloc(), k.s.alloc(); t = k.v.alloc(); tb = k.s.alloc(); a0, a3 = self.a0, self.a3
        k(f"""s_and_b32 {self.d}, {self.rows[0]}, 15
        s_and_b32 {self.m}, {self.rows[1]}, 15
        s_add_u32 {self.m}, {self.m}, 2048
        v_lshlrev_b32 {a0}, 9, {I['g']}
        v_lshl_add_u32 {a0}, {I['n']}, 3, {a0}
        s_lshl_b32 {tb}, {T['k1']}, 1
        v_add_u32 {a0}, {tb}, {a0}
        s_add_u32 {tb}, {self.m}, 1664
        v_sub_u32 {t}, {tb}, {a0}
        v_add_u32 {a0}, {self.d}, {a0}
        v_cmp_lt_u32 {self.up}, 1, {I['g']}
        v_cndmask_b32 {a0}, {a0}, {t}, {self.up}
        v_cndmask_b32 {self.sg[0]}, 1.0, -1.0, {self.up}
        v_add_u32 {a3}, 384, {a0}
        v_and_b32 {t}, 1024, {a3}
        v_cmp_ne_u32 {self.ov}, 0, {t}
        s_lshl_b32 {tb}, {I['w']}, 8
        s_add_u32 {tb}, {tb}, {self.lt2 - 1024}
        v_add_u32 {t}, {tb}, {a3}
        v_add_u32 {a0}, {self.mw}, {a0}
        v_add_u32 {a3}, {self.mw}, {a3}
        v_cndmask_b32 {a3}, {a3}, {t}, {self.ov}
        v_sub_u32 {a3}, {a3}, {a0}
        v_cndmask_b32 {self.sg[1]}, 0, -1, {self.ov}""")
        k.v.free(t); k.s.free(tb)
    def gather(self, b, out, second=False):
        k, I, T = self.k, self.I, self.T
        a0, a3 = k.v.alloc(), k.v.alloc()
        k(f"""v_add_u32 {a0}, {self.slot[b]}, {self.a0}
        v_and_b32 {a3}, {hex((4096*b - self.slot[b]) & 0xffffffff)}, {self.sg[1]}
        v_add3_u32 {a3}, {a3}, {self.a3}, {a0}""")
        if b == 0:
            k(f"s_cmp_eq_u32 {self.spw}, 0")
            with k.skip_if("s_cbranch_scc1"):
                if second: k(f"s_mov_b32 exec_hi, 0\nv_add_u32 {a0}, 2048, {a0}\nv_add_u32 {a3}, 2048, {a3}\ns_mov_b64 exec, -1")
                else: k(f"s_mov_b32 exec_lo, 0\nv_subrev_u32 {a0}, 2048, {a0}\nv_subrev_u32 {a3}, 2048, {a3}\ns_mov_b64 exec, -1")
        last = None
        for r in range(4):
            for a in range(2):
                last = k(f"ds_read_u16_d16_hi {out[4*a+r]}, {a0 if r < 3 else a3} offset:{(128*r if r < 3 else 0) + 1024*a}")
        k.v.free(a0, a3)
        return last
    def symm(self, outs):
        k, I = self.k, self.I
        al = k.v.allocq(2 * len(outs), 2); t = k.v.alloc(2); d, m = k.s.alloc(), k.s.alloc()
        for j, (b, out, second) in enumerate(outs):
            k(f"""s_add_u32 {m}, {self.m}, {self.mw}
            s_add_u32 {m}, {m}, {self.slot[b]}
            s_lshl_b32 {d}, {I['w']}, 8
            s_add_u32 {d}, {d}, {self.d}
            s_add_u32 {d}, {d}, {self.lt2 + 4096*b}""")
            if b == 0:
                k(f"s_lshl_b32 vcc_lo, {self.spw}, 11")
                k(f"s_add_u32 {d}, {d}, vcc_lo" if second else f"s_sub_u32 {m}, {m}, vcc_lo")
            k(f"""v_mov_b32 {t[0]}, {m}
            v_mov_b32 {t[1]}, {d}
            v_cndmask_b32 {t[0]}, {t[0]}, {t[1]}, {self.up}
            ds_read_u16_d16_hi {al[2*j]}, {t[0]}
            ds_read_u16_d16_hi {al[2*j+1]}, {t[0]} offset:1024""")
        k("s_waitcnt lgkmcnt(0)")
        for lo, r in ((True, 0), (False, 3)):
            k(f"s_mov_b32 exec_lo, {1 if lo else 0}\ns_mov_b32 exec_hi, {0 if lo else 1}")
            for j, (b, out, second) in enumerate(outs):
                k(f"""v_add_f32 {out[r]}, {out[r]}, {al[2*j]}
                v_sub_f32 {out[4+r]}, {out[4+r]}, {al[2*j+1]}
                v_mul_f32 {out[r]}, 0.5, {out[r]}
                v_mul_f32 {out[4+r]}, 0.5, {out[4+r]}""")
        k("s_mov_b64 exec, -1")
        k.v.free(al, t); k.s.free(d, m)
    def sign(self, out):
        for h in (4, 6): self.k(f"v_pk_mul_f32 {out[h:h+2]}, {self.sg}, {out[h:h+2]} op_sel_hi:[0,1]")
    def done(self):
        self.k.v.free(self.a0, self.a3, self.sg); self.k.s.free(self.rows, self.mw, self.spw, self.up, self.ov, self.d, self.m)

def mf2(k, M, data_is_A, d, o):
    for c in range(2):
        A, B = (d, M.q(c)) if data_is_A else (M.q(c), d)
        k(f"v_mfma_f32_16x16x32_bf16 {o.q(c)}, {A}, {B}, 0")

def ph2_w(k, T, WD):
    Wf = k.v.allocq(32); X = k.v.allocq(8)
    k.wait(WD.ld)
    k(f"s_cmp_eq_u32 {T['sp']}, 0")
    with k.skip_if("s_cbranch_scc1"):
        WD.gather(0, X, True)
    for b in range(4): WD.lastrd = WD.gather(b, Wf.q(b, 8))
    return Wf, X

def ph2_wfix(k, T, WD, Wf, X):
    k.wait(WD.lastrd)
    k(f"s_cmp_lg_u32 {T['k1']}, 0")
    with k.skip_if("s_cbranch_scc1"):
        WD.symm([(b, Wf.q(b, 8), False) for b in range(4)] + [(0, X, True)])
    for b in range(4): WD.sign(Wf.q(b, 8))
    WD.sign(X)
    WD.done()

def ph2_s1(k, I, C, L, lds1):
    D = k.v.allocq(8); acc = k.v.allocq(16); a0, ad = k.v.alloc(), k.v.alloc(); st = k.s.alloc()
    k(f"""v_and_b32 {a0}, 7, {I['n']}
    v_lshlrev_b32 {ad}, 2, {I['g']}
    v_xor_b32 {a0}, {a0}, {ad}
    v_lshlrev_b32 {a0}, 4, {a0}
    v_lshl_or_b32 {a0}, {I['n']}, 10, {a0}
    s_lshl_b32 {st}, {I['w']}, 8
    s_add_u32 {st}, {st}, {lds1}
    v_add_u32 {a0}, {st}, {a0}""")
    def mov(b):
        for j in range(4): k(f"v_mov_b32 {D[4*(b&1)+j]}, {L[4*j+b]}")
    def out(b, o):
        z = acc.q(b & 1, 8)
        k(f"v_xor_b32 {ad}, {16*b}, {a0}")
        for r in range(4): k(f"v_cvt_pk_bf16_f32 {o[r]}, {z[r]}, {z[4+r]}")
        return k(f"ds_write_b128 {ad}, {o}")
    mov(0); mov(1)
    mf2(k, C['sf'], True, D.q(0), acc.q(0, 8)); mf2(k, C['sf'], True, D.q(1), acc.q(1, 8))
    mov(2); mov(3)
    out(0, L.q(3)); mf2(k, C['sf'], True, D.q(0), acc.q(0, 8))
    out(1, L.q(0)); mf2(k, C['sf'], True, D.q(1), acc.q(1, 8))
    out(2, L.q(1)); last = out(3, L.q(2))
    k.v.free(D, acc, a0, ad, L, C.pop('sf')); k.s.free(st)
    return last

def ph2_mid(k, I, T, C, Wf, X, lds1, lds2, mark):
    D = k.v.allocq(16); acc = k.v.allocq(32); tmp = k.v.alloc(4); ad = k.v.alloc(); a0 = k.v.alloc(); st = k.s.alloc(); Xd = k.v.allocq(4)
    z = lambda b, c: acc.q(2 * b + c)
    def stage(M, data_is_A):
        for b in range(4): mf2(k, M, data_is_A, D.q(b), acc.q(b, 8))
    k(f"""s_and_b32 {st}, {I['w']}, 1
    s_lshl_b32 {st}, {st}, 2
    v_xor_b32 {ad}, {st}, {I['l']}
    s_lshl_b32 {st}, {I['w']}, 12
    s_add_u32 {st}, {st}, {lds1}
    v_lshl_add_u32 {a0}, {ad}, 4, {st}""")
    for b in range(4): k(f"v_xor_b32 {ad}, {16*b}, {a0}\nds_read_b128 {D.q(b)}, {ad} offset:{1024*b}")
    mark(0)
    stage(C['m1f'], True)
    def mulstage(w, conj, M, data_is_A):
        for b in range(4):
            wr, wi = w(b)
            cmul_pack(k, z(b, 0), z(b, 1), wr, wi, conj, D.q(b), tmp)
            if b: mf2(k, M, data_is_A, D.q(b - 1), acc.q(b - 1, 8))
        mf2(k, M, data_is_A, D.q(3), acc.q(3, 8))
    mulstage(lambda b: (C['twf'].q(0), C['twf'].q(1)), True, C['m2f'], False)
    mark(1)
    k(f"s_cmp_eq_u32 {T['sp']}, 0")
    with k.skip_if("s_cbranch_scc1"):
        cmul_pack(k, z(0, 0), z(0, 1), X.q(0), X.q(1), False, Xd, tmp)
        mf2(k, C['m2i'], True, Xd.q(0), X)
        cmul_pack(k, X.q(0), X.q(1), C['twi'].q(0), C['twi'].q(1), False, Xd, tmp)
        mf2(k, C['m1i'], False, Xd.q(0), X)
    mulstage(lambda b: (Wf.q(2 * b), Wf.q(2 * b + 1)), False, C['m2i'], True)
    mark(2)
    mulstage(lambda b: (C['twi'].q(0), C['twi'].q(1)), False, C['m1i'], False)
    mark(3)
    k(f"""v_lshlrev_b32 {ad}, 12, {I['g']}
    v_lshl_add_u32 {ad}, {I['n']}, 4, {ad}
    s_lshl_b32 {st}, {I['w']}, 8
    s_add_u32 {st}, {st}, {lds2}
    v_add_u32 {ad}, {st}, {ad}""")
    k(f"s_sub_u32 {st}, {T['sp']}, 1\ns_or_b32 {st}, {st}, {I['w']}\ns_cmp_lg_u32 {st}, 0")
    with k.skip_if("s_cbranch_scc1"):
        for r in range(4): k(f"v_mov_b32 {z(0,1)[r]}, {X[4+r]}")
    for r in range(4):
        for b in range(4): k(f"v_cvt_pk_bf16_f32 {D[4*r+b]}, {z(b,0)[r]}, {z(b,1)[r]}")
        k(f"ds_write_b128 {ad}, {D.q(r)} offset:{1024*r}")
    k.v.free(D, acc, tmp, ad, a0, Xd, X, Wf); k.s.free(st)
    for n in ('m1f', 'twf', 'm2f', 'm2i', 'twi', 'm1i'):
        r = C.pop(n)
        if r[0].kind == 'v': k.v.free(r)

def ph2_s6(k, I, C, lds2):
    D = k.v.allocq(16); acc = k.v.allocq(32); ad = k.v.alloc(); st = k.s.alloc(); so = k.s.alloc()
    k(f"s_lshl_b32 {st}, {I['w']}, 12\ns_add_u32 {st}, {st}, {lds2}\nv_lshl_add_u32 {ad}, {I['l']}, 4, {st}")
    for b in range(4): k(f"ds_read_b128 {D.q(b)}, {ad} offset:{1024*b}")
    k(f"""s_mov_b32 {st}, {64*V2_STR}
    v_mul_lo_u32 {ad}, {I['g']}, {st}
    v_lshl_add_u32 {ad}, {I['n']}, 2, {ad}
    s_mul_i32 {so}, {I['w']}, {4*V2_STR}
    s_lshr_b32 {st}, {I['slot']}, 4
    s_lshl_b32 {st}, {st}, 12
    s_add_u32 {so}, {so}, {st}
    s_lshl_b32 {st}, {I['k1p']}, 10
    s_add_u32 {so}, {so}, {st}
    s_and_b32 {st}, {I['slot']}, 15
    s_lshl_b32 {st}, {st}, 6
    s_add_u32 {so}, {so}, {st}""")
    for b in range(4): mf2(k, C['si'], False, D.q(b), acc.q(b, 8))
    for b in range(4):
        for r in range(4): k(f"v_cvt_pk_bf16_f32 {D[4*b+r]}, {acc[8*b+r]}, {acc[8*b+4+r]}")
    r = C.pop('si')
    if r[0].kind == 'v': k.v.free(r)
    k.v.free(acc); k.s.free(st)
    return D, ad, so

def park(k, C, names, A):
    for j, n in enumerate(names):
        dst = A[8 * j:8 * j + 8]
        for i in range(8): k(f"v_accvgpr_write_b32 {dst[i]}, {C[n][i]}")
        k.v.free(C[n]); C[n] = dst

def v2_issue2(k, I, sv2):
    L = k.v.allocq(16); va = k.v.alloc(); so = k.s.alloc(); st = k.s.alloc()
    k(f"""v_lshlrev_b32 {va}, 4, {I['l']}
    s_lshl_b32 {so}, {I['ta']}, 4
    s_add_u32 {so}, {so}, {I['tb']}
    s_mul_i32 {so}, {so}, {V2_STR}
    s_lshl_b32 {st}, {I['w']}, 12
    s_add_u32 {so}, {so}, {st}""")
    for j in range(4): k(f"buffer_load_dwordx4 {L.q(j)}, {va}, {sv2}, {so} offen offset:{1024*j} {SC}")
    k.v.free(va); k.s.free(so, st)
    return L

pk0 = pk
def y_stage2(k, I, L, ldsY, scal=False, spec=None):
    Z = k.v.allocq(16, 2); T = k.v.allocq(16, 2); O = k.v.allocq(8); ad = k.v.alloc(); st = k.s.alloc()
    z = lambda j, c: Z.q(2 * j + c, 2); t = lambda j, c: T.q(2 * j + c, 2)
    k(f"s_lshl_b32 {st}, {I['w']}, 10\ns_add_u32 {st}, {st}, {ldsY}\nv_lshl_add_u32 {ad}, {I['l']}, 4, {st}")
    last = None
    def pk(k, op, d, x, y):
        if not scal: return pk0(k, op, d, x, y)
        for u in range(2): k(f"v_{'add' if op == '+' else 'sub'}_f32 {d[u]}, {x[u]}, {y[u]}")
    for h in range(2):
        for j in range(4):
            for u in range(2):
                k(f"v_lshlrev_b32 {z(j,0)[u]}, 16, {L[4*j+2*h+u]}\nv_and_b32 {z(j,1)[u]}, 0xffff0000, {L[4*j+2*h+u]}")
        for c in range(2):
            pk(k, '+', t(0, c), z(0, c), z(2, c)); pk(k, '-', t(1, c), z(0, c), z(2, c)); pk(k, '+', t(2, c), z(1, c), z(3, c))
        pk(k, '-', t(3, 0), z(3, 1), z(1, 1)); pk(k, '-', t(3, 1), z(1, 0), z(3, 0))
        k(f"s_cmp_lg_u32 {spec or I['w']}, 0")
        with k.skip_if("s_cbranch_scc1"):
            k("s_mov_b64 exec, 15")
            k(f"""v_pk_add_f32 {t(2,0)}, {z(1,0)}, {z(1,0)}
            v_pk_add_f32 {t(2,1)}, {z(3,0)}, {z(3,0)}
            v_pk_add_f32 {t(3,0)}, {z(1,1)}, {z(1,1)} neg_lo:[1,1] neg_hi:[1,1]
            v_pk_add_f32 {t(3,1)}, {z(3,1)}, {z(3,1)} neg_lo:[1,1] neg_hi:[1,1]""")
            k("s_mov_b64 exec, -1")
        for m in range(4):
            for c in range(2):
                pk(k, '+' if m < 2 else '-', z(m, c), t(m & 1, c), t(2 + (m & 1), c))
                dst = O[2 * m + c] if h == 0 else L[4 * m + 2 * c + 1]
                k(f"v_cvt_pk_bf16_f32 {dst}, {z(m,c)[0]}, {z(m,c)[1]}")
    for m in range(4):
        k(f"v_mov_b32 {L[4*m]}, {O[2*m]}\nv_mov_b32 {L[4*m+2]}, {O[2*m+1]}")
        last = k(f"ds_write_b128 {ad}, {L.q(m)} offset:{4096*m}")
    k.v.free(Z, T, O, ad, L); k.s.free(st)
    return last

def gen_G1(k, I):
    G = k.v.allocq(32)
    f, b, sb, a, c, s = [k.v.alloc() for _ in range(6)]
    st = k.s.alloc()
    k(f"""v_lshrrev_b32 {a}, 1, {I['g']}
    v_lshlrev_b32 {a}, 3, {a}
    v_and_b32 {c}, 1, {I['g']}
    v_lshl_add_u32 {a}, {c}, 1, {a}
    v_cvt_f32_u32 {sb}, {a}""")
    for ib in range(2):
        k(f"""s_and_b32 {st}, {I['w']}, 1
        s_lshl_b32 {st}, {st}, 6
        s_add_u32 {st}, {st}, {16*ib}
        v_add_u32 {a}, {st}, {I['n']}
        v_cvt_f32_u32 {f}, {a}
        v_mul_f32 {f}, {fl(1/128)}, {f}
        v_mul_f32 {b}, {f}, {sb}""")
        for kap in range(4):
            for d in range(4):
                sl = 16 * kap + 4 * (d >> 1) + (d & 1)
                k(f"""v_fmamk_f32 {a}, {f}, {fl(float(sl))}, {b}
                v_cos_f32 {c}, {a}
                v_sin_f32 {s}, {a}
                v_cvt_pk_bf16_f32 {G[16*ib+4*kap+d]}, {c}, -{s}""")
    k(f"""v_lshlrev_b32 {c}, 31, {I['n']}
    v_or_b32 {c}, 0x3f003f00, {c}
    v_cmp_eq_u32 vcc, 0, {I['g']}""")
    for ib in range(2): k(f"v_cndmask_b32 {G[16*ib]}, {G[16*ib]}, {c}, vcc")
    k.v.free(f, b, sb, a, c, s); k.s.free(st)
    return G

def gen_G2(k, I, G):
    G2 = k.v.allocq(32); mk = k.v.alloc(2)
    k(f"""v_and_b32 {mk[0]}, 1, {I['g']}
    v_mul_u32_u24 {mk[0]}, 0x8000, {mk[0]}
    v_lshl_or_b32 {mk[0]}, {mk[0]}, 16, {mk[0]}
    v_xor_b32 {mk[1]}, 0x80000000, {mk[0]}""")
    for j in range(32):
        if j & 1: k(f"v_alignbit_b32 {G2[j]}, {G[j]}, {G[j]}, 16\nv_xor_b32 {G2[j]}, {mk[1]}, {G2[j]}")
        else: k(f"v_xor_b32 {G2[j]}, {mk[0]}, {G[j]}")
    k.v.free(mk)
    return G2

def xkeep(k, I, ldsX):
    XK = k.v.allocq(16, 2); ad = k.v.alloc(2); t = k.v.alloc(2); st = k.s.alloc()
    k(f"""s_and_b32 {st}, {I['w']}, 1
    s_lshl_b32 {st}, {st}, 13
    s_add_u32 {st}, {st}, {ldsX}
    v_lshrrev_b32 {t[0]}, 2, {I['l']}
    v_lshlrev_b32 {t[0]}, 7, {t[0]}
    v_and_b32 {t[1]}, 3, {I['l']}
    v_lshl_or_b32 {t[0]}, {t[1]}, 3, {t[0]}
    v_add_u32 {t[0]}, {st}, {t[0]}
    v_bfe_u32 {t[1]}, {I['l']}, 3, 2
    s_and_b32 {st}, {I['w']}, 2
    v_xor_b32 {t[1]}, {st}, {t[1]}
    v_lshl_add_u32 {ad[0]}, {t[1]}, 5, {t[0]}
    v_xor_b32 {ad[1]}, 32, {ad[0]}""")
    for mm in range(2):
        for ib in range(4): k(f"ds_read_b64_tr_b16 {XK.q(4*mm+ib,2)}, {ad[mm]} offset:{2048*ib}")
    k.v.free(ad, t); k.s.free(st)
    return XK

def dsk_issue(k, I, sd):
    Dk = k.v.alloc(2); va = k.v.alloc(); so = k.s.alloc(); st = k.s.alloc()
    k(f"""v_lshlrev_b32 {va}, 1, {I['n']}
    s_lshl_b32 {so}, {I['tb']}, 5
    s_lshr_b32 {st}, {I['w']}, 1
    s_lshl_b32 {st}, {st}, 10
    s_add_u32 {so}, {so}, {st}""")
    for mm in range(2): k(f"buffer_load_short_d16_hi {Dk[mm]}, {va}, {sd}, {so} offen offset:{512*mm}")
    k.v.free(va); k.s.free(so, st)
    return Dk

def xd_init2(k, XK, Dk, acc):
    for mm in range(2):
        sel = f" op_sel:[{mm},0] op_sel_hi:[{mm},1]"
        for ib in range(4):
            a = acc.q(8 * mm + ib); x = XK.q(4 * mm + ib, 2)
            k(f"""v_lshlrev_b32 {a[0]}, 16, {x[0]}
            v_and_b32 {a[1]}, 0xffff0000, {x[0]}
            v_lshlrev_b32 {a[2]}, 16, {x[1]}
            v_and_b32 {a[3]}, 0xffff0000, {x[1]}
            v_pk_mul_f32 {a[0:2]}, {Dk}, {a[0:2]}{sel}
            v_pk_mul_f32 {a[2:4]}, {Dk}, {a[2:4]}{sel}""")
    k.v.free(XK, Dk)

def g_issue(k, I, sg):
    g = k.v.allocq(16); va = k.v.alloc(); so = k.s.alloc(); st = k.s.alloc()
    k(f"""v_lshlrev_b32 {va}, 4, {I['g']}
    s_lshl_b32 {so}, {I['ta']}, 9
    s_and_b32 {st}, {I['w']}, 1
    s_lshl_b32 {st}, {st}, 8
    s_add_u32 {so}, {so}, {st}""")
    for ib in range(4): k(f"buffer_load_dwordx4 {g.q(ib)}, {va}, {sg}, {so} offen offset:{64*ib} {SC}")
    k.v.free(va); k.s.free(so, st)
    return g

def pass1c(k, I, acc, Pm, ldsE):
    er, ei, ta, tb = [k.v.alloc(2) for _ in range(4)]
    L = Pm['L1']
    cr, ci = upair(acc, 0, 0), upair(acc, 0, 1)
    outs = [(er, ei), (ta, tb)]
    for j in range(1, 16):
        nr, ni = outs[(15 - j) & 1]
        k(f"""v_pk_fma_f32 {nr}, {L}, {cr}, {upair(acc,j,0)}{BC0}
        v_pk_fma_f32 {ni}, {L}, {ci}, {upair(acc,j,1)}{BC0}
        v_pk_fma_f32 {nr}, {L}, {ci}, {nr}{BC1}{NEG0}
        v_pk_fma_f32 {ni}, {L}, {cr}, {ni}{BC1}""")
        cr, ci = nr, ni
    cfma(k, ta, Pm['L16'], (er[0], ei[0]), (er[1], ei[1]))
    k(f"""v_mov_b32 {tb[0]}, {ta[0]}
    v_mov_b32 {tb[1]}, {ta[1]}
    v_permlane32_swap_b32 {ta[0]}, {tb[0]}
    v_permlane32_swap_b32 {ta[1]}, {tb[1]}""")
    cfma(k, tb, Pm['L32'], ta, tb)
    w = k(f"ds_write_b64 {Pm['lde']}, {tb}")
    return dict(er=er, ei=ei, lo=ta, ew=tb, w=w)

def scan_addr(k, I, Pm, ldsE):
    lde, va = k.v.alloc(), k.v.alloc(); t = k.v.alloc(); st = k.s.alloc(); s2_ = k.s.alloc()
    k(f"""v_lshlrev_b32 {lde}, 3, v0
    v_add_u32 {lde}, {ldsE + 4096}, {lde}
    s_sub_u32 {st}, 15, {I['ca']}
    s_lshl_b32 {st}, {st}, 9
    s_and_b32 {s2_}, {I['w']}, 1
    s_lshl_b32 {s2_}, {s2_}, 8
    s_add_u32 {st}, {st}, {s2_}
    v_and_b32 {va}, 31, {I.get('lp', I['l'])}
    v_lshl_add_u32 {va}, {va}, 3, {st}""")
    if 'lp' in I: k.v.free(I.pop('lp'))
    Pm['lde'], Pm['eva'] = lde, va
    k.v.free(t); k.s.free(st, s2_)

def publish(k, I, E1, Pm, se):
    e0 = k.v.alloc(2); t = k.v.alloc()
    k(f"v_and_b32 {Pm['lde']}, {hex(0xfffffbff)}, {Pm['lde']}\nds_read_b64 {e0}, {Pm['lde']}")
    k(f"s_cmp_lt_u32 {I['w']}, 2")
    with k.skip_if("s_cbranch_scc1"):
        cfma(k, E1['ew'], Pm['L64'], e0, E1['ew'])
        k(f"""v_min_u32 {E1['ew'][0]}, -2, {E1['ew'][0]}
        v_min_u32 {E1['ew'][1]}, -2, {E1['ew'][1]}
        s_mov_b32 exec_hi, 0
        buffer_store_dwordx2 {E1['ew']}, {Pm['eva']}, {se}, 0 offen sc1
        s_mov_b64 exec, -1""")
    k(f"v_lshrrev_b32 {t}, 5, {I['l']}\nv_lshl_add_u32 {Pm['eva']}, {t}, 12, {Pm['eva']}\nv_add_u32 {Pm['eva']}, 512, {Pm['eva']}")
    k.v.free(t, E1['ew'], Pm.pop('lde'))
    E1['e0'] = e0

def carry_prep(k, I, E1, Pm):
    ma, mb = k.v.alloc(2), k.v.alloc(2); ca, cb = E1.pop('e0'), k.v.alloc(2); lo = E1.pop('lo'); t = k.v.alloc(2)
    er, ei = E1.pop('er'), E1.pop('ei'); cf = Pm['coef']
    def cmul(d, a, b):
        k(f"""v_pk_mul_f32 {d}, {a}, {b} op_sel:[0,0] op_sel_hi:[0,1]
        v_pk_fma_f32 {d}, {a}, {b}, {d} op_sel:[1,1,0] op_sel_hi:[1,0,1] neg_lo:[1,0,0]""")
    cmul(ma, cf, Pm['L64'])
    k(f"s_cmp_ge_u32 {I['w']}, 2")
    with k.skip_if("s_cbranch_scc1"):
        k(f"v_mov_b32 {ma[0]}, {cf[0]}\nv_mov_b32 {ma[1]}, {cf[1]}\nv_mov_b32 {ca[0]}, 0\nv_mov_b32 {ca[1]}, 0")
    cmul(t, Pm['L32'], ma); cfma2(k, lo, Pm['L32'], ca, lo)
    k(f"""s_mov_b32 exec_lo, 0
    v_mov_b32 {ma[0]}, {t[0]}
    v_mov_b32 {ma[1]}, {t[1]}
    v_mov_b32 {ca[0]}, {lo[0]}
    v_mov_b32 {ca[1]}, {lo[1]}
    s_mov_b64 exec, -1
    v_mov_b32 {er[1]}, {ei[0]}""")
    cmul(mb, Pm['L16'], ma); cfma2(k, er, Pm['L16'], ca, er)
    cmul(cb, cf, er); cmul(t, cf, ca)
    k.v.free(ca, lo, er, ei, Pm.pop('L16'), Pm.pop('L32'), Pm.pop('L64'))
    E1.update(ma=ma, mb=mb, ca=t, cb=cb)

class LookBack:
    def __init__(self, k, Pm, se):
        self.k, self.va, self.se = k, Pm.pop('eva'), se
        self.E = k.v.allocq(16, 2)
    def issue(self):
        for j in range(8): self.last = self.k(f"buffer_load_dwordx2 {self.E.q(j,2)}, {self.va}, {self.se}, 0 offen offset:{512*j} sc1")
    def _check(self, m):
        k, E = self.k, self.E
        k(f"v_max_u32 {m}, {E[0]}, {E[1]}")
        for j in range(1, 8): k(f"v_max3_u32 {m}, {m}, {E[2*j]}, {E[2*j+1]}")
        k(f"v_cmp_eq_u32 vcc, -1, {m}")
    def finish(self, maxspin=1 << 20):
        k = self.k; m = k.v.alloc()
        k.wait(self.last)
        self._check(m)
        with k.skip_if("s_cbranch_vccz"):
            cnt = k.s.alloc(); lp, out = k.lab('lb'), k.lab('lbout')
            k(f"s_mov_b32 {cnt}, 0\n{lp}:")
            self.issue(); k("s_waitcnt vmcnt(0)")
            self._check(m)
            k(f"s_cbranch_vccz {out}\ns_add_u32 {cnt}, {cnt}, 1\ns_cmp_lt_u32 {cnt}, {maxspin}\ns_cbranch_scc1 {lp}\n{out}:")
            k.s.free(cnt)
        k.v.free(m, self.va)
        return self.E

def cfma2(k, d, a, b, c):
    k(f"""v_pk_fma_f32 {d}, {a}, {b}, {c} op_sel:[0,0,0] op_sel_hi:[0,1,1]
    v_pk_fma_f32 {d}, {a}, {b}, {d} op_sel:[1,1,0] op_sel_hi:[1,0,1] neg_lo:[1,0,0]""")

def pass2c(k, I, acc, Pm, E1, E, sh, hook):
    for j in range(6, -1, -1):
        cfma2(k, E.q(j, 2), Pm['L128'], E.q(j + 1, 2), E.q(j, 2))
    S, T = E.q(0, 2), E.q(1, 2); U, V = E.q(2, 2), E.q(3, 2)
    k(f"""v_mov_b32 {T[0]}, {S[0]}
    v_mov_b32 {T[1]}, {S[1]}
    v_permlane32_swap_b32 {S[0]}, {T[0]}
    v_permlane32_swap_b32 {S[1]}, {T[1]}""")
    cfma2(k, S, Pm['L1024'], T, S)
    cfma2(k, E1['ca'], E1['ma'], S, E1['ca']); cfma2(k, E1['cb'], E1['mb'], S, E1['cb'])
    k(f"v_swap_b32 {E1['ca'][1]}, {E1['cb'][0]}")
    U, V = E1['ca'], E1['cb']
    va, so = E1['hva'], E1['hso']
    L = Pm['L1']; cr, ci = U, V
    O = k.v.allocq(12)
    pend = []; last = None
    def flush():
        nonlocal last
        q, o = pend.pop(0)
        k(f"""v_permlane16_swap_b32 {o[0]}, {o[2]}
        v_permlane16_swap_b32 {o[1]}, {o[3]}""")
        last = k(f"buffer_store_dwordx4 {o}, {va}, {sh}, {so} offen {SC}")
        if q < 7: k(f"s_add_u32 {so}, {so}, {2*32*16384}")
        hook(q)
    def sw32():
        o = pend[0][1]
        k(f"v_permlane32_swap_b32 {o[0]}, {o[1]}\nv_permlane32_swap_b32 {o[2]}, {o[3]}")
    for j in range(16):
        nr, ni = upair(acc, j, 0), upair(acc, j, 1)
        k(f"""v_pk_fma_f32 {nr}, {L}, {cr}, {nr}{BC0}
        v_pk_fma_f32 {ni}, {L}, {ci}, {ni}{BC0}""")
        if pend: sw32()
        k(f"""v_pk_fma_f32 {nr}, {L}, {ci}, {nr}{BC1}{NEG0}
        v_pk_fma_f32 {ni}, {L}, {cr}, {ni}{BC1}""")
        cr, ci = nr, ni
        if pend: flush()
        o = O.q((j // 2) % 3)
        h = 2 * (j & 1)
        k(f"v_cvt_pk_bf16_f32 {o[h]}, {nr[0]}, {nr[1]}\nv_cvt_pk_bf16_f32 {o[h+1]}, -{ni[0]}, -{ni[1]}")
        if j & 1: pend.append((j // 2, o))
    sw32(); flush()
    k.v.free(va, E, O, acc, E1['ca'], E1['cb'], E1['ma'], E1['mb'], *Pm.values()); k.s.free(so)
    return last

class B3g(B3f):
    def main(self, fill, pre_bar, post_bar, lastsub):
        k = self.k; NS = 16; acc, fr = self.acc, self.fr
        def reads(s, kk):
            f = fr.q(kk, 32); out = []
            for ib in range(8):
                off = (s % self.NST) * 32768 + ib * 2048 + kk * 256; hi = 2 if off >= 65536 else 0
                for h in range(2):
                    out.append(f"ds_read_b64_tr_b16 {f[4*ib+2*h:4*ib+2*h+2]}, {self.rh[hi+h]} offset:{off & 65535}")
            return out
        pre_bar(-1)
        k.wait(self.last[0]); k("s_barrier")
        lastrd = None
        for r in reads(0, 0): lastrd = k(r)
        for s in range(NS):
            for kk in range(2):
                f = fr.q(kk, 32); rd = []
                if kk == 0: rd = reads(s, 1)
                elif s + 1 < NS:
                    pre_bar(s)
                    k.wait(lastrd, self.last[s + 1]); k("s_barrier")
                    rd = reads(s + 1, 0)
                else: rd = lastsub(fr.q(0, 32))
                k.wait(lastrd)
                dm = [(s + self.D, 4 * kk + x) for x in range(4)]
                order = list(range(16))
                if s == NS - 1 and kk == 1: order = order[8:] + order[:8]
                for q, qq in enumerate(order):
                    ib, mm = qq >> 1, qq & 1
                    d = acc.q(8 * mm + ib)
                    zero = s == 0 and kk == 0 and ib >= 4
                    k(f"v_mfma_f32_16x16x32_bf16 {d}, {f.q(ib)}, {self.CL.frag(s,kk,mm)}, {0 if zero else d}")
                    if rd and q < 8:
                        k(rd[2 * q]); lastrd = k(rd[2 * q + 1])
                    if q >= 8 and q % 2 == 0: self.dma(*dm[(q - 8) // 2])
                    if q == 9 and kk == 1: post_bar(s)
                    fill(s, kk, q)
        k.v.free(self.vh, self.rh); k.s.free(self.so, self.mH)

def final_addr(k, I, ldsX, ldsY):
    A = dict(ad=k.v.alloc(), ay=k.v.alloc(), va=k.v.alloc(), so=k.s.alloc())
    t = k.v.alloc(); st = k.s.alloc(); ad, ay, va, so = A['ad'], A['ay'], A['va'], A['so']
    k(f"""s_lshl_b32 {st}, {I['w']}, {7 + I.get('khs', 6)}
    s_add_u32 {st}, {st}, {ldsX}
    v_lshl_add_u32 {ad}, {I['l']}, 4, {st}
    v_lshrrev_b32 {ay}, 5, {I['l']}
    v_lshlrev_b32 {ay}, 9, {ay}
    v_bfe_u32 {t}, {I['l']}, 3, 2
    v_lshl_or_b32 {ay}, {t}, 6, {ay}
    v_and_b32 {t}, 3, {I['l']}
    v_lshl_or_b32 {ay}, {t}, 4, {ay}
    v_bfe_u32 {t}, {I['l']}, 2, 1
    v_lshl_or_b32 {ay}, {t}, 3, {ay}
    s_lshr_b32 {st}, {I['w']}, 1
    s_lshl_b32 {st}, {st}, 13
    s_add_u32 {st}, {st}, {ldsY}
    v_add_u32 {ay}, {st}, {ay}
    v_lshlrev_b32 {va}, 18, {I['g']}
    v_lshl_or_b32 {va}, {I['n']}, 2, {va}
    s_and_b32 {so}, {I['w']}, 1
    s_lshl_b32 {so}, {so}, {16 + I.get('khs', 6)}
    s_lshl_b32 {st}, {I['ta']}, 12
    s_add_u32 {so}, {so}, {st}
    s_lshl_b32 {st}, {I['tb']}, 6
    s_add_u32 {so}, {so}, {st}
    s_lshr_b32 {st}, {I['w']}, 1
    s_lshl_b32 {st}, {st}, 11
    s_add_u32 {so}, {so}, {st}""")
    k.v.free(t); k.s.free(st)
    return A

def y_reads(A, Y):
    return [f"ds_read_b64_tr_b16 {Y[16*mm+4*kap+2*h:16*mm+4*kap+2*h+2]}, {A['ay']} offset:{4096*mm + 1024*kap + 256*h}"
            for kap in range(4) for mm in range(2) for h in range(2)]

def final2(k, A, g, acc, fr, G, so_, pf):
    Y, aa = fr.q(0, 32), fr.q(1, 32); ad, va, so = A['ad'], A['va'], A['so']; om = k.v.alloc(4)
    def mf(ib, side):
        for kap in range(4):
            for mm in range(2):
                d = aa.q(4 * mm + ib)
                k(f"v_mfma_f32_16x16x32_bf16 {d}, {G[ib>>1].q(4*(ib&1)+kap)}, {Y.q(4*mm+kap)}, {d if kap else 0}")
                if side: k(side.pop(0))
    wr = [f"ds_write_b128 {ad}, {acc.q(8*mm+4+ib)} offset:{1024*(4*mm+ib)}" for ib in range(4) for mm in range(2)]
    mf(0, wr)
    mf(1, [])
    k(f"v_xor_b32 {ad}, 0x2000, {ad}\ns_waitcnt lgkmcnt(0)\ns_barrier")
    pf("xbar")
    rd = [f"ds_read_b128 {acc.q(8*mm+4+ib)}, {ad} offset:{1024*(4*mm+ib)}" for ib in range(4) for mm in range(2)]
    mf(2, rd)
    def fin(ib):
        gg = g.q(ib)
        for h in (0, 2):
            k(f"""v_sub_f32 {om[h]}, 1.0, {gg[h]}
            v_sub_f32 {om[h+1]}, 1.0, {gg[h+1]}
            v_cvt_pk_bf16_f32 {om[h+1]}, {om[h]}, {om[h+1]}
            v_lshlrev_b32 {om[h]}, 16, {om[h+1]}
            v_and_b32 {om[h+1]}, 0xffff0000, {om[h+1]}""")
        for h in (0, 2):
            for mm in range(2):
                b = acc.q(8 * mm + ib); r = acc.q(8 * mm + 4 + ib); a = aa.q(4 * mm + ib)
                k(f"""v_pk_add_f32 {b[h:h+2]}, {b[h:h+2]}, {r[h:h+2]}
                v_pk_mul_f32 {a[h:h+2]}, {gg[h:h+2]}, {a[h:h+2]}
                v_pk_fma_f32 {b[h:h+2]}, {om[h:h+2]}, {b[h:h+2]}, {a[h:h+2]}""")
            for r in (h, h + 1):
                for mm in range(2):
                    k(f"buffer_store_dword {acc.q(8*mm+ib)[r]}, {va}, {so_}, {so} offen offset:{1024*mm} {OUTF}")
                if (ib, r) != (3, 3): k(f"s_add_u32 {so}, {so}, {(1<<16) if r < 3 else (1<<20) - 3*(1<<16)}")
    fin(0)
    mf(3, [])
    for ib in range(1, 4): fin(ib)

class B1g(B1f):
    def main(self, q, fill, pre_bar, post_bar, rate):
        k = self.k; NS = 16; acc, fr = self.acc, self.fr
        def reads(s, kk):
            f = fr.q((s * 4 + kk) & 1, 16); buf = (s % self.NST) * 16384
            out = []
            for b in range(2):
                out.append(f"ds_read_b128 {f.q(b)}, {self.ra[kk]} offset:{buf + 4096*b}")
                out.append(f"ds_read_b128 {f.q(2+b)}, {self.rb[kk]} offset:{buf + 4096*b}")
            return out
        k.wait(self.last[0], *getattr(self, 'extra', [])); k("s_barrier")
        lastrd = None; passed = -1
        for r in reads(0, 0): lastrd = k(r)
        for s in range(NS):
            for kk in range(4):
                f = fr.q((s * 4 + kk) & 1, 16)
                rd = []
                if kk < 3: rd = reads(s, kk + 1)
                elif s + 1 < NS:
                    pre_bar(s)
                    assert self.cnt[s + 1] == 8, (s, self.cnt)
                    k.wait(lastrd, self.last[s + 1]); k("s_barrier"); passed = s
                    rd = reads(s + 1, 0)
                for m, (rb, c) in enumerate(((0, 0), (0, 1), (1, 1), (1, 0))):
                    d = acc.q(2 * rb + c, 16)
                    first = s == 0 and kk == 0
                    k(f"v_mfma_f32_32x32x16_bf16 {d}, {f.q(rb)}, {f.q(2+c)}, {0 if first else d}")
                    if m < 2 and rd:
                        k(rd[2 * m]); lastrd = k(rd[2 * m + 1])
                    if m == 1 and kk == 3: post_bar(s)
                    for _ in range(rate(s, kk, m)):
                        if q and q[0][0] <= passed: q.pop(0)[1]()
                    fill(s, kk, m)
        k.v.free(fr, self.va, self.vb, self.ra, self.rb); k.s.free(self.soA, self.soB, self.mA, self.mB)
        return acc
    cnt = None
    def dma(self, s, i):
        if self.cnt is None: self.cnt = {}
        self.cnt[s] = self.cnt.get(s, 0) + 1
        super().dma(s, i)

class B1k(B1g):
    def __init__(self, k, I, sx, sb):
        self.k, self.I, self.sx, self.sb = k, I, sx, sb
        self.va = k.v.alloc(4); self.vb = k.v.alloc(4)
        self.soA, self.soB, self.mA, self.mB = [k.s.alloc() for _ in range(4)]
        t = k.v.alloc(2); l = I['l']; va, vb = self.va, self.vb; st = self.soB
        k(f"""v_and_b32 {t[0]}, 7, {l}
        v_xor_b32 {t[0]}, {t[0]}, {I['g']}
        v_lshlrev_b32 {t[0]}, 4, {t[0]}
        v_lshrrev_b32 {t[1]}, 3, {l}
        v_lshl_or_b32 {vb[0]}, {t[1]}, 11, {t[0]}
        v_and_b32 {t[1]}, 32, {l}
        v_lshl_or_b32 {va[0]}, {t[1]}, 11, {t[0]}
        v_and_b32 {t[1]}, 8, {l}
        v_lshl_or_b32 {va[0]}, {t[1]}, 12, {va[0]}
        v_and_b32 {t[1]}, 16, {l}
        v_lshl_or_b32 {va[0]}, {t[1]}, 7, {va[0]}
        s_lshr_b32 {st}, {I['w']}, 1
        s_lshl1_add_u32 {self.mA}, {I['cb']}, {st}
        s_lshl_b32 {self.mA}, {self.mA}, 16
        v_add_u32 {vb[0]}, {self.mA}, {vb[0]}
        s_lshl1_add_u32 {self.mA}, {I['ca']}, {st}
        s_and_b32 {st}, {I['w']}, 1
        s_lshl3_add_u32 {self.mA}, {self.mA}, {st}
        s_lshl_b32 {self.mA}, {self.mA}, 14
        v_add_u32 {va[0]}, {self.mA}, {va[0]}
        v_xor_b32 {va[1]}, 64, {va[0]}
        v_xor_b32 {vb[1]}, 64, {vb[0]}
        v_add_u32 {va[1]}, {4096-1024}, {va[1]}
        v_add_u32 {vb[1]}, {16384-1024}, {vb[1]}
        v_add_u32 {va[2]}, {2*(4096-1024)}, {va[0]}
        v_add_u32 {vb[2]}, {2*(16384-1024)}, {vb[0]}
        v_add_u32 {va[3]}, {2*(4096-1024)}, {va[1]}
        v_add_u32 {vb[3]}, {2*(16384-1024)}, {vb[1]}
        s_lshl_b32 {self.mA}, {I['w']}, 12
        s_add_u32 {self.mB}, {self.mA}, 65536
        s_lshl_b32 {self.soA}, {I['ca']}, 7""")
        k.v.free(t)
        self.last = {}; self.tail = None; self.extra = []
    def readers(self):
        k, I = self.k, self.I; l = I['l']
        self.ra = k.v.alloc(4); self.rb = k.v.alloc(4); t = k.v.alloc(2); st = self.soB
        k(f"""v_bfe_u32 {t[0]}, {l}, 1, 3
        v_lshrrev_b32 {t[1]}, 5, {l}
        v_xor_b32 {t[0]}, {t[0]}, {t[1]}
        v_lshlrev_b32 {t[0]}, 4, {t[0]}
        v_and_b32 {t[1]}, 31, {l}
        v_lshl_or_b32 {t[0]}, {t[1]}, 7, {t[0]}
        s_lshr_b32 {st}, {I['w']}, 1
        v_lshl_add_u32 {self.ra[0]}, {st}, 13, {t[0]}
        s_and_b32 {st}, {I['w']}, 1
        s_or_b32 {st}, {st}, 8
        v_lshl_add_u32 {self.rb[0]}, {st}, 13, {t[0]}""")
        for kk in range(1, 4): k(f"v_xor_b32 {self.ra[kk]}, {32*kk}, {self.ra[0]}\nv_xor_b32 {self.rb[kk]}, {32*kk}, {self.rb[0]}")
        k.v.free(t)

def xtile_addr(k, I, lds_off):
    va = k.v.alloc(); t = k.v.alloc(); so = k.s.alloc()
    k(f"""v_bfe_u32 {t}, {I['l']}, 1, 2
    v_xor_b32 {t}, {t}, {I['g']}
    v_lshlrev_b32 {va}, 9, {t}
    v_and_b32 {t}, 1, {I['l']}
    v_lshl_or_b32 {va}, {t}, 4, {va}
    v_lshrrev_b32 {t}, 3, {I['l']}
    v_lshl_or_b32 {va}, {t}, 15, {va}
    s_lshl_b32 {so}, {I['w']}, 9
    s_add_u32 {so}, {so}, {I['ta']}
    s_lshl_b32 {so}, {so}, 6
    s_add_u32 {so}, {so}, {I['tb']}
    s_lshl_b32 {so}, {so}, 5
    s_lshl_b32 m0, {I['w']}, 12
    s_add_u32 m0, m0, {lds_off}""")
    k.v.free(t)
    return va, so

def ids2(k):
    I = {n: k.s.alloc() for n in ('w', 'k1p', 'slot', 'ca', 'cb', 'ta', 'tb', 'rc')}
    I['l'] = k.v.alloc(); I['n'] = k.v.alloc(); I['g'] = k.v.alloc(); i8 = k.s.alloc()
    k(f"""v_readfirstlane_b32 {I['w']}, v0
    v_and_b32 {I['l']}, 63, v0
    v_and_b32 {I['n']}, 15, v0
    v_bfe_u32 {I['g']}, v0, 4, 2
    s_bfe_u32 {I['k1p']}, s2, 0x20003
    s_lshr_b32 {i8}, s2, 5
    s_lshr_b32 {I['w']}, {I['w']}, 6
    s_and_b32 {I['ca']}, s2, 3
    s_lshl2_add_u32 {I['ca']}, {I['ca']}, {I['k1p']}
    s_bfe_u32 {I['cb']}, s2, 0x10002
    s_lshl3_add_u32 {I['cb']}, {I['cb']}, {i8}
    s_and_b32 {I['rc']}, s2, 1
    s_lshl3_add_u32 {I['ta']}, {I['rc']}, {i8}
    s_lshl1_add_u32 {I['rc']}, {i8}, {I['rc']}
    s_bfe_u32 {I['tb']}, s2, 0x20001
    s_lshl2_add_u32 {I['tb']}, {I['tb']}, {I['k1p']}
    s_and_b32 {I['slot']}, s2, 7
    s_lshl3_add_u32 {I['slot']}, {I['slot']}, {i8}""")
    k.s.free(i8)
    return I

class B3h:
    D = 3
    catch = False
    def __init__(self, k, I, sh, CL):
        self.k, self.I, self.sh, self.CL = k, I, sh, CL
        self.vh = k.v.alloc(2); self.rh = k.v.alloc(4)
        self.so, self.mH = k.s.alloc(), k.s.alloc()
        t = k.v.alloc(2); st = k.s.alloc(); l = I['l']
        k(f"""s_and_b32 {st}, {I['w']}, 1
        s_mul_i32 {self.mH}, {st}, {16384 + 4096}
        s_lshl_b32 {self.so}, {I['ta']}, 19
        s_add_u32 {self.mH}, {self.mH}, {self.so}
        v_lshl_add_u32 {self.vh[0]}, {l}, 4, {self.mH}
        v_xor_b32 {self.vh[1]}, 4096, {self.vh[0]}
        s_lshr_b32 {self.so}, {I['w']}, 1
        s_add_u32 {self.so}, {self.so}, {I['rc']}
        s_and_b32 {self.so}, {self.so}, 15
        s_lshl_b32 {self.so}, {self.so}, 15
        s_lshl_b32 {self.mH}, {I['w']}, 13
        v_and_b32 {t[0]}, 3, {l}
        v_and_b32 {t[1]}, 2, {I['g']}
        v_xor_b32 {t[1]}, {t[1]}, {t[0]}
        v_lshlrev_b32 {t[0]}, 9, {t[0]}
        v_lshl_or_b32 {t[0]}, {t[1]}, 6, {t[0]}
        v_bfe_u32 {t[1]}, {l}, 2, 2
        v_lshl_or_b32 {t[0]}, {t[1]}, 4, {t[0]}
        v_and_b32 {t[1]}, 1, {I['g']}
        v_lshl_or_b32 {t[0]}, {t[1]}, 3, {t[0]}
        s_lshl_b32 {st}, {st}, 13
        v_add_u32 {self.rh[0]}, {st}, {t[0]}
        v_xor_b32 {self.rh[1]}, 64, {self.rh[0]}
        v_add_u32 {self.rh[2]}, 0x10000, {self.rh[0]}
        v_add_u32 {self.rh[3]}, 0x10000, {self.rh[1]}""")
        k.v.free(t); k.s.free(st)
        self.last = {}; self.cnt = {}
    def dma(self, s, i):
        k = self.k
        if i & 3 == 0: k(f"s_add_u32 m0, {self.mH}, {(s % 4)*32768 + (i>>2)*4096}")
        self.last[s] = k(f"buffer_load_dwordx4 {self.vh[i>>2]}, {self.sh}, {self.so} offen offset:{1024*(i&3)} {SC} lds")
        self.cnt[s] = self.cnt.get(s, 0) + 1
        if i == 7: k(f"s_add_u32 {self.so}, {self.so}, {65536 + (8192 if s == 7 else 0)}\ns_and_b32 {self.so}, {self.so}, 0x7ffff")
    def alloc(self):
        self.acc = [self.k.v.allocq(32), self.k.v.allocq(32)]; self.fr = self.k.v.allocq(64)
    def main(self, dq, fill, pre_bar, post_bar):
        k = self.k; NS = 16; fr = self.fr
        def reads(s, u):
            f = fr.q(u, 32); out = []
            for kk in range(2):
                for ib in range(4):
                    off = (s % 4) * 32768 + u * 16384 + ib * 2048 + kk * 256; hi = 2 if off >= 65536 else 0
                    for h in range(2):
                        o = 16 * kk + 4 * ib + 2 * h
                        out.append(f"ds_read_b64_tr_b16 {f[o:o+2]}, {self.rh[hi+h]} offset:{off & 65535}")
            return out
        k.wait(self.last[0]); k("s_barrier")
        lastrd = None
        for r in reads(0, 0): lastrd = k(r)
        for s in range(NS):
            acc = self.acc[s >> 3]
            for u in range(2):
                f = fr.q(u, 32); rd = []
                if u == 0: rd = reads(s, 1)
                elif s + 1 < NS:
                    pre_bar(s)
                    assert self.cnt[s + 1] == 8
                    k.wait(lastrd, self.last[s + 1]); k("s_barrier")
                    rd = reads(s + 1, 0)
                k.wait(lastrd)
                order = [(kk, ib, mm ^ (ib & 1)) for kk in range(2) for ib in range(4) for mm in range(2)]
                if s & 7 == 7 and u == 1: order = [x for x in order if x[1] >= 2] + [x for x in order if x[1] < 2]
                for q, (kk, ib, mm) in enumerate(order):
                    d = acc.q(4 * mm + ib)
                    zero = s & 7 == 0 and u == 0 and kk == 0 and ib >= 2
                    k(f"v_mfma_f32_16x16x32_bf16 {d}, {f.q(4*kk+ib)}, {self.CL.frag(2*(s&7)+u,kk,mm)}, {0 if zero else d}")
                    if rd and q < 8:
                        k(rd[2 * q]); lastrd = k(rd[2 * q + 1])
                    if q >= 8 and dq and dq[0][0] <= s + self.D and (q % 2 == 0 or (s == 0 and self.catch)): self.dma(*dq.pop(0))
                    if q == 9 and u == 1: post_bar(s)
                    fill(s, u, q)
        assert not dq
        k.v.free(self.vh, self.rh); k.s.free(self.so, self.mH)

def xkeep3(k, I, ldsX):
    XK = k.v.allocq(16, 2); ad = k.v.alloc(2); t = k.v.alloc(2); st = k.s.alloc()
    k(f"""s_and_b32 {st}, {I['w']}, 1
    s_lshl_b32 {st}, {st}, 12
    s_add_u32 {st}, {st}, {ldsX}
    v_lshrrev_b32 {t[0]}, 2, {I['l']}
    v_lshlrev_b32 {t[0]}, 7, {t[0]}
    v_and_b32 {t[1]}, 3, {I['l']}
    v_lshl_or_b32 {t[0]}, {t[1]}, 3, {t[0]}
    v_add_u32 {t[0]}, {st}, {t[0]}
    v_bfe_u32 {t[1]}, {I['l']}, 3, 2
    s_and_b32 {st}, {I['w']}, 2
    v_xor_b32 {t[1]}, {st}, {t[1]}
    v_lshl_add_u32 {ad[0]}, {t[1]}, 5, {t[0]}
    v_xor_b32 {ad[1]}, 32, {ad[0]}""")
    for h in range(2):
        for mm in range(2):
            for ib in range(2): k(f"ds_read_b64_tr_b16 {XK.q(4*h+2*mm+ib,2)}, {ad[mm]} offset:{8192*h + 2048*ib}")
    k.v.free(ad, t); k.s.free(st)
    return XK

def xd_init3(k, XK, Dk, acc):
    for h in range(2):
        for mm in range(2):
            sel = f" op_sel:[{mm},0] op_sel_hi:[{mm},1]"
            for ib in range(2):
                a = acc[h].q(4 * mm + ib); x = XK.q(4 * h + 2 * mm + ib, 2)
                k(f"""v_lshlrev_b32 {a[0]}, 16, {x[0]}
                v_and_b32 {a[1]}, 0xffff0000, {x[0]}
                v_lshlrev_b32 {a[2]}, 16, {x[1]}
                v_and_b32 {a[3]}, 0xffff0000, {x[1]}
                v_pk_mul_f32 {a[0:2]}, {Dk}, {a[0:2]}{sel}
                v_pk_mul_f32 {a[2:4]}, {Dk}, {a[2:4]}{sel}""")
    k.v.free(XK, Dk)

def fin3(k, A, g, acc, aa, so_, h, flags, added):
    va, so = A['va'], A['so']
    for ib in range(2):
        gg = g.q(2 * h + ib)
        for x in (0, 2):
            for mm in range(2):
                b = acc.q(4 * mm + ib); a = aa(mm, ib)
                if not added: k(f"v_pk_add_f32 {b[x:x+2]}, {b[x:x+2]}, {acc.q(4*mm+2+ib)[x:x+2]}")
                k(f"v_pk_add_f32 {a[x:x+2]}, {a[x:x+2]}, {b[x:x+2]} neg_lo:[0,1] neg_hi:[0,1]")
            for mm in range(2):
                b = acc.q(4 * mm + ib); a = aa(mm, ib)
                k(f"v_pk_fma_f32 {b[x:x+2]}, {gg[x:x+2]}, {a[x:x+2]}, {b[x:x+2]}")
            for r in (x, x + 1):
                for mm in range(2):
                    k(f"buffer_store_dword {acc.q(4*mm+ib)[r]}, {va}, {so_}, {so} offen offset:{1024*mm} {flags}")
                step = (1 << 16) if r < 3 else ((1 << 20) if ib == 0 else (3 << 20)) - 3 * (1 << 16)
                if (h, ib, r) != (1, 1, 3): k(f"s_add_u32 {so}, {so}, {step}")

def ph3_list(G, Y, aa):
    return [f"v_mfma_f32_16x16x32_bf16 {aa(mm,ib)}, {G.q(4*ib+kap)}, {Y.q(4*mm+kap)}, {aa(mm,ib) if kap else 0}"
            for kap in range(4) for ib in range(2) for mm in range(2)]

def code_touch(k, I, wave, nbytes, dst):
    r = k.s.alloc(2); so = k.s.alloc(); va = k.v.alloc(2)
    per = -(-nbytes // (32 * 128)); lab = k.lab('pc')
    k(f"s_cmp_lg_u32 {I['w']}, {wave}")
    with k.skip_if("s_cbranch_scc1"):
        k(f"""s_getpc_b64 {r}
        {lab}:
        s_lshr_b32 {so}, s2, 3
        s_mul_i32 {so}, {so}, {per*128}
        v_min_u32 {va[0]}, {per-1}, {I['l']}
        v_lshl_add_u32 {va[0]}, {va[0]}, 7, {so}
        v_min_u32 {va[0]}, {k.name}_end-{lab}, {va[0]}
        v_mov_b32 {va[1]}, 0
        v_lshl_add_u64 {va}, {va}, 0, {r}
        global_load_dword {dst}, {va}, off""").defs = set()
    k.s.free(r, so); k.v.free(va)

def pretouch(k, I, swr, swi, sc, CLv, dst, what):
    va = k.v.alloc(); t = k.v.alloc(); r0, r1 = k.s.alloc(), k.s.alloc()
    if 'w' in what:
        k(f"""s_lshl_b32 {r0}, {I['k1p']}, 2
        s_add_u32 {r0}, {r0}, {I['w']}
        s_lshl_b32 {r0}, {r0}, 7
        s_add_u32 {r0}, {r0}, {I['slot']}
        s_sub_u32 {r1}, 2048, {r0}
        s_and_b32 {r1}, {r1}, 2047
        s_mul_i32 {r0}, {r0}, 1026
        s_mul_i32 {r1}, {r1}, 1026
        s_sub_u32 {r1}, {r1}, {r0}
        v_and_b32 {t}, 1, {I['g']}
        v_mul_lo_u32 {t}, {t}, {r1}
        v_lshl_add_u32 {va}, {I['n']}, 7, {r0}
        v_add_u32 {va}, {va}, {t}
        v_and_b32 {va}, -4, {va}
        s_mov_b64 exec, 0x01ff01ff
        buffer_load_dword {dst}, {va}, {swr}, 0 offen
        buffer_load_dword {dst}, {va}, {swi}, 0 offen offset:1024
        s_mov_b64 exec, -1""")
    if 'c' in what:
        k(f"""s_lshr_b32 {r0}, {I['w']}, 1
        s_lshl_b32 {r0}, {r0}, 20
        s_lshl_b32 {r1}, {I['tb']}, 15
        s_add_u32 {r0}, {r0}, {r1}
        v_lshl_add_u32 {va}, {I['n']}, 11, {r0}
        v_and_b32 {t}, 1, {I['g']}
        v_lshl_add_u32 {va}, {t}, 19, {va}
        v_lshrrev_b32 {t}, 1, {I['g']}
        v_add_u32 {t}, {I['rc']}, {t}
        v_and_b32 {t}, 15, {t}
        v_lshl_add_u32 {va}, {t}, 7, {va}""")
        if '2' not in what: k("s_mov_b32 exec_hi, 0")
        k(f"buffer_load_dword {dst}, {va}, {sc}, 0 offen\ns_mov_b64 exec, -1")
    for i in k.ins[-40:]:
        if i.mn == 'buffer_load_dword' and i.defs == {('v', dst.idx)}: i.defs = set()
    k.v.free(va, t); k.s.free(r0, r1)

class Touch:
    def __init__(self, k, I, swr, swi, sc, dst):
        self.k, self.I, self.swr, self.swi, self.sc, self.dst = k, I, swr, swi, sc, dst
        self.vw, self.vc = k.v.alloc(), k.v.alloc(); t = k.v.alloc(); r0, r1 = k.s.alloc(), k.s.alloc(); va = self.vw
        k(f"""s_lshl_b32 {r0}, {I['k1p']}, 2
        s_add_u32 {r0}, {r0}, {I['w']}
        s_lshl_b32 {r0}, {r0}, 7
        s_add_u32 {r0}, {r0}, {I['slot']}
        s_sub_u32 {r1}, 2048, {r0}
        s_and_b32 {r1}, {r1}, 2047
        s_mul_i32 {r0}, {r0}, 1026
        s_mul_i32 {r1}, {r1}, 1026
        s_sub_u32 {r1}, {r1}, {r0}
        v_and_b32 {t}, 1, {I['g']}
        v_mul_lo_u32 {self.vc}, {t}, {r1}
        v_lshl_add_u32 {va}, {I['n']}, 7, {r0}
        v_add_u32 {va}, {va}, {self.vc}
        v_and_b32 {va}, -4, {va}""")
        va = self.vc
        k(f"""s_lshr_b32 {r0}, {I['w']}, 1
        s_lshl_b32 {r0}, {r0}, 20
        s_lshl_b32 {r1}, {I['tb']}, 15
        s_add_u32 {r0}, {r0}, {r1}
        v_lshl_add_u32 {va}, {I['n']}, 11, {r0}
        v_lshl_add_u32 {va}, {t}, 19, {va}
        v_lshrrev_b32 {t}, 1, {I['g']}
        v_add_u32 {t}, {I['rc']}, {t}
        v_and_b32 {t}, 15, {t}
        v_lshl_add_u32 {va}, {t}, 7, {va}""")
        k.v.free(t); k.s.free(r0, r1)
    def go(self, what, wave):
        k = self.k
        k(f"s_cmp_lg_u32 {self.I['w']}, {wave}")
        with k.skip_if("s_cbranch_scc1"):
            if what == 'w':
                k("s_mov_b64 exec, 0x01ff01ff")
                k(f"buffer_load_dword {self.dst}, {self.vw}, {self.swr}, 0 offen").defs = set()
                k(f"buffer_load_dword {self.dst}, {self.vw}, {self.swi}, 0 offen offset:1024").defs = set()
            else:
                if what != 'b': k(f"s_mov_b32 exec_{'hi' if what == 'c' else 'lo'}, 0")
                k(f"buffer_load_dword {self.dst}, {self.vc}, {self.sc}, 0 offen").defs = set()
            k("s_mov_b64 exec, -1")
    def done(self): self.k.v.free(self.vw, self.vc)

def build(opt={}):
    O = dict(sig=8, v2s=-1, vf=0, early=0, shadow=1, spos=0, cpos=0, x1=4, p0=30, lead0=300, p1=56, lead1=60, gpos=1, cearly=0, n0=8, n1=16, pb=70, nb=2, nlb=1, pc=64, leadc=0, late=2, gseam=1, fast=0, lag=2, hmark=1, pollat=1, touch=1, eo=1, es=26, er=4, vp=0, sk=0, bf=1, sr=8, lr=4, wpos=0, D=5, cpre=1, clag=1, fl=12, pl=27, pld=2, m2s=12, ptq=0, gap=-1, ntail=3, fend=99, tt=0, tsp=2, m32=0, xs=8, xb=0, vr=1, rate=2, yrr=2, scal=1, clr=1, fm=65535, gl=1, pt='w', pts=11, two=1, pre3=3, pg=48, pv=5, pd=2, yd=3, yl=1, yr=1000, fs=13, oaf='sc1', obf='sc1', fr=24, map8=1, rot1=2, gloc=1, rotc=1)
    O.update(opt)
    k = Kernel(NAME + "_kernel", nv=256, na=256)
    LX = 131072; LT2 = LX + 16384; LDS = LT2 + 16384
    A0, A1, A2, A3, B0, B1_, B2, B3_ = [16384 * i for i in range(8)]
    k("s_cmp_ge_u32 s2, 256")
    k(f"s_cbranch_scc1 {k.name}_end")
    KP = k.s.alloc(32, 4)
    k(f"s_load_dwordx16 {KP[0:16]}, s[0:1], 0\ns_load_dwordx16 {KP[16:32]}, s[0:1], 64")
    P = {n: KP[o // 4:o // 4 + 2] for n, o in KA.items()}
    def rel(*names):
        for n in names: k.s.free(P.pop(n))
    I = ids2(k); cd = k.v.alloc(); I['tag'] = O['sk'] == 2
    code_touch(k, I, 0, 40960, cd)
    pf = Prof(k, 0)
    sx, sb = k.s.alloc(4), k.s.alloc(4)
    k(f"s_mov_b32 {sx[2]}, {SZ['x']}\ns_mov_b32 {sx[3]}, 0x20000\ns_mov_b32 {sb[2]}, {SZ['bre']}\ns_mov_b32 {sb[3]}, 0x20000")
    xva, xso = xtile_addr(k, I, LX)
    g1 = B1k(k, I, sx, sb)
    if O['shadow'] >= 1: g1.readers()
    k(f"s_mov_b64 {sx[0:2]}, {P['x']}")
    pf('ka')
    XI = dict(j=0)
    def x1():
        j = XI['j']; XI['j'] += 1
        if j and j == O['x1']: k(f"s_add_u32 m0, {g1.mA}, {LX}")
        XI['ld'] = k(f"buffer_load_dwordx4 {xva}, {sx}, {xso} offen offset:{1024*j} lds")
        if j < 3: k(f"s_add_u32 {xso}, {xso}, {8*32768 - 1024}")
    for j in range(O['x1']): x1()
    k(f"s_bitcmp1_b32 {I['w']}, 0\ns_cselect_b64 {sb[0:2]}, {P['bim']}, {P['bre']}")
    rel('x', 'bx', 'bre', 'bim')
    pf('xi')
    def vm1(cap):
        def f():
            while cap.groups:
                v = any(i.cls == 'vm' for i in cap.groups[0]); cap.emit(1)
                if v: break
        return f
    H = {}
    CA = k.a.alloc(256)
    dq = [(-1 if s < 4 else s - 4, lambda s=s, i=i: g1.dma(s, i)) for s in range(0, 16) for i in range(8)]
    take = lambda n: [dq.pop(0)[1] for _ in range(n)]
    if O['x1'] < 4:
        for f_ in take(4): f_()
    T = ph2_params(k, I)
    if O['cpos'] == 0: cw = coop_consts(k, I, T, LT2, 2.0 ** -20)
    with k.capture() as c0:
        if O['shadow'] < 1: g1.readers()
        if O['m32']:
            I['lp'] = k.v.alloc(); tt = k.s.alloc()
            k(f"s_and_b32 {tt}, {I['ca']}, 2\ns_lshl_b32 {tt}, {tt}, 3\nv_xor_b32 {I['lp']}, {tt}, {I['l']}\ns_lshl_b32 {tt}, {tt}, 7")
            for q in range(4): k(f"v_xor_b32 {g1.rb[q]}, {tt}, {g1.rb[q]}")
            k.s.free(tt)
        sf = srd(k, P['ws'], WS_FP - WS_F + 131072, WS_F)
        FV, FH = k.s.alloc(), k.s.alloc()
        zero = k.v.alloc(); vpc = k.v.alloc()
        k(f"""v_mov_b32 {zero}, 0
        v_lshlrev_b32 {vpc}, 4, v0
        s_mov_b32 {FV}, 4096
        s_cmp_lg_u32 s2, 0""")
        with k.skip_if("s_cbranch_scc1"):
            tz = k.v.alloc(4)
            for j in range(4): k(f"v_mov_b32 {tz[j]}, 0")
            k(f"buffer_store_dwordx4 {tz}, {vpc}, {sf}, 0 offen {SC}")
            g1.extra.append(k(f"buffer_store_dwordx4 {tz}, {vpc}, {sf}, {FV} offen {SC}"))
            k.v.free(tz)
        sgw = srd(k, P['gw'], SZ['gw']); rel('gw')
        t4 = [srd(k, P[n], 2048) for n in ('lre', 'lim', 'ldt', 'dsk')]; rel('lre', 'lim', 'ldt', 'dsk')
        sv1 = srd(k, P['ws'], 256 * V1_STR, WS_V1)
        F = gen_F2(k, I)
    acts = take(8) if O['x1'] == 4 else [x1] * (4 - O['x1']) + take(4)
    c0.weave(acts, O['p0'], O['lead0'])
    while acts: acts.pop(0)()
    pf('su')
    ldx = XI['ld']; k.v.free(xva); k.s.free(xso)
    with k.capture() as small:
        Q = ssm_param_issue(k, I, *t4[:3]); Dk = (dsk_issueS if O['sk'] else dsk_issue32 if O['m32'] else dsk_issue)(k, I, t4[3])
    with k.capture() as gl: Gt = gate_issue2(k, I, sx, sgw)
    if O.get('nogate'): gl.groups = [g for g in gl.groups if not any(i.cls == 'vm' for i in g)]
    if O['spos'] == 0: small.emit(999)
    if O['cpos'] == 1: cw = coop_consts(k, I, T, LT2, 2.0 ** -20)
    pf("F")
    small.flush(); k.s.free(*t4)
    acts = ([vm1(gl)] * 6 if O['gpos'] == 0 else []) + take(O['n0'])
    while acts: acts.pop(0)()
    k.wait(ldx, cw); k("s_barrier"); pf("xt")
    with k.capture() as c1:
        O1 = ph1f(k, I, F, LX, sv1, lambda n: None)
        k.v.free(F)
        XK = (xkeepS if O['sk'] else xkeep32 if O['m32'] else xkeep3 if O['two'] else xkeep)(k, I, LX)
    acts = take(O['n1'])
    c1.weave(acts, O['p1'], O['lead1'])
    while acts: acts.pop(0)()
    if O['gpos'] == 1: gl.emit(1000)
    pf("ph1")
    g1.alloc()
    if O['gpos'] == 2:
        pos = 32 - 8 - O['n0'] - O['n1']
        dq[pos:pos] = [(-1, vm1(gl))] * 6
    with k.capture() as fl1:
        ph1_store(k, *O1, sv1)
        if O.get('nov1'): k.ins = []
        one = k.v.alloc(); vfc = k.v.alloc(); vfh = k.v.alloc(); sdbg = srd(k, P['dbg'], 256); rel('dbg')
        k(f"""s_and_b32 {FH}, s2, 7
        s_lshl_b32 {FH}, {FH}, 8
        s_add_u32 {FH}, {FH}, s2
        s_and_b32 {FH}, {FH}, -8
        s_lshl_b32 {FH}, {FH}, 1
        v_mov_b32 {vfc}, {FH}
        s_lshl4_add_u32 {FH}, {I['cb']}, {I['ca']}
        s_lshl_b32 {FH}, {FH}, 7
        v_lshl_add_u32 {vfh}, {I['n']}, 2, {FH}
        s_mov_b32 {FH}, 8192
        v_mov_b32 {one}, 1""")
        st = k.s.alloc()
        k(f"s_lshl_b32 {st}, {I['cb']}, 14")
        se = srd(k, P['ws'], 8192, WS_E, st)
        t = k.v.alloc(2)
        k(f"""s_sub_u32 {st}, 15, {I['ca']}
        s_lshl_b32 {st}, {st}, 9
        v_lshl_add_u32 {t[0]}, v0, 2, {st}
        v_mov_b32 {t[1]}, -1
        s_cmp_ge_u32 {I['w']}, 2""")
        with k.skip_if("s_cbranch_scc1"):
            H['clr'] = k(f"buffer_store_dword {t[1]}, {t[0]}, {se}, 0 offen {SC}")
        wave0_store(k, I, f"buffer_store_dword {zero}, {vfh}, {sf}, {FH} offen {SC}", O['fm'])
        if O['sk'] == 1:
            FP = k.s.alloc()
            k(f"""s_lshl4_add_u32 {FP}, {I['ta']}, {I['tb']}
            s_lshl2_add_u32 {FP}, {FP}, {I['w']}
            s_lshl_b32 {FP}, {FP}, 7
            s_add_u32 {FP}, {FP}, {WS_FP - WS_F}
            v_lshlrev_b32 {t[0]}, 2, {I['n']}
            s_mov_b64 exec, 0xffff
            buffer_store_dword {zero}, {t[0]}, {sf}, {FP} offen {SC}
            s_mov_b64 exec, -1""")
        k(f"s_or_b32 {st}, {I['w']}, s2\ns_cmp_lg_u32 {st}, 0")
        with k.skip_if("s_cbranch_scc1"):
            k(f"s_mov_b64 exec, 1\nbuffer_store_dword {one}, {zero}, {sdbg}, 0 offen {SC}\ns_mov_b64 exec, -1")
        k.v.free(t); k.s.free(st)
        if O['sk']:
            sc = srd(k, P['cre'], SZ['cre']); sc_i = srd(k, P['cim'], SZ['cim']); rel('cre', 'cim')
            CL = CLoadS(k, I, sc, sc_i, CA)
        else:
            sc = srd_sel(k, I, P['cre'], P['cim'], SZ['cre']); rel('cre', 'cim')
            CL = (CLoad32 if O['m32'] else CLoad)(k, I, sc, CA)
        swr = srd(k, P['wr'], SZ['wr'])
        swi = k.s.alloc(4)
        k(f"s_sub_u32 {swi[0]}, {P['wi'][0]}, 1024\ns_subb_u32 {swi[1]}, {P['wi'][1]}, 0\ns_mov_b32 {swi[2]}, {SZ['wi'] + 1024}\ns_mov_b32 {swi[3]}, 0x20000")
        rel('wr', 'wi')
        if O['tt']: TT = Touch(k, I, swr, swi, sc, cd)
        nfirst = len(k.ins)
        sg = srd(k, P['ws'], G_BYTES, WS_G)
        lastst = gate_compute2(k, I, Gt, sg, LX if O['gl'] else None)
        nsec = len(k.ins)
        H['C2'] = coop_read(k, I, LT2, {n: CA[224 + 8 * j:232 + 8 * j] for j, n in enumerate(('m2f', 'm2i', 'm1i', 'si'))})
        WD = WD2(k, I, T, swr, swi, (LX, A0, B0, A1), LT2)
        nthird = len(k.ins)
        Pm = ssm_param_compute(k, Q)
        scan_addr(k, I, Pm, LT2)
        E1h = {}; hstore_addr(k, I, E1h)
        ntot = len(k.ins)
    print("B1 fillers", nfirst, nsec, nthird, ntot)
    for u in range(O['cearly']):
        pos = [j for j, x in enumerate(dq) if x[0] == 2 + 3 * u][0]
        dq[pos:pos] = [(-1, lambda: CL.issue(LX))]
    p0 = Poll(k, sdbg, zero, 1, 1, sleep=16)
    p1 = Poll(k, sf, vpc, 1, 1, sleep=16)
    dq.append((-1, lambda: (p1.issue(), WD.extra_issue())))
    if O['ptq']: dq.append((-1, lambda: pretouch(k, I, swr, swi, sc, CL, cd, O['ptq'])))
    gap = O['gap']
    dq += [(gap, WD.issue1)] * 4
    for s, slot in ((12, A0), (12, B0), (13, A1)): dq += [(s, WD.issue1)] * 4
    tslots = [(13, B1_), (14, A2), (14, B2)]
    for s, slot in tslots[:O['ntail']]: dq += [(s, lambda slot=slot: CL.issue1(slot))] * 4
    pf("pre")
    def pre_bar(s):
        if O['gl'] and s == 5: k.wait(lastst)
        if s == O['sig']: k.wait(H['gs'] if O['gl'] else lastst, H['clr'])
    def post_bar(s):
        if O['touch'] and s in (4, 11): code_touch(k, I, 1 + (s & 1), 16384, cd)
        if O['pt'] and s == O['pts']: pretouch(k, I, swr, swi, sc, CL, cd, O['pt'])
        if O['gl'] and s == 5: H['gs'] = gate_store(k, I, sg, LX)
        if s == O['sig'] - 3: p0.issue()
        if s == O['sig']:
            fl1.emit_until_safe()
            p0.finish()
            wave0_store(k, I, f"buffer_store_dword {one}, {vfc}, {sf}, 0 offen {SC}")
    def fill1(s, kk, m):
        tgt = [(0, 34), (1, nfirst), (2, nfirst), (4, nsec), (9, nthird), (14, ntot)]
        x = s + (4 * kk + m + 1) / 16.0 - 1; px, py = -1, 0
        for qx, qy in tgt:
            if x <= qx: want = py + (qy - py) * (x - px) / (qx - px); break
            px, py = qx, qy
        else: want = ntot
        while fl1.groups and ntot - fl1.left() < want: fl1.emit(1)
        if s == 3 and kk == 0 and m == 0: gl.flush(); k.s.free(sgw)
        if O['tt'] and m == 3 and kk in (0, 2):
            x = 2 * s + kk // 2
            for what, s0_ in re.findall(r'([wcdb])(\d+)', O['tt']):
                d = x - 2 * int(s0_)
                if d >= 0 and d % O['tsp'] == 0 and d // O['tsp'] < 4: TT.go(what, d // O['tsp'])
        if s == 14 and kk == 3 and m == 3:
            fl1.flush()
            if O['tt']: TT.done()
        if kk == 1 and m == 0 and s >= 5 and s % 3 == 2 and CL.nd < O['cearly']: CL.drain()
        if kk == 3 and m == 0 and (s % 4 == 3 or PROFSEL): pf(f"a{s}")
    def rate(s, kk, m):
        if s < O['fast'] or s >= O['fend']: return 1 if m >= 1 else 0
        return 1 if m >= 2 else 0
    acc = g1.main(dq, fill1, pre_bar, post_bar, rate)
    pf("main1")
    k.s.free(sx, sb, sdbg); k.v.free(zero)
    with k.capture() as c2:
        E1 = pass1c(k, I, acc, Pm, LT2); E1.update(E1h)
    acts = [x[1] for x in dq]; print("queue left after B1:", len(acts))
    c2.weave(acts, 64)
    while acts: acts.pop(0)()
    p1.finish()
    k.wait(E1['w']); k("s_barrier")
    publish(k, I, E1, Pm, se)
    pf("pass1")
    LT1 = A3
    C2 = H['C2']; nlate = O['late']; assert nlate >= 2
    free = [B3_] + [x[1] for x in tslots[O['ntail']:]]; state = dict(cur=None)
    def c1act():
        if CL.n >= 64 - 4 * nlate: return
        if CL.n & 3 == 0:
            if not free: free.append(CL.drain())
            state['cur'] = free.pop(0)
            if not free and CL.nd < CL.n // 4 - O['lag'] + 1: free.append(CL.drain())
        CL.issue1(state['cur'])
    def cfinish():
        while CL.n & 3: c1act()
    L1 = v1_issue(k, I, T, sv1, SC); k.s.free(sv1)
    with k.capture() as c3:
        if O['wpos'] == 0: Wf, WX = WD.gather_all()
        scan_coef(k, acc, Pm)
        carry_prep(k, I, E1, Pm)
        if O['wpos'] == 0: WD.fix(Wf, WX)
    acts = [c1act] * (4 * O['nb'])
    c3.weave(acts, O['pb'], 100)
    cfinish()
    if O['wpos'] == 0: free.extend([A0, B0, A1])
    lb = LookBack(k, Pm, se); lb.issue()
    pf("coef")
    with k.capture() as c4: t1w = ph2_s1(k, I, C2, L1, LT1)
    acts = [c1act] * (4 * O['nlb'])
    c4.weave(acts, O['pb'])
    cfinish()
    pf("s1")
    E = lb.finish(); k.s.free(se)
    pf("lb")
    sh = srd(k, P['ws'], 8 << 20, WS_H)
    lasth = pass2c(k, I, acc, Pm, E1, E, sh, lambda q: None)
    pf("pass2")
    if O['wpos'] == 1: Wf, WX = WD.gather_all()
    while CL.nd < CL.n // 4: free.append(CL.drain())
    if O['wpos'] == 1: WD.fix(Wf, WX); free.extend([A0, B0, A1])
    if O['touch']: code_touch(k, I, 3, 16384, cd)
    k.wait(t1w); k("s_barrier")
    pf("bar1")
    vph = k.v.alloc()
    if O['sk']:
        tt = k.s.alloc()
        k(f"s_lshr_b32 {tt}, {I['tb']}, 3\ns_lshl2_add_u32 {tt}, {tt}, {I['w']}\ns_lshl_b32 {tt}, {tt}, 12\nv_lshl_add_u32 {vph}, {I['l']}, 7, {tt}")
        k.s.free(tt)
        p3 = Poll(k, sf, vph, 1, 1, FH, mask=0xffffffff)
    else:
        k(f"v_lshlrev_b32 {vph}, 7, v0")
        p3 = Poll(k, sf, vph, 1, 1, FH)
    def mark(i):
        if i == O['hmark']:
            k.wait(lasth); k("s_barrier")
            wave0_store(k, I, f"buffer_store_dword {one}, {vfh}, {sf}, {FH} offen {SC}", O['fm'])
            pf("hflag")
    with k.capture() as c5: ph2_mid(k, I, T, C2, Wf, WX, LT1, LT2, mark)
    acts = [c1act] * (64 - 4 * nlate - CL.n); print("C instr in mid:", len(acts))
    c5.weave(acts, O['pc'], O['leadc'])
    print("C instr left after mid:", len(acts))
    while acts: acts.pop(0)()
    pf("mid")
    if O['pollat'] == 0: p3.issue()
    k("s_waitcnt lgkmcnt(0)\ns_barrier")
    V2 = ph2_s6(k, I, C2, LT2)
    if O['pollat'] == 1: p3.issue()
    sv2 = srd(k, P['ws'], 256 * V2_STR, WS_V2)
    while CL.nd < CL.n // 4: CL.drain()
    with k.capture() as cv2:
        if O['v2s'] == -1: H['v2'] = v2_store(k, *V2, sv2)
    if not O['vp']: cv2.flush()
    with k.capture() as c7:
        g3 = (B3s if O['sk'] else B3m if O['m32'] else B3h if O['two'] else B3g)(k, I, sh, CL)
        g3.alloc()
        (xd_initS if O['sk'] else xd_init32 if O['m32'] else xd_init3 if O['two'] else xd_init2)(k, XK, Dk, g3.acc)
        if O['pollat'] == 2: p3.issue()
        if O['gseam'] == 2: H['G1'] = gen_GS(k, I) if O['sk'] else gen_G1b(k, dict(I, khs=5))
    acts = [vm1(cv2)] * 16 if O['vp'] else []
    c7.weave(acts, O['vp'])
    cv2.flush()
    pf("s6")
    p3.finish(); k.v.free(vph)
    k("s_waitcnt lgkmcnt(0)\ns_barrier")
    pf("sync3")
    if O['sk'] == 2: return tailT(k, I, O, P, H, locals())
    if O['sk']: return tailS(k, I, O, P, H, locals())
    if O['m32']: return tail32(k, I, O, P, H, locals())
    if O['two']: return two_pass_tail(k, I, O, P, H, locals())
    acts = [lambda s=s, i=i: g3.dma(s, i) for s in range(3) for i in range(8)]
    G1 = None
    if O['gseam']:
        with k.capture() as cg: G1 = gen_G1b(k, I)
        for _ in range(2): acts.pop(0)()
        cg.weave(acts, 48)
    while acts: acts.pop(0)()
    so = srd(k, P['out'], SZ['out'])
    with k.capture() as f3a:
        if O['v2s'] >= 0: H['v2'] = v2_store(k, *V2, sv2)
    with k.capture() as f3b:
        if G1 is None: G1 = gen_G1b(k, I)
        FA = final_addr(k, I, 0, LX)
    pf("pref")
    p4 = Poll(k, sf, vpc, 1, 1, FV, sleep=16)
    VS = O['v2s']
    def pre_bar3(s):
        if s == VS + 3: k.wait(H['v2'])
        if s == 10:
            f3b.flush(); p4.finish()
        if s == 14: H['c'].flush(); k.wait(H['yw'])
    def post_bar3(s):
        if s == VS + 3: wave0_store(k, I, f"buffer_store_dword {one}, {vfc}, {sf}, {FV} offen {SC}")
        if O['touch'] and s == 5: code_touch(k, I, 1, 12288, cd)
        if s == 8: p4.issue()
        if s == 10:
            L2 = v2_issue2(k, I, sv2)
            with k.capture() as H['c']:
                H['yw'] = y_stage2(k, I, L2, LX)
        if s == 14:
            H['g'] = g_issue2(k, I, sg)
            with k.capture() as H['d']:
                H['G2'] = gen_G2(k, I, G1)
    def fill3(s, kk, q):
        if s == VS and f3a.left(): f3a.emit(2)
        if s == max(VS, 0) and kk == 1 and q == 15: f3a.flush()
        if s > VS and q >= 8: f3b.emit(2)
        if q == 15 and kk == 0 and 3 <= s < 3 + nlate: CL.drain()
        if q == 15 and kk == 1 and 1 <= s < 1 + nlate: CL.issue((LX, LT2)[s & 1])
        if s >= 13 and 'c' in H and q >= 6: H['c'].emit(O.get('yr') or 4)
        if 'd' in H and q >= 8: H['d'].emit(O.get('gr') or 4)
        if kk == 1 and q == 0 and s % 4 == 3: pf(f"b{s}")
    g3.main(fill3, pre_bar3, post_bar3, lambda Y: y_reads(FA, Y))
    assert CL.nd == 16
    H['d'].flush()
    pf("main3")
    final2(k, FA, H['g'], g3.acc, g3.fr, (G1, H['G2']), so, pf)
    pf("epi")
    pf.done()
    end(k)
    return k, LDS

def two_pass_tail(k, I, O, P, H, L):
    g3, CL, pf, sf, sg, sv2, V2, vpc, vfc, one, FV, cd, LX, LT2, nlate = [L[n] for n in 'g3 CL pf sf sg sv2 V2 vpc vfc one FV cd LX LT2 nlate'.split()]
    dq = [(s, i) for s in range(16) for i in range(8)]
    acts = [lambda: g3.dma(*dq.pop(0))] * (8 * O['pre3'])
    I2 = dict(I, khs=5); g3.catch = O['pre3'] == 2
    with k.capture() as cg: G1 = H.get('G1') or gen_G1b(k, I2)
    for _ in range(2): acts.pop(0)()
    cg.weave(acts, O['pg'])
    while acts: acts.pop(0)()
    so = srd(k, P['out'], SZ['out'])
    with k.capture() as f3a:
        if O['v2s'] >= 0: H['v2'] = v2_store(k, *V2, sv2)
    with k.capture() as f3b:
        FA = final_addr(k, I2, LT2, LX)
    pf("pref")
    p4 = Poll(k, sf, vpc, 1, 1, FV, sleep=16)
    VS = O['v2s']; PV = O['pv']; VF = O.get('vf', VS + 3); PF = PV + O['pd']; YS = PF + O['yd']; YB = YS + O['yl']; acc = g3.acc; ad = FA['ad']
    aa0 = lambda mm, ib: acc[0].q(4 * mm + 2 + ib)
    S = {}
    def cap(name, fn):
        with k.capture() as S[name]: fn()
    def pre_bar3(s):
        if s == VF: k.wait(H['v2'])
        if s == PF: f3b.flush(); p4.finish()
        if s == 8: S['xw'].flush(); k.wait(H['xw'])
        if s == YB: S['y'].flush(); k.wait(H['yw'])
    def post_bar3(s):
        if O['touch'] and s == 4: code_touch(k, I, 1, 16384, cd)
        if s == VF: wave0_store(k, I, f"buffer_store_dword {one}, {vfc}, {sf}, {FV} offen {SC}")
        if s == PV: p4.issue()
        if s == PF:
            L2 = v2_issue2(k, I, sv2)
            H['g'] = g_issue2(k, I2, sg)
            def f(): H['yw'] = y_stage2(k, I, L2, LX)
            cap('y', f)
        if s == 8:
            def f():
                k(f"v_xor_b32 {ad}, 0x1000, {ad}")
                for mm in range(2):
                    for ib in range(2): k(f"ds_read_b128 {aa0(mm,ib)}, {ad} offset:{1024*(2*mm+ib)}")
                k(f"v_xor_b32 {ad}, 0x1000, {ad}")
            f()
            def f2():
                for mm in range(2):
                    for ib in range(2):
                        for x in (0, 2): pk(k, '+', acc[0].q(4*mm+ib)[x:x+2], acc[0].q(4*mm+ib)[x:x+2], aa0(mm, ib)[x:x+2])
            cap('add', f2)
        if s == YB:
            H['Y'] = k.v.allocq(32)
            def f():
                for r in y_reads(FA, H['Y']): k(r)
            cap('yr', f)
            def f2():
                for m in ph3_list(G1, H['Y'], aa0): k(m)
            cap('m', f2)
            def f3():
                fin3(k, FA, H['g'], acc[0], aa0, so, 0, O['oaf'].replace('_', ''), True)
                for j in range(1, 32, 2): k(f"v_xor_b32 {G1[j]}, 0x80008000, {G1[j]}")
            cap('fin', f3)
    def fill3(s, u, q):
        if s == VS and f3a.left(): f3a.emit(2)
        if s == max(VS, 0) and u == 1 and q == 15: f3a.flush()
        if s > VS and q >= 8: f3b.emit(2)
        if q == 15 and u == 0 and 3 <= s < 3 + nlate: CL.drain()
        if q == 15 and u == 1 and 1 <= s < 1 + nlate: CL.issue((LX, LT2)[s & 1])
        if s == 8 and u == 0:
            if q == 0:
                def f():
                    for mm in range(2):
                        for ib in range(2): H['xw'] = k(f"ds_write_b128 {ad}, {aa0(mm,ib)} offset:{1024*(2*mm+ib)}")
                cap('xw', f)
            if q >= 8 and q & 1: S['xw'].emit(1)
        if s == 9 and u == 0 and q >= 8: S['add'].emit(O.get('yr') or 1)
        if s == 9 and u == 0 and q == 15: S['add'].flush()
        if 'y' in S and (s, u) >= (YS, 1) and q >= 8: S['y'].emit(O.get('yr') or -(-7 // O['yl']))
        if 'yr' in S:
            if S['yr'].left(): S['yr'].emit(3)
            elif S['m'].left():
                if (s, u) >= (YB + 1, 0) and q >= 8: S['m'].emit(2)
            elif (s, u) >= (max(YB + 1, O['fs']), 1) and (q >= 8 or s >= 13): S['fin'].emit(O['fr'])
        if u == 1 and q == 0 and (s % 4 == 3 or PROFSEL): pf(f"b{s}")
    g3.main(dq, fill3, pre_bar3, post_bar3)
    assert CL.nd == 16
    print("fin(a) left after main:", S['fin'].left())
    for n in ('yr', 'm', 'fin'): S[n].flush()
    pf("main3")
    ml = ph3_list(G1, H['Y'], aa0)
    wr = [f"ds_write_b128 {ad}, {acc[1].q(4*mm+2+ib)} offset:{1024*(2*mm+ib)}" for ib in range(2) for mm in range(2)]
    for j in range(8):
        k(ml.pop(0))
        if j & 1 == 0: k(wr.pop(0))
    k(f"v_xor_b32 {ad}, 0x1000, {ad}\ns_waitcnt lgkmcnt(0)\ns_barrier")
    pf("xbar")
    rd = [f"ds_read_b128 {acc[1].q(4*mm+2+ib)}, {ad} offset:{1024*(2*mm+ib)}" for ib in range(2) for mm in range(2)]
    while ml:
        k(ml.pop(0))
        if rd: k(rd.pop(0))
    fin3(k, FA, H['g'], acc[1], aa0, so, 1, O['obf'].replace('_', ''), False)
    pf("epi")
    k.v.free(g3.fr)
    pf.done()
    end(k)
    return k, L['LDS']

def tail32(k, I, O, P, H, L):
    g3, CL, pf, sf, sg, sv2, V2, vpc, vfc, one, FV, cd, LX, LT2, nlate = [L[n] for n in 'g3 CL pf sf sg sv2 V2 vpc vfc one FV cd LX LT2 nlate'.split()]
    dq = [(s, i) for s in range(16) for i in range(8)]
    acts = [lambda: g3.dma(*dq.pop(0))] * (8 * O['pre3'])
    g3.catch = O['pre3'] == 2
    with k.capture() as cg: G1 = gen_G32(k, I)
    if O['gseam']:
        for _ in range(2): acts.pop(0)()
        cg.weave(acts, O['pg'])
    while acts: acts.pop(0)()
    so = srd(k, P['out'], SZ['out'])
    with k.capture() as f3a:
        if O['v2s'] >= 0: H['v2'] = v2_store(k, *V2, sv2)
    with k.capture() as f3b:
        FA = final_addr32(k, I, LT2, LX)
    pf("pref")
    p4 = Poll(k, sf, vpc, 1, 1, FV, sleep=16)
    VS = O['v2s']; PV = O['pv']; VF = O.get('vf', VS + 3); PF = PV + O['pd']; YS = PF + O['yd']; YB = YS + O['yl']
    acc = g3.acc; ad = FA['ad']; aa = acc[0].q(1, 16); FR = O['rate']
    S = {}; XS = O['xs']; assert 8 <= XS and XS + 1 <= YB
    def addbf(y, p):
        for j in range(8):
            k(f"""v_lshlrev_b32 {p[8+j]}, 16, {p[j]}
            v_and_b32 {p[j]}, 0xffff0000, {p[j]}
            v_add_f32 {y[2*j]}, {y[2*j]}, {p[8+j]}
            v_add_f32 {y[2*j+1]}, {y[2*j+1]}, {p[j]}""")
    def cap(name, fn):
        with k.capture() as S[name]: fn()
    def pre_bar3(s):
        if s == VF: k.wait(H['v2'])
        if s == PF: f3b.flush(); cg.flush(); p4.finish()
        if s == XS: S['xw'].flush(); k.wait(H['xw'])
        if s == YB: S['vl'].flush(); S['y'].flush(); k.wait(H['yw'])
    def post_bar3(s):
        if O['touch'] and s == 4: code_touch(k, I, 1, 16384, cd)
        if s == VF: wave0_store(k, I, f"buffer_store_dword {one}, {vfc}, {sf}, {FV} offen {SC}")
        if s == PV: p4.issue()
        if s == PF:
            def f0():
                H['L2'] = v2_issue2(k, I, sv2)
            cap('vl', f0)
            S['vl'].emit(6)
            def f(): H['yw'] = y_stage2(k, I, H['L2'], LX, O['scal'])
            cap('y', f)
        if s == XS:
            k(f"v_xor_b32 {ad}, 0x1000, {ad}")
            for j in range(2): k(f"ds_read_b128 {aa.q(j)}, {ad} offset:{1024*j}")
            k(f"v_xor_b32 {ad}, 0x1000, {ad}")
            def f2(): addbf(acc[0].q(0, 16), aa)
            cap('add', f2)
        if s == YB:
            H['Y'] = k.v.allocq(32); H['g'] = k.v.allocq(16)
            def f():
                for r in y_reads32(FA, H['Y']): k(r)
            cap('yr', f)
            def f2():
                for m in ph3_list32(G1, H['Y'], aa): k(m)
            cap('m', f2)
            def f3():
                k.wait(H['gl']); g_read32(k, FA, H['g'], 0)
                for j in range(1, 32, 2): k(f"v_xor_b32 {G1[j]}, 0x80008000, {G1[j]}")
                fin32(k, FA, H['g'], acc[0].q(0, 16), None, aa, so, 0, O['oaf'].replace('_', ''), O['scal'])
                g_read32(k, FA, H['g'], 1)
            cap('fin', f3)
    def fill3(s, u, q):
        if s == VS and f3a.left(): f3a.emit(4)
        if s == max(VS, 0) and u == 1 and q == 7: f3a.flush()
        if s > VS:
            if f3b.left(): f3b.emit(FR)
            else: cg.emit(FR)
        if q == 7 and u == 0 and 3 <= s < 3 + nlate: CL.drain()
        if q == 7 and u == 1 and 1 <= s < 1 + nlate: CL.issue((LX, LT2)[s & 1])
        if s == 7 and u == 0 and q == 7: H['gl'] = g_dma32(k, I, FA, sg, LT2 + 2048)
        if s == XS and u == 0:
            if q == 0:
                def f():
                    for j in range(8): k(f"v_cvt_pk_bf16_f32 {aa[j]}, {aa[2*j]}, {aa[2*j+1]}")
                    for j in range(2): H['xw'] = k(f"ds_write_b128 {ad}, {aa.q(j)} offset:{1024*j}")
                cap('xw', f)
            if q >= 2: S['xw'].emit(2)
        if s == XS + 1: S['add'].emit(2)
        if s == XS + 1 and u == 1 and q == 7: S['add'].flush()
        if 'vl' in S and q == 7: S['vl'].emit(O['vr'])
        if 'y' in S and (s, u) >= (YS, 1):
            assert S['vl'].left() == 0
            S['y'].emit(O.get('yr') or -(-(10 if O['scal'] else 7) // O['yl']))
        if 'yr' in S:
            if S['yr'].left(): S['yr'].emit(O['yrr'])
            elif S['m'].left():
                if (s, u) >= (YB + 1, 1): S['m'].emit(1)
            elif (s, u) >= (max(YB + 2, O['fs']), 0): S['fin'].emit(O['fr'])
        if u == 1 and q == 0 and (s % 4 == 3 or PROFSEL): pf(f"b{s}")
    g3.main(dq, fill3, pre_bar3, post_bar3)
    assert CL.nd == 16
    print("fin(a) left after main:", S['fin'].left())
    for n in ('yr', 'm', 'fin'): S[n].flush()
    pf("main3")
    ml = ph3_list32(G1, H['Y'], aa); snt = acc[1].q(1, 16)
    y = acc[1].q(0, 16)
    if O['xb']:
        for j in range(2):
            k(ml.pop(0))
            for x in range(4 * j, 4 * j + 4): k(f"v_cvt_pk_bf16_f32 {snt[x]}, {snt[2*x]}, {snt[2*x+1]}")
            k(f"ds_write_b128 {ad}, {snt.q(j)} offset:{1024*j}")
        k(ml.pop(0)); k(ml.pop(0))
        k(f"v_xor_b32 {ad}, 0x1000, {ad}\ns_waitcnt lgkmcnt(0)\ns_barrier")
        pf("xbar")
        k(ml.pop(0))
        for j in range(2): k(f"ds_read_b128 {snt.q(j)}, {ad} offset:{1024*j}")
        while ml: k(ml.pop(0))
        addbf(y, snt)
    else:
        k(f"v_subrev_u32 {ad}, {LT2}, {ad}")
        for j in range(4): k(ml.pop(0)); k(f"ds_write_b128 {ad}, {snt.q(j)} offset:{1024*j}")
        k(ml.pop(0))
        k(f"v_xor_b32 {ad}, 0x1000, {ad}\ns_waitcnt lgkmcnt(0)\ns_barrier")
        pf("xbar")
        k(ml.pop(0))
        for j in range(4): k(f"ds_read_b128 {snt.q(j)}, {ad} offset:{1024*j}")
        while ml: k(ml.pop(0))
        for x in range(0, 16, 2): k(f"v_pk_add_f32 {y[x:x+2]}, {y[x:x+2]}, {snt[x:x+2]}")
    fin32(k, FA, H['g'], y, None, aa, so, 1, O['obf'].replace('_', ''))
    pf("epi")
    k.v.free(g3.fr)
    pf.done()
    end(k)
    return k, L['LDS']

def tailS(k, I, O, P, H, L):
    g3, CL, pf, sf, sg, sv2, V2, vpc, vfc, one, FV, FP, cd, LX, LT2, nlate = [L[n] for n in 'g3 CL pf sf sg sv2 V2 vpc vfc one FV FP cd LX LT2 nlate'.split()]
    assert O['v2s'] < 0
    hq = [(s, i) for s in range(16) for i in range(4)]
    cslots = [L['B2'], L['B3_'], LT2]
    def cnext():
        if CL.n & 3 == 0: H['cs'] = cslots.pop(0)
        CL.issue1(H['cs'])
    acts = [lambda: g3.dma(*hq.pop(0))] * (4 * O['pre3']) + [cnext] * (4 * min(nlate, O['cpre']))
    with k.capture() as cg:
        G1 = H.get('G1') or gen_GS(k, I)
    for _ in range(2): acts.pop(0)()
    cg.weave(acts, O['pg'])
    while acts: acts.pop(0)()
    if O['v2s'] == -2: H['v2'] = v2_store(k, *V2, sv2)
    with k.capture() as f3b:
        so = srd(k, P['out'], SZ['out']); spx = srd(k, P['ws'], 8 << 20, WS_PX)
        A = addrS(k, I, LX)
        spec = k.s.alloc(); vfl = k.v.alloc()
        k(f"s_lshr_b32 {spec}, {I['tb']}, 3\ns_or_b32 {spec}, {spec}, {I['w']}\ns_and_b32 {spec}, {spec}, 1\nv_lshlrev_b32 {vfl}, 2, {I['n']}")
    pf("pref")
    p4 = Poll(k, sf, vpc, 1, 1, FV, sleep=16)
    PV = O['pv']; VF = O['vf']; PF = PV + O['pd']; YS = PF + O['yd']; YB = YS + O['yl']; D = O['D']
    MS = max(YB + 1, 8); FL = O['fl']; PL = O['pl']
    acc = g3.acc; S = {}; BF = O['bf']
    def cap(name, fn):
        with k.capture() as S[name]: fn()
    def gload():
        for ib in range(4): k(f"buffer_load_dwordx4 {H['g'].q(ib)}, {A['vg']}, {sg}, {A['sg']} offen offset:{256*ib} {SC}")
    def mix(y, aa, b):
        g = H['g'].q(b & 3)
        for x in (0, 2): k(f"v_pk_add_f32 {aa.q(b)[x:x+2]}, {aa.q(b)[x:x+2]}, {y.q(b)[x:x+2]} neg_lo:[0,1] neg_hi:[0,1]")
        for x in (0, 2): k(f"v_pk_fma_f32 {y.q(b)[x:x+2]}, {g[x:x+2]}, {aa.q(b)[x:x+2]}, {y.q(b)[x:x+2]}")
    def vm(s, u, x):
        if x == 0:
            late_c = CL.n < 64 and cslots
            H['mode'] = 'c' if (late_c and u == 1) else ('h' if hq and hq[0][0] <= s + D - (1 - u) * 0 and hq[0][0] < s + u + g3.NR else None)
        if H['mode'] == 'c': cnext()
        if H['mode'] == 'h': g3.dma(*hq.pop(0))
    def pre_bar3(s):
        if s == VF: k.wait(H['v2'])
        if s == PF: f3b.flush(); p4.finish()
        if s == YB: S['y'].flush(); k.wait(H['yw'])
    def post_bar3(s):
        if O['touch'] and s == 4: code_touch(k, I, 1, 16384, cd)
        if s == VF: wave0_store(k, I, f"buffer_store_dword {one}, {vfc}, {sf}, {FV} offen {SC}")
        if s == PV: p4.issue()
        if s == PF:
            L2 = k.v.allocq(16)
            for j in range(4): k(f"buffer_load_dwordx4 {L2.q(j)}, {A['l16']}, {sv2}, {A['sv']} offen offset:{1024*j} {SC}")
            def f(): H['yw'] = y_stage2(k, I, L2, LX, False, spec)
            cap('y', f)
        if s == YB:
            H['Y'] = k.v.allocq(16); H['aa'] = aa = k.v.allocq(32); H['g'] = k.v.allocq(16); gload()
            for r in y_readsS(A, H['Y']): k(r)
            def f2():
                for m in ph3_listS(G1, H['Y'], aa): k(m)
            cap('m', f2)
            def f3():
                for j in range(1, 32, 2): k(f"v_xor_b32 {G1[j]}, 0x80008000, {G1[j]}")
                for b in range(8):
                    mix(acc[0], aa, b)
                    if BF:
                        for x in range(2): k(f"v_cvt_pk_bf16_f32 {acc[0][2*b+x]}, {acc[0][4*b+2*x]}, {acc[0][4*b+2*x+1]}")
                k(f"s_xor_b32 {A['sg']}, {A['sg']}, 1024")
            cap('fin', f3)
            def st1(b):
                if b == 4: k(f"s_add_u32 {A['px']}, {A['px']}, 4096")
                H['ps'] = k(f"buffer_store_dwordx4 {acc[0].q(b)}, {A['l16']}, {spx}, {A['px']} offen offset:{1024*(b&3)} {SC}")
            H['sq'] = [lambda b=b: st1(b) for b in range(4 if BF else 8)]
            def f4():
                for m in ph3_listS(G1, H['Y'], aa): k(m)
            cap('m2', f4)
        if s == FL:
            assert not H['sq'] and not S['fin'].left()
            k.wait(H['ps'])
            k(f"s_xor_b32 {A['px']}, {A['px']}, {8 << 15}")
            k(f"s_mov_b64 exec, 0xffff\nbuffer_store_dword {one}, {vfl}, {sf}, {FP} offen {SC}\ns_mov_b64 exec, -1\ns_xor_b32 {FP}, {FP}, {8 << 9}")
            H['p5'] = Poll(k, sf, vfl, 1, 1, FP, sleep=3, mask=1)
            gload()
    def pload():
        H['p5'].finish()
        def ld1(b):
            if b == 0 and not BF: k(f"s_sub_u32 {A['px']}, {A['px']}, 4096")
            k(f"buffer_load_dwordx4 {acc[0].q(b ^ (2 if BF else 4))}, {A['l16']}, {spx}, {A['px']} offen offset:{1024*(b&3)} {SC}")
        H['lq'] = [lambda b=b: ld1(b) for b in ((2, 0, 3, 1) if BF else (4, 5, 6, 7, 0, 1, 2, 3))]
    def fill3(s, u, q):
        if q >= 8: f3b.emit(2)
        if q == 15 and u == 0 and CL.nd < 16 and CL.nd < CL.n // 4 and (CL.nd < CL.n // 4 - O['clag'] or CL.n == 64 and s >= O.get('cend', 0) or CL.nd <= 2 * s + 3):
            cslots.append(CL.drain())
        if 'y' in S and (s, u) >= (YS, 1) and q >= 8: S['y'].emit(1000)
        if 'm' in S:
            if S['m'].left():
                if (s, u) >= (YB + 1, 0) and q >= 8: S['m'].emit(2)
            elif S['fin'].left():
                if (s, u) >= (MS, 1) and q >= 8: S['fin'].emit(O['fr'])
            elif (s, u) >= (O['m2s'], 0) and q >= 8: S['m2'].emit(2)
        if H.get('sq') and not S['fin'].left() and q % O['sr'] == O['sr'] - 1: H['sq'].pop(0)()
        if H.get('lq') and q % O['lr'] == O['lr'] - 1: H['lq'].pop(0)()
        if 2 * s + u == PL and q == 8: H['p5'].issue()
        if 2 * s + u == PL + O['pld'] and q == 8: pload()
        if u == 1 and q == 0 and (s % 4 == 3 or PROFSEL): pf(f"b{s}")
    g3.main(vm, fill3, pre_bar3, post_bar3)
    assert CL.nd == 16 and not hq
    for n in ('m', 'fin', 'm2'): S[n].flush()
    pf("main3")
    if PL + O['pld'] > 31: pload()
    while H['lq']: H['lq'].pop(0)()
    y = acc[1]; aa = H['aa']; va, so_ = A['va'], A['so']
    for ib in range(4):
        for mm in range(2):
            b = 4 * mm + ib
            mix(y, aa, b)
            for x in (0, 2):
                p_ = acc[0].q(b)[x:x+2]
                if BF:
                    p_ = acc[0].q(4 + (b & 3))[x:x+2]; src = acc[0][2 * b + x // 2]
                    k(f"v_lshlrev_b32 {p_[0]}, 16, {src}\nv_and_b32 {p_[1]}, 0xffff0000, {src}")
                k(f"v_pk_add_f32 {y.q(b)[x:x+2]}, {y.q(b)[x:x+2]}, {p_}")
        for r in range(4):
            for mm in range(2): k(f"buffer_store_dword {y.q(4*mm+ib)[r]}, {va[mm]}, {so}, {so_} offen {O['obf'].replace('_', '')}")
            if (ib, r) != (3, 3): k(f"s_add_u32 {so_}, {so_}, {(1<<16) if r < 3 else (1<<20) - 3*(1<<16)}")
    pf("epi")
    k.v.free(g3.fr)
    pf.done()
    end(k)
    return k, L['LDS']

def tailT(k, I, O, P, H, L):
    g3, CL, pf, sf, sg, sv2, V2, vpc, vfc, one, FV, cd, LX, LT2, nlate = [L[n] for n in 'g3 CL pf sf sg sv2 V2 vpc vfc one FV cd LX LT2 nlate'.split()]
    assert O['v2s'] < 0
    g3.split = bool(O['eo'])
    hq = [(s, i) for s in range(16) for i in range(4)]
    cslots = [L['B2'], L['B3_'], LT2]
    def cnext():
        if CL.n & 3 == 0: H['cs'] = cslots.pop(0)
        CL.issue1(H['cs'])
    acts = [lambda: g3.dma(*hq.pop(0))] * (4 * O['pre3']) + [cnext] * (4 * min(nlate, O['cpre']))
    with k.capture() as cg:
        G1 = H.get('G1') or gen_GS(k, I)
    for _ in range(2): acts.pop(0)()
    cg.weave(acts, O['pg'])
    while acts: acts.pop(0)()
    if O['v2s'] == -2: H['v2'] = v2_store(k, *V2, sv2)
    with k.capture() as f3b:
        so = srd(k, P['out'], SZ['out']); spx = srd(k, P['ws'], 256 * V1_STR, WS_V1)
        A = addrS(k, I, LX)
        spec = k.s.alloc()
        k(f"s_lshr_b32 {spec}, {I['tb']}, 3\ns_or_b32 {spec}, {spec}, {I['w']}\ns_and_b32 {spec}, {spec}, 1\ns_lshr_b32 {A['px']}, {A['px']}, 1")
    pf("pref")
    p4 = Poll(k, sf, vpc, 1, 1, FV, sleep=16)
    PV = O['pv']; VF = O['vf']; PF = PV + O['pd']; YS = PF + O['yd']; YB = YS + O['yl']; D = O['D']
    MS = max(YB + 1, 8); PL = O['pl']
    acc = g3.acc; S = {}; va, so_ = A['va'], A['so']
    PK, UN = acc[0][0:16], acc[0][16:32]
    def cap(name, fn):
        with k.capture() as S[name]: fn()
    def gload():
        for ib in range(4): k(f"buffer_load_dwordx4 {H['g'].q(ib)}, {A['vg']}, {sg}, {A['sg']} offen offset:{256*ib} {SC}")
    def mix(y, aa, b):
        g = H['g'].q(b & 3)
        for x in (0, 2): k(f"v_pk_add_f32 {aa.q(b)[x:x+2]}, {aa.q(b)[x:x+2]}, {y.q(b)[x:x+2]} neg_lo:[0,1] neg_hi:[0,1]")
        for x in (0, 2): k(f"v_pk_fma_f32 {y.q(b)[x:x+2]}, {g[x:x+2]}, {aa.q(b)[x:x+2]}, {y.q(b)[x:x+2]}")
    def ld1(j): return k(f"buffer_load_dwordx4 {PK.q(j ^ 2)}, {A['l16']}, {spx}, {A['px']} offen offset:{1024*j} {SC}")
    def check():
        m = UN[0]
        def chk():
            k(f"v_and_b32 {m}, 1, {PK[0]}")
            for j in range(1, 15, 2): k(f"v_bitop3_b32 {m}, {m}, {PK[j]}, {PK[j+1]} bitop3:0x80")
            k(f"v_and_b32 {m}, {m}, {PK[15]}\nv_cmp_eq_u32 vcc, 0, {m}")
        k.wait(H['ll']); chk()
        with k.skip_if("s_cbranch_vccz"):
            cnt = k.s.alloc(); lp, out = k.lab('px'), k.lab('pxout')
            k(f"s_mov_b32 {cnt}, 0\n{lp}:\ns_sleep 2")
            for j in range(4): ld1(j)
            k("s_waitcnt vmcnt(0)"); chk()
            k(f"s_cbranch_vccz {out}\ns_add_u32 {cnt}, {cnt}, 1\ns_cmp_lt_u32 {cnt}, {1<<20}\ns_cbranch_scc1 {lp}\n{out}:")
            k.s.free(cnt)
    def fin(ib, flags):
        y, aa = acc[1], H['aa']
        for mm in range(2):
            b = 4 * mm + ib
            mix(y, aa, b)
            for x in (0, 2):
                p_ = UN.q(2 * (ib & 1) + mm)[x:x+2]; src = PK[2 * b + x // 2]
                k(f"v_lshlrev_b32 {p_[0]}, 16, {src}\nv_and_b32 {p_[1]}, 0xffff0000, {src}\nv_pk_add_f32 {y.q(b)[x:x+2]}, {y.q(b)[x:x+2]}, {p_}")
        for r in range(4):
            for mm in range(2): k(f"buffer_store_dword {y.q(4*mm+ib)[r]}, {va[mm]}, {so}, {so_} offen {flags}")
            if (ib, r) != (3, 3): k(f"s_add_u32 {so_}, {so_}, {(1<<16) if r < 3 else (1<<20) - 3*(1<<16)}")
    def vm(s, u, x):
        if x == 0:
            late_c = CL.n < 64 and cslots
            H['mode'] = 'c' if (late_c and u == 1) else ('h' if hq and hq[0][0] <= s + D and hq[0][0] < s + u + g3.NR else None)
        if H['mode'] == 'c': cnext()
        if H['mode'] == 'h': g3.dma(*hq.pop(0))
    def pre_bar3(s):
        if s == VF: k.wait(H['v2'])
        if s == PF: f3b.flush(); p4.finish()
        if s == YB: S['y'].flush(); k.wait(H['yw'])
    def post_bar3(s):
        if O['touch'] and s == 4: code_touch(k, I, 1, 16384, cd)
        if s == VF: wave0_store(k, I, f"buffer_store_dword {one}, {vfc}, {sf}, {FV} offen {SC}")
        if s == PV: p4.issue()
        if s == PF:
            L2 = k.v.allocq(16)
            for j in range(4): k(f"buffer_load_dwordx4 {L2.q(j)}, {A['l16']}, {sv2}, {A['sv']} offen offset:{1024*j} {SC}")
            def f(): H['yw'] = y_stage2(k, I, L2, LX, False, spec)
            cap('y', f)
        if s == YB:
            H['Y'] = k.v.allocq(16); H['aa'] = aa = k.v.allocq(32); H['g'] = k.v.allocq(16); gload()
            for r in y_readsS(A, H['Y']): k(r)
            def f2():
                for m in ph3_listS(G1, H['Y'], aa): k(m)
            cap('m', f2)
            def f3():
                for j in range(1, 32, 2): k(f"v_xor_b32 {G1[j]}, 0x80008000, {G1[j]}")
                for b in range(8):
                    mix(acc[0], aa, b)
                    for x in range(2): k(f"v_cvt_pk_bf16_f32 {PK[2*b+x]}, {acc[0][4*b+2*x]}, {acc[0][4*b+2*x+1]}")
                    for x in range(2): k(f"v_or_b32 {PK[2*b+x]}, 1, {PK[2*b+x]}")
                    if b & 1: k(f"buffer_store_dwordx4 {PK.q(b>>1)}, {A['l16']}, {spx}, {A['px']} offen offset:{1024*(b>>1)} {SC}")
                k(f"s_xor_b32 {A['sg']}, {A['sg']}, 1024\ns_xor_b32 {A['px']}, {A['px']}, {8 << 14}")
            cap('fin', f3)
            cap('m2', f2)
    def fill3(s, u, q):
        hs = 2 * s + u
        if q >= 8: f3b.emit(2)
        if q == 15 and u == 0 and CL.nd < 16 and CL.nd < CL.n // 4 and (CL.nd < CL.n // 4 - O['clag'] or CL.n == 64 or CL.nd <= 2 * s + 3):
            cslots.append(CL.drain())
        if 'y' in S and (s, u) >= (YS, 1) and q >= 8: S['y'].emit(1000)
        if 'm' in S:
            if S['m'].left():
                if (s, u) >= (YB + 1, 0) and q >= 8: S['m'].emit(2)
            elif S['fin'].left():
                if (s, u) >= (MS, 1) and q >= 8: S['fin'].emit(O['fr'])
            elif (s, u) >= (O['m2s'], 0) and q >= 8: S['m2'].emit(2)
        if hs == PL - 1 and q == 15: assert not S['fin'].left(); gload()
        if hs == PL and q >= 9 and q & 1: H['ll'] = ld1((q - 9) // 2)
        if hs == PL + O['pld'] and q == 8: check()
        if O['eo'] and hs == O['es'] and q == 8:
            assert hs >= 24 and hs >= PL + O['pld'] and not S['m2'].left()
            cap('eo', lambda: (fin(0, 'sc1'), fin(1, 'sc1')))
        if 'eo' in S:
            g_ = S['eo'].groups
            if g_ and not any(i.cls == 'vm' for i in g_[0]):
                while g_ and not any(i.cls == 'vm' for i in g_[0]): S['eo'].emit(1)
            elif q % O['er'] == 0: S['eo'].emit(1)
        if u == 1 and q == 0 and (s % 4 == 3 or PROFSEL): pf(f"b{s}")
    g3.main(vm, fill3, pre_bar3, post_bar3)
    assert CL.nd == 16 and not hq
    for n in S: S[n].flush()
    pf("main3")
    for ib in range(2 if O['eo'] else 0, 4): fin(ib, O['obf'].replace('_', ''))
    pf("epi")
    k.v.free(g3.fr)
    pf.done()
    end(k)
    return k, L['LDS']

def write(path, opt={}):
    k, lds = build(opt)
    open(path, "w").write(module(header(), [(k.name, 256, 256, lds)], [k]))
    print(path, k.stats)
    if os.environ.get('SEG'): k.segstats()
    if PROF: json.dump([k.profnames], open(path[:-2] + ".json", "w"))

if __name__ == "__main__":
    opt = {}
    for a in sys.argv[2:]:
        n, v = a.split("="); opt[n] = int(v) if v.lstrip('-').isdigit() else v
    write(sys.argv[1] if len(sys.argv) > 1 else "outf.s", opt)
```

```python
from fused import *
WS_FP = 0x1380000
WS_PX = 0x1400000

class CLoadS(CLoad):
    def __init__(self, k, I, scr, sci, CA):
        self.k, self.sc2 = k, (scr, sci)
        self.C = CA; self.va = k.v.alloc(4); self.ra = k.v.alloc(4); self.so = k.s.alloc(); self.mw = k.s.alloc()
        t = k.v.alloc(2); st = k.s.alloc(); l = I['l']
        k(f"""v_and_b32 {t[0]}, 7, {l}
        v_xor_b32 {t[0]}, {t[0]}, {I['g']}
        v_and_b32 {t[1]}, 4, {t[0]}
        v_lshlrev_b32 {self.va[0]}, 4, {t[1]}
        v_and_b32 {t[1]}, 1, {t[0]}
        v_lshl_or_b32 {self.va[0]}, {t[1]}, 5, {self.va[0]}
        v_and_b32 {t[1]}, 2, {t[0]}
        v_lshl_or_b32 {self.va[0]}, {t[1]}, 3, {self.va[0]}
        v_lshrrev_b32 {t[1]}, 3, {l}
        v_lshl_or_b32 {self.va[0]}, {t[1]}, 11, {self.va[0]}
        s_lshl4_add_u32 {st}, {I['w']}, {I['tb']}
        s_lshl_b32 {st}, {st}, 15
        s_lshr_b32 {self.so}, {I['tb']}, 3
        s_lshl_b32 {self.so}, {self.so}, 10
        s_add_u32 {st}, {st}, {self.so}
        v_add_u32 {self.va[0]}, {st}, {self.va[0]}
        v_xor_b32 {self.va[2]}, {1<<18}, {self.va[0]}
        v_xor_b32 {self.va[1]}, 64, {self.va[0]}
        v_xor_b32 {self.va[3]}, 64, {self.va[2]}
        v_add_u32 {self.va[1]}, {16384-1024}, {self.va[1]}
        v_add_u32 {self.va[3]}, {16384-1024}, {self.va[3]}
        s_and_b32 {self.so}, {I['ta']}, 7
        s_lshl_b32 {self.so}, {self.so}, 7
        s_lshl_b32 {self.mw}, {I['w']}, 12
        v_lshrrev_b32 {t[0]}, 1, {I['n']}
        v_xor_b32 {t[0]}, {t[0]}, {I['g']}
        v_lshlrev_b32 {t[0]}, 4, {t[0]}
        v_lshl_or_b32 {t[0]}, {I['n']}, 7, {t[0]}
        v_add_u32 {self.ra[0]}, {self.mw}, {t[0]}
        v_xor_b32 {self.ra[1]}, 64, {self.ra[0]}
        v_add_u32 {self.ra[2]}, 0x10000, {self.ra[0]}
        v_add_u32 {self.ra[3]}, 0x10000, {self.ra[1]}""")
        k.v.free(t); k.s.free(st)
        self.n = 0; self.slot = {}; self.ld = {}; self.rd = {}; self.nd = 0
    def issue1(self, slot):
        k = self.k; j, q = self.n >> 2, self.n & 3
        if q == 0:
            if slot in self.rd: k.wait(self.rd.pop(slot))
            self.slot[j] = slot
        if q & 1 == 0: k(f"s_add_u32 m0, {self.mw}, {self.slot[j] + 1024*q}")
        self.ld[j] = k(f"buffer_load_dwordx4 {self.va[q]}, {self.sc2[j&1]}, {self.so} offen offset:{1024*(q&1)} lds")
        if q == 3 and j & 1: k(f"s_add_u32 {self.so}, {self.so}, 128\ns_and_b32 {self.so}, {self.so}, 0x3ff")
        self.n += 1
        if self.n == 64: k.v.free(self.va); k.s.free(self.so, self.mw)

class B3s:
    NR = 6
    def __init__(self, k, I, sh, CL):
        self.k, self.I, self.sh, self.CL = k, I, sh, CL
        self.vh = k.v.alloc(); self.rh = k.v.alloc(4); self.so, self.mH = k.s.alloc(), k.s.alloc()
        t = k.v.alloc(2); st = k.s.alloc(); l = I['l']
        k(f"""s_lshr_b32 {st}, {I['tb']}, 3
        s_mul_i32 {self.mH}, {st}, {(1<<18) - 8192}
        s_lshl_b32 {self.so}, {I['ta']}, 19
        s_add_u32 {self.mH}, {self.mH}, {self.so}
        s_lshr_b32 {st}, {I['w']}, 1
        s_lshl1_add_u32 {st}, {st}, {I['w']}
        s_add_u32 {st}, {st}, 2
        s_lshl_b32 {st}, {st}, 12
        s_add_u32 {self.mH}, {self.mH}, {st}
        v_lshl_add_u32 {self.vh}, {l}, 4, {self.mH}
        s_and_b32 {self.so}, {I['ta']}, 7
        s_lshl_b32 {self.so}, {self.so}, 15
        s_lshl_b32 {self.mH}, {I['w']}, 12
        v_and_b32 {t[0]}, 3, {l}
        v_and_b32 {t[1]}, 2, {I['g']}
        v_xor_b32 {t[1]}, {t[1]}, {t[0]}
        v_lshlrev_b32 {t[0]}, 9, {t[0]}
        v_lshl_or_b32 {t[0]}, {t[1]}, 6, {t[0]}
        v_bfe_u32 {t[1]}, {l}, 2, 2
        v_lshl_or_b32 {t[0]}, {t[1]}, 4, {t[0]}
        v_and_b32 {t[1]}, 1, {I['g']}
        v_lshl_or_b32 {self.rh[0]}, {t[1]}, 3, {t[0]}
        v_xor_b32 {self.rh[1]}, 64, {self.rh[0]}
        v_add_u32 {self.rh[2]}, 0x10000, {self.rh[0]}
        v_add_u32 {self.rh[3]}, 0x10000, {self.rh[1]}""")
        k.v.free(t); k.s.free(st)
        self.last = {}; self.cnt = {}
    split = False
    bars = None
    freed = -1
    def dma(self, s, i):
        k = self.k; I = self.I
        if self.split and s >= 8:
            if s == 8 and i == 0:
                k(f"""s_lshr_b32 m0, {I['w']}, 1
                s_lshl_b32 m0, m0, 15
                s_add_u32 {self.so}, {self.so}, m0
                s_and_b32 {self.so}, {self.so}, 0x3ffff
                s_and_b32 m0, {I['w']}, 1
                s_lshl_b32 m0, m0, 14
                v_and_b32 {self.vh}, {hex(0xffffafff)}, {self.vh}
                v_or_b32 {self.vh}, m0, {self.vh}""")
            if i == 0: k(f"s_add_u32 m0, {self.mH}, {(s % self.NR)*16384}")
            self.last[s] = k(f"buffer_load_dwordx4 {self.vh}, {self.sh}, {self.so} offen offset:{1024*i} {SC} lds")
            self.cnt[s] = self.cnt.get(s, 0) + 1
            if i == 3:
                k(f"s_add_u32 {self.so}, {self.so}, 65536\ns_and_b32 {self.so}, {self.so}, 0x3ffff")
                if s == 11: k(f"v_xor_b32 {self.vh}, 4096, {self.vh}")
            return
        if i == 0: k(f"s_add_u32 m0, {self.mH}, {(s % self.NR)*16384}")
        self.last[s] = k(f"buffer_load_dwordx4 {self.vh}, {self.sh}, {self.so} offen offset:{1024*i} {SC} lds")
        self.cnt[s] = self.cnt.get(s, 0) + 1
        if i == 3:
            k(f"s_add_u32 {self.so}, {self.so}, 32768\ns_and_b32 {self.so}, {self.so}, 0x3ffff")
            if s == 7: k(f"v_xor_b32 {self.vh}, 8192, {self.vh}")
    def alloc(self):
        self.acc = [self.k.v.allocq(32), self.k.v.allocq(32)]; self.fr = self.k.v.allocq(64)
    def main(self, vm, fill, pre_bar, post_bar):
        k = self.k; NS = 16; fr = self.fr
        def reads(s, u):
            f = fr.q(u, 32); out = []
            for kk in range(2):
                for ib in range(4):
                    off = (s % self.NR) * 16384 + u * 8192 + ib * 2048 + kk * 256; hi = 2 if off >= 65536 else 0
                    for h in range(2):
                        o = 16 * kk + 4 * ib + 2 * h
                        out.append(f"ds_read_b64_tr_b16 {f[o:o+2]}, {self.rh[hi+h]} offset:{off & 65535}")
            return out
        pre_bar(-1)
        bars = self.bars or list(range(-1, 15))
        def upto(s):
            nb = [x for x in bars if x > s]
            return nb[0] if nb else 15
        k.wait(self.last[upto(-1)]); k("s_barrier")
        lastrd = None
        for r in reads(0, 0): lastrd = k(r)
        post_bar(-1)
        for s in range(NS):
            acc = self.acc[s >> 3]
            for u in range(2):
                f = fr.q(u, 32); rd = []
                if u == 0: rd = reads(s, 1)
                elif s + 1 < NS:
                    if s in bars:
                        pre_bar(s)
                        assert self.cnt[upto(s)] == 4
                        k.wait(lastrd, self.last[upto(s)]); k("s_barrier"); self.freed = s
                    rd = reads(s + 1, 0)
                k.wait(lastrd)
                assert self.CL.nd > 2 * (s & 7) + u, (s, u, self.CL.nd)
                order = [(kk, ib, mm ^ (ib & 1)) for kk in range(2) for ib in range(4) for mm in range(2)]
                for q, (kk, ib, mm) in enumerate(order):
                    if self.split and s >= 8:
                        d = acc.q(4 * mm + 2 * ((s - 8) >> 2) + (ib & 1)); unit = 4 * (s & 3) + 2 * u + (ib >> 1)
                        zero = s & 3 == 0 and u == 0 and kk == 0 and mm == 1 and ib < 2
                    else:
                        d = acc.q(4 * mm + ib); unit = 2 * (s & 7) + u
                        zero = s & 7 == 0 and u == 0 and kk == 0 and mm == 1
                    k(f"v_mfma_f32_16x16x32_bf16 {d}, {f.q(4*kk+ib)}, {self.CL.frag(unit,kk,mm)}, {0 if zero else d}")
                    if rd and q < 8:
                        k(rd[2 * q]); lastrd = k(rd[2 * q + 1])
                    if q >= 8 and q % 2 == 0: vm(s, u, (q - 8) // 2)
                    if q == 15 and u == 1: post_bar(s)
                    fill(s, u, q)
        k.v.free(self.vh, self.rh); k.s.free(self.so, self.mH)

def xkeepS(k, I, ldsX):
    XK = k.v.allocq(16, 2); ad = k.v.alloc(2); t = k.v.alloc(2); st = k.s.alloc()
    k(f"""s_lshr_b32 {st}, {I['tb']}, 3
    s_lshl_b32 {st}, {st}, 13
    s_add_u32 {st}, {st}, {ldsX}
    v_lshrrev_b32 {t[0]}, 2, {I['l']}
    v_lshl_add_u32 {t[0]}, {t[0]}, 7, {st}
    v_and_b32 {t[1]}, 3, {I['l']}
    v_lshl_add_u32 {t[0]}, {t[1]}, 3, {t[0]}
    v_bfe_u32 {t[1]}, {I['l']}, 3, 2
    v_xor_b32 {t[1]}, {I['w']}, {t[1]}
    v_lshl_add_u32 {ad[1]}, {t[1]}, 5, {t[0]}
    v_xor_b32 {ad[0]}, 8192, {ad[1]}""")
    for p in range(2):
        for ib in range(4): k(f"ds_read_b64_tr_b16 {XK.q(4*p+ib,2)}, {ad[p]} offset:{2048*ib}")
    k.v.free(ad, t); k.s.free(st)
    return XK

def dsk_issueS(k, I, sd):
    Dk = k.v.alloc(2); va = k.v.alloc(); so = k.s.alloc()
    k(f"""v_lshlrev_b32 {va}, 1, {I['n']}
    s_lshl4_add_u32 {so}, {I['w']}, {I['tb']}
    s_lshl_b32 {so}, {so}, 5
    buffer_load_short_d16_hi {Dk[0]}, {va}, {sd}, {so} offen""")
    k.v.free(va); k.s.free(so)
    return Dk

def xd_initS(k, XK, Dk, acc):
    for p in range(2):
        for ib in range(4):
            a = acc[p].q(ib); x = XK.q(4 * p + ib, 2)
            k(f"""v_lshlrev_b32 {a[0]}, 16, {x[0]}
            v_and_b32 {a[1]}, 0xffff0000, {x[0]}
            v_lshlrev_b32 {a[2]}, 16, {x[1]}
            v_and_b32 {a[3]}, 0xffff0000, {x[1]}
            v_pk_mul_f32 {a[0:2]}, {Dk}, {a[0:2]} op_sel_hi:[0,1]
            v_pk_mul_f32 {a[2:4]}, {Dk}, {a[2:4]} op_sel_hi:[0,1]""")
    k.v.free(XK, Dk)

def gen_GS(k, I):
    G = k.v.allocq(32); a = k.v.allocq(8); c = k.v.allocq(8)
    f, b, sb = [k.v.alloc() for _ in range(3)]; mk = k.v.alloc(2); st = k.s.alloc()
    k(f"""s_and_b32 {st}, {I['tb']}, 8
    s_lshl_b32 {st}, {st}, 2
    v_lshrrev_b32 {f}, 1, {I['g']}
    v_lshl_add_u32 {f}, {f}, 3, {st}
    v_and_b32 {b}, 1, {I['g']}
    v_lshl_add_u32 {f}, {b}, 1, {f}
    v_cmp_eq_u32 vcc, 0, {f}
    v_cvt_f32_u32 {sb}, {f}
    v_bfe_i32 {mk[0]}, {I['g']}, 0, 1
    v_and_b32 {mk[0]}, 0x80008000, {mk[0]}
    v_xor_b32 {mk[1]}, 0x80000000, {mk[0]}
    s_lshl_b32 {st}, {st}, 1
    s_xor_b32 {st}, {st}, 64
    v_add_u32 {f}, {st}, {I['n']}
    v_cvt_f32_u32 {f}, {f}
    v_mul_f32 {f}, {fl(1/128)}, {f}""")
    for ib in range(2):
        if ib: k(f"v_add_f32 {f}, {fl(16/128)}, {f}")
        k(f"v_mul_f32 {b}, {f}, {sb}")
        for j in range(8): k(f"v_fmamk_f32 {a[j]}, {f}, {fl(float(16*(j>>2) + 4*((j>>1)&1) + (j&1)))}, {b}")
        for j in range(8): k(f"v_cos_f32 {c[j]}, {a[j]}")
        for j in range(8): k(f"v_sin_f32 {a[j]}, {a[j]}")
        k(f"v_lshlrev_b32 {b}, 31, {I['n']}\nv_or_b32 {b}, 0x3f003f00, {b}")
        for j in range(8): k(f"v_cvt_pk_bf16_f32 {G[8*ib+j]}, {c[j]}, -{a[j]}")
        k(f"v_cndmask_b32 {G[8*ib]}, {G[8*ib]}, {b}, vcc")
        for j in range(8):
            s_, d_ = G[8 * ib + j], G[16 + 8 * ib + j]
            if j & 1: k(f"v_alignbit_b32 {d_}, {s_}, {s_}, 16\nv_xor_b32 {d_}, {mk[1]}, {d_}")
            else: k(f"v_xor_b32 {d_}, {mk[0]}, {s_}")
    k.v.free(a, c, f, b, sb, mk); k.s.free(st)
    return G

def addrS(k, I, ldsY):
    A = dict(ay=k.v.alloc(), va=k.v.alloc(2), so=k.s.alloc(), l16=k.v.alloc(), vg=k.v.alloc(), sg=k.s.alloc(), px=k.s.alloc(), sv=k.s.alloc())
    t = k.v.alloc(); st = k.s.alloc(); ay, va, so = A['ay'], A['va'], A['so']
    k(f"""v_lshlrev_b32 {A['l16']}, 4, {I['l']}
    v_lshrrev_b32 {t}, 5, {I['l']}
    v_lshlrev_b32 {ay}, 9, {t}
    v_lshlrev_b32 {A['vg']}, 7, {t}
    v_bfe_u32 {t}, {I['l']}, 3, 2
    v_lshl_or_b32 {ay}, {t}, 6, {ay}
    v_and_b32 {t}, 3, {I['l']}
    v_lshl_or_b32 {ay}, {t}, 4, {ay}
    v_and_b32 {t}, 4, {I['l']}
    v_lshl_or_b32 {ay}, {t}, 1, {ay}
    s_lshl_b32 {st}, {I['w']}, 12
    s_add_u32 {st}, {st}, {ldsY}
    v_add_u32 {ay}, {st}, {ay}
    v_and_or_b32 {A['vg']}, {I['l']}, 16, {A['vg']}
    s_lshl_b32 {st}, {I['tb']}, 6
    v_lshl_add_u32 {va[0]}, {I['n']}, 2, {st}
    v_lshl_or_b32 {va[0]}, {I['g']}, 18, {va[0]}
    v_xor_b32 {va[1]}, 512, {va[0]}
    s_lshr_b32 {st}, {I['tb']}, 3
    s_lshl_b32 {so}, {st}, 10
    s_add_u32 {so}, {so}, {I['ta']}
    s_lshl2_add_u32 {so}, {so}, {I['w']}
    s_lshl_b32 {so}, {so}, 10
    s_xor_b32 {A['sg']}, {st}, 1
    s_lshl1_add_u32 {A['sg']}, {I['ta']}, {A['sg']}
    s_lshl_b32 {A['sg']}, {A['sg']}, 10
    s_lshl4_add_u32 {A['px']}, {I['ta']}, {I['tb']}
    s_and_b32 {A['sv']}, {I['w']}, 2
    s_lshl_b32 {A['sv']}, {A['sv']}, 2
    s_xor_b32 {A['sv']}, {A['sv']}, {A['px']}
    s_lshl1_add_u32 {A['sv']}, {A['sv']}, {st}
    s_and_b32 {st}, {I['w']}, 1
    s_lshl1_add_u32 {A['sv']}, {A['sv']}, {st}
    s_lshl_b32 {A['sv']}, {A['sv']}, 12
    s_lshl2_add_u32 {A['px']}, {A['px']}, {I['w']}
    s_lshl_b32 {A['px']}, {A['px']}, 13""")
    assert V2_STR == 16384
    k.v.free(t); k.s.free(st)
    return A

def y_readsS(A, Y):
    return [f"ds_read_b64_tr_b16 {Y[4*x+2*h:4*x+2*h+2]}, {A['ay']} offset:{1024*x + 256*h}" for x in range(4) for h in range(2)]

def ph3_listS(G, Y, aa):
    return [f"v_mfma_f32_16x16x32_bf16 {aa.q(4*mm+ib)}, {G.q(2*ib+kap)}, {Y.q(2*mm+kap)}, {aa.q(4*mm+ib) if kap else 0}"
            for kap in range(2) for ib in range(4) for mm in range(2)]

class CLoadU(CLoadS):
    def __init__(self, k, I, scr, sci, CA):
        self.k, self.sc2 = k, (scr, sci)
        self.C = CA; self.va = k.v.alloc(4); self.ra = k.v.alloc(4); self.so = k.s.alloc(); self.mw = k.s.alloc()
        t = k.v.alloc(2); st = k.s.alloc(); l = I['l']
        k(f"""v_and_b32 {t[0]}, 7, {l}
        v_xor_b32 {t[0]}, {t[0]}, {I['g']}
        v_lshlrev_b32 {t[0]}, 4, {t[0]}
        v_lshrrev_b32 {t[1]}, 3, {l}
        v_lshl_or_b32 {self.va[0]}, {t[1]}, 11, {t[0]}
        s_and_b32 {st}, {I['tb']}, 7
        s_lshl4_add_u32 {st}, {I['w']}, {st}
        s_lshl_b32 {st}, {st}, 15
        s_lshr_b32 {self.so}, {I['tb']}, 3
        s_lshl_b32 {self.so}, {self.so}, 10
        s_add_u32 {st}, {st}, {self.so}
        v_add_u32 {self.va[0]}, {st}, {self.va[0]}
        v_xor_b32 {self.va[1]}, 64, {self.va[0]}
        v_add_u32 {self.va[1]}, {16384-1024}, {self.va[1]}
        v_add_u32 {self.va[2]}, {(1<<18)-2048}, {self.va[0]}
        v_add_u32 {self.va[3]}, {(1<<18)-2048}, {self.va[1]}
        s_and_b32 {self.so}, {I['ta']}, 7
        s_lshl_b32 {self.so}, {self.so}, 7
        s_lshl_b32 {self.mw}, {I['w']}, 12
        v_bfe_u32 {t[0]}, {l}, 1, 3
        v_lshrrev_b32 {t[1]}, 5, {l}
        v_xor_b32 {t[0]}, {t[0]}, {t[1]}
        v_lshlrev_b32 {t[0]}, 4, {t[0]}
        v_and_b32 {t[1]}, 31, {l}
        v_lshl_or_b32 {t[0]}, {t[1]}, 7, {t[0]}
        v_add_u32 {self.ra[0]}, {self.mw}, {t[0]}""")
        for q in range(1, 4): k(f"v_xor_b32 {self.ra[q]}, {32*q}, {self.ra[0]}")
        k.v.free(t); k.s.free(st)
        self.n = 0; self.slot = {}; self.ld = {}; self.rd = {}; self.nd = 0; self.base = 0
    def frag(self, j, kq): return self.C.q(4 * j + kq)
    def issue1(self, slot):
        k = self.k; j, q = self.n >> 2, self.n & 3
        if q == 0:
            if slot in self.rd: k.wait(self.rd.pop(slot))
            self.slot[j] = slot
            k(f"s_add_u32 m0, {self.mw}, {slot}")
        self.ld[j] = k(f"buffer_load_dwordx4 {self.va[q]}, {self.sc2[j&1]}, {self.so} offen offset:{1024*q} lds")
        if q == 3 and j & 1: k(f"s_add_u32 {self.so}, {self.so}, 128\ns_and_b32 {self.so}, {self.so}, 0x3ff")
        self.n += 1
        if self.n == 64: k.v.free(self.va); k.s.free(self.so, self.mw)
    def drain(self):
        k = self.k; j = self.nd; slot = self.slot[j]; base = slot & ~65535
        assert self.n >= 4 * (j + 1)
        if base != self.base:
            for q in range(4): k(f"v_xor_b32 {self.ra[q]}, {hex(base ^ self.base)}, {self.ra[q]}")
            self.base = base
        k.wait(self.ld[j])
        for q in range(4): self.rd[slot] = k(f"ds_read_b128 {self.frag(j,q)}, {self.ra[q]} offset:{slot & 65535}")
        self.nd += 1
        if self.nd == 16: k.v.free(self.ra)
        return slot

class B3u(B3s):
    split = True
    def __init__(self, k, I, sh, CL):
        super().__init__(k, I, sh, CL)
        del k.ins[-5:]
        t0 = k.ins[-1].text.split()[1].rstrip(',')
        rh = self.rh
        k(f"""v_and_b32 {rh[1]}, 1, {I['g']}
        v_mul_u32_u24 {rh[1]}, {2048 + 8}, {rh[1]}
        v_add_u32 {rh[0]}, {rh[1]}, {t0}
        v_xor_b32 {rh[1]}, 64, {rh[0]}
        v_xor_b32 {rh[2]}, 8, {rh[0]}
        v_xor_b32 {rh[3]}, 8, {rh[1]}""")
    def alloc(self):
        self.acc = [self.k.v.allocq(32, 16), self.k.v.allocq(32, 16)]; self.fr = self.k.v.allocq(64)
    def main(self, vm, fill, pre_bar, post_bar, RD=(3, 3, 3, 3, 2, 2, 0, 0)):
        k = self.k; NS = 16; fr = self.fr
        hi = lambda s: ((s % self.NR) * 16384) >> 16
        def reads(s, u):
            f = fr.q(u, 32); out = []
            for kq in range(4):
                for x in range(2):
                    off = ((s % self.NR) * 16384 + u * 8192 + x * 4096 + (kq >> 1) * 256) & 65535
                    for h in range(2):
                        o = 8 * kq + 4 * x + 2 * h
                        out.append(f"ds_read_b64_tr_b16 {f[o:o+2]}, {self.rh[2*(kq&1)+h]} offset:{off}")
            return out
        pre_bar(-1)
        k.wait(self.last[0]); k("s_barrier")
        lastrd = None
        for r in reads(0, 0): lastrd = k(r)
        post_bar(-1)
        for s in range(NS):
            for u in range(2):
                f = fr.q(u, 32); rd = []
                if u == 0: rd = reads(s, 1)
                elif s + 1 < NS:
                    pre_bar(s)
                    assert self.cnt[s + 1] == 4
                    k.wait(lastrd, self.last[s + 1]); k("s_barrier")
                    rd = reads(s + 1, 0)
                k.wait(lastrd)
                assert self.CL.nd > 2 * (s & 7) + u, (s, u, self.CL.nd)
                for q in range(8):
                    kq, x = q >> 1, q & 1
                    if s < 8: d = self.acc[0].q(x, 16); unit = 2 * s + u
                    else: d = self.acc[1].q((s - 8) >> 2, 16); unit = 4 * (s & 3) + 2 * u + x
                    k(f"v_mfma_f32_32x32x16_bf16 {d}, {f.q(q)}, {self.CL.frag(unit,kq)}, {d}")
                    for _ in range(RD[q]):
                        if rd: lastrd = k(rd.pop(0))
                    if q >= 4: vm(s, u, q - 4)
                    if q == 6 and u == 0 and s < 15 and hi(s) != hi(s + 1):
                        for y in range(4): k(f"v_xor_b32 {self.rh[y]}, 0x10000, {self.rh[y]}")
                    if q == 7 and u == 1: post_bar(s)
                    fill(s, u, q)
        k.v.free(self.vh, self.rh); k.s.free(self.so, self.mH)

def xkeepU(k, I, ldsX):
    XK = k.v.allocq(16); ad = k.v.alloc(2); t = k.v.alloc(); st = k.s.alloc()
    k(f"""s_lshr_b32 {st}, {I['tb']}, 3
    s_lshl_b32 {st}, {st}, 13
    s_add_u32 {st}, {st}, {ldsX}
    v_and_b32 {t}, 31, {I['l']}
    v_lshl_add_u32 {ad[1]}, {t}, 7, {st}
    v_lshrrev_b32 {t}, 5, {I['l']}
    v_lshl_add_u32 {ad[1]}, {t}, 4, {ad[1]}
    v_bfe_u32 {t}, {I['l']}, 1, 2
    v_xor_b32 {t}, {I['w']}, {t}
    v_lshl_add_u32 {ad[1]}, {t}, 5, {ad[1]}
    v_xor_b32 {ad[0]}, 8192, {ad[1]}""")
    for p in range(2):
        for rb in range(2): k(f"ds_read_b128 {XK.q(2*p+rb)}, {ad[p]} offset:{4096*rb}")
    k.v.free(ad, t); k.s.free(st)
    return XK

def diagU(k, I, Dk):
    B = k.v.allocq(4); t = Dk[1]; st = k.s.alloc()
    k(f"""s_lshr_b32 {st}, {I['tb']}, 3
    v_lshrrev_b32 {t}, 3, {I['n']}
    v_lshl_or_b32 {t}, {t}, 1, {st}
    v_xor_b32 {t}, {t}, {I['g']}
    v_lshlrev_b32 {t}, 2, {t}
    v_bfe_u32 {B[0]}, {I['n']}, 1, 2
    v_or_b32 {t}, {t}, {B[0]}
    v_and_b32 {B[0]}, 1, {I['n']}
    v_lshlrev_b32 {B[0]}, 4, {B[0]}
    v_xor_b32 {B[0]}, 16, {B[0]}
    v_lshrrev_b32 {Dk[0]}, {B[0]}, {Dk[0]}""")
    for j in range(4): k(f"v_cmp_eq_u32 vcc, {j}, {t}\nv_cndmask_b32 {B[j]}, 0, {Dk[0]}, vcc")
    k.v.free(Dk); k.s.free(st)
    return B

def xd_initU(k, XK, B, acc):
    for p in range(2):
        for rb in range(2): k(f"v_mfma_f32_32x32x16_bf16 {acc[p].q(rb,16)}, {XK.q(2*p+rb)}, {B.q(0)}, 0")
    k.v.free(XK, B)

def gen_GU(k, I):
    G = k.v.allocq(32); a = k.v.allocq(8); c = k.v.allocq(8)
    f, b = k.v.alloc(), k.v.alloc(); st = k.s.alloc()
    k(f"""s_and_b32 {st}, {I['tb']}, 8
    s_lshl_b32 {st}, {st}, 2
    v_lshrrev_b32 {b}, 5, {I['l']}
    v_lshl_add_u32 {b}, {b}, 2, {st}
    v_cmp_eq_u32 vcc, 0, {b}
    v_cvt_f32_u32 {b}, {b}
    s_lshl_b32 {st}, {st}, 1
    s_xor_b32 {st}, {st}, 64
    v_and_or_b32 {f}, {I['l']}, 31, {st}
    v_cvt_f32_u32 {f}, {f}
    v_mul_f32 {f}, {fl(1/128)}, {f}
    v_mul_f32 {b}, {b}, {f}""")
    for x in range(2):
        for j in range(8): k(f"v_fmamk_f32 {a[j]}, {f}, {fl(float(16*x + 8*(j>>2) + (j&3)))}, {b}")
        for j in range(8): k(f"v_cos_f32 {c[j]}, {a[j]}")
        for j in range(8): k(f"v_sin_f32 {a[j]}, {a[j]}")
        for j in range(8):
            g0, g1 = G[8 * x + j], G[16 + 8 * x + j]
            k(f"v_cvt_pk_bf16_f32 {g0}, {c[j]}, -{a[j]}")
            p, q_ = ((c[j], '-' + str(a[j])), ('-' + str(a[j]), '-' + str(c[j])), ('-' + str(c[j]), a[j]), (a[j], c[j]))[j & 3]
            k(f"v_cvt_pk_bf16_f32 {g1}, {p}, {q_}")
    k(f"""v_lshlrev_b32 {b}, 31, {I['n']}
    v_or_b32 {b}, 0x3f003f00, {b}
    v_cndmask_b32 {G[0]}, {G[0]}, {b}, vcc
    v_cndmask_b32 {G[16]}, {G[16]}, {b}, vcc""")
    k.v.free(a, c, f, b); k.s.free(st)
    return G

def addrU(k, I, ldsY, ldsG):
    A = dict(ay=k.v.alloc(), va=k.v.alloc(), so=k.s.alloc(), l16=k.v.alloc(), vg=k.v.alloc(), gg=k.v.alloc(), sg=k.s.alloc(), px=k.s.alloc(), sv=k.s.alloc())
    t = k.v.alloc(); st = k.s.alloc(); ay, va, so = A['ay'], A['va'], A['so']
    k(f"""v_lshlrev_b32 {A['l16']}, 4, {I['l']}
    v_lshrrev_b32 {t}, 5, {I['l']}
    v_lshlrev_b32 {ay}, 8, {t}
    v_lshlrev_b32 {va}, 18, {t}
    s_lshl_b32 {st}, {I['w']}, 12
    s_add_u32 {so}, {st}, {ldsG}
    v_lshl_add_u32 {A['vg']}, {t}, 4, {so}
    v_and_b32 {t}, 8, {I['l']}
    v_lshl_or_b32 {ay}, {t}, 3, {ay}
    v_and_b32 {t}, 3, {I['l']}
    v_lshl_or_b32 {ay}, {t}, 4, {ay}
    v_and_b32 {t}, 4, {I['l']}
    v_lshl_or_b32 {ay}, {t}, 1, {ay}
    v_and_b32 {t}, 16, {I['l']}
    v_lshl_or_b32 {ay}, {t}, 7, {ay}
    v_lshl_or_b32 {va}, {t}, 5, {va}
    v_lshl_or_b32 {va}, {I['n']}, 2, {va}
    s_add_u32 {st}, {st}, {ldsY}
    v_add_u32 {ay}, {st}, {ay}
    v_lshrrev_b32 {t}, 3, {I['l']}
    v_and_b32 {A['gg']}, 7, {I['l']}
    v_lshlrev_b32 {A['gg']}, 2, {A['gg']}
    v_lshl_or_b32 {A['gg']}, {t}, 7, {A['gg']}
    s_lshr_b32 {st}, {I['tb']}, 3
    s_lshl_b32 {so}, {st}, 10
    s_add_u32 {so}, {so}, {I['ta']}
    s_lshl2_add_u32 {so}, {so}, {I['w']}
    s_and_b32 {A['sv']}, {I['tb']}, 7
    s_lshl4_add_u32 {so}, {so}, {A['sv']}
    s_lshl_b32 {so}, {so}, 6
    s_xor_b32 {A['sg']}, {st}, 1
    s_lshl1_add_u32 {A['sg']}, {I['ta']}, {A['sg']}
    s_lshl_b32 {A['sg']}, {A['sg']}, 10
    s_lshl4_add_u32 {A['sv']}, {I['ta']}, {A['sv']}
    s_and_b32 {A['px']}, {I['w']}, 2
    s_lshl2_add_u32 {A['sv']}, {A['px']}, {A['sv']}
    s_lshl1_add_u32 {A['sv']}, {A['sv']}, {st}
    s_and_b32 {st}, {I['w']}, 1
    s_lshl1_add_u32 {A['sv']}, {A['sv']}, {st}
    s_lshl_b32 {A['sv']}, {A['sv']}, 12
    s_lshl4_add_u32 {A['px']}, {I['ta']}, {I['tb']}
    s_lshl2_add_u32 {A['px']}, {A['px']}, {I['w']}
    s_lshl_b32 {A['px']}, {A['px']}, 12""")
    k.v.free(t); k.s.free(st)
    return A
```

```python
import sys, json, re
from fused import *
from opt1 import *
from b32 import *
from b3s import *

class WDir:
    def __init__(self, k, I, T, swr, swi, lt2):
        self.k, self.I, self.T, self.sw, self.lt2 = k, I, T, (swr, swi), lt2
        self.rows = k.s.alloc(8, 4)
        self.va = k.v.alloc(); self.mw = k.s.alloc(); self.so = k.s.alloc()
        st = k.s.alloc(); R_ = self.rows
        k(f"""s_lshl_b32 {R_[0]}, {I['w']}, 9
        s_add_u32 {R_[0]}, {R_[0]}, {T['ks']}
        s_lshr_b32 {st}, {I['w']}, 1
        s_and_b32 {st}, {st}, {T['sp']}
        s_mul_i32 {st}, {st}, 960
        s_sub_u32 {R_[0]}, {R_[0]}, {st}""")
        for b in range(1, 4): k(f"s_add_u32 {R_[2*b]}, {R_[0]}, {128*b}")
        for b in range(4): k(f"s_sub_u32 {R_[2*b+1]}, 2048, {R_[2*b]}\ns_and_b32 {R_[2*b+1]}, {R_[2*b+1]}, 2047")
        self.spw = k.s.alloc()
        k(f"""s_cmp_eq_u32 {I['w']}, 0
        s_cselect_b32 {self.spw}, {T['sp']}, 0
        s_cmp_eq_u32 {self.spw}, 1
        s_cselect_b32 {R_[1]}, 1024, {R_[1]}""")
        for j in range(8): k(f"s_mul_i32 {R_[j]}, {R_[j]}, 1026")
        k(f"v_lshlrev_b32 {self.va}, 4, {I['l']}\ns_lshl_b32 {self.mw}, {I['w']}, 12")
        k.s.free(st)
        self.n = 0; self.slot = {}; self.ld = None
    def issue1(self, slot):
        k = self.k; b, q = self.n >> 2, self.n & 3
        if q == 0: self.slot[b] = slot
        if q & 1 == 0: k(f"s_and_b32 {self.so}, {self.rows[2*b+(q>>1)]}, -16")
        k(f"s_add_u32 m0, {self.mw}, {self.slot[b] + 1024*q}")
        self.ld = k(f"buffer_load_dwordx4 {self.va}, {self.sw[q&1]}, {self.so} offen lds")
        self.n += 1
    def tail_issue(self):
        k = self.k; self.tc = k.v.allocq(8); ta = k.v.alloc()
        k(f"v_mov_b32 {ta}, {BIG}")
        for j in range(8): k(f"v_writelane_b32 {ta}, {self.rows[j]}, {j}")
        k(f"v_and_b32 {ta}, -16, {ta}")
        k("s_mov_b64 exec, 255")
        for a in range(2): k(f"buffer_load_dwordx4 {self.tc.q(a)}, {ta}, {self.sw[a]}, 0 offen offset:1024")
        k("s_mov_b64 exec, -1")
        k.v.free(ta)
    def tail_write(self):
        k = self.k; ad = k.v.alloc(); st = k.s.alloc()
        k(f"""s_lshl_b32 {st}, {self.I['w']}, 8
        s_add_u32 {st}, {st}, {self.lt2}
        v_lshl_add_u32 {ad}, {self.I['l']}, 11, {st}
        s_mov_b64 exec, 255
        ds_write_b128 {ad}, {self.tc.q(0)}
        ds_write_b128 {ad}, {self.tc.q(1)} offset:1024
        s_mov_b64 exec, -1""")
        k.v.free(ad, self.tc); k.s.free(st, self.so, *self.sw); k.v.free(self.va)
    def prep(self):
        k, I, T = self.k, self.I, self.T
        self.a0, self.a3, self.sg = k.v.alloc(), k.v.alloc(), k.v.alloc(2); self.up = k.s.alloc(2); self.ov = k.s.alloc(2)
        self.d, self.m = k.s.alloc(), k.s.alloc(); t = k.v.alloc(); tb = k.s.alloc(); a0, a3 = self.a0, self.a3
        k(f"""s_and_b32 {self.d}, {self.rows[0]}, 15
        s_and_b32 {self.m}, {self.rows[1]}, 15
        s_add_u32 {self.m}, {self.m}, 2048
        v_lshlrev_b32 {a0}, 9, {I['g']}
        v_lshl_add_u32 {a0}, {I['n']}, 3, {a0}
        s_lshl_b32 {tb}, {T['k1']}, 1
        v_add_u32 {a0}, {tb}, {a0}
        s_add_u32 {tb}, {self.m}, 1664
        v_sub_u32 {t}, {tb}, {a0}
        v_add_u32 {a0}, {self.d}, {a0}
        v_cmp_lt_u32 {self.up}, 1, {I['g']}
        v_cndmask_b32 {a0}, {a0}, {t}, {self.up}
        v_cndmask_b32 {self.sg[0]}, 1.0, -1.0, {self.up}
        v_add_u32 {a3}, 384, {a0}
        v_and_b32 {t}, 1024, {a3}
        v_cmp_ne_u32 {self.ov}, 0, {t}
        s_lshl_b32 {tb}, {I['w']}, 8
        s_add_u32 {tb}, {tb}, {self.lt2 - 1024}
        v_add_u32 {t}, {tb}, {a3}
        v_add_u32 {a0}, {self.mw}, {a0}
        v_add_u32 {a3}, {self.mw}, {a3}
        v_cndmask_b32 {a3}, {a3}, {t}, {self.ov}
        v_sub_u32 {a3}, {a3}, {a0}
        v_cndmask_b32 {self.sg[1]}, 0, -1, {self.ov}""")
        k.v.free(t); k.s.free(tb)
    def gather(self, b, out, second=False):
        k, I, T = self.k, self.I, self.T
        a0, a3 = k.v.alloc(), k.v.alloc()
        k(f"""v_add_u32 {a0}, {self.slot[b]}, {self.a0}
        v_and_b32 {a3}, {hex((4096*b - self.slot[b]) & 0xffffffff)}, {self.sg[1]}
        v_add3_u32 {a3}, {a3}, {self.a3}, {a0}""")
        if b == 0:
            k(f"s_cmp_eq_u32 {self.spw}, 0")
            with k.skip_if("s_cbranch_scc1"):
                if second: k(f"s_mov_b32 exec_hi, 0\nv_add_u32 {a0}, 2048, {a0}\nv_add_u32 {a3}, 2048, {a3}\ns_mov_b64 exec, -1")
                else: k(f"s_mov_b32 exec_lo, 0\nv_subrev_u32 {a0}, 2048, {a0}\nv_subrev_u32 {a3}, 2048, {a3}\ns_mov_b64 exec, -1")
        last = None
        for r in range(4):
            for a in range(2):
                last = k(f"ds_read_u16_d16_hi {out[4*a+r]}, {a0 if r < 3 else a3} offset:{(128*r if r < 3 else 0) + 1024*a}")
        k.v.free(a0, a3)
        return last
    def symm(self, outs):
        k, I = self.k, self.I
        al = k.v.allocq(2 * len(outs), 2); t = k.v.alloc(2); d, m = k.s.alloc(), k.s.alloc()
        for j, (b, out, second) in enumerate(outs):
            k(f"""s_add_u32 {m}, {self.m}, {self.mw}
            s_add_u32 {m}, {m}, {self.slot[b]}
            s_lshl_b32 {d}, {I['w']}, 8
            s_add_u32 {d}, {d}, {self.d}
            s_add_u32 {d}, {d}, {self.lt2 + 4096*b}""")
            if b == 0:
                k(f"s_lshl_b32 vcc_lo, {self.spw}, 11")
                k(f"s_add_u32 {d}, {d}, vcc_lo" if second else f"s_sub_u32 {m}, {m}, vcc_lo")
            k(f"""v_mov_b32 {t[0]}, {m}
            v_mov_b32 {t[1]}, {d}
            v_cndmask_b32 {t[0]}, {t[0]}, {t[1]}, {self.up}
            ds_read_u16_d16_hi {al[2*j]}, {t[0]}
            ds_read_u16_d16_hi {al[2*j+1]}, {t[0]} offset:1024""")
        k("s_waitcnt lgkmcnt(0)")
        for lo, r in ((True, 0), (False, 3)):
            k(f"s_mov_b32 exec_lo, {1 if lo else 0}\ns_mov_b32 exec_hi, {0 if lo else 1}")
            for j, (b, out, second) in enumerate(outs):
                k(f"""v_add_f32 {out[r]}, {out[r]}, {al[2*j]}
                v_sub_f32 {out[4+r]}, {out[4+r]}, {al[2*j+1]}
                v_mul_f32 {out[r]}, 0.5, {out[r]}
                v_mul_f32 {out[4+r]}, 0.5, {out[4+r]}""")
        k("s_mov_b64 exec, -1")
        k.v.free(al, t); k.s.free(d, m)
    def sign(self, out):
        for h in (4, 6): self.k(f"v_pk_mul_f32 {out[h:h+2]}, {self.sg}, {out[h:h+2]} op_sel_hi:[0,1]")
    def done(self):
        self.k.v.free(self.a0, self.a3, self.sg); self.k.s.free(self.rows, self.mw, self.spw, self.up, self.ov, self.d, self.m)

def mf2(k, M, data_is_A, d, o):
    for c in range(2):
        A, B = (d, M.q(c)) if data_is_A else (M.q(c), d)
        k(f"v_mfma_f32_16x16x32_bf16 {o.q(c)}, {A}, {B}, 0")

def ph2_w(k, T, WD):
    Wf = k.v.allocq(32); X = k.v.allocq(8)
    k.wait(WD.ld)
    k(f"s_cmp_eq_u32 {T['sp']}, 0")
    with k.skip_if("s_cbranch_scc1"):
        WD.gather(0, X, True)
    for b in range(4): WD.lastrd = WD.gather(b, Wf.q(b, 8))
    return Wf, X

def ph2_wfix(k, T, WD, Wf, X):
    k.wait(WD.lastrd)
    k(f"s_cmp_lg_u32 {T['k1']}, 0")
    with k.skip_if("s_cbranch_scc1"):
        WD.symm([(b, Wf.q(b, 8), False) for b in range(4)] + [(0, X, True)])
    for b in range(4): WD.sign(Wf.q(b, 8))
    WD.sign(X)
    WD.done()

def ph2_s1(k, I, C, L, lds1):
    D = k.v.allocq(8); acc = k.v.allocq(16); a0, ad = k.v.alloc(), k.v.alloc(); st = k.s.alloc()
    k(f"""v_and_b32 {a0}, 7, {I['n']}
    v_lshlrev_b32 {ad}, 2, {I['g']}
    v_xor_b32 {a0}, {a0}, {ad}
    v_lshlrev_b32 {a0}, 4, {a0}
    v_lshl_or_b32 {a0}, {I['n']}, 10, {a0}
    s_lshl_b32 {st}, {I['w']}, 8
    s_add_u32 {st}, {st}, {lds1}
    v_add_u32 {a0}, {st}, {a0}""")
    def mov(b):
        for j in range(4): k(f"v_mov_b32 {D[4*(b&1)+j]}, {L[4*j+b]}")
    def out(b, o):
        z = acc.q(b & 1, 8)
        k(f"v_xor_b32 {ad}, {16*b}, {a0}")
        for r in range(4): k(f"v_cvt_pk_bf16_f32 {o[r]}, {z[r]}, {z[4+r]}")
        return k(f"ds_write_b128 {ad}, {o}")
    mov(0); mov(1)
    mf2(k, C['sf'], True, D.q(0), acc.q(0, 8)); mf2(k, C['sf'], True, D.q(1), acc.q(1, 8))
    mov(2); mov(3)
    out(0, L.q(3)); mf2(k, C['sf'], True, D.q(0), acc.q(0, 8))
    out(1, L.q(0)); mf2(k, C['sf'], True, D.q(1), acc.q(1, 8))
    out(2, L.q(1)); last = out(3, L.q(2))
    k.v.free(D, acc, a0, ad, L, C.pop('sf')); k.s.free(st)
    return last

def ph2_mid(k, I, T, C, Wf, X, lds1, lds2, mark):
    D = k.v.allocq(16); acc = k.v.allocq(32); tmp = k.v.alloc(4); ad = k.v.alloc(); a0 = k.v.alloc(); st = k.s.alloc(); Xd = k.v.allocq(4)
    z = lambda b, c: acc.q(2 * b + c)
    def stage(M, data_is_A):
        for b in range(4): mf2(k, M, data_is_A, D.q(b), acc.q(b, 8))
    k(f"""s_and_b32 {st}, {I['w']}, 1
    s_lshl_b32 {st}, {st}, 2
    v_xor_b32 {ad}, {st}, {I['l']}
    s_lshl_b32 {st}, {I['w']}, 12
    s_add_u32 {st}, {st}, {lds1}
    v_lshl_add_u32 {a0}, {ad}, 4, {st}""")
    for b in range(4): k(f"v_xor_b32 {ad}, {16*b}, {a0}\nds_read_b128 {D.q(b)}, {ad} offset:{1024*b}")
    mark(0)
    stage(C['m1f'], True)
    def mulstage(w, conj, M, data_is_A):
        for b in range(4):
            wr, wi = w(b)
            cmul_pack(k, z(b, 0), z(b, 1), wr, wi, conj, D.q(b), tmp)
            if b: mf2(k, M, data_is_A, D.q(b - 1), acc.q(b - 1, 8))
        mf2(k, M, data_is_A, D.q(3), acc.q(3, 8))
    mulstage(lambda b: (C['twf'].q(0), C['twf'].q(1)), True, C['m2f'], False)
    mark(1)
    k(f"s_cmp_eq_u32 {T['sp']}, 0")
    with k.skip_if("s_cbranch_scc1"):
        cmul_pack(k, z(0, 0), z(0, 1), X.q(0), X.q(1), False, Xd, tmp)
        mf2(k, C['m2i'], True, Xd.q(0), X)
        cmul_pack(k, X.q(0), X.q(1), C['twi'].q(0), C['twi'].q(1), False, Xd, tmp)
        mf2(k, C['m1i'], False, Xd.q(0), X)
    mulstage(lambda b: (Wf.q(2 * b), Wf.q(2 * b + 1)), False, C['m2i'], True)
    mark(2)
    mulstage(lambda b: (C['twi'].q(0), C['twi'].q(1)), False, C['m1i'], False)
    mark(3)
    k(f"""v_lshlrev_b32 {ad}, 12, {I['g']}
    v_lshl_add_u32 {ad}, {I['n']}, 4, {ad}
    s_lshl_b32 {st}, {I['w']}, 8
    s_add_u32 {st}, {st}, {lds2}
    v_add_u32 {ad}, {st}, {ad}""")
    k(f"s_sub_u32 {st}, {T['sp']}, 1\ns_or_b32 {st}, {st}, {I['w']}\ns_cmp_lg_u32 {st}, 0")
    with k.skip_if("s_cbranch_scc1"):
        for r in range(4): k(f"v_mov_b32 {z(0,1)[r]}, {X[4+r]}")
    for r in range(4):
        for b in range(4): k(f"v_cvt_pk_bf16_f32 {D[4*r+b]}, {z(b,0)[r]}, {z(b,1)[r]}")
        k(f"ds_write_b128 {ad}, {D.q(r)} offset:{1024*r}")
    k.v.free(D, acc, tmp, ad, a0, Xd, X, Wf); k.s.free(st)
    for n in ('m1f', 'twf', 'm2f', 'm2i', 'twi', 'm1i'):
        r = C.pop(n)
        if r[0].kind == 'v': k.v.free(r)

def ph2_s6(k, I, C, lds2):
    D = k.v.allocq(16); acc = k.v.allocq(32); ad = k.v.alloc(); st = k.s.alloc(); so = k.s.alloc()
    k(f"s_lshl_b32 {st}, {I['w']}, 12\ns_add_u32 {st}, {st}, {lds2}\nv_lshl_add_u32 {ad}, {I['l']}, 4, {st}")
    for b in range(4): k(f"ds_read_b128 {D.q(b)}, {ad} offset:{1024*b}")
    k(f"""s_mov_b32 {st}, {64*V2_STR}
    v_mul_lo_u32 {ad}, {I['g']}, {st}
    v_lshl_add_u32 {ad}, {I['n']}, 2, {ad}
    s_mul_i32 {so}, {I['w']}, {4*V2_STR}
    s_lshr_b32 {st}, {I['slot']}, 4
    s_lshl_b32 {st}, {st}, 12
    s_add_u32 {so}, {so}, {st}
    s_lshl_b32 {st}, {I['k1p']}, 10
    s_add_u32 {so}, {so}, {st}
    s_and_b32 {st}, {I['slot']}, 15
    s_lshl_b32 {st}, {st}, 6
    s_add_u32 {so}, {so}, {st}""")
    for b in range(4): mf2(k, C['si'], False, D.q(b), acc.q(b, 8))
    for b in range(4):
        for r in range(4): k(f"v_cvt_pk_bf16_f32 {D[4*b+r]}, {acc[8*b+r]}, {acc[8*b+4+r]}")
    r = C.pop('si')
    if r[0].kind == 'v': k.v.free(r)
    k.v.free(acc); k.s.free(st)
    return D, ad, so

def park(k, C, names, A):
    for j, n in enumerate(names):
        dst = A[8 * j:8 * j + 8]
        for i in range(8): k(f"v_accvgpr_write_b32 {dst[i]}, {C[n][i]}")
        k.v.free(C[n]); C[n] = dst

def v2_issue2(k, I, sv2):
    L = k.v.allocq(16); va = k.v.alloc(); so = k.s.alloc(); st = k.s.alloc()
    k(f"""v_lshlrev_b32 {va}, 4, {I['l']}
    s_lshl_b32 {so}, {I['ta']}, 4
    s_add_u32 {so}, {so}, {I['tb']}
    s_mul_i32 {so}, {so}, {V2_STR}
    s_lshl_b32 {st}, {I['w']}, 12
    s_add_u32 {so}, {so}, {st}""")
    for j in range(4): k(f"buffer_load_dwordx4 {L.q(j)}, {va}, {sv2}, {so} offen offset:{1024*j} {SC}")
    k.v.free(va); k.s.free(so, st)
    return L

pk0 = pk
def y_stage2(k, I, L, ldsY, scal=False, spec=None):
    Z = k.v.allocq(16, 2); T = k.v.allocq(16, 2); O = k.v.allocq(8); ad = k.v.alloc(); st = k.s.alloc()
    z = lambda j, c: Z.q(2 * j + c, 2); t = lambda j, c: T.q(2 * j + c, 2)
    k(f"s_lshl_b32 {st}, {I['w']}, 10\ns_add_u32 {st}, {st}, {ldsY}\nv_lshl_add_u32 {ad}, {I['l']}, 4, {st}")
    last = None
    def pk(k, op, d, x, y):
        if not scal: return pk0(k, op, d, x, y)
        for u in range(2): k(f"v_{'add' if op == '+' else 'sub'}_f32 {d[u]}, {x[u]}, {y[u]}")
    for h in range(2):
        for j in range(4):
            for u in range(2):
                k(f"v_lshlrev_b32 {z(j,0)[u]}, 16, {L[4*j+2*h+u]}\nv_and_b32 {z(j,1)[u]}, 0xffff0000, {L[4*j+2*h+u]}")
        for c in range(2):
            pk(k, '+', t(0, c), z(0, c), z(2, c)); pk(k, '-', t(1, c), z(0, c), z(2, c)); pk(k, '+', t(2, c), z(1, c), z(3, c))
        pk(k, '-', t(3, 0), z(3, 1), z(1, 1)); pk(k, '-', t(3, 1), z(1, 0), z(3, 0))
        k(f"s_cmp_lg_u32 {spec or I['w']}, 0")
        with k.skip_if("s_cbranch_scc1"):
            k("s_mov_b64 exec, 15")
            k(f"""v_pk_add_f32 {t(2,0)}, {z(1,0)}, {z(1,0)}
            v_pk_add_f32 {t(2,1)}, {z(3,0)}, {z(3,0)}
            v_pk_add_f32 {t(3,0)}, {z(1,1)}, {z(1,1)} neg_lo:[1,1] neg_hi:[1,1]
            v_pk_add_f32 {t(3,1)}, {z(3,1)}, {z(3,1)} neg_lo:[1,1] neg_hi:[1,1]""")
            k("s_mov_b64 exec, -1")
        for m in range(4):
            for c in range(2):
                pk(k, '+' if m < 2 else '-', z(m, c), t(m & 1, c), t(2 + (m & 1), c))
                dst = O[2 * m + c] if h == 0 else L[4 * m + 2 * c + 1]
                k(f"v_cvt_pk_bf16_f32 {dst}, {z(m,c)[0]}, {z(m,c)[1]}")
    for m in range(4):
        k(f"v_mov_b32 {L[4*m]}, {O[2*m]}\nv_mov_b32 {L[4*m+2]}, {O[2*m+1]}")
        last = k(f"ds_write_b128 {ad}, {L.q(m)} offset:{4096*m}")
    k.v.free(Z, T, O, ad, L); k.s.free(st)
    return last

def gen_G1(k, I):
    G = k.v.allocq(32)
    f, b, sb, a, c, s = [k.v.alloc() for _ in range(6)]
    st = k.s.alloc()
    k(f"""v_lshrrev_b32 {a}, 1, {I['g']}
    v_lshlrev_b32 {a}, 3, {a}
    v_and_b32 {c}, 1, {I['g']}
    v_lshl_add_u32 {a}, {c}, 1, {a}
    v_cvt_f32_u32 {sb}, {a}""")
    for ib in range(2):
        k(f"""s_and_b32 {st}, {I['w']}, 1
        s_lshl_b32 {st}, {st}, 6
        s_add_u32 {st}, {st}, {16*ib}
        v_add_u32 {a}, {st}, {I['n']}
        v_cvt_f32_u32 {f}, {a}
        v_mul_f32 {f}, {fl(1/128)}, {f}
        v_mul_f32 {b}, {f}, {sb}""")
        for kap in range(4):
            for d in range(4):
                sl = 16 * kap + 4 * (d >> 1) + (d & 1)
                k(f"""v_fmamk_f32 {a}, {f}, {fl(float(sl))}, {b}
                v_cos_f32 {c}, {a}
                v_sin_f32 {s}, {a}
                v_cvt_pk_bf16_f32 {G[16*ib+4*kap+d]}, {c}, -{s}""")
    k(f"""v_lshlrev_b32 {c}, 31, {I['n']}
    v_or_b32 {c}, 0x3f003f00, {c}
    v_cmp_eq_u32 vcc, 0, {I['g']}""")
    for ib in range(2): k(f"v_cndmask_b32 {G[16*ib]}, {G[16*ib]}, {c}, vcc")
    k.v.free(f, b, sb, a, c, s); k.s.free(st)
    return G

def gen_G2(k, I, G):
    G2 = k.v.allocq(32); mk = k.v.alloc(2)
    k(f"""v_and_b32 {mk[0]}, 1, {I['g']}
    v_mul_u32_u24 {mk[0]}, 0x8000, {mk[0]}
    v_lshl_or_b32 {mk[0]}, {mk[0]}, 16, {mk[0]}
    v_xor_b32 {mk[1]}, 0x80000000, {mk[0]}""")
    for j in range(32):
        if j & 1: k(f"v_alignbit_b32 {G2[j]}, {G[j]}, {G[j]}, 16\nv_xor_b32 {G2[j]}, {mk[1]}, {G2[j]}")
        else: k(f"v_xor_b32 {G2[j]}, {mk[0]}, {G[j]}")
    k.v.free(mk)
    return G2

def xkeep(k, I, ldsX):
    XK = k.v.allocq(16, 2); ad = k.v.alloc(2); t = k.v.alloc(2); st = k.s.alloc()
    k(f"""s_and_b32 {st}, {I['w']}, 1
    s_lshl_b32 {st}, {st}, 13
    s_add_u32 {st}, {st}, {ldsX}
    v_lshrrev_b32 {t[0]}, 2, {I['l']}
    v_lshlrev_b32 {t[0]}, 7, {t[0]}
    v_and_b32 {t[1]}, 3, {I['l']}
    v_lshl_or_b32 {t[0]}, {t[1]}, 3, {t[0]}
    v_add_u32 {t[0]}, {st}, {t[0]}
    v_bfe_u32 {t[1]}, {I['l']}, 3, 2
    s_and_b32 {st}, {I['w']}, 2
    v_xor_b32 {t[1]}, {st}, {t[1]}
    v_lshl_add_u32 {ad[0]}, {t[1]}, 5, {t[0]}
    v_xor_b32 {ad[1]}, 32, {ad[0]}""")
    for mm in range(2):
        for ib in range(4): k(f"ds_read_b64_tr_b16 {XK.q(4*mm+ib,2)}, {ad[mm]} offset:{2048*ib}")
    k.v.free(ad, t); k.s.free(st)
    return XK

def dsk_issue(k, I, sd):
    Dk = k.v.alloc(2); va = k.v.alloc(); so = k.s.alloc(); st = k.s.alloc()
    k(f"""v_lshlrev_b32 {va}, 1, {I['n']}
    s_lshl_b32 {so}, {I['tb']}, 5
    s_lshr_b32 {st}, {I['w']}, 1
    s_lshl_b32 {st}, {st}, 10
    s_add_u32 {so}, {so}, {st}""")
    for mm in range(2): k(f"buffer_load_short_d16_hi {Dk[mm]}, {va}, {sd}, {so} offen offset:{512*mm}")
    k.v.free(va); k.s.free(so, st)
    return Dk

def xd_init2(k, XK, Dk, acc):
    for mm in range(2):
        sel = f" op_sel:[{mm},0] op_sel_hi:[{mm},1]"
        for ib in range(4):
            a = acc.q(8 * mm + ib); x = XK.q(4 * mm + ib, 2)
            k(f"""v_lshlrev_b32 {a[0]}, 16, {x[0]}
            v_and_b32 {a[1]}, 0xffff0000, {x[0]}
            v_lshlrev_b32 {a[2]}, 16, {x[1]}
            v_and_b32 {a[3]}, 0xffff0000, {x[1]}
            v_pk_mul_f32 {a[0:2]}, {Dk}, {a[0:2]}{sel}
            v_pk_mul_f32 {a[2:4]}, {Dk}, {a[2:4]}{sel}""")
    k.v.free(XK, Dk)

def g_issue(k, I, sg):
    g = k.v.allocq(16); va = k.v.alloc(); so = k.s.alloc(); st = k.s.alloc()
    k(f"""v_lshlrev_b32 {va}, 4, {I['g']}
    s_lshl_b32 {so}, {I['ta']}, 9
    s_and_b32 {st}, {I['w']}, 1
    s_lshl_b32 {st}, {st}, 8
    s_add_u32 {so}, {so}, {st}""")
    for ib in range(4): k(f"buffer_load_dwordx4 {g.q(ib)}, {va}, {sg}, {so} offen offset:{64*ib} {SC}")
    k.v.free(va); k.s.free(so, st)
    return g

def pass1c(k, I, acc, Pm, ldsE):
    er, ei, ta, tb = [k.v.alloc(2) for _ in range(4)]
    L = Pm['L1']
    cr, ci = upair(acc, 0, 0), upair(acc, 0, 1)
    outs = [(er, ei), (ta, tb)]
    for j in range(1, 16):
        nr, ni = outs[(15 - j) & 1]
        k(f"""v_pk_fma_f32 {nr}, {L}, {cr}, {upair(acc,j,0)}{BC0}
        v_pk_fma_f32 {ni}, {L}, {ci}, {upair(acc,j,1)}{BC0}
        v_pk_fma_f32 {nr}, {L}, {ci}, {nr}{BC1}{NEG0}
        v_pk_fma_f32 {ni}, {L}, {cr}, {ni}{BC1}""")
        cr, ci = nr, ni
    cfma(k, ta, Pm['L16'], (er[0], ei[0]), (er[1], ei[1]))
    k(f"""v_mov_b32 {tb[0]}, {ta[0]}
    v_mov_b32 {tb[1]}, {ta[1]}
    v_permlane32_swap_b32 {ta[0]}, {tb[0]}
    v_permlane32_swap_b32 {ta[1]}, {tb[1]}""")
    cfma(k, tb, Pm['L32'], ta, tb)
    w = k(f"ds_write_b64 {Pm['lde']}, {tb}")
    return dict(er=er, ei=ei, lo=ta, ew=tb, w=w)

def scan_addr(k, I, Pm, ldsE):
    lde, va = k.v.alloc(), k.v.alloc(); t = k.v.alloc(); st = k.s.alloc(); s2_ = k.s.alloc()
    k(f"""v_lshlrev_b32 {lde}, 3, v0
    v_add_u32 {lde}, {ldsE + 4096}, {lde}
    s_sub_u32 {st}, 15, {I['ca']}
    s_lshl_b32 {st}, {st}, 9
    s_and_b32 {s2_}, {I['w']}, 1
    s_lshl_b32 {s2_}, {s2_}, 8
    s_add_u32 {st}, {st}, {s2_}
    v_and_b32 {va}, 31, {I.get('lp', I['l'])}
    v_lshl_add_u32 {va}, {va}, 3, {st}""")
    if 'lp' in I: k.v.free(I.pop('lp'))
    Pm['lde'], Pm['eva'] = lde, va
    k.v.free(t); k.s.free(st, s2_)

def publish(k, I, E1, Pm, se):
    e0 = k.v.alloc(2); t = k.v.alloc()
    k(f"v_and_b32 {Pm['lde']}, {hex(0xfffffbff)}, {Pm['lde']}\nds_read_b64 {e0}, {Pm['lde']}")
    k(f"s_cmp_lt_u32 {I['w']}, 2")
    with k.skip_if("s_cbranch_scc1"):
        cfma(k, E1['ew'], Pm['L64'], e0, E1['ew'])
        k(f"""v_min_u32 {E1['ew'][0]}, -2, {E1['ew'][0]}
        v_min_u32 {E1['ew'][1]}, -2, {E1['ew'][1]}
        s_mov_b32 exec_hi, 0
        buffer_store_dwordx2 {E1['ew']}, {Pm['eva']}, {se}, 0 offen sc1
        s_mov_b64 exec, -1""")
    k(f"v_lshrrev_b32 {t}, 5, {I['l']}\nv_lshl_add_u32 {Pm['eva']}, {t}, 12, {Pm['eva']}\nv_add_u32 {Pm['eva']}, 512, {Pm['eva']}")
    k.v.free(t, E1['ew'], Pm.pop('lde'))
    E1['e0'] = e0

def carry_prep(k, I, E1, Pm):
    ma, mb = k.v.alloc(2), k.v.alloc(2); ca, cb = E1.pop('e0'), k.v.alloc(2); lo = E1.pop('lo'); t = k.v.alloc(2)
    er, ei = E1.pop('er'), E1.pop('ei'); cf = Pm['coef']
    def cmul(d, a, b):
        k(f"""v_pk_mul_f32 {d}, {a}, {b} op_sel:[0,0] op_sel_hi:[0,1]
        v_pk_fma_f32 {d}, {a}, {b}, {d} op_sel:[1,1,0] op_sel_hi:[1,0,1] neg_lo:[1,0,0]""")
    cmul(ma, cf, Pm['L64'])
    k(f"s_cmp_ge_u32 {I['w']}, 2")
    with k.skip_if("s_cbranch_scc1"):
        k(f"v_mov_b32 {ma[0]}, {cf[0]}\nv_mov_b32 {ma[1]}, {cf[1]}\nv_mov_b32 {ca[0]}, 0\nv_mov_b32 {ca[1]}, 0")
    cmul(t, Pm['L32'], ma); cfma2(k, lo, Pm['L32'], ca, lo)
    k(f"""s_mov_b32 exec_lo, 0
    v_mov_b32 {ma[0]}, {t[0]}
    v_mov_b32 {ma[1]}, {t[1]}
    v_mov_b32 {ca[0]}, {lo[0]}
    v_mov_b32 {ca[1]}, {lo[1]}
    s_mov_b64 exec, -1
    v_mov_b32 {er[1]}, {ei[0]}""")
    cmul(mb, Pm['L16'], ma); cfma2(k, er, Pm['L16'], ca, er)
    cmul(cb, cf, er); cmul(t, cf, ca)
    k.v.free(ca, lo, er, ei, Pm.pop('L16'), Pm.pop('L32'), Pm.pop('L64'))
    E1.update(ma=ma, mb=mb, ca=t, cb=cb)

class LookBack:
    def __init__(self, k, Pm, se):
        self.k, self.va, self.se = k, Pm.pop('eva'), se
        self.E = k.v.allocq(16, 2)
    def issue(self):
        for j in range(8): self.last = self.k(f"buffer_load_dwordx2 {self.E.q(j,2)}, {self.va}, {self.se}, 0 offen offset:{512*j} sc1")
    def _check(self, m):
        k, E = self.k, self.E
        k(f"v_max_u32 {m}, {E[0]}, {E[1]}")
        for j in range(1, 8): k(f"v_max3_u32 {m}, {m}, {E[2*j]}, {E[2*j+1]}")
        k(f"v_cmp_eq_u32 vcc, -1, {m}")
    def finish(self, maxspin=1 << 20):
        k = self.k; m = k.v.alloc()
        k.wait(self.last)
        self._check(m)
        with k.skip_if("s_cbranch_vccz"):
            cnt = k.s.alloc(); lp, out = k.lab('lb'), k.lab('lbout')
            k(f"s_mov_b32 {cnt}, 0\n{lp}:")
            self.issue(); k("s_waitcnt vmcnt(0)")
            self._check(m)
            k(f"s_cbranch_vccz {out}\ns_add_u32 {cnt}, {cnt}, 1\ns_cmp_lt_u32 {cnt}, {maxspin}\ns_cbranch_scc1 {lp}\n{out}:")
            k.s.free(cnt)
        k.v.free(m, self.va)
        return self.E

def cfma2(k, d, a, b, c):
    k(f"""v_pk_fma_f32 {d}, {a}, {b}, {c} op_sel:[0,0,0] op_sel_hi:[0,1,1]
    v_pk_fma_f32 {d}, {a}, {b}, {d} op_sel:[1,1,0] op_sel_hi:[1,0,1] neg_lo:[1,0,0]""")

def pass2c(k, I, acc, Pm, E1, E, sh, hook):
    for j in range(6, -1, -1):
        cfma2(k, E.q(j, 2), Pm['L128'], E.q(j + 1, 2), E.q(j, 2))
    S, T = E.q(0, 2), E.q(1, 2); U, V = E.q(2, 2), E.q(3, 2)
    k(f"""v_mov_b32 {T[0]}, {S[0]}
    v_mov_b32 {T[1]}, {S[1]}
    v_permlane32_swap_b32 {S[0]}, {T[0]}
    v_permlane32_swap_b32 {S[1]}, {T[1]}""")
    cfma2(k, S, Pm['L1024'], T, S)
    cfma2(k, E1['ca'], E1['ma'], S, E1['ca']); cfma2(k, E1['cb'], E1['mb'], S, E1['cb'])
    k(f"v_swap_b32 {E1['ca'][1]}, {E1['cb'][0]}")
    U, V = E1['ca'], E1['cb']
    va, so = E1['hva'], E1['hso']
    L = Pm['L1']; cr, ci = U, V
    O = k.v.allocq(12)
    pend = []; last = None
    def flush():
        nonlocal last
        q, o = pend.pop(0)
        k(f"""v_permlane16_swap_b32 {o[0]}, {o[2]}
        v_permlane16_swap_b32 {o[1]}, {o[3]}""")
        last = k(f"buffer_store_dwordx4 {o}, {va}, {sh}, {so} offen {SC}")
        if q < 7: k(f"s_add_u32 {so}, {so}, {2*32*16384}")
        hook(q)
    def sw32():
        o = pend[0][1]
        k(f"v_permlane32_swap_b32 {o[0]}, {o[1]}\nv_permlane32_swap_b32 {o[2]}, {o[3]}")
    for j in range(16):
        nr, ni = upair(acc, j, 0), upair(acc, j, 1)
        k(f"""v_pk_fma_f32 {nr}, {L}, {cr}, {nr}{BC0}
        v_pk_fma_f32 {ni}, {L}, {ci}, {ni}{BC0}""")
        if pend: sw32()
        k(f"""v_pk_fma_f32 {nr}, {L}, {ci}, {nr}{BC1}{NEG0}
        v_pk_fma_f32 {ni}, {L}, {cr}, {ni}{BC1}""")
        cr, ci = nr, ni
        if pend: flush()
        o = O.q((j // 2) % 3)
        h = 2 * (j & 1)
        k(f"v_cvt_pk_bf16_f32 {o[h]}, {nr[0]}, {nr[1]}\nv_cvt_pk_bf16_f32 {o[h+1]}, -{ni[0]}, -{ni[1]}")
        if j & 1: pend.append((j // 2, o))
    sw32(); flush()
    k.v.free(va, E, O, acc, E1['ca'], E1['cb'], E1['ma'], E1['mb'], *Pm.values()); k.s.free(so)
    return last

class B3g(B3f):
    def main(self, fill, pre_bar, post_bar, lastsub):
        k = self.k; NS = 16; acc, fr = self.acc, self.fr
        def reads(s, kk):
            f = fr.q(kk, 32); out = []
            for ib in range(8):
                off = (s % self.NST) * 32768 + ib * 2048 + kk * 256; hi = 2 if off >= 65536 else 0
                for h in range(2):
                    out.append(f"ds_read_b64_tr_b16 {f[4*ib+2*h:4*ib+2*h+2]}, {self.rh[hi+h]} offset:{off & 65535}")
            return out
        pre_bar(-1)
        k.wait(self.last[0]); k("s_barrier")
        lastrd = None
        for r in reads(0, 0): lastrd = k(r)
        for s in range(NS):
            for kk in range(2):
                f = fr.q(kk, 32); rd = []
                if kk == 0: rd = reads(s, 1)
                elif s + 1 < NS:
                    pre_bar(s)
                    k.wait(lastrd, self.last[s + 1]); k("s_barrier")
                    rd = reads(s + 1, 0)
                else: rd = lastsub(fr.q(0, 32))
                k.wait(lastrd)
                dm = [(s + self.D, 4 * kk + x) for x in range(4)]
                order = list(range(16))
                if s == NS - 1 and kk == 1: order = order[8:] + order[:8]
                for q, qq in enumerate(order):
                    ib, mm = qq >> 1, qq & 1
                    d = acc.q(8 * mm + ib)
                    zero = s == 0 and kk == 0 and ib >= 4
                    k(f"v_mfma_f32_16x16x32_bf16 {d}, {f.q(ib)}, {self.CL.frag(s,kk,mm)}, {0 if zero else d}")
                    if rd and q < 8:
                        k(rd[2 * q]); lastrd = k(rd[2 * q + 1])
                    if q >= 8 and q % 2 == 0: self.dma(*dm[(q - 8) // 2])
                    if q == 9 and kk == 1: post_bar(s)
                    fill(s, kk, q)
        k.v.free(self.vh, self.rh); k.s.free(self.so, self.mH)

def final_addr(k, I, ldsX, ldsY):
    A = dict(ad=k.v.alloc(), ay=k.v.alloc(), va=k.v.alloc(), so=k.s.alloc())
    t = k.v.alloc(); st = k.s.alloc(); ad, ay, va, so = A['ad'], A['ay'], A['va'], A['so']
    k(f"""s_lshl_b32 {st}, {I['w']}, {7 + I.get('khs', 6)}
    s_add_u32 {st}, {st}, {ldsX}
    v_lshl_add_u32 {ad}, {I['l']}, 4, {st}
    v_lshrrev_b32 {ay}, 5, {I['l']}
    v_lshlrev_b32 {ay}, 9, {ay}
    v_bfe_u32 {t}, {I['l']}, 3, 2
    v_lshl_or_b32 {ay}, {t}, 6, {ay}
    v_and_b32 {t}, 3, {I['l']}
    v_lshl_or_b32 {ay}, {t}, 4, {ay}
    v_bfe_u32 {t}, {I['l']}, 2, 1
    v_lshl_or_b32 {ay}, {t}, 3, {ay}
    s_lshr_b32 {st}, {I['w']}, 1
    s_lshl_b32 {st}, {st}, 13
    s_add_u32 {st}, {st}, {ldsY}
    v_add_u32 {ay}, {st}, {ay}
    v_lshlrev_b32 {va}, 18, {I['g']}
    v_lshl_or_b32 {va}, {I['n']}, 2, {va}
    s_and_b32 {so}, {I['w']}, 1
    s_lshl_b32 {so}, {so}, {16 + I.get('khs', 6)}
    s_lshl_b32 {st}, {I['ta']}, 12
    s_add_u32 {so}, {so}, {st}
    s_lshl_b32 {st}, {I['tb']}, 6
    s_add_u32 {so}, {so}, {st}
    s_lshr_b32 {st}, {I['w']}, 1
    s_lshl_b32 {st}, {st}, 11
    s_add_u32 {so}, {so}, {st}""")
    k.v.free(t); k.s.free(st)
    return A

def y_reads(A, Y):
    return [f"ds_read_b64_tr_b16 {Y[16*mm+4*kap+2*h:16*mm+4*kap+2*h+2]}, {A['ay']} offset:{4096*mm + 1024*kap + 256*h}"
            for kap in range(4) for mm in range(2) for h in range(2)]

def final2(k, A, g, acc, fr, G, so_, pf):
    Y, aa = fr.q(0, 32), fr.q(1, 32); ad, va, so = A['ad'], A['va'], A['so']; om = k.v.alloc(4)
    def mf(ib, side):
        for kap in range(4):
            for mm in range(2):
                d = aa.q(4 * mm + ib)
                k(f"v_mfma_f32_16x16x32_bf16 {d}, {G[ib>>1].q(4*(ib&1)+kap)}, {Y.q(4*mm+kap)}, {d if kap else 0}")
                if side: k(side.pop(0))
    wr = [f"ds_write_b128 {ad}, {acc.q(8*mm+4+ib)} offset:{1024*(4*mm+ib)}" for ib in range(4) for mm in range(2)]
    mf(0, wr)
    mf(1, [])
    k(f"v_xor_b32 {ad}, 0x2000, {ad}\ns_waitcnt lgkmcnt(0)\ns_barrier")
    pf("xbar")
    rd = [f"ds_read_b128 {acc.q(8*mm+4+ib)}, {ad} offset:{1024*(4*mm+ib)}" for ib in range(4) for mm in range(2)]
    mf(2, rd)
    def fin(ib):
        gg = g.q(ib)
        for h in (0, 2):
            k(f"""v_sub_f32 {om[h]}, 1.0, {gg[h]}
            v_sub_f32 {om[h+1]}, 1.0, {gg[h+1]}
            v_cvt_pk_bf16_f32 {om[h+1]}, {om[h]}, {om[h+1]}
            v_lshlrev_b32 {om[h]}, 16, {om[h+1]}
            v_and_b32 {om[h+1]}, 0xffff0000, {om[h+1]}""")
        for h in (0, 2):
            for mm in range(2):
                b = acc.q(8 * mm + ib); r = acc.q(8 * mm + 4 + ib); a = aa.q(4 * mm + ib)
                k(f"""v_pk_add_f32 {b[h:h+2]}, {b[h:h+2]}, {r[h:h+2]}
                v_pk_mul_f32 {a[h:h+2]}, {gg[h:h+2]}, {a[h:h+2]}
                v_pk_fma_f32 {b[h:h+2]}, {om[h:h+2]}, {b[h:h+2]}, {a[h:h+2]}""")
            for r in (h, h + 1):
                for mm in range(2):
                    k(f"buffer_store_dword {acc.q(8*mm+ib)[r]}, {va}, {so_}, {so} offen offset:{1024*mm} {OUTF}")
                if (ib, r) != (3, 3): k(f"s_add_u32 {so}, {so}, {(1<<16) if r < 3 else (1<<20) - 3*(1<<16)}")
    fin(0)
    mf(3, [])
    for ib in range(1, 4): fin(ib)

class B1g(B1f):
    def main(self, q, fill, pre_bar, post_bar, rate):
        k = self.k; NS = 16; acc, fr = self.acc, self.fr
        def reads(s, kk):
            f = fr.q((s * 4 + kk) & 1, 16); buf = (s % self.NST) * 16384
            out = []
            for b in range(2):
                out.append(f"ds_read_b128 {f.q(b)}, {self.ra[kk]} offset:{buf + 4096*b}")
                out.append(f"ds_read_b128 {f.q(2+b)}, {self.rb[kk]} offset:{buf + 4096*b}")
            return out
        k.wait(self.last[0], *getattr(self, 'extra', [])); k("s_barrier")
        lastrd = None; passed = -1
        for r in reads(0, 0): lastrd = k(r)
        for s in range(NS):
            for kk in range(4):
                f = fr.q((s * 4 + kk) & 1, 16)
                rd = []
                if kk < 3: rd = reads(s, kk + 1)
                elif s + 1 < NS:
                    pre_bar(s)
                    assert self.cnt[s + 1] == 8, (s, self.cnt)
                    k.wait(lastrd, self.last[s + 1]); k("s_barrier"); passed = s
                    rd = reads(s + 1, 0)
                for m, (rb, c) in enumerate(((0, 0), (0, 1), (1, 1), (1, 0))):
                    d = acc.q(2 * rb + c, 16)
                    first = s == 0 and kk == 0
                    k(f"v_mfma_f32_32x32x16_bf16 {d}, {f.q(rb)}, {f.q(2+c)}, {0 if first else d}")
                    if m < 2 and rd:
                        k(rd[2 * m]); lastrd = k(rd[2 * m + 1])
                    if m == 1 and kk == 3: post_bar(s)
                    for _ in range(rate(s, kk, m)):
                        if q and q[0][0] <= passed: q.pop(0)[1]()
                    fill(s, kk, m)
        k.v.free(fr, self.va, self.vb, self.ra, self.rb); k.s.free(self.soA, self.soB, self.mA, self.mB)
        return acc
    cnt = None
    def dma(self, s, i):
        if self.cnt is None: self.cnt = {}
        self.cnt[s] = self.cnt.get(s, 0) + 1
        super().dma(s, i)

class B1k(B1g):
    def __init__(self, k, I, sx, sb):
        self.k, self.I, self.sx, self.sb = k, I, sx, sb
        self.va = k.v.alloc(4); self.vb = k.v.alloc(4)
        self.soA, self.soB, self.mA, self.mB = [k.s.alloc() for _ in range(4)]
        t = k.v.alloc(2); l = I['l']; va, vb = self.va, self.vb; st = self.soB
        k(f"""v_and_b32 {t[0]}, 7, {l}
        v_xor_b32 {t[0]}, {t[0]}, {I['g']}
        v_lshlrev_b32 {t[0]}, 4, {t[0]}
        v_lshrrev_b32 {t[1]}, 3, {l}
        v_lshl_or_b32 {vb[0]}, {t[1]}, 11, {t[0]}
        v_and_b32 {t[1]}, 32, {l}
        v_lshl_or_b32 {va[0]}, {t[1]}, 11, {t[0]}
        v_and_b32 {t[1]}, 8, {l}
        v_lshl_or_b32 {va[0]}, {t[1]}, 12, {va[0]}
        v_and_b32 {t[1]}, 16, {l}
        v_lshl_or_b32 {va[0]}, {t[1]}, 7, {va[0]}
        s_lshr_b32 {st}, {I['w']}, 1
        s_lshl1_add_u32 {self.mA}, {I['cb']}, {st}
        s_lshl_b32 {self.mA}, {self.mA}, 16
        v_add_u32 {vb[0]}, {self.mA}, {vb[0]}
        s_lshl1_add_u32 {self.mA}, {I['ca']}, {st}
        s_and_b32 {st}, {I['w']}, 1
        s_lshl3_add_u32 {self.mA}, {self.mA}, {st}
        s_lshl_b32 {self.mA}, {self.mA}, 14
        v_add_u32 {va[0]}, {self.mA}, {va[0]}
        v_xor_b32 {va[1]}, 64, {va[0]}
        v_xor_b32 {vb[1]}, 64, {vb[0]}
        v_add_u32 {va[1]}, {4096-1024}, {va[1]}
        v_add_u32 {vb[1]}, {16384-1024}, {vb[1]}
        v_add_u32 {va[2]}, {2*(4096-1024)}, {va[0]}
        v_add_u32 {vb[2]}, {2*(16384-1024)}, {vb[0]}
        v_add_u32 {va[3]}, {2*(4096-1024)}, {va[1]}
        v_add_u32 {vb[3]}, {2*(16384-1024)}, {vb[1]}
        s_lshl_b32 {self.mA}, {I['w']}, 12
        s_add_u32 {self.mB}, {self.mA}, 65536
        s_lshl_b32 {self.soA}, {I['ca']}, 7""")
        k.v.free(t)
        self.last = {}; self.tail = None; self.extra = []
    def readers(self):
        k, I = self.k, self.I; l = I['l']
        self.ra = k.v.alloc(4); self.rb = k.v.alloc(4); t = k.v.alloc(2); st = self.soB
        k(f"""v_bfe_u32 {t[0]}, {l}, 1, 3
        v_lshrrev_b32 {t[1]}, 5, {l}
        v_xor_b32 {t[0]}, {t[0]}, {t[1]}
        v_lshlrev_b32 {t[0]}, 4, {t[0]}
        v_and_b32 {t[1]}, 31, {l}
        v_lshl_or_b32 {t[0]}, {t[1]}, 7, {t[0]}
        s_lshr_b32 {st}, {I['w']}, 1
        v_lshl_add_u32 {self.ra[0]}, {st}, 13, {t[0]}
        s_and_b32 {st}, {I['w']}, 1
        s_or_b32 {st}, {st}, 8
        v_lshl_add_u32 {self.rb[0]}, {st}, 13, {t[0]}""")
        for kk in range(1, 4): k(f"v_xor_b32 {self.ra[kk]}, {32*kk}, {self.ra[0]}\nv_xor_b32 {self.rb[kk]}, {32*kk}, {self.rb[0]}")
        k.v.free(t)

def xtile_addr(k, I, lds_off):
    va = k.v.alloc(); t = k.v.alloc(); so = k.s.alloc()
    k(f"""v_bfe_u32 {t}, {I['l']}, 1, 2
    v_xor_b32 {t}, {t}, {I['g']}
    v_lshlrev_b32 {va}, 9, {t}
    v_and_b32 {t}, 1, {I['l']}
    v_lshl_or_b32 {va}, {t}, 4, {va}
    v_lshrrev_b32 {t}, 3, {I['l']}
    v_lshl_or_b32 {va}, {t}, 15, {va}
    s_lshl_b32 {so}, {I['w']}, 9
    s_add_u32 {so}, {so}, {I['ta']}
    s_lshl_b32 {so}, {so}, 6
    s_add_u32 {so}, {so}, {I['tb']}
    s_lshl_b32 {so}, {so}, 5
    s_lshl_b32 m0, {I['w']}, 12
    s_add_u32 m0, m0, {lds_off}""")
    k.v.free(t)
    return va, so

def ids2(k):
    I = {n: k.s.alloc() for n in ('w', 'k1p', 'slot', 'ca', 'cb', 'ta', 'tb', 'rc')}
    I['l'] = k.v.alloc(); I['n'] = k.v.alloc(); I['g'] = k.v.alloc(); i8 = k.s.alloc()
    k(f"""v_readfirstlane_b32 {I['w']}, v0
    v_and_b32 {I['l']}, 63, v0
    v_and_b32 {I['n']}, 15, v0
    v_bfe_u32 {I['g']}, v0, 4, 2
    s_bfe_u32 {I['k1p']}, s2, 0x20003
    s_lshr_b32 {i8}, s2, 5
    s_lshr_b32 {I['w']}, {I['w']}, 6
    s_and_b32 {I['ca']}, s2, 3
    s_lshl2_add_u32 {I['ca']}, {I['ca']}, {I['k1p']}
    s_bfe_u32 {I['cb']}, s2, 0x10002
    s_lshl3_add_u32 {I['cb']}, {I['cb']}, {i8}
    s_and_b32 {I['rc']}, s2, 1
    s_lshl3_add_u32 {I['ta']}, {I['rc']}, {i8}
    s_lshl1_add_u32 {I['rc']}, {i8}, {I['rc']}
    s_bfe_u32 {I['tb']}, s2, 0x20001
    s_lshl2_add_u32 {I['tb']}, {I['tb']}, {I['k1p']}
    s_and_b32 {I['slot']}, s2, 7
    s_lshl3_add_u32 {I['slot']}, {I['slot']}, {i8}""")
    k.s.free(i8)
    return I

class B3h:
    D = 3
    catch = False
    def __init__(self, k, I, sh, CL):
        self.k, self.I, self.sh, self.CL = k, I, sh, CL
        self.vh = k.v.alloc(2); self.rh = k.v.alloc(4)
        self.so, self.mH = k.s.alloc(), k.s.alloc()
        t = k.v.alloc(2); st = k.s.alloc(); l = I['l']
        k(f"""s_and_b32 {st}, {I['w']}, 1
        s_mul_i32 {self.mH}, {st}, {16384 + 4096}
        s_lshl_b32 {self.so}, {I['ta']}, 19
        s_add_u32 {self.mH}, {self.mH}, {self.so}
        v_lshl_add_u32 {self.vh[0]}, {l}, 4, {self.mH}
        v_xor_b32 {self.vh[1]}, 4096, {self.vh[0]}
        s_lshr_b32 {self.so}, {I['w']}, 1
        s_add_u32 {self.so}, {self.so}, {I['rc']}
        s_and_b32 {self.so}, {self.so}, 15
        s_lshl_b32 {self.so}, {self.so}, 15
        s_lshl_b32 {self.mH}, {I['w']}, 13
        v_and_b32 {t[0]}, 3, {l}
        v_and_b32 {t[1]}, 2, {I['g']}
        v_xor_b32 {t[1]}, {t[1]}, {t[0]}
        v_lshlrev_b32 {t[0]}, 9, {t[0]}
        v_lshl_or_b32 {t[0]}, {t[1]}, 6, {t[0]}
        v_bfe_u32 {t[1]}, {l}, 2, 2
        v_lshl_or_b32 {t[0]}, {t[1]}, 4, {t[0]}
        v_and_b32 {t[1]}, 1, {I['g']}
        v_lshl_or_b32 {t[0]}, {t[1]}, 3, {t[0]}
        s_lshl_b32 {st}, {st}, 13
        v_add_u32 {self.rh[0]}, {st}, {t[0]}
        v_xor_b32 {self.rh[1]}, 64, {self.rh[0]}
        v_add_u32 {self.rh[2]}, 0x10000, {self.rh[0]}
        v_add_u32 {self.rh[3]}, 0x10000, {self.rh[1]}""")
        k.v.free(t); k.s.free(st)
        self.last = {}; self.cnt = {}
    def dma(self, s, i):
        k = self.k
        if i & 3 == 0: k(f"s_add_u32 m0, {self.mH}, {(s % 4)*32768 + (i>>2)*4096}")
        self.last[s] = k(f"buffer_load_dwordx4 {self.vh[i>>2]}, {self.sh}, {self.so} offen offset:{1024*(i&3)} {SC} lds")
        self.cnt[s] = self.cnt.get(s, 0) + 1
        if i == 7: k(f"s_add_u32 {self.so}, {self.so}, {65536 + (8192 if s == 7 else 0)}\ns_and_b32 {self.so}, {self.so}, 0x7ffff")
    def alloc(self):
        self.acc = [self.k.v.allocq(32), self.k.v.allocq(32)]; self.fr = self.k.v.allocq(64)
    def main(self, dq, fill, pre_bar, post_bar):
        k = self.k; NS = 16; fr = self.fr
        def reads(s, u):
            f = fr.q(u, 32); out = []
            for kk in range(2):
                for ib in range(4):
                    off = (s % 4) * 32768 + u * 16384 + ib * 2048 + kk * 256; hi = 2 if off >= 65536 else 0
                    for h in range(2):
                        o = 16 * kk + 4 * ib + 2 * h
                        out.append(f"ds_read_b64_tr_b16 {f[o:o+2]}, {self.rh[hi+h]} offset:{off & 65535}")
            return out
        k.wait(self.last[0]); k("s_barrier")
        lastrd = None
        for r in reads(0, 0): lastrd = k(r)
        for s in range(NS):
            acc = self.acc[s >> 3]
            for u in range(2):
                f = fr.q(u, 32); rd = []
                if u == 0: rd = reads(s, 1)
                elif s + 1 < NS:
                    pre_bar(s)
                    assert self.cnt[s + 1] == 8
                    k.wait(lastrd, self.last[s + 1]); k("s_barrier")
                    rd = reads(s + 1, 0)
                k.wait(lastrd)
                order = [(kk, ib, mm ^ (ib & 1)) for kk in range(2) for ib in range(4) for mm in range(2)]
                if s & 7 == 7 and u == 1: order = [x for x in order if x[1] >= 2] + [x for x in order if x[1] < 2]
                for q, (kk, ib, mm) in enumerate(order):
                    d = acc.q(4 * mm + ib)
                    zero = s & 7 == 0 and u == 0 and kk == 0 and ib >= 2
                    k(f"v_mfma_f32_16x16x32_bf16 {d}, {f.q(4*kk+ib)}, {self.CL.frag(2*(s&7)+u,kk,mm)}, {0 if zero else d}")
                    if rd and q < 8:
                        k(rd[2 * q]); lastrd = k(rd[2 * q + 1])
                    if q >= 8 and dq and dq[0][0] <= s + self.D and (q % 2 == 0 or (s == 0 and self.catch)): self.dma(*dq.pop(0))
                    if q == 9 and u == 1: post_bar(s)
                    fill(s, u, q)
        assert not dq
        k.v.free(self.vh, self.rh); k.s.free(self.so, self.mH)

def xkeep3(k, I, ldsX):
    XK = k.v.allocq(16, 2); ad = k.v.alloc(2); t = k.v.alloc(2); st = k.s.alloc()
    k(f"""s_and_b32 {st}, {I['w']}, 1
    s_lshl_b32 {st}, {st}, 12
    s_add_u32 {st}, {st}, {ldsX}
    v_lshrrev_b32 {t[0]}, 2, {I['l']}
    v_lshlrev_b32 {t[0]}, 7, {t[0]}
    v_and_b32 {t[1]}, 3, {I['l']}
    v_lshl_or_b32 {t[0]}, {t[1]}, 3, {t[0]}
    v_add_u32 {t[0]}, {st}, {t[0]}
    v_bfe_u32 {t[1]}, {I['l']}, 3, 2
    s_and_b32 {st}, {I['w']}, 2
    v_xor_b32 {t[1]}, {st}, {t[1]}
    v_lshl_add_u32 {ad[0]}, {t[1]}, 5, {t[0]}
    v_xor_b32 {ad[1]}, 32, {ad[0]}""")
    for h in range(2):
        for mm in range(2):
            for ib in range(2): k(f"ds_read_b64_tr_b16 {XK.q(4*h+2*mm+ib,2)}, {ad[mm]} offset:{8192*h + 2048*ib}")
    k.v.free(ad, t); k.s.free(st)
    return XK

def xd_init3(k, XK, Dk, acc):
    for h in range(2):
        for mm in range(2):
            sel = f" op_sel:[{mm},0] op_sel_hi:[{mm},1]"
            for ib in range(2):
                a = acc[h].q(4 * mm + ib); x = XK.q(4 * h + 2 * mm + ib, 2)
                k(f"""v_lshlrev_b32 {a[0]}, 16, {x[0]}
                v_and_b32 {a[1]}, 0xffff0000, {x[0]}
                v_lshlrev_b32 {a[2]}, 16, {x[1]}
                v_and_b32 {a[3]}, 0xffff0000, {x[1]}
                v_pk_mul_f32 {a[0:2]}, {Dk}, {a[0:2]}{sel}
                v_pk_mul_f32 {a[2:4]}, {Dk}, {a[2:4]}{sel}""")
    k.v.free(XK, Dk)

def fin3(k, A, g, acc, aa, so_, h, flags, added):
    va, so = A['va'], A['so']
    for ib in range(2):
        gg = g.q(2 * h + ib)
        for x in (0, 2):
            for mm in range(2):
                b = acc.q(4 * mm + ib); a = aa(mm, ib)
                if not added: k(f"v_pk_add_f32 {b[x:x+2]}, {b[x:x+2]}, {acc.q(4*mm+2+ib)[x:x+2]}")
                k(f"v_pk_add_f32 {a[x:x+2]}, {a[x:x+2]}, {b[x:x+2]} neg_lo:[0,1] neg_hi:[0,1]")
            for mm in range(2):
                b = acc.q(4 * mm + ib); a = aa(mm, ib)
                k(f"v_pk_fma_f32 {b[x:x+2]}, {gg[x:x+2]}, {a[x:x+2]}, {b[x:x+2]}")
            for r in (x, x + 1):
                for mm in range(2):
                    k(f"buffer_store_dword {acc.q(4*mm+ib)[r]}, {va}, {so_}, {so} offen offset:{1024*mm} {flags}")
                step = (1 << 16) if r < 3 else ((1 << 20) if ib == 0 else (3 << 20)) - 3 * (1 << 16)
                if (h, ib, r) != (1, 1, 3): k(f"s_add_u32 {so}, {so}, {step}")

def ph3_list(G, Y, aa):
    return [f"v_mfma_f32_16x16x32_bf16 {aa(mm,ib)}, {G.q(4*ib+kap)}, {Y.q(4*mm+kap)}, {aa(mm,ib) if kap else 0}"
            for kap in range(4) for ib in range(2) for mm in range(2)]

def code_touch(k, I, wave, nbytes, dst):
    r = k.s.alloc(2); so = k.s.alloc(); va = k.v.alloc(2)
    per = -(-nbytes // (32 * 128)); lab = k.lab('pc')
    k(f"s_cmp_lg_u32 {I['w']}, {wave}")
    with k.skip_if("s_cbranch_scc1"):
        k(f"""s_getpc_b64 {r}
        {lab}:
        s_lshr_b32 {so}, s2, 3
        s_mul_i32 {so}, {so}, {per*128}
        v_min_u32 {va[0]}, {per-1}, {I['l']}
        v_lshl_add_u32 {va[0]}, {va[0]}, 7, {so}
        v_min_u32 {va[0]}, {k.name}_end-{lab}, {va[0]}
        v_mov_b32 {va[1]}, 0
        v_lshl_add_u64 {va}, {va}, 0, {r}
        global_load_dword {dst}, {va}, off""").defs = set()
    k.s.free(r, so); k.v.free(va)

def pretouch(k, I, swr, swi, sc, CLv, dst, what):
    va = k.v.alloc(); t = k.v.alloc(); r0, r1 = k.s.alloc(), k.s.alloc()
    if 'w' in what:
        k(f"""s_lshl_b32 {r0}, {I['k1p']}, 2
        s_add_u32 {r0}, {r0}, {I['w']}
        s_lshl_b32 {r0}, {r0}, 7
        s_add_u32 {r0}, {r0}, {I['slot']}
        s_sub_u32 {r1}, 2048, {r0}
        s_and_b32 {r1}, {r1}, 2047
        s_mul_i32 {r0}, {r0}, 1026
        s_mul_i32 {r1}, {r1}, 1026
        s_sub_u32 {r1}, {r1}, {r0}
        v_and_b32 {t}, 1, {I['g']}
        v_mul_lo_u32 {t}, {t}, {r1}
        v_lshl_add_u32 {va}, {I['n']}, 7, {r0}
        v_add_u32 {va}, {va}, {t}
        v_and_b32 {va}, -4, {va}
        s_mov_b64 exec, 0x01ff01ff
        buffer_load_dword {dst}, {va}, {swr}, 0 offen
        buffer_load_dword {dst}, {va}, {swi}, 0 offen offset:1024
        s_mov_b64 exec, -1""")
    if 'c' in what:
        k(f"""s_lshr_b32 {r0}, {I['w']}, 1
        s_lshl_b32 {r0}, {r0}, 20
        s_lshl_b32 {r1}, {I['tb']}, 15
        s_add_u32 {r0}, {r0}, {r1}
        v_lshl_add_u32 {va}, {I['n']}, 11, {r0}
        v_and_b32 {t}, 1, {I['g']}
        v_lshl_add_u32 {va}, {t}, 19, {va}
        v_lshrrev_b32 {t}, 1, {I['g']}
        v_add_u32 {t}, {I['rc']}, {t}
        v_and_b32 {t}, 15, {t}
        v_lshl_add_u32 {va}, {t}, 7, {va}""")
        if '2' not in what: k("s_mov_b32 exec_hi, 0")
        k(f"buffer_load_dword {dst}, {va}, {sc}, 0 offen\ns_mov_b64 exec, -1")
    for i in k.ins[-40:]:
        if i.mn == 'buffer_load_dword' and i.defs == {('v', dst.idx)}: i.defs = set()
    k.v.free(va, t); k.s.free(r0, r1)

class Touch:
    def __init__(self, k, I, swr, swi, sc, dst):
        self.k, self.I, self.swr, self.swi, self.sc, self.dst = k, I, swr, swi, sc, dst
        self.vw, self.vc = k.v.alloc(), k.v.alloc(); t = k.v.alloc(); r0, r1 = k.s.alloc(), k.s.alloc(); va = self.vw
        k(f"""s_lshl_b32 {r0}, {I['k1p']}, 2
        s_add_u32 {r0}, {r0}, {I['w']}
        s_lshl_b32 {r0}, {r0}, 7
        s_add_u32 {r0}, {r0}, {I['slot']}
        s_sub_u32 {r1}, 2048, {r0}
        s_and_b32 {r1}, {r1}, 2047
        s_mul_i32 {r0}, {r0}, 1026
        s_mul_i32 {r1}, {r1}, 1026
        s_sub_u32 {r1}, {r1}, {r0}
        v_and_b32 {t}, 1, {I['g']}
        v_mul_lo_u32 {self.vc}, {t}, {r1}
        v_lshl_add_u32 {va}, {I['n']}, 7, {r0}
        v_add_u32 {va}, {va}, {self.vc}
        v_and_b32 {va}, -4, {va}""")
        va = self.vc
        k(f"""s_lshr_b32 {r0}, {I['w']}, 1
        s_lshl_b32 {r0}, {r0}, 20
        s_lshl_b32 {r1}, {I['tb']}, 15
        s_add_u32 {r0}, {r0}, {r1}
        v_lshl_add_u32 {va}, {I['n']}, 11, {r0}
        v_lshl_add_u32 {va}, {t}, 19, {va}
        v_lshrrev_b32 {t}, 1, {I['g']}
        v_add_u32 {t}, {I['rc']}, {t}
        v_and_b32 {t}, 15, {t}
        v_lshl_add_u32 {va}, {t}, 7, {va}""")
        k.v.free(t); k.s.free(r0, r1)
    def go(self, what, wave):
        k = self.k
        k(f"s_cmp_lg_u32 {self.I['w']}, {wave}")
        with k.skip_if("s_cbranch_scc1"):
            if what == 'w':
                k("s_mov_b64 exec, 0x01ff01ff")
                k(f"buffer_load_dword {self.dst}, {self.vw}, {self.swr}, 0 offen").defs = set()
                k(f"buffer_load_dword {self.dst}, {self.vw}, {self.swi}, 0 offen offset:1024").defs = set()
            else:
                if what != 'b': k(f"s_mov_b32 exec_{'hi' if what == 'c' else 'lo'}, 0")
                k(f"buffer_load_dword {self.dst}, {self.vc}, {self.sc}, 0 offen").defs = set()
            k("s_mov_b64 exec, -1")
    def done(self): self.k.v.free(self.vw, self.vc)

def build(opt={}):
    O = dict(sig=8, v2s=-1, vf=-1, early=0, shadow=1, spos=0, cpos=0, x1=4, p0=30, lead0=300, p1=56, lead1=60, gpos=1, cearly=0, n0=8, n1=16, pb=70, nb=2, nlb=1, pc=64, leadc=0, late=3, gseam=1, fast=0, lag=2, hmark=1, pollat=1, touch=1, ctpos=0, ctw=0, cfirst=0, wtail=4, bars=0, gx=300, v2r=2, eo=1, es=26, er=4, vp=0, sk=2, bf=1, sr=8, lr=4, wpos=0, D=5, cpre=1, clag=1, fl=12, pl=23, pld=2, m2s=10, ptq=0, gap=-1, ntail=3, fend=99, tt=0, tsp=2, m32=0, xs=8, xb=0, vr=1, rate=2, yrr=2, scal=1, clr=1, fm=65535, gl=1, pt='w', pts=11, two=1, pre3=2, pg=48, pv=3, pd=2, yd=1, yl=1, yr=1000, fs=13, oaf='sc1', obf='sc1', fr=24, map8=1, rot1=2, gloc=1, rotc=1)
    O.update(opt)
    k = Kernel(NAME + "_kernel", nv=256, na=256)
    LX = 131072; LT2 = LX + 16384; LDS = LT2 + 16384
    A0, A1, A2, A3, B0, B1_, B2, B3_ = [16384 * i for i in range(8)]
    k("s_cmp_ge_u32 s2, 256")
    k(f"s_cbranch_scc1 {k.name}_end")
    KP = k.s.alloc(32, 4)
    k(f"s_load_dwordx16 {KP[0:16]}, s[0:1], 0\ns_load_dwordx16 {KP[16:32]}, s[0:1], 64")
    P = {n: KP[o // 4:o // 4 + 2] for n, o in KA.items()}
    def rel(*names):
        for n in names: k.s.free(P.pop(n))
    I = ids2(k); cd = k.v.alloc(); I['tag'] = O['sk'] >= 2
    pf = Prof(k, 0)
    if O['ctpos'] == 0: code_touch(k, I, O['ctw'], 40960, cd)
    sx, sb = k.s.alloc(4), k.s.alloc(4)
    k(f"s_mov_b32 {sx[2]}, {SZ['x']}\ns_mov_b32 {sx[3]}, 0x20000\ns_mov_b32 {sb[2]}, {SZ['bre']}\ns_mov_b32 {sb[3]}, 0x20000")
    xva, xso = xtile_addr(k, I, LX)
    if O['shadow'] >= 0: g1 = B1k(k, I, sx, sb)
    if O['shadow'] >= 1: g1.readers()
    k(f"s_mov_b64 {sx[0:2]}, {P['x']}")
    pf('ka')
    XI = dict(j=0)
    def x1():
        j = XI['j']; XI['j'] += 1
        if j and j == O['x1']: k(f"s_add_u32 m0, {g1.mA}, {LX}")
        XI['ld'] = k(f"buffer_load_dwordx4 {xva}, {sx}, {xso} offen offset:{1024*j} lds")
        if j < 3: k(f"s_add_u32 {xso}, {xso}, {8*32768 - 1024}")
    for j in range(O['x1']): x1()
    if O['ctpos'] == 1: code_touch(k, I, O['ctw'], 40960, cd)
    if O['shadow'] < 0: g1 = B1k(k, I, sx, sb)
    k(f"s_bitcmp1_b32 {I['w']}, 0\ns_cselect_b64 {sb[0:2]}, {P['bim']}, {P['bre']}")
    rel('x', 'bx', 'bre', 'bim')
    pf('xi')
    def vm1(cap):
        def f():
            while cap.groups:
                v = any(i.cls == 'vm' for i in cap.groups[0]); cap.emit(1)
                if v: break
        return f
    H = {}
    CA = k.a.alloc(256)
    dq = [(-1 if s < 4 else s - 4, lambda s=s, i=i: g1.dma(s, i)) for s in range(0, 16) for i in range(8)]
    take = lambda n: [dq.pop(0)[1] for _ in range(n)]
    if O['x1'] < 4:
        for f_ in take(4): f_()
    T = ph2_params(k, I)
    if O['cpos'] == 0: cw = coop_consts(k, I, T, LT2, 2.0 ** -20)
    with k.capture() as c0:
        if O['shadow'] < 1: g1.readers()
        if O['m32'] or O['sk'] == 3:
            I['lp'] = k.v.alloc(); tt = k.s.alloc()
            k(f"s_and_b32 {tt}, {I['ca']}, 2\ns_lshl_b32 {tt}, {tt}, 3\nv_xor_b32 {I['lp']}, {tt}, {I['l']}\ns_lshl_b32 {tt}, {tt}, 7")
            for q in range(4): k(f"v_xor_b32 {g1.rb[q]}, {tt}, {g1.rb[q]}")
            k.s.free(tt)
        sf = srd(k, P['ws'], WS_FP - WS_F + 131072, WS_F)
        FV, FH = k.s.alloc(), k.s.alloc()
        zero = k.v.alloc(); vpc = k.v.alloc()
        k(f"""v_mov_b32 {zero}, 0
        v_lshlrev_b32 {vpc}, 4, v0
        s_mov_b32 {FV}, 4096
        s_cmp_lg_u32 s2, 0""")
        with k.skip_if("s_cbranch_scc1"):
            tz = k.v.alloc(4)
            for j in range(4): k(f"v_mov_b32 {tz[j]}, 0")
            k(f"buffer_store_dwordx4 {tz}, {vpc}, {sf}, 0 offen {SC}")
            g1.extra.append(k(f"buffer_store_dwordx4 {tz}, {vpc}, {sf}, {FV} offen {SC}"))
            k.v.free(tz)
        sgw = srd(k, P['gw'], SZ['gw']); rel('gw')
        t4 = [srd(k, P[n], 2048) for n in ('lre', 'lim', 'ldt', 'dsk')]; rel('lre', 'lim', 'ldt', 'dsk')
        sv1 = srd(k, P['ws'], 256 * V1_STR, WS_V1)
        F = gen_F2(k, I)
    acts = take(8) if O['x1'] == 4 else [x1] * (4 - O['x1']) + take(4)
    c0.weave(acts, O['p0'], O['lead0'])
    while acts: acts.pop(0)()
    pf('su')
    ldx = XI['ld']; k.v.free(xva); k.s.free(xso)
    with k.capture() as small:
        Q = ssm_param_issue(k, I, *t4[:3]); Dk = (dsk_issueS if O['sk'] else dsk_issue32 if O['m32'] else dsk_issue)(k, I, t4[3])
    with k.capture() as gl: Gt = gate_issue2(k, I, sx, sgw)
    if O.get('nogate'): gl.groups = [g for g in gl.groups if not any(i.cls == 'vm' for i in g)]
    if O['spos'] == 0: small.emit(999)
    if O['cpos'] == 1: cw = coop_consts(k, I, T, LT2, 2.0 ** -20)
    pf("F")
    small.flush(); k.s.free(*t4)
    acts = ([vm1(gl)] * 6 if O['gpos'] == 0 else []) + take(O['n0'])
    while acts: acts.pop(0)()
    k.wait(ldx, cw); k("s_barrier"); pf("xt")
    with k.capture() as c1:
        O1 = ph1f(k, I, F, LX, sv1, lambda n: None)
        k.v.free(F)
        XK = (xkeepU if O['sk'] == 3 else xkeepS if O['sk'] else xkeep32 if O['m32'] else xkeep3 if O['two'] else xkeep)(k, I, LX)
    acts = take(O['n1'])
    c1.weave(acts, O['p1'], O['lead1'])
    while acts: acts.pop(0)()
    if O['gpos'] == 1: gl.emit(1000)
    pf("ph1")
    g1.alloc()
    if O['gpos'] == 2:
        pos = 32 - 8 - O['n0'] - O['n1']
        dq[pos:pos] = [(-1, vm1(gl))] * 6
    with k.capture() as fl1:
        ph1_store(k, *O1, sv1)
        if O.get('nov1'): k.ins = []
        one = k.v.alloc(); vfc = k.v.alloc(); vfh = k.v.alloc(); sdbg = srd(k, P['dbg'], 256); rel('dbg')
        k(f"""s_and_b32 {FH}, s2, 7
        s_lshl_b32 {FH}, {FH}, 8
        s_add_u32 {FH}, {FH}, s2
        s_and_b32 {FH}, {FH}, -8
        s_lshl_b32 {FH}, {FH}, 1
        v_mov_b32 {vfc}, {FH}
        s_lshl4_add_u32 {FH}, {I['cb']}, {I['ca']}
        s_lshl_b32 {FH}, {FH}, 7
        v_lshl_add_u32 {vfh}, {I['n']}, 2, {FH}
        s_mov_b32 {FH}, 8192
        v_mov_b32 {one}, 1""")
        st = k.s.alloc()
        k(f"s_lshl_b32 {st}, {I['cb']}, 14")
        se = srd(k, P['ws'], 8192, WS_E, st)
        t = k.v.alloc(2)
        k(f"""s_sub_u32 {st}, 15, {I['ca']}
        s_lshl_b32 {st}, {st}, 9
        v_lshl_add_u32 {t[0]}, v0, 2, {st}
        v_mov_b32 {t[1]}, -1
        s_cmp_ge_u32 {I['w']}, 2""")
        with k.skip_if("s_cbranch_scc1"):
            H['clr'] = k(f"buffer_store_dword {t[1]}, {t[0]}, {se}, 0 offen {SC}")
        wave0_store(k, I, f"buffer_store_dword {zero}, {vfh}, {sf}, {FH} offen {SC}", O['fm'])
        if O['sk'] == 1:
            FP = k.s.alloc()
            k(f"""s_lshl4_add_u32 {FP}, {I['ta']}, {I['tb']}
            s_lshl2_add_u32 {FP}, {FP}, {I['w']}
            s_lshl_b32 {FP}, {FP}, 7
            s_add_u32 {FP}, {FP}, {WS_FP - WS_F}
            v_lshlrev_b32 {t[0]}, 2, {I['n']}
            s_mov_b64 exec, 0xffff
            buffer_store_dword {zero}, {t[0]}, {sf}, {FP} offen {SC}
            s_mov_b64 exec, -1""")
        k(f"s_or_b32 {st}, {I['w']}, s2\ns_cmp_lg_u32 {st}, 0")
        with k.skip_if("s_cbranch_scc1"):
            k(f"s_mov_b64 exec, 1\nbuffer_store_dword {one}, {zero}, {sdbg}, 0 offen {SC}\ns_mov_b64 exec, -1")
        k.v.free(t); k.s.free(st)
        if O['sk']:
            sc = srd(k, P['cre'], SZ['cre']); sc_i = srd(k, P['cim'], SZ['cim']); rel('cre', 'cim')
            CL = (CLoadU if O['sk'] == 3 else CLoadS)(k, I, sc, sc_i, CA)
        else:
            sc = srd_sel(k, I, P['cre'], P['cim'], SZ['cre']); rel('cre', 'cim')
            CL = (CLoad32 if O['m32'] else CLoad)(k, I, sc, CA)
        swr = srd(k, P['wr'], SZ['wr'])
        swi = k.s.alloc(4)
        k(f"s_sub_u32 {swi[0]}, {P['wi'][0]}, 1024\ns_subb_u32 {swi[1]}, {P['wi'][1]}, 0\ns_mov_b32 {swi[2]}, {SZ['wi'] + 1024}\ns_mov_b32 {swi[3]}, 0x20000")
        rel('wr', 'wi')
        if O['tt']: TT = Touch(k, I, swr, swi, sc, cd)
        nfirst = len(k.ins)
        sg = srd(k, P['ws'], G_BYTES, WS_G)
        lastst = gate_compute2(k, I, Gt, sg, LX if O['gl'] else None)
        nsec = len(k.ins)
        H['C2'] = coop_read(k, I, LT2, {n: CA[224 + 8 * j:232 + 8 * j] for j, n in enumerate(('m2f', 'm2i', 'm1i', 'si'))})
        wsl = (A0, A1, B1_, A2) if O['cfirst'] else (LX, A0, B0, A1)
        WD = WD2(k, I, T, swr, swi, wsl, LT2)
        nthird = len(k.ins)
        Pm = ssm_param_compute(k, Q)
        scan_addr(k, I, Pm, LT2)
        E1h = {}; hstore_addr(k, I, E1h)
        if O['sk'] == 3: Dk = diagU(k, I, Dk)
        ntot = len(k.ins)
    print("B1 fillers", nfirst, nsec, nthird, ntot)
    for u in range(O['cearly']):
        pos = [j for j, x in enumerate(dq) if x[0] == 2 + 3 * u][0]
        dq[pos:pos] = [(-1, lambda: CL.issue(LX))]
    p0 = Poll(k, sdbg, zero, 1, 1, sleep=16)
    p1 = Poll(k, sf, vpc, 1, 1, sleep=16)
    dq.append((-1, lambda: (p1.issue(), WD.extra_issue())))
    if O['ptq']: dq.append((-1, lambda: pretouch(k, I, swr, swi, sc, CL, cd, O['ptq'])))
    gap = O['gap']; wq = []
    if O['cfirst']:
        tslots = [(-1, LX), (12, B0), (14, B2)]
        for s, slot in tslots[:2]: dq += [(s, lambda slot=slot: CL.issue1(slot))] * 4
        wq = [(max(s, gap), WD.issue1) for s in (12, 13, 13, 14) for _ in range(4)]
        dq += wq[:4 * O['wtail']]; wq = wq[4 * O['wtail']:]; O['ntail'] = 2
    else:
        dq += [(gap, WD.issue1)] * 4
        for s, slot in ((12, A0), (12, B0), (13, A1)): dq += [(s, WD.issue1)] * 4
        tslots = [(13, B1_), (14, A2), (14, B2)]
        for s, slot in tslots[:O['ntail']]: dq += [(s, lambda slot=slot: CL.issue1(slot))] * 4
    pf("pre")
    def pre_bar(s):
        if O['gl'] and s == 5: k.wait(lastst)
        if s == O['sig']: k.wait(H['gs'] if O['gl'] else lastst, H['clr'])
    def post_bar(s):
        if O['touch'] and s in (4, 11): code_touch(k, I, 1 + (s & 1), 16384, cd)
        if O['pt'] and s == O['pts']: pretouch(k, I, swr, swi, sc, CL, cd, O['pt'])
        if O['gl'] and s == 5: H['gs'] = gate_store(k, I, sg, LX)
        if s == O['sig'] - 3: p0.issue()
        if s == O['sig']:
            fl1.emit_until_safe()
            p0.finish()
            wave0_store(k, I, f"buffer_store_dword {one}, {vfc}, {sf}, 0 offen {SC}")
    def fill1(s, kk, m):
        tgt = [(0, 34), (1, nfirst), (2, nfirst), (4, nsec), (9, nthird), (14, ntot)]
        x = s + (4 * kk + m + 1) / 16.0 - 1; px, py = -1, 0
        for qx, qy in tgt:
            if x <= qx: want = py + (qy - py) * (x - px) / (qx - px); break
            px, py = qx, qy
        else: want = ntot
        while fl1.groups and ntot - fl1.left() < want: fl1.emit(1)
        if s == 3 and kk == 0 and m == 0: gl.flush(); k.s.free(sgw)
        if O['tt'] and m == 3 and kk in (0, 2):
            x = 2 * s + kk // 2
            for what, s0_ in re.findall(r'([wcdb])(\d+)', O['tt']):
                d = x - 2 * int(s0_)
                if d >= 0 and d % O['tsp'] == 0 and d // O['tsp'] < 4: TT.go(what, d // O['tsp'])
        if s == 14 and kk == 3 and m == 3:
            fl1.flush()
            if O['tt']: TT.done()
        if kk == 1 and m == 0 and s >= 5 and s % 3 == 2 and CL.nd < O['cearly']: CL.drain()
        if kk == 3 and m == 0 and (s % 4 == 3 or PROFSEL): pf(f"a{s}")
    def rate(s, kk, m):
        if s < O['fast'] or s >= O['fend']: return 1 if m >= 1 else 0
        return 1 if m >= 2 else 0
    acc = g1.main(dq, fill1, pre_bar, post_bar, rate)
    pf("main1")
    k.s.free(sx, sb, sdbg); k.v.free(zero)
    with k.capture() as c2:
        E1 = pass1c(k, I, acc, Pm, LT2); E1.update(E1h)
    acts = [x[1] for x in dq]; print("queue left after B1:", len(acts))
    c2.weave(acts, 64)
    while acts: acts.pop(0)()
    p1.finish()
    k.wait(E1['w']); k("s_barrier")
    publish(k, I, E1, Pm, se)
    pf("pass1")
    LT1 = A3
    C2 = H['C2']; nlate = O['late']; assert nlate >= 2
    free = [B3_] + [x[1] for x in tslots[O['ntail']:]]; state = dict(cur=None)
    def c1act():
        if CL.n >= 64 - 4 * nlate: return
        if CL.n & 3 == 0:
            if not free: free.append(CL.drain())
            state['cur'] = free.pop(0)
            if not free and CL.nd < CL.n // 4 - O['lag'] + 1: free.append(CL.drain())
        CL.issue1(state['cur'])
    def cfinish():
        while CL.n & 3: c1act()
    L1 = v1_issue(k, I, T, sv1, SC); k.s.free(sv1)
    with k.capture() as c3:
        if O['wpos'] == 0: Wf, WX = WD.gather_all()
        scan_coef(k, acc, Pm)
        carry_prep(k, I, E1, Pm)
        if O['wpos'] == 0: WD.fix(Wf, WX)
    assert not wq or O['wpos'] == 1
    acts = [x[1] for x in wq] + [c1act] * (4 * O['nb'])
    c3.weave(acts, O['pb'], 100)
    while WD.n < 16: WD.issue1()
    cfinish()
    if O['wpos'] == 0: free.extend([x for x in wsl if x != LX])
    lb = LookBack(k, Pm, se); lb.issue()
    pf("coef")
    with k.capture() as c4: t1w = ph2_s1(k, I, C2, L1, LT1)
    acts = [c1act] * (4 * O['nlb'])
    c4.weave(acts, O['pb'])
    cfinish()
    pf("s1")
    E = lb.finish(); k.s.free(se)
    pf("lb")
    sh = srd(k, P['ws'], 8 << 20, WS_H)
    lasth = pass2c(k, I, acc, Pm, E1, E, sh, lambda q: None)
    pf("pass2")
    if O['wpos'] == 1: Wf, WX = WD.gather_all()
    while CL.nd < CL.n // 4: free.append(CL.drain())
    if O['wpos'] == 1: WD.fix(Wf, WX); free.extend([x for x in wsl if x != LX])
    if O['touch']: code_touch(k, I, 3, 16384, cd)
    k.wait(t1w); k("s_barrier")
    pf("bar1")
    vph = k.v.alloc()
    if O['sk']:
        tt = k.s.alloc()
        k(f"s_lshr_b32 {tt}, {I['tb']}, 3\ns_lshl2_add_u32 {tt}, {tt}, {I['w']}\ns_lshl_b32 {tt}, {tt}, 12\nv_lshl_add_u32 {vph}, {I['l']}, 7, {tt}")
        k.s.free(tt)
        p3 = Poll(k, sf, vph, 1, 1, FH, mask=0xffffffff)
    else:
        k(f"v_lshlrev_b32 {vph}, 7, v0")
        p3 = Poll(k, sf, vph, 1, 1, FH)
    def mark(i):
        if i == O['hmark']:
            k.wait(lasth); k("s_barrier")
            wave0_store(k, I, f"buffer_store_dword {one}, {vfh}, {sf}, {FH} offen {SC}", O['fm'])
            pf("hflag")
    with k.capture() as c5: ph2_mid(k, I, T, C2, Wf, WX, LT1, LT2, mark)
    acts = [c1act] * (64 - 4 * nlate - CL.n); print("C instr in mid:", len(acts))
    c5.weave(acts, O['pc'], O['leadc'])
    print("C instr left after mid:", len(acts))
    while acts: acts.pop(0)()
    pf("mid")
    if O['pollat'] == 0: p3.issue()
    k("s_waitcnt lgkmcnt(0)\ns_barrier")
    V2 = ph2_s6(k, I, C2, LT2)
    if O['pollat'] == 1: p3.issue()
    sv2 = srd(k, P['ws'], 256 * V2_STR, WS_V2)
    while CL.nd < CL.n // 4: CL.drain()
    with k.capture() as cv2:
        if O['v2s'] == -1: H['v2'] = v2_store(k, *V2, sv2)
    if not O['vp']: cv2.flush()
    with k.capture() as c7:
        g3 = (B3u if O['sk'] == 3 else B3s if O['sk'] else B3m if O['m32'] else B3h if O['two'] else B3g)(k, I, sh, CL)
        g3.alloc()
        (xd_initU if O['sk'] == 3 else xd_initS if O['sk'] else xd_init32 if O['m32'] else xd_init3 if O['two'] else xd_init2)(k, XK, Dk, g3.acc)
        if O['pollat'] == 2: p3.issue()
        if O['gseam'] == 2: H['G1'] = gen_GS(k, I) if O['sk'] else gen_G1b(k, dict(I, khs=5))
    acts = [vm1(cv2)] * 16 if O['vp'] else []
    c7.weave(acts, O['vp'])
    cv2.flush()
    pf("s6")
    p3.finish(); k.v.free(vph)
    k("s_waitcnt lgkmcnt(0)\ns_barrier")
    pf("sync3")
    if O['sk'] == 3: return tailU(k, I, O, P, H, locals())
    if O['sk'] == 2: return tailT(k, I, O, P, H, locals())
    if O['sk']: return tailS(k, I, O, P, H, locals())
    if O['m32']: return tail32(k, I, O, P, H, locals())
    if O['two']: return two_pass_tail(k, I, O, P, H, locals())
    acts = [lambda s=s, i=i: g3.dma(s, i) for s in range(3) for i in range(8)]
    G1 = None
    if O['gseam']:
        with k.capture() as cg: G1 = gen_G1b(k, I)
        for _ in range(2): acts.pop(0)()
        cg.weave(acts, 48)
    while acts: acts.pop(0)()
    so = srd(k, P['out'], SZ['out'])
    with k.capture() as f3a:
        if O['v2s'] >= 0: H['v2'] = v2_store(k, *V2, sv2)
    with k.capture() as f3b:
        if G1 is None: G1 = gen_G1b(k, I)
        FA = final_addr(k, I, 0, LX)
    pf("pref")
    p4 = Poll(k, sf, vpc, 1, 1, FV, sleep=16)
    VS = O['v2s']
    def pre_bar3(s):
        if s == VS + 3: k.wait(H['v2'])
        if s == 10:
            f3b.flush(); p4.finish()
        if s == 14: H['c'].flush(); k.wait(H['yw'])
    def post_bar3(s):
        if s == VS + 3: wave0_store(k, I, f"buffer_store_dword {one}, {vfc}, {sf}, {FV} offen {SC}")
        if O['touch'] and s == 5: code_touch(k, I, 1, 12288, cd)
        if s == 8: p4.issue()
        if s == 10:
            L2 = v2_issue2(k, I, sv2)
            with k.capture() as H['c']:
                H['yw'] = y_stage2(k, I, L2, LX)
        if s == 14:
            H['g'] = g_issue2(k, I, sg)
            with k.capture() as H['d']:
                H['G2'] = gen_G2(k, I, G1)
    def fill3(s, kk, q):
        if s == VS and f3a.left(): f3a.emit(2)
        if s == max(VS, 0) and kk == 1 and q == 15: f3a.flush()
        if s > VS and q >= 8: f3b.emit(2)
        if q == 15 and kk == 0 and 3 <= s < 3 + nlate: CL.drain()
        if q == 15 and kk == 1 and 1 <= s < 1 + nlate: CL.issue((LX, LT2)[s & 1])
        if s >= 13 and 'c' in H and q >= 6: H['c'].emit(O.get('yr') or 4)
        if 'd' in H and q >= 8: H['d'].emit(O.get('gr') or 4)
        if kk == 1 and q == 0 and s % 4 == 3: pf(f"b{s}")
    g3.main(fill3, pre_bar3, post_bar3, lambda Y: y_reads(FA, Y))
    assert CL.nd == 16
    H['d'].flush()
    pf("main3")
    final2(k, FA, H['g'], g3.acc, g3.fr, (G1, H['G2']), so, pf)
    pf("epi")
    pf.done()
    end(k)
    return k, LDS

def two_pass_tail(k, I, O, P, H, L):
    g3, CL, pf, sf, sg, sv2, V2, vpc, vfc, one, FV, cd, LX, LT2, nlate = [L[n] for n in 'g3 CL pf sf sg sv2 V2 vpc vfc one FV cd LX LT2 nlate'.split()]
    dq = [(s, i) for s in range(16) for i in range(8)]
    acts = [lambda: g3.dma(*dq.pop(0))] * (8 * O['pre3'])
    I2 = dict(I, khs=5); g3.catch = O['pre3'] == 2
    with k.capture() as cg: G1 = H.get('G1') or gen_G1b(k, I2)
    for _ in range(2): acts.pop(0)()
    cg.weave(acts, O['pg'])
    while acts: acts.pop(0)()
    so = srd(k, P['out'], SZ['out'])
    with k.capture() as f3a:
        if O['v2s'] >= 0: H['v2'] = v2_store(k, *V2, sv2)
    with k.capture() as f3b:
        FA = final_addr(k, I2, LT2, LX)
    pf("pref")
    p4 = Poll(k, sf, vpc, 1, 1, FV, sleep=16)
    VS = O['v2s']; PV = O['pv']; VF = O.get('vf', VS + 3); PF = PV + O['pd']; YS = PF + O['yd']; YB = YS + O['yl']; acc = g3.acc; ad = FA['ad']
    aa0 = lambda mm, ib: acc[0].q(4 * mm + 2 + ib)
    S = {}
    def cap(name, fn):
        with k.capture() as S[name]: fn()
    def pre_bar3(s):
        if s == VF: k.wait(H['v2'])
        if s == PF: f3b.flush(); p4.finish()
        if s == 8: S['xw'].flush(); k.wait(H['xw'])
        if s == YB: S['y'].flush(); k.wait(H['yw'])
    def post_bar3(s):
        if O['touch'] and s == 4: code_touch(k, I, 1, 16384, cd)
        if s == VF: wave0_store(k, I, f"buffer_store_dword {one}, {vfc}, {sf}, {FV} offen {SC}")
        if s == PV: p4.issue()
        if s == PF:
            L2 = v2_issue2(k, I, sv2)
            H['g'] = g_issue2(k, I2, sg)
            def f(): H['yw'] = y_stage2(k, I, L2, LX)
            cap('y', f)
        if s == 8:
            def f():
                k(f"v_xor_b32 {ad}, 0x1000, {ad}")
                for mm in range(2):
                    for ib in range(2): k(f"ds_read_b128 {aa0(mm,ib)}, {ad} offset:{1024*(2*mm+ib)}")
                k(f"v_xor_b32 {ad}, 0x1000, {ad}")
            f()
            def f2():
                for mm in range(2):
                    for ib in range(2):
                        for x in (0, 2): pk(k, '+', acc[0].q(4*mm+ib)[x:x+2], acc[0].q(4*mm+ib)[x:x+2], aa0(mm, ib)[x:x+2])
            cap('add', f2)
        if s == YB:
            H['Y'] = k.v.allocq(32)
            def f():
                for r in y_reads(FA, H['Y']): k(r)
            cap('yr', f)
            def f2():
                for m in ph3_list(G1, H['Y'], aa0): k(m)
            cap('m', f2)
            def f3():
                fin3(k, FA, H['g'], acc[0], aa0, so, 0, O['oaf'].replace('_', ''), True)
                for j in range(1, 32, 2): k(f"v_xor_b32 {G1[j]}, 0x80008000, {G1[j]}")
            cap('fin', f3)
    def fill3(s, u, q):
        if s == VS and f3a.left(): f3a.emit(2)
        if s == max(VS, 0) and u == 1 and q == 15: f3a.flush()
        if s > VS and q >= 8: f3b.emit(2)
        if q == 15 and u == 0 and 3 <= s < 3 + nlate: CL.drain()
        if q == 15 and u == 1 and 1 <= s < 1 + nlate: CL.issue((LX, LT2)[s & 1])
        if s == 8 and u == 0:
            if q == 0:
                def f():
                    for mm in range(2):
                        for ib in range(2): H['xw'] = k(f"ds_write_b128 {ad}, {aa0(mm,ib)} offset:{1024*(2*mm+ib)}")
                cap('xw', f)
            if q >= 8 and q & 1: S['xw'].emit(1)
        if s == 9 and u == 0 and q >= 8: S['add'].emit(O.get('yr') or 1)
        if s == 9 and u == 0 and q == 15: S['add'].flush()
        if 'y' in S and (s, u) >= (YS, 1) and q >= 8: S['y'].emit(O.get('yr') or -(-7 // O['yl']))
        if 'yr' in S:
            if S['yr'].left(): S['yr'].emit(3)
            elif S['m'].left():
                if (s, u) >= (YB + 1, 0) and q >= 8: S['m'].emit(2)
            elif (s, u) >= (max(YB + 1, O['fs']), 1) and (q >= 8 or s >= 13): S['fin'].emit(O['fr'])
        if u == 1 and q == 0 and (s % 4 == 3 or PROFSEL): pf(f"b{s}")
    g3.main(dq, fill3, pre_bar3, post_bar3)
    assert CL.nd == 16
    print("fin(a) left after main:", S['fin'].left())
    for n in ('yr', 'm', 'fin'): S[n].flush()
    pf("main3")
    ml = ph3_list(G1, H['Y'], aa0)
    wr = [f"ds_write_b128 {ad}, {acc[1].q(4*mm+2+ib)} offset:{1024*(2*mm+ib)}" for ib in range(2) for mm in range(2)]
    for j in range(8):
        k(ml.pop(0))
        if j & 1 == 0: k(wr.pop(0))
    k(f"v_xor_b32 {ad}, 0x1000, {ad}\ns_waitcnt lgkmcnt(0)\ns_barrier")
    pf("xbar")
    rd = [f"ds_read_b128 {acc[1].q(4*mm+2+ib)}, {ad} offset:{1024*(2*mm+ib)}" for ib in range(2) for mm in range(2)]
    while ml:
        k(ml.pop(0))
        if rd: k(rd.pop(0))
    fin3(k, FA, H['g'], acc[1], aa0, so, 1, O['obf'].replace('_', ''), False)
    pf("epi")
    k.v.free(g3.fr)
    pf.done()
    end(k)
    return k, L['LDS']

def tail32(k, I, O, P, H, L):
    g3, CL, pf, sf, sg, sv2, V2, vpc, vfc, one, FV, cd, LX, LT2, nlate = [L[n] for n in 'g3 CL pf sf sg sv2 V2 vpc vfc one FV cd LX LT2 nlate'.split()]
    dq = [(s, i) for s in range(16) for i in range(8)]
    acts = [lambda: g3.dma(*dq.pop(0))] * (8 * O['pre3'])
    g3.catch = O['pre3'] == 2
    with k.capture() as cg: G1 = gen_G32(k, I)
    if O['gseam']:
        for _ in range(2): acts.pop(0)()
        cg.weave(acts, O['pg'])
    while acts: acts.pop(0)()
    so = srd(k, P['out'], SZ['out'])
    with k.capture() as f3a:
        if O['v2s'] >= 0: H['v2'] = v2_store(k, *V2, sv2)
    with k.capture() as f3b:
        FA = final_addr32(k, I, LT2, LX)
    pf("pref")
    p4 = Poll(k, sf, vpc, 1, 1, FV, sleep=16)
    VS = O['v2s']; PV = O['pv']; VF = O.get('vf', VS + 3); PF = PV + O['pd']; YS = PF + O['yd']; YB = YS + O['yl']
    acc = g3.acc; ad = FA['ad']; aa = acc[0].q(1, 16); FR = O['rate']
    S = {}; XS = O['xs']; assert 8 <= XS and XS + 1 <= YB
    def addbf(y, p):
        for j in range(8):
            k(f"""v_lshlrev_b32 {p[8+j]}, 16, {p[j]}
            v_and_b32 {p[j]}, 0xffff0000, {p[j]}
            v_add_f32 {y[2*j]}, {y[2*j]}, {p[8+j]}
            v_add_f32 {y[2*j+1]}, {y[2*j+1]}, {p[j]}""")
    def cap(name, fn):
        with k.capture() as S[name]: fn()
    def pre_bar3(s):
        if s == VF: k.wait(H['v2'])
        if s == PF: f3b.flush(); cg.flush(); p4.finish()
        if s == XS: S['xw'].flush(); k.wait(H['xw'])
        if s == YB: S['vl'].flush(); S['y'].flush(); k.wait(H['yw'])
    def post_bar3(s):
        if O['touch'] and s == 4: code_touch(k, I, 1, 16384, cd)
        if s == VF: wave0_store(k, I, f"buffer_store_dword {one}, {vfc}, {sf}, {FV} offen {SC}")
        if s == PV: p4.issue()
        if s == PF:
            def f0():
                H['L2'] = v2_issue2(k, I, sv2)
            cap('vl', f0)
            S['vl'].emit(6)
            def f(): H['yw'] = y_stage2(k, I, H['L2'], LX, O['scal'])
            cap('y', f)
        if s == XS:
            k(f"v_xor_b32 {ad}, 0x1000, {ad}")
            for j in range(2): k(f"ds_read_b128 {aa.q(j)}, {ad} offset:{1024*j}")
            k(f"v_xor_b32 {ad}, 0x1000, {ad}")
            def f2(): addbf(acc[0].q(0, 16), aa)
            cap('add', f2)
        if s == YB:
            H['Y'] = k.v.allocq(32); H['g'] = k.v.allocq(16)
            def f():
                for r in y_reads32(FA, H['Y']): k(r)
            cap('yr', f)
            def f2():
                for m in ph3_list32(G1, H['Y'], aa): k(m)
            cap('m', f2)
            def f3():
                k.wait(H['gl']); g_read32(k, FA, H['g'], 0)
                for j in range(1, 32, 2): k(f"v_xor_b32 {G1[j]}, 0x80008000, {G1[j]}")
                fin32(k, FA, H['g'], acc[0].q(0, 16), None, aa, so, 0, O['oaf'].replace('_', ''), O['scal'])
                g_read32(k, FA, H['g'], 1)
            cap('fin', f3)
    def fill3(s, u, q):
        if s == VS and f3a.left(): f3a.emit(4)
        if s == max(VS, 0) and u == 1 and q == 7: f3a.flush()
        if s > VS:
            if f3b.left(): f3b.emit(FR)
            else: cg.emit(FR)
        if q == 7 and u == 0 and 3 <= s < 3 + nlate: CL.drain()
        if q == 7 and u == 1 and 1 <= s < 1 + nlate: CL.issue((LX, LT2)[s & 1])
        if s == 7 and u == 0 and q == 7: H['gl'] = g_dma32(k, I, FA, sg, LT2 + 2048)
        if s == XS and u == 0:
            if q == 0:
                def f():
                    for j in range(8): k(f"v_cvt_pk_bf16_f32 {aa[j]}, {aa[2*j]}, {aa[2*j+1]}")
                    for j in range(2): H['xw'] = k(f"ds_write_b128 {ad}, {aa.q(j)} offset:{1024*j}")
                cap('xw', f)
            if q >= 2: S['xw'].emit(2)
        if s == XS + 1: S['add'].emit(2)
        if s == XS + 1 and u == 1 and q == 7: S['add'].flush()
        if 'vl' in S and q == 7: S['vl'].emit(O['vr'])
        if 'y' in S and (s, u) >= (YS, 1):
            assert S['vl'].left() == 0
            S['y'].emit(O.get('yr') or -(-(10 if O['scal'] else 7) // O['yl']))
        if 'yr' in S:
            if S['yr'].left(): S['yr'].emit(O['yrr'])
            elif S['m'].left():
                if (s, u) >= (YB + 1, 1): S['m'].emit(1)
            elif (s, u) >= (max(YB + 2, O['fs']), 0): S['fin'].emit(O['fr'])
        if u == 1 and q == 0 and (s % 4 == 3 or PROFSEL): pf(f"b{s}")
    g3.main(dq, fill3, pre_bar3, post_bar3)
    assert CL.nd == 16
    print("fin(a) left after main:", S['fin'].left())
    for n in ('yr', 'm', 'fin'): S[n].flush()
    pf("main3")
    ml = ph3_list32(G1, H['Y'], aa); snt = acc[1].q(1, 16)
    y = acc[1].q(0, 16)
    if O['xb']:
        for j in range(2):
            k(ml.pop(0))
            for x in range(4 * j, 4 * j + 4): k(f"v_cvt_pk_bf16_f32 {snt[x]}, {snt[2*x]}, {snt[2*x+1]}")
            k(f"ds_write_b128 {ad}, {snt.q(j)} offset:{1024*j}")
        k(ml.pop(0)); k(ml.pop(0))
        k(f"v_xor_b32 {ad}, 0x1000, {ad}\ns_waitcnt lgkmcnt(0)\ns_barrier")
        pf("xbar")
        k(ml.pop(0))
        for j in range(2): k(f"ds_read_b128 {snt.q(j)}, {ad} offset:{1024*j}")
        while ml: k(ml.pop(0))
        addbf(y, snt)
    else:
        k(f"v_subrev_u32 {ad}, {LT2}, {ad}")
        for j in range(4): k(ml.pop(0)); k(f"ds_write_b128 {ad}, {snt.q(j)} offset:{1024*j}")
        k(ml.pop(0))
        k(f"v_xor_b32 {ad}, 0x1000, {ad}\ns_waitcnt lgkmcnt(0)\ns_barrier")
        pf("xbar")
        k(ml.pop(0))
        for j in range(4): k(f"ds_read_b128 {snt.q(j)}, {ad} offset:{1024*j}")
        while ml: k(ml.pop(0))
        for x in range(0, 16, 2): k(f"v_pk_add_f32 {y[x:x+2]}, {y[x:x+2]}, {snt[x:x+2]}")
    fin32(k, FA, H['g'], y, None, aa, so, 1, O['obf'].replace('_', ''))
    pf("epi")
    k.v.free(g3.fr)
    pf.done()
    end(k)
    return k, L['LDS']

def tailS(k, I, O, P, H, L):
    g3, CL, pf, sf, sg, sv2, V2, vpc, vfc, one, FV, FP, cd, LX, LT2, nlate = [L[n] for n in 'g3 CL pf sf sg sv2 V2 vpc vfc one FV FP cd LX LT2 nlate'.split()]
    assert O['v2s'] < 0
    hq = [(s, i) for s in range(16) for i in range(4)]
    cslots = [L['B2'], L['B3_'], LT2]
    def cnext():
        if CL.n & 3 == 0: H['cs'] = cslots.pop(0)
        CL.issue1(H['cs'])
    acts = [lambda: g3.dma(*hq.pop(0))] * (4 * O['pre3']) + [cnext] * (4 * min(nlate, O['cpre']))
    with k.capture() as cg:
        G1 = H.get('G1') or gen_GS(k, I)
    for _ in range(2): acts.pop(0)()
    cg.weave(acts, O['pg'])
    while acts: acts.pop(0)()
    if O['v2s'] == -2: H['v2'] = v2_store(k, *V2, sv2)
    with k.capture() as f3b:
        so = srd(k, P['out'], SZ['out']); spx = srd(k, P['ws'], 8 << 20, WS_PX)
        A = addrS(k, I, LX)
        spec = k.s.alloc(); vfl = k.v.alloc()
        k(f"s_lshr_b32 {spec}, {I['tb']}, 3\ns_or_b32 {spec}, {spec}, {I['w']}\ns_and_b32 {spec}, {spec}, 1\nv_lshlrev_b32 {vfl}, 2, {I['n']}")
    pf("pref")
    p4 = Poll(k, sf, vpc, 1, 1, FV, sleep=16)
    PV = O['pv']; VF = O['vf']; PF = PV + O['pd']; YS = PF + O['yd']; YB = YS + O['yl']; D = O['D']
    MS = max(YB + 1, 8); FL = O['fl']; PL = O['pl']
    acc = g3.acc; S = {}; BF = O['bf']
    def cap(name, fn):
        with k.capture() as S[name]: fn()
    def gload():
        for ib in range(4): k(f"buffer_load_dwordx4 {H['g'].q(ib)}, {A['vg']}, {sg}, {A['sg']} offen offset:{256*ib} {SC}")
    def mix(y, aa, b):
        g = H['g'].q(b & 3)
        for x in (0, 2): k(f"v_pk_add_f32 {aa.q(b)[x:x+2]}, {aa.q(b)[x:x+2]}, {y.q(b)[x:x+2]} neg_lo:[0,1] neg_hi:[0,1]")
        for x in (0, 2): k(f"v_pk_fma_f32 {y.q(b)[x:x+2]}, {g[x:x+2]}, {aa.q(b)[x:x+2]}, {y.q(b)[x:x+2]}")
    def vm(s, u, x):
        if x == 0:
            late_c = CL.n < 64 and cslots
            H['mode'] = 'c' if (late_c and u == 1) else ('h' if hq and hq[0][0] <= s + D - (1 - u) * 0 and hq[0][0] < s + u + g3.NR else None)
        if H['mode'] == 'c': cnext()
        if H['mode'] == 'h': g3.dma(*hq.pop(0))
    def pre_bar3(s):
        if s == VF: k.wait(H['v2'])
        if s == PF: f3b.flush(); p4.finish()
        if s == YB: S['y'].flush(); k.wait(H['yw'])
    def post_bar3(s):
        if O['touch'] and s == 4: code_touch(k, I, 1, 16384, cd)
        if s == VF: wave0_store(k, I, f"buffer_store_dword {one}, {vfc}, {sf}, {FV} offen {SC}")
        if s == PV: p4.issue()
        if s == PF:
            L2 = k.v.allocq(16)
            for j in range(4): k(f"buffer_load_dwordx4 {L2.q(j)}, {A['l16']}, {sv2}, {A['sv']} offen offset:{1024*j} {SC}")
            def f(): H['yw'] = y_stage2(k, I, L2, LX, False, spec)
            cap('y', f)
        if s == YB:
            H['Y'] = k.v.allocq(16); H['aa'] = aa = k.v.allocq(32); H['g'] = k.v.allocq(16); gload()
            for r in y_readsS(A, H['Y']): k(r)
            def f2():
                for m in ph3_listS(G1, H['Y'], aa): k(m)
            cap('m', f2)
            def f3():
                for j in range(1, 32, 2): k(f"v_xor_b32 {G1[j]}, 0x80008000, {G1[j]}")
                for b in range(8):
                    mix(acc[0], aa, b)
                    if BF:
                        for x in range(2): k(f"v_cvt_pk_bf16_f32 {acc[0][2*b+x]}, {acc[0][4*b+2*x]}, {acc[0][4*b+2*x+1]}")
                k(f"s_xor_b32 {A['sg']}, {A['sg']}, 1024")
            cap('fin', f3)
            def st1(b):
                if b == 4: k(f"s_add_u32 {A['px']}, {A['px']}, 4096")
                H['ps'] = k(f"buffer_store_dwordx4 {acc[0].q(b)}, {A['l16']}, {spx}, {A['px']} offen offset:{1024*(b&3)} {SC}")
            H['sq'] = [lambda b=b: st1(b) for b in range(4 if BF else 8)]
            def f4():
                for m in ph3_listS(G1, H['Y'], aa): k(m)
            cap('m2', f4)
        if s == FL:
            assert not H['sq'] and not S['fin'].left()
            k.wait(H['ps'])
            k(f"s_xor_b32 {A['px']}, {A['px']}, {8 << 15}")
            k(f"s_mov_b64 exec, 0xffff\nbuffer_store_dword {one}, {vfl}, {sf}, {FP} offen {SC}\ns_mov_b64 exec, -1\ns_xor_b32 {FP}, {FP}, {8 << 9}")
            H['p5'] = Poll(k, sf, vfl, 1, 1, FP, sleep=3, mask=1)
            gload()
    def pload():
        H['p5'].finish()
        def ld1(b):
            if b == 0 and not BF: k(f"s_sub_u32 {A['px']}, {A['px']}, 4096")
            k(f"buffer_load_dwordx4 {acc[0].q(b ^ (2 if BF else 4))}, {A['l16']}, {spx}, {A['px']} offen offset:{1024*(b&3)} {SC}")
        H['lq'] = [lambda b=b: ld1(b) for b in ((2, 0, 3, 1) if BF else (4, 5, 6, 7, 0, 1, 2, 3))]
    def fill3(s, u, q):
        if q >= 8: f3b.emit(2)
        if q == 15 and u == 0 and CL.nd < 16 and CL.nd < CL.n // 4 and (CL.nd < CL.n // 4 - O['clag'] or CL.n == 64 and s >= O.get('cend', 0) or CL.nd <= 2 * s + 3):
            cslots.append(CL.drain())
        if 'y' in S and (s, u) >= (YS, 1) and q >= 8: S['y'].emit(1000)
        if 'm' in S:
            if S['m'].left():
                if (s, u) >= (YB + 1, 0) and q >= 8: S['m'].emit(2)
            elif S['fin'].left():
                if (s, u) >= (MS, 1) and q >= 8: S['fin'].emit(O['fr'])
            elif (s, u) >= (O['m2s'], 0) and q >= 8: S['m2'].emit(2)
        if H.get('sq') and not S['fin'].left() and q % O['sr'] == O['sr'] - 1: H['sq'].pop(0)()
        if H.get('lq') and q % O['lr'] == O['lr'] - 1: H['lq'].pop(0)()
        if 2 * s + u == PL and q == 8: H['p5'].issue()
        if 2 * s + u == PL + O['pld'] and q == 8: pload()
        if u == 1 and q == 0 and (s % 4 == 3 or PROFSEL): pf(f"b{s}")
    g3.main(vm, fill3, pre_bar3, post_bar3)
    assert CL.nd == 16 and not hq
    for n in ('m', 'fin', 'm2'): S[n].flush()
    pf("main3")
    if PL + O['pld'] > 31: pload()
    while H['lq']: H['lq'].pop(0)()
    y = acc[1]; aa = H['aa']; va, so_ = A['va'], A['so']
    for ib in range(4):
        for mm in range(2):
            b = 4 * mm + ib
            mix(y, aa, b)
            for x in (0, 2):
                p_ = acc[0].q(b)[x:x+2]
                if BF:
                    p_ = acc[0].q(4 + (b & 3))[x:x+2]; src = acc[0][2 * b + x // 2]
                    k(f"v_lshlrev_b32 {p_[0]}, 16, {src}\nv_and_b32 {p_[1]}, 0xffff0000, {src}")
                k(f"v_pk_add_f32 {y.q(b)[x:x+2]}, {y.q(b)[x:x+2]}, {p_}")
        for r in range(4):
            for mm in range(2): k(f"buffer_store_dword {y.q(4*mm+ib)[r]}, {va[mm]}, {so}, {so_} offen {O['obf'].replace('_', '')}")
            if (ib, r) != (3, 3): k(f"s_add_u32 {so_}, {so_}, {(1<<16) if r < 3 else (1<<20) - 3*(1<<16)}")
    pf("epi")
    k.v.free(g3.fr)
    pf.done()
    end(k)
    return k, L['LDS']

def tailT(k, I, O, P, H, L):
    g3, CL, pf, sf, sg, sv2, V2, vpc, vfc, one, FV, cd, LX, LT2, nlate = [L[n] for n in 'g3 CL pf sf sg sv2 V2 vpc vfc one FV cd LX LT2 nlate'.split()]
    g3.split = bool(O['eo'])
    hq = [(s, i) for s in range(16) for i in range(4)]
    cslots = [L['B2'], L['B3_'], LT2]
    def cnext():
        if CL.n & 3 == 0: H['cs'] = cslots.pop(0)
        CL.issue1(H['cs'])
    acts = [lambda: g3.dma(*hq.pop(0))] * (4 * O['pre3']) + [cnext] * (4 * min(nlate, O['cpre']))
    with k.capture() as cg:
        G1 = H.get('G1') or gen_GS(k, I)
    for _ in range(2): acts.pop(0)()
    cg.weave(acts, O['pg'])
    while acts: acts.pop(0)()
    if O['v2s'] == -2: H['v2'] = v2_store(k, *V2, sv2)
    with k.capture() as f3b:
        so = srd(k, P['out'], SZ['out']); spx = srd(k, P['ws'], 256 * V1_STR, WS_V1)
        A = addrS(k, I, LX)
        spec = k.s.alloc()
        k(f"s_lshr_b32 {spec}, {I['tb']}, 3\ns_or_b32 {spec}, {spec}, {I['w']}\ns_and_b32 {spec}, {spec}, 1\ns_lshr_b32 {A['px']}, {A['px']}, 1")
        psel = k.s.alloc(); k(f"s_mov_b32 {psel}, 0x07060302")
    with k.capture() as f3a:
        if O['v2s'] >= 0: H['v2'] = v2_store(k, *V2, sv2)
    pf("pref")
    p4 = Poll(k, sf, vpc, 1, 1, FV, sleep=16)
    PV = O['pv']; VF = O['vf']; PF = PV + O['pd']; YS = PF + O['yd']; YB = YS + O['yl']; D = O['D']
    MS = max(YB + 1, 8); PL = O['pl']
    if O['bars']:
        g3.bars = [-1] + [int(c, 16) for c in str(O['bars'])[1:]]; assert all(x in g3.bars for x in (VF, PF, YB))
    acc = g3.acc; S = {}; va, so_ = A['va'], A['so']
    PK, UN = acc[0][0:16], acc[0][16:32]
    def cap(name, fn):
        with k.capture() as S[name]: fn()
    def gload():
        for ib in range(4): k(f"buffer_load_dwordx4 {H['g'].q(ib)}, {A['vg']}, {sg}, {A['sg']} offen offset:{256*ib} {SC}")
    def mix(y, aa, b):
        g = H['g'].q(b & 3)
        for x in (0, 2): k(f"v_pk_add_f32 {aa.q(b)[x:x+2]}, {aa.q(b)[x:x+2]}, {y.q(b)[x:x+2]} neg_lo:[0,1] neg_hi:[0,1]")
        for x in (0, 2): k(f"v_pk_fma_f32 {y.q(b)[x:x+2]}, {g[x:x+2]}, {aa.q(b)[x:x+2]}, {y.q(b)[x:x+2]}")
    def ld1(j): return k(f"buffer_load_dwordx4 {PK.q(j ^ 2)}, {A['l16']}, {spx}, {A['px']} offen offset:{1024*j} {SC}")
    def check():
        m = UN[0]
        def chk():
            k(f"v_and_b32 {m}, 1, {PK[0]}")
            for j in range(1, 15, 2): k(f"v_bitop3_b32 {m}, {m}, {PK[j]}, {PK[j+1]} bitop3:0x80")
            k(f"v_and_b32 {m}, {m}, {PK[15]}\nv_cmp_eq_u32 vcc, 0, {m}")
        k.wait(H['ll']); chk()
        with k.skip_if("s_cbranch_vccz"):
            cnt = k.s.alloc(); lp, out = k.lab('px'), k.lab('pxout')
            k(f"s_mov_b32 {cnt}, 0\n{lp}:\ns_sleep 2")
            for j in range(4): ld1(j)
            k("s_waitcnt vmcnt(0)"); chk()
            k(f"s_cbranch_vccz {out}\ns_add_u32 {cnt}, {cnt}, 1\ns_cmp_lt_u32 {cnt}, {1<<20}\ns_cbranch_scc1 {lp}\n{out}:")
            k.s.free(cnt)
    def fin(ib, flags):
        y, aa = acc[1], H['aa']
        for mm in range(2):
            b = 4 * mm + ib
            mix(y, aa, b)
            for x in (0, 2):
                p_ = UN.q(2 * (ib & 1) + mm)[x:x+2]; src = PK[2 * b + x // 2]
                k(f"v_lshlrev_b32 {p_[0]}, 16, {src}\nv_and_b32 {p_[1]}, 0xffff0000, {src}\nv_pk_add_f32 {y.q(b)[x:x+2]}, {y.q(b)[x:x+2]}, {p_}")
        for r in range(4):
            for mm in range(2): k(f"buffer_store_dword {y.q(4*mm+ib)[r]}, {va[mm]}, {so}, {so_} offen {flags}")
            if (ib, r) != (3, 3): k(f"s_add_u32 {so_}, {so_}, {(1<<16) if r < 3 else (1<<20) - 3*(1<<16)}")
    def vm(s, u, x):
        if x == 0:
            late_c = CL.n < 64 and cslots
            H['mode'] = 'c' if (late_c and u == 1) else ('h' if hq and hq[0][0] <= s + D and hq[0][0] <= g3.freed + g3.NR else None)
        if H['mode'] == 'c': cnext()
        if H['mode'] == 'h': g3.dma(*hq.pop(0))
    def pre_bar3(s):
        if s == VF and not O.get('nofv'): f3a.flush(); k.wait(H['v2'])
        if s == PF: f3b.flush(); f3a.flush()
        if s == PF and not O.get('nofv'): p4.finish()
        if s == YB: S['y'].flush(); k.wait(H['yw'])
    def post_bar3(s):
        if O['touch'] and s == 4: code_touch(k, I, 1, 16384, cd)
        if s == VF and not O.get('nofv'): wave0_store(k, I, f"buffer_store_dword {one}, {vfc}, {sf}, {FV} offen {SC}")
        if s == PV and not O.get('nofv'): p4.issue()
        if s == PF:
            L2 = k.v.allocq(16)
            for j in range(4): k(f"buffer_load_dwordx4 {L2.q(j)}, {A['l16']}, {sv2}, {A['sv']} offen offset:{1024*j} {SC}")
            def f(): H['yw'] = y_stage2(k, I, L2, LX, False, spec)
            cap('y', f)
        if s == YB:
            H['Y'] = k.v.allocq(16); H['aa'] = aa = k.v.allocq(32); H['g'] = k.v.allocq(16); gload()
            for r in y_readsS(A, H['Y']): k(r)
            def f2():
                for m in ph3_listS(G1, H['Y'], aa): k(m)
            cap('m', f2)
            def f3():
                for j in range(1, 32, 2): k(f"v_xor_b32 {G1[j]}, 0x80008000, {G1[j]}")
                for b in range(8):
                    mix(acc[0], aa, b)
                    for x in range(2): k(f"v_perm_b32 {PK[2*b+x]}, {acc[0][4*b+2*x+1]}, {acc[0][4*b+2*x]}, {psel}")
                    for x in range(2): k(f"v_or_b32 {PK[2*b+x]}, 0x10001, {PK[2*b+x]}")
                    if b & 1: k(f"buffer_store_dwordx4 {PK.q(b>>1)}, {A['l16']}, {spx}, {A['px']} offen offset:{1024*(b>>1)} {SC}")
                k(f"s_xor_b32 {A['sg']}, {A['sg']}, 1024\ns_xor_b32 {A['px']}, {A['px']}, {8 << 14}")
            cap('fin', f3)
            cap('m2', f2)
    def fill3(s, u, q):
        hs = 2 * s + u
        if hs >= O['v2s'] and q % O['v2r'] == 1: f3a.emit(2)
        if q >= 8: f3b.emit(2)
        if q == 15 and u == 0 and CL.nd < 16 and CL.nd < CL.n // 4 and (CL.nd < CL.n // 4 - O['clag'] or CL.n == 64 or CL.nd <= 2 * s + 3):
            cslots.append(CL.drain())
        if 'y' in S and (s, u) >= (YS, 1) and q >= 8: S['y'].emit(1000)
        if 'm' in S:
            if S['m'].left():
                if (s, u) >= (YB + 1, 0) and q >= 8: S['m'].emit(2)
            elif S['fin'].left():
                if (s, u) >= (MS, 1) and q >= 8: S['fin'].emit(O['fr'])
            elif (s, u) >= (O['m2s'], 0) and q >= 8: S['m2'].emit(2)
        if hs == PL - 1 and q == 15: assert not S['fin'].left(); gload()
        if hs == PL and q >= 9 and q & 1: H['ll'] = ld1((q - 9) // 2)
        if hs == PL + O['pld'] and q == 8: check()
        if O['eo'] and hs == O['es'] and q == 8:
            assert hs >= 24 and hs >= PL + O['pld'] and not S['m2'].left()
            cap('eo', lambda: (fin(0, 'sc1'), fin(1, 'sc1')))
        if 'eo' in S:
            g_ = S['eo'].groups
            if g_ and not any(i.cls == 'vm' for i in g_[0]):
                while g_ and not any(i.cls == 'vm' for i in g_[0]): S['eo'].emit(1)
            elif q % O['er'] == 0: S['eo'].emit(1)
        if u == 1 and q == 0 and (s % 4 == 3 or PROFSEL): pf(f"b{s}")
    g3.main(vm, fill3, pre_bar3, post_bar3)
    assert CL.nd == 16 and not hq
    for n in S: S[n].flush()
    pf("main3")
    for ib in range(2 if O['eo'] else 0, 4): fin(ib, O['obf'].replace('_', ''))
    pf("epi")
    k.v.free(g3.fr)
    pf.done()
    end(k)
    return k, L['LDS']

def tailU(k, I, O, P, H, L):
    g3, CL, pf, sf, sg, sv2, V2, vpc, vfc, one, FV, cd, LX, LT2, nlate = [L[n] for n in 'g3 CL pf sf sg sv2 V2 vpc vfc one FV cd LX LT2 nlate'.split()]
    hq = [(s, i) for s in range(16) for i in range(4)]
    cslots = [L['B2'], L['B3_']]; VS = O['v2s']
    def cnext():
        if CL.n & 3 == 0: H['cs'] = cslots.pop(0)
        CL.issue1(H['cs'])
    acts = [lambda: g3.dma(*hq.pop(0))] * (4 * O['pre3']) + [cnext] * (4 * min(nlate, O['cpre']))
    with k.capture() as f3b:
        so = srd(k, P['out'], SZ['out']); spx = srd(k, P['ws'], 256 * V1_STR, WS_V1)
        A = addrU(k, I, LX, LT2)
        spec = k.s.alloc(); psel = k.s.alloc()
        k(f"s_lshr_b32 {spec}, {I['tb']}, 3\ns_or_b32 {spec}, {spec}, {I['w']}\ns_and_b32 {spec}, {spec}, 1\ns_mov_b32 {psel}, 0x07060302")
        G1 = gen_GU(k, I)
    for _ in range(2): acts.pop(0)()
    while acts: f3b.run(O['pg']); acts.pop(0)()
    f3b.run(O['gx'])
    with k.capture() as f3a:
        if VS >= 0: H['v2'] = v2_store(k, *V2, sv2)
    pf("pref")
    p4 = Poll(k, sf, vpc, 1, 1, FV, sleep=16)
    PV = O['pv']; VF = O['vf']; PF = PV + O['pd']; YS = PF + O['yd']; YB = YS + O['yl']; D = O['D']
    MS = max(YB + 1, 8); PL = O['pl']; R_ = O['rate']
    acc = g3.acc; S = {}; va, so_ = A['va'], A['so']
    PK, UN = acc[0].q(0, 16), acc[0].q(1, 16)
    def cap(name, fn):
        with k.capture() as S[name]: fn()
    def gread(p, rb):
        for j in range(4): k(f"ds_read_b128 {H['g'].q(j)}, {A['vg']} offset:{256*p + 128*rb + 32*j}")
    def mix(y, aa, r, scal):
        g = H['g']
        if scal:
            for x in (r, r + 1): k(f"v_sub_f32 {aa[x]}, {aa[x]}, {y[x]}")
            for x in (r, r + 1): k(f"v_fmac_f32 {y[x]}, {g[x]}, {aa[x]}")
        else: k(f"v_pk_add_f32 {aa[r:r+2]}, {aa[r:r+2]}, {y[r:r+2]} neg_lo:[0,1] neg_hi:[0,1]\nv_pk_fma_f32 {y[r:r+2]}, {g[r:r+2]}, {aa[r:r+2]}, {y[r:r+2]}")
    def ld1(j): return k(f"buffer_load_dwordx4 {PK.q(j)}, {A['l16']}, {spx}, {A['px']} offen offset:{1024*j} {SC}")
    def check():
        m = UN[0]
        def chk():
            k(f"v_and_b32 {m}, 1, {PK[0]}")
            for j in range(1, 15, 2): k(f"v_bitop3_b32 {m}, {m}, {PK[j]}, {PK[j+1]} bitop3:0x80")
            k(f"v_and_b32 {m}, {m}, {PK[15]}\nv_cmp_eq_u32 vcc, 0, {m}")
        k.wait(H['ll']); chk()
        with k.skip_if("s_cbranch_vccz"):
            cnt = k.s.alloc(); lp, out = k.lab('px'), k.lab('pxout')
            k(f"s_mov_b32 {cnt}, 0\n{lp}:\ns_sleep 2")
            for j in range(4): ld1(j)
            k("s_waitcnt vmcnt(0)"); chk()
            k(f"s_cbranch_vccz {out}\ns_add_u32 {cnt}, {cnt}, 1\ns_cmp_lt_u32 {cnt}, {1<<20}\ns_cbranch_scc1 {lp}\n{out}:")
            k.s.free(cnt)
    def unpack(rb):
        for r in range(0, 16, 2):
            src = PK[8 * rb + r // 2]
            k(f"v_lshlrev_b32 {UN[r]}, 16, {src}\nv_and_b32 {UN[r+1]}, 0xffff0000, {src}")
    def fin(rb, flags, scal):
        y, aa = acc[1].q(rb, 16), H['aa'].q(rb, 16)
        for r in range(0, 16, 2):
            mix(y, aa, r, scal)
            if scal:
                for x in (r, r + 1): k(f"v_add_f32 {y[x]}, {y[x]}, {UN[x]}")
            else: k(f"v_pk_add_f32 {y[r:r+2]}, {y[r:r+2]}, {UN[r:r+2]}")
            for x in (r, r + 1):
                k(f"buffer_store_dword {y[x]}, {va}, {so}, {so_} offen {flags}")
                if (rb, x) != (1, 15): k(f"s_add_u32 {so_}, {so_}, {(1 if x & 3 < 3 else 5) << 16}")
    def vm(s, u, x):
        if x == 0:
            late_c = CL.n < 64 and cslots
            H['mode'] = 'c' if (late_c and u == 1) else ('h' if hq and hq[0][0] <= s + D and hq[0][0] < s + u + g3.NR else None)
        if H['mode'] == 'c': cnext()
        if H['mode'] == 'h': g3.dma(*hq.pop(0))
    def pre_bar3(s):
        if s == VF: f3a.flush(); k.wait(H['v2'])
        if s == PF: f3b.flush(); p4.finish()
        if s == YB: S['y'].flush(); k.wait(H['yw'])
    def post_bar3(s):
        if O['touch'] and s == 4: code_touch(k, I, 1, 16384, cd)
        if s == VF: wave0_store(k, I, f"buffer_store_dword {one}, {vfc}, {sf}, {FV} offen {SC}")
        if s == PV: p4.issue()
        if s == PF:
            L2 = k.v.allocq(16)
            for j in range(4): k(f"buffer_load_dwordx4 {L2.q(j)}, {A['l16']}, {sv2}, {A['sv']} offen offset:{1024*j} {SC}")
            k(f"""s_lshl_b32 m0, {I['w']}, 12
            s_add_u32 m0, m0, {LT2}
            buffer_load_dword {A['gg']}, {sg}, {A['sg']} offen {SC} lds
            s_xor_b32 {A['sg']}, {A['sg']}, 1024
            s_add_u32 m0, m0, 256""")
            H['gl'] = k(f"buffer_load_dword {A['gg']}, {sg}, {A['sg']} offen {SC} lds")
            k.v.free(A['gg'])
            def f(): H['yw'] = y_stage2(k, I, L2, LX, O['scal'], spec)
            cap('y', f)
        if s == YB:
            H['Y'] = Y = k.v.allocq(16); H['aa'] = aa = k.v.allocq(32, 16); H['g'] = k.v.allocq(16)
            for kap in range(4):
                for h in range(2): k(f"ds_read_b64_tr_b16 {Y[4*kap+2*h:4*kap+2*h+2]}, {A['ay']} offset:{512*kap + 128*h}")
            def f2():
                for kap in range(4):
                    for rb in range(2): k(f"v_mfma_f32_32x32x16_bf16 {aa.q(rb,16)}, {G1.q(4*rb+kap)}, {Y.q(kap)}, {aa.q(rb,16) if kap else 0}")
            cap('m', f2)
            def f3():
                k.wait(H['gl'])
                for rb in range(2):
                    gread(0, rb)
                    for j in range(16 * rb + 1, 16 * rb + 16, 2): k(f"v_xor_b32 {G1[j]}, 0x80008000, {G1[j]}")
                    y = acc[0].q(rb, 16)
                    for r in range(0, 16, 2):
                        mix(y, aa.q(rb, 16), r, O['scal']); o = PK[8 * rb + r // 2]
                        k(f"v_perm_b32 {o}, {y[r+1]}, {y[r]}, {psel}\nv_or_b32 {o}, 0x10001, {o}")
                        if r & 7 == 6: k(f"buffer_store_dwordx4 {PK.q(2*rb + (r>>3))}, {A['l16']}, {spx}, {A['px']} offen offset:{1024*(2*rb + (r>>3))} {SC}")
                k(f"s_xor_b32 {A['px']}, {A['px']}, {8 << 14}")
            cap('fin', f3)
            cap('m2', f2)
    def fill3(s, u, q):
        hs = 2 * s + u
        if s >= VS and f3a.left():
            if q % O['v2r'] == 0: f3a.emit(2)
        f3b.emit(R_)
        if q == 7 and u == 0 and CL.nd < 16 and CL.nd < CL.n // 4 and (CL.nd < CL.n // 4 - O['clag'] or CL.n == 64 or CL.nd <= 2 * s + 3):
            cslots.append(CL.drain())
        if 'y' in S and (s, u) >= (YS, 1): S['y'].emit(O['yr'])
        if 'm' in S:
            if S['m'].left():
                if (s, u) >= (YB + 1, 0): S['m'].emit(1)
            elif S['fin'].left():
                if (s, u) >= (MS, 1): S['fin'].emit(O['fr'])
            elif (s, u) >= (O['m2s'], 0): S['m2'].emit(1)
        if hs == PL and q >= 4: assert not S['fin'].left(); H['ll'] = ld1(q - 4)
        if hs == PL + O['pld'] and q == 4: check()
        if hs == O['es'] and q == 5:
            assert hs >= 24 and hs >= PL + O['pld'] and not S['m2'].left()
            cap('eo', lambda: (gread(1, 0), unpack(0), fin(0, 'sc1', O['scal']), gread(1, 1), unpack(1)))
        if 'eo' in S: S['eo'].emit(O['er'])
        if u == 1 and q == 0 and (s % 4 == 3 or PROFSEL): pf(f"b{s}")
    g3.main(vm, fill3, pre_bar3, post_bar3)
    assert CL.nd == 16 and not hq
    print("eo left", S['eo'].left())
    for n in S: S[n].flush()
    pf("main3")
    fin(1, O['obf'].replace('_', ''), False)
    pf("epi")
    k.v.free(g3.fr)
    pf.done()
    end(k)
    return k, L['LDS']

def write(path, opt={}):
    k, lds = build(opt)
    open(path, "w").write(module(header(), [(k.name, 256, 256, lds)], [k]))
    print(path, k.stats)
    if os.environ.get('SEG'): k.segstats()
    if PROF: json.dump([k.profnames], open(path[:-2] + ".json", "w"))

if __name__ == "__main__":
    opt = {}
    for a in sys.argv[2:]:
        n, v = a.split("="); opt[n] = int(v) if v.lstrip('-').isdigit() else v
    write(sys.argv[1] if len(sys.argv) > 1 else "outf.s", opt)
```

```python
import sys, json, re
from fused import *
from opt1 import *
from b32 import *
from b3s import *

class WDir:
    def __init__(self, k, I, T, swr, swi, lt2):
        self.k, self.I, self.T, self.sw, self.lt2 = k, I, T, (swr, swi), lt2
        self.rows = k.s.alloc(8, 4)
        self.va = k.v.alloc(); self.mw = k.s.alloc(); self.so = k.s.alloc()
        st = k.s.alloc(); R_ = self.rows
        k(f"""s_lshl_b32 {R_[0]}, {I['w']}, 9
        s_add_u32 {R_[0]}, {R_[0]}, {T['ks']}
        s_lshr_b32 {st}, {I['w']}, 1
        s_and_b32 {st}, {st}, {T['sp']}
        s_mul_i32 {st}, {st}, 960
        s_sub_u32 {R_[0]}, {R_[0]}, {st}""")
        for b in range(1, 4): k(f"s_add_u32 {R_[2*b]}, {R_[0]}, {128*b}")
        for b in range(4): k(f"s_sub_u32 {R_[2*b+1]}, 2048, {R_[2*b]}\ns_and_b32 {R_[2*b+1]}, {R_[2*b+1]}, 2047")
        self.spw = k.s.alloc()
        k(f"""s_cmp_eq_u32 {I['w']}, 0
        s_cselect_b32 {self.spw}, {T['sp']}, 0
        s_cmp_eq_u32 {self.spw}, 1
        s_cselect_b32 {R_[1]}, 1024, {R_[1]}""")
        for j in range(8): k(f"s_mul_i32 {R_[j]}, {R_[j]}, 1026")
        k(f"v_lshlrev_b32 {self.va}, 4, {I['l']}\ns_lshl_b32 {self.mw}, {I['w']}, 12")
        k.s.free(st)
        self.n = 0; self.slot = {}; self.ld = None
    def issue1(self, slot):
        k = self.k; b, q = self.n >> 2, self.n & 3
        if q == 0: self.slot[b] = slot
        if q & 1 == 0: k(f"s_and_b32 {self.so}, {self.rows[2*b+(q>>1)]}, -16")
        k(f"s_add_u32 m0, {self.mw}, {self.slot[b] + 1024*q}")
        self.ld = k(f"buffer_load_dwordx4 {self.va}, {self.sw[q&1]}, {self.so} offen lds")
        self.n += 1
    def tail_issue(self):
        k = self.k; self.tc = k.v.allocq(8); ta = k.v.alloc()
        k(f"v_mov_b32 {ta}, {BIG}")
        for j in range(8): k(f"v_writelane_b32 {ta}, {self.rows[j]}, {j}")
        k(f"v_and_b32 {ta}, -16, {ta}")
        k("s_mov_b64 exec, 255")
        for a in range(2): k(f"buffer_load_dwordx4 {self.tc.q(a)}, {ta}, {self.sw[a]}, 0 offen offset:1024")
        k("s_mov_b64 exec, -1")
        k.v.free(ta)
    def tail_write(self):
        k = self.k; ad = k.v.alloc(); st = k.s.alloc()
        k(f"""s_lshl_b32 {st}, {self.I['w']}, 8
        s_add_u32 {st}, {st}, {self.lt2}
        v_lshl_add_u32 {ad}, {self.I['l']}, 11, {st}
        s_mov_b64 exec, 255
        ds_write_b128 {ad}, {self.tc.q(0)}
        ds_write_b128 {ad}, {self.tc.q(1)} offset:1024
        s_mov_b64 exec, -1""")
        k.v.free(ad, self.tc); k.s.free(st, self.so, *self.sw); k.v.free(self.va)
    def prep(self):
        k, I, T = self.k, self.I, self.T
        self.a0, self.a3, self.sg = k.v.alloc(), k.v.alloc(), k.v.alloc(2); self.up = k.s.alloc(2); self.ov = k.s.alloc(2)
        self.d, self.m = k.s.alloc(), k.s.alloc(); t = k.v.alloc(); tb = k.s.alloc(); a0, a3 = self.a0, self.a3
        k(f"""s_and_b32 {self.d}, {self.rows[0]}, 15
        s_and_b32 {self.m}, {self.rows[1]}, 15
        s_add_u32 {self.m}, {self.m}, 2048
        v_lshlrev_b32 {a0}, 9, {I['g']}
        v_lshl_add_u32 {a0}, {I['n']}, 3, {a0}
        s_lshl_b32 {tb}, {T['k1']}, 1
        v_add_u32 {a0}, {tb}, {a0}
        s_add_u32 {tb}, {self.m}, 1664
        v_sub_u32 {t}, {tb}, {a0}
        v_add_u32 {a0}, {self.d}, {a0}
        v_cmp_lt_u32 {self.up}, 1, {I['g']}
        v_cndmask_b32 {a0}, {a0}, {t}, {self.up}
        v_cndmask_b32 {self.sg[0]}, 1.0, -1.0, {self.up}
        v_add_u32 {a3}, 384, {a0}
        v_and_b32 {t}, 1024, {a3}
        v_cmp_ne_u32 {self.ov}, 0, {t}
        s_lshl_b32 {tb}, {I['w']}, 8
        s_add_u32 {tb}, {tb}, {self.lt2 - 1024}
        v_add_u32 {t}, {tb}, {a3}
        v_add_u32 {a0}, {self.mw}, {a0}
        v_add_u32 {a3}, {self.mw}, {a3}
        v_cndmask_b32 {a3}, {a3}, {t}, {self.ov}
        v_sub_u32 {a3}, {a3}, {a0}
        v_cndmask_b32 {self.sg[1]}, 0, -1, {self.ov}""")
        k.v.free(t); k.s.free(tb)
    def gather(self, b, out, second=False):
        k, I, T = self.k, self.I, self.T
        a0, a3 = k.v.alloc(), k.v.alloc()
        k(f"""v_add_u32 {a0}, {self.slot[b]}, {self.a0}
        v_and_b32 {a3}, {hex((4096*b - self.slot[b]) & 0xffffffff)}, {self.sg[1]}
        v_add3_u32 {a3}, {a3}, {self.a3}, {a0}""")
        if b == 0:
            k(f"s_cmp_eq_u32 {self.spw}, 0")
            with k.skip_if("s_cbranch_scc1"):
                if second: k(f"s_mov_b32 exec_hi, 0\nv_add_u32 {a0}, 2048, {a0}\nv_add_u32 {a3}, 2048, {a3}\ns_mov_b64 exec, -1")
                else: k(f"s_mov_b32 exec_lo, 0\nv_subrev_u32 {a0}, 2048, {a0}\nv_subrev_u32 {a3}, 2048, {a3}\ns_mov_b64 exec, -1")
        last = None
        for r in range(4):
            for a in range(2):
                last = k(f"ds_read_u16_d16_hi {out[4*a+r]}, {a0 if r < 3 else a3} offset:{(128*r if r < 3 else 0) + 1024*a}")
        k.v.free(a0, a3)
        return last
    def symm(self, outs):
        k, I = self.k, self.I
        al = k.v.allocq(2 * len(outs), 2); t = k.v.alloc(2); d, m = k.s.alloc(), k.s.alloc()
        for j, (b, out, second) in enumerate(outs):
            k(f"""s_add_u32 {m}, {self.m}, {self.mw}
            s_add_u32 {m}, {m}, {self.slot[b]}
            s_lshl_b32 {d}, {I['w']}, 8
            s_add_u32 {d}, {d}, {self.d}
            s_add_u32 {d}, {d}, {self.lt2 + 4096*b}""")
            if b == 0:
                k(f"s_lshl_b32 vcc_lo, {self.spw}, 11")
                k(f"s_add_u32 {d}, {d}, vcc_lo" if second else f"s_sub_u32 {m}, {m}, vcc_lo")
            k(f"""v_mov_b32 {t[0]}, {m}
            v_mov_b32 {t[1]}, {d}
            v_cndmask_b32 {t[0]}, {t[0]}, {t[1]}, {self.up}
            ds_read_u16_d16_hi {al[2*j]}, {t[0]}
            ds_read_u16_d16_hi {al[2*j+1]}, {t[0]} offset:1024""")
        k("s_waitcnt lgkmcnt(0)")
        for lo, r in ((True, 0), (False, 3)):
            k(f"s_mov_b32 exec_lo, {1 if lo else 0}\ns_mov_b32 exec_hi, {0 if lo else 1}")
            for j, (b, out, second) in enumerate(outs):
                k(f"""v_add_f32 {out[r]}, {out[r]}, {al[2*j]}
                v_sub_f32 {out[4+r]}, {out[4+r]}, {al[2*j+1]}
                v_mul_f32 {out[r]}, 0.5, {out[r]}
                v_mul_f32 {out[4+r]}, 0.5, {out[4+r]}""")
        k("s_mov_b64 exec, -1")
        k.v.free(al, t); k.s.free(d, m)
    def sign(self, out):
        for h in (4, 6): self.k(f"v_pk_mul_f32 {out[h:h+2]}, {self.sg}, {out[h:h+2]} op_sel_hi:[0,1]")
    def done(self):
        self.k.v.free(self.a0, self.a3, self.sg); self.k.s.free(self.rows, self.mw, self.spw, self.up, self.ov, self.d, self.m)

def mf2(k, M, data_is_A, d, o):
    for c in range(2):
        A, B = (d, M.q(c)) if data_is_A else (M.q(c), d)
        k(f"v_mfma_f32_16x16x32_bf16 {o.q(c)}, {A}, {B}, 0")

def ph2_w(k, T, WD):
    Wf = k.v.allocq(32); X = k.v.allocq(8)
    k.wait(WD.ld)
    k(f"s_cmp_eq_u32 {T['sp']}, 0")
    with k.skip_if("s_cbranch_scc1"):
        WD.gather(0, X, True)
    for b in range(4): WD.lastrd = WD.gather(b, Wf.q(b, 8))
    return Wf, X

def ph2_wfix(k, T, WD, Wf, X):
    k.wait(WD.lastrd)
    k(f"s_cmp_lg_u32 {T['k1']}, 0")
    with k.skip_if("s_cbranch_scc1"):
        WD.symm([(b, Wf.q(b, 8), False) for b in range(4)] + [(0, X, True)])
    for b in range(4): WD.sign(Wf.q(b, 8))
    WD.sign(X)
    WD.done()

def ph2_s1(k, I, C, L, lds1):
    D = k.v.allocq(8); acc = k.v.allocq(16); a0, ad = k.v.alloc(), k.v.alloc(); st = k.s.alloc()
    k(f"""v_and_b32 {a0}, 7, {I['n']}
    v_lshlrev_b32 {ad}, 2, {I['g']}
    v_xor_b32 {a0}, {a0}, {ad}
    v_lshlrev_b32 {a0}, 4, {a0}
    v_lshl_or_b32 {a0}, {I['n']}, 10, {a0}
    s_lshl_b32 {st}, {I['w']}, 8
    s_add_u32 {st}, {st}, {lds1}
    v_add_u32 {a0}, {st}, {a0}""")
    def mov(b):
        for j in range(4): k(f"v_mov_b32 {D[4*(b&1)+j]}, {L[4*j+b]}")
    def out(b, o):
        z = acc.q(b & 1, 8)
        k(f"v_xor_b32 {ad}, {16*b}, {a0}")
        for r in range(4): k(f"v_cvt_pk_bf16_f32 {o[r]}, {z[r]}, {z[4+r]}")
        return k(f"ds_write_b128 {ad}, {o}")
    mov(0); mov(1)
    mf2(k, C['sf'], True, D.q(0), acc.q(0, 8)); mf2(k, C['sf'], True, D.q(1), acc.q(1, 8))
    mov(2); mov(3)
    out(0, L.q(3)); mf2(k, C['sf'], True, D.q(0), acc.q(0, 8))
    out(1, L.q(0)); mf2(k, C['sf'], True, D.q(1), acc.q(1, 8))
    out(2, L.q(1)); last = out(3, L.q(2))
    k.v.free(D, acc, a0, ad, L, C.pop('sf')); k.s.free(st)
    return last

def ph2_mid(k, I, T, C, Wf, X, lds1, lds2, mark):
    D = k.v.allocq(16); acc = k.v.allocq(32); tmp = k.v.alloc(4); ad = k.v.alloc(); a0 = k.v.alloc(); st = k.s.alloc(); Xd = k.v.allocq(4)
    z = lambda b, c: acc.q(2 * b + c)
    def stage(M, data_is_A):
        for b in range(4): mf2(k, M, data_is_A, D.q(b), acc.q(b, 8))
    k(f"""s_and_b32 {st}, {I['w']}, 1
    s_lshl_b32 {st}, {st}, 2
    v_xor_b32 {ad}, {st}, {I['l']}
    s_lshl_b32 {st}, {I['w']}, 12
    s_add_u32 {st}, {st}, {lds1}
    v_lshl_add_u32 {a0}, {ad}, 4, {st}""")
    for b in range(4): k(f"v_xor_b32 {ad}, {16*b}, {a0}\nds_read_b128 {D.q(b)}, {ad} offset:{1024*b}")
    mark(0)
    stage(C['m1f'], True)
    def mulstage(w, conj, M, data_is_A):
        for b in range(4):
            wr, wi = w(b)
            cmul_pack(k, z(b, 0), z(b, 1), wr, wi, conj, D.q(b), tmp)
            if b: mf2(k, M, data_is_A, D.q(b - 1), acc.q(b - 1, 8))
        mf2(k, M, data_is_A, D.q(3), acc.q(3, 8))
    mulstage(lambda b: (C['twf'].q(0), C['twf'].q(1)), True, C['m2f'], False)
    mark(1)
    k(f"s_cmp_eq_u32 {T['sp']}, 0")
    with k.skip_if("s_cbranch_scc1"):
        cmul_pack(k, z(0, 0), z(0, 1), X.q(0), X.q(1), False, Xd, tmp)
        mf2(k, C['m2i'], True, Xd.q(0), X)
        cmul_pack(k, X.q(0), X.q(1), C['twi'].q(0), C['twi'].q(1), False, Xd, tmp)
        mf2(k, C['m1i'], False, Xd.q(0), X)
    mulstage(lambda b: (Wf.q(2 * b), Wf.q(2 * b + 1)), False, C['m2i'], True)
    mark(2)
    mulstage(lambda b: (C['twi'].q(0), C['twi'].q(1)), False, C['m1i'], False)
    mark(3)
    k(f"""v_lshlrev_b32 {ad}, 12, {I['g']}
    v_lshl_add_u32 {ad}, {I['n']}, 4, {ad}
    s_lshl_b32 {st}, {I['w']}, 8
    s_add_u32 {st}, {st}, {lds2}
    v_add_u32 {ad}, {st}, {ad}""")
    k(f"s_sub_u32 {st}, {T['sp']}, 1\ns_or_b32 {st}, {st}, {I['w']}\ns_cmp_lg_u32 {st}, 0")
    with k.skip_if("s_cbranch_scc1"):
        for r in range(4): k(f"v_mov_b32 {z(0,1)[r]}, {X[4+r]}")
    for r in range(4):
        for b in range(4): k(f"v_cvt_pk_bf16_f32 {D[4*r+b]}, {z(b,0)[r]}, {z(b,1)[r]}")
        k(f"ds_write_b128 {ad}, {D.q(r)} offset:{1024*r}")
    k.v.free(D, acc, tmp, ad, a0, Xd, X, Wf); k.s.free(st)
    for n in ('m1f', 'twf', 'm2f', 'm2i', 'twi', 'm1i'):
        r = C.pop(n)
        if r[0].kind == 'v': k.v.free(r)

def ph2_s6(k, I, C, lds2):
    D = k.v.allocq(16); acc = k.v.allocq(32); ad = k.v.alloc(); st = k.s.alloc(); so = k.s.alloc()
    k(f"s_lshl_b32 {st}, {I['w']}, 12\ns_add_u32 {st}, {st}, {lds2}\nv_lshl_add_u32 {ad}, {I['l']}, 4, {st}")
    for b in range(4): k(f"ds_read_b128 {D.q(b)}, {ad} offset:{1024*b}")
    k(f"""s_mov_b32 {st}, {64*V2_STR}
    v_mul_lo_u32 {ad}, {I['g']}, {st}
    v_lshl_add_u32 {ad}, {I['n']}, 2, {ad}
    s_mul_i32 {so}, {I['w']}, {4*V2_STR}
    s_lshr_b32 {st}, {I['slot']}, 4
    s_lshl_b32 {st}, {st}, 12
    s_add_u32 {so}, {so}, {st}
    s_lshl_b32 {st}, {I['k1p']}, 10
    s_add_u32 {so}, {so}, {st}
    s_and_b32 {st}, {I['slot']}, 15
    s_lshl_b32 {st}, {st}, 6
    s_add_u32 {so}, {so}, {st}""")
    for b in range(4): mf2(k, C['si'], False, D.q(b), acc.q(b, 8))
    for b in range(4):
        for r in range(4): k(f"v_cvt_pk_bf16_f32 {D[4*b+r]}, {acc[8*b+r]}, {acc[8*b+4+r]}")
    r = C.pop('si')
    if r[0].kind == 'v': k.v.free(r)
    k.v.free(acc); k.s.free(st)
    return D, ad, so

def park(k, C, names, A):
    for j, n in enumerate(names):
        dst = A[8 * j:8 * j + 8]
        for i in range(8): k(f"v_accvgpr_write_b32 {dst[i]}, {C[n][i]}")
        k.v.free(C[n]); C[n] = dst

def v2_issue2(k, I, sv2):
    L = k.v.allocq(16); va = k.v.alloc(); so = k.s.alloc(); st = k.s.alloc()
    k(f"""v_lshlrev_b32 {va}, 4, {I['l']}
    s_lshl_b32 {so}, {I['ta']}, 4
    s_add_u32 {so}, {so}, {I['tb']}
    s_mul_i32 {so}, {so}, {V2_STR}
    s_lshl_b32 {st}, {I['w']}, 12
    s_add_u32 {so}, {so}, {st}""")
    for j in range(4): k(f"buffer_load_dwordx4 {L.q(j)}, {va}, {sv2}, {so} offen offset:{1024*j} {SC}")
    k.v.free(va); k.s.free(so, st)
    return L

pk0 = pk
def y_stage2(k, I, L, ldsY, scal=False, spec=None):
    Z = k.v.allocq(16, 2); T = k.v.allocq(16, 2); O = k.v.allocq(8); ad = k.v.alloc(); st = k.s.alloc()
    z = lambda j, c: Z.q(2 * j + c, 2); t = lambda j, c: T.q(2 * j + c, 2)
    k(f"s_lshl_b32 {st}, {I['w']}, 10\ns_add_u32 {st}, {st}, {ldsY}\nv_lshl_add_u32 {ad}, {I['l']}, 4, {st}")
    last = None
    def pk(k, op, d, x, y):
        if not scal: return pk0(k, op, d, x, y)
        for u in range(2): k(f"v_{'add' if op == '+' else 'sub'}_f32 {d[u]}, {x[u]}, {y[u]}")
    for h in range(2):
        for j in range(4):
            for u in range(2):
                k(f"v_lshlrev_b32 {z(j,0)[u]}, 16, {L[4*j+2*h+u]}\nv_and_b32 {z(j,1)[u]}, 0xffff0000, {L[4*j+2*h+u]}")
        for c in range(2):
            pk(k, '+', t(0, c), z(0, c), z(2, c)); pk(k, '-', t(1, c), z(0, c), z(2, c)); pk(k, '+', t(2, c), z(1, c), z(3, c))
        pk(k, '-', t(3, 0), z(3, 1), z(1, 1)); pk(k, '-', t(3, 1), z(1, 0), z(3, 0))
        k(f"s_cmp_lg_u32 {spec or I['w']}, 0")
        with k.skip_if("s_cbranch_scc1"):
            k("s_mov_b64 exec, 15")
            k(f"""v_pk_add_f32 {t(2,0)}, {z(1,0)}, {z(1,0)}
            v_pk_add_f32 {t(2,1)}, {z(3,0)}, {z(3,0)}
            v_pk_add_f32 {t(3,0)}, {z(1,1)}, {z(1,1)} neg_lo:[1,1] neg_hi:[1,1]
            v_pk_add_f32 {t(3,1)}, {z(3,1)}, {z(3,1)} neg_lo:[1,1] neg_hi:[1,1]""")
            k("s_mov_b64 exec, -1")
        for m in range(4):
            for c in range(2):
                pk(k, '+' if m < 2 else '-', z(m, c), t(m & 1, c), t(2 + (m & 1), c))
                dst = O[2 * m + c] if h == 0 else L[4 * m + 2 * c + 1]
                k(f"v_cvt_pk_bf16_f32 {dst}, {z(m,c)[0]}, {z(m,c)[1]}")
    for m in range(4):
        k(f"v_mov_b32 {L[4*m]}, {O[2*m]}\nv_mov_b32 {L[4*m+2]}, {O[2*m+1]}")
        last = k(f"ds_write_b128 {ad}, {L.q(m)} offset:{4096*m}")
    k.v.free(Z, T, O, ad, L); k.s.free(st)
    return last

def gen_G1(k, I):
    G = k.v.allocq(32)
    f, b, sb, a, c, s = [k.v.alloc() for _ in range(6)]
    st = k.s.alloc()
    k(f"""v_lshrrev_b32 {a}, 1, {I['g']}
    v_lshlrev_b32 {a}, 3, {a}
    v_and_b32 {c}, 1, {I['g']}
    v_lshl_add_u32 {a}, {c}, 1, {a}
    v_cvt_f32_u32 {sb}, {a}""")
    for ib in range(2):
        k(f"""s_and_b32 {st}, {I['w']}, 1
        s_lshl_b32 {st}, {st}, 6
        s_add_u32 {st}, {st}, {16*ib}
        v_add_u32 {a}, {st}, {I['n']}
        v_cvt_f32_u32 {f}, {a}
        v_mul_f32 {f}, {fl(1/128)}, {f}
        v_mul_f32 {b}, {f}, {sb}""")
        for kap in range(4):
            for d in range(4):
                sl = 16 * kap + 4 * (d >> 1) + (d & 1)
                k(f"""v_fmamk_f32 {a}, {f}, {fl(float(sl))}, {b}
                v_cos_f32 {c}, {a}
                v_sin_f32 {s}, {a}
                v_cvt_pk_bf16_f32 {G[16*ib+4*kap+d]}, {c}, -{s}""")
    k(f"""v_lshlrev_b32 {c}, 31, {I['n']}
    v_or_b32 {c}, 0x3f003f00, {c}
    v_cmp_eq_u32 vcc, 0, {I['g']}""")
    for ib in range(2): k(f"v_cndmask_b32 {G[16*ib]}, {G[16*ib]}, {c}, vcc")
    k.v.free(f, b, sb, a, c, s); k.s.free(st)
    return G

def gen_G2(k, I, G):
    G2 = k.v.allocq(32); mk = k.v.alloc(2)
    k(f"""v_and_b32 {mk[0]}, 1, {I['g']}
    v_mul_u32_u24 {mk[0]}, 0x8000, {mk[0]}
    v_lshl_or_b32 {mk[0]}, {mk[0]}, 16, {mk[0]}
    v_xor_b32 {mk[1]}, 0x80000000, {mk[0]}""")
    for j in range(32):
        if j & 1: k(f"v_alignbit_b32 {G2[j]}, {G[j]}, {G[j]}, 16\nv_xor_b32 {G2[j]}, {mk[1]}, {G2[j]}")
        else: k(f"v_xor_b32 {G2[j]}, {mk[0]}, {G[j]}")
    k.v.free(mk)
    return G2

def xkeep(k, I, ldsX):
    XK = k.v.allocq(16, 2); ad = k.v.alloc(2); t = k.v.alloc(2); st = k.s.alloc()
    k(f"""s_and_b32 {st}, {I['w']}, 1
    s_lshl_b32 {st}, {st}, 13
    s_add_u32 {st}, {st}, {ldsX}
    v_lshrrev_b32 {t[0]}, 2, {I['l']}
    v_lshlrev_b32 {t[0]}, 7, {t[0]}
    v_and_b32 {t[1]}, 3, {I['l']}
    v_lshl_or_b32 {t[0]}, {t[1]}, 3, {t[0]}
    v_add_u32 {t[0]}, {st}, {t[0]}
    v_bfe_u32 {t[1]}, {I['l']}, 3, 2
    s_and_b32 {st}, {I['w']}, 2
    v_xor_b32 {t[1]}, {st}, {t[1]}
    v_lshl_add_u32 {ad[0]}, {t[1]}, 5, {t[0]}
    v_xor_b32 {ad[1]}, 32, {ad[0]}""")
    for mm in range(2):
        for ib in range(4): k(f"ds_read_b64_tr_b16 {XK.q(4*mm+ib,2)}, {ad[mm]} offset:{2048*ib}")
    k.v.free(ad, t); k.s.free(st)
    return XK

def dsk_issue(k, I, sd):
    Dk = k.v.alloc(2); va = k.v.alloc(); so = k.s.alloc(); st = k.s.alloc()
    k(f"""v_lshlrev_b32 {va}, 1, {I['n']}
    s_lshl_b32 {so}, {I['tb']}, 5
    s_lshr_b32 {st}, {I['w']}, 1
    s_lshl_b32 {st}, {st}, 10
    s_add_u32 {so}, {so}, {st}""")
    for mm in range(2): k(f"buffer_load_short_d16_hi {Dk[mm]}, {va}, {sd}, {so} offen offset:{512*mm}")
    k.v.free(va); k.s.free(so, st)
    return Dk

def xd_init2(k, XK, Dk, acc):
    for mm in range(2):
        sel = f" op_sel:[{mm},0] op_sel_hi:[{mm},1]"
        for ib in range(4):
            a = acc.q(8 * mm + ib); x = XK.q(4 * mm + ib, 2)
            k(f"""v_lshlrev_b32 {a[0]}, 16, {x[0]}
            v_and_b32 {a[1]}, 0xffff0000, {x[0]}
            v_lshlrev_b32 {a[2]}, 16, {x[1]}
            v_and_b32 {a[3]}, 0xffff0000, {x[1]}
            v_pk_mul_f32 {a[0:2]}, {Dk}, {a[0:2]}{sel}
            v_pk_mul_f32 {a[2:4]}, {Dk}, {a[2:4]}{sel}""")
    k.v.free(XK, Dk)

def g_issue(k, I, sg):
    g = k.v.allocq(16); va = k.v.alloc(); so = k.s.alloc(); st = k.s.alloc()
    k(f"""v_lshlrev_b32 {va}, 4, {I['g']}
    s_lshl_b32 {so}, {I['ta']}, 9
    s_and_b32 {st}, {I['w']}, 1
    s_lshl_b32 {st}, {st}, 8
    s_add_u32 {so}, {so}, {st}""")
    for ib in range(4): k(f"buffer_load_dwordx4 {g.q(ib)}, {va}, {sg}, {so} offen offset:{64*ib} {SC}")
    k.v.free(va); k.s.free(so, st)
    return g

def pass1c(k, I, acc, Pm, ldsE):
    er, ei, ta, tb = [k.v.alloc(2) for _ in range(4)]
    L = Pm['L1']
    cr, ci = upair(acc, 0, 0), upair(acc, 0, 1)
    outs = [(er, ei), (ta, tb)]
    for j in range(1, 16):
        nr, ni = outs[(15 - j) & 1]
        k(f"""v_pk_fma_f32 {nr}, {L}, {cr}, {upair(acc,j,0)}{BC0}
        v_pk_fma_f32 {ni}, {L}, {ci}, {upair(acc,j,1)}{BC0}
        v_pk_fma_f32 {nr}, {L}, {ci}, {nr}{BC1}{NEG0}
        v_pk_fma_f32 {ni}, {L}, {cr}, {ni}{BC1}""")
        cr, ci = nr, ni
    cfma(k, ta, Pm['L16'], (er[0], ei[0]), (er[1], ei[1]))
    k(f"""v_mov_b32 {tb[0]}, {ta[0]}
    v_mov_b32 {tb[1]}, {ta[1]}
    v_permlane32_swap_b32 {ta[0]}, {tb[0]}
    v_permlane32_swap_b32 {ta[1]}, {tb[1]}""")
    cfma(k, tb, Pm['L32'], ta, tb)
    w = k(f"ds_write_b64 {Pm['lde']}, {tb}")
    return dict(er=er, ei=ei, lo=ta, ew=tb, w=w)

def scan_addr(k, I, Pm, ldsE):
    lde, va = k.v.alloc(), k.v.alloc(); t = k.v.alloc(); st = k.s.alloc(); s2_ = k.s.alloc()
    k(f"""v_lshlrev_b32 {lde}, 3, v0
    v_add_u32 {lde}, {ldsE + 4096}, {lde}
    s_sub_u32 {st}, 15, {I['ca']}
    s_lshl_b32 {st}, {st}, 9
    s_and_b32 {s2_}, {I['w']}, 1
    s_lshl_b32 {s2_}, {s2_}, 8
    s_add_u32 {st}, {st}, {s2_}
    v_and_b32 {va}, 31, {I.get('lp', I['l'])}
    v_lshl_add_u32 {va}, {va}, 3, {st}""")
    if 'lp' in I: k.v.free(I.pop('lp'))
    Pm['lde'], Pm['eva'] = lde, va
    k.v.free(t); k.s.free(st, s2_)

def publish(k, I, E1, Pm, se):
    e0 = k.v.alloc(2); t = k.v.alloc()
    k(f"v_and_b32 {Pm['lde']}, {hex(0xfffffbff)}, {Pm['lde']}\nds_read_b64 {e0}, {Pm['lde']}")
    k(f"s_cmp_lt_u32 {I['w']}, 2")
    with k.skip_if("s_cbranch_scc1"):
        cfma(k, E1['ew'], Pm['L64'], e0, E1['ew'])
        k(f"""v_min_u32 {E1['ew'][0]}, -2, {E1['ew'][0]}
        v_min_u32 {E1['ew'][1]}, -2, {E1['ew'][1]}
        s_mov_b32 exec_hi, 0
        buffer_store_dwordx2 {E1['ew']}, {Pm['eva']}, {se}, 0 offen sc1
        s_mov_b64 exec, -1""")
    k(f"v_lshrrev_b32 {t}, 5, {I['l']}\nv_lshl_add_u32 {Pm['eva']}, {t}, 12, {Pm['eva']}\nv_add_u32 {Pm['eva']}, 512, {Pm['eva']}")
    k.v.free(t, E1['ew'], Pm.pop('lde'))
    E1['e0'] = e0

def carry_prep(k, I, E1, Pm):
    ma, mb = k.v.alloc(2), k.v.alloc(2); ca, cb = E1.pop('e0'), k.v.alloc(2); lo = E1.pop('lo'); t = k.v.alloc(2)
    er, ei = E1.pop('er'), E1.pop('ei'); cf = Pm['coef']
    def cmul(d, a, b):
        k(f"""v_pk_mul_f32 {d}, {a}, {b} op_sel:[0,0] op_sel_hi:[0,1]
        v_pk_fma_f32 {d}, {a}, {b}, {d} op_sel:[1,1,0] op_sel_hi:[1,0,1] neg_lo:[1,0,0]""")
    cmul(ma, cf, Pm['L64'])
    k(f"s_cmp_ge_u32 {I['w']}, 2")
    with k.skip_if("s_cbranch_scc1"):
        k(f"v_mov_b32 {ma[0]}, {cf[0]}\nv_mov_b32 {ma[1]}, {cf[1]}\nv_mov_b32 {ca[0]}, 0\nv_mov_b32 {ca[1]}, 0")
    cmul(t, Pm['L32'], ma); cfma2(k, lo, Pm['L32'], ca, lo)
    k(f"""s_mov_b32 exec_lo, 0
    v_mov_b32 {ma[0]}, {t[0]}
    v_mov_b32 {ma[1]}, {t[1]}
    v_mov_b32 {ca[0]}, {lo[0]}
    v_mov_b32 {ca[1]}, {lo[1]}
    s_mov_b64 exec, -1
    v_mov_b32 {er[1]}, {ei[0]}""")
    cmul(mb, Pm['L16'], ma); cfma2(k, er, Pm['L16'], ca, er)
    cmul(cb, cf, er); cmul(t, cf, ca)
    k.v.free(ca, lo, er, ei, Pm.pop('L16'), Pm.pop('L32'), Pm.pop('L64'))
    E1.update(ma=ma, mb=mb, ca=t, cb=cb)

class LookBack:
    def __init__(self, k, Pm, se):
        self.k, self.va, self.se = k, Pm.pop('eva'), se
        self.E = k.v.allocq(16, 2)
    def issue(self):
        for j in range(8): self.last = self.k(f"buffer_load_dwordx2 {self.E.q(j,2)}, {self.va}, {self.se}, 0 offen offset:{512*j} sc1")
    def _check(self, m):
        k, E = self.k, self.E
        k(f"v_max_u32 {m}, {E[0]}, {E[1]}")
        for j in range(1, 8): k(f"v_max3_u32 {m}, {m}, {E[2*j]}, {E[2*j+1]}")
        k(f"v_cmp_eq_u32 vcc, -1, {m}")
    def finish(self, maxspin=1 << 20):
        k = self.k; m = k.v.alloc()
        k.wait(self.last)
        self._check(m)
        with k.skip_if("s_cbranch_vccz"):
            cnt = k.s.alloc(); lp, out = k.lab('lb'), k.lab('lbout')
            k(f"s_mov_b32 {cnt}, 0\n{lp}:")
            self.issue(); k("s_waitcnt vmcnt(0)")
            self._check(m)
            k(f"s_cbranch_vccz {out}\ns_add_u32 {cnt}, {cnt}, 1\ns_cmp_lt_u32 {cnt}, {maxspin}\ns_cbranch_scc1 {lp}\n{out}:")
            k.s.free(cnt)
        k.v.free(m, self.va)
        return self.E

def cfma2(k, d, a, b, c):
    k(f"""v_pk_fma_f32 {d}, {a}, {b}, {c} op_sel:[0,0,0] op_sel_hi:[0,1,1]
    v_pk_fma_f32 {d}, {a}, {b}, {d} op_sel:[1,1,0] op_sel_hi:[1,0,1] neg_lo:[1,0,0]""")

def pass2c(k, I, acc, Pm, E1, E, sh, hook):
    for j in range(6, -1, -1):
        cfma2(k, E.q(j, 2), Pm['L128'], E.q(j + 1, 2), E.q(j, 2))
    S, T = E.q(0, 2), E.q(1, 2); U, V = E.q(2, 2), E.q(3, 2)
    k(f"""v_mov_b32 {T[0]}, {S[0]}
    v_mov_b32 {T[1]}, {S[1]}
    v_permlane32_swap_b32 {S[0]}, {T[0]}
    v_permlane32_swap_b32 {S[1]}, {T[1]}""")
    cfma2(k, S, Pm['L1024'], T, S)
    cfma2(k, E1['ca'], E1['ma'], S, E1['ca']); cfma2(k, E1['cb'], E1['mb'], S, E1['cb'])
    k(f"v_swap_b32 {E1['ca'][1]}, {E1['cb'][0]}")
    U, V = E1['ca'], E1['cb']
    va, so = E1['hva'], E1['hso']
    L = Pm['L1']; cr, ci = U, V
    O = k.v.allocq(12)
    pend = []; last = None
    def flush():
        nonlocal last
        q, o = pend.pop(0)
        k(f"""v_permlane16_swap_b32 {o[0]}, {o[2]}
        v_permlane16_swap_b32 {o[1]}, {o[3]}""")
        last = k(f"buffer_store_dwordx4 {o}, {va}, {sh}, {so} offen {SC}")
        if q < 7: k(f"s_add_u32 {so}, {so}, {2*32*16384}")
        hook(q)
    def sw32():
        o = pend[0][1]
        k(f"v_permlane32_swap_b32 {o[0]}, {o[1]}\nv_permlane32_swap_b32 {o[2]}, {o[3]}")
    for j in range(16):
        nr, ni = upair(acc, j, 0), upair(acc, j, 1)
        k(f"""v_pk_fma_f32 {nr}, {L}, {cr}, {nr}{BC0}
        v_pk_fma_f32 {ni}, {L}, {ci}, {ni}{BC0}""")
        if pend: sw32()
        k(f"""v_pk_fma_f32 {nr}, {L}, {ci}, {nr}{BC1}{NEG0}
        v_pk_fma_f32 {ni}, {L}, {cr}, {ni}{BC1}""")
        cr, ci = nr, ni
        if pend: flush()
        o = O.q((j // 2) % 3)
        h = 2 * (j & 1)
        k(f"v_cvt_pk_bf16_f32 {o[h]}, {nr[0]}, {nr[1]}\nv_cvt_pk_bf16_f32 {o[h+1]}, -{ni[0]}, -{ni[1]}")
        if j & 1: pend.append((j // 2, o))
    sw32(); flush()
    k.v.free(va, E, O, acc, E1['ca'], E1['cb'], E1['ma'], E1['mb'], *Pm.values()); k.s.free(so)
    return last

class B3g(B3f):
    def main(self, fill, pre_bar, post_bar, lastsub):
        k = self.k; NS = 16; acc, fr = self.acc, self.fr
        def reads(s, kk):
            f = fr.q(kk, 32); out = []
            for ib in range(8):
                off = (s % self.NST) * 32768 + ib * 2048 + kk * 256; hi = 2 if off >= 65536 else 0
                for h in range(2):
                    out.append(f"ds_read_b64_tr_b16 {f[4*ib+2*h:4*ib+2*h+2]}, {self.rh[hi+h]} offset:{off & 65535}")
            return out
        pre_bar(-1)
        k.wait(self.last[0]); k("s_barrier")
        lastrd = None
        for r in reads(0, 0): lastrd = k(r)
        for s in range(NS):
            for kk in range(2):
                f = fr.q(kk, 32); rd = []
                if kk == 0: rd = reads(s, 1)
                elif s + 1 < NS:
                    pre_bar(s)
                    k.wait(lastrd, self.last[s + 1]); k("s_barrier")
                    rd = reads(s + 1, 0)
                else: rd = lastsub(fr.q(0, 32))
                k.wait(lastrd)
                dm = [(s + self.D, 4 * kk + x) for x in range(4)]
                order = list(range(16))
                if s == NS - 1 and kk == 1: order = order[8:] + order[:8]
                for q, qq in enumerate(order):
                    ib, mm = qq >> 1, qq & 1
                    d = acc.q(8 * mm + ib)
                    zero = s == 0 and kk == 0 and ib >= 4
                    k(f"v_mfma_f32_16x16x32_bf16 {d}, {f.q(ib)}, {self.CL.frag(s,kk,mm)}, {0 if zero else d}")
                    if rd and q < 8:
                        k(rd[2 * q]); lastrd = k(rd[2 * q + 1])
                    if q >= 8 and q % 2 == 0: self.dma(*dm[(q - 8) // 2])
                    if q == 9 and kk == 1: post_bar(s)
                    fill(s, kk, q)
        k.v.free(self.vh, self.rh); k.s.free(self.so, self.mH)

def final_addr(k, I, ldsX, ldsY):
    A = dict(ad=k.v.alloc(), ay=k.v.alloc(), va=k.v.alloc(), so=k.s.alloc())
    t = k.v.alloc(); st = k.s.alloc(); ad, ay, va, so = A['ad'], A['ay'], A['va'], A['so']
    k(f"""s_lshl_b32 {st}, {I['w']}, {7 + I.get('khs', 6)}
    s_add_u32 {st}, {st}, {ldsX}
    v_lshl_add_u32 {ad}, {I['l']}, 4, {st}
    v_lshrrev_b32 {ay}, 5, {I['l']}
    v_lshlrev_b32 {ay}, 9, {ay}
    v_bfe_u32 {t}, {I['l']}, 3, 2
    v_lshl_or_b32 {ay}, {t}, 6, {ay}
    v_and_b32 {t}, 3, {I['l']}
    v_lshl_or_b32 {ay}, {t}, 4, {ay}
    v_bfe_u32 {t}, {I['l']}, 2, 1
    v_lshl_or_b32 {ay}, {t}, 3, {ay}
    s_lshr_b32 {st}, {I['w']}, 1
    s_lshl_b32 {st}, {st}, 13
    s_add_u32 {st}, {st}, {ldsY}
    v_add_u32 {ay}, {st}, {ay}
    v_lshlrev_b32 {va}, 18, {I['g']}
    v_lshl_or_b32 {va}, {I['n']}, 2, {va}
    s_and_b32 {so}, {I['w']}, 1
    s_lshl_b32 {so}, {so}, {16 + I.get('khs', 6)}
    s_lshl_b32 {st}, {I['ta']}, 12
    s_add_u32 {so}, {so}, {st}
    s_lshl_b32 {st}, {I['tb']}, 6
    s_add_u32 {so}, {so}, {st}
    s_lshr_b32 {st}, {I['w']}, 1
    s_lshl_b32 {st}, {st}, 11
    s_add_u32 {so}, {so}, {st}""")
    k.v.free(t); k.s.free(st)
    return A

def y_reads(A, Y):
    return [f"ds_read_b64_tr_b16 {Y[16*mm+4*kap+2*h:16*mm+4*kap+2*h+2]}, {A['ay']} offset:{4096*mm + 1024*kap + 256*h}"
            for kap in range(4) for mm in range(2) for h in range(2)]

def final2(k, A, g, acc, fr, G, so_, pf):
    Y, aa = fr.q(0, 32), fr.q(1, 32); ad, va, so = A['ad'], A['va'], A['so']; om = k.v.alloc(4)
    def mf(ib, side):
        for kap in range(4):
            for mm in range(2):
                d = aa.q(4 * mm + ib)
                k(f"v_mfma_f32_16x16x32_bf16 {d}, {G[ib>>1].q(4*(ib&1)+kap)}, {Y.q(4*mm+kap)}, {d if kap else 0}")
                if side: k(side.pop(0))
    wr = [f"ds_write_b128 {ad}, {acc.q(8*mm+4+ib)} offset:{1024*(4*mm+ib)}" for ib in range(4) for mm in range(2)]
    mf(0, wr)
    mf(1, [])
    k(f"v_xor_b32 {ad}, 0x2000, {ad}\ns_waitcnt lgkmcnt(0)\ns_barrier")
    pf("xbar")
    rd = [f"ds_read_b128 {acc.q(8*mm+4+ib)}, {ad} offset:{1024*(4*mm+ib)}" for ib in range(4) for mm in range(2)]
    mf(2, rd)
    def fin(ib):
        gg = g.q(ib)
        for h in (0, 2):
            k(f"""v_sub_f32 {om[h]}, 1.0, {gg[h]}
            v_sub_f32 {om[h+1]}, 1.0, {gg[h+1]}
            v_cvt_pk_bf16_f32 {om[h+1]}, {om[h]}, {om[h+1]}
            v_lshlrev_b32 {om[h]}, 16, {om[h+1]}
            v_and_b32 {om[h+1]}, 0xffff0000, {om[h+1]}""")
        for h in (0, 2):
            for mm in range(2):
                b = acc.q(8 * mm + ib); r = acc.q(8 * mm + 4 + ib); a = aa.q(4 * mm + ib)
                k(f"""v_pk_add_f32 {b[h:h+2]}, {b[h:h+2]}, {r[h:h+2]}
                v_pk_mul_f32 {a[h:h+2]}, {gg[h:h+2]}, {a[h:h+2]}
                v_pk_fma_f32 {b[h:h+2]}, {om[h:h+2]}, {b[h:h+2]}, {a[h:h+2]}""")
            for r in (h, h + 1):
                for mm in range(2):
                    k(f"buffer_store_dword {acc.q(8*mm+ib)[r]}, {va}, {so_}, {so} offen offset:{1024*mm} {OUTF}")
                if (ib, r) != (3, 3): k(f"s_add_u32 {so}, {so}, {(1<<16) if r < 3 else (1<<20) - 3*(1<<16)}")
    fin(0)
    mf(3, [])
    for ib in range(1, 4): fin(ib)

class B1g(B1f):
    def main(self, q, fill, pre_bar, post_bar, rate):
        k = self.k; NS = 16; acc, fr = self.acc, self.fr
        def reads(s, kk):
            f = fr.q((s * 4 + kk) & 1, 16); buf = (s % self.NST) * 16384
            out = []
            for b in range(2):
                out.append(f"ds_read_b128 {f.q(b)}, {self.ra[kk]} offset:{buf + 4096*b}")
                out.append(f"ds_read_b128 {f.q(2+b)}, {self.rb[kk]} offset:{buf + 4096*b}")
            return out
        k.wait(self.last[0], *getattr(self, 'extra', [])); k("s_barrier")
        lastrd = None; passed = -1
        for r in reads(0, 0): lastrd = k(r)
        for s in range(NS):
            for kk in range(4):
                f = fr.q((s * 4 + kk) & 1, 16)
                rd = []
                if kk < 3: rd = reads(s, kk + 1)
                elif s + 1 < NS:
                    pre_bar(s)
                    assert self.cnt[s + 1] == 8, (s, self.cnt)
                    k.wait(lastrd, self.last[s + 1]); k("s_barrier"); passed = s
                    rd = reads(s + 1, 0)
                for m, (rb, c) in enumerate(((0, 0), (0, 1), (1, 1), (1, 0))):
                    d = acc.q(2 * rb + c, 16)
                    first = s == 0 and kk == 0
                    k(f"v_mfma_f32_32x32x16_bf16 {d}, {f.q(rb)}, {f.q(2+c)}, {0 if first else d}")
                    if m < 2 and rd:
                        k(rd[2 * m]); lastrd = k(rd[2 * m + 1])
                    if m == 1 and kk == 3: post_bar(s)
                    for _ in range(rate(s, kk, m)):
                        if q and q[0][0] <= passed: q.pop(0)[1]()
                    fill(s, kk, m)
        k.v.free(fr, self.va, self.vb, self.ra, self.rb); k.s.free(self.soA, self.soB, self.mA, self.mB)
        return acc
    cnt = None
    def dma(self, s, i):
        if self.cnt is None: self.cnt = {}
        self.cnt[s] = self.cnt.get(s, 0) + 1
        super().dma(s, i)

class B1k(B1g):
    def __init__(self, k, I, sx, sb):
        self.k, self.I, self.sx, self.sb = k, I, sx, sb
        self.va = k.v.alloc(4); self.vb = k.v.alloc(4)
        self.soA, self.soB, self.mA, self.mB = [k.s.alloc() for _ in range(4)]
        t = k.v.alloc(2); l = I['l']; va, vb = self.va, self.vb; st = self.soB
        k(f"""v_and_b32 {t[0]}, 7, {l}
        v_xor_b32 {t[0]}, {t[0]}, {I['g']}
        v_lshlrev_b32 {t[0]}, 4, {t[0]}
        v_lshrrev_b32 {t[1]}, 3, {l}
        v_lshl_or_b32 {vb[0]}, {t[1]}, 11, {t[0]}
        v_and_b32 {t[1]}, 32, {l}
        v_lshl_or_b32 {va[0]}, {t[1]}, 11, {t[0]}
        v_and_b32 {t[1]}, 8, {l}
        v_lshl_or_b32 {va[0]}, {t[1]}, 12, {va[0]}
        v_and_b32 {t[1]}, 16, {l}
        v_lshl_or_b32 {va[0]}, {t[1]}, 7, {va[0]}
        s_lshr_b32 {st}, {I['w']}, 1
        s_lshl1_add_u32 {self.mA}, {I['cb']}, {st}
        s_lshl_b32 {self.mA}, {self.mA}, 16
        v_add_u32 {vb[0]}, {self.mA}, {vb[0]}
        s_lshl1_add_u32 {self.mA}, {I['ca']}, {st}
        s_and_b32 {st}, {I['w']}, 1
        s_lshl3_add_u32 {self.mA}, {self.mA}, {st}
        s_lshl_b32 {self.mA}, {self.mA}, 14
        v_add_u32 {va[0]}, {self.mA}, {va[0]}
        v_xor_b32 {va[1]}, 64, {va[0]}
        v_xor_b32 {vb[1]}, 64, {vb[0]}
        v_add_u32 {va[1]}, {4096-1024}, {va[1]}
        v_add_u32 {vb[1]}, {16384-1024}, {vb[1]}
        v_add_u32 {va[2]}, {2*(4096-1024)}, {va[0]}
        v_add_u32 {vb[2]}, {2*(16384-1024)}, {vb[0]}
        v_add_u32 {va[3]}, {2*(4096-1024)}, {va[1]}
        v_add_u32 {vb[3]}, {2*(16384-1024)}, {vb[1]}
        s_lshl_b32 {self.mA}, {I['w']}, 12
        s_add_u32 {self.mB}, {self.mA}, 65536
        s_lshl_b32 {self.soA}, {I['ca']}, 7""")
        k.v.free(t)
        self.last = {}; self.tail = None; self.extra = []
    def readers(self):
        k, I = self.k, self.I; l = I['l']
        self.ra = k.v.alloc(4); self.rb = k.v.alloc(4); t = k.v.alloc(2); st = self.soB
        k(f"""v_bfe_u32 {t[0]}, {l}, 1, 3
        v_lshrrev_b32 {t[1]}, 5, {l}
        v_xor_b32 {t[0]}, {t[0]}, {t[1]}
        v_lshlrev_b32 {t[0]}, 4, {t[0]}
        v_and_b32 {t[1]}, 31, {l}
        v_lshl_or_b32 {t[0]}, {t[1]}, 7, {t[0]}
        s_lshr_b32 {st}, {I['w']}, 1
        v_lshl_add_u32 {self.ra[0]}, {st}, 13, {t[0]}
        s_and_b32 {st}, {I['w']}, 1
        s_or_b32 {st}, {st}, 8
        v_lshl_add_u32 {self.rb[0]}, {st}, 13, {t[0]}""")
        for kk in range(1, 4): k(f"v_xor_b32 {self.ra[kk]}, {32*kk}, {self.ra[0]}\nv_xor_b32 {self.rb[kk]}, {32*kk}, {self.rb[0]}")
        k.v.free(t)

def xtile_addr(k, I, lds_off):
    va = k.v.alloc(); t = k.v.alloc(); so = k.s.alloc()
    k(f"""v_bfe_u32 {t}, {I['l']}, 1, 2
    v_xor_b32 {t}, {t}, {I['g']}
    v_lshlrev_b32 {va}, 9, {t}
    v_and_b32 {t}, 1, {I['l']}
    v_lshl_or_b32 {va}, {t}, 4, {va}
    v_lshrrev_b32 {t}, 3, {I['l']}
    v_lshl_or_b32 {va}, {t}, 15, {va}
    s_lshl_b32 {so}, {I['w']}, 9
    s_add_u32 {so}, {so}, {I['ta']}
    s_lshl_b32 {so}, {so}, 6
    s_add_u32 {so}, {so}, {I['tb']}
    s_lshl_b32 {so}, {so}, 5
    s_lshl_b32 m0, {I['w']}, 12
    s_add_u32 m0, m0, {lds_off}""")
    k.v.free(t)
    return va, so

def ids2(k):
    I = {n: k.s.alloc() for n in ('w', 'k1p', 'slot', 'ca', 'cb', 'ta', 'tb', 'rc')}
    I['l'] = k.v.alloc(); I['n'] = k.v.alloc(); I['g'] = k.v.alloc(); i8 = k.s.alloc()
    k(f"""v_readfirstlane_b32 {I['w']}, v0
    v_and_b32 {I['l']}, 63, v0
    v_and_b32 {I['n']}, 15, v0
    v_bfe_u32 {I['g']}, v0, 4, 2
    s_bfe_u32 {I['k1p']}, s2, 0x20003
    s_lshr_b32 {i8}, s2, 5
    s_lshr_b32 {I['w']}, {I['w']}, 6
    s_and_b32 {I['ca']}, s2, 3
    s_lshl2_add_u32 {I['ca']}, {I['ca']}, {I['k1p']}
    s_bfe_u32 {I['cb']}, s2, 0x10002
    s_lshl3_add_u32 {I['cb']}, {I['cb']}, {i8}
    s_and_b32 {I['rc']}, s2, 1
    s_lshl3_add_u32 {I['ta']}, {I['rc']}, {i8}
    s_lshl1_add_u32 {I['rc']}, {i8}, {I['rc']}
    s_bfe_u32 {I['tb']}, s2, 0x20001
    s_lshl2_add_u32 {I['tb']}, {I['tb']}, {I['k1p']}
    s_and_b32 {I['slot']}, s2, 7
    s_lshl3_add_u32 {I['slot']}, {I['slot']}, {i8}""")
    k.s.free(i8)
    return I

class B3h:
    D = 3
    catch = False
    def __init__(self, k, I, sh, CL):
        self.k, self.I, self.sh, self.CL = k, I, sh, CL
        self.vh = k.v.alloc(2); self.rh = k.v.alloc(4)
        self.so, self.mH = k.s.alloc(), k.s.alloc()
        t = k.v.alloc(2); st = k.s.alloc(); l = I['l']
        k(f"""s_and_b32 {st}, {I['w']}, 1
        s_mul_i32 {self.mH}, {st}, {16384 + 4096}
        s_lshl_b32 {self.so}, {I['ta']}, 19
        s_add_u32 {self.mH}, {self.mH}, {self.so}
        v_lshl_add_u32 {self.vh[0]}, {l}, 4, {self.mH}
        v_xor_b32 {self.vh[1]}, 4096, {self.vh[0]}
        s_lshr_b32 {self.so}, {I['w']}, 1
        s_add_u32 {self.so}, {self.so}, {I['rc']}
        s_and_b32 {self.so}, {self.so}, 15
        s_lshl_b32 {self.so}, {self.so}, 15
        s_lshl_b32 {self.mH}, {I['w']}, 13
        v_and_b32 {t[0]}, 3, {l}
        v_and_b32 {t[1]}, 2, {I['g']}
        v_xor_b32 {t[1]}, {t[1]}, {t[0]}
        v_lshlrev_b32 {t[0]}, 9, {t[0]}
        v_lshl_or_b32 {t[0]}, {t[1]}, 6, {t[0]}
        v_bfe_u32 {t[1]}, {l}, 2, 2
        v_lshl_or_b32 {t[0]}, {t[1]}, 4, {t[0]}
        v_and_b32 {t[1]}, 1, {I['g']}
        v_lshl_or_b32 {t[0]}, {t[1]}, 3, {t[0]}
        s_lshl_b32 {st}, {st}, 13
        v_add_u32 {self.rh[0]}, {st}, {t[0]}
        v_xor_b32 {self.rh[1]}, 64, {self.rh[0]}
        v_add_u32 {self.rh[2]}, 0x10000, {self.rh[0]}
        v_add_u32 {self.rh[3]}, 0x10000, {self.rh[1]}""")
        k.v.free(t); k.s.free(st)
        self.last = {}; self.cnt = {}
    def dma(self, s, i):
        k = self.k
        if i & 3 == 0: k(f"s_add_u32 m0, {self.mH}, {(s % 4)*32768 + (i>>2)*4096}")
        self.last[s] = k(f"buffer_load_dwordx4 {self.vh[i>>2]}, {self.sh}, {self.so} offen offset:{1024*(i&3)} {SC} lds")
        self.cnt[s] = self.cnt.get(s, 0) + 1
        if i == 7: k(f"s_add_u32 {self.so}, {self.so}, {65536 + (8192 if s == 7 else 0)}\ns_and_b32 {self.so}, {self.so}, 0x7ffff")
    def alloc(self):
        self.acc = [self.k.v.allocq(32), self.k.v.allocq(32)]; self.fr = self.k.v.allocq(64)
    def main(self, dq, fill, pre_bar, post_bar):
        k = self.k; NS = 16; fr = self.fr
        def reads(s, u):
            f = fr.q(u, 32); out = []
            for kk in range(2):
                for ib in range(4):
                    off = (s % 4) * 32768 + u * 16384 + ib * 2048 + kk * 256; hi = 2 if off >= 65536 else 0
                    for h in range(2):
                        o = 16 * kk + 4 * ib + 2 * h
                        out.append(f"ds_read_b64_tr_b16 {f[o:o+2]}, {self.rh[hi+h]} offset:{off & 65535}")
            return out
        k.wait(self.last[0]); k("s_barrier")
        lastrd = None
        for r in reads(0, 0): lastrd = k(r)
        for s in range(NS):
            acc = self.acc[s >> 3]
            for u in range(2):
                f = fr.q(u, 32); rd = []
                if u == 0: rd = reads(s, 1)
                elif s + 1 < NS:
                    pre_bar(s)
                    assert self.cnt[s + 1] == 8
                    k.wait(lastrd, self.last[s + 1]); k("s_barrier")
                    rd = reads(s + 1, 0)
                k.wait(lastrd)
                order = [(kk, ib, mm ^ (ib & 1)) for kk in range(2) for ib in range(4) for mm in range(2)]
                if s & 7 == 7 and u == 1: order = [x for x in order if x[1] >= 2] + [x for x in order if x[1] < 2]
                for q, (kk, ib, mm) in enumerate(order):
                    d = acc.q(4 * mm + ib)
                    zero = s & 7 == 0 and u == 0 and kk == 0 and ib >= 2
                    k(f"v_mfma_f32_16x16x32_bf16 {d}, {f.q(4*kk+ib)}, {self.CL.frag(2*(s&7)+u,kk,mm)}, {0 if zero else d}")
                    if rd and q < 8:
                        k(rd[2 * q]); lastrd = k(rd[2 * q + 1])
                    if q >= 8 and dq and dq[0][0] <= s + self.D and (q % 2 == 0 or (s == 0 and self.catch)): self.dma(*dq.pop(0))
                    if q == 9 and u == 1: post_bar(s)
                    fill(s, u, q)
        assert not dq
        k.v.free(self.vh, self.rh); k.s.free(self.so, self.mH)

def xkeep3(k, I, ldsX):
    XK = k.v.allocq(16, 2); ad = k.v.alloc(2); t = k.v.alloc(2); st = k.s.alloc()
    k(f"""s_and_b32 {st}, {I['w']}, 1
    s_lshl_b32 {st}, {st}, 12
    s_add_u32 {st}, {st}, {ldsX}
    v_lshrrev_b32 {t[0]}, 2, {I['l']}
    v_lshlrev_b32 {t[0]}, 7, {t[0]}
    v_and_b32 {t[1]}, 3, {I['l']}
    v_lshl_or_b32 {t[0]}, {t[1]}, 3, {t[0]}
    v_add_u32 {t[0]}, {st}, {t[0]}
    v_bfe_u32 {t[1]}, {I['l']}, 3, 2
    s_and_b32 {st}, {I['w']}, 2
    v_xor_b32 {t[1]}, {st}, {t[1]}
    v_lshl_add_u32 {ad[0]}, {t[1]}, 5, {t[0]}
    v_xor_b32 {ad[1]}, 32, {ad[0]}""")
    for h in range(2):
        for mm in range(2):
            for ib in range(2): k(f"ds_read_b64_tr_b16 {XK.q(4*h+2*mm+ib,2)}, {ad[mm]} offset:{8192*h + 2048*ib}")
    k.v.free(ad, t); k.s.free(st)
    return XK

def xd_init3(k, XK, Dk, acc):
    for h in range(2):
        for mm in range(2):
            sel = f" op_sel:[{mm},0] op_sel_hi:[{mm},1]"
            for ib in range(2):
                a = acc[h].q(4 * mm + ib); x = XK.q(4 * h + 2 * mm + ib, 2)
                k(f"""v_lshlrev_b32 {a[0]}, 16, {x[0]}
                v_and_b32 {a[1]}, 0xffff0000, {x[0]}
                v_lshlrev_b32 {a[2]}, 16, {x[1]}
                v_and_b32 {a[3]}, 0xffff0000, {x[1]}
                v_pk_mul_f32 {a[0:2]}, {Dk}, {a[0:2]}{sel}
                v_pk_mul_f32 {a[2:4]}, {Dk}, {a[2:4]}{sel}""")
    k.v.free(XK, Dk)

def fin3(k, A, g, acc, aa, so_, h, flags, added):
    va, so = A['va'], A['so']
    for ib in range(2):
        gg = g.q(2 * h + ib)
        for x in (0, 2):
            for mm in range(2):
                b = acc.q(4 * mm + ib); a = aa(mm, ib)
                if not added: k(f"v_pk_add_f32 {b[x:x+2]}, {b[x:x+2]}, {acc.q(4*mm+2+ib)[x:x+2]}")
                k(f"v_pk_add_f32 {a[x:x+2]}, {a[x:x+2]}, {b[x:x+2]} neg_lo:[0,1] neg_hi:[0,1]")
            for mm in range(2):
                b = acc.q(4 * mm + ib); a = aa(mm, ib)
                k(f"v_pk_fma_f32 {b[x:x+2]}, {gg[x:x+2]}, {a[x:x+2]}, {b[x:x+2]}")
            for r in (x, x + 1):
                for mm in range(2):
                    k(f"buffer_store_dword {acc.q(4*mm+ib)[r]}, {va}, {so_}, {so} offen offset:{1024*mm} {flags}")
                step = (1 << 16) if r < 3 else ((1 << 20) if ib == 0 else (3 << 20)) - 3 * (1 << 16)
                if (h, ib, r) != (1, 1, 3): k(f"s_add_u32 {so}, {so}, {step}")

def ph3_list(G, Y, aa):
    return [f"v_mfma_f32_16x16x32_bf16 {aa(mm,ib)}, {G.q(4*ib+kap)}, {Y.q(4*mm+kap)}, {aa(mm,ib) if kap else 0}"
            for kap in range(4) for ib in range(2) for mm in range(2)]

def code_touch(k, I, wave, nbytes, dst):
    r = k.s.alloc(2); so = k.s.alloc(); va = k.v.alloc(2)
    per = -(-nbytes // (32 * 128)); lab = k.lab('pc')
    k(f"s_cmp_lg_u32 {I['w']}, {wave}")
    with k.skip_if("s_cbranch_scc1"):
        k(f"""s_getpc_b64 {r}
        {lab}:
        s_lshr_b32 {so}, s2, 3
        s_mul_i32 {so}, {so}, {per*128}
        v_min_u32 {va[0]}, {per-1}, {I['l']}
        v_lshl_add_u32 {va[0]}, {va[0]}, 7, {so}
        v_min_u32 {va[0]}, {k.name}_end-{lab}, {va[0]}
        v_mov_b32 {va[1]}, 0
        v_lshl_add_u64 {va}, {va}, 0, {r}
        global_load_dword {dst}, {va}, off""").defs = set()
    k.s.free(r, so); k.v.free(va)

def pretouch(k, I, swr, swi, sc, CLv, dst, what):
    va = k.v.alloc(); t = k.v.alloc(); r0, r1 = k.s.alloc(), k.s.alloc()
    if 'w' in what:
        k(f"""s_lshl_b32 {r0}, {I['k1p']}, 2
        s_add_u32 {r0}, {r0}, {I['w']}
        s_lshl_b32 {r0}, {r0}, 7
        s_add_u32 {r0}, {r0}, {I['slot']}
        s_sub_u32 {r1}, 2048, {r0}
        s_and_b32 {r1}, {r1}, 2047
        s_mul_i32 {r0}, {r0}, 1026
        s_mul_i32 {r1}, {r1}, 1026
        s_sub_u32 {r1}, {r1}, {r0}
        v_and_b32 {t}, 1, {I['g']}
        v_mul_lo_u32 {t}, {t}, {r1}
        v_lshl_add_u32 {va}, {I['n']}, 7, {r0}
        v_add_u32 {va}, {va}, {t}
        v_and_b32 {va}, -4, {va}
        s_mov_b64 exec, 0x01ff01ff
        buffer_load_dword {dst}, {va}, {swr}, 0 offen
        buffer_load_dword {dst}, {va}, {swi}, 0 offen offset:1024
        s_mov_b64 exec, -1""")
    if 'c' in what:
        k(f"""s_lshr_b32 {r0}, {I['w']}, 1
        s_lshl_b32 {r0}, {r0}, 20
        s_lshl_b32 {r1}, {I['tb']}, 15
        s_add_u32 {r0}, {r0}, {r1}
        v_lshl_add_u32 {va}, {I['n']}, 11, {r0}
        v_and_b32 {t}, 1, {I['g']}
        v_lshl_add_u32 {va}, {t}, 19, {va}
        v_lshrrev_b32 {t}, 1, {I['g']}
        v_add_u32 {t}, {I['rc']}, {t}
        v_and_b32 {t}, 15, {t}
        v_lshl_add_u32 {va}, {t}, 7, {va}""")
        if '2' not in what: k("s_mov_b32 exec_hi, 0")
        k(f"buffer_load_dword {dst}, {va}, {sc}, 0 offen\ns_mov_b64 exec, -1")
    for i in k.ins[-40:]:
        if i.mn == 'buffer_load_dword' and i.defs == {('v', dst.idx)}: i.defs = set()
    k.v.free(va, t); k.s.free(r0, r1)

class Touch:
    def __init__(self, k, I, swr, swi, sc, dst):
        self.k, self.I, self.swr, self.swi, self.sc, self.dst = k, I, swr, swi, sc, dst
        self.vw, self.vc = k.v.alloc(), k.v.alloc(); t = k.v.alloc(); r0, r1 = k.s.alloc(), k.s.alloc(); va = self.vw
        k(f"""s_lshl_b32 {r0}, {I['k1p']}, 2
        s_add_u32 {r0}, {r0}, {I['w']}
        s_lshl_b32 {r0}, {r0}, 7
        s_add_u32 {r0}, {r0}, {I['slot']}
        s_sub_u32 {r1}, 2048, {r0}
        s_and_b32 {r1}, {r1}, 2047
        s_mul_i32 {r0}, {r0}, 1026
        s_mul_i32 {r1}, {r1}, 1026
        s_sub_u32 {r1}, {r1}, {r0}
        v_and_b32 {t}, 1, {I['g']}
        v_mul_lo_u32 {self.vc}, {t}, {r1}
        v_lshl_add_u32 {va}, {I['n']}, 7, {r0}
        v_add_u32 {va}, {va}, {self.vc}
        v_and_b32 {va}, -4, {va}""")
        va = self.vc
        k(f"""s_lshr_b32 {r0}, {I['w']}, 1
        s_lshl_b32 {r0}, {r0}, 20
        s_lshl_b32 {r1}, {I['tb']}, 15
        s_add_u32 {r0}, {r0}, {r1}
        v_lshl_add_u32 {va}, {I['n']}, 11, {r0}
        v_lshl_add_u32 {va}, {t}, 19, {va}
        v_lshrrev_b32 {t}, 1, {I['g']}
        v_add_u32 {t}, {I['rc']}, {t}
        v_and_b32 {t}, 15, {t}
        v_lshl_add_u32 {va}, {t}, 7, {va}""")
        k.v.free(t); k.s.free(r0, r1)
    def go(self, what, wave):
        k = self.k
        k(f"s_cmp_lg_u32 {self.I['w']}, {wave}")
        with k.skip_if("s_cbranch_scc1"):
            if what == 'w':
                k("s_mov_b64 exec, 0x01ff01ff")
                k(f"buffer_load_dword {self.dst}, {self.vw}, {self.swr}, 0 offen").defs = set()
                k(f"buffer_load_dword {self.dst}, {self.vw}, {self.swi}, 0 offen offset:1024").defs = set()
            else:
                if what != 'b': k(f"s_mov_b32 exec_{'hi' if what == 'c' else 'lo'}, 0")
                k(f"buffer_load_dword {self.dst}, {self.vc}, {self.sc}, 0 offen").defs = set()
            k("s_mov_b64 exec, -1")
    def done(self): self.k.v.free(self.vw, self.vc)

def build(opt={}):
    O = dict(sig=8, v2s=-1, vf=-1, early=0, shadow=1, spos=0, cpos=0, x1=4, p0=30, lead0=300, p1=56, lead1=60, gpos=1, cearly=0, n0=8, n1=16, pb=70, nb=2, nlb=1, pc=64, leadc=0, late=3, gseam=1, fast=0, lag=2, hmark=1, pollat=1, touch=1, ctpos=0, ctw=0, cfirst=0, wtail=4, bars=0, gx=300, v2r=2, eo=1, es=26, er=4, vp=0, sk=2, bf=1, sr=8, lr=4, wpos=0, D=5, cpre=1, clag=1, fl=12, pl=23, pld=2, m2s=10, ptq=0, gap=-1, ntail=3, fend=99, tt=0, tsp=2, m32=0, xs=8, xb=0, vr=1, rate=2, yrr=2, scal=1, clr=1, fm=65535, gl=1, pt='w', pts=11, two=1, pre3=2, pg=48, pv=3, pd=2, yd=1, yl=1, yr=1000, fs=13, oaf='sc1', obf='sc1', fr=24, map8=1, rot1=2, gloc=1, rotc=1)
    O.update(opt)
    k = Kernel(NAME + "_kernel", nv=256, na=256)
    LX = 131072; LT2 = LX + 16384; LDS = LT2 + 16384
    A0, A1, A2, A3, B0, B1_, B2, B3_ = [16384 * i for i in range(8)]
    k("s_cmp_ge_u32 s2, 256")
    k(f"s_cbranch_scc1 {k.name}_end")
    KP = k.s.alloc(32, 4)
    k(f"s_load_dwordx16 {KP[0:16]}, s[0:1], 0\ns_load_dwordx16 {KP[16:32]}, s[0:1], 64")
    P = {n: KP[o // 4:o // 4 + 2] for n, o in KA.items()}
    def rel(*names):
        for n in names: k.s.free(P.pop(n))
    I = ids2(k); cd = k.v.alloc(); I['tag'] = O['sk'] >= 2
    pf = Prof(k, 0)
    if O['ctpos'] == 0: code_touch(k, I, O['ctw'], 40960, cd)
    if O.get('cnt'):
        nm, thr = O['cnt'], O['thr']; sl = srd(k, P[nm], 1 << 21); tv = k.v.alloc(2); t0_, t1_ = k.s.alloc(2), k.s.alloc(2); so_ = k.s.alloc(); lp = k.lab('cnt')
        k(f"""v_mov_b32 {tv[0]}, s2
        v_lshlrev_b32 {tv[0]}, 8, {tv[0]}
        s_mov_b32 {so_}, 0
        s_mov_b32 {pf.ta}, 0
        s_mov_b32 {pf.tb}, 0
        s_waitcnt vmcnt(0) lgkmcnt(0)
        s_cmp_lg_u32 {I['w']}, 0
        s_cbranch_scc1 {lp}x
        {lp}:
        s_memtime {t0_}
        s_waitcnt lgkmcnt(0)
        buffer_load_dword {tv[1]}, {tv[0]}, {sl}, {so_} offen
        s_waitcnt vmcnt(0)
        s_memtime {t1_}
        s_waitcnt lgkmcnt(0)
        s_sub_u32 {t1_[0]}, {t1_[0]}, {t0_[0]}
        s_cmp_gt_u32 {t1_[0]}, {thr}
        s_cselect_b32 {t1_[0]}, {'100' if thr else t1_[0]}, 0
        s_add_u32 {pf.tb}, {pf.tb}, {t1_[0]}
        s_add_u32 {so_}, {so_}, 65536
        s_cmp_lt_u32 {so_}, {32*65536}
        s_cbranch_scc1 {lp}
        {lp}x:""")
        if not thr: k(f"s_lshr_b32 {pf.tb}, {pf.tb}, 3")
        k.s.free(sl, t0_, t1_, so_); k.v.free(tv)
    sx, sb = k.s.alloc(4), k.s.alloc(4)
    k(f"s_mov_b32 {sx[2]}, {SZ['x']}\ns_mov_b32 {sx[3]}, 0x20000\ns_mov_b32 {sb[2]}, {SZ['bre']}\ns_mov_b32 {sb[3]}, 0x20000")
    xva, xso = xtile_addr(k, I, LX)
    if O['shadow'] >= 0: g1 = B1k(k, I, sx, sb)
    if O['shadow'] >= 1: g1.readers()
    k(f"s_mov_b64 {sx[0:2]}, {P['x']}")
    pf('ka')
    XI = dict(j=0)
    def x1():
        j = XI['j']; XI['j'] += 1
        if j and j == O['x1']: k(f"s_add_u32 m0, {g1.mA}, {LX}")
        XI['ld'] = k(f"buffer_load_dwordx4 {xva}, {sx}, {xso} offen offset:{1024*j} lds")
        if j < 3: k(f"s_add_u32 {xso}, {xso}, {8*32768 - 1024}")
    for j in range(O['x1']): x1()
    if O['ctpos'] == 1: code_touch(k, I, O['ctw'], 40960, cd)
    if O['shadow'] < 0: g1 = B1k(k, I, sx, sb)
    k(f"s_bitcmp1_b32 {I['w']}, 0\ns_cselect_b64 {sb[0:2]}, {P['bim']}, {P['bre']}")
    rel('x', 'bx', 'bre', 'bim')
    pf('xi')
    def vm1(cap):
        def f():
            while cap.groups:
                v = any(i.cls == 'vm' for i in cap.groups[0]); cap.emit(1)
                if v: break
        return f
    H = {}
    CA = k.a.alloc(256)
    dq = [(-1 if s < 4 else s - 4, lambda s=s, i=i: g1.dma(s, i)) for s in range(0, 16) for i in range(8)]
    take = lambda n: [dq.pop(0)[1] for _ in range(n)]
    if O['x1'] < 4:
        for f_ in take(4): f_()
    T = ph2_params(k, I)
    if O['cpos'] == 0: cw = coop_consts(k, I, T, LT2, 2.0 ** -20)
    with k.capture() as c0:
        if O['shadow'] < 1: g1.readers()
        if O['m32'] or O['sk'] == 3:
            I['lp'] = k.v.alloc(); tt = k.s.alloc()
            k(f"s_and_b32 {tt}, {I['ca']}, 2\ns_lshl_b32 {tt}, {tt}, 3\nv_xor_b32 {I['lp']}, {tt}, {I['l']}\ns_lshl_b32 {tt}, {tt}, 7")
            for q in range(4): k(f"v_xor_b32 {g1.rb[q]}, {tt}, {g1.rb[q]}")
            k.s.free(tt)
        sf = srd(k, P['ws'], WS_FP - WS_F + 131072, WS_F)
        FV, FH = k.s.alloc(), k.s.alloc()
        zero = k.v.alloc(); vpc = k.v.alloc()
        k(f"""v_mov_b32 {zero}, 0
        v_lshlrev_b32 {vpc}, 4, v0
        s_mov_b32 {FV}, 4096
        s_cmp_lg_u32 s2, 0""")
        with k.skip_if("s_cbranch_scc1"):
            tz = k.v.alloc(4)
            for j in range(4): k(f"v_mov_b32 {tz[j]}, 0")
            k(f"buffer_store_dwordx4 {tz}, {vpc}, {sf}, 0 offen {SC}")
            g1.extra.append(k(f"buffer_store_dwordx4 {tz}, {vpc}, {sf}, {FV} offen {SC}"))
            k.v.free(tz)
        sgw = srd(k, P['gw'], SZ['gw']); rel('gw')
        t4 = [srd(k, P[n], 2048) for n in ('lre', 'lim', 'ldt', 'dsk')]; rel('lre', 'lim', 'ldt', 'dsk')
        sv1 = srd(k, P['ws'], 256 * V1_STR, WS_V1)
        F = gen_F2(k, I)
    acts = take(8) if O['x1'] == 4 else [x1] * (4 - O['x1']) + take(4)
    c0.weave(acts, O['p0'], O['lead0'])
    while acts: acts.pop(0)()
    pf('su')
    ldx = XI['ld']; k.v.free(xva); k.s.free(xso)
    with k.capture() as small:
        Q = ssm_param_issue(k, I, *t4[:3]); Dk = (dsk_issueS if O['sk'] else dsk_issue32 if O['m32'] else dsk_issue)(k, I, t4[3])
    with k.capture() as gl: Gt = gate_issue2(k, I, sx, sgw)
    if O.get('nogate'): gl.groups = [g for g in gl.groups if not any(i.cls == 'vm' for i in g)]
    if O['spos'] == 0: small.emit(999)
    if O['cpos'] == 1: cw = coop_consts(k, I, T, LT2, 2.0 ** -20)
    pf("F")
    small.flush(); k.s.free(*t4)
    acts = ([vm1(gl)] * 6 if O['gpos'] == 0 else []) + take(O['n0'])
    while acts: acts.pop(0)()
    k.wait(ldx, cw); k("s_barrier"); pf("xt")
    with k.capture() as c1:
        O1 = ph1f(k, I, F, LX, sv1, lambda n: None)
        k.v.free(F)
        XK = (xkeepU if O['sk'] == 3 else xkeepS if O['sk'] else xkeep32 if O['m32'] else xkeep3 if O['two'] else xkeep)(k, I, LX)
    acts = take(O['n1'])
    c1.weave(acts, O['p1'], O['lead1'])
    while acts: acts.pop(0)()
    if O['gpos'] == 1: gl.emit(1000)
    pf("ph1")
    g1.alloc()
    if O['gpos'] == 2:
        pos = 32 - 8 - O['n0'] - O['n1']
        dq[pos:pos] = [(-1, vm1(gl))] * 6
    with k.capture() as fl1:
        ph1_store(k, *O1, sv1)
        if O.get('nov1'): k.ins = []
        one = k.v.alloc(); vfc = k.v.alloc(); vfh = k.v.alloc(); sdbg = srd(k, P['dbg'], 256); rel('dbg')
        k(f"""s_and_b32 {FH}, s2, 7
        s_lshl_b32 {FH}, {FH}, 8
        s_add_u32 {FH}, {FH}, s2
        s_and_b32 {FH}, {FH}, -8
        s_lshl_b32 {FH}, {FH}, 1
        v_mov_b32 {vfc}, {FH}
        s_lshl4_add_u32 {FH}, {I['cb']}, {I['ca']}
        s_lshl_b32 {FH}, {FH}, 7
        v_lshl_add_u32 {vfh}, {I['n']}, 2, {FH}
        s_mov_b32 {FH}, 8192
        v_mov_b32 {one}, 1""")
        st = k.s.alloc()
        k(f"s_lshl_b32 {st}, {I['cb']}, 14")
        se = srd(k, P['ws'], 8192, WS_E, st)
        t = k.v.alloc(2)
        k(f"""s_sub_u32 {st}, 15, {I['ca']}
        s_lshl_b32 {st}, {st}, 9
        v_lshl_add_u32 {t[0]}, v0, 2, {st}
        v_mov_b32 {t[1]}, -1
        s_cmp_ge_u32 {I['w']}, 2""")
        with k.skip_if("s_cbranch_scc1"):
            H['clr'] = k(f"buffer_store_dword {t[1]}, {t[0]}, {se}, 0 offen {SC}")
        wave0_store(k, I, f"buffer_store_dword {zero}, {vfh}, {sf}, {FH} offen {SC}", O['fm'])
        if O['sk'] == 1:
            FP = k.s.alloc()
            k(f"""s_lshl4_add_u32 {FP}, {I['ta']}, {I['tb']}
            s_lshl2_add_u32 {FP}, {FP}, {I['w']}
            s_lshl_b32 {FP}, {FP}, 7
            s_add_u32 {FP}, {FP}, {WS_FP - WS_F}
            v_lshlrev_b32 {t[0]}, 2, {I['n']}
            s_mov_b64 exec, 0xffff
            buffer_store_dword {zero}, {t[0]}, {sf}, {FP} offen {SC}
            s_mov_b64 exec, -1""")
        k(f"s_or_b32 {st}, {I['w']}, s2\ns_cmp_lg_u32 {st}, 0")
        with k.skip_if("s_cbranch_scc1"):
            k(f"s_mov_b64 exec, 1\nbuffer_store_dword {one}, {zero}, {sdbg}, 0 offen {SC}\ns_mov_b64 exec, -1")
        k.v.free(t); k.s.free(st)
        if O['sk']:
            sc = srd(k, P['cre'], SZ['cre']); sc_i = srd(k, P['cim'], SZ['cim']); rel('cre', 'cim')
            CL = (CLoadU if O['sk'] == 3 else CLoadS)(k, I, sc, sc_i, CA)
        else:
            sc = srd_sel(k, I, P['cre'], P['cim'], SZ['cre']); rel('cre', 'cim')
            CL = (CLoad32 if O['m32'] else CLoad)(k, I, sc, CA)
        swr = srd(k, P['wr'], SZ['wr'])
        swi = k.s.alloc(4)
        k(f"s_sub_u32 {swi[0]}, {P['wi'][0]}, 1024\ns_subb_u32 {swi[1]}, {P['wi'][1]}, 0\ns_mov_b32 {swi[2]}, {SZ['wi'] + 1024}\ns_mov_b32 {swi[3]}, 0x20000")
        rel('wr', 'wi')
        if O['tt']: TT = Touch(k, I, swr, swi, sc, cd)
        nfirst = len(k.ins)
        sg = srd(k, P['ws'], G_BYTES, WS_G)
        lastst = gate_compute2(k, I, Gt, sg, LX if O['gl'] else None)
        nsec = len(k.ins)
        H['C2'] = coop_read(k, I, LT2, {n: CA[224 + 8 * j:232 + 8 * j] for j, n in enumerate(('m2f', 'm2i', 'm1i', 'si'))})
        wsl = (A0, A1, B1_, A2) if O['cfirst'] else (LX, A0, B0, A1)
        WD = WD2(k, I, T, swr, swi, wsl, LT2)
        nthird = len(k.ins)
        Pm = ssm_param_compute(k, Q)
        scan_addr(k, I, Pm, LT2)
        E1h = {}; hstore_addr(k, I, E1h)
        if O['sk'] == 3: Dk = diagU(k, I, Dk)
        ntot = len(k.ins)
    print("B1 fillers", nfirst, nsec, nthird, ntot)
    for u in range(O['cearly']):
        pos = [j for j, x in enumerate(dq) if x[0] == 2 + 3 * u][0]
        dq[pos:pos] = [(-1, lambda: CL.issue(LX))]
    p0 = Poll(k, sdbg, zero, 1, 1, sleep=16)
    p1 = Poll(k, sf, vpc, 1, 1, sleep=16)
    dq.append((-1, lambda: (p1.issue(), WD.extra_issue())))
    if O['ptq']: dq.append((-1, lambda: pretouch(k, I, swr, swi, sc, CL, cd, O['ptq'])))
    gap = O['gap']; wq = []
    if O['cfirst']:
        tslots = [(-1, LX), (12, B0), (14, B2)]
        for s, slot in tslots[:2]: dq += [(s, lambda slot=slot: CL.issue1(slot))] * 4
        wq = [(max(s, gap), WD.issue1) for s in (12, 13, 13, 14) for _ in range(4)]
        dq += wq[:4 * O['wtail']]; wq = wq[4 * O['wtail']:]; O['ntail'] = 2
    else:
        dq += [(gap, WD.issue1)] * 4
        for s, slot in ((12, A0), (12, B0), (13, A1)): dq += [(s, WD.issue1)] * 4
        tslots = [(13, B1_), (14, A2), (14, B2)]
        for s, slot in tslots[:O['ntail']]: dq += [(s, lambda slot=slot: CL.issue1(slot))] * 4
    pf("pre")
    def pre_bar(s):
        if O['gl'] and s == 5: k.wait(lastst)
        if s == O['sig']: k.wait(H['gs'] if O['gl'] else lastst, H['clr'])
    def post_bar(s):
        if O['touch'] and s in (4, 11): code_touch(k, I, 1 + (s & 1), 16384, cd)
        if O['pt'] and s == O['pts']: pretouch(k, I, swr, swi, sc, CL, cd, O['pt'])
        if O['gl'] and s == 5: H['gs'] = gate_store(k, I, sg, LX)
        if s == O['sig'] - 3: p0.issue()
        if s == O['sig']:
            fl1.emit_until_safe()
            p0.finish()
            wave0_store(k, I, f"buffer_store_dword {one}, {vfc}, {sf}, 0 offen {SC}")
    def fill1(s, kk, m):
        tgt = [(0, 34), (1, nfirst), (2, nfirst), (4, nsec), (9, nthird), (14, ntot)]
        x = s + (4 * kk + m + 1) / 16.0 - 1; px, py = -1, 0
        for qx, qy in tgt:
            if x <= qx: want = py + (qy - py) * (x - px) / (qx - px); break
            px, py = qx, qy
        else: want = ntot
        while fl1.groups and ntot - fl1.left() < want: fl1.emit(1)
        if s == 3 and kk == 0 and m == 0: gl.flush(); k.s.free(sgw)
        if O['tt'] and m == 3 and kk in (0, 2):
            x = 2 * s + kk // 2
            for what, s0_ in re.findall(r'([wcdb])(\d+)', O['tt']):
                d = x - 2 * int(s0_)
                if d >= 0 and d % O['tsp'] == 0 and d // O['tsp'] < 4: TT.go(what, d // O['tsp'])
        if s == 14 and kk == 3 and m == 3:
            fl1.flush()
            if O['tt']: TT.done()
        if kk == 1 and m == 0 and s >= 5 and s % 3 == 2 and CL.nd < O['cearly']: CL.drain()
        if kk == 3 and m == 0 and (s % 4 == 3 or PROFSEL): pf(f"a{s}")
    def rate(s, kk, m):
        if s < O['fast'] or s >= O['fend']: return 1 if m >= 1 else 0
        return 1 if m >= 2 else 0
    acc = g1.main(dq, fill1, pre_bar, post_bar, rate)
    pf("main1")
    k.s.free(sx, sb, sdbg); k.v.free(zero)
    with k.capture() as c2:
        E1 = pass1c(k, I, acc, Pm, LT2); E1.update(E1h)
    acts = [x[1] for x in dq]; print("queue left after B1:", len(acts))
    c2.weave(acts, 64)
    while acts: acts.pop(0)()
    p1.finish()
    k.wait(E1['w']); k("s_barrier")
    publish(k, I, E1, Pm, se)
    pf("pass1")
    LT1 = A3
    C2 = H['C2']; nlate = O['late']; assert nlate >= 2
    free = [B3_] + [x[1] for x in tslots[O['ntail']:]]; state = dict(cur=None)
    def c1act():
        if CL.n >= 64 - 4 * nlate: return
        if CL.n & 3 == 0:
            if not free: free.append(CL.drain())
            state['cur'] = free.pop(0)
            if not free and CL.nd < CL.n // 4 - O['lag'] + 1: free.append(CL.drain())
        CL.issue1(state['cur'])
    def cfinish():
        while CL.n & 3: c1act()
    L1 = v1_issue(k, I, T, sv1, SC); k.s.free(sv1)
    with k.capture() as c3:
        if O['wpos'] == 0: Wf, WX = WD.gather_all()
        scan_coef(k, acc, Pm)
        carry_prep(k, I, E1, Pm)
        if O['wpos'] == 0: WD.fix(Wf, WX)
    assert not wq or O['wpos'] == 1
    acts = [x[1] for x in wq] + [c1act] * (4 * O['nb'])
    c3.weave(acts, O['pb'], 100)
    while WD.n < 16: WD.issue1()
    cfinish()
    if O['wpos'] == 0: free.extend([x for x in wsl if x != LX])
    lb = LookBack(k, Pm, se); lb.issue()
    pf("coef")
    with k.capture() as c4: t1w = ph2_s1(k, I, C2, L1, LT1)
    acts = [c1act] * (4 * O['nlb'])
    c4.weave(acts, O['pb'])
    cfinish()
    pf("s1")
    E = lb.finish(); k.s.free(se)
    pf("lb")
    sh = srd(k, P['ws'], 8 << 20, WS_H)
    lasth = pass2c(k, I, acc, Pm, E1, E, sh, lambda q: None)
    pf("pass2")
    if O['wpos'] == 1: Wf, WX = WD.gather_all()
    while CL.nd < CL.n // 4: free.append(CL.drain())
    if O['wpos'] == 1: WD.fix(Wf, WX); free.extend([x for x in wsl if x != LX])
    if O['touch']: code_touch(k, I, 3, 16384, cd)
    k.wait(t1w); k("s_barrier")
    pf("bar1")
    vph = k.v.alloc()
    if O['sk']:
        tt = k.s.alloc()
        k(f"s_lshr_b32 {tt}, {I['tb']}, 3\ns_lshl2_add_u32 {tt}, {tt}, {I['w']}\ns_lshl_b32 {tt}, {tt}, 12\nv_lshl_add_u32 {vph}, {I['l']}, 7, {tt}")
        k.s.free(tt)
        p3 = Poll(k, sf, vph, 1, 1, FH, mask=0xffffffff)
    else:
        k(f"v_lshlrev_b32 {vph}, 7, v0")
        p3 = Poll(k, sf, vph, 1, 1, FH)
    def mark(i):
        if i == O['hmark']:
            k.wait(lasth); k("s_barrier")
            wave0_store(k, I, f"buffer_store_dword {one}, {vfh}, {sf}, {FH} offen {SC}", O['fm'])
            pf("hflag")
    with k.capture() as c5: ph2_mid(k, I, T, C2, Wf, WX, LT1, LT2, mark)
    acts = [c1act] * (64 - 4 * nlate - CL.n); print("C instr in mid:", len(acts))
    c5.weave(acts, O['pc'], O['leadc'])
    print("C instr left after mid:", len(acts))
    while acts: acts.pop(0)()
    pf("mid")
    if O['pollat'] == 0: p3.issue()
    k("s_waitcnt lgkmcnt(0)\ns_barrier")
    V2 = ph2_s6(k, I, C2, LT2)
    if O['pollat'] == 1: p3.issue()
    sv2 = srd(k, P['ws'], 256 * V2_STR, WS_V2)
    while CL.nd < CL.n // 4: CL.drain()
    with k.capture() as cv2:
        if O['v2s'] == -1: H['v2'] = v2_store(k, *V2, sv2)
    if not O['vp']: cv2.flush()
    with k.capture() as c7:
        g3 = (B3u if O['sk'] == 3 else B3s if O['sk'] else B3m if O['m32'] else B3h if O['two'] else B3g)(k, I, sh, CL)
        g3.alloc()
        (xd_initU if O['sk'] == 3 else xd_initS if O['sk'] else xd_init32 if O['m32'] else xd_init3 if O['two'] else xd_init2)(k, XK, Dk, g3.acc)
        if O['pollat'] == 2: p3.issue()
        if O['gseam'] == 2: H['G1'] = gen_GS(k, I) if O['sk'] else gen_G1b(k, dict(I, khs=5))
    acts = [vm1(cv2)] * 16 if O['vp'] else []
    c7.weave(acts, O['vp'])
    cv2.flush()
    pf("s6")
    p3.finish(); k.v.free(vph)
    k("s_waitcnt lgkmcnt(0)\ns_barrier")
    pf("sync3")
    if O['sk'] == 3: return tailU(k, I, O, P, H, locals())
    if O['sk'] == 2: return tailT(k, I, O, P, H, locals())
    if O['sk']: return tailS(k, I, O, P, H, locals())
    if O['m32']: return tail32(k, I, O, P, H, locals())
    if O['two']: return two_pass_tail(k, I, O, P, H, locals())
    acts = [lambda s=s, i=i: g3.dma(s, i) for s in range(3) for i in range(8)]
    G1 = None
    if O['gseam']:
        with k.capture() as cg: G1 = gen_G1b(k, I)
        for _ in range(2): acts.pop(0)()
        cg.weave(acts, 48)
    while acts: acts.pop(0)()
    so = srd(k, P['out'], SZ['out'])
    with k.capture() as f3a:
        if O['v2s'] >= 0: H['v2'] = v2_store(k, *V2, sv2)
    with k.capture() as f3b:
        if G1 is None: G1 = gen_G1b(k, I)
        FA = final_addr(k, I, 0, LX)
    pf("pref")
    p4 = Poll(k, sf, vpc, 1, 1, FV, sleep=16)
    VS = O['v2s']
    def pre_bar3(s):
        if s == VS + 3: k.wait(H['v2'])
        if s == 10:
            f3b.flush(); p4.finish()
        if s == 14: H['c'].flush(); k.wait(H['yw'])
    def post_bar3(s):
        if s == VS + 3: wave0_store(k, I, f"buffer_store_dword {one}, {vfc}, {sf}, {FV} offen {SC}")
        if O['touch'] and s == 5: code_touch(k, I, 1, 12288, cd)
        if s == 8: p4.issue()
        if s == 10:
            L2 = v2_issue2(k, I, sv2)
            with k.capture() as H['c']:
                H['yw'] = y_stage2(k, I, L2, LX)
        if s == 14:
            H['g'] = g_issue2(k, I, sg)
            with k.capture() as H['d']:
                H['G2'] = gen_G2(k, I, G1)
    def fill3(s, kk, q):
        if s == VS and f3a.left(): f3a.emit(2)
        if s == max(VS, 0) and kk == 1 and q == 15: f3a.flush()
        if s > VS and q >= 8: f3b.emit(2)
        if q == 15 and kk == 0 and 3 <= s < 3 + nlate: CL.drain()
        if q == 15 and kk == 1 and 1 <= s < 1 + nlate: CL.issue((LX, LT2)[s & 1])
        if s >= 13 and 'c' in H and q >= 6: H['c'].emit(O.get('yr') or 4)
        if 'd' in H and q >= 8: H['d'].emit(O.get('gr') or 4)
        if kk == 1 and q == 0 and s % 4 == 3: pf(f"b{s}")
    g3.main(fill3, pre_bar3, post_bar3, lambda Y: y_reads(FA, Y))
    assert CL.nd == 16
    H['d'].flush()
    pf("main3")
    final2(k, FA, H['g'], g3.acc, g3.fr, (G1, H['G2']), so, pf)
    pf("epi")
    pf.done()
    end(k)
    return k, LDS

def two_pass_tail(k, I, O, P, H, L):
    g3, CL, pf, sf, sg, sv2, V2, vpc, vfc, one, FV, cd, LX, LT2, nlate = [L[n] for n in 'g3 CL pf sf sg sv2 V2 vpc vfc one FV cd LX LT2 nlate'.split()]
    dq = [(s, i) for s in range(16) for i in range(8)]
    acts = [lambda: g3.dma(*dq.pop(0))] * (8 * O['pre3'])
    I2 = dict(I, khs=5); g3.catch = O['pre3'] == 2
    with k.capture() as cg: G1 = H.get('G1') or gen_G1b(k, I2)
    for _ in range(2): acts.pop(0)()
    cg.weave(acts, O['pg'])
    while acts: acts.pop(0)()
    so = srd(k, P['out'], SZ['out'])
    with k.capture() as f3a:
        if O['v2s'] >= 0: H['v2'] = v2_store(k, *V2, sv2)
    with k.capture() as f3b:
        FA = final_addr(k, I2, LT2, LX)
    pf("pref")
    p4 = Poll(k, sf, vpc, 1, 1, FV, sleep=16)
    VS = O['v2s']; PV = O['pv']; VF = O.get('vf', VS + 3); PF = PV + O['pd']; YS = PF + O['yd']; YB = YS + O['yl']; acc = g3.acc; ad = FA['ad']
    aa0 = lambda mm, ib: acc[0].q(4 * mm + 2 + ib)
    S = {}
    def cap(name, fn):
        with k.capture() as S[name]: fn()
    def pre_bar3(s):
        if s == VF: k.wait(H['v2'])
        if s == PF: f3b.flush(); p4.finish()
        if s == 8: S['xw'].flush(); k.wait(H['xw'])
        if s == YB: S['y'].flush(); k.wait(H['yw'])
    def post_bar3(s):
        if O['touch'] and s == 4: code_touch(k, I, 1, 16384, cd)
        if s == VF: wave0_store(k, I, f"buffer_store_dword {one}, {vfc}, {sf}, {FV} offen {SC}")
        if s == PV: p4.issue()
        if s == PF:
            L2 = v2_issue2(k, I, sv2)
            H['g'] = g_issue2(k, I2, sg)
            def f(): H['yw'] = y_stage2(k, I, L2, LX)
            cap('y', f)
        if s == 8:
            def f():
                k(f"v_xor_b32 {ad}, 0x1000, {ad}")
                for mm in range(2):
                    for ib in range(2): k(f"ds_read_b128 {aa0(mm,ib)}, {ad} offset:{1024*(2*mm+ib)}")
                k(f"v_xor_b32 {ad}, 0x1000, {ad}")
            f()
            def f2():
                for mm in range(2):
                    for ib in range(2):
                        for x in (0, 2): pk(k, '+', acc[0].q(4*mm+ib)[x:x+2], acc[0].q(4*mm+ib)[x:x+2], aa0(mm, ib)[x:x+2])
            cap('add', f2)
        if s == YB:
            H['Y'] = k.v.allocq(32)
            def f():
                for r in y_reads(FA, H['Y']): k(r)
            cap('yr', f)
            def f2():
                for m in ph3_list(G1, H['Y'], aa0): k(m)
            cap('m', f2)
            def f3():
                fin3(k, FA, H['g'], acc[0], aa0, so, 0, O['oaf'].replace('_', ''), True)
                for j in range(1, 32, 2): k(f"v_xor_b32 {G1[j]}, 0x80008000, {G1[j]}")
            cap('fin', f3)
    def fill3(s, u, q):
        if s == VS and f3a.left(): f3a.emit(2)
        if s == max(VS, 0) and u == 1 and q == 15: f3a.flush()
        if s > VS and q >= 8: f3b.emit(2)
        if q == 15 and u == 0 and 3 <= s < 3 + nlate: CL.drain()
        if q == 15 and u == 1 and 1 <= s < 1 + nlate: CL.issue((LX, LT2)[s & 1])
        if s == 8 and u == 0:
            if q == 0:
                def f():
                    for mm in range(2):
                        for ib in range(2): H['xw'] = k(f"ds_write_b128 {ad}, {aa0(mm,ib)} offset:{1024*(2*mm+ib)}")
                cap('xw', f)
            if q >= 8 and q & 1: S['xw'].emit(1)
        if s == 9 and u == 0 and q >= 8: S['add'].emit(O.get('yr') or 1)
        if s == 9 and u == 0 and q == 15: S['add'].flush()
        if 'y' in S and (s, u) >= (YS, 1) and q >= 8: S['y'].emit(O.get('yr') or -(-7 // O['yl']))
        if 'yr' in S:
            if S['yr'].left(): S['yr'].emit(3)
            elif S['m'].left():
                if (s, u) >= (YB + 1, 0) and q >= 8: S['m'].emit(2)
            elif (s, u) >= (max(YB + 1, O['fs']), 1) and (q >= 8 or s >= 13): S['fin'].emit(O['fr'])
        if u == 1 and q == 0 and (s % 4 == 3 or PROFSEL): pf(f"b{s}")
    g3.main(dq, fill3, pre_bar3, post_bar3)
    assert CL.nd == 16
    print("fin(a) left after main:", S['fin'].left())
    for n in ('yr', 'm', 'fin'): S[n].flush()
    pf("main3")
    ml = ph3_list(G1, H['Y'], aa0)
    wr = [f"ds_write_b128 {ad}, {acc[1].q(4*mm+2+ib)} offset:{1024*(2*mm+ib)}" for ib in range(2) for mm in range(2)]
    for j in range(8):
        k(ml.pop(0))
        if j & 1 == 0: k(wr.pop(0))
    k(f"v_xor_b32 {ad}, 0x1000, {ad}\ns_waitcnt lgkmcnt(0)\ns_barrier")
    pf("xbar")
    rd = [f"ds_read_b128 {acc[1].q(4*mm+2+ib)}, {ad} offset:{1024*(2*mm+ib)}" for ib in range(2) for mm in range(2)]
    while ml:
        k(ml.pop(0))
        if rd: k(rd.pop(0))
    fin3(k, FA, H['g'], acc[1], aa0, so, 1, O['obf'].replace('_', ''), False)
    pf("epi")
    k.v.free(g3.fr)
    pf.done()
    end(k)
    return k, L['LDS']

def tail32(k, I, O, P, H, L):
    g3, CL, pf, sf, sg, sv2, V2, vpc, vfc, one, FV, cd, LX, LT2, nlate = [L[n] for n in 'g3 CL pf sf sg sv2 V2 vpc vfc one FV cd LX LT2 nlate'.split()]
    dq = [(s, i) for s in range(16) for i in range(8)]
    acts = [lambda: g3.dma(*dq.pop(0))] * (8 * O['pre3'])
    g3.catch = O['pre3'] == 2
    with k.capture() as cg: G1 = gen_G32(k, I)
    if O['gseam']:
        for _ in range(2): acts.pop(0)()
        cg.weave(acts, O['pg'])
    while acts: acts.pop(0)()
    so = srd(k, P['out'], SZ['out'])
    with k.capture() as f3a:
        if O['v2s'] >= 0: H['v2'] = v2_store(k, *V2, sv2)
    with k.capture() as f3b:
        FA = final_addr32(k, I, LT2, LX)
    pf("pref")
    p4 = Poll(k, sf, vpc, 1, 1, FV, sleep=16)
    VS = O['v2s']; PV = O['pv']; VF = O.get('vf', VS + 3); PF = PV + O['pd']; YS = PF + O['yd']; YB = YS + O['yl']
    acc = g3.acc; ad = FA['ad']; aa = acc[0].q(1, 16); FR = O['rate']
    S = {}; XS = O['xs']; assert 8 <= XS and XS + 1 <= YB
    def addbf(y, p):
        for j in range(8):
            k(f"""v_lshlrev_b32 {p[8+j]}, 16, {p[j]}
            v_and_b32 {p[j]}, 0xffff0000, {p[j]}
            v_add_f32 {y[2*j]}, {y[2*j]}, {p[8+j]}
            v_add_f32 {y[2*j+1]}, {y[2*j+1]}, {p[j]}""")
    def cap(name, fn):
        with k.capture() as S[name]: fn()
    def pre_bar3(s):
        if s == VF: k.wait(H['v2'])
        if s == PF: f3b.flush(); cg.flush(); p4.finish()
        if s == XS: S['xw'].flush(); k.wait(H['xw'])
        if s == YB: S['vl'].flush(); S['y'].flush(); k.wait(H['yw'])
    def post_bar3(s):
        if O['touch'] and s == 4: code_touch(k, I, 1, 16384, cd)
        if s == VF: wave0_store(k, I, f"buffer_store_dword {one}, {vfc}, {sf}, {FV} offen {SC}")
        if s == PV: p4.issue()
        if s == PF:
            def f0():
                H['L2'] = v2_issue2(k, I, sv2)
            cap('vl', f0)
            S['vl'].emit(6)
            def f(): H['yw'] = y_stage2(k, I, H['L2'], LX, O['scal'])
            cap('y', f)
        if s == XS:
            k(f"v_xor_b32 {ad}, 0x1000, {ad}")
            for j in range(2): k(f"ds_read_b128 {aa.q(j)}, {ad} offset:{1024*j}")
            k(f"v_xor_b32 {ad}, 0x1000, {ad}")
            def f2(): addbf(acc[0].q(0, 16), aa)
            cap('add', f2)
        if s == YB:
            H['Y'] = k.v.allocq(32); H['g'] = k.v.allocq(16)
            def f():
                for r in y_reads32(FA, H['Y']): k(r)
            cap('yr', f)
            def f2():
                for m in ph3_list32(G1, H['Y'], aa): k(m)
            cap('m', f2)
            def f3():
                k.wait(H['gl']); g_read32(k, FA, H['g'], 0)
                for j in range(1, 32, 2): k(f"v_xor_b32 {G1[j]}, 0x80008000, {G1[j]}")
                fin32(k, FA, H['g'], acc[0].q(0, 16), None, aa, so, 0, O['oaf'].replace('_', ''), O['scal'])
                g_read32(k, FA, H['g'], 1)
            cap('fin', f3)
    def fill3(s, u, q):
        if s == VS and f3a.left(): f3a.emit(4)
        if s == max(VS, 0) and u == 1 and q == 7: f3a.flush()
        if s > VS:
            if f3b.left(): f3b.emit(FR)
            else: cg.emit(FR)
        if q == 7 and u == 0 and 3 <= s < 3 + nlate: CL.drain()
        if q == 7 and u == 1 and 1 <= s < 1 + nlate: CL.issue((LX, LT2)[s & 1])
        if s == 7 and u == 0 and q == 7: H['gl'] = g_dma32(k, I, FA, sg, LT2 + 2048)
        if s == XS and u == 0:
            if q == 0:
                def f():
                    for j in range(8): k(f"v_cvt_pk_bf16_f32 {aa[j]}, {aa[2*j]}, {aa[2*j+1]}")
                    for j in range(2): H['xw'] = k(f"ds_write_b128 {ad}, {aa.q(j)} offset:{1024*j}")
                cap('xw', f)
            if q >= 2: S['xw'].emit(2)
        if s == XS + 1: S['add'].emit(2)
        if s == XS + 1 and u == 1 and q == 7: S['add'].flush()
        if 'vl' in S and q == 7: S['vl'].emit(O['vr'])
        if 'y' in S and (s, u) >= (YS, 1):
            assert S['vl'].left() == 0
            S['y'].emit(O.get('yr') or -(-(10 if O['scal'] else 7) // O['yl']))
        if 'yr' in S:
            if S['yr'].left(): S['yr'].emit(O['yrr'])
            elif S['m'].left():
                if (s, u) >= (YB + 1, 1): S['m'].emit(1)
            elif (s, u) >= (max(YB + 2, O['fs']), 0): S['fin'].emit(O['fr'])
        if u == 1 and q == 0 and (s % 4 == 3 or PROFSEL): pf(f"b{s}")
    g3.main(dq, fill3, pre_bar3, post_bar3)
    assert CL.nd == 16
    print("fin(a) left after main:", S['fin'].left())
    for n in ('yr', 'm', 'fin'): S[n].flush()
    pf("main3")
    ml = ph3_list32(G1, H['Y'], aa); snt = acc[1].q(1, 16)
    y = acc[1].q(0, 16)
    if O['xb']:
        for j in range(2):
            k(ml.pop(0))
            for x in range(4 * j, 4 * j + 4): k(f"v_cvt_pk_bf16_f32 {snt[x]}, {snt[2*x]}, {snt[2*x+1]}")
            k(f"ds_write_b128 {ad}, {snt.q(j)} offset:{1024*j}")
        k(ml.pop(0)); k(ml.pop(0))
        k(f"v_xor_b32 {ad}, 0x1000, {ad}\ns_waitcnt lgkmcnt(0)\ns_barrier")
        pf("xbar")
        k(ml.pop(0))
        for j in range(2): k(f"ds_read_b128 {snt.q(j)}, {ad} offset:{1024*j}")
        while ml: k(ml.pop(0))
        addbf(y, snt)
    else:
        k(f"v_subrev_u32 {ad}, {LT2}, {ad}")
        for j in range(4): k(ml.pop(0)); k(f"ds_write_b128 {ad}, {snt.q(j)} offset:{1024*j}")
        k(ml.pop(0))
        k(f"v_xor_b32 {ad}, 0x1000, {ad}\ns_waitcnt lgkmcnt(0)\ns_barrier")
        pf("xbar")
        k(ml.pop(0))
        for j in range(4): k(f"ds_read_b128 {snt.q(j)}, {ad} offset:{1024*j}")
        while ml: k(ml.pop(0))
        for x in range(0, 16, 2): k(f"v_pk_add_f32 {y[x:x+2]}, {y[x:x+2]}, {snt[x:x+2]}")
    fin32(k, FA, H['g'], y, None, aa, so, 1, O['obf'].replace('_', ''))
    pf("epi")
    k.v.free(g3.fr)
    pf.done()
    end(k)
    return k, L['LDS']

def tailS(k, I, O, P, H, L):
    g3, CL, pf, sf, sg, sv2, V2, vpc, vfc, one, FV, FP, cd, LX, LT2, nlate = [L[n] for n in 'g3 CL pf sf sg sv2 V2 vpc vfc one FV FP cd LX LT2 nlate'.split()]
    assert O['v2s'] < 0
    hq = [(s, i) for s in range(16) for i in range(4)]
    cslots = [L['B2'], L['B3_'], LT2]
    def cnext():
        if CL.n & 3 == 0: H['cs'] = cslots.pop(0)
        CL.issue1(H['cs'])
    acts = [lambda: g3.dma(*hq.pop(0))] * (4 * O['pre3']) + [cnext] * (4 * min(nlate, O['cpre']))
    with k.capture() as cg:
        G1 = H.get('G1') or gen_GS(k, I)
    for _ in range(2): acts.pop(0)()
    cg.weave(acts, O['pg'])
    while acts: acts.pop(0)()
    if O['v2s'] == -2: H['v2'] = v2_store(k, *V2, sv2)
    with k.capture() as f3b:
        so = srd(k, P['out'], SZ['out']); spx = srd(k, P['ws'], 8 << 20, WS_PX)
        A = addrS(k, I, LX)
        spec = k.s.alloc(); vfl = k.v.alloc()
        k(f"s_lshr_b32 {spec}, {I['tb']}, 3\ns_or_b32 {spec}, {spec}, {I['w']}\ns_and_b32 {spec}, {spec}, 1\nv_lshlrev_b32 {vfl}, 2, {I['n']}")
    pf("pref")
    p4 = Poll(k, sf, vpc, 1, 1, FV, sleep=16)
    PV = O['pv']; VF = O['vf']; PF = PV + O['pd']; YS = PF + O['yd']; YB = YS + O['yl']; D = O['D']
    MS = max(YB + 1, 8); FL = O['fl']; PL = O['pl']
    acc = g3.acc; S = {}; BF = O['bf']
    def cap(name, fn):
        with k.capture() as S[name]: fn()
    def gload():
        for ib in range(4): k(f"buffer_load_dwordx4 {H['g'].q(ib)}, {A['vg']}, {sg}, {A['sg']} offen offset:{256*ib} {SC}")
    def mix(y, aa, b):
        g = H['g'].q(b & 3)
        for x in (0, 2): k(f"v_pk_add_f32 {aa.q(b)[x:x+2]}, {aa.q(b)[x:x+2]}, {y.q(b)[x:x+2]} neg_lo:[0,1] neg_hi:[0,1]")
        for x in (0, 2): k(f"v_pk_fma_f32 {y.q(b)[x:x+2]}, {g[x:x+2]}, {aa.q(b)[x:x+2]}, {y.q(b)[x:x+2]}")
    def vm(s, u, x):
        if x == 0:
            late_c = CL.n < 64 and cslots
            H['mode'] = 'c' if (late_c and u == 1) else ('h' if hq and hq[0][0] <= s + D - (1 - u) * 0 and hq[0][0] < s + u + g3.NR else None)
        if H['mode'] == 'c': cnext()
        if H['mode'] == 'h': g3.dma(*hq.pop(0))
    def pre_bar3(s):
        if s == VF: k.wait(H['v2'])
        if s == PF: f3b.flush(); p4.finish()
        if s == YB: S['y'].flush(); k.wait(H['yw'])
    def post_bar3(s):
        if O['touch'] and s == 4: code_touch(k, I, 1, 16384, cd)
        if s == VF: wave0_store(k, I, f"buffer_store_dword {one}, {vfc}, {sf}, {FV} offen {SC}")
        if s == PV: p4.issue()
        if s == PF:
            L2 = k.v.allocq(16)
            for j in range(4): k(f"buffer_load_dwordx4 {L2.q(j)}, {A['l16']}, {sv2}, {A['sv']} offen offset:{1024*j} {SC}")
            def f(): H['yw'] = y_stage2(k, I, L2, LX, False, spec)
            cap('y', f)
        if s == YB:
            H['Y'] = k.v.allocq(16); H['aa'] = aa = k.v.allocq(32); H['g'] = k.v.allocq(16); gload()
            for r in y_readsS(A, H['Y']): k(r)
            def f2():
                for m in ph3_listS(G1, H['Y'], aa): k(m)
            cap('m', f2)
            def f3():
                for j in range(1, 32, 2): k(f"v_xor_b32 {G1[j]}, 0x80008000, {G1[j]}")
                for b in range(8):
                    mix(acc[0], aa, b)
                    if BF:
                        for x in range(2): k(f"v_cvt_pk_bf16_f32 {acc[0][2*b+x]}, {acc[0][4*b+2*x]}, {acc[0][4*b+2*x+1]}")
                k(f"s_xor_b32 {A['sg']}, {A['sg']}, 1024")
            cap('fin', f3)
            def st1(b):
                if b == 4: k(f"s_add_u32 {A['px']}, {A['px']}, 4096")
                H['ps'] = k(f"buffer_store_dwordx4 {acc[0].q(b)}, {A['l16']}, {spx}, {A['px']} offen offset:{1024*(b&3)} {SC}")
            H['sq'] = [lambda b=b: st1(b) for b in range(4 if BF else 8)]
            def f4():
                for m in ph3_listS(G1, H['Y'], aa): k(m)
            cap('m2', f4)
        if s == FL:
            assert not H['sq'] and not S['fin'].left()
            k.wait(H['ps'])
            k(f"s_xor_b32 {A['px']}, {A['px']}, {8 << 15}")
            k(f"s_mov_b64 exec, 0xffff\nbuffer_store_dword {one}, {vfl}, {sf}, {FP} offen {SC}\ns_mov_b64 exec, -1\ns_xor_b32 {FP}, {FP}, {8 << 9}")
            H['p5'] = Poll(k, sf, vfl, 1, 1, FP, sleep=3, mask=1)
            gload()
    def pload():
        H['p5'].finish()
        def ld1(b):
            if b == 0 and not BF: k(f"s_sub_u32 {A['px']}, {A['px']}, 4096")
            k(f"buffer_load_dwordx4 {acc[0].q(b ^ (2 if BF else 4))}, {A['l16']}, {spx}, {A['px']} offen offset:{1024*(b&3)} {SC}")
        H['lq'] = [lambda b=b: ld1(b) for b in ((2, 0, 3, 1) if BF else (4, 5, 6, 7, 0, 1, 2, 3))]
    def fill3(s, u, q):
        if q >= 8: f3b.emit(2)
        if q == 15 and u == 0 and CL.nd < 16 and CL.nd < CL.n // 4 and (CL.nd < CL.n // 4 - O['clag'] or CL.n == 64 and s >= O.get('cend', 0) or CL.nd <= 2 * s + 3):
            cslots.append(CL.drain())
        if 'y' in S and (s, u) >= (YS, 1) and q >= 8: S['y'].emit(1000)
        if 'm' in S:
            if S['m'].left():
                if (s, u) >= (YB + 1, 0) and q >= 8: S['m'].emit(2)
            elif S['fin'].left():
                if (s, u) >= (MS, 1) and q >= 8: S['fin'].emit(O['fr'])
            elif (s, u) >= (O['m2s'], 0) and q >= 8: S['m2'].emit(2)
        if H.get('sq') and not S['fin'].left() and q % O['sr'] == O['sr'] - 1: H['sq'].pop(0)()
        if H.get('lq') and q % O['lr'] == O['lr'] - 1: H['lq'].pop(0)()
        if 2 * s + u == PL and q == 8: H['p5'].issue()
        if 2 * s + u == PL + O['pld'] and q == 8: pload()
        if u == 1 and q == 0 and (s % 4 == 3 or PROFSEL): pf(f"b{s}")
    g3.main(vm, fill3, pre_bar3, post_bar3)
    assert CL.nd == 16 and not hq
    for n in ('m', 'fin', 'm2'): S[n].flush()
    pf("main3")
    if PL + O['pld'] > 31: pload()
    while H['lq']: H['lq'].pop(0)()
    y = acc[1]; aa = H['aa']; va, so_ = A['va'], A['so']
    for ib in range(4):
        for mm in range(2):
            b = 4 * mm + ib
            mix(y, aa, b)
            for x in (0, 2):
                p_ = acc[0].q(b)[x:x+2]
                if BF:
                    p_ = acc[0].q(4 + (b & 3))[x:x+2]; src = acc[0][2 * b + x // 2]
                    k(f"v_lshlrev_b32 {p_[0]}, 16, {src}\nv_and_b32 {p_[1]}, 0xffff0000, {src}")
                k(f"v_pk_add_f32 {y.q(b)[x:x+2]}, {y.q(b)[x:x+2]}, {p_}")
        for r in range(4):
            for mm in range(2): k(f"buffer_store_dword {y.q(4*mm+ib)[r]}, {va[mm]}, {so}, {so_} offen {O['obf'].replace('_', '')}")
            if (ib, r) != (3, 3): k(f"s_add_u32 {so_}, {so_}, {(1<<16) if r < 3 else (1<<20) - 3*(1<<16)}")
    pf("epi")
    k.v.free(g3.fr)
    pf.done()
    end(k)
    return k, L['LDS']

def tailT(k, I, O, P, H, L):
    g3, CL, pf, sf, sg, sv2, V2, vpc, vfc, one, FV, cd, LX, LT2, nlate = [L[n] for n in 'g3 CL pf sf sg sv2 V2 vpc vfc one FV cd LX LT2 nlate'.split()]
    g3.split = bool(O['eo'])
    hq = [(s, i) for s in range(16) for i in range(4)]
    cslots = [L['B2'], L['B3_'], LT2]
    def cnext():
        if CL.n & 3 == 0: H['cs'] = cslots.pop(0)
        CL.issue1(H['cs'])
    acts = [lambda: g3.dma(*hq.pop(0))] * (4 * O['pre3']) + [cnext] * (4 * min(nlate, O['cpre']))
    with k.capture() as cg:
        G1 = H.get('G1') or gen_GS(k, I)
    for _ in range(2): acts.pop(0)()
    cg.weave(acts, O['pg'])
    while acts: acts.pop(0)()
    if O['v2s'] == -2: H['v2'] = v2_store(k, *V2, sv2)
    with k.capture() as f3b:
        so = srd(k, P['out'], SZ['out']); spx = srd(k, P['ws'], 256 * V1_STR, WS_V1)
        A = addrS(k, I, LX)
        spec = k.s.alloc()
        k(f"s_lshr_b32 {spec}, {I['tb']}, 3\ns_or_b32 {spec}, {spec}, {I['w']}\ns_and_b32 {spec}, {spec}, 1\ns_lshr_b32 {A['px']}, {A['px']}, 1")
        psel = k.s.alloc(); k(f"s_mov_b32 {psel}, 0x07060302")
    with k.capture() as f3a:
        if O['v2s'] >= 0: H['v2'] = v2_store(k, *V2, sv2)
    pf("pref")
    p4 = Poll(k, sf, vpc, 1, 1, FV, sleep=16)
    PV = O['pv']; VF = O['vf']; PF = PV + O['pd']; YS = PF + O['yd']; YB = YS + O['yl']; D = O['D']
    MS = max(YB + 1, 8); PL = O['pl']
    if O['bars']:
        g3.bars = [-1] + [int(c, 16) for c in str(O['bars'])[1:]]; assert all(x in g3.bars for x in (VF, PF, YB))
    acc = g3.acc; S = {}; va, so_ = A['va'], A['so']
    PK, UN = acc[0][0:16], acc[0][16:32]
    def cap(name, fn):
        with k.capture() as S[name]: fn()
    def gload():
        for ib in range(4): k(f"buffer_load_dwordx4 {H['g'].q(ib)}, {A['vg']}, {sg}, {A['sg']} offen offset:{256*ib} {SC}")
    def mix(y, aa, b):
        g = H['g'].q(b & 3)
        for x in (0, 2): k(f"v_pk_add_f32 {aa.q(b)[x:x+2]}, {aa.q(b)[x:x+2]}, {y.q(b)[x:x+2]} neg_lo:[0,1] neg_hi:[0,1]")
        for x in (0, 2): k(f"v_pk_fma_f32 {y.q(b)[x:x+2]}, {g[x:x+2]}, {aa.q(b)[x:x+2]}, {y.q(b)[x:x+2]}")
    def ld1(j): return k(f"buffer_load_dwordx4 {PK.q(j ^ 2)}, {A['l16']}, {spx}, {A['px']} offen offset:{1024*j} {SC}")
    def check():
        m = UN[0]
        def chk():
            k(f"v_and_b32 {m}, 1, {PK[0]}")
            for j in range(1, 15, 2): k(f"v_bitop3_b32 {m}, {m}, {PK[j]}, {PK[j+1]} bitop3:0x80")
            k(f"v_and_b32 {m}, {m}, {PK[15]}\nv_cmp_eq_u32 vcc, 0, {m}")
        k.wait(H['ll']); chk()
        with k.skip_if("s_cbranch_vccz"):
            cnt = k.s.alloc(); lp, out = k.lab('px'), k.lab('pxout')
            k(f"s_mov_b32 {cnt}, 0\n{lp}:\ns_sleep 2")
            for j in range(4): ld1(j)
            k("s_waitcnt vmcnt(0)"); chk()
            k(f"s_cbranch_vccz {out}\ns_add_u32 {cnt}, {cnt}, 1\ns_cmp_lt_u32 {cnt}, {1<<20}\ns_cbranch_scc1 {lp}\n{out}:")
            k.s.free(cnt)
    def fin(ib, flags):
        y, aa = acc[1], H['aa']
        for mm in range(2):
            b = 4 * mm + ib
            mix(y, aa, b)
            for x in (0, 2):
                p_ = UN.q(2 * (ib & 1) + mm)[x:x+2]; src = PK[2 * b + x // 2]
                k(f"v_lshlrev_b32 {p_[0]}, 16, {src}\nv_and_b32 {p_[1]}, 0xffff0000, {src}\nv_pk_add_f32 {y.q(b)[x:x+2]}, {y.q(b)[x:x+2]}, {p_}")
        for r in range(4):
            for mm in range(2): k(f"buffer_store_dword {y.q(4*mm+ib)[r]}, {va[mm]}, {so}, {so_} offen {flags}")
            if (ib, r) != (3, 3): k(f"s_add_u32 {so_}, {so_}, {(1<<16) if r < 3 else (1<<20) - 3*(1<<16)}")
    def vm(s, u, x):
        if x == 0:
            late_c = CL.n < 64 and cslots
            H['mode'] = 'c' if (late_c and u == 1) else ('h' if hq and hq[0][0] <= s + D and hq[0][0] <= g3.freed + g3.NR else None)
        if H['mode'] == 'c': cnext()
        if H['mode'] == 'h': g3.dma(*hq.pop(0))
    def pre_bar3(s):
        if s == VF and not O.get('nofv'): f3a.flush(); k.wait(H['v2'])
        if s == PF: f3b.flush(); f3a.flush()
        if s == PF and not O.get('nofv'): p4.finish()
        if s == YB: S['y'].flush(); k.wait(H['yw'])
    def post_bar3(s):
        if O['touch'] and s == 4: code_touch(k, I, 1, 16384, cd)
        if s == VF and not O.get('nofv'): wave0_store(k, I, f"buffer_store_dword {one}, {vfc}, {sf}, {FV} offen {SC}")
        if s == PV and not O.get('nofv'): p4.issue()
        if s == PF:
            L2 = k.v.allocq(16)
            for j in range(4): k(f"buffer_load_dwordx4 {L2.q(j)}, {A['l16']}, {sv2}, {A['sv']} offen offset:{1024*j} {SC}")
            def f(): H['yw'] = y_stage2(k, I, L2, LX, False, spec)
            cap('y', f)
        if s == YB:
            H['Y'] = k.v.allocq(16); H['aa'] = aa = k.v.allocq(32); H['g'] = k.v.allocq(16); gload()
            for r in y_readsS(A, H['Y']): k(r)
            def f2():
                for m in ph3_listS(G1, H['Y'], aa): k(m)
            cap('m', f2)
            def f3():
                for j in range(1, 32, 2): k(f"v_xor_b32 {G1[j]}, 0x80008000, {G1[j]}")
                for b in range(8):
                    mix(acc[0], aa, b)
                    for x in range(2): k(f"v_perm_b32 {PK[2*b+x]}, {acc[0][4*b+2*x+1]}, {acc[0][4*b+2*x]}, {psel}")
                    for x in range(2): k(f"v_or_b32 {PK[2*b+x]}, 0x10001, {PK[2*b+x]}")
                    if b & 1: k(f"buffer_store_dwordx4 {PK.q(b>>1)}, {A['l16']}, {spx}, {A['px']} offen offset:{1024*(b>>1)} {SC}")
                k(f"s_xor_b32 {A['sg']}, {A['sg']}, 1024\ns_xor_b32 {A['px']}, {A['px']}, {8 << 14}")
            cap('fin', f3)
            cap('m2', f2)
    def fill3(s, u, q):
        hs = 2 * s + u
        if hs >= O['v2s'] and q % O['v2r'] == 1: f3a.emit(2)
        if q >= 8: f3b.emit(2)
        if q == 15 and u == 0 and CL.nd < 16 and CL.nd < CL.n // 4 and (CL.nd < CL.n // 4 - O['clag'] or CL.n == 64 or CL.nd <= 2 * s + 3):
            cslots.append(CL.drain())
        if 'y' in S and (s, u) >= (YS, 1) and q >= 8: S['y'].emit(1000)
        if 'm' in S:
            if S['m'].left():
                if (s, u) >= (YB + 1, 0) and q >= 8: S['m'].emit(2)
            elif S['fin'].left():
                if (s, u) >= (MS, 1) and q >= 8: S['fin'].emit(O['fr'])
            elif (s, u) >= (O['m2s'], 0) and q >= 8: S['m2'].emit(2)
        if hs == PL - 1 and q == 15: assert not S['fin'].left(); gload()
        if hs == PL and q >= 9 and q & 1: H['ll'] = ld1((q - 9) // 2)
        if hs == PL + O['pld'] and q == 8: check()
        if O['eo'] and hs == O['es'] and q == 8:
            assert hs >= 24 and hs >= PL + O['pld'] and not S['m2'].left()
            cap('eo', lambda: (fin(0, 'sc1'), fin(1, 'sc1')))
        if 'eo' in S:
            g_ = S['eo'].groups
            if g_ and not any(i.cls == 'vm' for i in g_[0]):
                while g_ and not any(i.cls == 'vm' for i in g_[0]): S['eo'].emit(1)
            elif q % O['er'] == 0: S['eo'].emit(1)
        if u == 1 and q == 0 and (s % 4 == 3 or PROFSEL): pf(f"b{s}")
    g3.main(vm, fill3, pre_bar3, post_bar3)
    assert CL.nd == 16 and not hq
    for n in S: S[n].flush()
    pf("main3")
    for ib in range(2 if O['eo'] else 0, 4): fin(ib, O['obf'].replace('_', ''))
    pf("epi")
    k.v.free(g3.fr)
    pf.done()
    end(k)
    return k, L['LDS']

def tailU(k, I, O, P, H, L):
    g3, CL, pf, sf, sg, sv2, V2, vpc, vfc, one, FV, cd, LX, LT2, nlate = [L[n] for n in 'g3 CL pf sf sg sv2 V2 vpc vfc one FV cd LX LT2 nlate'.split()]
    hq = [(s, i) for s in range(16) for i in range(4)]
    cslots = [L['B2'], L['B3_']]; VS = O['v2s']
    def cnext():
        if CL.n & 3 == 0: H['cs'] = cslots.pop(0)
        CL.issue1(H['cs'])
    acts = [lambda: g3.dma(*hq.pop(0))] * (4 * O['pre3']) + [cnext] * (4 * min(nlate, O['cpre']))
    with k.capture() as f3b:
        so = srd(k, P['out'], SZ['out']); spx = srd(k, P['ws'], 256 * V1_STR, WS_V1)
        A = addrU(k, I, LX, LT2)
        spec = k.s.alloc(); psel = k.s.alloc()
        k(f"s_lshr_b32 {spec}, {I['tb']}, 3\ns_or_b32 {spec}, {spec}, {I['w']}\ns_and_b32 {spec}, {spec}, 1\ns_mov_b32 {psel}, 0x07060302")
        G1 = gen_GU(k, I)
    for _ in range(2): acts.pop(0)()
    while acts: f3b.run(O['pg']); acts.pop(0)()
    f3b.run(O['gx'])
    with k.capture() as f3a:
        if VS >= 0: H['v2'] = v2_store(k, *V2, sv2)
    pf("pref")
    p4 = Poll(k, sf, vpc, 1, 1, FV, sleep=16)
    PV = O['pv']; VF = O['vf']; PF = PV + O['pd']; YS = PF + O['yd']; YB = YS + O['yl']; D = O['D']
    MS = max(YB + 1, 8); PL = O['pl']; R_ = O['rate']
    acc = g3.acc; S = {}; va, so_ = A['va'], A['so']
    PK, UN = acc[0].q(0, 16), acc[0].q(1, 16)
    def cap(name, fn):
        with k.capture() as S[name]: fn()
    def gread(p, rb):
        for j in range(4): k(f"ds_read_b128 {H['g'].q(j)}, {A['vg']} offset:{256*p + 128*rb + 32*j}")
    def mix(y, aa, r, scal):
        g = H['g']
        if scal:
            for x in (r, r + 1): k(f"v_sub_f32 {aa[x]}, {aa[x]}, {y[x]}")
            for x in (r, r + 1): k(f"v_fmac_f32 {y[x]}, {g[x]}, {aa[x]}")
        else: k(f"v_pk_add_f32 {aa[r:r+2]}, {aa[r:r+2]}, {y[r:r+2]} neg_lo:[0,1] neg_hi:[0,1]\nv_pk_fma_f32 {y[r:r+2]}, {g[r:r+2]}, {aa[r:r+2]}, {y[r:r+2]}")
    def ld1(j): return k(f"buffer_load_dwordx4 {PK.q(j)}, {A['l16']}, {spx}, {A['px']} offen offset:{1024*j} {SC}")
    def check():
        m = UN[0]
        def chk():
            k(f"v_and_b32 {m}, 1, {PK[0]}")
            for j in range(1, 15, 2): k(f"v_bitop3_b32 {m}, {m}, {PK[j]}, {PK[j+1]} bitop3:0x80")
            k(f"v_and_b32 {m}, {m}, {PK[15]}\nv_cmp_eq_u32 vcc, 0, {m}")
        k.wait(H['ll']); chk()
        with k.skip_if("s_cbranch_vccz"):
            cnt = k.s.alloc(); lp, out = k.lab('px'), k.lab('pxout')
            k(f"s_mov_b32 {cnt}, 0\n{lp}:\ns_sleep 2")
            for j in range(4): ld1(j)
            k("s_waitcnt vmcnt(0)"); chk()
            k(f"s_cbranch_vccz {out}\ns_add_u32 {cnt}, {cnt}, 1\ns_cmp_lt_u32 {cnt}, {1<<20}\ns_cbranch_scc1 {lp}\n{out}:")
            k.s.free(cnt)
    def unpack(rb):
        for r in range(0, 16, 2):
            src = PK[8 * rb + r // 2]
            k(f"v_lshlrev_b32 {UN[r]}, 16, {src}\nv_and_b32 {UN[r+1]}, 0xffff0000, {src}")
    def fin(rb, flags, scal):
        y, aa = acc[1].q(rb, 16), H['aa'].q(rb, 16)
        for r in range(0, 16, 2):
            mix(y, aa, r, scal)
            if scal:
                for x in (r, r + 1): k(f"v_add_f32 {y[x]}, {y[x]}, {UN[x]}")
            else: k(f"v_pk_add_f32 {y[r:r+2]}, {y[r:r+2]}, {UN[r:r+2]}")
            for x in (r, r + 1):
                k(f"buffer_store_dword {y[x]}, {va}, {so}, {so_} offen {flags}")
                if (rb, x) != (1, 15): k(f"s_add_u32 {so_}, {so_}, {(1 if x & 3 < 3 else 5) << 16}")
    def vm(s, u, x):
        if x == 0:
            late_c = CL.n < 64 and cslots
            H['mode'] = 'c' if (late_c and u == 1) else ('h' if hq and hq[0][0] <= s + D and hq[0][0] < s + u + g3.NR else None)
        if H['mode'] == 'c': cnext()
        if H['mode'] == 'h': g3.dma(*hq.pop(0))
    def pre_bar3(s):
        if s == VF: f3a.flush(); k.wait(H['v2'])
        if s == PF: f3b.flush(); p4.finish()
        if s == YB: S['y'].flush(); k.wait(H['yw'])
    def post_bar3(s):
        if O['touch'] and s == 4: code_touch(k, I, 1, 16384, cd)
        if s == VF: wave0_store(k, I, f"buffer_store_dword {one}, {vfc}, {sf}, {FV} offen {SC}")
        if s == PV: p4.issue()
        if s == PF:
            L2 = k.v.allocq(16)
            for j in range(4): k(f"buffer_load_dwordx4 {L2.q(j)}, {A['l16']}, {sv2}, {A['sv']} offen offset:{1024*j} {SC}")
            k(f"""s_lshl_b32 m0, {I['w']}, 12
            s_add_u32 m0, m0, {LT2}
            buffer_load_dword {A['gg']}, {sg}, {A['sg']} offen {SC} lds
            s_xor_b32 {A['sg']}, {A['sg']}, 1024
            s_add_u32 m0, m0, 256""")
            H['gl'] = k(f"buffer_load_dword {A['gg']}, {sg}, {A['sg']} offen {SC} lds")
            k.v.free(A['gg'])
            def f(): H['yw'] = y_stage2(k, I, L2, LX, O['scal'], spec)
            cap('y', f)
        if s == YB:
            H['Y'] = Y = k.v.allocq(16); H['aa'] = aa = k.v.allocq(32, 16); H['g'] = k.v.allocq(16)
            for kap in range(4):
                for h in range(2): k(f"ds_read_b64_tr_b16 {Y[4*kap+2*h:4*kap+2*h+2]}, {A['ay']} offset:{512*kap + 128*h}")
            def f2():
                for kap in range(4):
                    for rb in range(2): k(f"v_mfma_f32_32x32x16_bf16 {aa.q(rb,16)}, {G1.q(4*rb+kap)}, {Y.q(kap)}, {aa.q(rb,16) if kap else 0}")
            cap('m', f2)
            def f3():
                k.wait(H['gl'])
                for rb in range(2):
                    gread(0, rb)
                    for j in range(16 * rb + 1, 16 * rb + 16, 2): k(f"v_xor_b32 {G1[j]}, 0x80008000, {G1[j]}")
                    y = acc[0].q(rb, 16)
                    for r in range(0, 16, 2):
                        mix(y, aa.q(rb, 16), r, O['scal']); o = PK[8 * rb + r // 2]
                        k(f"v_perm_b32 {o}, {y[r+1]}, {y[r]}, {psel}\nv_or_b32 {o}, 0x10001, {o}")
                        if r & 7 == 6: k(f"buffer_store_dwordx4 {PK.q(2*rb + (r>>3))}, {A['l16']}, {spx}, {A['px']} offen offset:{1024*(2*rb + (r>>3))} {SC}")
                k(f"s_xor_b32 {A['px']}, {A['px']}, {8 << 14}")
            cap('fin', f3)
            cap('m2', f2)
    def fill3(s, u, q):
        hs = 2 * s + u
        if s >= VS and f3a.left():
            if q % O['v2r'] == 0: f3a.emit(2)
        f3b.emit(R_)
        if q == 7 and u == 0 and CL.nd < 16 and CL.nd < CL.n // 4 and (CL.nd < CL.n // 4 - O['clag'] or CL.n == 64 or CL.nd <= 2 * s + 3):
            cslots.append(CL.drain())
        if 'y' in S and (s, u) >= (YS, 1): S['y'].emit(O['yr'])
        if 'm' in S:
            if S['m'].left():
                if (s, u) >= (YB + 1, 0): S['m'].emit(1)
            elif S['fin'].left():
                if (s, u) >= (MS, 1): S['fin'].emit(O['fr'])
            elif (s, u) >= (O['m2s'], 0): S['m2'].emit(1)
        if hs == PL and q >= 4: assert not S['fin'].left(); H['ll'] = ld1(q - 4)
        if hs == PL + O['pld'] and q == 4: check()
        if hs == O['es'] and q == 5:
            assert hs >= 24 and hs >= PL + O['pld'] and not S['m2'].left()
            cap('eo', lambda: (gread(1, 0), unpack(0), fin(0, 'sc1', O['scal']), gread(1, 1), unpack(1)))
        if 'eo' in S: S['eo'].emit(O['er'])
        if u == 1 and q == 0 and (s % 4 == 3 or PROFSEL): pf(f"b{s}")
    g3.main(vm, fill3, pre_bar3, post_bar3)
    assert CL.nd == 16 and not hq
    print("eo left", S['eo'].left())
    for n in S: S[n].flush()
    pf("main3")
    fin(1, O['obf'].replace('_', ''), False)
    pf("epi")
    k.v.free(g3.fr)
    pf.done()
    end(k)
    return k, L['LDS']

def write(path, opt={}):
    k, lds = build(opt)
    open(path, "w").write(module(header(), [(k.name, 256, 256, lds)], [k]))
    print(path, k.stats)
    if os.environ.get('SEG'): k.segstats()
    if PROF: json.dump([k.profnames], open(path[:-2] + ".json", "w"))

if __name__ == "__main__":
    opt = {}
    for a in sys.argv[2:]:
        n, v = a.split("="); opt[n] = int(v) if v.lstrip('-').isdigit() else v
    write(sys.argv[1] if len(sys.argv) > 1 else "outf.s", opt)
```

```python
import sys, json, re
from fused import *
from opt1 import *
from b32 import *
from b3s import *

class WDir:
    def __init__(self, k, I, T, swr, swi, lt2):
        self.k, self.I, self.T, self.sw, self.lt2 = k, I, T, (swr, swi), lt2
        self.rows = k.s.alloc(8, 4)
        self.va = k.v.alloc(); self.mw = k.s.alloc(); self.so = k.s.alloc()
        st = k.s.alloc(); R_ = self.rows
        k(f"""s_lshl_b32 {R_[0]}, {I['w']}, 9
        s_add_u32 {R_[0]}, {R_[0]}, {T['ks']}
        s_lshr_b32 {st}, {I['w']}, 1
        s_and_b32 {st}, {st}, {T['sp']}
        s_mul_i32 {st}, {st}, 960
        s_sub_u32 {R_[0]}, {R_[0]}, {st}""")
        for b in range(1, 4): k(f"s_add_u32 {R_[2*b]}, {R_[0]}, {128*b}")
        for b in range(4): k(f"s_sub_u32 {R_[2*b+1]}, 2048, {R_[2*b]}\ns_and_b32 {R_[2*b+1]}, {R_[2*b+1]}, 2047")
        self.spw = k.s.alloc()
        k(f"""s_cmp_eq_u32 {I['w']}, 0
        s_cselect_b32 {self.spw}, {T['sp']}, 0
        s_cmp_eq_u32 {self.spw}, 1
        s_cselect_b32 {R_[1]}, 1024, {R_[1]}""")
        for j in range(8): k(f"s_mul_i32 {R_[j]}, {R_[j]}, 1026")
        k(f"v_lshlrev_b32 {self.va}, 4, {I['l']}\ns_lshl_b32 {self.mw}, {I['w']}, 12")
        k.s.free(st)
        self.n = 0; self.slot = {}; self.ld = None
    def issue1(self, slot):
        k = self.k; b, q = self.n >> 2, self.n & 3
        if q == 0: self.slot[b] = slot
        if q & 1 == 0: k(f"s_and_b32 {self.so}, {self.rows[2*b+(q>>1)]}, -16")
        k(f"s_add_u32 m0, {self.mw}, {self.slot[b] + 1024*q}")
        self.ld = k(f"buffer_load_dwordx4 {self.va}, {self.sw[q&1]}, {self.so} offen lds")
        self.n += 1
    def tail_issue(self):
        k = self.k; self.tc = k.v.allocq(8); ta = k.v.alloc()
        k(f"v_mov_b32 {ta}, {BIG}")
        for j in range(8): k(f"v_writelane_b32 {ta}, {self.rows[j]}, {j}")
        k(f"v_and_b32 {ta}, -16, {ta}")
        k("s_mov_b64 exec, 255")
        for a in range(2): k(f"buffer_load_dwordx4 {self.tc.q(a)}, {ta}, {self.sw[a]}, 0 offen offset:1024")
        k("s_mov_b64 exec, -1")
        k.v.free(ta)
    def tail_write(self):
        k = self.k; ad = k.v.alloc(); st = k.s.alloc()
        k(f"""s_lshl_b32 {st}, {self.I['w']}, 8
        s_add_u32 {st}, {st}, {self.lt2}
        v_lshl_add_u32 {ad}, {self.I['l']}, 11, {st}
        s_mov_b64 exec, 255
        ds_write_b128 {ad}, {self.tc.q(0)}
        ds_write_b128 {ad}, {self.tc.q(1)} offset:1024
        s_mov_b64 exec, -1""")
        k.v.free(ad, self.tc); k.s.free(st, self.so, *self.sw); k.v.free(self.va)
    def prep(self):
        k, I, T = self.k, self.I, self.T
        self.a0, self.a3, self.sg = k.v.alloc(), k.v.alloc(), k.v.alloc(2); self.up = k.s.alloc(2); self.ov = k.s.alloc(2)
        self.d, self.m = k.s.alloc(), k.s.alloc(); t = k.v.alloc(); tb = k.s.alloc(); a0, a3 = self.a0, self.a3
        k(f"""s_and_b32 {self.d}, {self.rows[0]}, 15
        s_and_b32 {self.m}, {self.rows[1]}, 15
        s_add_u32 {self.m}, {self.m}, 2048
        v_lshlrev_b32 {a0}, 9, {I['g']}
        v_lshl_add_u32 {a0}, {I['n']}, 3, {a0}
        s_lshl_b32 {tb}, {T['k1']}, 1
        v_add_u32 {a0}, {tb}, {a0}
        s_add_u32 {tb}, {self.m}, 1664
        v_sub_u32 {t}, {tb}, {a0}
        v_add_u32 {a0}, {self.d}, {a0}
        v_cmp_lt_u32 {self.up}, 1, {I['g']}
        v_cndmask_b32 {a0}, {a0}, {t}, {self.up}
        v_cndmask_b32 {self.sg[0]}, 1.0, -1.0, {self.up}
        v_add_u32 {a3}, 384, {a0}
        v_and_b32 {t}, 1024, {a3}
        v_cmp_ne_u32 {self.ov}, 0, {t}
        s_lshl_b32 {tb}, {I['w']}, 8
        s_add_u32 {tb}, {tb}, {self.lt2 - 1024}
        v_add_u32 {t}, {tb}, {a3}
        v_add_u32 {a0}, {self.mw}, {a0}
        v_add_u32 {a3}, {self.mw}, {a3}
        v_cndmask_b32 {a3}, {a3}, {t}, {self.ov}
        v_sub_u32 {a3}, {a3}, {a0}
        v_cndmask_b32 {self.sg[1]}, 0, -1, {self.ov}""")
        k.v.free(t); k.s.free(tb)
    def gather(self, b, out, second=False):
        k, I, T = self.k, self.I, self.T
        a0, a3 = k.v.alloc(), k.v.alloc()
        k(f"""v_add_u32 {a0}, {self.slot[b]}, {self.a0}
        v_and_b32 {a3}, {hex((4096*b - self.slot[b]) & 0xffffffff)}, {self.sg[1]}
        v_add3_u32 {a3}, {a3}, {self.a3}, {a0}""")
        if b == 0:
            k(f"s_cmp_eq_u32 {self.spw}, 0")
            with k.skip_if("s_cbranch_scc1"):
                if second: k(f"s_mov_b32 exec_hi, 0\nv_add_u32 {a0}, 2048, {a0}\nv_add_u32 {a3}, 2048, {a3}\ns_mov_b64 exec, -1")
                else: k(f"s_mov_b32 exec_lo, 0\nv_subrev_u32 {a0}, 2048, {a0}\nv_subrev_u32 {a3}, 2048, {a3}\ns_mov_b64 exec, -1")
        last = None
        for r in range(4):
            for a in range(2):
                last = k(f"ds_read_u16_d16_hi {out[4*a+r]}, {a0 if r < 3 else a3} offset:{(128*r if r < 3 else 0) + 1024*a}")
        k.v.free(a0, a3)
        return last
    def symm(self, outs):
        k, I = self.k, self.I
        al = k.v.allocq(2 * len(outs), 2); t = k.v.alloc(2); d, m = k.s.alloc(), k.s.alloc()
        for j, (b, out, second) in enumerate(outs):
            k(f"""s_add_u32 {m}, {self.m}, {self.mw}
            s_add_u32 {m}, {m}, {self.slot[b]}
            s_lshl_b32 {d}, {I['w']}, 8
            s_add_u32 {d}, {d}, {self.d}
            s_add_u32 {d}, {d}, {self.lt2 + 4096*b}""")
            if b == 0:
                k(f"s_lshl_b32 vcc_lo, {self.spw}, 11")
                k(f"s_add_u32 {d}, {d}, vcc_lo" if second else f"s_sub_u32 {m}, {m}, vcc_lo")
            k(f"""v_mov_b32 {t[0]}, {m}
            v_mov_b32 {t[1]}, {d}
            v_cndmask_b32 {t[0]}, {t[0]}, {t[1]}, {self.up}
            ds_read_u16_d16_hi {al[2*j]}, {t[0]}
            ds_read_u16_d16_hi {al[2*j+1]}, {t[0]} offset:1024""")
        k("s_waitcnt lgkmcnt(0)")
        for lo, r in ((True, 0), (False, 3)):
            k(f"s_mov_b32 exec_lo, {1 if lo else 0}\ns_mov_b32 exec_hi, {0 if lo else 1}")
            for j, (b, out, second) in enumerate(outs):
                k(f"""v_add_f32 {out[r]}, {out[r]}, {al[2*j]}
                v_sub_f32 {out[4+r]}, {out[4+r]}, {al[2*j+1]}
                v_mul_f32 {out[r]}, 0.5, {out[r]}
                v_mul_f32 {out[4+r]}, 0.5, {out[4+r]}""")
        k("s_mov_b64 exec, -1")
        k.v.free(al, t); k.s.free(d, m)
    def sign(self, out):
        for h in (4, 6): self.k(f"v_pk_mul_f32 {out[h:h+2]}, {self.sg}, {out[h:h+2]} op_sel_hi:[0,1]")
    def done(self):
        self.k.v.free(self.a0, self.a3, self.sg); self.k.s.free(self.rows, self.mw, self.spw, self.up, self.ov, self.d, self.m)

def mf2(k, M, data_is_A, d, o):
    for c in range(2):
        A, B = (d, M.q(c)) if data_is_A else (M.q(c), d)
        k(f"v_mfma_f32_16x16x32_bf16 {o.q(c)}, {A}, {B}, 0")

def ph2_w(k, T, WD):
    Wf = k.v.allocq(32); X = k.v.allocq(8)
    k.wait(WD.ld)
    k(f"s_cmp_eq_u32 {T['sp']}, 0")
    with k.skip_if("s_cbranch_scc1"):
        WD.gather(0, X, True)
    for b in range(4): WD.lastrd = WD.gather(b, Wf.q(b, 8))
    return Wf, X

def ph2_wfix(k, T, WD, Wf, X):
    k.wait(WD.lastrd)
    k(f"s_cmp_lg_u32 {T['k1']}, 0")
    with k.skip_if("s_cbranch_scc1"):
        WD.symm([(b, Wf.q(b, 8), False) for b in range(4)] + [(0, X, True)])
    for b in range(4): WD.sign(Wf.q(b, 8))
    WD.sign(X)
    WD.done()

def ph2_s1(k, I, C, L, lds1):
    D = k.v.allocq(8); acc = k.v.allocq(16); a0, ad = k.v.alloc(), k.v.alloc(); st = k.s.alloc()
    k(f"""v_and_b32 {a0}, 7, {I['n']}
    v_lshlrev_b32 {ad}, 2, {I['g']}
    v_xor_b32 {a0}, {a0}, {ad}
    v_lshlrev_b32 {a0}, 4, {a0}
    v_lshl_or_b32 {a0}, {I['n']}, 10, {a0}
    s_lshl_b32 {st}, {I['w']}, 8
    s_add_u32 {st}, {st}, {lds1}
    v_add_u32 {a0}, {st}, {a0}""")
    def mov(b):
        for j in range(4): k(f"v_mov_b32 {D[4*(b&1)+j]}, {L[4*j+b]}")
    def out(b, o):
        z = acc.q(b & 1, 8)
        k(f"v_xor_b32 {ad}, {16*b}, {a0}")
        for r in range(4): k(f"v_cvt_pk_bf16_f32 {o[r]}, {z[r]}, {z[4+r]}")
        return k(f"ds_write_b128 {ad}, {o}")
    mov(0); mov(1)
    mf2(k, C['sf'], True, D.q(0), acc.q(0, 8)); mf2(k, C['sf'], True, D.q(1), acc.q(1, 8))
    mov(2); mov(3)
    out(0, L.q(3)); mf2(k, C['sf'], True, D.q(0), acc.q(0, 8))
    out(1, L.q(0)); mf2(k, C['sf'], True, D.q(1), acc.q(1, 8))
    out(2, L.q(1)); last = out(3, L.q(2))
    k.v.free(D, acc, a0, ad, L, C.pop('sf')); k.s.free(st)
    return last

def ph2_mid(k, I, T, C, Wf, X, lds1, lds2, mark):
    D = k.v.allocq(16); acc = k.v.allocq(32); tmp = k.v.alloc(4); ad = k.v.alloc(); a0 = k.v.alloc(); st = k.s.alloc(); Xd = k.v.allocq(4)
    z = lambda b, c: acc.q(2 * b + c)
    def stage(M, data_is_A):
        for b in range(4): mf2(k, M, data_is_A, D.q(b), acc.q(b, 8))
    k(f"""s_and_b32 {st}, {I['w']}, 1
    s_lshl_b32 {st}, {st}, 2
    v_xor_b32 {ad}, {st}, {I['l']}
    s_lshl_b32 {st}, {I['w']}, 12
    s_add_u32 {st}, {st}, {lds1}
    v_lshl_add_u32 {a0}, {ad}, 4, {st}""")
    for b in range(4): k(f"v_xor_b32 {ad}, {16*b}, {a0}\nds_read_b128 {D.q(b)}, {ad} offset:{1024*b}")
    mark(0)
    stage(C['m1f'], True)
    def mulstage(w, conj, M, data_is_A):
        for b in range(4):
            wr, wi = w(b)
            cmul_pack(k, z(b, 0), z(b, 1), wr, wi, conj, D.q(b), tmp)
            if b: mf2(k, M, data_is_A, D.q(b - 1), acc.q(b - 1, 8))
        mf2(k, M, data_is_A, D.q(3), acc.q(3, 8))
    mulstage(lambda b: (C['twf'].q(0), C['twf'].q(1)), True, C['m2f'], False)
    mark(1)
    k(f"s_cmp_eq_u32 {T['sp']}, 0")
    with k.skip_if("s_cbranch_scc1"):
        cmul_pack(k, z(0, 0), z(0, 1), X.q(0), X.q(1), False, Xd, tmp)
        mf2(k, C['m2i'], True, Xd.q(0), X)
        cmul_pack(k, X.q(0), X.q(1), C['twi'].q(0), C['twi'].q(1), False, Xd, tmp)
        mf2(k, C['m1i'], False, Xd.q(0), X)
    mulstage(lambda b: (Wf.q(2 * b), Wf.q(2 * b + 1)), False, C['m2i'], True)
    mark(2)
    mulstage(lambda b: (C['twi'].q(0), C['twi'].q(1)), False, C['m1i'], False)
    mark(3)
    k(f"""v_lshlrev_b32 {ad}, 12, {I['g']}
    v_lshl_add_u32 {ad}, {I['n']}, 4, {ad}
    s_lshl_b32 {st}, {I['w']}, 8
    s_add_u32 {st}, {st}, {lds2}
    v_add_u32 {ad}, {st}, {ad}""")
    k(f"s_sub_u32 {st}, {T['sp']}, 1\ns_or_b32 {st}, {st}, {I['w']}\ns_cmp_lg_u32 {st}, 0")
    with k.skip_if("s_cbranch_scc1"):
        for r in range(4): k(f"v_mov_b32 {z(0,1)[r]}, {X[4+r]}")
    for r in range(4):
        for b in range(4): k(f"v_cvt_pk_bf16_f32 {D[4*r+b]}, {z(b,0)[r]}, {z(b,1)[r]}")
        k(f"ds_write_b128 {ad}, {D.q(r)} offset:{1024*r}")
    k.v.free(D, acc, tmp, ad, a0, Xd, X, Wf); k.s.free(st)
    for n in ('m1f', 'twf', 'm2f', 'm2i', 'twi', 'm1i'):
        r = C.pop(n)
        if r[0].kind == 'v': k.v.free(r)

def ph2_s6(k, I, C, lds2):
    D = k.v.allocq(16); acc = k.v.allocq(32); ad = k.v.alloc(); st = k.s.alloc(); so = k.s.alloc()
    k(f"s_lshl_b32 {st}, {I['w']}, 12\ns_add_u32 {st}, {st}, {lds2}\nv_lshl_add_u32 {ad}, {I['l']}, 4, {st}")
    for b in range(4): k(f"ds_read_b128 {D.q(b)}, {ad} offset:{1024*b}")
    k(f"""s_mov_b32 {st}, {64*V2_STR}
    v_mul_lo_u32 {ad}, {I['g']}, {st}
    v_lshl_add_u32 {ad}, {I['n']}, 2, {ad}
    s_mul_i32 {so}, {I['w']}, {4*V2_STR}
    s_lshr_b32 {st}, {I['slot']}, 4
    s_lshl_b32 {st}, {st}, 12
    s_add_u32 {so}, {so}, {st}
    s_lshl_b32 {st}, {I['k1p']}, 10
    s_add_u32 {so}, {so}, {st}
    s_and_b32 {st}, {I['slot']}, 15
    s_lshl_b32 {st}, {st}, 6
    s_add_u32 {so}, {so}, {st}""")
    for b in range(4): mf2(k, C['si'], False, D.q(b), acc.q(b, 8))
    for b in range(4):
        for r in range(4): k(f"v_cvt_pk_bf16_f32 {D[4*b+r]}, {acc[8*b+r]}, {acc[8*b+4+r]}")
    r = C.pop('si')
    if r[0].kind == 'v': k.v.free(r)
    k.v.free(acc); k.s.free(st)
    return D, ad, so

def park(k, C, names, A):
    for j, n in enumerate(names):
        dst = A[8 * j:8 * j + 8]
        for i in range(8): k(f"v_accvgpr_write_b32 {dst[i]}, {C[n][i]}")
        k.v.free(C[n]); C[n] = dst

def v2_issue2(k, I, sv2):
    L = k.v.allocq(16); va = k.v.alloc(); so = k.s.alloc(); st = k.s.alloc()
    k(f"""v_lshlrev_b32 {va}, 4, {I['l']}
    s_lshl_b32 {so}, {I['ta']}, 4
    s_add_u32 {so}, {so}, {I['tb']}
    s_mul_i32 {so}, {so}, {V2_STR}
    s_lshl_b32 {st}, {I['w']}, 12
    s_add_u32 {so}, {so}, {st}""")
    for j in range(4): k(f"buffer_load_dwordx4 {L.q(j)}, {va}, {sv2}, {so} offen offset:{1024*j} {SC}")
    k.v.free(va); k.s.free(so, st)
    return L

pk0 = pk
def y_stage2(k, I, L, ldsY, scal=False, spec=None):
    Z = k.v.allocq(16, 2); T = k.v.allocq(16, 2); O = k.v.allocq(8); ad = k.v.alloc(); st = k.s.alloc()
    z = lambda j, c: Z.q(2 * j + c, 2); t = lambda j, c: T.q(2 * j + c, 2)
    k(f"s_lshl_b32 {st}, {I['w']}, 10\ns_add_u32 {st}, {st}, {ldsY}\nv_lshl_add_u32 {ad}, {I['l']}, 4, {st}")
    last = None
    def pk(k, op, d, x, y):
        if not scal: return pk0(k, op, d, x, y)
        for u in range(2): k(f"v_{'add' if op == '+' else 'sub'}_f32 {d[u]}, {x[u]}, {y[u]}")
    for h in range(2):
        for j in range(4):
            for u in range(2):
                k(f"v_lshlrev_b32 {z(j,0)[u]}, 16, {L[4*j+2*h+u]}\nv_and_b32 {z(j,1)[u]}, 0xffff0000, {L[4*j+2*h+u]}")
        for c in range(2):
            pk(k, '+', t(0, c), z(0, c), z(2, c)); pk(k, '-', t(1, c), z(0, c), z(2, c)); pk(k, '+', t(2, c), z(1, c), z(3, c))
        pk(k, '-', t(3, 0), z(3, 1), z(1, 1)); pk(k, '-', t(3, 1), z(1, 0), z(3, 0))
        k(f"s_cmp_lg_u32 {spec or I['w']}, 0")
        with k.skip_if("s_cbranch_scc1"):
            k("s_mov_b64 exec, 15")
            k(f"""v_pk_add_f32 {t(2,0)}, {z(1,0)}, {z(1,0)}
            v_pk_add_f32 {t(2,1)}, {z(3,0)}, {z(3,0)}
            v_pk_add_f32 {t(3,0)}, {z(1,1)}, {z(1,1)} neg_lo:[1,1] neg_hi:[1,1]
            v_pk_add_f32 {t(3,1)}, {z(3,1)}, {z(3,1)} neg_lo:[1,1] neg_hi:[1,1]""")
            k("s_mov_b64 exec, -1")
        for m in range(4):
            for c in range(2):
                pk(k, '+' if m < 2 else '-', z(m, c), t(m & 1, c), t(2 + (m & 1), c))
                dst = O[2 * m + c] if h == 0 else L[4 * m + 2 * c + 1]
                k(f"v_cvt_pk_bf16_f32 {dst}, {z(m,c)[0]}, {z(m,c)[1]}")
    for m in range(4):
        k(f"v_mov_b32 {L[4*m]}, {O[2*m]}\nv_mov_b32 {L[4*m+2]}, {O[2*m+1]}")
        last = k(f"ds_write_b128 {ad}, {L.q(m)} offset:{4096*m}")
    k.v.free(Z, T, O, ad, L); k.s.free(st)
    return last

def gen_G1(k, I):
    G = k.v.allocq(32)
    f, b, sb, a, c, s = [k.v.alloc() for _ in range(6)]
    st = k.s.alloc()
    k(f"""v_lshrrev_b32 {a}, 1, {I['g']}
    v_lshlrev_b32 {a}, 3, {a}
    v_and_b32 {c}, 1, {I['g']}
    v_lshl_add_u32 {a}, {c}, 1, {a}
    v_cvt_f32_u32 {sb}, {a}""")
    for ib in range(2):
        k(f"""s_and_b32 {st}, {I['w']}, 1
        s_lshl_b32 {st}, {st}, 6
        s_add_u32 {st}, {st}, {16*ib}
        v_add_u32 {a}, {st}, {I['n']}
        v_cvt_f32_u32 {f}, {a}
        v_mul_f32 {f}, {fl(1/128)}, {f}
        v_mul_f32 {b}, {f}, {sb}""")
        for kap in range(4):
            for d in range(4):
                sl = 16 * kap + 4 * (d >> 1) + (d & 1)
                k(f"""v_fmamk_f32 {a}, {f}, {fl(float(sl))}, {b}
                v_cos_f32 {c}, {a}
                v_sin_f32 {s}, {a}
                v_cvt_pk_bf16_f32 {G[16*ib+4*kap+d]}, {c}, -{s}""")
    k(f"""v_lshlrev_b32 {c}, 31, {I['n']}
    v_or_b32 {c}, 0x3f003f00, {c}
    v_cmp_eq_u32 vcc, 0, {I['g']}""")
    for ib in range(2): k(f"v_cndmask_b32 {G[16*ib]}, {G[16*ib]}, {c}, vcc")
    k.v.free(f, b, sb, a, c, s); k.s.free(st)
    return G

def gen_G2(k, I, G):
    G2 = k.v.allocq(32); mk = k.v.alloc(2)
    k(f"""v_and_b32 {mk[0]}, 1, {I['g']}
    v_mul_u32_u24 {mk[0]}, 0x8000, {mk[0]}
    v_lshl_or_b32 {mk[0]}, {mk[0]}, 16, {mk[0]}
    v_xor_b32 {mk[1]}, 0x80000000, {mk[0]}""")
    for j in range(32):
        if j & 1: k(f"v_alignbit_b32 {G2[j]}, {G[j]}, {G[j]}, 16\nv_xor_b32 {G2[j]}, {mk[1]}, {G2[j]}")
        else: k(f"v_xor_b32 {G2[j]}, {mk[0]}, {G[j]}")
    k.v.free(mk)
    return G2

def xkeep(k, I, ldsX):
    XK = k.v.allocq(16, 2); ad = k.v.alloc(2); t = k.v.alloc(2); st = k.s.alloc()
    k(f"""s_and_b32 {st}, {I['w']}, 1
    s_lshl_b32 {st}, {st}, 13
    s_add_u32 {st}, {st}, {ldsX}
    v_lshrrev_b32 {t[0]}, 2, {I['l']}
    v_lshlrev_b32 {t[0]}, 7, {t[0]}
    v_and_b32 {t[1]}, 3, {I['l']}
    v_lshl_or_b32 {t[0]}, {t[1]}, 3, {t[0]}
    v_add_u32 {t[0]}, {st}, {t[0]}
    v_bfe_u32 {t[1]}, {I['l']}, 3, 2
    s_and_b32 {st}, {I['w']}, 2
    v_xor_b32 {t[1]}, {st}, {t[1]}
    v_lshl_add_u32 {ad[0]}, {t[1]}, 5, {t[0]}
    v_xor_b32 {ad[1]}, 32, {ad[0]}""")
    for mm in range(2):
        for ib in range(4): k(f"ds_read_b64_tr_b16 {XK.q(4*mm+ib,2)}, {ad[mm]} offset:{2048*ib}")
    k.v.free(ad, t); k.s.free(st)
    return XK

def dsk_issue(k, I, sd):
    Dk = k.v.alloc(2); va = k.v.alloc(); so = k.s.alloc(); st = k.s.alloc()
    k(f"""v_lshlrev_b32 {va}, 1, {I['n']}
    s_lshl_b32 {so}, {I['tb']}, 5
    s_lshr_b32 {st}, {I['w']}, 1
    s_lshl_b32 {st}, {st}, 10
    s_add_u32 {so}, {so}, {st}""")
    for mm in range(2): k(f"buffer_load_short_d16_hi {Dk[mm]}, {va}, {sd}, {so} offen offset:{512*mm}")
    k.v.free(va); k.s.free(so, st)
    return Dk

def xd_init2(k, XK, Dk, acc):
    for mm in range(2):
        sel = f" op_sel:[{mm},0] op_sel_hi:[{mm},1]"
        for ib in range(4):
            a = acc.q(8 * mm + ib); x = XK.q(4 * mm + ib, 2)
            k(f"""v_lshlrev_b32 {a[0]}, 16, {x[0]}
            v_and_b32 {a[1]}, 0xffff0000, {x[0]}
            v_lshlrev_b32 {a[2]}, 16, {x[1]}
            v_and_b32 {a[3]}, 0xffff0000, {x[1]}
            v_pk_mul_f32 {a[0:2]}, {Dk}, {a[0:2]}{sel}
            v_pk_mul_f32 {a[2:4]}, {Dk}, {a[2:4]}{sel}""")
    k.v.free(XK, Dk)

def g_issue(k, I, sg):
    g = k.v.allocq(16); va = k.v.alloc(); so = k.s.alloc(); st = k.s.alloc()
    k(f"""v_lshlrev_b32 {va}, 4, {I['g']}
    s_lshl_b32 {so}, {I['ta']}, 9
    s_and_b32 {st}, {I['w']}, 1
    s_lshl_b32 {st}, {st}, 8
    s_add_u32 {so}, {so}, {st}""")
    for ib in range(4): k(f"buffer_load_dwordx4 {g.q(ib)}, {va}, {sg}, {so} offen offset:{64*ib} {SC}")
    k.v.free(va); k.s.free(so, st)
    return g

def pass1c(k, I, acc, Pm, ldsE):
    er, ei, ta, tb = [k.v.alloc(2) for _ in range(4)]
    L = Pm['L1']
    cr, ci = upair(acc, 0, 0), upair(acc, 0, 1)
    outs = [(er, ei), (ta, tb)]
    for j in range(1, 16):
        nr, ni = outs[(15 - j) & 1]
        k(f"""v_pk_fma_f32 {nr}, {L}, {cr}, {upair(acc,j,0)}{BC0}
        v_pk_fma_f32 {ni}, {L}, {ci}, {upair(acc,j,1)}{BC0}
        v_pk_fma_f32 {nr}, {L}, {ci}, {nr}{BC1}{NEG0}
        v_pk_fma_f32 {ni}, {L}, {cr}, {ni}{BC1}""")
        cr, ci = nr, ni
    cfma(k, ta, Pm['L16'], (er[0], ei[0]), (er[1], ei[1]))
    k(f"""v_mov_b32 {tb[0]}, {ta[0]}
    v_mov_b32 {tb[1]}, {ta[1]}
    v_permlane32_swap_b32 {ta[0]}, {tb[0]}
    v_permlane32_swap_b32 {ta[1]}, {tb[1]}""")
    cfma(k, tb, Pm['L32'], ta, tb)
    w = k(f"ds_write_b64 {Pm['lde']}, {tb}")
    return dict(er=er, ei=ei, lo=ta, ew=tb, w=w)

def scan_addr(k, I, Pm, ldsE):
    lde, va = k.v.alloc(), k.v.alloc(); t = k.v.alloc(); st = k.s.alloc(); s2_ = k.s.alloc()
    k(f"""v_lshlrev_b32 {lde}, 3, v0
    v_add_u32 {lde}, {ldsE + 4096}, {lde}
    s_sub_u32 {st}, 15, {I['ca']}
    s_lshl_b32 {st}, {st}, 9
    s_and_b32 {s2_}, {I['w']}, 1
    s_lshl_b32 {s2_}, {s2_}, 8
    s_add_u32 {st}, {st}, {s2_}
    v_and_b32 {va}, 31, {I.get('lp', I['l'])}
    v_lshl_add_u32 {va}, {va}, 3, {st}""")
    if 'lp' in I: k.v.free(I.pop('lp'))
    Pm['lde'], Pm['eva'] = lde, va
    k.v.free(t); k.s.free(st, s2_)

def publish(k, I, E1, Pm, se):
    e0 = k.v.alloc(2); t = k.v.alloc()
    k(f"v_and_b32 {Pm['lde']}, {hex(0xfffffbff)}, {Pm['lde']}\nds_read_b64 {e0}, {Pm['lde']}")
    k(f"s_cmp_lt_u32 {I['w']}, 2")
    with k.skip_if("s_cbranch_scc1"):
        cfma(k, E1['ew'], Pm['L64'], e0, E1['ew'])
        k(f"""v_min_u32 {E1['ew'][0]}, -2, {E1['ew'][0]}
        v_min_u32 {E1['ew'][1]}, -2, {E1['ew'][1]}
        s_mov_b32 exec_hi, 0
        buffer_store_dwordx2 {E1['ew']}, {Pm['eva']}, {se}, 0 offen sc1
        s_mov_b64 exec, -1""")
    k(f"v_lshrrev_b32 {t}, 5, {I['l']}\nv_lshl_add_u32 {Pm['eva']}, {t}, 12, {Pm['eva']}\nv_add_u32 {Pm['eva']}, 512, {Pm['eva']}")
    k.v.free(t, E1['ew'], Pm.pop('lde'))
    E1['e0'] = e0

def carry_prep(k, I, E1, Pm):
    ma, mb = k.v.alloc(2), k.v.alloc(2); ca, cb = E1.pop('e0'), k.v.alloc(2); lo = E1.pop('lo'); t = k.v.alloc(2)
    er, ei = E1.pop('er'), E1.pop('ei'); cf = Pm['coef']
    def cmul(d, a, b):
        k(f"""v_pk_mul_f32 {d}, {a}, {b} op_sel:[0,0] op_sel_hi:[0,1]
        v_pk_fma_f32 {d}, {a}, {b}, {d} op_sel:[1,1,0] op_sel_hi:[1,0,1] neg_lo:[1,0,0]""")
    cmul(ma, cf, Pm['L64'])
    k(f"s_cmp_ge_u32 {I['w']}, 2")
    with k.skip_if("s_cbranch_scc1"):
        k(f"v_mov_b32 {ma[0]}, {cf[0]}\nv_mov_b32 {ma[1]}, {cf[1]}\nv_mov_b32 {ca[0]}, 0\nv_mov_b32 {ca[1]}, 0")
    cmul(t, Pm['L32'], ma); cfma2(k, lo, Pm['L32'], ca, lo)
    k(f"""s_mov_b32 exec_lo, 0
    v_mov_b32 {ma[0]}, {t[0]}
    v_mov_b32 {ma[1]}, {t[1]}
    v_mov_b32 {ca[0]}, {lo[0]}
    v_mov_b32 {ca[1]}, {lo[1]}
    s_mov_b64 exec, -1
    v_mov_b32 {er[1]}, {ei[0]}""")
    cmul(mb, Pm['L16'], ma); cfma2(k, er, Pm['L16'], ca, er)
    cmul(cb, cf, er); cmul(t, cf, ca)
    k.v.free(ca, lo, er, ei, Pm.pop('L16'), Pm.pop('L32'), Pm.pop('L64'))
    E1.update(ma=ma, mb=mb, ca=t, cb=cb)

class LookBack:
    def __init__(self, k, Pm, se):
        self.k, self.va, self.se = k, Pm.pop('eva'), se
        self.E = k.v.allocq(16, 2)
    def issue(self):
        for j in range(8): self.last = self.k(f"buffer_load_dwordx2 {self.E.q(j,2)}, {self.va}, {self.se}, 0 offen offset:{512*j} sc1")
    def _check(self, m):
        k, E = self.k, self.E
        k(f"v_max_u32 {m}, {E[0]}, {E[1]}")
        for j in range(1, 8): k(f"v_max3_u32 {m}, {m}, {E[2*j]}, {E[2*j+1]}")
        k(f"v_cmp_eq_u32 vcc, -1, {m}")
    def finish(self, maxspin=1 << 20):
        k = self.k; m = k.v.alloc()
        k.wait(self.last)
        self._check(m)
        with k.skip_if("s_cbranch_vccz"):
            cnt = k.s.alloc(); lp, out = k.lab('lb'), k.lab('lbout')
            k(f"s_mov_b32 {cnt}, 0\n{lp}:")
            self.issue(); k("s_waitcnt vmcnt(0)")
            self._check(m)
            k(f"s_cbranch_vccz {out}\ns_add_u32 {cnt}, {cnt}, 1\ns_cmp_lt_u32 {cnt}, {maxspin}\ns_cbranch_scc1 {lp}\n{out}:")
            k.s.free(cnt)
        k.v.free(m, self.va)
        return self.E

def cfma2(k, d, a, b, c):
    k(f"""v_pk_fma_f32 {d}, {a}, {b}, {c} op_sel:[0,0,0] op_sel_hi:[0,1,1]
    v_pk_fma_f32 {d}, {a}, {b}, {d} op_sel:[1,1,0] op_sel_hi:[1,0,1] neg_lo:[1,0,0]""")

def pass2c(k, I, acc, Pm, E1, E, sh, hook):
    for j in range(6, -1, -1):
        cfma2(k, E.q(j, 2), Pm['L128'], E.q(j + 1, 2), E.q(j, 2))
    S, T = E.q(0, 2), E.q(1, 2); U, V = E.q(2, 2), E.q(3, 2)
    k(f"""v_mov_b32 {T[0]}, {S[0]}
    v_mov_b32 {T[1]}, {S[1]}
    v_permlane32_swap_b32 {S[0]}, {T[0]}
    v_permlane32_swap_b32 {S[1]}, {T[1]}""")
    cfma2(k, S, Pm['L1024'], T, S)
    cfma2(k, E1['ca'], E1['ma'], S, E1['ca']); cfma2(k, E1['cb'], E1['mb'], S, E1['cb'])
    k(f"v_swap_b32 {E1['ca'][1]}, {E1['cb'][0]}")
    U, V = E1['ca'], E1['cb']
    va, so = E1['hva'], E1['hso']
    L = Pm['L1']; cr, ci = U, V
    O = k.v.allocq(12)
    pend = []; last = None
    def flush():
        nonlocal last
        q, o = pend.pop(0)
        k(f"""v_permlane16_swap_b32 {o[0]}, {o[2]}
        v_permlane16_swap_b32 {o[1]}, {o[3]}""")
        last = k(f"buffer_store_dwordx4 {o}, {va}, {sh}, {so} offen {SC}")
        if q < 7: k(f"s_add_u32 {so}, {so}, {2*32*16384}")
        hook(q)
    def sw32():
        o = pend[0][1]
        k(f"v_permlane32_swap_b32 {o[0]}, {o[1]}\nv_permlane32_swap_b32 {o[2]}, {o[3]}")
    for j in range(16):
        nr, ni = upair(acc, j, 0), upair(acc, j, 1)
        k(f"""v_pk_fma_f32 {nr}, {L}, {cr}, {nr}{BC0}
        v_pk_fma_f32 {ni}, {L}, {ci}, {ni}{BC0}""")
        if pend: sw32()
        k(f"""v_pk_fma_f32 {nr}, {L}, {ci}, {nr}{BC1}{NEG0}
        v_pk_fma_f32 {ni}, {L}, {cr}, {ni}{BC1}""")
        cr, ci = nr, ni
        if pend: flush()
        o = O.q((j // 2) % 3)
        h = 2 * (j & 1)
        k(f"v_cvt_pk_bf16_f32 {o[h]}, {nr[0]}, {nr[1]}\nv_cvt_pk_bf16_f32 {o[h+1]}, -{ni[0]}, -{ni[1]}")
        if j & 1: pend.append((j // 2, o))
    sw32(); flush()
    k.v.free(va, E, O, acc, E1['ca'], E1['cb'], E1['ma'], E1['mb'], *Pm.values()); k.s.free(so)
    return last

class B3g(B3f):
    def main(self, fill, pre_bar, post_bar, lastsub):
        k = self.k; NS = 16; acc, fr = self.acc, self.fr
        def reads(s, kk):
            f = fr.q(kk, 32); out = []
            for ib in range(8):
                off = (s % self.NST) * 32768 + ib * 2048 + kk * 256; hi = 2 if off >= 65536 else 0
                for h in range(2):
                    out.append(f"ds_read_b64_tr_b16 {f[4*ib+2*h:4*ib+2*h+2]}, {self.rh[hi+h]} offset:{off & 65535}")
            return out
        pre_bar(-1)
        k.wait(self.last[0]); k("s_barrier")
        lastrd = None
        for r in reads(0, 0): lastrd = k(r)
        for s in range(NS):
            for kk in range(2):
                f = fr.q(kk, 32); rd = []
                if kk == 0: rd = reads(s, 1)
                elif s + 1 < NS:
                    pre_bar(s)
                    k.wait(lastrd, self.last[s + 1]); k("s_barrier")
                    rd = reads(s + 1, 0)
                else: rd = lastsub(fr.q(0, 32))
                k.wait(lastrd)
                dm = [(s + self.D, 4 * kk + x) for x in range(4)]
                order = list(range(16))
                if s == NS - 1 and kk == 1: order = order[8:] + order[:8]
                for q, qq in enumerate(order):
                    ib, mm = qq >> 1, qq & 1
                    d = acc.q(8 * mm + ib)
                    zero = s == 0 and kk == 0 and ib >= 4
                    k(f"v_mfma_f32_16x16x32_bf16 {d}, {f.q(ib)}, {self.CL.frag(s,kk,mm)}, {0 if zero else d}")
                    if rd and q < 8:
                        k(rd[2 * q]); lastrd = k(rd[2 * q + 1])
                    if q >= 8 and q % 2 == 0: self.dma(*dm[(q - 8) // 2])
                    if q == 9 and kk == 1: post_bar(s)
                    fill(s, kk, q)
        k.v.free(self.vh, self.rh); k.s.free(self.so, self.mH)

def final_addr(k, I, ldsX, ldsY):
    A = dict(ad=k.v.alloc(), ay=k.v.alloc(), va=k.v.alloc(), so=k.s.alloc())
    t = k.v.alloc(); st = k.s.alloc(); ad, ay, va, so = A['ad'], A['ay'], A['va'], A['so']
    k(f"""s_lshl_b32 {st}, {I['w']}, {7 + I.get('khs', 6)}
    s_add_u32 {st}, {st}, {ldsX}
    v_lshl_add_u32 {ad}, {I['l']}, 4, {st}
    v_lshrrev_b32 {ay}, 5, {I['l']}
    v_lshlrev_b32 {ay}, 9, {ay}
    v_bfe_u32 {t}, {I['l']}, 3, 2
    v_lshl_or_b32 {ay}, {t}, 6, {ay}
    v_and_b32 {t}, 3, {I['l']}
    v_lshl_or_b32 {ay}, {t}, 4, {ay}
    v_bfe_u32 {t}, {I['l']}, 2, 1
    v_lshl_or_b32 {ay}, {t}, 3, {ay}
    s_lshr_b32 {st}, {I['w']}, 1
    s_lshl_b32 {st}, {st}, 13
    s_add_u32 {st}, {st}, {ldsY}
    v_add_u32 {ay}, {st}, {ay}
    v_lshlrev_b32 {va}, 18, {I['g']}
    v_lshl_or_b32 {va}, {I['n']}, 2, {va}
    s_and_b32 {so}, {I['w']}, 1
    s_lshl_b32 {so}, {so}, {16 + I.get('khs', 6)}
    s_lshl_b32 {st}, {I['ta']}, 12
    s_add_u32 {so}, {so}, {st}
    s_lshl_b32 {st}, {I['tb']}, 6
    s_add_u32 {so}, {so}, {st}
    s_lshr_b32 {st}, {I['w']}, 1
    s_lshl_b32 {st}, {st}, 11
    s_add_u32 {so}, {so}, {st}""")
    k.v.free(t); k.s.free(st)
    return A

def y_reads(A, Y):
    return [f"ds_read_b64_tr_b16 {Y[16*mm+4*kap+2*h:16*mm+4*kap+2*h+2]}, {A['ay']} offset:{4096*mm + 1024*kap + 256*h}"
            for kap in range(4) for mm in range(2) for h in range(2)]

def final2(k, A, g, acc, fr, G, so_, pf):
    Y, aa = fr.q(0, 32), fr.q(1, 32); ad, va, so = A['ad'], A['va'], A['so']; om = k.v.alloc(4)
    def mf(ib, side):
        for kap in range(4):
            for mm in range(2):
                d = aa.q(4 * mm + ib)
                k(f"v_mfma_f32_16x16x32_bf16 {d}, {G[ib>>1].q(4*(ib&1)+kap)}, {Y.q(4*mm+kap)}, {d if kap else 0}")
                if side: k(side.pop(0))
    wr = [f"ds_write_b128 {ad}, {acc.q(8*mm+4+ib)} offset:{1024*(4*mm+ib)}" for ib in range(4) for mm in range(2)]
    mf(0, wr)
    mf(1, [])
    k(f"v_xor_b32 {ad}, 0x2000, {ad}\ns_waitcnt lgkmcnt(0)\ns_barrier")
    pf("xbar")
    rd = [f"ds_read_b128 {acc.q(8*mm+4+ib)}, {ad} offset:{1024*(4*mm+ib)}" for ib in range(4) for mm in range(2)]
    mf(2, rd)
    def fin(ib):
        gg = g.q(ib)
        for h in (0, 2):
            k(f"""v_sub_f32 {om[h]}, 1.0, {gg[h]}
            v_sub_f32 {om[h+1]}, 1.0, {gg[h+1]}
            v_cvt_pk_bf16_f32 {om[h+1]}, {om[h]}, {om[h+1]}
            v_lshlrev_b32 {om[h]}, 16, {om[h+1]}
            v_and_b32 {om[h+1]}, 0xffff0000, {om[h+1]}""")
        for h in (0, 2):
            for mm in range(2):
                b = acc.q(8 * mm + ib); r = acc.q(8 * mm + 4 + ib); a = aa.q(4 * mm + ib)
                k(f"""v_pk_add_f32 {b[h:h+2]}, {b[h:h+2]}, {r[h:h+2]}
                v_pk_mul_f32 {a[h:h+2]}, {gg[h:h+2]}, {a[h:h+2]}
                v_pk_fma_f32 {b[h:h+2]}, {om[h:h+2]}, {b[h:h+2]}, {a[h:h+2]}""")
            for r in (h, h + 1):
                for mm in range(2):
                    k(f"buffer_store_dword {acc.q(8*mm+ib)[r]}, {va}, {so_}, {so} offen offset:{1024*mm} {OUTF}")
                if (ib, r) != (3, 3): k(f"s_add_u32 {so}, {so}, {(1<<16) if r < 3 else (1<<20) - 3*(1<<16)}")
    fin(0)
    mf(3, [])
    for ib in range(1, 4): fin(ib)

class B1g(B1f):
    def main(self, q, fill, pre_bar, post_bar, rate):
        k = self.k; NS = 16; acc, fr = self.acc, self.fr
        def reads(s, kk):
            f = fr.q((s * 4 + kk) & 1, 16); buf = (s % self.NST) * 16384
            out = []
            for b in range(2):
                out.append(f"ds_read_b128 {f.q(b)}, {self.ra[kk]} offset:{buf + 4096*b}")
                out.append(f"ds_read_b128 {f.q(2+b)}, {self.rb[kk]} offset:{buf + 4096*b}")
            return out
        k.wait(self.last[0], *getattr(self, 'extra', [])); k("s_barrier")
        lastrd = None; passed = -1
        for r in reads(0, 0): lastrd = k(r)
        for s in range(NS):
            for kk in range(4):
                f = fr.q((s * 4 + kk) & 1, 16)
                rd = []
                if kk < 3: rd = reads(s, kk + 1)
                elif s + 1 < NS:
                    pre_bar(s)
                    assert self.cnt[s + 1] == 8, (s, self.cnt)
                    k.wait(lastrd, self.last[s + 1]); k("s_barrier"); passed = s
                    rd = reads(s + 1, 0)
                for m, (rb, c) in enumerate(((0, 0), (0, 1), (1, 1), (1, 0))):
                    d = acc.q(2 * rb + c, 16)
                    first = s == 0 and kk == 0
                    k(f"v_mfma_f32_32x32x16_bf16 {d}, {f.q(rb)}, {f.q(2+c)}, {0 if first else d}")
                    if m < 2 and rd:
                        k(rd[2 * m]); lastrd = k(rd[2 * m + 1])
                    if m == 1 and kk == 3: post_bar(s)
                    for _ in range(rate(s, kk, m)):
                        if q and q[0][0] <= passed: q.pop(0)[1]()
                    fill(s, kk, m)
        k.v.free(fr, self.va, self.vb, self.ra, self.rb); k.s.free(self.soA, self.soB, self.mA, self.mB)
        return acc
    cnt = None
    def dma(self, s, i):
        if self.cnt is None: self.cnt = {}
        self.cnt[s] = self.cnt.get(s, 0) + 1
        super().dma(s, i)

class B1k(B1g):
    def __init__(self, k, I, sx, sb):
        self.k, self.I, self.sx, self.sb = k, I, sx, sb
        self.va = k.v.alloc(4); self.vb = k.v.alloc(4)
        self.soA, self.soB, self.mA, self.mB = [k.s.alloc() for _ in range(4)]
        t = k.v.alloc(2); l = I['l']; va, vb = self.va, self.vb; st = self.soB
        k(f"""v_and_b32 {t[0]}, 7, {l}
        v_xor_b32 {t[0]}, {t[0]}, {I['g']}
        v_lshlrev_b32 {t[0]}, 4, {t[0]}
        v_lshrrev_b32 {t[1]}, 3, {l}
        v_lshl_or_b32 {vb[0]}, {t[1]}, 11, {t[0]}
        v_and_b32 {t[1]}, 32, {l}
        v_lshl_or_b32 {va[0]}, {t[1]}, 11, {t[0]}
        v_and_b32 {t[1]}, 8, {l}
        v_lshl_or_b32 {va[0]}, {t[1]}, 12, {va[0]}
        v_and_b32 {t[1]}, 16, {l}
        v_lshl_or_b32 {va[0]}, {t[1]}, 7, {va[0]}
        s_lshr_b32 {st}, {I['w']}, 1
        s_lshl1_add_u32 {self.mA}, {I['cb']}, {st}
        s_lshl_b32 {self.mA}, {self.mA}, 16
        v_add_u32 {vb[0]}, {self.mA}, {vb[0]}
        s_lshl1_add_u32 {self.mA}, {I['ca']}, {st}
        s_and_b32 {st}, {I['w']}, 1
        s_lshl3_add_u32 {self.mA}, {self.mA}, {st}
        s_lshl_b32 {self.mA}, {self.mA}, 14
        v_add_u32 {va[0]}, {self.mA}, {va[0]}
        v_xor_b32 {va[1]}, 64, {va[0]}
        v_xor_b32 {vb[1]}, 64, {vb[0]}
        v_add_u32 {va[1]}, {4096-1024}, {va[1]}
        v_add_u32 {vb[1]}, {16384-1024}, {vb[1]}
        v_add_u32 {va[2]}, {2*(4096-1024)}, {va[0]}
        v_add_u32 {vb[2]}, {2*(16384-1024)}, {vb[0]}
        v_add_u32 {va[3]}, {2*(4096-1024)}, {va[1]}
        v_add_u32 {vb[3]}, {2*(16384-1024)}, {vb[1]}
        s_lshl_b32 {self.mA}, {I['w']}, 12
        s_add_u32 {self.mB}, {self.mA}, 65536
        s_lshl_b32 {self.soA}, {I['ca']}, 7""")
        k.v.free(t)
        self.last = {}; self.tail = None; self.extra = []
    def readers(self):
        k, I = self.k, self.I; l = I['l']
        self.ra = k.v.alloc(4); self.rb = k.v.alloc(4); t = k.v.alloc(2); st = self.soB
        k(f"""v_bfe_u32 {t[0]}, {l}, 1, 3
        v_lshrrev_b32 {t[1]}, 5, {l}
        v_xor_b32 {t[0]}, {t[0]}, {t[1]}
        v_lshlrev_b32 {t[0]}, 4, {t[0]}
        v_and_b32 {t[1]}, 31, {l}
        v_lshl_or_b32 {t[0]}, {t[1]}, 7, {t[0]}
        s_lshr_b32 {st}, {I['w']}, 1
        v_lshl_add_u32 {self.ra[0]}, {st}, 13, {t[0]}
        s_and_b32 {st}, {I['w']}, 1
        s_or_b32 {st}, {st}, 8
        v_lshl_add_u32 {self.rb[0]}, {st}, 13, {t[0]}""")
        for kk in range(1, 4): k(f"v_xor_b32 {self.ra[kk]}, {32*kk}, {self.ra[0]}\nv_xor_b32 {self.rb[kk]}, {32*kk}, {self.rb[0]}")
        k.v.free(t)

def xtile_addr(k, I, lds_off):
    va = k.v.alloc(); t = k.v.alloc(); so = k.s.alloc()
    k(f"""v_bfe_u32 {t}, {I['l']}, 1, 2
    v_xor_b32 {t}, {t}, {I['g']}
    v_lshlrev_b32 {va}, 9, {t}
    v_and_b32 {t}, 1, {I['l']}
    v_lshl_or_b32 {va}, {t}, 4, {va}
    v_lshrrev_b32 {t}, 3, {I['l']}
    v_lshl_or_b32 {va}, {t}, 15, {va}
    s_lshl_b32 {so}, {I['w']}, 9
    s_add_u32 {so}, {so}, {I['ta']}
    s_lshl_b32 {so}, {so}, 6
    s_add_u32 {so}, {so}, {I['tb']}
    s_lshl_b32 {so}, {so}, 5
    s_lshl_b32 m0, {I['w']}, 12
    s_add_u32 m0, m0, {lds_off}""")
    k.v.free(t)
    return va, so

def ids2(k):
    I = {n: k.s.alloc() for n in ('w', 'k1p', 'slot', 'ca', 'cb', 'ta', 'tb', 'rc')}
    I['l'] = k.v.alloc(); I['n'] = k.v.alloc(); I['g'] = k.v.alloc(); i8 = k.s.alloc()
    k(f"""v_readfirstlane_b32 {I['w']}, v0
    v_and_b32 {I['l']}, 63, v0
    v_and_b32 {I['n']}, 15, v0
    v_bfe_u32 {I['g']}, v0, 4, 2
    s_bfe_u32 {I['k1p']}, s2, 0x20003
    s_lshr_b32 {i8}, s2, 5
    s_lshr_b32 {I['w']}, {I['w']}, 6
    s_and_b32 {I['ca']}, s2, 3
    s_lshl2_add_u32 {I['ca']}, {I['ca']}, {I['k1p']}
    s_bfe_u32 {I['cb']}, s2, 0x10002
    s_lshl3_add_u32 {I['cb']}, {I['cb']}, {i8}
    s_and_b32 {I['rc']}, s2, 1
    s_lshl3_add_u32 {I['ta']}, {I['rc']}, {i8}
    s_lshl1_add_u32 {I['rc']}, {i8}, {I['rc']}
    s_bfe_u32 {I['tb']}, s2, 0x20001
    s_lshl2_add_u32 {I['tb']}, {I['tb']}, {I['k1p']}
    s_and_b32 {I['slot']}, s2, 7
    s_lshl3_add_u32 {I['slot']}, {I['slot']}, {i8}""")
    k.s.free(i8)
    return I

class B3h:
    D = 3
    catch = False
    def __init__(self, k, I, sh, CL):
        self.k, self.I, self.sh, self.CL = k, I, sh, CL
        self.vh = k.v.alloc(2); self.rh = k.v.alloc(4)
        self.so, self.mH = k.s.alloc(), k.s.alloc()
        t = k.v.alloc(2); st = k.s.alloc(); l = I['l']
        k(f"""s_and_b32 {st}, {I['w']}, 1
        s_mul_i32 {self.mH}, {st}, {16384 + 4096}
        s_lshl_b32 {self.so}, {I['ta']}, 19
        s_add_u32 {self.mH}, {self.mH}, {self.so}
        v_lshl_add_u32 {self.vh[0]}, {l}, 4, {self.mH}
        v_xor_b32 {self.vh[1]}, 4096, {self.vh[0]}
        s_lshr_b32 {self.so}, {I['w']}, 1
        s_add_u32 {self.so}, {self.so}, {I['rc']}
        s_and_b32 {self.so}, {self.so}, 15
        s_lshl_b32 {self.so}, {self.so}, 15
        s_lshl_b32 {self.mH}, {I['w']}, 13
        v_and_b32 {t[0]}, 3, {l}
        v_and_b32 {t[1]}, 2, {I['g']}
        v_xor_b32 {t[1]}, {t[1]}, {t[0]}
        v_lshlrev_b32 {t[0]}, 9, {t[0]}
        v_lshl_or_b32 {t[0]}, {t[1]}, 6, {t[0]}
        v_bfe_u32 {t[1]}, {l}, 2, 2
        v_lshl_or_b32 {t[0]}, {t[1]}, 4, {t[0]}
        v_and_b32 {t[1]}, 1, {I['g']}
        v_lshl_or_b32 {t[0]}, {t[1]}, 3, {t[0]}
        s_lshl_b32 {st}, {st}, 13
        v_add_u32 {self.rh[0]}, {st}, {t[0]}
        v_xor_b32 {self.rh[1]}, 64, {self.rh[0]}
        v_add_u32 {self.rh[2]}, 0x10000, {self.rh[0]}
        v_add_u32 {self.rh[3]}, 0x10000, {self.rh[1]}""")
        k.v.free(t); k.s.free(st)
        self.last = {}; self.cnt = {}
    def dma(self, s, i):
        k = self.k
        if i & 3 == 0: k(f"s_add_u32 m0, {self.mH}, {(s % 4)*32768 + (i>>2)*4096}")
        self.last[s] = k(f"buffer_load_dwordx4 {self.vh[i>>2]}, {self.sh}, {self.so} offen offset:{1024*(i&3)} {SC} lds")
        self.cnt[s] = self.cnt.get(s, 0) + 1
        if i == 7: k(f"s_add_u32 {self.so}, {self.so}, {65536 + (8192 if s == 7 else 0)}\ns_and_b32 {self.so}, {self.so}, 0x7ffff")
    def alloc(self):
        self.acc = [self.k.v.allocq(32), self.k.v.allocq(32)]; self.fr = self.k.v.allocq(64)
    def main(self, dq, fill, pre_bar, post_bar):
        k = self.k; NS = 16; fr = self.fr
        def reads(s, u):
            f = fr.q(u, 32); out = []
            for kk in range(2):
                for ib in range(4):
                    off = (s % 4) * 32768 + u * 16384 + ib * 2048 + kk * 256; hi = 2 if off >= 65536 else 0
                    for h in range(2):
                        o = 16 * kk + 4 * ib + 2 * h
                        out.append(f"ds_read_b64_tr_b16 {f[o:o+2]}, {self.rh[hi+h]} offset:{off & 65535}")
            return out
        k.wait(self.last[0]); k("s_barrier")
        lastrd = None
        for r in reads(0, 0): lastrd = k(r)
        for s in range(NS):
            acc = self.acc[s >> 3]
            for u in range(2):
                f = fr.q(u, 32); rd = []
                if u == 0: rd = reads(s, 1)
                elif s + 1 < NS:
                    pre_bar(s)
                    assert self.cnt[s + 1] == 8
                    k.wait(lastrd, self.last[s + 1]); k("s_barrier")
                    rd = reads(s + 1, 0)
                k.wait(lastrd)
                order = [(kk, ib, mm ^ (ib & 1)) for kk in range(2) for ib in range(4) for mm in range(2)]
                if s & 7 == 7 and u == 1: order = [x for x in order if x[1] >= 2] + [x for x in order if x[1] < 2]
                for q, (kk, ib, mm) in enumerate(order):
                    d = acc.q(4 * mm + ib)
                    zero = s & 7 == 0 and u == 0 and kk == 0 and ib >= 2
                    k(f"v_mfma_f32_16x16x32_bf16 {d}, {f.q(4*kk+ib)}, {self.CL.frag(2*(s&7)+u,kk,mm)}, {0 if zero else d}")
                    if rd and q < 8:
                        k(rd[2 * q]); lastrd = k(rd[2 * q + 1])
                    if q >= 8 and dq and dq[0][0] <= s + self.D and (q % 2 == 0 or (s == 0 and self.catch)): self.dma(*dq.pop(0))
                    if q == 9 and u == 1: post_bar(s)
                    fill(s, u, q)
        assert not dq
        k.v.free(self.vh, self.rh); k.s.free(self.so, self.mH)

def xkeep3(k, I, ldsX):
    XK = k.v.allocq(16, 2); ad = k.v.alloc(2); t = k.v.alloc(2); st = k.s.alloc()
    k(f"""s_and_b32 {st}, {I['w']}, 1
    s_lshl_b32 {st}, {st}, 12
    s_add_u32 {st}, {st}, {ldsX}
    v_lshrrev_b32 {t[0]}, 2, {I['l']}
    v_lshlrev_b32 {t[0]}, 7, {t[0]}
    v_and_b32 {t[1]}, 3, {I['l']}
    v_lshl_or_b32 {t[0]}, {t[1]}, 3, {t[0]}
    v_add_u32 {t[0]}, {st}, {t[0]}
    v_bfe_u32 {t[1]}, {I['l']}, 3, 2
    s_and_b32 {st}, {I['w']}, 2
    v_xor_b32 {t[1]}, {st}, {t[1]}
    v_lshl_add_u32 {ad[0]}, {t[1]}, 5, {t[0]}
    v_xor_b32 {ad[1]}, 32, {ad[0]}""")
    for h in range(2):
        for mm in range(2):
            for ib in range(2): k(f"ds_read_b64_tr_b16 {XK.q(4*h+2*mm+ib,2)}, {ad[mm]} offset:{8192*h + 2048*ib}")
    k.v.free(ad, t); k.s.free(st)
    return XK

def xd_init3(k, XK, Dk, acc):
    for h in range(2):
        for mm in range(2):
            sel = f" op_sel:[{mm},0] op_sel_hi:[{mm},1]"
            for ib in range(2):
                a = acc[h].q(4 * mm + ib); x = XK.q(4 * h + 2 * mm + ib, 2)
                k(f"""v_lshlrev_b32 {a[0]}, 16, {x[0]}
                v_and_b32 {a[1]}, 0xffff0000, {x[0]}
                v_lshlrev_b32 {a[2]}, 16, {x[1]}
                v_and_b32 {a[3]}, 0xffff0000, {x[1]}
                v_pk_mul_f32 {a[0:2]}, {Dk}, {a[0:2]}{sel}
                v_pk_mul_f32 {a[2:4]}, {Dk}, {a[2:4]}{sel}""")
    k.v.free(XK, Dk)

def fin3(k, A, g, acc, aa, so_, h, flags, added):
    va, so = A['va'], A['so']
    for ib in range(2):
        gg = g.q(2 * h + ib)
        for x in (0, 2):
            for mm in range(2):
                b = acc.q(4 * mm + ib); a = aa(mm, ib)
                if not added: k(f"v_pk_add_f32 {b[x:x+2]}, {b[x:x+2]}, {acc.q(4*mm+2+ib)[x:x+2]}")
                k(f"v_pk_add_f32 {a[x:x+2]}, {a[x:x+2]}, {b[x:x+2]} neg_lo:[0,1] neg_hi:[0,1]")
            for mm in range(2):
                b = acc.q(4 * mm + ib); a = aa(mm, ib)
                k(f"v_pk_fma_f32 {b[x:x+2]}, {gg[x:x+2]}, {a[x:x+2]}, {b[x:x+2]}")
            for r in (x, x + 1):
                for mm in range(2):
                    k(f"buffer_store_dword {acc.q(4*mm+ib)[r]}, {va}, {so_}, {so} offen offset:{1024*mm} {flags}")
                step = (1 << 16) if r < 3 else ((1 << 20) if ib == 0 else (3 << 20)) - 3 * (1 << 16)
                if (h, ib, r) != (1, 1, 3): k(f"s_add_u32 {so}, {so}, {step}")

def ph3_list(G, Y, aa):
    return [f"v_mfma_f32_16x16x32_bf16 {aa(mm,ib)}, {G.q(4*ib+kap)}, {Y.q(4*mm+kap)}, {aa(mm,ib) if kap else 0}"
            for kap in range(4) for ib in range(2) for mm in range(2)]

def code_touch(k, I, wave, nbytes, dst):
    r = k.s.alloc(2); so = k.s.alloc(); va = k.v.alloc(2)
    per = -(-nbytes // (32 * 128)); lab = k.lab('pc')
    k(f"s_cmp_lg_u32 {I['w']}, {wave}")
    with k.skip_if("s_cbranch_scc1"):
        k(f"""s_getpc_b64 {r}
        {lab}:
        s_lshr_b32 {so}, s2, 3
        s_mul_i32 {so}, {so}, {per*128}
        v_min_u32 {va[0]}, {per-1}, {I['l']}
        v_lshl_add_u32 {va[0]}, {va[0]}, 7, {so}
        v_min_u32 {va[0]}, {k.name}_end-{lab}, {va[0]}
        v_mov_b32 {va[1]}, 0
        v_lshl_add_u64 {va}, {va}, 0, {r}
        global_load_dword {dst}, {va}, off""").defs = set()
    k.s.free(r, so); k.v.free(va)

def pretouch(k, I, swr, swi, sc, CLv, dst, what):
    va = k.v.alloc(); t = k.v.alloc(); r0, r1 = k.s.alloc(), k.s.alloc()
    if 'w' in what:
        k(f"""s_lshl_b32 {r0}, {I['k1p']}, 2
        s_add_u32 {r0}, {r0}, {I['w']}
        s_lshl_b32 {r0}, {r0}, 7
        s_add_u32 {r0}, {r0}, {I['slot']}
        s_sub_u32 {r1}, 2048, {r0}
        s_and_b32 {r1}, {r1}, 2047
        s_mul_i32 {r0}, {r0}, 1026
        s_mul_i32 {r1}, {r1}, 1026
        s_sub_u32 {r1}, {r1}, {r0}
        v_and_b32 {t}, 1, {I['g']}
        v_mul_lo_u32 {t}, {t}, {r1}
        v_lshl_add_u32 {va}, {I['n']}, 7, {r0}
        v_add_u32 {va}, {va}, {t}
        v_and_b32 {va}, -4, {va}
        s_mov_b64 exec, 0x01ff01ff
        buffer_load_dword {dst}, {va}, {swr}, 0 offen
        buffer_load_dword {dst}, {va}, {swi}, 0 offen offset:1024
        s_mov_b64 exec, -1""")
    if 'c' in what:
        k(f"""s_lshr_b32 {r0}, {I['w']}, 1
        s_lshl_b32 {r0}, {r0}, 20
        s_lshl_b32 {r1}, {I['tb']}, 15
        s_add_u32 {r0}, {r0}, {r1}
        v_lshl_add_u32 {va}, {I['n']}, 11, {r0}
        v_and_b32 {t}, 1, {I['g']}
        v_lshl_add_u32 {va}, {t}, 19, {va}
        v_lshrrev_b32 {t}, 1, {I['g']}
        v_add_u32 {t}, {I['rc']}, {t}
        v_and_b32 {t}, 15, {t}
        v_lshl_add_u32 {va}, {t}, 7, {va}""")
        if '2' not in what: k("s_mov_b32 exec_hi, 0")
        k(f"buffer_load_dword {dst}, {va}, {sc}, 0 offen\ns_mov_b64 exec, -1")
    for i in k.ins[-40:]:
        if i.mn == 'buffer_load_dword' and i.defs == {('v', dst.idx)}: i.defs = set()
    k.v.free(va, t); k.s.free(r0, r1)

class Touch:
    def __init__(self, k, I, swr, swi, sc, dst):
        self.k, self.I, self.swr, self.swi, self.sc, self.dst = k, I, swr, swi, sc, dst
        self.vw, self.vc = k.v.alloc(), k.v.alloc(); t = k.v.alloc(); r0, r1 = k.s.alloc(), k.s.alloc(); va = self.vw
        k(f"""s_lshl_b32 {r0}, {I['k1p']}, 2
        s_add_u32 {r0}, {r0}, {I['w']}
        s_lshl_b32 {r0}, {r0}, 7
        s_add_u32 {r0}, {r0}, {I['slot']}
        s_sub_u32 {r1}, 2048, {r0}
        s_and_b32 {r1}, {r1}, 2047
        s_mul_i32 {r0}, {r0}, 1026
        s_mul_i32 {r1}, {r1}, 1026
        s_sub_u32 {r1}, {r1}, {r0}
        v_and_b32 {t}, 1, {I['g']}
        v_mul_lo_u32 {self.vc}, {t}, {r1}
        v_lshl_add_u32 {va}, {I['n']}, 7, {r0}
        v_add_u32 {va}, {va}, {self.vc}
        v_and_b32 {va}, -4, {va}""")
        va = self.vc
        k(f"""s_lshr_b32 {r0}, {I['w']}, 1
        s_lshl_b32 {r0}, {r0}, 20
        s_lshl_b32 {r1}, {I['tb']}, 15
        s_add_u32 {r0}, {r0}, {r1}
        v_lshl_add_u32 {va}, {I['n']}, 11, {r0}
        v_lshl_add_u32 {va}, {t}, 19, {va}
        v_lshrrev_b32 {t}, 1, {I['g']}
        v_add_u32 {t}, {I['rc']}, {t}
        v_and_b32 {t}, 15, {t}
        v_lshl_add_u32 {va}, {t}, 7, {va}""")
        k.v.free(t); k.s.free(r0, r1)
    def go(self, what, wave):
        k = self.k
        k(f"s_cmp_lg_u32 {self.I['w']}, {wave}")
        with k.skip_if("s_cbranch_scc1"):
            if what == 'w':
                k("s_mov_b64 exec, 0x01ff01ff")
                k(f"buffer_load_dword {self.dst}, {self.vw}, {self.swr}, 0 offen").defs = set()
                k(f"buffer_load_dword {self.dst}, {self.vw}, {self.swi}, 0 offen offset:1024").defs = set()
            else:
                if what != 'b': k(f"s_mov_b32 exec_{'hi' if what == 'c' else 'lo'}, 0")
                k(f"buffer_load_dword {self.dst}, {self.vc}, {self.sc}, 0 offen").defs = set()
            k("s_mov_b64 exec, -1")
    def done(self): self.k.v.free(self.vw, self.vc)

def build(opt={}):
    O = dict(sig=8, v2s=-1, vf=-1, early=0, shadow=1, spos=0, cpos=0, x1=4, p0=30, lead0=300, p1=56, lead1=60, gpos=1, cearly=0, n0=8, n1=16, pb=70, nb=2, nlb=1, pc=64, leadc=0, late=3, gseam=1, fast=0, lag=2, hmark=1, pollat=1, touch=1, ctpos=0, ctw=0, cfirst=0, wtail=4, bars=0, gx=300, v2r=2, eo=1, es=26, er=4, vp=0, sk=2, bf=1, sr=8, lr=4, wpos=0, D=5, cpre=1, clag=1, fl=12, pl=23, pld=2, m2s=10, ptq=0, gap=-1, ntail=3, fend=99, tt=0, tsp=2, m32=0, xs=8, xb=0, vr=1, rate=2, yrr=2, scal=1, clr=1, fm=65535, gl=1, pt='w', pts=11, two=1, pre3=2, pg=48, pv=3, pd=2, yd=1, yl=1, yr=1000, fs=13, oaf='sc1', obf='sc1', fr=24, map8=1, rot1=2, gloc=1, rotc=1)
    O.update(opt)
    k = Kernel(NAME + "_kernel", nv=256, na=256)
    LX = 131072; LT2 = LX + 16384; LDS = LT2 + 16384
    A0, A1, A2, A3, B0, B1_, B2, B3_ = [16384 * i for i in range(8)]
    k("s_cmp_ge_u32 s2, 256")
    k(f"s_cbranch_scc1 {k.name}_end")
    KP = k.s.alloc(32, 4)
    k(f"s_load_dwordx16 {KP[0:16]}, s[0:1], 0\ns_load_dwordx16 {KP[16:32]}, s[0:1], 64")
    P = {n: KP[o // 4:o // 4 + 2] for n, o in KA.items()}
    def rel(*names):
        for n in names: k.s.free(P.pop(n))
    I = ids2(k); cd = k.v.alloc(); I['tag'] = O['sk'] >= 2
    pf = Prof(k, 0)
    if O['ctpos'] == 0: code_touch(k, I, O['ctw'], 40960, cd)
    if O.get('cnt'):
        nm, thr = O['cnt'], O['thr']; sl = srd(k, P[nm], 1 << 21); tv = k.v.alloc(2); t0_, t1_ = k.s.alloc(2), k.s.alloc(2); so_ = k.s.alloc(); lp = k.lab('cnt')
        k(f"""v_mov_b32 {tv[0]}, s2
        v_lshlrev_b32 {tv[0]}, 8, {tv[0]}
        s_mov_b32 {so_}, 0
        s_mov_b32 {pf.ta}, 0
        s_mov_b32 {pf.tb}, 0
        s_waitcnt vmcnt(0) lgkmcnt(0)
        s_cmp_lg_u32 {I['w']}, 0
        s_cbranch_scc1 {lp}x
        s_cmp_lg_u32 s2, 77
        s_cbranch_scc1 {lp}x
        {lp}:
        s_memtime {t0_}
        s_waitcnt lgkmcnt(0)
        buffer_load_dword {tv[1]}, {tv[0]}, {sl}, {so_} offen
        s_waitcnt vmcnt(0)
        s_memtime {t1_}
        s_waitcnt lgkmcnt(0)
        s_sub_u32 {t1_[0]}, {t1_[0]}, {t0_[0]}
        s_cmp_gt_u32 {t1_[0]}, {thr}
        s_cselect_b32 {t1_[0]}, {'100' if thr else t1_[0]}, 0
        s_add_u32 {pf.tb}, {pf.tb}, {t1_[0]}
        s_add_u32 {so_}, {so_}, 61696
        s_cmp_lt_u32 {so_}, {32*61696}
        s_cbranch_scc1 {lp}
        {lp}x:""")
        if not thr: k(f"s_lshr_b32 {pf.tb}, {pf.tb}, 3")
        k.s.free(sl, t0_, t1_, so_); k.v.free(tv)
    sx, sb = k.s.alloc(4), k.s.alloc(4)
    k(f"s_mov_b32 {sx[2]}, {SZ['x']}\ns_mov_b32 {sx[3]}, 0x20000\ns_mov_b32 {sb[2]}, {SZ['bre']}\ns_mov_b32 {sb[3]}, 0x20000")
    xva, xso = xtile_addr(k, I, LX)
    if O['shadow'] >= 0: g1 = B1k(k, I, sx, sb)
    if O['shadow'] >= 1: g1.readers()
    k(f"s_mov_b64 {sx[0:2]}, {P['x']}")
    pf('ka')
    XI = dict(j=0)
    def x1():
        j = XI['j']; XI['j'] += 1
        if j and j == O['x1']: k(f"s_add_u32 m0, {g1.mA}, {LX}")
        XI['ld'] = k(f"buffer_load_dwordx4 {xva}, {sx}, {xso} offen offset:{1024*j} lds")
        if j < 3: k(f"s_add_u32 {xso}, {xso}, {8*32768 - 1024}")
    for j in range(O['x1']): x1()
    if O['ctpos'] == 1: code_touch(k, I, O['ctw'], 40960, cd)
    if O['shadow'] < 0: g1 = B1k(k, I, sx, sb)
    k(f"s_bitcmp1_b32 {I['w']}, 0\ns_cselect_b64 {sb[0:2]}, {P['bim']}, {P['bre']}")
    rel('x', 'bx', 'bre', 'bim')
    pf('xi')
    def vm1(cap):
        def f():
            while cap.groups:
                v = any(i.cls == 'vm' for i in cap.groups[0]); cap.emit(1)
                if v: break
        return f
    H = {}
    CA = k.a.alloc(256)
    dq = [(-1 if s < 4 else s - 4, lambda s=s, i=i: g1.dma(s, i)) for s in range(0, 16) for i in range(8)]
    take = lambda n: [dq.pop(0)[1] for _ in range(n)]
    if O['x1'] < 4:
        for f_ in take(4): f_()
    T = ph2_params(k, I)
    if O['cpos'] == 0: cw = coop_consts(k, I, T, LT2, 2.0 ** -20)
    with k.capture() as c0:
        if O['shadow'] < 1: g1.readers()
        if O['m32'] or O['sk'] == 3:
            I['lp'] = k.v.alloc(); tt = k.s.alloc()
            k(f"s_and_b32 {tt}, {I['ca']}, 2\ns_lshl_b32 {tt}, {tt}, 3\nv_xor_b32 {I['lp']}, {tt}, {I['l']}\ns_lshl_b32 {tt}, {tt}, 7")
            for q in range(4): k(f"v_xor_b32 {g1.rb[q]}, {tt}, {g1.rb[q]}")
            k.s.free(tt)
        sf = srd(k, P['ws'], WS_FP - WS_F + 131072, WS_F)
        FV, FH = k.s.alloc(), k.s.alloc()
        zero = k.v.alloc(); vpc = k.v.alloc()
        k(f"""v_mov_b32 {zero}, 0
        v_lshlrev_b32 {vpc}, 4, v0
        s_mov_b32 {FV}, 4096
        s_cmp_lg_u32 s2, 0""")
        with k.skip_if("s_cbranch_scc1"):
            tz = k.v.alloc(4)
            for j in range(4): k(f"v_mov_b32 {tz[j]}, 0")
            k(f"buffer_store_dwordx4 {tz}, {vpc}, {sf}, 0 offen {SC}")
            g1.extra.append(k(f"buffer_store_dwordx4 {tz}, {vpc}, {sf}, {FV} offen {SC}"))
            k.v.free(tz)
        sgw = srd(k, P['gw'], SZ['gw']); rel('gw')
        t4 = [srd(k, P[n], 2048) for n in ('lre', 'lim', 'ldt', 'dsk')]; rel('lre', 'lim', 'ldt', 'dsk')
        sv1 = srd(k, P['ws'], 256 * V1_STR, WS_V1)
        F = gen_F2(k, I)
    acts = take(8) if O['x1'] == 4 else [x1] * (4 - O['x1']) + take(4)
    c0.weave(acts, O['p0'], O['lead0'])
    while acts: acts.pop(0)()
    pf('su')
    ldx = XI['ld']; k.v.free(xva); k.s.free(xso)
    with k.capture() as small:
        Q = ssm_param_issue(k, I, *t4[:3]); Dk = (dsk_issueS if O['sk'] else dsk_issue32 if O['m32'] else dsk_issue)(k, I, t4[3])
    with k.capture() as gl: Gt = gate_issue2(k, I, sx, sgw)
    if O.get('nogate'): gl.groups = [g for g in gl.groups if not any(i.cls == 'vm' for i in g)]
    if O['spos'] == 0: small.emit(999)
    if O['cpos'] == 1: cw = coop_consts(k, I, T, LT2, 2.0 ** -20)
    pf("F")
    small.flush(); k.s.free(*t4)
    acts = ([vm1(gl)] * 6 if O['gpos'] == 0 else []) + take(O['n0'])
    while acts: acts.pop(0)()
    k.wait(ldx, cw); k("s_barrier"); pf("xt")
    with k.capture() as c1:
        O1 = ph1f(k, I, F, LX, sv1, lambda n: None)
        k.v.free(F)
        XK = (xkeepU if O['sk'] == 3 else xkeepS if O['sk'] else xkeep32 if O['m32'] else xkeep3 if O['two'] else xkeep)(k, I, LX)
    acts = take(O['n1'])
    c1.weave(acts, O['p1'], O['lead1'])
    while acts: acts.pop(0)()
    if O['gpos'] == 1: gl.emit(1000)
    pf("ph1")
    g1.alloc()
    if O['gpos'] == 2:
        pos = 32 - 8 - O['n0'] - O['n1']
        dq[pos:pos] = [(-1, vm1(gl))] * 6
    with k.capture() as fl1:
        ph1_store(k, *O1, sv1)
        if O.get('nov1'): k.ins = []
        one = k.v.alloc(); vfc = k.v.alloc(); vfh = k.v.alloc(); sdbg = srd(k, P['dbg'], 256); rel('dbg')
        k(f"""s_and_b32 {FH}, s2, 7
        s_lshl_b32 {FH}, {FH}, 8
        s_add_u32 {FH}, {FH}, s2
        s_and_b32 {FH}, {FH}, -8
        s_lshl_b32 {FH}, {FH}, 1
        v_mov_b32 {vfc}, {FH}
        s_lshl4_add_u32 {FH}, {I['cb']}, {I['ca']}
        s_lshl_b32 {FH}, {FH}, 7
        v_lshl_add_u32 {vfh}, {I['n']}, 2, {FH}
        s_mov_b32 {FH}, 8192
        v_mov_b32 {one}, 1""")
        st = k.s.alloc()
        k(f"s_lshl_b32 {st}, {I['cb']}, 14")
        se = srd(k, P['ws'], 8192, WS_E, st)
        t = k.v.alloc(2)
        k(f"""s_sub_u32 {st}, 15, {I['ca']}
        s_lshl_b32 {st}, {st}, 9
        v_lshl_add_u32 {t[0]}, v0, 2, {st}
        v_mov_b32 {t[1]}, -1
        s_cmp_ge_u32 {I['w']}, 2""")
        with k.skip_if("s_cbranch_scc1"):
            H['clr'] = k(f"buffer_store_dword {t[1]}, {t[0]}, {se}, 0 offen {SC}")
        wave0_store(k, I, f"buffer_store_dword {zero}, {vfh}, {sf}, {FH} offen {SC}", O['fm'])
        if O['sk'] == 1:
            FP = k.s.alloc()
            k(f"""s_lshl4_add_u32 {FP}, {I['ta']}, {I['tb']}
            s_lshl2_add_u32 {FP}, {FP}, {I['w']}
            s_lshl_b32 {FP}, {FP}, 7
            s_add_u32 {FP}, {FP}, {WS_FP - WS_F}
            v_lshlrev_b32 {t[0]}, 2, {I['n']}
            s_mov_b64 exec, 0xffff
            buffer_store_dword {zero}, {t[0]}, {sf}, {FP} offen {SC}
            s_mov_b64 exec, -1""")
        k(f"s_or_b32 {st}, {I['w']}, s2\ns_cmp_lg_u32 {st}, 0")
        with k.skip_if("s_cbranch_scc1"):
            k(f"s_mov_b64 exec, 1\nbuffer_store_dword {one}, {zero}, {sdbg}, 0 offen {SC}\ns_mov_b64 exec, -1")
        k.v.free(t); k.s.free(st)
        if O['sk']:
            sc = srd(k, P['cre'], SZ['cre']); sc_i = srd(k, P['cim'], SZ['cim']); rel('cre', 'cim')
            CL = (CLoadU if O['sk'] == 3 else CLoadS)(k, I, sc, sc_i, CA)
        else:
            sc = srd_sel(k, I, P['cre'], P['cim'], SZ['cre']); rel('cre', 'cim')
            CL = (CLoad32 if O['m32'] else CLoad)(k, I, sc, CA)
        swr = srd(k, P['wr'], SZ['wr'])
        swi = k.s.alloc(4)
        k(f"s_sub_u32 {swi[0]}, {P['wi'][0]}, 1024\ns_subb_u32 {swi[1]}, {P['wi'][1]}, 0\ns_mov_b32 {swi[2]}, {SZ['wi'] + 1024}\ns_mov_b32 {swi[3]}, 0x20000")
        rel('wr', 'wi')
        if O['tt']: TT = Touch(k, I, swr, swi, sc, cd)
        nfirst = len(k.ins)
        sg = srd(k, P['ws'], G_BYTES, WS_G)
        lastst = gate_compute2(k, I, Gt, sg, LX if O['gl'] else None)
        nsec = len(k.ins)
        H['C2'] = coop_read(k, I, LT2, {n: CA[224 + 8 * j:232 + 8 * j] for j, n in enumerate(('m2f', 'm2i', 'm1i', 'si'))})
        wsl = (A0, A1, B1_, A2) if O['cfirst'] else (LX, A0, B0, A1)
        WD = WD2(k, I, T, swr, swi, wsl, LT2)
        nthird = len(k.ins)
        Pm = ssm_param_compute(k, Q)
        scan_addr(k, I, Pm, LT2)
        E1h = {}; hstore_addr(k, I, E1h)
        if O['sk'] == 3: Dk = diagU(k, I, Dk)
        ntot = len(k.ins)
    print("B1 fillers", nfirst, nsec, nthird, ntot)
    for u in range(O['cearly']):
        pos = [j for j, x in enumerate(dq) if x[0] == 2 + 3 * u][0]
        dq[pos:pos] = [(-1, lambda: CL.issue(LX))]
    p0 = Poll(k, sdbg, zero, 1, 1, sleep=16)
    p1 = Poll(k, sf, vpc, 1, 1, sleep=16)
    dq.append((-1, lambda: (p1.issue(), WD.extra_issue())))
    if O['ptq']: dq.append((-1, lambda: pretouch(k, I, swr, swi, sc, CL, cd, O['ptq'])))
    gap = O['gap']; wq = []
    if O['cfirst']:
        tslots = [(-1, LX), (12, B0), (14, B2)]
        for s, slot in tslots[:2]: dq += [(s, lambda slot=slot: CL.issue1(slot))] * 4
        wq = [(max(s, gap), WD.issue1) for s in (12, 13, 13, 14) for _ in range(4)]
        dq += wq[:4 * O['wtail']]; wq = wq[4 * O['wtail']:]; O['ntail'] = 2
    else:
        dq += [(gap, WD.issue1)] * 4
        for s, slot in ((12, A0), (12, B0), (13, A1)): dq += [(s, WD.issue1)] * 4
        tslots = [(13, B1_), (14, A2), (14, B2)]
        for s, slot in tslots[:O['ntail']]: dq += [(s, lambda slot=slot: CL.issue1(slot))] * 4
    pf("pre")
    def pre_bar(s):
        if O['gl'] and s == 5: k.wait(lastst)
        if s == O['sig']: k.wait(H['gs'] if O['gl'] else lastst, H['clr'])
    def post_bar(s):
        if O['touch'] and s in (4, 11): code_touch(k, I, 1 + (s & 1), 16384, cd)
        if O['pt'] and s == O['pts']: pretouch(k, I, swr, swi, sc, CL, cd, O['pt'])
        if O['gl'] and s == 5: H['gs'] = gate_store(k, I, sg, LX)
        if s == O['sig'] - 3: p0.issue()
        if s == O['sig']:
            fl1.emit_until_safe()
            p0.finish()
            wave0_store(k, I, f"buffer_store_dword {one}, {vfc}, {sf}, 0 offen {SC}")
    def fill1(s, kk, m):
        tgt = [(0, 34), (1, nfirst), (2, nfirst), (4, nsec), (9, nthird), (14, ntot)]
        x = s + (4 * kk + m + 1) / 16.0 - 1; px, py = -1, 0
        for qx, qy in tgt:
            if x <= qx: want = py + (qy - py) * (x - px) / (qx - px); break
            px, py = qx, qy
        else: want = ntot
        while fl1.groups and ntot - fl1.left() < want: fl1.emit(1)
        if s == 3 and kk == 0 and m == 0: gl.flush(); k.s.free(sgw)
        if O['tt'] and m == 3 and kk in (0, 2):
            x = 2 * s + kk // 2
            for what, s0_ in re.findall(r'([wcdb])(\d+)', O['tt']):
                d = x - 2 * int(s0_)
                if d >= 0 and d % O['tsp'] == 0 and d // O['tsp'] < 4: TT.go(what, d // O['tsp'])
        if s == 14 and kk == 3 and m == 3:
            fl1.flush()
            if O['tt']: TT.done()
        if kk == 1 and m == 0 and s >= 5 and s % 3 == 2 and CL.nd < O['cearly']: CL.drain()
        if kk == 3 and m == 0 and (s % 4 == 3 or PROFSEL): pf(f"a{s}")
    def rate(s, kk, m):
        if s < O['fast'] or s >= O['fend']: return 1 if m >= 1 else 0
        return 1 if m >= 2 else 0
    acc = g1.main(dq, fill1, pre_bar, post_bar, rate)
    pf("main1")
    k.s.free(sx, sb, sdbg); k.v.free(zero)
    with k.capture() as c2:
        E1 = pass1c(k, I, acc, Pm, LT2); E1.update(E1h)
    acts = [x[1] for x in dq]; print("queue left after B1:", len(acts))
    c2.weave(acts, 64)
    while acts: acts.pop(0)()
    p1.finish()
    k.wait(E1['w']); k("s_barrier")
    publish(k, I, E1, Pm, se)
    pf("pass1")
    LT1 = A3
    C2 = H['C2']; nlate = O['late']; assert nlate >= 2
    free = [B3_] + [x[1] for x in tslots[O['ntail']:]]; state = dict(cur=None)
    def c1act():
        if CL.n >= 64 - 4 * nlate: return
        if CL.n & 3 == 0:
            if not free: free.append(CL.drain())
            state['cur'] = free.pop(0)
            if not free and CL.nd < CL.n // 4 - O['lag'] + 1: free.append(CL.drain())
        CL.issue1(state['cur'])
    def cfinish():
        while CL.n & 3: c1act()
    L1 = v1_issue(k, I, T, sv1, SC); k.s.free(sv1)
    with k.capture() as c3:
        if O['wpos'] == 0: Wf, WX = WD.gather_all()
        scan_coef(k, acc, Pm)
        carry_prep(k, I, E1, Pm)
        if O['wpos'] == 0: WD.fix(Wf, WX)
    assert not wq or O['wpos'] == 1
    acts = [x[1] for x in wq] + [c1act] * (4 * O['nb'])
    c3.weave(acts, O['pb'], 100)
    while WD.n < 16: WD.issue1()
    cfinish()
    if O['wpos'] == 0: free.extend([x for x in wsl if x != LX])
    lb = LookBack(k, Pm, se); lb.issue()
    pf("coef")
    with k.capture() as c4: t1w = ph2_s1(k, I, C2, L1, LT1)
    acts = [c1act] * (4 * O['nlb'])
    c4.weave(acts, O['pb'])
    cfinish()
    pf("s1")
    E = lb.finish(); k.s.free(se)
    pf("lb")
    sh = srd(k, P['ws'], 8 << 20, WS_H)
    lasth = pass2c(k, I, acc, Pm, E1, E, sh, lambda q: None)
    pf("pass2")
    if O['wpos'] == 1: Wf, WX = WD.gather_all()
    while CL.nd < CL.n // 4: free.append(CL.drain())
    if O['wpos'] == 1: WD.fix(Wf, WX); free.extend([x for x in wsl if x != LX])
    if O['touch']: code_touch(k, I, 3, 16384, cd)
    k.wait(t1w); k("s_barrier")
    pf("bar1")
    vph = k.v.alloc()
    if O['sk']:
        tt = k.s.alloc()
        k(f"s_lshr_b32 {tt}, {I['tb']}, 3\ns_lshl2_add_u32 {tt}, {tt}, {I['w']}\ns_lshl_b32 {tt}, {tt}, 12\nv_lshl_add_u32 {vph}, {I['l']}, 7, {tt}")
        k.s.free(tt)
        p3 = Poll(k, sf, vph, 1, 1, FH, mask=0xffffffff)
    else:
        k(f"v_lshlrev_b32 {vph}, 7, v0")
        p3 = Poll(k, sf, vph, 1, 1, FH)
    def mark(i):
        if i == O['hmark']:
            k.wait(lasth); k("s_barrier")
            wave0_store(k, I, f"buffer_store_dword {one}, {vfh}, {sf}, {FH} offen {SC}", O['fm'])
            pf("hflag")
    with k.capture() as c5: ph2_mid(k, I, T, C2, Wf, WX, LT1, LT2, mark)
    acts = [c1act] * (64 - 4 * nlate - CL.n); print("C instr in mid:", len(acts))
    c5.weave(acts, O['pc'], O['leadc'])
    print("C instr left after mid:", len(acts))
    while acts: acts.pop(0)()
    pf("mid")
    if O['pollat'] == 0: p3.issue()
    k("s_waitcnt lgkmcnt(0)\ns_barrier")
    V2 = ph2_s6(k, I, C2, LT2)
    if O['pollat'] == 1: p3.issue()
    sv2 = srd(k, P['ws'], 256 * V2_STR, WS_V2)
    while CL.nd < CL.n // 4: CL.drain()
    with k.capture() as cv2:
        if O['v2s'] == -1: H['v2'] = v2_store(k, *V2, sv2)
    if not O['vp']: cv2.flush()
    with k.capture() as c7:
        g3 = (B3u if O['sk'] == 3 else B3s if O['sk'] else B3m if O['m32'] else B3h if O['two'] else B3g)(k, I, sh, CL)
        g3.alloc()
        (xd_initU if O['sk'] == 3 else xd_initS if O['sk'] else xd_init32 if O['m32'] else xd_init3 if O['two'] else xd_init2)(k, XK, Dk, g3.acc)
        if O['pollat'] == 2: p3.issue()
        if O['gseam'] == 2: H['G1'] = gen_GS(k, I) if O['sk'] else gen_G1b(k, dict(I, khs=5))
    acts = [vm1(cv2)] * 16 if O['vp'] else []
    c7.weave(acts, O['vp'])
    cv2.flush()
    pf("s6")
    p3.finish(); k.v.free(vph)
    k("s_waitcnt lgkmcnt(0)\ns_barrier")
    pf("sync3")
    if O['sk'] == 3: return tailU(k, I, O, P, H, locals())
    if O['sk'] == 2: return tailT(k, I, O, P, H, locals())
    if O['sk']: return tailS(k, I, O, P, H, locals())
    if O['m32']: return tail32(k, I, O, P, H, locals())
    if O['two']: return two_pass_tail(k, I, O, P, H, locals())
    acts = [lambda s=s, i=i: g3.dma(s, i) for s in range(3) for i in range(8)]
    G1 = None
    if O['gseam']:
        with k.capture() as cg: G1 = gen_G1b(k, I)
        for _ in range(2): acts.pop(0)()
        cg.weave(acts, 48)
    while acts: acts.pop(0)()
    so = srd(k, P['out'], SZ['out'])
    with k.capture() as f3a:
        if O['v2s'] >= 0: H['v2'] = v2_store(k, *V2, sv2)
    with k.capture() as f3b:
        if G1 is None: G1 = gen_G1b(k, I)
        FA = final_addr(k, I, 0, LX)
    pf("pref")
    p4 = Poll(k, sf, vpc, 1, 1, FV, sleep=16)
    VS = O['v2s']
    def pre_bar3(s):
        if s == VS + 3: k.wait(H['v2'])
        if s == 10:
            f3b.flush(); p4.finish()
        if s == 14: H['c'].flush(); k.wait(H['yw'])
    def post_bar3(s):
        if s == VS + 3: wave0_store(k, I, f"buffer_store_dword {one}, {vfc}, {sf}, {FV} offen {SC}")
        if O['touch'] and s == 5: code_touch(k, I, 1, 12288, cd)
        if s == 8: p4.issue()
        if s == 10:
            L2 = v2_issue2(k, I, sv2)
            with k.capture() as H['c']:
                H['yw'] = y_stage2(k, I, L2, LX)
        if s == 14:
            H['g'] = g_issue2(k, I, sg)
            with k.capture() as H['d']:
                H['G2'] = gen_G2(k, I, G1)
    def fill3(s, kk, q):
        if s == VS and f3a.left(): f3a.emit(2)
        if s == max(VS, 0) and kk == 1 and q == 15: f3a.flush()
        if s > VS and q >= 8: f3b.emit(2)
        if q == 15 and kk == 0 and 3 <= s < 3 + nlate: CL.drain()
        if q == 15 and kk == 1 and 1 <= s < 1 + nlate: CL.issue((LX, LT2)[s & 1])
        if s >= 13 and 'c' in H and q >= 6: H['c'].emit(O.get('yr') or 4)
        if 'd' in H and q >= 8: H['d'].emit(O.get('gr') or 4)
        if kk == 1 and q == 0 and s % 4 == 3: pf(f"b{s}")
    g3.main(fill3, pre_bar3, post_bar3, lambda Y: y_reads(FA, Y))
    assert CL.nd == 16
    H['d'].flush()
    pf("main3")
    final2(k, FA, H['g'], g3.acc, g3.fr, (G1, H['G2']), so, pf)
    pf("epi")
    pf.done()
    end(k)
    return k, LDS

def two_pass_tail(k, I, O, P, H, L):
    g3, CL, pf, sf, sg, sv2, V2, vpc, vfc, one, FV, cd, LX, LT2, nlate = [L[n] for n in 'g3 CL pf sf sg sv2 V2 vpc vfc one FV cd LX LT2 nlate'.split()]
    dq = [(s, i) for s in range(16) for i in range(8)]
    acts = [lambda: g3.dma(*dq.pop(0))] * (8 * O['pre3'])
    I2 = dict(I, khs=5); g3.catch = O['pre3'] == 2
    with k.capture() as cg: G1 = H.get('G1') or gen_G1b(k, I2)
    for _ in range(2): acts.pop(0)()
    cg.weave(acts, O['pg'])
    while acts: acts.pop(0)()
    so = srd(k, P['out'], SZ['out'])
    with k.capture() as f3a:
        if O['v2s'] >= 0: H['v2'] = v2_store(k, *V2, sv2)
    with k.capture() as f3b:
        FA = final_addr(k, I2, LT2, LX)
    pf("pref")
    p4 = Poll(k, sf, vpc, 1, 1, FV, sleep=16)
    VS = O['v2s']; PV = O['pv']; VF = O.get('vf', VS + 3); PF = PV + O['pd']; YS = PF + O['yd']; YB = YS + O['yl']; acc = g3.acc; ad = FA['ad']
    aa0 = lambda mm, ib: acc[0].q(4 * mm + 2 + ib)
    S = {}
    def cap(name, fn):
        with k.capture() as S[name]: fn()
    def pre_bar3(s):
        if s == VF: k.wait(H['v2'])
        if s == PF: f3b.flush(); p4.finish()
        if s == 8: S['xw'].flush(); k.wait(H['xw'])
        if s == YB: S['y'].flush(); k.wait(H['yw'])
    def post_bar3(s):
        if O['touch'] and s == 4: code_touch(k, I, 1, 16384, cd)
        if s == VF: wave0_store(k, I, f"buffer_store_dword {one}, {vfc}, {sf}, {FV} offen {SC}")
        if s == PV: p4.issue()
        if s == PF:
            L2 = v2_issue2(k, I, sv2)
            H['g'] = g_issue2(k, I2, sg)
            def f(): H['yw'] = y_stage2(k, I, L2, LX)
            cap('y', f)
        if s == 8:
            def f():
                k(f"v_xor_b32 {ad}, 0x1000, {ad}")
                for mm in range(2):
                    for ib in range(2): k(f"ds_read_b128 {aa0(mm,ib)}, {ad} offset:{1024*(2*mm+ib)}")
                k(f"v_xor_b32 {ad}, 0x1000, {ad}")
            f()
            def f2():
                for mm in range(2):
                    for ib in range(2):
                        for x in (0, 2): pk(k, '+', acc[0].q(4*mm+ib)[x:x+2], acc[0].q(4*mm+ib)[x:x+2], aa0(mm, ib)[x:x+2])
            cap('add', f2)
        if s == YB:
            H['Y'] = k.v.allocq(32)
            def f():
                for r in y_reads(FA, H['Y']): k(r)
            cap('yr', f)
            def f2():
                for m in ph3_list(G1, H['Y'], aa0): k(m)
            cap('m', f2)
            def f3():
                fin3(k, FA, H['g'], acc[0], aa0, so, 0, O['oaf'].replace('_', ''), True)
                for j in range(1, 32, 2): k(f"v_xor_b32 {G1[j]}, 0x80008000, {G1[j]}")
            cap('fin', f3)
    def fill3(s, u, q):
        if s == VS and f3a.left(): f3a.emit(2)
        if s == max(VS, 0) and u == 1 and q == 15: f3a.flush()
        if s > VS and q >= 8: f3b.emit(2)
        if q == 15 and u == 0 and 3 <= s < 3 + nlate: CL.drain()
        if q == 15 and u == 1 and 1 <= s < 1 + nlate: CL.issue((LX, LT2)[s & 1])
        if s == 8 and u == 0:
            if q == 0:
                def f():
                    for mm in range(2):
                        for ib in range(2): H['xw'] = k(f"ds_write_b128 {ad}, {aa0(mm,ib)} offset:{1024*(2*mm+ib)}")
                cap('xw', f)
            if q >= 8 and q & 1: S['xw'].emit(1)
        if s == 9 and u == 0 and q >= 8: S['add'].emit(O.get('yr') or 1)
        if s == 9 and u == 0 and q == 15: S['add'].flush()
        if 'y' in S and (s, u) >= (YS, 1) and q >= 8: S['y'].emit(O.get('yr') or -(-7 // O['yl']))
        if 'yr' in S:
            if S['yr'].left(): S['yr'].emit(3)
            elif S['m'].left():
                if (s, u) >= (YB + 1, 0) and q >= 8: S['m'].emit(2)
            elif (s, u) >= (max(YB + 1, O['fs']), 1) and (q >= 8 or s >= 13): S['fin'].emit(O['fr'])
        if u == 1 and q == 0 and (s % 4 == 3 or PROFSEL): pf(f"b{s}")
    g3.main(dq, fill3, pre_bar3, post_bar3)
    assert CL.nd == 16
    print("fin(a) left after main:", S['fin'].left())
    for n in ('yr', 'm', 'fin'): S[n].flush()
    pf("main3")
    ml = ph3_list(G1, H['Y'], aa0)
    wr = [f"ds_write_b128 {ad}, {acc[1].q(4*mm+2+ib)} offset:{1024*(2*mm+ib)}" for ib in range(2) for mm in range(2)]
    for j in range(8):
        k(ml.pop(0))
        if j & 1 == 0: k(wr.pop(0))
    k(f"v_xor_b32 {ad}, 0x1000, {ad}\ns_waitcnt lgkmcnt(0)\ns_barrier")
    pf("xbar")
    rd = [f"ds_read_b128 {acc[1].q(4*mm+2+ib)}, {ad} offset:{1024*(2*mm+ib)}" for ib in range(2) for mm in range(2)]
    while ml:
        k(ml.pop(0))
        if rd: k(rd.pop(0))
    fin3(k, FA, H['g'], acc[1], aa0, so, 1, O['obf'].replace('_', ''), False)
    pf("epi")
    k.v.free(g3.fr)
    pf.done()
    end(k)
    return k, L['LDS']

def tail32(k, I, O, P, H, L):
    g3, CL, pf, sf, sg, sv2, V2, vpc, vfc, one, FV, cd, LX, LT2, nlate = [L[n] for n in 'g3 CL pf sf sg sv2 V2 vpc vfc one FV cd LX LT2 nlate'.split()]
    dq = [(s, i) for s in range(16) for i in range(8)]
    acts = [lambda: g3.dma(*dq.pop(0))] * (8 * O['pre3'])
    g3.catch = O['pre3'] == 2
    with k.capture() as cg: G1 = gen_G32(k, I)
    if O['gseam']:
        for _ in range(2): acts.pop(0)()
        cg.weave(acts, O['pg'])
    while acts: acts.pop(0)()
    so = srd(k, P['out'], SZ['out'])
    with k.capture() as f3a:
        if O['v2s'] >= 0: H['v2'] = v2_store(k, *V2, sv2)
    with k.capture() as f3b:
        FA = final_addr32(k, I, LT2, LX)
    pf("pref")
    p4 = Poll(k, sf, vpc, 1, 1, FV, sleep=16)
    VS = O['v2s']; PV = O['pv']; VF = O.get('vf', VS + 3); PF = PV + O['pd']; YS = PF + O['yd']; YB = YS + O['yl']
    acc = g3.acc; ad = FA['ad']; aa = acc[0].q(1, 16); FR = O['rate']
    S = {}; XS = O['xs']; assert 8 <= XS and XS + 1 <= YB
    def addbf(y, p):
        for j in range(8):
            k(f"""v_lshlrev_b32 {p[8+j]}, 16, {p[j]}
            v_and_b32 {p[j]}, 0xffff0000, {p[j]}
            v_add_f32 {y[2*j]}, {y[2*j]}, {p[8+j]}
            v_add_f32 {y[2*j+1]}, {y[2*j+1]}, {p[j]}""")
    def cap(name, fn):
        with k.capture() as S[name]: fn()
    def pre_bar3(s):
        if s == VF: k.wait(H['v2'])
        if s == PF: f3b.flush(); cg.flush(); p4.finish()
        if s == XS: S['xw'].flush(); k.wait(H['xw'])
        if s == YB: S['vl'].flush(); S['y'].flush(); k.wait(H['yw'])
    def post_bar3(s):
        if O['touch'] and s == 4: code_touch(k, I, 1, 16384, cd)
        if s == VF: wave0_store(k, I, f"buffer_store_dword {one}, {vfc}, {sf}, {FV} offen {SC}")
        if s == PV: p4.issue()
        if s == PF:
            def f0():
                H['L2'] = v2_issue2(k, I, sv2)
            cap('vl', f0)
            S['vl'].emit(6)
            def f(): H['yw'] = y_stage2(k, I, H['L2'], LX, O['scal'])
            cap('y', f)
        if s == XS:
            k(f"v_xor_b32 {ad}, 0x1000, {ad}")
            for j in range(2): k(f"ds_read_b128 {aa.q(j)}, {ad} offset:{1024*j}")
            k(f"v_xor_b32 {ad}, 0x1000, {ad}")
            def f2(): addbf(acc[0].q(0, 16), aa)
            cap('add', f2)
        if s == YB:
            H['Y'] = k.v.allocq(32); H['g'] = k.v.allocq(16)
            def f():
                for r in y_reads32(FA, H['Y']): k(r)
            cap('yr', f)
            def f2():
                for m in ph3_list32(G1, H['Y'], aa): k(m)
            cap('m', f2)
            def f3():
                k.wait(H['gl']); g_read32(k, FA, H['g'], 0)
                for j in range(1, 32, 2): k(f"v_xor_b32 {G1[j]}, 0x80008000, {G1[j]}")
                fin32(k, FA, H['g'], acc[0].q(0, 16), None, aa, so, 0, O['oaf'].replace('_', ''), O['scal'])
                g_read32(k, FA, H['g'], 1)
            cap('fin', f3)
    def fill3(s, u, q):
        if s == VS and f3a.left(): f3a.emit(4)
        if s == max(VS, 0) and u == 1 and q == 7: f3a.flush()
        if s > VS:
            if f3b.left(): f3b.emit(FR)
            else: cg.emit(FR)
        if q == 7 and u == 0 and 3 <= s < 3 + nlate: CL.drain()
        if q == 7 and u == 1 and 1 <= s < 1 + nlate: CL.issue((LX, LT2)[s & 1])
        if s == 7 and u == 0 and q == 7: H['gl'] = g_dma32(k, I, FA, sg, LT2 + 2048)
        if s == XS and u == 0:
            if q == 0:
                def f():
                    for j in range(8): k(f"v_cvt_pk_bf16_f32 {aa[j]}, {aa[2*j]}, {aa[2*j+1]}")
                    for j in range(2): H['xw'] = k(f"ds_write_b128 {ad}, {aa.q(j)} offset:{1024*j}")
                cap('xw', f)
            if q >= 2: S['xw'].emit(2)
        if s == XS + 1: S['add'].emit(2)
        if s == XS + 1 and u == 1 and q == 7: S['add'].flush()
        if 'vl' in S and q == 7: S['vl'].emit(O['vr'])
        if 'y' in S and (s, u) >= (YS, 1):
            assert S['vl'].left() == 0
            S['y'].emit(O.get('yr') or -(-(10 if O['scal'] else 7) // O['yl']))
        if 'yr' in S:
            if S['yr'].left(): S['yr'].emit(O['yrr'])
            elif S['m'].left():
                if (s, u) >= (YB + 1, 1): S['m'].emit(1)
            elif (s, u) >= (max(YB + 2, O['fs']), 0): S['fin'].emit(O['fr'])
        if u == 1 and q == 0 and (s % 4 == 3 or PROFSEL): pf(f"b{s}")
    g3.main(dq, fill3, pre_bar3, post_bar3)
    assert CL.nd == 16
    print("fin(a) left after main:", S['fin'].left())
    for n in ('yr', 'm', 'fin'): S[n].flush()
    pf("main3")
    ml = ph3_list32(G1, H['Y'], aa); snt = acc[1].q(1, 16)
    y = acc[1].q(0, 16)
    if O['xb']:
        for j in range(2):
            k(ml.pop(0))
            for x in range(4 * j, 4 * j + 4): k(f"v_cvt_pk_bf16_f32 {snt[x]}, {snt[2*x]}, {snt[2*x+1]}")
            k(f"ds_write_b128 {ad}, {snt.q(j)} offset:{1024*j}")
        k(ml.pop(0)); k(ml.pop(0))
        k(f"v_xor_b32 {ad}, 0x1000, {ad}\ns_waitcnt lgkmcnt(0)\ns_barrier")
        pf("xbar")
        k(ml.pop(0))
        for j in range(2): k(f"ds_read_b128 {snt.q(j)}, {ad} offset:{1024*j}")
        while ml: k(ml.pop(0))
        addbf(y, snt)
    else:
        k(f"v_subrev_u32 {ad}, {LT2}, {ad}")
        for j in range(4): k(ml.pop(0)); k(f"ds_write_b128 {ad}, {snt.q(j)} offset:{1024*j}")
        k(ml.pop(0))
        k(f"v_xor_b32 {ad}, 0x1000, {ad}\ns_waitcnt lgkmcnt(0)\ns_barrier")
        pf("xbar")
        k(ml.pop(0))
        for j in range(4): k(f"ds_read_b128 {snt.q(j)}, {ad} offset:{1024*j}")
        while ml: k(ml.pop(0))
        for x in range(0, 16, 2): k(f"v_pk_add_f32 {y[x:x+2]}, {y[x:x+2]}, {snt[x:x+2]}")
    fin32(k, FA, H['g'], y, None, aa, so, 1, O['obf'].replace('_', ''))
    pf("epi")
    k.v.free(g3.fr)
    pf.done()
    end(k)
    return k, L['LDS']

def tailS(k, I, O, P, H, L):
    g3, CL, pf, sf, sg, sv2, V2, vpc, vfc, one, FV, FP, cd, LX, LT2, nlate = [L[n] for n in 'g3 CL pf sf sg sv2 V2 vpc vfc one FV FP cd LX LT2 nlate'.split()]
    assert O['v2s'] < 0
    hq = [(s, i) for s in range(16) for i in range(4)]
    cslots = [L['B2'], L['B3_'], LT2]
    def cnext():
        if CL.n & 3 == 0: H['cs'] = cslots.pop(0)
        CL.issue1(H['cs'])
    acts = [lambda: g3.dma(*hq.pop(0))] * (4 * O['pre3']) + [cnext] * (4 * min(nlate, O['cpre']))
    with k.capture() as cg:
        G1 = H.get('G1') or gen_GS(k, I)
    for _ in range(2): acts.pop(0)()
    cg.weave(acts, O['pg'])
    while acts: acts.pop(0)()
    if O['v2s'] == -2: H['v2'] = v2_store(k, *V2, sv2)
    with k.capture() as f3b:
        so = srd(k, P['out'], SZ['out']); spx = srd(k, P['ws'], 8 << 20, WS_PX)
        A = addrS(k, I, LX)
        spec = k.s.alloc(); vfl = k.v.alloc()
        k(f"s_lshr_b32 {spec}, {I['tb']}, 3\ns_or_b32 {spec}, {spec}, {I['w']}\ns_and_b32 {spec}, {spec}, 1\nv_lshlrev_b32 {vfl}, 2, {I['n']}")
    pf("pref")
    p4 = Poll(k, sf, vpc, 1, 1, FV, sleep=16)
    PV = O['pv']; VF = O['vf']; PF = PV + O['pd']; YS = PF + O['yd']; YB = YS + O['yl']; D = O['D']
    MS = max(YB + 1, 8); FL = O['fl']; PL = O['pl']
    acc = g3.acc; S = {}; BF = O['bf']
    def cap(name, fn):
        with k.capture() as S[name]: fn()
    def gload():
        for ib in range(4): k(f"buffer_load_dwordx4 {H['g'].q(ib)}, {A['vg']}, {sg}, {A['sg']} offen offset:{256*ib} {SC}")
    def mix(y, aa, b):
        g = H['g'].q(b & 3)
        for x in (0, 2): k(f"v_pk_add_f32 {aa.q(b)[x:x+2]}, {aa.q(b)[x:x+2]}, {y.q(b)[x:x+2]} neg_lo:[0,1] neg_hi:[0,1]")
        for x in (0, 2): k(f"v_pk_fma_f32 {y.q(b)[x:x+2]}, {g[x:x+2]}, {aa.q(b)[x:x+2]}, {y.q(b)[x:x+2]}")
    def vm(s, u, x):
        if x == 0:
            late_c = CL.n < 64 and cslots
            H['mode'] = 'c' if (late_c and u == 1) else ('h' if hq and hq[0][0] <= s + D - (1 - u) * 0 and hq[0][0] < s + u + g3.NR else None)
        if H['mode'] == 'c': cnext()
        if H['mode'] == 'h': g3.dma(*hq.pop(0))
    def pre_bar3(s):
        if s == VF: k.wait(H['v2'])
        if s == PF: f3b.flush(); p4.finish()
        if s == YB: S['y'].flush(); k.wait(H['yw'])
    def post_bar3(s):
        if O['touch'] and s == 4: code_touch(k, I, 1, 16384, cd)
        if s == VF: wave0_store(k, I, f"buffer_store_dword {one}, {vfc}, {sf}, {FV} offen {SC}")
        if s == PV: p4.issue()
        if s == PF:
            L2 = k.v.allocq(16)
            for j in range(4): k(f"buffer_load_dwordx4 {L2.q(j)}, {A['l16']}, {sv2}, {A['sv']} offen offset:{1024*j} {SC}")
            def f(): H['yw'] = y_stage2(k, I, L2, LX, False, spec)
            cap('y', f)
        if s == YB:
            H['Y'] = k.v.allocq(16); H['aa'] = aa = k.v.allocq(32); H['g'] = k.v.allocq(16); gload()
            for r in y_readsS(A, H['Y']): k(r)
            def f2():
                for m in ph3_listS(G1, H['Y'], aa): k(m)
            cap('m', f2)
            def f3():
                for j in range(1, 32, 2): k(f"v_xor_b32 {G1[j]}, 0x80008000, {G1[j]}")
                for b in range(8):
                    mix(acc[0], aa, b)
                    if BF:
                        for x in range(2): k(f"v_cvt_pk_bf16_f32 {acc[0][2*b+x]}, {acc[0][4*b+2*x]}, {acc[0][4*b+2*x+1]}")
                k(f"s_xor_b32 {A['sg']}, {A['sg']}, 1024")
            cap('fin', f3)
            def st1(b):
                if b == 4: k(f"s_add_u32 {A['px']}, {A['px']}, 4096")
                H['ps'] = k(f"buffer_store_dwordx4 {acc[0].q(b)}, {A['l16']}, {spx}, {A['px']} offen offset:{1024*(b&3)} {SC}")
            H['sq'] = [lambda b=b: st1(b) for b in range(4 if BF else 8)]
            def f4():
                for m in ph3_listS(G1, H['Y'], aa): k(m)
            cap('m2', f4)
        if s == FL:
            assert not H['sq'] and not S['fin'].left()
            k.wait(H['ps'])
            k(f"s_xor_b32 {A['px']}, {A['px']}, {8 << 15}")
            k(f"s_mov_b64 exec, 0xffff\nbuffer_store_dword {one}, {vfl}, {sf}, {FP} offen {SC}\ns_mov_b64 exec, -1\ns_xor_b32 {FP}, {FP}, {8 << 9}")
            H['p5'] = Poll(k, sf, vfl, 1, 1, FP, sleep=3, mask=1)
            gload()
    def pload():
        H['p5'].finish()
        def ld1(b):
            if b == 0 and not BF: k(f"s_sub_u32 {A['px']}, {A['px']}, 4096")
            k(f"buffer_load_dwordx4 {acc[0].q(b ^ (2 if BF else 4))}, {A['l16']}, {spx}, {A['px']} offen offset:{1024*(b&3)} {SC}")
        H['lq'] = [lambda b=b: ld1(b) for b in ((2, 0, 3, 1) if BF else (4, 5, 6, 7, 0, 1, 2, 3))]
    def fill3(s, u, q):
        if q >= 8: f3b.emit(2)
        if q == 15 and u == 0 and CL.nd < 16 and CL.nd < CL.n // 4 and (CL.nd < CL.n // 4 - O['clag'] or CL.n == 64 and s >= O.get('cend', 0) or CL.nd <= 2 * s + 3):
            cslots.append(CL.drain())
        if 'y' in S and (s, u) >= (YS, 1) and q >= 8: S['y'].emit(1000)
        if 'm' in S:
            if S['m'].left():
                if (s, u) >= (YB + 1, 0) and q >= 8: S['m'].emit(2)
            elif S['fin'].left():
                if (s, u) >= (MS, 1) and q >= 8: S['fin'].emit(O['fr'])
            elif (s, u) >= (O['m2s'], 0) and q >= 8: S['m2'].emit(2)
        if H.get('sq') and not S['fin'].left() and q % O['sr'] == O['sr'] - 1: H['sq'].pop(0)()
        if H.get('lq') and q % O['lr'] == O['lr'] - 1: H['lq'].pop(0)()
        if 2 * s + u == PL and q == 8: H['p5'].issue()
        if 2 * s + u == PL + O['pld'] and q == 8: pload()
        if u == 1 and q == 0 and (s % 4 == 3 or PROFSEL): pf(f"b{s}")
    g3.main(vm, fill3, pre_bar3, post_bar3)
    assert CL.nd == 16 and not hq
    for n in ('m', 'fin', 'm2'): S[n].flush()
    pf("main3")
    if PL + O['pld'] > 31: pload()
    while H['lq']: H['lq'].pop(0)()
    y = acc[1]; aa = H['aa']; va, so_ = A['va'], A['so']
    for ib in range(4):
        for mm in range(2):
            b = 4 * mm + ib
            mix(y, aa, b)
            for x in (0, 2):
                p_ = acc[0].q(b)[x:x+2]
                if BF:
                    p_ = acc[0].q(4 + (b & 3))[x:x+2]; src = acc[0][2 * b + x // 2]
                    k(f"v_lshlrev_b32 {p_[0]}, 16, {src}\nv_and_b32 {p_[1]}, 0xffff0000, {src}")
                k(f"v_pk_add_f32 {y.q(b)[x:x+2]}, {y.q(b)[x:x+2]}, {p_}")
        for r in range(4):
            for mm in range(2): k(f"buffer_store_dword {y.q(4*mm+ib)[r]}, {va[mm]}, {so}, {so_} offen {O['obf'].replace('_', '')}")
            if (ib, r) != (3, 3): k(f"s_add_u32 {so_}, {so_}, {(1<<16) if r < 3 else (1<<20) - 3*(1<<16)}")
    pf("epi")
    k.v.free(g3.fr)
    pf.done()
    end(k)
    return k, L['LDS']

def tailT(k, I, O, P, H, L):
    g3, CL, pf, sf, sg, sv2, V2, vpc, vfc, one, FV, cd, LX, LT2, nlate = [L[n] for n in 'g3 CL pf sf sg sv2 V2 vpc vfc one FV cd LX LT2 nlate'.split()]
    g3.split = bool(O['eo'])
    hq = [(s, i) for s in range(16) for i in range(4)]
    cslots = [L['B2'], L['B3_'], LT2]
    def cnext():
        if CL.n & 3 == 0: H['cs'] = cslots.pop(0)
        CL.issue1(H['cs'])
    acts = [lambda: g3.dma(*hq.pop(0))] * (4 * O['pre3']) + [cnext] * (4 * min(nlate, O['cpre']))
    with k.capture() as cg:
        G1 = H.get('G1') or gen_GS(k, I)
    for _ in range(2): acts.pop(0)()
    cg.weave(acts, O['pg'])
    while acts: acts.pop(0)()
    if O['v2s'] == -2: H['v2'] = v2_store(k, *V2, sv2)
    with k.capture() as f3b:
        so = srd(k, P['out'], SZ['out']); spx = srd(k, P['ws'], 256 * V1_STR, WS_V1)
        A = addrS(k, I, LX)
        spec = k.s.alloc()
        k(f"s_lshr_b32 {spec}, {I['tb']}, 3\ns_or_b32 {spec}, {spec}, {I['w']}\ns_and_b32 {spec}, {spec}, 1\ns_lshr_b32 {A['px']}, {A['px']}, 1")
        psel = k.s.alloc(); k(f"s_mov_b32 {psel}, 0x07060302")
    with k.capture() as f3a:
        if O['v2s'] >= 0: H['v2'] = v2_store(k, *V2, sv2)
    pf("pref")
    p4 = Poll(k, sf, vpc, 1, 1, FV, sleep=16)
    PV = O['pv']; VF = O['vf']; PF = PV + O['pd']; YS = PF + O['yd']; YB = YS + O['yl']; D = O['D']
    MS = max(YB + 1, 8); PL = O['pl']
    if O['bars']:
        g3.bars = [-1] + [int(c, 16) for c in str(O['bars'])[1:]]; assert all(x in g3.bars for x in (VF, PF, YB))
    acc = g3.acc; S = {}; va, so_ = A['va'], A['so']
    PK, UN = acc[0][0:16], acc[0][16:32]
    def cap(name, fn):
        with k.capture() as S[name]: fn()
    def gload():
        for ib in range(4): k(f"buffer_load_dwordx4 {H['g'].q(ib)}, {A['vg']}, {sg}, {A['sg']} offen offset:{256*ib} {SC}")
    def mix(y, aa, b):
        g = H['g'].q(b & 3)
        for x in (0, 2): k(f"v_pk_add_f32 {aa.q(b)[x:x+2]}, {aa.q(b)[x:x+2]}, {y.q(b)[x:x+2]} neg_lo:[0,1] neg_hi:[0,1]")
        for x in (0, 2): k(f"v_pk_fma_f32 {y.q(b)[x:x+2]}, {g[x:x+2]}, {aa.q(b)[x:x+2]}, {y.q(b)[x:x+2]}")
    def ld1(j): return k(f"buffer_load_dwordx4 {PK.q(j ^ 2)}, {A['l16']}, {spx}, {A['px']} offen offset:{1024*j} {SC}")
    def check():
        m = UN[0]
        def chk():
            k(f"v_and_b32 {m}, 1, {PK[0]}")
            for j in range(1, 15, 2): k(f"v_bitop3_b32 {m}, {m}, {PK[j]}, {PK[j+1]} bitop3:0x80")
            k(f"v_and_b32 {m}, {m}, {PK[15]}\nv_cmp_eq_u32 vcc, 0, {m}")
        k.wait(H['ll']); chk()
        with k.skip_if("s_cbranch_vccz"):
            cnt = k.s.alloc(); lp, out = k.lab('px'), k.lab('pxout')
            k(f"s_mov_b32 {cnt}, 0\n{lp}:\ns_sleep 2")
            for j in range(4): ld1(j)
            k("s_waitcnt vmcnt(0)"); chk()
            k(f"s_cbranch_vccz {out}\ns_add_u32 {cnt}, {cnt}, 1\ns_cmp_lt_u32 {cnt}, {1<<20}\ns_cbranch_scc1 {lp}\n{out}:")
            k.s.free(cnt)
    def fin(ib, flags):
        y, aa = acc[1], H['aa']
        for mm in range(2):
            b = 4 * mm + ib
            mix(y, aa, b)
            for x in (0, 2):
                p_ = UN.q(2 * (ib & 1) + mm)[x:x+2]; src = PK[2 * b + x // 2]
                k(f"v_lshlrev_b32 {p_[0]}, 16, {src}\nv_and_b32 {p_[1]}, 0xffff0000, {src}\nv_pk_add_f32 {y.q(b)[x:x+2]}, {y.q(b)[x:x+2]}, {p_}")
        for r in range(4):
            for mm in range(2): k(f"buffer_store_dword {y.q(4*mm+ib)[r]}, {va[mm]}, {so}, {so_} offen {flags}")
            if (ib, r) != (3, 3): k(f"s_add_u32 {so_}, {so_}, {(1<<16) if r < 3 else (1<<20) - 3*(1<<16)}")
    def vm(s, u, x):
        if x == 0:
            late_c = CL.n < 64 and cslots
            H['mode'] = 'c' if (late_c and u == 1) else ('h' if hq and hq[0][0] <= s + D and hq[0][0] <= g3.freed + g3.NR else None)
        if H['mode'] == 'c': cnext()
        if H['mode'] == 'h': g3.dma(*hq.pop(0))
    def pre_bar3(s):
        if s == VF and not O.get('nofv'): f3a.flush(); k.wait(H['v2'])
        if s == PF: f3b.flush(); f3a.flush()
        if s == PF and not O.get('nofv'): p4.finish()
        if s == YB: S['y'].flush(); k.wait(H['yw'])
    def post_bar3(s):
        if O['touch'] and s == 4: code_touch(k, I, 1, 16384, cd)
        if s == VF and not O.get('nofv'): wave0_store(k, I, f"buffer_store_dword {one}, {vfc}, {sf}, {FV} offen {SC}")
        if s == PV and not O.get('nofv'): p4.issue()
        if s == PF:
            L2 = k.v.allocq(16)
            for j in range(4): k(f"buffer_load_dwordx4 {L2.q(j)}, {A['l16']}, {sv2}, {A['sv']} offen offset:{1024*j} {SC}")
            def f(): H['yw'] = y_stage2(k, I, L2, LX, False, spec)
            cap('y', f)
        if s == YB:
            H['Y'] = k.v.allocq(16); H['aa'] = aa = k.v.allocq(32); H['g'] = k.v.allocq(16); gload()
            for r in y_readsS(A, H['Y']): k(r)
            def f2():
                for m in ph3_listS(G1, H['Y'], aa): k(m)
            cap('m', f2)
            def f3():
                for j in range(1, 32, 2): k(f"v_xor_b32 {G1[j]}, 0x80008000, {G1[j]}")
                for b in range(8):
                    mix(acc[0], aa, b)
                    for x in range(2): k(f"v_perm_b32 {PK[2*b+x]}, {acc[0][4*b+2*x+1]}, {acc[0][4*b+2*x]}, {psel}")
                    for x in range(2): k(f"v_or_b32 {PK[2*b+x]}, 0x10001, {PK[2*b+x]}")
                    if b & 1: k(f"buffer_store_dwordx4 {PK.q(b>>1)}, {A['l16']}, {spx}, {A['px']} offen offset:{1024*(b>>1)} {SC}")
                k(f"s_xor_b32 {A['sg']}, {A['sg']}, 1024\ns_xor_b32 {A['px']}, {A['px']}, {8 << 14}")
            cap('fin', f3)
            cap('m2', f2)
    def fill3(s, u, q):
        hs = 2 * s + u
        if hs >= O['v2s'] and q % O['v2r'] == 1: f3a.emit(2)
        if q >= 8: f3b.emit(2)
        if q == 15 and u == 0 and CL.nd < 16 and CL.nd < CL.n // 4 and (CL.nd < CL.n // 4 - O['clag'] or CL.n == 64 or CL.nd <= 2 * s + 3):
            cslots.append(CL.drain())
        if 'y' in S and (s, u) >= (YS, 1) and q >= 8: S['y'].emit(1000)
        if 'm' in S:
            if S['m'].left():
                if (s, u) >= (YB + 1, 0) and q >= 8: S['m'].emit(2)
            elif S['fin'].left():
                if (s, u) >= (MS, 1) and q >= 8: S['fin'].emit(O['fr'])
            elif (s, u) >= (O['m2s'], 0) and q >= 8: S['m2'].emit(2)
        if hs == PL - 1 and q == 15: assert not S['fin'].left(); gload()
        if hs == PL and q >= 9 and q & 1: H['ll'] = ld1((q - 9) // 2)
        if hs == PL + O['pld'] and q == 8: check()
        if O['eo'] and hs == O['es'] and q == 8:
            assert hs >= 24 and hs >= PL + O['pld'] and not S['m2'].left()
            cap('eo', lambda: (fin(0, 'sc1'), fin(1, 'sc1')))
        if 'eo' in S:
            g_ = S['eo'].groups
            if g_ and not any(i.cls == 'vm' for i in g_[0]):
                while g_ and not any(i.cls == 'vm' for i in g_[0]): S['eo'].emit(1)
            elif q % O['er'] == 0: S['eo'].emit(1)
        if u == 1 and q == 0 and (s % 4 == 3 or PROFSEL): pf(f"b{s}")
    g3.main(vm, fill3, pre_bar3, post_bar3)
    assert CL.nd == 16 and not hq
    for n in S: S[n].flush()
    pf("main3")
    for ib in range(2 if O['eo'] else 0, 4): fin(ib, O['obf'].replace('_', ''))
    pf("epi")
    k.v.free(g3.fr)
    pf.done()
    end(k)
    return k, L['LDS']

def tailU(k, I, O, P, H, L):
    g3, CL, pf, sf, sg, sv2, V2, vpc, vfc, one, FV, cd, LX, LT2, nlate = [L[n] for n in 'g3 CL pf sf sg sv2 V2 vpc vfc one FV cd LX LT2 nlate'.split()]
    hq = [(s, i) for s in range(16) for i in range(4)]
    cslots = [L['B2'], L['B3_']]; VS = O['v2s']
    def cnext():
        if CL.n & 3 == 0: H['cs'] = cslots.pop(0)
        CL.issue1(H['cs'])
    acts = [lambda: g3.dma(*hq.pop(0))] * (4 * O['pre3']) + [cnext] * (4 * min(nlate, O['cpre']))
    with k.capture() as f3b:
        so = srd(k, P['out'], SZ['out']); spx = srd(k, P['ws'], 256 * V1_STR, WS_V1)
        A = addrU(k, I, LX, LT2)
        spec = k.s.alloc(); psel = k.s.alloc()
        k(f"s_lshr_b32 {spec}, {I['tb']}, 3\ns_or_b32 {spec}, {spec}, {I['w']}\ns_and_b32 {spec}, {spec}, 1\ns_mov_b32 {psel}, 0x07060302")
        G1 = gen_GU(k, I)
    for _ in range(2): acts.pop(0)()
    while acts: f3b.run(O['pg']); acts.pop(0)()
    f3b.run(O['gx'])
    with k.capture() as f3a:
        if VS >= 0: H['v2'] = v2_store(k, *V2, sv2)
    pf("pref")
    p4 = Poll(k, sf, vpc, 1, 1, FV, sleep=16)
    PV = O['pv']; VF = O['vf']; PF = PV + O['pd']; YS = PF + O['yd']; YB = YS + O['yl']; D = O['D']
    MS = max(YB + 1, 8); PL = O['pl']; R_ = O['rate']
    acc = g3.acc; S = {}; va, so_ = A['va'], A['so']
    PK, UN = acc[0].q(0, 16), acc[0].q(1, 16)
    def cap(name, fn):
        with k.capture() as S[name]: fn()
    def gread(p, rb):
        for j in range(4): k(f"ds_read_b128 {H['g'].q(j)}, {A['vg']} offset:{256*p + 128*rb + 32*j}")
    def mix(y, aa, r, scal):
        g = H['g']
        if scal:
            for x in (r, r + 1): k(f"v_sub_f32 {aa[x]}, {aa[x]}, {y[x]}")
            for x in (r, r + 1): k(f"v_fmac_f32 {y[x]}, {g[x]}, {aa[x]}")
        else: k(f"v_pk_add_f32 {aa[r:r+2]}, {aa[r:r+2]}, {y[r:r+2]} neg_lo:[0,1] neg_hi:[0,1]\nv_pk_fma_f32 {y[r:r+2]}, {g[r:r+2]}, {aa[r:r+2]}, {y[r:r+2]}")
    def ld1(j): return k(f"buffer_load_dwordx4 {PK.q(j)}, {A['l16']}, {spx}, {A['px']} offen offset:{1024*j} {SC}")
    def check():
        m = UN[0]
        def chk():
            k(f"v_and_b32 {m}, 1, {PK[0]}")
            for j in range(1, 15, 2): k(f"v_bitop3_b32 {m}, {m}, {PK[j]}, {PK[j+1]} bitop3:0x80")
            k(f"v_and_b32 {m}, {m}, {PK[15]}\nv_cmp_eq_u32 vcc, 0, {m}")
        k.wait(H['ll']); chk()
        with k.skip_if("s_cbranch_vccz"):
            cnt = k.s.alloc(); lp, out = k.lab('px'), k.lab('pxout')
            k(f"s_mov_b32 {cnt}, 0\n{lp}:\ns_sleep 2")
            for j in range(4): ld1(j)
            k("s_waitcnt vmcnt(0)"); chk()
            k(f"s_cbranch_vccz {out}\ns_add_u32 {cnt}, {cnt}, 1\ns_cmp_lt_u32 {cnt}, {1<<20}\ns_cbranch_scc1 {lp}\n{out}:")
            k.s.free(cnt)
    def unpack(rb):
        for r in range(0, 16, 2):
            src = PK[8 * rb + r // 2]
            k(f"v_lshlrev_b32 {UN[r]}, 16, {src}\nv_and_b32 {UN[r+1]}, 0xffff0000, {src}")
    def fin(rb, flags, scal):
        y, aa = acc[1].q(rb, 16), H['aa'].q(rb, 16)
        for r in range(0, 16, 2):
            mix(y, aa, r, scal)
            if scal:
                for x in (r, r + 1): k(f"v_add_f32 {y[x]}, {y[x]}, {UN[x]}")
            else: k(f"v_pk_add_f32 {y[r:r+2]}, {y[r:r+2]}, {UN[r:r+2]}")
            for x in (r, r + 1):
                k(f"buffer_store_dword {y[x]}, {va}, {so}, {so_} offen {flags}")
                if (rb, x) != (1, 15): k(f"s_add_u32 {so_}, {so_}, {(1 if x & 3 < 3 else 5) << 16}")
    def vm(s, u, x):
        if x == 0:
            late_c = CL.n < 64 and cslots
            H['mode'] = 'c' if (late_c and u == 1) else ('h' if hq and hq[0][0] <= s + D and hq[0][0] < s + u + g3.NR else None)
        if H['mode'] == 'c': cnext()
        if H['mode'] == 'h': g3.dma(*hq.pop(0))
    def pre_bar3(s):
        if s == VF: f3a.flush(); k.wait(H['v2'])
        if s == PF: f3b.flush(); p4.finish()
        if s == YB: S['y'].flush(); k.wait(H['yw'])
    def post_bar3(s):
        if O['touch'] and s == 4: code_touch(k, I, 1, 16384, cd)
        if s == VF: wave0_store(k, I, f"buffer_store_dword {one}, {vfc}, {sf}, {FV} offen {SC}")
        if s == PV: p4.issue()
        if s == PF:
            L2 = k.v.allocq(16)
            for j in range(4): k(f"buffer_load_dwordx4 {L2.q(j)}, {A['l16']}, {sv2}, {A['sv']} offen offset:{1024*j} {SC}")
            k(f"""s_lshl_b32 m0, {I['w']}, 12
            s_add_u32 m0, m0, {LT2}
            buffer_load_dword {A['gg']}, {sg}, {A['sg']} offen {SC} lds
            s_xor_b32 {A['sg']}, {A['sg']}, 1024
            s_add_u32 m0, m0, 256""")
            H['gl'] = k(f"buffer_load_dword {A['gg']}, {sg}, {A['sg']} offen {SC} lds")
            k.v.free(A['gg'])
            def f(): H['yw'] = y_stage2(k, I, L2, LX, O['scal'], spec)
            cap('y', f)
        if s == YB:
            H['Y'] = Y = k.v.allocq(16); H['aa'] = aa = k.v.allocq(32, 16); H['g'] = k.v.allocq(16)
            for kap in range(4):
                for h in range(2): k(f"ds_read_b64_tr_b16 {Y[4*kap+2*h:4*kap+2*h+2]}, {A['ay']} offset:{512*kap + 128*h}")
            def f2():
                for kap in range(4):
                    for rb in range(2): k(f"v_mfma_f32_32x32x16_bf16 {aa.q(rb,16)}, {G1.q(4*rb+kap)}, {Y.q(kap)}, {aa.q(rb,16) if kap else 0}")
            cap('m', f2)
            def f3():
                k.wait(H['gl'])
                for rb in range(2):
                    gread(0, rb)
                    for j in range(16 * rb + 1, 16 * rb + 16, 2): k(f"v_xor_b32 {G1[j]}, 0x80008000, {G1[j]}")
                    y = acc[0].q(rb, 16)
                    for r in range(0, 16, 2):
                        mix(y, aa.q(rb, 16), r, O['scal']); o = PK[8 * rb + r // 2]
                        k(f"v_perm_b32 {o}, {y[r+1]}, {y[r]}, {psel}\nv_or_b32 {o}, 0x10001, {o}")
                        if r & 7 == 6: k(f"buffer_store_dwordx4 {PK.q(2*rb + (r>>3))}, {A['l16']}, {spx}, {A['px']} offen offset:{1024*(2*rb + (r>>3))} {SC}")
                k(f"s_xor_b32 {A['px']}, {A['px']}, {8 << 14}")
            cap('fin', f3)
            cap('m2', f2)
    def fill3(s, u, q):
        hs = 2 * s + u
        if s >= VS and f3a.left():
            if q % O['v2r'] == 0: f3a.emit(2)
        f3b.emit(R_)
        if q == 7 and u == 0 and CL.nd < 16 and CL.nd < CL.n // 4 and (CL.nd < CL.n // 4 - O['clag'] or CL.n == 64 or CL.nd <= 2 * s + 3):
            cslots.append(CL.drain())
        if 'y' in S and (s, u) >= (YS, 1): S['y'].emit(O['yr'])
        if 'm' in S:
            if S['m'].left():
                if (s, u) >= (YB + 1, 0): S['m'].emit(1)
            elif S['fin'].left():
                if (s, u) >= (MS, 1): S['fin'].emit(O['fr'])
            elif (s, u) >= (O['m2s'], 0): S['m2'].emit(1)
        if hs == PL and q >= 4: assert not S['fin'].left(); H['ll'] = ld1(q - 4)
        if hs == PL + O['pld'] and q == 4: check()
        if hs == O['es'] and q == 5:
            assert hs >= 24 and hs >= PL + O['pld'] and not S['m2'].left()
            cap('eo', lambda: (gread(1, 0), unpack(0), fin(0, 'sc1', O['scal']), gread(1, 1), unpack(1)))
        if 'eo' in S: S['eo'].emit(O['er'])
        if u == 1 and q == 0 and (s % 4 == 3 or PROFSEL): pf(f"b{s}")
    g3.main(vm, fill3, pre_bar3, post_bar3)
    assert CL.nd == 16 and not hq
    print("eo left", S['eo'].left())
    for n in S: S[n].flush()
    pf("main3")
    fin(1, O['obf'].replace('_', ''), False)
    pf("epi")
    k.v.free(g3.fr)
    pf.done()
    end(k)
    return k, L['LDS']

def write(path, opt={}):
    k, lds = build(opt)
    open(path, "w").write(module(header(), [(k.name, 256, 256, lds)], [k]))
    print(path, k.stats)
    if os.environ.get('SEG'): k.segstats()
    if PROF: json.dump([k.profnames], open(path[:-2] + ".json", "w"))

if __name__ == "__main__":
    opt = {}
    for a in sys.argv[2:]:
        n, v = a.split("="); opt[n] = int(v) if v.lstrip('-').isdigit() else v
    write(sys.argv[1] if len(sys.argv) > 1 else "outf.s", opt)
```

```python
from fused import *
WS_FP = 0x1380000
WS_PX = 0x1400000

class CLoadS(CLoad):
    def __init__(self, k, I, scr, sci, CA):
        self.k, self.sc2 = k, (scr, sci)
        self.C = CA; self.va = k.v.alloc(4); self.ra = k.v.alloc(4); self.so = k.s.alloc(); self.mw = k.s.alloc()
        t = k.v.alloc(2); st = k.s.alloc(); l = I['l']
        k(f"""v_and_b32 {t[0]}, 7, {l}
        v_xor_b32 {t[0]}, {t[0]}, {I['g']}
        v_and_b32 {t[1]}, 4, {t[0]}
        v_lshlrev_b32 {self.va[0]}, 4, {t[1]}
        v_and_b32 {t[1]}, 1, {t[0]}
        v_lshl_or_b32 {self.va[0]}, {t[1]}, 5, {self.va[0]}
        v_and_b32 {t[1]}, 2, {t[0]}
        v_lshl_or_b32 {self.va[0]}, {t[1]}, 3, {self.va[0]}
        v_lshrrev_b32 {t[1]}, 3, {l}
        v_lshl_or_b32 {self.va[0]}, {t[1]}, 11, {self.va[0]}
        s_lshl4_add_u32 {st}, {I['w']}, {I['tb']}
        s_lshl_b32 {st}, {st}, 15
        s_lshr_b32 {self.so}, {I['tb']}, 3
        s_lshl_b32 {self.so}, {self.so}, 10
        s_add_u32 {st}, {st}, {self.so}
        v_add_u32 {self.va[0]}, {st}, {self.va[0]}
        v_xor_b32 {self.va[2]}, {1<<18}, {self.va[0]}
        v_xor_b32 {self.va[1]}, 64, {self.va[0]}
        v_xor_b32 {self.va[3]}, 64, {self.va[2]}
        v_add_u32 {self.va[1]}, {16384-1024}, {self.va[1]}
        v_add_u32 {self.va[3]}, {16384-1024}, {self.va[3]}
        s_and_b32 {self.so}, {I['ta']}, 7
        s_lshl_b32 {self.so}, {self.so}, 7
        s_lshl_b32 {self.mw}, {I['w']}, 12
        v_lshrrev_b32 {t[0]}, 1, {I['n']}
        v_xor_b32 {t[0]}, {t[0]}, {I['g']}
        v_lshlrev_b32 {t[0]}, 4, {t[0]}
        v_lshl_or_b32 {t[0]}, {I['n']}, 7, {t[0]}
        v_add_u32 {self.ra[0]}, {self.mw}, {t[0]}
        v_xor_b32 {self.ra[1]}, 64, {self.ra[0]}
        v_add_u32 {self.ra[2]}, 0x10000, {self.ra[0]}
        v_add_u32 {self.ra[3]}, 0x10000, {self.ra[1]}""")
        k.v.free(t); k.s.free(st)
        self.n = 0; self.slot = {}; self.ld = {}; self.rd = {}; self.nd = 0
    def issue1(self, slot):
        k = self.k; j, q = self.n >> 2, self.n & 3
        if q == 0:
            if slot in self.rd: k.wait(self.rd.pop(slot))
            self.slot[j] = slot
        if q & 1 == 0: k(f"s_add_u32 m0, {self.mw}, {self.slot[j] + 1024*q}")
        self.ld[j] = k(f"buffer_load_dwordx4 {self.va[q]}, {self.sc2[j&1]}, {self.so} offen offset:{1024*(q&1)} lds")
        if q == 3 and j & 1: k(f"s_add_u32 {self.so}, {self.so}, 128\ns_and_b32 {self.so}, {self.so}, 0x3ff")
        self.n += 1
        if self.n == 64: k.v.free(self.va); k.s.free(self.so, self.mw)

class B3s:
    NR = 6
    ORD = 0
    def __init__(self, k, I, sh, CL):
        self.k, self.I, self.sh, self.CL = k, I, sh, CL
        self.vh = k.v.alloc(); self.rh = k.v.alloc(4); self.so, self.mH = k.s.alloc(), k.s.alloc()
        t = k.v.alloc(2); st = k.s.alloc(); l = I['l']
        k(f"""s_lshr_b32 {st}, {I['tb']}, 3
        s_mul_i32 {self.mH}, {st}, {(1<<18) - 8192}
        s_lshl_b32 {self.so}, {I['ta']}, 19
        s_add_u32 {self.mH}, {self.mH}, {self.so}
        s_lshr_b32 {st}, {I['w']}, 1
        s_lshl1_add_u32 {st}, {st}, {I['w']}
        s_add_u32 {st}, {st}, 2
        s_lshl_b32 {st}, {st}, 12
        s_add_u32 {self.mH}, {self.mH}, {st}
        v_lshl_add_u32 {self.vh}, {l}, 4, {self.mH}
        s_and_b32 {self.so}, {I['ta']}, 7
        s_lshl_b32 {self.so}, {self.so}, 15
        s_lshl_b32 {self.mH}, {I['w']}, 12
        v_and_b32 {t[0]}, 3, {l}
        v_and_b32 {t[1]}, 2, {I['g']}
        v_xor_b32 {t[1]}, {t[1]}, {t[0]}
        v_lshlrev_b32 {t[0]}, 9, {t[0]}
        v_lshl_or_b32 {t[0]}, {t[1]}, 6, {t[0]}
        v_bfe_u32 {t[1]}, {l}, 2, 2
        v_lshl_or_b32 {t[0]}, {t[1]}, 4, {t[0]}
        v_and_b32 {t[1]}, 1, {I['g']}
        v_lshl_or_b32 {self.rh[0]}, {t[1]}, 3, {t[0]}
        v_xor_b32 {self.rh[1]}, 64, {self.rh[0]}
        v_add_u32 {self.rh[2]}, 0x10000, {self.rh[0]}
        v_add_u32 {self.rh[3]}, 0x10000, {self.rh[1]}""")
        k.v.free(t); k.s.free(st)
        self.last = {}; self.cnt = {}
    split = False
    bars = None
    freed = -1
    def dma(self, s, i):
        k = self.k; I = self.I
        if self.split and s >= 8:
            if s == 8 and i == 0:
                k(f"""s_lshr_b32 m0, {I['w']}, 1
                s_lshl_b32 m0, m0, 15
                s_add_u32 {self.so}, {self.so}, m0
                s_and_b32 {self.so}, {self.so}, 0x3ffff
                s_and_b32 m0, {I['w']}, 1
                s_lshl_b32 m0, m0, 14
                v_and_b32 {self.vh}, {hex(0xffffafff)}, {self.vh}
                v_or_b32 {self.vh}, m0, {self.vh}""")
            if i == 0: k(f"s_add_u32 m0, {self.mH}, {(s % self.NR)*16384}")
            self.last[s] = k(f"buffer_load_dwordx4 {self.vh}, {self.sh}, {self.so} offen offset:{1024*i} {SC} lds")
            self.cnt[s] = self.cnt.get(s, 0) + 1
            if i == 3:
                k(f"s_add_u32 {self.so}, {self.so}, 65536\ns_and_b32 {self.so}, {self.so}, 0x3ffff")
                if s == 11: k(f"v_xor_b32 {self.vh}, 4096, {self.vh}")
            return
        if i == 0: k(f"s_add_u32 m0, {self.mH}, {(s % self.NR)*16384}")
        self.last[s] = k(f"buffer_load_dwordx4 {self.vh}, {self.sh}, {self.so} offen offset:{1024*i} {SC} lds")
        self.cnt[s] = self.cnt.get(s, 0) + 1
        if i == 3:
            k(f"s_add_u32 {self.so}, {self.so}, 32768\ns_and_b32 {self.so}, {self.so}, 0x3ffff")
            if s == 7: k(f"v_xor_b32 {self.vh}, 8192, {self.vh}")
    def alloc(self):
        self.acc = [self.k.v.allocq(32), self.k.v.allocq(32)]; self.fr = self.k.v.allocq(64)
    def main(self, vm, fill, pre_bar, post_bar):
        k = self.k; NS = 16; fr = self.fr
        def reads(s, u):
            f = fr.q(u, 32); out = []
            for kk in range(2):
                for ib in range(4):
                    off = (s % self.NR) * 16384 + u * 8192 + ib * 2048 + kk * 256; hi = 2 if off >= 65536 else 0
                    for h in range(2):
                        o = 16 * kk + 4 * ib + 2 * h
                        out.append(f"ds_read_b64_tr_b16 {f[o:o+2]}, {self.rh[hi+h]} offset:{off & 65535}")
            return out
        pre_bar(-1)
        bars = self.bars or list(range(-1, 15))
        def upto(s):
            nb = [x for x in bars if x > s]
            return nb[0] if nb else 15
        k.wait(self.last[upto(-1)]); k("s_barrier")
        lastrd = None
        for r in reads(0, 0): lastrd = k(r)
        post_bar(-1)
        for s in range(NS):
            acc = self.acc[s >> 3]
            for u in range(2):
                f = fr.q(u, 32); rd = []
                if u == 0: rd = reads(s, 1)
                elif s + 1 < NS:
                    if s in bars:
                        pre_bar(s)
                        assert self.cnt[upto(s)] == 4
                        k.wait(lastrd, self.last[upto(s)]); k("s_barrier"); self.freed = s
                    rd = reads(s + 1, 0)
                k.wait(lastrd)
                assert self.CL.nd > 2 * (s & 7) + u, (s, u, self.CL.nd)
                order = [(kk, ib, mm ^ (ib & 1)) for kk in range(2) for ib in range(4) for mm in range(2)]
                if self.ORD == 1: order = [(kk, ib if mm == 0 else 3 - ib, mm) for kk in range(2) for mm in range(2) for ib in range(4)]
                if self.ORD == 2: order = [(kk, ib, mm) for kk in range(2) for ib in range(4) for mm in range(2)]
                for q, (kk, ib, mm) in enumerate(order):
                    if self.split and s >= 8:
                        d = acc.q(4 * mm + 2 * ((s - 8) >> 2) + (ib & 1)); unit = 4 * (s & 3) + 2 * u + (ib >> 1)
                        zero = s & 3 == 0 and u == 0 and kk == 0 and mm == 1 and ((ib >= 2) if self.ORD == 1 else (ib < 2))
                    else:
                        d = acc.q(4 * mm + ib); unit = 2 * (s & 7) + u
                        zero = s & 7 == 0 and u == 0 and kk == 0 and mm == 1
                    k(f"v_mfma_f32_16x16x32_bf16 {d}, {f.q(4*kk+ib)}, {self.CL.frag(unit,kk,mm)}, {0 if zero else d}")
                    if rd and q < 8:
                        k(rd[2 * q]); lastrd = k(rd[2 * q + 1])
                    if q >= 8 and q % 2 == 0: vm(s, u, (q - 8) // 2)
                    if q == 15 and u == 1: post_bar(s)
                    fill(s, u, q)
        k.v.free(self.vh, self.rh); k.s.free(self.so, self.mH)

def xkeepS(k, I, ldsX):
    XK = k.v.allocq(16, 2); ad = k.v.alloc(2); t = k.v.alloc(2); st = k.s.alloc()
    k(f"""s_lshr_b32 {st}, {I['tb']}, 3
    s_lshl_b32 {st}, {st}, 13
    s_add_u32 {st}, {st}, {ldsX}
    v_lshrrev_b32 {t[0]}, 2, {I['l']}
    v_lshl_add_u32 {t[0]}, {t[0]}, 7, {st}
    v_and_b32 {t[1]}, 3, {I['l']}
    v_lshl_add_u32 {t[0]}, {t[1]}, 3, {t[0]}
    v_bfe_u32 {t[1]}, {I['l']}, 3, 2
    v_xor_b32 {t[1]}, {I['w']}, {t[1]}
    v_lshl_add_u32 {ad[1]}, {t[1]}, 5, {t[0]}
    v_xor_b32 {ad[0]}, 8192, {ad[1]}""")
    for p in range(2):
        for ib in range(4): k(f"ds_read_b64_tr_b16 {XK.q(4*p+ib,2)}, {ad[p]} offset:{2048*ib}")
    k.v.free(ad, t); k.s.free(st)
    return XK

def dsk_issueS(k, I, sd):
    Dk = k.v.alloc(2); va = k.v.alloc(); so = k.s.alloc()
    k(f"""v_lshlrev_b32 {va}, 1, {I['n']}
    s_lshl4_add_u32 {so}, {I['w']}, {I['tb']}
    s_lshl_b32 {so}, {so}, 5
    buffer_load_short_d16_hi {Dk[0]}, {va}, {sd}, {so} offen""")
    k.v.free(va); k.s.free(so)
    return Dk

def xd_initS(k, XK, Dk, acc):
    for p in range(2):
        for ib in range(4):
            a = acc[p].q(ib); x = XK.q(4 * p + ib, 2)
            k(f"""v_lshlrev_b32 {a[0]}, 16, {x[0]}
            v_and_b32 {a[1]}, 0xffff0000, {x[0]}
            v_lshlrev_b32 {a[2]}, 16, {x[1]}
            v_and_b32 {a[3]}, 0xffff0000, {x[1]}
            v_pk_mul_f32 {a[0:2]}, {Dk}, {a[0:2]} op_sel_hi:[0,1]
            v_pk_mul_f32 {a[2:4]}, {Dk}, {a[2:4]} op_sel_hi:[0,1]""")
    k.v.free(XK, Dk)

def gen_GS(k, I):
    G = k.v.allocq(32); a = k.v.allocq(8); c = k.v.allocq(8)
    f, b, sb = [k.v.alloc() for _ in range(3)]; mk = k.v.alloc(2); st = k.s.alloc()
    k(f"""s_and_b32 {st}, {I['tb']}, 8
    s_lshl_b32 {st}, {st}, 2
    v_lshrrev_b32 {f}, 1, {I['g']}
    v_lshl_add_u32 {f}, {f}, 3, {st}
    v_and_b32 {b}, 1, {I['g']}
    v_lshl_add_u32 {f}, {b}, 1, {f}
    v_cmp_eq_u32 vcc, 0, {f}
    v_cvt_f32_u32 {sb}, {f}
    v_bfe_i32 {mk[0]}, {I['g']}, 0, 1
    v_and_b32 {mk[0]}, 0x80008000, {mk[0]}
    v_xor_b32 {mk[1]}, 0x80000000, {mk[0]}
    s_lshl_b32 {st}, {st}, 1
    s_xor_b32 {st}, {st}, 64
    v_add_u32 {f}, {st}, {I['n']}
    v_cvt_f32_u32 {f}, {f}
    v_mul_f32 {f}, {fl(1/128)}, {f}""")
    for ib in range(2):
        if ib: k(f"v_add_f32 {f}, {fl(16/128)}, {f}")
        k(f"v_mul_f32 {b}, {f}, {sb}")
        for j in range(8): k(f"v_fmamk_f32 {a[j]}, {f}, {fl(float(16*(j>>2) + 4*((j>>1)&1) + (j&1)))}, {b}")
        for j in range(8): k(f"v_cos_f32 {c[j]}, {a[j]}")
        for j in range(8): k(f"v_sin_f32 {a[j]}, {a[j]}")
        k(f"v_lshlrev_b32 {b}, 31, {I['n']}\nv_or_b32 {b}, 0x3f003f00, {b}")
        for j in range(8): k(f"v_cvt_pk_bf16_f32 {G[8*ib+j]}, {c[j]}, -{a[j]}")
        k(f"v_cndmask_b32 {G[8*ib]}, {G[8*ib]}, {b}, vcc")
        for j in range(8):
            s_, d_ = G[8 * ib + j], G[16 + 8 * ib + j]
            if j & 1: k(f"v_alignbit_b32 {d_}, {s_}, {s_}, 16\nv_xor_b32 {d_}, {mk[1]}, {d_}")
            else: k(f"v_xor_b32 {d_}, {mk[0]}, {s_}")
    k.v.free(a, c, f, b, sb, mk); k.s.free(st)
    return G

def addrS(k, I, ldsY):
    A = dict(ay=k.v.alloc(), va=k.v.alloc(2), so=k.s.alloc(), l16=k.v.alloc(), vg=k.v.alloc(), sg=k.s.alloc(), px=k.s.alloc(), sv=k.s.alloc())
    t = k.v.alloc(); st = k.s.alloc(); ay, va, so = A['ay'], A['va'], A['so']
    k(f"""v_lshlrev_b32 {A['l16']}, 4, {I['l']}
    v_lshrrev_b32 {t}, 5, {I['l']}
    v_lshlrev_b32 {ay}, 9, {t}
    v_lshlrev_b32 {A['vg']}, 7, {t}
    v_bfe_u32 {t}, {I['l']}, 3, 2
    v_lshl_or_b32 {ay}, {t}, 6, {ay}
    v_and_b32 {t}, 3, {I['l']}
    v_lshl_or_b32 {ay}, {t}, 4, {ay}
    v_and_b32 {t}, 4, {I['l']}
    v_lshl_or_b32 {ay}, {t}, 1, {ay}
    s_lshl_b32 {st}, {I['w']}, 12
    s_add_u32 {st}, {st}, {ldsY}
    v_add_u32 {ay}, {st}, {ay}
    v_and_or_b32 {A['vg']}, {I['l']}, 16, {A['vg']}
    s_lshl_b32 {st}, {I['tb']}, 6
    v_lshl_add_u32 {va[0]}, {I['n']}, 2, {st}
    v_lshl_or_b32 {va[0]}, {I['g']}, 18, {va[0]}
    v_xor_b32 {va[1]}, 512, {va[0]}
    s_lshr_b32 {st}, {I['tb']}, 3
    s_lshl_b32 {so}, {st}, 10
    s_add_u32 {so}, {so}, {I['ta']}
    s_lshl2_add_u32 {so}, {so}, {I['w']}
    s_lshl_b32 {so}, {so}, 10
    s_xor_b32 {A['sg']}, {st}, 1
    s_lshl1_add_u32 {A['sg']}, {I['ta']}, {A['sg']}
    s_lshl_b32 {A['sg']}, {A['sg']}, 10
    s_lshl4_add_u32 {A['px']}, {I['ta']}, {I['tb']}
    s_and_b32 {A['sv']}, {I['w']}, 2
    s_lshl_b32 {A['sv']}, {A['sv']}, 2
    s_xor_b32 {A['sv']}, {A['sv']}, {A['px']}
    s_lshl1_add_u32 {A['sv']}, {A['sv']}, {st}
    s_and_b32 {st}, {I['w']}, 1
    s_lshl1_add_u32 {A['sv']}, {A['sv']}, {st}
    s_lshl_b32 {A['sv']}, {A['sv']}, 12
    s_lshl2_add_u32 {A['px']}, {A['px']}, {I['w']}
    s_lshl_b32 {A['px']}, {A['px']}, 13""")
    assert V2_STR == 16384
    k.v.free(t); k.s.free(st)
    return A

def y_readsS(A, Y):
    return [f"ds_read_b64_tr_b16 {Y[4*x+2*h:4*x+2*h+2]}, {A['ay']} offset:{1024*x + 256*h}" for x in range(4) for h in range(2)]

def ph3_listS(G, Y, aa):
    return [f"v_mfma_f32_16x16x32_bf16 {aa.q(4*mm+ib)}, {G.q(2*ib+kap)}, {Y.q(2*mm+kap)}, {aa.q(4*mm+ib) if kap else 0}"
            for kap in range(2) for ib in range(4) for mm in range(2)]

class CLoadU(CLoadS):
    def __init__(self, k, I, scr, sci, CA):
        self.k, self.sc2 = k, (scr, sci)
        self.C = CA; self.va = k.v.alloc(4); self.ra = k.v.alloc(4); self.so = k.s.alloc(); self.mw = k.s.alloc()
        t = k.v.alloc(2); st = k.s.alloc(); l = I['l']
        k(f"""v_and_b32 {t[0]}, 7, {l}
        v_xor_b32 {t[0]}, {t[0]}, {I['g']}
        v_lshlrev_b32 {t[0]}, 4, {t[0]}
        v_lshrrev_b32 {t[1]}, 3, {l}
        v_lshl_or_b32 {self.va[0]}, {t[1]}, 11, {t[0]}
        s_and_b32 {st}, {I['tb']}, 7
        s_lshl4_add_u32 {st}, {I['w']}, {st}
        s_lshl_b32 {st}, {st}, 15
        s_lshr_b32 {self.so}, {I['tb']}, 3
        s_lshl_b32 {self.so}, {self.so}, 10
        s_add_u32 {st}, {st}, {self.so}
        v_add_u32 {self.va[0]}, {st}, {self.va[0]}
        v_xor_b32 {self.va[1]}, 64, {self.va[0]}
        v_add_u32 {self.va[1]}, {16384-1024}, {self.va[1]}
        v_add_u32 {self.va[2]}, {(1<<18)-2048}, {self.va[0]}
        v_add_u32 {self.va[3]}, {(1<<18)-2048}, {self.va[1]}
        s_and_b32 {self.so}, {I['ta']}, 7
        s_lshl_b32 {self.so}, {self.so}, 7
        s_lshl_b32 {self.mw}, {I['w']}, 12
        v_bfe_u32 {t[0]}, {l}, 1, 3
        v_lshrrev_b32 {t[1]}, 5, {l}
        v_xor_b32 {t[0]}, {t[0]}, {t[1]}
        v_lshlrev_b32 {t[0]}, 4, {t[0]}
        v_and_b32 {t[1]}, 31, {l}
        v_lshl_or_b32 {t[0]}, {t[1]}, 7, {t[0]}
        v_add_u32 {self.ra[0]}, {self.mw}, {t[0]}""")
        for q in range(1, 4): k(f"v_xor_b32 {self.ra[q]}, {32*q}, {self.ra[0]}")
        k.v.free(t); k.s.free(st)
        self.n = 0; self.slot = {}; self.ld = {}; self.rd = {}; self.nd = 0; self.base = 0
    def frag(self, j, kq): return self.C.q(4 * j + kq)
    def issue1(self, slot):
        k = self.k; j, q = self.n >> 2, self.n & 3
        if q == 0:
            if slot in self.rd: k.wait(self.rd.pop(slot))
            self.slot[j] = slot
            k(f"s_add_u32 m0, {self.mw}, {slot}")
        self.ld[j] = k(f"buffer_load_dwordx4 {self.va[q]}, {self.sc2[j&1]}, {self.so} offen offset:{1024*q} lds")
        if q == 3 and j & 1: k(f"s_add_u32 {self.so}, {self.so}, 128\ns_and_b32 {self.so}, {self.so}, 0x3ff")
        self.n += 1
        if self.n == 64: k.v.free(self.va); k.s.free(self.so, self.mw)
    def drain(self):
        k = self.k; j = self.nd; slot = self.slot[j]; base = slot & ~65535
        assert self.n >= 4 * (j + 1)
        if base != self.base:
            for q in range(4): k(f"v_xor_b32 {self.ra[q]}, {hex(base ^ self.base)}, {self.ra[q]}")
            self.base = base
        k.wait(self.ld[j])
        for q in range(4): self.rd[slot] = k(f"ds_read_b128 {self.frag(j,q)}, {self.ra[q]} offset:{slot & 65535}")
        self.nd += 1
        if self.nd == 16: k.v.free(self.ra)
        return slot

class B3u(B3s):
    split = True
    def __init__(self, k, I, sh, CL):
        super().__init__(k, I, sh, CL)
        del k.ins[-5:]
        t0 = k.ins[-1].text.split()[1].rstrip(',')
        rh = self.rh
        k(f"""v_and_b32 {rh[1]}, 1, {I['g']}
        v_mul_u32_u24 {rh[1]}, {2048 + 8}, {rh[1]}
        v_add_u32 {rh[0]}, {rh[1]}, {t0}
        v_xor_b32 {rh[1]}, 64, {rh[0]}
        v_xor_b32 {rh[2]}, 8, {rh[0]}
        v_xor_b32 {rh[3]}, 8, {rh[1]}""")
    def alloc(self):
        self.acc = [self.k.v.allocq(32, 16), self.k.v.allocq(32, 16)]; self.fr = self.k.v.allocq(64)
    def main(self, vm, fill, pre_bar, post_bar, RD=(3, 3, 3, 3, 2, 2, 0, 0)):
        k = self.k; NS = 16; fr = self.fr
        hi = lambda s: ((s % self.NR) * 16384) >> 16
        def reads(s, u):
            f = fr.q(u, 32); out = []
            for kq in range(4):
                for x in range(2):
                    off = ((s % self.NR) * 16384 + u * 8192 + x * 4096 + (kq >> 1) * 256) & 65535
                    for h in range(2):
                        o = 8 * kq + 4 * x + 2 * h
                        out.append(f"ds_read_b64_tr_b16 {f[o:o+2]}, {self.rh[2*(kq&1)+h]} offset:{off}")
            return out
        pre_bar(-1)
        k.wait(self.last[0]); k("s_barrier")
        lastrd = None
        for r in reads(0, 0): lastrd = k(r)
        post_bar(-1)
        for s in range(NS):
            for u in range(2):
                f = fr.q(u, 32); rd = []
                if u == 0: rd = reads(s, 1)
                elif s + 1 < NS:
                    pre_bar(s)
                    assert self.cnt[s + 1] == 4
                    k.wait(lastrd, self.last[s + 1]); k("s_barrier")
                    rd = reads(s + 1, 0)
                k.wait(lastrd)
                assert self.CL.nd > 2 * (s & 7) + u, (s, u, self.CL.nd)
                for q in range(8):
                    kq, x = q >> 1, q & 1
                    if s < 8: d = self.acc[0].q(x, 16); unit = 2 * s + u
                    else: d = self.acc[1].q((s - 8) >> 2, 16); unit = 4 * (s & 3) + 2 * u + x
                    k(f"v_mfma_f32_32x32x16_bf16 {d}, {f.q(q)}, {self.CL.frag(unit,kq)}, {d}")
                    for _ in range(RD[q]):
                        if rd: lastrd = k(rd.pop(0))
                    if q >= 4: vm(s, u, q - 4)
                    if q == 6 and u == 0 and s < 15 and hi(s) != hi(s + 1):
                        for y in range(4): k(f"v_xor_b32 {self.rh[y]}, 0x10000, {self.rh[y]}")
                    if q == 7 and u == 1: post_bar(s)
                    fill(s, u, q)
        k.v.free(self.vh, self.rh); k.s.free(self.so, self.mH)

def xkeepU(k, I, ldsX):
    XK = k.v.allocq(16); ad = k.v.alloc(2); t = k.v.alloc(); st = k.s.alloc()
    k(f"""s_lshr_b32 {st}, {I['tb']}, 3
    s_lshl_b32 {st}, {st}, 13
    s_add_u32 {st}, {st}, {ldsX}
    v_and_b32 {t}, 31, {I['l']}
    v_lshl_add_u32 {ad[1]}, {t}, 7, {st}
    v_lshrrev_b32 {t}, 5, {I['l']}
    v_lshl_add_u32 {ad[1]}, {t}, 4, {ad[1]}
    v_bfe_u32 {t}, {I['l']}, 1, 2
    v_xor_b32 {t}, {I['w']}, {t}
    v_lshl_add_u32 {ad[1]}, {t}, 5, {ad[1]}
    v_xor_b32 {ad[0]}, 8192, {ad[1]}""")
    for p in range(2):
        for rb in range(2): k(f"ds_read_b128 {XK.q(2*p+rb)}, {ad[p]} offset:{4096*rb}")
    k.v.free(ad, t); k.s.free(st)
    return XK

def diagU(k, I, Dk):
    B = k.v.allocq(4); t = Dk[1]; st = k.s.alloc()
    k(f"""s_lshr_b32 {st}, {I['tb']}, 3
    v_lshrrev_b32 {t}, 3, {I['n']}
    v_lshl_or_b32 {t}, {t}, 1, {st}
    v_xor_b32 {t}, {t}, {I['g']}
    v_lshlrev_b32 {t}, 2, {t}
    v_bfe_u32 {B[0]}, {I['n']}, 1, 2
    v_or_b32 {t}, {t}, {B[0]}
    v_and_b32 {B[0]}, 1, {I['n']}
    v_lshlrev_b32 {B[0]}, 4, {B[0]}
    v_xor_b32 {B[0]}, 16, {B[0]}
    v_lshrrev_b32 {Dk[0]}, {B[0]}, {Dk[0]}""")
    for j in range(4): k(f"v_cmp_eq_u32 vcc, {j}, {t}\nv_cndmask_b32 {B[j]}, 0, {Dk[0]}, vcc")
    k.v.free(Dk); k.s.free(st)
    return B

def xd_initU(k, XK, B, acc):
    for p in range(2):
        for rb in range(2): k(f"v_mfma_f32_32x32x16_bf16 {acc[p].q(rb,16)}, {XK.q(2*p+rb)}, {B.q(0)}, 0")
    k.v.free(XK, B)

def gen_GU(k, I):
    G = k.v.allocq(32); a = k.v.allocq(8); c = k.v.allocq(8)
    f, b = k.v.alloc(), k.v.alloc(); st = k.s.alloc()
    k(f"""s_and_b32 {st}, {I['tb']}, 8
    s_lshl_b32 {st}, {st}, 2
    v_lshrrev_b32 {b}, 5, {I['l']}
    v_lshl_add_u32 {b}, {b}, 2, {st}
    v_cmp_eq_u32 vcc, 0, {b}
    v_cvt_f32_u32 {b}, {b}
    s_lshl_b32 {st}, {st}, 1
    s_xor_b32 {st}, {st}, 64
    v_and_or_b32 {f}, {I['l']}, 31, {st}
    v_cvt_f32_u32 {f}, {f}
    v_mul_f32 {f}, {fl(1/128)}, {f}
    v_mul_f32 {b}, {b}, {f}""")
    for x in range(2):
        for j in range(8): k(f"v_fmamk_f32 {a[j]}, {f}, {fl(float(16*x + 8*(j>>2) + (j&3)))}, {b}")
        for j in range(8): k(f"v_cos_f32 {c[j]}, {a[j]}")
        for j in range(8): k(f"v_sin_f32 {a[j]}, {a[j]}")
        for j in range(8):
            g0, g1 = G[8 * x + j], G[16 + 8 * x + j]
            k(f"v_cvt_pk_bf16_f32 {g0}, {c[j]}, -{a[j]}")
            p, q_ = ((c[j], '-' + str(a[j])), ('-' + str(a[j]), '-' + str(c[j])), ('-' + str(c[j]), a[j]), (a[j], c[j]))[j & 3]
            k(f"v_cvt_pk_bf16_f32 {g1}, {p}, {q_}")
    k(f"""v_lshlrev_b32 {b}, 31, {I['n']}
    v_or_b32 {b}, 0x3f003f00, {b}
    v_cndmask_b32 {G[0]}, {G[0]}, {b}, vcc
    v_cndmask_b32 {G[16]}, {G[16]}, {b}, vcc""")
    k.v.free(a, c, f, b); k.s.free(st)
    return G

def addrU(k, I, ldsY, ldsG):
    A = dict(ay=k.v.alloc(), va=k.v.alloc(), so=k.s.alloc(), l16=k.v.alloc(), vg=k.v.alloc(), gg=k.v.alloc(), sg=k.s.alloc(), px=k.s.alloc(), sv=k.s.alloc())
    t = k.v.alloc(); st = k.s.alloc(); ay, va, so = A['ay'], A['va'], A['so']
    k(f"""v_lshlrev_b32 {A['l16']}, 4, {I['l']}
    v_lshrrev_b32 {t}, 5, {I['l']}
    v_lshlrev_b32 {ay}, 8, {t}
    v_lshlrev_b32 {va}, 18, {t}
    s_lshl_b32 {st}, {I['w']}, 12
    s_add_u32 {so}, {st}, {ldsG}
    v_lshl_add_u32 {A['vg']}, {t}, 4, {so}
    v_and_b32 {t}, 8, {I['l']}
    v_lshl_or_b32 {ay}, {t}, 3, {ay}
    v_and_b32 {t}, 3, {I['l']}
    v_lshl_or_b32 {ay}, {t}, 4, {ay}
    v_and_b32 {t}, 4, {I['l']}
    v_lshl_or_b32 {ay}, {t}, 1, {ay}
    v_and_b32 {t}, 16, {I['l']}
    v_lshl_or_b32 {ay}, {t}, 7, {ay}
    v_lshl_or_b32 {va}, {t}, 5, {va}
    v_lshl_or_b32 {va}, {I['n']}, 2, {va}
    s_add_u32 {st}, {st}, {ldsY}
    v_add_u32 {ay}, {st}, {ay}
    v_lshrrev_b32 {t}, 3, {I['l']}
    v_and_b32 {A['gg']}, 7, {I['l']}
    v_lshlrev_b32 {A['gg']}, 2, {A['gg']}
    v_lshl_or_b32 {A['gg']}, {t}, 7, {A['gg']}
    s_lshr_b32 {st}, {I['tb']}, 3
    s_lshl_b32 {so}, {st}, 10
    s_add_u32 {so}, {so}, {I['ta']}
    s_lshl2_add_u32 {so}, {so}, {I['w']}
    s_and_b32 {A['sv']}, {I['tb']}, 7
    s_lshl4_add_u32 {so}, {so}, {A['sv']}
    s_lshl_b32 {so}, {so}, 6
    s_xor_b32 {A['sg']}, {st}, 1
    s_lshl1_add_u32 {A['sg']}, {I['ta']}, {A['sg']}
    s_lshl_b32 {A['sg']}, {A['sg']}, 10
    s_lshl4_add_u32 {A['sv']}, {I['ta']}, {A['sv']}
    s_and_b32 {A['px']}, {I['w']}, 2
    s_lshl2_add_u32 {A['sv']}, {A['px']}, {A['sv']}
    s_lshl1_add_u32 {A['sv']}, {A['sv']}, {st}
    s_and_b32 {st}, {I['w']}, 1
    s_lshl1_add_u32 {A['sv']}, {A['sv']}, {st}
    s_lshl_b32 {A['sv']}, {A['sv']}, 12
    s_lshl4_add_u32 {A['px']}, {I['ta']}, {I['tb']}
    s_lshl2_add_u32 {A['px']}, {A['px']}, {I['w']}
    s_lshl_b32 {A['px']}, {A['px']}, 12""")
    k.v.free(t); k.s.free(st)
    return A

def xkeepM(k, I, ldsX):
    XK = k.v.allocq(16, 2); ad = k.v.alloc(2); t = k.v.alloc(); st = k.s.alloc()
    k(f"""s_lshr_b32 {st}, {I['tb']}, 3
    s_lshl_b32 {st}, {st}, 13
    s_add_u32 {st}, {st}, {ldsX}
    v_lshl_add_u32 {ad[1]}, {I['n']}, 7, {st}
    v_lshl_add_u32 {ad[1]}, {I['g']}, 3, {ad[1]}
    v_bfe_u32 {t}, {I['n']}, 1, 2
    v_xor_b32 {t}, {I['w']}, {t}
    v_lshl_add_u32 {ad[1]}, {t}, 5, {ad[1]}
    v_xor_b32 {ad[0]}, 8192, {ad[1]}""")
    for p in range(2):
        for ib in range(4): k(f"ds_read_b64 {XK.q(4*p+ib,2)}, {ad[p]} offset:{2048*ib}")
    k.v.free(ad, t); k.s.free(st)
    return XK

def diagM(k, I, Dk):
    t = k.v.alloc(2)
    k(f"""v_and_b32 {t[0]}, 1, {I['n']}
    v_lshlrev_b32 {t[0]}, 4, {t[0]}
    v_xor_b32 {t[0]}, 16, {t[0]}
    v_lshrrev_b32 {t[0]}, {t[0]}, {Dk[0]}
    v_lshrrev_b32 {t[1]}, 1, {I['n']}
    v_lshlrev_b32 {Dk[1]}, 1, {I['g']}
    v_sub_u32 {t[1]}, {t[1]}, {Dk[1]}
    v_cmp_eq_u32 vcc, 0, {t[1]}
    v_cndmask_b32 {Dk[0]}, 0, {t[0]}, vcc
    v_cmp_eq_u32 vcc, 1, {t[1]}
    v_cndmask_b32 {Dk[1]}, 0, {t[0]}, vcc""")
    k.v.free(t)
    return Dk

def xd_initM(k, XK, B, acc):
    for p in range(2):
        for ib in range(4): k(f"v_mfma_f32_16x16x16_bf16 {acc[p].q(ib)}, {XK.q(4*p+ib,2)}, {B}, 0")
    k.v.free(XK, B)
```

```python
import sys, json
from fft import *
from ssm import *
from g2 import y_stage, v2_issue
SC = "sc1"
OUTF = os.environ.get("OUTF", "")

def code_prefetch(k, lo, hi):
    r = k.s.alloc(2); so = k.s.alloc(); va = k.v.alloc(2)
    per = -(-(hi - lo) // (32 * 128))
    lab = k.lab('pc')
    k(f"""s_getpc_b64 {r}
    {lab}:
    s_lshr_b32 {so}, s2, 3
    s_mul_i32 {so}, {so}, {per*128}
    s_add_u32 {so}, {so}, {lo}
    v_min_u32 {va[0]}, {per-1}, v0
    v_lshl_add_u32 {va[0]}, {va[0]}, 7, {so}
    v_min_u32 {va[0]}, {k.name}_end-{lab}, {va[0]}
    v_mov_b32 {va[1]}, {r[1]}
    v_add_co_u32 {va[0]}, vcc, {r[0]}, {va[0]}
    v_addc_co_u32 {va[1]}, vcc, 0, {va[1]}, vcc""")
    k.s.free(r, so)
    return va

class Poll:
    def __init__(self, k, srd_, va, n, want, off=0, oobok=False, sleep=5, mask=None):
        self.oobok = oobok; self.sleep = sleep; self.mask = mask
        self.k, self.srd, self.va, self.n, self.want, self.off = k, srd_, va, n, want, off
        self.d = k.v.alloc(n)
    def issue(self):
        x = {1: '', 4: 'x4'}[self.n]
        if self.mask: self.k(f"s_mov_b64 exec, {hex(self.mask)}")
        r = self.k(f"buffer_load_dword{x} {self.d}, {self.va}, {self.srd}, {self.off} offen sc1")
        if self.mask: self.k("s_mov_b64 exec, -1")
        return r
    def _check(self):
        k, d = self.k, self.d
        if self.n == 4: k(f"v_min_u32 {d[0]}, {d[0]}, {d[1]}\nv_min3_u32 {d[0]}, {d[0]}, {d[2]}, {d[3]}")
        k(f"v_cmp_ne_u32 vcc, {self.want}, {d[0]}")
        if self.mask: k(f"s_and_b64 vcc, vcc, {hex(self.mask)}")
    def finish(self, maxspin=1 << 20):
        k = self.k
        self._check()
        with k.skip_if("s_cbranch_vccz"):
            cnt = k.s.alloc(); lp = k.lab('poll'); out = k.lab('pollout')
            k(f"s_mov_b32 {cnt}, 0\n{lp}:\ns_sleep {self.sleep}")
            self.issue(); k("s_waitcnt vmcnt(0)")
            self._check()
            k(f"s_cbranch_vccz {out}\ns_add_u32 {cnt}, {cnt}, 1\ns_cmp_lt_u32 {cnt}, {maxspin}\ns_cbranch_scc1 {lp}\n{out}:")
            k.s.free(cnt)
        k.v.free(self.d)

def wave0_store(k, I, text, mask=1):
    k(f"s_cmp_lg_u32 {I['w']}, 0")
    with k.skip_if("s_cbranch_scc1"):
        k(f"s_mov_b64 exec, {mask}"); k(text); k("s_mov_b64 exec, -1")

def ph1f(k, I, F, lds_off, sv1, hook):
    ad = k.v.alloc(4); t = k.v.alloc(); t2 = k.v.alloc()
    k(f"""v_bfe_u32 {t}, {I['l']}, 2, 3
    v_lshrrev_b32 {t2}, 5, {I['l']}
    v_lshl_or_b32 {t}, {t2}, 4, {t}
    v_lshlrev_b32 {t}, 7, {t}
    v_and_b32 {t2}, 3, {I['l']}
    v_lshl_or_b32 {t}, {t2}, 3, {t}
    v_add_u32 {t}, {lds_off}, {t}
    v_bfe_u32 {t2}, {I['l']}, 3, 2""")
    for m in range(4):
        k(f"v_xor_b32 {ad[m]}, {m}, {t2}\nv_lshl_add_u32 {ad[m]}, {ad[m]}, 5, {t}")
    acc = k.v.allocq(32); fr = k.v.allocq(48)
    hook('bar')
    def rd(m):
        for kap in range(4):
            for h in range(2):
                o = 16 * fs[m] + 4 * kap + 2 * h
                k(f"ds_read_b64_tr_b16 {fr[o:o+2]}, {ad[m]} offset:{kap*4096+h*1024}")
    fs = {0: 0, 2: 1, 1: 2, 3: 0}
    rd(0); rd(2)
    for mi, m in enumerate((0, 2, 1, 3)):
        if mi < 2: rd((1, 3)[mi])
        for kap in range(4):
            for c in range(2):
                d = acc.q(2 * m + c)
                k(f"v_mfma_f32_16x16x32_bf16 {d}, {F.q(4*c+kap)}, {fr.q(4*fs[m]+kap)}, {d if kap else 0}")
            if kap & 1: hook('t')
    A = lambda c: fr.q(4 + c); B = lambda c: fr.q(8 + c); C = lambda c: fr.q(6 + c); Dd = lambda c: fr.q(10 + c)
    z = lambda m, c: acc.q(2 * m + c)
    for c in range(2):
        for h in (0, 2):
            s = slice(h, h + 2)
            pk(k, '+', A(c)[s], z(0, c)[s], z(2, c)[s]); pk(k, '-', C(c)[s], z(0, c)[s], z(2, c)[s])
        hook('t')
    for c in range(2):
        for h in (0, 2):
            s = slice(h, h + 2)
            pk(k, '+', B(c)[s], z(1, c)[s], z(3, c)[s]); pk(k, '-', Dd(c)[s], z(1, c)[s], z(3, c)[s])
        hook('t')
    for h in (0, 2):
        s = slice(h, h + 2)
        for c in range(2):
            pk(k, '+', z(0, c)[s], A(c)[s], B(c)[s]); pk(k, '-', z(2, c)[s], A(c)[s], B(c)[s])
        hook('t')
        pk(k, '+', z(1, 0)[s], C(0)[s], Dd(1)[s]); pk(k, '-', z(1, 1)[s], C(1)[s], Dd(0)[s])
        pk(k, '-', z(3, 0)[s], C(0)[s], Dd(1)[s]); pk(k, '+', z(3, 1)[s], C(1)[s], Dd(0)[s])
        hook('t')
    k(f"""v_cmp_gt_u32 vcc, 16, v0
    v_cndmask_b32 {z(1,0)[0]}, {z(1,0)[0]}, {C(0)[0]}, vcc
    v_cndmask_b32 {z(1,1)[0]}, {z(1,1)[0]}, -{Dd(0)[0]}, vcc
    v_cndmask_b32 {z(3,0)[0]}, {z(3,0)[0]}, {C(1)[0]}, vcc
    v_cndmask_b32 {z(3,1)[0]}, {z(3,1)[0]}, -{Dd(1)[0]}, vcc""")
    O = fr[0:16]; fr = fr[16:48]
    for r in range(4):
        for kp in range(4): k(f"v_cvt_pk_bf16_f32 {O[4*r+kp]}, {z(kp,0)[r]}, {z(kp,1)[r]}")
    if I.get('tag'):
        for j in range(16): k(f"v_and_b32 {O[j]}, -2, {O[j]}")
    so = k.s.alloc(); s2_ = k.s.alloc()
    k(f"""s_mov_b32 {so}, {16*V1_STR}
    v_mul_lo_u32 {t}, {I['g']}, {so}
    v_lshl_add_u32 {t}, {I['n']}, 2, {t}
    s_mul_i32 {so}, {I['w']}, {64*V1_STR}
    s_lshl_b32 {s2_}, {I['ta']}, 10
    s_add_u32 {so}, {so}, {s2_}
    s_lshl_b32 {s2_}, {I['tb']}, 6
    s_add_u32 {so}, {so}, {s2_}""")
    k.v.free(ad, t2, acc, fr); k.s.free(s2_)
    return O, t, so

def ph1_store(k, O, va, so, sv1):
    last = None
    for j in range(16):
        last = k(f"buffer_store_dword {O[j]}, {va}, {sv1}, {so} offen {SC}")
        if j < 15: k(f"s_add_u32 {so}, {so}, {V1_STR}")
    k.v.free(O, va); k.s.free(so)
    return last

BIG = 0x7f000000
def wpre_issue(k, I, swr, swi, second, fl_=''):
    Wp = dict(r=k.v.allocq(8), i=k.v.allocq(8), a=k.v.alloc(2), dst=k.s.alloc(4))
    col, t, ad = k.v.alloc(), k.v.alloc(), k.v.alloc(); r0, r1, a = k.s.alloc(), k.s.alloc(), k.s.alloc()
    dst = Wp['dst']
    k(f"""s_lshl_b32 {a}, {I['k1p']}, 2
    s_add_u32 {a}, {a}, {I['w']}
    s_lshl_b32 {r0}, {a}, 7
    s_add_u32 {r0}, {r0}, {64 if second else I['slot']}
    s_sub_u32 {r1}, 2048, {r0}
    s_and_b32 {r1}, {r1}, 2047
    s_mul_i32 {r0}, {r0}, 1026
    s_mul_i32 {r1}, {r1}, 1026
    v_lshlrev_b32 {col}, 9, {I['g']}
    v_lshl_add_u32 {col}, {I['n']}, 3, {col}
    v_add_u32 {ad}, {r0}, {col}
    v_sub_u32 {t}, {r1}, {col}
    v_add_u32 {t}, {2*829}, {t}
    v_cmp_lt_u32 vcc, 1, {I['g']}
    v_cndmask_b32 {ad}, {ad}, {t}, vcc""")
    for r in range(4):
        k(f"buffer_load_dwordx2 {Wp['r'].q(r,2)}, {ad}, {swr}, 0 offen offset:{128*r} {fl_}")
        k(f"buffer_load_dwordx2 {Wp['i'].q(r,2)}, {ad}, {swi}, 0 offen offset:{128*r} {fl_}")
    k(f"""s_add_u32 {r0}, {r0}, 1024
    v_mov_b32 {t}, {r1}
    v_mov_b32 {col}, {r0}
    v_cndmask_b32 {t}, {t}, {col}, vcc
    buffer_load_ushort {Wp['a'][0]}, {t}, {swr}, 0 offen
    buffer_load_ushort {Wp['a'][1]}, {t}, {swi}, 0 offen""")
    if not second:
        k(f"""s_lshl_b32 {dst[0]}, {I['slot']}, 16
        s_lshl_b32 {r0}, {a}, 10
        s_add_u32 {dst[0]}, {dst[0]}, {r0}
        s_add_u32 {dst[1]}, {dst[0]}, 16384
        s_add_u32 {dst[2]}, {dst[0]}, 32768
        s_add_u32 {dst[3]}, {dst[0]}, 49152
        s_cmp_lg_u32 {I['slot']}, 0""")
        with k.skip_if("s_cbranch_scc1"):
            k(f"""s_mov_b32 {dst[3]}, {BIG}
            s_cmp_gt_u32 {a}, 8
            s_cselect_b32 {dst[0]}, {BIG}, {dst[0]}
            s_cselect_b32 {dst[2]}, {BIG}, {dst[2]}
            s_cmp_eq_u32 {a}, 8
            s_cselect_b32 {dst[0]}, {256*16384}, {dst[0]}
            s_cselect_b32 {dst[2]}, {256*16384+1024}, {dst[2]}""")
    else:
        k(f"""s_lshl_b32 {r0}, {a}, 10
        s_add_u32 {dst[0]}, {r0}, 8192
        s_add_u32 {dst[1]}, {r0}, 49152
        s_add_u32 {dst[2]}, {r0}, {32768+8192}
        s_mov_b32 {dst[3]}, {BIG}
        s_cmp_gt_u32 {a}, 7
        s_cselect_b32 {dst[0]}, {BIG}, {dst[0]}
        s_cselect_b32 {dst[2]}, {BIG}, {dst[2]}""")
    k.v.free(col, t, ad); k.s.free(r0, r1, a)
    return Wp

def wpre_compute(k, I, Wp, sw):
    O = k.v.allocq(16); sel = k.v.alloc(2); t = k.v.alloc(3); va = k.v.alloc()
    R_, I_, A = Wp['r'], Wp['i'], Wp['a']
    k(f"v_mov_b32 {sel[0]}, 0x05040100\nv_mov_b32 {sel[1]}, 0x07060302")
    k(f"v_lshlrev_b32 {A[0]}, 16, {A[0]}\nv_lshlrev_b32 {A[1]}, 16, {A[1]}\nv_xor_b32 {A[1]}, 0x80000000, {A[1]}")
    k("s_mov_b32 exec_lo, 0")
    k(f"v_swap_b32 {sel[0]}, {sel[1]}\nv_xor_b32 {A[1]}, 0x80000000, {A[1]}")
    for r in range(4):
        k(f"""v_swap_b32 {R_[2*r]}, {R_[2*r+1]}
        v_swap_b32 {I_[2*r]}, {I_[2*r+1]}
        v_xor_b32 {I_[2*r]}, 0x80008000, {I_[2*r]}
        v_xor_b32 {I_[2*r+1]}, 0x80008000, {I_[2*r+1]}""")
    k("s_mov_b64 exec, -1")
    for kk in range(4):
        for r in range(4):
            k(f"v_perm_b32 {O[4*kk+r]}, {I_[2*r+(kk>>1)]}, {R_[2*r+(kk>>1)]}, {sel[kk&1]}")
    k(f"""v_cmp_lt_u32 vcc, 1, {I['g']}
    v_cndmask_b32 {t[0]}, {O[0]}, {O[3]}, vcc
    v_lshlrev_b32 {t[1]}, 16, {t[0]}
    v_and_b32 {t[2]}, 0xffff0000, {t[0]}
    v_add_f32 {t[1]}, {t[1]}, {A[0]}
    v_add_f32 {t[2]}, {t[2]}, {A[1]}
    v_mul_f32 {t[1]}, 0.5, {t[1]}
    v_mul_f32 {t[2]}, 0.5, {t[2]}
    v_cvt_pk_bf16_f32 {t[0]}, {t[1]}, {t[2]}
    v_cmp_eq_u32 vcc, 0, {I['l']}
    v_cndmask_b32 {O[0]}, {O[0]}, {t[0]}, vcc
    v_cmp_eq_u32 vcc, 32, {I['l']}
    v_cndmask_b32 {O[3]}, {O[3]}, {t[0]}, vcc""")
    last = None
    for kk in range(4):
        k(f"v_lshl_add_u32 {va}, {I['l']}, 4, {Wp['dst'][kk]}")
        last = k(f"buffer_store_dwordx4 {O.q(kk)}, {va}, {sw}, 0 offen {SC}")
    k.v.free(O, sel, t, va, R_, I_, A); k.s.free(Wp['dst'])
    return last

def w2_issue(k, I, T, sw):
    W = k.v.allocq(20); va = k.v.alloc(); so = k.s.alloc(); st = k.s.alloc()
    k(f"""v_lshlrev_b32 {va}, 4, {I['l']}
    s_lshl_b32 {so}, {T['tau']}, 14
    s_lshl_b32 {st}, {I['w']}, 12
    s_add_u32 {so}, {so}, {st}""")
    for b in range(4): k(f"buffer_load_dwordx4 {W.q(b)}, {va}, {sw}, {so} offen offset:{1024*b} {SC}")
    k(f"s_cmp_eq_u32 {T['sp']}, 0")
    with k.skip_if("s_cbranch_scc1"):
        k(f"""s_lshl_b32 {so}, {T['tau']}, 9
        s_add_u32 {so}, {so}, {256*16384}
        buffer_load_dwordx4 {W.q(4)}, {va}, {sw}, {so} offen {SC}""")
    k.v.free(va); k.s.free(so, st)
    return W

def ph2f(k, I, T, C, W, L, lds1, lds2, sv2, hook):
    D = k.v.allocq(16); acc = k.v.allocq(32); tmp = k.v.alloc(4); wu = k.v.allocq(8); ad = k.v.alloc(); st = k.s.alloc()
    z = lambda b, c: acc.q(2 * b + c)
    def stage(M, data_is_A, blocks=range(4), src=None, dst=None):
        for b in blocks:
            for c in range(2):
                d = (src or D).q(b); o = (dst or acc).q(2 * b + c)
                A, B = (d, M.q(c)) if data_is_A else (M.q(c), d)
                k(f"v_mfma_f32_16x16x32_bf16 {o}, {A}, {B}, 0")
            if src is None: hook('t')
    def unpack(b):
        for r in range(4): k(f"v_lshlrev_b32 {wu[r]}, 16, {W[4*b+r]}\nv_and_b32 {wu[4+r]}, 0xffff0000, {W[4*b+r]}")
    for b in range(4):
        for j in range(4): k(f"v_mov_b32 {D[4*b+j]}, {L[4*j+b]}")
    stage(C['sf'], True)
    a4 = k.v.alloc(4)
    k(f"""v_and_b32 {a4[0]}, 7, {I['n']}
    v_lshlrev_b32 {ad}, 2, {I['g']}
    v_xor_b32 {a4[0]}, {a4[0]}, {ad}
    v_lshlrev_b32 {a4[0]}, 4, {a4[0]}
    v_lshl_or_b32 {a4[0]}, {I['n']}, 10, {a4[0]}
    s_lshl_b32 {st}, {I['w']}, 8
    s_add_u32 {st}, {st}, {lds1}
    v_add_u32 {a4[0]}, {st}, {a4[0]}""")
    for b in range(1, 4): k(f"v_xor_b32 {a4[b]}, {16*b}, {a4[0]}")
    for b in range(4):
        for r in range(4): k(f"v_cvt_pk_bf16_f32 {D[4*b+r]}, {z(b,0)[r]}, {z(b,1)[r]}")
        k(f"ds_write_b128 {a4[b]}, {D.q(b)}")
    k(f"""s_and_b32 {st}, {I['w']}, 1
    s_lshl_b32 {st}, {st}, 2
    v_xor_b32 {ad}, {st}, {I['l']}
    s_lshl_b32 {st}, {I['w']}, 12
    s_add_u32 {st}, {st}, {lds1}
    v_lshl_add_u32 {a4[0]}, {ad}, 4, {st}""")
    for b in range(1, 4): k(f"v_xor_b32 {a4[b]}, {16*b}, {a4[0]}")
    hook('pre_bar1')
    k("s_waitcnt lgkmcnt(0)\ns_barrier")
    for b in range(4): k(f"ds_read_b128 {D.q(b)}, {a4[b]} offset:{1024*b}")
    k.v.free(a4)
    hook('post_bar1')
    stage(C['m1f'], True)
    for b in range(4):
        cmul_pack(k, z(b, 0), z(b, 1), C['twf'].q(0), C['twf'].q(1), True, D.q(b), tmp); hook('t')
    stage(C['m2f'], False)
    X = L[0:8]; Xd = L[8:12]
    k(f"s_cmp_eq_u32 {T['sp']}, 0")
    with k.skip_if("s_cbranch_scc1"):
        unpack(4)
        cmul_pack(k, z(0, 0), z(0, 1), wu.q(0), wu.q(1), False, Xd, tmp)
        stage(C['m2i'], True, [0], Xd, X)
        cmul_pack(k, X.q(0), X.q(1), C['twi'].q(0), C['twi'].q(1), False, Xd, tmp)
        stage(C['m1i'], False, [0], Xd, X)
    for b in range(4):
        unpack(b)
        cmul_pack(k, z(b, 0), z(b, 1), wu.q(0), wu.q(1), False, D.q(b), tmp); hook('t')
    stage(C['m2i'], True)
    for b in range(4):
        cmul_pack(k, z(b, 0), z(b, 1), C['twi'].q(0), C['twi'].q(1), False, D.q(b), tmp); hook('t')
    stage(C['m1i'], False)
    k(f"s_sub_u32 {st}, {T['sp']}, 1\ns_or_b32 {st}, {st}, {I['w']}\ns_cmp_lg_u32 {st}, 0")
    with k.skip_if("s_cbranch_scc1"):
        for r in range(4): k(f"v_mov_b32 {z(0,1)[r]}, {X[4+r]}")
    k(f"""v_lshlrev_b32 {ad}, 12, {I['g']}
    v_lshl_add_u32 {ad}, {I['n']}, 4, {ad}
    s_lshl_b32 {st}, {I['w']}, 8
    s_add_u32 {st}, {st}, {lds2}
    v_add_u32 {ad}, {st}, {ad}""")
    for r in range(4):
        for b in range(4): k(f"v_cvt_pk_bf16_f32 {D[4*r+b]}, {z(b,0)[r]}, {z(b,1)[r]}")
        k(f"ds_write_b128 {ad}, {D.q(r)} offset:{1024*r}")
    k(f"""s_lshl_b32 {st}, {I['w']}, 12
    s_add_u32 {st}, {st}, {lds2}
    v_lshl_add_u32 {ad}, {I['l']}, 4, {st}""")
    hook('pre_bar2')
    k("s_waitcnt lgkmcnt(0)\ns_barrier")
    for b in range(4): k(f"ds_read_b128 {D.q(b)}, {ad} offset:{1024*b}")
    hook('post_bar2')
    stage(C['si'], False)
    so = k.s.alloc()
    k(f"""s_mov_b32 {st}, {64*V2_STR}
    v_mul_lo_u32 {ad}, {I['g']}, {st}
    v_lshl_add_u32 {ad}, {I['n']}, 2, {ad}
    s_mul_i32 {so}, {I['w']}, {4*V2_STR}
    s_lshl_b32 {st}, {T['tau']}, 6
    s_add_u32 {so}, {so}, {st}""")
    for b in range(4):
        for r in range(4): k(f"v_cvt_pk_bf16_f32 {D[4*b+r]}, {z(b,0)[r]}, {z(b,1)[r]}")
    k.v.free(acc, tmp, wu, W, L, *C.values()); k.s.free(st)
    return D, ad, so

def v2_store(k, D, ad, so, sv2):
    last = None
    for b in range(4):
        for r in range(4):
            last = k(f"buffer_store_dword {D[4*b+r]}, {ad}, {sv2}, {so} offen {SC}")
            if r < 3: k(f"s_add_u32 {so}, {so}, {16*V2_STR}")
            elif b < 3: k(f"s_sub_u32 {so}, {so}, {47*V2_STR}")
    k.v.free(D, ad); k.s.free(so)
    return last

class B1f(B1):
    FL = ''
    GRP = 0
    def __init__(self, k, I, sx, sb, ldsA, ldsB):
        super().__init__(k, I, sx, sb, ldsA, ldsB)
        for j in range(4):
            k(f"v_add_u32 {self.va[j]}, {self.soA}, {self.va[j]}\nv_add_u32 {self.vb[j]}, {self.soB}, {self.vb[j]}")
        k(f"""s_add_u32 {self.soA}, {I['ca']}, {I['cb'] if I.get('rot1', 1) == 1 else 0}
        s_and_b32 {self.soA}, {self.soA}, {(0, 15, 15, 12)[I.get('rot1', 1)]}
        s_lshl_b32 {self.soA}, {self.soA}, 7""")
        self.tail = None
    def dma(self, s, i):
        k = self.k; j = i & 3; buf = (s % self.NST) * 16384
        if s >= 16:
            if self.tail: self.tail(s - 16, i)
            return
        if i < 4:
            if j == 0: k(f"s_add_u32 m0, {self.mB}, {buf}")
            ins = k(f"buffer_load_dwordx4 {self.vb[j]}, {self.sb}, {self.soA} offen offset:{1024*j} {self.FL} lds")
        else:
            if j == 0: k(f"s_add_u32 m0, {self.mA}, {buf}")
            ins = k(f"buffer_load_dwordx4 {self.va[j]}, {self.sx}, {self.soA} offen offset:{1024*j} {self.FL} lds")
            if j == 3:
                G = self.GRP
                if G and s < 3:
                    k(f"s_add_u32 m0, {self.soA}, 128\ns_and_b32 m0, m0, 0x180\ns_and_b32 {self.soA}, {self.soA}, 0x600\ns_or_b32 {self.soA}, {self.soA}, m0")
                elif G == 1 and s == 3:
                    k(f"s_add_u32 {self.soA}, {self.soA}, 512\ns_and_b32 {self.soA}, {self.soA}, 0x600")
                elif G == 2:
                    k(f"s_add_u32 m0, {self.soA}, 128\ns_and_b32 m0, m0, 0x180\ns_add_u32 {self.soA}, {self.soA}, {512 if s % 4 == 3 else 0}\ns_and_b32 {self.soA}, {self.soA}, 0x600\ns_or_b32 {self.soA}, {self.soA}, m0")
                else: k(f"s_add_u32 {self.soA}, {self.soA}, 128\ns_and_b32 {self.soA}, {self.soA}, 0x7ff")
        self.last[s] = ins
    def alloc(self):
        self.acc = self.k.v.allocq(64, 16); self.fr = self.k.v.allocq(32)
    def main(self, fill=None, pre_bar=None, post_bar=None):
        k = self.k; NS = 16; acc, fr = self.acc, self.fr
        def reads(s, kk):
            f = fr.q((s * 4 + kk) & 1, 16); buf = (s % self.NST) * 16384
            out = []
            for b in range(2):
                out.append(f"ds_read_b128 {f.q(b)}, {self.ra[kk]} offset:{buf + 4096*b}")
                out.append(f"ds_read_b128 {f.q(2+b)}, {self.rb[kk]} offset:{buf + 4096*b}")
            return out
        k.wait(self.last[0]); k("s_barrier")
        lastrd = None
        for r in reads(0, 0): lastrd = k(r)
        for s in range(NS):
            for kk in range(4):
                f = fr.q((s * 4 + kk) & 1, 16)
                rd = []
                if kk < 3: rd = reads(s, kk + 1)
                elif s + 1 < NS:
                    if pre_bar: pre_bar(s)
                    k.wait(lastrd, self.last[s + 1]); k("s_barrier")
                    rd = reads(s + 1, 0)
                ds, di = (s + self.NST, 0) if kk == 3 else (s + self.NST - 1, 2 * (kk + 1))
                dm = [(ds, di), (ds, di + 1)] if ds >= self.NST else []
                for m, (rb, c) in enumerate(((0, 0), (0, 1), (1, 1), (1, 0))):
                    d = acc.q(2 * rb + c, 16)
                    first = s == 0 and kk == 0
                    k(f"v_mfma_f32_32x32x16_bf16 {d}, {f.q(rb)}, {f.q(2+c)}, {0 if first else d}")
                    if m < 2 and rd:
                        k(rd[2 * m]); lastrd = k(rd[2 * m + 1])
                    if m == 1 and kk == 3 and post_bar: post_bar(s)
                    if m >= 2 and dm: self.dma(*dm[m - 2])
                    if fill: fill(s, kk, m)
        k.v.free(fr, self.va, self.vb, self.ra, self.rb); k.s.free(self.soA, self.soB, self.mA, self.mB)
        return acc

def pass2f(k, I, acc, Pm, E1, E, sh):
    for j in range(14, -1, -1):
        cfma(k, E.q(j, 2), Pm['L64'], E.q(j + 1, 2), E.q(j, 2))
    S, T = E.q(0, 2), E.q(1, 2); U, V = E.q(2, 2), E.q(3, 2)
    k(f"""v_mov_b32 {T[0]}, {S[0]}
    v_mov_b32 {T[1]}, {S[1]}
    v_permlane32_swap_b32 {S[0]}, {T[0]}
    v_permlane32_swap_b32 {S[1]}, {T[1]}""")
    cfma(k, S, Pm['L1024'], T, S)
    cfma(k, E1['lo'], Pm['L32'], S, E1['lo'])
    k(f"s_mov_b32 exec_lo, 0\nv_mov_b32 {S[0]}, {E1['lo'][0]}\nv_mov_b32 {S[1]}, {E1['lo'][1]}\ns_mov_b64 exec, -1")
    e0 = (E1['er'][0], E1['ei'][0])
    cfma(k, e0, Pm['L16'], S, e0)
    cf = Pm['coef']
    for h, x in ((0, S), (1, e0)):
        k(f"""v_mul_f32 {U[h]}, {cf[0]}, {x[0]}
        v_mul_f32 {V[h]}, {cf[0]}, {x[1]}
        v_fma_f32 {U[h]}, -{cf[1]}, {x[1]}, {U[h]}
        v_fma_f32 {V[h]}, {cf[1]}, {x[0]}, {V[h]}""")
    va, so = E1['hva'], E1['hso']
    L = Pm['L1']; cr, ci = U, V
    O = E[8:32]
    pend = []; last = None
    def flush():
        nonlocal last
        q, o = pend.pop(0)
        k(f"""v_permlane32_swap_b32 {o[0]}, {o[1]}
        v_permlane32_swap_b32 {o[2]}, {o[3]}
        v_permlane16_swap_b32 {o[0]}, {o[2]}
        v_permlane16_swap_b32 {o[1]}, {o[3]}""")
        last = k(f"buffer_store_dwordx4 {o}, {va}, {sh}, {so} offen {SC}")
        if q < 7: k(f"s_add_u32 {so}, {so}, {2*32*16384}")
    for j in range(16):
        nr, ni = upair(acc, j, 0), upair(acc, j, 1)
        k(f"""v_pk_fma_f32 {nr}, {L}, {cr}, {nr}{BC0}
        v_pk_fma_f32 {ni}, {L}, {ci}, {ni}{BC0}
        v_pk_fma_f32 {nr}, {L}, {ci}, {nr}{BC1}{NEG0}
        v_pk_fma_f32 {ni}, {L}, {cr}, {ni}{BC1}""")
        cr, ci = nr, ni
        if pend: flush()
        o = O.q((j // 2) % 6)
        h = 2 * (j & 1)
        k(f"v_cvt_pk_bf16_f32 {o[h]}, {nr[0]}, {nr[1]}\nv_cvt_pk_bf16_f32 {o[h+1]}, -{ni[0]}, -{ni[1]}")
        if j & 1: pend.append((j // 2, o))
    flush()
    k.v.free(va, E, acc, E1['er'], E1['ei'], E1['lo'], *Pm.values()); k.s.free(so)
    return last

def hstore_addr(k, I, E1):
    va = k.v.alloc(); t = k.v.alloc(); so = k.s.alloc(); st = k.s.alloc(); s2_ = k.s.alloc()
    k(f"""s_lshl_b32 {st}, {I['ca']}, 1
    s_lshr_b32 {s2_}, {I['w']}, 1
    s_add_u32 {st}, {st}, {s2_}
    s_lshl_b32 {so}, {st}, 9
    s_and_b32 {st}, {st}, 3
    s_lshl_b32 {st}, {st}, 2
    v_xor_b32 {va}, {st}, {I['n']}
    v_lshlrev_b32 {va}, 4, {va}
    v_lshrrev_b32 {t}, 1, {I['g']}
    v_lshl_or_b32 {va}, {t}, 14, {va}
    v_and_b32 {t}, 1, {I['g']}
    v_lshl_or_b32 {va}, {t}, 19, {va}
    s_and_b32 {s2_}, {I['w']}, 1
    s_lshl_b32 {s2_}, {s2_}, 8
    s_add_u32 {so}, {so}, {s2_}
    s_lshl_b32 {s2_}, {I['cb']}, 15
    s_add_u32 {so}, {so}, {s2_}""")
    k.v.free(t); k.s.free(st, s2_)
    E1['hva'], E1['hso'] = va, so

class CLoad:
    def __init__(self, k, I, sc, CA=None):
        self.k, self.sc = k, sc
        self.C = CA or k.a.alloc(256); self.va = k.v.alloc(4); self.ra = k.v.alloc(4); self.so = k.s.alloc(); self.mw = k.s.alloc()
        t = k.v.alloc(2); st = k.s.alloc(); l = I['l']
        k(f"""v_and_b32 {t[0]}, 7, {l}
        v_xor_b32 {t[0]}, {t[0]}, {I['g']}
        v_and_b32 {t[1]}, 4, {t[0]}
        v_lshlrev_b32 {self.va[0]}, 4, {t[1]}
        v_and_b32 {t[1]}, 1, {t[0]}
        v_lshl_or_b32 {self.va[0]}, {t[1]}, 5, {self.va[0]}
        v_bfe_u32 {t[1]}, {t[0]}, 1, 1
        v_lshl_or_b32 {self.va[0]}, {t[1]}, 4, {self.va[0]}
        v_lshrrev_b32 {t[1]}, 3, {l}
        v_lshl_or_b32 {self.va[0]}, {t[1]}, 11, {self.va[0]}
        s_lshr_b32 {st}, {I['w']}, 1
        s_lshl_b32 {st}, {st}, 20
        s_lshl_b32 {self.so}, {I['tb']}, 15
        s_add_u32 {st}, {st}, {self.so}
        v_add_u32 {self.va[0]}, {st}, {self.va[0]}
        v_xor_b32 {self.va[1]}, 64, {self.va[0]}
        v_add_u32 {self.va[1]}, {16384-1024}, {self.va[1]}
        v_add_u32 {self.va[2]}, {(1<<19)-2048}, {self.va[0]}
        v_add_u32 {self.va[3]}, {(1<<19)-2048}, {self.va[1]}
        s_lshl_b32 {self.so}, {I.get('rc', I['ta'])}, 7
        s_lshl_b32 {self.mw}, {I['w']}, 12
        v_lshrrev_b32 {t[0]}, 1, {I['n']}
        v_xor_b32 {t[0]}, {t[0]}, {I['g']}
        v_lshlrev_b32 {t[0]}, 4, {t[0]}
        v_lshl_or_b32 {t[0]}, {I['n']}, 7, {t[0]}
        v_add_u32 {self.ra[0]}, {self.mw}, {t[0]}
        v_xor_b32 {self.ra[1]}, 64, {self.ra[0]}
        v_add_u32 {self.ra[2]}, 0x10000, {self.ra[0]}
        v_add_u32 {self.ra[3]}, 0x10000, {self.ra[1]}""")
        k.v.free(t); k.s.free(st)
        self.n = 0; self.slot = {}; self.ld = {}; self.rd = {}; self.nd = 0
    def frag(self, j, kk, mm): return self.C.q(4 * j + 2 * mm + kk)
    def issue1(self, slot):
        k = self.k; j, q = self.n >> 2, self.n & 3
        if q == 0:
            if slot in self.rd: k.wait(self.rd.pop(slot))
            self.slot[j] = slot
            k(f"s_add_u32 m0, {self.mw}, {slot}")
        self.ld[j] = k(f"buffer_load_dwordx4 {self.va[q]}, {self.sc}, {self.so} offen offset:{1024*q} lds")
        if q == 3: k(f"s_add_u32 {self.so}, {self.so}, 128\ns_and_b32 {self.so}, {self.so}, 0x7ff")
        self.n += 1
        if self.n == 64: k.v.free(self.va); k.s.free(self.so, self.mw)
    def issue(self, slot):
        for _ in range(4): self.issue1(slot)
    def drain(self):
        k = self.k; j = self.nd; slot = self.slot[j]; hi = 2 if slot >= 65536 else 0
        assert self.n >= 4 * (j + 1)
        if slot >= 65536 and (slot >= 131072) != bool(getattr(self, 'bumped', False)):
            k(f"v_xor_b32 {self.ra[2]}, 0x30000, {self.ra[2]}\nv_xor_b32 {self.ra[3]}, 0x30000, {self.ra[3]}"); self.bumped = slot >= 131072
        k.wait(self.ld[j])
        for mm in range(2):
            for kk in range(2):
                self.rd[slot] = k(f"ds_read_b128 {self.frag(j,kk,mm)}, {self.ra[hi+kk]} offset:{(slot & 65535) + 2048*mm}")
        self.nd += 1
        if self.nd == 16: k.v.free(self.ra)
        return slot

def gen_Gf(k, I):
    G = k.v.allocq(64)
    f, b, sb, a, c, s, mk = [k.v.alloc() for _ in range(7)]
    st = k.s.alloc()
    k(f"""v_lshrrev_b32 {a}, 1, {I['g']}
    v_lshlrev_b32 {a}, 3, {a}
    v_and_b32 {c}, 1, {I['g']}
    v_lshl_add_u32 {a}, {c}, 1, {a}
    v_cvt_f32_u32 {sb}, {a}
    v_mul_u32_u24 {mk}, 0x8000, {c}
    v_lshl_or_b32 {mk}, {mk}, 16, {mk}""")
    for ib in range(2):
        k(f"""s_and_b32 {st}, {I['w']}, 1
        s_lshl_b32 {st}, {st}, 6
        s_add_u32 {st}, {st}, {16*ib}
        v_add_u32 {a}, {st}, {I['n']}
        v_cvt_f32_u32 {f}, {a}
        v_mul_f32 {f}, {fl(1/128)}, {f}
        v_mul_f32 {b}, {f}, {sb}""")
        for kap in range(4):
            for d in range(4):
                sl = 16 * kap + 4 * (d >> 1) + (d & 1)
                g0, g2 = G[16 * ib + 4 * kap + d], G[16 * (ib + 2) + 4 * kap + d]
                k(f"""v_fmamk_f32 {a}, {f}, {fl(float(sl))}, {b}
                v_cos_f32 {c}, {a}
                v_sin_f32 {s}, {a}
                v_cvt_pk_bf16_f32 {g0}, {c}, -{s}""")
                if d & 1: k(f"v_cvt_pk_bf16_f32 {g2}, -{s}, -{c}\nv_xor_b32 {g2}, {mk}, {g2}")
                else: k(f"v_xor_b32 {g2}, {mk}, {g0}")
    k(f"""v_lshlrev_b32 {c}, 31, {I['n']}
    v_or_b32 {c}, 0x3f003f00, {c}
    v_cmp_eq_u32 vcc, 0, {I['g']}""")
    for ib in range(4): k(f"v_cndmask_b32 {G[16*ib]}, {G[16*ib]}, {c}, vcc")
    k.v.free(f, b, sb, a, c, s, mk); k.s.free(st)
    return G

class B3f:
    NST = 4
    D = 3
    def __init__(self, k, I, sh, CL):
        self.k, self.I, self.sh, self.CL = k, I, sh, CL
        self.vh = k.v.alloc(2); self.rh = k.v.alloc(4)
        self.so, self.mH = k.s.alloc(), k.s.alloc()
        t = k.v.alloc(2); st = k.s.alloc(); l = I['l']
        k(f"""s_lshr_b32 {st}, {I['w']}, 1
        s_xor_b32 {st}, {st}, {I['w']}
        s_lshl_b32 {st}, {st}, 13
        s_lshl_b32 {self.so}, {I['ta']}, 19
        s_add_u32 {st}, {st}, {self.so}
        v_lshl_add_u32 {self.vh[0]}, {l}, 4, {st}
        v_add_u32 {self.vh[1]}, 4096, {self.vh[0]}
        s_lshl_b32 {self.so}, {I.get('rc', I['ta'])}, 15
        s_lshl_b32 {self.mH}, {I['w']}, 13""")
        k(f"""v_and_b32 {t[0]}, 3, {l}
        v_and_b32 {t[1]}, 2, {I['g']}
        v_xor_b32 {t[1]}, {t[1]}, {t[0]}
        v_lshlrev_b32 {t[0]}, 9, {t[0]}
        v_lshl_or_b32 {t[0]}, {t[1]}, 6, {t[0]}
        v_bfe_u32 {t[1]}, {l}, 2, 2
        v_lshl_or_b32 {t[0]}, {t[1]}, 4, {t[0]}
        v_and_b32 {t[1]}, 1, {I['g']}
        v_lshl_or_b32 {t[0]}, {t[1]}, 3, {t[0]}
        s_and_b32 {st}, {I['w']}, 1
        s_lshl_b32 {st}, {st}, 14
        v_add_u32 {self.rh[0]}, {st}, {t[0]}
        v_xor_b32 {self.rh[1]}, 64, {self.rh[0]}
        v_add_u32 {self.rh[2]}, 0x10000, {self.rh[0]}
        v_add_u32 {self.rh[3]}, 0x10000, {self.rh[1]}""")
        k.v.free(t); k.s.free(st)
        self.last = {}; self.tail = None
    def dma(self, s, i):
        k = self.k
        if s >= 16:
            if self.tail: self.tail(s - 16, i)
            return
        if i & 3 == 0: k(f"s_add_u32 m0, {self.mH}, {(s % self.NST)*32768 + (i>>2)*4096}")
        self.last[s] = k(f"buffer_load_dwordx4 {self.vh[i>>2]}, {self.sh}, {self.so} offen offset:{1024*(i&3)} {SC} lds")
        if i == 7: k(f"s_add_u32 {self.so}, {self.so}, 32768\ns_and_b32 {self.so}, {self.so}, 0x7ffff")
    def prefill(self, steps):
        for s in steps:
            for i in range(8): self.dma(s, i)
    def alloc(self):
        self.acc = self.k.v.allocq(64); self.fr = self.k.v.allocq(64)
    def main(self, fill=None, pre_bar=None, post_bar=None):
        k = self.k; NS = 16; acc, fr = self.acc, self.fr
        def reads(s, kk):
            f = fr.q(kk, 32); out = []
            for ib in range(8):
                off = (s % self.NST) * 32768 + ib * 2048 + kk * 256; hi = 2 if off >= 65536 else 0
                for h in range(2):
                    out.append(f"ds_read_b64_tr_b16 {f[4*ib+2*h:4*ib+2*h+2]}, {self.rh[hi+h]} offset:{off & 65535}")
            return out
        if pre_bar: pre_bar(-1)
        k.wait(self.last[0]); k("s_barrier")
        lastrd = None
        for r in reads(0, 0): lastrd = k(r)
        if post_bar: post_bar(-1)
        for s in range(NS):
            for kk in range(2):
                f = fr.q(kk, 32); rd = []
                if kk == 0: rd = reads(s, 1)
                elif s + 1 < NS:
                    if pre_bar: pre_bar(s)
                    k.wait(lastrd, self.last[s + 1]); k("s_barrier")
                    rd = reads(s + 1, 0)
                dm = [(s + self.D, 4 * kk + x) for x in range(4)]
                for q in range(16):
                    ib, mm = q >> 1, q & 1
                    d = acc.q(8 * mm + ib)
                    zero = s == 0 and kk == 0 and ib >= 4
                    k(f"v_mfma_f32_16x16x32_bf16 {d}, {f.q(ib)}, {self.CL.frag(s,kk,mm)}, {0 if zero else d}")
                    if rd and q < 8:
                        k(rd[2 * q]); lastrd = k(rd[2 * q + 1])
                    if dm and q >= 8 and q % 2 == 0: self.dma(*dm[(q - 8) // 2])
                    if q == 9 and kk == 1 and post_bar: post_bar(s)
                    if fill: fill(s, kk, q)
        k.v.free(fr, self.vh, self.rh); k.s.free(self.so, self.mH)
        return acc

def epi_issue_f(k, I, sg, sd):
    E = dict(g=k.v.allocq(16), d=k.v.alloc(2))
    va = k.v.alloc(); so = k.s.alloc(); st = k.s.alloc()
    k(f"""v_lshlrev_b32 {va}, 4, {I['g']}
    s_lshl_b32 {so}, {I['ta']}, 9
    s_and_b32 {st}, {I['w']}, 1
    s_lshl_b32 {st}, {st}, 8
    s_add_u32 {so}, {so}, {st}""")
    for ib in range(4): k(f"buffer_load_dwordx4 {E['g'].q(ib)}, {va}, {sg}, {so} offen offset:{64*ib} {SC}")
    k(f"""v_lshlrev_b32 {va}, 1, {I['n']}
    s_lshl_b32 {so}, {I['tb']}, 5
    s_lshr_b32 {st}, {I['w']}, 1
    s_lshl_b32 {st}, {st}, 10
    s_add_u32 {so}, {so}, {st}""")
    for mm in range(2): k(f"buffer_load_ushort {E['d'][mm]}, {va}, {sd}, {so} offen offset:{512*mm}")
    k.v.free(va); k.s.free(so, st)
    return E

def xd_init(k, I, E, acc, ldsX):
    ad = k.v.alloc(2); t = k.v.alloc(2); st = k.s.alloc()
    k(f"""s_and_b32 {st}, {I['w']}, 1
    s_lshl_b32 {st}, {st}, 13
    s_add_u32 {st}, {st}, {ldsX}
    v_lshrrev_b32 {t[0]}, 2, {I['l']}
    v_lshlrev_b32 {t[0]}, 7, {t[0]}
    v_and_b32 {t[1]}, 3, {I['l']}
    v_lshl_or_b32 {t[0]}, {t[1]}, 3, {t[0]}
    v_add_u32 {t[0]}, {st}, {t[0]}
    v_bfe_u32 {t[1]}, {I['l']}, 3, 2
    s_and_b32 {st}, {I['w']}, 2
    v_xor_b32 {t[1]}, {st}, {t[1]}
    v_lshl_add_u32 {ad[0]}, {t[1]}, 5, {t[0]}
    v_xor_b32 {ad[1]}, 32, {ad[0]}""")
    for mm in range(2):
        for ib in range(4): k(f"ds_read_b64_tr_b16 {acc.q(8*mm+ib)[2:4]}, {ad[mm]} offset:{2048*ib}")
    Dk = E['d']
    k(f"v_lshlrev_b32 {Dk[0]}, 16, {Dk[0]}\nv_lshlrev_b32 {Dk[1]}, 16, {Dk[1]}")
    for mm in range(2):
        sel = f" op_sel:[{mm},0] op_sel_hi:[{mm},1]"
        for ib in range(4):
            a = acc.q(8 * mm + ib)
            k(f"""v_lshlrev_b32 {a[0]}, 16, {a[2]}
            v_and_b32 {a[1]}, 0xffff0000, {a[2]}
            v_lshlrev_b32 {a[2]}, 16, {a[3]}
            v_and_b32 {a[3]}, 0xffff0000, {a[3]}
            v_pk_mul_f32 {a[0:2]}, {Dk}, {a[0:2]}{sel}
            v_pk_mul_f32 {a[2:4]}, {Dk}, {a[2:4]}{sel}""")
    k.v.free(ad, t, Dk); k.s.free(st)

def final(k, I, E, acc, G, L, ldsX, ldsY, so_, pf):
    ad = k.v.alloc(); t = k.v.alloc(); st = k.s.alloc()
    k(f"s_lshl_b32 {st}, {I['w']}, 13\ns_add_u32 {st}, {st}, {ldsX}\nv_lshl_add_u32 {ad}, {I['l']}, 4, {st}")
    for mm in range(2):
        for ib in range(4): k(f"ds_write_b128 {ad}, {acc.q(8*mm+4+ib)} offset:{1024*(4*mm+ib)}")
    y_stage(k, I, L, ldsY)
    R_ = k.v.allocq(32); Y = k.v.allocq(32); ay = k.v.alloc()
    k(f"""v_xor_b32 {ad}, 0x2000, {ad}
    v_lshrrev_b32 {ay}, 5, {I['l']}
    v_lshlrev_b32 {ay}, 9, {ay}
    v_bfe_u32 {t}, {I['l']}, 3, 2
    v_lshl_or_b32 {ay}, {t}, 6, {ay}
    v_and_b32 {t}, 3, {I['l']}
    v_lshl_or_b32 {ay}, {t}, 4, {ay}
    v_bfe_u32 {t}, {I['l']}, 2, 1
    v_lshl_or_b32 {ay}, {t}, 3, {ay}
    s_lshr_b32 {st}, {I['w']}, 1
    s_lshl_b32 {st}, {st}, 13
    s_add_u32 {st}, {st}, {ldsY}
    v_add_u32 {ay}, {st}, {ay}
    s_waitcnt lgkmcnt(0)
    s_barrier""")
    pf("xbar")
    for mm in range(2):
        for kap in range(4):
            for h in range(2):
                o = 16 * mm + 4 * kap + 2 * h
                k(f"ds_read_b64_tr_b16 {Y[o:o+2]}, {ay} offset:{4096*mm + 1024*kap + 256*h}")
    for ib in range(4):
        for mm in range(2): k(f"ds_read_b128 {R_.q(4*mm+ib)}, {ad} offset:{1024*(4*mm+ib)}")
    va = k.v.alloc(); so = k.s.alloc(); om = k.v.alloc(4)
    k(f"""v_lshlrev_b32 {va}, 18, {I['g']}
    v_lshl_or_b32 {va}, {I['n']}, 2, {va}
    s_and_b32 {so}, {I['w']}, 1
    s_lshl_b32 {so}, {so}, 22
    s_lshl_b32 {st}, {I['ta']}, 12
    s_add_u32 {so}, {so}, {st}
    s_lshl_b32 {st}, {I['tb']}, 6
    s_add_u32 {so}, {so}, {st}
    s_lshr_b32 {st}, {I['w']}, 1
    s_lshl_b32 {st}, {st}, 11
    s_add_u32 {so}, {so}, {st}""")
    def mf(ib):
        for kap in range(4):
            for mm in range(2):
                d = acc.q(8 * mm + 4 + ib)
                k(f"v_mfma_f32_16x16x32_bf16 {d}, {G.q(4*ib+kap)}, {Y.q(4*mm+kap)}, {d if kap else 0}")
    def fin(ib):
        g = E['g'].q(ib)
        for h in (0, 2):
            k(f"""v_sub_f32 {om[h]}, 1.0, {g[h]}
            v_sub_f32 {om[h+1]}, 1.0, {g[h+1]}
            v_cvt_pk_bf16_f32 {om[h+1]}, {om[h]}, {om[h+1]}
            v_lshlrev_b32 {om[h]}, 16, {om[h+1]}
            v_and_b32 {om[h+1]}, 0xffff0000, {om[h+1]}""")
        for mm in range(2):
            b = acc.q(8 * mm + ib); r = R_.q(4 * mm + ib)
            for h in (0, 2):
                k(f"v_pk_add_f32 {b[h:h+2]}, {b[h:h+2]}, {r[h:h+2]}\nv_pk_mul_f32 {b[h:h+2]}, {om[h:h+2]}, {b[h:h+2]}")
        for mm in range(2):
            b = acc.q(8 * mm + ib); a = acc.q(8 * mm + 4 + ib)
            for h in (0, 2):
                k(f"v_pk_fma_f32 {b[h:h+2]}, {g[h:h+2]}, {a[h:h+2]}, {b[h:h+2]}")
        for r in range(4):
            for mm in range(2):
                k(f"buffer_store_dword {acc.q(8*mm+ib)[r]}, {va}, {so_}, {so} offen offset:{1024*mm} {OUTF}")
            if (ib, r) != (3, 3): k(f"s_add_u32 {so}, {so}, {(1<<16) if r < 3 else (1<<20) - 3*(1<<16)}")
    mf(0)
    for ib in range(4):
        if ib < 3: mf(ib + 1)
        fin(ib)

def build(opt={}):
    O = dict(order="XWS", npre=2, sig=6, wnt=0, v2late=1, cpf=1)
    O.update(opt)
    k = Kernel(NAME + "_kernel", nv=256, na=256)
    LX = 131072; LT2 = LX + 16384; LDS = LT2 + 16384; LT1 = 114688
    k("s_cmp_ge_u32 s2, 256")
    k(f"s_cbranch_scc1 {k.name}_end")
    KP = k.s.alloc(32, 4)
    k(f"s_load_dwordx16 {KP[0:16]}, s[0:1], 0\ns_load_dwordx16 {KP[16:32]}, s[0:1], 64")
    P = {n: KP[o // 4:o // 4 + 2] for n, o in KA.items()}
    cva = code_prefetch(k, 0, 40960); cd = k.v.alloc()
    I = ids(k)
    if O['cpf']:
        k(f"s_cmp_lg_u32 {I['w']}, 0")
        with k.skip_if("s_cbranch_scc1"):
            k(f"global_load_dword {cd}, {cva}, off")
    k.v.free(cva)
    pf = Prof(k, 0)
    sx = srd(k, P['x'], SZ['x'])
    if O.get('lat'):
        nm = O['lat']; sl = srd(k, P[nm], 1 << 21); tv = k.v.alloc(2)
        k(f"v_mov_b32 {tv[0]}, s2\nv_lshlrev_b32 {tv[0]}, 13, {tv[0]}\ns_waitcnt vmcnt(0)")
        pf("l0")
        k(f"buffer_load_dword {tv[1]}, {tv[0]}, {sl}, 0 offen\ns_waitcnt vmcnt(0)")
        pf("l1")
        for q in range(1, 9): k(f"buffer_load_dword {tv[1]}, {tv[0]}, {sl}, 0 offen offset:{256*q}\ns_waitcnt vmcnt(0)")
        pf("l2")
        k.s.free(sl); k.v.free(tv)
    sf = srd(k, P['ws'], 3 * 32768, WS_F)
    sdbg = srd(k, P['dbg'], 256)
    FB, FH, FV = k.s.alloc(), k.s.alloc(), k.s.alloc()
    one = k.v.alloc(); zero = k.v.alloc(); vp = k.v.alloc(); vflag = k.v.alloc()
    k(f"""s_mov_b32 {FB}, 0
    s_mov_b32 {FH}, 32768
    s_lshl_b32 {FV}, s2, 7
    v_mov_b32 {vflag}, {FV}
    s_mov_b32 {FV}, 65536
    v_mov_b32 {one}, 1
    v_mov_b32 {zero}, 0
    v_lshlrev_b32 {vp}, 7, v0
    s_cmp_lg_u32 s2, 0""")
    with k.skip_if("s_cbranch_scc1"):
        clrB = k(f"buffer_store_dword {zero}, {vp}, {sf}, 0 offen {SC}")
    ldx = xtile_issue(k, I, sx, LX)
    sb = srd_sel(k, I, P['bre'], P['bim'], SZ['bre'])
    g1 = B1f(k, I, sx, sb, 0, 65536)
    F = gen_F(k, I)
    pf("F")
    H = {}
    def issueW():
        swr = srd(k, P['wr'], SZ['wr']); swi = srd(k, P['wi'], SZ['wi'])
        H['Wp'] = wpre_issue(k, I, swr, swi, False, "nt" if O['wnt'] else "")
        k(f"s_cmp_lg_u32 {I['slot']}, 0")
        with k.skip_if("s_cbranch_scc1"):
            H['Wp2'] = wpre_issue(k, I, swr, swi, True, "")
        k.s.free(swr, swi)
    def issueG():
        sgw = srd(k, P['gw'], SZ['gw'])
        H['Gt'] = gate_issue(k, I, sx, sgw)
        k.s.free(sgw)
    issueG()
    if O['order'] == "XWS": issueW()
    t4 = [srd(k, P[n], 2048) for n in ('lre', 'lim', 'ldt')]
    Q = ssm_param_issue(k, I, *t4); k.s.free(*t4)
    g1.prefill([0])
    if O['order'] == "XSW": issueW()
    pf("iss0")
    sv1 = srd(k, P['ws'], 256 * V1_STR, WS_V1)
    dq = [(s, i) for s in range(1, O['npre']) for i in range(8)]
    def hook1(name):
        if name == 'bar':
            k.wait(ldx); k("s_barrier"); pf("xt")
            k(f"s_or_b32 m0, {I['w']}, s2\ns_cmp_lg_u32 m0, 0")
            with k.skip_if("s_cbranch_scc1"):
                k(f"s_mov_b64 exec, 1\nbuffer_store_dword {one}, {zero}, {sdbg}, 0 offen {SC}\ns_mov_b64 exec, -1")
        elif dq: g1.dma(*dq.pop(0))
    O1 = ph1f(k, I, F, LX, sv1, hook1)
    k.v.free(F)
    while dq: g1.dma(*dq.pop(0))
    pf("ph1")
    sw = srd(k, P['ws'], 256 * 16384 + 2048, WS_W)
    sg = srd(k, P['ws'], 8192, WS_G)
    st = k.s.alloc()
    k(f"s_lshl_b32 {st}, {I['tb']}, 14")
    se = srd(k, P['ws'], 16384, WS_E, st)
    ph1_store(k, *O1, sv1)
    t = k.v.alloc(2)
    k(f"""s_lshl_b32 {st}, {I['ta']}, 10
    s_sub_u32 {st}, {30*512}, {st}
    v_lshl_add_u32 {t[0]}, v0, 2, {st}
    v_mov_b32 {t[1]}, -1
    buffer_store_dword {t[1]}, {t[0]}, {se}, 0 offen {SC}""")
    wave0_store(k, I, f"buffer_store_dword {zero}, {vflag}, {sf}, {FH} offen {SC}\nbuffer_store_dword {zero}, {vflag}, {sf}, {FV} offen {SC}")
    k.v.free(t); k.s.free(st)
    gate_compute(k, I, H['Gt'], sg, SC)
    k(f"s_cmp_lg_u32 {I['slot']}, 0")
    with k.skip_if("s_cbranch_scc1"):
        wpre_compute(k, I, H['Wp2'], sw)
    lastw = wpre_compute(k, I, H['Wp'], sw)
    pf("st")
    g1.prefill(range(O['npre'], 4))
    g1.alloc()
    sc = srd_sel(k, I, P['cre'], P['cim'], SZ['cre'])
    with k.capture() as fl1:
        Pm = ssm_param_compute(k, Q)
        CL = CLoad(k, I, sc)
        T = ph2_params(k, I)
        C2 = ph2_consts(k, I, T, 2.0 ** -20)
    p0 = Poll(k, sdbg, zero, 1, 1)
    p1 = Poll(k, sf, vp, 1, 1, FB)
    pf("pre")
    def pre_bar(s):
        if s == O['sig']: k.wait(lastw)
    def post_bar(s):
        if s == O['sig'] - 3: p0.issue()
        if s == O['sig']:
            fl1.emit_until_safe()
            p0.finish()
            wave0_store(k, I, f"buffer_store_dword {one}, {vflag}, {sf}, {FB} offen {SC}")
    def tail(s, i):
        if s == 0 and i == 0: p1.issue()
        if s < 3: CL.issue1((65536 if i >= 4 else 0) + s * 16384)
    g1.tail = tail
    def fill1(s, kk, m):
        fl1.emit(3)
        if s == 11 and kk == 3 and m == 3: fl1.flush()
        if kk == 3 and m == 0 and s % 4 == 3: pf(f"a{s}")
    acc = g1.main(fill1, pre_bar, post_bar)
    pf("main1")
    k.s.free(sx, sb, sdbg)
    E1 = scan_pass1(k, I, acc, Pm, se)
    p1.finish()
    k("s_barrier")
    pf("pass1")
    L1 = v1_issue(k, I, T, sv1, SC)
    W2 = w2_issue(k, I, T, sw)
    k.s.free(sv1, sw)
    CL.issue(49152)
    free = [CL.drain() for _ in range(6)]
    CL.issue(free.pop(0)); CL.issue(free.pop(0))
    scan_coef(k, acc, Pm)
    hstore_addr(k, I, E1)
    pf("coef")
    E = lookback(k, I, E1, se)
    pf("lb")
    sh = srd(k, P['ws'], 8 << 20, WS_H)
    lasth = pass2f(k, I, acc, Pm, E1, E, sh)
    for _ in range(3): free.append(CL.drain())
    pf("pass2")
    sv2 = srd(k, P['ws'], 256 * V2_STR, WS_V2)
    state = dict(go=False, cur=None)
    p3 = Poll(k, sf, vp, 1, 1, FH)
    def hook(name):
        if name == 'pre_bar1': k.wait(lasth)
        if name == 'post_bar1':
            wave0_store(k, I, f"buffer_store_dword {one}, {vflag}, {sf}, {FH} offen {SC}")
            pf("hflag"); state['go'] = True
        if name == 't' and state['go'] and CL.n < 64:
            for _ in range(2):
                if CL.n & 3 == 0: state['cur'] = free.pop(0)
                CL.issue1(state['cur'])
        if name == 'pre_bar2': p3.issue()
        if name == 'post_bar2':
            while CL.nd < 16: CL.drain()
    V2 = ph2f(k, I, T, C2, W2, L1, LT1, LT2, sv2, hook)
    hold = {}
    if not O['v2late']: hold['v2'] = v2_store(k, *V2, sv2)
    pf("ph2")
    g3 = B3f(k, I, sh, CL)
    p3.finish()
    k("s_waitcnt lgkmcnt(0)\ns_barrier")
    pf("sync3")
    g3.prefill(range(2))
    sd = srd(k, P['dsk'], 2048)
    Ep = epi_issue_f(k, I, sg, sd); k.s.free(sd)
    G = gen_Gf(k, I)
    g3.prefill([2])
    if O['v2late']: hold['v2'] = v2_store(k, *V2, sv2)
    g3.alloc()
    xd_init(k, I, Ep, g3.acc, LX)
    pf("pref")
    p4 = Poll(k, sf, vp, 1, 1, FV)
    def pre_bar3(s):
        if s == 3: k.wait(hold['v2'])
        if s == 12: p4.finish()
    def post_bar3(s):
        if s == 3: wave0_store(k, I, f"buffer_store_dword {one}, {vflag}, {sf}, {FV} offen {SC}")
        if s == 10: p4.issue()
    def tail3(s, i):
        if s == 0 and i == 0: hold['L'] = v2_issue(k, I, sv2, SC)
    g3.tail = tail3
    acc = g3.main(lambda s, kk, q: pf(f"b{s}") if (kk == 1 and q == 0 and s % 4 == 3) else None, pre_bar3, post_bar3)
    pf("main3")
    so = srd(k, P['out'], SZ['out'])
    final(k, I, Ep, acc, G, hold['L'], 0, 32768, so, pf)
    pf("epi")
    pf.done()
    end(k)
    return k, LDS

def write(path, opt={}):
    k, lds = build(opt)
    open(path, "w").write(module(header(), [(k.name, 256, 256, lds)], [k]))
    print(path, k.stats)
    if PROF: json.dump([k.profnames], open(path[:-2] + ".json", "w"))

if __name__ == "__main__":
    opt = {}
    for a in sys.argv[2:]:
        n, v = a.split("="); opt[n] = int(v) if v.lstrip('-').isdigit() else v
    write(sys.argv[1] if len(sys.argv) > 1 else "outf.s", opt)
```

```python
from fused import *

def gen_F2(k, I):
    F = k.v.allocq(32); a = k.v.allocq(8); c = k.v.allocq(8); fr, ib, m1, m2, m3 = [k.v.alloc() for _ in range(5)]
    st = k.s.alloc(); odd = k.s.alloc(2)
    R_ = lambda kap, d: F[4 * kap + d]; M_ = lambda kap, d: F[16 + 4 * kap + d]
    k(f"""s_lshl_b32 {st}, {I['w']}, 4
    v_add_u32 {m3}, {st}, {I['n']}
    v_cvt_f32_u32 {fr}, {m3}
    v_mul_f32 {fr}, {fl(1/128)}, {fr}
    v_lshrrev_b32 {m1}, 1, {I['g']}
    v_lshlrev_b32 {m1}, 4, {m1}
    v_and_b32 {m2}, 1, {I['g']}
    v_lshl_add_u32 {m1}, {m2}, 2, {m1}
    v_cvt_f32_u32 {ib}, {m1}
    v_mul_f32 {ib}, {ib}, {fr}
    v_cmp_eq_u32 vcc, 0, {m3}""")
    for j in range(8): k(f"v_fmamk_f32 {a[j]}, {fr}, {fl(float(8*(j>>2) + (j&3)))}, {ib}")
    for j in range(8): k(f"v_cos_f32 {c[j]}, {a[j]}")
    for j in range(8): k(f"v_sin_f32 {a[j]}, {a[j]}")
    k(f"""v_mov_b32 {ib}, 0x80008000
    v_bfe_i32 {m2}, {I['n']}, 0, 1
    v_bfe_i32 {m1}, {I['n']}, 1, 1
    v_cmp_ne_u32 {odd}, 0, {m2}
    v_and_b32 {m2}, {ib}, {m2}
    v_and_b32 {m1}, {ib}, {m1}
    v_xor_b32 {m3}, {m1}, {m2}
    v_mov_b32 {fr}, 0xbf803f80""")
    for d in range(4):
        k(f"v_cvt_pk_bf16_f32 {R_(0,d)}, {c[2*d]}, {c[2*d+1]}\nv_cvt_pk_bf16_f32 {M_(0,d)}, -{a[2*d]}, -{a[2*d+1]}")
        k(f"v_cndmask_b32 {M_(0,d)}, {M_(0,d)}, {fr}, vcc")
    for d in range(4):
        k(f"""v_cndmask_b32 {R_(1,d)}, {R_(0,d)}, {M_(0,d)}, {odd}
        v_cndmask_b32 {M_(1,d)}, {M_(0,d)}, {R_(0,d)}, {odd}
        v_xor_b32 {R_(2,d)}, {m2}, {R_(0,d)}
        v_xor_b32 {M_(2,d)}, {m2}, {M_(0,d)}
        v_xor_b32 {R_(3,d)}, {m3}, {R_(1,d)}
        v_xor_b32 {M_(3,d)}, {m1}, {M_(1,d)}
        v_xor_b32 {R_(1,d)}, {m1}, {R_(1,d)}
        v_xor_b32 {M_(1,d)}, {m3}, {M_(1,d)}""")
    k.v.free(a, c, fr, ib, m1, m2, m3); k.s.free(st, odd)
    return F

def gen_G1b(k, I):
    G = k.v.allocq(32); a = k.v.allocq(8); c = k.v.allocq(8)
    f, b, sb, sel, mk = [k.v.alloc() for _ in range(5)]
    st = k.s.alloc()
    k(f"""v_lshrrev_b32 {f}, 1, {I['g']}
    v_lshlrev_b32 {f}, 3, {f}
    v_and_b32 {b}, 1, {I['g']}
    v_lshl_add_u32 {f}, {b}, 1, {f}
    v_cvt_f32_u32 {sb}, {f}
    v_bfe_i32 {f}, {I['n']}, 0, 1
    v_and_b32 {sel}, 0x02020202, {f}
    v_xor_b32 {sel}, 0x03020100, {sel}
    v_and_b32 {f}, 0x80000000, {f}
    v_bfe_i32 {mk}, {I['n']}, 1, 1
    v_and_b32 {mk}, 0x80008000, {mk}
    v_xor_b32 {mk}, {mk}, {f}
    s_and_b32 {st}, {I['w']}, 1
    s_lshl_b32 {st}, {st}, {I.get('khs', 6)}
    v_add_u32 {f}, {st}, {I['n']}
    v_cvt_f32_u32 {f}, {f}
    v_mul_f32 {f}, {fl(1/128)}, {f}""")
    for ib in range(2):
        if ib: k(f"v_add_f32 {f}, {fl(16/128)}, {f}")
        k(f"v_mul_f32 {b}, {f}, {sb}")
        for j in range(8): k(f"v_fmamk_f32 {a[j]}, {f}, {fl(float(16*(j>>2) + 4*((j>>1)&1) + (j&1)))}, {b}")
        for j in range(8): k(f"v_cos_f32 {c[j]}, {a[j]}")
        for j in range(8): k(f"v_sin_f32 {a[j]}, {a[j]}")
        for j in range(8): k(f"v_cvt_pk_bf16_f32 {G[16*ib+j]}, {c[j]}, -{a[j]}")
        for j in range(8): k(f"v_perm_b32 {G[16*ib+8+j]}, {G[16*ib+j]}, {G[16*ib+j]}, {sel}\nv_xor_b32 {G[16*ib+8+j]}, {mk}, {G[16*ib+8+j]}")
    k(f"""v_lshlrev_b32 {b}, 31, {I['n']}
    v_or_b32 {b}, 0x3f003f00, {b}
    v_cmp_eq_u32 vcc, 0, {I['g']}""")
    for ib in range(2): k(f"v_cndmask_b32 {G[16*ib]}, {G[16*ib]}, {b}, vcc")
    k.v.free(a, c, f, b, sb, sel, mk); k.s.free(st)
    return G

CORD = ('sf', 'm2f', 'si', 'm2i', 'm1f', 'twf', 'm1i', 'twi')
def coop_consts(k, I, T, lds, scale):
    O = k.v.allocq(16); a = k.v.alloc(4); c = k.v.alloc(4)
    nf, g4, f, b, t, u = [k.v.alloc() for _ in range(6)]
    def pair(dst, inv):
        for j in range(4): k(f"v_fmamk_f32 {a[j]}, {f}, {fl(float(j))}, {b}")
        for j in range(4): k(f"v_cos_f32 {c[j]}, {a[j]}")
        for j in range(4): k(f"v_sin_f32 {a[j]}, {a[j]}")
        for j in range(4):
            if not inv: k(f"v_cvt_pk_bf16_f32 {dst[j]}, {c[j]}, {a[j]}\nv_cvt_pk_bf16_f32 {dst[4+j]}, -{a[j]}, {c[j]}")
            else: k(f"v_cvt_pk_bf16_f32 {dst[j]}, {c[j]}, -{a[j]}\nv_cvt_pk_bf16_f32 {dst[4+j]}, {a[j]}, {c[j]}")
    def tw(dst):
        k(f"v_mul_f32 {f}, {fl(1/16)}, {f}\nv_mul_f32 {b}, {fl(1/16)}, {b}")
        for j in range(4): k(f"v_fmamk_f32 {a[j]}, {f}, {fl(float(j))}, {b}")
        for j in range(4): k(f"v_cos_f32 {dst[j]}, {a[j]}")
        for j in range(4): k(f"v_sin_f32 {dst[4+j]}, {a[j]}")
    A, B = O.q(0, 8), O.q(1, 8)
    k(f"""v_cvt_f32_u32 {nf}, {I['n']}
    v_cvt_f32_u32 {g4}, {I['g']}
    v_mul_f32 {g4}, 4.0, {g4}""")
    def wave(w):
        k(f"s_cmp_lg_u32 {I['w']}, {w}")
        return k.skip_if("s_cbranch_scc1")
    def ksp(sel, lim):
        k(f"""v_cvt_f32_u32 {u}, {T['sp']}
        v_mul_f32 {u}, {fl(-960.0)}, {u}
        v_cmp_lt_u32 vcc, {lim}, {sel}
        v_cvt_f32_u32 {t}, {T['ks']}
        v_cndmask_b32 {u}, 0, {u}, vcc
        v_add_f32 {t}, {t}, {u}""")
    with wave(0):
        ksp(I['n'], 7)
        k(f"v_fmamk_f32 {f}, {nf}, {fl(128.0)}, {t}\nv_mul_f32 {f}, {fl(1/2048)}, {f}\nv_mul_f32 {b}, {f}, {g4}")
        pair(A, False)
        k(f"""v_xor_b32 {t}, 3, {I['n']}
        v_cndmask_b32 {t}, {I['n']}, {t}, vcc
        v_cvt_f32_u32 {f}, {t}
        v_mul_f32 {f}, {fl(1/16)}, {f}
        v_mul_f32 {b}, {f}, {g4}""")
        pair(B, False)
        k(f"s_cmp_eq_u32 {T['sp']}, 0")
        with k.skip_if("s_cbranch_scc1"):
            k(f"v_cndmask_b32 {t}, 0, 16, vcc")
            for j in range(8): k(f"v_and_b32 {A[j]}, 0xffff, {A[j]}\nv_lshlrev_b32 {A[j]}, {t}, {A[j]}")
            k(f"v_cmp_eq_u32 vcc, 0, {I['n']}")
            for j in range(4): k(f"v_mov_b32 {t}, {hex(0x3f80 if j % 2 == 0 else 0xbf80)}\nv_cndmask_b32 {A[4+j]}, {A[4+j]}, {t}, vcc")
    with wave(1):
        ksp(I['g'], 1)
        k(f"""v_fmamk_f32 {t}, {g4}, {fl(128.0)}, {t}
        v_mul_f32 {b}, {t}, {nf}
        v_mul_f32 {b}, {fl(1/2048)}, {b}
        v_mul_f32 {f}, {fl(1/16)}, {nf}""")
        pair(A, True)
        k(f"""v_add_f32 {t}, {fl(3.0)}, {g4}
        v_cndmask_b32 {t}, {g4}, {t}, vcc
        v_mul_f32 {b}, {f}, {t}
        v_cndmask_b32 {f}, {f}, -{f}, vcc""")
        pair(B, True)
        k(f"s_cmp_eq_u32 {T['sp']}, 0")
        with k.skip_if("s_cbranch_scc1"):
            for j in range(4):
                k(f"""v_lshlrev_b32 {t}, 16, {A[j]}
                v_and_b32 {u}, 0xffff0000, {A[j]}
                v_add_f32 {t}, {t}, {t}
                v_add_f32 {u}, {u}, {u}
                v_cvt_pk_bf16_f32 {t}, {t}, {u}
                v_cndmask_b32 {A[j]}, {t}, 0, vcc
                v_cndmask_b32 {A[4+j]}, 0, {t}, vcc""")
            k(f"""v_lshlrev_b32 {t}, 31, {I['n']}
            v_or_b32 {t}, 0x3f803f80, {t}
            v_cmp_eq_u32 vcc, 0, {I['g']}
            v_cndmask_b32 {A[0]}, {A[0]}, {t}, vcc""")
    with wave(2):
        k(f"v_cvt_f32_u32 {u}, {T['k1']}\nv_fma_f32 {t}, {nf}, 4.0, {u}\nv_mul_f32 {f}, {fl(1/64)}, {t}\nv_mul_f32 {b}, {f}, {g4}")
        pair(A, False); tw(B)
    with wave(3):
        k(f"""v_cvt_f32_u32 {u}, {T['k1']}
        v_fma_f32 {t}, {g4}, 4.0, {u}
        v_mul_f32 {b}, {t}, {nf}
        v_mul_f32 {b}, {fl(1/64)}, {b}
        v_mul_f32 {f}, {fl(1/16)}, {nf}""")
        pair(A, True); tw(B)
        for j in range(8): k(f"v_mul_f32 {B[j]}, {fl(scale)}, {B[j]}")
    st = k.s.alloc()
    k(f"s_lshl_b32 {st}, {I['w']}, 12\ns_add_u32 {st}, {st}, {lds}\nv_lshl_add_u32 {t}, {I['l']}, 4, {st}")
    last = None
    for j in range(4): last = k(f"ds_write_b128 {t}, {O.q(j)} offset:{1024*j}")
    k.v.free(O, a, c, nf, g4, f, b, t, u); k.s.free(st)
    return last

def coop_read(k, I, lds, parked):
    C = {}; ad = k.v.alloc()
    k(f"v_lshlrev_b32 {ad}, 4, {I['l']}\nv_add_u32 {ad}, {lds}, {ad}")
    for j, n in enumerate(CORD):
        C[n] = parked[n] if n in parked else k.v.allocq(8)
        for h in range(2): k(f"ds_read_b128 {C[n].q(h)}, {ad} offset:{2048*j + 1024*h}")
    k.v.free(ad)
    return C

G_BYTES = 32768
def gate_issue2(k, I, sx, sgw):
    G = dict(x=k.v.allocq(16), w=k.v.allocq(8))
    va = k.v.alloc(); so = k.s.alloc(); s2_ = k.s.alloc()
    k(f"""v_lshlrev_b32 {va}, 4, {I['l']}
    s_lshl_b32 {so}, {I['ca']}, 18
    s_lshl_b32 {s2_}, {I['cb']}, 11
    s_add_u32 {so}, {so}, {s2_}
    s_lshl_b32 {s2_}, {I['w']}, 16
    s_add_u32 {so}, {so}, {s2_}
    s_add_u32 {s2_}, {so}, 32768""")
    for j in range(4):
        k(f"buffer_load_dwordx4 {G['x'].q(j)}, {va}, {sx}, {s2_ if j >> 1 else so} offen offset:{1024*(j&1)}")
    for j in range(2):
        k(f"buffer_load_dwordx4 {G['w'].q(j)}, {va}, {sgw}, 0 offen offset:{1024*j}")
    k.v.free(va); k.s.free(so, s2_)
    return G

def gate_compute2(k, I, G, sg, lds=None):
    a = k.v.alloc(2); t = k.v.alloc()
    so = k.s.alloc(); s2_ = k.s.alloc()
    k(f"v_mov_b32 {a[0]}, 0\nv_mov_b32 {a[1]}, 0")
    for j in range(8):
        for r in range(2):
            k(f"v_dot2c_f32_bf16 {a[r]}, {G['x'][8*r+j]}, {G['w'][j]}")
    k(f"""s_lshl_b32 {so}, {I['cb']}, 11
    s_lshl_b32 {s2_}, {I['ca']}, 7
    s_add_u32 {so}, {so}, {s2_}
    v_permlane32_swap_b32 {a[0]}, {a[1]}
    v_add_f32 {a[0]}, {a[0]}, {a[1]}
    v_mov_b32 {a[1]}, {a[0]}
    s_lshl_b32 {s2_}, {I['w']}, 3
    s_add_u32 {so}, {so}, {s2_}
    v_permlane16_swap_b32 {a[0]}, {a[1]}
    v_add_f32 {a[0]}, {a[0]}, {a[1]}""")
    for sh in (8, 4, 2, 1):
        k(f"v_add_f32 {a[0]}, {a[0]}, {a[0]} row_ror:{sh} row_mask:0xf bank_mask:0xf")
    k(f"""v_cvt_pk_bf16_f32 {a[0]}, {a[0]}, {a[0]}
    v_and_b32 {a[0]}, 0xffff0000, {a[0]}
    v_mul_f32 {a[0]}, {fl(-1.4426950408889634)}, {a[0]}
    v_exp_f32 {a[0]}, {a[0]}
    v_lshrrev_b32 {t}, 3, {I['l']}
    v_add_f32 {a[0]}, 1.0, {a[0]}
    v_rcp_f32 {a[0]}, {a[0]}
    s_mov_b32 exec_lo, 1
    s_mov_b32 exec_hi, 1
    v_cvt_pk_bf16_f32 {a[0]}, {a[0]}, {a[0]}
    v_and_b32 {a[0]}, 0xffff0000, {a[0]}""")
    if lds is None: last = k(f"buffer_store_dword {a[0]}, {t}, {sg}, {so} offen {SC}")
    else:
        k(f"s_add_u32 {s2_}, {s2_}, {lds}\nv_add_u32 {t}, {s2_}, {t}")
        last = k(f"ds_write_b32 {t}, {a[0]}")
    k("s_mov_b64 exec, -1")
    k.v.free(a, t, G['x'], G['w']); k.s.free(so, s2_)
    return last

def gate_store(k, I, sg, lds):
    t = k.v.alloc(2); so = k.s.alloc(); s2_ = k.s.alloc()
    k(f"s_cmp_lg_u32 {I['w']}, 0")
    with k.skip_if("s_cbranch_scc1"):
        k(f"""v_lshlrev_b32 {t[0]}, 2, {I['n']}
        v_add_u32 {t[1]}, {lds}, {t[0]}
        ds_read_b32 {t[1]}, {t[1]}
        s_lshl_b32 {so}, {I['cb']}, 11
        s_lshl_b32 {s2_}, {I['ca']}, 7
        s_add_u32 {so}, {so}, {s2_}
        s_mov_b64 exec, 0xffff""")
        last = k(f"buffer_store_dword {t[1]}, {t[0]}, {sg}, {so} offen {SC}")
        k("s_mov_b64 exec, -1")
    k.v.free(t); k.s.free(so, s2_)
    return last

def g_issue2(k, I, sg):
    g = k.v.allocq(16); va = k.v.alloc(); t = k.v.alloc(); so = k.s.alloc(); st = k.s.alloc()
    k(f"""v_lshrrev_b32 {va}, 1, {I['g']}
    v_lshlrev_b32 {va}, 7, {va}
    v_and_b32 {t}, 1, {I['g']}
    v_lshl_or_b32 {va}, {t}, 4, {va}
    s_lshl_b32 {so}, {I['ta']}, 11
    s_and_b32 {st}, {I['w']}, 1
    s_lshl_b32 {st}, {st}, {4 + I.get('khs', 6)}
    s_add_u32 {so}, {so}, {st}""")
    for ib in range(4): k(f"buffer_load_dwordx4 {g.q(ib)}, {va}, {sg}, {so} offen offset:{256*ib if 'khs' not in I else 1024*(ib>>1) + 256*(ib&1)} {SC}")
    k.v.free(va, t); k.s.free(so, st)
    return g

class WD2:
    NB = 4
    def __init__(self, k, I, T, swr, swi, slots, xslot):
        self.k, self.I, self.T, self.sw, self.slots, self.xslot = k, I, T, (swr, swi), slots, xslot
        self.rows = R_ = k.s.allocq(8, 1); self.mw = k.s.alloc(); self.spw = k.s.alloc()
        self.va, self.a0, self.sg = k.v.alloc(), k.v.alloc(), k.v.alloc(2)
        st, s2_ = k.s.alloc(), k.s.alloc(); t = self.sg[1]
        k(f"""s_lshl_b32 {R_[0]}, {I['w']}, 9
        s_add_u32 {R_[0]}, {R_[0]}, {T['ks']}
        s_lshr_b32 {st}, {I['w']}, 1
        s_and_b32 {st}, {st}, {T['sp']}
        s_mul_i32 {st}, {st}, 960
        s_sub_u32 {st}, {R_[0]}, {st}
        s_mul_i32 {R_[0]}, {st}, 1026
        s_lshl1_add_u32 {R_[0]}, {T['k1']}, {R_[0]}
        s_sub_u32 {R_[1]}, {2048*1026 + 8}, {R_[0]}
        s_and_b32 {s2_}, {R_[0]}, 2
        s_and_b32 {R_[0]}, {R_[0]}, -4
        s_and_b32 {R_[1]}, {R_[1]}, -4""")
        for b in range(1, 4): k(f"s_add_u32 {R_[2*b]}, {R_[0]}, {131328*b}\ns_sub_u32 {R_[2*b+1]}, {R_[1]}, {131328*b}")
        k(f"""s_cmp_eq_u32 {st}, 0
        s_cselect_b32 {st}, {2048*1026}, 0
        s_cselect_b32 {self.spw}, {T['sp']}, 0
        s_sub_u32 {R_[1]}, {R_[1]}, {st}
        s_lshl_b32 {self.mw}, {I['w']}, 12
        s_add_u32 {s2_}, {s2_}, {self.mw}
        v_lshlrev_b32 {self.va}, 4, {I['l']}
        v_lshlrev_b32 {self.a0}, 9, {I['g']}
        v_lshl_add_u32 {self.a0}, {I['n']}, 3, {self.a0}
        v_sub_u32 {t}, {2048 + 1656}, {self.a0}
        v_cmp_lt_u32 vcc, 1, {I['g']}
        v_cndmask_b32 {self.a0}, {self.a0}, {t}, vcc
        v_cndmask_b32 {self.sg[0]}, 1.0, -1.0, vcc
        v_add_u32 {self.a0}, {s2_}, {self.a0}""")
        self.oa, self.la = k.v.alloc(), k.v.alloc()
        k(f"v_mov_b32 {self.oa}, {1024*1026}\nv_mov_b32 {self.la}, {xslot}\ns_cmp_lg_u32 {T['k1']}, 0")
        with k.skip_if("s_cbranch_scc1"):
            for b in range(4):
                k(f"""s_sub_u32 {st}, {R_[2*b+1]}, 8
                v_writelane_b32 {self.oa}, {st}, {2*b}
                v_writelane_b32 {self.oa}, {R_[2*b]}, {2*b+1}
                s_mov_b32 {st}, {slots[b]}
                v_writelane_b32 {self.la}, {st}, {2*b}
                v_writelane_b32 {self.la}, {st}, {2*b+1}""")
            k(f"""v_and_b32 {t}, 1, {I['l']}
            v_lshl_add_u32 {self.oa}, {t}, 10, {self.oa}
            s_and_b32 {st}, {s2_}, 2
            v_add_u32 {self.oa}, {st}, {self.oa}
            v_mul_u32_u24 {t}, {2048 + 1016}, {t}
            v_add3_u32 {self.la}, {self.la}, {t}, {s2_}""")
        k.s.free(st, s2_)
        self.n = 0; self.ld = None
    def issue1(self):
        k = self.k; b, q = self.n >> 2, self.n & 3
        if q & 1 == 0: k(f"s_add_u32 m0, {self.mw}, {self.slots[b] + 1024*q}")
        if b < WD2.NB: self.ld = k(f"buffer_load_dwordx4 {self.va}, {self.sw[q&1]}, {self.rows[2*b+(q>>1)]} offen offset:{1024*(q&1)} lds")
        self.n += 1
    def extra_issue(self):
        k, T = self.k, self.T; st = k.s.alloc(); self.ot = k.v.alloc(2)
        k(f"s_cmp_eq_u32 {self.spw}, 0")
        with k.skip_if("s_cbranch_scc1"):
            for dm in range(2):
                k(f"""s_add_u32 {st}, {self.rows[dm]}, {1024*1026}
                s_mov_b32 m0, {self.xslot + 2048*dm}
                buffer_load_dwordx4 {self.va}, {self.sw[0]}, {st} offen lds
                buffer_load_dwordx4 {self.va}, {self.sw[1]}, {st} offen offset:1024 lds""")
        k(f"s_cmp_lg_u32 {T['k1']}, 0")
        with k.skip_if("s_cbranch_scc1"):
            k(f"""s_mov_b64 exec, 0x3ff
            buffer_load_short_d16_hi {self.ot[0]}, {self.oa}, {self.sw[0]}, 0 offen
            buffer_load_short_d16_hi {self.ot[1]}, {self.oa}, {self.sw[1]}, 0 offen offset:1024
            s_mov_b64 exec, -1""")
        k.s.free(st)
    def gather_all(self):
        k, T = self.k, self.T
        Wf = k.v.allocq(32); X = k.v.allocq(8); ad = self.va
        k.wait(self.ld)
        k(f"s_cmp_lg_u32 {T['k1']}, 0")
        with k.skip_if("s_cbranch_scc1"):
            k(f"""s_mul_i32 exec_lo, {self.spw}, 0x300
            s_or_b32 exec_lo, exec_lo, 0xff
            s_mov_b32 exec_hi, 0
            ds_read_u16_d16_hi {X[0]}, {self.la}
            ds_read_u16_d16_hi {X[1]}, {self.la} offset:1024
            v_add_f32 {X[0]}, {X[0]}, {self.ot[0]}
            v_sub_f32 {X[1]}, {X[1]}, {self.ot[1]}
            v_mul_f32 {X[0]}, 0.5, {X[0]}
            v_mul_f32 {X[1]}, 0.5, {X[1]}
            v_cvt_pk_bf16_f32 {X[0]}, {X[0]}, {X[1]}
            ds_write_b16 {self.la}, {X[0]}
            ds_write_b16_d16_hi {self.la}, {X[0]} offset:1024
            s_mov_b64 exec, -1""")
        def rd(out, slot):
            a = self.a0
            if slot >= 61440: k(f"v_add_u32 {ad}, {slot}, {self.a0}"); a = ad; slot = 0
            for r in range(4):
                for x in range(2): self.lastrd = k(f"ds_read_u16_d16_hi {out[4*x+r]}, {a} offset:{slot + 128*r + 1024*x}")
        k(f"s_cmp_eq_u32 {self.spw}, 0")
        with k.skip_if("s_cbranch_scc1"): rd(X, self.xslot)
        for b in range(4): rd(Wf.q(b, 8), self.slots[b])
        k.v.free(self.va, self.a0, self.oa, self.la, self.ot); k.s.free(self.rows, self.mw, self.spw, *self.sw)
        return Wf, X
    def fix(self, Wf, X):
        k = self.k
        k.wait(self.lastrd)
        for o in [Wf.q(b, 8) for b in range(4)] + [X]:
            for h in (4, 6): k(f"v_pk_mul_f32 {o[h:h+2]}, {self.sg}, {o[h:h+2]} op_sel_hi:[0,1]")
        k.v.free(self.sg)

class GateL:
    def __init__(self, k, I, sgw, mA, scratch):
        self.k, self.I, self.scratch = k, I, scratch
        va = k.v.alloc(); st = k.s.alloc()
        k(f"""s_lshl_b32 {st}, {I['ca']}, 7
        v_lshl_add_u32 {va}, {I['l']}, 4, {st}
        v_and_b32 {va}, 0x7ff, {va}
        s_add_u32 m0, {mA}, {scratch}
        buffer_load_dwordx4 {va}, {sgw}, 0 offen lds
        v_xor_b32 {va}, 1024, {va}
        s_add_u32 m0, {mA}, {scratch + 1024}""")
        self.ld = k(f"buffer_load_dwordx4 {va}, {sgw}, 0 offen lds")
        self.mA = mA
        k.v.free(va); k.s.free(st)
    def setup(self):
        k, I = self.k, self.I
        self.gw = k.v.allocq(16); self.xa = k.v.alloc(); self.x = k.v.alloc(); self.acc = k.v.alloc(2)
        a, b = k.s.alloc(), k.s.alloc(); t = self.x
        k(f"""s_lshr_b32 {a}, {I['w']}, 1
        s_lshr_b32 {b}, {I['cb']}, 1
        s_lshl3_add_u32 {a}, {a}, {b}
        s_and_b32 {b}, {I['w']}, 1
        s_lshl1_add_u32 {a}, {a}, {b}
        s_and_b32 {b}, {I['cb']}, 1
        s_lshl1_add_u32 {a}, {a}, {b}
        s_lshl_b32 {b}, {a}, 8
        v_lshl_add_u32 {self.xa}, {I['l']}, 2, {b}
        s_and_b32 {a}, {a}, 7
        s_lshl_b32 {a}, {a}, 2
        v_and_b32 {t}, 31, {I['l']}
        v_xor_b32 {t}, {a}, {t}
        v_lshl_add_u32 {t}, {t}, 2, {self.mA}
        v_mov_b32 {self.acc[0]}, 0""")
        k.wait(self.ld)
        for s in range(16): self.rd = k(f"ds_read_b32 {self.gw[s]}, {t} offset:{self.scratch + 128*s}")
        k.s.free(a, b)
    def read(self, s): self.k(f"ds_read_b32 {self.x}, {self.xa} offset:{(s % 4)*16384}")
    def dot(self, s):
        self.k(f"v_dot2c_f32_bf16 {self.acc[0]}, {self.x}, {self.gw[s]}")
        if s == 15: self.k.v.free(self.gw, self.xa)
    def finish(self, lds):
        k, I, a, t = self.k, self.I, self.acc, self.x; st = k.s.alloc()
        k(f"""v_mov_b32 {a[1]}, {a[0]}
        s_lshl_b32 {st}, {I['w']}, 3
        s_add_u32 {st}, {st}, {lds}
        v_permlane16_swap_b32 {a[0]}, {a[1]}
        v_add_f32 {a[0]}, {a[0]}, {a[1]}""")
        for sh in (8, 4, 2, 1): k(f"v_add_f32 {a[0]}, {a[0]}, {a[0]} row_ror:{sh} row_mask:0xf bank_mask:0xf")
        k(f"""v_cvt_pk_bf16_f32 {a[0]}, {a[0]}, {a[0]}
        v_and_b32 {a[0]}, 0xffff0000, {a[0]}
        v_mul_f32 {a[0]}, {fl(-1.4426950408889634)}, {a[0]}
        v_exp_f32 {a[0]}, {a[0]}
        v_lshrrev_b32 {t}, 5, {I['l']}
        v_add_f32 {a[0]}, 1.0, {a[0]}
        v_rcp_f32 {a[0]}, {a[0]}
        v_lshl_add_u32 {t}, {t}, 2, {st}
        v_cvt_pk_bf16_f32 {a[0]}, {a[0]}, {a[0]}
        v_and_b32 {a[0]}, 0xffff0000, {a[0]}""")
        last = k(f"ds_write_b32 {t}, {a[0]}")
        k.v.free(a, t); k.s.free(st)
        return last
```

```python
import sys, json, re
from fused import *
from opt1 import *
from b32 import *
from b3s import *

class WDir:
    def __init__(self, k, I, T, swr, swi, lt2):
        self.k, self.I, self.T, self.sw, self.lt2 = k, I, T, (swr, swi), lt2
        self.rows = k.s.alloc(8, 4)
        self.va = k.v.alloc(); self.mw = k.s.alloc(); self.so = k.s.alloc()
        st = k.s.alloc(); R_ = self.rows
        k(f"""s_lshl_b32 {R_[0]}, {I['w']}, 9
        s_add_u32 {R_[0]}, {R_[0]}, {T['ks']}
        s_lshr_b32 {st}, {I['w']}, 1
        s_and_b32 {st}, {st}, {T['sp']}
        s_mul_i32 {st}, {st}, 960
        s_sub_u32 {R_[0]}, {R_[0]}, {st}""")
        for b in range(1, 4): k(f"s_add_u32 {R_[2*b]}, {R_[0]}, {128*b}")
        for b in range(4): k(f"s_sub_u32 {R_[2*b+1]}, 2048, {R_[2*b]}\ns_and_b32 {R_[2*b+1]}, {R_[2*b+1]}, 2047")
        self.spw = k.s.alloc()
        k(f"""s_cmp_eq_u32 {I['w']}, 0
        s_cselect_b32 {self.spw}, {T['sp']}, 0
        s_cmp_eq_u32 {self.spw}, 1
        s_cselect_b32 {R_[1]}, 1024, {R_[1]}""")
        for j in range(8): k(f"s_mul_i32 {R_[j]}, {R_[j]}, 1026")
        k(f"v_lshlrev_b32 {self.va}, 4, {I['l']}\ns_lshl_b32 {self.mw}, {I['w']}, 12")
        k.s.free(st)
        self.n = 0; self.slot = {}; self.ld = None
    def issue1(self, slot):
        k = self.k; b, q = self.n >> 2, self.n & 3
        if q == 0: self.slot[b] = slot
        if q & 1 == 0: k(f"s_and_b32 {self.so}, {self.rows[2*b+(q>>1)]}, -16")
        k(f"s_add_u32 m0, {self.mw}, {self.slot[b] + 1024*q}")
        self.ld = k(f"buffer_load_dwordx4 {self.va}, {self.sw[q&1]}, {self.so} offen lds")
        self.n += 1
    def tail_issue(self):
        k = self.k; self.tc = k.v.allocq(8); ta = k.v.alloc()
        k(f"v_mov_b32 {ta}, {BIG}")
        for j in range(8): k(f"v_writelane_b32 {ta}, {self.rows[j]}, {j}")
        k(f"v_and_b32 {ta}, -16, {ta}")
        k("s_mov_b64 exec, 255")
        for a in range(2): k(f"buffer_load_dwordx4 {self.tc.q(a)}, {ta}, {self.sw[a]}, 0 offen offset:1024")
        k("s_mov_b64 exec, -1")
        k.v.free(ta)
    def tail_write(self):
        k = self.k; ad = k.v.alloc(); st = k.s.alloc()
        k(f"""s_lshl_b32 {st}, {self.I['w']}, 8
        s_add_u32 {st}, {st}, {self.lt2}
        v_lshl_add_u32 {ad}, {self.I['l']}, 11, {st}
        s_mov_b64 exec, 255
        ds_write_b128 {ad}, {self.tc.q(0)}
        ds_write_b128 {ad}, {self.tc.q(1)} offset:1024
        s_mov_b64 exec, -1""")
        k.v.free(ad, self.tc); k.s.free(st, self.so, *self.sw); k.v.free(self.va)
    def prep(self):
        k, I, T = self.k, self.I, self.T
        self.a0, self.a3, self.sg = k.v.alloc(), k.v.alloc(), k.v.alloc(2); self.up = k.s.alloc(2); self.ov = k.s.alloc(2)
        self.d, self.m = k.s.alloc(), k.s.alloc(); t = k.v.alloc(); tb = k.s.alloc(); a0, a3 = self.a0, self.a3
        k(f"""s_and_b32 {self.d}, {self.rows[0]}, 15
        s_and_b32 {self.m}, {self.rows[1]}, 15
        s_add_u32 {self.m}, {self.m}, 2048
        v_lshlrev_b32 {a0}, 9, {I['g']}
        v_lshl_add_u32 {a0}, {I['n']}, 3, {a0}
        s_lshl_b32 {tb}, {T['k1']}, 1
        v_add_u32 {a0}, {tb}, {a0}
        s_add_u32 {tb}, {self.m}, 1664
        v_sub_u32 {t}, {tb}, {a0}
        v_add_u32 {a0}, {self.d}, {a0}
        v_cmp_lt_u32 {self.up}, 1, {I['g']}
        v_cndmask_b32 {a0}, {a0}, {t}, {self.up}
        v_cndmask_b32 {self.sg[0]}, 1.0, -1.0, {self.up}
        v_add_u32 {a3}, 384, {a0}
        v_and_b32 {t}, 1024, {a3}
        v_cmp_ne_u32 {self.ov}, 0, {t}
        s_lshl_b32 {tb}, {I['w']}, 8
        s_add_u32 {tb}, {tb}, {self.lt2 - 1024}
        v_add_u32 {t}, {tb}, {a3}
        v_add_u32 {a0}, {self.mw}, {a0}
        v_add_u32 {a3}, {self.mw}, {a3}
        v_cndmask_b32 {a3}, {a3}, {t}, {self.ov}
        v_sub_u32 {a3}, {a3}, {a0}
        v_cndmask_b32 {self.sg[1]}, 0, -1, {self.ov}""")
        k.v.free(t); k.s.free(tb)
    def gather(self, b, out, second=False):
        k, I, T = self.k, self.I, self.T
        a0, a3 = k.v.alloc(), k.v.alloc()
        k(f"""v_add_u32 {a0}, {self.slot[b]}, {self.a0}
        v_and_b32 {a3}, {hex((4096*b - self.slot[b]) & 0xffffffff)}, {self.sg[1]}
        v_add3_u32 {a3}, {a3}, {self.a3}, {a0}""")
        if b == 0:
            k(f"s_cmp_eq_u32 {self.spw}, 0")
            with k.skip_if("s_cbranch_scc1"):
                if second: k(f"s_mov_b32 exec_hi, 0\nv_add_u32 {a0}, 2048, {a0}\nv_add_u32 {a3}, 2048, {a3}\ns_mov_b64 exec, -1")
                else: k(f"s_mov_b32 exec_lo, 0\nv_subrev_u32 {a0}, 2048, {a0}\nv_subrev_u32 {a3}, 2048, {a3}\ns_mov_b64 exec, -1")
        last = None
        for r in range(4):
            for a in range(2):
                last = k(f"ds_read_u16_d16_hi {out[4*a+r]}, {a0 if r < 3 else a3} offset:{(128*r if r < 3 else 0) + 1024*a}")
        k.v.free(a0, a3)
        return last
    def symm(self, outs):
        k, I = self.k, self.I
        al = k.v.allocq(2 * len(outs), 2); t = k.v.alloc(2); d, m = k.s.alloc(), k.s.alloc()
        for j, (b, out, second) in enumerate(outs):
            k(f"""s_add_u32 {m}, {self.m}, {self.mw}
            s_add_u32 {m}, {m}, {self.slot[b]}
            s_lshl_b32 {d}, {I['w']}, 8
            s_add_u32 {d}, {d}, {self.d}
            s_add_u32 {d}, {d}, {self.lt2 + 4096*b}""")
            if b == 0:
                k(f"s_lshl_b32 vcc_lo, {self.spw}, 11")
                k(f"s_add_u32 {d}, {d}, vcc_lo" if second else f"s_sub_u32 {m}, {m}, vcc_lo")
            k(f"""v_mov_b32 {t[0]}, {m}
            v_mov_b32 {t[1]}, {d}
            v_cndmask_b32 {t[0]}, {t[0]}, {t[1]}, {self.up}
            ds_read_u16_d16_hi {al[2*j]}, {t[0]}
            ds_read_u16_d16_hi {al[2*j+1]}, {t[0]} offset:1024""")
        k("s_waitcnt lgkmcnt(0)")
        for lo, r in ((True, 0), (False, 3)):
            k(f"s_mov_b32 exec_lo, {1 if lo else 0}\ns_mov_b32 exec_hi, {0 if lo else 1}")
            for j, (b, out, second) in enumerate(outs):
                k(f"""v_add_f32 {out[r]}, {out[r]}, {al[2*j]}
                v_sub_f32 {out[4+r]}, {out[4+r]}, {al[2*j+1]}
                v_mul_f32 {out[r]}, 0.5, {out[r]}
                v_mul_f32 {out[4+r]}, 0.5, {out[4+r]}""")
        k("s_mov_b64 exec, -1")
        k.v.free(al, t); k.s.free(d, m)
    def sign(self, out):
        for h in (4, 6): self.k(f"v_pk_mul_f32 {out[h:h+2]}, {self.sg}, {out[h:h+2]} op_sel_hi:[0,1]")
    def done(self):
        self.k.v.free(self.a0, self.a3, self.sg); self.k.s.free(self.rows, self.mw, self.spw, self.up, self.ov, self.d, self.m)

def mf2(k, M, data_is_A, d, o):
    for c in range(2):
        A, B = (d, M.q(c)) if data_is_A else (M.q(c), d)
        k(f"v_mfma_f32_16x16x32_bf16 {o.q(c)}, {A}, {B}, 0")

def ph2_w(k, T, WD):
    Wf = k.v.allocq(32); X = k.v.allocq(8)
    k.wait(WD.ld)
    k(f"s_cmp_eq_u32 {T['sp']}, 0")
    with k.skip_if("s_cbranch_scc1"):
        WD.gather(0, X, True)
    for b in range(4): WD.lastrd = WD.gather(b, Wf.q(b, 8))
    return Wf, X

def ph2_wfix(k, T, WD, Wf, X):
    k.wait(WD.lastrd)
    k(f"s_cmp_lg_u32 {T['k1']}, 0")
    with k.skip_if("s_cbranch_scc1"):
        WD.symm([(b, Wf.q(b, 8), False) for b in range(4)] + [(0, X, True)])
    for b in range(4): WD.sign(Wf.q(b, 8))
    WD.sign(X)
    WD.done()

def ph2_s1(k, I, C, L, lds1):
    D = k.v.allocq(8); acc = k.v.allocq(16); a0, ad = k.v.alloc(), k.v.alloc(); st = k.s.alloc()
    k(f"""v_and_b32 {a0}, 7, {I['n']}
    v_lshlrev_b32 {ad}, 2, {I['g']}
    v_xor_b32 {a0}, {a0}, {ad}
    v_lshlrev_b32 {a0}, 4, {a0}
    v_lshl_or_b32 {a0}, {I['n']}, 10, {a0}
    s_lshl_b32 {st}, {I['w']}, 8
    s_add_u32 {st}, {st}, {lds1}
    v_add_u32 {a0}, {st}, {a0}""")
    def mov(b):
        for j in range(4): k(f"v_mov_b32 {D[4*(b&1)+j]}, {L[4*j+b]}")
    def out(b, o):
        z = acc.q(b & 1, 8)
        k(f"v_xor_b32 {ad}, {16*b}, {a0}")
        for r in range(4): k(f"v_cvt_pk_bf16_f32 {o[r]}, {z[r]}, {z[4+r]}")
        return k(f"ds_write_b128 {ad}, {o}")
    mov(0); mov(1)
    mf2(k, C['sf'], True, D.q(0), acc.q(0, 8)); mf2(k, C['sf'], True, D.q(1), acc.q(1, 8))
    mov(2); mov(3)
    out(0, L.q(3)); mf2(k, C['sf'], True, D.q(0), acc.q(0, 8))
    out(1, L.q(0)); mf2(k, C['sf'], True, D.q(1), acc.q(1, 8))
    out(2, L.q(1)); last = out(3, L.q(2))
    k.v.free(D, acc, a0, ad, L, C.pop('sf')); k.s.free(st)
    return last

def ph2_mid(k, I, T, C, Wf, X, lds1, lds2, mark):
    D = k.v.allocq(16); acc = k.v.allocq(32); tmp = k.v.alloc(4); ad = k.v.alloc(); a0 = k.v.alloc(); st = k.s.alloc(); Xd = k.v.allocq(4)
    z = lambda b, c: acc.q(2 * b + c)
    def stage(M, data_is_A):
        for b in range(4): mf2(k, M, data_is_A, D.q(b), acc.q(b, 8))
    k(f"""s_and_b32 {st}, {I['w']}, 1
    s_lshl_b32 {st}, {st}, 2
    v_xor_b32 {ad}, {st}, {I['l']}
    s_lshl_b32 {st}, {I['w']}, 12
    s_add_u32 {st}, {st}, {lds1}
    v_lshl_add_u32 {a0}, {ad}, 4, {st}""")
    for b in range(4): k(f"v_xor_b32 {ad}, {16*b}, {a0}\nds_read_b128 {D.q(b)}, {ad} offset:{1024*b}")
    mark(0)
    stage(C['m1f'], True)
    def mulstage(w, conj, M, data_is_A):
        for b in range(4):
            wr, wi = w(b)
            cmul_pack(k, z(b, 0), z(b, 1), wr, wi, conj, D.q(b), tmp)
            if b: mf2(k, M, data_is_A, D.q(b - 1), acc.q(b - 1, 8))
        mf2(k, M, data_is_A, D.q(3), acc.q(3, 8))
    mulstage(lambda b: (C['twf'].q(0), C['twf'].q(1)), True, C['m2f'], False)
    mark(1)
    k(f"s_cmp_eq_u32 {T['sp']}, 0")
    with k.skip_if("s_cbranch_scc1"):
        cmul_pack(k, z(0, 0), z(0, 1), X.q(0), X.q(1), False, Xd, tmp)
        mf2(k, C['m2i'], True, Xd.q(0), X)
        cmul_pack(k, X.q(0), X.q(1), C['twi'].q(0), C['twi'].q(1), False, Xd, tmp)
        mf2(k, C['m1i'], False, Xd.q(0), X)
    mulstage(lambda b: (Wf.q(2 * b), Wf.q(2 * b + 1)), False, C['m2i'], True)
    mark(2)
    mulstage(lambda b: (C['twi'].q(0), C['twi'].q(1)), False, C['m1i'], False)
    mark(3)
    k(f"""v_lshlrev_b32 {ad}, 12, {I['g']}
    v_lshl_add_u32 {ad}, {I['n']}, 4, {ad}
    s_lshl_b32 {st}, {I['w']}, 8
    s_add_u32 {st}, {st}, {lds2}
    v_add_u32 {ad}, {st}, {ad}""")
    k(f"s_sub_u32 {st}, {T['sp']}, 1\ns_or_b32 {st}, {st}, {I['w']}\ns_cmp_lg_u32 {st}, 0")
    with k.skip_if("s_cbranch_scc1"):
        for r in range(4): k(f"v_mov_b32 {z(0,1)[r]}, {X[4+r]}")
    for r in range(4):
        for b in range(4): k(f"v_cvt_pk_bf16_f32 {D[4*r+b]}, {z(b,0)[r]}, {z(b,1)[r]}")
        k(f"ds_write_b128 {ad}, {D.q(r)} offset:{1024*r}")
    k.v.free(D, acc, tmp, ad, a0, Xd, X, Wf); k.s.free(st)
    for n in ('m1f', 'twf', 'm2f', 'm2i', 'twi', 'm1i'):
        r = C.pop(n)
        if r[0].kind == 'v': k.v.free(r)

def ph2_s6(k, I, C, lds2):
    D = k.v.allocq(16); acc = k.v.allocq(32); ad = k.v.alloc(); st = k.s.alloc(); so = k.s.alloc()
    k(f"s_lshl_b32 {st}, {I['w']}, 12\ns_add_u32 {st}, {st}, {lds2}\nv_lshl_add_u32 {ad}, {I['l']}, 4, {st}")
    for b in range(4): k(f"ds_read_b128 {D.q(b)}, {ad} offset:{1024*b}")
    k(f"""s_mov_b32 {st}, {64*V2_STR}
    v_mul_lo_u32 {ad}, {I['g']}, {st}
    v_lshl_add_u32 {ad}, {I['n']}, 2, {ad}
    s_mul_i32 {so}, {I['w']}, {4*V2_STR}
    s_lshr_b32 {st}, {I['slot']}, 4
    s_lshl_b32 {st}, {st}, 12
    s_add_u32 {so}, {so}, {st}
    s_lshl_b32 {st}, {I['k1p']}, 10
    s_add_u32 {so}, {so}, {st}
    s_and_b32 {st}, {I['slot']}, 15
    s_lshl_b32 {st}, {st}, 6
    s_add_u32 {so}, {so}, {st}""")
    for b in range(4): mf2(k, C['si'], False, D.q(b), acc.q(b, 8))
    for b in range(4):
        for r in range(4): k(f"v_cvt_pk_bf16_f32 {D[4*b+r]}, {acc[8*b+r]}, {acc[8*b+4+r]}")
    r = C.pop('si')
    if r[0].kind == 'v': k.v.free(r)
    k.v.free(acc); k.s.free(st)
    return D, ad, so

def park(k, C, names, A):
    for j, n in enumerate(names):
        dst = A[8 * j:8 * j + 8]
        for i in range(8): k(f"v_accvgpr_write_b32 {dst[i]}, {C[n][i]}")
        k.v.free(C[n]); C[n] = dst

def v2_issue2(k, I, sv2):
    L = k.v.allocq(16); va = k.v.alloc(); so = k.s.alloc(); st = k.s.alloc()
    k(f"""v_lshlrev_b32 {va}, 4, {I['l']}
    s_lshl_b32 {so}, {I['ta']}, 4
    s_add_u32 {so}, {so}, {I['tb']}
    s_mul_i32 {so}, {so}, {V2_STR}
    s_lshl_b32 {st}, {I['w']}, 12
    s_add_u32 {so}, {so}, {st}""")
    for j in range(4): k(f"buffer_load_dwordx4 {L.q(j)}, {va}, {sv2}, {so} offen offset:{1024*j} {SC}")
    k.v.free(va); k.s.free(so, st)
    return L

pk0 = pk
def y_stage2(k, I, L, ldsY, scal=False, spec=None):
    Z = k.v.allocq(16, 2); T = k.v.allocq(16, 2); O = k.v.allocq(8); ad = k.v.alloc(); st = k.s.alloc()
    z = lambda j, c: Z.q(2 * j + c, 2); t = lambda j, c: T.q(2 * j + c, 2)
    k(f"s_lshl_b32 {st}, {I['w']}, 10\ns_add_u32 {st}, {st}, {ldsY}\nv_lshl_add_u32 {ad}, {I['l']}, 4, {st}")
    last = None
    def pk(k, op, d, x, y):
        if not scal: return pk0(k, op, d, x, y)
        for u in range(2): k(f"v_{'add' if op == '+' else 'sub'}_f32 {d[u]}, {x[u]}, {y[u]}")
    for h in range(2):
        for j in range(4):
            for u in range(2):
                k(f"v_lshlrev_b32 {z(j,0)[u]}, 16, {L[4*j+2*h+u]}\nv_and_b32 {z(j,1)[u]}, 0xffff0000, {L[4*j+2*h+u]}")
        for c in range(2):
            pk(k, '+', t(0, c), z(0, c), z(2, c)); pk(k, '-', t(1, c), z(0, c), z(2, c)); pk(k, '+', t(2, c), z(1, c), z(3, c))
        pk(k, '-', t(3, 0), z(3, 1), z(1, 1)); pk(k, '-', t(3, 1), z(1, 0), z(3, 0))
        k(f"s_cmp_lg_u32 {spec or I['w']}, 0")
        with k.skip_if("s_cbranch_scc1"):
            k("s_mov_b64 exec, 15")
            k(f"""v_pk_add_f32 {t(2,0)}, {z(1,0)}, {z(1,0)}
            v_pk_add_f32 {t(2,1)}, {z(3,0)}, {z(3,0)}
            v_pk_add_f32 {t(3,0)}, {z(1,1)}, {z(1,1)} neg_lo:[1,1] neg_hi:[1,1]
            v_pk_add_f32 {t(3,1)}, {z(3,1)}, {z(3,1)} neg_lo:[1,1] neg_hi:[1,1]""")
            k("s_mov_b64 exec, -1")
        for m in range(4):
            for c in range(2):
                pk(k, '+' if m < 2 else '-', z(m, c), t(m & 1, c), t(2 + (m & 1), c))
                dst = O[2 * m + c] if h == 0 else L[4 * m + 2 * c + 1]
                k(f"v_cvt_pk_bf16_f32 {dst}, {z(m,c)[0]}, {z(m,c)[1]}")
    for m in range(4):
        k(f"v_mov_b32 {L[4*m]}, {O[2*m]}\nv_mov_b32 {L[4*m+2]}, {O[2*m+1]}")
        last = k(f"ds_write_b128 {ad}, {L.q(m)} offset:{4096*m}")
    k.v.free(Z, T, O, ad, L); k.s.free(st)
    return last

def gen_G1(k, I):
    G = k.v.allocq(32)
    f, b, sb, a, c, s = [k.v.alloc() for _ in range(6)]
    st = k.s.alloc()
    k(f"""v_lshrrev_b32 {a}, 1, {I['g']}
    v_lshlrev_b32 {a}, 3, {a}
    v_and_b32 {c}, 1, {I['g']}
    v_lshl_add_u32 {a}, {c}, 1, {a}
    v_cvt_f32_u32 {sb}, {a}""")
    for ib in range(2):
        k(f"""s_and_b32 {st}, {I['w']}, 1
        s_lshl_b32 {st}, {st}, 6
        s_add_u32 {st}, {st}, {16*ib}
        v_add_u32 {a}, {st}, {I['n']}
        v_cvt_f32_u32 {f}, {a}
        v_mul_f32 {f}, {fl(1/128)}, {f}
        v_mul_f32 {b}, {f}, {sb}""")
        for kap in range(4):
            for d in range(4):
                sl = 16 * kap + 4 * (d >> 1) + (d & 1)
                k(f"""v_fmamk_f32 {a}, {f}, {fl(float(sl))}, {b}
                v_cos_f32 {c}, {a}
                v_sin_f32 {s}, {a}
                v_cvt_pk_bf16_f32 {G[16*ib+4*kap+d]}, {c}, -{s}""")
    k(f"""v_lshlrev_b32 {c}, 31, {I['n']}
    v_or_b32 {c}, 0x3f003f00, {c}
    v_cmp_eq_u32 vcc, 0, {I['g']}""")
    for ib in range(2): k(f"v_cndmask_b32 {G[16*ib]}, {G[16*ib]}, {c}, vcc")
    k.v.free(f, b, sb, a, c, s); k.s.free(st)
    return G

def gen_G2(k, I, G):
    G2 = k.v.allocq(32); mk = k.v.alloc(2)
    k(f"""v_and_b32 {mk[0]}, 1, {I['g']}
    v_mul_u32_u24 {mk[0]}, 0x8000, {mk[0]}
    v_lshl_or_b32 {mk[0]}, {mk[0]}, 16, {mk[0]}
    v_xor_b32 {mk[1]}, 0x80000000, {mk[0]}""")
    for j in range(32):
        if j & 1: k(f"v_alignbit_b32 {G2[j]}, {G[j]}, {G[j]}, 16\nv_xor_b32 {G2[j]}, {mk[1]}, {G2[j]}")
        else: k(f"v_xor_b32 {G2[j]}, {mk[0]}, {G[j]}")
    k.v.free(mk)
    return G2

def xkeep(k, I, ldsX):
    XK = k.v.allocq(16, 2); ad = k.v.alloc(2); t = k.v.alloc(2); st = k.s.alloc()
    k(f"""s_and_b32 {st}, {I['w']}, 1
    s_lshl_b32 {st}, {st}, 13
    s_add_u32 {st}, {st}, {ldsX}
    v_lshrrev_b32 {t[0]}, 2, {I['l']}
    v_lshlrev_b32 {t[0]}, 7, {t[0]}
    v_and_b32 {t[1]}, 3, {I['l']}
    v_lshl_or_b32 {t[0]}, {t[1]}, 3, {t[0]}
    v_add_u32 {t[0]}, {st}, {t[0]}
    v_bfe_u32 {t[1]}, {I['l']}, 3, 2
    s_and_b32 {st}, {I['w']}, 2
    v_xor_b32 {t[1]}, {st}, {t[1]}
    v_lshl_add_u32 {ad[0]}, {t[1]}, 5, {t[0]}
    v_xor_b32 {ad[1]}, 32, {ad[0]}""")
    for mm in range(2):
        for ib in range(4): k(f"ds_read_b64_tr_b16 {XK.q(4*mm+ib,2)}, {ad[mm]} offset:{2048*ib}")
    k.v.free(ad, t); k.s.free(st)
    return XK

def dsk_issue(k, I, sd):
    Dk = k.v.alloc(2); va = k.v.alloc(); so = k.s.alloc(); st = k.s.alloc()
    k(f"""v_lshlrev_b32 {va}, 1, {I['n']}
    s_lshl_b32 {so}, {I['tb']}, 5
    s_lshr_b32 {st}, {I['w']}, 1
    s_lshl_b32 {st}, {st}, 10
    s_add_u32 {so}, {so}, {st}""")
    for mm in range(2): k(f"buffer_load_short_d16_hi {Dk[mm]}, {va}, {sd}, {so} offen offset:{512*mm}")
    k.v.free(va); k.s.free(so, st)
    return Dk

def xd_init2(k, XK, Dk, acc):
    for mm in range(2):
        sel = f" op_sel:[{mm},0] op_sel_hi:[{mm},1]"
        for ib in range(4):
            a = acc.q(8 * mm + ib); x = XK.q(4 * mm + ib, 2)
            k(f"""v_lshlrev_b32 {a[0]}, 16, {x[0]}
            v_and_b32 {a[1]}, 0xffff0000, {x[0]}
            v_lshlrev_b32 {a[2]}, 16, {x[1]}
            v_and_b32 {a[3]}, 0xffff0000, {x[1]}
            v_pk_mul_f32 {a[0:2]}, {Dk}, {a[0:2]}{sel}
            v_pk_mul_f32 {a[2:4]}, {Dk}, {a[2:4]}{sel}""")
    k.v.free(XK, Dk)

def g_issue(k, I, sg):
    g = k.v.allocq(16); va = k.v.alloc(); so = k.s.alloc(); st = k.s.alloc()
    k(f"""v_lshlrev_b32 {va}, 4, {I['g']}
    s_lshl_b32 {so}, {I['ta']}, 9
    s_and_b32 {st}, {I['w']}, 1
    s_lshl_b32 {st}, {st}, 8
    s_add_u32 {so}, {so}, {st}""")
    for ib in range(4): k(f"buffer_load_dwordx4 {g.q(ib)}, {va}, {sg}, {so} offen offset:{64*ib} {SC}")
    k.v.free(va); k.s.free(so, st)
    return g

def pass1c(k, I, acc, Pm, ldsE):
    er, ei, ta, tb = [k.v.alloc(2) for _ in range(4)]
    L = Pm['L1']
    cr, ci = upair(acc, 0, 0), upair(acc, 0, 1)
    outs = [(er, ei), (ta, tb)]
    for j in range(1, 16):
        nr, ni = outs[(15 - j) & 1]
        k(f"""v_pk_fma_f32 {nr}, {L}, {cr}, {upair(acc,j,0)}{BC0}
        v_pk_fma_f32 {ni}, {L}, {ci}, {upair(acc,j,1)}{BC0}
        v_pk_fma_f32 {nr}, {L}, {ci}, {nr}{BC1}{NEG0}
        v_pk_fma_f32 {ni}, {L}, {cr}, {ni}{BC1}""")
        cr, ci = nr, ni
    cfma(k, ta, Pm['L16'], (er[0], ei[0]), (er[1], ei[1]))
    k(f"""v_mov_b32 {tb[0]}, {ta[0]}
    v_mov_b32 {tb[1]}, {ta[1]}
    v_permlane32_swap_b32 {ta[0]}, {tb[0]}
    v_permlane32_swap_b32 {ta[1]}, {tb[1]}""")
    cfma(k, tb, Pm['L32'], ta, tb)
    w = k(f"ds_write_b64 {Pm['lde']}, {tb}")
    return dict(er=er, ei=ei, lo=ta, ew=tb, w=w)

def scan_addr(k, I, Pm, ldsE):
    lde, va = k.v.alloc(), k.v.alloc(); t = k.v.alloc(); st = k.s.alloc(); s2_ = k.s.alloc()
    k(f"""v_lshlrev_b32 {lde}, 3, v0
    v_add_u32 {lde}, {ldsE + 4096}, {lde}
    s_sub_u32 {st}, 15, {I['ca']}
    s_lshl_b32 {st}, {st}, 9
    s_and_b32 {s2_}, {I['w']}, 1
    s_lshl_b32 {s2_}, {s2_}, 8
    s_add_u32 {st}, {st}, {s2_}
    v_and_b32 {va}, 31, {I.get('lp', I['l'])}
    v_lshl_add_u32 {va}, {va}, 3, {st}""")
    if 'lp' in I: k.v.free(I.pop('lp'))
    Pm['lde'], Pm['eva'] = lde, va
    k.v.free(t); k.s.free(st, s2_)

def publish(k, I, E1, Pm, se):
    e0 = k.v.alloc(2); t = k.v.alloc()
    k(f"v_and_b32 {Pm['lde']}, {hex(0xfffffbff)}, {Pm['lde']}\nds_read_b64 {e0}, {Pm['lde']}")
    k(f"s_cmp_lt_u32 {I['w']}, 2")
    with k.skip_if("s_cbranch_scc1"):
        cfma(k, E1['ew'], Pm['L64'], e0, E1['ew'])
        k(f"""v_min_u32 {E1['ew'][0]}, -2, {E1['ew'][0]}
        v_min_u32 {E1['ew'][1]}, -2, {E1['ew'][1]}
        s_mov_b32 exec_hi, 0
        buffer_store_dwordx2 {E1['ew']}, {Pm['eva']}, {se}, 0 offen sc1
        s_mov_b64 exec, -1""")
    k(f"v_lshrrev_b32 {t}, 5, {I['l']}\nv_lshl_add_u32 {Pm['eva']}, {t}, 12, {Pm['eva']}\nv_add_u32 {Pm['eva']}, 512, {Pm['eva']}")
    k.v.free(t, E1['ew'], Pm.pop('lde'))
    E1['e0'] = e0

def carry_prep(k, I, E1, Pm):
    ma, mb = k.v.alloc(2), k.v.alloc(2); ca, cb = E1.pop('e0'), k.v.alloc(2); lo = E1.pop('lo'); t = k.v.alloc(2)
    er, ei = E1.pop('er'), E1.pop('ei'); cf = Pm['coef']
    def cmul(d, a, b):
        k(f"""v_pk_mul_f32 {d}, {a}, {b} op_sel:[0,0] op_sel_hi:[0,1]
        v_pk_fma_f32 {d}, {a}, {b}, {d} op_sel:[1,1,0] op_sel_hi:[1,0,1] neg_lo:[1,0,0]""")
    cmul(ma, cf, Pm['L64'])
    k(f"s_cmp_ge_u32 {I['w']}, 2")
    with k.skip_if("s_cbranch_scc1"):
        k(f"v_mov_b32 {ma[0]}, {cf[0]}\nv_mov_b32 {ma[1]}, {cf[1]}\nv_mov_b32 {ca[0]}, 0\nv_mov_b32 {ca[1]}, 0")
    cmul(t, Pm['L32'], ma); cfma2(k, lo, Pm['L32'], ca, lo)
    k(f"""s_mov_b32 exec_lo, 0
    v_mov_b32 {ma[0]}, {t[0]}
    v_mov_b32 {ma[1]}, {t[1]}
    v_mov_b32 {ca[0]}, {lo[0]}
    v_mov_b32 {ca[1]}, {lo[1]}
    s_mov_b64 exec, -1
    v_mov_b32 {er[1]}, {ei[0]}""")
    cmul(mb, Pm['L16'], ma); cfma2(k, er, Pm['L16'], ca, er)
    cmul(cb, cf, er); cmul(t, cf, ca)
    k.v.free(ca, lo, er, ei, Pm.pop('L16'), Pm.pop('L32'), Pm.pop('L64'))
    E1.update(ma=ma, mb=mb, ca=t, cb=cb)

class LookBack:
    N = 8
    def __init__(self, k, Pm, se):
        self.k, self.va, self.se = k, Pm.pop('eva'), se
        self.E = k.v.allocq(16, 2)
    def issue(self):
        for j in range(LookBack.N): self.last = self.k(f"buffer_load_dwordx2 {self.E.q(j,2)}, {self.va}, {self.se}, 0 offen offset:{512*j} sc1")
    def _check(self, m):
        k, E = self.k, self.E
        k(f"v_max_u32 {m}, {E[0]}, {E[1]}")
        for j in range(1, 8): k(f"v_max3_u32 {m}, {m}, {E[2*j]}, {E[2*j+1]}")
        k(f"v_cmp_eq_u32 vcc, -1, {m}")
    def finish(self, maxspin=1 << 20):
        k = self.k; m = k.v.alloc()
        k.wait(self.last)
        self._check(m)
        with k.skip_if("s_cbranch_vccz"):
            cnt = k.s.alloc(); lp, out = k.lab('lb'), k.lab('lbout')
            k(f"s_mov_b32 {cnt}, 0\n{lp}:")
            self.issue(); k("s_waitcnt vmcnt(0)")
            self._check(m)
            k(f"s_cbranch_vccz {out}\ns_add_u32 {cnt}, {cnt}, 1\ns_cmp_lt_u32 {cnt}, {maxspin}\ns_cbranch_scc1 {lp}\n{out}:")
            k.s.free(cnt)
        k.v.free(m, self.va)
        return self.E

def cfma2(k, d, a, b, c):
    k(f"""v_pk_fma_f32 {d}, {a}, {b}, {c} op_sel:[0,0,0] op_sel_hi:[0,1,1]
    v_pk_fma_f32 {d}, {a}, {b}, {d} op_sel:[1,1,0] op_sel_hi:[1,0,1] neg_lo:[1,0,0]""")

def pass2c(k, I, acc, Pm, E1, E, sh, hook):
    for j in range(6, -1, -1):
        cfma2(k, E.q(j, 2), Pm['L128'], E.q(j + 1, 2), E.q(j, 2))
    S, T = E.q(0, 2), E.q(1, 2); U, V = E.q(2, 2), E.q(3, 2)
    k(f"""v_mov_b32 {T[0]}, {S[0]}
    v_mov_b32 {T[1]}, {S[1]}
    v_permlane32_swap_b32 {S[0]}, {T[0]}
    v_permlane32_swap_b32 {S[1]}, {T[1]}""")
    cfma2(k, S, Pm['L1024'], T, S)
    cfma2(k, E1['ca'], E1['ma'], S, E1['ca']); cfma2(k, E1['cb'], E1['mb'], S, E1['cb'])
    k(f"v_swap_b32 {E1['ca'][1]}, {E1['cb'][0]}")
    U, V = E1['ca'], E1['cb']
    va, so = E1['hva'], E1['hso']
    L = Pm['L1']; cr, ci = U, V
    O = k.v.allocq(12)
    pend = []; last = None
    def flush():
        nonlocal last
        q, o = pend.pop(0)
        k(f"""v_permlane16_swap_b32 {o[0]}, {o[2]}
        v_permlane16_swap_b32 {o[1]}, {o[3]}""")
        last = k(f"buffer_store_dwordx4 {o}, {va}, {sh}, {so} offen {SC}")
        if q < 7: k(f"s_add_u32 {so}, {so}, {2*32*16384}")
        hook(q)
    def sw32():
        o = pend[0][1]
        k(f"v_permlane32_swap_b32 {o[0]}, {o[1]}\nv_permlane32_swap_b32 {o[2]}, {o[3]}")
    for j in range(16):
        nr, ni = upair(acc, j, 0), upair(acc, j, 1)
        k(f"""v_pk_fma_f32 {nr}, {L}, {cr}, {nr}{BC0}
        v_pk_fma_f32 {ni}, {L}, {ci}, {ni}{BC0}""")
        if pend: sw32()
        k(f"""v_pk_fma_f32 {nr}, {L}, {ci}, {nr}{BC1}{NEG0}
        v_pk_fma_f32 {ni}, {L}, {cr}, {ni}{BC1}""")
        cr, ci = nr, ni
        if pend: flush()
        o = O.q((j // 2) % 3)
        h = 2 * (j & 1)
        k(f"v_cvt_pk_bf16_f32 {o[h]}, {nr[0]}, {nr[1]}\nv_cvt_pk_bf16_f32 {o[h+1]}, -{ni[0]}, -{ni[1]}")
        if j & 1: pend.append((j // 2, o))
    sw32(); flush()
    k.v.free(va, E, O, acc, E1['ca'], E1['cb'], E1['ma'], E1['mb'], *Pm.values()); k.s.free(so)
    return last

class B3g(B3f):
    def main(self, fill, pre_bar, post_bar, lastsub):
        k = self.k; NS = 16; acc, fr = self.acc, self.fr
        def reads(s, kk):
            f = fr.q(kk, 32); out = []
            for ib in range(8):
                off = (s % self.NST) * 32768 + ib * 2048 + kk * 256; hi = 2 if off >= 65536 else 0
                for h in range(2):
                    out.append(f"ds_read_b64_tr_b16 {f[4*ib+2*h:4*ib+2*h+2]}, {self.rh[hi+h]} offset:{off & 65535}")
            return out
        pre_bar(-1)
        k.wait(self.last[0]); k("s_barrier")
        lastrd = None
        for r in reads(0, 0): lastrd = k(r)
        for s in range(NS):
            for kk in range(2):
                f = fr.q(kk, 32); rd = []
                if kk == 0: rd = reads(s, 1)
                elif s + 1 < NS:
                    pre_bar(s)
                    k.wait(lastrd, self.last[s + 1]); k("s_barrier")
                    rd = reads(s + 1, 0)
                else: rd = lastsub(fr.q(0, 32))
                k.wait(lastrd)
                dm = [(s + self.D, 4 * kk + x) for x in range(4)]
                order = list(range(16))
                if s == NS - 1 and kk == 1: order = order[8:] + order[:8]
                for q, qq in enumerate(order):
                    ib, mm = qq >> 1, qq & 1
                    d = acc.q(8 * mm + ib)
                    zero = s == 0 and kk == 0 and ib >= 4
                    k(f"v_mfma_f32_16x16x32_bf16 {d}, {f.q(ib)}, {self.CL.frag(s,kk,mm)}, {0 if zero else d}")
                    if rd and q < 8:
                        k(rd[2 * q]); lastrd = k(rd[2 * q + 1])
                    if q >= 8 and q % 2 == 0: self.dma(*dm[(q - 8) // 2])
                    if q == 9 and kk == 1: post_bar(s)
                    fill(s, kk, q)
        k.v.free(self.vh, self.rh); k.s.free(self.so, self.mH)

def final_addr(k, I, ldsX, ldsY):
    A = dict(ad=k.v.alloc(), ay=k.v.alloc(), va=k.v.alloc(), so=k.s.alloc())
    t = k.v.alloc(); st = k.s.alloc(); ad, ay, va, so = A['ad'], A['ay'], A['va'], A['so']
    k(f"""s_lshl_b32 {st}, {I['w']}, {7 + I.get('khs', 6)}
    s_add_u32 {st}, {st}, {ldsX}
    v_lshl_add_u32 {ad}, {I['l']}, 4, {st}
    v_lshrrev_b32 {ay}, 5, {I['l']}
    v_lshlrev_b32 {ay}, 9, {ay}
    v_bfe_u32 {t}, {I['l']}, 3, 2
    v_lshl_or_b32 {ay}, {t}, 6, {ay}
    v_and_b32 {t}, 3, {I['l']}
    v_lshl_or_b32 {ay}, {t}, 4, {ay}
    v_bfe_u32 {t}, {I['l']}, 2, 1
    v_lshl_or_b32 {ay}, {t}, 3, {ay}
    s_lshr_b32 {st}, {I['w']}, 1
    s_lshl_b32 {st}, {st}, 13
    s_add_u32 {st}, {st}, {ldsY}
    v_add_u32 {ay}, {st}, {ay}
    v_lshlrev_b32 {va}, 18, {I['g']}
    v_lshl_or_b32 {va}, {I['n']}, 2, {va}
    s_and_b32 {so}, {I['w']}, 1
    s_lshl_b32 {so}, {so}, {16 + I.get('khs', 6)}
    s_lshl_b32 {st}, {I['ta']}, 12
    s_add_u32 {so}, {so}, {st}
    s_lshl_b32 {st}, {I['tb']}, 6
    s_add_u32 {so}, {so}, {st}
    s_lshr_b32 {st}, {I['w']}, 1
    s_lshl_b32 {st}, {st}, 11
    s_add_u32 {so}, {so}, {st}""")
    k.v.free(t); k.s.free(st)
    return A

def y_reads(A, Y):
    return [f"ds_read_b64_tr_b16 {Y[16*mm+4*kap+2*h:16*mm+4*kap+2*h+2]}, {A['ay']} offset:{4096*mm + 1024*kap + 256*h}"
            for kap in range(4) for mm in range(2) for h in range(2)]

def final2(k, A, g, acc, fr, G, so_, pf):
    Y, aa = fr.q(0, 32), fr.q(1, 32); ad, va, so = A['ad'], A['va'], A['so']; om = k.v.alloc(4)
    def mf(ib, side):
        for kap in range(4):
            for mm in range(2):
                d = aa.q(4 * mm + ib)
                k(f"v_mfma_f32_16x16x32_bf16 {d}, {G[ib>>1].q(4*(ib&1)+kap)}, {Y.q(4*mm+kap)}, {d if kap else 0}")
                if side: k(side.pop(0))
    wr = [f"ds_write_b128 {ad}, {acc.q(8*mm+4+ib)} offset:{1024*(4*mm+ib)}" for ib in range(4) for mm in range(2)]
    mf(0, wr)
    mf(1, [])
    k(f"v_xor_b32 {ad}, 0x2000, {ad}\ns_waitcnt lgkmcnt(0)\ns_barrier")
    pf("xbar")
    rd = [f"ds_read_b128 {acc.q(8*mm+4+ib)}, {ad} offset:{1024*(4*mm+ib)}" for ib in range(4) for mm in range(2)]
    mf(2, rd)
    def fin(ib):
        gg = g.q(ib)
        for h in (0, 2):
            k(f"""v_sub_f32 {om[h]}, 1.0, {gg[h]}
            v_sub_f32 {om[h+1]}, 1.0, {gg[h+1]}
            v_cvt_pk_bf16_f32 {om[h+1]}, {om[h]}, {om[h+1]}
            v_lshlrev_b32 {om[h]}, 16, {om[h+1]}
            v_and_b32 {om[h+1]}, 0xffff0000, {om[h+1]}""")
        for h in (0, 2):
            for mm in range(2):
                b = acc.q(8 * mm + ib); r = acc.q(8 * mm + 4 + ib); a = aa.q(4 * mm + ib)
                k(f"""v_pk_add_f32 {b[h:h+2]}, {b[h:h+2]}, {r[h:h+2]}
                v_pk_mul_f32 {a[h:h+2]}, {gg[h:h+2]}, {a[h:h+2]}
                v_pk_fma_f32 {b[h:h+2]}, {om[h:h+2]}, {b[h:h+2]}, {a[h:h+2]}""")
            for r in (h, h + 1):
                for mm in range(2):
                    k(f"buffer_store_dword {acc.q(8*mm+ib)[r]}, {va}, {so_}, {so} offen offset:{1024*mm} {OUTF}")
                if (ib, r) != (3, 3): k(f"s_add_u32 {so}, {so}, {(1<<16) if r < 3 else (1<<20) - 3*(1<<16)}")
    fin(0)
    mf(3, [])
    for ib in range(1, 4): fin(ib)

class B1g(B1f):
    def main(self, q, fill, pre_bar, post_bar, rate):
        k = self.k; NS = 16; acc, fr = self.acc, self.fr
        def reads(s, kk):
            f = fr.q((s * 4 + kk) & 1, 16); buf = (s % self.NST) * 16384
            out = []
            for b in range(2):
                out.append(f"ds_read_b128 {f.q(b)}, {self.ra[kk]} offset:{buf + 4096*b}")
                out.append(f"ds_read_b128 {f.q(2+b)}, {self.rb[kk]} offset:{buf + 4096*b}")
            return out
        k.wait(self.last[0], *getattr(self, 'extra', [])); k("s_barrier")
        lastrd = None; passed = -1
        for r in reads(0, 0): lastrd = k(r)
        for s in range(NS):
            for kk in range(4):
                f = fr.q((s * 4 + kk) & 1, 16)
                rd = []
                if kk < 3: rd = reads(s, kk + 1)
                elif s + 1 < NS:
                    pre_bar(s)
                    assert self.cnt[s + 1] == 8, (s, self.cnt)
                    k.wait(lastrd, self.last[s + 1]); k("s_barrier"); passed = s
                    rd = reads(s + 1, 0)
                if self.onew: k.wait(lastrd)
                od = ((0, 0), (0, 1), (1, 1), (1, 0))
                if self.order == 1: od = ((0, 0), (1, 0), (1, 1), (0, 1))
                if self.order == 2 and kk & 1: od = od[::-1]
                if self.order == 3: od = ((0, 0), (0, 1), (1, 0), (1, 1))
                for m, (rb, c) in enumerate(od):
                    d = acc.q(2 * rb + c, 16)
                    first = s == 0 and kk == 0
                    k(f"v_mfma_f32_32x32x16_bf16 {d}, {f.q(rb)}, {f.q(2+c)}, {0 if first else d}")
                    for _ in range(self.RD[m]):
                        if rd: lastrd = k(rd.pop(0))
                    if m == 1 and kk == 3: post_bar(s)
                    for _ in range(rate(s, kk, m)):
                        if q and q[0][0] <= passed: q.pop(0)[1]()
                    fill(s, kk, m)
        k.v.free(fr, self.va, self.vb, self.ra, self.rb); k.s.free(self.soA, self.soB, self.mA, self.mB)
        return acc
    cnt = None
    onew = 0
    order = 0
    RD = (2, 2, 0, 0)
    def dma(self, s, i):
        if self.cnt is None: self.cnt = {}
        self.cnt[s] = self.cnt.get(s, 0) + 1
        super().dma(s, i)

class B1k(B1g):
    def __init__(self, k, I, sx, sb):
        self.k, self.I, self.sx, self.sb = k, I, sx, sb
        self.va = k.v.alloc(4); self.vb = k.v.alloc(4)
        self.soA, self.soB, self.mA, self.mB = [k.s.alloc() for _ in range(4)]
        t = k.v.alloc(2); l = I['l']; va, vb = self.va, self.vb; st = self.soB
        k(f"""v_and_b32 {t[0]}, 7, {l}
        v_xor_b32 {t[0]}, {t[0]}, {I['g']}
        v_lshlrev_b32 {t[0]}, 4, {t[0]}
        v_lshrrev_b32 {t[1]}, 3, {l}
        v_lshl_or_b32 {vb[0]}, {t[1]}, 11, {t[0]}
        v_and_b32 {t[1]}, 32, {l}
        v_lshl_or_b32 {va[0]}, {t[1]}, 11, {t[0]}
        v_and_b32 {t[1]}, 8, {l}
        v_lshl_or_b32 {va[0]}, {t[1]}, 12, {va[0]}
        v_and_b32 {t[1]}, 16, {l}
        v_lshl_or_b32 {va[0]}, {t[1]}, 7, {va[0]}
        s_lshr_b32 {st}, {I['w']}, 1
        s_lshl1_add_u32 {self.mA}, {I['cb']}, {st}
        s_lshl_b32 {self.mA}, {self.mA}, 16
        v_add_u32 {vb[0]}, {self.mA}, {vb[0]}
        s_lshl1_add_u32 {self.mA}, {I['ca']}, {st}
        s_and_b32 {st}, {I['w']}, 1
        s_lshl3_add_u32 {self.mA}, {self.mA}, {st}
        s_lshl_b32 {self.mA}, {self.mA}, 14
        v_add_u32 {va[0]}, {self.mA}, {va[0]}
        v_xor_b32 {va[1]}, 64, {va[0]}
        v_xor_b32 {vb[1]}, 64, {vb[0]}
        v_add_u32 {va[1]}, {4096-1024}, {va[1]}
        v_add_u32 {vb[1]}, {16384-1024}, {vb[1]}
        v_add_u32 {va[2]}, {2*(4096-1024)}, {va[0]}
        v_add_u32 {vb[2]}, {2*(16384-1024)}, {vb[0]}
        v_add_u32 {va[3]}, {2*(4096-1024)}, {va[1]}
        v_add_u32 {vb[3]}, {2*(16384-1024)}, {vb[1]}
        s_lshl_b32 {self.mA}, {I['w']}, 12
        s_add_u32 {self.mB}, {self.mA}, 65536
        s_lshl_b32 {self.soA}, {I['ca']}, 7""")
        k.v.free(t)
        self.last = {}; self.tail = None; self.extra = []
    def readers(self):
        k, I = self.k, self.I; l = I['l']
        self.ra = k.v.alloc(4); self.rb = k.v.alloc(4); t = k.v.alloc(2); st = self.soB
        k(f"""v_bfe_u32 {t[0]}, {l}, 1, 3
        v_lshrrev_b32 {t[1]}, 5, {l}
        v_xor_b32 {t[0]}, {t[0]}, {t[1]}
        v_lshlrev_b32 {t[0]}, 4, {t[0]}
        v_and_b32 {t[1]}, 31, {l}
        v_lshl_or_b32 {t[0]}, {t[1]}, 7, {t[0]}
        s_lshr_b32 {st}, {I['w']}, 1
        v_lshl_add_u32 {self.ra[0]}, {st}, 13, {t[0]}
        s_and_b32 {st}, {I['w']}, 1
        s_or_b32 {st}, {st}, 8
        v_lshl_add_u32 {self.rb[0]}, {st}, 13, {t[0]}""")
        for kk in range(1, 4): k(f"v_xor_b32 {self.ra[kk]}, {32*kk}, {self.ra[0]}\nv_xor_b32 {self.rb[kk]}, {32*kk}, {self.rb[0]}")
        k.v.free(t)

def xtile_addr(k, I, lds_off):
    va = k.v.alloc(); t = k.v.alloc(); so = k.s.alloc()
    k(f"""v_bfe_u32 {t}, {I['l']}, 1, 2
    v_xor_b32 {t}, {t}, {I['g']}
    v_lshlrev_b32 {va}, 9, {t}
    v_and_b32 {t}, 1, {I['l']}
    v_lshl_or_b32 {va}, {t}, 4, {va}
    v_lshrrev_b32 {t}, 3, {I['l']}
    v_lshl_or_b32 {va}, {t}, 15, {va}
    s_lshl_b32 {so}, {I['w']}, 9
    s_add_u32 {so}, {so}, {I['ta']}
    s_lshl_b32 {so}, {so}, 6
    s_add_u32 {so}, {so}, {I['tb']}
    s_lshl_b32 {so}, {so}, 5
    s_lshl_b32 m0, {I['w']}, 12
    s_add_u32 m0, m0, {lds_off}""")
    k.v.free(t)
    return va, so

def ids2(k):
    I = {n: k.s.alloc() for n in ('w', 'k1p', 'slot', 'ca', 'cb', 'ta', 'tb', 'rc')}
    I['l'] = k.v.alloc(); I['n'] = k.v.alloc(); I['g'] = k.v.alloc(); i8 = k.s.alloc()
    k(f"""v_readfirstlane_b32 {I['w']}, v0
    v_and_b32 {I['l']}, 63, v0
    v_and_b32 {I['n']}, 15, v0
    v_bfe_u32 {I['g']}, v0, 4, 2
    s_bfe_u32 {I['k1p']}, s2, 0x20003
    s_lshr_b32 {i8}, s2, 5
    s_lshr_b32 {I['w']}, {I['w']}, 6
    s_and_b32 {I['ca']}, s2, 3
    s_lshl2_add_u32 {I['ca']}, {I['ca']}, {I['k1p']}
    s_bfe_u32 {I['cb']}, s2, 0x10002
    s_lshl3_add_u32 {I['cb']}, {I['cb']}, {i8}
    s_and_b32 {I['rc']}, s2, 1
    s_lshl3_add_u32 {I['ta']}, {I['rc']}, {i8}
    s_lshl1_add_u32 {I['rc']}, {i8}, {I['rc']}
    s_bfe_u32 {I['tb']}, s2, 0x20001
    s_lshl2_add_u32 {I['tb']}, {I['tb']}, {I['k1p']}
    s_and_b32 {I['slot']}, s2, 7
    s_lshl3_add_u32 {I['slot']}, {I['slot']}, {i8}""")
    k.s.free(i8)
    return I

class B3h:
    D = 3
    catch = False
    def __init__(self, k, I, sh, CL):
        self.k, self.I, self.sh, self.CL = k, I, sh, CL
        self.vh = k.v.alloc(2); self.rh = k.v.alloc(4)
        self.so, self.mH = k.s.alloc(), k.s.alloc()
        t = k.v.alloc(2); st = k.s.alloc(); l = I['l']
        k(f"""s_and_b32 {st}, {I['w']}, 1
        s_mul_i32 {self.mH}, {st}, {16384 + 4096}
        s_lshl_b32 {self.so}, {I['ta']}, 19
        s_add_u32 {self.mH}, {self.mH}, {self.so}
        v_lshl_add_u32 {self.vh[0]}, {l}, 4, {self.mH}
        v_xor_b32 {self.vh[1]}, 4096, {self.vh[0]}
        s_lshr_b32 {self.so}, {I['w']}, 1
        s_add_u32 {self.so}, {self.so}, {I['rc']}
        s_and_b32 {self.so}, {self.so}, 15
        s_lshl_b32 {self.so}, {self.so}, 15
        s_lshl_b32 {self.mH}, {I['w']}, 13
        v_and_b32 {t[0]}, 3, {l}
        v_and_b32 {t[1]}, 2, {I['g']}
        v_xor_b32 {t[1]}, {t[1]}, {t[0]}
        v_lshlrev_b32 {t[0]}, 9, {t[0]}
        v_lshl_or_b32 {t[0]}, {t[1]}, 6, {t[0]}
        v_bfe_u32 {t[1]}, {l}, 2, 2
        v_lshl_or_b32 {t[0]}, {t[1]}, 4, {t[0]}
        v_and_b32 {t[1]}, 1, {I['g']}
        v_lshl_or_b32 {t[0]}, {t[1]}, 3, {t[0]}
        s_lshl_b32 {st}, {st}, 13
        v_add_u32 {self.rh[0]}, {st}, {t[0]}
        v_xor_b32 {self.rh[1]}, 64, {self.rh[0]}
        v_add_u32 {self.rh[2]}, 0x10000, {self.rh[0]}
        v_add_u32 {self.rh[3]}, 0x10000, {self.rh[1]}""")
        k.v.free(t); k.s.free(st)
        self.last = {}; self.cnt = {}
    def dma(self, s, i):
        k = self.k
        if i & 3 == 0: k(f"s_add_u32 m0, {self.mH}, {(s % 4)*32768 + (i>>2)*4096}")
        self.last[s] = k(f"buffer_load_dwordx4 {self.vh[i>>2]}, {self.sh}, {self.so} offen offset:{1024*(i&3)} {SC} lds")
        self.cnt[s] = self.cnt.get(s, 0) + 1
        if i == 7: k(f"s_add_u32 {self.so}, {self.so}, {65536 + (8192 if s == 7 else 0)}\ns_and_b32 {self.so}, {self.so}, 0x7ffff")
    def alloc(self):
        self.acc = [self.k.v.allocq(32), self.k.v.allocq(32)]; self.fr = self.k.v.allocq(64)
    def main(self, dq, fill, pre_bar, post_bar):
        k = self.k; NS = 16; fr = self.fr
        def reads(s, u):
            f = fr.q(u, 32); out = []
            for kk in range(2):
                for ib in range(4):
                    off = (s % 4) * 32768 + u * 16384 + ib * 2048 + kk * 256; hi = 2 if off >= 65536 else 0
                    for h in range(2):
                        o = 16 * kk + 4 * ib + 2 * h
                        out.append(f"ds_read_b64_tr_b16 {f[o:o+2]}, {self.rh[hi+h]} offset:{off & 65535}")
            return out
        k.wait(self.last[0]); k("s_barrier")
        lastrd = None
        for r in reads(0, 0): lastrd = k(r)
        for s in range(NS):
            acc = self.acc[s >> 3]
            for u in range(2):
                f = fr.q(u, 32); rd = []
                if u == 0: rd = reads(s, 1)
                elif s + 1 < NS:
                    pre_bar(s)
                    assert self.cnt[s + 1] == 8
                    k.wait(lastrd, self.last[s + 1]); k("s_barrier")
                    rd = reads(s + 1, 0)
                k.wait(lastrd)
                order = [(kk, ib, mm ^ (ib & 1)) for kk in range(2) for ib in range(4) for mm in range(2)]
                if s & 7 == 7 and u == 1: order = [x for x in order if x[1] >= 2] + [x for x in order if x[1] < 2]
                for q, (kk, ib, mm) in enumerate(order):
                    d = acc.q(4 * mm + ib)
                    zero = s & 7 == 0 and u == 0 and kk == 0 and ib >= 2
                    k(f"v_mfma_f32_16x16x32_bf16 {d}, {f.q(4*kk+ib)}, {self.CL.frag(2*(s&7)+u,kk,mm)}, {0 if zero else d}")
                    if rd and q < 8:
                        k(rd[2 * q]); lastrd = k(rd[2 * q + 1])
                    if q >= 8 and dq and dq[0][0] <= s + self.D and (q % 2 == 0 or (s == 0 and self.catch)): self.dma(*dq.pop(0))
                    if q == 9 and u == 1: post_bar(s)
                    fill(s, u, q)
        assert not dq
        k.v.free(self.vh, self.rh); k.s.free(self.so, self.mH)

def xkeep3(k, I, ldsX):
    XK = k.v.allocq(16, 2); ad = k.v.alloc(2); t = k.v.alloc(2); st = k.s.alloc()
    k(f"""s_and_b32 {st}, {I['w']}, 1
    s_lshl_b32 {st}, {st}, 12
    s_add_u32 {st}, {st}, {ldsX}
    v_lshrrev_b32 {t[0]}, 2, {I['l']}
    v_lshlrev_b32 {t[0]}, 7, {t[0]}
    v_and_b32 {t[1]}, 3, {I['l']}
    v_lshl_or_b32 {t[0]}, {t[1]}, 3, {t[0]}
    v_add_u32 {t[0]}, {st}, {t[0]}
    v_bfe_u32 {t[1]}, {I['l']}, 3, 2
    s_and_b32 {st}, {I['w']}, 2
    v_xor_b32 {t[1]}, {st}, {t[1]}
    v_lshl_add_u32 {ad[0]}, {t[1]}, 5, {t[0]}
    v_xor_b32 {ad[1]}, 32, {ad[0]}""")
    for h in range(2):
        for mm in range(2):
            for ib in range(2): k(f"ds_read_b64_tr_b16 {XK.q(4*h+2*mm+ib,2)}, {ad[mm]} offset:{8192*h + 2048*ib}")
    k.v.free(ad, t); k.s.free(st)
    return XK

def xd_init3(k, XK, Dk, acc):
    for h in range(2):
        for mm in range(2):
            sel = f" op_sel:[{mm},0] op_sel_hi:[{mm},1]"
            for ib in range(2):
                a = acc[h].q(4 * mm + ib); x = XK.q(4 * h + 2 * mm + ib, 2)
                k(f"""v_lshlrev_b32 {a[0]}, 16, {x[0]}
                v_and_b32 {a[1]}, 0xffff0000, {x[0]}
                v_lshlrev_b32 {a[2]}, 16, {x[1]}
                v_and_b32 {a[3]}, 0xffff0000, {x[1]}
                v_pk_mul_f32 {a[0:2]}, {Dk}, {a[0:2]}{sel}
                v_pk_mul_f32 {a[2:4]}, {Dk}, {a[2:4]}{sel}""")
    k.v.free(XK, Dk)

def fin3(k, A, g, acc, aa, so_, h, flags, added):
    va, so = A['va'], A['so']
    for ib in range(2):
        gg = g.q(2 * h + ib)
        for x in (0, 2):
            for mm in range(2):
                b = acc.q(4 * mm + ib); a = aa(mm, ib)
                if not added: k(f"v_pk_add_f32 {b[x:x+2]}, {b[x:x+2]}, {acc.q(4*mm+2+ib)[x:x+2]}")
                k(f"v_pk_add_f32 {a[x:x+2]}, {a[x:x+2]}, {b[x:x+2]} neg_lo:[0,1] neg_hi:[0,1]")
            for mm in range(2):
                b = acc.q(4 * mm + ib); a = aa(mm, ib)
                k(f"v_pk_fma_f32 {b[x:x+2]}, {gg[x:x+2]}, {a[x:x+2]}, {b[x:x+2]}")
            for r in (x, x + 1):
                for mm in range(2):
                    k(f"buffer_store_dword {acc.q(4*mm+ib)[r]}, {va}, {so_}, {so} offen offset:{1024*mm} {flags}")
                step = (1 << 16) if r < 3 else ((1 << 20) if ib == 0 else (3 << 20)) - 3 * (1 << 16)
                if (h, ib, r) != (1, 1, 3): k(f"s_add_u32 {so}, {so}, {step}")

def ph3_list(G, Y, aa):
    return [f"v_mfma_f32_16x16x32_bf16 {aa(mm,ib)}, {G.q(4*ib+kap)}, {Y.q(4*mm+kap)}, {aa(mm,ib) if kap else 0}"
            for kap in range(4) for ib in range(2) for mm in range(2)]

def code_touch(k, I, wave, nbytes, dst):
    r = k.s.alloc(2); so = k.s.alloc(); va = k.v.alloc(2)
    per = -(-nbytes // (32 * 128)); lab = k.lab('pc')
    k(f"s_cmp_lg_u32 {I['w']}, {wave}")
    with k.skip_if("s_cbranch_scc1"):
        k(f"""s_getpc_b64 {r}
        {lab}:
        s_lshr_b32 {so}, s2, 3
        s_mul_i32 {so}, {so}, {per*128}
        v_min_u32 {va[0]}, {per-1}, {I['l']}
        v_lshl_add_u32 {va[0]}, {va[0]}, 7, {so}
        v_min_u32 {va[0]}, {k.name}_end-{lab}, {va[0]}
        v_mov_b32 {va[1]}, 0
        v_lshl_add_u64 {va}, {va}, 0, {r}
        global_load_dword {dst}, {va}, off""").defs = set()
    k.s.free(r, so); k.v.free(va)

def pretouch(k, I, swr, swi, sc, CLv, dst, what):
    va = k.v.alloc(); t = k.v.alloc(); r0, r1 = k.s.alloc(), k.s.alloc()
    if 'w' in what:
        k(f"""s_lshl_b32 {r0}, {I['k1p']}, 2
        s_add_u32 {r0}, {r0}, {I['w']}
        s_lshl_b32 {r0}, {r0}, 7
        s_add_u32 {r0}, {r0}, {I['slot']}
        s_sub_u32 {r1}, 2048, {r0}
        s_and_b32 {r1}, {r1}, 2047
        s_mul_i32 {r0}, {r0}, 1026
        s_mul_i32 {r1}, {r1}, 1026
        s_sub_u32 {r1}, {r1}, {r0}
        v_and_b32 {t}, 1, {I['g']}
        v_mul_lo_u32 {t}, {t}, {r1}
        v_lshl_add_u32 {va}, {I['n']}, 7, {r0}
        v_add_u32 {va}, {va}, {t}
        v_and_b32 {va}, -4, {va}
        s_mov_b64 exec, 0x01ff01ff
        buffer_load_dword {dst}, {va}, {swr}, 0 offen
        buffer_load_dword {dst}, {va}, {swi}, 0 offen offset:1024
        s_mov_b64 exec, -1""")
    if 'c' in what:
        k(f"""s_lshr_b32 {r0}, {I['w']}, 1
        s_lshl_b32 {r0}, {r0}, 20
        s_lshl_b32 {r1}, {I['tb']}, 15
        s_add_u32 {r0}, {r0}, {r1}
        v_lshl_add_u32 {va}, {I['n']}, 11, {r0}
        v_and_b32 {t}, 1, {I['g']}
        v_lshl_add_u32 {va}, {t}, 19, {va}
        v_lshrrev_b32 {t}, 1, {I['g']}
        v_add_u32 {t}, {I['rc']}, {t}
        v_and_b32 {t}, 15, {t}
        v_lshl_add_u32 {va}, {t}, 7, {va}""")
        if '2' not in what: k("s_mov_b32 exec_hi, 0")
        k(f"buffer_load_dword {dst}, {va}, {sc}, 0 offen\ns_mov_b64 exec, -1")
    for i in k.ins[-40:]:
        if i.mn == 'buffer_load_dword' and i.defs == {('v', dst.idx)}: i.defs = set()
    k.v.free(va, t); k.s.free(r0, r1)

class Touch:
    def __init__(self, k, I, swr, swi, sc, dst):
        self.k, self.I, self.swr, self.swi, self.sc, self.dst = k, I, swr, swi, sc, dst
        self.vw, self.vc = k.v.alloc(), k.v.alloc(); t = k.v.alloc(); r0, r1 = k.s.alloc(), k.s.alloc(); va = self.vw
        k(f"""s_lshl_b32 {r0}, {I['k1p']}, 2
        s_add_u32 {r0}, {r0}, {I['w']}
        s_lshl_b32 {r0}, {r0}, 7
        s_add_u32 {r0}, {r0}, {I['slot']}
        s_sub_u32 {r1}, 2048, {r0}
        s_and_b32 {r1}, {r1}, 2047
        s_mul_i32 {r0}, {r0}, 1026
        s_mul_i32 {r1}, {r1}, 1026
        s_sub_u32 {r1}, {r1}, {r0}
        v_and_b32 {t}, 1, {I['g']}
        v_mul_lo_u32 {self.vc}, {t}, {r1}
        v_lshl_add_u32 {va}, {I['n']}, 7, {r0}
        v_add_u32 {va}, {va}, {self.vc}
        v_and_b32 {va}, -4, {va}""")
        va = self.vc
        k(f"""s_lshr_b32 {r0}, {I['w']}, 1
        s_lshl_b32 {r0}, {r0}, 20
        s_lshl_b32 {r1}, {I['tb']}, 15
        s_add_u32 {r0}, {r0}, {r1}
        v_lshl_add_u32 {va}, {I['n']}, 11, {r0}
        v_lshl_add_u32 {va}, {t}, 19, {va}
        v_lshrrev_b32 {t}, 1, {I['g']}
        v_add_u32 {t}, {I['rc']}, {t}
        v_and_b32 {t}, 15, {t}
        v_lshl_add_u32 {va}, {t}, 7, {va}""")
        k.v.free(t); k.s.free(r0, r1)
    def go(self, what, wave):
        k = self.k
        k(f"s_cmp_lg_u32 {self.I['w']}, {wave}")
        with k.skip_if("s_cbranch_scc1"):
            if what == 'w':
                k("s_mov_b64 exec, 0x01ff01ff")
                k(f"buffer_load_dword {self.dst}, {self.vw}, {self.swr}, 0 offen").defs = set()
                k(f"buffer_load_dword {self.dst}, {self.vw}, {self.swi}, 0 offen offset:1024").defs = set()
            else:
                if what != 'b': k(f"s_mov_b32 exec_{'hi' if what == 'c' else 'lo'}, 0")
                k(f"buffer_load_dword {self.dst}, {self.vc}, {self.sc}, 0 offen").defs = set()
            k("s_mov_b64 exec, -1")
    def done(self): self.k.v.free(self.vw, self.vc)

def build(opt={}):
    O = dict(sig=8, v2s=-1, vf=-1, early=0, shadow=1, spos=0, cpos=0, x1=4, p0=30, lead0=300, p1=56, lead1=60, gpos=1, cearly=0, n0=8, n1=16, pb=70, nb=2, nlb=1, pc=64, leadc=0, late=3, gseam=1, fast=0, lag=2, hmark=1, pollat=1, touch=1, gL=0, gls=8, grp=0, xm=0, hoist=0, seam2=0, nc2=0, pc2=64, lead2=200, pm=3, onew=0, ord1=0, rd1=2200, b1f='_', hf='sc1', ord3=0, r1=0, ctpos=0, ctw=0, cfirst=0, wtail=4, bars=0, gx=300, v2r=2, eo=1, es=26, er=4, vp=0, sk=2, bf=1, sr=8, lr=4, wpos=0, D=5, cpre=1, clag=1, fl=12, pl=23, pld=2, m2s=10, ptq=0, gap=-1, ntail=3, fend=99, tt=0, tsp=2, m32=0, xs=8, xb=0, vr=1, rate=2, yrr=2, scal=1, clr=1, fm=65535, gl=1, pt='w', pts=11, two=1, pre3=2, pg=48, pv=3, pd=2, yd=1, yl=1, yr=1000, fs=13, oaf='sc1', obf='sc1', fr=24, map8=1, rot1=2, gloc=1, rotc=1)
    O.update({'cfirst': 1, 'wpos': 1, 'gap': 14, 'wtail': 2, 'nb': 3, 'late': 7, 'pts': 10, 'gpos': 0, 'bars': 'x012345678ac', 'p1': 70, 'fend': 15, 'fr': 6, 'hmark': 1, 'p0': 20, 'm2s': 10, 'pc': 80, 'lead1': 0, 'shadow': -1, 'pollat': 0, 'n0': 4, 'n1': 20, 'fast': 0, 'er': 4, 'lead0': 150})
    O.update(dict(gL=1, xm=1, hoist=1, n0=0, n1=24, p1=50, pl=23, gls=4, pb=30, m2s=12, pollat=1))
    O.update(opt)
    k = Kernel(NAME + "_kernel", nv=256, na=256)
    LX = 131072; LT2 = LX + 16384; LDS = LT2 + 16384
    A0, A1, A2, A3, B0, B1_, B2, B3_ = [16384 * i for i in range(8)]
    k("s_cmp_ge_u32 s2, 256")
    k(f"s_cbranch_scc1 {k.name}_end")
    KP = k.s.alloc(32, 4)
    k(f"s_load_dwordx16 {KP[0:16]}, s[0:1], 0\ns_load_dwordx16 {KP[16:32]}, s[0:1], 64")
    P = {n: KP[o // 4:o // 4 + 2] for n, o in KA.items()}
    def rel(*names):
        for n in names: k.s.free(P.pop(n))
    I = ids2(k); cd = k.v.alloc(); I['tag'] = O['sk'] >= 2
    pf = Prof(k, 0)
    if O['ctpos'] == 0: code_touch(k, I, O['ctw'], 40960, cd)
    if O.get('cnt'):
        nm, thr = O['cnt'], O['thr']; sl = srd(k, P[nm], 1 << 21); tv = k.v.alloc(2); t0_, t1_ = k.s.alloc(2), k.s.alloc(2); so_ = k.s.alloc(); lp = k.lab('cnt')
        k(f"""v_mov_b32 {tv[0]}, s2
        v_lshlrev_b32 {tv[0]}, 8, {tv[0]}
        s_mov_b32 {so_}, 0
        s_mov_b32 {pf.ta}, 0
        s_mov_b32 {pf.tb}, 0
        s_waitcnt vmcnt(0) lgkmcnt(0)
        s_cmp_lg_u32 {I['w']}, 0
        s_cbranch_scc1 {lp}x
        s_cmp_lg_u32 s2, 77
        s_cbranch_scc1 {lp}x
        {lp}:
        s_memtime {t0_}
        s_waitcnt lgkmcnt(0)
        buffer_load_dword {tv[1]}, {tv[0]}, {sl}, {so_} offen
        s_waitcnt vmcnt(0)
        s_memtime {t1_}
        s_waitcnt lgkmcnt(0)
        s_sub_u32 {t1_[0]}, {t1_[0]}, {t0_[0]}
        s_cmp_gt_u32 {t1_[0]}, {thr}
        s_cselect_b32 {t1_[0]}, {'100' if thr else t1_[0]}, 0
        s_add_u32 {pf.tb}, {pf.tb}, {t1_[0]}
        s_add_u32 {so_}, {so_}, 61696
        s_cmp_lt_u32 {so_}, {32*61696}
        s_cbranch_scc1 {lp}
        {lp}x:""")
        if not thr: k(f"s_lshr_b32 {pf.tb}, {pf.tb}, 3")
        k.s.free(sl, t0_, t1_, so_); k.v.free(tv)
    sx, sb = k.s.alloc(4), k.s.alloc(4)
    k(f"s_mov_b32 {sx[2]}, {SZ['x']}\ns_mov_b32 {sx[3]}, 0x20000\ns_mov_b32 {sb[2]}, {SZ['bre']}\ns_mov_b32 {sb[3]}, 0x20000")
    xva, xso = xtile_addr(k, I, LX)
    if O.get('fakex'):
        tq = k.v.alloc()
        if O['fakex'] == 1:
            k(f"v_and_b32 {tq}, 7, {I['l']}\nv_and_b32 {xva}, 0xffff8000, {xva}\nv_lshl_or_b32 {xva}, {tq}, 4, {xva}\ns_and_b32 {xso}, {xso}, 0xfffff800\ns_lshl_b32 vcc_lo, {I['tb']}, 7\ns_add_u32 {xso}, {xso}, vcc_lo")
        else:
            k(f"v_and_b32 {tq}, 3, {I['l']}\nv_and_b32 {xva}, 0xffff8000, {xva}\nv_lshl_or_b32 {xva}, {tq}, 4, {xva}\nv_and_b32 {tq}, 4, {I['l']}\nv_lshl_or_b32 {xva}, {tq}, 8, {xva}\ns_and_b32 {xso}, {xso}, 0xfffff800\ns_lshl_b32 vcc_lo, {I['tb']}, 6\ns_add_u32 {xso}, {xso}, vcc_lo")
        k.v.free(tq)
    if O['shadow'] >= 0: g1 = B1k(k, I, sx, sb)
    if O['shadow'] >= 1: g1.readers()
    k(f"s_mov_b64 {sx[0:2]}, {P['x']}")
    pf('ka')
    WD2.NB = O.get('wnb', 4)
    XI = dict(j=0); B1f.FL = O['b1f'].replace('_', ' '); B3s.ORD = O['ord3']; B1f.GRP = O['grp']
    def x1():
        j = XI['j']; XI['j'] += 1
        if j == O['x1']: k(f"s_add_u32 m0, {g1.mA}, {LX}")
        XI['ld'] = k(f"buffer_load_dwordx4 {xva}, {sx}, {xso} offen offset:{1024*j} lds")
        if j < 3: k(f"s_add_u32 {xso}, {xso}, {8*32768 - 1024}")
    for j in range(O['x1']): x1()
    if O['ctpos'] == 1: code_touch(k, I, O['ctw'], 40960, cd)
    if O['shadow'] < 0: g1 = B1k(k, I, sx, sb)
    k(f"s_bitcmp1_b32 {I['w']}, 0\ns_cselect_b64 {sb[0:2]}, {P['bim']}, {P['bre']}")
    rel('x', 'bx', 'bre', 'bim')
    pf('xi')
    def vm1(cap):
        def f():
            while cap.groups:
                v = any(i.cls == 'vm' for i in cap.groups[0]); cap.emit(1)
                if v: break
        return f
    H = {}
    CA = k.a.alloc(256)
    dq = [(-1 if s < 4 else s - 4, lambda s=s, i=i: g1.dma(s, i)) for s in range(0, 16) for i in range(8)]
    take = lambda n: [dq.pop(0)[1] for _ in range(n)]
    if O['r1']:
        for ch in O['r1']:
            if ch == 'g':
                sgw0 = srd(k, P['gw'], SZ['gw']); H['Gt'] = gate_issue2(k, I, sx, sgw0); k.s.free(sgw0)
            if ch in 'ba':
                for f_ in take(4): f_()
            if ch == 'w':
                a_, b_ = srd(k, P['wr'], SZ['wr']), k.s.alloc(4)
                k(f"s_sub_u32 {b_[0]}, {P['wi'][0]}, 1024\ns_subb_u32 {b_[1]}, {P['wi'][1]}, 0\ns_mov_b32 {b_[2]}, {SZ['wi'] + 1024}\ns_mov_b32 {b_[3]}, 0x20000")
                pretouch(k, I, a_, b_, None, None, cd, 'w'); k.s.free(a_, b_)
    elif O['x1'] < 4:
        for f_ in take(4): f_()
    T = ph2_params(k, I)
    if O['cpos'] == 0: cw = coop_consts(k, I, T, LT2, 2.0 ** -20)
    with k.capture() as c0:
        if O['shadow'] < 1: g1.readers()
        if O['m32'] or O['sk'] == 3:
            I['lp'] = k.v.alloc(); tt = k.s.alloc()
            k(f"s_and_b32 {tt}, {I['ca']}, 2\ns_lshl_b32 {tt}, {tt}, 3\nv_xor_b32 {I['lp']}, {tt}, {I['l']}\ns_lshl_b32 {tt}, {tt}, 7")
            for q in range(4): k(f"v_xor_b32 {g1.rb[q]}, {tt}, {g1.rb[q]}")
            k.s.free(tt)
        sf = srd(k, P['ws'], WS_FP - WS_F + 131072, WS_F)
        FV, FH = k.s.alloc(), k.s.alloc()
        zero = k.v.alloc(); vpc = k.v.alloc()
        k(f"""v_mov_b32 {zero}, 0
        v_lshlrev_b32 {vpc}, 4, v0
        s_mov_b32 {FV}, 4096
        s_cmp_lg_u32 s2, 0""")
        with k.skip_if("s_cbranch_scc1"):
            tz = k.v.alloc(4)
            for j in range(4): k(f"v_mov_b32 {tz[j]}, 0")
            k(f"buffer_store_dwordx4 {tz}, {vpc}, {sf}, 0 offen {SC}")
            g1.extra.append(k(f"buffer_store_dwordx4 {tz}, {vpc}, {sf}, {FV} offen {SC}"))
            k.v.free(tz)
        sgw = srd(k, P['gw'], SZ['gw']); rel('gw')
        t4 = [srd(k, P[n], 2048) for n in ('lre', 'lim', 'ldt', 'dsk')]; rel('lre', 'lim', 'ldt', 'dsk')
        sv1 = srd(k, P['ws'], 256 * V1_STR, WS_V1)
        F = gen_F2(k, I)
    acts = [x1] * (4 - O['x1']) + take(8 - g1.cnt.get(0, 0) if g1.cnt else 8)
    c0.weave(acts, O['p0'], O['lead0'])
    while acts: acts.pop(0)()
    pf('su')
    ldx = XI['ld']; k.v.free(xva); k.s.free(xso)
    with k.capture() as small:
        Q = ssm_param_issue(k, I, *t4[:3]); Dk = (dsk_issueS if O['sk'] else dsk_issue32 if O['m32'] else dsk_issue)(k, I, t4[3])
    if O['gL']: assert not O['grp'] and O['v2s'] == -1 and not O['seam2']; GL = GateL(k, I, sgw, g1.mA, A3)
    with k.capture() as gl:
        if not O['gL']: Gt = H.get('Gt') or gate_issue2(k, I, sx, sgw)
    if O.get('nogate'): gl.groups = [g for g in gl.groups if not any(i.cls == 'vm' for i in g)]
    if O['spos'] == 0: small.emit(999)
    if O['cpos'] == 1: cw = coop_consts(k, I, T, LT2, 2.0 ** -20)
    pf("F")
    small.flush(); k.s.free(*t4)
    acts = ([vm1(gl)] * 6 if O['gpos'] == 0 else []) + take(O['n0'])
    while acts: acts.pop(0)()
    k.wait(ldx, cw); k("s_barrier"); pf("xt")
    with k.capture() as c1:
        def h1(n):
            if O['gL'] and n == 't':
                h1.n += 1
                if h1.n == O['gls']: GL.setup()
        h1.n = 0
        O1 = ph1f(k, I, F, LX, sv1, h1)
        k.v.free(F)
        XK = (xkeepM if O['xm'] else xkeepU if O['sk'] == 3 else xkeepS if O['sk'] else xkeep32 if O['m32'] else xkeep3 if O['two'] else xkeep)(k, I, LX)
    if O['gL']:
        j3 = len(dq) - 12 * 8 - 4; f3 = dq[j3][1]
        def g3a():
            assert any(i is GL.rd for i in k.ins); k.wait(GL.rd); f3()
        dq[j3] = (dq[j3][0], g3a)
    acts = take(O['n1'])
    c1.weave(acts, O['p1'], O['lead1'])
    while acts: acts.pop(0)()
    if O['gpos'] <= 1: gl.flush(); k.s.free(sgw)
    pf("ph1")
    g1.alloc(); g1.onew = O['onew']; g1.order = O['ord1']; g1.RD = [int(c) for c in str(O['rd1'])]
    if O['gpos'] == 2:
        pos = 32 - 8 - O['n0'] - O['n1']
        dq[pos:pos] = [(-1, vm1(gl))] * 6
    with k.capture() as fl1:
        ph1_store(k, *O1, sv1)
        if O.get('nov1'): k.ins = []
        one = k.v.alloc(); vfc = k.v.alloc(); vfh = k.v.alloc(); sdbg = srd(k, P['dbg'], 256); rel('dbg')
        k(f"""s_and_b32 {FH}, s2, 7
        s_lshl_b32 {FH}, {FH}, 8
        s_add_u32 {FH}, {FH}, s2
        s_and_b32 {FH}, {FH}, -8
        s_lshl_b32 {FH}, {FH}, 1
        v_mov_b32 {vfc}, {FH}
        s_lshl4_add_u32 {FH}, {I['cb']}, {I['ca']}
        s_lshl_b32 {FH}, {FH}, 7
        v_lshl_add_u32 {vfh}, {I['n']}, 2, {FH}
        s_mov_b32 {FH}, 8192
        v_mov_b32 {one}, 1""")
        st = k.s.alloc()
        k(f"s_lshl_b32 {st}, {I['cb']}, 14")
        se = srd(k, P['ws'], 8192, WS_E, st)
        t = k.v.alloc(2)
        k(f"""s_sub_u32 {st}, 15, {I['ca']}
        s_lshl_b32 {st}, {st}, 9
        v_lshl_add_u32 {t[0]}, v0, 2, {st}
        v_mov_b32 {t[1]}, -1
        s_cmp_ge_u32 {I['w']}, 2""")
        with k.skip_if("s_cbranch_scc1"):
            H['clr'] = k(f"buffer_store_dword {t[1]}, {t[0]}, {se}, 0 offen {SC}")
        wave0_store(k, I, f"buffer_store_dword {zero}, {vfh}, {sf}, {FH} offen {SC}", O['fm'])
        if O['sk'] == 1:
            FP = k.s.alloc()
            k(f"""s_lshl4_add_u32 {FP}, {I['ta']}, {I['tb']}
            s_lshl2_add_u32 {FP}, {FP}, {I['w']}
            s_lshl_b32 {FP}, {FP}, 7
            s_add_u32 {FP}, {FP}, {WS_FP - WS_F}
            v_lshlrev_b32 {t[0]}, 2, {I['n']}
            s_mov_b64 exec, 0xffff
            buffer_store_dword {zero}, {t[0]}, {sf}, {FP} offen {SC}
            s_mov_b64 exec, -1""")
        k(f"s_or_b32 {st}, {I['w']}, s2\ns_cmp_lg_u32 {st}, 0")
        with k.skip_if("s_cbranch_scc1"):
            k(f"s_mov_b64 exec, 1\nbuffer_store_dword {one}, {zero}, {sdbg}, 0 offen {SC}\ns_mov_b64 exec, -1")
        k.v.free(t); k.s.free(st)
        if O['sk']:
            sc = srd(k, P['cre'], SZ['cre']); sc_i = srd(k, P['cim'], SZ['cim']); rel('cre', 'cim')
            CL = (CLoadU if O['sk'] == 3 else CLoadS)(k, I, sc, sc_i, CA)
        else:
            sc = srd_sel(k, I, P['cre'], P['cim'], SZ['cre']); rel('cre', 'cim')
            CL = (CLoad32 if O['m32'] else CLoad)(k, I, sc, CA)
        swr = srd(k, P['wr'], SZ['wr'])
        swi = k.s.alloc(4)
        k(f"s_sub_u32 {swi[0]}, {P['wi'][0]}, 1024\ns_subb_u32 {swi[1]}, {P['wi'][1]}, 0\ns_mov_b32 {swi[2]}, {SZ['wi'] + 1024}\ns_mov_b32 {swi[3]}, 0x20000")
        rel('wr', 'wi')
        if O['tt']: TT = Touch(k, I, swr, swi, sc, cd)
        nfirst = len(k.ins)
        sg = srd(k, P['ws'], G_BYTES, WS_G)
        lastst = None if O['gL'] else gate_compute2(k, I, Gt, sg, LX if O['gl'] else None)
        nsec = len(k.ins)
        H['C2'] = coop_read(k, I, LT2, {n: CA[224 + 8 * j:232 + 8 * j] for j, n in enumerate(('m2f', 'm2i', 'm1i', 'si'))})
        wsl = (A0, A1, B1_, A2) if O['cfirst'] else (LX, A0, B0, A1)
        WD = WD2(k, I, T, swr, swi, wsl, LT2)
        nthird = len(k.ins)
        Pm = ssm_param_compute(k, Q)
        scan_addr(k, I, Pm, LT2)
        E1h = {}; hstore_addr(k, I, E1h)
        if O['sk'] == 3: Dk = diagU(k, I, Dk)
        if O['xm']: Dk = diagM(k, I, Dk)
        if O['hoist']:
            sh = srd(k, P['ws'], 8 << 20, WS_H); sv2 = srd(k, P['ws'], 256 * V2_STR, WS_V2)
            g3 = B3s(k, I, sh, CL)
        ntot = len(k.ins)
    print("B1 fillers", nfirst, nsec, nthird, ntot)
    for u in range(O['cearly']):
        pos = [j for j, x in enumerate(dq) if x[0] == 2 + 3 * u][0]
        dq[pos:pos] = [(-1, lambda: CL.issue(LX))]
    p0 = Poll(k, sdbg, zero, 1, 1, sleep=16)
    p1 = Poll(k, sf, vpc, 1, 1, sleep=16)
    dq.append((-1, lambda: (p1.issue(), WD.extra_issue())))
    if O['ptq']: dq.append((-1, lambda: pretouch(k, I, swr, swi, sc, CL, cd, O['ptq'])))
    gap = O['gap']; wq = []
    if O['cfirst']:
        tslots = [(-1, LX), (12, B0), (14, B2)]
        for s, slot in tslots[:2]: dq += [(s, lambda slot=slot: CL.issue1(slot))] * 4
        wq = [(max(s, gap), WD.issue1) for s in (12, 13, 13, 14) for _ in range(4)]
        dq += wq[:4 * O['wtail']]; wq = wq[4 * O['wtail']:]; O['ntail'] = 2
    else:
        dq += [(gap, WD.issue1)] * 4
        for s, slot in ((12, A0), (12, B0), (13, A1)): dq += [(s, WD.issue1)] * 4
        tslots = [(13, B1_), (14, A2), (14, B2)]
        for s, slot in tslots[:O['ntail']]: dq += [(s, lambda slot=slot: CL.issue1(slot))] * 4
    pf("pre")
    def pre_bar(s):
        if O['gl'] and s == 5: k.wait(lastst)
        if s == O['sig']: k.wait(H.get('gs') if O['gl'] else lastst, H['clr'])
    def post_bar(s):
        if O['touch'] and s in (4, 11): code_touch(k, I, 1 + (s & 1), 16384, cd)
        if O['pt'] and s == O['pts']: pretouch(k, I, swr, swi, sc, CL, cd, O['pt'])
        if O['gl'] and s == 5 and not O['gL']: H['gs'] = gate_store(k, I, sg, LX)
        if s == O['sig'] - 3: p0.issue()
        if s == O['sig']:
            fl1.emit_until_safe()
            p0.finish()
            wave0_store(k, I, f"buffer_store_dword {one}, {vfc}, {sf}, 0 offen {SC}")
    def fill1(s, kk, m):
        tgt = [(0, 34), (1, nfirst), (2, nfirst), (4, nsec), (9, nthird), (14, ntot)]
        x = s + (4 * kk + m + 1) / 16.0 - 1; px, py = -1, 0
        for qx, qy in tgt:
            if x <= qx: want = py + (qy - py) * (x - px) / (qx - px); break
            px, py = qx, qy
        else: want = ntot
        while fl1.groups and ntot - fl1.left() < want: fl1.emit(1)
        if O['gL'] and kk == 0 and m == 1: GL.read(s)
        if O['gL'] and kk == 2 and m == 2: GL.dot(s)
        if s == 3 and kk == 0 and m == 0 and O['gpos'] == 2: gl.flush(); k.s.free(sgw)
        if O['tt'] and m == 3 and kk in (0, 2):
            x = 2 * s + kk // 2
            for what, s0_ in re.findall(r'([wcdb])(\d+)', O['tt']):
                d = x - 2 * int(s0_)
                if d >= 0 and d % O['tsp'] == 0 and d // O['tsp'] < 4: TT.go(what, d // O['tsp'])
        if s == 14 and kk == 3 and m == 3:
            fl1.flush()
            if O['tt']: TT.done()
        if kk == 1 and m == 0 and s >= 5 and s % 3 == 2 and CL.nd < O['cearly']: CL.drain()
        if kk == 3 and m == 0 and (s % 4 == 3 or PROFSEL): pf(f"a{s}")
    def rate(s, kk, m):
        if s < O['fast'] or s >= O['fend']: return 1 if m >= 1 else 0
        return 1 if m >= 2 else 0
    acc = g1.main(dq, fill1, pre_bar, post_bar, rate)
    pf("main1")
    k.s.free(sx, sb, sdbg); k.v.free(zero)
    with k.capture() as c2:
        E1 = pass1c(k, I, acc, Pm, LT2); E1.update(E1h)
    acts = [x[1] for x in dq]; print("queue left after B1:", len(acts))
    c2.weave(acts, 64)
    while acts: acts.pop(0)()
    p1.finish()
    k.wait(E1['w']); k("s_barrier")
    publish(k, I, E1, Pm, se)
    pf("pass1")
    LT1 = A3
    C2 = H['C2']; nlate = O['late']; assert nlate >= 2
    free = [B3_] + [x[1] for x in tslots[O['ntail']:]]; state = dict(cur=None)
    def c1act():
        if CL.n >= 64 - 4 * nlate: return
        if CL.n & 3 == 0:
            if not free: free.append(CL.drain())
            state['cur'] = free.pop(0)
            if not free and CL.nd < CL.n // 4 - O['lag'] + 1: free.append(CL.drain())
        CL.issue1(state['cur'])
    def cfinish():
        while CL.n & 3: c1act()
    L1 = v1_issue(k, I, T, sv1, SC); k.s.free(sv1)
    with k.capture() as c3:
        if O['wpos'] == 0: Wf, WX = WD.gather_all()
        scan_coef(k, acc, Pm)
        carry_prep(k, I, E1, Pm)
        if O['wpos'] == 0: WD.fix(Wf, WX)
    assert not wq or O['wpos'] == 1
    acts = [x[1] for x in wq] + [c1act] * (4 * O['nb'])
    c3.weave(acts, O['pb'], 100)
    while WD.n < 16: WD.issue1()
    cfinish()
    if O['wpos'] == 0: free.extend([x for x in wsl if x != LX])
    LookBack.N = O.get('lbn', 8)
    lb = LookBack(k, Pm, se)
    for j in range(2 * LookBack.N, 16): k(f'v_mov_b32 {lb.E[j]}, 0')
    lb.issue()
    pf("coef")
    with k.capture() as c4:
        if O['gL']: GL.finish(LT2 + 8192)
        t1w = ph2_s1(k, I, C2, L1, LT1)
    acts = [c1act] * (4 * O['nlb'])
    c4.weave(acts, O['pb'])
    cfinish()
    pf("s1")
    E = lb.finish(); k.s.free(se)
    pf("lb")
    if not O['hoist']: sh = srd(k, P['ws'], 8 << 20, WS_H)
    lasth = pass2c(k, I, acc, Pm, E1, E, sh, lambda q: None)
    pf("pass2")
    if O['wpos'] == 1: Wf, WX = WD.gather_all()
    while CL.nd < CL.n // 4: free.append(CL.drain())
    if O['wpos'] == 1: WD.fix(Wf, WX); free.extend([x for x in wsl if x != LX])
    if O['touch']: code_touch(k, I, 3, 16384, cd)
    if O['seam2']: return seam2(k, I, O, P, H, locals())
    k.wait(t1w); k("s_barrier")
    if O['gL']: gate_store(k, I, sg, LT2 + 8192)
    pf("bar1")
    vph = k.v.alloc()
    if O['sk']:
        tt = k.s.alloc()
        k(f"s_lshr_b32 {tt}, {I['tb']}, 3\ns_lshl2_add_u32 {tt}, {tt}, {I['w']}\ns_lshl_b32 {tt}, {tt}, 12\nv_lshl_add_u32 {vph}, {I['l']}, 7, {tt}")
        k.s.free(tt)
        p3 = Poll(k, sf, vph, 1, 1, FH, mask=0xffffffff)
    else:
        k(f"v_lshlrev_b32 {vph}, 7, v0")
        p3 = Poll(k, sf, vph, 1, 1, FH)
    def mark(i):
        if i == O['hmark']:
            k.wait(lasth); k("s_barrier")
            wave0_store(k, I, f"buffer_store_dword {one}, {vfh}, {sf}, {FH} offen {SC}", O['fm'])
            pf("hflag")
    with k.capture() as c5: ph2_mid(k, I, T, C2, Wf, WX, LT1, LT2, mark)
    acts = [c1act] * (64 - 4 * nlate - CL.n); print("C instr in mid:", len(acts))
    c5.weave(acts, O['pc'], O['leadc'])
    print("C instr left after mid:", len(acts))
    while acts: acts.pop(0)()
    pf("mid")
    if O['pollat'] == 0: p3.issue()
    k("s_waitcnt lgkmcnt(0)\ns_barrier")
    V2 = ph2_s6(k, I, C2, LT2)
    if O['pollat'] == 1: p3.issue()
    if not O['hoist']: sv2 = srd(k, P['ws'], 256 * V2_STR, WS_V2)
    while CL.nd < CL.n // 4: CL.drain()
    with k.capture() as cv2:
        if O['v2s'] == -1 and O.get('fakev2'):
            D_, ad_, so_ = V2
            k(f"v_lshl_add_u32 {ad_}, {I['n']}, 2, {ad_}\ns_and_b32 {so_}, {so_}, -128")
            for j in range(8):
                H['v2'] = k(f"buffer_store_dwordx2 {D_[2*j:2*j+2]}, {ad_}, {sv2}, {so_} offen {SC}")
                k(f"s_add_u32 {so_}, {so_}, {8*V2_STR if j & 1 else V2_STR * (1 + 2 * (O['fakev2'] - 1))}")
            k.v.free(D_, ad_); k.s.free(so_)
        elif O['v2s'] == -1: H['v2'] = v2_store(k, *V2, sv2)
    if not O['vp']: cv2.flush()
    with k.capture() as c7:
        if not O['hoist']: g3 = (B3u if O['sk'] == 3 else B3s if O['sk'] else B3m if O['m32'] else B3h if O['two'] else B3g)(k, I, sh, CL)
        g3.alloc()
        (xd_initM if O['xm'] else xd_initU if O['sk'] == 3 else xd_initS if O['sk'] else xd_init32 if O['m32'] else xd_init3 if O['two'] else xd_init2)(k, XK, Dk, g3.acc)
        if O['pollat'] == 2: p3.issue()
        if O['gseam'] == 2: H['G1'] = gen_GS(k, I) if O['sk'] else gen_G1b(k, dict(I, khs=5))
    acts = [vm1(cv2)] * 16 if O['vp'] else []
    c7.weave(acts, O['vp'])
    cv2.flush()
    pf("s6")
    p3.finish(); k.v.free(vph)
    k("s_waitcnt lgkmcnt(0)\ns_barrier")
    pf("sync3")
    if O['sk'] == 3: return tailU(k, I, O, P, H, locals())
    if O['sk'] == 2: return tailT(k, I, O, P, H, locals())
    if O['sk']: return tailS(k, I, O, P, H, locals())
    if O['m32']: return tail32(k, I, O, P, H, locals())
    if O['two']: return two_pass_tail(k, I, O, P, H, locals())
    acts = [lambda s=s, i=i: g3.dma(s, i) for s in range(3) for i in range(8)]
    G1 = None
    if O['gseam']:
        with k.capture() as cg: G1 = gen_G1b(k, I)
        for _ in range(2): acts.pop(0)()
        cg.weave(acts, 48)
    while acts: acts.pop(0)()
    so = srd(k, P['out'], SZ['out'])
    with k.capture() as f3a:
        if O['v2s'] >= 0: H['v2'] = v2_store(k, *V2, sv2)
    with k.capture() as f3b:
        if G1 is None: G1 = gen_G1b(k, I)
        FA = final_addr(k, I, 0, LX)
    pf("pref")
    p4 = Poll(k, sf, vpc, 1, 1, FV, sleep=16)
    VS = O['v2s']
    def pre_bar3(s):
        if s == VS + 3: k.wait(H['v2'])
        if s == 10:
            f3b.flush(); p4.finish()
        if s == 14: H['c'].flush(); k.wait(H['yw'])
    def post_bar3(s):
        if s == VS + 3: wave0_store(k, I, f"buffer_store_dword {one}, {vfc}, {sf}, {FV} offen {SC}")
        if O['touch'] and s == 5: code_touch(k, I, 1, 12288, cd)
        if s == 8: p4.issue()
        if s == 10:
            L2 = v2_issue2(k, I, sv2)
            with k.capture() as H['c']:
                H['yw'] = y_stage2(k, I, L2, LX)
        if s == 14:
            H['g'] = g_issue2(k, I, sg)
            with k.capture() as H['d']:
                H['G2'] = gen_G2(k, I, G1)
    def fill3(s, kk, q):
        if s == VS and f3a.left(): f3a.emit(2)
        if s == max(VS, 0) and kk == 1 and q == 15: f3a.flush()
        if s > VS and q >= 8: f3b.emit(2)
        if q == 15 and kk == 0 and 3 <= s < 3 + nlate: CL.drain()
        if q == 15 and kk == 1 and 1 <= s < 1 + nlate: CL.issue((LX, LT2)[s & 1])
        if s >= 13 and 'c' in H and q >= 6: H['c'].emit(O.get('yr') or 4)
        if 'd' in H and q >= 8: H['d'].emit(O.get('gr') or 4)
        if kk == 1 and q == 0 and s % 4 == 3: pf(f"b{s}")
    g3.main(fill3, pre_bar3, post_bar3, lambda Y: y_reads(FA, Y))
    assert CL.nd == 16
    H['d'].flush()
    pf("main3")
    final2(k, FA, H['g'], g3.acc, g3.fr, (G1, H['G2']), so, pf)
    pf("epi")
    pf.done()
    end(k)
    return k, LDS

def two_pass_tail(k, I, O, P, H, L):
    g3, CL, pf, sf, sg, sv2, V2, vpc, vfc, one, FV, cd, LX, LT2, nlate = [L[n] for n in 'g3 CL pf sf sg sv2 V2 vpc vfc one FV cd LX LT2 nlate'.split()]
    dq = [(s, i) for s in range(16) for i in range(8)]
    acts = [lambda: g3.dma(*dq.pop(0))] * (8 * O['pre3'])
    I2 = dict(I, khs=5); g3.catch = O['pre3'] == 2
    with k.capture() as cg: G1 = H.get('G1') or gen_G1b(k, I2)
    for _ in range(2): acts.pop(0)()
    cg.weave(acts, O['pg'])
    while acts: acts.pop(0)()
    so = srd(k, P['out'], SZ['out'])
    with k.capture() as f3a:
        if O['v2s'] >= 0: H['v2'] = v2_store(k, *V2, sv2)
    with k.capture() as f3b:
        FA = final_addr(k, I2, LT2, LX)
    pf("pref")
    p4 = Poll(k, sf, vpc, 1, 1, FV, sleep=16)
    VS = O['v2s']; PV = O['pv']; VF = O.get('vf', VS + 3); PF = PV + O['pd']; YS = PF + O['yd']; YB = YS + O['yl']; acc = g3.acc; ad = FA['ad']
    aa0 = lambda mm, ib: acc[0].q(4 * mm + 2 + ib)
    S = {}
    def cap(name, fn):
        with k.capture() as S[name]: fn()
    def pre_bar3(s):
        if s == VF: k.wait(H['v2'])
        if s == PF: f3b.flush(); p4.finish()
        if s == 8: S['xw'].flush(); k.wait(H['xw'])
        if s == YB: S['y'].flush(); k.wait(H['yw'])
    def post_bar3(s):
        if O['touch'] and s == 4: code_touch(k, I, 1, 16384, cd)
        if s == VF: wave0_store(k, I, f"buffer_store_dword {one}, {vfc}, {sf}, {FV} offen {SC}")
        if s == PV: p4.issue()
        if s == PF:
            L2 = v2_issue2(k, I, sv2)
            H['g'] = g_issue2(k, I2, sg)
            def f(): H['yw'] = y_stage2(k, I, L2, LX)
            cap('y', f)
        if s == 8:
            def f():
                k(f"v_xor_b32 {ad}, 0x1000, {ad}")
                for mm in range(2):
                    for ib in range(2): k(f"ds_read_b128 {aa0(mm,ib)}, {ad} offset:{1024*(2*mm+ib)}")
                k(f"v_xor_b32 {ad}, 0x1000, {ad}")
            f()
            def f2():
                for mm in range(2):
                    for ib in range(2):
                        for x in (0, 2): pk(k, '+', acc[0].q(4*mm+ib)[x:x+2], acc[0].q(4*mm+ib)[x:x+2], aa0(mm, ib)[x:x+2])
            cap('add', f2)
        if s == YB:
            H['Y'] = k.v.allocq(32)
            def f():
                for r in y_reads(FA, H['Y']): k(r)
            cap('yr', f)
            def f2():
                for m in ph3_list(G1, H['Y'], aa0): k(m)
            cap('m', f2)
            def f3():
                fin3(k, FA, H['g'], acc[0], aa0, so, 0, O['oaf'].replace('_', ''), True)
                for j in range(1, 32, 2): k(f"v_xor_b32 {G1[j]}, 0x80008000, {G1[j]}")
            cap('fin', f3)
    def fill3(s, u, q):
        if s == VS and f3a.left(): f3a.emit(2)
        if s == max(VS, 0) and u == 1 and q == 15: f3a.flush()
        if s > VS and q >= 8: f3b.emit(2)
        if q == 15 and u == 0 and 3 <= s < 3 + nlate: CL.drain()
        if q == 15 and u == 1 and 1 <= s < 1 + nlate: CL.issue((LX, LT2)[s & 1])
        if s == 8 and u == 0:
            if q == 0:
                def f():
                    for mm in range(2):
                        for ib in range(2): H['xw'] = k(f"ds_write_b128 {ad}, {aa0(mm,ib)} offset:{1024*(2*mm+ib)}")
                cap('xw', f)
            if q >= 8 and q & 1: S['xw'].emit(1)
        if s == 9 and u == 0 and q >= 8: S['add'].emit(O.get('yr') or 1)
        if s == 9 and u == 0 and q == 15: S['add'].flush()
        if 'y' in S and (s, u) >= (YS, 1) and q >= 8: S['y'].emit(O.get('yr') or -(-7 // O['yl']))
        if 'yr' in S:
            if S['yr'].left(): S['yr'].emit(3)
            elif S['m'].left():
                if (s, u) >= (YB + 1, 0) and q >= 8: S['m'].emit(2)
            elif (s, u) >= (max(YB + 1, O['fs']), 1) and (q >= 8 or s >= 13): S['fin'].emit(O['fr'])
        if u == 1 and q == 0 and (s % 4 == 3 or PROFSEL): pf(f"b{s}")
    g3.main(dq, fill3, pre_bar3, post_bar3)
    assert CL.nd == 16
    print("fin(a) left after main:", S['fin'].left())
    for n in ('yr', 'm', 'fin'): S[n].flush()
    pf("main3")
    ml = ph3_list(G1, H['Y'], aa0)
    wr = [f"ds_write_b128 {ad}, {acc[1].q(4*mm+2+ib)} offset:{1024*(2*mm+ib)}" for ib in range(2) for mm in range(2)]
    for j in range(8):
        k(ml.pop(0))
        if j & 1 == 0: k(wr.pop(0))
    k(f"v_xor_b32 {ad}, 0x1000, {ad}\ns_waitcnt lgkmcnt(0)\ns_barrier")
    pf("xbar")
    rd = [f"ds_read_b128 {acc[1].q(4*mm+2+ib)}, {ad} offset:{1024*(2*mm+ib)}" for ib in range(2) for mm in range(2)]
    while ml:
        k(ml.pop(0))
        if rd: k(rd.pop(0))
    fin3(k, FA, H['g'], acc[1], aa0, so, 1, O['obf'].replace('_', ''), False)
    pf("epi")
    k.v.free(g3.fr)
    pf.done()
    end(k)
    return k, L['LDS']

def tail32(k, I, O, P, H, L):
    g3, CL, pf, sf, sg, sv2, V2, vpc, vfc, one, FV, cd, LX, LT2, nlate = [L[n] for n in 'g3 CL pf sf sg sv2 V2 vpc vfc one FV cd LX LT2 nlate'.split()]
    dq = [(s, i) for s in range(16) for i in range(8)]
    acts = [lambda: g3.dma(*dq.pop(0))] * (8 * O['pre3'])
    g3.catch = O['pre3'] == 2
    with k.capture() as cg: G1 = gen_G32(k, I)
    if O['gseam']:
        for _ in range(2): acts.pop(0)()
        cg.weave(acts, O['pg'])
    while acts: acts.pop(0)()
    so = srd(k, P['out'], SZ['out'])
    with k.capture() as f3a:
        if O['v2s'] >= 0: H['v2'] = v2_store(k, *V2, sv2)
    with k.capture() as f3b:
        FA = final_addr32(k, I, LT2, LX)
    pf("pref")
    p4 = Poll(k, sf, vpc, 1, 1, FV, sleep=16)
    VS = O['v2s']; PV = O['pv']; VF = O.get('vf', VS + 3); PF = PV + O['pd']; YS = PF + O['yd']; YB = YS + O['yl']
    acc = g3.acc; ad = FA['ad']; aa = acc[0].q(1, 16); FR = O['rate']
    S = {}; XS = O['xs']; assert 8 <= XS and XS + 1 <= YB
    def addbf(y, p):
        for j in range(8):
            k(f"""v_lshlrev_b32 {p[8+j]}, 16, {p[j]}
            v_and_b32 {p[j]}, 0xffff0000, {p[j]}
            v_add_f32 {y[2*j]}, {y[2*j]}, {p[8+j]}
            v_add_f32 {y[2*j+1]}, {y[2*j+1]}, {p[j]}""")
    def cap(name, fn):
        with k.capture() as S[name]: fn()
    def pre_bar3(s):
        if s == VF: k.wait(H['v2'])
        if s == PF: f3b.flush(); cg.flush(); p4.finish()
        if s == XS: S['xw'].flush(); k.wait(H['xw'])
        if s == YB: S['vl'].flush(); S['y'].flush(); k.wait(H['yw'])
    def post_bar3(s):
        if O['touch'] and s == 4: code_touch(k, I, 1, 16384, cd)
        if s == VF: wave0_store(k, I, f"buffer_store_dword {one}, {vfc}, {sf}, {FV} offen {SC}")
        if s == PV: p4.issue()
        if s == PF:
            def f0():
                H['L2'] = v2_issue2(k, I, sv2)
            cap('vl', f0)
            S['vl'].emit(6)
            def f(): H['yw'] = y_stage2(k, I, H['L2'], LX, O['scal'])
            cap('y', f)
        if s == XS:
            k(f"v_xor_b32 {ad}, 0x1000, {ad}")
            for j in range(2): k(f"ds_read_b128 {aa.q(j)}, {ad} offset:{1024*j}")
            k(f"v_xor_b32 {ad}, 0x1000, {ad}")
            def f2(): addbf(acc[0].q(0, 16), aa)
            cap('add', f2)
        if s == YB:
            H['Y'] = k.v.allocq(32); H['g'] = k.v.allocq(16)
            def f():
                for r in y_reads32(FA, H['Y']): k(r)
            cap('yr', f)
            def f2():
                for m in ph3_list32(G1, H['Y'], aa): k(m)
            cap('m', f2)
            def f3():
                k.wait(H['gl']); g_read32(k, FA, H['g'], 0)
                for j in range(1, 32, 2): k(f"v_xor_b32 {G1[j]}, 0x80008000, {G1[j]}")
                fin32(k, FA, H['g'], acc[0].q(0, 16), None, aa, so, 0, O['oaf'].replace('_', ''), O['scal'])
                g_read32(k, FA, H['g'], 1)
            cap('fin', f3)
    def fill3(s, u, q):
        if s == VS and f3a.left(): f3a.emit(4)
        if s == max(VS, 0) and u == 1 and q == 7: f3a.flush()
        if s > VS:
            if f3b.left(): f3b.emit(FR)
            else: cg.emit(FR)
        if q == 7 and u == 0 and 3 <= s < 3 + nlate: CL.drain()
        if q == 7 and u == 1 and 1 <= s < 1 + nlate: CL.issue((LX, LT2)[s & 1])
        if s == 7 and u == 0 and q == 7: H['gl'] = g_dma32(k, I, FA, sg, LT2 + 2048)
        if s == XS and u == 0:
            if q == 0:
                def f():
                    for j in range(8): k(f"v_cvt_pk_bf16_f32 {aa[j]}, {aa[2*j]}, {aa[2*j+1]}")
                    for j in range(2): H['xw'] = k(f"ds_write_b128 {ad}, {aa.q(j)} offset:{1024*j}")
                cap('xw', f)
            if q >= 2: S['xw'].emit(2)
        if s == XS + 1: S['add'].emit(2)
        if s == XS + 1 and u == 1 and q == 7: S['add'].flush()
        if 'vl' in S and q == 7: S['vl'].emit(O['vr'])
        if 'y' in S and (s, u) >= (YS, 1):
            assert S['vl'].left() == 0
            S['y'].emit(O.get('yr') or -(-(10 if O['scal'] else 7) // O['yl']))
        if 'yr' in S:
            if S['yr'].left(): S['yr'].emit(O['yrr'])
            elif S['m'].left():
                if (s, u) >= (YB + 1, 1): S['m'].emit(1)
            elif (s, u) >= (max(YB + 2, O['fs']), 0): S['fin'].emit(O['fr'])
        if u == 1 and q == 0 and (s % 4 == 3 or PROFSEL): pf(f"b{s}")
    g3.main(dq, fill3, pre_bar3, post_bar3)
    assert CL.nd == 16
    print("fin(a) left after main:", S['fin'].left())
    for n in ('yr', 'm', 'fin'): S[n].flush()
    pf("main3")
    ml = ph3_list32(G1, H['Y'], aa); snt = acc[1].q(1, 16)
    y = acc[1].q(0, 16)
    if O['xb']:
        for j in range(2):
            k(ml.pop(0))
            for x in range(4 * j, 4 * j + 4): k(f"v_cvt_pk_bf16_f32 {snt[x]}, {snt[2*x]}, {snt[2*x+1]}")
            k(f"ds_write_b128 {ad}, {snt.q(j)} offset:{1024*j}")
        k(ml.pop(0)); k(ml.pop(0))
        k(f"v_xor_b32 {ad}, 0x1000, {ad}\ns_waitcnt lgkmcnt(0)\ns_barrier")
        pf("xbar")
        k(ml.pop(0))
        for j in range(2): k(f"ds_read_b128 {snt.q(j)}, {ad} offset:{1024*j}")
        while ml: k(ml.pop(0))
        addbf(y, snt)
    else:
        k(f"v_subrev_u32 {ad}, {LT2}, {ad}")
        for j in range(4): k(ml.pop(0)); k(f"ds_write_b128 {ad}, {snt.q(j)} offset:{1024*j}")
        k(ml.pop(0))
        k(f"v_xor_b32 {ad}, 0x1000, {ad}\ns_waitcnt lgkmcnt(0)\ns_barrier")
        pf("xbar")
        k(ml.pop(0))
        for j in range(4): k(f"ds_read_b128 {snt.q(j)}, {ad} offset:{1024*j}")
        while ml: k(ml.pop(0))
        for x in range(0, 16, 2): k(f"v_pk_add_f32 {y[x:x+2]}, {y[x:x+2]}, {snt[x:x+2]}")
    fin32(k, FA, H['g'], y, None, aa, so, 1, O['obf'].replace('_', ''))
    pf("epi")
    k.v.free(g3.fr)
    pf.done()
    end(k)
    return k, L['LDS']

def tailS(k, I, O, P, H, L):
    g3, CL, pf, sf, sg, sv2, V2, vpc, vfc, one, FV, FP, cd, LX, LT2, nlate = [L[n] for n in 'g3 CL pf sf sg sv2 V2 vpc vfc one FV FP cd LX LT2 nlate'.split()]
    assert O['v2s'] < 0
    hq = [(s, i) for s in range(16) for i in range(4)]
    cslots = [L['B2'], L['B3_'], LT2]
    def cnext():
        if CL.n & 3 == 0: H['cs'] = cslots.pop(0)
        CL.issue1(H['cs'])
    acts = [lambda: g3.dma(*hq.pop(0))] * (4 * O['pre3']) + [cnext] * (4 * min(nlate, O['cpre']))
    with k.capture() as cg:
        G1 = H.get('G1') or gen_GS(k, I)
    for _ in range(2): acts.pop(0)()
    cg.weave(acts, O['pg'])
    while acts: acts.pop(0)()
    if O['v2s'] == -2: H['v2'] = v2_store(k, *V2, sv2)
    with k.capture() as f3b:
        so = srd(k, P['out'], SZ['out']); spx = srd(k, P['ws'], 8 << 20, WS_PX)
        A = addrS(k, I, LX)
        spec = k.s.alloc(); vfl = k.v.alloc()
        k(f"s_lshr_b32 {spec}, {I['tb']}, 3\ns_or_b32 {spec}, {spec}, {I['w']}\ns_and_b32 {spec}, {spec}, 1\nv_lshlrev_b32 {vfl}, 2, {I['n']}")
    pf("pref")
    p4 = Poll(k, sf, vpc, 1, 1, FV, sleep=16)
    PV = O['pv']; VF = O['vf']; PF = PV + O['pd']; YS = PF + O['yd']; YB = YS + O['yl']; D = O['D']
    MS = max(YB + 1, 8); FL = O['fl']; PL = O['pl']
    acc = g3.acc; S = {}; BF = O['bf']
    def cap(name, fn):
        with k.capture() as S[name]: fn()
    def gload():
        for ib in range(4): k(f"buffer_load_dwordx4 {H['g'].q(ib)}, {A['vg']}, {sg}, {A['sg']} offen offset:{256*ib} {SC}")
    def mix(y, aa, b):
        g = H['g'].q(b & 3)
        for x in (0, 2): k(f"v_pk_add_f32 {aa.q(b)[x:x+2]}, {aa.q(b)[x:x+2]}, {y.q(b)[x:x+2]} neg_lo:[0,1] neg_hi:[0,1]")
        for x in (0, 2): k(f"v_pk_fma_f32 {y.q(b)[x:x+2]}, {g[x:x+2]}, {aa.q(b)[x:x+2]}, {y.q(b)[x:x+2]}")
    def vm(s, u, x):
        if x == 0:
            late_c = CL.n < 64 and cslots
            H['mode'] = 'c' if (late_c and u == 1) else ('h' if hq and hq[0][0] <= s + D - (1 - u) * 0 and hq[0][0] < s + u + g3.NR else None)
        if H['mode'] == 'c': cnext()
        if H['mode'] == 'h': g3.dma(*hq.pop(0))
    def pre_bar3(s):
        if s == VF: k.wait(H['v2'])
        if s == PF: f3b.flush(); p4.finish()
        if s == YB: S['y'].flush(); k.wait(H['yw'])
    def post_bar3(s):
        if O['touch'] and s == 4: code_touch(k, I, 1, 16384, cd)
        if s == VF: wave0_store(k, I, f"buffer_store_dword {one}, {vfc}, {sf}, {FV} offen {SC}")
        if s == PV: p4.issue()
        if s == PF:
            L2 = k.v.allocq(16)
            for j in range(4): k(f"buffer_load_dwordx4 {L2.q(j)}, {A['l16']}, {sv2}, {A['sv']} offen offset:{1024*j} {SC}")
            def f(): H['yw'] = y_stage2(k, I, L2, LX, False, spec)
            cap('y', f)
        if s == YB:
            H['Y'] = k.v.allocq(16); H['aa'] = aa = k.v.allocq(32); H['g'] = k.v.allocq(16); gload()
            for r in y_readsS(A, H['Y']): k(r)
            def f2():
                for m in ph3_listS(G1, H['Y'], aa): k(m)
            cap('m', f2)
            def f3():
                for j in range(1, 32, 2): k(f"v_xor_b32 {G1[j]}, 0x80008000, {G1[j]}")
                for b in range(8):
                    mix(acc[0], aa, b)
                    if BF:
                        for x in range(2): k(f"v_cvt_pk_bf16_f32 {acc[0][2*b+x]}, {acc[0][4*b+2*x]}, {acc[0][4*b+2*x+1]}")
                k(f"s_xor_b32 {A['sg']}, {A['sg']}, 1024")
            cap('fin', f3)
            def st1(b):
                if b == 4: k(f"s_add_u32 {A['px']}, {A['px']}, 4096")
                H['ps'] = k(f"buffer_store_dwordx4 {acc[0].q(b)}, {A['l16']}, {spx}, {A['px']} offen offset:{1024*(b&3)} {SC}")
            H['sq'] = [lambda b=b: st1(b) for b in range(4 if BF else 8)]
            def f4():
                for m in ph3_listS(G1, H['Y'], aa): k(m)
            cap('m2', f4)
        if s == FL:
            assert not H['sq'] and not S['fin'].left()
            k.wait(H['ps'])
            k(f"s_xor_b32 {A['px']}, {A['px']}, {8 << 15}")
            k(f"s_mov_b64 exec, 0xffff\nbuffer_store_dword {one}, {vfl}, {sf}, {FP} offen {SC}\ns_mov_b64 exec, -1\ns_xor_b32 {FP}, {FP}, {8 << 9}")
            H['p5'] = Poll(k, sf, vfl, 1, 1, FP, sleep=3, mask=1)
            gload()
    def pload():
        H['p5'].finish()
        def ld1(b):
            if b == 0 and not BF: k(f"s_sub_u32 {A['px']}, {A['px']}, 4096")
            k(f"buffer_load_dwordx4 {acc[0].q(b ^ (2 if BF else 4))}, {A['l16']}, {spx}, {A['px']} offen offset:{1024*(b&3)} {SC}")
        H['lq'] = [lambda b=b: ld1(b) for b in ((2, 0, 3, 1) if BF else (4, 5, 6, 7, 0, 1, 2, 3))]
    def fill3(s, u, q):
        if q >= 8: f3b.emit(2)
        if q == 15 and u == 0 and CL.nd < 16 and CL.nd < CL.n // 4 and (CL.nd < CL.n // 4 - O['clag'] or CL.n == 64 and s >= O.get('cend', 0) or CL.nd <= 2 * s + 3):
            cslots.append(CL.drain())
        if 'y' in S and (s, u) >= (YS, 1) and q >= 8: S['y'].emit(1000)
        if 'm' in S:
            if S['m'].left():
                if (s, u) >= (YB + 1, 0) and q >= 8: S['m'].emit(2)
            elif S['fin'].left():
                if (s, u) >= (MS, 1) and q >= 8: S['fin'].emit(O['fr'])
            elif (s, u) >= (O['m2s'], 0) and q >= 8: S['m2'].emit(2)
        if H.get('sq') and not S['fin'].left() and q % O['sr'] == O['sr'] - 1: H['sq'].pop(0)()
        if H.get('lq') and q % O['lr'] == O['lr'] - 1: H['lq'].pop(0)()
        if 2 * s + u == PL and q == 8: H['p5'].issue()
        if 2 * s + u == PL + O['pld'] and q == 8: pload()
        if u == 1 and q == 0 and (s % 4 == 3 or PROFSEL): pf(f"b{s}")
    g3.main(vm, fill3, pre_bar3, post_bar3)
    assert CL.nd == 16 and not hq
    for n in ('m', 'fin', 'm2'): S[n].flush()
    pf("main3")
    if PL + O['pld'] > 31: pload()
    while H['lq']: H['lq'].pop(0)()
    y = acc[1]; aa = H['aa']; va, so_ = A['va'], A['so']
    for ib in range(4):
        for mm in range(2):
            b = 4 * mm + ib
            mix(y, aa, b)
            for x in (0, 2):
                p_ = acc[0].q(b)[x:x+2]
                if BF:
                    p_ = acc[0].q(4 + (b & 3))[x:x+2]; src = acc[0][2 * b + x // 2]
                    k(f"v_lshlrev_b32 {p_[0]}, 16, {src}\nv_and_b32 {p_[1]}, 0xffff0000, {src}")
                k(f"v_pk_add_f32 {y.q(b)[x:x+2]}, {y.q(b)[x:x+2]}, {p_}")
        for r in range(4):
            for mm in range(2): k(f"buffer_store_dword {y.q(4*mm+ib)[r]}, {va[mm]}, {so}, {so_} offen {O['obf'].replace('_', '')}")
            if (ib, r) != (3, 3): k(f"s_add_u32 {so_}, {so_}, {(1<<16) if r < 3 else (1<<20) - 3*(1<<16)}")
    pf("epi")
    k.v.free(g3.fr)
    pf.done()
    end(k)
    return k, L['LDS']

def seam2(k, I, O, P, H, L):
    g3, CL, pf, sf, FH, vfh, one, T, C2, Wf, WX, LT1, LT2, XK, Dk, sv2, c1act, nlate = [L[n] for n in 'g3 CL pf sf FH vfh one T C2 Wf WX LT1 LT2 XK Dk sv2 c1act nlate'.split()]
    vph = k.v.alloc(); tt = k.s.alloc()
    with k.capture() as ca:
        k(f"s_lshr_b32 {tt}, {I['tb']}, 3\ns_lshl2_add_u32 {tt}, {tt}, {I['w']}\ns_lshl_b32 {tt}, {tt}, 12\nv_lshl_add_u32 {vph}, {I['l']}, 7, {tt}")
        H['G1'] = gen_GS(k, I)
    k.s.free(tt)
    acts = [c1act] * (64 - 4 * nlate - CL.n)
    pre = [acts.pop() for _ in range(min(len(acts), O['nc2']))]
    ca.weave(pre, O['pc2'], O['lead2']); acts += pre
    p3 = Poll(k, sf, vph, 1, 1, FH, mask=0xffffffff)
    pf("bar1")
    k.wait(L['t1w'], L['lasth']); k("s_barrier")
    wave0_store(k, I, f"buffer_store_dword {one}, {vfh}, {sf}, {FH} offen {SC}", O['fm'])
    pf("hflag")
    def mark(i):
        if i == O['pm']: p3.issue()
    with k.capture() as c5: ph2_mid(k, I, T, C2, Wf, WX, LT1, LT2, mark)
    c5.weave(acts, O['pc'], O['leadc'])
    print("C instr left after mid:", len(acts))
    while acts: acts.pop(0)()
    mark(4)
    pf("mid")
    g3.acc = [k.v.allocq(32), k.v.allocq(32)]
    (xd_initM if O['xm'] else xd_initS)(k, XK, Dk, g3.acc)
    while CL.nd < CL.n // 4: CL.drain()
    pf("s6")
    p3.finish(); k.v.free(vph)
    k("s_waitcnt lgkmcnt(0)\ns_barrier")
    pf("sync3")
    L = dict(L); L['V2'] = None
    return tailT(k, I, O, P, H, L)

def tailT(k, I, O, P, H, L):
    g3, CL, pf, sf, sg, sv2, V2, vpc, vfc, one, FV, cd, LX, LT2, nlate = [L[n] for n in 'g3 CL pf sf sg sv2 V2 vpc vfc one FV cd LX LT2 nlate'.split()]
    g3.split = bool(O['eo'])
    hq = [(s, i) for s in range(16) for i in range(4)]
    cslots = [L['B2'], L['B3_'], LT2]
    def cnext():
        if CL.n & 3 == 0: H['cs'] = cslots.pop(0)
        CL.issue1(H['cs'])
    acts = [lambda: g3.dma(*hq.pop(0))] * (4 * O['pre3']) + [cnext] * (4 * min(nlate, O['cpre']))
    with k.capture() as cg:
        G1 = H.get('G1') or gen_GS(k, I)
        if V2 is None: V2 = ph2_s6(k, I, L['C2'], LT2)
    for _ in range(2): acts.pop(0)()
    cg.weave(acts, O['pg'])
    while acts: acts.pop(0)()
    if O['v2s'] == -2: H['v2'] = v2_store(k, *V2, sv2)
    if O['seam2']: g3.fr = k.v.allocq(64); assert O['v2s'] != -1 and O['cpre'] <= 2
    with k.capture() as f3b:
        so = srd(k, P['out'], SZ['out']); spx = srd(k, P['ws'], 256 * V1_STR, WS_V1)
        A = addrS(k, I, LX)
        spec = k.s.alloc()
        k(f"s_lshr_b32 {spec}, {I['tb']}, 3\ns_or_b32 {spec}, {spec}, {I['w']}\ns_and_b32 {spec}, {spec}, 1\ns_lshr_b32 {A['px']}, {A['px']}, 1")
        psel = k.s.alloc(); k(f"s_mov_b32 {psel}, 0x07060302")
    with k.capture() as f3a:
        if O['v2s'] >= 0: H['v2'] = v2_store(k, *V2, sv2)
    pf("pref")
    p4 = Poll(k, sf, vpc, 1, 1, FV, sleep=16)
    PV = O['pv']; VF = O['vf']; PF = PV + O['pd']; YS = PF + O['yd']; YB = YS + O['yl']; D = O['D']
    MS = max(YB + 1, 8); PL = O['pl']
    if O['bars']:
        g3.bars = [-1] + [int(c, 16) for c in str(O['bars'])[1:]]; assert all(x in g3.bars for x in (VF, PF, YB))
    acc = g3.acc; S = {}; va, so_ = A['va'], A['so']
    PK, UN = acc[0][0:16], acc[0][16:32]
    def cap(name, fn):
        with k.capture() as S[name]: fn()
    def gload():
        for ib in range(4): k(f"buffer_load_dwordx4 {H['g'].q(ib)}, {A['vg']}, {sg}, {A['sg']} offen offset:{256*ib} {SC}")
    def mix(y, aa, b):
        g = H['g'].q(b & 3)
        for x in (0, 2): k(f"v_pk_add_f32 {aa.q(b)[x:x+2]}, {aa.q(b)[x:x+2]}, {y.q(b)[x:x+2]} neg_lo:[0,1] neg_hi:[0,1]")
        for x in (0, 2): k(f"v_pk_fma_f32 {y.q(b)[x:x+2]}, {g[x:x+2]}, {aa.q(b)[x:x+2]}, {y.q(b)[x:x+2]}")
    def ld1(j): return k(f"buffer_load_dwordx4 {PK.q(j ^ 2)}, {A['l16']}, {spx}, {A['px']} offen offset:{1024*j} {SC}")
    def check():
        m = UN[0]
        def chk():
            k(f"v_and_b32 {m}, 1, {PK[0]}")
            for j in range(1, 15, 2): k(f"v_bitop3_b32 {m}, {m}, {PK[j]}, {PK[j+1]} bitop3:0x80")
            k(f"v_and_b32 {m}, {m}, {PK[15]}\nv_cmp_eq_u32 vcc, 0, {m}")
        k.wait(H['ll']); chk()
        with k.skip_if("s_cbranch_vccz"):
            cnt = k.s.alloc(); lp, out = k.lab('px'), k.lab('pxout')
            k(f"s_mov_b32 {cnt}, 0\n{lp}:\ns_sleep 2")
            for j in range(4): ld1(j)
            k("s_waitcnt vmcnt(0)"); chk()
            k(f"s_cbranch_vccz {out}\ns_add_u32 {cnt}, {cnt}, 1\ns_cmp_lt_u32 {cnt}, {1<<20}\ns_cbranch_scc1 {lp}\n{out}:")
            k.s.free(cnt)
    def fin(ib, flags):
        y, aa = acc[1], H['aa']
        for mm in range(2):
            b = 4 * mm + ib
            mix(y, aa, b)
            for x in (0, 2):
                p_ = UN.q(2 * (ib & 1) + mm)[x:x+2]; src = PK[2 * b + x // 2]
                k(f"v_lshlrev_b32 {p_[0]}, 16, {src}\nv_and_b32 {p_[1]}, 0xffff0000, {src}\nv_pk_add_f32 {y.q(b)[x:x+2]}, {y.q(b)[x:x+2]}, {p_}")
        for r in range(4):
            for mm in range(2): k(f"buffer_store_dword {y.q(4*mm+ib)[r]}, {va[mm]}, {so}, {so_} offen {flags}")
            if (ib, r) != (3, 3): k(f"s_add_u32 {so_}, {so_}, {(1<<16) if r < 3 else (1<<20) - 3*(1<<16)}")
    def vm(s, u, x):
        if x == 0:
            late_c = CL.n < 64 and cslots
            H['mode'] = 'c' if (late_c and u == 1) else ('h' if hq and hq[0][0] <= s + D and hq[0][0] <= g3.freed + g3.NR else None)
        if H['mode'] == 'c': cnext()
        if H['mode'] == 'h': g3.dma(*hq.pop(0))
    def pre_bar3(s):
        if s == VF and not O.get('nofv'): f3a.flush(); k.wait(H['v2'])
        if s == PF: f3b.flush(); f3a.flush()
        if s == PF and not O.get('nofv'): p4.finish()
        if s == YB: S['y'].flush(); k.wait(H['yw'])
    def post_bar3(s):
        if O['touch'] and s == 4: code_touch(k, I, 1, 16384, cd)
        if s == VF and not O.get('nofv'): wave0_store(k, I, f"buffer_store_dword {one}, {vfc}, {sf}, {FV} offen {SC}")
        if s == PV and not O.get('nofv'): p4.issue()
        if s == PF:
            L2 = k.v.allocq(16)
            for j in range(4): k(f"buffer_load_dwordx4 {L2.q(j)}, {A['l16']}, {sv2}, {A['sv']} offen offset:{1024*j} {SC}")
            def f(): H['yw'] = y_stage2(k, I, L2, LX, False, spec)
            cap('y', f)
        if s == YB:
            H['Y'] = k.v.allocq(16); H['aa'] = aa = k.v.allocq(32); H['g'] = k.v.allocq(16); gload()
            for r in y_readsS(A, H['Y']): k(r)
            def f2():
                for m in ph3_listS(G1, H['Y'], aa): k(m)
            cap('m', f2)
            def f3():
                for j in range(1, 32, 2): k(f"v_xor_b32 {G1[j]}, 0x80008000, {G1[j]}")
                for b in range(8):
                    mix(acc[0], aa, b)
                    for x in range(2): k(f"v_perm_b32 {PK[2*b+x]}, {acc[0][4*b+2*x+1]}, {acc[0][4*b+2*x]}, {psel}")
                    for x in range(2): k(f"v_or_b32 {PK[2*b+x]}, 0x10001, {PK[2*b+x]}")
                    if b & 1: k(f"buffer_store_dwordx4 {PK.q(b>>1)}, {A['l16']}, {spx}, {A['px']} offen offset:{1024*(b>>1)} {SC}")
                k(f"s_xor_b32 {A['sg']}, {A['sg']}, 1024\ns_xor_b32 {A['px']}, {A['px']}, {8 << 14}")
            cap('fin', f3)
            cap('m2', f2)
    def fill3(s, u, q):
        hs = 2 * s + u
        if hs >= O['v2s'] and q % O['v2r'] == 1: f3a.emit(2)
        if q >= 8: f3b.emit(2)
        if q == 15 and u == 0 and CL.nd < 16 and CL.nd < CL.n // 4 and (CL.nd < CL.n // 4 - O['clag'] or CL.n == 64 or CL.nd <= 2 * s + 3):
            cslots.append(CL.drain())
        if 'y' in S and (s, u) >= (YS, 1) and q >= 8: S['y'].emit(1000)
        if 'm' in S:
            if S['m'].left():
                if (s, u) >= (YB + 1, 0) and q >= 8: S['m'].emit(2)
            elif S['fin'].left():
                if (s, u) >= (MS, 1) and q >= 8: S['fin'].emit(O['fr'])
            elif (s, u) >= (O['m2s'], 0) and q >= 8: S['m2'].emit(2)
        if hs == PL - 1 and q == 15: assert not S['fin'].left(); gload()
        if hs == PL and q >= 9 and q & 1: H['ll'] = ld1((q - 9) // 2)
        if hs == PL + O['pld'] and q == 8: check()
        if O['eo'] and hs == O['es'] and q == 8:
            assert hs >= 24 and hs >= PL + O['pld'] and not S['m2'].left()
            cap('eo', lambda: (fin(0, 'sc1'), fin(1, 'sc1')))
        if 'eo' in S:
            g_ = S['eo'].groups
            if g_ and not any(i.cls == 'vm' for i in g_[0]):
                while g_ and not any(i.cls == 'vm' for i in g_[0]): S['eo'].emit(1)
            elif q % O['er'] == 0: S['eo'].emit(1)
        if u == 1 and q == 0 and (s % 4 == 3 or PROFSEL): pf(f"b{s}")
    g3.main(vm, fill3, pre_bar3, post_bar3)
    assert CL.nd == 16 and not hq
    for n in S: S[n].flush()
    pf("main3")
    for ib in range(2 if O['eo'] else 0, 4): fin(ib, O['obf'].replace('_', ''))
    pf("epi")
    k.v.free(g3.fr)
    pf.done()
    end(k)
    return k, L['LDS']

def tailU(k, I, O, P, H, L):
    g3, CL, pf, sf, sg, sv2, V2, vpc, vfc, one, FV, cd, LX, LT2, nlate = [L[n] for n in 'g3 CL pf sf sg sv2 V2 vpc vfc one FV cd LX LT2 nlate'.split()]
    hq = [(s, i) for s in range(16) for i in range(4)]
    cslots = [L['B2'], L['B3_']]; VS = O['v2s']
    def cnext():
        if CL.n & 3 == 0: H['cs'] = cslots.pop(0)
        CL.issue1(H['cs'])
    acts = [lambda: g3.dma(*hq.pop(0))] * (4 * O['pre3']) + [cnext] * (4 * min(nlate, O['cpre']))
    with k.capture() as f3b:
        so = srd(k, P['out'], SZ['out']); spx = srd(k, P['ws'], 256 * V1_STR, WS_V1)
        A = addrU(k, I, LX, LT2)
        spec = k.s.alloc(); psel = k.s.alloc()
        k(f"s_lshr_b32 {spec}, {I['tb']}, 3\ns_or_b32 {spec}, {spec}, {I['w']}\ns_and_b32 {spec}, {spec}, 1\ns_mov_b32 {psel}, 0x07060302")
        G1 = gen_GU(k, I)
    for _ in range(2): acts.pop(0)()
    while acts: f3b.run(O['pg']); acts.pop(0)()
    f3b.run(O['gx'])
    with k.capture() as f3a:
        if VS >= 0: H['v2'] = v2_store(k, *V2, sv2)
    pf("pref")
    p4 = Poll(k, sf, vpc, 1, 1, FV, sleep=16)
    PV = O['pv']; VF = O['vf']; PF = PV + O['pd']; YS = PF + O['yd']; YB = YS + O['yl']; D = O['D']
    MS = max(YB + 1, 8); PL = O['pl']; R_ = O['rate']
    acc = g3.acc; S = {}; va, so_ = A['va'], A['so']
    PK, UN = acc[0].q(0, 16), acc[0].q(1, 16)
    def cap(name, fn):
        with k.capture() as S[name]: fn()
    def gread(p, rb):
        for j in range(4): k(f"ds_read_b128 {H['g'].q(j)}, {A['vg']} offset:{256*p + 128*rb + 32*j}")
    def mix(y, aa, r, scal):
        g = H['g']
        if scal:
            for x in (r, r + 1): k(f"v_sub_f32 {aa[x]}, {aa[x]}, {y[x]}")
            for x in (r, r + 1): k(f"v_fmac_f32 {y[x]}, {g[x]}, {aa[x]}")
        else: k(f"v_pk_add_f32 {aa[r:r+2]}, {aa[r:r+2]}, {y[r:r+2]} neg_lo:[0,1] neg_hi:[0,1]\nv_pk_fma_f32 {y[r:r+2]}, {g[r:r+2]}, {aa[r:r+2]}, {y[r:r+2]}")
    def ld1(j): return k(f"buffer_load_dwordx4 {PK.q(j)}, {A['l16']}, {spx}, {A['px']} offen offset:{1024*j} {SC}")
    def check():
        m = UN[0]
        def chk():
            k(f"v_and_b32 {m}, 1, {PK[0]}")
            for j in range(1, 15, 2): k(f"v_bitop3_b32 {m}, {m}, {PK[j]}, {PK[j+1]} bitop3:0x80")
            k(f"v_and_b32 {m}, {m}, {PK[15]}\nv_cmp_eq_u32 vcc, 0, {m}")
        k.wait(H['ll']); chk()
        with k.skip_if("s_cbranch_vccz"):
            cnt = k.s.alloc(); lp, out = k.lab('px'), k.lab('pxout')
            k(f"s_mov_b32 {cnt}, 0\n{lp}:\ns_sleep 2")
            for j in range(4): ld1(j)
            k("s_waitcnt vmcnt(0)"); chk()
            k(f"s_cbranch_vccz {out}\ns_add_u32 {cnt}, {cnt}, 1\ns_cmp_lt_u32 {cnt}, {1<<20}\ns_cbranch_scc1 {lp}\n{out}:")
            k.s.free(cnt)
    def unpack(rb):
        for r in range(0, 16, 2):
            src = PK[8 * rb + r // 2]
            k(f"v_lshlrev_b32 {UN[r]}, 16, {src}\nv_and_b32 {UN[r+1]}, 0xffff0000, {src}")
    def fin(rb, flags, scal):
        y, aa = acc[1].q(rb, 16), H['aa'].q(rb, 16)
        for r in range(0, 16, 2):
            mix(y, aa, r, scal)
            if scal:
                for x in (r, r + 1): k(f"v_add_f32 {y[x]}, {y[x]}, {UN[x]}")
            else: k(f"v_pk_add_f32 {y[r:r+2]}, {y[r:r+2]}, {UN[r:r+2]}")
            for x in (r, r + 1):
                k(f"buffer_store_dword {y[x]}, {va}, {so}, {so_} offen {flags}")
                if (rb, x) != (1, 15): k(f"s_add_u32 {so_}, {so_}, {(1 if x & 3 < 3 else 5) << 16}")
    def vm(s, u, x):
        if x == 0:
            late_c = CL.n < 64 and cslots
            H['mode'] = 'c' if (late_c and u == 1) else ('h' if hq and hq[0][0] <= s + D and hq[0][0] < s + u + g3.NR else None)
        if H['mode'] == 'c': cnext()
        if H['mode'] == 'h': g3.dma(*hq.pop(0))
    def pre_bar3(s):
        if s == VF: f3a.flush(); k.wait(H['v2'])
        if s == PF: f3b.flush(); p4.finish()
        if s == YB: S['y'].flush(); k.wait(H['yw'])
    def post_bar3(s):
        if O['touch'] and s == 4: code_touch(k, I, 1, 16384, cd)
        if s == VF: wave0_store(k, I, f"buffer_store_dword {one}, {vfc}, {sf}, {FV} offen {SC}")
        if s == PV: p4.issue()
        if s == PF:
            L2 = k.v.allocq(16)
            for j in range(4): k(f"buffer_load_dwordx4 {L2.q(j)}, {A['l16']}, {sv2}, {A['sv']} offen offset:{1024*j} {SC}")
            k(f"""s_lshl_b32 m0, {I['w']}, 12
            s_add_u32 m0, m0, {LT2}
            buffer_load_dword {A['gg']}, {sg}, {A['sg']} offen {SC} lds
            s_xor_b32 {A['sg']}, {A['sg']}, 1024
            s_add_u32 m0, m0, 256""")
            H['gl'] = k(f"buffer_load_dword {A['gg']}, {sg}, {A['sg']} offen {SC} lds")
            k.v.free(A['gg'])
            def f(): H['yw'] = y_stage2(k, I, L2, LX, O['scal'], spec)
            cap('y', f)
        if s == YB:
            H['Y'] = Y = k.v.allocq(16); H['aa'] = aa = k.v.allocq(32, 16); H['g'] = k.v.allocq(16)
            for kap in range(4):
                for h in range(2): k(f"ds_read_b64_tr_b16 {Y[4*kap+2*h:4*kap+2*h+2]}, {A['ay']} offset:{512*kap + 128*h}")
            def f2():
                for kap in range(4):
                    for rb in range(2): k(f"v_mfma_f32_32x32x16_bf16 {aa.q(rb,16)}, {G1.q(4*rb+kap)}, {Y.q(kap)}, {aa.q(rb,16) if kap else 0}")
            cap('m', f2)
            def f3():
                k.wait(H['gl'])
                for rb in range(2):
                    gread(0, rb)
                    for j in range(16 * rb + 1, 16 * rb + 16, 2): k(f"v_xor_b32 {G1[j]}, 0x80008000, {G1[j]}")
                    y = acc[0].q(rb, 16)
                    for r in range(0, 16, 2):
                        mix(y, aa.q(rb, 16), r, O['scal']); o = PK[8 * rb + r // 2]
                        k(f"v_perm_b32 {o}, {y[r+1]}, {y[r]}, {psel}\nv_or_b32 {o}, 0x10001, {o}")
                        if r & 7 == 6: k(f"buffer_store_dwordx4 {PK.q(2*rb + (r>>3))}, {A['l16']}, {spx}, {A['px']} offen offset:{1024*(2*rb + (r>>3))} {SC}")
                k(f"s_xor_b32 {A['px']}, {A['px']}, {8 << 14}")
            cap('fin', f3)
            cap('m2', f2)
    def fill3(s, u, q):
        hs = 2 * s + u
        if s >= VS and f3a.left():
            if q % O['v2r'] == 0: f3a.emit(2)
        f3b.emit(R_)
        if q == 7 and u == 0 and CL.nd < 16 and CL.nd < CL.n // 4 and (CL.nd < CL.n // 4 - O['clag'] or CL.n == 64 or CL.nd <= 2 * s + 3):
            cslots.append(CL.drain())
        if 'y' in S and (s, u) >= (YS, 1): S['y'].emit(O['yr'])
        if 'm' in S:
            if S['m'].left():
                if (s, u) >= (YB + 1, 0): S['m'].emit(1)
            elif S['fin'].left():
                if (s, u) >= (MS, 1): S['fin'].emit(O['fr'])
            elif (s, u) >= (O['m2s'], 0): S['m2'].emit(1)
        if hs == PL and q >= 4: assert not S['fin'].left(); H['ll'] = ld1(q - 4)
        if hs == PL + O['pld'] and q == 4: check()
        if hs == O['es'] and q == 5:
            assert hs >= 24 and hs >= PL + O['pld'] and not S['m2'].left()
            cap('eo', lambda: (gread(1, 0), unpack(0), fin(0, 'sc1', O['scal']), gread(1, 1), unpack(1)))
        if 'eo' in S: S['eo'].emit(O['er'])
        if u == 1 and q == 0 and (s % 4 == 3 or PROFSEL): pf(f"b{s}")
    g3.main(vm, fill3, pre_bar3, post_bar3)
    assert CL.nd == 16 and not hq
    print("eo left", S['eo'].left())
    for n in S: S[n].flush()
    pf("main3")
    fin(1, O['obf'].replace('_', ''), False)
    pf("epi")
    k.v.free(g3.fr)
    pf.done()
    end(k)
    return k, L['LDS']

def write(path, opt={}):
    assert not (path.endswith(NAME + ".s") and (PROF or DIAG or DBGP)), "diagnostics must not go into the submitted kernel"
    k, lds = build(opt)
    open(path, "w").write(module(header(), [(k.name, 256, 256, lds)], [k]))
    print(path, k.stats)
    if os.environ.get('SEG'): k.segstats()
    if PROF: json.dump([k.profnames], open(path[:-2] + ".json", "w"))

if __name__ == "__main__":
    opt = {}
    for a in sys.argv[2:]:
        n, v = a.split("="); opt[n] = int(v) if v.lstrip('-').isdigit() else v
    write(sys.argv[1] if len(sys.argv) > 1 else "outf.s", opt)
```

```python
from asmlib import *
NAME = "gated_mix__spectral_gfnet__ssm_conv_s5__prompt"
KA = dict(x=0, wr=8, wi=16, bx=24, lre=32, lim=40, bre=48, bim=56, cre=64, cim=72, ldt=80, dsk=88, gw=96, out=104, dbg=112, ws=120)
SZ = dict(x=4194304, wr=2048*513*2, wi=2048*513*2, lre=2048, lim=2048, bre=2097152, bim=2097152, cre=2097152, cim=2097152,
          ldt=2048, dsk=2048, gw=2048, out=8388608, dbg=256)
V1_STR = 16384
V2_STR = 16384
WS_V1 = 0
WS_V2 = 0x0500000
WS_H  = 0x0A00000
WS_G  = 0x1300000
WS_E  = 0x1310000
WS_F  = 0x1360000
WS_W  = 0x1400000
WS_END = 0x1d00000
WS_PROF = 0x2000000
import os
PROF = int(os.environ.get("PROF", "0"))

DIAG = os.environ.get("DIAG", "")
DBGP = os.environ.get("DBGP", "")
JIT = int(os.environ.get("JIT", "0"))
PROFSEL = [x for x in os.environ.get("PROFSEL", "").split(",") if x]
class Prof:
    def __init__(self, k, kid):
        self.k, self.kid, self.n, self.names = k, kid, 0, []
        if DIAG or DBGP:
            self.r = k.s.alloc(2); self.t0 = k.s.alloc(); self.ta = k.s.alloc(); self.tb = k.s.alloc(); self.slots = k.v.alloc()
            k(f"s_memrealtime {self.r}\ns_mov_b32 {self.t0}, {self.r[0]}\ns_mov_b32 {self.ta}, {self.r[0]}\ns_mov_b32 {self.tb}, {self.r[0]}\nv_mov_b32 {self.slots}, 0")
            return
        if not PROF: return
        self.r = k.s.alloc(2); self.slots = k.v.alloc()
        self.r2 = k.s.alloc(2)
        self.r0 = k.s.alloc(4)
        k(f"v_mov_b32 {self.slots}, 0\ns_memtime {self.r0[0:2]}\ns_memrealtime {self.r0[2:4]}")
        self.names.append("start"); self.n = 1
    def __call__(self, name):
        k = self.k
        k(f"; @@ {name}")
        if JIT:
            if not hasattr(self, 'j'): self.j = k.s.alloc(2)
            lp, out = k.lab('jit'), k.lab('jito')
            k(f"""s_memtime {self.j}
            s_mul_i32 {self.j[0]}, {self.j[0]}, 0x9E3779B1
            s_lshr_b32 {self.j[0]}, {self.j[0]}, 24
            s_cmp_gt_u32 {self.j[0]}, {JIT}""")
            with k.skip_if("s_cbranch_scc1"):
                k(f"""s_and_b32 {self.j[0]}, {self.j[0]}, 7
                {lp}:
                s_sleep 12
                s_sub_u32 {self.j[0]}, {self.j[0]}, 1
                s_cmp_ge_i32 {self.j[0]}, 0
                s_cbranch_scc1 {lp}""")
            return
        if DIAG:
            a, b = DIAG.split(":")[:2]
            if name == a: k(f"s_memrealtime {self.r}\ns_mov_b32 {self.ta}, {self.r[0]}")
            if name == b: k(f"s_memrealtime {self.r}\ns_mov_b32 {self.tb}, {self.r[0]}")
            return
        if DBGP:
            l = DBGP.split(",")
            if name in l: k(f"s_memrealtime {self.r}\ns_sub_u32 {self.ta}, {self.r[0]}, {self.t0}\nv_writelane_b32 {self.slots}, {self.ta}, {l.index(name)+1}")
            return
        if not PROF: return
        if self.r0 and name == "xi":
            k(f"v_writelane_b32 {self.slots}, {self.r0[0]}, 0\nv_writelane_b32 {self.slots}, {self.r0[2]}, 32"); k.s.free(self.r0); self.r0 = None
        if PROFSEL and name not in PROFSEL and name not in ("start", "end"): return
        if self.r0:
            k(f"v_writelane_b32 {self.slots}, {self.r0[0]}, 0\nv_writelane_b32 {self.slots}, {self.r0[2]}, 32"); k.s.free(self.r0); self.r0 = None
        k(f"s_memtime {self.r}\ns_memrealtime {self.r2}\nv_writelane_b32 {self.slots}, {self.r[0]}, {self.n}\nv_writelane_b32 {self.slots}, {self.r2[0]}, {self.n+32}")
        self.names.append(name); self.n += 1
        assert self.n <= 32
    def done(self):
        k = self.k
        if DIAG:
            k("s_waitcnt vmcnt(0)"); self("end")
            sc, base = DIAG.split(":")[2:4]
            lp = k.lab('dg')
            if os.environ.get("DIAGWG"): k(f"s_cmp_lg_u32 s2, {os.environ['DIAGWG']}\ns_cbranch_scc1 {k.name}_end")
            k(f"""s_sub_u32 {self.tb}, {self.tb}, {self.ta}
            s_mul_i32 {self.tb}, {self.tb}, {sc}
            s_add_u32 {self.tb}, {self.tb}, {int(base)*100}
            s_min_u32 {self.tb}, {self.tb}, 100000
            {lp}:
            s_memrealtime {self.r}
            s_sub_u32 {self.ta}, {self.r[0]}, {self.t0}
            s_cmp_lt_u32 {self.ta}, {self.tb}
            s_cbranch_scc1 {lp}""")
            return
        if DBGP:
            k("s_waitcnt vmcnt(0)"); self("end")
            p = k.s.alloc(2); k(f"s_load_dwordx2 {p}, s[0:1], {KA['dbg']}")
            s = srd(k, p, 64); va = k.v.alloc()
            k(f"v_lshlrev_b32 {va}, 2, v0\ns_cmp_lg_u32 s2, {os.environ.get('DBGWG', '37')}")
            with k.skip_if("s_cbranch_scc1"):
                k(f"s_mov_b64 exec, -2\nbuffer_store_dword {self.slots}, {va}, {s}, 0 offen")
            return
        if not PROF: return
        k("s_waitcnt vmcnt(0)")
        self("end")
        self.ws = self.r; k(f"s_load_dwordx2 {self.ws}, s[0:1], {KA['ws']}")
        s = srd(k, self.ws, 262144, WS_PROF + self.kid * 262144)
        va = k.v.alloc(); t = k.v.alloc(); so = k.s.alloc()
        k(f"""v_lshlrev_b32 {va}, 2, v0
        s_lshl_b32 {so}, s2, 10
        buffer_store_dword {self.slots}, {va}, {s}, {so} offen""")
        k.profnames = self.names

def prologue(k, names):
    k("s_cmp_ge_u32 s2, 256")
    k(f"s_cbranch_scc1 {k.name}_end")
    P = {}
    for n in names:
        P[n] = k.s.alloc(2)
        k(f"s_load_dwordx2 {P[n]}, s[0:1], {KA[n]}")
    return P

def srd(k, ptr, size, off=0, soff=None):
    r = k.s.alloc(4)
    if off or soff is not None:
        if off and soff is not None:
            k(f"s_add_u32 {r[2]}, {soff}, {off}")
            k(f"s_add_u32 {r[0]}, {ptr[0]}, {r[2]}")
        else:
            k(f"s_add_u32 {r[0]}, {ptr[0]}, {off if off else soff}")
        k(f"s_addc_u32 {r[1]}, {ptr[1]}, 0")
    else:
        k(f"s_mov_b32 {r[0]}, {ptr[0]}\ns_mov_b32 {r[1]}, {ptr[1]}")
    k(f"s_mov_b32 {r[2]}, {size}\ns_mov_b32 {r[3]}, 0x20000")
    return r

def ids(k, map8=0):
    I = {}
    t = k.v.alloc()
    I['w'] = k.s.alloc()
    k(f"v_lshrrev_b32 {t}, 6, v0\nv_readfirstlane_b32 {I['w']}, {t}")
    k.v.free(t)
    I['l'] = k.v.alloc(); I['n'] = k.v.alloc(); I['g'] = k.v.alloc()
    k(f"v_and_b32 {I['l']}, 63, v0\nv_and_b32 {I['n']}, 15, v0\nv_bfe_u32 {I['g']}, v0, 4, 2")
    xcd, idx = k.s.alloc(), k.s.alloc()
    I['ta'], I['tb'] = k.s.alloc(), k.s.alloc()
    I['slot'], I['k1p'] = k.s.alloc(), k.s.alloc()
    k(f"""s_and_b32 {xcd}, s2, 7
    s_lshr_b32 {idx}, s2, 3
    s_and_b32 {I['k1p']}, {idx}, 3
    s_lshr_b32 {idx}, {idx}, 2
    s_lshl_b32 {I['slot']}, {xcd}, 3
    s_add_u32 {I['slot']}, {I['slot']}, {idx}
    s_and_b32 {I['ta']}, {xcd}, 3
    s_lshl_b32 {I['ta']}, {I['ta']}, 2
    s_add_u32 {I['ta']}, {I['ta']}, {I['k1p']}
    s_lshr_b32 {I['tb']}, {xcd}, 2
    s_lshl_b32 {I['tb']}, {I['tb']}, 3
    s_add_u32 {I['tb']}, {I['tb']}, {idx}""")
    I['ca'], I['cb'] = I['ta'], I['tb']
    if map8:
        I['ta'], I['tb'] = k.s.alloc(), k.s.alloc()
        k(f"""s_and_b32 {I['ta']}, {xcd}, 1
        s_lshl_b32 {I['ta']}, {I['ta']}, 3
        s_add_u32 {I['ta']}, {I['ta']}, {idx}
        s_lshr_b32 {I['tb']}, {xcd}, 1
        s_lshl_b32 {I['tb']}, {I['tb']}, 2
        s_add_u32 {I['tb']}, {I['tb']}, {I['k1p']}""")
    k.s.free(xcd, idx)
    return I

def end(k):
    k(f"{k.name}_end:\ns_endpgm")

def H_POS(iq, kc):
    if os.environ.get("HOLD"): return (((kc >> 2) ^ ((iq & 1) | ((iq & 2) << 1))) << 2) | (kc & 3)
    return (kc >> 5) * 32 + (((kc & 15) ^ ((iq & 3) << 2)) << 1) + ((kc >> 4) & 1)

def srd_sel(k, I, p0, p1, size):
    r = k.s.alloc(4)
    k(f"""s_bitcmp1_b32 {I['w']}, 0
    s_cselect_b32 {r[0]}, {p1[0]}, {p0[0]}
    s_cselect_b32 {r[1]}, {p1[1]}, {p0[1]}
    s_mov_b32 {r[2]}, {size}
    s_mov_b32 {r[3]}, 0x20000""")
    return r
def header():
    return "".join(l for l in open(os.path.join(os.path.dirname(os.path.abspath(__file__)), '..', NAME + '.s.ref')) if l.startswith(';') and '@launch' not in l and 'Override' not in l and 'grid=ceil' not in l)
```

```python
import sys, json, re
from fused import *
from opt1 import *
from b32 import *
from b3s import *

class WDir:
    def __init__(self, k, I, T, swr, swi, lt2):
        self.k, self.I, self.T, self.sw, self.lt2 = k, I, T, (swr, swi), lt2
        self.rows = k.s.alloc(8, 4)
        self.va = k.v.alloc(); self.mw = k.s.alloc(); self.so = k.s.alloc()
        st = k.s.alloc(); R_ = self.rows
        k(f"""s_lshl_b32 {R_[0]}, {I['w']}, 9
        s_add_u32 {R_[0]}, {R_[0]}, {T['ks']}
        s_lshr_b32 {st}, {I['w']}, 1
        s_and_b32 {st}, {st}, {T['sp']}
        s_mul_i32 {st}, {st}, 960
        s_sub_u32 {R_[0]}, {R_[0]}, {st}""")
        for b in range(1, 4): k(f"s_add_u32 {R_[2*b]}, {R_[0]}, {128*b}")
        for b in range(4): k(f"s_sub_u32 {R_[2*b+1]}, 2048, {R_[2*b]}\ns_and_b32 {R_[2*b+1]}, {R_[2*b+1]}, 2047")
        self.spw = k.s.alloc()
        k(f"""s_cmp_eq_u32 {I['w']}, 0
        s_cselect_b32 {self.spw}, {T['sp']}, 0
        s_cmp_eq_u32 {self.spw}, 1
        s_cselect_b32 {R_[1]}, 1024, {R_[1]}""")
        for j in range(8): k(f"s_mul_i32 {R_[j]}, {R_[j]}, 1026")
        k(f"v_lshlrev_b32 {self.va}, 4, {I['l']}\ns_lshl_b32 {self.mw}, {I['w']}, 12")
        k.s.free(st)
        self.n = 0; self.slot = {}; self.ld = None
    def issue1(self, slot):
        k = self.k; b, q = self.n >> 2, self.n & 3
        if q == 0: self.slot[b] = slot
        if q & 1 == 0: k(f"s_and_b32 {self.so}, {self.rows[2*b+(q>>1)]}, -16")
        k(f"s_add_u32 m0, {self.mw}, {self.slot[b] + 1024*q}")
        self.ld = k(f"buffer_load_dwordx4 {self.va}, {self.sw[q&1]}, {self.so} offen lds")
        self.n += 1
    def tail_issue(self):
        k = self.k; self.tc = k.v.allocq(8); ta = k.v.alloc()
        k(f"v_mov_b32 {ta}, {BIG}")
        for j in range(8): k(f"v_writelane_b32 {ta}, {self.rows[j]}, {j}")
        k(f"v_and_b32 {ta}, -16, {ta}")
        k("s_mov_b64 exec, 255")
        for a in range(2): k(f"buffer_load_dwordx4 {self.tc.q(a)}, {ta}, {self.sw[a]}, 0 offen offset:1024")
        k("s_mov_b64 exec, -1")
        k.v.free(ta)
    def tail_write(self):
        k = self.k; ad = k.v.alloc(); st = k.s.alloc()
        k(f"""s_lshl_b32 {st}, {self.I['w']}, 8
        s_add_u32 {st}, {st}, {self.lt2}
        v_lshl_add_u32 {ad}, {self.I['l']}, 11, {st}
        s_mov_b64 exec, 255
        ds_write_b128 {ad}, {self.tc.q(0)}
        ds_write_b128 {ad}, {self.tc.q(1)} offset:1024
        s_mov_b64 exec, -1""")
        k.v.free(ad, self.tc); k.s.free(st, self.so, *self.sw); k.v.free(self.va)
    def prep(self):
        k, I, T = self.k, self.I, self.T
        self.a0, self.a3, self.sg = k.v.alloc(), k.v.alloc(), k.v.alloc(2); self.up = k.s.alloc(2); self.ov = k.s.alloc(2)
        self.d, self.m = k.s.alloc(), k.s.alloc(); t = k.v.alloc(); tb = k.s.alloc(); a0, a3 = self.a0, self.a3
        k(f"""s_and_b32 {self.d}, {self.rows[0]}, 15
        s_and_b32 {self.m}, {self.rows[1]}, 15
        s_add_u32 {self.m}, {self.m}, 2048
        v_lshlrev_b32 {a0}, 9, {I['g']}
        v_lshl_add_u32 {a0}, {I['n']}, 3, {a0}
        s_lshl_b32 {tb}, {T['k1']}, 1
        v_add_u32 {a0}, {tb}, {a0}
        s_add_u32 {tb}, {self.m}, 1664
        v_sub_u32 {t}, {tb}, {a0}
        v_add_u32 {a0}, {self.d}, {a0}
        v_cmp_lt_u32 {self.up}, 1, {I['g']}
        v_cndmask_b32 {a0}, {a0}, {t}, {self.up}
        v_cndmask_b32 {self.sg[0]}, 1.0, -1.0, {self.up}
        v_add_u32 {a3}, 384, {a0}
        v_and_b32 {t}, 1024, {a3}
        v_cmp_ne_u32 {self.ov}, 0, {t}
        s_lshl_b32 {tb}, {I['w']}, 8
        s_add_u32 {tb}, {tb}, {self.lt2 - 1024}
        v_add_u32 {t}, {tb}, {a3}
        v_add_u32 {a0}, {self.mw}, {a0}
        v_add_u32 {a3}, {self.mw}, {a3}
        v_cndmask_b32 {a3}, {a3}, {t}, {self.ov}
        v_sub_u32 {a3}, {a3}, {a0}
        v_cndmask_b32 {self.sg[1]}, 0, -1, {self.ov}""")
        k.v.free(t); k.s.free(tb)
    def gather(self, b, out, second=False):
        k, I, T = self.k, self.I, self.T
        a0, a3 = k.v.alloc(), k.v.alloc()
        k(f"""v_add_u32 {a0}, {self.slot[b]}, {self.a0}
        v_and_b32 {a3}, {hex((4096*b - self.slot[b]) & 0xffffffff)}, {self.sg[1]}
        v_add3_u32 {a3}, {a3}, {self.a3}, {a0}""")
        if b == 0:
            k(f"s_cmp_eq_u32 {self.spw}, 0")
            with k.skip_if("s_cbranch_scc1"):
                if second: k(f"s_mov_b32 exec_hi, 0\nv_add_u32 {a0}, 2048, {a0}\nv_add_u32 {a3}, 2048, {a3}\ns_mov_b64 exec, -1")
                else: k(f"s_mov_b32 exec_lo, 0\nv_subrev_u32 {a0}, 2048, {a0}\nv_subrev_u32 {a3}, 2048, {a3}\ns_mov_b64 exec, -1")
        last = None
        for r in range(4):
            for a in range(2):
                last = k(f"ds_read_u16_d16_hi {out[4*a+r]}, {a0 if r < 3 else a3} offset:{(128*r if r < 3 else 0) + 1024*a}")
        k.v.free(a0, a3)
        return last
    def symm(self, outs):
        k, I = self.k, self.I
        al = k.v.allocq(2 * len(outs), 2); t = k.v.alloc(2); d, m = k.s.alloc(), k.s.alloc()
        for j, (b, out, second) in enumerate(outs):
            k(f"""s_add_u32 {m}, {self.m}, {self.mw}
            s_add_u32 {m}, {m}, {self.slot[b]}
            s_lshl_b32 {d}, {I['w']}, 8
            s_add_u32 {d}, {d}, {self.d}
            s_add_u32 {d}, {d}, {self.lt2 + 4096*b}""")
            if b == 0:
                k(f"s_lshl_b32 vcc_lo, {self.spw}, 11")
                k(f"s_add_u32 {d}, {d}, vcc_lo" if second else f"s_sub_u32 {m}, {m}, vcc_lo")
            k(f"""v_mov_b32 {t[0]}, {m}
            v_mov_b32 {t[1]}, {d}
            v_cndmask_b32 {t[0]}, {t[0]}, {t[1]}, {self.up}
            ds_read_u16_d16_hi {al[2*j]}, {t[0]}
            ds_read_u16_d16_hi {al[2*j+1]}, {t[0]} offset:1024""")
        k("s_waitcnt lgkmcnt(0)")
        for lo, r in ((True, 0), (False, 3)):
            k(f"s_mov_b32 exec_lo, {1 if lo else 0}\ns_mov_b32 exec_hi, {0 if lo else 1}")
            for j, (b, out, second) in enumerate(outs):
                k(f"""v_add_f32 {out[r]}, {out[r]}, {al[2*j]}
                v_sub_f32 {out[4+r]}, {out[4+r]}, {al[2*j+1]}
                v_mul_f32 {out[r]}, 0.5, {out[r]}
                v_mul_f32 {out[4+r]}, 0.5, {out[4+r]}""")
        k("s_mov_b64 exec, -1")
        k.v.free(al, t); k.s.free(d, m)
    def sign(self, out):
        for h in (4, 6): self.k(f"v_pk_mul_f32 {out[h:h+2]}, {self.sg}, {out[h:h+2]} op_sel_hi:[0,1]")
    def done(self):
        self.k.v.free(self.a0, self.a3, self.sg); self.k.s.free(self.rows, self.mw, self.spw, self.up, self.ov, self.d, self.m)

def mf2(k, M, data_is_A, d, o):
    for c in range(2):
        A, B = (d, M.q(c)) if data_is_A else (M.q(c), d)
        k(f"v_mfma_f32_16x16x32_bf16 {o.q(c)}, {A}, {B}, 0")

def ph2_w(k, T, WD):
    Wf = k.v.allocq(32); X = k.v.allocq(8)
    k.wait(WD.ld)
    k(f"s_cmp_eq_u32 {T['sp']}, 0")
    with k.skip_if("s_cbranch_scc1"):
        WD.gather(0, X, True)
    for b in range(4): WD.lastrd = WD.gather(b, Wf.q(b, 8))
    return Wf, X

def ph2_wfix(k, T, WD, Wf, X):
    k.wait(WD.lastrd)
    k(f"s_cmp_lg_u32 {T['k1']}, 0")
    with k.skip_if("s_cbranch_scc1"):
        WD.symm([(b, Wf.q(b, 8), False) for b in range(4)] + [(0, X, True)])
    for b in range(4): WD.sign(Wf.q(b, 8))
    WD.sign(X)
    WD.done()

def ph2_s1(k, I, C, L, lds1):
    D = k.v.allocq(8); acc = k.v.allocq(16); a0, ad = k.v.alloc(), k.v.alloc(); st = k.s.alloc()
    k(f"""v_and_b32 {a0}, 7, {I['n']}
    v_lshlrev_b32 {ad}, 2, {I['g']}
    v_xor_b32 {a0}, {a0}, {ad}
    v_lshlrev_b32 {a0}, 4, {a0}
    v_lshl_or_b32 {a0}, {I['n']}, 10, {a0}
    s_lshl_b32 {st}, {I['w']}, 8
    s_add_u32 {st}, {st}, {lds1}
    v_add_u32 {a0}, {st}, {a0}""")
    def mov(b):
        for j in range(4): k(f"v_mov_b32 {D[4*(b&1)+j]}, {L[4*j+b]}")
    def out(b, o):
        z = acc.q(b & 1, 8)
        k(f"v_xor_b32 {ad}, {16*b}, {a0}")
        for r in range(4): k(f"v_cvt_pk_bf16_f32 {o[r]}, {z[r]}, {z[4+r]}")
        return k(f"ds_write_b128 {ad}, {o}")
    mov(0); mov(1)
    mf2(k, C['sf'], True, D.q(0), acc.q(0, 8)); mf2(k, C['sf'], True, D.q(1), acc.q(1, 8))
    mov(2); mov(3)
    out(0, L.q(3)); mf2(k, C['sf'], True, D.q(0), acc.q(0, 8))
    out(1, L.q(0)); mf2(k, C['sf'], True, D.q(1), acc.q(1, 8))
    out(2, L.q(1)); last = out(3, L.q(2))
    k.v.free(D, acc, a0, ad, L, C.pop('sf')); k.s.free(st)
    return last

def ph2_mid(k, I, T, C, Wf, X, lds1, lds2, mark):
    D = k.v.allocq(16); acc = k.v.allocq(32); tmp = k.v.alloc(4); ad = k.v.alloc(); a0 = k.v.alloc(); st = k.s.alloc(); Xd = k.v.allocq(4)
    z = lambda b, c: acc.q(2 * b + c)
    def stage(M, data_is_A):
        for b in range(4): mf2(k, M, data_is_A, D.q(b), acc.q(b, 8))
    k(f"""s_and_b32 {st}, {I['w']}, 1
    s_lshl_b32 {st}, {st}, 2
    v_xor_b32 {ad}, {st}, {I['l']}
    s_lshl_b32 {st}, {I['w']}, 12
    s_add_u32 {st}, {st}, {lds1}
    v_lshl_add_u32 {a0}, {ad}, 4, {st}""")
    for b in range(4): k(f"v_xor_b32 {ad}, {16*b}, {a0}\nds_read_b128 {D.q(b)}, {ad} offset:{1024*b}")
    mark(0)
    stage(C['m1f'], True)
    def mulstage(w, conj, M, data_is_A):
        for b in range(4):
            wr, wi = w(b)
            cmul_pack(k, z(b, 0), z(b, 1), wr, wi, conj, D.q(b), tmp)
            if b: mf2(k, M, data_is_A, D.q(b - 1), acc.q(b - 1, 8))
        mf2(k, M, data_is_A, D.q(3), acc.q(3, 8))
    mulstage(lambda b: (C['twf'].q(0), C['twf'].q(1)), True, C['m2f'], False)
    mark(1)
    k(f"s_cmp_eq_u32 {T['sp']}, 0")
    with k.skip_if("s_cbranch_scc1"):
        cmul_pack(k, z(0, 0), z(0, 1), X.q(0), X.q(1), False, Xd, tmp)
        mf2(k, C['m2i'], True, Xd.q(0), X)
        cmul_pack(k, X.q(0), X.q(1), C['twi'].q(0), C['twi'].q(1), False, Xd, tmp)
        mf2(k, C['m1i'], False, Xd.q(0), X)
    mulstage(lambda b: (Wf.q(2 * b), Wf.q(2 * b + 1)), False, C['m2i'], True)
    mark(2)
    mulstage(lambda b: (C['twi'].q(0), C['twi'].q(1)), False, C['m1i'], False)
    mark(3)
    k(f"""v_lshlrev_b32 {ad}, 12, {I['g']}
    v_lshl_add_u32 {ad}, {I['n']}, 4, {ad}
    s_lshl_b32 {st}, {I['w']}, 8
    s_add_u32 {st}, {st}, {lds2}
    v_add_u32 {ad}, {st}, {ad}""")
    k(f"s_sub_u32 {st}, {T['sp']}, 1\ns_or_b32 {st}, {st}, {I['w']}\ns_cmp_lg_u32 {st}, 0")
    with k.skip_if("s_cbranch_scc1"):
        for r in range(4): k(f"v_mov_b32 {z(0,1)[r]}, {X[4+r]}")
    for r in range(4):
        for b in range(4): k(f"v_cvt_pk_bf16_f32 {D[4*r+b]}, {z(b,0)[r]}, {z(b,1)[r]}")
        k(f"ds_write_b128 {ad}, {D.q(r)} offset:{1024*r}")
    k.v.free(D, acc, tmp, ad, a0, Xd, X, Wf); k.s.free(st)
    for n in ('m1f', 'twf', 'm2f', 'm2i', 'twi', 'm1i'):
        r = C.pop(n)
        if r[0].kind == 'v': k.v.free(r)

def ph2_s6(k, I, C, lds2):
    D = k.v.allocq(16); acc = k.v.allocq(32); ad = k.v.alloc(); st = k.s.alloc(); so = k.s.alloc()
    k(f"s_lshl_b32 {st}, {I['w']}, 12\ns_add_u32 {st}, {st}, {lds2}\nv_lshl_add_u32 {ad}, {I['l']}, 4, {st}")
    for b in range(4): k(f"ds_read_b128 {D.q(b)}, {ad} offset:{1024*b}")
    k(f"""s_mov_b32 {st}, {64*V2_STR}
    v_mul_lo_u32 {ad}, {I['g']}, {st}
    v_lshl_add_u32 {ad}, {I['n']}, 2, {ad}
    s_mul_i32 {so}, {I['w']}, {4*V2_STR}
    s_lshr_b32 {st}, {I['slot']}, 4
    s_lshl_b32 {st}, {st}, 12
    s_add_u32 {so}, {so}, {st}
    s_lshl_b32 {st}, {I['k1p']}, 10
    s_add_u32 {so}, {so}, {st}
    s_and_b32 {st}, {I['slot']}, 15
    s_lshl_b32 {st}, {st}, 6
    s_add_u32 {so}, {so}, {st}""")
    for b in range(4): mf2(k, C['si'], False, D.q(b), acc.q(b, 8))
    for b in range(4):
        for r in range(4): k(f"v_cvt_pk_bf16_f32 {D[4*b+r]}, {acc[8*b+r]}, {acc[8*b+4+r]}")
    r = C.pop('si')
    if r[0].kind == 'v': k.v.free(r)
    k.v.free(acc); k.s.free(st)
    return D, ad, so

def park(k, C, names, A):
    for j, n in enumerate(names):
        dst = A[8 * j:8 * j + 8]
        for i in range(8): k(f"v_accvgpr_write_b32 {dst[i]}, {C[n][i]}")
        k.v.free(C[n]); C[n] = dst

def v2_issue2(k, I, sv2):
    L = k.v.allocq(16); va = k.v.alloc(); so = k.s.alloc(); st = k.s.alloc()
    k(f"""v_lshlrev_b32 {va}, 4, {I['l']}
    s_lshl_b32 {so}, {I['ta']}, 4
    s_add_u32 {so}, {so}, {I['tb']}
    s_mul_i32 {so}, {so}, {V2_STR}
    s_lshl_b32 {st}, {I['w']}, 12
    s_add_u32 {so}, {so}, {st}""")
    for j in range(4): k(f"buffer_load_dwordx4 {L.q(j)}, {va}, {sv2}, {so} offen offset:{1024*j} {SC}")
    k.v.free(va); k.s.free(so, st)
    return L

pk0 = pk
def y_stage2(k, I, L, ldsY, scal=False, spec=None):
    Z = k.v.allocq(16, 2); T = k.v.allocq(16, 2); O = k.v.allocq(8); ad = k.v.alloc(); st = k.s.alloc()
    z = lambda j, c: Z.q(2 * j + c, 2); t = lambda j, c: T.q(2 * j + c, 2)
    k(f"s_lshl_b32 {st}, {I['w']}, 10\ns_add_u32 {st}, {st}, {ldsY}\nv_lshl_add_u32 {ad}, {I['l']}, 4, {st}")
    last = None
    def pk(k, op, d, x, y):
        if not scal: return pk0(k, op, d, x, y)
        for u in range(2): k(f"v_{'add' if op == '+' else 'sub'}_f32 {d[u]}, {x[u]}, {y[u]}")
    for h in range(2):
        for j in range(4):
            for u in range(2):
                k(f"v_lshlrev_b32 {z(j,0)[u]}, 16, {L[4*j+2*h+u]}\nv_and_b32 {z(j,1)[u]}, 0xffff0000, {L[4*j+2*h+u]}")
        for c in range(2):
            pk(k, '+', t(0, c), z(0, c), z(2, c)); pk(k, '-', t(1, c), z(0, c), z(2, c)); pk(k, '+', t(2, c), z(1, c), z(3, c))
        pk(k, '-', t(3, 0), z(3, 1), z(1, 1)); pk(k, '-', t(3, 1), z(1, 0), z(3, 0))
        k(f"s_cmp_lg_u32 {spec or I['w']}, 0")
        with k.skip_if("s_cbranch_scc1"):
            k("s_mov_b64 exec, 15")
            k(f"""v_pk_add_f32 {t(2,0)}, {z(1,0)}, {z(1,0)}
            v_pk_add_f32 {t(2,1)}, {z(3,0)}, {z(3,0)}
            v_pk_add_f32 {t(3,0)}, {z(1,1)}, {z(1,1)} neg_lo:[1,1] neg_hi:[1,1]
            v_pk_add_f32 {t(3,1)}, {z(3,1)}, {z(3,1)} neg_lo:[1,1] neg_hi:[1,1]""")
            k("s_mov_b64 exec, -1")
        for m in range(4):
            for c in range(2):
                pk(k, '+' if m < 2 else '-', z(m, c), t(m & 1, c), t(2 + (m & 1), c))
                dst = O[2 * m + c] if h == 0 else L[4 * m + 2 * c + 1]
                k(f"v_cvt_pk_bf16_f32 {dst}, {z(m,c)[0]}, {z(m,c)[1]}")
    for m in range(4):
        k(f"v_mov_b32 {L[4*m]}, {O[2*m]}\nv_mov_b32 {L[4*m+2]}, {O[2*m+1]}")
        last = k(f"ds_write_b128 {ad}, {L.q(m)} offset:{4096*m}")
    k.v.free(Z, T, O, ad, L); k.s.free(st)
    return last

def y_stage3(k, I, L, ldsY, spec):
    Z = k.v.allocq(8, 2); T = k.v.allocq(16, 2); O = k.v.allocq(16); ad = k.v.alloc(); st = k.s.alloc()
    t = lambda j, c: T.q(2 * j + c, 2)
    k(f"s_lshl_b32 {st}, {I['w']}, 10\ns_add_u32 {st}, {st}, {ldsY}\nv_lshl_add_u32 {ad}, {I['l']}, 4, {st}")
    last = None
    for h in range(2):
        z = lambda j, c: L[4 * j + 2 * h:4 * j + 2 * h + 2] if c else Z.q(j, 2)
        for j in range(4):
            for u in range(2): k(f"v_lshlrev_b32 {z(j,0)[u]}, 16, {z(j,1)[u]}")
        for c in range(2):
            pk(k, '+', t(0, c), z(0, c), z(2, c)); pk(k, '-', t(1, c), z(0, c), z(2, c)); pk(k, '+', t(2, c), z(1, c), z(3, c))
        pk(k, '-', t(3, 0), z(3, 1), z(1, 1)); pk(k, '-', t(3, 1), z(1, 0), z(3, 0))
        k(f"s_cmp_lg_u32 {spec}, 0")
        with k.skip_if("s_cbranch_scc1"):
            k("s_mov_b64 exec, 15")
            k(f"""v_pk_add_f32 {t(2,0)}, {z(1,0)}, {z(1,0)}
            v_pk_add_f32 {t(2,1)}, {z(3,0)}, {z(3,0)}
            v_pk_add_f32 {t(3,0)}, {z(1,1)}, {z(1,1)} neg_lo:[1,1] neg_hi:[1,1]
            v_pk_add_f32 {t(3,1)}, {z(3,1)}, {z(3,1)} neg_lo:[1,1] neg_hi:[1,1]""")
            k("s_mov_b64 exec, -1")
        for m in range(4):
            for c in range(2): pk(k, '+' if m < 2 else '-', z(m, c), t(m & 1, c), t(2 + (m & 1), c))
            for c in range(2): k(f"v_cvt_pk_bf16_f32 {O[4*m+2*c+h]}, {z(m,c)[0]}, {z(m,c)[1]}")
            if h: last = k(f"ds_write_b128 {ad}, {O.q(m)} offset:{4096*m}")
    k.v.free(Z, T, O, ad, L); k.s.free(st)
    return last

def gen_G1(k, I):
    G = k.v.allocq(32)
    f, b, sb, a, c, s = [k.v.alloc() for _ in range(6)]
    st = k.s.alloc()
    k(f"""v_lshrrev_b32 {a}, 1, {I['g']}
    v_lshlrev_b32 {a}, 3, {a}
    v_and_b32 {c}, 1, {I['g']}
    v_lshl_add_u32 {a}, {c}, 1, {a}
    v_cvt_f32_u32 {sb}, {a}""")
    for ib in range(2):
        k(f"""s_and_b32 {st}, {I['w']}, 1
        s_lshl_b32 {st}, {st}, 6
        s_add_u32 {st}, {st}, {16*ib}
        v_add_u32 {a}, {st}, {I['n']}
        v_cvt_f32_u32 {f}, {a}
        v_mul_f32 {f}, {fl(1/128)}, {f}
        v_mul_f32 {b}, {f}, {sb}""")
        for kap in range(4):
            for d in range(4):
                sl = 16 * kap + 4 * (d >> 1) + (d & 1)
                k(f"""v_fmamk_f32 {a}, {f}, {fl(float(sl))}, {b}
                v_cos_f32 {c}, {a}
                v_sin_f32 {s}, {a}
                v_cvt_pk_bf16_f32 {G[16*ib+4*kap+d]}, {c}, -{s}""")
    k(f"""v_lshlrev_b32 {c}, 31, {I['n']}
    v_or_b32 {c}, 0x3f003f00, {c}
    v_cmp_eq_u32 vcc, 0, {I['g']}""")
    for ib in range(2): k(f"v_cndmask_b32 {G[16*ib]}, {G[16*ib]}, {c}, vcc")
    k.v.free(f, b, sb, a, c, s); k.s.free(st)
    return G

def gen_G2(k, I, G):
    G2 = k.v.allocq(32); mk = k.v.alloc(2)
    k(f"""v_and_b32 {mk[0]}, 1, {I['g']}
    v_mul_u32_u24 {mk[0]}, 0x8000, {mk[0]}
    v_lshl_or_b32 {mk[0]}, {mk[0]}, 16, {mk[0]}
    v_xor_b32 {mk[1]}, 0x80000000, {mk[0]}""")
    for j in range(32):
        if j & 1: k(f"v_alignbit_b32 {G2[j]}, {G[j]}, {G[j]}, 16\nv_xor_b32 {G2[j]}, {mk[1]}, {G2[j]}")
        else: k(f"v_xor_b32 {G2[j]}, {mk[0]}, {G[j]}")
    k.v.free(mk)
    return G2

def xkeep(k, I, ldsX):
    XK = k.v.allocq(16, 2); ad = k.v.alloc(2); t = k.v.alloc(2); st = k.s.alloc()
    k(f"""s_and_b32 {st}, {I['w']}, 1
    s_lshl_b32 {st}, {st}, 13
    s_add_u32 {st}, {st}, {ldsX}
    v_lshrrev_b32 {t[0]}, 2, {I['l']}
    v_lshlrev_b32 {t[0]}, 7, {t[0]}
    v_and_b32 {t[1]}, 3, {I['l']}
    v_lshl_or_b32 {t[0]}, {t[1]}, 3, {t[0]}
    v_add_u32 {t[0]}, {st}, {t[0]}
    v_bfe_u32 {t[1]}, {I['l']}, 3, 2
    s_and_b32 {st}, {I['w']}, 2
    v_xor_b32 {t[1]}, {st}, {t[1]}
    v_lshl_add_u32 {ad[0]}, {t[1]}, 5, {t[0]}
    v_xor_b32 {ad[1]}, 32, {ad[0]}""")
    for mm in range(2):
        for ib in range(4): k(f"ds_read_b64_tr_b16 {XK.q(4*mm+ib,2)}, {ad[mm]} offset:{2048*ib}")
    k.v.free(ad, t); k.s.free(st)
    return XK

def dsk_issue(k, I, sd):
    Dk = k.v.alloc(2); va = k.v.alloc(); so = k.s.alloc(); st = k.s.alloc()
    k(f"""v_lshlrev_b32 {va}, 1, {I['n']}
    s_lshl_b32 {so}, {I['tb']}, 5
    s_lshr_b32 {st}, {I['w']}, 1
    s_lshl_b32 {st}, {st}, 10
    s_add_u32 {so}, {so}, {st}""")
    for mm in range(2): k(f"buffer_load_short_d16_hi {Dk[mm]}, {va}, {sd}, {so} offen offset:{512*mm}")
    k.v.free(va); k.s.free(so, st)
    return Dk

def xd_init2(k, XK, Dk, acc):
    for mm in range(2):
        sel = f" op_sel:[{mm},0] op_sel_hi:[{mm},1]"
        for ib in range(4):
            a = acc.q(8 * mm + ib); x = XK.q(4 * mm + ib, 2)
            k(f"""v_lshlrev_b32 {a[0]}, 16, {x[0]}
            v_and_b32 {a[1]}, 0xffff0000, {x[0]}
            v_lshlrev_b32 {a[2]}, 16, {x[1]}
            v_and_b32 {a[3]}, 0xffff0000, {x[1]}
            v_pk_mul_f32 {a[0:2]}, {Dk}, {a[0:2]}{sel}
            v_pk_mul_f32 {a[2:4]}, {Dk}, {a[2:4]}{sel}""")
    k.v.free(XK, Dk)

def g_issue(k, I, sg):
    g = k.v.allocq(16); va = k.v.alloc(); so = k.s.alloc(); st = k.s.alloc()
    k(f"""v_lshlrev_b32 {va}, 4, {I['g']}
    s_lshl_b32 {so}, {I['ta']}, 9
    s_and_b32 {st}, {I['w']}, 1
    s_lshl_b32 {st}, {st}, 8
    s_add_u32 {so}, {so}, {st}""")
    for ib in range(4): k(f"buffer_load_dwordx4 {g.q(ib)}, {va}, {sg}, {so} offen offset:{64*ib} {SC}")
    k.v.free(va); k.s.free(so, st)
    return g

def pass1c(k, I, acc, Pm, ldsE):
    er, ei, ta, tb = [k.v.alloc(2) for _ in range(4)]
    L = Pm['L1']
    cr, ci = upair(acc, 0, 0), upair(acc, 0, 1)
    outs = [(er, ei), (ta, tb)]
    for j in range(1, 16):
        nr, ni = outs[(15 - j) & 1]
        k(f"""v_pk_fma_f32 {nr}, {L}, {cr}, {upair(acc,j,0)}{BC0}
        v_pk_fma_f32 {ni}, {L}, {ci}, {upair(acc,j,1)}{BC0}
        v_pk_fma_f32 {nr}, {L}, {ci}, {nr}{BC1}{NEG0}
        v_pk_fma_f32 {ni}, {L}, {cr}, {ni}{BC1}""")
        cr, ci = nr, ni
    cfma(k, ta, Pm['L16'], (er[0], ei[0]), (er[1], ei[1]))
    k(f"""v_mov_b32 {tb[0]}, {ta[0]}
    v_mov_b32 {tb[1]}, {ta[1]}
    v_permlane32_swap_b32 {ta[0]}, {tb[0]}
    v_permlane32_swap_b32 {ta[1]}, {tb[1]}""")
    cfma(k, tb, Pm['L32'], ta, tb)
    w = k(f"ds_write_b64 {Pm['lde']}, {tb}")
    return dict(er=er, ei=ei, lo=ta, ew=tb, w=w)

def scan_addr(k, I, Pm, ldsE):
    lde, va = k.v.alloc(), k.v.alloc(); t = k.v.alloc(); st = k.s.alloc(); s2_ = k.s.alloc()
    k(f"""v_lshlrev_b32 {lde}, 3, v0
    v_add_u32 {lde}, {ldsE + 4096}, {lde}
    s_sub_u32 {st}, 15, {I['ca']}
    s_lshl_b32 {st}, {st}, 9
    s_and_b32 {s2_}, {I['w']}, 1
    s_lshl_b32 {s2_}, {s2_}, 8
    s_add_u32 {st}, {st}, {s2_}
    v_and_b32 {va}, 31, {I.get('lp', I['l'])}
    v_lshl_add_u32 {va}, {va}, 3, {st}""")
    if 'lp' in I: k.v.free(I.pop('lp'))
    Pm['lde'], Pm['eva'] = lde, va
    k.v.free(t); k.s.free(st, s2_)

def publish(k, I, E1, Pm, se):
    e0 = k.v.alloc(2); t = k.v.alloc()
    k(f"v_and_b32 {Pm['lde']}, {hex(0xfffffbff)}, {Pm['lde']}\nds_read_b64 {e0}, {Pm['lde']}")
    k(f"s_cmp_lt_u32 {I['w']}, 2")
    with k.skip_if("s_cbranch_scc1"):
        cfma(k, E1['ew'], Pm['L64'], e0, E1['ew'])
        k(f"""v_min_u32 {E1['ew'][0]}, -2, {E1['ew'][0]}
        v_min_u32 {E1['ew'][1]}, -2, {E1['ew'][1]}
        s_mov_b32 exec_hi, 0
        buffer_store_dwordx2 {E1['ew']}, {Pm['eva']}, {se}, 0 offen sc1
        s_mov_b64 exec, -1""")
    k(f"v_lshrrev_b32 {t}, 5, {I['l']}\nv_lshl_add_u32 {Pm['eva']}, {t}, 12, {Pm['eva']}\nv_add_u32 {Pm['eva']}, 512, {Pm['eva']}")
    k.v.free(t, E1['ew'], Pm.pop('lde'))
    E1['e0'] = e0

def carry_prep(k, I, E1, Pm):
    ma, mb = k.v.alloc(2), k.v.alloc(2); ca, cb = E1.pop('e0'), k.v.alloc(2); lo = E1.pop('lo'); t = k.v.alloc(2)
    er, ei = E1.pop('er'), E1.pop('ei'); cf = Pm['coef']
    def cmul(d, a, b):
        k(f"""v_pk_mul_f32 {d}, {a}, {b} op_sel:[0,0] op_sel_hi:[0,1]
        v_pk_fma_f32 {d}, {a}, {b}, {d} op_sel:[1,1,0] op_sel_hi:[1,0,1] neg_lo:[1,0,0]""")
    cmul(ma, cf, Pm['L64'])
    k(f"s_cmp_ge_u32 {I['w']}, 2")
    with k.skip_if("s_cbranch_scc1"):
        k(f"v_mov_b32 {ma[0]}, {cf[0]}\nv_mov_b32 {ma[1]}, {cf[1]}\nv_mov_b32 {ca[0]}, 0\nv_mov_b32 {ca[1]}, 0")
    cmul(t, Pm['L32'], ma); cfma2(k, lo, Pm['L32'], ca, lo)
    k(f"""s_mov_b32 exec_lo, 0
    v_mov_b32 {ma[0]}, {t[0]}
    v_mov_b32 {ma[1]}, {t[1]}
    v_mov_b32 {ca[0]}, {lo[0]}
    v_mov_b32 {ca[1]}, {lo[1]}
    s_mov_b64 exec, -1
    v_mov_b32 {er[1]}, {ei[0]}""")
    cmul(mb, Pm['L16'], ma); cfma2(k, er, Pm['L16'], ca, er)
    cmul(cb, cf, er); cmul(t, cf, ca)
    k.v.free(ca, lo, er, ei, Pm.pop('L16'), Pm.pop('L32'), Pm.pop('L64'))
    E1.update(ma=ma, mb=mb, ca=t, cb=cb)

class LookBack:
    N = 8
    def __init__(self, k, Pm, se):
        self.k, self.va, self.se = k, Pm.pop('eva'), se
        self.E = k.v.allocq(16, 2)
    def issue(self):
        for j in range(LookBack.N): self.last = self.k(f"buffer_load_dwordx2 {self.E.q(j,2)}, {self.va}, {self.se}, 0 offen offset:{512*j} sc1")
    def _check(self, m):
        k, E = self.k, self.E
        k(f"v_max_u32 {m}, {E[0]}, {E[1]}")
        for j in range(1, 8): k(f"v_max3_u32 {m}, {m}, {E[2*j]}, {E[2*j+1]}")
        k(f"v_cmp_eq_u32 vcc, -1, {m}")
    def finish(self, maxspin=1 << 20):
        k = self.k; m = k.v.alloc()
        k.wait(self.last)
        self._check(m)
        with k.skip_if("s_cbranch_vccz"):
            cnt = k.s.alloc(); lp, out = k.lab('lb'), k.lab('lbout')
            k(f"s_mov_b32 {cnt}, 0\n{lp}:")
            self.issue(); k("s_waitcnt vmcnt(0)")
            self._check(m)
            k(f"s_cbranch_vccz {out}\ns_add_u32 {cnt}, {cnt}, 1\ns_cmp_lt_u32 {cnt}, {maxspin}\ns_cbranch_scc1 {lp}\n{out}:")
            k.s.free(cnt)
        k.v.free(m, self.va)
        return self.E

def cfma2(k, d, a, b, c):
    k(f"""v_pk_fma_f32 {d}, {a}, {b}, {c} op_sel:[0,0,0] op_sel_hi:[0,1,1]
    v_pk_fma_f32 {d}, {a}, {b}, {d} op_sel:[1,1,0] op_sel_hi:[1,0,1] neg_lo:[1,0,0]""")

def pass2c(k, I, acc, Pm, E1, E, sh, hook):
    for j in range(6, -1, -1):
        cfma2(k, E.q(j, 2), Pm['L128'], E.q(j + 1, 2), E.q(j, 2))
    S, T = E.q(0, 2), E.q(1, 2); U, V = E.q(2, 2), E.q(3, 2)
    k(f"""v_mov_b32 {T[0]}, {S[0]}
    v_mov_b32 {T[1]}, {S[1]}
    v_permlane32_swap_b32 {S[0]}, {T[0]}
    v_permlane32_swap_b32 {S[1]}, {T[1]}""")
    cfma2(k, S, Pm['L1024'], T, S)
    cfma2(k, E1['ca'], E1['ma'], S, E1['ca']); cfma2(k, E1['cb'], E1['mb'], S, E1['cb'])
    k(f"v_swap_b32 {E1['ca'][1]}, {E1['cb'][0]}")
    U, V = E1['ca'], E1['cb']
    va, so = E1['hva'], E1['hso']
    L = Pm['L1']; cr, ci = U, V
    O = k.v.allocq(12)
    pend = []; last = None
    def flush():
        nonlocal last
        q, o = pend.pop(0)
        k(f"""v_permlane16_swap_b32 {o[0]}, {o[2]}
        v_permlane16_swap_b32 {o[1]}, {o[3]}""")
        last = k(f"buffer_store_dwordx4 {o}, {va}, {sh}, {so} offen {SC}")
        if q < 7: k(f"s_add_u32 {so}, {so}, {2*32*16384}")
        hook(q)
    def sw32():
        o = pend[0][1]
        k(f"v_permlane32_swap_b32 {o[0]}, {o[1]}\nv_permlane32_swap_b32 {o[2]}, {o[3]}")
    for j in range(16):
        nr, ni = upair(acc, j, 0), upair(acc, j, 1)
        k(f"""v_pk_fma_f32 {nr}, {L}, {cr}, {nr}{BC0}
        v_pk_fma_f32 {ni}, {L}, {ci}, {ni}{BC0}""")
        if pend: sw32()
        k(f"""v_pk_fma_f32 {nr}, {L}, {ci}, {nr}{BC1}{NEG0}
        v_pk_fma_f32 {ni}, {L}, {cr}, {ni}{BC1}""")
        cr, ci = nr, ni
        if pend: flush()
        o = O.q((j // 2) % 3)
        h = 2 * (j & 1)
        k(f"v_cvt_pk_bf16_f32 {o[h]}, {nr[0]}, {nr[1]}\nv_cvt_pk_bf16_f32 {o[h+1]}, -{ni[0]}, -{ni[1]}")
        if j & 1: pend.append((j // 2, o))
    sw32(); flush()
    k.v.free(va, E, O, acc, E1['ca'], E1['cb'], E1['ma'], E1['mb'], *Pm.values()); k.s.free(so)
    return last

class B3g(B3f):
    def main(self, fill, pre_bar, post_bar, lastsub):
        k = self.k; NS = 16; acc, fr = self.acc, self.fr
        def reads(s, kk):
            f = fr.q(kk, 32); out = []
            for ib in range(8):
                off = (s % self.NST) * 32768 + ib * 2048 + kk * 256; hi = 2 if off >= 65536 else 0
                for h in range(2):
                    out.append(f"ds_read_b64_tr_b16 {f[4*ib+2*h:4*ib+2*h+2]}, {self.rh[hi+h]} offset:{off & 65535}")
            return out
        pre_bar(-1)
        k.wait(self.last[0]); k("s_barrier")
        lastrd = None
        for r in reads(0, 0): lastrd = k(r)
        for s in range(NS):
            for kk in range(2):
                f = fr.q(kk, 32); rd = []
                if kk == 0: rd = reads(s, 1)
                elif s + 1 < NS:
                    pre_bar(s)
                    k.wait(lastrd, self.last[s + 1]); k("s_barrier")
                    rd = reads(s + 1, 0)
                else: rd = lastsub(fr.q(0, 32))
                k.wait(lastrd)
                dm = [(s + self.D, 4 * kk + x) for x in range(4)]
                order = list(range(16))
                if s == NS - 1 and kk == 1: order = order[8:] + order[:8]
                for q, qq in enumerate(order):
                    ib, mm = qq >> 1, qq & 1
                    d = acc.q(8 * mm + ib)
                    zero = s == 0 and kk == 0 and ib >= 4
                    k(f"v_mfma_f32_16x16x32_bf16 {d}, {f.q(ib)}, {self.CL.frag(s,kk,mm)}, {0 if zero else d}")
                    if rd and q < 8:
                        k(rd[2 * q]); lastrd = k(rd[2 * q + 1])
                    if q >= 8 and q % 2 == 0: self.dma(*dm[(q - 8) // 2])
                    if q == 9 and kk == 1: post_bar(s)
                    fill(s, kk, q)
        k.v.free(self.vh, self.rh); k.s.free(self.so, self.mH)

def final_addr(k, I, ldsX, ldsY):
    A = dict(ad=k.v.alloc(), ay=k.v.alloc(), va=k.v.alloc(), so=k.s.alloc())
    t = k.v.alloc(); st = k.s.alloc(); ad, ay, va, so = A['ad'], A['ay'], A['va'], A['so']
    k(f"""s_lshl_b32 {st}, {I['w']}, {7 + I.get('khs', 6)}
    s_add_u32 {st}, {st}, {ldsX}
    v_lshl_add_u32 {ad}, {I['l']}, 4, {st}
    v_lshrrev_b32 {ay}, 5, {I['l']}
    v_lshlrev_b32 {ay}, 9, {ay}
    v_bfe_u32 {t}, {I['l']}, 3, 2
    v_lshl_or_b32 {ay}, {t}, 6, {ay}
    v_and_b32 {t}, 3, {I['l']}
    v_lshl_or_b32 {ay}, {t}, 4, {ay}
    v_bfe_u32 {t}, {I['l']}, 2, 1
    v_lshl_or_b32 {ay}, {t}, 3, {ay}
    s_lshr_b32 {st}, {I['w']}, 1
    s_lshl_b32 {st}, {st}, 13
    s_add_u32 {st}, {st}, {ldsY}
    v_add_u32 {ay}, {st}, {ay}
    v_lshlrev_b32 {va}, 18, {I['g']}
    v_lshl_or_b32 {va}, {I['n']}, 2, {va}
    s_and_b32 {so}, {I['w']}, 1
    s_lshl_b32 {so}, {so}, {16 + I.get('khs', 6)}
    s_lshl_b32 {st}, {I['ta']}, 12
    s_add_u32 {so}, {so}, {st}
    s_lshl_b32 {st}, {I['tb']}, 6
    s_add_u32 {so}, {so}, {st}
    s_lshr_b32 {st}, {I['w']}, 1
    s_lshl_b32 {st}, {st}, 11
    s_add_u32 {so}, {so}, {st}""")
    k.v.free(t); k.s.free(st)
    return A

def y_reads(A, Y):
    return [f"ds_read_b64_tr_b16 {Y[16*mm+4*kap+2*h:16*mm+4*kap+2*h+2]}, {A['ay']} offset:{4096*mm + 1024*kap + 256*h}"
            for kap in range(4) for mm in range(2) for h in range(2)]

def final2(k, A, g, acc, fr, G, so_, pf):
    Y, aa = fr.q(0, 32), fr.q(1, 32); ad, va, so = A['ad'], A['va'], A['so']; om = k.v.alloc(4)
    def mf(ib, side):
        for kap in range(4):
            for mm in range(2):
                d = aa.q(4 * mm + ib)
                k(f"v_mfma_f32_16x16x32_bf16 {d}, {G[ib>>1].q(4*(ib&1)+kap)}, {Y.q(4*mm+kap)}, {d if kap else 0}")
                if side: k(side.pop(0))
    wr = [f"ds_write_b128 {ad}, {acc.q(8*mm+4+ib)} offset:{1024*(4*mm+ib)}" for ib in range(4) for mm in range(2)]
    mf(0, wr)
    mf(1, [])
    k(f"v_xor_b32 {ad}, 0x2000, {ad}\ns_waitcnt lgkmcnt(0)\ns_barrier")
    pf("xbar")
    rd = [f"ds_read_b128 {acc.q(8*mm+4+ib)}, {ad} offset:{1024*(4*mm+ib)}" for ib in range(4) for mm in range(2)]
    mf(2, rd)
    def fin(ib):
        gg = g.q(ib)
        for h in (0, 2):
            k(f"""v_sub_f32 {om[h]}, 1.0, {gg[h]}
            v_sub_f32 {om[h+1]}, 1.0, {gg[h+1]}
            v_cvt_pk_bf16_f32 {om[h+1]}, {om[h]}, {om[h+1]}
            v_lshlrev_b32 {om[h]}, 16, {om[h+1]}
            v_and_b32 {om[h+1]}, 0xffff0000, {om[h+1]}""")
        for h in (0, 2):
            for mm in range(2):
                b = acc.q(8 * mm + ib); r = acc.q(8 * mm + 4 + ib); a = aa.q(4 * mm + ib)
                k(f"""v_pk_add_f32 {b[h:h+2]}, {b[h:h+2]}, {r[h:h+2]}
                v_pk_mul_f32 {a[h:h+2]}, {gg[h:h+2]}, {a[h:h+2]}
                v_pk_fma_f32 {b[h:h+2]}, {om[h:h+2]}, {b[h:h+2]}, {a[h:h+2]}""")
            for r in (h, h + 1):
                for mm in range(2):
                    k(f"buffer_store_dword {acc.q(8*mm+ib)[r]}, {va}, {so_}, {so} offen offset:{1024*mm} {OUTF}")
                if (ib, r) != (3, 3): k(f"s_add_u32 {so}, {so}, {(1<<16) if r < 3 else (1<<20) - 3*(1<<16)}")
    fin(0)
    mf(3, [])
    for ib in range(1, 4): fin(ib)

class B1g(B1f):
    def main(self, q, fill, pre_bar, post_bar, rate):
        k = self.k; NS = 16; acc, fr = self.acc, self.fr
        def reads(s, kk):
            f = fr.q((s * 4 + kk) & 1, 16); buf = (s % self.NST) * 16384
            out = []
            for b in range(2):
                out.append(f"ds_read_b128 {f.q(b)}, {self.ra[kk]} offset:{buf + 4096*b}")
                out.append(f"ds_read_b128 {f.q(2+b)}, {self.rb[kk]} offset:{buf + 4096*b}")
            return out
        k.wait(self.last[0], *getattr(self, 'extra', [])); k("s_barrier")
        lastrd = None; passed = -1
        for r in reads(0, 0): lastrd = k(r)
        for s in range(NS):
            for kk in range(4):
                f = fr.q((s * 4 + kk) & 1, 16)
                rd = []
                if kk < 3: rd = reads(s, kk + 1)
                elif s + 1 < NS:
                    pre_bar(s)
                    assert self.cnt[s + 1] == 8, (s, self.cnt)
                    k.wait(lastrd, self.last[s + 1]); k("s_barrier"); passed = s
                    rd = reads(s + 1, 0)
                if self.onew: k.wait(lastrd)
                od = ((0, 0), (0, 1), (1, 1), (1, 0))
                if self.order == 1: od = ((0, 0), (1, 0), (1, 1), (0, 1))
                if self.order == 2 and kk & 1: od = od[::-1]
                if self.order == 3: od = ((0, 0), (0, 1), (1, 0), (1, 1))
                for m, (rb, c) in enumerate(od):
                    d = acc.q(2 * rb + c, 16)
                    first = s == 0 and kk == 0
                    k(f"v_mfma_f32_32x32x16_bf16 {d}, {f.q(rb)}, {f.q(2+c)}, {0 if first else d}")
                    for _ in range(self.RD[m]):
                        if rd: lastrd = k(rd.pop(0))
                    if m == 1 and kk == 3: post_bar(s)
                    for _ in range(rate(s, kk, m)):
                        if q and q[0][0] <= passed: q.pop(0)[1]()
                    fill(s, kk, m)
        k.v.free(fr, self.va, self.vb, self.ra, self.rb); k.s.free(self.soA, self.soB, self.mA, self.mB)
        return acc
    cnt = None
    onew = 0
    order = 0
    RD = (2, 2, 0, 0)
    def dma(self, s, i):
        if self.cnt is None: self.cnt = {}
        self.cnt[s] = self.cnt.get(s, 0) + 1
        super().dma(s, i)

class B1k(B1g):
    def __init__(self, k, I, sx, sb):
        self.k, self.I, self.sx, self.sb = k, I, sx, sb
        self.va = k.v.alloc(4); self.vb = k.v.alloc(4)
        self.soA, self.soB, self.mA, self.mB = [k.s.alloc() for _ in range(4)]
        t = k.v.alloc(2); l = I['l']; va, vb = self.va, self.vb; st = self.soB
        k(f"""v_and_b32 {t[0]}, 7, {l}
        v_xor_b32 {t[0]}, {t[0]}, {I['g']}
        v_lshlrev_b32 {t[0]}, 4, {t[0]}
        v_lshrrev_b32 {t[1]}, 3, {l}
        v_lshl_or_b32 {vb[0]}, {t[1]}, 11, {t[0]}
        v_and_b32 {t[1]}, 32, {l}
        v_lshl_or_b32 {va[0]}, {t[1]}, 11, {t[0]}
        v_and_b32 {t[1]}, 8, {l}
        v_lshl_or_b32 {va[0]}, {t[1]}, 12, {va[0]}
        v_and_b32 {t[1]}, 16, {l}
        v_lshl_or_b32 {va[0]}, {t[1]}, 7, {va[0]}
        s_lshr_b32 {st}, {I['w']}, 1
        s_lshl1_add_u32 {self.mA}, {I['cb']}, {st}
        s_lshl_b32 {self.mA}, {self.mA}, 16
        v_add_u32 {vb[0]}, {self.mA}, {vb[0]}
        s_lshl1_add_u32 {self.mA}, {I['ca']}, {st}
        s_and_b32 {st}, {I['w']}, 1
        s_lshl3_add_u32 {self.mA}, {self.mA}, {st}
        s_lshl_b32 {self.mA}, {self.mA}, 14
        v_add_u32 {va[0]}, {self.mA}, {va[0]}
        v_xor_b32 {va[1]}, 64, {va[0]}
        v_xor_b32 {vb[1]}, 64, {vb[0]}
        v_add_u32 {va[1]}, {4096-1024}, {va[1]}
        v_add_u32 {vb[1]}, {16384-1024}, {vb[1]}
        v_add_u32 {va[2]}, {2*(4096-1024)}, {va[0]}
        v_add_u32 {vb[2]}, {2*(16384-1024)}, {vb[0]}
        v_add_u32 {va[3]}, {2*(4096-1024)}, {va[1]}
        v_add_u32 {vb[3]}, {2*(16384-1024)}, {vb[1]}
        s_lshl_b32 {self.mA}, {I['w']}, 12
        s_add_u32 {self.mB}, {self.mA}, 65536
        s_lshl_b32 {self.soA}, {I['ca']}, 7""")
        k.v.free(t)
        self.last = {}; self.tail = None; self.extra = []
    def readers(self):
        k, I = self.k, self.I; l = I['l']
        self.ra = k.v.alloc(4); self.rb = k.v.alloc(4); t = k.v.alloc(2); st = self.soB
        k(f"""v_bfe_u32 {t[0]}, {l}, 1, 3
        v_lshrrev_b32 {t[1]}, 5, {l}
        v_xor_b32 {t[0]}, {t[0]}, {t[1]}
        v_lshlrev_b32 {t[0]}, 4, {t[0]}
        v_and_b32 {t[1]}, 31, {l}
        v_lshl_or_b32 {t[0]}, {t[1]}, 7, {t[0]}
        s_lshr_b32 {st}, {I['w']}, 1
        v_lshl_add_u32 {self.ra[0]}, {st}, 13, {t[0]}
        s_and_b32 {st}, {I['w']}, 1
        s_or_b32 {st}, {st}, 8
        v_lshl_add_u32 {self.rb[0]}, {st}, 13, {t[0]}""")
        for kk in range(1, 4): k(f"v_xor_b32 {self.ra[kk]}, {32*kk}, {self.ra[0]}\nv_xor_b32 {self.rb[kk]}, {32*kk}, {self.rb[0]}")
        k.v.free(t)

def xtile_addr(k, I, lds_off):
    va = k.v.alloc(); t = k.v.alloc(); so = k.s.alloc()
    k(f"""v_bfe_u32 {t}, {I['l']}, 1, 2
    v_xor_b32 {t}, {t}, {I['g']}
    v_lshlrev_b32 {va}, 9, {t}
    v_and_b32 {t}, 1, {I['l']}
    v_lshl_or_b32 {va}, {t}, 4, {va}
    v_lshrrev_b32 {t}, 3, {I['l']}
    v_lshl_or_b32 {va}, {t}, 15, {va}
    s_lshl_b32 {so}, {I['w']}, 9
    s_add_u32 {so}, {so}, {I['ta']}
    s_lshl_b32 {so}, {so}, 6
    s_add_u32 {so}, {so}, {I['tb']}
    s_lshl_b32 {so}, {so}, 5
    s_lshl_b32 m0, {I['w']}, 12
    s_add_u32 m0, m0, {lds_off}""")
    k.v.free(t)
    return va, so

def ids2(k):
    I = {n: k.s.alloc() for n in ('w', 'k1p', 'slot', 'ca', 'cb', 'ta', 'tb', 'rc')}
    I['l'] = k.v.alloc(); I['n'] = k.v.alloc(); I['g'] = k.v.alloc(); i8 = k.s.alloc()
    k(f"""v_readfirstlane_b32 {I['w']}, v0
    v_and_b32 {I['l']}, 63, v0
    v_and_b32 {I['n']}, 15, v0
    v_bfe_u32 {I['g']}, v0, 4, 2
    s_bfe_u32 {I['k1p']}, s2, 0x20003
    s_lshr_b32 {i8}, s2, 5
    s_lshr_b32 {I['w']}, {I['w']}, 6
    s_and_b32 {I['ca']}, s2, 3
    s_lshl2_add_u32 {I['ca']}, {I['ca']}, {I['k1p']}
    s_bfe_u32 {I['cb']}, s2, 0x10002
    s_lshl3_add_u32 {I['cb']}, {I['cb']}, {i8}
    s_and_b32 {I['rc']}, s2, 1
    s_lshl3_add_u32 {I['ta']}, {I['rc']}, {i8}
    s_lshl1_add_u32 {I['rc']}, {i8}, {I['rc']}
    s_bfe_u32 {I['tb']}, s2, 0x20001
    s_lshl2_add_u32 {I['tb']}, {I['tb']}, {I['k1p']}
    s_and_b32 {I['slot']}, s2, 7
    s_lshl3_add_u32 {I['slot']}, {I['slot']}, {i8}""")
    k.s.free(i8)
    return I

class B3h:
    D = 3
    catch = False
    def __init__(self, k, I, sh, CL):
        self.k, self.I, self.sh, self.CL = k, I, sh, CL
        self.vh = k.v.alloc(2); self.rh = k.v.alloc(4)
        self.so, self.mH = k.s.alloc(), k.s.alloc()
        t = k.v.alloc(2); st = k.s.alloc(); l = I['l']
        k(f"""s_and_b32 {st}, {I['w']}, 1
        s_mul_i32 {self.mH}, {st}, {16384 + 4096}
        s_lshl_b32 {self.so}, {I['ta']}, 19
        s_add_u32 {self.mH}, {self.mH}, {self.so}
        v_lshl_add_u32 {self.vh[0]}, {l}, 4, {self.mH}
        v_xor_b32 {self.vh[1]}, 4096, {self.vh[0]}
        s_lshr_b32 {self.so}, {I['w']}, 1
        s_add_u32 {self.so}, {self.so}, {I['rc']}
        s_and_b32 {self.so}, {self.so}, 15
        s_lshl_b32 {self.so}, {self.so}, 15
        s_lshl_b32 {self.mH}, {I['w']}, 13
        v_and_b32 {t[0]}, 3, {l}
        v_and_b32 {t[1]}, 2, {I['g']}
        v_xor_b32 {t[1]}, {t[1]}, {t[0]}
        v_lshlrev_b32 {t[0]}, 9, {t[0]}
        v_lshl_or_b32 {t[0]}, {t[1]}, 6, {t[0]}
        v_bfe_u32 {t[1]}, {l}, 2, 2
        v_lshl_or_b32 {t[0]}, {t[1]}, 4, {t[0]}
        v_and_b32 {t[1]}, 1, {I['g']}
        v_lshl_or_b32 {t[0]}, {t[1]}, 3, {t[0]}
        s_lshl_b32 {st}, {st}, 13
        v_add_u32 {self.rh[0]}, {st}, {t[0]}
        v_xor_b32 {self.rh[1]}, 64, {self.rh[0]}
        v_add_u32 {self.rh[2]}, 0x10000, {self.rh[0]}
        v_add_u32 {self.rh[3]}, 0x10000, {self.rh[1]}""")
        k.v.free(t); k.s.free(st)
        self.last = {}; self.cnt = {}
    def dma(self, s, i):
        k = self.k
        if i & 3 == 0: k(f"s_add_u32 m0, {self.mH}, {(s % 4)*32768 + (i>>2)*4096}")
        self.last[s] = k(f"buffer_load_dwordx4 {self.vh[i>>2]}, {self.sh}, {self.so} offen offset:{1024*(i&3)} {SC} lds")
        self.cnt[s] = self.cnt.get(s, 0) + 1
        if i == 7: k(f"s_add_u32 {self.so}, {self.so}, {65536 + (8192 if s == 7 else 0)}\ns_and_b32 {self.so}, {self.so}, 0x7ffff")
    def alloc(self):
        self.acc = [self.k.v.allocq(32), self.k.v.allocq(32)]; self.fr = self.k.v.allocq(64)
    def main(self, dq, fill, pre_bar, post_bar):
        k = self.k; NS = 16; fr = self.fr
        def reads(s, u):
            f = fr.q(u, 32); out = []
            for kk in range(2):
                for ib in range(4):
                    off = (s % 4) * 32768 + u * 16384 + ib * 2048 + kk * 256; hi = 2 if off >= 65536 else 0
                    for h in range(2):
                        o = 16 * kk + 4 * ib + 2 * h
                        out.append(f"ds_read_b64_tr_b16 {f[o:o+2]}, {self.rh[hi+h]} offset:{off & 65535}")
            return out
        k.wait(self.last[0]); k("s_barrier")
        lastrd = None
        for r in reads(0, 0): lastrd = k(r)
        for s in range(NS):
            acc = self.acc[s >> 3]
            for u in range(2):
                f = fr.q(u, 32); rd = []
                if u == 0: rd = reads(s, 1)
                elif s + 1 < NS:
                    pre_bar(s)
                    assert self.cnt[s + 1] == 8
                    k.wait(lastrd, self.last[s + 1]); k("s_barrier")
                    rd = reads(s + 1, 0)
                k.wait(lastrd)
                order = [(kk, ib, mm ^ (ib & 1)) for kk in range(2) for ib in range(4) for mm in range(2)]
                if s & 7 == 7 and u == 1: order = [x for x in order if x[1] >= 2] + [x for x in order if x[1] < 2]
                for q, (kk, ib, mm) in enumerate(order):
                    d = acc.q(4 * mm + ib)
                    zero = s & 7 == 0 and u == 0 and kk == 0 and ib >= 2
                    k(f"v_mfma_f32_16x16x32_bf16 {d}, {f.q(4*kk+ib)}, {self.CL.frag(2*(s&7)+u,kk,mm)}, {0 if zero else d}")
                    if rd and q < 8:
                        k(rd[2 * q]); lastrd = k(rd[2 * q + 1])
                    if q >= 8 and dq and dq[0][0] <= s + self.D and (q % 2 == 0 or (s == 0 and self.catch)): self.dma(*dq.pop(0))
                    if q == 9 and u == 1: post_bar(s)
                    fill(s, u, q)
        assert not dq
        k.v.free(self.vh, self.rh); k.s.free(self.so, self.mH)

def xkeep3(k, I, ldsX):
    XK = k.v.allocq(16, 2); ad = k.v.alloc(2); t = k.v.alloc(2); st = k.s.alloc()
    k(f"""s_and_b32 {st}, {I['w']}, 1
    s_lshl_b32 {st}, {st}, 12
    s_add_u32 {st}, {st}, {ldsX}
    v_lshrrev_b32 {t[0]}, 2, {I['l']}
    v_lshlrev_b32 {t[0]}, 7, {t[0]}
    v_and_b32 {t[1]}, 3, {I['l']}
    v_lshl_or_b32 {t[0]}, {t[1]}, 3, {t[0]}
    v_add_u32 {t[0]}, {st}, {t[0]}
    v_bfe_u32 {t[1]}, {I['l']}, 3, 2
    s_and_b32 {st}, {I['w']}, 2
    v_xor_b32 {t[1]}, {st}, {t[1]}
    v_lshl_add_u32 {ad[0]}, {t[1]}, 5, {t[0]}
    v_xor_b32 {ad[1]}, 32, {ad[0]}""")
    for h in range(2):
        for mm in range(2):
            for ib in range(2): k(f"ds_read_b64_tr_b16 {XK.q(4*h+2*mm+ib,2)}, {ad[mm]} offset:{8192*h + 2048*ib}")
    k.v.free(ad, t); k.s.free(st)
    return XK

def xd_init3(k, XK, Dk, acc):
    for h in range(2):
        for mm in range(2):
            sel = f" op_sel:[{mm},0] op_sel_hi:[{mm},1]"
            for ib in range(2):
                a = acc[h].q(4 * mm + ib); x = XK.q(4 * h + 2 * mm + ib, 2)
                k(f"""v_lshlrev_b32 {a[0]}, 16, {x[0]}
                v_and_b32 {a[1]}, 0xffff0000, {x[0]}
                v_lshlrev_b32 {a[2]}, 16, {x[1]}
                v_and_b32 {a[3]}, 0xffff0000, {x[1]}
                v_pk_mul_f32 {a[0:2]}, {Dk}, {a[0:2]}{sel}
                v_pk_mul_f32 {a[2:4]}, {Dk}, {a[2:4]}{sel}""")
    k.v.free(XK, Dk)

def fin3(k, A, g, acc, aa, so_, h, flags, added):
    va, so = A['va'], A['so']
    for ib in range(2):
        gg = g.q(2 * h + ib)
        for x in (0, 2):
            for mm in range(2):
                b = acc.q(4 * mm + ib); a = aa(mm, ib)
                if not added: k(f"v_pk_add_f32 {b[x:x+2]}, {b[x:x+2]}, {acc.q(4*mm+2+ib)[x:x+2]}")
                k(f"v_pk_add_f32 {a[x:x+2]}, {a[x:x+2]}, {b[x:x+2]} neg_lo:[0,1] neg_hi:[0,1]")
            for mm in range(2):
                b = acc.q(4 * mm + ib); a = aa(mm, ib)
                k(f"v_pk_fma_f32 {b[x:x+2]}, {gg[x:x+2]}, {a[x:x+2]}, {b[x:x+2]}")
            for r in (x, x + 1):
                for mm in range(2):
                    k(f"buffer_store_dword {acc.q(4*mm+ib)[r]}, {va}, {so_}, {so} offen offset:{1024*mm} {flags}")
                step = (1 << 16) if r < 3 else ((1 << 20) if ib == 0 else (3 << 20)) - 3 * (1 << 16)
                if (h, ib, r) != (1, 1, 3): k(f"s_add_u32 {so}, {so}, {step}")

def ph3_list(G, Y, aa):
    return [f"v_mfma_f32_16x16x32_bf16 {aa(mm,ib)}, {G.q(4*ib+kap)}, {Y.q(4*mm+kap)}, {aa(mm,ib) if kap else 0}"
            for kap in range(4) for ib in range(2) for mm in range(2)]

def code_touch(k, I, wave, nbytes, dst):
    r = k.s.alloc(2); so = k.s.alloc(); va = k.v.alloc(2)
    per = -(-nbytes // (32 * 128)); lab = k.lab('pc')
    k(f"s_cmp_lg_u32 {I['w']}, {wave}")
    with k.skip_if("s_cbranch_scc1"):
        k(f"""s_getpc_b64 {r}
        {lab}:
        s_lshr_b32 {so}, s2, 3
        s_mul_i32 {so}, {so}, {per*128}
        v_min_u32 {va[0]}, {per-1}, {I['l']}
        v_lshl_add_u32 {va[0]}, {va[0]}, 7, {so}
        v_min_u32 {va[0]}, {k.name}_end-{lab}, {va[0]}
        v_mov_b32 {va[1]}, 0
        v_lshl_add_u64 {va}, {va}, 0, {r}
        global_load_dword {dst}, {va}, off""").defs = set()
    k.s.free(r, so); k.v.free(va)

def pretouch(k, I, swr, swi, sc, CLv, dst, what, fl_=''):
    va = k.v.alloc(); t = k.v.alloc(); r0, r1 = k.s.alloc(), k.s.alloc()
    if 'w' in what:
        k(f"""s_lshl_b32 {r0}, {I['k1p']}, 2
        s_add_u32 {r0}, {r0}, {I['w']}
        s_lshl_b32 {r0}, {r0}, 7
        s_add_u32 {r0}, {r0}, {I['slot']}
        s_sub_u32 {r1}, 2048, {r0}
        s_and_b32 {r1}, {r1}, 2047
        s_mul_i32 {r0}, {r0}, 1026
        s_mul_i32 {r1}, {r1}, 1026
        s_sub_u32 {r1}, {r1}, {r0}
        v_and_b32 {t}, 1, {I['g']}
        v_mul_lo_u32 {t}, {t}, {r1}
        v_lshl_add_u32 {va}, {I['n']}, 7, {r0}
        v_add_u32 {va}, {va}, {t}
        v_and_b32 {va}, -4, {va}
        s_mov_b64 exec, 0x01ff01ff
        buffer_load_dword {dst}, {va}, {swr}, 0 offen {fl_}
        buffer_load_dword {dst}, {va}, {swi}, 0 offen offset:1024 {fl_}
        s_mov_b64 exec, -1""")
    if 'c' in what:
        k(f"""s_lshr_b32 {r0}, {I['w']}, 1
        s_lshl_b32 {r0}, {r0}, 20
        s_lshl_b32 {r1}, {I['tb']}, 15
        s_add_u32 {r0}, {r0}, {r1}
        v_lshl_add_u32 {va}, {I['n']}, 11, {r0}
        v_and_b32 {t}, 1, {I['g']}
        v_lshl_add_u32 {va}, {t}, 19, {va}
        v_lshrrev_b32 {t}, 1, {I['g']}
        v_add_u32 {t}, {I['rc']}, {t}
        v_and_b32 {t}, 15, {t}
        v_lshl_add_u32 {va}, {t}, 7, {va}""")
        if '2' not in what: k("s_mov_b32 exec_hi, 0")
        k(f"buffer_load_dword {dst}, {va}, {sc}, 0 offen\ns_mov_b64 exec, -1")
    for i in k.ins[-40:]:
        if i.mn == 'buffer_load_dword' and i.defs == {('v', dst.idx)}: i.defs = set()
    k.v.free(va, t); k.s.free(r0, r1)

class Touch:
    def __init__(self, k, I, swr, swi, sc, dst):
        self.k, self.I, self.swr, self.swi, self.sc, self.dst = k, I, swr, swi, sc, dst
        self.vw, self.vc = k.v.alloc(), k.v.alloc(); t = k.v.alloc(); r0, r1 = k.s.alloc(), k.s.alloc(); va = self.vw
        k(f"""s_lshl_b32 {r0}, {I['k1p']}, 2
        s_add_u32 {r0}, {r0}, {I['w']}
        s_lshl_b32 {r0}, {r0}, 7
        s_add_u32 {r0}, {r0}, {I['slot']}
        s_sub_u32 {r1}, 2048, {r0}
        s_and_b32 {r1}, {r1}, 2047
        s_mul_i32 {r0}, {r0}, 1026
        s_mul_i32 {r1}, {r1}, 1026
        s_sub_u32 {r1}, {r1}, {r0}
        v_and_b32 {t}, 1, {I['g']}
        v_mul_lo_u32 {self.vc}, {t}, {r1}
        v_lshl_add_u32 {va}, {I['n']}, 7, {r0}
        v_add_u32 {va}, {va}, {self.vc}
        v_and_b32 {va}, -4, {va}""")
        va = self.vc
        k(f"""s_lshr_b32 {r0}, {I['w']}, 1
        s_lshl_b32 {r0}, {r0}, 20
        s_lshl_b32 {r1}, {I['tb']}, 15
        s_add_u32 {r0}, {r0}, {r1}
        v_lshl_add_u32 {va}, {I['n']}, 11, {r0}
        v_lshl_add_u32 {va}, {t}, 19, {va}
        v_lshrrev_b32 {t}, 1, {I['g']}
        v_add_u32 {t}, {I['rc']}, {t}
        v_and_b32 {t}, 15, {t}
        v_lshl_add_u32 {va}, {t}, 7, {va}""")
        k.v.free(t); k.s.free(r0, r1)
    def go(self, what, wave):
        k = self.k
        k(f"s_cmp_lg_u32 {self.I['w']}, {wave}")
        with k.skip_if("s_cbranch_scc1"):
            if what == 'w':
                k("s_mov_b64 exec, 0x01ff01ff")
                k(f"buffer_load_dword {self.dst}, {self.vw}, {self.swr}, 0 offen").defs = set()
                k(f"buffer_load_dword {self.dst}, {self.vw}, {self.swi}, 0 offen offset:1024").defs = set()
            else:
                if what != 'b': k(f"s_mov_b32 exec_{'hi' if what == 'c' else 'lo'}, 0")
                k(f"buffer_load_dword {self.dst}, {self.vc}, {self.sc}, 0 offen").defs = set()
            k("s_mov_b64 exec, -1")
    def done(self): self.k.v.free(self.vw, self.vc)

def build(opt={}):
    O = dict(sig=8, v2s=-1, vf=-1, early=0, shadow=1, spos=0, cpos=0, x1=4, p0=30, lead0=300, p1=56, lead1=60, gpos=1, cearly=0, n0=8, n1=16, pb=70, nb=2, nlb=1, pc=64, leadc=0, late=3, gseam=1, fast=0, lag=2, hmark=1, pollat=1, touch=1, gL=0, gls=8, grp=0, xm=0, hoist=0, seam2=0, nc2=0, pc2=64, lead2=200, pm=3, onew=0, ord1=0, rd1=2200, b1f='_', hf='sc1', ord3=0, r1=0, ctpos=0, ctw=0, cfirst=0, wtail=4, bars=0, gx=300, v2r=2, eo=1, es=26, er=4, vp=0, sk=2, bf=1, sr=8, lr=4, wpos=0, D=5, cpre=1, clag=1, fl=12, pl=23, pld=2, m2s=10, ptq=0, gap=-1, ntail=3, fend=99, tt=0, tsp=2, m32=0, xs=8, xb=0, vr=1, rate=2, yrr=2, scal=1, clr=1, fm=65535, gl=1, pt='w', pts=11, two=1, pre3=2, pg=48, pv=3, pd=2, yd=1, yl=1, yr=1000, fs=13, oaf='sc1', obf='sc1', fr=24, map8=1, rot1=2, gloc=1, rotc=1)
    O.update({'cfirst': 1, 'wpos': 1, 'gap': 14, 'wtail': 2, 'nb': 3, 'late': 7, 'pts': 10, 'gpos': 0, 'bars': 'x012345678ac', 'p1': 70, 'fend': 15, 'fr': 6, 'hmark': 1, 'p0': 20, 'm2s': 10, 'pc': 80, 'lead1': 0, 'shadow': -1, 'pollat': 0, 'n0': 4, 'n1': 20, 'fast': 0, 'er': 4, 'lead0': 150})
    O.update(dict(gL=1, xm=1, hoist=1, n0=0, n1=24, p1=50, pl=23, gls=4, pb=30, m2s=12, pollat=1))
    O.update(opt)
    k = Kernel(NAME + "_kernel", nv=256, na=256)
    LX = 131072; LT2 = LX + 16384; LDS = LT2 + 16384
    A0, A1, A2, A3, B0, B1_, B2, B3_ = [16384 * i for i in range(8)]
    k("s_cmp_ge_u32 s2, 256")
    k(f"s_cbranch_scc1 {k.name}_end")
    KP = k.s.alloc(32, 4)
    k(f"s_load_dwordx16 {KP[0:16]}, s[0:1], 0\ns_load_dwordx16 {KP[16:32]}, s[0:1], 64")
    P = {n: KP[o // 4:o // 4 + 2] for n, o in KA.items()}
    def rel(*names):
        for n in names: k.s.free(P.pop(n))
    I = ids2(k); cd = k.v.alloc(); I['tag'] = O['sk'] >= 2
    pf = Prof(k, 0)
    if O['ctpos'] == 0: code_touch(k, I, O['ctw'], 40960, cd)
    if O.get('cnt'):
        nm, thr = O['cnt'], O['thr']; sl = srd(k, P[nm], 1 << 21); tv = k.v.alloc(2); t0_, t1_ = k.s.alloc(2), k.s.alloc(2); so_ = k.s.alloc(); lp = k.lab('cnt')
        k(f"""v_mov_b32 {tv[0]}, s2
        v_lshlrev_b32 {tv[0]}, 8, {tv[0]}
        s_mov_b32 {so_}, 0
        s_mov_b32 {pf.ta}, 0
        s_mov_b32 {pf.tb}, 0
        s_waitcnt vmcnt(0) lgkmcnt(0)
        s_cmp_lg_u32 {I['w']}, 0
        s_cbranch_scc1 {lp}x
        s_cmp_lg_u32 s2, 77
        s_cbranch_scc1 {lp}x
        {lp}:
        s_memtime {t0_}
        s_waitcnt lgkmcnt(0)
        buffer_load_dword {tv[1]}, {tv[0]}, {sl}, {so_} offen
        s_waitcnt vmcnt(0)
        s_memtime {t1_}
        s_waitcnt lgkmcnt(0)
        s_sub_u32 {t1_[0]}, {t1_[0]}, {t0_[0]}
        s_cmp_gt_u32 {t1_[0]}, {thr}
        s_cselect_b32 {t1_[0]}, {'100' if thr else t1_[0]}, 0
        s_add_u32 {pf.tb}, {pf.tb}, {t1_[0]}
        s_add_u32 {so_}, {so_}, 61696
        s_cmp_lt_u32 {so_}, {32*61696}
        s_cbranch_scc1 {lp}
        {lp}x:""")
        if not thr: k(f"s_lshr_b32 {pf.tb}, {pf.tb}, 3")
        k.s.free(sl, t0_, t1_, so_); k.v.free(tv)
    sx, sb = k.s.alloc(4), k.s.alloc(4)
    k(f"s_mov_b32 {sx[2]}, {SZ['x']}\ns_mov_b32 {sx[3]}, 0x20000\ns_mov_b32 {sb[2]}, {SZ['bre']}\ns_mov_b32 {sb[3]}, 0x20000")
    xva, xso = xtile_addr(k, I, LX)
    if O.get('fakex'):
        tq = k.v.alloc()
        if O['fakex'] == 1:
            k(f"v_and_b32 {tq}, 7, {I['l']}\nv_and_b32 {xva}, 0xffff8000, {xva}\nv_lshl_or_b32 {xva}, {tq}, 4, {xva}\ns_and_b32 {xso}, {xso}, 0xfffff800\ns_lshl_b32 vcc_lo, {I['tb']}, 7\ns_add_u32 {xso}, {xso}, vcc_lo")
        else:
            k(f"v_and_b32 {tq}, 3, {I['l']}\nv_and_b32 {xva}, 0xffff8000, {xva}\nv_lshl_or_b32 {xva}, {tq}, 4, {xva}\nv_and_b32 {tq}, 4, {I['l']}\nv_lshl_or_b32 {xva}, {tq}, 8, {xva}\ns_and_b32 {xso}, {xso}, 0xfffff800\ns_lshl_b32 vcc_lo, {I['tb']}, 6\ns_add_u32 {xso}, {xso}, vcc_lo")
        k.v.free(tq)
    if O['shadow'] >= 0: g1 = B1k(k, I, sx, sb)
    if O['shadow'] >= 1: g1.readers()
    k(f"s_mov_b64 {sx[0:2]}, {P['x']}")
    pf('ka')
    WD2.NB = O.get('wnb', 4)
    XI = dict(j=0); B1f.FL = O['b1f'].replace('_', ' '); B3s.ORD = O['ord3']; B1f.GRP = O['grp']
    def x1():
        j = XI['j']; XI['j'] += 1
        if j == O['x1']: k(f"s_add_u32 m0, {g1.mA}, {LX}")
        XI['ld'] = k(f"buffer_load_dwordx4 {xva}, {sx}, {xso} offen offset:{1024*j} lds")
        if j < 3: k(f"s_add_u32 {xso}, {xso}, {8*32768 - 1024}")
    for j in range(O['x1']): x1()
    if O['ctpos'] == 1: code_touch(k, I, O['ctw'], 40960, cd)
    if O['shadow'] < 0: g1 = B1k(k, I, sx, sb)
    k(f"s_bitcmp1_b32 {I['w']}, 0\ns_cselect_b64 {sb[0:2]}, {P['bim']}, {P['bre']}")
    rel('x', 'bx', 'bre', 'bim')
    pf('xi')
    def vm1(cap):
        def f():
            while cap.groups:
                v = any(i.cls == 'vm' for i in cap.groups[0]); cap.emit(1)
                if v: break
        return f
    H = {}
    CA = k.a.alloc(256)
    dq = [(-1 if s < 4 else s - 4, lambda s=s, i=i: g1.dma(s, i)) for s in range(0, 16) for i in range(8)]
    take = lambda n: [dq.pop(0)[1] for _ in range(n)]
    if O['r1']:
        for ch in O['r1']:
            if ch == 'g':
                sgw0 = srd(k, P['gw'], SZ['gw']); H['Gt'] = gate_issue2(k, I, sx, sgw0); k.s.free(sgw0)
            if ch in 'ba':
                for f_ in take(4): f_()
            if ch == 'w':
                a_, b_ = srd(k, P['wr'], SZ['wr']), k.s.alloc(4)
                k(f"s_sub_u32 {b_[0]}, {P['wi'][0]}, 1024\ns_subb_u32 {b_[1]}, {P['wi'][1]}, 0\ns_mov_b32 {b_[2]}, {SZ['wi'] + 1024}\ns_mov_b32 {b_[3]}, 0x20000")
                pretouch(k, I, a_, b_, None, None, cd, 'w'); k.s.free(a_, b_)
    elif O['x1'] < 4:
        for f_ in take(4): f_()
    T = ph2_params(k, I)
    if O['cpos'] == 0: cw = coop_consts(k, I, T, LT2, 2.0 ** -20)
    with k.capture() as c0:
        if O['shadow'] < 1: g1.readers()
        if O['m32'] or O['sk'] == 3:
            I['lp'] = k.v.alloc(); tt = k.s.alloc()
            k(f"s_and_b32 {tt}, {I['ca']}, 2\ns_lshl_b32 {tt}, {tt}, 3\nv_xor_b32 {I['lp']}, {tt}, {I['l']}\ns_lshl_b32 {tt}, {tt}, 7")
            for q in range(4): k(f"v_xor_b32 {g1.rb[q]}, {tt}, {g1.rb[q]}")
            k.s.free(tt)
        sf = srd(k, P['ws'], WS_FP - WS_F + 131072, WS_F)
        FV, FH = k.s.alloc(), k.s.alloc()
        zero = k.v.alloc(); vpc = k.v.alloc()
        k(f"""v_mov_b32 {zero}, 0
        v_lshlrev_b32 {vpc}, 4, v0
        s_mov_b32 {FV}, 4096
        s_cmp_lg_u32 s2, 0""")
        with k.skip_if("s_cbranch_scc1"):
            tz = k.v.alloc(4)
            for j in range(4): k(f"v_mov_b32 {tz[j]}, 0")
            k(f"buffer_store_dwordx4 {tz}, {vpc}, {sf}, 0 offen {SC}")
            g1.extra.append(k(f"buffer_store_dwordx4 {tz}, {vpc}, {sf}, {FV} offen {SC}"))
            k.v.free(tz)
        sgw = srd(k, P['gw'], SZ['gw']); rel('gw')
        t4 = [srd(k, P[n], 2048) for n in ('lre', 'lim', 'ldt', 'dsk')]; rel('lre', 'lim', 'ldt', 'dsk')
        sv1 = srd(k, P['ws'], 256 * V1_STR, WS_V1)
        F = gen_F2(k, I)
    acts = [x1] * (4 - O['x1']) + take(8 - g1.cnt.get(0, 0) if g1.cnt else 8)
    c0.weave(acts, O['p0'], O['lead0'])
    while acts: acts.pop(0)()
    pf('su')
    ldx = XI['ld']; k.v.free(xva); k.s.free(xso)
    with k.capture() as small:
        Q = ssm_param_issue(k, I, *t4[:3]); Dk = (dsk_issueS if O['sk'] else dsk_issue32 if O['m32'] else dsk_issue)(k, I, t4[3])
    if O['gL']: assert not O['grp'] and O['v2s'] == -1 and not O['seam2']; GL = GateL(k, I, sgw, g1.mA, A3); GL.mul = O['gL'] == 3
    with k.capture() as gl:
        if not O['gL']: Gt = H.get('Gt') or gate_issue2(k, I, sx, sgw)
    if O.get('nogate'): gl.groups = [g for g in gl.groups if not any(i.cls == 'vm' for i in g)]
    if O['spos'] == 0: small.emit(999)
    if O['cpos'] == 1: cw = coop_consts(k, I, T, LT2, 2.0 ** -20)
    pf("F")
    small.flush(); k.s.free(*t4)
    acts = ([vm1(gl)] * 6 if O['gpos'] == 0 else []) + take(O['n0'])
    while acts: acts.pop(0)()
    k.wait(ldx, cw); k("s_barrier"); pf("xt")
    with k.capture() as c1:
        def h1(n):
            if O['gL'] and n == 't':
                h1.n += 1
                if h1.n == O['gls']: GL.setup()
        h1.n = 0
        O1 = ph1f(k, I, F, LX, sv1, h1)
        k.v.free(F)
        XK = (xkeepM if O['xm'] else xkeepU if O['sk'] == 3 else xkeepS if O['sk'] else xkeep32 if O['m32'] else xkeep3 if O['two'] else xkeep)(k, I, LX)
    if O['gL']:
        j3 = len(dq) - 12 * 8 - 4; f3 = dq[j3][1]
        def g3a():
            assert any(i is GL.rd for i in k.ins); k.wait(GL.rd); f3()
        dq[j3] = (dq[j3][0], g3a)
    acts = take(O['n1'])
    c1.weave(acts, O['p1'], O['lead1'])
    while acts: acts.pop(0)()
    if O['gpos'] <= 1: gl.flush(); k.s.free(sgw)
    pf("ph1")
    g1.alloc(); g1.onew = O['onew']; g1.order = O['ord1']; g1.RD = [int(c) for c in str(O['rd1'])]
    if O['gpos'] == 2:
        pos = 32 - 8 - O['n0'] - O['n1']
        dq[pos:pos] = [(-1, vm1(gl))] * 6
    with k.capture() as fl1:
        ph1_store(k, *O1, sv1)
        if O.get('nov1'): k.ins = []
        one = k.v.alloc(); vfc = k.v.alloc(); vfh = k.v.alloc(); sdbg = srd(k, P['dbg'], 256); rel('dbg')
        k(f"""s_and_b32 {FH}, s2, 7
        s_lshl_b32 {FH}, {FH}, 8
        s_add_u32 {FH}, {FH}, s2
        s_and_b32 {FH}, {FH}, -8
        s_lshl_b32 {FH}, {FH}, 1
        v_mov_b32 {vfc}, {FH}
        s_lshl4_add_u32 {FH}, {I['cb']}, {I['ca']}
        s_lshl_b32 {FH}, {FH}, 7
        v_lshl_add_u32 {vfh}, {I['n']}, 2, {FH}
        s_mov_b32 {FH}, 8192
        v_mov_b32 {one}, 1""")
        st = k.s.alloc()
        k(f"s_lshl_b32 {st}, {I['cb']}, 14")
        se = srd(k, P['ws'], 8192, WS_E, st)
        t = k.v.alloc(2)
        k(f"""s_sub_u32 {st}, 15, {I['ca']}
        s_lshl_b32 {st}, {st}, 9
        v_lshl_add_u32 {t[0]}, v0, 2, {st}
        v_mov_b32 {t[1]}, -1
        s_cmp_ge_u32 {I['w']}, 2""")
        with k.skip_if("s_cbranch_scc1"):
            H['clr'] = k(f"buffer_store_dword {t[1]}, {t[0]}, {se}, 0 offen {SC}")
        wave0_store(k, I, f"buffer_store_dword {zero}, {vfh}, {sf}, {FH} offen {SC}", O['fm'])
        if O['sk'] == 1:
            FP = k.s.alloc()
            k(f"""s_lshl4_add_u32 {FP}, {I['ta']}, {I['tb']}
            s_lshl2_add_u32 {FP}, {FP}, {I['w']}
            s_lshl_b32 {FP}, {FP}, 7
            s_add_u32 {FP}, {FP}, {WS_FP - WS_F}
            v_lshlrev_b32 {t[0]}, 2, {I['n']}
            s_mov_b64 exec, 0xffff
            buffer_store_dword {zero}, {t[0]}, {sf}, {FP} offen {SC}
            s_mov_b64 exec, -1""")
        k(f"s_or_b32 {st}, {I['w']}, s2\ns_cmp_lg_u32 {st}, 0")
        with k.skip_if("s_cbranch_scc1"):
            k(f"s_mov_b64 exec, 1\nbuffer_store_dword {one}, {zero}, {sdbg}, 0 offen {SC}\ns_mov_b64 exec, -1")
        k.v.free(t); k.s.free(st)
        if O['sk']:
            sc = srd(k, P['cre'], SZ['cre']); sc_i = srd(k, P['cim'], SZ['cim']); rel('cre', 'cim')
            CL = (CLoadU if O['sk'] == 3 else CLoadS)(k, I, sc, sc_i, CA)
        else:
            sc = srd_sel(k, I, P['cre'], P['cim'], SZ['cre']); rel('cre', 'cim')
            CL = (CLoad32 if O['m32'] else CLoad)(k, I, sc, CA)
        swr = srd(k, P['wr'], SZ['wr'])
        swi = k.s.alloc(4)
        k(f"s_sub_u32 {swi[0]}, {P['wi'][0]}, 1024\ns_subb_u32 {swi[1]}, {P['wi'][1]}, 0\ns_mov_b32 {swi[2]}, {SZ['wi'] + 1024}\ns_mov_b32 {swi[3]}, 0x20000")
        rel('wr', 'wi')
        if O['tt']: TT = Touch(k, I, swr, swi, sc, cd)
        nfirst = len(k.ins)
        sg = srd(k, P['ws'], G_BYTES, WS_G)
        lastst = None if O['gL'] else gate_compute2(k, I, Gt, sg, LX if O['gl'] else None)
        nsec = len(k.ins)
        H['C2'] = coop_read(k, I, LT2, {n: CA[224 + 8 * j:232 + 8 * j] for j, n in enumerate(('m2f', 'm2i', 'm1i', 'si'))})
        wsl = (A0, A1, B1_, A2) if O['cfirst'] else (LX, A0, B0, A1)
        WD = WD2(k, I, T, swr, swi, wsl, LT2)
        nthird = len(k.ins)
        Pm = ssm_param_compute(k, Q)
        scan_addr(k, I, Pm, LT2)
        E1h = {}; hstore_addr(k, I, E1h)
        if O['sk'] == 3: Dk = diagU(k, I, Dk)
        if O['xm']: Dk = diagM(k, I, Dk)
        if O['hoist']:
            sh = srd(k, P['ws'], 8 << 20, WS_H); sv2 = srd(k, P['ws'], 256 * V2_STR, WS_V2)
            g3 = B3s(k, I, sh, CL)
        ntot = len(k.ins)
    print("B1 fillers", nfirst, nsec, nthird, ntot)
    for u in range(O['cearly']):
        pos = [j for j, x in enumerate(dq) if x[0] == 2 + 3 * u][0]
        dq[pos:pos] = [(-1, lambda: CL.issue(LX))]
    p0 = Poll(k, sdbg, zero, 1, 1, sleep=16)
    p1 = Poll(k, sf, vpc, 1, 1, sleep=16)
    dq.append((-1, lambda: (p1.issue(), WD.extra_issue())))
    if O['ptq']: dq.append((-1, lambda: pretouch(k, I, swr, swi, sc, CL, cd, O['ptq'])))
    gap = O['gap']; wq = []
    if O['cfirst']:
        tslots = [(-1, LX), (12, B0), (14, B2)]
        for s, slot in tslots[:2]: dq += [(s, lambda slot=slot: CL.issue1(slot))] * 4
        wq = [(max(s, gap), WD.issue1) for s in (12, 13, 13, 14) for _ in range(4)]
        dq += wq[:4 * O['wtail']]; wq = wq[4 * O['wtail']:]; O['ntail'] = 2
    else:
        dq += [(gap, WD.issue1)] * 4
        for s, slot in ((12, A0), (12, B0), (13, A1)): dq += [(s, WD.issue1)] * 4
        tslots = [(13, B1_), (14, A2), (14, B2)]
        for s, slot in tslots[:O['ntail']]: dq += [(s, lambda slot=slot: CL.issue1(slot))] * 4
    pf("pre")
    def pre_bar(s):
        if O['gl'] and s == 5: k.wait(lastst)
        if s == O['sig']: k.wait(H.get('gs') if O['gl'] else lastst, H['clr'])
    def post_bar(s):
        if O['touch'] and s in (4, 11): code_touch(k, I, 1 + (s & 1), 16384, cd)
        if O['pt'] and s == O['pts']: pretouch(k, I, swr, swi, sc, CL, cd, O['pt'])
        if O['gl'] and s == 5 and not O['gL']: H['gs'] = gate_store(k, I, sg, LX)
        if s == O['sig'] - 3: p0.issue()
        if s == O['sig']:
            fl1.emit_until_safe()
            p0.finish()
            wave0_store(k, I, f"buffer_store_dword {one}, {vfc}, {sf}, 0 offen {SC}")
    def fill1(s, kk, m):
        tgt = [(0, 34), (1, nfirst), (2, nfirst), (4, nsec), (9, nthird), (14, ntot)]
        x = s + (4 * kk + m + 1) / 16.0 - 1; px, py = -1, 0
        for qx, qy in tgt:
            if x <= qx: want = py + (qy - py) * (x - px) / (qx - px); break
            px, py = qx, qy
        else: want = ntot
        while fl1.groups and ntot - fl1.left() < want: fl1.emit(1)
        if O['gL'] and kk == 0 and m == 0: (GL.read2 if O['gL'] >= 2 else GL.read)(s)
        if O['gL'] == 1 and kk == 2 and m == 2: GL.dot(s)
        if O['gL'] >= 2 and (kk, m) in ((1, 3), (2, 1), (3, 0)): GL.exact(s, kk - 1)
        if s == 3 and kk == 0 and m == 0 and O['gpos'] == 2: gl.flush(); k.s.free(sgw)
        if O['tt'] and m == 3 and kk in (0, 2):
            x = 2 * s + kk // 2
            for what, s0_ in re.findall(r'([wcdb])(\d+)', O['tt']):
                d = x - 2 * int(s0_)
                if d >= 0 and d % O['tsp'] == 0 and d // O['tsp'] < 4: TT.go(what, d // O['tsp'])
        if s == 14 and kk == 3 and m == 3:
            fl1.flush()
            if O['tt']: TT.done()
        if kk == 1 and m == 0 and s >= 5 and s % 3 == 2 and CL.nd < O['cearly']: CL.drain()
        if kk == 3 and m == 0 and (s % 4 == 3 or PROFSEL): pf(f"a{s}")
    def rate(s, kk, m):
        if s < O['fast'] or s >= O['fend']: return 1 if m >= 1 else 0
        return 1 if m >= 2 else 0
    acc = g1.main(dq, fill1, pre_bar, post_bar, rate)
    pf("main1")
    k.s.free(sx, sb, sdbg); k.v.free(zero)
    with k.capture() as c2:
        E1 = pass1c(k, I, acc, Pm, LT2); E1.update(E1h)
    acts = [x[1] for x in dq]; print("queue left after B1:", len(acts))
    c2.weave(acts, 64)
    while acts: acts.pop(0)()
    p1.finish()
    k.wait(E1['w']); k("s_barrier")
    publish(k, I, E1, Pm, se)
    pf("pass1")
    LT1 = A3
    C2 = H['C2']; nlate = O['late']; assert nlate >= 2
    free = [B3_] + [x[1] for x in tslots[O['ntail']:]]; state = dict(cur=None)
    def c1act():
        if CL.n >= 64 - 4 * nlate: return
        if CL.n & 3 == 0:
            if not free: free.append(CL.drain())
            state['cur'] = free.pop(0)
            if not free and CL.nd < CL.n // 4 - O['lag'] + 1: free.append(CL.drain())
        CL.issue1(state['cur'])
    def cfinish():
        while CL.n & 3: c1act()
    L1 = v1_issue(k, I, T, sv1, SC); k.s.free(sv1)
    with k.capture() as c3:
        if O['wpos'] == 0: Wf, WX = WD.gather_all()
        scan_coef(k, acc, Pm)
        carry_prep(k, I, E1, Pm)
        if O['wpos'] == 0: WD.fix(Wf, WX)
    assert not wq or O['wpos'] == 1
    acts = [x[1] for x in wq] + [c1act] * (4 * O['nb'])
    c3.weave(acts, O['pb'], 100)
    while WD.n < 16: WD.issue1()
    cfinish()
    if O['wpos'] == 0: free.extend([x for x in wsl if x != LX])
    LookBack.N = O.get('lbn', 8)
    lb = LookBack(k, Pm, se)
    for j in range(2 * LookBack.N, 16): k(f'v_mov_b32 {lb.E[j]}, 0')
    lb.issue()
    pf("coef")
    with k.capture() as c4:
        if O['gL']: GL.finish(LT2 + 8192)
        t1w = ph2_s1(k, I, C2, L1, LT1)
    acts = [c1act] * (4 * O['nlb'])
    c4.weave(acts, O['pb'])
    cfinish()
    pf("s1")
    E = lb.finish(); k.s.free(se)
    pf("lb")
    if not O['hoist']: sh = srd(k, P['ws'], 8 << 20, WS_H)
    lasth = pass2c(k, I, acc, Pm, E1, E, sh, lambda q: None)
    pf("pass2")
    if O['wpos'] == 1: Wf, WX = WD.gather_all()
    while CL.nd < CL.n // 4: free.append(CL.drain())
    if O['wpos'] == 1: WD.fix(Wf, WX); free.extend([x for x in wsl if x != LX])
    if O['touch']: code_touch(k, I, 3, 16384, cd)
    if O['seam2']: return seam2(k, I, O, P, H, locals())
    k.wait(t1w); k("s_barrier")
    if O['gL']: gate_store(k, I, sg, LT2 + 8192)
    pf("bar1")
    vph = k.v.alloc()
    if O['sk']:
        tt = k.s.alloc()
        k(f"s_lshr_b32 {tt}, {I['tb']}, 3\ns_lshl2_add_u32 {tt}, {tt}, {I['w']}\ns_lshl_b32 {tt}, {tt}, 12\nv_lshl_add_u32 {vph}, {I['l']}, 7, {tt}")
        k.s.free(tt)
        p3 = Poll(k, sf, vph, 1, 1, FH, mask=0xffffffff)
    else:
        k(f"v_lshlrev_b32 {vph}, 7, v0")
        p3 = Poll(k, sf, vph, 1, 1, FH)
    def mark(i):
        if i == O['hmark']:
            k.wait(lasth); k("s_barrier")
            wave0_store(k, I, f"buffer_store_dword {one}, {vfh}, {sf}, {FH} offen {SC}", O['fm'])
            pf("hflag")
    with k.capture() as c5: ph2_mid(k, I, T, C2, Wf, WX, LT1, LT2, mark)
    acts = [c1act] * (64 - 4 * nlate - CL.n); print("C instr in mid:", len(acts))
    c5.weave(acts, O['pc'], O['leadc'])
    print("C instr left after mid:", len(acts))
    while acts: acts.pop(0)()
    pf("mid")
    if O['pollat'] == 0: p3.issue()
    k("s_waitcnt lgkmcnt(0)\ns_barrier")
    V2 = ph2_s6(k, I, C2, LT2)
    if O['pollat'] == 1: p3.issue()
    if not O['hoist']: sv2 = srd(k, P['ws'], 256 * V2_STR, WS_V2)
    while CL.nd < CL.n // 4: CL.drain()
    with k.capture() as cv2:
        if O['v2s'] == -1 and O.get('fakev2'):
            D_, ad_, so_ = V2
            k(f"v_lshl_add_u32 {ad_}, {I['n']}, 2, {ad_}\ns_and_b32 {so_}, {so_}, -128")
            for j in range(8):
                H['v2'] = k(f"buffer_store_dwordx2 {D_[2*j:2*j+2]}, {ad_}, {sv2}, {so_} offen {SC}")
                k(f"s_add_u32 {so_}, {so_}, {8*V2_STR if j & 1 else V2_STR * (1 + 2 * (O['fakev2'] - 1))}")
            k.v.free(D_, ad_); k.s.free(so_)
        elif O['v2s'] == -1: H['v2'] = v2_store(k, *V2, sv2)
    if not O['vp']: cv2.flush()
    with k.capture() as c7:
        if not O['hoist']: g3 = (B3u if O['sk'] == 3 else B3s if O['sk'] else B3m if O['m32'] else B3h if O['two'] else B3g)(k, I, sh, CL)
        g3.alloc()
        (xd_initM if O['xm'] else xd_initU if O['sk'] == 3 else xd_initS if O['sk'] else xd_init32 if O['m32'] else xd_init3 if O['two'] else xd_init2)(k, XK, Dk, g3.acc)
        if O['pollat'] == 2: p3.issue()
        if O['gseam'] == 2: H['G1'] = gen_GS(k, I) if O['sk'] else gen_G1b(k, dict(I, khs=5))
    acts = [vm1(cv2)] * 16 if O['vp'] else []
    c7.weave(acts, O['vp'])
    cv2.flush()
    pf("s6")
    p3.finish(); k.v.free(vph)
    k("s_waitcnt lgkmcnt(0)\ns_barrier")
    pf("sync3")
    if O['sk'] == 3: return tailU(k, I, O, P, H, locals())
    if O['sk'] == 2: return tailT(k, I, O, P, H, locals())
    if O['sk']: return tailS(k, I, O, P, H, locals())
    if O['m32']: return tail32(k, I, O, P, H, locals())
    if O['two']: return two_pass_tail(k, I, O, P, H, locals())
    acts = [lambda s=s, i=i: g3.dma(s, i) for s in range(3) for i in range(8)]
    G1 = None
    if O['gseam']:
        with k.capture() as cg: G1 = gen_G1b(k, I)
        for _ in range(2): acts.pop(0)()
        cg.weave(acts, 48)
    while acts: acts.pop(0)()
    so = srd(k, P['out'], SZ['out'])
    with k.capture() as f3a:
        if O['v2s'] >= 0: H['v2'] = v2_store(k, *V2, sv2)
    with k.capture() as f3b:
        if G1 is None: G1 = gen_G1b(k, I)
        FA = final_addr(k, I, 0, LX)
    pf("pref")
    p4 = Poll(k, sf, vpc, 1, 1, FV, sleep=16)
    VS = O['v2s']
    def pre_bar3(s):
        if s == VS + 3: k.wait(H['v2'])
        if s == 10:
            f3b.flush(); p4.finish()
        if s == 14: H['c'].flush(); k.wait(H['yw'])
    def post_bar3(s):
        if s == VS + 3: wave0_store(k, I, f"buffer_store_dword {one}, {vfc}, {sf}, {FV} offen {SC}")
        if O['touch'] and s == 5: code_touch(k, I, 1, 12288, cd)
        if s == 8: p4.issue()
        if s == 10:
            L2 = v2_issue2(k, I, sv2)
            with k.capture() as H['c']:
                H['yw'] = y_stage2(k, I, L2, LX)
        if s == 14:
            H['g'] = g_issue2(k, I, sg)
            with k.capture() as H['d']:
                H['G2'] = gen_G2(k, I, G1)
    def fill3(s, kk, q):
        if s == VS and f3a.left(): f3a.emit(2)
        if s == max(VS, 0) and kk == 1 and q == 15: f3a.flush()
        if s > VS and q >= 8: f3b.emit(2)
        if q == 15 and kk == 0 and 3 <= s < 3 + nlate: CL.drain()
        if q == 15 and kk == 1 and 1 <= s < 1 + nlate: CL.issue((LX, LT2)[s & 1])
        if s >= 13 and 'c' in H and q >= 6: H['c'].emit(O.get('yr') or 4)
        if 'd' in H and q >= 8: H['d'].emit(O.get('gr') or 4)
        if kk == 1 and q == 0 and s % 4 == 3: pf(f"b{s}")
    g3.main(fill3, pre_bar3, post_bar3, lambda Y: y_reads(FA, Y))
    assert CL.nd == 16
    H['d'].flush()
    pf("main3")
    final2(k, FA, H['g'], g3.acc, g3.fr, (G1, H['G2']), so, pf)
    pf("epi")
    pf.done()
    end(k)
    return k, LDS

def two_pass_tail(k, I, O, P, H, L):
    g3, CL, pf, sf, sg, sv2, V2, vpc, vfc, one, FV, cd, LX, LT2, nlate = [L[n] for n in 'g3 CL pf sf sg sv2 V2 vpc vfc one FV cd LX LT2 nlate'.split()]
    dq = [(s, i) for s in range(16) for i in range(8)]
    acts = [lambda: g3.dma(*dq.pop(0))] * (8 * O['pre3'])
    I2 = dict(I, khs=5); g3.catch = O['pre3'] == 2
    with k.capture() as cg: G1 = H.get('G1') or gen_G1b(k, I2)
    for _ in range(2): acts.pop(0)()
    cg.weave(acts, O['pg'])
    while acts: acts.pop(0)()
    so = srd(k, P['out'], SZ['out'])
    with k.capture() as f3a:
        if O['v2s'] >= 0: H['v2'] = v2_store(k, *V2, sv2)
    with k.capture() as f3b:
        FA = final_addr(k, I2, LT2, LX)
    pf("pref")
    p4 = Poll(k, sf, vpc, 1, 1, FV, sleep=16)
    VS = O['v2s']; PV = O['pv']; VF = O.get('vf', VS + 3); PF = PV + O['pd']; YS = PF + O['yd']; YB = YS + O['yl']; acc = g3.acc; ad = FA['ad']
    aa0 = lambda mm, ib: acc[0].q(4 * mm + 2 + ib)
    S = {}
    def cap(name, fn):
        with k.capture() as S[name]: fn()
    def pre_bar3(s):
        if s == VF: k.wait(H['v2'])
        if s == PF: f3b.flush(); p4.finish()
        if s == 8: S['xw'].flush(); k.wait(H['xw'])
        if s == YB: S['y'].flush(); k.wait(H['yw'])
    def post_bar3(s):
        if O['touch'] and s == 4: code_touch(k, I, 1, 16384, cd)
        if s == VF: wave0_store(k, I, f"buffer_store_dword {one}, {vfc}, {sf}, {FV} offen {SC}")
        if s == PV: p4.issue()
        if s == PF:
            L2 = v2_issue2(k, I, sv2)
            H['g'] = g_issue2(k, I2, sg)
            def f(): H['yw'] = y_stage2(k, I, L2, LX)
            cap('y', f)
        if s == 8:
            def f():
                k(f"v_xor_b32 {ad}, 0x1000, {ad}")
                for mm in range(2):
                    for ib in range(2): k(f"ds_read_b128 {aa0(mm,ib)}, {ad} offset:{1024*(2*mm+ib)}")
                k(f"v_xor_b32 {ad}, 0x1000, {ad}")
            f()
            def f2():
                for mm in range(2):
                    for ib in range(2):
                        for x in (0, 2): pk(k, '+', acc[0].q(4*mm+ib)[x:x+2], acc[0].q(4*mm+ib)[x:x+2], aa0(mm, ib)[x:x+2])
            cap('add', f2)
        if s == YB:
            H['Y'] = k.v.allocq(32)
            def f():
                for r in y_reads(FA, H['Y']): k(r)
            cap('yr', f)
            def f2():
                for m in ph3_list(G1, H['Y'], aa0): k(m)
            cap('m', f2)
            def f3():
                fin3(k, FA, H['g'], acc[0], aa0, so, 0, O['oaf'].replace('_', ''), True)
                for j in range(1, 32, 2): k(f"v_xor_b32 {G1[j]}, 0x80008000, {G1[j]}")
            cap('fin', f3)
    def fill3(s, u, q):
        if s == VS and f3a.left(): f3a.emit(2)
        if s == max(VS, 0) and u == 1 and q == 15: f3a.flush()
        if s > VS and q >= 8: f3b.emit(2)
        if q == 15 and u == 0 and 3 <= s < 3 + nlate: CL.drain()
        if q == 15 and u == 1 and 1 <= s < 1 + nlate: CL.issue((LX, LT2)[s & 1])
        if s == 8 and u == 0:
            if q == 0:
                def f():
                    for mm in range(2):
                        for ib in range(2): H['xw'] = k(f"ds_write_b128 {ad}, {aa0(mm,ib)} offset:{1024*(2*mm+ib)}")
                cap('xw', f)
            if q >= 8 and q & 1: S['xw'].emit(1)
        if s == 9 and u == 0 and q >= 8: S['add'].emit(O.get('yr') or 1)
        if s == 9 and u == 0 and q == 15: S['add'].flush()
        if 'y' in S and (s, u) >= (YS, 1) and q >= 8: S['y'].emit(O.get('yr') or -(-7 // O['yl']))
        if 'yr' in S:
            if S['yr'].left(): S['yr'].emit(3)
            elif S['m'].left():
                if (s, u) >= (YB + 1, 0) and q >= 8: S['m'].emit(2)
            elif (s, u) >= (max(YB + 1, O['fs']), 1) and (q >= 8 or s >= 13): S['fin'].emit(O['fr'])
        if u == 1 and q == 0 and (s % 4 == 3 or PROFSEL): pf(f"b{s}")
    g3.main(dq, fill3, pre_bar3, post_bar3)
    assert CL.nd == 16
    print("fin(a) left after main:", S['fin'].left())
    for n in ('yr', 'm', 'fin'): S[n].flush()
    pf("main3")
    ml = ph3_list(G1, H['Y'], aa0)
    wr = [f"ds_write_b128 {ad}, {acc[1].q(4*mm+2+ib)} offset:{1024*(2*mm+ib)}" for ib in range(2) for mm in range(2)]
    for j in range(8):
        k(ml.pop(0))
        if j & 1 == 0: k(wr.pop(0))
    k(f"v_xor_b32 {ad}, 0x1000, {ad}\ns_waitcnt lgkmcnt(0)\ns_barrier")
    pf("xbar")
    rd = [f"ds_read_b128 {acc[1].q(4*mm+2+ib)}, {ad} offset:{1024*(2*mm+ib)}" for ib in range(2) for mm in range(2)]
    while ml:
        k(ml.pop(0))
        if rd: k(rd.pop(0))
    fin3(k, FA, H['g'], acc[1], aa0, so, 1, O['obf'].replace('_', ''), False)
    pf("epi")
    k.v.free(g3.fr)
    pf.done()
    end(k)
    return k, L['LDS']

def tail32(k, I, O, P, H, L):
    g3, CL, pf, sf, sg, sv2, V2, vpc, vfc, one, FV, cd, LX, LT2, nlate = [L[n] for n in 'g3 CL pf sf sg sv2 V2 vpc vfc one FV cd LX LT2 nlate'.split()]
    dq = [(s, i) for s in range(16) for i in range(8)]
    acts = [lambda: g3.dma(*dq.pop(0))] * (8 * O['pre3'])
    g3.catch = O['pre3'] == 2
    with k.capture() as cg: G1 = gen_G32(k, I)
    if O['gseam']:
        for _ in range(2): acts.pop(0)()
        cg.weave(acts, O['pg'])
    while acts: acts.pop(0)()
    so = srd(k, P['out'], SZ['out'])
    with k.capture() as f3a:
        if O['v2s'] >= 0: H['v2'] = v2_store(k, *V2, sv2)
    with k.capture() as f3b:
        FA = final_addr32(k, I, LT2, LX)
    pf("pref")
    p4 = Poll(k, sf, vpc, 1, 1, FV, sleep=16)
    VS = O['v2s']; PV = O['pv']; VF = O.get('vf', VS + 3); PF = PV + O['pd']; YS = PF + O['yd']; YB = YS + O['yl']
    acc = g3.acc; ad = FA['ad']; aa = acc[0].q(1, 16); FR = O['rate']
    S = {}; XS = O['xs']; assert 8 <= XS and XS + 1 <= YB
    def addbf(y, p):
        for j in range(8):
            k(f"""v_lshlrev_b32 {p[8+j]}, 16, {p[j]}
            v_and_b32 {p[j]}, 0xffff0000, {p[j]}
            v_add_f32 {y[2*j]}, {y[2*j]}, {p[8+j]}
            v_add_f32 {y[2*j+1]}, {y[2*j+1]}, {p[j]}""")
    def cap(name, fn):
        with k.capture() as S[name]: fn()
    def pre_bar3(s):
        if s == VF: k.wait(H['v2'])
        if s == PF: f3b.flush(); cg.flush(); p4.finish()
        if s == XS: S['xw'].flush(); k.wait(H['xw'])
        if s == YB: S['vl'].flush(); S['y'].flush(); k.wait(H['yw'])
    def post_bar3(s):
        if O['touch'] and s == 4: code_touch(k, I, 1, 16384, cd)
        if s == VF: wave0_store(k, I, f"buffer_store_dword {one}, {vfc}, {sf}, {FV} offen {SC}")
        if s == PV: p4.issue()
        if s == PF:
            def f0():
                H['L2'] = v2_issue2(k, I, sv2)
            cap('vl', f0)
            S['vl'].emit(6)
            def f(): H['yw'] = y_stage2(k, I, H['L2'], LX, O['scal'])
            cap('y', f)
        if s == XS:
            k(f"v_xor_b32 {ad}, 0x1000, {ad}")
            for j in range(2): k(f"ds_read_b128 {aa.q(j)}, {ad} offset:{1024*j}")
            k(f"v_xor_b32 {ad}, 0x1000, {ad}")
            def f2(): addbf(acc[0].q(0, 16), aa)
            cap('add', f2)
        if s == YB:
            H['Y'] = k.v.allocq(32); H['g'] = k.v.allocq(16)
            def f():
                for r in y_reads32(FA, H['Y']): k(r)
            cap('yr', f)
            def f2():
                for m in ph3_list32(G1, H['Y'], aa): k(m)
            cap('m', f2)
            def f3():
                k.wait(H['gl']); g_read32(k, FA, H['g'], 0)
                for j in range(1, 32, 2): k(f"v_xor_b32 {G1[j]}, 0x80008000, {G1[j]}")
                fin32(k, FA, H['g'], acc[0].q(0, 16), None, aa, so, 0, O['oaf'].replace('_', ''), O['scal'])
                g_read32(k, FA, H['g'], 1)
            cap('fin', f3)
    def fill3(s, u, q):
        if s == VS and f3a.left(): f3a.emit(4)
        if s == max(VS, 0) and u == 1 and q == 7: f3a.flush()
        if s > VS:
            if f3b.left(): f3b.emit(FR)
            else: cg.emit(FR)
        if q == 7 and u == 0 and 3 <= s < 3 + nlate: CL.drain()
        if q == 7 and u == 1 and 1 <= s < 1 + nlate: CL.issue((LX, LT2)[s & 1])
        if s == 7 and u == 0 and q == 7: H['gl'] = g_dma32(k, I, FA, sg, LT2 + 2048)
        if s == XS and u == 0:
            if q == 0:
                def f():
                    for j in range(8): k(f"v_cvt_pk_bf16_f32 {aa[j]}, {aa[2*j]}, {aa[2*j+1]}")
                    for j in range(2): H['xw'] = k(f"ds_write_b128 {ad}, {aa.q(j)} offset:{1024*j}")
                cap('xw', f)
            if q >= 2: S['xw'].emit(2)
        if s == XS + 1: S['add'].emit(2)
        if s == XS + 1 and u == 1 and q == 7: S['add'].flush()
        if 'vl' in S and q == 7: S['vl'].emit(O['vr'])
        if 'y' in S and (s, u) >= (YS, 1):
            assert S['vl'].left() == 0
            S['y'].emit(O.get('yr') or -(-(10 if O['scal'] else 7) // O['yl']))
        if 'yr' in S:
            if S['yr'].left(): S['yr'].emit(O['yrr'])
            elif S['m'].left():
                if (s, u) >= (YB + 1, 1): S['m'].emit(1)
            elif (s, u) >= (max(YB + 2, O['fs']), 0): S['fin'].emit(O['fr'])
        if u == 1 and q == 0 and (s % 4 == 3 or PROFSEL): pf(f"b{s}")
    g3.main(dq, fill3, pre_bar3, post_bar3)
    assert CL.nd == 16
    print("fin(a) left after main:", S['fin'].left())
    for n in ('yr', 'm', 'fin'): S[n].flush()
    pf("main3")
    ml = ph3_list32(G1, H['Y'], aa); snt = acc[1].q(1, 16)
    y = acc[1].q(0, 16)
    if O['xb']:
        for j in range(2):
            k(ml.pop(0))
            for x in range(4 * j, 4 * j + 4): k(f"v_cvt_pk_bf16_f32 {snt[x]}, {snt[2*x]}, {snt[2*x+1]}")
            k(f"ds_write_b128 {ad}, {snt.q(j)} offset:{1024*j}")
        k(ml.pop(0)); k(ml.pop(0))
        k(f"v_xor_b32 {ad}, 0x1000, {ad}\ns_waitcnt lgkmcnt(0)\ns_barrier")
        pf("xbar")
        k(ml.pop(0))
        for j in range(2): k(f"ds_read_b128 {snt.q(j)}, {ad} offset:{1024*j}")
        while ml: k(ml.pop(0))
        addbf(y, snt)
    else:
        k(f"v_subrev_u32 {ad}, {LT2}, {ad}")
        for j in range(4): k(ml.pop(0)); k(f"ds_write_b128 {ad}, {snt.q(j)} offset:{1024*j}")
        k(ml.pop(0))
        k(f"v_xor_b32 {ad}, 0x1000, {ad}\ns_waitcnt lgkmcnt(0)\ns_barrier")
        pf("xbar")
        k(ml.pop(0))
        for j in range(4): k(f"ds_read_b128 {snt.q(j)}, {ad} offset:{1024*j}")
        while ml: k(ml.pop(0))
        for x in range(0, 16, 2): k(f"v_pk_add_f32 {y[x:x+2]}, {y[x:x+2]}, {snt[x:x+2]}")
    fin32(k, FA, H['g'], y, None, aa, so, 1, O['obf'].replace('_', ''))
    pf("epi")
    k.v.free(g3.fr)
    pf.done()
    end(k)
    return k, L['LDS']

def tailS(k, I, O, P, H, L):
    g3, CL, pf, sf, sg, sv2, V2, vpc, vfc, one, FV, FP, cd, LX, LT2, nlate = [L[n] for n in 'g3 CL pf sf sg sv2 V2 vpc vfc one FV FP cd LX LT2 nlate'.split()]
    assert O['v2s'] < 0
    hq = [(s, i) for s in range(16) for i in range(4)]
    cslots = [L['B2'], L['B3_'], LT2]
    def cnext():
        if CL.n & 3 == 0: H['cs'] = cslots.pop(0)
        CL.issue1(H['cs'])
    acts = [lambda: g3.dma(*hq.pop(0))] * (4 * O['pre3']) + [cnext] * (4 * min(nlate, O['cpre']))
    with k.capture() as cg:
        G1 = H.get('G1') or gen_GS(k, I)
    for _ in range(2): acts.pop(0)()
    cg.weave(acts, O['pg'])
    while acts: acts.pop(0)()
    if O['v2s'] == -2: H['v2'] = v2_store(k, *V2, sv2)
    with k.capture() as f3b:
        so = srd(k, P['out'], SZ['out']); spx = srd(k, P['ws'], 8 << 20, WS_PX)
        A = addrS(k, I, LX)
        spec = k.s.alloc(); vfl = k.v.alloc()
        k(f"s_lshr_b32 {spec}, {I['tb']}, 3\ns_or_b32 {spec}, {spec}, {I['w']}\ns_and_b32 {spec}, {spec}, 1\nv_lshlrev_b32 {vfl}, 2, {I['n']}")
    pf("pref")
    p4 = Poll(k, sf, vpc, 1, 1, FV, sleep=16)
    PV = O['pv']; VF = O['vf']; PF = PV + O['pd']; YS = PF + O['yd']; YB = YS + O['yl']; D = O['D']
    MS = max(YB + 1, 8); FL = O['fl']; PL = O['pl']
    acc = g3.acc; S = {}; BF = O['bf']
    def cap(name, fn):
        with k.capture() as S[name]: fn()
    def gload():
        for ib in range(4): k(f"buffer_load_dwordx4 {H['g'].q(ib)}, {A['vg']}, {sg}, {A['sg']} offen offset:{256*ib} {SC}")
    def mix(y, aa, b):
        g = H['g'].q(b & 3)
        for x in (0, 2): k(f"v_pk_add_f32 {aa.q(b)[x:x+2]}, {aa.q(b)[x:x+2]}, {y.q(b)[x:x+2]} neg_lo:[0,1] neg_hi:[0,1]")
        for x in (0, 2): k(f"v_pk_fma_f32 {y.q(b)[x:x+2]}, {g[x:x+2]}, {aa.q(b)[x:x+2]}, {y.q(b)[x:x+2]}")
    def vm(s, u, x):
        if x == 0:
            late_c = CL.n < 64 and cslots
            H['mode'] = 'c' if (late_c and u == 1) else ('h' if hq and hq[0][0] <= s + D - (1 - u) * 0 and hq[0][0] < s + u + g3.NR else None)
        if H['mode'] == 'c': cnext()
        if H['mode'] == 'h': g3.dma(*hq.pop(0))
    def pre_bar3(s):
        if s == VF: k.wait(H['v2'])
        if s == PF: f3b.flush(); p4.finish()
        if s == YB: S['y'].flush(); k.wait(H['yw'])
    def post_bar3(s):
        if O['touch'] and s == 4: code_touch(k, I, 1, 16384, cd)
        if s == VF: wave0_store(k, I, f"buffer_store_dword {one}, {vfc}, {sf}, {FV} offen {SC}")
        if s == PV: p4.issue()
        if s == PF:
            L2 = k.v.allocq(16)
            for j in range(4): k(f"buffer_load_dwordx4 {L2.q(j)}, {A['l16']}, {sv2}, {A['sv']} offen offset:{1024*j} {SC}")
            def f(): H['yw'] = y_stage2(k, I, L2, LX, False, spec)
            cap('y', f)
        if s == YB:
            H['Y'] = k.v.allocq(16); H['aa'] = aa = k.v.allocq(32); H['g'] = k.v.allocq(16); gload()
            for r in y_readsS(A, H['Y']): k(r)
            def f2():
                for m in ph3_listS(G1, H['Y'], aa): k(m)
            cap('m', f2)
            def f3():
                for j in range(1, 32, 2): k(f"v_xor_b32 {G1[j]}, 0x80008000, {G1[j]}")
                for b in range(8):
                    mix(acc[0], aa, b)
                    if BF:
                        for x in range(2): k(f"v_cvt_pk_bf16_f32 {acc[0][2*b+x]}, {acc[0][4*b+2*x]}, {acc[0][4*b+2*x+1]}")
                k(f"s_xor_b32 {A['sg']}, {A['sg']}, 1024")
            cap('fin', f3)
            def st1(b):
                if b == 4: k(f"s_add_u32 {A['px']}, {A['px']}, 4096")
                H['ps'] = k(f"buffer_store_dwordx4 {acc[0].q(b)}, {A['l16']}, {spx}, {A['px']} offen offset:{1024*(b&3)} {SC}")
            H['sq'] = [lambda b=b: st1(b) for b in range(4 if BF else 8)]
            def f4():
                for m in ph3_listS(G1, H['Y'], aa): k(m)
            cap('m2', f4)
        if s == FL:
            assert not H['sq'] and not S['fin'].left()
            k.wait(H['ps'])
            k(f"s_xor_b32 {A['px']}, {A['px']}, {8 << 15}")
            k(f"s_mov_b64 exec, 0xffff\nbuffer_store_dword {one}, {vfl}, {sf}, {FP} offen {SC}\ns_mov_b64 exec, -1\ns_xor_b32 {FP}, {FP}, {8 << 9}")
            H['p5'] = Poll(k, sf, vfl, 1, 1, FP, sleep=3, mask=1)
            gload()
    def pload():
        H['p5'].finish()
        def ld1(b):
            if b == 0 and not BF: k(f"s_sub_u32 {A['px']}, {A['px']}, 4096")
            k(f"buffer_load_dwordx4 {acc[0].q(b ^ (2 if BF else 4))}, {A['l16']}, {spx}, {A['px']} offen offset:{1024*(b&3)} {SC}")
        H['lq'] = [lambda b=b: ld1(b) for b in ((2, 0, 3, 1) if BF else (4, 5, 6, 7, 0, 1, 2, 3))]
    def fill3(s, u, q):
        if q >= 8: f3b.emit(2)
        if q == 15 and u == 0 and CL.nd < 16 and CL.nd < CL.n // 4 and (CL.nd < CL.n // 4 - O['clag'] or CL.n == 64 and s >= O.get('cend', 0) or CL.nd <= 2 * s + 3):
            cslots.append(CL.drain())
        if 'y' in S and (s, u) >= (YS, 1) and q >= 8: S['y'].emit(1000)
        if 'm' in S:
            if S['m'].left():
                if (s, u) >= (YB + 1, 0) and q >= 8: S['m'].emit(2)
            elif S['fin'].left():
                if (s, u) >= (MS, 1) and q >= 8: S['fin'].emit(O['fr'])
            elif (s, u) >= (O['m2s'], 0) and q >= 8: S['m2'].emit(2)
        if H.get('sq') and not S['fin'].left() and q % O['sr'] == O['sr'] - 1: H['sq'].pop(0)()
        if H.get('lq') and q % O['lr'] == O['lr'] - 1: H['lq'].pop(0)()
        if 2 * s + u == PL and q == 8: H['p5'].issue()
        if 2 * s + u == PL + O['pld'] and q == 8: pload()
        if u == 1 and q == 0 and (s % 4 == 3 or PROFSEL): pf(f"b{s}")
    g3.main(vm, fill3, pre_bar3, post_bar3)
    assert CL.nd == 16 and not hq
    for n in ('m', 'fin', 'm2'): S[n].flush()
    pf("main3")
    if PL + O['pld'] > 31: pload()
    while H['lq']: H['lq'].pop(0)()
    y = acc[1]; aa = H['aa']; va, so_ = A['va'], A['so']
    for ib in range(4):
        for mm in range(2):
            b = 4 * mm + ib
            mix(y, aa, b)
            for x in (0, 2):
                p_ = acc[0].q(b)[x:x+2]
                if BF:
                    p_ = acc[0].q(4 + (b & 3))[x:x+2]; src = acc[0][2 * b + x // 2]
                    k(f"v_lshlrev_b32 {p_[0]}, 16, {src}\nv_and_b32 {p_[1]}, 0xffff0000, {src}")
                k(f"v_pk_add_f32 {y.q(b)[x:x+2]}, {y.q(b)[x:x+2]}, {p_}")
        for r in range(4):
            for mm in range(2): k(f"buffer_store_dword {y.q(4*mm+ib)[r]}, {va[mm]}, {so}, {so_} offen {O['obf'].replace('_', '')}")
            if (ib, r) != (3, 3): k(f"s_add_u32 {so_}, {so_}, {(1<<16) if r < 3 else (1<<20) - 3*(1<<16)}")
    pf("epi")
    k.v.free(g3.fr)
    pf.done()
    end(k)
    return k, L['LDS']

def seam2(k, I, O, P, H, L):
    g3, CL, pf, sf, FH, vfh, one, T, C2, Wf, WX, LT1, LT2, XK, Dk, sv2, c1act, nlate = [L[n] for n in 'g3 CL pf sf FH vfh one T C2 Wf WX LT1 LT2 XK Dk sv2 c1act nlate'.split()]
    vph = k.v.alloc(); tt = k.s.alloc()
    with k.capture() as ca:
        k(f"s_lshr_b32 {tt}, {I['tb']}, 3\ns_lshl2_add_u32 {tt}, {tt}, {I['w']}\ns_lshl_b32 {tt}, {tt}, 12\nv_lshl_add_u32 {vph}, {I['l']}, 7, {tt}")
        H['G1'] = gen_GS(k, I)
    k.s.free(tt)
    acts = [c1act] * (64 - 4 * nlate - CL.n)
    pre = [acts.pop() for _ in range(min(len(acts), O['nc2']))]
    ca.weave(pre, O['pc2'], O['lead2']); acts += pre
    p3 = Poll(k, sf, vph, 1, 1, FH, mask=0xffffffff)
    pf("bar1")
    k.wait(L['t1w'], L['lasth']); k("s_barrier")
    wave0_store(k, I, f"buffer_store_dword {one}, {vfh}, {sf}, {FH} offen {SC}", O['fm'])
    pf("hflag")
    def mark(i):
        if i == O['pm']: p3.issue()
    with k.capture() as c5: ph2_mid(k, I, T, C2, Wf, WX, LT1, LT2, mark)
    c5.weave(acts, O['pc'], O['leadc'])
    print("C instr left after mid:", len(acts))
    while acts: acts.pop(0)()
    mark(4)
    pf("mid")
    g3.acc = [k.v.allocq(32), k.v.allocq(32)]
    (xd_initM if O['xm'] else xd_initS)(k, XK, Dk, g3.acc)
    while CL.nd < CL.n // 4: CL.drain()
    pf("s6")
    p3.finish(); k.v.free(vph)
    k("s_waitcnt lgkmcnt(0)\ns_barrier")
    pf("sync3")
    L = dict(L); L['V2'] = None
    return tailT(k, I, O, P, H, L)

def tailT(k, I, O, P, H, L):
    g3, CL, pf, sf, sg, sv2, V2, vpc, vfc, one, FV, cd, LX, LT2, nlate = [L[n] for n in 'g3 CL pf sf sg sv2 V2 vpc vfc one FV cd LX LT2 nlate'.split()]
    g3.split = bool(O['eo'])
    hq = [(s, i) for s in range(16) for i in range(4)]
    cslots = [L['B2'], L['B3_'], LT2]
    def cnext():
        if CL.n & 3 == 0: H['cs'] = cslots.pop(0)
        CL.issue1(H['cs'])
    acts = [lambda: g3.dma(*hq.pop(0))] * (4 * O['pre3']) + [cnext] * (4 * min(nlate, O['cpre']))
    with k.capture() as cg:
        G1 = H.get('G1') or gen_GS(k, I)
        if V2 is None: V2 = ph2_s6(k, I, L['C2'], LT2)
    for _ in range(2): acts.pop(0)()
    cg.weave(acts, O['pg'])
    while acts: acts.pop(0)()
    if O['v2s'] == -2: H['v2'] = v2_store(k, *V2, sv2)
    if O['seam2']: g3.fr = k.v.allocq(64); assert O['v2s'] != -1 and O['cpre'] <= 2
    with k.capture() as f3b:
        so = srd(k, P['out'], SZ['out']); spx = srd(k, P['ws'], 256 * V1_STR, WS_V1)
        A = addrS(k, I, LX)
        spec = k.s.alloc()
        k(f"s_lshr_b32 {spec}, {I['tb']}, 3\ns_or_b32 {spec}, {spec}, {I['w']}\ns_and_b32 {spec}, {spec}, 1\ns_lshr_b32 {A['px']}, {A['px']}, 1")
        psel = k.s.alloc(); k(f"s_mov_b32 {psel}, 0x07060302")
    with k.capture() as f3a:
        if O['v2s'] >= 0: H['v2'] = v2_store(k, *V2, sv2)
    pf("pref")
    p4 = Poll(k, sf, vpc, 1, 1, FV, sleep=16)
    PV = O['pv']; VF = O['vf']; PF = PV + O['pd']; YS = PF + O['yd']; YB = YS + O['yl']; D = O['D']
    MS = max(YB + 1, 8); PL = O['pl']
    if O['bars']:
        g3.bars = [-1] + [int(c, 16) for c in str(O['bars'])[1:]]; assert all(x in g3.bars for x in (VF, PF, YB))
    acc = g3.acc; S = {}; va, so_ = A['va'], A['so']
    LEAN = O.get('lean', 1)
    PK, UN = (acc[0][16:32], acc[0][0:16]) if LEAN else (acc[0][0:16], acc[0][16:32])
    def cap(name, fn):
        with k.capture() as S[name]: fn()
    def gload():
        for ib in range(4): k(f"buffer_load_dwordx4 {H['g'].q(ib)}, {A['vg']}, {sg}, {A['sg']} offen offset:{256*ib} {SC}")
    def mix(y, aa, b):
        g = H['g'].q(b & 3)
        for x in (0, 2): k(f"v_pk_add_f32 {aa.q(b)[x:x+2]}, {aa.q(b)[x:x+2]}, {y.q(b)[x:x+2]} neg_lo:[0,1] neg_hi:[0,1]")
        for x in (0, 2): k(f"v_pk_fma_f32 {y.q(b)[x:x+2]}, {g[x:x+2]}, {aa.q(b)[x:x+2]}, {y.q(b)[x:x+2]}")
    def ld1(j): return k(f"buffer_load_dwordx4 {PK.q(j if LEAN else j ^ 2)}, {A['l16']}, {spx}, {A['px']} offen offset:{1024*j} {SC}")
    def check():
        m = UN[0]
        def chk():
            k(f"v_and_b32 {m}, 1, {PK[0]}")
            for j in range(1, 15, 2): k(f"v_bitop3_b32 {m}, {m}, {PK[j]}, {PK[j+1]} bitop3:0x80")
            k(f"v_and_b32 {m}, {m}, {PK[15]}\nv_cmp_eq_u32 vcc, 0, {m}")
        k.wait(H['ll']); chk()
        with k.skip_if("s_cbranch_vccz"):
            cnt = k.s.alloc(); lp, out = k.lab('px'), k.lab('pxout')
            k(f"s_mov_b32 {cnt}, 0\n{lp}:\ns_sleep 2")
            for j in range(4): ld1(j)
            k("s_waitcnt vmcnt(0)"); chk()
            k(f"s_cbranch_vccz {out}\ns_add_u32 {cnt}, {cnt}, 1\ns_cmp_lt_u32 {cnt}, {1<<20}\ns_cbranch_scc1 {lp}\n{out}:")
            k.s.free(cnt)
    def fin(ib, flags):
        y, aa = acc[1], H['aa']
        for mm in range(2):
            b = 4 * mm + ib
            mix(y, aa, b)
            for x in (0, 2):
                if LEAN:
                    p_ = PK.q(ib)[x:x+2]
                    if mm: k(f"v_lshlrev_b32 {p_[0]}, 16, {p_[0]}\nv_lshlrev_b32 {p_[1]}, 16, {p_[1]}")
                    k(f"v_pk_add_f32 {y.q(b)[x:x+2]}, {y.q(b)[x:x+2]}, {p_}")
                    continue
                p_ = UN.q(2 * (ib & 1) + mm)[x:x+2]; src = PK[2 * b + x // 2]
                k(f"v_lshlrev_b32 {p_[0]}, 16, {src}\nv_and_b32 {p_[1]}, 0xffff0000, {src}\nv_pk_add_f32 {y.q(b)[x:x+2]}, {y.q(b)[x:x+2]}, {p_}")
        for r in range(4):
            for mm in range(2): k(f"buffer_store_dword {y.q(4*mm+ib)[r]}, {va[mm]}, {so}, {so_} offen {flags}")
            if (ib, r) != (3, 3): k(f"s_add_u32 {so_}, {so_}, {(1<<16) if r < 3 else (1<<20) - 3*(1<<16)}")
    def vm(s, u, x):
        if x == 0:
            late_c = CL.n < 64 and cslots
            H['mode'] = 'c' if (late_c and u == 1) else ('h' if hq and hq[0][0] <= s + D and hq[0][0] <= g3.freed + g3.NR else None)
        if H['mode'] == 'c': cnext()
        if H['mode'] == 'h': g3.dma(*hq.pop(0))
    def pre_bar3(s):
        if s == VF and not O.get('nofv'): f3a.flush(); k.wait(H['v2'])
        if s == PF: f3b.flush(); f3a.flush()
        if s == PF and not O.get('nofv'): p4.finish()
        if s == YB: S['y'].flush(); k.wait(H['yw'])
    def post_bar3(s):
        if O['touch'] and s == 4: code_touch(k, I, 1, 16384, cd)
        if s == VF and not O.get('nofv'): wave0_store(k, I, f"buffer_store_dword {one}, {vfc}, {sf}, {FV} offen {SC}")
        if s == PV and not O.get('nofv'): p4.issue()
        if s == PF:
            L2 = k.v.allocq(16)
            for j in range(4): k(f"buffer_load_dwordx4 {L2.q(j)}, {A['l16']}, {sv2}, {A['sv']} offen offset:{1024*j} {SC}")
            def f(): H['yw'] = y_stage3(k, I, L2, LX, spec) if O.get('lean', 1) else y_stage2(k, I, L2, LX, False, spec)
            cap('y', f)
        if s == YB:
            H['Y'] = k.v.allocq(16); H['aa'] = aa = k.v.allocq(32); H['g'] = k.v.allocq(16); gload()
            for r in y_readsS(A, H['Y']): k(r)
            def f2():
                for m in ph3_listS(G1, H['Y'], aa): k(m)
            cap('m', f2)
            def f3():
                if LEAN:
                    for j in range(1, 16, 2): k(f"v_xor_b32 {H['Y'][j]}, 0x80008000, {H['Y'][j]}")
                    for ib in range(4):
                        mix(acc[0], aa, ib); mix(acc[0], aa, 4 + ib)
                        for r in range(4):
                            k(f"v_or_b32_sdwa {PK.q(ib)[r]}, {acc[0].q(ib)[r]}, {one} dst_sel:WORD_0 dst_unused:UNUSED_PRESERVE src0_sel:WORD_1 src1_sel:WORD_0")
                        k(f"buffer_store_dwordx4 {PK.q(ib)}, {A['l16']}, {spx}, {A['px']} offen offset:{1024*ib} {SC}")
                else:
                    for j in range(1, 32, 2): k(f"v_xor_b32 {G1[j]}, 0x80008000, {G1[j]}")
                for b in range(0 if LEAN else 8):
                    mix(acc[0], aa, b)
                    for x in range(2): k(f"v_perm_b32 {PK[2*b+x]}, {acc[0][4*b+2*x+1]}, {acc[0][4*b+2*x]}, {psel}")
                    for x in range(2): k(f"v_or_b32 {PK[2*b+x]}, 0x10001, {PK[2*b+x]}")
                    if b & 1: k(f"buffer_store_dwordx4 {PK.q(b>>1)}, {A['l16']}, {spx}, {A['px']} offen offset:{1024*(b>>1)} {SC}")
                k(f"s_xor_b32 {A['sg']}, {A['sg']}, 1024\ns_xor_b32 {A['px']}, {A['px']}, {8 << 14}")
            cap('fin', f3)
            cap('m2', f2)
    def fill3(s, u, q):
        hs = 2 * s + u
        if hs >= O['v2s'] and q % O['v2r'] == 1: f3a.emit(2)
        if q >= 8: f3b.emit(2)
        if q == 15 and u == 0 and CL.nd < 16 and CL.nd < CL.n // 4 and (CL.nd < CL.n // 4 - O['clag'] or CL.n == 64 or CL.nd <= 2 * s + 3):
            cslots.append(CL.drain())
        if 'y' in S and (s, u) >= (YS, 1) and q >= 8: S['y'].emit(1000)
        if 'm' in S:
            if S['m'].left():
                if (s, u) >= (YB + 1, 0) and q >= 8: S['m'].emit(2)
            elif S['fin'].left():
                if (s, u) >= (MS, 1) and q >= 8: S['fin'].emit(O['fr'])
            elif (s, u) >= (O['m2s'], 0) and q >= 8: S['m2'].emit(2)
        if hs == PL - 1 and q == 15: assert not S['fin'].left(); gload()
        if hs == PL and q >= 9 and q & 1: H['ll'] = ld1((q - 9) // 2)
        if hs == PL + O['pld'] and q == 8: check()
        if O['eo'] and hs == O['es'] and q == 8:
            assert hs >= 24 and hs >= PL + O['pld'] and not S['m2'].left()
            cap('eo', lambda: (fin(0, 'sc1'), fin(1, 'sc1')))
        if 'eo' in S:
            g_ = S['eo'].groups
            if g_ and not any(i.cls == 'vm' for i in g_[0]):
                while g_ and not any(i.cls == 'vm' for i in g_[0]): S['eo'].emit(1)
            elif q % O['er'] == 0: S['eo'].emit(1)
        if u == 1 and q == 0 and (s % 4 == 3 or PROFSEL): pf(f"b{s}")
    g3.main(vm, fill3, pre_bar3, post_bar3)
    assert CL.nd == 16 and not hq
    for n in S: S[n].flush()
    pf("main3")
    for ib in range(2 if O['eo'] else 0, 4): fin(ib, O['obf'].replace('_', ''))
    pf("epi")
    k.v.free(g3.fr)
    pf.done()
    end(k)
    return k, L['LDS']

def tailU(k, I, O, P, H, L):
    g3, CL, pf, sf, sg, sv2, V2, vpc, vfc, one, FV, cd, LX, LT2, nlate = [L[n] for n in 'g3 CL pf sf sg sv2 V2 vpc vfc one FV cd LX LT2 nlate'.split()]
    hq = [(s, i) for s in range(16) for i in range(4)]
    cslots = [L['B2'], L['B3_']]; VS = O['v2s']
    def cnext():
        if CL.n & 3 == 0: H['cs'] = cslots.pop(0)
        CL.issue1(H['cs'])
    acts = [lambda: g3.dma(*hq.pop(0))] * (4 * O['pre3']) + [cnext] * (4 * min(nlate, O['cpre']))
    with k.capture() as f3b:
        so = srd(k, P['out'], SZ['out']); spx = srd(k, P['ws'], 256 * V1_STR, WS_V1)
        A = addrU(k, I, LX, LT2)
        spec = k.s.alloc(); psel = k.s.alloc()
        k(f"s_lshr_b32 {spec}, {I['tb']}, 3\ns_or_b32 {spec}, {spec}, {I['w']}\ns_and_b32 {spec}, {spec}, 1\ns_mov_b32 {psel}, 0x07060302")
        G1 = gen_GU(k, I)
    for _ in range(2): acts.pop(0)()
    while acts: f3b.run(O['pg']); acts.pop(0)()
    f3b.run(O['gx'])
    with k.capture() as f3a:
        if VS >= 0: H['v2'] = v2_store(k, *V2, sv2)
    pf("pref")
    p4 = Poll(k, sf, vpc, 1, 1, FV, sleep=16)
    PV = O['pv']; VF = O['vf']; PF = PV + O['pd']; YS = PF + O['yd']; YB = YS + O['yl']; D = O['D']
    MS = max(YB + 1, 8); PL = O['pl']; R_ = O['rate']
    acc = g3.acc; S = {}; va, so_ = A['va'], A['so']
    PK, UN = acc[0].q(0, 16), acc[0].q(1, 16)
    def cap(name, fn):
        with k.capture() as S[name]: fn()
    def gread(p, rb):
        for j in range(4): k(f"ds_read_b128 {H['g'].q(j)}, {A['vg']} offset:{256*p + 128*rb + 32*j}")
    def mix(y, aa, r, scal):
        g = H['g']
        if scal:
            for x in (r, r + 1): k(f"v_sub_f32 {aa[x]}, {aa[x]}, {y[x]}")
            for x in (r, r + 1): k(f"v_fmac_f32 {y[x]}, {g[x]}, {aa[x]}")
        else: k(f"v_pk_add_f32 {aa[r:r+2]}, {aa[r:r+2]}, {y[r:r+2]} neg_lo:[0,1] neg_hi:[0,1]\nv_pk_fma_f32 {y[r:r+2]}, {g[r:r+2]}, {aa[r:r+2]}, {y[r:r+2]}")
    def ld1(j): return k(f"buffer_load_dwordx4 {PK.q(j)}, {A['l16']}, {spx}, {A['px']} offen offset:{1024*j} {SC}")
    def check():
        m = UN[0]
        def chk():
            k(f"v_and_b32 {m}, 1, {PK[0]}")
            for j in range(1, 15, 2): k(f"v_bitop3_b32 {m}, {m}, {PK[j]}, {PK[j+1]} bitop3:0x80")
            k(f"v_and_b32 {m}, {m}, {PK[15]}\nv_cmp_eq_u32 vcc, 0, {m}")
        k.wait(H['ll']); chk()
        with k.skip_if("s_cbranch_vccz"):
            cnt = k.s.alloc(); lp, out = k.lab('px'), k.lab('pxout')
            k(f"s_mov_b32 {cnt}, 0\n{lp}:\ns_sleep 2")
            for j in range(4): ld1(j)
            k("s_waitcnt vmcnt(0)"); chk()
            k(f"s_cbranch_vccz {out}\ns_add_u32 {cnt}, {cnt}, 1\ns_cmp_lt_u32 {cnt}, {1<<20}\ns_cbranch_scc1 {lp}\n{out}:")
            k.s.free(cnt)
    def unpack(rb):
        for r in range(0, 16, 2):
            src = PK[8 * rb + r // 2]
            k(f"v_lshlrev_b32 {UN[r]}, 16, {src}\nv_and_b32 {UN[r+1]}, 0xffff0000, {src}")
    def fin(rb, flags, scal):
        y, aa = acc[1].q(rb, 16), H['aa'].q(rb, 16)
        for r in range(0, 16, 2):
            mix(y, aa, r, scal)
            if scal:
                for x in (r, r + 1): k(f"v_add_f32 {y[x]}, {y[x]}, {UN[x]}")
            else: k(f"v_pk_add_f32 {y[r:r+2]}, {y[r:r+2]}, {UN[r:r+2]}")
            for x in (r, r + 1):
                k(f"buffer_store_dword {y[x]}, {va}, {so}, {so_} offen {flags}")
                if (rb, x) != (1, 15): k(f"s_add_u32 {so_}, {so_}, {(1 if x & 3 < 3 else 5) << 16}")
    def vm(s, u, x):
        if x == 0:
            late_c = CL.n < 64 and cslots
            H['mode'] = 'c' if (late_c and u == 1) else ('h' if hq and hq[0][0] <= s + D and hq[0][0] < s + u + g3.NR else None)
        if H['mode'] == 'c': cnext()
        if H['mode'] == 'h': g3.dma(*hq.pop(0))
    def pre_bar3(s):
        if s == VF: f3a.flush(); k.wait(H['v2'])
        if s == PF: f3b.flush(); p4.finish()
        if s == YB: S['y'].flush(); k.wait(H['yw'])
    def post_bar3(s):
        if O['touch'] and s == 4: code_touch(k, I, 1, 16384, cd)
        if s == VF: wave0_store(k, I, f"buffer_store_dword {one}, {vfc}, {sf}, {FV} offen {SC}")
        if s == PV: p4.issue()
        if s == PF:
            L2 = k.v.allocq(16)
            for j in range(4): k(f"buffer_load_dwordx4 {L2.q(j)}, {A['l16']}, {sv2}, {A['sv']} offen offset:{1024*j} {SC}")
            k(f"""s_lshl_b32 m0, {I['w']}, 12
            s_add_u32 m0, m0, {LT2}
            buffer_load_dword {A['gg']}, {sg}, {A['sg']} offen {SC} lds
            s_xor_b32 {A['sg']}, {A['sg']}, 1024
            s_add_u32 m0, m0, 256""")
            H['gl'] = k(f"buffer_load_dword {A['gg']}, {sg}, {A['sg']} offen {SC} lds")
            k.v.free(A['gg'])
            def f(): H['yw'] = y_stage2(k, I, L2, LX, O['scal'], spec)
            cap('y', f)
        if s == YB:
            H['Y'] = Y = k.v.allocq(16); H['aa'] = aa = k.v.allocq(32, 16); H['g'] = k.v.allocq(16)
            for kap in range(4):
                for h in range(2): k(f"ds_read_b64_tr_b16 {Y[4*kap+2*h:4*kap+2*h+2]}, {A['ay']} offset:{512*kap + 128*h}")
            def f2():
                for kap in range(4):
                    for rb in range(2): k(f"v_mfma_f32_32x32x16_bf16 {aa.q(rb,16)}, {G1.q(4*rb+kap)}, {Y.q(kap)}, {aa.q(rb,16) if kap else 0}")
            cap('m', f2)
            def f3():
                k.wait(H['gl'])
                for rb in range(2):
                    gread(0, rb)
                    for j in range(16 * rb + 1, 16 * rb + 16, 2): k(f"v_xor_b32 {G1[j]}, 0x80008000, {G1[j]}")
                    y = acc[0].q(rb, 16)
                    for r in range(0, 16, 2):
                        mix(y, aa.q(rb, 16), r, O['scal']); o = PK[8 * rb + r // 2]
                        k(f"v_perm_b32 {o}, {y[r+1]}, {y[r]}, {psel}\nv_or_b32 {o}, 0x10001, {o}")
                        if r & 7 == 6: k(f"buffer_store_dwordx4 {PK.q(2*rb + (r>>3))}, {A['l16']}, {spx}, {A['px']} offen offset:{1024*(2*rb + (r>>3))} {SC}")
                k(f"s_xor_b32 {A['px']}, {A['px']}, {8 << 14}")
            cap('fin', f3)
            cap('m2', f2)
    def fill3(s, u, q):
        hs = 2 * s + u
        if s >= VS and f3a.left():
            if q % O['v2r'] == 0: f3a.emit(2)
        f3b.emit(R_)
        if q == 7 and u == 0 and CL.nd < 16 and CL.nd < CL.n // 4 and (CL.nd < CL.n // 4 - O['clag'] or CL.n == 64 or CL.nd <= 2 * s + 3):
            cslots.append(CL.drain())
        if 'y' in S and (s, u) >= (YS, 1): S['y'].emit(O['yr'])
        if 'm' in S:
            if S['m'].left():
                if (s, u) >= (YB + 1, 0): S['m'].emit(1)
            elif S['fin'].left():
                if (s, u) >= (MS, 1): S['fin'].emit(O['fr'])
            elif (s, u) >= (O['m2s'], 0): S['m2'].emit(1)
        if hs == PL and q >= 4: assert not S['fin'].left(); H['ll'] = ld1(q - 4)
        if hs == PL + O['pld'] and q == 4: check()
        if hs == O['es'] and q == 5:
            assert hs >= 24 and hs >= PL + O['pld'] and not S['m2'].left()
            cap('eo', lambda: (gread(1, 0), unpack(0), fin(0, 'sc1', O['scal']), gread(1, 1), unpack(1)))
        if 'eo' in S: S['eo'].emit(O['er'])
        if u == 1 and q == 0 and (s % 4 == 3 or PROFSEL): pf(f"b{s}")
    g3.main(vm, fill3, pre_bar3, post_bar3)
    assert CL.nd == 16 and not hq
    print("eo left", S['eo'].left())
    for n in S: S[n].flush()
    pf("main3")
    fin(1, O['obf'].replace('_', ''), False)
    pf("epi")
    k.v.free(g3.fr)
    pf.done()
    end(k)
    return k, L['LDS']

def write(path, opt={}):
    assert not (path.endswith(NAME + ".s") and (PROF or DIAG or DBGP or JIT)), "diagnostics must not go into the submitted kernel"
    k, lds = build(opt)
    open(path, "w").write(module(header(), [(k.name, 256, 256, lds)], [k]))
    print(path, k.stats)
    if os.environ.get('SEG'): k.segstats()
    if PROF: json.dump([k.profnames], open(path[:-2] + ".json", "w"))

if __name__ == "__main__":
    opt = {}
    for a in sys.argv[2:]:
        n, v = a.split("="); opt[n] = int(v) if v.lstrip('-').isdigit() else v
    write(sys.argv[1] if len(sys.argv) > 1 else "outf.s", opt)
```

```python
from fused import *

def gen_F2(k, I):
    F = k.v.allocq(32); a = k.v.allocq(8); c = k.v.allocq(8); fr, ib, m1, m2, m3 = [k.v.alloc() for _ in range(5)]
    st = k.s.alloc(); odd = k.s.alloc(2)
    R_ = lambda kap, d: F[4 * kap + d]; M_ = lambda kap, d: F[16 + 4 * kap + d]
    k(f"""s_lshl_b32 {st}, {I['w']}, 4
    v_add_u32 {m3}, {st}, {I['n']}
    v_cvt_f32_u32 {fr}, {m3}
    v_mul_f32 {fr}, {fl(1/128)}, {fr}
    v_lshrrev_b32 {m1}, 1, {I['g']}
    v_lshlrev_b32 {m1}, 4, {m1}
    v_and_b32 {m2}, 1, {I['g']}
    v_lshl_add_u32 {m1}, {m2}, 2, {m1}
    v_cvt_f32_u32 {ib}, {m1}
    v_mul_f32 {ib}, {ib}, {fr}
    v_cmp_eq_u32 vcc, 0, {m3}""")
    for j in range(8): k(f"v_fmamk_f32 {a[j]}, {fr}, {fl(float(8*(j>>2) + (j&3)))}, {ib}")
    for j in range(8): k(f"v_cos_f32 {c[j]}, {a[j]}")
    for j in range(8): k(f"v_sin_f32 {a[j]}, {a[j]}")
    k(f"""v_mov_b32 {ib}, 0x80008000
    v_bfe_i32 {m2}, {I['n']}, 0, 1
    v_bfe_i32 {m1}, {I['n']}, 1, 1
    v_cmp_ne_u32 {odd}, 0, {m2}
    v_and_b32 {m2}, {ib}, {m2}
    v_and_b32 {m1}, {ib}, {m1}
    v_xor_b32 {m3}, {m1}, {m2}
    v_mov_b32 {fr}, 0xbf803f80""")
    for d in range(4):
        k(f"v_cvt_pk_bf16_f32 {R_(0,d)}, {c[2*d]}, {c[2*d+1]}\nv_cvt_pk_bf16_f32 {M_(0,d)}, -{a[2*d]}, -{a[2*d+1]}")
        k(f"v_cndmask_b32 {M_(0,d)}, {M_(0,d)}, {fr}, vcc")
    for d in range(4):
        k(f"""v_cndmask_b32 {R_(1,d)}, {R_(0,d)}, {M_(0,d)}, {odd}
        v_cndmask_b32 {M_(1,d)}, {M_(0,d)}, {R_(0,d)}, {odd}
        v_xor_b32 {R_(2,d)}, {m2}, {R_(0,d)}
        v_xor_b32 {M_(2,d)}, {m2}, {M_(0,d)}
        v_xor_b32 {R_(3,d)}, {m3}, {R_(1,d)}
        v_xor_b32 {M_(3,d)}, {m1}, {M_(1,d)}
        v_xor_b32 {R_(1,d)}, {m1}, {R_(1,d)}
        v_xor_b32 {M_(1,d)}, {m3}, {M_(1,d)}""")
    k.v.free(a, c, fr, ib, m1, m2, m3); k.s.free(st, odd)
    return F

def gen_G1b(k, I):
    G = k.v.allocq(32); a = k.v.allocq(8); c = k.v.allocq(8)
    f, b, sb, sel, mk = [k.v.alloc() for _ in range(5)]
    st = k.s.alloc()
    k(f"""v_lshrrev_b32 {f}, 1, {I['g']}
    v_lshlrev_b32 {f}, 3, {f}
    v_and_b32 {b}, 1, {I['g']}
    v_lshl_add_u32 {f}, {b}, 1, {f}
    v_cvt_f32_u32 {sb}, {f}
    v_bfe_i32 {f}, {I['n']}, 0, 1
    v_and_b32 {sel}, 0x02020202, {f}
    v_xor_b32 {sel}, 0x03020100, {sel}
    v_and_b32 {f}, 0x80000000, {f}
    v_bfe_i32 {mk}, {I['n']}, 1, 1
    v_and_b32 {mk}, 0x80008000, {mk}
    v_xor_b32 {mk}, {mk}, {f}
    s_and_b32 {st}, {I['w']}, 1
    s_lshl_b32 {st}, {st}, {I.get('khs', 6)}
    v_add_u32 {f}, {st}, {I['n']}
    v_cvt_f32_u32 {f}, {f}
    v_mul_f32 {f}, {fl(1/128)}, {f}""")
    for ib in range(2):
        if ib: k(f"v_add_f32 {f}, {fl(16/128)}, {f}")
        k(f"v_mul_f32 {b}, {f}, {sb}")
        for j in range(8): k(f"v_fmamk_f32 {a[j]}, {f}, {fl(float(16*(j>>2) + 4*((j>>1)&1) + (j&1)))}, {b}")
        for j in range(8): k(f"v_cos_f32 {c[j]}, {a[j]}")
        for j in range(8): k(f"v_sin_f32 {a[j]}, {a[j]}")
        for j in range(8): k(f"v_cvt_pk_bf16_f32 {G[16*ib+j]}, {c[j]}, -{a[j]}")
        for j in range(8): k(f"v_perm_b32 {G[16*ib+8+j]}, {G[16*ib+j]}, {G[16*ib+j]}, {sel}\nv_xor_b32 {G[16*ib+8+j]}, {mk}, {G[16*ib+8+j]}")
    k(f"""v_lshlrev_b32 {b}, 31, {I['n']}
    v_or_b32 {b}, 0x3f003f00, {b}
    v_cmp_eq_u32 vcc, 0, {I['g']}""")
    for ib in range(2): k(f"v_cndmask_b32 {G[16*ib]}, {G[16*ib]}, {b}, vcc")
    k.v.free(a, c, f, b, sb, sel, mk); k.s.free(st)
    return G

CORD = ('sf', 'm2f', 'si', 'm2i', 'm1f', 'twf', 'm1i', 'twi')
def coop_consts(k, I, T, lds, scale):
    O = k.v.allocq(16); a = k.v.alloc(4); c = k.v.alloc(4)
    nf, g4, f, b, t, u = [k.v.alloc() for _ in range(6)]
    def pair(dst, inv):
        for j in range(4): k(f"v_fmamk_f32 {a[j]}, {f}, {fl(float(j))}, {b}")
        for j in range(4): k(f"v_cos_f32 {c[j]}, {a[j]}")
        for j in range(4): k(f"v_sin_f32 {a[j]}, {a[j]}")
        for j in range(4):
            if not inv: k(f"v_cvt_pk_bf16_f32 {dst[j]}, {c[j]}, {a[j]}\nv_cvt_pk_bf16_f32 {dst[4+j]}, -{a[j]}, {c[j]}")
            else: k(f"v_cvt_pk_bf16_f32 {dst[j]}, {c[j]}, -{a[j]}\nv_cvt_pk_bf16_f32 {dst[4+j]}, {a[j]}, {c[j]}")
    def tw(dst):
        k(f"v_mul_f32 {f}, {fl(1/16)}, {f}\nv_mul_f32 {b}, {fl(1/16)}, {b}")
        for j in range(4): k(f"v_fmamk_f32 {a[j]}, {f}, {fl(float(j))}, {b}")
        for j in range(4): k(f"v_cos_f32 {dst[j]}, {a[j]}")
        for j in range(4): k(f"v_sin_f32 {dst[4+j]}, {a[j]}")
    A, B = O.q(0, 8), O.q(1, 8)
    k(f"""v_cvt_f32_u32 {nf}, {I['n']}
    v_cvt_f32_u32 {g4}, {I['g']}
    v_mul_f32 {g4}, 4.0, {g4}""")
    def wave(w):
        k(f"s_cmp_lg_u32 {I['w']}, {w}")
        return k.skip_if("s_cbranch_scc1")
    def ksp(sel, lim):
        k(f"""v_cvt_f32_u32 {u}, {T['sp']}
        v_mul_f32 {u}, {fl(-960.0)}, {u}
        v_cmp_lt_u32 vcc, {lim}, {sel}
        v_cvt_f32_u32 {t}, {T['ks']}
        v_cndmask_b32 {u}, 0, {u}, vcc
        v_add_f32 {t}, {t}, {u}""")
    with wave(0):
        ksp(I['n'], 7)
        k(f"v_fmamk_f32 {f}, {nf}, {fl(128.0)}, {t}\nv_mul_f32 {f}, {fl(1/2048)}, {f}\nv_mul_f32 {b}, {f}, {g4}")
        pair(A, False)
        k(f"""v_xor_b32 {t}, 3, {I['n']}
        v_cndmask_b32 {t}, {I['n']}, {t}, vcc
        v_cvt_f32_u32 {f}, {t}
        v_mul_f32 {f}, {fl(1/16)}, {f}
        v_mul_f32 {b}, {f}, {g4}""")
        pair(B, False)
        k(f"s_cmp_eq_u32 {T['sp']}, 0")
        with k.skip_if("s_cbranch_scc1"):
            k(f"v_cndmask_b32 {t}, 0, 16, vcc")
            for j in range(8): k(f"v_and_b32 {A[j]}, 0xffff, {A[j]}\nv_lshlrev_b32 {A[j]}, {t}, {A[j]}")
            k(f"v_cmp_eq_u32 vcc, 0, {I['n']}")
            for j in range(4): k(f"v_mov_b32 {t}, {hex(0x3f80 if j % 2 == 0 else 0xbf80)}\nv_cndmask_b32 {A[4+j]}, {A[4+j]}, {t}, vcc")
    with wave(1):
        ksp(I['g'], 1)
        k(f"""v_fmamk_f32 {t}, {g4}, {fl(128.0)}, {t}
        v_mul_f32 {b}, {t}, {nf}
        v_mul_f32 {b}, {fl(1/2048)}, {b}
        v_mul_f32 {f}, {fl(1/16)}, {nf}""")
        pair(A, True)
        k(f"""v_add_f32 {t}, {fl(3.0)}, {g4}
        v_cndmask_b32 {t}, {g4}, {t}, vcc
        v_mul_f32 {b}, {f}, {t}
        v_cndmask_b32 {f}, {f}, -{f}, vcc""")
        pair(B, True)
        k(f"s_cmp_eq_u32 {T['sp']}, 0")
        with k.skip_if("s_cbranch_scc1"):
            for j in range(4):
                k(f"""v_lshlrev_b32 {t}, 16, {A[j]}
                v_and_b32 {u}, 0xffff0000, {A[j]}
                v_add_f32 {t}, {t}, {t}
                v_add_f32 {u}, {u}, {u}
                v_cvt_pk_bf16_f32 {t}, {t}, {u}
                v_cndmask_b32 {A[j]}, {t}, 0, vcc
                v_cndmask_b32 {A[4+j]}, 0, {t}, vcc""")
            k(f"""v_lshlrev_b32 {t}, 31, {I['n']}
            v_or_b32 {t}, 0x3f803f80, {t}
            v_cmp_eq_u32 vcc, 0, {I['g']}
            v_cndmask_b32 {A[0]}, {A[0]}, {t}, vcc""")
    with wave(2):
        k(f"v_cvt_f32_u32 {u}, {T['k1']}\nv_fma_f32 {t}, {nf}, 4.0, {u}\nv_mul_f32 {f}, {fl(1/64)}, {t}\nv_mul_f32 {b}, {f}, {g4}")
        pair(A, False); tw(B)
    with wave(3):
        k(f"""v_cvt_f32_u32 {u}, {T['k1']}
        v_fma_f32 {t}, {g4}, 4.0, {u}
        v_mul_f32 {b}, {t}, {nf}
        v_mul_f32 {b}, {fl(1/64)}, {b}
        v_mul_f32 {f}, {fl(1/16)}, {nf}""")
        pair(A, True); tw(B)
        for j in range(8): k(f"v_mul_f32 {B[j]}, {fl(scale)}, {B[j]}")
    st = k.s.alloc()
    k(f"s_lshl_b32 {st}, {I['w']}, 12\ns_add_u32 {st}, {st}, {lds}\nv_lshl_add_u32 {t}, {I['l']}, 4, {st}")
    last = None
    for j in range(4): last = k(f"ds_write_b128 {t}, {O.q(j)} offset:{1024*j}")
    k.v.free(O, a, c, nf, g4, f, b, t, u); k.s.free(st)
    return last

def coop_read(k, I, lds, parked):
    C = {}; ad = k.v.alloc()
    k(f"v_lshlrev_b32 {ad}, 4, {I['l']}\nv_add_u32 {ad}, {lds}, {ad}")
    for j, n in enumerate(CORD):
        C[n] = parked[n] if n in parked else k.v.allocq(8)
        for h in range(2): k(f"ds_read_b128 {C[n].q(h)}, {ad} offset:{2048*j + 1024*h}")
    k.v.free(ad)
    return C

G_BYTES = 32768
def gate_issue2(k, I, sx, sgw):
    G = dict(x=k.v.allocq(16), w=k.v.allocq(8))
    va = k.v.alloc(); so = k.s.alloc(); s2_ = k.s.alloc()
    k(f"""v_lshlrev_b32 {va}, 4, {I['l']}
    s_lshl_b32 {so}, {I['ca']}, 18
    s_lshl_b32 {s2_}, {I['cb']}, 11
    s_add_u32 {so}, {so}, {s2_}
    s_lshl_b32 {s2_}, {I['w']}, 16
    s_add_u32 {so}, {so}, {s2_}
    s_add_u32 {s2_}, {so}, 32768""")
    for j in range(4):
        k(f"buffer_load_dwordx4 {G['x'].q(j)}, {va}, {sx}, {s2_ if j >> 1 else so} offen offset:{1024*(j&1)}")
    for j in range(2):
        k(f"buffer_load_dwordx4 {G['w'].q(j)}, {va}, {sgw}, 0 offen offset:{1024*j}")
    k.v.free(va); k.s.free(so, s2_)
    return G

def gate_compute2(k, I, G, sg, lds=None):
    a = k.v.alloc(2); t = k.v.alloc()
    so = k.s.alloc(); s2_ = k.s.alloc()
    k(f"v_mov_b32 {a[0]}, 0\nv_mov_b32 {a[1]}, 0")
    for j in range(8):
        for r in range(2):
            k(f"v_dot2c_f32_bf16 {a[r]}, {G['x'][8*r+j]}, {G['w'][j]}")
    k(f"""s_lshl_b32 {so}, {I['cb']}, 11
    s_lshl_b32 {s2_}, {I['ca']}, 7
    s_add_u32 {so}, {so}, {s2_}
    v_permlane32_swap_b32 {a[0]}, {a[1]}
    v_add_f32 {a[0]}, {a[0]}, {a[1]}
    v_mov_b32 {a[1]}, {a[0]}
    s_lshl_b32 {s2_}, {I['w']}, 3
    s_add_u32 {so}, {so}, {s2_}
    v_permlane16_swap_b32 {a[0]}, {a[1]}
    v_add_f32 {a[0]}, {a[0]}, {a[1]}""")
    for sh in (8, 4, 2, 1):
        k(f"v_add_f32 {a[0]}, {a[0]}, {a[0]} row_ror:{sh} row_mask:0xf bank_mask:0xf")
    k(f"""v_cvt_pk_bf16_f32 {a[0]}, {a[0]}, {a[0]}
    v_and_b32 {a[0]}, 0xffff0000, {a[0]}
    v_mul_f32 {a[0]}, {fl(-1.4426950408889634)}, {a[0]}
    v_exp_f32 {a[0]}, {a[0]}
    v_lshrrev_b32 {t}, 3, {I['l']}
    v_add_f32 {a[0]}, 1.0, {a[0]}
    v_rcp_f32 {a[0]}, {a[0]}
    s_mov_b32 exec_lo, 1
    s_mov_b32 exec_hi, 1
    v_cvt_pk_bf16_f32 {a[0]}, {a[0]}, {a[0]}
    v_and_b32 {a[0]}, 0xffff0000, {a[0]}""")
    if lds is None: last = k(f"buffer_store_dword {a[0]}, {t}, {sg}, {so} offen {SC}")
    else:
        k(f"s_add_u32 {s2_}, {s2_}, {lds}\nv_add_u32 {t}, {s2_}, {t}")
        last = k(f"ds_write_b32 {t}, {a[0]}")
    k("s_mov_b64 exec, -1")
    k.v.free(a, t, G['x'], G['w']); k.s.free(so, s2_)
    return last

def gate_store(k, I, sg, lds):
    t = k.v.alloc(2); so = k.s.alloc(); s2_ = k.s.alloc()
    k(f"s_cmp_lg_u32 {I['w']}, 0")
    with k.skip_if("s_cbranch_scc1"):
        k(f"""v_lshlrev_b32 {t[0]}, 2, {I['n']}
        v_add_u32 {t[1]}, {lds}, {t[0]}
        ds_read_b32 {t[1]}, {t[1]}
        s_lshl_b32 {so}, {I['cb']}, 11
        s_lshl_b32 {s2_}, {I['ca']}, 7
        s_add_u32 {so}, {so}, {s2_}
        s_mov_b64 exec, 0xffff""")
        last = k(f"buffer_store_dword {t[1]}, {t[0]}, {sg}, {so} offen {SC}")
        k("s_mov_b64 exec, -1")
    k.v.free(t); k.s.free(so, s2_)
    return last

def g_issue2(k, I, sg):
    g = k.v.allocq(16); va = k.v.alloc(); t = k.v.alloc(); so = k.s.alloc(); st = k.s.alloc()
    k(f"""v_lshrrev_b32 {va}, 1, {I['g']}
    v_lshlrev_b32 {va}, 7, {va}
    v_and_b32 {t}, 1, {I['g']}
    v_lshl_or_b32 {va}, {t}, 4, {va}
    s_lshl_b32 {so}, {I['ta']}, 11
    s_and_b32 {st}, {I['w']}, 1
    s_lshl_b32 {st}, {st}, {4 + I.get('khs', 6)}
    s_add_u32 {so}, {so}, {st}""")
    for ib in range(4): k(f"buffer_load_dwordx4 {g.q(ib)}, {va}, {sg}, {so} offen offset:{256*ib if 'khs' not in I else 1024*(ib>>1) + 256*(ib&1)} {SC}")
    k.v.free(va, t); k.s.free(so, st)
    return g

class WD2:
    NB = 4
    def __init__(self, k, I, T, swr, swi, slots, xslot):
        self.k, self.I, self.T, self.sw, self.slots, self.xslot = k, I, T, (swr, swi), slots, xslot
        self.rows = R_ = k.s.allocq(8, 1); self.mw = k.s.alloc(); self.spw = k.s.alloc()
        self.va, self.a0, self.sg = k.v.alloc(), k.v.alloc(), k.v.alloc(2)
        st, s2_ = k.s.alloc(), k.s.alloc(); t = self.sg[1]
        k(f"""s_lshl_b32 {R_[0]}, {I['w']}, 9
        s_add_u32 {R_[0]}, {R_[0]}, {T['ks']}
        s_lshr_b32 {st}, {I['w']}, 1
        s_and_b32 {st}, {st}, {T['sp']}
        s_mul_i32 {st}, {st}, 960
        s_sub_u32 {st}, {R_[0]}, {st}
        s_mul_i32 {R_[0]}, {st}, 1026
        s_lshl1_add_u32 {R_[0]}, {T['k1']}, {R_[0]}
        s_sub_u32 {R_[1]}, {2048*1026 + 8}, {R_[0]}
        s_and_b32 {s2_}, {R_[0]}, 2
        s_and_b32 {R_[0]}, {R_[0]}, -4
        s_and_b32 {R_[1]}, {R_[1]}, -4""")
        for b in range(1, 4): k(f"s_add_u32 {R_[2*b]}, {R_[0]}, {131328*b}\ns_sub_u32 {R_[2*b+1]}, {R_[1]}, {131328*b}")
        k(f"""s_cmp_eq_u32 {st}, 0
        s_cselect_b32 {st}, {2048*1026}, 0
        s_cselect_b32 {self.spw}, {T['sp']}, 0
        s_sub_u32 {R_[1]}, {R_[1]}, {st}
        s_lshl_b32 {self.mw}, {I['w']}, 12
        s_add_u32 {s2_}, {s2_}, {self.mw}
        v_lshlrev_b32 {self.va}, 4, {I['l']}
        v_lshlrev_b32 {self.a0}, 9, {I['g']}
        v_lshl_add_u32 {self.a0}, {I['n']}, 3, {self.a0}
        v_sub_u32 {t}, {2048 + 1656}, {self.a0}
        v_cmp_lt_u32 vcc, 1, {I['g']}
        v_cndmask_b32 {self.a0}, {self.a0}, {t}, vcc
        v_cndmask_b32 {self.sg[0]}, 1.0, -1.0, vcc
        v_add_u32 {self.a0}, {s2_}, {self.a0}""")
        self.oa, self.la = k.v.alloc(), k.v.alloc()
        k(f"v_mov_b32 {self.oa}, {1024*1026}\nv_mov_b32 {self.la}, {xslot}\ns_cmp_lg_u32 {T['k1']}, 0")
        with k.skip_if("s_cbranch_scc1"):
            for b in range(4):
                k(f"""s_sub_u32 {st}, {R_[2*b+1]}, 8
                v_writelane_b32 {self.oa}, {st}, {2*b}
                v_writelane_b32 {self.oa}, {R_[2*b]}, {2*b+1}
                s_mov_b32 {st}, {slots[b]}
                v_writelane_b32 {self.la}, {st}, {2*b}
                v_writelane_b32 {self.la}, {st}, {2*b+1}""")
            k(f"""v_and_b32 {t}, 1, {I['l']}
            v_lshl_add_u32 {self.oa}, {t}, 10, {self.oa}
            s_and_b32 {st}, {s2_}, 2
            v_add_u32 {self.oa}, {st}, {self.oa}
            v_mul_u32_u24 {t}, {2048 + 1016}, {t}
            v_add3_u32 {self.la}, {self.la}, {t}, {s2_}""")
        k.s.free(st, s2_)
        self.n = 0; self.ld = None
    def issue1(self):
        k = self.k; b, q = self.n >> 2, self.n & 3
        if q & 1 == 0: k(f"s_add_u32 m0, {self.mw}, {self.slots[b] + 1024*q}")
        if b < WD2.NB: self.ld = k(f"buffer_load_dwordx4 {self.va}, {self.sw[q&1]}, {self.rows[2*b+(q>>1)]} offen offset:{1024*(q&1)} lds")
        self.n += 1
    def extra_issue(self):
        k, T = self.k, self.T; st = k.s.alloc(); self.ot = k.v.alloc(2)
        k(f"s_cmp_eq_u32 {self.spw}, 0")
        with k.skip_if("s_cbranch_scc1"):
            for dm in range(2):
                k(f"""s_add_u32 {st}, {self.rows[dm]}, {1024*1026}
                s_mov_b32 m0, {self.xslot + 2048*dm}
                buffer_load_dwordx4 {self.va}, {self.sw[0]}, {st} offen lds
                buffer_load_dwordx4 {self.va}, {self.sw[1]}, {st} offen offset:1024 lds""")
        k(f"s_cmp_lg_u32 {T['k1']}, 0")
        with k.skip_if("s_cbranch_scc1"):
            k(f"""s_mov_b64 exec, 0x3ff
            buffer_load_short_d16_hi {self.ot[0]}, {self.oa}, {self.sw[0]}, 0 offen
            buffer_load_short_d16_hi {self.ot[1]}, {self.oa}, {self.sw[1]}, 0 offen offset:1024
            s_mov_b64 exec, -1""")
        k.s.free(st)
    def gather_all(self):
        k, T = self.k, self.T
        Wf = k.v.allocq(32); X = k.v.allocq(8); ad = self.va
        k.wait(self.ld)
        k(f"s_cmp_lg_u32 {T['k1']}, 0")
        with k.skip_if("s_cbranch_scc1"):
            k(f"""s_mul_i32 exec_lo, {self.spw}, 0x300
            s_or_b32 exec_lo, exec_lo, 0xff
            s_mov_b32 exec_hi, 0
            ds_read_u16_d16_hi {X[0]}, {self.la}
            ds_read_u16_d16_hi {X[1]}, {self.la} offset:1024
            v_add_f32 {X[0]}, {X[0]}, {self.ot[0]}
            v_sub_f32 {X[1]}, {X[1]}, {self.ot[1]}
            v_mul_f32 {X[0]}, 0.5, {X[0]}
            v_mul_f32 {X[1]}, 0.5, {X[1]}
            v_cvt_pk_bf16_f32 {X[0]}, {X[0]}, {X[1]}
            ds_write_b16 {self.la}, {X[0]}
            ds_write_b16_d16_hi {self.la}, {X[0]} offset:1024
            s_mov_b64 exec, -1""")
        def rd(out, slot):
            a = self.a0
            if slot >= 61440: k(f"v_add_u32 {ad}, {slot}, {self.a0}"); a = ad; slot = 0
            for r in range(4):
                for x in range(2): self.lastrd = k(f"ds_read_u16_d16_hi {out[4*x+r]}, {a} offset:{slot + 128*r + 1024*x}")
        k(f"s_cmp_eq_u32 {self.spw}, 0")
        with k.skip_if("s_cbranch_scc1"): rd(X, self.xslot)
        for b in range(4): rd(Wf.q(b, 8), self.slots[b])
        k.v.free(self.va, self.a0, self.oa, self.la, self.ot); k.s.free(self.rows, self.mw, self.spw, *self.sw)
        return Wf, X
    def fix(self, Wf, X):
        k = self.k
        k.wait(self.lastrd)
        for o in [Wf.q(b, 8) for b in range(4)] + [X]:
            for h in (4, 6): k(f"v_pk_mul_f32 {o[h:h+2]}, {self.sg}, {o[h:h+2]} op_sel_hi:[0,1]")
        k.v.free(self.sg)

class GateL:
    def __init__(self, k, I, sgw, mA, scratch):
        self.k, self.I, self.scratch = k, I, scratch
        va = k.v.alloc(); st = k.s.alloc()
        k(f"""s_lshl_b32 {st}, {I['ca']}, 7
        v_lshl_add_u32 {va}, {I['l']}, 4, {st}
        v_and_b32 {va}, 0x7ff, {va}
        s_add_u32 m0, {mA}, {scratch}
        buffer_load_dwordx4 {va}, {sgw}, 0 offen lds
        v_xor_b32 {va}, 1024, {va}
        s_add_u32 m0, {mA}, {scratch + 1024}""")
        self.ld = k(f"buffer_load_dwordx4 {va}, {sgw}, 0 offen lds")
        self.mA = mA
        k.v.free(va); k.s.free(st)
    def setup(self):
        k, I = self.k, self.I
        self.gw = k.v.allocq(32 if self.mul else 16); self.xa = k.v.alloc(); self.x = k.v.alloc(); self.acc = k.v.alloc(2)
        a, b = k.s.alloc(), k.s.alloc(); t = self.x
        k(f"""s_lshr_b32 {a}, {I['w']}, 1
        s_lshr_b32 {b}, {I['cb']}, 1
        s_lshl3_add_u32 {a}, {a}, {b}
        s_and_b32 {b}, {I['w']}, 1
        s_lshl1_add_u32 {a}, {a}, {b}
        s_and_b32 {b}, {I['cb']}, 1
        s_lshl1_add_u32 {a}, {a}, {b}
        s_lshl_b32 {b}, {a}, 8
        v_lshl_add_u32 {self.xa}, {I['l']}, 2, {b}
        s_and_b32 {a}, {a}, 7
        s_lshl_b32 {a}, {a}, 2
        v_and_b32 {t}, 31, {I['l']}
        v_xor_b32 {t}, {a}, {t}
        v_lshl_add_u32 {t}, {t}, 2, {self.mA}
        v_mov_b32 {self.acc[0]}, 0""")
        self.half = k.s.alloc(); k(f"s_mov_b32 {self.half}, 0x3f803f80")
        k.wait(self.ld)
        if self.mul:
            for s in range(32): self.rd = k(f"ds_read_u16_d16_hi {self.gw[s]}, {t} offset:{self.scratch + 128*(s>>1) + 2*(s&1)}")
        else:
            for s in range(16): self.rd = k(f"ds_read_b32 {self.gw[s]}, {t} offset:{self.scratch + 128*s}")
        k.s.free(a, b)
    def read(self, s): self.k(f"ds_read_b32 {self.x}, {self.xa} offset:{(s % 4)*16384}")
    def read2(self, s):
        self.k(f"ds_read_u16{'_d16_hi' if self.mul else ''} {self.acc[1]}, {self.xa} offset:{(s % 4)*16384}\nds_read_u16_d16_hi {self.x}, {self.xa} offset:{(s % 4)*16384 + 2}")
    def dot(self, s):
        self.k(f"v_dot2c_f32_bf16 {self.acc[0]}, {self.x}, {self.gw[s]}")
        if s == 15: self.k.v.free(self.gw, self.xa)
    def exact(self, s, ph):
        k, p = self.k, self.acc[1]
        if ph == 0 and self.mul: k(f"v_mul_f32 {p}, {p}, {self.gw[2*s]}\nv_mul_f32 {self.x}, {self.x}, {self.gw[2*s+1]}")
        elif ph == 0:
            k(f"""v_dot2_f32_bf16 {p}, {p}, {self.gw[s]}, 0
            v_dot2_f32_bf16 {self.x}, {self.x}, {self.gw[s]}, 0""")
        if ph == 1: k(f"v_cvt_pk_bf16_f32 {p}, {p}, {self.x}")
        if ph == 2:
            k(f"v_dot2c_f32_bf16 {self.acc[0]}, {self.half}, {p}")
            if s == 15: k.v.free(self.gw, self.xa); k.s.free(self.half)
    def finish(self, lds):
        k, I, a, t = self.k, self.I, self.acc, self.x; st = k.s.alloc()
        k(f"""v_mov_b32 {a[1]}, {a[0]}
        s_lshl_b32 {st}, {I['w']}, 3
        s_add_u32 {st}, {st}, {lds}
        v_permlane16_swap_b32 {a[0]}, {a[1]}
        v_add_f32 {a[0]}, {a[0]}, {a[1]}""")
        for sh in (8, 4, 2, 1): k(f"v_add_f32 {a[0]}, {a[0]}, {a[0]} row_ror:{sh} row_mask:0xf bank_mask:0xf")
        k(f"""v_cvt_pk_bf16_f32 {a[0]}, {a[0]}, {a[0]}
        v_and_b32 {a[0]}, 0xffff0000, {a[0]}
        v_mul_f32 {a[0]}, {fl(-1.4426950408889634)}, {a[0]}
        v_exp_f32 {a[0]}, {a[0]}
        v_lshrrev_b32 {t}, 5, {I['l']}
        v_add_f32 {a[0]}, 1.0, {a[0]}
        v_rcp_f32 {a[0]}, {a[0]}
        v_lshl_add_u32 {t}, {t}, 2, {st}
        v_cvt_pk_bf16_f32 {a[0]}, {a[0]}, {a[0]}
        v_and_b32 {a[0]}, 0xffff0000, {a[0]}""")
        last = k(f"ds_write_b32 {t}, {a[0]}")
        k.v.free(a, t); k.s.free(st)
        return last
```

```python
import sys, json
from fused2 import *

def small_issue(k, I, P):
    Q = k.v.alloc(3); Dk = k.v.alloc(2); va = k.v.alloc(2); st = k.s.alloc()
    k(f"""s_and_b32 {st}, {I['w']}, 1
    s_lshl1_add_u32 {st}, {I['cb']}, {st}
    s_lshl_b32 {st}, {st}, 6
    v_and_b32 {va[0]}, 31, {I['l']}
    v_lshl_add_u32 {va[0]}, {va[0]}, 1, {st}
    s_lshl4_add_u32 {st}, {I['w']}, {I['tb']}
    s_lshl_b32 {st}, {st}, 5
    v_lshl_add_u32 {va[1]}, {I['n']}, 1, {st}
    global_load_ushort {Q[0]}, {va[0]}, {P['lre']}
    global_load_ushort {Q[1]}, {va[0]}, {P['lim']}
    global_load_ushort {Q[2]}, {va[0]}, {P['ldt']}
    global_load_short_d16_hi {Dk[0]}, {va[1]}, {P['dsk']}""")
    k.v.free(va); k.s.free(st)
    return Q, Dk

DEF = dict(
    p0=20, lead0=150, n0=0, p1=50, lead1=0, gls=12, mv=1, spos=0,
    sig=8, pts=10, gap=14, wtail=2, fend=15, f0=34, f1=1, f2=9,
    nb=3, nlb=1, pb=30, pc=80, leadc=0, lag=2, hmark=1, pollat=1, late=7,
    v2s=-1, vf=-1, pv=3, pd=2, yd=1, yl=1, D=5, pre3=2, cpre=1, clag=1, pg=48, fr=12, m2s=12, pl=23, pld=2, eo=1, es=26, er=4,
    bars='x012345678ac', obf='sc1', touch=1, seam2=0, v2r=2)

def build(opt={}):
    O = dict(DEF); O.update(opt)
    B1f.FL = ''; B1f.GRP = 0; B3s.ORD = 0; WD2.NB = 4; LookBack.N = 8
    k = Kernel(NAME + "_kernel", nv=256, na=256)
    LX = 131072; LT2 = LX + 16384; LDS = LT2 + 16384
    A0, A1, A2, A3, B0, B1_, B2, B3_ = [16384 * i for i in range(8)]
    k("s_cmp_ge_u32 s2, 256")
    k(f"s_cbranch_scc1 {k.name}_end")
    KP = k.s.alloc(32, 4)
    k(f"s_load_dwordx16 {KP[0:16]}, s[0:1], 0\ns_load_dwordx16 {KP[16:32]}, s[0:1], 64")
    P = {n: KP[o // 4:o // 4 + 2] for n, o in KA.items()}
    def rel(*names):
        for n in names: k.s.free(P.pop(n))
    I = ids2(k); cd = k.v.alloc(); I['tag'] = True
    pf = Prof(k, 0)
    code_touch(k, I, 0, 40960, cd)
    sx, sb = k.s.alloc(4), k.s.alloc(4)
    k(f"s_mov_b32 {sx[2]}, {SZ['x']}\ns_mov_b32 {sx[3]}, 0x20000\ns_mov_b32 {sb[2]}, {SZ['bre']}\ns_mov_b32 {sb[3]}, 0x20000")
    xva, xso = xtile_addr(k, I, LX)
    k(f"s_mov_b64 {sx[0:2]}, {P['x']}")
    for j in range(4):
        ldx = k(f"buffer_load_dwordx4 {xva}, {sx}, {xso} offen offset:{1024*j} lds")
        if j < 3: k(f"s_add_u32 {xso}, {xso}, {8*32768 - 1024}")
    k.v.free(xva); k.s.free(xso)
    g1 = B1k(k, I, sx, sb)
    k(f"s_bitcmp1_b32 {I['w']}, 0\ns_cselect_b64 {sb[0:2]}, {P['bim']}, {P['bre']}")
    rel('x', 'bx', 'bre', 'bim')
    pf('xi')
    H = {}; V = {}
    CA = k.a.alloc(256)
    dq = [(-1 if s < 4 else s - 4, lambda s=s, i=i: g1.dma(s, i)) for s in range(0, 16) for i in range(8)]
    take = lambda n: [dq.pop(0)[1] for _ in range(n)]
    T = ph2_params(k, I)
    cw = coop_consts(k, I, T, LT2, 2.0 ** -20)
    def b_flags():
        V['one'], V['vfc'], V['vfh'] = k.v.alloc(), k.v.alloc(), k.v.alloc(); FH = V['FH'] = k.s.alloc()
        V['sdbg'] = srd(k, P['dbg'], 256); rel('dbg')
        k(f"""s_and_b32 {FH}, s2, 7
        s_lshl_b32 {FH}, {FH}, 8
        s_add_u32 {FH}, {FH}, s2
        s_and_b32 {FH}, {FH}, -8
        s_lshl_b32 {FH}, {FH}, 1
        v_mov_b32 {V['vfc']}, {FH}
        s_lshl_b32 {FH}, {I['cb']}, 14""")
        V['se'] = srd(k, P['ws'], 8192, WS_E, FH)
        k(f"""s_lshl4_add_u32 {FH}, {I['cb']}, {I['ca']}
        s_lshl_b32 {FH}, {FH}, 7
        v_lshl_add_u32 {V['vfh']}, {I['n']}, 2, {FH}
        s_mov_b32 {FH}, 8192
        v_mov_b32 {V['one']}, 1""")
    def b_c():
        sc = srd(k, P['cre'], SZ['cre']); sc_i = srd(k, P['cim'], SZ['cim']); rel('cre', 'cim')
        V['CL'] = CLoadS(k, I, sc, sc_i, CA)
    wsl = (A0, A1, B1_, A2)
    def b_w():
        swr = V['swr'] = srd(k, P['wr'], SZ['wr']); swi = V['swi'] = k.s.alloc(4)
        k(f"s_sub_u32 {swi[0]}, {P['wi'][0]}, 1024\ns_subb_u32 {swi[1]}, {P['wi'][1]}, 0\ns_mov_b32 {swi[2]}, {SZ['wi'] + 1024}\ns_mov_b32 {swi[3]}, 0x20000")
        rel('wr', 'wi')
        V['WD'] = WD2(k, I, T, swr, swi, wsl, LT2)
    def b_scan():
        V['Pa'] = {}; scan_addr(k, I, V['Pa'], LT2)
        V['E1h'] = {}; hstore_addr(k, I, V['E1h'])
    def b_g3():
        V['sh'] = srd(k, P['ws'], 8 << 20, WS_H); V['sv2'] = srd(k, P['ws'], 256 * V2_STR, WS_V2); V['sg'] = srd(k, P['ws'], G_BYTES, WS_G)
        V['g3'] = B3s(k, I, V['sh'], V['CL'])
    blocks = [b_flags, b_c, b_w, b_scan, b_g3]
    with k.capture() as c0:
        g1.readers()
        sf = srd(k, P['ws'], 8192 + 32768, WS_F)
        FV = k.s.alloc(); zero = k.v.alloc(); vpc = k.v.alloc()
        k(f"""v_mov_b32 {zero}, 0
        v_lshlrev_b32 {vpc}, 4, v0
        s_mov_b32 {FV}, 4096
        s_cmp_lg_u32 s2, 0""")
        with k.skip_if("s_cbranch_scc1"):
            tz = k.v.alloc(4)
            for j in range(4): k(f"v_mov_b32 {tz[j]}, 0")
            k(f"buffer_store_dwordx4 {tz}, {vpc}, {sf}, 0 offen {SC}")
            g1.extra.append(k(f"buffer_store_dwordx4 {tz}, {vpc}, {sf}, {FV} offen {SC}"))
            k.v.free(tz)
        sgw = srd(k, P['gw'], SZ['gw']); rel('gw')
        sv1 = srd(k, P['ws'], 256 * V1_STR, WS_V1)
        F = gen_F2(k, I)
        for b in blocks[:O['mv']]: b()
    acts = take(8)
    c0.weave(acts, O['p0'], O['lead0'])
    while acts: acts.pop(0)()
    pf('su')
    GL = GateL(k, I, sgw, g1.mA, A3); GL.mul = True; k.s.free(sgw)
    if O['spos'] == 0: Q, Dk = small_issue(k, I, P)
    for f_ in take(O['n0']): f_()
    k.wait(ldx, cw); k("s_barrier"); pf("xt")
    with k.capture() as c1:
        def h1(n):
            if n == 't':
                h1.n += 1
                if h1.n == O['gls']: GL.setup()
        h1.n = 0
        O1 = ph1f(k, I, F, LX, sv1, h1)
        k.v.free(F)
        XK = xkeepM(k, I, LX)
    j3 = len(dq) - 12 * 8 - 4; f3 = dq[j3][1]
    def g3a():
        assert any(i is GL.rd for i in k.ins); k.wait(GL.rd); f3()
    dq[j3] = (dq[j3][0], g3a)
    acts = take(24 - O['n0'])
    c1.weave(acts, O['p1'], O['lead1'])
    while acts: acts.pop(0)()
    if O['spos'] == 1: Q, Dk = small_issue(k, I, P)
    rel('lre', 'lim', 'ldt', 'dsk')
    pf("ph1")
    g1.alloc()
    with k.capture() as fl1:
        ph1_store(k, *O1, sv1)
        if O['mv'] < 1: b_flags()
        one, vfc, vfh, FH, se, sdbg = [V[n] for n in ('one', 'vfc', 'vfh', 'FH', 'se', 'sdbg')]
        t = k.v.alloc(2); st = k.s.alloc()
        k(f"""s_sub_u32 {st}, 15, {I['ca']}
        s_lshl_b32 {st}, {st}, 9
        v_lshl_add_u32 {t[0]}, v0, 2, {st}
        v_mov_b32 {t[1]}, -1
        s_cmp_ge_u32 {I['w']}, 2""")
        with k.skip_if("s_cbranch_scc1"):
            k(f"buffer_store_dword {t[1]}, {t[0]}, {se}, 0 offen {SC}")
        wave0_store(k, I, f"buffer_store_dword {zero}, {vfh}, {sf}, {FH} offen {SC}", 65535)
        H['clr'] = [i for i in k.ins if i.cls == 'vm'][-1]
        k(f"s_or_b32 {st}, {I['w']}, s2\ns_cmp_lg_u32 {st}, 0")
        with k.skip_if("s_cbranch_scc1"):
            k(f"s_mov_b64 exec, 1\nbuffer_store_dword {one}, {zero}, {sdbg}, 0 offen {SC}\ns_mov_b64 exec, -1")
        k.v.free(t); k.s.free(st)
        n1 = len(k.ins)
        C2 = coop_read(k, I, LT2, {n: CA[224 + 8 * j:232 + 8 * j] for j, n in enumerate(('m2f', 'm2i', 'm1i', 'si'))})
        for b in blocks[max(1, O['mv']):3]: b()
        n2 = len(k.ins)
        Pm = ssm_param_compute(k, Q)
        Dk = diagM(k, I, Dk)
        for b in blocks[max(3, O['mv']):]: b()
        ntot = len(k.ins)
    CL, WD, g3, sh, sv2, sg = [V[n] for n in ('CL', 'WD', 'g3', 'sh', 'sv2', 'sg')]; Pm.update(V['Pa'])
    p0 = Poll(k, sdbg, zero, 1, 1, sleep=16)
    p1 = Poll(k, sf, vpc, 1, 1, sleep=16)
    dq.append((-1, lambda: (p1.issue(), WD.extra_issue())))
    for s, slot in ((-1, LX), (12, B0)): dq += [(s, lambda slot=slot: CL.issue1(slot))] * 4
    wq = [(max(s, O['gap']), WD.issue1) for s in (12, 13, 13, 14) for _ in range(4)]
    dq += wq[:4 * O['wtail']]; wq = wq[4 * O['wtail']:]
    def pre_bar(s):
        if s == O['sig']: k.wait(H['clr'])
    def post_bar(s):
        if O['touch'] and s in (4, 11): code_touch(k, I, 1 + (s & 1), 16384, cd)
        if s == O['pts']:
            assert ntot - fl1.left() >= n2
            pretouch(k, I, V['swr'], V['swi'], None, None, cd, 'w')
        if s == O['sig'] - 3: p0.issue()
        if s == O['sig']:
            fl1.emit_until_safe()
            p0.finish()
            wave0_store(k, I, f"buffer_store_dword {one}, {vfc}, {sf}, 0 offen {SC}")
    def fill1(s, kk, m):
        tgt = [(0, O['f0']), (O['f1'], n1), (O['f2'], n2), (14, ntot)]
        x = s + (4 * kk + m + 1) / 16.0 - 1; px, py = -1, 0
        for qx, qy in tgt:
            if x <= qx: want = py + (qy - py) * (x - px) / (qx - px); break
            px, py = qx, qy
        else: want = ntot
        while fl1.groups and ntot - fl1.left() < want: fl1.emit(1)
        if kk == 0 and m == 0: GL.read2(s)
        if (kk, m) in ((1, 3), (2, 1), (3, 0)): GL.exact(s, kk - 1)
        if s == 14 and kk == 3 and m == 3: fl1.flush()
        if kk == 3 and m == 0 and (s % 4 == 3 or PROFSEL): pf(f"a{s}")
    assert O['f2'] <= 10
    acc = g1.main(dq, fill1, pre_bar, post_bar, lambda s, kk, m: (1 if m >= 1 else 0) if s >= O['fend'] else (1 if m >= 2 else 0))
    pf("main1")
    k.s.free(sx, sb, sdbg); k.v.free(zero)
    with k.capture() as c2:
        E1 = pass1c(k, I, acc, Pm, LT2); E1.update(V['E1h'])
    acts = [x[1] for x in dq]
    c2.weave(acts, 64)
    while acts: acts.pop(0)()
    p1.finish()
    k.wait(E1['w']); k("s_barrier")
    publish(k, I, E1, Pm, se)
    pf("pass1")
    LT1 = A3; nlate = O['late']; free = [B3_, B2]; state = {}
    def c1act():
        if CL.n >= 64 - 4 * nlate: return
        if CL.n & 3 == 0:
            if not free: free.append(CL.drain())
            state['cur'] = free.pop(0)
            if not free and CL.nd < CL.n // 4 - O['lag'] + 1: free.append(CL.drain())
        CL.issue1(state['cur'])
    def cfinish():
        while CL.n & 3: c1act()
    L1 = v1_issue(k, I, T, sv1, SC); k.s.free(sv1)
    with k.capture() as c3:
        scan_coef(k, acc, Pm)
        carry_prep(k, I, E1, Pm)
    acts = [x[1] for x in wq] + [c1act] * (4 * O['nb'])
    c3.weave(acts, O['pb'], 100)
    while WD.n < 16: WD.issue1()
    cfinish()
    lb = LookBack(k, Pm, se); lb.issue()
    pf("coef")
    with k.capture() as c4:
        GL.finish(LT2 + 8192)
        t1w = ph2_s1(k, I, C2, L1, LT1)
    c4.weave([c1act] * (4 * O['nlb']), O['pb'])
    cfinish()
    pf("s1")
    E = lb.finish(); k.s.free(se)
    pf("lb")
    lasth = pass2c(k, I, acc, Pm, E1, E, sh, lambda q: None)
    pf("pass2")
    Wf, WX = WD.gather_all()
    while CL.nd < CL.n // 4: free.append(CL.drain())
    WD.fix(Wf, WX); free.extend(wsl)
    if O['touch']: code_touch(k, I, 3, 16384, cd)
    k.wait(t1w); k("s_barrier")
    gate_store(k, I, sg, LT2 + 8192)
    pf("bar1")
    vph = k.v.alloc(); tt = k.s.alloc()
    k(f"s_lshr_b32 {tt}, {I['tb']}, 3\ns_lshl2_add_u32 {tt}, {tt}, {I['w']}\ns_lshl_b32 {tt}, {tt}, 12\nv_lshl_add_u32 {vph}, {I['l']}, 7, {tt}")
    k.s.free(tt)
    p3 = Poll(k, sf, vph, 1, 1, FH, mask=0xffffffff)
    def mark(i):
        if i == O['hmark']:
            k.wait(lasth); k("s_barrier")
            wave0_store(k, I, f"buffer_store_dword {one}, {vfh}, {sf}, {FH} offen {SC}", 65535)
            pf("hflag")
    with k.capture() as c5: ph2_mid(k, I, T, C2, Wf, WX, LT1, LT2, mark)
    acts = [c1act] * (64 - 4 * nlate - CL.n)
    c5.weave(acts, O['pc'], O['leadc'])
    while acts: acts.pop(0)()
    pf("mid")
    if O['pollat'] == 0: p3.issue()
    k("s_waitcnt lgkmcnt(0)\ns_barrier")
    V2 = ph2_s6(k, I, C2, LT2)
    if O['pollat'] == 1: p3.issue()
    while CL.nd < CL.n // 4: CL.drain()
    H['v2'] = v2_store(k, *V2, sv2)
    g3.alloc()
    xd_initM(k, XK, Dk, g3.acc)
    pf("s6")
    p3.finish(); k.v.free(vph)
    k("s_waitcnt lgkmcnt(0)\ns_barrier")
    pf("sync3")
    return tailT(k, I, O, P, H, locals())

def write(path, opt={}):
    assert not (path.endswith(NAME + ".s") and (PROF or DIAG or DBGP or JIT)), "diagnostics must not go into the submitted kernel"
    k, lds = build(opt)
    open(path, "w").write(module(header(), [(k.name, 256, 256, lds)], [k]))
    print(path, k.stats)
    if os.environ.get('SEG'): k.segstats()
    if PROF: json.dump([k.profnames], open(path[:-2] + ".json", "w"))

if __name__ == "__main__":
    opt = {}
    for a in sys.argv[2:]:
        n, v = a.split("="); opt[n] = int(v) if v.lstrip('-').isdigit() else v
    write(sys.argv[1] if len(sys.argv) > 1 else "outf.s", opt)
```

```python
import sys, json
from fused2 import *

def small_issue(k, I, P):
    Q = k.v.alloc(3); Dk = k.v.alloc(2); va = k.v.alloc(2); st = k.s.alloc()
    k(f"""s_and_b32 {st}, {I['w']}, 1
    s_lshl1_add_u32 {st}, {I['cb']}, {st}
    s_lshl_b32 {st}, {st}, 6
    v_and_b32 {va[0]}, 31, {I['l']}
    v_lshl_add_u32 {va[0]}, {va[0]}, 1, {st}
    s_lshl4_add_u32 {st}, {I['w']}, {I['tb']}
    s_lshl_b32 {st}, {st}, 5
    v_lshl_add_u32 {va[1]}, {I['n']}, 1, {st}
    global_load_ushort {Q[0]}, {va[0]}, {P['lre']}
    global_load_ushort {Q[1]}, {va[0]}, {P['lim']}
    global_load_ushort {Q[2]}, {va[0]}, {P['ldt']}
    global_load_short_d16_hi {Dk[0]}, {va[1]}, {P['dsk']}""")
    k.v.free(va); k.s.free(st)
    return Q, Dk

def main16(self, CA, q, fill, pre_bar, post_bar, rate):
    k = self.k; NS = 16; acc = self.acc; fr = CA[64:128]
    def reads(s, kk):
        f = fr.q(kk, 32); buf = (s % 4) * 16384; out = []
        for b in range(4):
            out.append(f"ds_read_b128 {f.q(b)}, {self.ra[2*kk+(b&1)]} offset:{buf + 4096*(b>>1)}")
            out.append(f"ds_read_b128 {f.q(4+b)}, {self.rb[2*kk+(b&1)]} offset:{buf + 4096*(b>>1)}")
        return out
    k.wait(self.last[0], *self.extra); k("s_barrier")
    lastrd = None; passed = -1
    for r in reads(0, 0): lastrd = k(r)
    for s in range(NS):
        for kk in range(2):
            f = fr.q(kk, 32); rd = []
            if kk == 0: rd = reads(s, 1)
            elif s + 1 < NS:
                pre_bar(s)
                k.wait(lastrd, self.last[s + 1]); k("s_barrier"); passed = s
                rd = reads(s + 1, 0)
            k.wait(lastrd)
            for m in range(16):
                a, b = m >> 2, (m & 3) ^ (3 if (m >> 2) & 1 else 0)
                d = acc.q(a, 16).q(b)
                k(f"v_mfma_f32_16x16x32_bf16 {d}, {f.q(a)}, {f.q(4+b)}, {0 if s == 0 and kk == 0 else d}")
                if m < 8 and rd: lastrd = k(rd.pop(0))
                if m == 7 and kk == 1: post_bar(s)
                if m >= 8 and (m % 2 == 0 or s >= 15):
                    if q and q[0][0] <= passed: q.pop(0)[1]()
                if m & 1:
                    k4, m4 = 2 * kk + (m >> 3), (m >> 1) & 3
                    fill(s, (k4 + 1) % 4 if False else k4, m4)
    k.v.free(self.fr, self.va, self.vb, self.ra, self.rb); k.s.free(self.soA, self.soB, self.mA, self.mB)
    return acc

DEF = dict(
    p0=20, lead0=150, n0=0, p1=50, lead1=0, gls=12, mv=1, spos=0,
    pad=13, isl=2, t1=99, t2=11, tn=16384, t3=20480, sig=8, pts=10, gap=14, wtail=2, fend=15, f0=34, f1=1, f2=9,
    nb=3, nlb=1, pb=30, pc=80, leadc=0, lag=2, hmark=1, pollat=1, late=7,
    v2s=-1, vf=-1, pv=3, pd=2, yd=1, yl=1, D=5, pre3=2, cpre=1, clag=1, pg=48, fr=12, m2s=12, pl=23, pld=2, eo=1, es=26, er=4,
    bars='x012345678ac', obf='sc1', touch=0, seam2=0, v2r=2)

def build(opt={}):
    O = dict(DEF); O.update(opt)
    B1f.FL = ''; B1f.GRP = 0; B3s.ORD = 0; WD2.NB = 4; LookBack.N = 8
    k = Kernel(NAME + "_kernel", nv=256, na=256)
    LX = 131072; LT2 = LX + 16384; LDS = LT2 + 16384
    A0, A1, A2, A3, B0, B1_, B2, B3_ = [16384 * i for i in range(8)]
    k("s_cmp_ge_u32 s2, 256")
    k(f"s_cbranch_scc1 {k.name}_end")
    KP = k.s.alloc(32, 4)
    k(f"s_load_dwordx16 {KP[0:16]}, s[0:1], 0\ns_load_dwordx16 {KP[16:32]}, s[0:1], 64")
    P = {n: KP[o // 4:o // 4 + 2] for n, o in KA.items()}
    def rel(*names):
        for n in names: k.s.free(P.pop(n))
    I = ids2(k); cd = k.v.alloc(); I['tag'] = True
    pf = Prof(k, 0)
    SK = int(os.environ.get("SKEW", "0"))
    if SK:
        assert PROF
        a_, b_, c_ = k.s.alloc(2), k.s.alloc(2), k.s.alloc(); lp = k.lab('skew')
        k(f"""s_and_b32 {c_}, s2, 7
        s_lshl_b32 {c_}, {c_}, 2
        s_lshr_b32 {c_}, 0x75a83100, {c_}
        s_and_b32 {c_}, {c_}, 15
        s_mul_i32 {c_}, {c_}, {SK}
        s_memrealtime {a_}
        s_waitcnt lgkmcnt(0)
        {lp}:
        s_memrealtime {b_}
        s_waitcnt lgkmcnt(0)
        s_sub_u32 {b_[0]}, {b_[0]}, {a_[0]}
        s_cmp_lt_u32 {b_[0]}, {c_}
        s_cbranch_scc1 {lp}""")
        k.s.free(a_, b_, c_)
    code_touch(k, I, 0, 40960, cd)
    sx, sb = k.s.alloc(4), k.s.alloc(4)
    k(f"s_mov_b32 {sx[2]}, {SZ['x']}\ns_mov_b32 {sx[3]}, 0x20000\ns_mov_b32 {sb[2]}, {SZ['bre']}\ns_mov_b32 {sb[3]}, 0x20000")
    xva, xso = xtile_addr(k, I, LX)
    k(f"s_mov_b64 {sx[0:2]}, {P['x']}")
    for j in range(4):
        ldx = k(f"buffer_load_dwordx4 {xva}, {sx}, {xso} offen offset:{1024*j} lds")
        if j < 3: k(f"s_add_u32 {xso}, {xso}, {8*32768 - 1024}")
    k.v.free(xva); k.s.free(xso)
    g1 = B1k(k, I, sx, sb)
    k(f"s_bitcmp1_b32 {I['w']}, 0\ns_cselect_b64 {sb[0:2]}, {P['bim']}, {P['bre']}")
    rel('x', 'bx', 'bre', 'bim')
    pf('xi')
    H = {}; V = {}
    CA = k.a.alloc(256)
    dq = [(-1 if s < 4 else s - 4, lambda s=s, i=i: g1.dma(s, i)) for s in range(0, 16) for i in range(8)]
    take = lambda n: [dq.pop(0)[1] for _ in range(n)]
    T = ph2_params(k, I)
    cw = coop_consts(k, I, T, LT2, 2.0 ** -20)
    if O['isl'] == 1: chain(k, I)
    def b_flags():
        V['one'], V['vfc'], V['vfh'] = k.v.alloc(), k.v.alloc(), k.v.alloc(); FH = V['FH'] = k.s.alloc()
        V['sdbg'] = srd(k, P['dbg'], 256); rel('dbg')
        k(f"""s_and_b32 {FH}, s2, 7
        s_lshl_b32 {FH}, {FH}, 8
        s_add_u32 {FH}, {FH}, s2
        s_and_b32 {FH}, {FH}, -8
        s_lshl_b32 {FH}, {FH}, 1
        v_mov_b32 {V['vfc']}, {FH}
        s_lshl_b32 {FH}, {I['cb']}, 14""")
        V['se'] = srd(k, P['ws'], 8192, WS_E, FH)
        k(f"""s_lshl4_add_u32 {FH}, {I['cb']}, {I['ca']}
        s_lshl_b32 {FH}, {FH}, 7
        v_lshl_add_u32 {V['vfh']}, {I['n']}, 2, {FH}
        s_mov_b32 {FH}, 8192
        v_mov_b32 {V['one']}, 1""")
    def b_c():
        sc = srd(k, P['cre'], SZ['cre']); sc_i = srd(k, P['cim'], SZ['cim']); rel('cre', 'cim')
        V['CL'] = CLoadS(k, I, sc, sc_i, CA)
    wsl = (A0, A1, B1_, A2)
    def b_w():
        swr = V['swr'] = srd(k, P['wr'], SZ['wr']); swi = V['swi'] = k.s.alloc(4)
        k(f"s_sub_u32 {swi[0]}, {P['wi'][0]}, 1024\ns_subb_u32 {swi[1]}, {P['wi'][1]}, 0\ns_mov_b32 {swi[2]}, {SZ['wi'] + 1024}\ns_mov_b32 {swi[3]}, 0x20000")
        rel('wr', 'wi')
        V['WD'] = WD2(k, I, T, swr, swi, wsl, LT2)
    def b_scan():
        V['Pa'] = {}; scan_addr(k, I, V['Pa'], LT2)
        V['E1h'] = {}; hstore_addr(k, I, V['E1h'])
    def b_g3():
        V['sh'] = srd(k, P['ws'], 8 << 20, WS_H); V['sv2'] = srd(k, P['ws'], 256 * V2_STR, WS_V2); V['sg'] = srd(k, P['ws'], G_BYTES, WS_G)
        V['g3'] = B3s(k, I, V['sh'], V['CL'])
    blocks = [b_flags, b_c, b_w, b_scan, b_g3]
    with k.capture() as c0:
        g1.readers()
        sf = srd(k, P['ws'], 8192 + 32768, WS_F)
        FV = k.s.alloc(); zero = k.v.alloc(); vpc = k.v.alloc()
        k(f"""v_mov_b32 {zero}, 0
        v_lshlrev_b32 {vpc}, 4, v0
        s_mov_b32 {FV}, 4096
        s_cmp_lg_u32 s2, 0""")
        with k.skip_if("s_cbranch_scc1"):
            tz = k.v.alloc(4)
            for j in range(4): k(f"v_mov_b32 {tz[j]}, 0")
            k(f"buffer_store_dwordx4 {tz}, {vpc}, {sf}, 0 offen {SC}")
            g1.extra.append(k(f"buffer_store_dwordx4 {tz}, {vpc}, {sf}, {FV} offen {SC}"))
            k.v.free(tz)
        sgw = srd(k, P['gw'], SZ['gw']); rel('gw')
        sv1 = srd(k, P['ws'], 256 * V1_STR, WS_V1)
        F = gen_F2(k, I)
        for b in blocks[:O['mv']]: b()
    acts = take(8)
    c0.weave(acts, O['p0'], O['lead0'])
    while acts: acts.pop(0)()
    if O['isl'] == 2: chain(k, I)
    pf('su')
    GL = GateL(k, I, sgw, g1.mA, A3); GL.mul = True; k.s.free(sgw)
    if O['spos'] == 0: Q, Dk = small_issue(k, I, P)
    for f_ in take(O['n0']): f_()
    if O['isl'] == 3: chain(k, I)
    k.wait(ldx, cw); k("s_barrier"); pf("xt")
    with k.capture() as c1:
        def h1(n):
            if n == 't':
                h1.n += 1
                if h1.n == O['gls']: GL.setup()
        h1.n = 0
        O1 = ph1f(k, I, F, LX, sv1, h1)
        k.v.free(F)
        XK = xkeepM(k, I, LX)
    j3 = len(dq) - 12 * 8 - 4; f3 = dq[j3][1]
    def g3a():
        assert any(i is GL.rd for i in k.ins); k.wait(GL.rd); f3()
    dq[j3] = (dq[j3][0], g3a)
    acts = take(24 - O['n0'])
    c1.weave(acts, O['p1'], O['lead1'])
    while acts: acts.pop(0)()
    if O['spos'] == 1: Q, Dk = small_issue(k, I, P)
    rel('lre', 'lim', 'ldt', 'dsk')
    pf("ph1")
    g1.alloc()
    with k.capture() as fl1:
        ph1_store(k, *O1, sv1)
        if O['mv'] < 1: b_flags()
        one, vfc, vfh, FH, se, sdbg = [V[n] for n in ('one', 'vfc', 'vfh', 'FH', 'se', 'sdbg')]
        t = k.v.alloc(2); st = k.s.alloc()
        k(f"""s_sub_u32 {st}, 15, {I['ca']}
        s_lshl_b32 {st}, {st}, 9
        v_lshl_add_u32 {t[0]}, v0, 2, {st}
        v_mov_b32 {t[1]}, -1
        s_cmp_ge_u32 {I['w']}, 2""")
        with k.skip_if("s_cbranch_scc1"):
            k(f"buffer_store_dword {t[1]}, {t[0]}, {se}, 0 offen {SC}")
        wave0_store(k, I, f"buffer_store_dword {zero}, {vfh}, {sf}, {FH} offen {SC}", 65535)
        H['clr'] = [i for i in k.ins if i.cls == 'vm'][-1]
        k(f"s_or_b32 {st}, {I['w']}, s2\ns_cmp_lg_u32 {st}, 0")
        with k.skip_if("s_cbranch_scc1"):
            k(f"s_mov_b64 exec, 1\nbuffer_store_dword {one}, {zero}, {sdbg}, 0 offen {SC}\ns_mov_b64 exec, -1")
        k.v.free(t); k.s.free(st)
        n1 = len(k.ins)
        C2 = coop_read(k, I, LT2, {n: CA[224 + 8 * j:232 + 8 * j] for j, n in enumerate(('m2f', 'm2i', 'm1i', 'si'))})
        for b in blocks[max(1, O['mv']):3]: b()
        n2 = len(k.ins)
        Pm = ssm_param_compute(k, Q)
        Dk = diagM(k, I, Dk)
        for b in blocks[max(3, O['mv']):]: b()
        ntot = len(k.ins)
    CL, WD, g3, sh, sv2, sg = [V[n] for n in ('CL', 'WD', 'g3', 'sh', 'sv2', 'sg')]; Pm.update(V['Pa'])
    p0 = Poll(k, sdbg, zero, 1, 1, sleep=16)
    p1 = Poll(k, sf, vpc, 1, 1, sleep=16)
    dq.append((-1, lambda: (p1.issue(), WD.extra_issue())))
    for s, slot in ((-1, LX), (12, B0)): dq += [(s, lambda slot=slot: CL.issue1(slot))] * 4
    wq = [(max(s, O['gap']), WD.issue1) for s in (12, 13, 13, 14) for _ in range(4)]
    dq += wq[:4 * O['wtail']]; wq = wq[4 * O['wtail']:]
    def pre_bar(s):
        if s == O['sig']: k.wait(H['clr'])
    def post_bar(s):
        if s in (O['t1'], O['t2']): code_touch(k, I, 1 + (s & 1), O['tn'], cd)
        if s == O['pts']:
            assert ntot - fl1.left() >= n2
            pretouch(k, I, V['swr'], V['swi'], None, None, cd, 'w', O.get('wf', ''))
        if s == O['sig'] - 3: p0.issue()
        if s == O['sig']:
            fl1.emit_until_safe()
            p0.finish()
            wave0_store(k, I, f"buffer_store_dword {one}, {vfc}, {sf}, 0 offen {SC}")
    def fill1(s, kk, m):
        tgt = [(0, O['f0']), (O['f1'], n1), (O['f2'], n2), (14, ntot)]
        x = s + (4 * kk + m + 1) / 16.0 - 1; px, py = -1, 0
        for qx, qy in tgt:
            if x <= qx: want = py + (qy - py) * (x - px) / (qx - px); break
            px, py = qx, qy
        else: want = ntot
        while fl1.groups and ntot - fl1.left() < want: fl1.emit(1)
        if kk == 0 and m == 0: GL.read2(s)
        if (kk, m) in ((1, 3), (2, 1), (3, 0)): GL.exact(s, kk - 1)
        if s == 14 and kk == 3 and m == 3: fl1.flush()
        if kk == 3 and m == 0 and (s % 4 == 3 or PROFSEL): pf(f"a{s}")
    assert O['f2'] <= 10
    if O.get('fra'): k.v.free(g1.fr); g1.fr = CA[64:96]; fv = k.v.free; k.v.free = lambda *r: fv(*[x for x in r if getattr(x, 'kind', 'v') == 'v'])
    acc = main16(g1, CA, dq, fill1, pre_bar, post_bar, None) if O.get('m16') else g1.main(dq, fill1, pre_bar, post_bar, lambda s, kk, m: (1 if m >= 1 else 0) if s >= O['fend'] else (1 if m >= 2 else 0))
    pf("main1")
    k.s.free(sx, sb, sdbg); k.v.free(zero)
    with k.capture() as c2:
        E1 = pass1c(k, I, acc, Pm, LT2); E1.update(V['E1h'])
    acts = [x[1] for x in dq]
    c2.weave(acts, 64)
    while acts: acts.pop(0)()
    p1.finish()
    k.wait(E1['w']); k("s_barrier")
    publish(k, I, E1, Pm, se)
    pf("pass1")
    LT1 = A3; nlate = O['late']; free = [B3_, B2]; state = {}
    def c1act():
        if CL.n >= 64 - 4 * nlate: return
        if CL.n & 3 == 0:
            if not free: free.append(CL.drain())
            state['cur'] = free.pop(0)
            if not free and CL.nd < CL.n // 4 - O['lag'] + 1: free.append(CL.drain())
        CL.issue1(state['cur'])
    def cfinish():
        while CL.n & 3: c1act()
    L1 = v1_issue(k, I, T, sv1, SC); k.s.free(sv1)
    with k.capture() as c3:
        scan_coef(k, acc, Pm)
        carry_prep(k, I, E1, Pm)
    acts = [x[1] for x in wq] + [c1act] * (4 * O['nb'])
    c3.weave(acts, O['pb'], 100)
    while WD.n < 16: WD.issue1()
    cfinish()
    lb = LookBack(k, Pm, se); lb.issue()
    pf("coef")
    with k.capture() as c4:
        GL.finish(LT2 + 8192)
        t1w = ph2_s1(k, I, C2, L1, LT1)
    c4.weave([c1act] * (4 * O['nlb']), O['pb'])
    cfinish()
    pf("s1")
    E = lb.finish(); k.s.free(se)
    pf("lb")
    lasth = pass2c(k, I, acc, Pm, E1, E, sh, lambda q: None)
    pf("pass2")
    Wf, WX = WD.gather_all()
    while CL.nd < CL.n // 4: free.append(CL.drain())
    WD.fix(Wf, WX); free.extend(wsl)
    if O['t3']: code_touch(k, I, 3, O['t3'], cd)
    k.wait(t1w); k("s_barrier")
    gate_store(k, I, sg, LT2 + 8192)
    pf("bar1")
    vph = k.v.alloc(); tt = k.s.alloc()
    k(f"s_lshr_b32 {tt}, {I['tb']}, 3\ns_lshl2_add_u32 {tt}, {tt}, {I['w']}\ns_lshl_b32 {tt}, {tt}, 12\nv_lshl_add_u32 {vph}, {I['l']}, 7, {tt}")
    k.s.free(tt)
    p3 = Poll(k, sf, vph, 1, 1, FH, mask=0xffffffff)
    def mark(i):
        if i == O['hmark']:
            k.wait(lasth); k("s_barrier")
            wave0_store(k, I, f"buffer_store_dword {one}, {vfh}, {sf}, {FH} offen {SC}", 65535)
            pf("hflag")
    with k.capture() as c5: ph2_mid(k, I, T, C2, Wf, WX, LT1, LT2, mark)
    acts = [c1act] * (64 - 4 * nlate - CL.n)
    c5.weave(acts, O['pc'], O['leadc'])
    while acts: acts.pop(0)()
    pf("mid")
    if O['pollat'] == 0: p3.issue()
    k("s_waitcnt lgkmcnt(0)\ns_barrier")
    V2 = ph2_s6(k, I, C2, LT2)
    if O['pollat'] == 1: p3.issue()
    while CL.nd < CL.n // 4: CL.drain()
    H['v2'] = v2_store(k, *V2, sv2)
    g3.alloc()
    xd_initM(k, XK, Dk, g3.acc)
    pf("s6")
    p3.finish(); k.v.free(vph)
    k("s_waitcnt lgkmcnt(0)\ns_barrier")
    pf("sync3")
    return tailT(k, I, O, P, H, locals())

def with_islands(src, name, path):
    import subprocess, re
    sys.path.insert(0, os.path.join(os.path.dirname(os.path.abspath(__file__)), '..'))
    from cdna_launch import with_harness_metadata
    lines = src.split('\n')
    tmp = '\n'.join(l.replace('@ISL0', name + '_ret').replace('@ISL1', name + '_ret').replace('@ISL2', name + '_ret').replace('@ISL3', name + '_ret') for l in lines)
    hs, ob = path + '.tmp.s', path + '.tmp.o'
    open(hs, 'w').write(with_harness_metadata(tmp, name, 16, launch_lists=True))
    subprocess.run(["clang", "-x", "assembler", "-target", "amdgcn-amd-amdhsa", "-mcpu=gfx950", "-c", hs, "-o", ob], check=True)
    dis = subprocess.run(["llvm-objdump", "-d", "--mcpu=gfx950", ob], capture_output=True, text=True).stdout
    os.remove(hs); os.remove(ob)
    dis = dis[dis.index(f"<{name}>:"):]
    addrs = [int(m.group(1), 16) for m in re.finditer(r'// ([0-9A-F]{12}):', dis)]
    a = lines.index(name + ':'); b = lines.index('.section .rodata,"a"')
    idx = [j for j in range(a + 1, b) if lines[j].startswith('  ') and not lines[j].strip().startswith(';')]
    assert len(idx) == len(addrs), (len(idx), len(addrs))
    ret = lines.index(name + '_ret:'); spots = []; page = None
    for j, ad in zip(idx, addrs):
        p = (ad + 8 * len(spots)) >> 12
        if page is not None and p != page and j > ret: spots.append(j)
        page = p
    n = len(spots)
    for q, j in reversed(list(enumerate(spots))):
        nxt = f"{name}_isl{q+4}" if q + 4 < n else name + '_ret'
        lines[j:j] = [f"  s_branch {name}_isk{q}", f"{name}_isl{q}:", f"  s_branch {nxt}", f"{name}_isk{q}:"]
    return '\n'.join(lines).replace('@ISL', name + '_isl')

def chain(k, I):
    for w in range(3): k(f"s_cmp_eq_u32 {I['w']}, {w}\ns_cbranch_scc1 @ISL{w}")
    k(f"s_branch @ISL3\n{k.name}_ret:\ns_nop 1")

def write(path, opt={}):
    assert not (path.endswith(NAME + ".s") and (PROF or DIAG or DBGP or JIT)), "diagnostics must not go into the submitted kernel"
    k, lds = build(opt)
    src = module(header(), [(k.name, 256, 256, lds)], [k]).replace(".text\n.p2align 8", f".text\n.p2align 12\n.fill {opt.get('pad', DEF['pad'])*64}, 4, 0xbf800000\n.p2align 8")
    if '@ISL' in src: src = with_islands(src, k.name, path)
    open(path, "w").write(src)
    print(path, k.stats)
    if os.environ.get('SEG'): k.segstats()
    if PROF: json.dump([k.profnames], open(path[:-2] + ".json", "w"))

if __name__ == "__main__":
    opt = {}
    for a in sys.argv[2:]:
        n, v = a.split("="); opt[n] = int(v) if v.lstrip('-').isdigit() else v
    write(sys.argv[1] if len(sys.argv) > 1 else "outf.s", opt)
```
